```python
import torch

def _softmax(x, axis=-1):
    return torch.softmax(x, dim=axis)
def _gelu(x):
    return torch.nn.functional.gelu(x, approximate="tanh")
def _silu(x):
    return torch.nn.functional.silu(x)
def _sigmoid(x):
    return torch.sigmoid(x)
def _layernorm(x, axis=-1, eps=1e-5):
    m = x.mean(dim=axis, keepdim=True)
    v = x.var(dim=axis, keepdim=True, unbiased=False)
    return (x - m) / torch.sqrt(v + eps)
def _scatter_add(tgt, idx, src, axis=0):
    return tgt.clone().index_add_(axis, idx, src)
def _segment_sum(src, seg, n):
    out = torch.zeros((n,) + src.shape[1:], dtype=src.dtype)
    return out.index_add_(0, seg, src)
def _pad(x, pw):
    flat = tuple(v for pair in reversed(pw) for v in pair)
    return torch.nn.functional.pad(x, flat)

kernel_name = 'interleave_layers__linear_kernel_hedgehog__sliding_local_dilated__prompt'

def setup_inputs():

    _w = (lambda a: (lambda t: t.to(torch.bfloat16) if t.is_floating_point() else t)(torch.as_tensor(a)))
    def _A_setup():
        B, S, D, H = 1, 2048, 1024, 32
        Dh = D // H
        return {
            "x": _w((lambda *s: torch.randn(*s, dtype=torch.bfloat16) * 0.05)(B, S, D)),
            "wqkv": _w((lambda *s: torch.randn(*s, dtype=torch.bfloat16) * 0.2)(D, 3 * D)),
            "w_phi": _w((lambda *s: torch.randn(*s, dtype=torch.bfloat16) * 0.2)(H, Dh, Dh) * (Dh ** -0.5)),
            "wo": _w((lambda *s: torch.randn(*s, dtype=torch.bfloat16) * 0.05)(D, D)),
        }
    _A_in = _A_setup()

    def _B_setup():
        B, S, D = 1, 2048, 1024
        return {
            "x": _w((lambda *s: torch.randn(*s, dtype=torch.bfloat16) * 0.05)(B, S, D)),
            "wqkv": _w((lambda *s: torch.randn(*s, dtype=torch.bfloat16) * 0.1)(D, 3 * D)),
            "wo": _w((lambda *s: torch.randn(*s, dtype=torch.bfloat16) * 0.05)(D, D)),
        }
    _B_in = _B_setup()

    return {
        "A_x": _A_in["x"],
        "A_wqkv": _A_in["wqkv"],
        "A_w_phi": _A_in["w_phi"],
        "A_wo": _A_in["wo"],
        "B_x": _B_in["x"],
        "B_wqkv": _B_in["wqkv"],
        "B_wo": _B_in["wo"],
    }

def reference(A_x, A_wqkv, A_w_phi, A_wo, B_x, B_wqkv, B_wo):
    def _A_ref(x, wqkv, w_phi, wo):
        B, S, D = x.shape
        H = 32; Dh = D // H
        qkv = (lambda x, *d: x.permute(*d))((x @ wqkv).reshape(B, S, 3, H, Dh), 2, 0, 3, 1, 4)
        q, k, v = qkv[0], qkv[1], qkv[2]
        pq = torch.einsum("bhsd,hdf->bhsf", q, w_phi)
        pk = torch.einsum("bhsd,hdf->bhsf", k, w_phi)
        phi_q = torch.concatenate([_softmax(pq, axis=-1), _softmax(-pq, axis=-1)], axis=-1)
        phi_k = torch.concatenate([_softmax(pk, axis=-1), _softmax(-pk, axis=-1)], axis=-1)
        kv = torch.einsum("bhsf,bhsd->bhfd", phi_k, v)
        z  = torch.einsum("bhsf->bhf", phi_k)
        num = torch.einsum("bhqf,bhfd->bhqd", phi_q, kv)
        den = torch.einsum("bhqf,bhf->bhq", phi_q, z)[..., None] + 1e-6
        o = num / den
        return (lambda x, *d: x.permute(*d))(o, 0, 2, 1, 3).reshape(B, S, D) @ wo

    def _B_ref(x, wqkv, wo):
        B, S, D = x.shape
        H = 32; Dh = D // H
        W, dil = 8, 2
        qkv = (lambda x, *d: x.permute(*d))((x @ wqkv).reshape(B, S, 3, H, Dh), 2, 0, 3, 1, 4)
        q, k, v = qkv[0], qkv[1], qkv[2]
        scale = Dh ** -0.5
        pos = torch.arange(S)
        off = torch.arange(W) * dil
        idx = pos[:, None] - off[None, :]
        mask = idx >= 0
        idx_c = torch.where(mask, idx, 0).reshape(-1)
        kg = k[:, :, idx_c, :].reshape(B, H, S, W, Dh)
        vg = v[:, :, idx_c, :].reshape(B, H, S, W, Dh)
        logits = torch.einsum("bhsd,bhswd->bhsw", q, kg) * scale
        logits = torch.where(mask[None, None, :, :], logits, -1e9)
        attn = _softmax(logits, axis=-1)
        o = torch.einsum("bhsw,bhswd->bhsd", attn, vg)
        return (lambda x, *d: x.permute(*d))(o, 0, 2, 1, 3).reshape(B, S, D) @ wo

    x = A_x
    x = x + _A_ref(_layernorm(x, axis=-1), A_wqkv, A_w_phi, A_wo)
    x = x + _B_ref(_layernorm(x, axis=-1), B_wqkv, B_wo)
    x = x + _A_ref(_layernorm(x, axis=-1), A_wqkv, A_w_phi, A_wo)
    x = x + _B_ref(_layernorm(x, axis=-1), B_wqkv, B_wo)
    return x
```

```python
import re

REG_RE = re.compile(r'(?<![\w.])([vas])(?:(\d+)|\[(\d+):(\d+)\])(?![\w])')

def regs_of(tok):
    out = set()
    for m in REG_RE.finditer(tok):
        k = m.group(1)
        if m.group(2) is not None:
            out.add((k, int(m.group(2))))
        else:
            for i in range(int(m.group(3)), int(m.group(4)) + 1):
                out.add((k, i))
    t = tok.strip().lstrip('-')
    if t in ('vcc', 'vcc_lo', 'vcc_hi'): out.add(('x', 'vcc'))
    if t in ('exec', 'exec_lo', 'exec_hi'): out.add(('x', 'exec'))
    if t == 'm0': out.add(('x', 'm0'))
    return out

def split_ops(s):
    ops, depth, cur = [], 0, ''
    for ch in s:
        if ch in '[(': depth += 1
        if ch in '])': depth -= 1
        if ch == ',' and depth == 0:
            ops.append(cur.strip()); cur = ''
        else:
            cur += ch
    if cur.strip(): ops.append(cur.strip())
    return ops

TRANS = ('v_exp_', 'v_log_', 'v_rcp_', 'v_rsq_', 'v_sqrt_', 'v_sin_', 'v_cos_')

class Ins:
    def __init__(self, text):
        self.text = text
        t = text.split(';')[0].strip()
        self.is_label = t.endswith(':')
        self.is_dir = t.startswith('.') and not self.is_label
        self.mn = ''
        self.rd, self.wr = set(), set()
        self.kind = 'none'
        if not t or self.is_label or self.is_dir:
            return
        p = t.split(None, 1)
        mn = self.mn = p[0]
        rest = p[1] if len(p) > 1 else ''
        ops = split_ops(rest)
        mods = ''
        if ops:
            last = ops[-1]
            m = re.match(r'^(\S+)\s+(.*)$', last)
            if m and not last.startswith('abs(') :
                ops[-1] = m.group(1); mods = m.group(2)
        self.mods = mods
        self.ops = ops
        R = [regs_of(o) for o in ops]
        def U(idx):
            s = set()
            for i in idx:
                if i < len(R): s |= R[i]
            return s
        n = len(ops)
        self.passes = 0
        if mn.startswith('v_mfma'):
            self.kind = 'mfma'
            self.wr = R[0]; self.A = R[1]; self.B = R[2]; self.C = R[3]
            self.rd = self.A | self.B | self.C
            self.passes = 8 if '32x32' in mn else 4
            assert mn in ('v_mfma_f32_32x32x16_bf16', 'v_mfma_f32_16x16x32_bf16'), mn
        elif mn.startswith('v_'):
            self.kind = 'valu'
            self.trans = mn.startswith(TRANS)
            self.dpp = ('_dpp' in mn) or ('quad_perm' in mods) or ('row_' in mods)
            self.perm = mn.startswith('v_permlane')
            if mn.startswith('v_cmp'):
                assert not mn.startswith('v_cmpx')
                self.wr = R[0]; self.rd = U(range(1, n))
            elif mn.startswith('v_permlane') and 'swap' in mn:
                self.wr = R[0] | R[1]; self.rd = R[0] | R[1]
            elif mn.startswith(('v_add_co', 'v_sub_co', 'v_addc_co', 'v_subb_co')):
                self.wr = R[0] | R[1]; self.rd = U(range(2, n))
            elif mn == 'v_nop':
                pass
            else:
                self.wr = R[0]; self.rd = U(range(1, n))
                if mn.startswith(('v_fmac', 'v_pk_fmac', 'v_dot2c', 'v_writelane')) or self.dpp or 'sdwa' in mn:
                    self.rd |= R[0]
        elif mn.startswith('ds_'):
            self.kind = 'ds'
            if mn.startswith(('ds_read', 'ds_bpermute', 'ds_permute', 'ds_swizzle')):
                self.wr = R[0]; self.rd = U(range(1, n))
            elif '_rtn' in mn:
                self.wr = R[0]; self.rd = U(range(1, n))
            else:
                self.rd = U(range(n))
        elif mn.startswith(('buffer_', 'global_')):
            self.kind = 'vmem'
            self.lds = bool(re.search(r'\blds\b', mods)) or '_lds_' in mn
            self.wide_data = set()
            if mn.startswith(('buffer_wbl2', 'buffer_inv')):
                pass
            elif self.lds:
                self.rd = U(range(n)) | {('x', 'm0')}
            elif '_load' in mn:
                self.wr = R[0]; self.rd = U(range(1, n))
            elif '_atomic' in mn:
                self.rd = U(range(n))
                if re.search(r'\bsc0\b', mods):
                    self.wr = R[0]
            else:
                self.rd = U(range(n))
                if mn.endswith(('x3', 'x4')):
                    self.wide_data = R[0] if mn.startswith('buffer_') else R[1]
        elif mn.startswith('s_'):
            self.kind = 'salu'
            if mn.startswith(('s_load', 's_memtime', 's_memrealtime', 's_buffer_load')):
                self.kind = 'smem'
                self.wr = R[0]; self.rd = U(range(1, n))
            elif mn.startswith(('s_cmp', 's_bitcmp', 's_waitcnt', 's_barrier', 's_nop', 's_branch', 's_cbranch', 's_endpgm', 's_setprio', 's_sleep', 's_setpc')):
                self.rd = U(range(n))
            elif 'saveexec' in mn:
                self.wr = R[0] | {('x', 'exec')}; self.rd = U(range(1, n)) | {('x', 'exec')}
            else:
                self.wr = R[0] if R else set(); self.rd = U(range(1, n))
                if mn.startswith(('s_addk', 's_mulk', 's_cmov')): self.rd |= R[0]
        else:
            raise ValueError('unknown instruction ' + t)

    def states(self):
        if self.kind == 'none': return 0
        if self.mn == 's_nop': return int(self.ops[0], 0) + 1
        return 1

def isv(s): return {r for r in s if r[0] in 'va'}
def iss(s): return {r for r in s if r[0] == 's' or r == ('x', 'vcc')}

def need(p, c):
    w = 0
    if p.kind == 'valu':
        pv = isv(p.wr); ps = iss(p.wr)
        if c.kind == 'mfma' and pv & c.rd: w = max(w, 2)
        if c.kind == 'valu':
            if (c.dpp or c.perm) and pv & c.rd: w = max(w, 2)
            if c.mn.startswith(('v_readlane', 'v_readfirstlane')) and pv & c.rd: w = max(w, 1)
            if p.trans and pv & c.rd: w = max(w, 1)
            if ('op_sel' in p.mods and not p.mn.startswith('v_pk_') or 'sdwa' in p.mn) and pv & (c.rd | c.wr): w = max(w, 1)
            if ps & c.rd:
                w = max(w, 4 if c.mn.startswith(('v_readlane', 'v_writelane', 'v_div_fmas')) else 2)
            if p.mn.startswith('v_dot') and pv & (c.rd | c.wr):
                w = max(w, 3 if not (c.mn == p.mn and not (pv & (regs_of(c.ops[1]) | regs_of(c.ops[2])))) else 0)
        if p.mn.startswith('v_dot') and c.kind in ('vmem', 'ds', 'mfma') and pv & c.rd: w = max(w, 3)
        if c.kind == 'vmem' and ps & c.rd: w = max(w, 5)
        if c.kind in ('salu', 'smem') and ps & c.rd: w = max(w, 1)
    if p.kind == 'mfma':
        n = p.passes
        if c.kind == 'mfma':
            if p.wr & (c.A | c.B): w = max(w, n + 4)
            if p.wr & c.C:
                if not (p.wr == c.C and c.passes == n): w = max(w, n + 2)
            elif p.wr & c.wr: w = max(w, n + 2)
        elif c.kind in ('valu', 'vmem', 'ds'):
            if p.wr & (c.rd | c.wr): w = max(w, n + 4)
            if c.kind == 'valu' and p.C & c.wr: w = max(w, n - 1)
            if c.kind != 'valu' and p.C & c.wr: w = max(w, n - 1)
    if p.kind == 'vmem' and getattr(p, 'wide_data', None):
        if p.wide_data & c.wr: w = max(w, 2)
    if p.kind == 'salu' and ('x', 'm0') in p.wr and c.kind == 'vmem' and c.lds: w = max(w, 1)
    return w

MAXW = 12

class Asm:
    def __init__(self):
        self.ins = []
    def __call__(self, text):
        for l in text.split('\n'):
            l = l.strip()
            if l: self.ins.append(Ins(l))
    def extend(self, lst):
        for l in lst: self(l)
    def label(self, name): self(name + ':')

    def pad(self):
        changed = True
        rounds = 0
        while changed:
            changed = False; rounds += 1
            assert rounds < 50
            ins = self.ins
            labels = {i.text.split(';')[0].strip()[:-1]: k for k, i in enumerate(ins) if i.is_label}
            bpred = {}
            for k, i in enumerate(ins):
                if i.mn.startswith(('s_branch', 's_cbranch')):
                    bpred.setdefault(labels[i.ops[0]], []).append(k)
            out = []
            def back(k, dist, c, seen):
                miss = 0
                j = k - 1
                while j >= 0 and dist < MAXW:
                    p = ins[j]
                    if p.is_label:
                        for b in bpred.get(j, []):
                            if (b, dist) not in seen:
                                seen.add((b, dist))
                                miss = max(miss, back(b + 1, dist, c, seen))
                    if p.kind != 'none':
                        if p.mn in ('s_branch', 's_endpgm', 's_setpc_b64') and j != k - 1:
                            break
                        if p.mn in ('s_branch', 's_endpgm', 's_setpc_b64') and j == k - 1 and not seen:
                            break
                        miss = max(miss, need(p, c) - dist)
                        dist += p.states()
                    j -= 1
                return miss
            for k, c in enumerate(ins):
                if c.kind != 'none':
                    m = back(k, 0, c, set())
                    if m > 0 and not changed:
                        out.append(Ins('s_nop %d' % (m - 1)))
                        changed = True
                        ins_rest = ins[k:]
                        self.ins = out + ins_rest
                        break
                out.append(c)
            if changed:
                self._greedy(len(out))
        return self

    def _greedy(self, start):
        ins = self.ins
        out = ins[:start]
        for c in ins[start:]:
            if c.kind != 'none':
                dist = 0; miss = 0; j = len(out) - 1
                while j >= 0 and dist < MAXW:
                    p = out[j]
                    if p.kind != 'none':
                        if p.mn in ('s_branch', 's_endpgm', 's_setpc_b64'): break
                        miss = max(miss, need(p, c) - dist)
                        dist += p.states()
                    j -= 1
                if miss > 0: out.append(Ins('s_nop %d' % (miss - 1)))
            out.append(c)
        self.ins = out

    def text(self):
        o = []
        for i in self.ins:
            o.append(i.text if (i.is_label or i.is_dir) else '    ' + i.text)
        return '\n'.join(o) + '\n'

    def maxreg(self, kind):
        m = -1
        for i in self.ins:
            for r in i.rd | i.wr:
                if r[0] == kind: m = max(m, r[1])
        return m


def autowait(lines, vm0=0, lgkm0=0):
    out = []
    vm, lg = [], []
    for l in lines:
        for t in l.split('\n'):
            t = t.strip()
            if not t: continue
            i = Ins(t)
            assert not i.is_label and not i.mn.startswith(('s_branch', 's_cbranch')), 'autowait: straight-line only: ' + t
            if i.mn == 's_waitcnt':
                m = re.search(r'vmcnt\((\d+)\)', t)
                if m: vm = vm[max(0, len(vm) - int(m.group(1))):] if int(m.group(1)) else []
                m = re.search(r'lgkmcnt\((\d+)\)', t)
                if m: lg = lg[max(0, len(lg) - int(m.group(1))):] if int(m.group(1)) else []
                out.append(t); continue
            touch = i.rd | i.wr
            w = []
            for name, q, mx in (('vmcnt', vm, 63), ('lgkmcnt', lg, 15)):
                last = -1
                for k, d in enumerate(q):
                    if d & touch: last = k
                if last >= 0:
                    n = min(len(q) - 1 - last, mx)
                    w.append('%s(%d)' % (name, n))
                    del q[:len(q) - n]
            if w: out.append('s_waitcnt ' + ' '.join(w))
            out.append(t)
            if i.kind == 'vmem' and not i.mn.startswith(('buffer_wbl2', 'buffer_inv')): vm.append(set(i.wr))
            elif i.kind == 'ds': lg.append(set(i.wr))
            elif i.kind == 'smem': raise ValueError('autowait: no smem')
    return out


class Alloc:
    def __init__(self, kind, start, limit):
        self.kind, self.free = kind, list(range(start, limit))
        self.hi = start
    def get(self, n=1, align=1):
        fs = set(self.free)
        for b in self.free:
            if b % align == 0 and all((b + i) in fs for i in range(n)):
                for i in range(n): self.free.remove(b + i)
                self.hi = max(self.hi, b + n)
                return b
        raise RuntimeError('out of %s registers' % self.kind)
    def put(self, b, n=1):
        for i in range(n):
            assert (b + i) not in self.free
            self.free.append(b + i)
        self.free.sort()

def vr(b, n=1, k='v'):
    return '%s%d' % (k, b) if n == 1 else '%s[%d:%d]' % (k, b, b + n - 1)
def sr(b, n=1): return vr(b, n, 's')
def ar(b, n=1): return vr(b, n, 'a')

def interleave(main, fill, start=0, per=None):
    out = []; f = list(fill)
    for i, m in enumerate(main):
        out.append(m)
        n = per[i] if per is not None else 0
        for _ in range(n):
            if f: out.append(f.pop(0))
    out += f
    return out

def kernel_desc(name, vgpr, sgpr, accum):
    return f""".section .rodata,"a"
.p2align 6
.amdhsa_kernel {name}
  .amdhsa_next_free_vgpr {vgpr}
  .amdhsa_next_free_sgpr {sgpr}
  .amdhsa_accum_offset {accum}
  .amdhsa_group_segment_fixed_size 0
  .amdhsa_kernarg_size 80
  .amdhsa_user_sgpr_count 2
  .amdhsa_user_sgpr_kernarg_segment_ptr 1
  .amdhsa_system_sgpr_workgroup_id_x 1
  .amdhsa_float_denorm_mode_32 3
.end_amdhsa_kernel
"""

def kernel_head(name):
    return f""".text
.globl {name}
.p2align 8
.type {name},@function
{name}:
"""
```

```python
import sys
sys.path.insert(0, 'work')
from asmlib import *

KNAME = 'interleave_layers__linear_kernel_hedgehog__sliding_local_dilated__prompt_kernel'

WS_CTR, WS_STAMP, WS_ST, WS_CS = 0x0, 0x100000, 0x200000, 0x300000
WS_HALO, WS_KVF, WS_ZP, WS_KVP = 0x400000, 0x600000, 0x680000, 0x800000
WS_XI, WS_OI, WS_END = 0x1000000, 0x1C00000, 0x2C00000
STG = 40960
L_SPARE = 3 * STG
L_WO = 24576
L_P = 155648
P_NM, P_RS, P_CS, P_PHI = L_P, L_P + 512, L_P + 1024, L_P + 3072
LDS_BYTES = 163840
SCR = 4352
LOG2E = 1.4426950408889634
import struct
def f2u(x): return '0x%08x' % struct.unpack('<I', struct.pack('<f', x))[0]

pAX, pAW, pPHI, pAWO, pBW, pBWO, pOUT, pDBG, pWS = 4, 6, 8, 10, 14, 16, 18, 20, 22
sWS, sX, sW, sWO, sOUT, sDBG = 24, 28, 32, 36, 40, 44
s_m, s_g, s_wave, s_l = 48, 49, 50, 51
s_t = 52
s_cnt, s_val = 60, 61
s_i = 62
s_stamp = 63
def srd(b): return 's[%d:%d]' % (b, b + 3)


def pkop(r):
    if isinstance(r, tuple):
        return vr(r[1] & ~1, 2), r[1] & 1, r[1] & 1
    assert r % 2 == 0
    return vr(r, 2), 0, 1
def pk(op, d, *src, neg=None):
    o = [pkop(s) for s in src]
    t = 'v_pk_%s_f32 %s, %s' % (op, vr(d, 2), ', '.join(x[0] for x in o))
    lo = [x[1] for x in o]; hi = [x[2] for x in o]
    if any(lo): t += ' op_sel:[%s]' % ','.join(map(str, lo))
    if not all(hi): t += ' op_sel_hi:[%s]' % ','.join(map(str, hi))
    if neg: t += ' neg_lo:[%s] neg_hi:[%s]' % (','.join(map(str, neg)), ','.join(map(str, neg)))
    return t
def cvt(d, a, b): return f'v_cvt_pk_bf16_f32 v{d}, v{a}, v{b}'
def sw16(a, b): return f'v_permlane16_swap_b32 v{a}, v{b}'
def sw32(a, b): return f'v_permlane32_swap_b32 v{a}, v{b}'
def mf16(d, A, B, C=None): return f'v_mfma_f32_16x16x32_bf16 {vr(d,4)}, {vr(A,4)}, {vr(B,4)}, ' + (vr(C, 4) if C is not None else '0')
def mf32(d, A, B, C=None): return f'v_mfma_f32_32x32x16_bf16 {vr(d,16)}, {vr(A,4)}, {vr(B,4)}, ' + (vr(C, 16) if C is not None else '0')


class Gen:
    def __init__(self, xm=4, prof=False, limit=40000):
        self.a = Asm()
        self.xm, self.prof, self.limit = xm, prof, limit
        self.nlab = 0

    def lab(self, p):
        self.nlab += 1
        return 'L_%s_%d' % (p, self.nlab)

    def aw(self, L):
        self.a.extend(autowait(L))

    def stamp(self, k):
        if not self.prof: return
        a = self.a
        a(f's_memrealtime s[{s_t+6}:{s_t+7}]')
        a(f's_mov_b32 s{s_stamp}, m0')
        a(f's_lshl_b32 m0, s{s_l}, 4'); a(f's_add_u32 m0, m0, {k}')
        a('s_waitcnt lgkmcnt(0)')
        a(f'v_writelane_b32 v255, s{s_t+6}, m0')
        a(f's_mov_b32 m0, s{s_stamp}')
    def stamp_out(self, lane):
        if not self.prof: return
        a = self.a
        a(f's_lshl_b32 s{s_t}, s2, 3'); a(f's_add_u32 s{s_t}, s{s_t}, s{s_wave}'); a(f's_lshl_b32 s{s_t}, s{s_t}, 8')
        a(f's_add_u32 s{s_t}, s{s_t}, {WS_STAMP}')
        a(f'v_lshlrev_b32 v254, 2, v{lane}')
        a(f'buffer_store_dword v255, v254, {srd(sWS)}, s{s_t} offen')
        a('s_waitcnt vmcnt(0)')

    def poll(self, srdb, soff, target, vt, tag):
        a = self.a
        L, D = self.lab('poll'), self.lab('polled')
        a(f's_mov_b32 s{s_cnt}, 0')
        a.label(L)
        a(f'buffer_load_dword v{vt}, off, {srd(srdb)}, {soff} sc1')
        a(f's_add_u32 s{s_cnt}, s{s_cnt}, 1')
        a('s_waitcnt vmcnt(0)')
        a(f'v_readfirstlane_b32 s{s_val}, v{vt}')
        a(f's_cmp_ge_u32 s{s_val}, {target}'); a(f's_cbranch_scc1 {D}')
        a(f's_cmp_lt_u32 s{s_cnt}, {self.limit}'); a(f's_cbranch_scc1 {L}')
        a(f'v_mov_b32 v{vt}, {1 << tag}')
        a(f'buffer_atomic_or v{vt}, off, {srd(sDBG)}, 0 offset:8 sc1')
        a.label(D)

    def signal(self, srdb, soff, vt):
        a = self.a
        a('s_mov_b64 exec, 1')
        a(f'v_mov_b32 v{vt}, 1')
        a(f'buffer_atomic_add v{vt}, off, {srd(srdb)}, {soff} sc1')
        a('s_mov_b64 exec, -1')

    def rctr(self, d, odd):
        a = self.a
        a(f's_lshl_b32 s{d}, s{s_l}, 5'); a(f's_add_u32 s{d}, s{d}, s{s_m}')
        if odd: a(f's_add_u32 s{d}, s{d}, 16')
        a(f's_lshl_b32 s{d}, s{d}, 8')
    def cctr(self, d, hop):
        a = self.a
        a(f's_lshl_b32 s{d}, s{s_l}, 4'); a(f's_add_u32 s{d}, s{d}, s{s_g}')
        a(f's_add_u32 s{d}, s{d}, {128 + 16*hop}')
        a(f's_lshl_b32 s{d}, s{d}, 8')

    def prologue(self):
        a = self.a; xm = self.xm
        a('s_cmp_ge_u32 s2, 256'); a('s_cbranch_scc1 L_end')
        a('s_load_dwordx16 s[4:19], s[0:1], 0')
        a('s_load_dwordx4 s[20:23], s[0:1], 64')
        a('v_lshrrev_b32 v2, 6, v0')
        a(f'v_readfirstlane_b32 s{s_wave}, v2')
        a('v_and_b32 v1, 63, v0')
        xg = 32 // xm; nxm = 16 // xm
        a(f's_and_b32 s{s_t}, s2, 7'); a(f's_lshr_b32 s{s_t+1}, s2, 3')
        a(f's_and_b32 s{s_m}, s{s_t}, {nxm-1}'); a(f's_mul_i32 s{s_m}, s{s_m}, {xm}')
        a(f's_and_b32 s{s_t+2}, s{s_t+1}, {xm-1}'); a(f's_add_u32 s{s_m}, s{s_m}, s{s_t+2}')
        a(f's_lshr_b32 s{s_g}, s{s_t}, {nxm.bit_length()-1}'); a(f's_mul_i32 s{s_g}, s{s_g}, {xg}')
        a(f's_lshr_b32 s{s_t+2}, s{s_t+1}, {xm.bit_length()-1}'); a(f's_add_u32 s{s_g}, s{s_g}, s{s_t+2}')
        a(f's_mov_b32 s{s_l}, 0')
        for b, n in ((sWS, WS_END), (sX, 2048*1024*2), (sW, 1024*3072*2), (sWO, 1024*1024*2), (sOUT, WS_END), (sDBG, 256)):
            a(f's_mov_b32 s{b+2}, {n}'); a(f's_mov_b32 s{b+3}, 0x20000')
        if self.prof: a('v_mov_b32 v255, 0')
        a('s_waitcnt lgkmcnt(0)')
        for b, p in ((sWS, pWS), (sX, pAX), (sW, pAW), (sWO, pAWO), (sOUT, pWS), (sDBG, pDBG)):
            a(f's_mov_b64 s[{b}:{b+1}], s[{p}:{p+1}]')
        self.stamp(0)
        a(f's_cmp_ge_u32 s{s_wave}, 6'); a('s_cbranch_scc1 L_helper')
        a(f's_cmp_ge_u32 s{s_wave}, 4'); a('s_cbranch_scc1 L_loader')

    def w_dma_offsets(self, dw, idx, t0, t1, t2, t3):
        a = self.a
        a(f'v_lshrrev_b32 v{t0}, 3, v1')
        a(f'v_mul_u32_u24 v{t0}, 6144, v{t0}')
        a(f'v_and_b32 v{t1}, 7, v1')
        a(f'v_bfe_u32 v{t2}, v1, 4, 1'); a(f'v_lshlrev_b32 v{t2}, 1, v{t2}')
        a(f'v_xor_b32 v{t1}, v{t1}, v{t2}')
        a(f'v_xor_b32 v{t2}, 4, v{t1}')
        a(f'v_lshl_add_u32 v{t1}, v{t1}, 4, v{t0}')
        a(f'v_lshl_add_u32 v{t2}, v{t2}, 4, v{t0}')
        a(f's_lshl_b32 s{s_t+1}, s{s_g}, 7')
        for j in range(12):
            c = []
            for w in range(2):
                i = 12*w + j
                c.append((i & 7)*8*6144 + (i >> 3)*2048 - 1024*(j % 4))
                assert c[-1] >= 0
            a(f's_mul_i32 s{s_t}, s{idx}, {c[1]-c[0]}'); a(f's_add_u32 s{s_t}, s{s_t}, {c[0]}')
            a(f's_add_u32 s{s_t}, s{s_t}, s{s_t+1}')
            a(f'v_add_u32 v{dw+j}, s{s_t}, v{t1 if j % 2 == 0 else t2}')

    def w_dma(self, dw, srdb, soff, m0base):
        L = []
        for j in range(12):
            if j == 0: L.append(m0base)
            elif j % 4 == 0: L.append('s_add_u32 m0, m0, 4096')
            L.append(f'buffer_load_dwordx4 v{dw+j}, {srd(srdb)}, {soff} offen offset:{1024*(j%4)} lds')
        return L

    def w_frag_addr(self, aw, head_sreg, base, t0, t1, t2, nb_list=(0, 1)):
        a = self.a
        a(f'v_lshrrev_b32 v{t2}, 4, v1')
        a(f'v_bfe_u32 v{t0}, v1, 2, 2')
        a(f'v_lshl_add_u32 v{t1}, v{t2}, 3, v{t0}')
        a(f'v_lshrrev_b32 v{t0}, 1, v{t0}')
        a(f'v_and_b32 v{t2}, 1, v{t2}')
        a(f'v_lshl_add_u32 v{t0}, v{t2}, 1, v{t0}')
        if head_sreg is not None:
            a(f's_lshl_b32 s{s_t}, s{head_sreg}, 1')
            a(f'v_xor_b32 v{t0}, s{s_t}, v{t0}')
        a(f'v_and_b32 v{t2}, 3, v1'); a(f'v_lshlrev_b32 v{t2}, 3, v{t2}')
        a(f'v_lshl_add_u32 v{t2}, v{t1}, 7, v{t2}')
        if base: a(f'v_add_u32 v{t2}, {base}, v{t2}')
        for k, nb in enumerate(nb_list):
            a(f'v_xor_b32 v{t1}, {nb}, v{t0}')
            a(f'v_lshl_add_u32 v{aw+k}, v{t1}, 5, v{t2}')

    def reduce_job(self):
        a = self.a
        T = 200
        s_a, s_b, s_c = s_t + 2, s_t + 3, s_t + 4
        a('s_barrier')
        a(f's_lshl_b32 s{s_a}, s{s_l}, 3'); a(f's_add_u32 s{s_a}, s{s_a}, s{s_g}'); a(f's_lshl_b32 s{s_a}, s{s_a}, 2')
        a(f's_add_u32 s{s_a}, s{s_a}, s{s_wave}'); a(f's_sub_u32 s{s_a}, s{s_a}, 4')
        a(f'v_lshrrev_b32 v{T}, 4, v1'); a(f'v_lshlrev_b32 v{T}, 12, v{T}')
        a(f'v_bfe_u32 v{T+1}, v1, 3, 1'); a(f'v_lshl_add_u32 v{T}, v{T+1}, 10, v{T}')
        a(f'v_and_b32 v{T+2}, 7, v1'); a(f'v_lshl_add_u32 v{T}, v{T+2}, 4, v{T}')
        a(f's_lshl_b32 s{s_b}, s{s_a}, 16'); a(f's_add_u32 s{s_b}, s{s_b}, {WS_KVP}')
        a(f's_lshr_b32 s{s_t}, s{s_m}, 3'); a(f's_lshl_b32 s{s_t}, s{s_t}, 11'); a(f's_add_u32 s{s_b}, s{s_b}, s{s_t}')
        a(f's_and_b32 s{s_t}, s{s_m}, 7'); a(f's_lshl_b32 s{s_t}, s{s_t}, 7'); a(f's_add_u32 s{s_b}, s{s_b}, s{s_t}')
        a(f'v_and_b32 v{T+3}, 15, v1'); a(f'v_lshlrev_b32 v{T+3}, 7, v{T+3}')
        a(f's_lshl_b32 s{s_c}, s{s_a}, 11'); a(f's_add_u32 s{s_c}, s{s_c}, {WS_ZP}')
        a(f's_lshl_b32 s{s_t}, s{s_m}, 3'); a(f's_add_u32 s{s_c}, s{s_c}, s{s_t}')
        a(f'v_lshlrev_b32 v{T+2}, 4, v{T+2}'); a(f'v_lshl_add_u32 v{T+2}, v{T+1}, 3, v{T+2}')
        a(f'v_lshrrev_b32 v{T+1}, 5, v1'); a(f'v_lshl_add_u32 v{T+2}, v{T+1}, 2, v{T+2}')
        a(f'v_cmp_eq_u32 vcc, 16, v1')
        a(f'v_mov_b32 v{T+1}, 128')
        a(f'v_cndmask_b32 v{T+2}, v{T+2}, v{T+1}, vcc')
        a(f's_lshl_b32 s{s_a}, s{s_a}, 4'); a(f's_add_u32 s{s_a}, s{s_a}, s{s_m}'); a(f's_lshl_b32 s{s_a}, s{s_a}, 8')
        a(f's_add_u32 s{s_a}, s{s_a}, {WS_KVF}')
        self.cctr(s_t + 5, 0)
        a('s_barrier')
        L = self.lab('nosig')
        a(f's_cmp_lg_u32 s{s_wave}, 6'); a(f's_cbranch_scc1 {L}')
        self.signal(sWS, f's{s_t+5}', T + 4)
        a.label(L)
        self.poll(sWS, f's{s_t+5}', 16, T + 4, 1)
        D = T + 8; Z = T + 24
        S = []
        for it in range(4):
            S.append(f'buffer_load_dwordx4 {vr(D+4*it,4)}, v{T}, {srd(sWS)}, s{s_b} offen sc1')
            if it < 3: S.append(f's_add_u32 s{s_b}, s{s_b}, 16384')
        S.append(f'buffer_load_dwordx2 {vr(Z,2)}, v{T+3}, {srd(sWS)}, s{s_c} offen sc1')
        S += [pk('add', D, D, D+4), pk('add', D+2, D+2, D+6), pk('add', D+8, D+8, D+12), pk('add', D+10, D+10, D+14),
              pk('add', D, D, D+8), pk('add', D+2, D+2, D+10)]
        S += [sw32(D, D+2), sw32(D+1, D+3), pk('add', D, D, D+2)]
        S += [f'v_mov_b32 v{D+2}, v{D}', f'v_mov_b32 v{D+3}, v{D+1}', sw16(D+2, D), sw16(D+3, D+1), pk('add', D, D, D+2)]
        for sh in (8, 4, 2, 1):
            for k in range(2): S.append(f'v_add_f32_dpp v{Z+k}, v{Z+k}, v{Z+k} row_ror:{sh} row_mask:0xf bank_mask:0xf')
        S += [f'v_cndmask_b32 v{D}, v{D}, v{Z}, vcc', f'v_cndmask_b32 v{D+1}, v{D+1}, v{Z+1}, vcc', cvt(D, D, D+1)]
        S += ['s_mov_b32 exec_lo, 0x1ffff', 's_mov_b32 exec_hi, 0xffff',
              f'buffer_store_dword v{D}, v{T+2}, {srd(sWS)}, s{s_a} offen sc1', 's_mov_b64 exec, -1', 's_waitcnt vmcnt(0)']
        self.aw(S)
        a('s_barrier')
        L = self.lab('nosig')
        a(f's_cmp_lg_u32 s{s_wave}, 6'); a(f's_cbranch_scc1 {L}')
        self.cctr(s_t + 5, 1)
        self.signal(sWS, f's{s_t+5}', T + 4)
        a.label(L)

    def loader(self):
        a = self.a
        a.label('L_loader')
        dx, dw, dwo, t0, t1, t2, t3 = 8, 16, 28, 2, 3, 4, 5
        s_ld, s_kx, s_kw, s_slot, s_mx, s_mw, s_xstep, s_wo, s_wm0 = 64, 65, 66, 67, 68, 69, 70, 71, 72
        a(f's_sub_u32 s{s_ld}, s{s_wave}, 4')
        self.w_dma_offsets(dw, s_ld, t0, t1, t2, t3)
        a(f's_mul_i32 s{s_mw}, s{s_ld}, 12288'); a(f's_add_u32 s{s_mw}, s{s_mw}, 16384')
        a(f's_lshl_b32 s{s_mx}, s{s_ld}, 13')
        def wst(): return self.w_dma(dw, sW, f's{s_kw}', f's_add_u32 m0, s{s_slot}, s{s_mw}') + [f's_add_u32 s{s_kw}, s{s_kw}, {64*6144}']
        def xst():
            L = []
            for j in range(8):
                if j == 0: L.append(f's_add_u32 m0, s{s_slot}, s{s_mx}')
                elif j == 4: L.append('s_add_u32 m0, m0, 4096')
                L.append(f'buffer_load_dwordx4 v{dx+j}, {srd(sX)}, s{s_kx} offen offset:{1024*(j%4)} sc1 lds')
            return L + [f's_add_u32 s{s_kx}, s{s_kx}, s{s_xstep}']
        a(f'v_lshrrev_b32 v{t0}, 3, v1'); a(f'v_and_b32 v{t1}, 7, v1')
        a(f'v_lshrrev_b32 v{t2}, 4, v1'); a(f'v_xor_b32 v{t1}, v{t1}, v{t2}')
        a(f'v_xor_b32 v{t2}, 4, v{t1}')
        a(f'v_lshlrev_b32 v{t0}, 11, v{t0}')
        a(f'v_lshl_add_u32 v{t1}, v{t1}, 4, v{t0}'); a(f'v_lshl_add_u32 v{t2}, v{t2}, 4, v{t0}')
        a(f's_lshl_b32 s{s_t}, s{s_ld}, 17')
        for j in range(8):
            a(f's_add_u32 s{s_t+1}, s{s_t}, {j*16384 - 1024*(j%4)}')
            a(f'v_add_u32 v{dx+j}, s{s_t+1}, v{t1 if j % 2 == 0 else t2}')
        a(f's_lshl_b32 s{s_kx}, s{s_m}, 18'); a(f's_mov_b32 s{s_xstep}, 128'); a(f's_mov_b32 s{s_kw}, 0')
        for st in range(3):
            a(f's_mov_b32 s{s_slot}, {st*STG}')
            a.extend(wst()); a.extend(xst())
        a(f'v_lshrrev_b32 v{t0}, 5, v1'); a(f'v_lshlrev_b32 v{t0}, 4, v{t0}')
        a(f'v_bfe_u32 v{t1}, v1, 3, 2'); a(f'v_add_u32 v{t0}, v{t0}, v{t1}')
        a(f'v_lshlrev_b32 v{t0}, 11, v{t0}')
        a(f'v_and_b32 v{t1}, 7, v1'); a(f'v_bfe_u32 v{t2}, v1, 4, 1'); a(f'v_lshlrev_b32 v{t2}, 1, v{t2}')
        a(f'v_xor_b32 v{t1}, v{t1}, v{t2}'); a(f'v_xor_b32 v{t2}, 4, v{t1}')
        a(f'v_lshl_add_u32 v{t1}, v{t1}, 4, v{t0}'); a(f'v_lshl_add_u32 v{t2}, v{t2}, 4, v{t0}')
        a(f's_lshl_b32 s{s_t}, s{s_g}, 7')
        for G in range(4):
            a(f's_add_u32 s{s_t+1}, s{s_t}, {G*4*2048 - 1024*G}')
            a(f'v_add_u32 v{dwo+G}, s{s_t+1}, v{t1 if G % 2 == 0 else t2}')
        a('s_waitcnt vmcnt(40)'); a('s_barrier')
        a('s_waitcnt vmcnt(20)')
        a('s_branch L_ld_enter')
        a.label('L_ld_layer')
        a('s_waitcnt vmcnt(16)'); a('s_barrier')
        a('s_waitcnt vmcnt(8)')
        a.label('L_ld_enter')
        a(f's_mov_b32 s{s_i}, 0'); a(f's_mov_b32 s{s_slot}, 0')
        a.label('L_ld_loop')
        a('s_barrier')
        a.extend(xst()); a.extend(wst())
        a(f's_add_u32 s{s_slot}, s{s_slot}, {STG}'); a(f's_cmp_eq_u32 s{s_slot}, {3*STG}'); a(f's_cselect_b32 s{s_slot}, 0, s{s_slot}')
        a(f's_add_u32 s{s_i}, s{s_i}, 1'); a(f's_cmp_lt_u32 s{s_i}, 13')
        a('s_waitcnt vmcnt(20)')
        a('s_cbranch_scc1 L_ld_loop')
        def wo(h0, n):
            a(f's_add_u32 s{s_t}, s{s_ld}, {h0}')
            a(f's_lshl_b32 s{s_wo}, s{s_t}, 16'); a(f's_lshl_b32 s{s_wm0}, s{s_t}, 12'); a(f's_add_u32 s{s_wm0}, s{s_wm0}, {L_WO}')
            L = self.lab('wo')
            a(f's_mov_b32 s{s_i}, 0')
            a.label(L)
            a(f's_mov_b32 m0, s{s_wm0}')
            a(f's_add_u32 s{s_wm0}, s{s_wm0}, 8192')
            for G in range(4): a(f'buffer_load_dwordx4 v{dwo+G}, {srd(sWO)}, s{s_wo} offen offset:{1024*G} lds')
            a(f's_add_u32 s{s_wo}, s{s_wo}, 131072')
            a(f's_add_u32 s{s_i}, s{s_i}, 1'); a(f's_cmp_lt_u32 s{s_i}, {n//2}'); a(f's_cbranch_scc1 {L}')
        a('s_barrier')
        wo(24, 8); wo(4, 10)
        a('s_waitcnt vmcnt(36)'); a('s_barrier')
        wo(14, 10)
        a('s_barrier')
        wo(0, 4)
        a(f's_bitcmp1_b32 s{s_l}, 0'); a('s_cbranch_scc1 L_ld_B')
        self.reduce_job()
        a('s_branch L_ld_join')
        a.label('L_ld_B')
        a('s_barrier')
        a.label('L_ld_join')
        a('s_waitcnt vmcnt(0)'); a('s_barrier')
        a(f's_cmp_eq_u32 s{s_l}, 3'); a('s_cbranch_scc1 L_fin')
        self.rctr(s_t + 5, 1)
        a(f's_add_u32 s{s_l}, s{s_l}, 1')
        a(f's_bitcmp1_b32 s{s_l}, 0')
        a(f's_cselect_b64 s[{sW}:{sW+1}], s[{pBW}:{pBW+1}], s[{pAW}:{pAW+1}]')
        a(f's_cselect_b64 s[{sWO}:{sWO+1}], s[{pBWO}:{pBWO+1}], s[{pAWO}:{pAWO+1}]')
        a(f's_mov_b64 s[{sX}:{sX+1}], s[{pWS}:{pWS+1}]'); a(f's_mov_b32 s{sX+2}, {WS_END}')
        a(f's_lshl_b32 s{s_kx}, s{s_l}, 22'); a(f's_lshl_b32 s{s_t}, s{s_m}, 18'); a(f's_add_u32 s{s_kx}, s{s_kx}, s{s_t}')
        a(f's_add_u32 s{s_kx}, s{s_kx}, {WS_XI - (1 << 22)}')
        a(f's_mov_b32 s{s_xstep}, 16384'); a(f's_mov_b32 s{s_kw}, 0')
        a(f'v_lshlrev_b32 v{t0}, 4, v1'); a(f'v_add_u32 v{t0}, s{s_mx}, v{t0}')
        for j in range(8): a(f'v_add_u32 v{dx+j}, {4096*(j//4)}, v{t0}')
        a('s_barrier')
        for st in range(3):
            a(f's_mov_b32 s{s_slot}, {st*STG}'); a.extend(wst())
        a('s_barrier')
        self.poll(sWS, f's{s_t+5}', 16, t0, 2)
        self.stamp(1)
        for st in range(3):
            a(f's_mov_b32 s{s_slot}, {st*STG}'); a.extend(xst())
        a('s_branch L_ld_layer')

    def helper(self):
        a = self.a
        a.label('L_helper')
        dw, aw, t0, t1, t2, t3 = 16, 28, 2, 3, 4, 5
        l4, ones, l16, a_st, a_cs, l8 = 6, 8, 7, 12, 13, 14
        s_h, s_a, s_b = 64, 65, 66
        a(f's_sub_u32 s{s_h}, s{s_wave}, 6')
        self.w_dma_offsets(dw, s_h, t0, t1, t2, t3)
        a(f's_mul_i32 s{s_a}, s{s_m}, {64*6144}')
        a(f's_mul_i32 s{s_b}, s{s_h}, 12288'); a(f's_add_u32 s{s_b}, s{s_b}, {L_SPARE}')
        a.extend(self.w_dma(dw, sW, f's{s_a}', f's_mov_b32 m0, s{s_b}'))
        a(f'v_lshlrev_b32 v{l4}, 2, v1'); a(f'v_lshlrev_b32 v{l16}, 4, v1'); a(f'v_lshlrev_b32 v{l8}, 3, v1')
        a(f's_mov_b64 s[{sWO}:{sWO+1}], s[{pPHI}:{pPHI+1}]'); a(f's_mov_b32 s{sWO+2}, 65536')
        a(f's_lshl_b32 s{s_t}, s{s_g}, 1'); a(f's_add_u32 s{s_t}, s{s_t}, s{s_h}'); a(f's_lshl_b32 s{s_t}, s{s_t}, 11')
        a(f's_lshl_b32 s{s_t+1}, s{s_h}, 11'); a(f's_add_u32 m0, s{s_t+1}, {P_PHI}')
        for j in range(2): a(f'buffer_load_dwordx4 v{l16}, {srd(sWO)}, s{s_t} offen offset:{1024*j} lds')
        a(f's_lshl_b32 s{s_t}, s{s_m}, 4'); a(f's_add_u32 s{s_t}, s{s_t}, s{s_g}')
        a(f's_lshl_b32 s{s_t+1}, s{s_t}, 8')
        a(f'v_mov_b32 v{t0}, 0')
        a(f'buffer_store_dword v{t0}, v{l4}, {srd(sWS)}, s{s_t+1} offen sc1')
        a(f's_lshl_b32 s{s_t+1}, s{s_h}, 8'); a(f's_add_u32 s{s_t}, s{s_t}, s{s_t+1}'); a(f's_lshl_b32 s{s_t}, s{s_t}, 12')
        a(f's_add_u32 s{s_t}, s{s_t}, {WS_HALO}')
        for k in range(4): a(f'v_mov_b32 v{ones+k}, -1')
        for j in range(4): a(f'buffer_store_dwordx4 {vr(ones,4)}, v{l16}, {srd(sWS)}, s{s_t} offen offset:{1024*j} sc1')
        self.w_frag_addr(aw, s_h, L_SPARE, t0, t1, t2)
        for k in range(4): a(f'v_mov_b32 v{ones+k}, 0x3f803f80')
        a(f'v_bfe_u32 v{t0}, v1, 4, 1'); a(f'v_lshrrev_b32 v{t1}, 5, v1'); a(f'v_and_b32 v{t2}, 15, v1')
        a(f'v_lshl_add_u32 v{t2}, v{t0}, 5, v{t2}'); a(f'v_lshl_add_u32 v{t2}, v{t1}, 4, v{t2}')
        a(f's_lshl_b32 s{s_t}, s{s_h}, 8'); a(f's_add_u32 s{s_t}, s{s_t}, {P_NM}')
        a(f'v_lshl_add_u32 v{a_st}, v{t2}, 2, s{s_t}')
        a(f's_mul_i32 s{s_t}, s{s_h}, 384'); a(f's_add_u32 s{s_t}, s{s_t}, {P_CS}')
        a(f'v_add_u32 v{a_cs}, s{s_t}, v{l8}')
        F, D = 32, 96
        def colsum(mat):
            S = []
            for s in range(2):
                for n in range(6):
                    for t in range(2):
                        S.append(f'ds_read_b64_tr_b16 {vr(F+24*s+4*n+2*t,2)}, v{aw+(n&1)} offset:{(n>>1)*8192+(32*s+4*t)*128}')
            for s in range(2):
                for n in range(6): S.append(mf16(D+4*n, ones, F+24*s+4*n, D+4*n if s else None))
            S += [f's_lshl_b32 s{s_t}, s{s_g}, 4', f's_add_u32 s{s_t}, s{s_t}, s{s_m}', f's_lshl_b32 s{s_t}, s{s_t}, 10',
                  f's_lshl_b32 s{s_t+1}, s{s_h}, 7', f's_add_u32 s{s_t}, s{s_t}, s{s_t+1}', f's_add_u32 s{s_t}, s{s_t}, {WS_CS + mat*262144}',
                  's_mov_b64 exec, 0xffff']
            for n in range(6): S.append(f'buffer_store_dword v{D+4*n}, v{l4}, {srd(sWS)}, s{s_t} offen offset:{(n>>1)*256+(n&1)*64} sc1')
            S.append('s_mov_b64 exec, -1')
            self.aw(S)
        SA, SC = 32, 64
        def stats_loads():
            S = [f's_lshl_b32 s{s_t}, s{s_l}, 4', f's_add_u32 s{s_t}, s{s_t}, s{s_m}', f's_lshl_b32 s{s_t}, s{s_t}, 14',
                 f's_lshl_b32 s{s_t+1}, s{s_h}, 9', f's_add_u32 s{s_t}, s{s_t}, s{s_t+1}', f's_add_u32 s{s_t}, s{s_t}, {WS_ST}']
            for gp in range(16):
                for w in range(2): S.append(f'buffer_load_dword v{SA+2*gp+w}, v{l4}, {srd(sWS)}, s{s_t} offen offset:{(gp%4)*1024+256*w} sc1')
                if gp % 4 == 3 and gp < 15: S.append(f's_add_u32 s{s_t}, s{s_t}, 4096')
            a.extend(S)
        def tree(base, n):
            S = []
            while n > 1:
                n //= 2
                for k in range(n): S.append(pk('add', base+2*k, base+2*k, base+2*(k+n)))
            return S
        def stats_finish():
            S = tree(SA, 16) + [sw16(SA, SA+1), f'v_mul_f32 v{SA}, {f2u(-1/1024)}, v{SA}', f'v_mul_f32 v{SA+1}, {f2u(1/1024)}, v{SA+1}',
                 f'v_fma_f32 v{SA+1}, -v{SA}, v{SA}, v{SA+1}', f'v_max_f32 v{SA+1}, 0, v{SA+1}', f'v_add_f32 v{SA+1}, {f2u(1e-5)}, v{SA+1}',
                 f'v_rsq_f32 v{SA+1}, v{SA+1}', f'ds_write_b32 v{a_st}, v{SA}', 's_nop 0', f'ds_write_b32 v{a_st}, v{SA+1} offset:512']
            a.extend(S)
        def cs_loads(mat):
            S = [f's_lshl_b32 s{s_t}, s{s_g}, 14', f's_mul_i32 s{s_t+1}, s{s_h}, 384', f's_add_u32 s{s_t}, s{s_t}, s{s_t+1}',
                 f's_add_u32 s{s_t}, s{s_t}, {WS_CS + mat*262144}']
            for mp in range(16):
                S.append(f'buffer_load_dwordx2 {vr(SC+2*mp,2)}, v{l8}, {srd(sWS)}, s{s_t} offen offset:{(mp%4)*1024} sc1')
                if mp % 4 == 3 and mp < 15: S.append(f's_add_u32 s{s_t}, s{s_t}, 4096')
            a.extend(S)
        def cs_finish(mat):
            S = tree(SC, 16) + ['s_mov_b32 exec_hi, 0xffff', f'ds_write_b64 v{a_cs}, {vr(SC,2)} offset:{768*mat}', 's_mov_b32 exec_hi, -1']
            a.extend(S)
        def bars(n):
            for _ in range(n): a('s_barrier')
        bars(1)
        a('s_waitcnt vmcnt(0)'); bars(1)
        colsum(0)
        a('s_waitcnt lgkmcnt(0)'); bars(1)
        a(f's_mov_b64 s[{sW}:{sW+1}], s[{pBW}:{pBW+1}]')
        a.extend(self.w_dma(dw, sW, f's{s_a}', f's_mov_b32 m0, s{s_b}'))
        a('s_waitcnt vmcnt(12)'); bars(1)
        L = self.lab('noarr')
        a(f's_cmp_lg_u32 s{s_h}, 0'); a(f's_cbranch_scc1 {L}')
        self.signal(sDBG, '0', t0)
        a.label(L)
        bars(2)
        a('s_waitcnt vmcnt(0)'); bars(1)
        colsum(1)
        a('s_waitcnt lgkmcnt(0)'); bars(4)
        self.poll(sDBG, '0', 256, t0, 3)
        stats_loads(); cs_loads(0)
        bars(2)
        a('s_waitcnt vmcnt(0)')
        stats_finish(); cs_finish(0)
        a('s_waitcnt lgkmcnt(0)')
        bars(4)
        a('s_branch L_hp_epi')
        a.label('L_hp_layer')
        bars(2)
        stats_loads(); cs_loads(1)
        bars(3)
        a('s_waitcnt vmcnt(0)')
        stats_finish(); cs_finish(1)
        a('s_waitcnt lgkmcnt(0)')
        bars(12)
        a.label('L_hp_epi')
        a(f's_bitcmp1_b32 s{s_l}, 0'); a('s_cbranch_scc1 L_hp_B')
        self.reduce_job()
        a('s_branch L_hp_join')
        a.label('L_hp_B')
        bars(1)
        a.label('L_hp_join')
        self.rctr(s_t + 5, 0)
        bars(1)
        L = self.lab('nosig')
        a(f's_cmp_lg_u32 s{s_h}, 0'); a(f's_cbranch_scc1 {L}')
        self.signal(sWS, f's{s_t+5}', t0)
        a.label(L)
        a(f's_cmp_eq_u32 s{s_l}, 3'); a('s_cbranch_scc1 L_fin')
        self.rctr(s_t + 5, 1)
        bars(2)
        L = self.lab('nosig')
        a(f's_cmp_lg_u32 s{s_h}, 0'); a(f's_cbranch_scc1 {L}')
        self.signal(sWS, f's{s_t+5}', t0)
        a.label(L)
        a(f's_add_u32 s{s_l}, s{s_l}, 1')
        a('s_branch L_hp_layer')

    def compute(self):
        a = self.a
        l16, voffR, voffI, a_tok, a_row, a_t32, a_csr, a_csv = 2, 3, 4, 5, 6, 7, 8, 9
        ax, awq = 10, 12
        l4 = 14; vst = 15
        XR = 16
        ACC = 32
        FX = [128, 144]; FW = [160, 184]
        T = 208
        t0, t1, t2, t3 = T, T+1, T+2, T+3
        s_wm, s_wh, s_rslot, s_delta, s_stg, s_ones = 64, 65, 66, 67, 68, 69
        s_o = 70
        s_ob = 74
        s_a, s_b, s_c = 76, 77, 78
        a(f's_lshr_b32 s{s_wm}, s{s_wave}, 1'); a(f's_and_b32 s{s_wh}, s{s_wave}, 1')
        a(f'v_lshrrev_b32 v{t0}, 4, v1')
        a(f'v_and_b32 v{t1}, 15, v1')
        a(f'v_and_b32 v{t2}, 1, v{t0}'); a(f'v_lshrrev_b32 v{t3}, 1, v{t0}'); a(f'v_lshl_add_u32 v{t2}, v{t2}, 1, v{t3}')
        a(f'v_lshlrev_b32 v{voffR}, 11, v{t1}'); a(f'v_lshl_add_u32 v{voffR}, v{t2}, 4, v{voffR}')
        a(f's_lshl_b32 s{s_t}, s{s_m}, 18'); a(f's_lshl_b32 s{s_t+1}, s{s_wave}, 16'); a(f's_add_u32 s{s_t}, s{s_t}, s{s_t+1}')
        a(f's_lshl_b32 s{s_t+1}, s{s_g}, 7'); a(f's_add_u32 s{s_t}, s{s_t}, s{s_t+1}'); a(f's_add_u32 s{s_t+1}, s{s_t}, 32768')
        for tb in range(2):
            for e in range(2): a(f'buffer_load_dwordx4 {vr(XR+8*tb+4*e,4)}, v{voffR}, {srd(sX)}, s{s_t+tb} offen offset:{64*e}')
        a(f'v_lshl_add_u32 v{voffI}, v{t2}, 4, v{t1}'); a(f'v_lshlrev_b32 v{voffI}, 4, v{voffI}')
        a(f'v_lshlrev_b32 v{l16}, 4, v1'); a(f'v_lshlrev_b32 v{l4}, 2, v1')
        a(f's_lshl_b32 s{s_t}, s{s_wm}, 8'); a(f's_add_u32 s{s_t}, s{s_t}, {P_NM}')
        a(f'v_lshl_add_u32 v{a_tok}, v{t1}, 2, s{s_t}')
        a(f'v_lshl_add_u32 v{a_row}, v{t0}, 4, s{s_t}')
        a(f'v_and_b32 v{t3}, 31, v1'); a(f'v_lshl_add_u32 v{a_t32}, v{t3}, 2, s{s_t}')
        a(f's_lshl_b32 s{s_t}, s{s_wh}, 7'); a(f's_add_u32 s{s_t}, s{s_t}, {P_CS}')
        a(f'v_lshl_add_u32 v{a_csr}, v{t0}, 4, s{s_t}')
        a(f'v_lshl_add_u32 v{a_csv}, v{t1}, 2, s{s_t}')
        a(f's_mov_b32 s{s_stg}, {STG}'); a(f's_mov_b32 s{s_ones}, 0x3f803f80')
        a(f'v_lshrrev_b32 v{t2}, 1, v{t1}'); a(f'v_xor_b32 v{t2}, v{t2}, v{t0}')
        a(f's_lshl_b32 s{s_t}, s{s_wm}, 13'); a(f'v_lshl_add_u32 v{t1}, v{t1}, 7, s{s_t}')
        for s in range(2):
            a(f'v_xor_b32 v{t3}, {4*s}, v{t2}'); a(f'v_lshl_add_u32 v{ax+s}, v{t3}, 4, v{t1}')

        def stats(layer_add):
            q = T + 4
            S = []
            for k in range(8):
                for tb in range(2):
                    r = XR + 8*tb + k
                    if k == 0:
                        S += [f'v_dot2_f32_bf16 v{q+2*tb}, s{s_ones}, v{r}, 0', f'v_dot2_f32_bf16 v{q+2*tb+1}, v{r}, v{r}, 0']
                    else:
                        S += [f'v_dot2_f32_bf16 v{q+2*tb}, s{s_ones}, v{r}, v{q+2*tb}', f'v_dot2_f32_bf16 v{q+2*tb+1}, v{r}, v{r}, v{q+2*tb+1}']
            S += [f's_add_u32 s{s_t}, s{s_l}, {layer_add}', f's_lshl_b32 s{s_t}, s{s_t}, 4', f's_add_u32 s{s_t}, s{s_t}, s{s_m}',
                  f's_lshl_b32 s{s_t}, s{s_t}, 4', f's_add_u32 s{s_t}, s{s_t}, s{s_g}', f's_lshl_b32 s{s_t}, s{s_t}, 2',
                  f's_add_u32 s{s_t}, s{s_t}, s{s_wave}', f's_lshl_b32 s{s_t}, s{s_t}, 8', f's_add_u32 s{s_t}, s{s_t}, {WS_ST}']
            S += [sw32(q, q+2), sw32(q+1, q+3), pk('add', q, q, q+2), sw16(q, q+1), f'v_add_f32 v{q}, v{q}, v{q+1}',
                  f'buffer_store_dword v{q}, v{l4}, {srd(sWS)}, s{s_t} offen sc1']
            return S
        a('s_waitcnt vmcnt(0)')
        a.extend(stats(0))
        a.label('L_layer')
        self.w_frag_addr(awq, s_wh, 16384, t0, t1, t2)
        for r in range(0, 96, 2): a(f'v_mov_b64 {vr(ACC+r,2)}, 0')
        a(f's_mov_b32 s{s_rslot}, 0'); a(f's_mov_b32 s{s_i}, 0')
        a('s_waitcnt vmcnt(0)')
        a('s_barrier')
        self.stamp(1)
        def acc(b, n): return ACC + 4*(6*b + n)
        def reads(s, st):
            X = [f'ds_read_b128 {vr(FX[st]+4*b,4)}, v{ax+s} offset:{2048*b}' for b in range(4)]
            W = [[f'ds_read_b64_tr_b16 {vr(FW[st]+4*n+2*t,2)}, v{awq+(n&1)} offset:{(n>>1)*8192+(32*s+4*t)*128}' for t in range(2)] for n in range(6)]
            L = [X[0]] + W[0] + X[1:]
            for n in range(1, 6): L += W[n]
            return L
        def mfmas(st):
            L = []
            for n in range(6):
                for b in range(4):
                    if n < 4: L.append(mf16(acc(b, n), FW[st]+4*n, FX[st]+4*b, acc(b, n)))
                    else: L.append(mf16(acc(b, n), FX[st]+4*b, FW[st]+4*n, acc(b, n)))
            return L
        a.extend(reads(0, 0))
        a('.p2align 6')
        a.label('L_q')
        for s in range(2):
            M = mfmas(s); R = reads(1 - s, 1 - s)
            gaps = [[] for _ in range(24)]
            first = 0
            if s == 1:
                gaps[0] += [f'v_add_u32 v{r}, s{s_delta}, v{r}' for r in (ax, awq)]
                gaps[1] += [f'v_add_u32 v{r}, s{s_delta}, v{r}' for r in (awq+1,)] + ['s_barrier']
                gaps[20] += [f'v_add_u32 v{ax+1}, s{s_delta}, v{ax+1}']
                gaps[22] += [f's_add_u32 s{s_i}, s{s_i}, 1']
                gaps[23] += [f's_cmp_lt_u32 s{s_i}, 16']
                first = 1
            else:
                gaps[18] += [f's_add_u32 s{s_rslot}, s{s_rslot}, 1', f's_cmp_eq_u32 s{s_rslot}, 3']
                gaps[19] += [f's_cselect_b32 s{s_delta}, {-2*STG}, s{s_stg}', f's_cselect_b32 s{s_rslot}, 0, s{s_rslot}']
            for k, r in enumerate(R): gaps[first + k].append(r)
            a('s_waitcnt lgkmcnt(0)')
            for k in range(24):
                a(M[k]); a.extend(gaps[k])
        a('s_cbranch_scc1 L_q')
        a('s_waitcnt lgkmcnt(0)')
        self.stamp(2)
        a(f's_lshl_b32 s{s_a}, s{s_l}, 22'); a(f's_lshl_b32 s{s_t}, s{s_m}, 18'); a(f's_add_u32 s{s_a}, s{s_a}, s{s_t}')
        a(f's_add_u32 s{s_a}, s{s_a}, {WS_OI}')
        a(f's_lshl_b32 s{s_t}, s{s_wave}, 16'); a(f's_add_u32 s{s_ob}, s{s_a}, s{s_t}'); a(f's_add_u32 s{s_ob+1}, s{s_ob}, 32768')
        a(f's_lshl_b32 s{s_t}, s{s_wm}, 17'); a(f's_add_u32 s{s_a}, s{s_a}, s{s_t}')
        a(f's_lshl_b32 s{s_t}, s{s_g}, 1'); a(f's_add_u32 s{s_t}, s{s_t}, s{s_wh}'); a(f's_lshl_b32 s{s_t}, s{s_t}, 10'); a(f's_add_u32 s{s_a}, s{s_a}, s{s_t}')
        a(f's_bitcmp1_b32 s{s_l}, 0'); a('s_cbranch_scc1 L_epiB')
        env = dict(locals())
        self.epiA(env)
        a('s_branch L_ophase')
        a.label('L_epiB')
        self.epiB(env)
        a.label('L_ophase')
        OA, RING, OW = 32, 64, [192, 208]
        awo = 224
        self.rctr(s_t + 5, 0)
        self.w_frag_addr(awo, None, L_WO, 228, 229, 230, nb_list=(0, 1, 2, 3))
        def oacc(tb, nb): return OA + 16*tb + 4*nb
        for q in range(4):
            a(sw16(XR+4*q, XR+4*q+2)); a(sw16(XR+4*q+1, XR+4*q+3))
        for r in range(16):
            a(f'v_lshlrev_b32 v{OA+2*r}, 16, v{XR+r}'); a(f'v_and_b32 v{OA+2*r+1}, 0xffff0000, v{XR+r}')
        a('s_waitcnt vmcnt(0)')
        self.stamp(8)
        a('s_barrier')
        def oreads(h):
            return [f'ds_read_b64_tr_b16 {vr(OW[h&1]+4*nb+2*t,2)}, v{awo+nb} offset:{(h&15)*4096+512*t}' for nb in range(4) for t in range(2)]
        self.poll(sWS, f's{s_t+5}', 16, 228, 4)
        self.stamp(9)
        def oload(h):
            L = [f'buffer_load_dwordx4 {vr(RING+8*(h&15)+4*tb,4)}, v{l16}, {srd(sWS)}, s{s_ob+tb} offen offset:{1024*(h&3)} sc1' for tb in range(2)]
            if h & 3 == 3: L += [f's_add_u32 s{s_ob}, s{s_ob}, 4096', f's_add_u32 s{s_ob+1}, s{s_ob+1}, 4096']
            return L
        S = []
        for h in range(16): S += oload(h)
        S += oreads(0)
        for h in range(32):
            R = oreads(h+1) if h < 31 else []
            if h == 15: S += [f'v_add_u32 v{awo+nb}, 0x10000, v{awo+nb}' for nb in range(4)]
            k = 0
            for nb in range(4):
                for tb in range(2):
                    S.append(mf16(oacc(tb, nb), OW[h&1]+4*nb, RING+8*(h&15)+4*tb, oacc(tb, nb)))
                    if R: S.append(R[k])
                    k += 1
            if h < 16: S += oload(h+16)
        self.aw(S)
        self.stamp(10)
        a(f's_cmp_eq_u32 s{s_l}, 3'); a('s_cbranch_scc1 L_olast')
        a(f's_lshl_b32 s{s_o}, s{s_l}, 22'); a(f's_lshl_b32 s{s_t}, s{s_m}, 18'); a(f's_add_u32 s{s_o}, s{s_o}, s{s_t}')
        a(f's_lshl_b32 s{s_t}, s{s_g}, 14'); a(f's_add_u32 s{s_o}, s{s_o}, s{s_t}')
        a(f's_lshl_b32 s{s_t}, s{s_wave}, 12'); a(f's_add_u32 s{s_o}, s{s_o}, s{s_t}'); a(f's_add_u32 s{s_o}, s{s_o}, {WS_XI}')
        for k in range(1, 4): a(f's_add_u32 s{s_o+k}, s{s_o}, {1024*k}')
        a(f'v_mov_b32 v{vst}, v{voffI}')
        a('s_branch L_ostore')
        a.label('L_olast')
        a(f's_mov_b64 s[{sOUT}:{sOUT+1}], s[{pOUT}:{pOUT+1}]'); a(f's_mov_b32 s{sOUT+2}, {2048*1024*2}')
        a(f's_lshl_b32 s{s_o}, s{s_m}, 18'); a(f's_lshl_b32 s{s_t}, s{s_wave}, 16'); a(f's_add_u32 s{s_o}, s{s_o}, s{s_t}')
        a(f's_lshl_b32 s{s_t}, s{s_g}, 7'); a(f's_add_u32 s{s_o}, s{s_o}, s{s_t}')
        a(f's_add_u32 s{s_o+1}, s{s_o}, 64'); a(f's_add_u32 s{s_o+2}, s{s_o}, 32768'); a(f's_add_u32 s{s_o+3}, s{s_o}, {32768+64}')
        a(f'v_mov_b32 v{vst}, v{voffR}')
        a.label('L_ostore')
        for q in range(4):
            for k in range(4): a(cvt(XR+4*q+k, OA+8*q+2*k, OA+8*q+2*k+1))
            a(sw16(XR+4*q, XR+4*q+2)); a(sw16(XR+4*q+1, XR+4*q+3))
            a(f'buffer_store_dwordx4 {vr(XR+4*q,4)}, v{vst}, {srd(sOUT)}, s{s_o+q} offen sc1')
        a(f's_cmp_eq_u32 s{s_l}, 3'); a('s_cbranch_scc1 L_fin')
        a('s_barrier')
        a.extend(stats(1))
        a(f's_lshl_b32 s{s_t}, s{s_wm}, 13')
        for s in range(2):
            a(f'v_add_u32 v{ax+s}, s{s_t}, v{l16}')
            if s: a(f'v_add_u32 v{ax+s}, 1024, v{ax+s}')
        a('s_waitcnt vmcnt(0)')
        self.stamp(11)
        a('s_barrier')
        a(f's_add_u32 s{s_l}, s{s_l}, 1')
        a('s_branch L_layer')

    def epiA(self, E):
        a = self.a
        acc = E['acc']; a_tok, a_row, a_t32, a_csr, a_csv, l16, l4 = (E[k] for k in ('a_tok', 'a_row', 'a_t32', 'a_csr', 'a_csv', 'l16', 'l4'))
        s_wm, s_wh, s_a, s_b, s_c = (E[k] for k in ('s_wm', 's_wh', 's_a', 's_b', 's_c'))
        V = Alloc('v', 128, 254)
        nml = V.get(4, 4); csq = V.get(8, 4); csk = V.get(8, 4); wphi = V.get(8, 4); c32 = V.get(2, 2); csv = V.get(2, 2)
        nmr = V.get(16, 4); rsr = V.get(16, 4)
        PK = [V.get(16, 4), V.get(16, 4)]
        tmp = V.get(8, 4)
        a_phi, a_w, a_r0, a_r1 = (V.get() for _ in range(4))
        t0, t1, t2, t3 = tmp, tmp+1, tmp+2, tmp+3
        S = []
        S += [f'v_lshrrev_b32 v{t0}, 5, v1', f'v_bfe_u32 v{t1}, v1, 2, 2', f'v_lshl_add_u32 v{t1}, v{t0}, 3, v{t1}',
              f'v_bfe_u32 v{t2}, v1, 4, 1', f'v_and_b32 v{t3}, 3, v1', f'v_lshlrev_b32 v{t3}, 3, v{t3}', f'v_lshl_add_u32 v{t2}, v{t2}, 5, v{t3}',
              f's_lshl_b32 s{s_t}, s{s_wh}, 11', f's_add_u32 s{s_t}, s{s_t}, {P_PHI}',
              f'v_lshl_add_u32 v{a_phi}, v{t1}, 6, v{t2}', f'v_add_u32 v{a_phi}, s{s_t}, v{a_phi}']
        for b in range(4): S.append(f'ds_read_b32 v{nml+b}, v{a_tok} offset:{64*b}')
        for nb in range(2): S.append(f'ds_read_b128 {vr(csk+4*nb,4)}, v{a_csr} offset:{256+64*nb}')
        for u in range(2):
            for t in range(2): S.append(f'ds_read_b64_tr_b16 {vr(wphi+4*u+2*t,2)}, v{a_phi} offset:{(16*t+4*u)*64}')
        for nb in range(2): S.append(f'ds_read_b32 v{csv+nb}, v{a_csv} offset:{512+64*nb}')
        for Tt in range(2): S.append(f'ds_read_b32 v{c32+Tt}, v{a_t32} offset:{512+128*Tt}')
        S += [f's_mul_i32 s{s_t}, s{s_wave}, {SCR}',
              f'v_mul_u32_u24 v{t1}, 136, v{t1}', f'v_add3_u32 v{t1}, v{t1}, v{t2}, s{s_t}',
              f's_lshl_b32 s{s_t+1}, s{s_wm}, 6', f'v_add_u32 v{a_r0}, s{s_t+1}, v{t1}',
              f's_xor_b32 s{s_t+1}, s{s_t+1}, 64', f'v_add_u32 v{a_r1}, s{s_t+1}, v{t1}',
              f'v_and_b32 v{t1}, 31, v1', f'v_mul_u32_u24 v{t1}, 136, v{t1}', f'v_lshl_add_u32 v{t1}, v{t0}, 3, v{t1}', f'v_add_u32 v{a_w}, s{s_t}, v{t1}']
        def qk_prep(n0, cs):
            L = []
            for b in range(4):
                for k in range(4): L.append(pk('fma', acc(b, n0)+2*k, cs+2*k, ('b', nml+b), acc(b, n0)+2*k))
                for k in range(4): L.append(cvt(acc(b, n0)+k, acc(b, n0)+2*k, acc(b, n0)+2*k+1))
            for Tt in range(2):
                for k in range(4): L.append(sw16(acc(2*Tt, n0)+k, acc(2*Tt+1, n0)+k))
                L += [mf32(PK[Tt], wphi, acc(2*Tt, n0)), mf32(PK[Tt], wphi+4, acc(2*Tt+1, n0), PK[Tt])]
            return L
        S += qk_prep(2, csk)
        for b in range(4):
            S.append(f'ds_read_b128 {vr(nmr+4*b,4)}, v{a_row} offset:{64*b}')
            S.append(f'ds_read_b128 {vr(rsr+4*b,4)}, v{a_row} offset:{512+64*b}')
        for nb in range(2): S.append(f'ds_read_b128 {vr(csq+4*nb,4)}, v{a_csr} offset:{64*nb}')
        for Tt in range(2): S.append(f'v_mul_f32 v{c32+Tt}, {f2u(LOG2E)}, v{c32+Tt}')
        for b in range(4):
            r = acc(b, 4)
            for nb in range(2):
                for p in range(2): S.append(pk('fma', r+4*nb+2*p, nmr+4*b+2*p, ('b', csv+nb), r+4*nb+2*p))
            for nb in range(2):
                for p in range(2): S.append(pk('mul', r+4*nb+2*p, r+4*nb+2*p, rsr+4*b+2*p))
            for k in range(4): S.append(cvt(r+k, r+2*k, r+2*k+1))
            S += [sw16(r, r+2), sw16(r+1, r+3)]
        V.put(nmr, 16); V.put(rsr, 16); V.put(csk, 8)
        EP = V.get(16, 4)
        def softmax(x, c, dp, dm):
            mx, mn, tt, bp, bm = tmp, tmp+1, tmp+2, tmp+4, tmp+5
            L = [f'v_max3_f32 v{mx}, v{x}, v{x+1}, v{x+2}', f'v_max3_f32 v{mn}, -v{x}, -v{x+1}, -v{x+2}']
            for k in range(3, 15, 2):
                L += [f'v_max3_f32 v{mx}, v{mx}, v{x+k}, v{x+k+1}', f'v_max3_f32 v{mn}, v{mn}, -v{x+k}, -v{x+k+1}']
            L += [f'v_max_f32 v{mx}, v{mx}, v{x+15}', f'v_max_f32 v{mn}, v{mn}, -v{x+15}']
            L += [sw32(mx, mn), f'v_max_f32 v{mx}, v{mx}, v{mn}', f'v_mul_f32 v{bm}, -v{mx}, v{c}', f'v_mov_b32 v{bp}, v{bm}', sw32(bp, bm)]
            for k in range(0, 16, 2): L.append(pk('fma', EP+k, x+k, ('b', c), ('b', bp)))
            for k in range(0, 16, 2): L.append(pk('fma', x+k, x+k, ('b', c), ('b', bm), neg=[1, 0, 0]))
            for k in range(16): L.append(f'v_exp_f32 v{EP+k}, v{EP+k}')
            for k in range(16): L.append(f'v_exp_f32 v{x+k}, v{x+k}')
            sp, sm = tmp, tmp+2
            L += [pk('add', sp, EP, EP+2), pk('add', sm, x, x+2)]
            for k in range(4, 16, 2): L += [pk('add', sp, sp, EP+k), pk('add', sm, sm, x+k)]
            L += [f'v_add_f32 v{sp}, v{sp}, v{sp+1}', f'v_add_f32 v{sm}, v{sm}, v{sm+1}', sw32(sp, sm), f'v_add_f32 v{sp}, v{sp}, v{sm}',
                  f'v_rcp_f32 v{bm}, v{sp}', f'v_mov_b32 v{bp}, v{bm}', sw32(bp, bm)]
            for k in range(0, 16, 2): L.append(pk('mul', EP+k, EP+k, ('b', bp)))
            for k in range(0, 16, 2): L.append(pk('mul', x+k, x+k, ('b', bm)))
            for k in range(8): L.append(cvt(dm[k], x+2*k, x+2*k+1))
            for k in range(8): L.append(cvt(dp[k], EP+2*k, EP+2*k+1))
            return L
        FR = [[acc(0, 2), acc(0, 3)], [acc(1, 2), acc(1, 3)]]
        SEL = [acc(2, 3), acc(3, 3)]
        KV0 = V.get(16, 4)
        ZA = None
        S += [f'v_and_b32 v{t3}, 3, v1', f'v_mov_b32 v{tmp+6}, 0x3f803f80']
        for k in range(2):
            S.append(f'v_cmp_eq_u32 vcc, {k}, v{t3}')
            for i in range(4): S.append(f'v_cndmask_b32 v{SEL[k]+i}, 0, v{tmp+6}, vcc')
        x = PK[0]
        S += softmax(x, c32, [x+8+k for k in range(8)], [x+k for k in range(8)])
        def to_lds(x):
            return [f'ds_write_b64 v{a_w}, {vr(x+8*(1-sg)+2*j,2)} offset:{64*sg+16*j}' for sg in range(2) for j in range(4)]
        def frags():
            return [f'ds_read_b64_tr_b16 {vr(FR[k][u]+2*tt,2)}, v{(a_r0, a_r1)[k]} offset:{(16*u+4*tt)*136}' for u in range(2) for k in range(2) for tt in range(2)]
        S += to_lds(x) + frags()
        KV1 = PK[0]
        V.put(a_phi)
        ZA = 238
        assert V.hi <= ZA, V.hi
        def kvm(Tt):
            L = []
            for u in range(2):
                first = Tt == 0 and u == 0
                vb = acc(2*Tt+u, 4)
                L += [mf32(KV0, FR[0][u], vb, None if first else KV0), mf32(KV1, FR[1][u], vb, None if first else KV1),
                      mf32(ZA, SEL[0], FR[0][u], None if first else ZA), mf32(ZA, SEL[1], FR[1][u], ZA)]
            return L
        S += ['s_waitcnt lgkmcnt(0)']
        S += kvm(0)
        x = PK[1]
        S += softmax(x, c32+1, [x+8+k for k in range(8)], [x+k for k in range(8)])
        S += to_lds(x) + frags() + kvm(1)
        S += [f's_mul_i32 s{s_t}, s{s_wave}, {SCR}', f'v_add_u32 v{t0}, s{s_t}, v{l16}', f'v_add_u32 v{t1}, s{s_t}, v{l4}',
              f's_xor_b32 s{s_t}, s{s_wave}, 2', f's_mul_i32 s{s_t}, s{s_t}, {SCR}', f'v_add_u32 v{t2}, s{s_t}, v{l16}', f'v_add_u32 v{t3}, s{s_t}, v{l4}']
        for q in range(4): S.append(f'ds_write_b128 v{t0}, {vr(KV1+4*q,4)} offset:{1024*q}')
        S.append(f'ds_write_b32 v{t1}, v{ZA+1} offset:4096')
        S += ['s_waitcnt lgkmcnt(0)', 's_barrier']
        for q in range(4): S.append(f'ds_read_b128 {vr(EP+4*q,4)}, v{t2} offset:{1024*q}')
        S.append(f'ds_read_b32 v{ZA+1}, v{t3} offset:4096')
        S += [f's_lshl_b32 s{s_c}, s{s_l}, 3', f's_add_u32 s{s_c}, s{s_c}, s{s_g}', f's_lshl_b32 s{s_c}, s{s_c}, 1', f's_add_u32 s{s_c}, s{s_c}, s{s_wh}',
              f's_lshl_b32 s{s_t}, s{s_c}, 1', f's_add_u32 s{s_t}, s{s_t}, s{s_wm}', f's_lshl_b32 s{s_t}, s{s_t}, 4', f's_add_u32 s{s_t}, s{s_t}, s{s_m}',
              f's_lshl_b32 s{s_t+1}, s{s_t}, 12', f's_add_u32 s{s_t+1}, s{s_t+1}, {WS_KVP}', f's_lshl_b32 s{s_t}, s{s_t}, 7', f's_add_u32 s{s_t}, s{s_t}, {WS_ZP}']
        for q in range(4):
            S += [pk('add', KV0+4*q, KV0+4*q, EP+4*q), pk('add', KV0+4*q+2, KV0+4*q+2, EP+4*q+2),
                  f'buffer_store_dwordx4 {vr(KV0+4*q,4)}, v{l16}, {srd(sWS)}, s{s_t+1} offen offset:{1024*q} sc1']
        S += [f'v_add_f32 v{ZA}, v{ZA}, v{ZA+1}', 's_mov_b32 exec_hi, 0',
              f'buffer_store_dword v{ZA}, v{l4}, {srd(sWS)}, s{s_t} offen sc1', 's_mov_b32 exec_hi, -1']
        self.aw(S); self.stamp(3); S = []
        S += qk_prep(0, csq)
        x = PK[0]
        S += softmax(x, c32, [x+8+k for k in range(8)], [x+k for k in range(8)])
        S += ['s_waitcnt vmcnt(0)', 's_barrier']
        x = PK[1]
        S += softmax(x, c32+1, [x+8+k for k in range(8)], [x+k for k in range(8)])
        S += [f'v_lshrrev_b32 v{t0}, 3, v1', f'v_lshlrev_b32 v{t0}, 8, v{t0}', f'v_and_b32 v{t1}, 7, v1', f'v_lshl_add_u32 v{t0}, v{t1}, 4, v{t0}',
              f'v_lshrrev_b32 v{t1}, 5, v1', f'v_lshlrev_b32 v{t1}, 9, v{t1}', f'v_and_b32 v{t2}, 1, v1', f'v_lshl_add_u32 v{t1}, v{t2}, 12, v{t1}',
              f's_lshl_b32 s{s_c}, s{s_c}, 13', f's_add_u32 s{s_c}, s{s_c}, {WS_KVF}', f's_add_u32 s{s_b}, s{s_c}, 4096']
        S += [f'v_bfe_u32 v{t2}, v1, 4, 1', f'v_lshlrev_b32 v{t2}, 15, v{t2}', f'v_lshrrev_b32 v{t3}, 5, v1', f'v_lshl_add_u32 v{t2}, v{t3}, 8, v{t2}',
              f'v_and_b32 v{t3}, 15, v1', f'v_lshl_add_u32 v{t2}, v{t3}, 4, v{t2}']
        self.aw(S); S = []
        self.stamp(4)
        a('s_barrier')
        self.cctr(s_t + 5, 1)
        self.poll(sWS, f's{s_t+5}', 16, t3, 5)
        self.stamp(5)
        KF = KV0; ZF = EP
        for sg in range(2):
            for u in range(2): S.append(f'buffer_load_dwordx4 {vr(KF+8*sg+4*u,4)}, v{t0}, {srd(sWS)}, s{(s_c, s_b)[sg]} offen offset:{2048*u} sc1')
        for u in range(2):
            for jj in range(2):
                for p in range(2): S.append(f'buffer_load_dword v{ZF+4*u+2*jj+p}, v{t1}, {srd(sWS)}, s{s_c} offen offset:{(8*u+4*jj+p)*256+128} sc1')
        ACC = E['ACC']
        for Tt in range(2):
            N, DP, DM = ACC + 48*Tt, ACC + 48*Tt + 16, ACC + 48*Tt + 32
            x = PK[Tt]
            S += [mf32(N, KF, x+8), mf32(N, KF+4, x+12, N), mf32(N, KF+8, x, N), mf32(N, KF+12, x+4, N),
                  mf32(DP, ZF, x+8), mf32(DP, ZF+4, x+12, DP), mf32(DM, ZF, x), mf32(DM, ZF+4, x+4, DM)]
        for Tt in range(2):
            N, DP, DM = ACC + 48*Tt, ACC + 48*Tt + 16, ACC + 48*Tt + 32
            S += [f'v_add_f32 v{DP}, v{DP}, v{DM+1}', f'v_add_f32 v{DP}, {f2u(1e-6)}, v{DP}', f'v_rcp_f32 v{DP}, v{DP}']
            for k in range(0, 16, 2): S.append(pk('mul', N+k, N+k, ('b', DP)))
            for p in range(2):
                for jj in range(2):
                    j = p + 2*jj
                    for q in range(2): S.append(cvt(DM+4*p+2*jj+q, N+4*j+2*q, N+4*j+2*q+1))
                S.append(f'buffer_store_dwordx4 {vr(DM+4*p,4)}, v{t2}, {srd(sWS)}, s{s_a} offen offset:{512*p} sc1')
            if Tt == 0: S.append(f's_add_u32 s{s_a}, s{s_a}, 65536')
        self.aw(S)
        self.stamp(6)

    def epiB(self, E):
        a = self.a
        acc = E['acc']; a_tok, a_row, a_csr, a_csv, l16 = (E[k] for k in ('a_tok', 'a_row', 'a_csr', 'a_csv', 'l16'))
        s_wm, s_wh, s_a, s_b, s_c = (E[k] for k in ('s_wm', 's_wh', 's_a', 's_b', 's_c'))
        V = Alloc('v', 128, 254)
        nml = V.get(4, 4); rsl = V.get(4, 4); csq = V.get(8, 4); csk = V.get(8, 4); csv = V.get(2, 2)
        nmr = V.get(16, 4); rsr = V.get(16, 4)
        VP = [V.get(12, 4), V.get(12, 4)]
        HB = V.get(8, 4)
        BI = V.get(8, 4); BI0 = V.get(4, 4); MK = V.get(4, 4)
        tmp = V.get(4, 4); t0, t1, t2, t3 = tmp, tmp+1, tmp+2, tmp+3
        S = []
        for b in (3, 0, 1, 2):
            S += [f'ds_read_b32 v{nml+b}, v{a_tok} offset:{64*b}', f'ds_read_b32 v{rsl+b}, v{a_tok} offset:{512+64*b}']
            if b == 3:
                for nb in range(2): S.append(f'ds_read_b128 {vr(csk+4*nb,4)}, v{a_csr} offset:{768+256+64*nb}')
                for nb in range(2): S.append(f'ds_read_b32 v{csv+nb}, v{a_csv} offset:{768+512+64*nb}')
            S += [f'ds_read_b128 {vr(nmr+4*b,4)}, v{a_row} offset:{64*b}', f'ds_read_b128 {vr(rsr+4*b,4)}, v{a_row} offset:{512+64*b}']
        for nb in range(2): S.append(f'ds_read_b128 {vr(csq+4*nb,4)}, v{a_csr} offset:{768+64*nb}')
        def kprep(b):
            r = acc(b, 2); L = []
            for k in range(4): L.append(pk('fma', r+2*k, csk+2*k, ('b', nml+b), r+2*k))
            for k in range(4): L.append(pk('mul', r+2*k, r+2*k, ('b', rsl+b)))
            for k in range(4): L.append(cvt(r+k, r+2*k, r+2*k+1))
            return L
        def vprep(b):
            r = acc(b, 4); L = []
            for nb in range(2):
                for p in range(2): L.append(pk('fma', r+4*nb+2*p, nmr+4*b+2*p, ('b', csv+nb), r+4*nb+2*p))
            for nb in range(2):
                for p in range(2): L.append(pk('mul', r+4*nb+2*p, r+4*nb+2*p, rsr+4*b+2*p))
            for nb in range(2):
                for p in range(2): L.append(cvt(VP[nb]+2+2*b+p, r+4*nb+2*p, r+4*nb+2*p+1))
            return L
        def qprep(b):
            r = acc(b, 0); L = []
            for k in range(4): L.append(pk('fma', r+2*k, csq+2*k, ('b', nml+b), r+2*k))
            for k in range(4): L.append(cvt(r+k, r+2*k, r+2*k+1))
            return L
        S += kprep(3) + vprep(3)
        for nb in range(2):
            for p in range(2): S.append(f'v_mov_b32 v{acc(3,3)+2*nb+p}, v{VP[nb]+8+p}')
        S += [f's_lshr_b32 s{s_b}, s{s_l}, 1', f's_lshl_b32 s{s_b}, s{s_b}, 4', f's_add_u32 s{s_b}, s{s_b}, s{s_m}', f's_lshl_b32 s{s_b}, s{s_b}, 4',
              f's_add_u32 s{s_b}, s{s_b}, s{s_g}', f's_lshl_b32 s{s_b}, s{s_b}, 1', f's_add_u32 s{s_b}, s{s_b}, s{s_wh}', f's_lshl_b32 s{s_b}, s{s_b}, 11',
              f's_add_u32 s{s_b}, s{s_b}, {WS_HALO}', f's_add_u32 s{s_c}, s{s_b}, 65536',
              f's_lshl_b32 s{s_t}, s{s_wh}, 11', f'v_add_u32 v{t0}, s{s_t}, v{l16}', 's_waitcnt lgkmcnt(0)']
        self.aw(S); S = []
        L1, L2 = self.lab('hw'), self.lab('hwd')
        a(f's_cmp_eq_u32 s{s_wm}, 0'); a(f's_cbranch_scc1 {L1}')
        a(f's_cmp_eq_u32 s{s_m}, 15'); a(f's_cbranch_scc1 {L2}')
        for k in range(2): a(f'buffer_store_dwordx4 {vr(acc(3,2)+4*k,4)}, v{l16}, {srd(sWS)}, s{s_c} offen offset:{1024*k} sc1')
        a(f's_branch {L2}')
        a.label(L1)
        for k in range(2): a(f'ds_write_b128 v{t0}, {vr(acc(3,2)+4*k,4)} offset:{1024*k}')
        a.label(L2)
        for b in range(3): S += kprep(b) + vprep(b)
        for b in range(4): S += qprep(b)
        S += [f'v_and_b32 v{t1}, 15, v1', f'v_lshrrev_b32 v{t2}, 4, v1', f'v_lshlrev_b32 v{t2}, 2, v{t2}', f'v_sub_u32 v{t1}, v{t1}, v{t2}',
              f'v_mov_b32 v{t3}, {f2u(-1e30)}']
        for blk in range(2):
            for i in range(4):
                S += [f'v_add_u32 v{t2}, {(16 if blk == 0 else 0) - i}, v{t1}', f'v_and_b32 v{t2}, -15, v{t2}', f'v_cmp_eq_u32 vcc, 0, v{t2}',
                      f'v_cndmask_b32 v{BI+4*blk+i}, v{t3}, 0, vcc']
                if i % 2 == 0: S.append(f'v_cndmask_b32 v{MK+2*blk+i//2}, 0, -1, vcc'); S.append(f'v_lshrrev_b32 v{MK+2*blk+i//2}, 16, v{MK+2*blk+i//2}')
                else: S += [f'v_cndmask_b32 v{t2}, 0, -1, vcc', f'v_lshl_or_b32 v{MK+2*blk+i//2}, v{t2}, 16, v{MK+2*blk+i//2}']
        for b in range(4): S.append(f'v_mul_f32 v{rsl+b}, {f2u(LOG2E * 32 ** -0.5)}, v{rsl+b}')
        for i in range(4): S.append(f'v_mov_b32 v{BI0+i}, v{BI+i}')
        S += ['s_waitcnt lgkmcnt(0)', 's_barrier']
        self.aw(S); S = []
        self.stamp(3)
        L1, L2, L3, L4 = self.lab('hg'), self.lab('hz'), self.lab('hd'), self.lab('hp')
        a(f's_cmp_eq_u32 s{s_wm}, 0'); a(f's_cbranch_scc1 {L1}')
        for k in range(2): a(f'ds_read_b128 {vr(HB+4*k,4)}, v{t0} offset:{1024*k}')
        a('s_waitcnt lgkmcnt(0)')
        a(f's_branch {L3}')
        a.label(L1)
        a(f's_cmp_eq_u32 s{s_m}, 0'); a(f's_cbranch_scc1 {L2}')
        a(f's_mov_b32 s{s_cnt}, 0')
        a.label(L4)
        for k in range(2): a(f'buffer_load_dwordx4 {vr(HB+4*k,4)}, v{l16}, {srd(sWS)}, s{s_b} offen offset:{1024*k} sc1')
        a(f's_add_u32 s{s_cnt}, s{s_cnt}, 1')
        a('s_waitcnt vmcnt(0)')
        a(f'v_max3_u32 v{t1}, v{HB}, v{HB+1}, v{HB+2}'); a(f'v_max3_u32 v{t2}, v{HB+3}, v{HB+4}, v{HB+5}')
        a(f'v_max3_u32 v{t1}, v{t1}, v{HB+6}, v{HB+7}'); a(f'v_max_u32 v{t1}, v{t1}, v{t2}')
        a(f'v_cmp_eq_u32 vcc, -1, v{t1}')
        a('s_cmp_eq_u64 vcc, 0'); a(f's_cbranch_scc1 {L3}')
        a(f's_cmp_lt_u32 s{s_cnt}, {self.limit}'); a(f's_cbranch_scc1 {L4}')
        a(f'v_mov_b32 v{t1}, 64'); a(f'buffer_atomic_or v{t1}, off, {srd(sDBG)}, 0 offset:8 sc1')
        a(f's_branch {L3}')
        a.label(L2)
        for k in range(8): a(f'v_mov_b32 v{HB+k}, 0')
        for i in range(4): a(f'v_mov_b32 v{BI0+i}, v{t3}')
        a.label(L3)
        self.stamp(4)
        for nb in range(2):
            for p in range(2): S.append(f'v_mov_b32 v{VP[nb]+p}, v{HB+4+2*nb+p}')
        V.put(nmr, 16); V.put(rsr, 16); V.put(csq, 8); V.put(csk, 8)
        SS = V.get(32, 4); U = V.get(8, 4); M = V.get(4, 4); M2 = V.get(4, 4)
        for b in (1, 2, 3, 0):
            S += [mf16(SS+8*b, HB if b == 0 else acc(b-1, 2), acc(b, 0), BI0 if b == 0 else BI), mf16(SS+8*b+4, acc(b, 2), acc(b, 0), BI+4)]
        for b in (1, 2, 3, 0):
            s = SS + 8*b
            for p in range(2):
                S += [f'v_max3_f32 v{U+2*b+p}, v{s+2*p}, v{s+2*p+1}, v{s+4+2*p}', f'v_max_f32 v{U+2*b+p}, v{U+2*b+p}, v{s+5+2*p}']
            S.append(pk('mul', U+2*b, U+2*b, ('b', rsl+b)))
            S.append(f'v_max_f32 v{M+b}, v{U+2*b}, v{U+2*b+1}')
        def allred(op, mid):
            L = [sw32(M, M+2), sw32(M+1, M+3), f'{op} v{M}, v{M}, v{M+2}', f'{op} v{M+1}, v{M+1}, v{M+3}', sw16(M, M+1), f'{op} v{M+1}, v{M}, v{M+1}']
            L += mid
            L += [f'v_mov_b32 v{M}, v{M+1}', sw16(M, M+1), f'v_mov_b32 v{M+2}, v{M}', f'v_mov_b32 v{M+3}, v{M+1}', sw32(M, M+2), sw32(M+1, M+3)]
            return L
        S += allred('v_max_f32', [])
        for b in range(4): S.append(pk('add', U+2*b, U+2*b, ('b', M+b), neg=[0, 1]))
        for k in range(8): S.append(f'v_exp_f32 v{U+k}, v{U+k}')
        for b in range(4): S.append(f'v_add_f32 v{M+b}, v{U+2*b}, v{U+2*b+1}')
        S += allred('v_add_f32', [f'v_rcp_f32 v{M+1}, v{M+1}'])
        for b in range(4):
            P = SS + 8*b; O = acc(b, 4)
            S.append(pk('mul', U+2*b, U+2*b, ('b', M+b)))
            for p in range(2): S.append(cvt(U+2*b+p, U+2*b+p, U+2*b+p))
            for blk in range(2):
                for p in range(2): S.append(f'v_and_b32 v{P+2*blk+p}, v{U+2*b+p}, v{MK+2*blk+p}')
            for db in range(2): S.append(mf16(O+4*db, VP[db]+2*b, P))
        for b in range(4):
            O = acc(b, 4)
            for k in range(4): S.append(cvt(O+k, O+2*k, O+2*k+1))
            S.append(f'buffer_store_dwordx4 {vr(O,4)}, v{l16}, {srd(sWS)}, s{s_a} offen sc1')
            if b < 3: S.append(f's_add_u32 s{s_a}, s{s_a}, 32768')
        self.aw(S)
        self.stamp(6)

    def build(self):
        a = self.a
        self.prologue()
        self.compute()
        self.loader()
        self.helper()
        a.label('L_fin')
        self.stamp(15)
        self.stamp_out(1)
        a('s_waitcnt vmcnt(0)')
        a.label('L_end')
        a('s_endpgm')
        a.pad()
        assert a.maxreg('v') <= 255 and a.maxreg('s') < 96
        return a.text()


def generate(listform=False, **kw):
    body = Gen(**kw).build()
    ref = open('interleave_layers__linear_kernel_hedgehog__sliding_local_dilated__prompt.s.ref').read() if not listform else ''
    head = ''.join(l + '\n' for l in ref.split('\n') if l.startswith(';') and '@launch' not in l)
    if listform: head += f'; @launch kernel={KNAME} grid=(256,1,1) block=(512,1,1) lds={LDS_BYTES}\n'
    else: head += f'; @launch grid=(256,1,1) block=(512,1,1) lds={LDS_BYTES}\n'
    return head + '.amdgcn_target "amdgcn-amd-amdhsa--gfx950"\n' + kernel_head(KNAME) + body + kernel_desc(KNAME, 256, 96, 256)

if __name__ == '__main__':
    kw = eval(sys.argv[2]) if len(sys.argv) > 2 else {}
    open(sys.argv[1], 'w').write(generate(**kw))
```

```python
import sys
sys.path.insert(0, 'work')
from asmlib import *

KNAME = 'interleave_layers__linear_kernel_hedgehog__sliding_local_dilated__prompt_kernel'

WS_CTR, WS_STAMP, WS_ST, WS_CS = 0x0, 0x100000, 0x200000, 0x300000
WS_HALO, WS_KVF, WS_ZP, WS_KVP = 0x400000, 0x600000, 0x680000, 0x800000
WS_XI, WS_OI, WS_END = 0x1000000, 0x1C00000, 0x2C00000
STG = 40960
L_SPARE = 3 * STG
L_WO = 24576
L_P = 155648
P_NM, P_RS, P_CS, P_MODE, P_PHI = L_P, L_P + 512, L_P + 1024, L_P + 2816, L_P + 3072
LDS_BYTES = 163840
SCR = 4352
LOG2E = 1.4426950408889634
import struct
def f2u(x): return '0x%08x' % struct.unpack('<I', struct.pack('<f', x))[0]

pAX, pAW, pPHI, pAWO, pBW, pBWO, pOUT, pDBG, pWS = 4, 6, 8, 10, 14, 16, 18, 20, 22
sWS, sX, sW, sWO, sOUT, sDBG = 24, 28, 32, 36, 40, 44
s_m, s_g, s_wave, s_l = 48, 49, 50, 51
s_t = 52
s_cnt, s_val = 60, 61
s_i = 62
s_stamp = 63
s_fast = 3
def srd(b): return 's[%d:%d]' % (b, b + 3)


def pkop(r):
    if isinstance(r, tuple):
        return vr(r[1] & ~1, 2), r[1] & 1, r[1] & 1
    assert r % 2 == 0
    return vr(r, 2), 0, 1
def pk(op, d, *src, neg=None):
    o = [pkop(s) for s in src]
    t = 'v_pk_%s_f32 %s, %s' % (op, vr(d, 2), ', '.join(x[0] for x in o))
    lo = [x[1] for x in o]; hi = [x[2] for x in o]
    if any(lo): t += ' op_sel:[%s]' % ','.join(map(str, lo))
    if not all(hi): t += ' op_sel_hi:[%s]' % ','.join(map(str, hi))
    if neg: t += ' neg_lo:[%s] neg_hi:[%s]' % (','.join(map(str, neg)), ','.join(map(str, neg)))
    return t
def cvt(d, a, b): return f'v_cvt_pk_bf16_f32 v{d}, v{a}, v{b}'
def sw16(a, b): return f'v_permlane16_swap_b32 v{a}, v{b}'
def sw32(a, b): return f'v_permlane32_swap_b32 v{a}, v{b}'
def mf16(d, A, B, C=None): return f'v_mfma_f32_16x16x32_bf16 {vr(d,4)}, {vr(A,4)}, {vr(B,4)}, ' + (vr(C, 4) if C is not None else '0')
def mf32(d, A, B, C=None): return f'v_mfma_f32_32x32x16_bf16 {vr(d,16)}, {vr(A,4)}, {vr(B,4)}, ' + (vr(C, 16) if C is not None else '0')


class Gen:
    def __init__(self, xm=2, prof=False, limit=40000, dist=2, touch=1, bm=26, st='sc1', local=1, own=0, ot=13, pd=5, nw=2, ot2=16):
        self.a = Asm()
        assert bm >= (3, 13, 23)[nw-1]
        self.xm, self.prof, self.limit = xm, prof, limit
        self.dist, self.touch, self.bm = dist, touch, bm
        self.st, self.local, self.own, self.ot = st, local, own, ot
        self.pd, self.nw, self.ot2 = pd, nw, ot2
        self.nlab = 0

    def lab(self, p):
        self.nlab += 1
        return 'L_%s_%d' % (p, self.nlab)

    def aw(self, L):
        self.a.extend(autowait(L))

    def stamp(self, k):
        if not self.prof: return
        a = self.a
        a(f's_memrealtime s[{s_t+6}:{s_t+7}]')
        a(f's_mov_b32 s{s_stamp}, m0')
        a(f's_lshl_b32 m0, s{s_l}, 4'); a(f's_add_u32 m0, m0, {k}')
        a('s_waitcnt lgkmcnt(0)')
        a(f'v_writelane_b32 v255, s{s_t+6}, m0')
        a(f's_mov_b32 m0, s{s_stamp}')
    def stamp_out(self, lane):
        if not self.prof: return
        a = self.a
        a(f's_lshl_b32 s{s_t}, s2, 3'); a(f's_add_u32 s{s_t}, s{s_t}, s{s_wave}'); a(f's_lshl_b32 s{s_t}, s{s_t}, 8')
        a(f's_add_u32 s{s_t}, s{s_t}, {WS_STAMP}')
        a(f'v_lshlrev_b32 v254, 2, v{lane}')
        a(f'buffer_store_dword v255, v254, {srd(sWS)}, s{s_t} offen')
        a('s_waitcnt vmcnt(0)')

    def poll(self, srdb, soff, target, vt, tag):
        a = self.a
        L, D = self.lab('poll'), self.lab('polled')
        a(f's_mov_b32 s{s_cnt}, 0')
        a.label(L)
        a(f'buffer_load_dword v{vt}, off, {srd(srdb)}, {soff} sc1')
        a(f's_add_u32 s{s_cnt}, s{s_cnt}, 1')
        a('s_waitcnt vmcnt(0)')
        a(f'v_readfirstlane_b32 s{s_val}, v{vt}')
        a(f's_cmp_ge_u32 s{s_val}, {target}'); a(f's_cbranch_scc1 {D}')
        a(f's_cmp_lt_u32 s{s_cnt}, {self.limit}'); a(f's_cbranch_scc1 {L}')
        a(f'v_mov_b32 v{vt}, {1 << tag}')
        a(f'buffer_atomic_or v{vt}, off, {srd(sDBG)}, 0 offset:8 sc1')
        a.label(D)

    def signal(self, srdb, soff, vt):
        a = self.a
        a('s_mov_b64 exec, 1')
        a(f'v_mov_b32 v{vt}, 1')
        a(f'buffer_atomic_add v{vt}, off, {srd(srdb)}, {soff} sc1')
        a('s_mov_b64 exec, -1')

    def row_signal(self, soff, vt):
        a = self.a
        F, D = self.lab('fast'), self.lab('sigd')
        a('s_mov_b64 exec, 1')
        a(f's_lshl_b32 s{s_t}, s{s_g}, 2'); a(f's_add_u32 s{s_t}, s{s_t}, {soff}')
        a(f'v_mov_b32 v{vt}, 1')
        a(f's_cmp_eq_u32 s{s_fast}, 1'); a(f's_cbranch_scc1 {F}')
        if self.st != 'sc1': a('buffer_wbl2 sc1'); a('s_waitcnt vmcnt(0)')
        a(f'buffer_store_dword v{vt}, off, {srd(sWS)}, s{s_t} sc1')
        a(f's_branch {D}')
        a.label(F)
        a(f'buffer_store_dword v{vt}, off, {srd(sWS)}, s{s_t}')
        a.label(D)
        a('s_mov_b64 exec, -1')

    def row_poll(self, soff, va, vt, tag):
        a = self.a
        L, D, E = self.lab('rpoll'), self.lab('rpolled'), self.lab('rpe')
        a(f'v_and_b32 v{va}, 15, v1'); a(f'v_lshlrev_b32 v{va}, 2, v{va}')
        a(f's_mov_b32 s{s_cnt}, 0')
        a.label(L)
        a(f'buffer_load_dword v{vt}, v{va}, {srd(sWS)}, {soff} offen sc1')
        a(f's_add_u32 s{s_cnt}, s{s_cnt}, 1')
        a('s_waitcnt vmcnt(0)')
        a(f'v_cmp_eq_u32 vcc, 0, v{vt}')
        a('s_cmp_eq_u64 vcc, 0'); a(f's_cbranch_scc1 {D}')
        a(f's_cmp_lt_u32 s{s_cnt}, {self.limit}'); a(f's_cbranch_scc1 {L}')
        a(f'v_mov_b32 v{vt}, {1 << tag}')
        a(f'buffer_atomic_or v{vt}, off, {srd(sDBG)}, 0 offset:8 sc1')
        a.label(D)
        if self.st != 'sc1':
            a(f's_cmp_eq_u32 s{s_fast}, 1'); a(f's_cbranch_scc1 {E}')
            a('buffer_inv sc1'); a('s_waitcnt vmcnt(0)')
            a.label(E)

    def get_mode(self, vt):
        a = self.a
        if self.st == 'sc1': return
        a(f'v_mov_b32 v{vt}, {P_MODE}'); a(f'ds_read_b32 v{vt}, v{vt}'); a('s_waitcnt lgkmcnt(0)')
        a(f'v_readfirstlane_b32 s{s_fast}, v{vt}')

    def rctr(self, d, odd):
        a = self.a
        a(f's_lshl_b32 s{d}, s{s_l}, 5'); a(f's_add_u32 s{d}, s{d}, s{s_m}')
        if odd: a(f's_add_u32 s{d}, s{d}, 16')
        a(f's_lshl_b32 s{d}, s{d}, 8')
    def cctr(self, d, hop):
        a = self.a
        a(f's_lshl_b32 s{d}, s{s_l}, 4'); a(f's_add_u32 s{d}, s{d}, s{s_g}')
        a(f's_add_u32 s{d}, s{d}, {128 + 16*hop}')
        a(f's_lshl_b32 s{d}, s{d}, 8')

    def prologue(self):
        a = self.a; xm = self.xm
        a('s_cmp_ge_u32 s2, 256'); a('s_cbranch_scc1 L_end')
        a('s_load_dwordx16 s[4:19], s[0:1], 0')
        a('s_load_dwordx4 s[20:23], s[0:1], 64')
        a('v_lshrrev_b32 v2, 6, v0')
        a(f'v_readfirstlane_b32 s{s_wave}, v2')
        a('v_and_b32 v1, 63, v0')
        xg = 32 // xm; nxm = 16 // xm
        a(f's_and_b32 s{s_t}, s2, 7'); a(f's_lshr_b32 s{s_t+1}, s2, 3')
        a(f's_and_b32 s{s_m}, s{s_t}, {nxm-1}'); a(f's_mul_i32 s{s_m}, s{s_m}, {xm}')
        a(f's_and_b32 s{s_t+2}, s{s_t+1}, {xm-1}'); a(f's_add_u32 s{s_m}, s{s_m}, s{s_t+2}')
        a(f's_lshr_b32 s{s_g}, s{s_t}, {nxm.bit_length()-1}'); a(f's_mul_i32 s{s_g}, s{s_g}, {xg}')
        a(f's_lshr_b32 s{s_t+2}, s{s_t+1}, {xm.bit_length()-1}'); a(f's_add_u32 s{s_g}, s{s_g}, s{s_t+2}')
        a(f's_mov_b32 s{s_l}, 0'); a(f's_mov_b32 s{s_fast}, 0')
        for b, n in ((sWS, WS_END), (sX, 2048*1024*2), (sW, 1024*3072*2), (sWO, 1024*1024*2), (sOUT, WS_END), (sDBG, 256)):
            a(f's_mov_b32 s{b+2}, {n}'); a(f's_mov_b32 s{b+3}, 0x20000')
        if self.prof: a('v_mov_b32 v255, 0')
        a('s_waitcnt lgkmcnt(0)')
        for b, p in ((sWS, pWS), (sX, pAX), (sW, pAW), (sWO, pAWO), (sOUT, pWS), (sDBG, pDBG)):
            a(f's_mov_b64 s[{b}:{b+1}], s[{p}:{p+1}]')
        self.stamp(0)
        a(f's_cmp_ge_u32 s{s_wave}, 6'); a('s_cbranch_scc1 L_helper')
        a(f's_cmp_ge_u32 s{s_wave}, 4'); a('s_cbranch_scc1 L_loader')

    def w_dma_offsets(self, dw, idx, t0, t1, t2, t3):
        a = self.a
        a(f'v_lshrrev_b32 v{t0}, 3, v1')
        a(f'v_mul_u32_u24 v{t0}, 6144, v{t0}')
        a(f'v_and_b32 v{t1}, 7, v1')
        a(f'v_bfe_u32 v{t2}, v1, 4, 1'); a(f'v_lshlrev_b32 v{t2}, 1, v{t2}')
        a(f'v_xor_b32 v{t1}, v{t1}, v{t2}')
        a(f'v_xor_b32 v{t2}, 4, v{t1}')
        a(f'v_lshl_add_u32 v{t1}, v{t1}, 4, v{t0}')
        a(f'v_lshl_add_u32 v{t2}, v{t2}, 4, v{t0}')
        a(f's_lshl_b32 s{s_t+1}, s{s_g}, 7')
        for j in range(12):
            c = []
            for w in range(2):
                i = 12*w + j
                c.append((i & 7)*8*6144 + (i >> 3)*2048 - 1024*(j % 4))
                assert c[-1] >= 0
            a(f's_mul_i32 s{s_t}, s{idx}, {c[1]-c[0]}'); a(f's_add_u32 s{s_t}, s{s_t}, {c[0]}')
            a(f's_add_u32 s{s_t}, s{s_t}, s{s_t+1}')
            a(f'v_add_u32 v{dw+j}, s{s_t}, v{t1 if j % 2 == 0 else t2}')

    def w_dma(self, dw, srdb, soff, m0base):
        L = []
        for j in range(12):
            if j == 0: L.append(m0base)
            elif j % 4 == 0: L.append('s_add_u32 m0, m0, 4096')
            L.append(f'buffer_load_dwordx4 v{dw+j}, {srd(srdb)}, {soff} offen offset:{1024*(j%4)} lds')
        return L

    def w_frag_addr(self, aw, head_sreg, base, t0, t1, t2, nb_list=(0, 1)):
        a = self.a
        a(f'v_lshrrev_b32 v{t2}, 4, v1')
        a(f'v_bfe_u32 v{t0}, v1, 2, 2')
        a(f'v_lshl_add_u32 v{t1}, v{t2}, 3, v{t0}')
        a(f'v_lshrrev_b32 v{t0}, 1, v{t0}')
        a(f'v_and_b32 v{t2}, 1, v{t2}')
        a(f'v_lshl_add_u32 v{t0}, v{t2}, 1, v{t0}')
        if head_sreg is not None:
            a(f's_lshl_b32 s{s_t}, s{head_sreg}, 1')
            a(f'v_xor_b32 v{t0}, s{s_t}, v{t0}')
        a(f'v_and_b32 v{t2}, 3, v1'); a(f'v_lshlrev_b32 v{t2}, 3, v{t2}')
        a(f'v_lshl_add_u32 v{t2}, v{t1}, 7, v{t2}')
        if base: a(f'v_add_u32 v{t2}, {base}, v{t2}')
        for k, nb in enumerate(nb_list):
            a(f'v_xor_b32 v{t1}, {nb}, v{t0}')
            a(f'v_lshl_add_u32 v{aw+k}, v{t1}, 5, v{t2}')

    def reduce_job(self):
        a = self.a
        T = 200
        s_a, s_b, s_c = s_t + 2, s_t + 3, s_t + 4
        a('s_barrier')
        a(f's_lshl_b32 s{s_a}, s{s_l}, 3'); a(f's_add_u32 s{s_a}, s{s_a}, s{s_g}'); a(f's_lshl_b32 s{s_a}, s{s_a}, 2')
        a(f's_add_u32 s{s_a}, s{s_a}, s{s_wave}'); a(f's_sub_u32 s{s_a}, s{s_a}, 4')
        a(f'v_lshrrev_b32 v{T}, 4, v1'); a(f'v_lshlrev_b32 v{T}, 12, v{T}')
        a(f'v_bfe_u32 v{T+1}, v1, 3, 1'); a(f'v_lshl_add_u32 v{T}, v{T+1}, 10, v{T}')
        a(f'v_and_b32 v{T+2}, 7, v1'); a(f'v_lshl_add_u32 v{T}, v{T+2}, 4, v{T}')
        a(f's_lshl_b32 s{s_b}, s{s_a}, 16'); a(f's_add_u32 s{s_b}, s{s_b}, {WS_KVP}')
        a(f's_lshr_b32 s{s_t}, s{s_m}, 3'); a(f's_lshl_b32 s{s_t}, s{s_t}, 11'); a(f's_add_u32 s{s_b}, s{s_b}, s{s_t}')
        a(f's_and_b32 s{s_t}, s{s_m}, 7'); a(f's_lshl_b32 s{s_t}, s{s_t}, 7'); a(f's_add_u32 s{s_b}, s{s_b}, s{s_t}')
        a(f'v_and_b32 v{T+3}, 15, v1'); a(f'v_lshlrev_b32 v{T+3}, 7, v{T+3}')
        a(f's_lshl_b32 s{s_c}, s{s_a}, 11'); a(f's_add_u32 s{s_c}, s{s_c}, {WS_ZP}')
        a(f's_lshl_b32 s{s_t}, s{s_m}, 3'); a(f's_add_u32 s{s_c}, s{s_c}, s{s_t}')
        a(f'v_lshlrev_b32 v{T+2}, 4, v{T+2}'); a(f'v_lshl_add_u32 v{T+2}, v{T+1}, 3, v{T+2}')
        a(f'v_lshrrev_b32 v{T+1}, 5, v1'); a(f'v_lshl_add_u32 v{T+2}, v{T+1}, 2, v{T+2}')
        a(f'v_cmp_eq_u32 vcc, 16, v1')
        a(f'v_mov_b32 v{T+1}, 128')
        a(f'v_cndmask_b32 v{T+2}, v{T+2}, v{T+1}, vcc')
        a(f's_lshl_b32 s{s_a}, s{s_a}, 4'); a(f's_add_u32 s{s_a}, s{s_a}, s{s_m}'); a(f's_lshl_b32 s{s_a}, s{s_a}, 8')
        a(f's_add_u32 s{s_a}, s{s_a}, {WS_KVF}')
        self.cctr(s_t + 5, 0)
        a('s_barrier')
        L = self.lab('nosig')
        a(f's_cmp_lg_u32 s{s_wave}, 6'); a(f's_cbranch_scc1 {L}')
        self.signal(sWS, f's{s_t+5}', T + 4)
        a.label(L)
        self.poll(sWS, f's{s_t+5}', 16, T + 4, 1)
        D = T + 8; Z = T + 24
        S = []
        for it in range(4):
            S.append(f'buffer_load_dwordx4 {vr(D+4*it,4)}, v{T}, {srd(sWS)}, s{s_b} offen sc1')
            if it < 3: S.append(f's_add_u32 s{s_b}, s{s_b}, 16384')
        S.append(f'buffer_load_dwordx2 {vr(Z,2)}, v{T+3}, {srd(sWS)}, s{s_c} offen sc1')
        S += [pk('add', D, D, D+4), pk('add', D+2, D+2, D+6), pk('add', D+8, D+8, D+12), pk('add', D+10, D+10, D+14),
              pk('add', D, D, D+8), pk('add', D+2, D+2, D+10)]
        S += [sw32(D, D+2), sw32(D+1, D+3), pk('add', D, D, D+2)]
        S += [f'v_mov_b32 v{D+2}, v{D}', f'v_mov_b32 v{D+3}, v{D+1}', sw16(D+2, D), sw16(D+3, D+1), pk('add', D, D, D+2)]
        for sh in (8, 4, 2, 1):
            for k in range(2): S.append(f'v_add_f32_dpp v{Z+k}, v{Z+k}, v{Z+k} row_ror:{sh} row_mask:0xf bank_mask:0xf')
        S += [f'v_cndmask_b32 v{D}, v{D}, v{Z}, vcc', f'v_cndmask_b32 v{D+1}, v{D+1}, v{Z+1}, vcc', cvt(D, D, D+1)]
        S += ['s_mov_b32 exec_lo, 0x1ffff', 's_mov_b32 exec_hi, 0xffff',
              f'buffer_store_dword v{D}, v{T+2}, {srd(sWS)}, s{s_a} offen sc1', 's_mov_b64 exec, -1', 's_waitcnt vmcnt(0)']
        self.aw(S)
        a('s_barrier')
        L = self.lab('nosig')
        a(f's_cmp_lg_u32 s{s_wave}, 6'); a(f's_cbranch_scc1 {L}')
        self.cctr(s_t + 5, 1)
        self.signal(sWS, f's{s_t+5}', T + 4)
        a.label(L)

    def loader(self):
        a = self.a
        a.label('L_loader')
        dx, dw, dwo, t0, t1, t2, t3 = 8, 16, 28, 2, 3, 4, 5
        s_ld, s_kx, s_kw, s_slot, s_mx, s_mw, s_xstep, s_wo, s_wm0 = 64, 65, 66, 67, 68, 69, 70, 71, 72
        a(f's_sub_u32 s{s_ld}, s{s_wave}, 4')
        self.w_dma_offsets(dw, s_ld, t0, t1, t2, t3)
        a(f's_mul_i32 s{s_mw}, s{s_ld}, 12288'); a(f's_add_u32 s{s_mw}, s{s_mw}, 16384')
        a(f's_lshl_b32 s{s_mx}, s{s_ld}, 13')
        def wst(): return self.w_dma(dw, sW, f's{s_kw}', f's_add_u32 m0, s{s_slot}, s{s_mw}') + [f's_add_u32 s{s_kw}, s{s_kw}, {64*6144}']
        def xst():
            L = []
            for j in range(8):
                if j == 0: L.append(f's_add_u32 m0, s{s_slot}, s{s_mx}')
                elif j == 4: L.append('s_add_u32 m0, m0, 4096')
                L.append(f'buffer_load_dwordx4 v{dx+j}, {srd(sX)}, s{s_kx} offen offset:{1024*(j%4)} sc1 lds')
            return L + [f's_add_u32 s{s_kx}, s{s_kx}, s{s_xstep}']
        a(f'v_lshrrev_b32 v{t0}, 3, v1'); a(f'v_and_b32 v{t1}, 7, v1')
        a(f'v_lshrrev_b32 v{t2}, 4, v1'); a(f'v_xor_b32 v{t1}, v{t1}, v{t2}')
        a(f'v_xor_b32 v{t2}, 4, v{t1}')
        a(f'v_lshlrev_b32 v{t0}, 11, v{t0}')
        a(f'v_lshl_add_u32 v{t1}, v{t1}, 4, v{t0}'); a(f'v_lshl_add_u32 v{t2}, v{t2}, 4, v{t0}')
        a(f's_lshl_b32 s{s_t}, s{s_ld}, 17')
        for j in range(8):
            a(f's_add_u32 s{s_t+1}, s{s_t}, {j*16384 - 1024*(j%4)}')
            a(f'v_add_u32 v{dx+j}, s{s_t+1}, v{t1 if j % 2 == 0 else t2}')
        a(f's_lshl_b32 s{s_kx}, s{s_m}, 18'); a(f's_mov_b32 s{s_xstep}, 128'); a(f's_mov_b32 s{s_kw}, 0')
        a(f's_mov_b32 s{s_slot}, 0'); a.extend(wst()); a.extend(xst())
        a(f's_mov_b32 s{s_slot}, {STG}'); a.extend(wst())
        a(f'v_lshrrev_b32 v{t0}, 5, v1'); a(f'v_lshlrev_b32 v{t0}, 4, v{t0}')
        a(f'v_bfe_u32 v{t1}, v1, 3, 2'); a(f'v_add_u32 v{t0}, v{t0}, v{t1}')
        a(f'v_lshlrev_b32 v{t0}, 11, v{t0}')
        a(f'v_and_b32 v{t1}, 7, v1'); a(f'v_bfe_u32 v{t2}, v1, 4, 1'); a(f'v_lshlrev_b32 v{t2}, 1, v{t2}')
        a(f'v_xor_b32 v{t1}, v{t1}, v{t2}'); a(f'v_xor_b32 v{t2}, 4, v{t1}')
        a(f'v_lshl_add_u32 v{t1}, v{t1}, 4, v{t0}'); a(f'v_lshl_add_u32 v{t2}, v{t2}, 4, v{t0}')
        a(f's_lshl_b32 s{s_t}, s{s_g}, 7')
        for G in range(4):
            a(f's_add_u32 s{s_t+1}, s{s_t}, {G*4*2048 - 1024*G}')
            a(f'v_add_u32 v{dwo+G}, s{s_t+1}, v{t1 if G % 2 == 0 else t2}')
        a('s_waitcnt vmcnt(12)'); a('s_barrier')
        a.extend(xst())
        a(f's_mov_b32 s{s_slot}, {2*STG}'); a.extend(wst())
        a('s_waitcnt vmcnt(12)'); a('s_barrier')
        a.extend(xst())
        a('s_branch L_ld_enter')
        a.label('L_ld_layer')
        a('s_waitcnt vmcnt(8)'); a('s_barrier')
        if self.nw < 2: a.extend(wst())
        a(f's_mov_b32 s{s_slot}, {2*STG}'); a.extend(xst())
        if self.nw == 2: a.extend(wst())
        a(f's_waitcnt vmcnt({20 if self.nw == 2 else 8})'); a('s_barrier')
        if self.nw < 2: a.extend(wst())
        a.label('L_ld_enter')
        a(f's_mov_b32 s{s_i}, 0'); a(f's_mov_b32 s{s_slot}, 0')
        a.label('L_ld_loop')
        a.extend(xst()); a.extend(wst())
        a(f's_add_u32 s{s_slot}, s{s_slot}, {STG}'); a(f's_cmp_eq_u32 s{s_slot}, {3*STG}'); a(f's_cselect_b32 s{s_slot}, 0, s{s_slot}')
        a(f's_add_u32 s{s_i}, s{s_i}, 1'); a(f's_cmp_lt_u32 s{s_i}, 13')
        a('s_waitcnt vmcnt(20)')
        a('s_barrier')
        a('s_cbranch_scc1 L_ld_loop')
        def wo(h0, n):
            a(f's_add_u32 s{s_t}, s{s_ld}, {h0}')
            a(f's_lshl_b32 s{s_wo}, s{s_t}, 16'); a(f's_lshl_b32 s{s_wm0}, s{s_t}, 12'); a(f's_add_u32 s{s_wm0}, s{s_wm0}, {L_WO}')
            L = self.lab('wo')
            a(f's_mov_b32 s{s_i}, 0')
            a.label(L)
            a(f's_mov_b32 m0, s{s_wm0}')
            a(f's_add_u32 s{s_wm0}, s{s_wm0}, 8192')
            for G in range(4): a(f'buffer_load_dwordx4 v{dwo+G}, {srd(sWO)}, s{s_wo} offen offset:{1024*G} lds')
            a(f's_add_u32 s{s_wo}, s{s_wo}, 131072')
            a(f's_add_u32 s{s_i}, s{s_i}, 1'); a(f's_cmp_lt_u32 s{s_i}, {n//2}'); a(f's_cbranch_scc1 {L}')
        wo(24, 8)
        a('s_waitcnt vmcnt(16)'); a('s_barrier')
        wo(4, 10)
        a('s_barrier')
        wo(14, 10); wo(0, 4)
        a(f's_bitcmp1_b32 s{s_l}, 0'); a('s_cbranch_scc1 L_ld_B')
        self.reduce_job()
        a('s_branch L_ld_join')
        a.label('L_ld_B')
        a('s_barrier')
        a.label('L_ld_join')
        a('s_waitcnt vmcnt(0)'); a('s_barrier')
        a(f's_cmp_eq_u32 s{s_l}, 3'); a('s_cbranch_scc1 L_fin')
        self.get_mode(t0)
        self.rctr(s_t + 5, 1)
        a(f's_add_u32 s{s_l}, s{s_l}, 1')
        a(f's_bitcmp1_b32 s{s_l}, 0')
        a(f's_cselect_b64 s[{sW}:{sW+1}], s[{pBW}:{pBW+1}], s[{pAW}:{pAW+1}]')
        a(f's_cselect_b64 s[{sWO}:{sWO+1}], s[{pBWO}:{pBWO+1}], s[{pAWO}:{pAWO+1}]')
        a(f's_mov_b64 s[{sX}:{sX+1}], s[{pWS}:{pWS+1}]'); a(f's_mov_b32 s{sX+2}, {WS_END}')
        a(f's_lshl_b32 s{s_kx}, s{s_l}, 22'); a(f's_lshl_b32 s{s_t}, s{s_m}, 18'); a(f's_add_u32 s{s_kx}, s{s_kx}, s{s_t}')
        a(f's_add_u32 s{s_kx}, s{s_kx}, {WS_XI - (1 << 22)}')
        a(f's_mov_b32 s{s_xstep}, 16384'); a(f's_mov_b32 s{s_kw}, 0')
        a(f'v_lshlrev_b32 v{t0}, 4, v1'); a(f'v_add_u32 v{t0}, s{s_mx}, v{t0}')
        for j in range(8): a(f'v_add_u32 v{dx+j}, {4096*(j//4)}, v{t0}')
        a('s_barrier')
        for st in range(self.nw):
            a(f's_mov_b32 s{s_slot}, {st*STG}'); a.extend(wst())
        a('s_barrier')
        self.row_poll(f's{s_t+5}', t1, t0, 2)
        self.stamp(1)
        for st in range(2):
            a(f's_mov_b32 s{s_slot}, {st*STG}'); a.extend(xst())
        a('s_branch L_ld_layer')

    def helper(self):
        a = self.a
        a.label('L_helper')
        dw, aw, t0, t1, t2, t3 = 16, 28, 2, 3, 4, 5
        l4, ones, l16, a_st, a_cs, l8 = 6, 8, 7, 12, 13, 14
        s_h, s_a, s_b = 64, 65, 66
        a(f's_sub_u32 s{s_h}, s{s_wave}, 6')
        self.w_dma_offsets(dw, s_h, t0, t1, t2, t3)
        a(f's_mul_i32 s{s_a}, s{s_m}, {64*6144}')
        a(f's_mul_i32 s{s_b}, s{s_h}, 12288'); a(f's_add_u32 s{s_b}, s{s_b}, {L_SPARE}')
        a.extend(self.w_dma(dw, sW, f's{s_a}', f's_mov_b32 m0, s{s_b}'))
        a(f'v_lshlrev_b32 v{l4}, 2, v1'); a(f'v_lshlrev_b32 v{l16}, 4, v1'); a(f'v_lshlrev_b32 v{l8}, 3, v1')
        a(f's_mov_b64 s[{sWO}:{sWO+1}], s[{pPHI}:{pPHI+1}]'); a(f's_mov_b32 s{sWO+2}, 65536')
        a(f's_lshl_b32 s{s_t}, s{s_g}, 1'); a(f's_add_u32 s{s_t}, s{s_t}, s{s_h}'); a(f's_lshl_b32 s{s_t}, s{s_t}, 11')
        a(f's_lshl_b32 s{s_t+1}, s{s_h}, 11'); a(f's_add_u32 m0, s{s_t+1}, {P_PHI}')
        for j in range(2): a(f'buffer_load_dwordx4 v{l16}, {srd(sWO)}, s{s_t} offen offset:{1024*j} lds')
        a(f's_lshl_b32 s{s_t}, s{s_m}, 4'); a(f's_add_u32 s{s_t}, s{s_t}, s{s_g}')
        a(f's_lshl_b32 s{s_t+1}, s{s_t}, 8')
        a(f'v_mov_b32 v{t0}, 0')
        a(f'buffer_store_dword v{t0}, v{l4}, {srd(sWS)}, s{s_t+1} offen sc1')
        a(f's_lshl_b32 s{s_t+1}, s{s_h}, 8'); a(f's_add_u32 s{s_t}, s{s_t}, s{s_t+1}'); a(f's_lshl_b32 s{s_t}, s{s_t}, 12')
        a(f's_add_u32 s{s_t}, s{s_t}, {WS_HALO}')
        for k in range(4): a(f'v_mov_b32 v{ones+k}, -1')
        for j in range(4): a(f'buffer_store_dwordx4 {vr(ones,4)}, v{l16}, {srd(sWS)}, s{s_t} offen offset:{1024*j} sc1')
        self.w_frag_addr(aw, s_h, L_SPARE, t0, t1, t2)
        for k in range(4): a(f'v_mov_b32 v{ones+k}, 0x3f803f80')
        a(f'v_bfe_u32 v{t0}, v1, 4, 1'); a(f'v_lshrrev_b32 v{t1}, 5, v1'); a(f'v_and_b32 v{t2}, 15, v1')
        a(f'v_lshl_add_u32 v{t2}, v{t0}, 5, v{t2}'); a(f'v_lshl_add_u32 v{t2}, v{t1}, 4, v{t2}')
        a(f's_lshl_b32 s{s_t}, s{s_h}, 8'); a(f's_add_u32 s{s_t}, s{s_t}, {P_NM}')
        a(f'v_lshl_add_u32 v{a_st}, v{t2}, 2, s{s_t}')
        a(f's_mul_i32 s{s_t}, s{s_h}, 384'); a(f's_add_u32 s{s_t}, s{s_t}, {P_CS}')
        a(f'v_add_u32 v{a_cs}, s{s_t}, v{l8}')
        F, D = 32, 96
        def colsum(mat):
            S = []
            for s in range(2):
                for n in range(6):
                    for t in range(2):
                        S.append(f'ds_read_b64_tr_b16 {vr(F+24*s+4*n+2*t,2)}, v{aw+(n&1)} offset:{(n>>1)*8192+(32*s+4*t)*128}')
            for s in range(2):
                for n in range(6): S.append(mf16(D+4*n, ones, F+24*s+4*n, D+4*n if s else None))
            S += [f's_lshl_b32 s{s_t}, s{s_g}, 4', f's_add_u32 s{s_t}, s{s_t}, s{s_m}', f's_lshl_b32 s{s_t}, s{s_t}, 10',
                  f's_lshl_b32 s{s_t+1}, s{s_h}, 7', f's_add_u32 s{s_t}, s{s_t}, s{s_t+1}', f's_add_u32 s{s_t}, s{s_t}, {WS_CS + mat*262144}',
                  's_mov_b64 exec, 0xffff']
            for n in range(6): S.append(f'buffer_store_dword v{D+4*n}, v{l4}, {srd(sWS)}, s{s_t} offen offset:{(n>>1)*256+(n&1)*64} sc1')
            S.append('s_mov_b64 exec, -1')
            self.aw(S)
        SA, SC = 32, 64
        def stats_loads():
            S = [f's_lshl_b32 s{s_t}, s{s_l}, 4', f's_add_u32 s{s_t}, s{s_t}, s{s_m}', f's_lshl_b32 s{s_t}, s{s_t}, 14',
                 f's_lshl_b32 s{s_t+1}, s{s_h}, 9', f's_add_u32 s{s_t}, s{s_t}, s{s_t+1}', f's_add_u32 s{s_t}, s{s_t}, {WS_ST}']
            for gp in range(16):
                for w in range(2): S.append(f'buffer_load_dword v{SA+2*gp+w}, v{l4}, {srd(sWS)}, s{s_t} offen offset:{(gp%4)*1024+256*w} sc1')
                if gp % 4 == 3 and gp < 15: S.append(f's_add_u32 s{s_t}, s{s_t}, 4096')
            a.extend(S)
        def tree(base, n):
            S = []
            while n > 1:
                n //= 2
                for k in range(n): S.append(pk('add', base+2*k, base+2*k, base+2*(k+n)))
            return S
        def stats_finish():
            S = tree(SA, 16) + [sw16(SA, SA+1), f'v_mul_f32 v{SA}, {f2u(-1/1024)}, v{SA}', f'v_mul_f32 v{SA+1}, {f2u(1/1024)}, v{SA+1}',
                 f'v_fma_f32 v{SA+1}, -v{SA}, v{SA}, v{SA+1}', f'v_max_f32 v{SA+1}, 0, v{SA+1}', f'v_add_f32 v{SA+1}, {f2u(1e-5)}, v{SA+1}',
                 f'v_rsq_f32 v{SA+1}, v{SA+1}', f'ds_write_b32 v{a_st}, v{SA}', 's_nop 0', f'ds_write_b32 v{a_st}, v{SA+1} offset:512']
            a.extend(S)
        def cs_loads(mat):
            S = [f's_lshl_b32 s{s_t}, s{s_g}, 14', f's_mul_i32 s{s_t+1}, s{s_h}, 384', f's_add_u32 s{s_t}, s{s_t}, s{s_t+1}',
                 f's_add_u32 s{s_t}, s{s_t}, {WS_CS + mat*262144}']
            for mp in range(16):
                S.append(f'buffer_load_dwordx2 {vr(SC+2*mp,2)}, v{l8}, {srd(sWS)}, s{s_t} offen offset:{(mp%4)*1024} sc1')
                if mp % 4 == 3 and mp < 15: S.append(f's_add_u32 s{s_t}, s{s_t}, 4096')
            a.extend(S)
        def cs_finish(mat):
            S = tree(SC, 16) + ['s_mov_b32 exec_hi, 0xffff', f'ds_write_b64 v{a_cs}, {vr(SC,2)} offset:{768*mat}', 's_mov_b32 exec_hi, -1']
            a.extend(S)
        def bars(n):
            for _ in range(n): a('s_barrier')
        xm = self.xm; nrow = 32 // xm
        vtw, vto, vd = 30, 31, 15
        s_tw = 67
        BIG = 0x40000000
        def touch_setup():
            if not self.touch: return
            c, gt = s_t + 2, s_t + 3
            def cls(b):
                a(f's_lshr_b32 s{gt}, s{b}, 7'); a(f's_sub_u32 s{gt}, 3, s{gt}'); a(f's_and_b32 s{gt}, s{gt}, 7')
                a(f's_sub_u32 s{c}, s{s_g}, s{gt}'); a(f's_and_b32 s{c}, s{c}, 7'); a(f's_sub_u32 s{c}, s{c}, 1')
                a(f's_and_b32 s{s_t}, s{s_g}, 8'); a(f's_add_u32 s{gt}, s{gt}, s{s_t}'); a(f's_lshl_b32 s{gt}, s{gt}, 7')
            cls(sW)
            a(f's_cmp_ge_u32 s{c}, 3'); a(f's_cselect_b32 s{s_t}, {32*6144 - 3*2048}, 0'); a(f's_add_u32 s{gt}, s{gt}, s{s_t}')
            a(f's_lshl_b32 s{s_t}, s{c}, 11'); a(f's_add_u32 s{gt}, s{gt}, s{s_t}')
            a(f's_and_b32 s{s_t}, s{s_m}, {xm-1}'); a(f's_mul_i32 s{s_t}, s{s_t}, {nrow*6144}'); a(f's_add_u32 s{gt}, s{gt}, s{s_t}')
            a(f's_cmp_lt_u32 s{c}, 6'); a(f's_cselect_b32 s{s_t}, {nrow}, 0'); a(f's_mul_i32 s{s_t}, s{s_t}, s{s_h}')
            a(f'v_mul_u32_u24 v{vtw}, 6144, v1'); a(f'v_add_u32 v{vtw}, s{gt}, v{vtw}')
            a(f'v_mov_b32 v{t0}, {BIG}'); a(f'v_cmp_gt_u32 vcc, s{s_t}, v1'); a(f'v_cndmask_b32 v{vtw}, v{t0}, v{vtw}, vcc')
            cls(sWO)
            a(f's_lshl_b32 s{s_t}, s{c}, 19'); a(f's_add_u32 s{gt}, s{gt}, s{s_t}')
            a(f's_and_b32 s{s_t}, s{s_m}, {xm-1}'); a(f's_lshl_b32 s{s_t}, s{s_t}, 1'); a(f's_add_u32 s{s_t}, s{s_t}, s{s_h}')
            a(f's_mul_i32 s{s_t}, s{s_t}, {(128//xm)*2048}'); a(f's_add_u32 s{gt}, s{gt}, s{s_t}')
            a(f's_cmp_lt_u32 s{c}, 4'); a(f's_cselect_b32 s{s_t}, {128//xm}, 0')
            a(f'v_lshlrev_b32 v{vto}, 11, v1'); a(f'v_add_u32 v{vto}, s{gt}, v{vto}')
            a(f'v_cmp_gt_u32 vcc, s{s_t}, v1'); a(f'v_cndmask_b32 v{vto}, v{t0}, v{vto}, vcc')
        def touchW(st):
            if not self.touch: return
            a(f's_mov_b32 s{s_tw}, {st*64*6144}')
            a(f'buffer_load_dword v{vd}, v{vtw}, {srd(sW)}, s{s_tw} offen')
        self.bi = 0
        def qb(n=1):
            for _ in range(n):
                a('s_barrier')
                i = self.bi; self.bi += 1
                if i + 3 + self.dist <= 15: touchW(i + 3 + self.dist)
                if i == 11 and self.touch: a(f'buffer_load_dword v{vd}, v{vto}, {srd(sWO)}, 0 offen')
                if i == self.ot and self.own:
                    a(f's_lshl_b32 s{s_t}, s{s_l}, 22'); a(f's_lshl_b32 s{s_t+1}, s{s_m}, 18'); a(f's_add_u32 s{s_t}, s{s_t}, s{s_t+1}')
                    a(f's_lshl_b32 s{s_t+1}, s{s_g}, 1'); a(f's_add_u32 s{s_t+1}, s{s_t+1}, s{s_h}'); a(f's_lshl_b32 s{s_t+1}, s{s_t+1}, 10')
                    a(f's_add_u32 s{s_t+1}, s{s_t+1}, s{s_t}'); a(f's_add_u32 s{s_t+1}, s{s_t+1}, {WS_OI}')
                    a(f'v_lshrrev_b32 v{t0}, 3, v1'); a(f'v_lshlrev_b32 v{t0}, 8, v{t0}'); a(f'v_and_or_b32 v{t0}, v1, 7, v{t0}'); a(f'v_lshlrev_b32 v{t0}, 7, v{t0}')
                    a(f'buffer_load_dword v{vd}, v{t0}, {srd(sWS)}, s{s_t+1} offen sc1')
                if i == self.ot2 and self.own:
                    a(f's_lshl_b32 s{s_t}, s{s_l}, 22'); a(f's_lshl_b32 s{s_t+1}, s{s_m}, 18'); a(f's_add_u32 s{s_t}, s{s_t}, s{s_t+1}')
                    a(f's_lshl_b32 s{s_t+1}, s{s_g}, 1'); a(f's_add_u32 s{s_t+1}, s{s_t+1}, s{s_h}'); a(f's_lshl_b32 s{s_t+1}, s{s_t+1}, 13')
                    a(f's_add_u32 s{s_t+1}, s{s_t+1}, s{s_t}'); a(f's_add_u32 s{s_t+1}, s{s_t+1}, {WS_XI}')
                    a(f's_cmp_eq_u32 s{s_l}, 3'); a(f's_cselect_b32 s{s_t+1}, {BIG}, s{s_t+1}')
                    a(f'v_lshlrev_b32 v{t0}, 7, v1')
                    a(f'buffer_load_dword v{vd}, v{t0}, {srd(sWS)}, s{s_t+1} offen sc1')
        def next_touch():
            a(f's_bitcmp0_b32 s{s_l}, 0')
            a(f's_cselect_b64 s[{sW}:{sW+1}], s[{pBW}:{pBW+1}], s[{pAW}:{pAW+1}]')
            a(f's_cselect_b64 s[{sWO}:{sWO+1}], s[{pBWO}:{pBWO+1}], s[{pAWO}:{pAWO+1}]')
            touch_setup()
            for st in range(3 + self.dist): touchW(st)
        a(f's_mov_b64 s[{sWO}:{sWO+1}], s[{pAWO}:{pAWO+1}]'); a(f's_mov_b32 s{sWO+2}, {1024*1024*2}')
        a(f's_mov_b64 s[{sX}:{sX+1}], s[{pBW}:{pBW+1}]'); a(f's_mov_b32 s{sX+2}, {1024*3072*2}')
        touch_setup()
        for st in range(3, 3 + self.dist): touchW(st)
        qb(1)
        a(f's_waitcnt vmcnt({(self.dist + 1) if self.touch else 0})'); qb(1)
        colsum(0)
        a('s_waitcnt lgkmcnt(0)'); qb(1)
        a.extend(self.w_dma(dw, sX, f's{s_a}', f's_mov_b32 m0, s{s_b}'))
        a(f's_waitcnt vmcnt({13 if self.touch else 12})'); qb(1)
        L = self.lab('noarr')
        a(f's_cmp_lg_u32 s{s_h}, 0'); a(f's_cbranch_scc1 {L}')
        a(f's_getreg_b32 s{s_t}, hwreg(HW_REG_XCC_ID, 0, 3)'); a(f's_lshl_b32 s{s_t}, s{s_t}, 3')
        a(f's_lshl_b64 s[{s_t+2}:{s_t+3}], 1, s{s_t}'); a(f's_lshl_b32 s{s_t}, s{s_m}, 4')
        a('s_mov_b64 exec, 1')
        a(f'v_mov_b32 v{t0}, s{s_t+2}'); a(f'v_mov_b32 v{t1}, s{s_t+3}')
        a(f'buffer_atomic_add_x2 {vr(t0,2)}, off, {srd(sDBG)}, s{s_t} sc1')
        a('s_mov_b64 exec, -1')
        a.label(L)
        qb(2)
        a(f's_waitcnt vmcnt({2 if self.touch else 0})'); qb(1)
        colsum(1)
        a('s_waitcnt lgkmcnt(0)'); qb(4)
        L, D = self.lab('ipoll'), self.lab('ipolled')
        a(f'v_and_b32 v{t2}, 15, v1'); a(f'v_lshlrev_b32 v{t2}, 4, v{t2}')
        a(f's_mov_b32 s{s_cnt}, 0')
        a.label(L)
        a(f'buffer_load_dwordx2 {vr(t0,2)}, v{t2}, {srd(sDBG)}, 0 offen sc1')
        a(f's_add_u32 s{s_cnt}, s{s_cnt}, 1')
        a('s_waitcnt vmcnt(0)')
        a(f'v_sad_u8 v{t3}, v{t0}, 0, 0'); a(f'v_sad_u8 v{t3}, v{t1}, 0, v{t3}')
        a(f'v_cmp_ne_u32 vcc, 16, v{t3}')
        a('s_cmp_eq_u64 vcc, 0'); a(f's_cbranch_scc1 {D}')
        a(f's_cmp_lt_u32 s{s_cnt}, {self.limit}'); a(f's_cbranch_scc1 {L}')
        a(f'v_mov_b32 v{t3}, 8'); a(f'buffer_atomic_or v{t3}, off, {srd(sDBG)}, 0 offset:8 sc1')
        a.label(D)
        a(f'v_or_b32 v{t0}, v{t0}, v{t1}')
        a(f'v_readlane_b32 s{s_fast}, v{t0}, s{s_m}')
        a(f's_and_b32 s{s_fast}, s{s_fast}, 0x10101010'); a(f's_cselect_b32 s{s_fast}, {1 if self.local else 0}, 0')
        a(f'v_mov_b32 v{t3}, s{s_fast}'); a(f'v_mov_b32 v{t2}, {P_MODE}'); a(f'ds_write_b32 v{t2}, v{t3}')
        stats_loads(); cs_loads(0)
        qb(2)
        a('s_waitcnt vmcnt(0)')
        stats_finish(); cs_finish(0)
        a('s_waitcnt lgkmcnt(0)')
        qb(4)
        assert self.bi == 17
        a('s_branch L_hp_epi')
        a.label('L_hp_layer')
        self.bi = 0
        qb(2)
        stats_loads(); cs_loads(1)
        qb(3)
        a(f's_waitcnt vmcnt({3 if self.touch else 0})')
        stats_finish(); cs_finish(1)
        a('s_waitcnt lgkmcnt(0)')
        qb(12)
        assert self.bi == 17
        a.label('L_hp_epi')
        a(f's_bitcmp1_b32 s{s_l}, 0'); a('s_cbranch_scc1 L_hp_B')
        self.reduce_job()
        a('s_branch L_hp_join')
        a.label('L_hp_B')
        bars(1)
        a.label('L_hp_join')
        self.rctr(s_t + 5, 0)
        bars(1)
        L = self.lab('nosig')
        a(f's_cmp_lg_u32 s{s_h}, 0'); a(f's_cbranch_scc1 {L}')
        self.row_signal(f's{s_t+5}', t0)
        a.label(L)
        a(f's_cmp_eq_u32 s{s_l}, 3'); a('s_cbranch_scc1 L_fin')
        self.rctr(s_t + 5, 1)
        next_touch()
        bars(2)
        L = self.lab('nosig')
        a(f's_cmp_lg_u32 s{s_h}, 0'); a(f's_cbranch_scc1 {L}')
        self.row_signal(f's{s_t+5}', t0)
        a.label(L)
        a(f's_add_u32 s{s_l}, s{s_l}, 1')
        a('s_branch L_hp_layer')

    def compute(self):
        a = self.a
        l16, voffR, voffI, a_tok, a_row, a_t32, a_csr, a_csv = 2, 3, 4, 5, 6, 7, 8, 9
        ax, awq = 10, 12
        l4 = 14; vst = 15
        XR = 16
        ACC = 32
        FX = [128, 144]; FW = [160, 184]
        T = 208
        t0, t1, t2, t3 = T, T+1, T+2, T+3
        s_wm, s_wh, s_rslot, s_delta, s_stg, s_ones = 64, 65, 66, 67, 68, 69
        s_o = 70
        s_ob = 74
        s_a, s_b, s_c = 76, 77, 78
        a(f's_lshr_b32 s{s_wm}, s{s_wave}, 1'); a(f's_and_b32 s{s_wh}, s{s_wave}, 1')
        a(f'v_lshrrev_b32 v{t0}, 4, v1')
        a(f'v_and_b32 v{t1}, 15, v1')
        a(f'v_and_b32 v{t2}, 1, v{t0}'); a(f'v_lshrrev_b32 v{t3}, 1, v{t0}'); a(f'v_lshl_add_u32 v{t2}, v{t2}, 1, v{t3}')
        a(f'v_lshlrev_b32 v{voffR}, 11, v{t1}'); a(f'v_lshl_add_u32 v{voffR}, v{t2}, 4, v{voffR}')
        a(f's_lshl_b32 s{s_t}, s{s_m}, 18'); a(f's_lshl_b32 s{s_t+1}, s{s_wave}, 16'); a(f's_add_u32 s{s_t}, s{s_t}, s{s_t+1}')
        a(f's_lshl_b32 s{s_t+1}, s{s_g}, 7'); a(f's_add_u32 s{s_t}, s{s_t}, s{s_t+1}'); a(f's_add_u32 s{s_t+1}, s{s_t}, 32768')
        for tb in range(2):
            for e in range(2): a(f'buffer_load_dwordx4 {vr(XR+8*tb+4*e,4)}, v{voffR}, {srd(sX)}, s{s_t+tb} offen offset:{64*e}')
        a(f'v_lshl_add_u32 v{voffI}, v{t2}, 4, v{t1}'); a(f'v_lshlrev_b32 v{voffI}, 4, v{voffI}')
        a(f'v_lshlrev_b32 v{l16}, 4, v1'); a(f'v_lshlrev_b32 v{l4}, 2, v1')
        a(f's_lshl_b32 s{s_t}, s{s_wm}, 8'); a(f's_add_u32 s{s_t}, s{s_t}, {P_NM}')
        a(f'v_lshl_add_u32 v{a_tok}, v{t1}, 2, s{s_t}')
        a(f'v_lshl_add_u32 v{a_row}, v{t0}, 4, s{s_t}')
        a(f'v_and_b32 v{t3}, 31, v1'); a(f'v_lshl_add_u32 v{a_t32}, v{t3}, 2, s{s_t}')
        a(f's_lshl_b32 s{s_t}, s{s_wh}, 7'); a(f's_add_u32 s{s_t}, s{s_t}, {P_CS}')
        a(f'v_lshl_add_u32 v{a_csr}, v{t0}, 4, s{s_t}')
        a(f'v_lshl_add_u32 v{a_csv}, v{t1}, 2, s{s_t}')
        a(f's_mov_b32 s{s_stg}, {STG}'); a(f's_mov_b32 s{s_ones}, 0x3f803f80')
        a(f'v_lshrrev_b32 v{t2}, 1, v{t1}'); a(f'v_xor_b32 v{t2}, v{t2}, v{t0}')
        a(f's_lshl_b32 s{s_t}, s{s_wm}, 13'); a(f'v_lshl_add_u32 v{t1}, v{t1}, 7, s{s_t}')
        for s in range(2):
            a(f'v_xor_b32 v{t3}, {4*s}, v{t2}'); a(f'v_lshl_add_u32 v{ax+s}, v{t3}, 4, v{t1}')

        def stats(layer_add):
            q = T + 4
            S = []
            for k in range(8):
                for tb in range(2):
                    r = XR + 8*tb + k
                    if k == 0:
                        S += [f'v_dot2_f32_bf16 v{q+2*tb}, s{s_ones}, v{r}, 0', f'v_dot2_f32_bf16 v{q+2*tb+1}, v{r}, v{r}, 0']
                    else:
                        S += [f'v_dot2_f32_bf16 v{q+2*tb}, s{s_ones}, v{r}, v{q+2*tb}', f'v_dot2_f32_bf16 v{q+2*tb+1}, v{r}, v{r}, v{q+2*tb+1}']
            S += [f's_add_u32 s{s_t}, s{s_l}, {layer_add}', f's_lshl_b32 s{s_t}, s{s_t}, 4', f's_add_u32 s{s_t}, s{s_t}, s{s_m}',
                  f's_lshl_b32 s{s_t}, s{s_t}, 4', f's_add_u32 s{s_t}, s{s_t}, s{s_g}', f's_lshl_b32 s{s_t}, s{s_t}, 2',
                  f's_add_u32 s{s_t}, s{s_t}, s{s_wave}', f's_lshl_b32 s{s_t}, s{s_t}, 8', f's_add_u32 s{s_t}, s{s_t}, {WS_ST}']
            S += [sw32(q, q+2), sw32(q+1, q+3), pk('add', q, q, q+2), sw16(q, q+1), f'v_add_f32 v{q}, v{q}, v{q+1}',
                  f'buffer_store_dword v{q}, v{l4}, {srd(sWS)}, s{s_t} offen ' + (self.st if layer_add else 'sc1')]
            return S
        a('s_waitcnt vmcnt(0)')
        a.extend(stats(0))
        a.label('L_layer')
        self.w_frag_addr(awq, s_wh, 16384, t0, t1, t2)
        for r in range(0, 96, 2): a(f'v_mov_b64 {vr(ACC+r,2)}, 0')
        a(f's_mov_b32 s{s_rslot}, 0'); a(f's_mov_b32 s{s_i}, 0')
        a('s_waitcnt vmcnt(0)')
        a('s_barrier')
        self.stamp(1)
        def acc(b, n): return ACC + 4*(6*b + n)
        def reads(s, st):
            X = [f'ds_read_b128 {vr(FX[st]+4*b,4)}, v{ax+s} offset:{2048*b}' for b in range(4)]
            W = [[f'ds_read_b64_tr_b16 {vr(FW[st]+4*n+2*t,2)}, v{awq+(n&1)} offset:{(n>>1)*8192+(32*s+4*t)*128}' for t in range(2)] for n in range(6)]
            L = [X[0]] + W[0] + X[1:]
            for n in range(1, 6): L += W[n]
            return L
        def mfmas(st):
            L = []
            for n in range(6):
                for b in range(4):
                    if n < 4: L.append(mf16(acc(b, n), FW[st]+4*n, FX[st]+4*b, acc(b, n)))
                    else: L.append(mf16(acc(b, n), FX[st]+4*b, FW[st]+4*n, acc(b, n)))
            return L
        a.extend(reads(0, 0))
        a('.p2align 6')
        a.label('L_q')
        for s in range(2):
            M = mfmas(s); R = reads(1 - s, 1 - s)
            gaps = [[] for _ in range(24)]
            first = 0
            if s == 1:
                gaps[0] += [f'v_add_u32 v{r}, s{s_delta}, v{r}' for r in (ax, awq)]
                gaps[1] += [f'v_add_u32 v{r}, s{s_delta}, v{r}' for r in (awq+1,)] + ['s_barrier']
                gaps[20] += [f'v_add_u32 v{ax+1}, s{s_delta}, v{ax+1}']
                gaps[22] += [f's_add_u32 s{s_i}, s{s_i}, 1']
                gaps[23] += [f's_cmp_lt_u32 s{s_i}, 16']
                first = 1
            else:
                gaps[18] += [f's_add_u32 s{s_rslot}, s{s_rslot}, 1', f's_cmp_eq_u32 s{s_rslot}, 3']
                gaps[19] += [f's_cselect_b32 s{s_delta}, {-2*STG}, s{s_stg}', f's_cselect_b32 s{s_rslot}, 0, s{s_rslot}']
            for k, r in enumerate(R): gaps[first + k].append(r)
            a('s_waitcnt lgkmcnt(0)')
            for k in range(24):
                a(M[k]); a.extend(gaps[k])
        a('s_cbranch_scc1 L_q')
        a('s_waitcnt lgkmcnt(0)')
        self.stamp(2)
        a(f's_lshl_b32 s{s_a}, s{s_l}, 22'); a(f's_lshl_b32 s{s_t}, s{s_m}, 18'); a(f's_add_u32 s{s_a}, s{s_a}, s{s_t}')
        a(f's_add_u32 s{s_a}, s{s_a}, {WS_OI}')
        a(f's_lshl_b32 s{s_t}, s{s_wave}, 16'); a(f's_add_u32 s{s_ob}, s{s_a}, s{s_t}'); a(f's_add_u32 s{s_ob+1}, s{s_ob}, 32768')
        a(f's_lshl_b32 s{s_t}, s{s_wm}, 17'); a(f's_add_u32 s{s_a}, s{s_a}, s{s_t}')
        a(f's_lshl_b32 s{s_t}, s{s_g}, 1'); a(f's_add_u32 s{s_t}, s{s_t}, s{s_wh}'); a(f's_lshl_b32 s{s_t}, s{s_t}, 10'); a(f's_add_u32 s{s_a}, s{s_a}, s{s_t}')
        a(f's_bitcmp1_b32 s{s_l}, 0'); a('s_cbranch_scc1 L_epiB')
        env = dict(locals())
        self.epiA(env)
        a('s_branch L_ophase')
        a.label('L_epiB')
        self.epiB(env)
        a.label('L_ophase')
        OA, RING, OW = 32, 64, [192, 208]
        awo = 224
        self.get_mode(228)
        self.rctr(s_t + 5, 0)
        self.w_frag_addr(awo, None, L_WO, 228, 229, 230, nb_list=(0, 1, 2, 3))
        def oacc(tb, nb): return OA + 16*tb + 4*nb
        for q in range(4):
            a(sw16(XR+4*q, XR+4*q+2)); a(sw16(XR+4*q+1, XR+4*q+3))
        for r in range(16):
            a(f'v_lshlrev_b32 v{OA+2*r}, 16, v{XR+r}'); a(f'v_and_b32 v{OA+2*r+1}, 0xffff0000, v{XR+r}')
        a('s_waitcnt vmcnt(0)')
        self.stamp(8)
        a('s_barrier')
        def oreads(h):
            return [f'ds_read_b64_tr_b16 {vr(OW[h&1]+4*nb+2*t,2)}, v{awo+nb} offset:{(h&15)*4096+512*t}' for nb in range(4) for t in range(2)]
        self.row_poll(f's{s_t+5}', 229, 228, 4)
        self.stamp(9)
        PD = self.pd
        def oload(h):
            L = [f'buffer_load_dwordx4 {vr(RING+8*(h%PD)+4*tb,4)}, v{l16}, {srd(sWS)}, s{s_ob+tb} offen offset:{1024*(h&3)} sc1' for tb in range(2)]
            if h & 3 == 3: L += [f's_add_u32 s{s_ob}, s{s_ob}, 4096', f's_add_u32 s{s_ob+1}, s{s_ob+1}, 4096']
            return L
        S = []
        for h in range(PD): S += oload(h)
        S += oreads(0)
        for h in range(32):
            R = oreads(h+1) if h < 31 else []
            if h == 15: S += [f'v_add_u32 v{awo+nb}, 0x10000, v{awo+nb}' for nb in range(4)]
            k = 0
            for nb in range(4):
                for tb in range(2):
                    S.append(mf16(oacc(tb, nb), OW[h&1]+4*nb, RING+8*(h%PD)+4*tb, oacc(tb, nb)))
                    if R: S.append(R[k])
                    k += 1
            if h + PD < 32: S += oload(h+PD)
            if h == self.bm: S.append('s_barrier')
        self.aw(S)
        self.stamp(10)
        a(f's_cmp_eq_u32 s{s_l}, 3'); a('s_cbranch_scc1 L_olast')
        a(f's_lshl_b32 s{s_o}, s{s_l}, 22'); a(f's_lshl_b32 s{s_t}, s{s_m}, 18'); a(f's_add_u32 s{s_o}, s{s_o}, s{s_t}')
        a(f's_lshl_b32 s{s_t}, s{s_g}, 14'); a(f's_add_u32 s{s_o}, s{s_o}, s{s_t}')
        a(f's_lshl_b32 s{s_t}, s{s_wave}, 12'); a(f's_add_u32 s{s_o}, s{s_o}, s{s_t}'); a(f's_add_u32 s{s_o}, s{s_o}, {WS_XI}')
        for k in range(1, 4): a(f's_add_u32 s{s_o+k}, s{s_o}, {1024*k}')
        a(f'v_mov_b32 v{vst}, v{voffI}')
        a('s_branch L_ostore')
        a.label('L_olast')
        a(f's_mov_b64 s[{sOUT}:{sOUT+1}], s[{pOUT}:{pOUT+1}]'); a(f's_mov_b32 s{sOUT+2}, {2048*1024*2}')
        a(f's_lshl_b32 s{s_o}, s{s_m}, 18'); a(f's_lshl_b32 s{s_t}, s{s_wave}, 16'); a(f's_add_u32 s{s_o}, s{s_o}, s{s_t}')
        a(f's_lshl_b32 s{s_t}, s{s_g}, 7'); a(f's_add_u32 s{s_o}, s{s_o}, s{s_t}')
        a(f's_add_u32 s{s_o+1}, s{s_o}, 64'); a(f's_add_u32 s{s_o+2}, s{s_o}, 32768'); a(f's_add_u32 s{s_o+3}, s{s_o}, {32768+64}')
        a(f'v_mov_b32 v{vst}, v{voffR}')
        a.label('L_ostore')
        for q in range(4):
            for k in range(4): a(cvt(XR+4*q+k, OA+8*q+2*k, OA+8*q+2*k+1))
            a(sw16(XR+4*q, XR+4*q+2)); a(sw16(XR+4*q+1, XR+4*q+3))
            a(f'buffer_store_dwordx4 {vr(XR+4*q,4)}, v{vst}, {srd(sOUT)}, s{s_o+q} offen {self.st}')
        a(f's_cmp_eq_u32 s{s_l}, 3'); a('s_cbranch_scc1 L_fin')
        a.extend(stats(1))
        a(f's_lshl_b32 s{s_t}, s{s_wm}, 13')
        for s in range(2):
            a(f'v_add_u32 v{ax+s}, s{s_t}, v{l16}')
            if s: a(f'v_add_u32 v{ax+s}, 1024, v{ax+s}')
        a('s_waitcnt vmcnt(0)')
        self.stamp(11)
        a('s_barrier')
        a(f's_add_u32 s{s_l}, s{s_l}, 1')
        a('s_branch L_layer')

    def epiA(self, E):
        a = self.a
        acc = E['acc']; a_tok, a_row, a_t32, a_csr, a_csv, l16, l4 = (E[k] for k in ('a_tok', 'a_row', 'a_t32', 'a_csr', 'a_csv', 'l16', 'l4'))
        s_wm, s_wh, s_a, s_b, s_c = (E[k] for k in ('s_wm', 's_wh', 's_a', 's_b', 's_c'))
        V = Alloc('v', 128, 254)
        nml = V.get(4, 4); csq = V.get(8, 4); csk = V.get(8, 4); wphi = V.get(8, 4); c32 = V.get(2, 2); csv = V.get(2, 2)
        nmr = V.get(16, 4); rsr = V.get(16, 4)
        PK = [V.get(16, 4), V.get(16, 4)]
        tmp = V.get(8, 4)
        a_phi, a_w, a_r0, a_r1 = (V.get() for _ in range(4))
        t0, t1, t2, t3 = tmp, tmp+1, tmp+2, tmp+3
        S = []
        S += [f'v_lshrrev_b32 v{t0}, 5, v1', f'v_bfe_u32 v{t1}, v1, 2, 2', f'v_lshl_add_u32 v{t1}, v{t0}, 3, v{t1}',
              f'v_bfe_u32 v{t2}, v1, 4, 1', f'v_and_b32 v{t3}, 3, v1', f'v_lshlrev_b32 v{t3}, 3, v{t3}', f'v_lshl_add_u32 v{t2}, v{t2}, 5, v{t3}',
              f's_lshl_b32 s{s_t}, s{s_wh}, 11', f's_add_u32 s{s_t}, s{s_t}, {P_PHI}',
              f'v_lshl_add_u32 v{a_phi}, v{t1}, 6, v{t2}', f'v_add_u32 v{a_phi}, s{s_t}, v{a_phi}']
        for b in range(4): S.append(f'ds_read_b32 v{nml+b}, v{a_tok} offset:{64*b}')
        for nb in range(2): S.append(f'ds_read_b128 {vr(csk+4*nb,4)}, v{a_csr} offset:{256+64*nb}')
        for u in range(2):
            for t in range(2): S.append(f'ds_read_b64_tr_b16 {vr(wphi+4*u+2*t,2)}, v{a_phi} offset:{(16*t+4*u)*64}')
        for nb in range(2): S.append(f'ds_read_b32 v{csv+nb}, v{a_csv} offset:{512+64*nb}')
        for Tt in range(2): S.append(f'ds_read_b32 v{c32+Tt}, v{a_t32} offset:{512+128*Tt}')
        S += [f's_mul_i32 s{s_t}, s{s_wave}, {SCR}',
              f'v_mul_u32_u24 v{t1}, 136, v{t1}', f'v_add3_u32 v{t1}, v{t1}, v{t2}, s{s_t}',
              f's_lshl_b32 s{s_t+1}, s{s_wm}, 6', f'v_add_u32 v{a_r0}, s{s_t+1}, v{t1}',
              f's_xor_b32 s{s_t+1}, s{s_t+1}, 64', f'v_add_u32 v{a_r1}, s{s_t+1}, v{t1}',
              f'v_and_b32 v{t1}, 31, v1', f'v_mul_u32_u24 v{t1}, 136, v{t1}', f'v_lshl_add_u32 v{t1}, v{t0}, 3, v{t1}', f'v_add_u32 v{a_w}, s{s_t}, v{t1}']
        def qk_prep(n0, cs):
            L = []
            for b in range(4):
                for k in range(4): L.append(pk('fma', acc(b, n0)+2*k, cs+2*k, ('b', nml+b), acc(b, n0)+2*k))
                for k in range(4): L.append(cvt(acc(b, n0)+k, acc(b, n0)+2*k, acc(b, n0)+2*k+1))
            for Tt in range(2):
                for k in range(4): L.append(sw16(acc(2*Tt, n0)+k, acc(2*Tt+1, n0)+k))
                L += [mf32(PK[Tt], wphi, acc(2*Tt, n0)), mf32(PK[Tt], wphi+4, acc(2*Tt+1, n0), PK[Tt])]
            return L
        S += qk_prep(2, csk)
        for b in range(4):
            S.append(f'ds_read_b128 {vr(nmr+4*b,4)}, v{a_row} offset:{64*b}')
            S.append(f'ds_read_b128 {vr(rsr+4*b,4)}, v{a_row} offset:{512+64*b}')
        for nb in range(2): S.append(f'ds_read_b128 {vr(csq+4*nb,4)}, v{a_csr} offset:{64*nb}')
        for Tt in range(2): S.append(f'v_mul_f32 v{c32+Tt}, {f2u(LOG2E)}, v{c32+Tt}')
        for b in range(4):
            r = acc(b, 4)
            for nb in range(2):
                for p in range(2): S.append(pk('fma', r+4*nb+2*p, nmr+4*b+2*p, ('b', csv+nb), r+4*nb+2*p))
            for nb in range(2):
                for p in range(2): S.append(pk('mul', r+4*nb+2*p, r+4*nb+2*p, rsr+4*b+2*p))
            for k in range(4): S.append(cvt(r+k, r+2*k, r+2*k+1))
            S += [sw16(r, r+2), sw16(r+1, r+3)]
        V.put(nmr, 16); V.put(rsr, 16); V.put(csk, 8)
        EP = V.get(16, 4)
        def softmax(x, c, dp, dm):
            mx, mn, tt, bp, bm = tmp, tmp+1, tmp+2, tmp+4, tmp+5
            L = [f'v_max3_f32 v{mx}, v{x}, v{x+1}, v{x+2}', f'v_max3_f32 v{mn}, -v{x}, -v{x+1}, -v{x+2}']
            for k in range(3, 15, 2):
                L += [f'v_max3_f32 v{mx}, v{mx}, v{x+k}, v{x+k+1}', f'v_max3_f32 v{mn}, v{mn}, -v{x+k}, -v{x+k+1}']
            L += [f'v_max_f32 v{mx}, v{mx}, v{x+15}', f'v_max_f32 v{mn}, v{mn}, -v{x+15}']
            L += [sw32(mx, mn), f'v_max_f32 v{mx}, v{mx}, v{mn}', f'v_mul_f32 v{bm}, -v{mx}, v{c}', f'v_mov_b32 v{bp}, v{bm}', sw32(bp, bm)]
            for k in range(0, 16, 2): L.append(pk('fma', EP+k, x+k, ('b', c), ('b', bp)))
            for k in range(0, 16, 2): L.append(pk('fma', x+k, x+k, ('b', c), ('b', bm), neg=[1, 0, 0]))
            for k in range(16): L.append(f'v_exp_f32 v{EP+k}, v{EP+k}')
            for k in range(16): L.append(f'v_exp_f32 v{x+k}, v{x+k}')
            sp, sm = tmp, tmp+2
            L += [pk('add', sp, EP, EP+2), pk('add', sm, x, x+2)]
            for k in range(4, 16, 2): L += [pk('add', sp, sp, EP+k), pk('add', sm, sm, x+k)]
            L += [f'v_add_f32 v{sp}, v{sp}, v{sp+1}', f'v_add_f32 v{sm}, v{sm}, v{sm+1}', sw32(sp, sm), f'v_add_f32 v{sp}, v{sp}, v{sm}',
                  f'v_rcp_f32 v{bm}, v{sp}', f'v_mov_b32 v{bp}, v{bm}', sw32(bp, bm)]
            for k in range(0, 16, 2): L.append(pk('mul', EP+k, EP+k, ('b', bp)))
            for k in range(0, 16, 2): L.append(pk('mul', x+k, x+k, ('b', bm)))
            for k in range(8): L.append(cvt(dm[k], x+2*k, x+2*k+1))
            for k in range(8): L.append(cvt(dp[k], EP+2*k, EP+2*k+1))
            return L
        FR = [[acc(0, 2), acc(0, 3)], [acc(1, 2), acc(1, 3)]]
        SEL = [acc(2, 3), acc(3, 3)]
        KV0 = V.get(16, 4)
        ZA = None
        S += [f'v_and_b32 v{t3}, 3, v1', f'v_mov_b32 v{tmp+6}, 0x3f803f80']
        for k in range(2):
            S.append(f'v_cmp_eq_u32 vcc, {k}, v{t3}')
            for i in range(4): S.append(f'v_cndmask_b32 v{SEL[k]+i}, 0, v{tmp+6}, vcc')
        x = PK[0]
        S += softmax(x, c32, [x+8+k for k in range(8)], [x+k for k in range(8)])
        def to_lds(x):
            return [f'ds_write_b64 v{a_w}, {vr(x+8*(1-sg)+2*j,2)} offset:{64*sg+16*j}' for sg in range(2) for j in range(4)]
        def frags():
            return [f'ds_read_b64_tr_b16 {vr(FR[k][u]+2*tt,2)}, v{(a_r0, a_r1)[k]} offset:{(16*u+4*tt)*136}' for u in range(2) for k in range(2) for tt in range(2)]
        S += to_lds(x) + frags()
        KV1 = PK[0]
        V.put(a_phi)
        ZA = 238
        assert V.hi <= ZA, V.hi
        def kvm(Tt):
            L = []
            for u in range(2):
                first = Tt == 0 and u == 0
                vb = acc(2*Tt+u, 4)
                L += [mf32(KV0, FR[0][u], vb, None if first else KV0), mf32(KV1, FR[1][u], vb, None if first else KV1),
                      mf32(ZA, SEL[0], FR[0][u], None if first else ZA), mf32(ZA, SEL[1], FR[1][u], ZA)]
            return L
        S += ['s_waitcnt lgkmcnt(0)']
        S += kvm(0)
        x = PK[1]
        S += softmax(x, c32+1, [x+8+k for k in range(8)], [x+k for k in range(8)])
        S += to_lds(x) + frags() + kvm(1)
        S += [f's_mul_i32 s{s_t}, s{s_wave}, {SCR}', f'v_add_u32 v{t0}, s{s_t}, v{l16}', f'v_add_u32 v{t1}, s{s_t}, v{l4}',
              f's_xor_b32 s{s_t}, s{s_wave}, 2', f's_mul_i32 s{s_t}, s{s_t}, {SCR}', f'v_add_u32 v{t2}, s{s_t}, v{l16}', f'v_add_u32 v{t3}, s{s_t}, v{l4}']
        for q in range(4): S.append(f'ds_write_b128 v{t0}, {vr(KV1+4*q,4)} offset:{1024*q}')
        S.append(f'ds_write_b32 v{t1}, v{ZA+1} offset:4096')
        S += ['s_waitcnt lgkmcnt(0)', 's_barrier']
        for q in range(4): S.append(f'ds_read_b128 {vr(EP+4*q,4)}, v{t2} offset:{1024*q}')
        S.append(f'ds_read_b32 v{ZA+1}, v{t3} offset:4096')
        S += [f's_lshl_b32 s{s_c}, s{s_l}, 3', f's_add_u32 s{s_c}, s{s_c}, s{s_g}', f's_lshl_b32 s{s_c}, s{s_c}, 1', f's_add_u32 s{s_c}, s{s_c}, s{s_wh}',
              f's_lshl_b32 s{s_t}, s{s_c}, 1', f's_add_u32 s{s_t}, s{s_t}, s{s_wm}', f's_lshl_b32 s{s_t}, s{s_t}, 4', f's_add_u32 s{s_t}, s{s_t}, s{s_m}',
              f's_lshl_b32 s{s_t+1}, s{s_t}, 12', f's_add_u32 s{s_t+1}, s{s_t+1}, {WS_KVP}', f's_lshl_b32 s{s_t}, s{s_t}, 7', f's_add_u32 s{s_t}, s{s_t}, {WS_ZP}']
        for q in range(4):
            S += [pk('add', KV0+4*q, KV0+4*q, EP+4*q), pk('add', KV0+4*q+2, KV0+4*q+2, EP+4*q+2),
                  f'buffer_store_dwordx4 {vr(KV0+4*q,4)}, v{l16}, {srd(sWS)}, s{s_t+1} offen offset:{1024*q} sc1']
        S += [f'v_add_f32 v{ZA}, v{ZA}, v{ZA+1}', 's_mov_b32 exec_hi, 0',
              f'buffer_store_dword v{ZA}, v{l4}, {srd(sWS)}, s{s_t} offen sc1', 's_mov_b32 exec_hi, -1']
        self.aw(S); self.stamp(3); S = []
        S += qk_prep(0, csq)
        x = PK[0]
        S += softmax(x, c32, [x+8+k for k in range(8)], [x+k for k in range(8)])
        S += ['s_waitcnt vmcnt(0)', 's_barrier']
        x = PK[1]
        S += softmax(x, c32+1, [x+8+k for k in range(8)], [x+k for k in range(8)])
        S += [f'v_lshrrev_b32 v{t0}, 3, v1', f'v_lshlrev_b32 v{t0}, 8, v{t0}', f'v_and_b32 v{t1}, 7, v1', f'v_lshl_add_u32 v{t0}, v{t1}, 4, v{t0}',
              f'v_lshrrev_b32 v{t1}, 5, v1', f'v_lshlrev_b32 v{t1}, 9, v{t1}', f'v_and_b32 v{t2}, 1, v1', f'v_lshl_add_u32 v{t1}, v{t2}, 12, v{t1}',
              f's_lshl_b32 s{s_c}, s{s_c}, 13', f's_add_u32 s{s_c}, s{s_c}, {WS_KVF}', f's_add_u32 s{s_b}, s{s_c}, 4096']
        S += [f'v_bfe_u32 v{t2}, v1, 4, 1', f'v_lshlrev_b32 v{t2}, 15, v{t2}', f'v_lshrrev_b32 v{t3}, 5, v1', f'v_lshl_add_u32 v{t2}, v{t3}, 8, v{t2}',
              f'v_and_b32 v{t3}, 15, v1', f'v_lshl_add_u32 v{t2}, v{t3}, 4, v{t2}']
        self.aw(S); S = []
        self.stamp(4)
        a('s_barrier')
        self.cctr(s_t + 5, 1)
        self.poll(sWS, f's{s_t+5}', 16, t3, 5)
        self.stamp(5)
        KF = KV0; ZF = EP
        for sg in range(2):
            for u in range(2): S.append(f'buffer_load_dwordx4 {vr(KF+8*sg+4*u,4)}, v{t0}, {srd(sWS)}, s{(s_c, s_b)[sg]} offen offset:{2048*u} sc1')
        for u in range(2):
            for jj in range(2):
                for p in range(2): S.append(f'buffer_load_dword v{ZF+4*u+2*jj+p}, v{t1}, {srd(sWS)}, s{s_c} offen offset:{(8*u+4*jj+p)*256+128} sc1')
        ACC = E['ACC']
        for Tt in range(2):
            N, DP, DM = ACC + 48*Tt, ACC + 48*Tt + 16, ACC + 48*Tt + 32
            x = PK[Tt]
            S += [mf32(N, KF, x+8), mf32(N, KF+4, x+12, N), mf32(N, KF+8, x, N), mf32(N, KF+12, x+4, N),
                  mf32(DP, ZF, x+8), mf32(DP, ZF+4, x+12, DP), mf32(DM, ZF, x), mf32(DM, ZF+4, x+4, DM)]
        for Tt in range(2):
            N, DP, DM = ACC + 48*Tt, ACC + 48*Tt + 16, ACC + 48*Tt + 32
            S += [f'v_add_f32 v{DP}, v{DP}, v{DM+1}', f'v_add_f32 v{DP}, {f2u(1e-6)}, v{DP}', f'v_rcp_f32 v{DP}, v{DP}']
            for k in range(0, 16, 2): S.append(pk('mul', N+k, N+k, ('b', DP)))
            for p in range(2):
                for jj in range(2):
                    j = p + 2*jj
                    for q in range(2): S.append(cvt(DM+4*p+2*jj+q, N+4*j+2*q, N+4*j+2*q+1))
                S.append(f'buffer_store_dwordx4 {vr(DM+4*p,4)}, v{t2}, {srd(sWS)}, s{s_a} offen offset:{512*p} {self.st}')
            if Tt == 0: S.append(f's_add_u32 s{s_a}, s{s_a}, 65536')
        self.aw(S)
        self.stamp(6)

    def epiB(self, E):
        a = self.a
        acc = E['acc']; a_tok, a_row, a_csr, a_csv, l16 = (E[k] for k in ('a_tok', 'a_row', 'a_csr', 'a_csv', 'l16'))
        s_wm, s_wh, s_a, s_b, s_c = (E[k] for k in ('s_wm', 's_wh', 's_a', 's_b', 's_c'))
        V = Alloc('v', 128, 254)
        nml = V.get(4, 4); rsl = V.get(4, 4); csq = V.get(8, 4); csk = V.get(8, 4); csv = V.get(2, 2)
        nmr = V.get(16, 4); rsr = V.get(16, 4)
        VP = [V.get(12, 4), V.get(12, 4)]
        HB = V.get(8, 4)
        BI = V.get(8, 4); BI0 = V.get(4, 4); MK = V.get(4, 4)
        tmp = V.get(4, 4); t0, t1, t2, t3 = tmp, tmp+1, tmp+2, tmp+3
        S = []
        for b in (3, 0, 1, 2):
            S += [f'ds_read_b32 v{nml+b}, v{a_tok} offset:{64*b}', f'ds_read_b32 v{rsl+b}, v{a_tok} offset:{512+64*b}']
            if b == 3:
                for nb in range(2): S.append(f'ds_read_b128 {vr(csk+4*nb,4)}, v{a_csr} offset:{768+256+64*nb}')
                for nb in range(2): S.append(f'ds_read_b32 v{csv+nb}, v{a_csv} offset:{768+512+64*nb}')
            S += [f'ds_read_b128 {vr(nmr+4*b,4)}, v{a_row} offset:{64*b}', f'ds_read_b128 {vr(rsr+4*b,4)}, v{a_row} offset:{512+64*b}']
        for nb in range(2): S.append(f'ds_read_b128 {vr(csq+4*nb,4)}, v{a_csr} offset:{768+64*nb}')
        def kprep(b):
            r = acc(b, 2); L = []
            for k in range(4): L.append(pk('fma', r+2*k, csk+2*k, ('b', nml+b), r+2*k))
            for k in range(4): L.append(pk('mul', r+2*k, r+2*k, ('b', rsl+b)))
            for k in range(4): L.append(cvt(r+k, r+2*k, r+2*k+1))
            return L
        def vprep(b):
            r = acc(b, 4); L = []
            for nb in range(2):
                for p in range(2): L.append(pk('fma', r+4*nb+2*p, nmr+4*b+2*p, ('b', csv+nb), r+4*nb+2*p))
            for nb in range(2):
                for p in range(2): L.append(pk('mul', r+4*nb+2*p, r+4*nb+2*p, rsr+4*b+2*p))
            for nb in range(2):
                for p in range(2): L.append(cvt(VP[nb]+2+2*b+p, r+4*nb+2*p, r+4*nb+2*p+1))
            return L
        def qprep(b):
            r = acc(b, 0); L = []
            for k in range(4): L.append(pk('fma', r+2*k, csq+2*k, ('b', nml+b), r+2*k))
            for k in range(4): L.append(cvt(r+k, r+2*k, r+2*k+1))
            return L
        S += kprep(3) + vprep(3)
        for nb in range(2):
            for p in range(2): S.append(f'v_mov_b32 v{acc(3,3)+2*nb+p}, v{VP[nb]+8+p}')
        S += [f's_lshr_b32 s{s_b}, s{s_l}, 1', f's_lshl_b32 s{s_b}, s{s_b}, 4', f's_add_u32 s{s_b}, s{s_b}, s{s_m}', f's_lshl_b32 s{s_b}, s{s_b}, 4',
              f's_add_u32 s{s_b}, s{s_b}, s{s_g}', f's_lshl_b32 s{s_b}, s{s_b}, 1', f's_add_u32 s{s_b}, s{s_b}, s{s_wh}', f's_lshl_b32 s{s_b}, s{s_b}, 11',
              f's_add_u32 s{s_b}, s{s_b}, {WS_HALO}', f's_add_u32 s{s_c}, s{s_b}, 65536',
              f's_lshl_b32 s{s_t}, s{s_wh}, 11', f'v_add_u32 v{t0}, s{s_t}, v{l16}', 's_waitcnt lgkmcnt(0)']
        self.aw(S); S = []
        L1, L2 = self.lab('hw'), self.lab('hwd')
        a(f's_cmp_eq_u32 s{s_wm}, 0'); a(f's_cbranch_scc1 {L1}')
        a(f's_cmp_eq_u32 s{s_m}, 15'); a(f's_cbranch_scc1 {L2}')
        for k in range(2): a(f'buffer_store_dwordx4 {vr(acc(3,2)+4*k,4)}, v{l16}, {srd(sWS)}, s{s_c} offen offset:{1024*k} sc1')
        a(f's_branch {L2}')
        a.label(L1)
        for k in range(2): a(f'ds_write_b128 v{t0}, {vr(acc(3,2)+4*k,4)} offset:{1024*k}')
        a.label(L2)
        for b in range(3): S += kprep(b) + vprep(b)
        for b in range(4): S += qprep(b)
        S += [f'v_and_b32 v{t1}, 15, v1', f'v_lshrrev_b32 v{t2}, 4, v1', f'v_lshlrev_b32 v{t2}, 2, v{t2}', f'v_sub_u32 v{t1}, v{t1}, v{t2}',
              f'v_mov_b32 v{t3}, {f2u(-1e30)}']
        for blk in range(2):
            for i in range(4):
                S += [f'v_add_u32 v{t2}, {(16 if blk == 0 else 0) - i}, v{t1}', f'v_and_b32 v{t2}, -15, v{t2}', f'v_cmp_eq_u32 vcc, 0, v{t2}',
                      f'v_cndmask_b32 v{BI+4*blk+i}, v{t3}, 0, vcc']
                if i % 2 == 0: S.append(f'v_cndmask_b32 v{MK+2*blk+i//2}, 0, -1, vcc'); S.append(f'v_lshrrev_b32 v{MK+2*blk+i//2}, 16, v{MK+2*blk+i//2}')
                else: S += [f'v_cndmask_b32 v{t2}, 0, -1, vcc', f'v_lshl_or_b32 v{MK+2*blk+i//2}, v{t2}, 16, v{MK+2*blk+i//2}']
        for b in range(4): S.append(f'v_mul_f32 v{rsl+b}, {f2u(LOG2E * 32 ** -0.5)}, v{rsl+b}')
        for i in range(4): S.append(f'v_mov_b32 v{BI0+i}, v{BI+i}')
        S += ['s_waitcnt lgkmcnt(0)', 's_barrier']
        self.aw(S); S = []
        self.stamp(3)
        L1, L2, L3, L4 = self.lab('hg'), self.lab('hz'), self.lab('hd'), self.lab('hp')
        a(f's_cmp_eq_u32 s{s_wm}, 0'); a(f's_cbranch_scc1 {L1}')
        for k in range(2): a(f'ds_read_b128 {vr(HB+4*k,4)}, v{t0} offset:{1024*k}')
        a('s_waitcnt lgkmcnt(0)')
        a(f's_branch {L3}')
        a.label(L1)
        a(f's_cmp_eq_u32 s{s_m}, 0'); a(f's_cbranch_scc1 {L2}')
        a(f's_mov_b32 s{s_cnt}, 0')
        a.label(L4)
        for k in range(2): a(f'buffer_load_dwordx4 {vr(HB+4*k,4)}, v{l16}, {srd(sWS)}, s{s_b} offen offset:{1024*k} sc1')
        a(f's_add_u32 s{s_cnt}, s{s_cnt}, 1')
        a('s_waitcnt vmcnt(0)')
        a(f'v_max3_u32 v{t1}, v{HB}, v{HB+1}, v{HB+2}'); a(f'v_max3_u32 v{t2}, v{HB+3}, v{HB+4}, v{HB+5}')
        a(f'v_max3_u32 v{t1}, v{t1}, v{HB+6}, v{HB+7}'); a(f'v_max_u32 v{t1}, v{t1}, v{t2}')
        a(f'v_cmp_eq_u32 vcc, -1, v{t1}')
        a('s_cmp_eq_u64 vcc, 0'); a(f's_cbranch_scc1 {L3}')
        a(f's_cmp_lt_u32 s{s_cnt}, {self.limit}'); a(f's_cbranch_scc1 {L4}')
        a(f'v_mov_b32 v{t1}, 64'); a(f'buffer_atomic_or v{t1}, off, {srd(sDBG)}, 0 offset:8 sc1')
        a(f's_branch {L3}')
        a.label(L2)
        for k in range(8): a(f'v_mov_b32 v{HB+k}, 0')
        for i in range(4): a(f'v_mov_b32 v{BI0+i}, v{t3}')
        a.label(L3)
        self.stamp(4)
        for nb in range(2):
            for p in range(2): S.append(f'v_mov_b32 v{VP[nb]+p}, v{HB+4+2*nb+p}')
        V.put(nmr, 16); V.put(rsr, 16); V.put(csq, 8); V.put(csk, 8)
        SS = V.get(32, 4); U = V.get(8, 4); M = V.get(4, 4); M2 = V.get(4, 4)
        for b in (1, 2, 3, 0):
            S += [mf16(SS+8*b, HB if b == 0 else acc(b-1, 2), acc(b, 0), BI0 if b == 0 else BI), mf16(SS+8*b+4, acc(b, 2), acc(b, 0), BI+4)]
        for b in (1, 2, 3, 0):
            s = SS + 8*b
            for p in range(2):
                S += [f'v_max3_f32 v{U+2*b+p}, v{s+2*p}, v{s+2*p+1}, v{s+4+2*p}', f'v_max_f32 v{U+2*b+p}, v{U+2*b+p}, v{s+5+2*p}']
            S.append(pk('mul', U+2*b, U+2*b, ('b', rsl+b)))
            S.append(f'v_max_f32 v{M+b}, v{U+2*b}, v{U+2*b+1}')
        def allred(op, mid):
            L = [sw32(M, M+2), sw32(M+1, M+3), f'{op} v{M}, v{M}, v{M+2}', f'{op} v{M+1}, v{M+1}, v{M+3}', sw16(M, M+1), f'{op} v{M+1}, v{M}, v{M+1}']
            L += mid
            L += [f'v_mov_b32 v{M}, v{M+1}', sw16(M, M+1), f'v_mov_b32 v{M+2}, v{M}', f'v_mov_b32 v{M+3}, v{M+1}', sw32(M, M+2), sw32(M+1, M+3)]
            return L
        S += allred('v_max_f32', [])
        for b in range(4): S.append(pk('add', U+2*b, U+2*b, ('b', M+b), neg=[0, 1]))
        for k in range(8): S.append(f'v_exp_f32 v{U+k}, v{U+k}')
        for b in range(4): S.append(f'v_add_f32 v{M+b}, v{U+2*b}, v{U+2*b+1}')
        S += allred('v_add_f32', [f'v_rcp_f32 v{M+1}, v{M+1}'])
        for b in range(4):
            P = SS + 8*b; O = acc(b, 4)
            S.append(pk('mul', U+2*b, U+2*b, ('b', M+b)))
            for p in range(2): S.append(cvt(U+2*b+p, U+2*b+p, U+2*b+p))
            for blk in range(2):
                for p in range(2): S.append(f'v_and_b32 v{P+2*blk+p}, v{U+2*b+p}, v{MK+2*blk+p}')
            for db in range(2): S.append(mf16(O+4*db, VP[db]+2*b, P))
        for b in range(4):
            O = acc(b, 4)
            for k in range(4): S.append(cvt(O+k, O+2*k, O+2*k+1))
            S.append(f'buffer_store_dwordx4 {vr(O,4)}, v{l16}, {srd(sWS)}, s{s_a} offen {self.st}')
            if b < 3: S.append(f's_add_u32 s{s_a}, s{s_a}, 32768')
        self.aw(S)
        self.stamp(6)

    def build(self):
        a = self.a
        self.prologue()
        self.compute()
        self.loader()
        self.helper()
        a.label('L_fin')
        self.stamp(15)
        self.stamp_out(1)
        a('s_waitcnt vmcnt(0)')
        a.label('L_end')
        a('s_endpgm')
        a.pad()
        assert a.maxreg('v') <= 255 and a.maxreg('s') < 96
        return a.text()


def generate(listform=False, **kw):
    body = Gen(**kw).build()
    ref = open('interleave_layers__linear_kernel_hedgehog__sliding_local_dilated__prompt.s.ref').read() if not listform else ''
    head = ''.join(l + '\n' for l in ref.split('\n') if l.startswith(';') and '@launch' not in l)
    if listform: head += f'; @launch kernel={KNAME} grid=(256,1,1) block=(512,1,1) lds={LDS_BYTES}\n'
    else: head += f'; @launch grid=(256,1,1) block=(512,1,1) lds={LDS_BYTES}\n'
    return head + '.amdgcn_target "amdgcn-amd-amdhsa--gfx950"\n' + kernel_head(KNAME) + body + kernel_desc(KNAME, 256, 96, 256)

if __name__ == '__main__':
    kw = eval(sys.argv[2]) if len(sys.argv) > 2 else {}
    open(sys.argv[1], 'w').write(generate(**kw))
```

```python
import re

REG_RE = re.compile(r'(?<![\w.])([vas])(?:(\d+)|\[(\d+):(\d+)\])(?![\w])')

def regs_of(tok):
    out = set()
    for m in REG_RE.finditer(tok):
        k = m.group(1)
        if m.group(2) is not None:
            out.add((k, int(m.group(2))))
        else:
            for i in range(int(m.group(3)), int(m.group(4)) + 1):
                out.add((k, i))
    t = tok.strip().lstrip('-')
    if t in ('vcc', 'vcc_lo', 'vcc_hi'): out.add(('x', 'vcc'))
    if t in ('exec', 'exec_lo', 'exec_hi'): out.add(('x', 'exec'))
    if t == 'm0': out.add(('x', 'm0'))
    return out

def split_ops(s):
    ops, depth, cur = [], 0, ''
    for ch in s:
        if ch in '[(': depth += 1
        if ch in '])': depth -= 1
        if ch == ',' and depth == 0:
            ops.append(cur.strip()); cur = ''
        else:
            cur += ch
    if cur.strip(): ops.append(cur.strip())
    return ops

TRANS = ('v_exp_', 'v_log_', 'v_rcp_', 'v_rsq_', 'v_sqrt_', 'v_sin_', 'v_cos_')

class Ins:
    def __init__(self, text):
        self.text = text
        t = text.split(';')[0].strip()
        self.is_label = t.endswith(':')
        self.is_dir = t.startswith('.') and not self.is_label
        self.mn = ''
        self.rd, self.wr = set(), set()
        self.kind = 'none'
        if not t or self.is_label or self.is_dir:
            return
        p = t.split(None, 1)
        mn = self.mn = p[0]
        rest = p[1] if len(p) > 1 else ''
        ops = split_ops(rest)
        mods = ''
        if ops:
            last = ops[-1]
            m = re.match(r'^(\S+)\s+(.*)$', last)
            if m and not last.startswith('abs(') :
                ops[-1] = m.group(1); mods = m.group(2)
        self.mods = mods
        self.ops = ops
        R = [regs_of(o) for o in ops]
        def U(idx):
            s = set()
            for i in idx:
                if i < len(R): s |= R[i]
            return s
        n = len(ops)
        self.passes = 0
        if mn.startswith('v_mfma'):
            self.kind = 'mfma'
            self.wr = R[0]; self.A = R[1]; self.B = R[2]; self.C = R[3]
            self.rd = self.A | self.B | self.C
            self.passes = 8 if '32x32' in mn else 4
            assert mn in ('v_mfma_f32_32x32x16_bf16', 'v_mfma_f32_16x16x32_bf16'), mn
        elif mn.startswith('v_'):
            self.kind = 'valu'
            self.trans = mn.startswith(TRANS)
            self.dpp = ('_dpp' in mn) or ('quad_perm' in mods) or ('row_' in mods)
            self.perm = mn.startswith('v_permlane')
            if mn.startswith('v_cmp'):
                assert not mn.startswith('v_cmpx')
                self.wr = R[0]; self.rd = U(range(1, n))
            elif mn.startswith('v_permlane') and 'swap' in mn:
                self.wr = R[0] | R[1]; self.rd = R[0] | R[1]
            elif mn.startswith(('v_add_co', 'v_sub_co', 'v_addc_co', 'v_subb_co')):
                self.wr = R[0] | R[1]; self.rd = U(range(2, n))
            elif mn == 'v_nop':
                pass
            else:
                self.wr = R[0]; self.rd = U(range(1, n))
                if mn.startswith(('v_fmac', 'v_pk_fmac', 'v_dot2c', 'v_writelane')) or self.dpp or 'sdwa' in mn:
                    self.rd |= R[0]
        elif mn.startswith('ds_'):
            self.kind = 'ds'
            if mn.startswith(('ds_read', 'ds_bpermute', 'ds_permute', 'ds_swizzle')):
                self.wr = R[0]; self.rd = U(range(1, n))
            elif '_rtn' in mn:
                self.wr = R[0]; self.rd = U(range(1, n))
            else:
                self.rd = U(range(n))
        elif mn.startswith(('buffer_', 'global_')):
            self.kind = 'vmem'
            self.lds = bool(re.search(r'\blds\b', mods)) or '_lds_' in mn
            self.wide_data = set()
            if mn.startswith(('buffer_wbl2', 'buffer_inv')):
                pass
            elif self.lds:
                self.rd = U(range(n)) | {('x', 'm0')}
            elif '_load' in mn:
                self.wr = R[0]; self.rd = U(range(1, n))
            elif '_atomic' in mn:
                self.rd = U(range(n))
                if re.search(r'\bsc0\b', mods):
                    self.wr = R[0]
            else:
                self.rd = U(range(n))
                if mn.endswith(('x3', 'x4')):
                    self.wide_data = R[0] if mn.startswith('buffer_') else R[1]
        elif mn.startswith('s_'):
            self.kind = 'salu'
            if mn.startswith(('s_load', 's_memtime', 's_memrealtime', 's_buffer_load')):
                self.kind = 'smem'
                self.wr = R[0]; self.rd = U(range(1, n))
            elif mn.startswith(('s_cmp', 's_bitcmp', 's_waitcnt', 's_barrier', 's_nop', 's_branch', 's_cbranch', 's_endpgm', 's_setprio', 's_sleep', 's_setpc')):
                self.rd = U(range(n))
            elif 'saveexec' in mn:
                self.wr = R[0] | {('x', 'exec')}; self.rd = U(range(1, n)) | {('x', 'exec')}
            else:
                self.wr = R[0] if R else set(); self.rd = U(range(1, n))
                if mn.startswith(('s_addk', 's_mulk', 's_cmov')): self.rd |= R[0]
        else:
            raise ValueError('unknown instruction ' + t)

    def states(self):
        if self.kind == 'none': return 0
        if self.mn == 's_nop': return int(self.ops[0], 0) + 1
        return 1

def isv(s): return {r for r in s if r[0] in 'va'}
def iss(s): return {r for r in s if r[0] == 's' or r == ('x', 'vcc')}

def need(p, c):
    w = 0
    if p.kind == 'valu':
        pv = isv(p.wr); ps = iss(p.wr)
        if c.kind == 'mfma' and pv & c.rd: w = max(w, 2)
        if c.kind == 'valu':
            if (c.dpp or c.perm) and pv & c.rd: w = max(w, 2)
            if c.mn.startswith(('v_readlane', 'v_readfirstlane')) and pv & c.rd: w = max(w, 1)
            if p.trans and pv & c.rd: w = max(w, 1)
            if ('op_sel' in p.mods and not p.mn.startswith('v_pk_') or 'sdwa' in p.mn) and pv & (c.rd | c.wr): w = max(w, 1)
            if ps & c.rd:
                w = max(w, 4 if c.mn.startswith(('v_readlane', 'v_writelane', 'v_div_fmas')) else 2)
            if p.mn.startswith('v_dot') and pv & (c.rd | c.wr):
                w = max(w, 3 if not (c.mn == p.mn and not (pv & (regs_of(c.ops[1]) | regs_of(c.ops[2])))) else 0)
        if p.mn.startswith('v_dot') and c.kind in ('vmem', 'ds', 'mfma') and pv & c.rd: w = max(w, 3)
        if c.kind == 'vmem' and ps & c.rd: w = max(w, 5)
        if c.kind in ('salu', 'smem') and ps & c.rd: w = max(w, 1)
    if p.kind == 'mfma':
        n = p.passes
        if c.kind == 'mfma':
            if p.wr & (c.A | c.B): w = max(w, n + 4)
            if p.wr & c.C:
                if not (p.wr == c.C and c.passes == n): w = max(w, n + 2)
            elif p.wr & c.wr: w = max(w, n + 2)
        elif c.kind in ('valu', 'vmem', 'ds'):
            if p.wr & (c.rd | c.wr): w = max(w, n + 4)
            if c.kind == 'valu' and p.C & c.wr: w = max(w, n - 1)
            if c.kind != 'valu' and p.C & c.wr: w = max(w, n - 1)
    if p.kind == 'vmem' and getattr(p, 'wide_data', None):
        if p.wide_data & c.wr: w = max(w, 2)
    if p.kind == 'salu' and ('x', 'm0') in p.wr and c.kind == 'vmem' and c.lds: w = max(w, 1)
    return w

MAXW = 12

class Asm:
    def __init__(self):
        self.ins = []
    def __call__(self, text):
        for l in text.split('\n'):
            l = l.strip()
            if l: self.ins.append(Ins(l))
    def extend(self, lst):
        for l in lst: self(l)
    def label(self, name): self(name + ':')

    def pad(self):
        changed = True
        rounds = 0
        while changed:
            changed = False; rounds += 1
            assert rounds < 50
            ins = self.ins
            labels = {i.text.split(';')[0].strip()[:-1]: k for k, i in enumerate(ins) if i.is_label}
            bpred = {}
            for k, i in enumerate(ins):
                if i.mn.startswith(('s_branch', 's_cbranch')):
                    bpred.setdefault(labels[i.ops[0]], []).append(k)
            out = []
            def back(k, dist, c, seen):
                miss = 0
                j = k - 1
                while j >= 0 and dist < MAXW:
                    p = ins[j]
                    if p.is_label:
                        for b in bpred.get(j, []):
                            if (b, dist) not in seen:
                                seen.add((b, dist))
                                miss = max(miss, back(b + 1, dist, c, seen))
                    if p.kind != 'none':
                        if p.mn in ('s_branch', 's_endpgm', 's_setpc_b64') and j != k - 1:
                            break
                        if p.mn in ('s_branch', 's_endpgm', 's_setpc_b64') and j == k - 1 and not seen:
                            break
                        miss = max(miss, need(p, c) - dist)
                        dist += p.states()
                    j -= 1
                return miss
            for k, c in enumerate(ins):
                if c.kind != 'none':
                    m = back(k, 0, c, set())
                    if m > 0 and not changed:
                        out.append(Ins('s_nop %d' % (m - 1)))
                        changed = True
                        ins_rest = ins[k:]
                        self.ins = out + ins_rest
                        break
                out.append(c)
            if changed:
                self._greedy(len(out))
        return self

    def _greedy(self, start):
        ins = self.ins
        out = ins[:start]
        for c in ins[start:]:
            if c.kind != 'none':
                dist = 0; miss = 0; j = len(out) - 1
                while j >= 0 and dist < MAXW:
                    p = out[j]
                    if p.kind != 'none':
                        if p.mn in ('s_branch', 's_endpgm', 's_setpc_b64'): break
                        miss = max(miss, need(p, c) - dist)
                        dist += p.states()
                    j -= 1
                if miss > 0: out.append(Ins('s_nop %d' % (miss - 1)))
            out.append(c)
        self.ins = out

    def text(self):
        o = []
        for i in self.ins:
            o.append(i.text if (i.is_label or i.is_dir) else '    ' + i.text)
        return '\n'.join(o) + '\n'

    def maxreg(self, kind):
        m = -1
        for i in self.ins:
            for r in i.rd | i.wr:
                if r[0] == kind: m = max(m, r[1])
        return m


def autowait(lines, vm0=0, lgkm0=0):
    out = []
    vm, lg = [], []
    for l in lines:
        for t in l.split('\n'):
            t = t.strip()
            if not t: continue
            i = Ins(t)
            assert not i.is_label and not i.mn.startswith(('s_branch', 's_cbranch')), 'autowait: straight-line only: ' + t
            if i.mn == 's_waitcnt':
                m = re.search(r'vmcnt\((\d+)\)', t)
                if m: vm = vm[max(0, len(vm) - int(m.group(1))):] if int(m.group(1)) else []
                m = re.search(r'lgkmcnt\((\d+)\)', t)
                if m: lg = lg[max(0, len(lg) - int(m.group(1))):] if int(m.group(1)) else []
                out.append(t); continue
            touch = i.rd | i.wr
            w = []
            for name, q, mx in (('vmcnt', vm, 62), ('lgkmcnt', lg, 14)):
                last = -1
                for k, d in enumerate(q):
                    if d & touch: last = k
                if last >= 0:
                    n = min(len(q) - 1 - last, mx)
                    w.append('%s(%d)' % (name, n))
                    del q[:len(q) - n]
            if w: out.append('s_waitcnt ' + ' '.join(w))
            out.append(t)
            if i.kind == 'vmem' and not i.mn.startswith(('buffer_wbl2', 'buffer_inv')): vm.append(set(i.wr))
            elif i.kind == 'ds': lg.append(set(i.wr))
            elif i.kind == 'smem': raise ValueError('autowait: no smem')
    return out


class Alloc:
    def __init__(self, kind, start, limit):
        self.kind, self.free = kind, list(range(start, limit))
        self.hi = start
    def get(self, n=1, align=1):
        fs = set(self.free)
        for b in self.free:
            if b % align == 0 and all((b + i) in fs for i in range(n)):
                for i in range(n): self.free.remove(b + i)
                self.hi = max(self.hi, b + n)
                return b
        raise RuntimeError('out of %s registers' % self.kind)
    def put(self, b, n=1):
        for i in range(n):
            assert (b + i) not in self.free
            self.free.append(b + i)
        self.free.sort()

def vr(b, n=1, k='v'):
    return '%s%d' % (k, b) if n == 1 else '%s[%d:%d]' % (k, b, b + n - 1)
def sr(b, n=1): return vr(b, n, 's')
def ar(b, n=1): return vr(b, n, 'a')

def interleave(main, fill, start=0, per=None):
    out = []; f = list(fill)
    for i, m in enumerate(main):
        out.append(m)
        n = per[i] if per is not None else 0
        for _ in range(n):
            if f: out.append(f.pop(0))
    out += f
    return out

def kernel_desc(name, vgpr, sgpr, accum):
    return f""".section .rodata,"a"
.p2align 6
.amdhsa_kernel {name}
  .amdhsa_next_free_vgpr {vgpr}
  .amdhsa_next_free_sgpr {sgpr}
  .amdhsa_accum_offset {accum}
  .amdhsa_group_segment_fixed_size 0
  .amdhsa_kernarg_size 80
  .amdhsa_user_sgpr_count 2
  .amdhsa_user_sgpr_kernarg_segment_ptr 1
  .amdhsa_system_sgpr_workgroup_id_x 1
  .amdhsa_float_denorm_mode_32 3
.end_amdhsa_kernel
"""

def kernel_head(name):
    return f""".text
.globl {name}
.p2align 8
.type {name},@function
{name}:
"""


def _cost(i):
    if i.kind == 'valu':
        if i.trans or i.perm: return 8
        return 4 if i.mn.startswith(('v_mov_b32', 'v_add_', 'v_sub', 'v_mul_f32', 'v_max_f32', 'v_and_b32', 'v_or_b32', 'v_xor', 'v_lshl', 'v_lshr', 'v_permlane', 'v_cmp')) and '-v' not in i.text else 5
    if i.kind == 'mfma': return 8
    if i.kind == 'ds': return 4 if 'read' in i.mn else (16 if '128' in i.mn else 8)
    if i.kind == 'vmem': return 8
    return 4
def _lat(p, c):
    w = need(p, c) * 4
    if p.kind == 'mfma':
        if c.kind == 'mfma' and p.wr == c.C and not (p.wr & (c.A | c.B)): return 4 * p.passes
        if p.wr & (c.rd | c.wr): return 4 * p.passes + 32
        return 4 + w
    if p.kind == 'ds' and p.wr & (c.rd | c.wr): return 150 if '128' in p.mn else 120
    if p.kind == 'vmem' and p.wr & (c.rd | c.wr): return 700
    base = _cost(p)
    if p.kind == 'valu' and p.wr & c.rd and (p.trans or p.mn.startswith('v_pk_')): base += 4
    return base + w
def sched(lines, crit=None):
    ins = [Ins(t.strip()) for l in lines for t in l.split('\n') if t.strip()]
    n = len(ins)
    EX = ('x', 'exec')
    succ = [[] for _ in range(n)]; npred = [0] * n
    def edge(a, b, l):
        succ[a].append((b, l)); npred[b] += 1
    lastw, readers = {}, {}
    last = {'salu': None, 'ds': None, 'vmem': None}
    fence = None
    mem_since = []
    ds_since = []
    for k, i in enumerate(ins):
        assert not i.is_label and not i.mn.startswith(('s_branch', 's_cbranch'))
        rd = set(i.rd); wr = set(i.wr)
        if i.kind in ('valu', 'mfma', 'ds', 'vmem'): rd.add(EX)
        deps = {}
        for r in rd:
            if r in lastw: deps[lastw[r]] = max(deps.get(lastw[r], 0), _lat(ins[lastw[r]], i) if r != EX else 4)
        for r in wr:
            if r in lastw: deps[lastw[r]] = max(deps.get(lastw[r], 0), _lat(ins[lastw[r]], i) if r != EX else 4)
            for q in readers.get(r, []):
                if q != k: deps[q] = max(deps.get(q, 0), 4 + 4 * need(ins[q], i))
        isf = i.mn in ('s_barrier', 's_waitcnt')
        if isf:
            for q in mem_since:
                l = 4
                if i.mn == 's_waitcnt' and ins[q].kind == 'ds' and 'lgkmcnt' in i.text: l = 100
                deps[q] = max(deps.get(q, 0), l)
            if fence is not None: deps[fence] = max(deps.get(fence, 0), 4)
        else:
            cls = i.kind if i.kind in last else None
            if cls and last[cls] is not None: deps[last[cls]] = max(deps.get(last[cls], 0), _cost(ins[last[cls]]))
            if cls: last[cls] = k
            if i.kind in ('ds', 'vmem') and fence is not None: deps[fence] = max(deps.get(fence, 0), 4)
            if fence is not None and wr & fence_regs: deps[fence] = max(deps.get(fence, 0), 4)
        for q, l in deps.items(): edge(q, k, l)
        if isf:
            if fence is None or i.mn == 's_waitcnt': fence_regs = set()
            for q in mem_since: fence_regs |= isv(ins[q].rd)
            fence = k; mem_since = []
        elif i.kind in ('ds', 'vmem'): mem_since.append(k)
        for r in rd: readers.setdefault(r, []).append(k)
        for r in wr: lastw[r] = k; readers[r] = []
    pri = [0] * n
    for k in range(n - 1, -1, -1):
        p = (100000 if (crit and crit(ins[k].text)) else 0)
        for b, l in succ[k]: p = max(p, pri[b] + l)
        pri[k] = p
    ready = [k for k in range(n) if npred[k] == 0]
    est = [0] * n
    t = 0; mpipe = -16; out = []
    while ready:
        def start(k):
            if ins[k].kind == 'mfma': return max(est[k], mpipe)
            if ins[k].mn.startswith(('v_pk_', 'v_dot')): return max(est[k], mpipe + 16)
            return est[k]
        now = [k for k in ready if start(k) <= t]
        if now: k = max(now, key=lambda k: (pri[k], -k))
        else:
            k = min(ready, key=lambda k: (start(k), -pri[k])); t = start(k)
        ready.remove(k); out.append(ins[k].text)
        if ins[k].kind == 'mfma': mpipe = t + 4 * ins[k].passes
        for b, l in succ[k]:
            est[b] = max(est[b], t + l); npred[b] -= 1
            if npred[b] == 0: ready.append(b)
        t += _cost(ins[k])
    assert len(out) == n
    sched.last_estimate = t
    return out
```

```python
import sys, struct
sys.path.insert(0, 'work')
from asmlib import *

KNAME = 'interleave_layers__linear_kernel_hedgehog__sliding_local_dilated__prompt_kernel'

WS_CTR, WS_STAMP, WS_ST, WS_CS = 0x0, 0x100000, 0x200000, 0x300000
WS_HALO, WS_KVF, WS_ZP, WS_ZF, WS_KVP = 0x400000, 0x600000, 0x680000, 0x6C0000, 0x800000
WS_XI, WS_OI, WS_END = 0xC00000, 0x1800000, 0x2800000
BIG = 0x40000000
STG = 40960
XOFF = 24576
L_WO = 24576
L_P = 155648
P_NM, P_RS, P_CS, P_MODE, P_PHI = L_P, L_P + 512, L_P + 1024, L_P + 2816, L_P + 3072
LDS_BYTES = 163840
SCR = 5120
LOG2E = 1.4426950408889634
def f2u(x): return '0x%08x' % struct.unpack('<I', struct.pack('<f', x))[0]

s_fast = 3
pAX, pAW, pPHI, pAWO, pBW, pBWO, pOUT, pDBG, pWS = 4, 6, 8, 10, 14, 16, 18, 20, 22
sWS, sX, sW, sWO, sOUT, sDBG = 24, 28, 32, 36, 40, 44
s_m, s_g, s_wave, s_l = 48, 49, 50, 51
s_t = 52
s_cnt, s_x = 60, 61
s_i = 62
s_stamp = 63
s_rot = 64
s_rot2 = 95
def srd(b): return 's[%d:%d]' % (b, b + 3)


def sx(d, terms, const=0):
    L = []
    for n, (r, k) in enumerate([t for t in terms if t[1]]):
        t = d if n == 0 else s_x
        if k == 1 and n: t = r
        elif k == 1: L.append(f's_mov_b32 s{t}, s{r}')
        elif k > 0 and k & (k - 1) == 0: L.append(f's_lshl_b32 s{t}, s{r}, {k.bit_length()-1}')
        else: L.append(f's_mul_i32 s{t}, s{r}, {k}')
        if n: L.append(f's_add_u32 s{d}, s{d}, s{t}')
    if const: L.append(f's_add_u32 s{d}, s{d}, {const:#x}' if const > 0 else f's_sub_u32 s{d}, s{d}, {-const:#x}')
    return L

def pkop(r):
    if isinstance(r, tuple):
        return vr(r[1] & ~1, 2), r[1] & 1, r[1] & 1
    assert r % 2 == 0
    return vr(r, 2), 0, 1
def pk(op, d, *src, neg=None):
    o = [pkop(s) for s in src]
    t = 'v_pk_%s_f32 %s, %s' % (op, vr(d, 2), ', '.join(x[0] for x in o))
    lo = [x[1] for x in o]; hi = [x[2] for x in o]
    if any(lo): t += ' op_sel:[%s]' % ','.join(map(str, lo))
    if not all(hi): t += ' op_sel_hi:[%s]' % ','.join(map(str, hi))
    if neg: t += ' neg_lo:[%s] neg_hi:[%s]' % (','.join(map(str, neg)), ','.join(map(str, neg)))
    return t
def cvt(d, a, b): return f'v_cvt_pk_bf16_f32 v{d}, v{a}, v{b}'
def sw16(a, b): return f'v_permlane16_swap_b32 v{a}, v{b}'
def sw32(a, b): return f'v_permlane32_swap_b32 v{a}, v{b}'
def mf16(d, A, B, C=None): return f'v_mfma_f32_16x16x32_bf16 {vr(d,4)}, {vr(A,4)}, {vr(B,4)}, ' + (vr(C, 4) if C is not None else '0')
def mf32(d, A, B, C=None): return f'v_mfma_f32_32x32x16_bf16 {vr(d,16)}, {vr(A,4)}, {vr(B,4)}, ' + (vr(C, 16) if C is not None else '0')


class Gen:
    def __init__(self, prof=0, limit=40000, dist=2, touch=1, bm=27, local=1, pd=5, sch=1, hprio=2, opos=(1, 5), warm=1, wflag='', xflag='sc1', rotx=None, perm=(0, 0), lead=1):
        self.a = Asm()
        assert bm >= 13
        self.__dict__.update(prof=prof, limit=limit, dist=dist, touch=touch, bm=bm, local=local, pd=pd, sch=sch, hprio=hprio, opos=opos, warm=warm, wflag=wflag, xflag=xflag, rotx=rotx, perm=perm, lead=lead)
        self.nlab = 0

    def lab(self, p):
        self.nlab += 1
        return 'L_%s_%d' % (p, self.nlab)

    def aw(self, L):
        self.a.extend(autowait(L))
    def sw(self, L, crit=None, name=''):
        if self.sch:
            L = sched(L, crit)
            if name and __name__ == '__main__': print('sched', name, len(L), 'instructions, about', sched.last_estimate, 'cycles', file=sys.stderr)
        self.a.extend(autowait(L))

    def cond(self, test, body):
        L = self.lab('skip')
        self.a.extend(test); self.a(f's_cbranch_scc0 {L}')
        body()
        self.a.label(L)

    def spin(self, issue, check, vt, tag, pre=False):
        a = self.a
        L, C, D = self.lab('spin'), self.lab('chk'), self.lab('done')
        a(f's_mov_b32 s{s_cnt}, 0')
        if pre:
            a(f's_branch {C}')
            a.label(L); a.extend(issue); a('s_waitcnt vmcnt(0)')
            a.label(C); a.extend(check)
        else:
            a.label(L); self.aw(list(issue) + list(check))
        a('s_cmp_eq_u64 vcc, 0'); a(f's_cbranch_scc1 {D}')
        a(f's_add_u32 s{s_cnt}, s{s_cnt}, 1')
        a(f's_cmp_lt_u32 s{s_cnt}, {self.limit}'); a(f's_cbranch_scc1 {L}')
        a(f'v_mov_b32 v{vt}, {1 << tag}')
        a(f'buffer_atomic_or v{vt}, off, {srd(sDBG)}, 0 offset:8 sc1')
        a.label(D)

    def ll_wait(self, loads, regs, t1, t2, tag, pre=False):
        S = []
        h = len(regs) // 2
        for t, R in ((t1, regs[:h]), (t2, regs[h:])):
            S.append(f'v_max_u32 v{t}, v{R[0]}, v{R[1]}')
            for k in range(2, len(R), 2): S.append(f'v_max3_u32 v{t}, v{t}, v{R[k]}, v{R[k+1]}')
        S += [f'v_max_u32 v{t1}, v{t1}, v{t2}', f'v_cmp_eq_u32 vcc, -1, v{t1}']
        self.spin(loads, S, t1, tag, pre)

    def flag_set(self, soff, vt):
        a = self.a
        F, D = self.lab('fast'), self.lab('sigd')
        a('s_mov_b64 exec, 1')
        a(f's_cmp_eq_u32 s{s_fast}, 1'); a(f's_cbranch_scc1 {F}')
        a(f'buffer_store_dword v{vt}, off, {srd(sWS)}, s{soff} sc1')
        a(f's_branch {D}')
        a.label(F)
        a(f'buffer_store_dword v{vt}, off, {srd(sWS)}, s{soff}')
        a.label(D)
        a('s_mov_b64 exec, -1')

    def flag_addr(self, va, vt):
        return [f'v_bfe_u32 v{va}, v1, 1, 4', f'v_and_b32 v{vt}, 1, v1', f'v_lshl_add_u32 v{va}, v{va}, 2, v{vt}', f'v_lshlrev_b32 v{va}, 2, v{va}']
    def flag_wait(self, soff, va, vt, tag):
        self.spin([f'buffer_load_dword v{vt}, v{va}, {srd(sWS)}, s{soff} offen sc1'], [f'v_cmp_eq_u32 vcc, 0, v{vt}'], vt, tag)

    def stamp(self, k):
        if not self.prof or self.prof >= 5: return
        a = self.a
        a(f'{"s_memtime" if self.prof == 4 else "s_memrealtime"} s[{s_t+6}:{s_t+7}]')
        a(f's_mov_b32 s{s_stamp}, m0')
        a(f's_lshl_b32 m0, s{s_l}, 4'); a(f's_add_u32 m0, m0, {k}')
        a('s_waitcnt lgkmcnt(0)')
        a(f'v_writelane_b32 v255, s{s_t+6}, m0')
        a(f's_mov_b32 m0, s{s_stamp}')
    def stamp_out(self):
        if not self.prof: return
        a = self.a
        a.extend(sx(s_t, [(2, 2048), (s_wave, 256)], WS_STAMP))
        a('v_lshlrev_b32 v254, 2, v1')
        a(f'buffer_store_dword v255, v254, {srd(sWS)}, s{s_t} offen')

    def prologue(self):
        a = self.a
        a('s_cmp_ge_u32 s2, 256'); a('s_cbranch_scc1 L_end')
        a('s_load_dwordx16 s[4:19], s[0:1], 0')
        a('s_load_dwordx4 s[20:23], s[0:1], 64')
        a('v_lshrrev_b32 v2, 6, v0')
        a(f'v_readfirstlane_b32 s{s_wave}, v2')
        a('v_and_b32 v1, 63, v0')
        a(f's_and_b32 s{s_rot}, s2, 7'); a(f's_lshl_b32 s{s_rot}, s{s_rot}, 1')
        a(f's_bfe_u32 s{s_t}, s2, 0x10003'); a(f's_add_u32 s{s_m}, s{s_rot}, s{s_t}')
        a(f's_lshr_b32 s{s_g}, s2, 4')
        a(f's_mov_b32 s{s_rot2}, s{s_rot}')
        if self.rotx is not None: a(f's_and_b32 s{s_rot}, s{s_rot}, {self.rotx}')
        if self.lead: a(f's_mul_i32 s{s_t}, s{s_t}, {self.lead}'); a(f's_add_u32 s{s_rot}, s{s_rot}, s{s_t}'); a(f's_and_b32 s{s_rot}, s{s_rot}, 15')
        a(f's_mov_b32 s{s_l}, 0'); a(f's_mov_b32 s{s_fast}, 0')
        for b, n in ((sWS, WS_END), (sX, 2048*1024*2), (sW, 1024*3072*2), (sWO, 1024*1024*2), (sOUT, WS_END), (sDBG, 256)):
            a(f's_mov_b32 s{b+2}, {n}'); a(f's_mov_b32 s{b+3}, 0x20000')
        if self.prof: a('v_mov_b32 v255, 0')
        self.stamp(0)
        a(f's_cmp_ge_u32 s{s_wave}, 6'); a('s_cbranch_scc1 L_helper')
        a(f's_cmp_ge_u32 s{s_wave}, 4'); a('s_cbranch_scc1 L_loader')
    def pointers(self):
        a = self.a
        a('s_waitcnt lgkmcnt(0)')
        for b, p in ((sWS, pWS), (sX, pAX), (sW, pAW), (sWO, pAWO), (sOUT, pWS), (sDBG, pDBG)):
            a(f's_mov_b64 s[{b}:{b+1}], s[{p}:{p+1}]')

    def w_frag_addr(self, aw, head_sreg, base, t0, t1, t2, nb_list=(0, 1)):
        L = [f'v_lshrrev_b32 v{t2}, 4, v1', f'v_bfe_u32 v{t0}, v1, 2, 2', f'v_lshl_add_u32 v{t1}, v{t2}, 3, v{t0}',
             f'v_lshrrev_b32 v{t0}, 1, v{t0}', f'v_and_b32 v{t2}, 1, v{t2}', f'v_lshl_add_u32 v{t0}, v{t2}, 1, v{t0}']
        if head_sreg is not None: L += [f's_lshl_b32 s{s_t}, s{head_sreg}, 1', f'v_xor_b32 v{t0}, s{s_t}, v{t0}']
        L += [f'v_and_b32 v{t2}, 3, v1', f'v_lshlrev_b32 v{t2}, 3, v{t2}', f'v_lshl_add_u32 v{t2}, v{t1}, 7, v{t2}']
        if base: L.append(f'v_add_u32 v{t2}, {base}, v{t2}')
        for k, nb in enumerate(nb_list): L += [f'v_xor_b32 v{t1}, {nb}, v{t0}', f'v_lshl_add_u32 v{aw+k}, v{t1}, 5, v{t2}']
        return L

    def reduce_job(self):
        a = self.a
        T = 200
        vA, vZ, vO, t1, t2 = T, T+1, T+2, T+3, T+4
        s_a, s_b, s_c, s_d, s_e = 80, 81, 82, 83, 84
        a.extend(sx(s_t, [(s_l, 32), (s_g, 4), (s_wave, 1)], -4))
        a.extend(sx(s_a, [(s_t, 32768), (s_m, 128)], WS_KVP)); a(f's_add_u32 s{s_b}, s{s_a}, 16384')
        a.extend(sx(s_d, [(s_t, 2048), (s_m, 128)], WS_KVF))
        a.extend(sx(s_c, [(s_t, 1024)], WS_ZP)); a.extend(sx(s_e, [(s_t, 64)], WS_ZF))
        a(f's_and_b32 s{s_t}, s{s_t}, 1'); a(f's_xor_b32 s{s_t+1}, s{s_m}, s{s_g}'); a(f's_or_b32 s{s_t}, s{s_t}, s{s_t+1}')
        a(f's_cselect_b32 s{s_c}, {BIG}, s{s_c}'); a(f's_cselect_b32 s{s_e}, {BIG}, s{s_e}')
        a(f'v_and_b32 v{t1}, 7, v1'); a(f'v_lshlrev_b32 v{t1}, 4, v{t1}')
        a(f'v_lshrrev_b32 v{t2}, 3, v1'); a(f'v_lshl_add_u32 v{vA}, v{t2}, 11, v{t1}')
        a(f'v_lshlrev_b32 v{vZ}, 4, v1')
        a(f'v_lshrrev_b32 v{t2}, 4, v1'); a(f'v_lshl_add_u32 v{vO}, v{t2}, 2, v{t1}')
        a('s_barrier')
        D = T + 8; U = 160
        self.ll_wait([f'buffer_load_dwordx4 {vr(D,4)}, v{vA}, {srd(sWS)}, s{s_a} offen sc1',
                      f'buffer_load_dwordx4 {vr(D+4,4)}, v{vA}, {srd(sWS)}, s{s_b} offen sc1',
                      f'buffer_load_dwordx4 {vr(D+8,4)}, v{vZ}, {srd(sWS)}, s{s_c} offen sc1',
                      f'buffer_load_dwordx4 {vr(D+12,4)}, v{vZ}, {srd(sWS)}, s{s_c} offen offset:1024 sc1'],
                     list(range(D, D+16)), t1, t2, 1)
        self.stamp(5)
        S = []
        for z in range(2):
            d, u = D + 8*z, U + 16*z
            for k in range(8): S += [f'v_lshlrev_b32 v{u+2*k}, 16, v{d+k}', f'v_and_b32 v{u+2*k+1}, 0xffff0000, v{d+k}']
            for k in range(4): S.append(pk('add', u+2*k, u+2*k, u+8+2*k))
            for k in range(4): S.append(sw32(u+k, u+4+k))
            S += [pk('add', u, u, u+4), pk('add', u+2, u+2, u+6), sw16(u, u+2), sw16(u+1, u+3), pk('add', u, u, u+2)]
            for k in range(2): S.append(f'v_add_f32_dpp v{u+k}, v{u+k}, v{u+k} row_ror:8 row_mask:0xf bank_mask:0xf')
            S.append(cvt(u, u, u+1))
        S += ['s_mov_b32 exec_lo, 0x00ff00ff', 's_mov_b32 exec_hi, 0x00ff00ff',
              f'buffer_store_dword v{U}, v{vO}, {srd(sWS)}, s{s_d} offen sc1',
              f'buffer_store_dword v{U+16}, v{vO}, {srd(sWS)}, s{s_e} offen sc1', 's_mov_b64 exec, -1']
        self.sw(S)
        a('s_barrier')

    def loader(self):
        a = self.a
        a.label('L_loader')
        dx, dw, dwo, t0, t1, t2, vf = 8, 16, 28, 2, 3, 4, 5
        s_ld, s_kx, s_kw, s_slot, s_mx, s_xstep, s_wo, s_wm0, s_sx, s_sw, s_xb, s_fl, s_mw = range(65, 78)
        a(f's_sub_u32 s{s_ld}, s{s_wave}, 4')
        a(f'v_lshrrev_b32 v{t0}, 3, v1'); a(f'v_mul_u32_u24 v{t0}, 6144, v{t0}')
        a(f'v_and_b32 v{t1}, 7, v1'); a(f'v_bfe_u32 v{t2}, v1, 4, 1'); a(f'v_lshlrev_b32 v{t2}, 1, v{t2}')
        a(f'v_xor_b32 v{t1}, v{t1}, v{t2}'); a(f'v_xor_b32 v{t2}, 4, v{t1}')
        a(f'v_lshl_add_u32 v{t1}, v{t1}, 4, v{t0}'); a(f'v_lshl_add_u32 v{t2}, v{t2}, 4, v{t0}')
        a(f's_lshl_b32 s{s_t+1}, s{s_g}, 7'); a(f'v_add_u32 v{t1}, s{s_t+1}, v{t1}'); a(f'v_add_u32 v{t2}, s{s_t+1}, v{t2}')
        a(f's_and_b32 s{s_t+2}, s2, 7')
        a.extend(sx(s_t+1, [(s_ld, 3), (s_t+2, self.perm[0]), (s_g, self.perm[1])]))
        for t in range(3):
            a(f's_add_u32 s{s_t}, s{s_t+1}, {t}'); a(f's_mul_i32 s{s_t+2}, s{s_t}, 10923'); a(f's_lshr_b32 s{s_t+2}, s{s_t+2}, 16')
            a(f's_mul_i32 s{s_t+2}, s{s_t+2}, 6'); a(f's_sub_u32 s{s_t}, s{s_t}, s{s_t+2}')
            a(f's_lshl_b32 s{s_mw+t}, s{s_t}, 12')
            a(f's_and_b32 s{s_t+2}, s{s_t}, 1'); a(f's_mul_i32 s{s_t+2}, s{s_t+2}, {32*6144 - 1024}'); a(f's_lshl_b32 s{s_t}, s{s_t}, 10')
            a(f's_add_u32 s{s_t}, s{s_t}, s{s_t+2}')
            a(f'v_add_u32 v{dw+4*t}, s{s_t}, v{t1}'); a(f'v_add_u32 v{dw+4*t+1}, s{s_t}, v{t2}')
            a(f'v_add_u32 v{dw+4*t+2}, {2*(8*6144-1024)}, v{dw+4*t}'); a(f'v_add_u32 v{dw+4*t+3}, {3*(8*6144-1024)}, v{dw+4*t+1}')
            a(f'v_add_u32 v{dw+4*t+1}, {8*6144-1024}, v{dw+4*t+1}')
        a(f's_lshl_b32 s{s_mx}, s{s_ld}, 13'); a(f's_add_u32 s{s_mx}, s{s_mx}, {XOFF}')
        def wst(slot=None):
            L = []
            for j in range(12):
                if j % 4 == 0: L.append(f's_add_u32 m0, s{s_mw+j//4}, ' + (f's{s_slot}' if slot is None else str(slot*STG)))
                L.append(f'buffer_load_dwordx4 v{dw+j}, {srd(sW)}, s{s_kw} offen offset:{1024*(j%4)} {self.wflag} lds')
            a.extend(L + [f's_add_u32 s{s_sw}, s{s_sw}, 1', f's_and_b32 s{s_sw}, s{s_sw}, 15', f's_mul_i32 s{s_kw}, s{s_sw}, {64*6144}'])
        def xst(slot=None):
            L = []
            for j in range(8):
                if j == 0: L.append(f's_add_u32 m0, s{s_mx}, ' + (f's{s_slot}' if slot is None else str(slot*STG)))
                elif j == 4: L.append('s_add_u32 m0, m0, 4096')
                L.append(f'buffer_load_dwordx4 v{dx+j}, {srd(sX)}, s{s_kx} offen offset:{1024*(j%4)} {self.xflag} lds')
            a.extend(L + [f's_add_u32 s{s_sx}, s{s_sx}, 1', f's_and_b32 s{s_sx}, s{s_sx}, 15', f's_mul_i32 s{s_kx}, s{s_sx}, s{s_xstep}', f's_add_u32 s{s_kx}, s{s_kx}, s{s_xb}'])
        def kstart():
            a(f's_mov_b32 s{s_sx}, s{s_rot}'); a(f's_mov_b32 s{s_sw}, s{s_rot}')
            a(f's_mul_i32 s{s_kw}, s{s_sw}, {64*6144}'); a(f's_mul_i32 s{s_kx}, s{s_sx}, s{s_xstep}'); a(f's_add_u32 s{s_kx}, s{s_kx}, s{s_xb}')
        a(f's_lshl_b32 s{s_xb}, s{s_m}, 18'); a(f's_mov_b32 s{s_xstep}, 128'); kstart()
        self.pointers()
        wst(0)
        a(f'v_lshrrev_b32 v{t0}, 3, v1'); a(f'v_and_b32 v{t1}, 7, v1')
        a(f'v_lshrrev_b32 v{t2}, 4, v1'); a(f'v_xor_b32 v{t1}, v{t1}, v{t2}'); a(f'v_xor_b32 v{t2}, 4, v{t1}')
        a(f's_lshl_b32 s{s_t}, s{s_ld}, 17'); a(f'v_lshl_add_u32 v{t0}, v{t0}, 11, s{s_t}')
        a(f'v_lshl_add_u32 v{t1}, v{t1}, 4, v{t0}'); a(f'v_lshl_add_u32 v{t2}, v{t2}, 4, v{t0}')
        for j in range(8): a(f'v_add_u32 v{dx+j}, {j*16384 - 1024*(j%4)}, v{t1 if j % 2 == 0 else t2}')
        xst(0); wst(1)
        a(f'v_lshrrev_b32 v{t0}, 5, v1'); a(f'v_lshlrev_b32 v{t0}, 4, v{t0}')
        a(f'v_bfe_u32 v{t1}, v1, 3, 2'); a(f'v_add_u32 v{t0}, v{t0}, v{t1}')
        a(f's_lshl_b32 s{s_t}, s{s_g}, 7'); a(f'v_lshl_add_u32 v{t0}, v{t0}, 11, s{s_t}')
        a(f'v_and_b32 v{t1}, 7, v1'); a(f'v_bfe_u32 v{t2}, v1, 4, 1'); a(f'v_lshlrev_b32 v{t2}, 1, v{t2}')
        a(f'v_xor_b32 v{t1}, v{t1}, v{t2}'); a(f'v_xor_b32 v{t2}, 4, v{t1}')
        a(f'v_lshl_add_u32 v{t1}, v{t1}, 4, v{t0}'); a(f'v_lshl_add_u32 v{t2}, v{t2}, 4, v{t0}')
        for G in range(4): a(f'v_add_u32 v{dwo+G}, {G*4*2048 - 1024*G}, v{t1 if G % 2 == 0 else t2}')
        a.extend(self.flag_addr(vf, t0))
        a('s_waitcnt vmcnt(12)'); a('s_barrier')
        xst(1); wst(2)
        a('s_waitcnt vmcnt(12)'); a('s_barrier')
        xst(2)
        a('s_branch L_ld_enter')
        a.label('L_ld_layer')
        a('s_waitcnt vmcnt(8)'); a('s_barrier')
        xst(2); wst(2)
        a('s_waitcnt vmcnt(20)'); a('s_barrier')
        a.label('L_ld_enter')
        a(f's_mov_b32 s{s_i}, 0'); a(f's_mov_b32 s{s_slot}, 0')
        a.label('L_ld_loop')
        xst(); wst()
        a(f's_add_u32 s{s_slot}, s{s_slot}, {STG}'); a(f's_cmp_eq_u32 s{s_slot}, {3*STG}'); a(f's_cselect_b32 s{s_slot}, 0, s{s_slot}')
        a(f's_add_u32 s{s_i}, s{s_i}, 1'); a(f's_cmp_lt_u32 s{s_i}, 13')
        a('s_waitcnt vmcnt(20)')
        a('s_barrier')
        a('s_cbranch_scc1 L_ld_loop')
        def wo(p0, n):
            a.extend(sx(s_wm0, [(s_ld, 4096)], L_WO + 4096*p0))
            a.extend(sx(s_wo, [(s_rot2, 2), (s_ld, 1)], p0)); a(f's_and_b32 s{s_wo}, s{s_wo}, 31'); a(f's_lshl_b32 s{s_wo}, s{s_wo}, 16')
            L = self.lab('wo')
            a(f's_mov_b32 s{s_i}, 0')
            a.label(L)
            a(f's_mov_b32 m0, s{s_wm0}')
            a(f's_add_u32 s{s_wm0}, s{s_wm0}, 8192')
            for G in range(4): a(f'buffer_load_dwordx4 v{dwo+G}, {srd(sWO)}, s{s_wo} offen offset:{1024*G} lds')
            a(f's_add_u32 s{s_wo}, s{s_wo}, 131072'); a(f's_and_b32 s{s_wo}, s{s_wo}, 0x1fffff')
            a(f's_add_u32 s{s_i}, s{s_i}, 1'); a(f's_cmp_lt_u32 s{s_i}, {n//2}'); a(f's_cbranch_scc1 {L}')
        wo(24, 8)
        a('s_waitcnt vmcnt(16)'); a('s_barrier')
        wo(4, 10)
        a('s_barrier')
        wo(14, 10); wo(0, 4)
        a(f's_bitcmp1_b32 s{s_l}, 0'); a('s_cbranch_scc1 L_ld_B')
        self.reduce_job()
        a('s_branch L_ld_join')
        a.label('L_ld_B')
        a('s_barrier')
        a.label('L_ld_join')
        a.extend(sx(s_fl, [(s_l, 8192), (s_m, 256), (s_ld, 8)], 4096))
        a.extend(sx(s_xb, [(s_l, 1 << 22), (s_m, 1 << 18)], WS_XI))
        a(f's_bitcmp0_b32 s{s_l}, 0')
        a(f's_cselect_b64 s[{sW}:{sW+1}], s[{pBW}:{pBW+1}], s[{pAW}:{pAW+1}]')
        a(f's_cselect_b64 s[{sWO}:{sWO+1}], s[{pBWO}:{pBWO+1}], s[{pAWO}:{pAWO+1}]')
        a(f's_mov_b64 s[{sX}:{sX+1}], s[{pWS}:{pWS+1}]'); a(f's_mov_b32 s{sX+2}, {WS_END}')
        a(f's_mov_b32 s{s_xstep}, 16384'); kstart()
        a(f's_lshl_b32 s{s_t}, s{s_ld}, 13'); a(f'v_lshl_add_u32 v{t0}, v1, 4, s{s_t}')
        for j in range(8): a(f'v_add_u32 v{dx+j}, {4096*(j//4)}, v{t0}')
        a('s_waitcnt vmcnt(0)'); a('s_barrier')
        a(f's_cmp_eq_u32 s{s_l}, 3'); a('s_cbranch_scc1 L_fin')
        a(f's_add_u32 s{s_l}, s{s_l}, 1')
        wst(0)
        a('s_barrier')
        wst(1)
        self.flag_wait(s_fl, vf, t0, 2)
        self.stamp(1)
        xst(0); xst(1)
        a('s_branch L_ld_layer')

    def helper(self):
        a = self.a
        a.label('L_helper')
        t0, t1, t2, t3, l4, l16, ones, a_st, a_cs, v_st, v_cs, aw, vtw, vto, vd = 2, 3, 4, 5, 6, 7, 8, 12, 13, 14, 15, 16, 18, 19, 20
        F, D, SA, SC = 32, 96, 128, 160
        s_h, s_tw, s_a, s_b, s_trot = 65, 66, 67, 68, 69
        a(f's_and_b32 s{s_trot}, s{s_rot2}, {14 if self.rotx is None else self.rotx}'); a(f's_add_u32 s{s_trot}, s{s_trot}, {self.lead}')
        if self.hprio: a(f's_setprio {self.hprio}')
        a(f's_sub_u32 s{s_h}, s{s_wave}, 6')
        a(f'v_lshlrev_b32 v{l4}, 2, v1'); a(f'v_lshlrev_b32 v{l16}, 4, v1')
        a(f's_and_b32 s{s_t+1}, s{s_m}, {0 if self.lead else 1}'); a(f's_mul_i32 s{s_t+1}, s{s_t+1}, {STG}')
        a.extend(self.w_frag_addr(aw, s_h, f's{s_t+1}', t0, t1, t2))
        a(f'v_lshrrev_b32 v{t0}, 5, v1'); a(f'v_and_b32 v{t1}, 31, v1'); a(f'v_lshlrev_b32 v{t1}, 4, v{t1}')
        a(f'v_lshl_add_u32 v{v_st}, v{t0}, 10, v{t1}')
        a(f'v_and_b32 v{t2}, 24, v1'); a(f'v_and_b32 v{t3}, 3, v1'); a(f'v_lshl_add_u32 v{t2}, v{t3}, 1, v{t2}'); a(f'v_add_u32 v{t2}, v{t2}, v{t0}')
        a.extend(sx(s_t, [(s_h, 256)], P_NM)); a(f'v_lshl_add_u32 v{a_st}, v{t2}, 3, s{s_t}')
        a(f'v_mov_b32 v{t2}, {BIG}'); a(f'v_cmp_gt_u32 vcc, 384, v{t1}'); a(f'v_cndmask_b32 v{v_cs}, v{t2}, v{v_st}, vcc')
        a.extend(sx(s_t, [(s_h, 384)], P_CS)); a(f'v_lshl_add_u32 v{t1}, v{t0}, 3, v{t1}'); a(f'v_add_u32 v{a_cs}, s{s_t}, v{t1}')
        self.pointers()

        def touch_setup():
            if not self.touch: return
            c, gt = s_t + 2, s_t + 3
            def cls(b):
                a(f's_lshr_b32 s{gt}, s{b}, 7'); a(f's_sub_u32 s{gt}, 3, s{gt}'); a(f's_and_b32 s{gt}, s{gt}, 7')
                a(f's_sub_u32 s{c}, s{s_g}, s{gt}'); a(f's_and_b32 s{c}, s{c}, 7'); a(f's_sub_u32 s{c}, s{c}, 1')
                a(f's_and_b32 s{s_t}, s{s_g}, 8'); a(f's_add_u32 s{gt}, s{gt}, s{s_t}'); a(f's_lshl_b32 s{gt}, s{gt}, 7')
            a(f's_and_b32 s{s_t+4}, s{s_m}, 1'); a(f's_lshl_b32 s{s_t+4}, s{s_t+4}, 1'); a(f's_add_u32 s{s_t+4}, s{s_t+4}, s{s_h}')
            cls(sW)
            a(f's_cmp_ge_u32 s{c}, 3'); a(f's_cselect_b32 s{s_t}, {32*6144 - 3*2048}, 0'); a(f's_add_u32 s{gt}, s{gt}, s{s_t}')
            a(f's_lshl_b32 s{s_t}, s{c}, 11'); a(f's_add_u32 s{gt}, s{gt}, s{s_t}')
            a(f's_mul_i32 s{s_t}, s{s_t+4}, {8*6144}'); a(f's_add_u32 s{gt}, s{gt}, s{s_t}')
            a(f's_cmp_lt_u32 s{c}, 6'); a(f's_cselect_b32 s{s_t}, 8, 0')
            a(f'v_mul_u32_u24 v{vtw}, 6144, v1'); a(f'v_add_u32 v{vtw}, s{gt}, v{vtw}')
            a(f'v_mov_b32 v{t0}, {BIG}'); a(f'v_cmp_gt_u32 vcc, s{s_t}, v1'); a(f'v_cndmask_b32 v{vtw}, v{t0}, v{vtw}, vcc')
            cls(sWO)
            a(f's_lshl_b32 s{s_t}, s{c}, 19'); a(f's_add_u32 s{gt}, s{gt}, s{s_t}')
            a(f's_lshl_b32 s{s_t}, s{s_t+4}, 17'); a(f's_add_u32 s{gt}, s{gt}, s{s_t}')
            a(f's_cmp_lt_u32 s{c}, 4'); a(f's_cselect_b32 s{s_t}, 16, 0')
            a(f'v_lshlrev_b32 v{vto}, 11, v1'); a(f'v_add_u32 v{vto}, s{gt}, v{vto}')
            a(f'v_cmp_gt_u32 vcc, s{s_t}, v1'); a(f'v_cndmask_b32 v{vto}, v{t0}, v{vto}, vcc')
        def touchW(st):
            if not self.touch: return
            a(f's_add_u32 s{s_tw}, s{s_trot}, {st}'); a(f's_and_b32 s{s_tw}, s{s_tw}, 15'); a(f's_mul_i32 s{s_tw}, s{s_tw}, {64*6144}')
            a(f'buffer_load_dword v{vd}, v{vtw}, {srd(sW)}, s{s_tw} offen')
        def touchO(k):
            if not self.touch: return
            a(f's_mov_b32 s{s_tw}, {k*16*2048}')
            a(f'buffer_load_dword v{vd}, v{vto}, {srd(sWO)}, s{s_tw} offen')
        touch_setup()
        for st in range(1, 3 + self.dist): touchW(st)

        def init_stores():
            a(f's_mov_b64 s[{sX}:{sX+1}], s[{pPHI}:{pPHI+1}]'); a(f's_mov_b32 s{sX+2}, 65536')
            a.extend(sx(s_t, [(s_g, 4096), (s_h, 2048)])); a(f's_lshl_b32 s{s_t+1}, s{s_h}, 11'); a(f's_add_u32 m0, s{s_t+1}, {P_PHI}')
            for j in range(2): a(f'buffer_load_dwordx4 v{l16}, {srd(sX)}, s{s_t} offen offset:{1024*j} lds')
            for k in range(4): a(f'v_mov_b32 v{ones+k}, -1')
            a.extend(sx(s_t, [(s_h, 1 << 20), (s_m, 1 << 16), (s_g, 4096)], WS_HALO))
            for j in range(4): a(f'buffer_store_dwordx4 {vr(ones,4)}, v{l16}, {srd(sWS)}, s{s_t} offen offset:{1024*j} sc1')
            a.extend(sx(s_t, [(s_g, 16384), (s_m, 1024)], WS_CS + 262144)); a.extend(sx(s_t+1, [(2, 256)]))
            a(f's_cmp_eq_u32 s{s_h}, 0'); a(f's_cselect_b32 s{s_t}, {BIG}, s{s_t}'); a(f's_cselect_b32 s{s_t+1}, s{s_t+1}, {BIG}')
            a(f'buffer_store_dwordx4 {vr(ones,4)}, v{l16}, {srd(sWS)}, s{s_t} offen sc1')
            a(f'v_mov_b32 v{t0}, 0')
            a(f'buffer_store_dword v{t0}, v{l4}, {srd(sWS)}, s{s_t+1} offen sc1')
            for k in range(4): a(f'v_mov_b32 v{ones+k}, 0x3f803f80')
        def cs_reads():
            for s in range(2):
                for n in range(6):
                    for t in range(2):
                        a(f'ds_read_b64_tr_b16 {vr(F+24*s+4*n+2*t,2)}, v{aw+(n&1)} offset:{(n>>1)*8192+(32*s+4*t)*128}')
            a('s_waitcnt lgkmcnt(0)')
        def cs_publish():
            for s in range(2):
                for n in range(6): a(mf16(D+4*n, ones, F+24*s+4*n, D+4*n if s else None))
            a.extend(sx(s_t, [(s_l, 262144), (s_g, 16384), (s_m, 1024), (s_h, 128)], WS_CS))
            a('s_mov_b64 exec, 0xffff')
            for n in range(6): a(f'buffer_store_dword v{D+4*n}, v{l4}, {srd(sWS)}, s{s_t} offen offset:{(n>>1)*256+(n&1)*64} sc1')
            a('s_mov_b64 exec, -1')
        def arrive():
            a(f's_getreg_b32 s{s_t}, hwreg(HW_REG_XCC_ID, 0, 3)'); a(f's_lshl_b32 s{s_t}, s{s_t}, 3')
            a(f's_lshl_b64 s[{s_t+2}:{s_t+3}], 1, s{s_t}'); a(f's_lshl_b32 s{s_t}, s{s_m}, 4')
            a('s_mov_b64 exec, 1')
            a(f'v_mov_b32 v{t0}, s{s_t+2}'); a(f'v_mov_b32 v{t1}, s{s_t+3}')
            a(f'buffer_atomic_add_x2 {vr(t0,2)}, off, {srd(sDBG)}, s{s_t} sc1')
            a('s_mov_b64 exec, -1')
        def init_wait():
            a(f'v_and_b32 v{t2}, 0xf0, v{l16}')
            self.spin([f'buffer_load_dwordx2 {vr(t0,2)}, v{t2}, {srd(sDBG)}, 0 offen sc1'],
                      [f'v_sad_u8 v{t3}, v{t0}, 0, 0', f'v_sad_u8 v{t3}, v{t1}, 0, v{t3}', f'v_cmp_gt_u32 vcc, 16, v{t3}'], t3, 3)
            a(f'v_or_b32 v{t0}, v{t0}, v{t1}')
            a(f'v_readlane_b32 s{s_fast}, v{t0}, s{s_m}')
            a(f's_and_b32 s{s_fast}, s{s_fast}, 0x10101010'); a(f's_cselect_b32 s{s_fast}, {1 if self.local else 0}, 0')
            a(f'v_mov_b32 v{t3}, s{s_fast}'); a(f'v_mov_b32 v{t2}, {P_MODE}'); a(f'ds_write_b32 v{t2}, v{t3}')
        def gather(R, va, so, ks):
            L = []
            for k in ks: L += [f's_add_u32 s{s_t}, s{so}, {4096*(k//2)}', f'buffer_load_dwordx4 {vr(R+4*k,4)}, v{va}, {srd(sWS)}, s{s_t} offen offset:{2048*(k%2)} sc1']
            return L
        def total(R):
            n = 8
            while n > 1:
                n //= 2
                for k in range(4*n): a(f'v_add_f32 v{R+k}, v{R+k}, v{R+k+4*n}')
            a(sw32(R, R+2)); a(sw32(R+1, R+3)); a(f'v_add_f32 v{R}, v{R}, v{R+2}'); a(f'v_add_f32 v{R+1}, v{R+1}, v{R+3}')
        def stats_finish():
            self.ll_wait(gather(SA, v_st, s_a, range(8)), list(range(SA, SA+32)), t0, t1, 6, pre=True)
            total(SA)
            for k in range(2): a(f'v_mov_b32_dpp v{SA+2+k}, v{SA+k} row_shl:4 row_mask:0xf bank_mask:0xf')
            for k in range(2): a(f'v_mul_f32 v{SA+k}, {f2u(-1/1024)}, v{SA+k}'); a(f'v_mul_f32 v{SA+2+k}, {f2u(1/1024)}, v{SA+2+k}')
            for k in range(2): a(f'v_fma_f32 v{SA+2+k}, -v{SA+k}, v{SA+k}, v{SA+2+k}')
            for k in range(2): a(f'v_max_f32 v{SA+2+k}, 0, v{SA+2+k}')
            for k in range(2): a(f'v_add_f32 v{SA+2+k}, {f2u(1e-5)}, v{SA+2+k}')
            for k in range(2): a(f'v_rsq_f32 v{SA+2+k}, v{SA+2+k}')
            a('s_mov_b32 exec_lo, 0x0f0f0f0f'); a('s_mov_b32 exec_hi, 0x0f0f0f0f')
            a(f'ds_write_b64 v{a_st}, {vr(SA,2)}'); a(f'ds_write_b64 v{a_st}, {vr(SA+2,2)} offset:512')
            a('s_mov_b64 exec, -1')
        def cs_finish():
            self.ll_wait(gather(SC, v_cs, s_b, range(8)), list(range(SC, SC+32)), t0, t1, 7, pre=True)
            total(SC)
            a(f's_mul_i32 s{s_t}, s{s_l}, 768'); a(f'v_add_u32 v{t0}, s{s_t}, v{a_cs}')
            a('s_mov_b32 exec_lo, 0xffffff'); a('s_mov_b32 exec_hi, 0xffffff')
            a(f'ds_write_b64 v{t0}, {vr(SC,2)}')
            a('s_mov_b64 exec, -1')
        l0 = [f's_cmp_eq_u32 s{s_l}, 0']; l01 = [f's_cmp_lt_u32 s{s_l}, 2']
        a.label('L_hp_layer')
        a.extend(sx(s_a, [(s_l, 262144), (s_m, 16384), (s_h, 512)], WS_ST))
        a.extend(sx(s_b, [(s_l, 262144), (s_g, 16384), (s_h, 384)], WS_CS))
        for i in range(17):
            a('s_barrier')
            if i in ((0,) if self.lead else (0, 1)): self.cond([f's_and_b32 s{s_t}, s{s_m}, {0 if self.lead else 1}', f's_and_b32 s{s_t+1}, s{s_l}, 2', f's_or_b32 s{s_t}, s{s_t}, s{s_t+1}', f's_cmp_eq_u32 s{s_t}, {i}'], cs_reads)
            if i == 0: self.cond(l0, init_stores)
            if i == 2: self.cond(l01, cs_publish)
            if i in (4, 13): a('s_waitcnt vmcnt(0)')
            if i == 5: self.cond([f's_or_b32 s{s_t}, s{s_l}, s{s_h}', f's_cmp_eq_u32 s{s_t}, 0'], arrive)
            if i == 10: self.cond(l0, init_wait)
            if i + 3 + self.dist <= 15: touchW(i + 3 + self.dist)
            if 6 <= i <= 9: touchO(i - 6)
            if i in (10, 11): a.extend(gather(SA, v_st, s_a, range(4*(i-10), 4*(i-10)+4)))
            if i in (11, 12): self.cond(l01, lambda: a.extend(gather(SC, v_cs, s_b, range(4*(i-11), 4*(i-11)+4))))
            if i == 13: stats_finish()
            if i == 14: self.cond(l01, cs_finish)
            if i in (13, 14): a('s_waitcnt lgkmcnt(0)')
        a(f's_bitcmp1_b32 s{s_l}, 0'); a('s_cbranch_scc1 L_hp_B')
        if self.warm:
            def warm():
                a(f's_mov_b64 s[{sX}:{sX+1}], s[{pBW}:{pBW+1}]'); a(f's_mov_b32 s{sX+2}, {1024*3072*2}')
                a(f'v_lshlrev_b32 v{t0}, 7, v1'); a.extend(sx(s_t, [(2, 24576), (s_h, 12288)]))
                a(f'buffer_load_dword v{vd}, v{t0}, {srd(sX)}, s{s_t} offen')
                a(f's_add_u32 s{s_t}, s{s_t}, 8192'); a('s_mov_b32 exec_hi, 0')
                a(f'buffer_load_dword v{vd}, v{t0}, {srd(sX)}, s{s_t} offen')
                a(f's_mov_b64 s[{sX}:{sX+1}], s[{pBWO}:{pBWO+1}]'); a(f's_mov_b32 s{sX+2}, {1024*1024*2}'); a.extend(sx(s_t, [(2, 8192), (s_h, 4096)]))
                a(f'buffer_load_dword v{vd}, v{t0}, {srd(sX)}, s{s_t} offen')
                a('s_mov_b32 exec_hi, -1')
            self.cond(l0, warm)
        self.reduce_job()
        a('s_branch L_hp_join')
        a.label('L_hp_B')
        a('s_barrier')
        a.label('L_hp_join')
        a(f's_bitcmp0_b32 s{s_l}, 0')
        a(f's_cselect_b64 s[{sW}:{sW+1}], s[{pBW}:{pBW+1}], s[{pAW}:{pAW+1}]')
        a(f's_cselect_b64 s[{sWO}:{sWO+1}], s[{pBWO}:{pBWO+1}], s[{pAWO}:{pAWO+1}]')
        touch_setup()
        a('s_barrier')
        a(f's_cmp_eq_u32 s{s_l}, 3'); a('s_cbranch_scc1 L_fin')
        for st in range(1, 3 + self.dist): touchW(st)
        a(f's_add_u32 s{s_l}, s{s_l}, 1')
        a('s_barrier')
        a('s_branch L_hp_layer')

    def compute(self):
        a = self.a
        one, l16, voffR, voffI, a_tok, a_row, a_t32, a_csr, a_csv = 0, 2, 3, 4, 5, 6, 7, 8, 9
        ax, awq = 10, 12
        l4 = 14; vst = 15
        XR = 16
        ACC = 32
        FX = [128, 144]; FW = [160, 184]
        T = 208
        t0, t1, t2, t3 = T, T+1, T+2, T+3
        s_wm, s_wh, s_rslot, s_delta, s_stg, s_ones = 65, 66, 67, 68, 69, 70
        s_o = 71
        s_ob = 75
        s_obase, s_ooff, s_a, s_b, s_c, s_d, s_e, s_fo, s_fp, s_st = range(77, 87)
        a(f'v_lshrrev_b32 v{t0}, 4, v1')
        a(f'v_and_b32 v{t1}, 15, v1')
        a(f'v_and_b32 v{t2}, 1, v{t0}'); a(f'v_lshrrev_b32 v{t3}, 1, v{t0}'); a(f'v_lshl_add_u32 v{t2}, v{t2}, 1, v{t3}')
        a(f'v_lshlrev_b32 v{voffR}, 11, v{t1}'); a(f'v_lshl_add_u32 v{voffR}, v{t2}, 4, v{voffR}')
        a.extend(sx(s_t, [(s_m, 1 << 18), (s_wave, 1 << 16), (s_g, 128)])); a(f's_add_u32 s{s_t+1}, s{s_t}, 32768')
        self.pointers()
        for tb in range(2):
            for e in range(2): a(f'buffer_load_dwordx4 {vr(XR+8*tb+4*e,4)}, v{voffR}, {srd(sX)}, s{s_t+tb} offen offset:{64*e}')
        a(f's_lshr_b32 s{s_wm}, s{s_wave}, 1'); a(f's_and_b32 s{s_wh}, s{s_wave}, 1')
        a(f'v_mov_b32 v{one}, 1')
        a(f'v_lshl_add_u32 v{voffI}, v{t2}, 4, v{t1}'); a(f'v_lshlrev_b32 v{voffI}, 4, v{voffI}')
        a(f'v_lshlrev_b32 v{l16}, 4, v1'); a(f'v_lshlrev_b32 v{l4}, 2, v1')
        a.extend(sx(s_t, [(s_wm, 256)], P_NM))
        a(f'v_lshl_add_u32 v{a_tok}, v{t1}, 2, s{s_t}')
        a(f'v_lshl_add_u32 v{a_row}, v{t0}, 4, s{s_t}')
        a(f'v_and_b32 v{t3}, 31, v1'); a(f'v_lshl_add_u32 v{a_t32}, v{t3}, 2, s{s_t}')
        a.extend(sx(s_t, [(s_wh, 128)], P_CS))
        a(f'v_lshl_add_u32 v{a_csr}, v{t0}, 4, s{s_t}')
        a(f'v_lshl_add_u32 v{a_csv}, v{t1}, 2, s{s_t}')
        a(f's_mov_b32 s{s_stg}, {STG}'); a(f's_mov_b32 s{s_ones}, 0x3f803f80')
        a(f'v_lshrrev_b32 v{t2}, 1, v{t1}'); a(f'v_xor_b32 v{t2}, v{t2}, v{t0}')
        a.extend(sx(s_t, [(s_wm, 8192)], XOFF)); a(f'v_lshl_add_u32 v{t1}, v{t1}, 7, s{s_t}')
        for s in range(2):
            a(f'v_xor_b32 v{t3}, {4*s}, v{t2}'); a(f'v_lshl_add_u32 v{ax+s}, v{t3}, 4, v{t1}')
        a.extend(sx(s_st, [(s_m, 16384), (s_g, 1024), (s_wave, 256)], WS_ST))

        q = 124
        def stats():
            S = []
            for k in range(8):
                for tb in range(2):
                    r = XR + 8*tb + k
                    S += [f'v_dot2_f32_bf16 v{q+2*tb}, s{s_ones}, v{r}, ' + (f'v{q+2*tb}' if k else '0'),
                          f'v_dot2_f32_bf16 v{q+2*tb+1}, v{r}, v{r}, ' + (f'v{q+2*tb+1}' if k else '0')]
            return S + [sw32(q, q+2), sw32(q+1, q+3), pk('add', q, q, q+2), sw16(q, q+1), f'v_add_f32 v{q}, v{q}, v{q+1}']
        st_store = f'buffer_store_dword v{q}, v{l4}, {srd(sWS)}, s{s_st} offen sc1'
        a('s_waitcnt vmcnt(0)')
        a.extend(stats()); a(st_store)
        FP = T + 4
        for k in range(4): a(f'v_mov_b32 v{FP+k}, -1')
        for l in range(1, 4):
            a(f's_add_u32 s{s_t}, s{s_st}, {l*262144}'); a(f'buffer_store_dword v{FP}, v{l4}, {srd(sWS)}, s{s_t} offen sc1')
        fill = f'buffer_store_dwordx4 {vr(FP,4)}, v{l16}, {srd(sWS)}, s{s_t} offen'
        a.extend(sx(s_t+1, [(s_g, 64), (s_wh, 32), (s_wm, 16), (s_m, 1)]))
        for la in range(2):
            a.extend(sx(s_t, [(s_t+1, 2048)], WS_KVP + la*(1 << 21))); a(fill + ' sc1'); a(fill + ' offset:1024 sc1')
        a('s_mov_b64 exec, 0xff')
        for la in range(2):
            a.extend(sx(s_t, [(s_t+1, 128)], WS_KVF + la*(1 << 17))); a(fill + ' sc1')
        a.extend(sx(s_t+1, [(s_wm, 32), (s_g, 2), (s_wh, 1)]))
        a.extend(sx(s_t, [(s_t+1, 2048), (s_m, 128)], WS_ZP)); a(fill + ' sc1')
        a.extend(sx(s_t, [(s_t+1, 128)], WS_ZF))
        a(f's_cmp_eq_u32 s{s_m}, s{s_g}'); a(f's_cselect_b32 s{s_t}, s{s_t}, {BIG}'); a(fill + ' sc1')
        a('s_mov_b64 exec, -1')
        def acc(b, n): return ACC + 4*(6*b + n)
        env = dict(locals())
        a.label('L_layer')
        a.extend(self.w_frag_addr(awq, s_wh, 0, t0, t1, t2))
        for r in range(0, 96, 2): a(f'v_mov_b64 {vr(ACC+r,2)}, 0')
        a(f's_mov_b32 s{s_rslot}, 0'); a(f's_mov_b32 s{s_i}, 0')
        a.extend(sx(s_t, [(s_l, 1 << 22), (s_m, 1 << 18)], WS_OI))
        a.extend(sx(s_obase, [(s_wave, 1 << 16), (s_t, 1)])); a(f's_lshl_b32 s{s_ooff}, s{s_rot2}, 11')
        a(f's_add_u32 s{s_ob}, s{s_obase}, s{s_ooff}'); a(f's_add_u32 s{s_ob+1}, s{s_ob}, 32768')
        a.extend(sx(s_a, [(s_wm, 1 << 17), (s_g, 2048), (s_wh, 1024), (s_t, 1)]))
        a.extend(sx(s_fp, [(s_l, 8192), (s_m, 256)])); a.extend(sx(s_fo, [(s_g, 16), (s_wave, 4), (s_fp, 1)]))
        a(f's_lshl_b32 s{s_t}, s{s_wm}, 3'); a(f's_add_u32 s{s_fp}, s{s_fp}, s{s_t}')
        a(f's_add_u32 s{s_st}, s{s_st}, 262144')
        a.extend(sx(s_o, [(s_l, 1 << 22), (s_m, 1 << 18), (s_g, 16384), (s_wave, 4096)], WS_XI))
        for k in range(1, 4): a(f's_add_u32 s{s_o+k}, s{s_o}, {1024*k}')
        a(f'v_mov_b32 v{vst}, v{voffI}')
        def last():
            a(f's_mov_b64 s[{sOUT}:{sOUT+1}], s[{pOUT}:{pOUT+1}]'); a(f's_mov_b32 s{sOUT+2}, {2048*1024*2}')
            a.extend(sx(s_o, [(s_m, 1 << 18), (s_wave, 1 << 16), (s_g, 128)]))
            a(f's_add_u32 s{s_o+1}, s{s_o}, 64'); a(f's_add_u32 s{s_o+2}, s{s_o}, 32768'); a(f's_add_u32 s{s_o+3}, s{s_o}, {32768+64}')
            a(f'v_mov_b32 v{vst}, v{voffR}')
        self.cond([f's_cmp_eq_u32 s{s_l}, 3'], last)
        a(f's_bitcmp1_b32 s{s_l}, 0'); a('s_cbranch_scc1 L_preB')
        self.epiA(env, True)
        a('s_branch L_pre_done')
        a.label('L_preB')
        self.epiB(env, True)
        a.label('L_pre_done')
        a('s_barrier')
        self.stamp(1)
        def reads(s, st):
            X = [f'ds_read_b128 {vr(FX[st]+4*b,4)}, v{ax+s} offset:{2048*b}' for b in range(4)]
            W = [[f'ds_read_b64_tr_b16 {vr(FW[st]+4*n+2*t,2)}, v{awq+(n&1)} offset:{(n>>1)*8192+(32*s+4*t)*128}' for t in range(2)] for n in range(6)]
            L = [X[0]] + W[0] + X[1:]
            for n in range(1, 6): L += W[n]
            return L
        def mfmas(st):
            L = []
            for n in range(6):
                for b in range(4):
                    if n < 4: L.append(mf16(acc(b, n), FW[st]+4*n, FX[st]+4*b, acc(b, n)))
                    else: L.append(mf16(acc(b, n), FX[st]+4*b, FW[st]+4*n, acc(b, n)))
            return L
        a.extend(reads(0, 0))
        a('.p2align 6')
        a.label('L_q')
        for s in range(2):
            M = mfmas(s); R = reads(1 - s, 1 - s)
            gaps = [[] for _ in range(24)]
            first = 0
            if s == 1:
                gaps[0] += [f'v_add_u32 v{r}, s{s_delta}, v{r}' for r in (ax, awq)]
                gaps[1] += [f'v_add_u32 v{r}, s{s_delta}, v{r}' for r in (awq+1,)] + ['s_barrier']
                gaps[20] += [f'v_add_u32 v{ax+1}, s{s_delta}, v{ax+1}']
                gaps[22] += [f's_add_u32 s{s_i}, s{s_i}, 1']
                gaps[23] += [f's_cmp_lt_u32 s{s_i}, 16']
                first = 1
            else:
                gaps[18] += [f's_add_u32 s{s_rslot}, s{s_rslot}, 1', f's_cmp_eq_u32 s{s_rslot}, 3']
                gaps[19] += [f's_cselect_b32 s{s_delta}, {-2*STG}, s{s_stg}', f's_cselect_b32 s{s_rslot}, 0, s{s_rslot}']
            for k, r in enumerate(R): gaps[first + k].append(r)
            if self.prof == 5 and s == 0:
                a('s_memtime s[88:89]'); a(f's_lshl_b32 m0, s{s_l}, 4'); a(f's_add_u32 m0, m0, s{s_i}')
                gaps[0].insert(0, 'v_writelane_b32 v255, s88, m0')
            a('s_waitcnt vmcnt(0) lgkmcnt(0)' if s == 1 else 's_waitcnt lgkmcnt(0)')
            for k in range(24):
                a(M[k]); a.extend(gaps[k])
        a('s_cbranch_scc1 L_q')
        a('s_waitcnt lgkmcnt(0)')
        self.stamp(2)
        a(f's_bitcmp1_b32 s{s_l}, 0'); a('s_cbranch_scc1 L_epiB')
        self.epiA(env, False)
        a('s_branch L_ophase')
        a.label('L_epiB')
        self.epiB(env, False)
        a.label('L_ophase')
        PD = self.pd; NR = PD + 1
        OA, OW, awo, vf, RING = 128, [160, 176], 192, 196, 32
        assert RING + 8*NR <= q
        u0, u1, u2 = 197, 198, 199
        a(f'v_mov_b32 v{u0}, {P_MODE}'); a(f'ds_read_b32 v{u0}, v{u0}')
        a.extend(self.flag_addr(vf, u1))
        def oacc(tb, nb): return OA + 16*tb + 4*nb
        for k in range(4):
            a(sw16(XR+4*k, XR+4*k+2)); a(sw16(XR+4*k+1, XR+4*k+3))
        a('s_waitcnt lgkmcnt(0)'); a(f'v_readfirstlane_b32 s{s_fast}, v{u0}')
        for r in range(16):
            a(f'v_lshlrev_b32 v{OA+2*r}, 16, v{XR+r}'); a(f'v_and_b32 v{OA+2*r+1}, 0xffff0000, v{XR+r}')
        a.extend(self.w_frag_addr(awo, None, L_WO, u0, u1, u2, nb_list=(0, 1, 2, 3)))
        def oreads(h):
            return [f'ds_read_b64_tr_b16 {vr(OW[h&1]+4*nb+2*t,2)}, v{awo+nb} offset:{(h&15)*4096+512*t}' for nb in range(4) for t in range(2)]
        a.extend(oreads(0))
        a('s_waitcnt vmcnt(0) lgkmcnt(0)')
        self.stamp(8)
        self.flag_set(s_fo, one)
        self.flag_wait(s_fp, vf, u0, 4)
        self.stamp(9)
        def oload(h, tb):
            L = [f'buffer_load_dwordx4 {vr(RING+8*(h%NR)+4*tb,4)}, v{l16}, {srd(sWS)}, s{s_ob+tb} offen offset:{1024*(h&3)} sc1']
            if h & 3 == 3 and h < 31:
                if tb == 0: L += [f's_add_u32 s{s_ooff}, s{s_ooff}, 4096', f's_and_b32 s{s_ooff}, s{s_ooff}, 0x7fff', f's_add_u32 s{s_ob}, s{s_obase}, s{s_ooff}']
                else: L += [f's_add_u32 s{s_ob+1}, s{s_ob}, 32768']
            return L
        S = []
        for h in range(PD): S += oload(h, 0) + oload(h, 1)
        for h in range(32):
            R = oreads(h+1) if h < 31 else []
            if h == 15: S += [f'v_add_u32 v{awo+nb}, 0x10000, v{awo+nb}' for nb in range(4)]
            k = 0
            for nb in range(4):
                for tb in range(2):
                    S.append(mf16(oacc(tb, nb), OW[h&1]+4*nb, RING+8*(h%NR)+4*tb, oacc(tb, nb)))
                    if R: S.append(R[k])
                    for j in range(2):
                        if k == self.opos[j] and h + PD < 32: S += oload(h+PD, j)
                    k += 1
            if h == self.bm: S.append('s_barrier')
        self.aw(S)
        self.stamp(10)
        S = []
        for k4 in (0, 2, 1, 3):
            for k in range(4): S.append(cvt(XR+4*k4+k, OA+8*k4+2*k, OA+8*k4+2*k+1))
            S += [sw16(XR+4*k4, XR+4*k4+2), sw16(XR+4*k4+1, XR+4*k4+3),
                  f'buffer_store_dwordx4 {vr(XR+4*k4,4)}, v{vst}, {srd(sOUT)}, s{s_o+k4} offen sc1']
        self.sw(S)
        a(f's_cmp_eq_u32 s{s_l}, 3'); a('s_cbranch_scc1 L_fin')
        a.extend(stats())
        a(f's_add_u32 s{s_fo}, s{s_fo}, 4096')
        a('s_waitcnt vmcnt(0)')
        self.stamp(11)
        self.flag_set(s_fo, one)
        a(st_store)
        a.extend(sx(s_t, [(s_wm, 8192)], XOFF))
        a(f'v_add_u32 v{ax}, s{s_t}, v{l16}'); a(f'v_add_u32 v{ax+1}, 1024, v{ax}')
        a(f's_add_u32 s{s_l}, s{s_l}, 1')
        a('s_branch L_layer')

    def epiA(self, E, pre):
        a = self.a
        acc = E['acc']; a_tok, a_row, a_t32, a_csr, a_csv, l16, l4 = (E[k] for k in ('a_tok', 'a_row', 'a_t32', 'a_csr', 'a_csv', 'l16', 'l4'))
        s_wm, s_wh, s_a, s_b, s_c, s_d, s_e = (E[k] for k in ('s_wm', 's_wh', 's_a', 's_b', 's_c', 's_d', 's_e'))
        PK = [128, 144]; EP, KV0, ZA, NR = 160, 176, 192, 208
        wphi, nml, c32, csv = 224, 232, 236, 238
        SEL = [240, 244]
        a_phi, a_w, a_r0, a_r1, a_z, x_w, x_r = range(248, 255)
        csk = EP; csq = NR
        nmr = [KV0, KV0+8, NR, NR+8]
        if pre:
            u0, u1, u2, u3, u4 = range(208, 213)
            S = [f'v_lshrrev_b32 v{u0}, 5, v1', f'v_bfe_u32 v{u1}, v1, 2, 2', f'v_lshl_add_u32 v{u1}, v{u0}, 3, v{u1}',
                 f'v_bfe_u32 v{u2}, v1, 4, 1', f'v_and_b32 v{u3}, 3, v1', f'v_lshlrev_b32 v{u4}, 3, v{u3}', f'v_lshl_add_u32 v{u2}, v{u2}, 5, v{u4}']
            S += sx(s_t, [(s_wh, 2048)], P_PHI) + [f'v_lshl_add_u32 v{u4}, v{u1}, 6, v{u2}', f'v_add_u32 v{a_phi}, s{s_t}, v{u4}']
            S += [f's_mul_i32 s{s_t+2}, s{s_wave}, {SCR}',
                  f'v_mul_u32_u24 v{u1}, 136, v{u1}', f'v_add3_u32 v{u1}, v{u1}, v{u2}, s{s_t+2}',
                  f's_lshl_b32 s{s_t+1}, s{s_wm}, 6', f'v_add_u32 v{a_r0}, s{s_t+1}, v{u1}',
                  f's_xor_b32 s{s_t+3}, s{s_t+1}, 64', f'v_add_u32 v{a_r1}, s{s_t+3}, v{u1}',
                  f'v_and_b32 v{u4}, 31, v1', f'v_mul_u32_u24 v{u4}, 136, v{u4}', f'v_lshl_add_u32 v{u4}, v{u0}, 3, v{u4}', f'v_add_u32 v{a_w}, s{s_t+2}, v{u4}',
                  f'v_add_u32 v{x_w}, s{s_t+2}, v{l16}', f's_xor_b32 s{s_t}, s{s_wave}, 2', f's_mul_i32 s{s_t}, s{s_t}, {SCR}', f'v_add_u32 v{x_r}, s{s_t}, v{l16}']
            S += [f'v_mov_b32 v{u4}, 0x3f803f80']
            for k in range(2):
                S += [f'v_cmp_eq_u32 vcc, {k}, v{u3}', f'v_cndmask_b32 v{SEL[k]}, 0, v{u4}, vcc', f'v_mov_b32 v{SEL[k]+1}, v{SEL[k]}',
                      f'v_mov_b64 {vr(SEL[k]+2,2)}, {vr(SEL[k],2)}']
            S += [f'v_and_b32 v{u0}, 18, v1', f'v_lshlrev_b32 v{u0}, 1, v{u0}', f'v_and_or_b32 v{u0}, v1, 8, v{u0}', f'v_and_b32 v{u1}, 4, v1',
                  f'v_lshl_or_b32 v{u0}, v{u1}, 2, v{u0}', f'v_and_b32 v{u1}, 33, v1', f'v_lshl_or_b32 v{a_z}, v{u1}, 25, v{u0}',
                  f'v_lshl_or_b32 v{a_z}, v{u1}, 30, v{a_z}']
            S += sx(s_t, [(s_l, 16), (s_g, 2), (s_wh, 1)])
            S += sx(s_d, [(s_t, 65536), (s_wm, 32768), (s_m, 2048)], WS_KVP) + sx(s_e, [(s_t, 2048), (s_m, 128), (s_wm, 64)], WS_ZP)
            S += sx(s_b, [(s_t, 128)], WS_ZF) + sx(s_c, [(s_t, 4096)], WS_KVF)
            a.extend(S)
            return
        S = []
        for b in range(4): S.append(f'ds_read_b32 v{nml+b}, v{a_tok} offset:{64*b}')
        for nb in range(2): S.append(f'ds_read_b128 {vr(csk+4*nb,4)}, v{a_csr} offset:{256+64*nb}')
        for u in range(2):
            for t in range(2): S.append(f'ds_read_b64_tr_b16 {vr(wphi+4*u+2*t,2)}, v{a_phi} offset:{(16*t+4*u)*64}')
        for nb in range(2): S.append(f'ds_read_b32 v{csv+nb}, v{a_csv} offset:{512+64*nb}')
        for b in range(4):
            S.append(f'ds_read_b128 {vr(nmr[b],4)}, v{a_row} offset:{64*b}')
            S.append(f'ds_read_b128 {vr(nmr[b]+4,4)}, v{a_row} offset:{512+64*b}')
            if b == 0:
                for Tt in range(2): S.append(f'ds_read_b32 v{c32+Tt}, v{a_t32} offset:{512+128*Tt}')
        def qk_prep(n0, cs):
            L = []
            for b in range(4):
                for k in range(4): L.append(pk('fma', acc(b, n0)+2*k, cs+2*k, ('b', nml+b), acc(b, n0)+2*k))
                for k in range(4): L.append(cvt(acc(b, n0)+k, acc(b, n0)+2*k, acc(b, n0)+2*k+1))
            for Tt in range(2):
                for k in range(4): L.append(sw16(acc(2*Tt, n0)+k, acc(2*Tt+1, n0)+k))
                L += [mf32(PK[Tt], wphi, acc(2*Tt, n0)), mf32(PK[Tt], wphi+4, acc(2*Tt+1, n0), PK[Tt])]
            return L
        S += qk_prep(2, csk)
        for Tt in range(2): S.append(f'v_mul_f32 v{c32+Tt}, {f2u(LOG2E)}, v{c32+Tt}')
        for b in range(4):
            r = acc(b, 4)
            for nb in range(2):
                for p in range(2): S.append(pk('fma', r+4*nb+2*p, nmr[b]+2*p, ('b', csv+nb), r+4*nb+2*p))
            for nb in range(2):
                for p in range(2): S.append(pk('mul', r+4*nb+2*p, r+4*nb+2*p, nmr[b]+4+2*p))
            for k in range(4): S.append(cvt(r+k, r+2*k, r+2*k+1))
            S += [sw16(r, r+2), sw16(r+1, r+3)]
        def softmax(Tt):
            x = PK[Tt]; c = c32 + Tt
            ta, tb = ((acc(2, 3), acc(3, 3)), (acc(2, 2), acc(3, 2)))[Tt]
            mx, mn, bp, bm = ta, ta+1, tb, tb+1
            L = [f'v_max3_f32 v{mx}, v{x}, v{x+1}, v{x+2}', f'v_max3_f32 v{mn}, -v{x}, -v{x+1}, -v{x+2}']
            for k in range(3, 15, 2):
                L += [f'v_max3_f32 v{mx}, v{mx}, v{x+k}, v{x+k+1}', f'v_max3_f32 v{mn}, v{mn}, -v{x+k}, -v{x+k+1}']
            L += [f'v_max_f32 v{mx}, v{mx}, v{x+15}', f'v_max_f32 v{mn}, v{mn}, -v{x+15}']
            L += [sw32(mx, mn), f'v_max_f32 v{mx}, v{mx}, v{mn}', f'v_mul_f32 v{bm}, -v{mx}, v{c}', f'v_mov_b32 v{bp}, v{bm}', sw32(bp, bm)]
            for k in range(0, 16, 2): L.append(pk('fma', EP+k, x+k, ('b', c), ('b', bp)))
            for k in range(0, 16, 2): L.append(pk('fma', x+k, x+k, ('b', c), ('b', bm), neg=[1, 0, 0]))
            for k in range(16): L.append(f'v_exp_f32 v{EP+k}, v{EP+k}')
            for k in range(16): L.append(f'v_exp_f32 v{x+k}, v{x+k}')
            sp, sm = ta, ta+2
            r1, r2 = tb+2, tb+3
            L += [pk('add', sp, EP, EP+2), pk('add', sm, x, x+2)]
            for k in range(4, 16, 2): L += [pk('add', sp, sp, EP+k), pk('add', sm, sm, x+k)]
            L += [f'v_add_f32 v{sp}, v{sp}, v{sp+1}', f'v_add_f32 v{sm}, v{sm}, v{sm+1}', sw32(sp, sm), f'v_add_f32 v{sp}, v{sp}, v{sm}',
                  f'v_rcp_f32 v{r2}, v{sp}', f'v_mov_b32 v{r1}, v{r2}', sw32(r1, r2)]
            for k in range(0, 16, 2): L.append(pk('mul', x+k, x+k, ('b', r2)))
            for k in range(8): L.append(cvt(x+k, x+2*k, x+2*k+1))
            for k in range(0, 16, 2): L.append(pk('mul', EP+k, EP+k, ('b', r1)))
            for k in range(8): L.append(cvt(x+8+k, EP+2*k, EP+2*k+1))
            return L
        FR = [[acc(0, 2), acc(0, 3)], [acc(1, 2), acc(1, 3)]]
        def to_lds(x):
            return [f'ds_write_b64 v{a_w}, {vr(x+8*(1-sg)+2*j,2)} offset:{64*sg+16*j}' for sg in (1, 0) for j in range(4)]
        def frags():
            return [f'ds_read_b64_tr_b16 {vr(FR[k][u]+2*tt,2)}, v{(a_r0, a_r1)[k]} offset:{(16*u+4*tt)*136}' for k in (1, 0) for u in range(2) for tt in range(2)]
        KV1 = PK[0]
        def kvm(Tt):
            L = []
            for k, K in ((1, KV1), (0, KV0)):
                for u in range(2): L.append(mf32(K, FR[k][u], acc(2*Tt+u, 4), None if (Tt == 0 and u == 0) else K))
                for u in range(2): L.append(mf32(ZA, SEL[k], FR[k][u], None if (Tt == 0 and u == 0 and k == 1) else ZA))
            return L
        for Tt in range(2): S += softmax(Tt) + to_lds(PK[Tt]) + frags() + kvm(Tt)
        for k in range(4): S.append(f'ds_write_b128 v{x_w}, {vr(KV1+4*k,4)} offset:{1024*k}')
        S.append(f'ds_write_b32 v{x_w}, v{ZA+1} offset:4096')
        S += ['s_waitcnt lgkmcnt(0)', 's_barrier']
        for k in range(4): S.append(f'ds_read_b128 {vr(EP+4*k,4)}, v{x_r} offset:{1024*k}')
        S.append(f'ds_read_b32 v{ZA+2}, v{x_r} offset:4096')
        for u in range(2):
            for k in range(4): S.append(pk('add', KV0+8*u+2*k, KV0+8*u+2*k, EP+8*u+2*k))
            for k in range(4): S.append(cvt(KV0+8*u+k, KV0+8*u+2*k, KV0+8*u+2*k+1))
            S.append(f'buffer_store_dwordx4 {vr(KV0+8*u,4)}, v{l16}, {srd(sWS)}, s{s_d} offen offset:{1024*u} sc1')
        S += [f'v_add_f32 v{ZA}, v{ZA}, v{ZA+2}', f'v_mov_b32_dpp v{ZA+3}, v{ZA} quad_perm:[1,0,3,2] row_mask:0xf bank_mask:0xf', cvt(ZA, ZA, ZA+3),
              f'buffer_store_dword v{ZA}, v{a_z}, {srd(sWS)}, s{s_e} offen sc1']
        self.sw(S, name='A k-part'); self.stamp(3); S = []
        u3, u4 = ZA + 4, ZA + 5
        for nb in range(2): S.append(f'ds_read_b128 {vr(csq+4*nb,4)}, v{a_csr} offset:{64*nb}')
        S += qk_prep(0, csq) + softmax(0) + softmax(1)
        S += [f'v_lshrrev_b32 v{u3}, 5, v1', f'v_and_b32 v{u4}, 1, v1', f'v_lshlrev_b32 v{u4}, 6, v{u4}', f'v_lshl_add_u32 v{a_z}, v{u3}, 4, v{u4}',
              f'v_bfe_u32 v{u4}, v1, 4, 1', f'v_lshlrev_b32 v{u4}, 15, v{u4}', f'v_lshl_add_u32 v{u4}, v{u3}, 8, v{u4}',
              f'v_and_b32 v{u3}, 15, v1', f'v_lshl_add_u32 v{a_w}, v{u3}, 4, v{u4}', f's_add_u32 s{s_d}, s{s_a}, 65536']
        self.sw(S, name='A q-part'); S = []
        self.stamp(4)
        a('s_barrier')
        self.stamp(7)
        KF = KV0; ZF = EP
        self.ll_wait([f'buffer_load_dwordx4 {vr(ZF+4*u,4)}, v{a_z}, {srd(sWS)}, s{s_b} offen offset:{32*u} sc1' for u in range(2)] +
                     [f'buffer_load_dwordx4 {vr(KF+4*k,4)}, v{l16}, {srd(sWS)}, s{s_c} offen offset:{1024*k} sc1' for k in range(4)],
                     list(range(ZF, ZF+8)) + list(range(KF, KF+16)), u3, u4, 5)
        self.stamp(5)
        ACC = E['ACC']
        for Tt in range(2):
            N, DP, DM = ACC + 48*Tt, ACC + 48*Tt + 16, ACC + 48*Tt + 32
            x = PK[Tt]
            S += [mf32(DP, ZF, x+8), mf32(DP, ZF+4, x+12, DP), mf32(DM, ZF, x), mf32(DM, ZF+4, x+4, DM),
                  mf32(N, KF, x+8), mf32(N, KF+4, x+12, N), mf32(N, KF+8, x, N), mf32(N, KF+12, x+4, N)]
            S += [f'v_add_f32 v{DP}, v{DP}, v{DM+1}', f'v_add_f32 v{DP}, {f2u(1e-6)}, v{DP}', f'v_rcp_f32 v{DP}, v{DP}']
            for p in range(2):
                for jj in range(2):
                    j = p + 2*jj
                    for k in range(2):
                        r = N + 4*j + 2*k
                        if Tt == 0: S += [f'v_mul_f32 v{r}, v{DP}, v{r}', f'v_mul_f32 v{r+1}, v{DP}, v{r+1}']
                        else: S.append(pk('mul', r, r, ('b', DP)))
                        S.append(cvt(DM+4+4*p+2*jj+k, r, r+1))
                S.append(f'buffer_store_dwordx4 {vr(DM+4+4*p,4)}, v{a_w}, {srd(sWS)}, s{(s_a, s_d)[Tt]} offen offset:{512*p} sc1')
        a(S.pop(0))
        a('s_barrier')
        self.sw(S, name='A finish')
        self.stamp(6)

    def epiB(self, E, pre):
        a = self.a
        acc = E['acc']; a_tok, a_row, a_csr, a_csv, l16 = (E[k] for k in ('a_tok', 'a_row', 'a_csr', 'a_csv', 'l16'))
        s_wm, s_wh, s_a, s_b, s_c, s_d, s_e = (E[k] for k in ('s_wm', 's_wh', 's_a', 's_b', 's_c', 's_d', 's_e'))
        BI, BI0, MK, a_h = 236, 244, 248, 252
        if pre:
            t1, t2, t3 = 208, 209, 210
            S = [f'v_and_b32 v{t1}, 15, v1', f'v_lshrrev_b32 v{t2}, 4, v1', f'v_lshlrev_b32 v{t2}, 2, v{t2}', f'v_sub_u32 v{t1}, v{t1}, v{t2}',
                 f'v_mov_b32 v{t3}, {f2u(-1e30)}']
            for blk in range(2):
                for i in range(4):
                    S += [f'v_add_u32 v{t2}, {(16 if blk == 0 else 0) - i}, v{t1}', f'v_and_b32 v{t2}, -15, v{t2}', f'v_cmp_eq_u32 vcc, 0, v{t2}',
                          f'v_cndmask_b32 v{BI+4*blk+i}, v{t3}, 0, vcc']
                    if i % 2 == 0: S += [f'v_cndmask_b32 v{MK+2*blk+i//2}, 0, -1, vcc', f'v_lshrrev_b32 v{MK+2*blk+i//2}, 16, v{MK+2*blk+i//2}']
                    else: S += [f'v_cndmask_b32 v{t2}, 0, -1, vcc', f'v_lshl_or_b32 v{MK+2*blk+i//2}, v{t2}, 16, v{MK+2*blk+i//2}']
            S += sx(s_b, [(s_l, 1 << 19), (s_m, 1 << 16), (s_g, 4096), (s_wh, 2048)], WS_HALO - (1 << 19))
            S += [f's_add_u32 s{s_c}, s{s_b}, 65536', f's_cmp_eq_u32 s{s_m}, 15', f's_cselect_b32 s{s_c}, {BIG}, s{s_c}',
                  f's_cmp_eq_u32 s{s_wm}, 0', f's_cselect_b32 s{s_c}, {BIG}, s{s_c}',
                  f's_or_b32 s{s_t}, s{s_m}, s{s_wm}', f's_cselect_b32 s{s_b}, s{s_b}, {BIG}', 's_cselect_b64 vcc, -1, 0']
            for i in range(4): S.append(f'v_cndmask_b32 v{BI0+i}, v{t3}, v{BI+i}, vcc')
            S += [f's_lshl_b32 s{s_t}, s{s_wave}, 11', f'v_add_u32 v{a_h}, s{s_t}, v{l16}']
            S += [f's_add_u32 s{s_d}, s{s_a}, 65536']
            a.extend(S)
            return
        V = Alloc('v', 128, 236)
        nmr = V.get(16, 4); rsr = V.get(16, 4)
        nml = V.get(4, 4); rsl = V.get(4, 4); csq = V.get(8, 4); csk = V.get(8, 4)
        VP = [V.get(12, 4), V.get(12, 4)]
        HB = V.get(8, 4)
        U = V.get(8, 4); M = V.get(4, 4); csv = V.get(2, 2); t1 = V.get(); t2 = V.get()
        S = []
        for b in (3, 0, 1, 2):
            S += [f'ds_read_b32 v{nml+b}, v{a_tok} offset:{64*b}', f'ds_read_b32 v{rsl+b}, v{a_tok} offset:{512+64*b}']
            if b == 3:
                for nb in range(2): S.append(f'ds_read_b128 {vr(csk+4*nb,4)}, v{a_csr} offset:{768+256+64*nb}')
                for nb in range(2): S.append(f'ds_read_b32 v{csv+nb}, v{a_csv} offset:{768+512+64*nb}')
            S += [f'ds_read_b128 {vr(nmr+4*b,4)}, v{a_row} offset:{64*b}', f'ds_read_b128 {vr(rsr+4*b,4)}, v{a_row} offset:{512+64*b}']
        for nb in range(2): S.append(f'ds_read_b128 {vr(csq+4*nb,4)}, v{a_csr} offset:{768+64*nb}')
        def kprep(b):
            r = acc(b, 2); L = []
            for k in range(4): L.append(pk('fma', r+2*k, csk+2*k, ('b', nml+b), r+2*k))
            for k in range(4): L.append(pk('mul', r+2*k, r+2*k, ('b', rsl+b)))
            for k in range(4): L.append(cvt(r+k, r+2*k, r+2*k+1))
            return L
        def vprep(b):
            r = acc(b, 4); L = []
            for nb in range(2):
                for p in range(2): L.append(pk('fma', r+4*nb+2*p, nmr+4*b+2*p, ('b', csv+nb), r+4*nb+2*p))
            for nb in range(2):
                for p in range(2): L.append(pk('mul', r+4*nb+2*p, r+4*nb+2*p, rsr+4*b+2*p))
            for nb in range(2):
                for p in range(2):
                    if b == 3: L.append(cvt(acc(3, 3)+2*nb+p, r+4*nb+2*p, r+4*nb+2*p+1))
                    else: L.append(cvt(VP[nb]+2+2*b+p, r+4*nb+2*p, r+4*nb+2*p+1))
            return L
        def qprep(b):
            r = acc(b, 0); L = []
            for k in range(4): L.append(pk('fma', r+2*k, csq+2*k, ('b', nml+b), r+2*k))
            for k in range(4): L.append(cvt(r+k, r+2*k, r+2*k+1))
            return L
        S += kprep(3) + vprep(3)
        for k in range(2): S.append(f'buffer_store_dwordx4 {vr(acc(3,2)+4*k,4)}, v{l16}, {srd(sWS)}, s{s_c} offen offset:{1024*k} sc1')
        for k in range(2): S.append(f'ds_write_b128 v{a_h}, {vr(acc(3,2)+4*k,4)} offset:{4096+1024*k}')
        for nb in range(2): S.append(f'v_mov_b64 {vr(VP[nb]+8,2)}, {vr(acc(3,3)+2*nb,2)}')
        for b in range(3): S += kprep(b) + vprep(b)
        for b in range(4): S += qprep(b)
        for b in range(4): S.append(f'v_mul_f32 v{rsl+b}, {f2u(LOG2E * 32 ** -0.5)}, v{rsl+b}')
        SS = nmr
        assert rsr == nmr + 16
        def logits(b):
            s = SS + 8*b
            L = [mf16(s, HB if b == 0 else acc(b-1, 2), acc(b, 0), BI0 if b == 0 else BI), mf16(s+4, acc(b, 2), acc(b, 0), BI+4)]
            for p in range(2):
                L += [f'v_max3_f32 v{U+2*b+p}, v{s+2*p}, v{s+2*p+1}, v{s+4+2*p}', f'v_max_f32 v{U+2*b+p}, v{U+2*b+p}, v{s+5+2*p}',
                      f'v_mul_f32 v{U+2*b+p}, v{rsl+b}, v{U+2*b+p}']
            L.append(f'v_max_f32 v{M+b}, v{U+2*b}, v{U+2*b+1}')
            return L
        for b in (1, 2, 3): S += logits(b)
        self.sw(S, crit=lambda t: t.startswith('buffer_store'), name='B prep'); S = []
        a('s_waitcnt lgkmcnt(0)'); a('s_barrier')
        self.stamp(3)
        L1, L3 = self.lab('hg'), self.lab('hd')
        a(f's_cmp_eq_u32 s{s_wm}, 0'); a(f's_cbranch_scc1 {L1}')
        for k in range(2): a(f'ds_read_b128 {vr(HB+4*k,4)}, v{a_h} offset:{1024*k}')
        a('s_waitcnt lgkmcnt(0)')
        a(f's_branch {L3}')
        a.label(L1)
        self.ll_wait([f'buffer_load_dwordx4 {vr(HB+4*k,4)}, v{l16}, {srd(sWS)}, s{s_b} offen offset:{1024*k} sc1' for k in range(2)],
                     list(range(HB, HB+8)), t1, t2, 0)
        a.label(L3)
        self.stamp(4)
        S += logits(0)
        for nb in range(2): S.append(f'v_mov_b64 {vr(VP[nb],2)}, {vr(HB+4+2*nb,2)}')
        def allred(op, mid):
            L = [sw32(M, M+2), sw32(M+1, M+3), f'{op} v{M}, v{M}, v{M+2}', f'{op} v{M+1}, v{M+1}, v{M+3}', sw16(M, M+1), f'{op} v{M+1}, v{M}, v{M+1}']
            L += mid
            L += [f'v_mov_b32 v{M}, v{M+1}', sw16(M, M+1), f'v_mov_b64 {vr(M+2,2)}, {vr(M,2)}', sw32(M, M+2), sw32(M+1, M+3)]
            return L
        S += allred('v_max_f32', [])
        for b in range(4): S.append(pk('add', U+2*b, U+2*b, ('b', M+b), neg=[0, 1]))
        for k in range(8): S.append(f'v_exp_f32 v{U+k}, v{U+k}')
        for b in range(4): S.append(f'v_add_f32 v{M+b}, v{U+2*b}, v{U+2*b+1}')
        S += allred('v_add_f32', [f'v_rcp_f32 v{M+1}, v{M+1}'])
        for b in range(4): S.append(pk('mul', U+2*b, U+2*b, ('b', M+b)))
        for b in range(4):
            P = SS + 8*b; O = acc(b, 4)
            for p in range(2): S.append(cvt(U+2*b+p, U+2*b+p, U+2*b+p))
            for blk in range(2):
                for p in range(2): S.append(f'v_and_b32 v{P+2*blk+p}, v{U+2*b+p}, v{MK+2*blk+p}')
            for db in range(2): S.append(mf16(O+4*db, VP[db]+2*b, P))
        S += [f's_add_u32 s{s_b}, s{s_a}, 32768', f's_add_u32 s{s_c}, s{s_d}, 32768']
        for b in range(4):
            O = acc(b, 4)
            for k in range(4): S.append(cvt(O+k, O+2*k, O+2*k+1))
            S.append(f'buffer_store_dwordx4 {vr(O,4)}, v{l16}, {srd(sWS)}, s{(s_a, s_b, s_d, s_c)[b]} offen sc1')
        self.sw(S, name='B finish')
        a('s_barrier')
        self.stamp(6)

    def build(self):
        a = self.a
        self.prologue()
        self.compute()
        self.loader()
        self.helper()
        a.label('L_fin')
        self.stamp(15)
        self.stamp_out()
        a('s_waitcnt vmcnt(0)')
        a.label('L_end')
        a('s_endpgm')
        a.pad()
        assert a.maxreg('v') <= 255 and a.maxreg('s') < 96
        return a.text()


def generate(listform=False, **kw):
    body = Gen(**kw).build()
    ref = open('interleave_layers__linear_kernel_hedgehog__sliding_local_dilated__prompt.s.ref').read() if not listform else ''
    head = ''.join(l + '\n' for l in ref.split('\n') if l.startswith(';') and '@launch' not in l)
    if listform: head += f'; @launch kernel={KNAME} grid=(256,1,1) block=(512,1,1) lds={LDS_BYTES}\n'
    else: head += f'; @launch grid=(256,1,1) block=(512,1,1) lds={LDS_BYTES}\n'
    return head + '.amdgcn_target "amdgcn-amd-amdhsa--gfx950"\n' + kernel_head(KNAME) + body + kernel_desc(KNAME, 256, 96, 256)

if __name__ == '__main__':
    kw = eval(sys.argv[2]) if len(sys.argv) > 2 else {}
    open(sys.argv[1], 'w').write(generate(**kw))
```

```python
import sys, struct
sys.path.insert(0, 'work')
from asmlib import *

KNAME = 'interleave_layers__linear_kernel_hedgehog__sliding_local_dilated__prompt_kernel'

WS_CTR, WS_STAMP, WS_ST, WS_CS = 0x0, 0x100000, 0x200000, 0x300000
WS_HALO, WS_KVF, WS_ZP, WS_ZF, WS_KVP = 0x400000, 0x600000, 0x680000, 0x6C0000, 0x800000
WS_RF = 0x700000
WS_XI, WS_OI, WS_END = 0xC00000, 0x1800000, 0x2800000
BIG = 0x40000000
STG = 40960
XOFF = 24576
L_WO = 24576
L_SPARE = 3 * STG
L_P = 155648
P_NM, P_RS, P_CS, P_MODE, P_CNT, P_PHI = L_P, L_P + 512, L_P + 1024, L_P + 2816, L_P + 2832, L_P + 3072
LDS_BYTES = 163840
SCR = 5120
LOG2E = 1.4426950408889634
def f2u(x): return '0x%08x' % struct.unpack('<I', struct.pack('<f', x))[0]

s_fast = 3
pAX, pAW, pPHI, pAWO, pBW, pBWO, pOUT, pDBG, pWS = 4, 6, 8, 10, 14, 16, 18, 20, 22
sWS, sX, sW, sWO, sOUT, sDBG = 24, 28, 32, 36, 40, 44
s_m, s_g, s_wave, s_l = 48, 49, 50, 51
s_t = 52
s_cnt, s_x = 60, 61
s_i = 62
s_stamp = 63
s_rot = 64
s_rot2 = 95
s_ft, s_fn, s_fd = 90, 91, 92
def srd(b): return 's[%d:%d]' % (b, b + 3)


def sx(d, terms, const=0):
    L = []
    for n, (r, k) in enumerate([t for t in terms if t[1]]):
        t = d if n == 0 else s_x
        if k == 1 and n: t = r
        elif k == 1: L.append(f's_mov_b32 s{t}, s{r}')
        elif k > 0 and k & (k - 1) == 0: L.append(f's_lshl_b32 s{t}, s{r}, {k.bit_length()-1}')
        else: L.append(f's_mul_i32 s{t}, s{r}, {k}')
        if n: L.append(f's_add_u32 s{d}, s{d}, s{t}')
    if const: L.append(f's_add_u32 s{d}, s{d}, {const:#x}' if const > 0 else f's_sub_u32 s{d}, s{d}, {-const:#x}')
    return L

def pkop(r):
    if isinstance(r, tuple):
        return vr(r[1] & ~1, 2), r[1] & 1, r[1] & 1
    assert r % 2 == 0
    return vr(r, 2), 0, 1
def pk(op, d, *src, neg=None):
    o = [pkop(s) for s in src]
    t = 'v_pk_%s_f32 %s, %s' % (op, vr(d, 2), ', '.join(x[0] for x in o))
    lo = [x[1] for x in o]; hi = [x[2] for x in o]
    if any(lo): t += ' op_sel:[%s]' % ','.join(map(str, lo))
    if not all(hi): t += ' op_sel_hi:[%s]' % ','.join(map(str, hi))
    if neg: t += ' neg_lo:[%s] neg_hi:[%s]' % (','.join(map(str, neg)), ','.join(map(str, neg)))
    return t
def cvt(d, a, b): return f'v_cvt_pk_bf16_f32 v{d}, v{a}, v{b}'
def sw16(a, b): return f'v_permlane16_swap_b32 v{a}, v{b}'
def sw32(a, b): return f'v_permlane32_swap_b32 v{a}, v{b}'
def mf16(d, A, B, C=None): return f'v_mfma_f32_16x16x32_bf16 {vr(d,4)}, {vr(A,4)}, {vr(B,4)}, ' + (vr(C, 4) if C is not None else '0')
def mf32(d, A, B, C=None): return f'v_mfma_f32_32x32x16_bf16 {vr(d,16)}, {vr(A,4)}, {vr(B,4)}, ' + (vr(C, 16) if C is not None else '0')


class Gen:
    def __init__(self, prof=0, limit=40000, dist=2, touch=1, bm=27, local=1, pd=5, sch=1, hprio=2, opos=(1, 5), warm=1, nap=4):
        self.a = Asm()
        assert bm >= 16
        self.__dict__.update(prof=prof, limit=limit, dist=dist, touch=touch, bm=bm, local=local, pd=pd, sch=sch, hprio=hprio, opos=opos, warm=warm, nap=nap)
        self.nlab = 0

    def lab(self, p):
        self.nlab += 1
        return 'L_%s_%d' % (p, self.nlab)

    def aw(self, L):
        self.a.extend(autowait(L))
    def sw(self, L, crit=None, name=''):
        if self.sch:
            L = sched(L, crit)
            if name and __name__ == '__main__': print('sched', name, len(L), 'instructions, about', sched.last_estimate, 'cycles', file=sys.stderr)
        self.a.extend(autowait(L))

    def cond(self, test, body):
        L = self.lab('skip')
        self.a.extend(test); self.a(f's_cbranch_scc0 {L}')
        body()
        self.a.label(L)

    def spin(self, issue, check, vt, tag, pre=False):
        a = self.a
        L, C, D = self.lab('spin'), self.lab('chk'), self.lab('done')
        a(f's_mov_b32 s{s_cnt}, 0')
        if pre:
            a(f's_branch {C}')
            a.label(L); a.extend(issue); a('s_waitcnt vmcnt(0)')
            a.label(C); a.extend(check)
        else:
            a.label(L); self.aw(list(issue) + list(check))
        a('s_cmp_eq_u64 vcc, 0'); a(f's_cbranch_scc1 {D}')
        a(f's_add_u32 s{s_cnt}, s{s_cnt}, 1')
        a(f's_cmp_lt_u32 s{s_cnt}, {self.limit}'); a(f's_cbranch_scc1 {L}')
        a(f'v_mov_b32 v{vt}, {1 << tag}')
        a(f'buffer_atomic_or v{vt}, off, {srd(sDBG)}, 0 offset:4 sc1')
        a.label(D)

    def ll_wait(self, loads, regs, t1, t2, tag, pre=False):
        S = []
        h = len(regs) // 2
        for t, R in ((t1, regs[:h]), (t2, regs[h:])):
            S.append(f'v_max_u32 v{t}, v{R[0]}, v{R[1]}')
            for k in range(2, len(R), 2): S.append(f'v_max3_u32 v{t}, v{t}, v{R[k]}, v{R[k+1]}')
        S += [f'v_max_u32 v{t1}, v{t1}, v{t2}', f'v_cmp_eq_u32 vcc, -1, v{t1}']
        self.spin(loads, S, t1, tag, pre)

    def flag_set(self, soff, vt, which=3):
        a = self.a
        a('s_mov_b64 exec, 1')
        if which & 1: a(f'buffer_store_dword v{vt}, off, {srd(sWS)}, s{soff}')
        if which & 2: a(f'buffer_store_dword v{vt}, off, {srd(sWS)}, s{soff+1} sc1')
        a('s_mov_b64 exec, -1')
    def flag_addr(self, va, vt, soff, remote=False):
        L = [f'v_bfe_u32 v{va}, v1, 1, 3', f'v_and_b32 v{vt}, 1, v1', f'v_lshl_add_u32 v{va}, v{va}, 2, v{vt}']
        if remote: return L + [f'v_lshlrev_b32 v{va}, 7, v{va}']
        return L + [f's_cmp_eq_u32 s{s_fast}, 1', f's_cselect_b32 s{s_t}, 0, 5', f's_cselect_b32 s{s_t+1}, 0, {WS_RF}',
                    f's_lshl_b32 s{soff}, s{soff}, s{s_t}', f's_add_u32 s{soff}, s{soff}, s{s_t+1}', f's_add_u32 s{s_t}, s{s_t}, 2',
                    f'v_lshlrev_b32 v{va}, s{s_t}, v{va}']
    def flag_load(self, soff, va, vt): return f'buffer_load_dword v{vt}, v{va}, {srd(sWS)}, s{soff} offen sc1'
    def flag_wait(self, soff, va, vt, tag, pre=False, nap=0):
        self.spin(([f's_sleep {nap}'] if nap else []) + [self.flag_load(soff, va, vt)], [f'v_cmp_eq_u32 vcc, 0, v{vt}'], vt, tag, pre)
    def get_mode(self, vt):
        self.a.extend([f'v_mov_b32 v{vt}, {P_MODE}', f'ds_read_b32 v{vt}, v{vt}', 's_waitcnt lgkmcnt(0)', f'v_readfirstlane_b32 s{s_fast}, v{vt}'])

    def stamp(self, k):
        if not self.prof or self.prof >= 5: return
        a = self.a
        a(f'{"s_memtime" if self.prof == 4 else "s_memrealtime"} s[{s_t+6}:{s_t+7}]')
        a(f's_mov_b32 s{s_stamp}, m0')
        a(f's_lshl_b32 m0, s{s_l}, 4'); a(f's_add_u32 m0, m0, {k}')
        a('s_waitcnt lgkmcnt(0)')
        a(f'v_writelane_b32 v255, s{s_t+6}, m0')
        a(f's_mov_b32 m0, s{s_stamp}')
    def stamp_out(self):
        if not self.prof: return
        a = self.a
        a.extend(sx(s_t, [(2, 2048), (s_wave, 256)], WS_STAMP))
        a('v_lshlrev_b32 v254, 2, v1')
        a(f'buffer_store_dword v255, v254, {srd(sWS)}, s{s_t} offen')

    def prologue(self):
        a = self.a
        a('s_cmp_ge_u32 s2, 256'); a('s_cbranch_scc1 L_end')
        a('s_load_dwordx16 s[4:19], s[0:1], 0')
        a('s_load_dwordx4 s[20:23], s[0:1], 64')
        a('v_lshrrev_b32 v2, 6, v0')
        a(f'v_readfirstlane_b32 s{s_wave}, v2')
        a('v_and_b32 v1, 63, v0')
        a(f's_and_b32 s{s_rot}, s2, 3'); a(f's_lshl_b32 s{s_rot}, s{s_rot}, 2')
        a(f's_bfe_u32 s{s_t}, s2, 0x20003'); a(f's_add_u32 s{s_m}, s{s_rot}, s{s_t}')
        a(f's_mov_b32 s{s_rot}, s{s_m}')
        a(f's_and_b32 s{s_rot2}, s2, 4'); a(f's_lshl_b32 s{s_rot2}, s{s_rot2}, 1')
        a(f's_lshr_b32 s{s_g}, s2, 5'); a(f's_add_u32 s{s_g}, s{s_g}, s{s_rot2}')
        a(f's_mov_b32 s{s_l}, 0'); a(f's_mov_b32 s{s_fast}, 0')
        for b, n in ((sWS, WS_END), (sX, 2048*1024*2), (sW, 1024*3072*2), (sWO, 1024*1024*2), (sOUT, WS_END), (sDBG, 256)):
            a(f's_mov_b32 s{b+2}, {n}'); a(f's_mov_b32 s{b+3}, 0x20000')
        if self.prof: a('v_mov_b32 v255, 0')
        self.stamp(0)
        a(f's_cmp_ge_u32 s{s_wave}, 6'); a('s_cbranch_scc1 L_helper')
        a(f's_cmp_ge_u32 s{s_wave}, 4'); a('s_cbranch_scc1 L_loader')
    def pointers(self):
        a = self.a
        a('s_waitcnt lgkmcnt(0)')
        for b, p in ((sWS, pWS), (sX, pAX), (sW, pAW), (sWO, pAWO), (sOUT, pWS), (sDBG, pDBG)):
            a(f's_mov_b64 s[{b}:{b+1}], s[{p}:{p+1}]')

    def trickle_setup(self):
        a = self.a
        a(f's_cmp_eq_u32 s{s_l}, 0')
        a(f's_cselect_b64 s[{sOUT}:{sOUT+1}], s[{pBW}:{pBW+1}], s[{pBWO}:{pBWO+1}]')
        a(f's_cselect_b32 s{s_t}, 3, 1'); a(f's_lshl_b32 s{sOUT+2}, s{s_t}, 21'); a(f's_lshl_b32 s{s_fn}, s{s_t}, 2')
        a.extend(sx(s_ft, [(2, 8192), (s_wave, 2048)], -8192)); a(f's_mul_i32 s{s_ft}, s{s_ft}, s{s_t}')
        a(f's_cmp_lt_u32 s{s_l}, {2 if self.warm else 0}'); a(f's_cselect_b32 s{s_fn}, s{s_fn}, 0')
    def trickle(self, i):
        a = self.a
        def body():
            for r in range(4): a(f's_buffer_load_dwordx2 s[{s_fd}:{s_fd+1}], {srd(sOUT)}, s{s_ft} offset:{128*r+60}')
            a(f's_add_u32 s{s_ft}, s{s_ft}, 512')
        self.cond([f's_cmp_gt_u32 s{s_fn}, {i}'], body)

    def w_dma_offsets(self, dw, idx, t0, t1, t2):
        a = self.a
        a(f'v_lshrrev_b32 v{t0}, 3, v1'); a(f'v_mul_u32_u24 v{t0}, 6144, v{t0}')
        a(f'v_and_b32 v{t1}, 7, v1'); a(f'v_bfe_u32 v{t2}, v1, 4, 1'); a(f'v_lshlrev_b32 v{t2}, 1, v{t2}')
        a(f'v_xor_b32 v{t1}, v{t1}, v{t2}'); a(f'v_xor_b32 v{t2}, 4, v{t1}')
        a(f'v_lshl_add_u32 v{t1}, v{t1}, 4, v{t0}'); a(f'v_lshl_add_u32 v{t2}, v{t2}, 4, v{t0}')
        d = 8*6144 - 1024
        a(f's_lshl_b32 s{s_t+1}, s{s_g}, 7'); a(f'v_add_u32 v{t1}, s{s_t+1}, v{t1}'); a(f's_add_u32 s{s_t+1}, s{s_t+1}, {d}'); a(f'v_add_u32 v{t2}, s{s_t+1}, v{t2}')
        a(f's_cmp_eq_u32 s{idx}, 0')
        for t in range(3):
            c = [((3*w + t) & 1)*32*6144 + ((3*w + t) >> 1)*2048 for w in range(2)]
            a(f's_mov_b32 s{s_t}, {c[1]}'); a(f's_cmov_b32 s{s_t}, {c[0]}')
            a(f'v_add_u32 v{dw+4*t}, s{s_t}, v{t1}'); a(f'v_add_u32 v{dw+4*t+1}, s{s_t}, v{t2}')
            a(f'v_add_u32 v{dw+4*t+2}, {2*d}, v{dw+4*t}'); a(f'v_add_u32 v{dw+4*t+3}, {2*d}, v{dw+4*t+1}')

    def w_frag_addr(self, aw, head_sreg, base, t0, t1, t2, nb_list=(0, 1)):
        L = [f'v_lshrrev_b32 v{t2}, 4, v1', f'v_bfe_u32 v{t0}, v1, 2, 2', f'v_lshl_add_u32 v{t1}, v{t2}, 3, v{t0}',
             f'v_lshrrev_b32 v{t0}, 1, v{t0}', f'v_and_b32 v{t2}, 1, v{t2}', f'v_lshl_add_u32 v{t0}, v{t2}, 1, v{t0}']
        if head_sreg is not None: L += [f's_lshl_b32 s{s_t}, s{head_sreg}, 1', f'v_xor_b32 v{t0}, s{s_t}, v{t0}']
        L += [f'v_and_b32 v{t2}, 3, v1', f'v_lshlrev_b32 v{t2}, 3, v{t2}', f'v_lshl_add_u32 v{t2}, v{t1}, 7, v{t2}']
        if base: L.append(f'v_add_u32 v{t2}, {base}, v{t2}')
        for k, nb in enumerate(nb_list): L += [f'v_xor_b32 v{t1}, {nb}, v{t0}', f'v_lshl_add_u32 v{aw+k}, v{t1}, 5, v{t2}']
        return L

    def reduce_job(self, after_by=None, after_fill=None):
        a = self.a
        T = 200
        vA, vZ, vO, t1, t2 = T, T+1, T+2, T+3, T+4
        s_a, s_b, s_c, s_d, s_e = 80, 81, 82, 83, 84
        a.extend(sx(s_t, [(s_l, 32), (s_g, 4), (s_wave, 1)], -4))
        a.extend(sx(s_a, [(s_t, 32768), (s_m, 128)], WS_KVP)); a(f's_add_u32 s{s_b}, s{s_a}, 16384')
        a.extend(sx(s_d, [(s_t, 2048), (s_m, 128)], WS_KVF))
        a.extend(sx(s_c, [(s_t, 1024)], WS_ZP)); a.extend(sx(s_e, [(s_t, 64)], WS_ZF))
        a(f's_and_b32 s{s_t}, s{s_t}, 1'); a(f's_xor_b32 s{s_t+1}, s{s_m}, s{s_g}'); a(f's_or_b32 s{s_t}, s{s_t}, s{s_t+1}')
        a(f's_cselect_b32 s{s_c}, {BIG}, s{s_c}'); a(f's_cselect_b32 s{s_e}, {BIG}, s{s_e}')
        a(f'v_and_b32 v{t1}, 7, v1'); a(f'v_lshlrev_b32 v{t1}, 4, v{t1}')
        a(f'v_lshrrev_b32 v{t2}, 3, v1'); a(f'v_lshl_add_u32 v{vA}, v{t2}, 11, v{t1}')
        a(f'v_lshlrev_b32 v{vZ}, 4, v1')
        a(f'v_lshrrev_b32 v{t2}, 4, v1'); a(f'v_lshl_add_u32 v{vO}, v{t2}, 2, v{t1}')
        D = T + 8; U = 160
        def late_fill():
            for k in range(4): a(f'v_mov_b32 v{D+k}, -1')
            fill = f'buffer_store_dwordx4 {vr(D,4)}, v{vZ}, {srd(sWS)}, s{s_t} offen'
            a.extend(sx(s_t, [(s_g, 131072), (s_wave, 32768), (s_m, 2048)], WS_KVP + (1 << 21) - 4*32768)); a(fill + ' sc1'); a(fill + ' offset:1024 sc1')
            a(f's_lshr_b32 s{s_t+1}, s{s_wave}, 1'); a(f's_and_b32 s{s_t+2}, s{s_wave}, 1')
            a.extend(sx(s_t, [(s_t+2, 1 << 20), (s_m, 1 << 16), (s_g, 4096), (s_t+1, 2048)], WS_HALO - 2*2048)); a(fill + ' sc1'); a(fill + ' offset:1024 sc1')
            a.extend(sx(s_t, [(s_wave, 262144), (s_m, 16384), (s_g, 1024)], WS_ST - 3*262144))
            a.extend(sx(s_t+3, [(s_g, 16384), (s_m, 1024)], WS_CS + 262144))
            a(f's_cmp_eq_u32 s{s_wave}, 7'); a(f's_cselect_b32 s{s_t}, s{s_t+3}, s{s_t}'); a(fill + ' sc1')
            a('s_mov_b64 exec, 0xff')
            a(f's_add_u32 s{s_t}, s{s_d}, {1 << 17}'); a(fill + ' sc1')
            a(f's_add_u32 s{s_t}, s{s_e}, {1 << 12}'); a(fill + ' sc1')
            a.extend(sx(s_t, [(s_g, 4096), (s_t+1, 2048), (s_m, 128)], WS_ZP + (1 << 16) - 2*2048)); a(fill + ' sc1')
            a('s_mov_b64 exec, -1')
            a('s_waitcnt vmcnt(0)')
            if after_fill: after_fill()
        self.cond([f's_cmp_eq_u32 s{s_l}, 0'], late_fill)
        a('s_barrier')
        a('s_barrier')
        if after_by: after_by()
        self.ll_wait([f'buffer_load_dwordx4 {vr(D,4)}, v{vA}, {srd(sWS)}, s{s_a} offen sc1',
                      f'buffer_load_dwordx4 {vr(D+4,4)}, v{vA}, {srd(sWS)}, s{s_b} offen sc1',
                      f'buffer_load_dwordx4 {vr(D+8,4)}, v{vZ}, {srd(sWS)}, s{s_c} offen sc1',
                      f'buffer_load_dwordx4 {vr(D+12,4)}, v{vZ}, {srd(sWS)}, s{s_c} offen offset:1024 sc1'],
                     list(range(D, D+16)), t1, t2, 1)
        self.stamp(5)
        S = []
        for z in range(2):
            d, u = D + 8*z, U + 16*z
            for k in range(8): S += [f'v_lshlrev_b32 v{u+2*k}, 16, v{d+k}', f'v_and_b32 v{u+2*k+1}, 0xffff0000, v{d+k}']
            for k in range(4): S.append(pk('add', u+2*k, u+2*k, u+8+2*k))
            for k in range(4): S.append(sw32(u+k, u+4+k))
            S += [pk('add', u, u, u+4), pk('add', u+2, u+2, u+6), sw16(u, u+2), sw16(u+1, u+3), pk('add', u, u, u+2)]
            for k in range(2): S.append(f'v_add_f32_dpp v{u+k}, v{u+k}, v{u+k} row_ror:8 row_mask:0xf bank_mask:0xf')
            S.append(cvt(u, u, u+1))
        S += ['s_mov_b32 exec_lo, 0x00ff00ff', 's_mov_b32 exec_hi, 0x00ff00ff',
              f'buffer_store_dword v{U}, v{vO}, {srd(sWS)}, s{s_d} offen sc1',
              f'buffer_store_dword v{U+16}, v{vO}, {srd(sWS)}, s{s_e} offen sc1', 's_mov_b64 exec, -1']
        self.sw(S)
        a('s_barrier')

    def loader(self):
        a = self.a
        a.label('L_loader')
        dx, dw, dwo, t0, t1, t2, vf = 8, 16, 28, 2, 3, 4, 5
        s_ld, s_kx, s_kw, s_slot, s_mx, s_xstep, s_wo, s_wm0, s_sx, s_sw, s_xb, s_fl, s_mw = range(65, 78)
        a(f's_sub_u32 s{s_ld}, s{s_wave}, 4')
        self.w_dma_offsets(dw, s_ld, t0, t1, t2)
        a(f's_mul_i32 s{s_mw}, s{s_ld}, 12288')
        a(f's_lshl_b32 s{s_mx}, s{s_ld}, 13'); a(f's_add_u32 s{s_mx}, s{s_mx}, {XOFF}')
        def wst(slot=None):
            L = []
            for j in range(12):
                if j == 0: L.append(f's_add_u32 m0, s{s_mw}, ' + (f's{s_slot}' if slot is None else str(slot*STG)))
                elif j % 4 == 0: L.append('s_add_u32 m0, m0, 4096')
                L.append(f'buffer_load_dwordx4 v{dw+j}, {srd(sW)}, s{s_kw} offen offset:{1024*(j%4)} lds')
            a.extend(L + [f's_add_u32 s{s_sw}, s{s_sw}, 1', f's_and_b32 s{s_sw}, s{s_sw}, 15', f's_mul_i32 s{s_kw}, s{s_sw}, {64*6144}'])
        def xst(slot=None):
            L = []
            for j in range(8):
                if j == 0: L.append(f's_add_u32 m0, s{s_mx}, ' + (f's{s_slot}' if slot is None else str(slot*STG)))
                elif j == 4: L.append('s_add_u32 m0, m0, 4096')
                L.append(f'buffer_load_dwordx4 v{dx+j}, {srd(sX)}, s{s_kx} offen offset:{1024*(j%4)} sc1 lds')
            a.extend(L + [f's_add_u32 s{s_sx}, s{s_sx}, 1', f's_and_b32 s{s_sx}, s{s_sx}, 15', f's_mul_i32 s{s_kx}, s{s_sx}, s{s_xstep}', f's_add_u32 s{s_kx}, s{s_kx}, s{s_xb}'])
        def kstart():
            a(f's_mov_b32 s{s_sx}, s{s_rot}'); a(f's_mov_b32 s{s_sw}, s{s_rot}')
            a(f's_mul_i32 s{s_kw}, s{s_sw}, {64*6144}'); a(f's_mul_i32 s{s_kx}, s{s_sx}, s{s_xstep}'); a(f's_add_u32 s{s_kx}, s{s_kx}, s{s_xb}')
        a(f's_lshl_b32 s{s_xb}, s{s_m}, 18'); a(f's_mov_b32 s{s_xstep}, 128'); kstart()
        self.pointers()
        wst(0)
        a(f'v_lshrrev_b32 v{t0}, 3, v1'); a(f'v_and_b32 v{t1}, 7, v1')
        a(f'v_lshrrev_b32 v{t2}, 4, v1'); a(f'v_xor_b32 v{t1}, v{t1}, v{t2}'); a(f'v_xor_b32 v{t2}, 4, v{t1}')
        a(f's_lshl_b32 s{s_t}, s{s_ld}, 17'); a(f'v_lshl_add_u32 v{t0}, v{t0}, 11, s{s_t}')
        a(f'v_lshl_add_u32 v{t1}, v{t1}, 4, v{t0}'); a(f'v_lshl_add_u32 v{t2}, v{t2}, 4, v{t0}')
        for j in range(8): a(f'v_add_u32 v{dx+j}, {j*16384 - 1024*(j%4)}, v{t1 if j % 2 == 0 else t2}')
        xst(0); wst(1)
        a(f'v_lshrrev_b32 v{t0}, 5, v1'); a(f'v_lshlrev_b32 v{t0}, 4, v{t0}')
        a(f'v_bfe_u32 v{t1}, v1, 3, 2'); a(f'v_add_u32 v{t0}, v{t0}, v{t1}')
        a(f's_lshl_b32 s{s_t}, s{s_g}, 7'); a(f'v_lshl_add_u32 v{t0}, v{t0}, 11, s{s_t}')
        a(f'v_and_b32 v{t1}, 7, v1'); a(f'v_bfe_u32 v{t2}, v1, 4, 1'); a(f'v_lshlrev_b32 v{t2}, 1, v{t2}')
        a(f'v_xor_b32 v{t1}, v{t1}, v{t2}'); a(f'v_xor_b32 v{t2}, 4, v{t1}')
        a(f'v_lshl_add_u32 v{t1}, v{t1}, 4, v{t0}'); a(f'v_lshl_add_u32 v{t2}, v{t2}, 4, v{t0}')
        for G in range(4): a(f'v_add_u32 v{dwo+G}, {G*4*2048 - 1024*G}, v{t1 if G % 2 == 0 else t2}')
        a('s_waitcnt vmcnt(12)'); a('s_barrier')
        xst(1); wst(2)
        a('s_waitcnt vmcnt(12)'); a('s_barrier')
        xst(2)
        a('s_branch L_ld_enter')
        a.label('L_ld_layer')
        a('s_waitcnt vmcnt(8)'); a('s_barrier')
        xst(2); wst(2)
        a('s_waitcnt vmcnt(20)'); a('s_barrier')
        a.label('L_ld_enter')
        a(f's_mov_b32 s{s_i}, 0'); a(f's_mov_b32 s{s_slot}, 0')
        self.trickle_setup()
        a.label('L_ld_loop')
        xst(); wst()
        self.trickle(f's{s_i}')
        a(f's_add_u32 s{s_slot}, s{s_slot}, {STG}'); a(f's_cmp_eq_u32 s{s_slot}, {3*STG}'); a(f's_cselect_b32 s{s_slot}, 0, s{s_slot}')
        a(f's_add_u32 s{s_i}, s{s_i}, 1'); a(f's_cmp_lt_u32 s{s_i}, 13')
        a('s_waitcnt vmcnt(20)')
        a('s_barrier')
        a('s_cbranch_scc1 L_ld_loop')
        def wo(p0, n):
            a.extend(sx(s_wm0, [(s_ld, 4096)], L_WO + 4096*p0))
            a.extend(sx(s_wo, [(s_rot2, 2), (s_ld, 1)], p0)); a(f's_and_b32 s{s_wo}, s{s_wo}, 31'); a(f's_lshl_b32 s{s_wo}, s{s_wo}, 16')
            L = self.lab('wo')
            a(f's_mov_b32 s{s_i}, 0')
            a.label(L)
            a(f's_mov_b32 m0, s{s_wm0}')
            a(f's_add_u32 s{s_wm0}, s{s_wm0}, 8192')
            for G in range(4): a(f'buffer_load_dwordx4 v{dwo+G}, {srd(sWO)}, s{s_wo} offen offset:{1024*G} lds')
            a(f's_add_u32 s{s_wo}, s{s_wo}, 131072'); a(f's_and_b32 s{s_wo}, s{s_wo}, 0x1fffff')
            a(f's_add_u32 s{s_i}, s{s_i}, 1'); a(f's_cmp_lt_u32 s{s_i}, {n//2}'); a(f's_cbranch_scc1 {L}')
        wo(24, 8)
        a('s_waitcnt vmcnt(16)'); a('s_barrier')
        wo(4, 10)
        a('s_barrier')
        wo(14, 10); wo(0, 4)
        a.extend(sx(s_fl, [(s_l, 8192), (s_m, 256), (s_rot2, 16), (s_ld, 8)], 4096))
        self.get_mode(t0); a.extend(self.flag_addr(vf, t0, s_fl)); a(f's_mov_b32 s{s_rot}, s{s_rot2}')
        a.extend(sx(s_xb, [(s_l, 1 << 22), (s_m, 1 << 18)], WS_XI))
        a(f's_bitcmp0_b32 s{s_l}, 0')
        a(f's_cselect_b64 s[{sW}:{sW+1}], s[{pBW}:{pBW+1}], s[{pAW}:{pAW+1}]')
        a(f's_cselect_b64 s[{sWO}:{sWO+1}], s[{pBWO}:{pBWO+1}], s[{pAWO}:{pAWO+1}]')
        a(f's_mov_b64 s[{sX}:{sX+1}], s[{pWS}:{pWS+1}]'); a(f's_mov_b32 s{sX+2}, {WS_END}')
        a(f's_mov_b32 s{s_xstep}, 16384'); kstart()
        a(f's_lshl_b32 s{s_t}, s{s_ld}, 13'); a(f'v_lshl_add_u32 v{t0}, v1, 4, s{s_t}')
        for j in range(8): a(f'v_add_u32 v{dx+j}, {4096*(j//4)}, v{t0}')
        a(f's_bitcmp1_b32 s{s_l}, 0'); a('s_cbranch_scc1 L_ld_B')
        self.reduce_job(lambda: wst(0))
        a('s_branch L_ld_join')
        a.label('L_ld_B')
        self.cond([f's_cmp_lg_u32 s{s_l}, 3'], lambda: wst(0))
        a('s_barrier')
        a.label('L_ld_join')
        a('s_waitcnt vmcnt(0)'); a('s_barrier')
        a(f's_cmp_eq_u32 s{s_l}, 3'); a('s_cbranch_scc1 L_fin')
        a(f's_add_u32 s{s_l}, s{s_l}, 1')
        a('s_barrier'); a('s_barrier')
        wst(1)
        self.flag_wait(s_fl, vf, t0, 2)
        self.stamp(1)
        xst(0); xst(1)
        a('s_branch L_ld_layer')

    def helper(self):
        a = self.a
        a.label('L_helper')
        t0, t1, t2, t3, l4, l16, ones, a_st, a_cs, v_st, v_cs, aw, vtw, vto, vd = 2, 3, 4, 5, 6, 7, 8, 12, 13, 14, 15, 16, 18, 19, 20
        F, D, SA, SC = 32, 96, 128, 160
        s_h, s_tw, s_a, s_b, s_trot = 65, 66, 67, 68, 69
        xm = 4; s_r = 70; vrf, vfl, aw2, dw = 21, 22, 24, 80
        a(f's_sub_u32 s{s_h}, s{s_wave}, 6')
        a(f'v_lshlrev_b32 v{l4}, 2, v1'); a(f'v_lshlrev_b32 v{l16}, 4, v1')
        a.extend(self.w_frag_addr(aw, s_h, 0, t0, t1, t2))
        for k in range(2): a(f'v_add_u32 v{aw2+k}, {L_SPARE}, v{aw+k}')
        a(f's_or_b32 s{s_rot}, s{s_rot}, 3')
        a.extend(self.flag_addr(vrf, t0, None, remote=True))
        a(f'v_lshrrev_b32 v{t0}, 5, v1'); a(f'v_and_b32 v{t1}, 31, v1'); a(f'v_lshlrev_b32 v{t1}, 4, v{t1}')
        a(f'v_lshl_add_u32 v{v_st}, v{t0}, 10, v{t1}')
        a(f'v_and_b32 v{t2}, 24, v1'); a(f'v_and_b32 v{t3}, 3, v1'); a(f'v_lshl_add_u32 v{t2}, v{t3}, 1, v{t2}'); a(f'v_add_u32 v{t2}, v{t2}, v{t0}')
        a.extend(sx(s_t, [(s_h, 256)], P_NM)); a(f'v_lshl_add_u32 v{a_st}, v{t2}, 3, s{s_t}')
        a(f'v_mov_b32 v{t2}, {BIG}'); a(f'v_cmp_gt_u32 vcc, 384, v{t1}'); a(f'v_cndmask_b32 v{v_cs}, v{t2}, v{v_st}, vcc')
        a.extend(sx(s_t, [(s_h, 384)], P_CS)); a(f'v_lshl_add_u32 v{t1}, v{t0}, 3, v{t1}'); a(f'v_add_u32 v{a_cs}, s{s_t}, v{t1}')
        self.pointers()

        def touch_setup():
            if not self.touch: return
            c, gt = s_t + 2, s_t + 3
            def cls(b):
                a(f's_lshr_b32 s{gt}, s{b}, 7'); a(f's_sub_u32 s{gt}, 3, s{gt}'); a(f's_and_b32 s{gt}, s{gt}, 7')
                a(f's_sub_u32 s{c}, s{s_g}, s{gt}'); a(f's_and_b32 s{c}, s{c}, 7'); a(f's_sub_u32 s{c}, s{c}, 1')
                a(f's_and_b32 s{s_t}, s{s_g}, 8'); a(f's_add_u32 s{gt}, s{gt}, s{s_t}'); a(f's_lshl_b32 s{gt}, s{gt}, 7')
            a(f's_and_b32 s{s_t+4}, s{s_m}, {xm-1}'); a(f's_lshl_b32 s{s_t+4}, s{s_t+4}, 1'); a(f's_add_u32 s{s_t+4}, s{s_t+4}, s{s_h}')
            cls(sW)
            a(f's_cmp_ge_u32 s{c}, 3'); a(f's_cselect_b32 s{s_t}, {32*6144 - 3*2048}, 0'); a(f's_add_u32 s{gt}, s{gt}, s{s_t}')
            a(f's_lshl_b32 s{s_t}, s{c}, 11'); a(f's_add_u32 s{gt}, s{gt}, s{s_t}')
            a(f's_mul_i32 s{s_t}, s{s_t+4}, {(16//xm)*6144}'); a(f's_add_u32 s{gt}, s{gt}, s{s_t}')
            a(f's_cmp_lt_u32 s{c}, 6'); a(f's_cselect_b32 s{s_t}, {16//xm}, 0')
            a(f'v_mul_u32_u24 v{vtw}, 6144, v1'); a(f'v_add_u32 v{vtw}, s{gt}, v{vtw}')
            a(f'v_mov_b32 v{t0}, {BIG}'); a(f'v_cmp_gt_u32 vcc, s{s_t}, v1'); a(f'v_cndmask_b32 v{vtw}, v{t0}, v{vtw}, vcc')
            cls(sWO)
            a(f's_lshl_b32 s{s_t}, s{c}, 19'); a(f's_add_u32 s{gt}, s{gt}, s{s_t}')
            a(f's_mul_i32 s{s_t}, s{s_t+4}, {(128//xm)*2048}'); a(f's_add_u32 s{gt}, s{gt}, s{s_t}')
            a(f's_cmp_lt_u32 s{c}, 4'); a(f's_cselect_b32 s{s_t}, {32//xm}, 0')
            a(f'v_lshlrev_b32 v{vto}, 11, v1'); a(f'v_add_u32 v{vto}, s{gt}, v{vto}')
            a(f'v_cmp_gt_u32 vcc, s{s_t}, v1'); a(f'v_cndmask_b32 v{vto}, v{t0}, v{vto}, vcc')
        def touchW(st):
            if not self.touch: return
            a(f's_add_u32 s{s_tw}, s{s_rot}, {st}'); a(f's_and_b32 s{s_tw}, s{s_tw}, 15'); a(f's_mul_i32 s{s_tw}, s{s_tw}, {64*6144}')
            a(f'buffer_load_dword v{vd}, v{vtw}, {srd(sW)}, s{s_tw} offen')
        def touchO(k):
            if not self.touch: return
            a(f's_mov_b32 s{s_tw}, {k*(32//xm)*2048}')
            a(f'buffer_load_dword v{vd}, v{vto}, {srd(sWO)}, s{s_tw} offen')
        def phi_load():
            a(f's_mov_b64 s[{sX}:{sX+1}], s[{pPHI}:{pPHI+1}]'); a(f's_mov_b32 s{sX+2}, 65536')
            a.extend(sx(s_t, [(s_g, 4096), (s_h, 2048)])); a(f's_lshl_b32 s{s_t+1}, s{s_h}, 11'); a(f's_add_u32 m0, s{s_t+1}, {P_PHI}')
            for j in range(2): a(f'buffer_load_dwordx4 v{l16}, {srd(sX)}, s{s_t} offen offset:{1024*j} lds')
        self.w_dma_offsets(dw, s_h, t0, t1, t2)
        touch_setup()
        phi_load()
        for st in range(1, 3 + self.dist): touchW(st)

        def init_stores():
            for k in range(4): a(f'v_mov_b32 v{D+k}, -1')
            fill = f'buffer_store_dwordx4 {vr(D,4)}, v{l16}, {srd(sWS)}, s{s_t} offen'
            a.extend(sx(s_t, [(s_g, 131072), (s_h, 65536), (s_m, 2048)], WS_KVP)); a(fill + ' sc1'); a(fill + ' offset:1024 sc1')
            a(f's_add_u32 s{s_t}, s{s_t}, 32768'); a(fill + ' sc1'); a(fill + ' offset:1024 sc1')
            a('s_mov_b64 exec, 0xff')
            a.extend(sx(s_t, [(s_g, 8192), (s_h, 4096), (s_m, 128)], WS_KVF)); a(fill + ' sc1'); a(fill + ' offset:2048 sc1')
            a.extend(sx(s_t, [(s_g, 4096), (s_h, 2048), (s_m, 128)], WS_ZP)); a(fill + ' sc1')
            a.extend(sx(s_t, [(s_g, 256), (s_h, 128)], WS_ZF))
            a(f's_cmp_eq_u32 s{s_m}, s{s_g}'); a(f's_cselect_b32 s{s_t}, s{s_t}, {BIG}'); a(fill + ' sc1')
            a('s_mov_b64 exec, -1')
            a.extend(sx(s_t, [(2, 256), (s_h, BIG)]))
            a(f'v_mov_b32 v{t0}, 0')
            a(f'buffer_store_dword v{t0}, v{l4}, {srd(sWS)}, s{s_t} offen sc1')
            a(f'v_lshrrev_b32 v{t1}, 2, v1'); a(f'v_lshlrev_b32 v{t1}, 10, v{t1}'); a(f'v_and_or_b32 v{t1}, v1, 3, v{t1}'); a(f'v_lshlrev_b32 v{t1}, 7, v{t1}')
            a.extend(sx(s_t, [(s_m, 8192), (s_g, 512)], WS_RF)); a(f's_cmp_eq_u32 s{s_h}, 1'); a(f's_cselect_b32 s{s_t}, s{s_t}, {BIG}')
            a('s_mov_b64 exec, 0xfffffff')
            a(f'buffer_store_dword v{t0}, v{t1}, {srd(sWS)}, s{s_t} offen sc1')
            a('s_mov_b64 exec, -1')
            a.extend(sx(s_t, [(s_g, 16384), (s_m, 1024)], WS_CS)); a(f's_cmp_eq_u32 s{s_h}, 1'); a(f's_cselect_b32 s{s_t}, s{s_t}, {BIG}'); a(fill + ' sc1')
        for k in range(4): a(f'v_mov_b32 v{ones+k}, 0x3f803f80')
        def cs_reads(aw=aw):
            for s in range(2):
                for n in range(6):
                    for t in range(2):
                        a(f'ds_read_b64_tr_b16 {vr(F+24*s+4*n+2*t,2)}, v{aw+(n&1)} offset:{(n>>1)*8192+(32*s+4*t)*128}')
            a('s_waitcnt lgkmcnt(0)')
        def cs_publish():
            for s in range(2):
                for n in range(6): a(mf16(D+4*n, ones, F+24*s+4*n, D+4*n if s else None))
            a.extend(sx(s_t, [(s_l, 262144), (s_g, 16384), (s_m, 1024), (s_h, 128)], WS_CS))
            a('s_mov_b64 exec, 0xffff')
            for n in range(6): a(f'buffer_store_dword v{D+4*n}, v{l4}, {srd(sWS)}, s{s_t} offen offset:{(n>>1)*256+(n&1)*64} sc1')
            a('s_mov_b64 exec, -1')
        def chunk(t):
            a(f's_mul_i32 s{s_t}, s{s_m}, {64*6144}'); a(f's_mul_i32 s{s_t+1}, s{s_h}, 12288'); a(f's_add_u32 m0, s{s_t+1}, {L_SPARE + 4096*t}')
            for j in range(4): a(f'buffer_load_dwordx4 v{dw+4*t+j}, {srd(sW)}, s{s_t} offen offset:{1024*j} lds')
        def arrive():
            a(f's_getreg_b32 s{s_t}, hwreg(HW_REG_XCC_ID, 0, 3)'); a(f's_lshl_b32 s{s_t}, s{s_t}, 2'); a(f's_lshl_b32 s{s_t+1}, 1, s{s_t}')
            a.extend(sx(s_t, [(s_m, 16), (s_rot2, 1)]))
            a('s_mov_b64 exec, 1')
            a(f'v_mov_b32 v{t0}, s{s_t+1}')
            a(f'buffer_atomic_add v{t0}, off, {srd(sDBG)}, s{s_t} sc1')
            a('s_mov_b64 exec, -1')
        def init_wait():
            a(f'v_and_b32 v{t2}, 31, v1'); a(f'v_lshlrev_b32 v{t2}, 3, v{t2}')
            self.spin([f'buffer_load_dword v{t0}, v{t2}, {srd(sDBG)}, 0 offen sc1'],
                      [f'v_lshrrev_b32 v{t1}, 4, v{t0}', f'v_and_b32 v{t1}, 0x0f0f0f0f, v{t1}', f'v_and_b32 v{t3}, 0x0f0f0f0f, v{t0}',
                       f'v_sad_u8 v{t1}, v{t1}, 0, 0', f'v_sad_u8 v{t3}, v{t3}, 0, v{t1}', f'v_cmp_gt_u32 vcc, 8, v{t3}'], t3, 3)
            a(f's_lshr_b32 s{s_t}, s{s_rot2}, 3'); a(f's_lshl_b32 s{s_t+1}, s{s_m}, 1'); a(f's_add_u32 s{s_t}, s{s_t}, s{s_t+1}')
            a(f'v_readlane_b32 s{s_fast}, v{t0}, s{s_t}')
            a(f's_and_b32 s{s_fast}, s{s_fast}, 0x88888888'); a(f's_cselect_b32 s{s_fast}, {1 if self.local else 0}, 0')
            a(f'v_mov_b32 v{t3}, s{s_fast}'); a(f'v_mov_b32 v{t2}, {P_MODE}'); a(f'ds_write_b32 v{t2}, v{t3}')
        def gather(R, va, so, ks):
            L = []
            for k in ks: L += [f's_add_u32 s{s_t}, s{so}, {4096*(k//2)}', f'buffer_load_dwordx4 {vr(R+4*k,4)}, v{va}, {srd(sWS)}, s{s_t} offen offset:{2048*(k%2)} sc1']
            return L
        def total(R):
            n = 8
            while n > 1:
                n //= 2
                for k in range(4*n): a(f'v_add_f32 v{R+k}, v{R+k}, v{R+k+4*n}')
            a(sw32(R, R+2)); a(sw32(R+1, R+3)); a(f'v_add_f32 v{R}, v{R}, v{R+2}'); a(f'v_add_f32 v{R+1}, v{R+1}, v{R+3}')
        def stats_finish():
            for k in range(2): a(f'v_mov_b32_dpp v{SA+2+k}, v{SA+k} row_shl:4 row_mask:0xf bank_mask:0xf')
            for k in range(2): a(f'v_mul_f32 v{SA+k}, {f2u(-1/1024)}, v{SA+k}'); a(f'v_mul_f32 v{SA+2+k}, {f2u(1/1024)}, v{SA+2+k}')
            for k in range(2): a(f'v_fma_f32 v{SA+2+k}, -v{SA+k}, v{SA+k}, v{SA+2+k}')
            for k in range(2): a(f'v_max_f32 v{SA+2+k}, 0, v{SA+2+k}')
            for k in range(2): a(f'v_add_f32 v{SA+2+k}, {f2u(1e-5)}, v{SA+2+k}')
            for k in range(2): a(f'v_rsq_f32 v{SA+2+k}, v{SA+2+k}')
            a('s_mov_b32 exec_lo, 0x0f0f0f0f'); a('s_mov_b32 exec_hi, 0x0f0f0f0f')
            a(f'ds_write_b64 v{a_st}, {vr(SA,2)}'); a(f'ds_write_b64 v{a_st}, {vr(SA+2,2)} offset:512')
            a('s_mov_b64 exec, -1')
        def cs_finish():
            total(SC)
            a(f's_mul_i32 s{s_t}, s{s_l}, 768'); a(f'v_add_u32 v{t0}, s{s_t}, v{a_cs}')
            a('s_mov_b32 exec_lo, 0xffffff'); a('s_mov_b32 exec_hi, 0xffffff')
            a(f'ds_write_b64 v{t0}, {vr(SC,2)}')
            a('s_mov_b64 exec, -1')
        l0 = [f's_cmp_eq_u32 s{s_l}, 0']; ln0 = [f's_cmp_lg_u32 s{s_l}, 0']; l01 = [f's_cmp_lt_u32 s{s_l}, 2']
        a(f's_mov_b32 s{s_r}, 0')
        a.label('L_hp_layer')
        a.extend(sx(s_a, [(s_l, 262144), (s_m, 16384), (s_h, 512)], WS_ST))
        a.extend(sx(s_b, [(s_l, 262144), (s_g, 16384), (s_h, 384)], WS_CS))
        self.trickle_setup()
        hi = lambda: self.hprio and a(f's_setprio {self.hprio}')
        lo = lambda: self.hprio and a('s_setprio 0')
        l1 = [f's_cmp_eq_u32 s{s_l}, 1']
        for i in range(17):
            a('s_barrier')
            if i == 0: self.cond(l0, cs_reads)
            if i == 6: self.cond(l1, lambda: cs_reads(aw2))
            if i in (3, 5, 12): a('s_waitcnt vmcnt(0)')
            if i == 5: self.cond(ln0, lambda: self.flag_wait(s_r, vrf, vfl, 8, pre=True, nap=self.nap))
            if i <= 11: hi()
            if i == 9: self.cond(l0, init_wait)
            if i == 4: self.cond(ln0, lambda: a(self.flag_load(s_r, vrf, vfl)))
            if i + 3 + self.dist <= 15: touchW(i + 3 + self.dist)
            if 5 <= i <= 8: touchO(i - 5)
            if i == 1: self.cond(l0, init_stores)
            if i == 4: self.cond([f's_or_b32 s{s_t}, s{s_l}, s{s_h}', f's_cmp_eq_u32 s{s_t}, 0'], arrive)
            if 2 <= i <= 4: self.cond(l1, lambda: chunk(i - 2))
            if i == 6: self.cond([f's_cmp_eq_u32 s{s_l}, 2'], phi_load)
            if i in (9, 10): a.extend(gather(SA, v_st, s_a, range(4*(i-9), 4*(i-9)+4)))
            if i in (10, 11): self.cond(l01, lambda: a.extend(gather(SC, v_cs, s_b, range(4*(i-10), 4*(i-10)+4))))
            if i <= 11: lo()
            if 1 <= i <= 12: self.trickle(i - 1)
            if i == 7: self.cond(l01, cs_publish)
            if i == 12: self.ll_wait(gather(SA, v_st, s_a, range(8)), list(range(SA, SA+32)), t0, t1, 6, pre=True)
            if i == 13: total(SA)
            if i == 14: stats_finish()
            if i == 14: self.cond(l01, lambda: self.ll_wait(gather(SC, v_cs, s_b, range(8)), list(range(SC, SC+32)), t0, t1, 7, pre=True))
            if i == 15: self.cond(l01, cs_finish); a('s_waitcnt lgkmcnt(0)')
        a.extend(sx(s_t, [(s_l, 8192), (s_m, 256), (s_rot2, 16)])); a(f'buffer_load_dword v{vd}, off, {srd(sWS)}, s{s_t} sc1')
        a(f's_xor_b32 s{s_t}, s{s_t}, 128'); a.extend(sx(s_r, [(s_t, 32), (s_h, 256)], WS_RF))
        a(f's_mov_b32 s{s_rot}, s{s_rot2}')
        a(f's_bitcmp0_b32 s{s_l}, 0')
        a(f's_cselect_b64 s[{sW}:{sW+1}], s[{pBW}:{pBW+1}], s[{pAW}:{pAW+1}]')
        a(f's_cselect_b64 s[{sWO}:{sWO+1}], s[{pBWO}:{pBWO+1}], s[{pAWO}:{pAWO+1}]')
        touch_setup()
        touchW(0)
        a(f's_bitcmp1_b32 s{s_l}, 0'); a('s_cbranch_scc1 L_hp_B')
        self.reduce_job()
        a('s_branch L_hp_join')
        a.label('L_hp_B')
        a('s_barrier')
        a.label('L_hp_join')
        a('s_barrier')
        self.flag_wait(s_r, vrf, vfl, 9, nap=self.nap)
        a('s_barrier')
        a(f's_cmp_eq_u32 s{s_l}, 3'); a('s_cbranch_scc1 L_fin')
        for st in range(1, 3 + self.dist): touchW(st)
        a(f's_add_u32 s{s_r}, s{s_r}, {4096*32}')
        a(f's_add_u32 s{s_l}, s{s_l}, 1')
        a('s_barrier')
        a('s_branch L_hp_layer')

    def compute(self):
        a = self.a
        one, l16, voffR, voffI, a_tok, a_row, a_t32, a_csr, a_csv = 0, 2, 3, 4, 5, 6, 7, 8, 9
        ax, awq = 10, 12
        l4 = 14; vst = 15
        XR = 16
        ACC = 32
        FX = [128, 144]; FW = [160, 184]
        T = 208
        t0, t1, t2, t3 = T, T+1, T+2, T+3
        s_wm, s_wh, s_rslot, s_delta, s_stg, s_ones = 65, 66, 67, 68, 69, 70
        s_o = 71
        s_ob = 75
        s_obase, s_ooff, s_a, s_b, s_c, s_d, s_e, s_fp, s_st, s_fo = range(77, 87)
        a(f'v_lshrrev_b32 v{t0}, 4, v1')
        a(f'v_and_b32 v{t1}, 15, v1')
        a(f'v_and_b32 v{t2}, 1, v{t0}'); a(f'v_lshrrev_b32 v{t3}, 1, v{t0}'); a(f'v_lshl_add_u32 v{t2}, v{t2}, 1, v{t3}')
        a(f'v_lshlrev_b32 v{voffR}, 11, v{t1}'); a(f'v_lshl_add_u32 v{voffR}, v{t2}, 4, v{voffR}')
        a.extend(sx(s_t, [(s_m, 1 << 18), (s_wave, 1 << 16), (s_g, 128)])); a(f's_add_u32 s{s_t+1}, s{s_t}, 32768')
        self.pointers()
        for tb in range(2):
            for e in range(2): a(f'buffer_load_dwordx4 {vr(XR+8*tb+4*e,4)}, v{voffR}, {srd(sX)}, s{s_t+tb} offen offset:{64*e}')
        a(f's_lshr_b32 s{s_wm}, s{s_wave}, 1'); a(f's_and_b32 s{s_wh}, s{s_wave}, 1')
        a.extend(sx(s_ft, [(2, 8192), (s_wave, 2048)]))
        def wo_touch(r0, r1):
            for r in range(r0, r1 if self.warm else r0): a(f's_buffer_load_dwordx2 s[{s_fd}:{s_fd+1}], {srd(sWO)}, s{s_ft} offset:{128*r+60}')
        wo_touch(0, 7)
        a(f'v_mov_b32 v{one}, 1')
        a(f'v_lshl_add_u32 v{voffI}, v{t2}, 4, v{t1}'); a(f'v_lshlrev_b32 v{voffI}, 4, v{voffI}')
        a(f'v_lshlrev_b32 v{l16}, 4, v1'); a(f'v_lshlrev_b32 v{l4}, 2, v1')
        a.extend(sx(s_t, [(s_wm, 256)], P_NM))
        a(f'v_lshl_add_u32 v{a_tok}, v{t1}, 2, s{s_t}')
        a(f'v_lshl_add_u32 v{a_row}, v{t0}, 4, s{s_t}')
        a(f'v_and_b32 v{t3}, 31, v1'); a(f'v_lshl_add_u32 v{a_t32}, v{t3}, 2, s{s_t}')
        a.extend(sx(s_t, [(s_wh, 128)], P_CS))
        a(f'v_lshl_add_u32 v{a_csr}, v{t0}, 4, s{s_t}')
        a(f'v_lshl_add_u32 v{a_csv}, v{t1}, 2, s{s_t}')
        a(f's_mov_b32 s{s_stg}, {STG}'); a(f's_mov_b32 s{s_ones}, 0x3f803f80')
        a(f'v_lshrrev_b32 v{t2}, 1, v{t1}'); a(f'v_xor_b32 v{t2}, v{t2}, v{t0}')
        a.extend(sx(s_t, [(s_wm, 8192)], XOFF)); a(f'v_lshl_add_u32 v{t1}, v{t1}, 7, s{s_t}')
        for s in range(2):
            a(f'v_xor_b32 v{t3}, {4*s}, v{t2}'); a(f'v_lshl_add_u32 v{ax+s}, v{t3}, 4, v{t1}')
        a.extend(sx(s_st, [(s_m, 16384), (s_g, 1024), (s_wave, 256)], WS_ST))

        q = 200
        def stats():
            S = []
            for k in range(8):
                for tb in range(2):
                    r = XR + 8*tb + k
                    S += [f'v_dot2_f32_bf16 v{q+2*tb}, s{s_ones}, v{r}, ' + (f'v{q+2*tb}' if k else '0'),
                          f'v_dot2_f32_bf16 v{q+2*tb+1}, v{r}, v{r}, ' + (f'v{q+2*tb+1}' if k else '0')]
            return S + [sw32(q, q+2), sw32(q+1, q+3), pk('add', q, q, q+2), sw16(q, q+1), f'v_add_f32 v{q}, v{q}, v{q+1}']
        st_store = f'buffer_store_dword v{q}, v{l4}, {srd(sWS)}, s{s_st} offen sc1'
        def acc(b, n): return ACC + 4*(6*b + n)
        env = dict(locals())
        a.label('L_layer')
        a.extend(self.w_frag_addr(awq, s_wh, 0, t0, t1, t2))
        for r in range(0, 96, 2): a(f'v_mov_b64 {vr(ACC+r,2)}, 0')
        a(f's_mov_b32 s{s_rslot}, 0'); a(f's_mov_b32 s{s_i}, 0')
        a.extend(sx(s_t, [(s_l, 1 << 22), (s_m, 1 << 18)], WS_OI))
        a.extend(sx(s_obase, [(s_wave, 1 << 16), (s_t, 1)])); a(f's_lshl_b32 s{s_ooff}, s{s_rot2}, 11')
        a(f's_add_u32 s{s_ob}, s{s_obase}, s{s_ooff}'); a(f's_add_u32 s{s_ob+1}, s{s_ob}, 32768')
        a.extend(sx(s_a, [(s_wm, 1 << 17), (s_g, 2048), (s_wh, 1024), (s_t, 1)]))
        a.extend(sx(s_fp, [(s_l, 8192), (s_m, 256)])); a.extend(sx(s_fo, [(s_g, 16), (s_wave, 4), (s_fp, 1)])); a.extend(sx(s_fo+1, [(s_fo, 32)], WS_RF))
        a.extend(sx(s_t, [(s_wm, 8), (s_rot2, 16)])); a(f's_add_u32 s{s_fp}, s{s_fp}, s{s_t}')
        a.extend(sx(s_o, [(s_l, 1 << 22), (s_m, 1 << 18), (s_g, 16384), (s_wave, 4096)], WS_XI))
        for k in range(1, 4): a(f's_add_u32 s{s_o+k}, s{s_o}, {1024*k}')
        a(f'v_mov_b32 v{vst}, v{voffI}')
        def last():
            a(f's_mov_b64 s[{sOUT}:{sOUT+1}], s[{pOUT}:{pOUT+1}]'); a(f's_mov_b32 s{sOUT+2}, {2048*1024*2}')
            a.extend(sx(s_o, [(s_m, 1 << 18), (s_wave, 1 << 16), (s_g, 128)]))
            a(f's_add_u32 s{s_o+1}, s{s_o}, 64'); a(f's_add_u32 s{s_o+2}, s{s_o}, 32768'); a(f's_add_u32 s{s_o+3}, s{s_o}, {32768+64}')
            a(f'v_mov_b32 v{vst}, v{voffR}')
        self.cond([f's_cmp_eq_u32 s{s_l}, 3'], last)
        a(f's_bitcmp1_b32 s{s_l}, 0'); a('s_cbranch_scc1 L_preB')
        self.epiA(env, True)
        a('s_branch L_pre_done')
        a.label('L_preB')
        self.epiB(env, True)
        a.label('L_pre_done')
        def first():
            wo_touch(7, 16)
            a('s_waitcnt vmcnt(0)'); a.extend(stats()); a(st_store)
        self.cond([f's_cmp_eq_u32 s{s_l}, 0'], first)
        a(f's_add_u32 s{s_st}, s{s_st}, 262144')
        a('s_barrier')
        self.stamp(1)
        def reads(s, st):
            X = [f'ds_read_b128 {vr(FX[st]+4*b,4)}, v{ax+s} offset:{2048*b}' for b in range(4)]
            W = [[f'ds_read_b64_tr_b16 {vr(FW[st]+4*n+2*t,2)}, v{awq+(n&1)} offset:{(n>>1)*8192+(32*s+4*t)*128}' for t in range(2)] for n in range(6)]
            L = [X[0]] + W[0] + X[1:]
            for n in range(1, 6): L += W[n]
            return L
        def mfmas(st):
            L = []
            for n in range(6):
                for b in range(4):
                    if n < 4: L.append(mf16(acc(b, n), FW[st]+4*n, FX[st]+4*b, acc(b, n)))
                    else: L.append(mf16(acc(b, n), FX[st]+4*b, FW[st]+4*n, acc(b, n)))
            return L
        a.extend(reads(0, 0))
        a('.p2align 6')
        a.label('L_q')
        for s in range(2):
            M = mfmas(s); R = reads(1 - s, 1 - s)
            gaps = [[] for _ in range(24)]
            first = 0
            if s == 1:
                gaps[0] += [f'v_add_u32 v{r}, s{s_delta}, v{r}' for r in (ax, awq)]
                gaps[1] += [f'v_add_u32 v{r}, s{s_delta}, v{r}' for r in (awq+1,)] + ['s_barrier']
                gaps[20] += [f'v_add_u32 v{ax+1}, s{s_delta}, v{ax+1}']
                gaps[21] += ['s_waitcnt vmcnt(0)']
                gaps[22] += [f's_add_u32 s{s_i}, s{s_i}, 1']
                gaps[23] += [f's_cmp_lt_u32 s{s_i}, 16']
                first = 1
            else:
                gaps[18] += [f's_add_u32 s{s_rslot}, s{s_rslot}, 1', f's_cmp_eq_u32 s{s_rslot}, 3']
                gaps[19] += [f's_cselect_b32 s{s_delta}, {-2*STG}, s{s_stg}', f's_cselect_b32 s{s_rslot}, 0, s{s_rslot}']
            for k, r in enumerate(R): gaps[first + k].append(r)
            if self.prof == 5 and s == 0:
                a('s_memtime s[88:89]'); a(f's_lshl_b32 m0, s{s_l}, 4'); a(f's_add_u32 m0, m0, s{s_i}')
                gaps[0].insert(0, 'v_writelane_b32 v255, s88, m0')
            a('s_waitcnt lgkmcnt(0)')
            for k in range(24):
                a(M[k]); a.extend(gaps[k])
        a('s_cbranch_scc1 L_q')
        a('s_waitcnt lgkmcnt(0)')
        self.stamp(2)
        a(f's_bitcmp1_b32 s{s_l}, 0'); a('s_cbranch_scc1 L_epiB')
        self.epiA(env, False)
        a('s_branch L_ophase')
        a.label('L_epiB')
        self.epiB(env, False)
        a.label('L_ophase')
        a('s_barrier')
        PD = self.pd; NR = PD + 1
        OA, OW, awo, vf, RING = 128, [160, 176], 192, 196, 32
        assert RING + 8*NR <= 128
        u0, u1, u2 = 197, 198, 199
        a(f'v_mov_b32 v{u0}, {P_MODE}'); a(f'ds_read_b32 v{u0}, v{u0}')
        def oacc(tb, nb): return OA + 16*tb + 4*nb
        for k in range(4):
            a(sw16(XR+4*k, XR+4*k+2)); a(sw16(XR+4*k+1, XR+4*k+3))
        a('s_waitcnt lgkmcnt(0)'); a(f'v_readfirstlane_b32 s{s_fast}, v{u0}')
        a.extend(self.flag_addr(vf, u1, s_fp))
        for r in range(16):
            a(f'v_lshlrev_b32 v{OA+2*r}, 16, v{XR+r}'); a(f'v_and_b32 v{OA+2*r+1}, 0xffff0000, v{XR+r}')
        a.extend(self.w_frag_addr(awo, None, L_WO, u0, u1, u2, nb_list=(0, 1, 2, 3)))
        def oreads(h):
            return [f'ds_read_b64_tr_b16 {vr(OW[h&1]+4*nb+2*t,2)}, v{awo+nb} offset:{(h&15)*4096+512*t}' for nb in range(4) for t in range(2)]
        a.extend(oreads(0))
        a('s_waitcnt vmcnt(0) lgkmcnt(0)')
        self.stamp(8)
        self.flag_set(s_fo, one, 1)
        self.cond([f's_cmp_eq_u32 s{s_fast}, 0'], lambda: self.flag_set(s_fo, one, 2))
        self.flag_wait(s_fp, vf, u0, 4)
        self.flag_set(s_fo, one, 2)
        self.stamp(9)
        def oload(h, tb):
            L = [f'buffer_load_dwordx4 {vr(RING+8*(h%NR)+4*tb,4)}, v{l16}, {srd(sWS)}, s{s_ob+tb} offen offset:{1024*(h&3)} sc1']
            if h & 3 == 3 and h < 31:
                if tb == 0: L += [f's_add_u32 s{s_ooff}, s{s_ooff}, 4096', f's_and_b32 s{s_ooff}, s{s_ooff}, 0x7fff', f's_add_u32 s{s_ob}, s{s_obase}, s{s_ooff}']
                else: L += [f's_add_u32 s{s_ob+1}, s{s_ob}, 32768']
            return L
        S = []
        for h in range(PD): S += oload(h, 0) + oload(h, 1)
        for h in range(32):
            R = oreads(h+1) if h < 31 else []
            if h == 15: S += [f'v_add_u32 v{awo+nb}, 0x10000, v{awo+nb}' for nb in range(4)]
            k = 0
            for nb in range(4):
                for tb in range(2):
                    S.append(mf16(oacc(tb, nb), OW[h&1]+4*nb, RING+8*(h%NR)+4*tb, oacc(tb, nb)))
                    if R: S.append(R[k])
                    for j in range(2):
                        if k == self.opos[j] and h + PD < 32: S += oload(h+PD, j)
                    k += 1
            if h == 15 - PD: S.append('s_barrier')
            if h == self.bm: S.append('s_barrier')
        self.aw(S)
        self.stamp(10)
        S = []
        for k4 in (0, 2, 1, 3):
            for k in range(4): S.append(cvt(XR+4*k4+k, OA+8*k4+2*k, OA+8*k4+2*k+1))
            S += [sw16(XR+4*k4, XR+4*k4+2), sw16(XR+4*k4+1, XR+4*k4+3),
                  f'buffer_store_dwordx4 {vr(XR+4*k4,4)}, v{vst}, {srd(sOUT)}, s{s_o+k4} offen sc1']
        self.sw(S)
        a(f's_cmp_eq_u32 s{s_l}, 3'); a('s_cbranch_scc1 L_fin')
        a.extend(stats())
        a(f's_add_u32 s{s_fo}, s{s_fo}, 4096'); a(f's_add_u32 s{s_fo+1}, s{s_fo+1}, {4096*32}')
        a('s_waitcnt vmcnt(0)')
        self.stamp(11)
        self.flag_set(s_fo, one)
        a(st_store)
        a.extend(sx(s_t, [(s_wm, 8192)], XOFF))
        a(f'v_add_u32 v{ax}, s{s_t}, v{l16}'); a(f'v_add_u32 v{ax+1}, 1024, v{ax}')
        a(f's_add_u32 s{s_l}, s{s_l}, 1')
        a('s_branch L_layer')

    def epiA(self, E, pre):
        a = self.a
        acc = E['acc']; a_tok, a_row, a_t32, a_csr, a_csv, l16, l4 = (E[k] for k in ('a_tok', 'a_row', 'a_t32', 'a_csr', 'a_csv', 'l16', 'l4'))
        s_wm, s_wh, s_a, s_b, s_c, s_d, s_e = (E[k] for k in ('s_wm', 's_wh', 's_a', 's_b', 's_c', 's_d', 's_e'))
        PK = [128, 144]; EP, KV0, ZA, NR = 160, 176, 192, 208
        wphi, nml, c32, csv = 224, 232, 236, 238
        SEL = [240, 244]
        a_phi, a_w, a_r0, a_r1, a_z, x_w, x_r = range(248, 255)
        csk = EP; csq = NR
        nmr = [KV0, KV0+8, NR, NR+8]
        if pre:
            u0, u1, u2, u3, u4 = range(208, 213)
            S = [f'v_lshrrev_b32 v{u0}, 5, v1', f'v_bfe_u32 v{u1}, v1, 2, 2', f'v_lshl_add_u32 v{u1}, v{u0}, 3, v{u1}',
                 f'v_bfe_u32 v{u2}, v1, 4, 1', f'v_and_b32 v{u3}, 3, v1', f'v_lshlrev_b32 v{u4}, 3, v{u3}', f'v_lshl_add_u32 v{u2}, v{u2}, 5, v{u4}']
            S += sx(s_t, [(s_wh, 2048)], P_PHI) + [f'v_lshl_add_u32 v{u4}, v{u1}, 6, v{u2}', f'v_add_u32 v{a_phi}, s{s_t}, v{u4}']
            S += [f's_mul_i32 s{s_t+2}, s{s_wave}, {SCR}',
                  f'v_mul_u32_u24 v{u1}, 136, v{u1}', f'v_add3_u32 v{u1}, v{u1}, v{u2}, s{s_t+2}',
                  f's_lshl_b32 s{s_t+1}, s{s_wm}, 6', f'v_add_u32 v{a_r0}, s{s_t+1}, v{u1}',
                  f's_xor_b32 s{s_t+3}, s{s_t+1}, 64', f'v_add_u32 v{a_r1}, s{s_t+3}, v{u1}',
                  f'v_and_b32 v{u4}, 31, v1', f'v_mul_u32_u24 v{u4}, 136, v{u4}', f'v_lshl_add_u32 v{u4}, v{u0}, 3, v{u4}', f'v_add_u32 v{a_w}, s{s_t+2}, v{u4}',
                  f'v_add_u32 v{x_w}, s{s_t+2}, v{l16}', f's_xor_b32 s{s_t}, s{s_wave}, 2', f's_mul_i32 s{s_t}, s{s_t}, {SCR}', f'v_add_u32 v{x_r}, s{s_t}, v{l16}']
            S += [f'v_mov_b32 v{u4}, 0x3f803f80']
            for k in range(2):
                S += [f'v_cmp_eq_u32 vcc, {k}, v{u3}', f'v_cndmask_b32 v{SEL[k]}, 0, v{u4}, vcc', f'v_mov_b32 v{SEL[k]+1}, v{SEL[k]}',
                      f'v_mov_b64 {vr(SEL[k]+2,2)}, {vr(SEL[k],2)}']
            S += [f'v_and_b32 v{u0}, 18, v1', f'v_lshlrev_b32 v{u0}, 1, v{u0}', f'v_and_or_b32 v{u0}, v1, 8, v{u0}', f'v_and_b32 v{u1}, 4, v1',
                  f'v_lshl_or_b32 v{u0}, v{u1}, 2, v{u0}', f'v_and_b32 v{u1}, 33, v1', f'v_lshl_or_b32 v{a_z}, v{u1}, 25, v{u0}',
                  f'v_lshl_or_b32 v{a_z}, v{u1}, 30, v{a_z}']
            S += sx(s_t, [(s_l, 16), (s_g, 2), (s_wh, 1)])
            S += sx(s_d, [(s_t, 65536), (s_wm, 32768), (s_m, 2048)], WS_KVP) + sx(s_e, [(s_t, 2048), (s_m, 128), (s_wm, 64)], WS_ZP)
            S += sx(s_b, [(s_t, 128)], WS_ZF) + sx(s_c, [(s_t, 4096)], WS_KVF)
            a.extend(S)
            return
        S = []
        for b in range(4): S.append(f'ds_read_b32 v{nml+b}, v{a_tok} offset:{64*b}')
        for nb in range(2): S.append(f'ds_read_b128 {vr(csk+4*nb,4)}, v{a_csr} offset:{256+64*nb}')
        for u in range(2):
            for t in range(2): S.append(f'ds_read_b64_tr_b16 {vr(wphi+4*u+2*t,2)}, v{a_phi} offset:{(16*t+4*u)*64}')
        for nb in range(2): S.append(f'ds_read_b32 v{csv+nb}, v{a_csv} offset:{512+64*nb}')
        for b in range(4):
            S.append(f'ds_read_b128 {vr(nmr[b],4)}, v{a_row} offset:{64*b}')
            S.append(f'ds_read_b128 {vr(nmr[b]+4,4)}, v{a_row} offset:{512+64*b}')
            if b == 0:
                for Tt in range(2): S.append(f'ds_read_b32 v{c32+Tt}, v{a_t32} offset:{512+128*Tt}')
        def qk_prep(n0, cs):
            L = []
            for b in range(4):
                for k in range(4): L.append(pk('fma', acc(b, n0)+2*k, cs+2*k, ('b', nml+b), acc(b, n0)+2*k))
                for k in range(4): L.append(cvt(acc(b, n0)+k, acc(b, n0)+2*k, acc(b, n0)+2*k+1))
            for Tt in range(2):
                for k in range(4): L.append(sw16(acc(2*Tt, n0)+k, acc(2*Tt+1, n0)+k))
                L += [mf32(PK[Tt], wphi, acc(2*Tt, n0)), mf32(PK[Tt], wphi+4, acc(2*Tt+1, n0), PK[Tt])]
            return L
        def vprep(b):
            r = acc(b, 4); P, C = [], []
            for nb in range(2):
                for p in range(2): P.append(pk('fma', r+4*nb+2*p, nmr[b]+2*p, ('b', csv+nb), r+4*nb+2*p))
            for nb in range(2):
                for p in range(2): P.append(pk('mul', r+4*nb+2*p, r+4*nb+2*p, nmr[b]+4+2*p))
            for k in range(4): C.append(cvt(r+k, r+2*k, r+2*k+1))
            return P, C, [sw16(r, r+2), sw16(r+1, r+3)]
        def softmax(Tt):
            x = PK[Tt]; c = c32 + Tt
            ta, tb = ((acc(2, 3), acc(3, 3)), (acc(2, 2), acc(3, 2)))[Tt]
            mx, mn, bp, bm = ta, ta+1, tb, tb+1
            L = [f'v_max3_f32 v{mx}, v{x}, v{x+1}, v{x+2}', f'v_max3_f32 v{mn}, -v{x}, -v{x+1}, -v{x+2}']
            for k in range(3, 15, 2):
                L += [f'v_max3_f32 v{mx}, v{mx}, v{x+k}, v{x+k+1}', f'v_max3_f32 v{mn}, v{mn}, -v{x+k}, -v{x+k+1}']
            L += [f'v_max_f32 v{mx}, v{mx}, v{x+15}', f'v_max_f32 v{mn}, v{mn}, -v{x+15}']
            L += [sw32(mx, mn), f'v_max_f32 v{mx}, v{mx}, v{mn}', f'v_mul_f32 v{bm}, -v{mx}, v{c}', f'v_mov_b32 v{bp}, v{bm}', sw32(bp, bm)]
            parts = [L]; L = []
            for k in range(0, 16, 2): L.append(pk('fma', EP+k, x+k, ('b', c), ('b', bp)))
            for k in range(0, 16, 2): L.append(pk('fma', x+k, x+k, ('b', c), ('b', bm), neg=[1, 0, 0]))
            parts.append(L); L = []
            for k in range(16): L.append(f'v_exp_f32 v{EP+k}, v{EP+k}')
            for k in range(16): L.append(f'v_exp_f32 v{x+k}, v{x+k}')
            parts.append(L); L = []
            sp, sm = ta, ta+2
            r1, r2 = tb+2, tb+3
            L += [pk('add', sp, EP, EP+2), pk('add', sm, x, x+2)]
            for k in range(4, 16, 2): L += [pk('add', sp, sp, EP+k), pk('add', sm, sm, x+k)]
            L += [f'v_add_f32 v{sp}, v{sp}, v{sp+1}', f'v_add_f32 v{sm}, v{sm}, v{sm+1}', sw32(sp, sm), f'v_add_f32 v{sp}, v{sp}, v{sm}',
                  f'v_rcp_f32 v{r2}, v{sp}', f'v_mov_b32 v{r1}, v{r2}', sw32(r1, r2)]
            for k in range(0, 16, 2): L.append(pk('mul', x+k, x+k, ('b', r2)))
            for k in range(8): L.append(cvt(x+k, x+2*k, x+2*k+1))
            for k in range(0, 16, 2): L.append(pk('mul', EP+k, EP+k, ('b', r1)))
            for k in range(8): L.append(cvt(x+8+k, EP+2*k, EP+2*k+1))
            return parts + [L]
        FR = [[acc(0, 2), acc(0, 3)], [acc(1, 2), acc(1, 3)]]
        def to_lds(x):
            return [f'ds_write_b64 v{a_w}, {vr(x+8*(1-sg)+2*j,2)} offset:{64*sg+16*j}' for sg in (1, 0) for j in range(4)]
        def frags():
            return [f'ds_read_b64_tr_b16 {vr(FR[k][u]+2*tt,2)}, v{(a_r0, a_r1)[k]} offset:{(16*u+4*tt)*136}' for k in (1, 0) for u in range(2) for tt in range(2)]
        KV1 = PK[0]
        def kvm(Tt):
            L = []
            for k, K in ((1, KV1), (0, KV0)):
                for u in range(2): L.append(mf32(K, FR[k][u], acc(2*Tt+u, 4), None if (Tt == 0 and u == 0) else K))
                for u in range(2): L.append(mf32(ZA, SEL[k], FR[k][u], None if (Tt == 0 and u == 0 and k == 1) else ZA))
            return L
        sc = sched if self.sch else (lambda L: L)
        K = qk_prep(2, csk); isM = lambda t: t.startswith('v_mfma')
        VP_ = [vprep(b) for b in range(4)]
        sm0, sm1 = softmax(0), softmax(1)
        S = sc(S + [t for t in K if not isM(t)] + [f'v_mul_f32 v{c32+Tt}, {f2u(LOG2E)}, v{c32+Tt}' for Tt in range(2)] + VP_[0][0] + VP_[1][0])
        S += sc([t for t in K if isM(t)] + VP_[0][1] + VP_[1][1] + VP_[0][2] + VP_[1][2] + sm0[0])
        S += sc(sm0[1] + sm0[2] + sm1[0] + sm0[3] + to_lds(PK[0]) + frags())
        S += sm1[1] + interleave(kvm(0), sm1[2][2:], per=[4]*7 + [2]) + sm1[2][:2]
        S += sc(sm1[3] + to_lds(PK[1]) + frags() + sum((VP_[b][k] for k in range(3) for b in (2, 3)), []), lambda t: t.startswith('ds_read'))
        M = kvm(1)
        X = [f'ds_write_b128 v{x_w}, {vr(KV1+4*k,4)} offset:{1024*k}' for k in range(4)]
        S += M[0:5] + X[0:2] + M[5:6] + X[2:4] + [f'ds_write_b32 v{x_w}, v{ZA+1} offset:4096'] + M[6:8]
        self.aw(S); S = []
        S += ['s_waitcnt lgkmcnt(0)', 's_barrier']
        for k in range(4): S.append(f'ds_read_b128 {vr(EP+4*k,4)}, v{x_r} offset:{1024*k}')
        S.append(f'ds_read_b32 v{csv}, v{x_r} offset:4096')
        for u in range(2):
            for k in range(4): S.append(pk('add', KV0+8*u+2*k, KV0+8*u+2*k, EP+8*u+2*k))
            for k in range(4): S.append(cvt(KV0+8*u+k, KV0+8*u+2*k, KV0+8*u+2*k+1))
            S.append(f'buffer_store_dwordx4 {vr(KV0+8*u,4)}, v{l16}, {srd(sWS)}, s{s_d} offen offset:{1024*u} sc1')
        S += [f'v_add_f32 v{ZA}, v{ZA}, v{csv}', f'v_mov_b32_dpp v{ZA+3}, v{ZA} quad_perm:[1,0,3,2] row_mask:0xf bank_mask:0xf', cvt(ZA, ZA, ZA+3),
              f'buffer_store_dword v{ZA}, v{a_z}, {srd(sWS)}, s{s_e} offen sc1']
        self.sw(S, name='A k-part'); S = []
        a('s_barrier')
        self.stamp(3)
        u3, u4 = ZA + 4, ZA + 5
        for nb in range(2): S.append(f'ds_read_b128 {vr(csq+4*nb,4)}, v{a_csr} offset:{64*nb}')
        S += qk_prep(0, csq) + sum(softmax(0) + softmax(1), [])
        S += [f'v_lshrrev_b32 v{u3}, 5, v1', f'v_and_b32 v{u4}, 1, v1', f'v_lshlrev_b32 v{u4}, 6, v{u4}', f'v_lshl_add_u32 v{a_z}, v{u3}, 4, v{u4}',
              f'v_bfe_u32 v{u4}, v1, 4, 1', f'v_lshlrev_b32 v{u4}, 15, v{u4}', f'v_lshl_add_u32 v{u4}, v{u3}, 8, v{u4}',
              f'v_and_b32 v{u3}, 15, v1', f'v_lshl_add_u32 v{a_w}, v{u3}, 4, v{u4}', f's_add_u32 s{s_d}, s{s_a}, 65536']
        self.sw(S, name='A q-part'); S = []
        self.stamp(4)
        a('s_barrier')
        self.stamp(7)
        KF = KV0; ZF = EP
        self.ll_wait([f'buffer_load_dwordx4 {vr(ZF+4*u,4)}, v{a_z}, {srd(sWS)}, s{s_b} offen offset:{32*u} sc1' for u in range(2)] +
                     [f'buffer_load_dwordx4 {vr(KF+4*k,4)}, v{l16}, {srd(sWS)}, s{s_c} offen offset:{1024*k} sc1' for k in range(4)],
                     list(range(ZF, ZF+8)) + list(range(KF, KF+16)), u3, u4, 5)
        self.stamp(5)
        ACC = E['ACC']
        for Tt in range(2):
            N, DP, DM = ACC + 48*Tt, ACC + 48*Tt + 16, ACC + 48*Tt + 32
            x = PK[Tt]
            S += [mf32(DP, ZF, x+8), mf32(DP, ZF+4, x+12, DP), mf32(DM, ZF, x), mf32(DM, ZF+4, x+4, DM),
                  mf32(N, KF, x+8), mf32(N, KF+4, x+12, N), mf32(N, KF+8, x, N), mf32(N, KF+12, x+4, N)]
            S += [f'v_add_f32 v{DP}, v{DP}, v{DM+1}', f'v_add_f32 v{DP}, {f2u(1e-6)}, v{DP}', f'v_rcp_f32 v{DP}, v{DP}']
            for p in range(2):
                for jj in range(2):
                    j = p + 2*jj
                    for k in range(2):
                        r = N + 4*j + 2*k
                        if Tt == 0: S += [f'v_mul_f32 v{r}, v{DP}, v{r}', f'v_mul_f32 v{r+1}, v{DP}, v{r+1}']
                        else: S.append(pk('mul', r, r, ('b', DP)))
                        S.append(cvt(DM+4+4*p+2*jj+k, r, r+1))
                S.append(f'buffer_store_dwordx4 {vr(DM+4+4*p,4)}, v{a_w}, {srd(sWS)}, s{(s_a, s_d)[Tt]} offen offset:{512*p} sc1')
        self.sw(S, name='A finish')
        self.stamp(6)

    def epiB(self, E, pre):
        a = self.a
        acc = E['acc']; a_tok, a_row, a_csr, a_csv, l16 = (E[k] for k in ('a_tok', 'a_row', 'a_csr', 'a_csv', 'l16'))
        s_wm, s_wh, s_a, s_b, s_c, s_d, s_e = (E[k] for k in ('s_wm', 's_wh', 's_a', 's_b', 's_c', 's_d', 's_e'))
        BI, BI0, MK, a_h = 236, 244, 248, 252
        if pre:
            t1, t2, t3 = 208, 209, 210
            S = [f'v_and_b32 v{t1}, 15, v1', f'v_lshrrev_b32 v{t2}, 4, v1', f'v_lshlrev_b32 v{t2}, 2, v{t2}', f'v_sub_u32 v{t1}, v{t1}, v{t2}',
                 f'v_mov_b32 v{t3}, {f2u(-1e30)}']
            for blk in range(2):
                for i in range(4):
                    S += [f'v_add_u32 v{t2}, {(16 if blk == 0 else 0) - i}, v{t1}', f'v_and_b32 v{t2}, -15, v{t2}', f'v_cmp_eq_u32 vcc, 0, v{t2}',
                          f'v_cndmask_b32 v{BI+4*blk+i}, v{t3}, 0, vcc']
                    if i % 2 == 0: S += [f'v_cndmask_b32 v{MK+2*blk+i//2}, 0, -1, vcc', f'v_lshrrev_b32 v{MK+2*blk+i//2}, 16, v{MK+2*blk+i//2}']
                    else: S += [f'v_cndmask_b32 v{t2}, 0, -1, vcc', f'v_lshl_or_b32 v{MK+2*blk+i//2}, v{t2}, 16, v{MK+2*blk+i//2}']
            S += sx(s_b, [(s_l, 1 << 19), (s_m, 1 << 16), (s_g, 4096), (s_wh, 2048)], WS_HALO - (1 << 19))
            S += [f's_add_u32 s{s_c}, s{s_b}, 65536', f's_cmp_eq_u32 s{s_m}, 15', f's_cselect_b32 s{s_c}, {BIG}, s{s_c}',
                  f's_cmp_eq_u32 s{s_wm}, 0', f's_cselect_b32 s{s_c}, {BIG}, s{s_c}',
                  f's_or_b32 s{s_t}, s{s_m}, s{s_wm}', f's_cselect_b32 s{s_b}, s{s_b}, {BIG}', 's_cselect_b64 vcc, -1, 0']
            for i in range(4): S.append(f'v_cndmask_b32 v{BI0+i}, v{t3}, v{BI+i}, vcc')
            S += sx(s_t, [(s_wh, 2048)], P_PHI) + [f'v_add_u32 v{a_h}, s{s_t}, v{l16}']
            S += [f's_add_u32 s{s_t+1}, s{s_t}, 1024', f's_cmp_eq_u32 s{s_wm}, 0', f's_cselect_b32 s{s_t}, s{s_t}, {L_P + 7168}', f's_cselect_b32 s{s_t+1}, s{s_t+1}, {L_P + 7168}',
                  f'v_add_u32 v{a_h+1}, s{s_t}, v{l16}', f'v_add_u32 v{a_h+2}, s{s_t+1}, v{l16}']
            S += [f's_add_u32 s{s_d}, s{s_a}, 65536']
            a.extend(S)
            return
        V = Alloc('v', 128, 236)
        nmr = V.get(16, 4); rsr = V.get(16, 4)
        nml = V.get(4, 4); rsl = V.get(4, 4); csq = V.get(8, 4); csk = V.get(8, 4)
        VP = [V.get(12, 4), V.get(12, 4)]
        HB = V.get(8, 4)
        U = V.get(8, 4); M = V.get(4, 4); csv = V.get(2, 2); t1 = V.get(); t2 = V.get()
        S = []
        for b in (3, 0, 1, 2):
            S += [f'ds_read_b32 v{nml+b}, v{a_tok} offset:{64*b}', f'ds_read_b32 v{rsl+b}, v{a_tok} offset:{512+64*b}']
            if b == 3:
                for nb in range(2): S.append(f'ds_read_b128 {vr(csk+4*nb,4)}, v{a_csr} offset:{768+256+64*nb}')
                for nb in range(2): S.append(f'ds_read_b32 v{csv+nb}, v{a_csv} offset:{768+512+64*nb}')
            S += [f'ds_read_b128 {vr(nmr+4*b,4)}, v{a_row} offset:{64*b}', f'ds_read_b128 {vr(rsr+4*b,4)}, v{a_row} offset:{512+64*b}']
        for nb in range(2): S.append(f'ds_read_b128 {vr(csq+4*nb,4)}, v{a_csr} offset:{768+64*nb}')
        def kprep(b):
            r = acc(b, 2); L = []
            for k in range(4): L.append(pk('fma', r+2*k, csk+2*k, ('b', nml+b), r+2*k))
            for k in range(4): L.append(pk('mul', r+2*k, r+2*k, ('b', rsl+b)))
            for k in range(4): L.append(cvt(r+k, r+2*k, r+2*k+1))
            return L
        def vprep(b):
            r = acc(b, 4); L = []
            for nb in range(2):
                for p in range(2): L.append(pk('fma', r+4*nb+2*p, nmr+4*b+2*p, ('b', csv+nb), r+4*nb+2*p))
            for nb in range(2):
                for p in range(2): L.append(pk('mul', r+4*nb+2*p, r+4*nb+2*p, rsr+4*b+2*p))
            for nb in range(2):
                for p in range(2):
                    if b == 3: L.append(cvt(acc(3, 3)+2*nb+p, r+4*nb+2*p, r+4*nb+2*p+1))
                    else: L.append(cvt(VP[nb]+2+2*b+p, r+4*nb+2*p, r+4*nb+2*p+1))
            return L
        def qprep(b):
            r = acc(b, 0); L = []
            for k in range(4): L.append(pk('fma', r+2*k, csq+2*k, ('b', nml+b), r+2*k))
            for k in range(4): L.append(cvt(r+k, r+2*k, r+2*k+1))
            return L
        S += kprep(3) + vprep(3)
        for k in range(2): S.append(f'buffer_store_dwordx4 {vr(acc(3,2)+4*k,4)}, v{l16}, {srd(sWS)}, s{s_c} offen offset:{1024*k} sc1')
        for k in range(2): S.append(f'ds_write_b128 v{a_h+1+k}, {vr(acc(3,2)+4*k,4)}')
        for nb in range(2): S.append(f'v_mov_b64 {vr(VP[nb]+8,2)}, {vr(acc(3,3)+2*nb,2)}')
        for b in range(3): S += kprep(b) + vprep(b)
        for b in range(4): S += qprep(b)
        for b in range(4): S.append(f'v_mul_f32 v{rsl+b}, {f2u(LOG2E * 32 ** -0.5)}, v{rsl+b}')
        SS = nmr
        assert rsr == nmr + 16
        def logits(b):
            s = SS + 8*b
            L = [mf16(s, HB if b == 0 else acc(b-1, 2), acc(b, 0), BI0 if b == 0 else BI), mf16(s+4, acc(b, 2), acc(b, 0), BI+4)]
            for p in range(2):
                L += [f'v_max3_f32 v{U+2*b+p}, v{s+2*p}, v{s+2*p+1}, v{s+4+2*p}', f'v_max_f32 v{U+2*b+p}, v{U+2*b+p}, v{s+5+2*p}',
                      f'v_mul_f32 v{U+2*b+p}, v{rsl+b}, v{U+2*b+p}']
            L.append(f'v_max_f32 v{M+b}, v{U+2*b}, v{U+2*b+1}')
            return L
        for b in (1, 2, 3): S += logits(b)
        self.sw(S, crit=lambda t: t.startswith('buffer_store'), name='B prep'); S = []
        a('s_waitcnt lgkmcnt(0)'); a('s_barrier')
        self.stamp(3)
        L1, L3 = self.lab('hg'), self.lab('hd')
        a(f's_cmp_eq_u32 s{s_wm}, 0'); a(f's_cbranch_scc1 {L1}')
        for k in range(2): a(f'ds_read_b128 {vr(HB+4*k,4)}, v{a_h} offset:{1024*k}')
        a('s_waitcnt lgkmcnt(0)')
        a(f's_branch {L3}')
        a.label(L1)
        self.ll_wait([f'buffer_load_dwordx4 {vr(HB+4*k,4)}, v{l16}, {srd(sWS)}, s{s_b} offen offset:{1024*k} sc1' for k in range(2)],
                     list(range(HB, HB+8)), t1, t2, 0)
        a.label(L3)
        self.stamp(4)
        S += logits(0)
        for nb in range(2): S.append(f'v_mov_b64 {vr(VP[nb],2)}, {vr(HB+4+2*nb,2)}')
        def allred(op, mid):
            L = [sw32(M, M+2), sw32(M+1, M+3), f'{op} v{M}, v{M}, v{M+2}', f'{op} v{M+1}, v{M+1}, v{M+3}', sw16(M, M+1), f'{op} v{M+1}, v{M}, v{M+1}']
            L += mid
            L += [f'v_mov_b32 v{M}, v{M+1}', sw16(M, M+1), f'v_mov_b64 {vr(M+2,2)}, {vr(M,2)}', sw32(M, M+2), sw32(M+1, M+3)]
            return L
        S += allred('v_max_f32', [])
        for b in range(4): S.append(pk('add', U+2*b, U+2*b, ('b', M+b), neg=[0, 1]))
        for k in range(8): S.append(f'v_exp_f32 v{U+k}, v{U+k}')
        for b in range(4): S.append(f'v_add_f32 v{M+b}, v{U+2*b}, v{U+2*b+1}')
        S += allred('v_add_f32', [f'v_rcp_f32 v{M+1}, v{M+1}'])
        for b in range(4): S.append(pk('mul', U+2*b, U+2*b, ('b', M+b)))
        for b in range(4):
            P = SS + 8*b; O = acc(b, 4)
            for p in range(2): S.append(cvt(U+2*b+p, U+2*b+p, U+2*b+p))
            for blk in range(2):
                for p in range(2): S.append(f'v_and_b32 v{P+2*blk+p}, v{U+2*b+p}, v{MK+2*blk+p}')
            for db in range(2): S.append(mf16(O+4*db, VP[db]+2*b, P))
        S += [f's_add_u32 s{s_b}, s{s_a}, 32768', f's_add_u32 s{s_c}, s{s_d}, 32768']
        for b in range(4):
            O = acc(b, 4)
            for k in range(4): S.append(cvt(O+k, O+2*k, O+2*k+1))
            S.append(f'buffer_store_dwordx4 {vr(O,4)}, v{l16}, {srd(sWS)}, s{(s_a, s_b, s_d, s_c)[b]} offen sc1')
        self.sw(S, name='B finish')
        self.stamp(6)

    def build(self):
        a = self.a
        self.prologue()
        self.compute()
        self.loader()
        self.helper()
        a.label('L_fin')
        self.stamp(15)
        self.stamp_out()
        a('s_waitcnt vmcnt(0)')
        a.label('L_end')
        a('s_endpgm')
        a.pad()
        assert a.maxreg('v') <= 255 and a.maxreg('s') < 96
        return a.text()


def generate(listform=False, **kw):
    body = Gen(**kw).build()
    ref = open('interleave_layers__linear_kernel_hedgehog__sliding_local_dilated__prompt.s.ref').read() if not listform else ''
    head = ''.join(l + '\n' for l in ref.split('\n') if l.startswith(';') and '@launch' not in l)
    if listform: head += f'; @launch kernel={KNAME} grid=(256,1,1) block=(512,1,1) lds={LDS_BYTES}\n'
    else: head += f'; @launch grid=(256,1,1) block=(512,1,1) lds={LDS_BYTES}\n'
    return head + '.amdgcn_target "amdgcn-amd-amdhsa--gfx950"\n' + kernel_head(KNAME) + body + kernel_desc(KNAME, 256, 96, 256)

if __name__ == '__main__':
    kw = eval(sys.argv[2]) if len(sys.argv) > 2 else {}
    open(sys.argv[1], 'w').write(generate(**kw))
```

```python
import sys, struct
sys.path.insert(0, 'work')
from asmlib import *

KNAME = 'interleave_layers__linear_kernel_hedgehog__sliding_local_dilated__prompt_kernel'

WS_CTR, WS_STAMP, WS_ST, WS_CS = 0x0, 0x100000, 0x200000, 0x300000
WS_HALO, WS_KVF, WS_ZP, WS_ZF, WS_KVP = 0x400000, 0x600000, 0x680000, 0x6C0000, 0x800000
WS_RF = 0x700000
WS_XI, WS_OI, WS_END = 0xC00000, 0x1800000, 0x2800000
BIG = 0x40000000
STG = 40960
XOFF = 24576
L_WO = 24576
L_SPARE = 3 * STG
L_P = 155648
P_NM, P_RS, P_CS, P_MODE, P_CNT, P_PHI = L_P, L_P + 512, L_P + 1024, L_P + 2816, L_P + 2832, L_P + 3072
LDS_BYTES = 163840
SCR = 5120
LOG2E = 1.4426950408889634
def f2u(x): return '0x%08x' % struct.unpack('<I', struct.pack('<f', x))[0]

s_fast = 3
pAX, pAW, pPHI, pAWO, pBW, pBWO, pOUT, pDBG, pWS = 4, 6, 8, 10, 14, 16, 18, 20, 22
sWS, sX, sW, sWO, sOUT, sDBG = 24, 28, 32, 36, 40, 44
s_m, s_g, s_wave, s_l = 48, 49, 50, 51
s_t = 52
s_cnt, s_x = 60, 61
s_i = 62
s_stamp = 63
s_rot = 64
s_rot2 = 95
s_ft, s_fn, s_fd = 90, 91, 88
def srd(b): return 's[%d:%d]' % (b, b + 3)


def sx(d, terms, const=0):
    L = []
    for n, (r, k) in enumerate([t for t in terms if t[1]]):
        t = d if n == 0 else s_x
        if k == 1 and n: t = r
        elif k == 1: L.append(f's_mov_b32 s{t}, s{r}')
        elif k > 0 and k & (k - 1) == 0: L.append(f's_lshl_b32 s{t}, s{r}, {k.bit_length()-1}')
        else: L.append(f's_mul_i32 s{t}, s{r}, {k}')
        if n: L.append(f's_add_u32 s{d}, s{d}, s{t}')
    if const: L.append(f's_add_u32 s{d}, s{d}, {const:#x}' if const > 0 else f's_sub_u32 s{d}, s{d}, {-const:#x}')
    return L

def pkop(r):
    if isinstance(r, tuple):
        return vr(r[1] & ~1, 2), r[1] & 1, r[1] & 1
    assert r % 2 == 0
    return vr(r, 2), 0, 1
def pk(op, d, *src, neg=None):
    o = [pkop(s) for s in src]
    t = 'v_pk_%s_f32 %s, %s' % (op, vr(d, 2), ', '.join(x[0] for x in o))
    lo = [x[1] for x in o]; hi = [x[2] for x in o]
    if any(lo): t += ' op_sel:[%s]' % ','.join(map(str, lo))
    if not all(hi): t += ' op_sel_hi:[%s]' % ','.join(map(str, hi))
    if neg: t += ' neg_lo:[%s] neg_hi:[%s]' % (','.join(map(str, neg)), ','.join(map(str, neg)))
    return t
def cvt(d, a, b): return f'v_cvt_pk_bf16_f32 v{d}, v{a}, v{b}'
def sw16(a, b): return f'v_permlane16_swap_b32 v{a}, v{b}'
def sw32(a, b): return f'v_permlane32_swap_b32 v{a}, v{b}'
def mf16(d, A, B, C=None): return f'v_mfma_f32_16x16x32_bf16 {vr(d,4)}, {vr(A,4)}, {vr(B,4)}, ' + (vr(C, 4) if C is not None else '0')
def mf32(d, A, B, C=None): return f'v_mfma_f32_32x32x16_bf16 {vr(d,16)}, {vr(A,4)}, {vr(B,4)}, ' + (vr(C, 16) if C is not None else '0')


class Gen:
    def __init__(self, prof=0, limit=40000, dist=2, touch=1, bm=27, local=1, pd=5, sch=1, hprio=2, opos=(1, 5), warm=1, nap=4, probe=None):
        self.a = Asm()
        assert bm >= 16
        self.__dict__.update(prof=prof, limit=limit, dist=dist, touch=touch, bm=bm, local=local, pd=pd, sch=sch, hprio=hprio, opos=opos, warm=warm, nap=nap, probe=probe)
        self.nlab = 0

    def lab(self, p):
        self.nlab += 1
        return 'L_%s_%d' % (p, self.nlab)

    def aw(self, L):
        self.a.extend(autowait(L))
    def sw(self, L, crit=None, name=''):
        if self.sch:
            L = sched(L, crit)
            if name and __name__ == '__main__': print('sched', name, len(L), 'instructions, about', sched.last_estimate, 'cycles', file=sys.stderr)
        self.a.extend(autowait(L))

    def cond(self, test, body):
        L = self.lab('skip')
        self.a.extend(test); self.a(f's_cbranch_scc0 {L}')
        body()
        self.a.label(L)

    def spin(self, issue, check, vt, tag, pre=False):
        a = self.a
        L, C, D = self.lab('spin'), self.lab('chk'), self.lab('done')
        a(f's_mov_b32 s{s_cnt}, 0')
        if pre:
            a(f's_branch {C}')
            a.label(L); a.extend(issue); a('s_waitcnt vmcnt(0)')
            a.label(C); a.extend(check)
        else:
            a.label(L); self.aw(list(issue) + list(check))
        a('s_cmp_eq_u64 vcc, 0'); a(f's_cbranch_scc1 {D}')
        a(f's_add_u32 s{s_cnt}, s{s_cnt}, 1')
        a(f's_cmp_lt_u32 s{s_cnt}, {self.limit}'); a(f's_cbranch_scc1 {L}')
        a(f'v_mov_b32 v{vt}, {1 << tag}')
        a(f'buffer_atomic_or v{vt}, off, {srd(sDBG)}, 0 offset:4 sc1')
        a.label(D)

    def ll_wait(self, loads, regs, t1, t2, tag, pre=False):
        S = []
        h = len(regs) // 2
        for t, R in ((t1, regs[:h]), (t2, regs[h:])):
            S.append(f'v_max_u32 v{t}, v{R[0]}, v{R[1]}')
            for k in range(2, len(R), 2): S.append(f'v_max3_u32 v{t}, v{t}, v{R[k]}, v{R[k+1]}')
        S += [f'v_max_u32 v{t1}, v{t1}, v{t2}', f'v_cmp_eq_u32 vcc, -1, v{t1}']
        self.spin(loads, S, t1, tag, pre)

    def flag_set(self, soff, vt, which=3):
        a = self.a
        a('s_mov_b64 exec, 1')
        if which & 1: a(f'buffer_store_dword v{vt}, off, {srd(sWS)}, s{soff}')
        if which & 2: a(f'buffer_store_dword v{vt}, off, {srd(sWS)}, s{soff+1} sc1')
        a('s_mov_b64 exec, -1')
    def flag_addr(self, va, vt, soff, remote=False):
        L = [f'v_bfe_u32 v{va}, v1, 1, 3', f'v_and_b32 v{vt}, 1, v1', f'v_lshl_add_u32 v{va}, v{va}, 2, v{vt}']
        if remote: return L + [f'v_lshlrev_b32 v{va}, 7, v{va}']
        return L + [f's_cmp_eq_u32 s{s_fast}, 1', f's_cselect_b32 s{s_t}, 0, 5', f's_cselect_b32 s{s_t+1}, 0, {WS_RF}',
                    f's_lshl_b32 s{soff}, s{soff}, s{s_t}', f's_add_u32 s{soff}, s{soff}, s{s_t+1}', f's_add_u32 s{s_t}, s{s_t}, 2',
                    f'v_lshlrev_b32 v{va}, s{s_t}, v{va}']
    def flag_load(self, soff, va, vt): return f'buffer_load_dword v{vt}, v{va}, {srd(sWS)}, s{soff} offen sc1'
    def flag_wait(self, soff, va, vt, tag, pre=False, nap=0):
        self.spin(([f's_sleep {nap}'] if nap else []) + [self.flag_load(soff, va, vt)], [f'v_cmp_eq_u32 vcc, 0, v{vt}'], vt, tag, pre)
    def get_mode(self, vt):
        self.a.extend([f'v_mov_b32 v{vt}, {P_MODE}', f'ds_read_b32 v{vt}, v{vt}', 's_waitcnt lgkmcnt(0)', f'v_readfirstlane_b32 s{s_fast}, v{vt}'])

    def stamp(self, k):
        if self.probe:
            for n, (pl, pk_) in enumerate(self.probe[:2]):
                if pk_ == k:
                    def body():
                        self.a(f's_memrealtime s[{s_t+6}:{s_t+7}]'); self.a('s_waitcnt lgkmcnt(0)'); self.a(f's_mov_b32 s{93+n}, s{s_t+6}')
                    self.cond([f's_cmp_eq_u32 s{s_l}, {pl}'], body)
        if not self.prof or self.prof >= 5: return
        a = self.a
        a(f'{"s_memtime" if self.prof == 4 else "s_memrealtime"} s[{s_t+6}:{s_t+7}]')
        a(f's_mov_b32 s{s_stamp}, m0')
        a(f's_lshl_b32 m0, s{s_l}, 4'); a(f's_add_u32 m0, m0, {k}')
        a('s_waitcnt lgkmcnt(0)')
        a(f'v_writelane_b32 v255, s{s_t+6}, m0')
        a(f's_mov_b32 m0, s{s_stamp}')
    def stamp_out(self):
        if not self.prof: return
        a = self.a
        a.extend(sx(s_t, [(2, 2048), (s_wave, 256)], WS_STAMP))
        a('v_lshlrev_b32 v254, 2, v1')
        a(f'buffer_store_dword v255, v254, {srd(sWS)}, s{s_t} offen')

    def prologue(self):
        a = self.a
        a('s_cmp_ge_u32 s2, 256'); a('s_cbranch_scc1 L_end')
        a('s_load_dwordx16 s[4:19], s[0:1], 0')
        a('s_load_dwordx4 s[20:23], s[0:1], 64')
        a('v_lshrrev_b32 v2, 6, v0')
        a(f'v_readfirstlane_b32 s{s_wave}, v2')
        a('v_and_b32 v1, 63, v0')
        a(f's_and_b32 s{s_rot}, s2, 3'); a(f's_lshl_b32 s{s_rot}, s{s_rot}, 2')
        a(f's_bfe_u32 s{s_t}, s2, 0x20003'); a(f's_add_u32 s{s_m}, s{s_rot}, s{s_t}')
        a(f's_mov_b32 s{s_rot}, s{s_m}')
        a(f's_and_b32 s{s_rot2}, s2, 4'); a(f's_lshl_b32 s{s_rot2}, s{s_rot2}, 1')
        a(f's_lshr_b32 s{s_g}, s2, 5'); a(f's_add_u32 s{s_g}, s{s_g}, s{s_rot2}')
        a(f's_mov_b32 s{s_l}, 0'); a(f's_mov_b32 s{s_fast}, 0')
        for b, n in ((sWS, WS_END), (sX, 2048*1024*2), (sW, 1024*3072*2), (sWO, 1024*1024*2), (sOUT, WS_END), (sDBG, 256)):
            a(f's_mov_b32 s{b+2}, {n}'); a(f's_mov_b32 s{b+3}, 0x20000')
        if self.prof: a('v_mov_b32 v255, 0')
        self.stamp(0)
        a(f's_cmp_ge_u32 s{s_wave}, 6'); a('s_cbranch_scc1 L_helper')
        a(f's_cmp_ge_u32 s{s_wave}, 4'); a('s_cbranch_scc1 L_loader')
    def pointers(self):
        a = self.a
        a('s_waitcnt lgkmcnt(0)')
        for b, p in ((sWS, pWS), (sX, pAX), (sW, pAW), (sWO, pAWO), (sOUT, pWS), (sDBG, pDBG)):
            a(f's_mov_b64 s[{b}:{b+1}], s[{p}:{p+1}]')

    def trickle_setup(self):
        a = self.a
        a(f's_cmp_eq_u32 s{s_l}, 0')
        a(f's_cselect_b64 s[{sOUT}:{sOUT+1}], s[{pBW}:{pBW+1}], s[{pBWO}:{pBWO+1}]')
        a(f's_cselect_b32 s{s_t}, 3, 1'); a(f's_lshl_b32 s{sOUT+2}, s{s_t}, 21'); a(f's_lshl_b32 s{s_fn}, s{s_t}, 2')
        a.extend(sx(s_ft, [(2, 8192), (s_wave, 2048)], -8192)); a(f's_mul_i32 s{s_ft}, s{s_ft}, s{s_t}')
        a(f's_cmp_lt_u32 s{s_l}, {2 if self.warm else 0}'); a(f's_cselect_b32 s{s_fn}, s{s_fn}, 0')
    def trickle(self, i):
        a = self.a
        def body():
            for r in range(4): a(f's_buffer_load_dwordx2 s[{s_fd}:{s_fd+1}], {srd(sOUT)}, s{s_ft} offset:{128*r+60}')
            a(f's_add_u32 s{s_ft}, s{s_ft}, 512')
        self.cond([f's_cmp_gt_u32 s{s_fn}, {i}'], body)

    def w_dma_offsets(self, dw, idx, t0, t1, t2):
        a = self.a
        a(f'v_lshrrev_b32 v{t0}, 3, v1'); a(f'v_mul_u32_u24 v{t0}, 6144, v{t0}')
        a(f'v_and_b32 v{t1}, 7, v1'); a(f'v_bfe_u32 v{t2}, v1, 4, 1'); a(f'v_lshlrev_b32 v{t2}, 1, v{t2}')
        a(f'v_xor_b32 v{t1}, v{t1}, v{t2}'); a(f'v_xor_b32 v{t2}, 4, v{t1}')
        a(f'v_lshl_add_u32 v{t1}, v{t1}, 4, v{t0}'); a(f'v_lshl_add_u32 v{t2}, v{t2}, 4, v{t0}')
        d = 8*6144 - 1024
        a(f's_lshl_b32 s{s_t+1}, s{s_g}, 7'); a(f'v_add_u32 v{t1}, s{s_t+1}, v{t1}'); a(f's_add_u32 s{s_t+1}, s{s_t+1}, {d}'); a(f'v_add_u32 v{t2}, s{s_t+1}, v{t2}')
        a(f's_cmp_eq_u32 s{idx}, 0')
        for t in range(3):
            c = [((3*w + t) & 1)*32*6144 + ((3*w + t) >> 1)*2048 for w in range(2)]
            a(f's_mov_b32 s{s_t}, {c[1]}'); a(f's_cmov_b32 s{s_t}, {c[0]}')
            a(f'v_add_u32 v{dw+4*t}, s{s_t}, v{t1}'); a(f'v_add_u32 v{dw+4*t+1}, s{s_t}, v{t2}')
            a(f'v_add_u32 v{dw+4*t+2}, {2*d}, v{dw+4*t}'); a(f'v_add_u32 v{dw+4*t+3}, {2*d}, v{dw+4*t+1}')

    def w_frag_addr(self, aw, head_sreg, base, t0, t1, t2, nb_list=(0, 1)):
        L = [f'v_lshrrev_b32 v{t2}, 4, v1', f'v_bfe_u32 v{t0}, v1, 2, 2', f'v_lshl_add_u32 v{t1}, v{t2}, 3, v{t0}',
             f'v_lshrrev_b32 v{t0}, 1, v{t0}', f'v_and_b32 v{t2}, 1, v{t2}', f'v_lshl_add_u32 v{t0}, v{t2}, 1, v{t0}']
        if head_sreg is not None: L += [f's_lshl_b32 s{s_t}, s{head_sreg}, 1', f'v_xor_b32 v{t0}, s{s_t}, v{t0}']
        L += [f'v_and_b32 v{t2}, 3, v1', f'v_lshlrev_b32 v{t2}, 3, v{t2}', f'v_lshl_add_u32 v{t2}, v{t1}, 7, v{t2}']
        if base: L.append(f'v_add_u32 v{t2}, {base}, v{t2}')
        for k, nb in enumerate(nb_list): L += [f'v_xor_b32 v{t1}, {nb}, v{t0}', f'v_lshl_add_u32 v{aw+k}, v{t1}, 5, v{t2}']
        return L

    def reduce_job(self, after_by=None, after_fill=None):
        a = self.a
        T = 200
        vA, vZ, vO, t1, t2 = T, T+1, T+2, T+3, T+4
        s_a, s_b, s_c, s_d, s_e = 80, 81, 82, 83, 84
        a.extend(sx(s_t, [(s_l, 32), (s_g, 4), (s_wave, 1)], -4))
        a.extend(sx(s_a, [(s_t, 32768), (s_m, 128)], WS_KVP)); a(f's_add_u32 s{s_b}, s{s_a}, 16384')
        a.extend(sx(s_d, [(s_t, 2048), (s_m, 128)], WS_KVF))
        a.extend(sx(s_c, [(s_t, 1024)], WS_ZP)); a.extend(sx(s_e, [(s_t, 64)], WS_ZF))
        a(f's_and_b32 s{s_t}, s{s_t}, 1'); a(f's_xor_b32 s{s_t+1}, s{s_m}, s{s_g}'); a(f's_or_b32 s{s_t}, s{s_t}, s{s_t+1}')
        a(f's_cselect_b32 s{s_c}, {BIG}, s{s_c}'); a(f's_cselect_b32 s{s_e}, {BIG}, s{s_e}')
        a(f'v_and_b32 v{t1}, 7, v1'); a(f'v_lshlrev_b32 v{t1}, 4, v{t1}')
        a(f'v_lshrrev_b32 v{t2}, 3, v1'); a(f'v_lshl_add_u32 v{vA}, v{t2}, 11, v{t1}')
        a(f'v_lshlrev_b32 v{vZ}, 4, v1')
        a(f'v_lshrrev_b32 v{t2}, 4, v1'); a(f'v_lshl_add_u32 v{vO}, v{t2}, 2, v{t1}')
        D = T + 8; U = 160
        def late_fill():
            for k in range(4): a(f'v_mov_b32 v{D+k}, -1')
            fill = f'buffer_store_dwordx4 {vr(D,4)}, v{vZ}, {srd(sWS)}, s{s_t} offen'
            a.extend(sx(s_t, [(s_g, 131072), (s_wave, 32768), (s_m, 2048)], WS_KVP + (1 << 21) - 4*32768)); a(fill + ' sc1'); a(fill + ' offset:1024 sc1')
            a(f's_lshr_b32 s{s_t+1}, s{s_wave}, 1'); a(f's_and_b32 s{s_t+2}, s{s_wave}, 1')
            a.extend(sx(s_t, [(s_t+2, 1 << 20), (s_m, 1 << 16), (s_g, 4096), (s_t+1, 2048)], WS_HALO - 2*2048)); a(fill + ' sc1'); a(fill + ' offset:1024 sc1')
            a.extend(sx(s_t, [(s_wave, 262144), (s_m, 16384), (s_g, 1024)], WS_ST - 3*262144))
            a.extend(sx(s_t+3, [(s_g, 16384), (s_m, 1024)], WS_CS + 262144))
            a(f's_cmp_eq_u32 s{s_wave}, 7'); a(f's_cselect_b32 s{s_t}, s{s_t+3}, s{s_t}'); a(fill + ' sc1')
            a('s_mov_b64 exec, 0xff')
            a(f's_add_u32 s{s_t}, s{s_d}, {1 << 17}'); a(fill + ' sc1')
            a(f's_add_u32 s{s_t}, s{s_e}, {1 << 12}'); a(fill + ' sc1')
            a.extend(sx(s_t, [(s_g, 4096), (s_t+1, 2048), (s_m, 128)], WS_ZP + (1 << 16) - 2*2048)); a(fill + ' sc1')
            a('s_mov_b64 exec, -1')
            a('s_waitcnt vmcnt(0)')
            if after_fill: after_fill()
        self.cond([f's_cmp_eq_u32 s{s_l}, 0'], late_fill)
        a('s_barrier')
        a('s_barrier')
        if after_by: after_by()
        self.ll_wait([f'buffer_load_dwordx4 {vr(D,4)}, v{vA}, {srd(sWS)}, s{s_a} offen sc1',
                      f'buffer_load_dwordx4 {vr(D+4,4)}, v{vA}, {srd(sWS)}, s{s_b} offen sc1',
                      f'buffer_load_dwordx4 {vr(D+8,4)}, v{vZ}, {srd(sWS)}, s{s_c} offen sc1',
                      f'buffer_load_dwordx4 {vr(D+12,4)}, v{vZ}, {srd(sWS)}, s{s_c} offen offset:1024 sc1'],
                     list(range(D, D+16)), t1, t2, 1)
        self.stamp(5)
        S = []
        for z in range(2):
            d, u = D + 8*z, U + 16*z
            for k in range(8): S += [f'v_lshlrev_b32 v{u+2*k}, 16, v{d+k}', f'v_and_b32 v{u+2*k+1}, 0xffff0000, v{d+k}']
            for k in range(4): S.append(pk('add', u+2*k, u+2*k, u+8+2*k))
            for k in range(4): S.append(sw32(u+k, u+4+k))
            S += [pk('add', u, u, u+4), pk('add', u+2, u+2, u+6), sw16(u, u+2), sw16(u+1, u+3), pk('add', u, u, u+2)]
            for k in range(2): S.append(f'v_add_f32_dpp v{u+k}, v{u+k}, v{u+k} row_ror:8 row_mask:0xf bank_mask:0xf')
            S.append(cvt(u, u, u+1))
        S += ['s_mov_b32 exec_lo, 0x00ff00ff', 's_mov_b32 exec_hi, 0x00ff00ff',
              f'buffer_store_dword v{U}, v{vO}, {srd(sWS)}, s{s_d} offen sc1',
              f'buffer_store_dword v{U+16}, v{vO}, {srd(sWS)}, s{s_e} offen sc1', 's_mov_b64 exec, -1']
        self.sw(S)
        a('s_barrier')

    def loader(self):
        a = self.a
        a.label('L_loader')
        dx, dw, dwo, t0, t1, t2, vf = 8, 16, 28, 2, 3, 4, 5
        s_ld, s_kx, s_kw, s_slot, s_mx, s_xstep, s_wo, s_wm0, s_sx, s_sw, s_xb, s_fl, s_mw = range(65, 78)
        a(f's_sub_u32 s{s_ld}, s{s_wave}, 4')
        self.w_dma_offsets(dw, s_ld, t0, t1, t2)
        a(f's_mul_i32 s{s_mw}, s{s_ld}, 12288')
        a(f's_lshl_b32 s{s_mx}, s{s_ld}, 13'); a(f's_add_u32 s{s_mx}, s{s_mx}, {XOFF}')
        def wst(slot=None):
            L = []
            for j in range(12):
                if j == 0: L.append(f's_add_u32 m0, s{s_mw}, ' + (f's{s_slot}' if slot is None else str(slot*STG)))
                elif j % 4 == 0: L.append('s_add_u32 m0, m0, 4096')
                L.append(f'buffer_load_dwordx4 v{dw+j}, {srd(sW)}, s{s_kw} offen offset:{1024*(j%4)} lds')
            a.extend(L + [f's_add_u32 s{s_sw}, s{s_sw}, 1', f's_and_b32 s{s_sw}, s{s_sw}, 15', f's_mul_i32 s{s_kw}, s{s_sw}, {64*6144}'])
        def xst(slot=None):
            L = []
            for j in range(8):
                if j == 0: L.append(f's_add_u32 m0, s{s_mx}, ' + (f's{s_slot}' if slot is None else str(slot*STG)))
                elif j == 4: L.append('s_add_u32 m0, m0, 4096')
                L.append(f'buffer_load_dwordx4 v{dx+j}, {srd(sX)}, s{s_kx} offen offset:{1024*(j%4)} sc1 lds')
            a.extend(L + [f's_add_u32 s{s_sx}, s{s_sx}, 1', f's_and_b32 s{s_sx}, s{s_sx}, 15', f's_mul_i32 s{s_kx}, s{s_sx}, s{s_xstep}', f's_add_u32 s{s_kx}, s{s_kx}, s{s_xb}'])
        def kstart():
            a(f's_mov_b32 s{s_sx}, s{s_rot}'); a(f's_mov_b32 s{s_sw}, s{s_rot}')
            a(f's_mul_i32 s{s_kw}, s{s_sw}, {64*6144}'); a(f's_mul_i32 s{s_kx}, s{s_sx}, s{s_xstep}'); a(f's_add_u32 s{s_kx}, s{s_kx}, s{s_xb}')
        a(f's_lshl_b32 s{s_xb}, s{s_m}, 18'); a(f's_mov_b32 s{s_xstep}, 128'); kstart()
        self.pointers()
        wst(0)
        a(f'v_lshrrev_b32 v{t0}, 3, v1'); a(f'v_and_b32 v{t1}, 7, v1')
        a(f'v_lshrrev_b32 v{t2}, 4, v1'); a(f'v_xor_b32 v{t1}, v{t1}, v{t2}'); a(f'v_xor_b32 v{t2}, 4, v{t1}')
        a(f's_lshl_b32 s{s_t}, s{s_ld}, 17'); a(f'v_lshl_add_u32 v{t0}, v{t0}, 11, s{s_t}')
        a(f'v_lshl_add_u32 v{t1}, v{t1}, 4, v{t0}'); a(f'v_lshl_add_u32 v{t2}, v{t2}, 4, v{t0}')
        for j in range(8): a(f'v_add_u32 v{dx+j}, {j*16384 - 1024*(j%4)}, v{t1 if j % 2 == 0 else t2}')
        xst(0); wst(1)
        a(f'v_lshrrev_b32 v{t0}, 5, v1'); a(f'v_lshlrev_b32 v{t0}, 4, v{t0}')
        a(f'v_bfe_u32 v{t1}, v1, 3, 2'); a(f'v_add_u32 v{t0}, v{t0}, v{t1}')
        a(f's_lshl_b32 s{s_t}, s{s_g}, 7'); a(f'v_lshl_add_u32 v{t0}, v{t0}, 11, s{s_t}')
        a(f'v_and_b32 v{t1}, 7, v1'); a(f'v_bfe_u32 v{t2}, v1, 4, 1'); a(f'v_lshlrev_b32 v{t2}, 1, v{t2}')
        a(f'v_xor_b32 v{t1}, v{t1}, v{t2}'); a(f'v_xor_b32 v{t2}, 4, v{t1}')
        a(f'v_lshl_add_u32 v{t1}, v{t1}, 4, v{t0}'); a(f'v_lshl_add_u32 v{t2}, v{t2}, 4, v{t0}')
        for G in range(4): a(f'v_add_u32 v{dwo+G}, {G*4*2048 - 1024*G}, v{t1 if G % 2 == 0 else t2}')
        a('s_waitcnt vmcnt(12)'); a('s_barrier')
        xst(1); wst(2)
        a('s_waitcnt vmcnt(12)'); a('s_barrier')
        xst(2)
        a('s_branch L_ld_enter')
        a.label('L_ld_layer')
        a('s_waitcnt vmcnt(8)'); a('s_barrier')
        xst(2); wst(2)
        a('s_waitcnt vmcnt(20)'); a('s_barrier')
        a.label('L_ld_enter')
        a(f's_mov_b32 s{s_i}, 0'); a(f's_mov_b32 s{s_slot}, 0')
        self.trickle_setup()
        a.label('L_ld_loop')
        xst(); wst()
        self.trickle(f's{s_i}')
        a(f's_add_u32 s{s_slot}, s{s_slot}, {STG}'); a(f's_cmp_eq_u32 s{s_slot}, {3*STG}'); a(f's_cselect_b32 s{s_slot}, 0, s{s_slot}')
        a(f's_add_u32 s{s_i}, s{s_i}, 1'); a(f's_cmp_lt_u32 s{s_i}, 13')
        a('s_waitcnt vmcnt(20)')
        a('s_barrier')
        a('s_cbranch_scc1 L_ld_loop')
        def wo(p0, n):
            a.extend(sx(s_wm0, [(s_ld, 4096)], L_WO + 4096*p0))
            a.extend(sx(s_wo, [(s_rot2, 2), (s_ld, 1)], p0)); a(f's_and_b32 s{s_wo}, s{s_wo}, 31'); a(f's_lshl_b32 s{s_wo}, s{s_wo}, 16')
            L = self.lab('wo')
            a(f's_mov_b32 s{s_i}, 0')
            a.label(L)
            a(f's_mov_b32 m0, s{s_wm0}')
            a(f's_add_u32 s{s_wm0}, s{s_wm0}, 8192')
            for G in range(4): a(f'buffer_load_dwordx4 v{dwo+G}, {srd(sWO)}, s{s_wo} offen offset:{1024*G} lds')
            a(f's_add_u32 s{s_wo}, s{s_wo}, 131072'); a(f's_and_b32 s{s_wo}, s{s_wo}, 0x1fffff')
            a(f's_add_u32 s{s_i}, s{s_i}, 1'); a(f's_cmp_lt_u32 s{s_i}, {n//2}'); a(f's_cbranch_scc1 {L}')
        wo(24, 8)
        a('s_waitcnt vmcnt(16)'); a('s_barrier')
        wo(4, 10)
        a('s_barrier')
        wo(14, 10); wo(0, 4)
        a.extend(sx(s_fl, [(s_l, 8192), (s_m, 256), (s_rot2, 16), (s_ld, 8)], 4096))
        self.get_mode(t0); a.extend(self.flag_addr(vf, t0, s_fl)); a(f's_mov_b32 s{s_rot}, s{s_rot2}')
        a.extend(sx(s_xb, [(s_l, 1 << 22), (s_m, 1 << 18)], WS_XI))
        a(f's_bitcmp0_b32 s{s_l}, 0')
        a(f's_cselect_b64 s[{sW}:{sW+1}], s[{pBW}:{pBW+1}], s[{pAW}:{pAW+1}]')
        a(f's_cselect_b64 s[{sWO}:{sWO+1}], s[{pBWO}:{pBWO+1}], s[{pAWO}:{pAWO+1}]')
        a(f's_mov_b64 s[{sX}:{sX+1}], s[{pWS}:{pWS+1}]'); a(f's_mov_b32 s{sX+2}, {WS_END}')
        a(f's_mov_b32 s{s_xstep}, 16384'); kstart()
        a(f's_lshl_b32 s{s_t}, s{s_ld}, 13'); a(f'v_lshl_add_u32 v{t0}, v1, 4, s{s_t}')
        for j in range(8): a(f'v_add_u32 v{dx+j}, {4096*(j//4)}, v{t0}')
        a(f's_bitcmp1_b32 s{s_l}, 0'); a('s_cbranch_scc1 L_ld_B')
        self.reduce_job(lambda: wst(0))
        a('s_branch L_ld_join')
        a.label('L_ld_B')
        self.cond([f's_cmp_lg_u32 s{s_l}, 3'], lambda: wst(0))
        a('s_barrier')
        a.label('L_ld_join')
        a('s_waitcnt vmcnt(0)'); a('s_barrier')
        a(f's_cmp_eq_u32 s{s_l}, 3'); a('s_cbranch_scc1 L_fin')
        a(f's_add_u32 s{s_l}, s{s_l}, 1')
        a('s_barrier'); a('s_barrier')
        wst(1)
        self.flag_wait(s_fl, vf, t0, 2)
        self.stamp(1)
        xst(0); xst(1)
        a('s_branch L_ld_layer')

    def helper(self):
        a = self.a
        a.label('L_helper')
        t0, t1, t2, t3, l4, l16, ones, a_st, a_cs, v_st, v_cs, aw, vtw, vto, vd = 2, 3, 4, 5, 6, 7, 8, 12, 13, 14, 15, 16, 18, 19, 20
        F, D, SA, SC = 32, 96, 128, 160
        s_h, s_tw, s_a, s_b, s_trot = 65, 66, 67, 68, 69
        xm = 4; s_r = 70; vrf, vfl, aw2, dw = 21, 22, 24, 80
        a(f's_sub_u32 s{s_h}, s{s_wave}, 6')
        a(f'v_lshlrev_b32 v{l4}, 2, v1'); a(f'v_lshlrev_b32 v{l16}, 4, v1')
        a.extend(self.w_frag_addr(aw, s_h, 0, t0, t1, t2))
        for k in range(2): a(f'v_add_u32 v{aw2+k}, {L_SPARE}, v{aw+k}')
        a(f's_or_b32 s{s_rot}, s{s_rot}, 3')
        a.extend(self.flag_addr(vrf, t0, None, remote=True))
        a(f'v_lshrrev_b32 v{t0}, 5, v1'); a(f'v_and_b32 v{t1}, 31, v1'); a(f'v_lshlrev_b32 v{t1}, 4, v{t1}')
        a(f'v_lshl_add_u32 v{v_st}, v{t0}, 10, v{t1}')
        a(f'v_and_b32 v{t2}, 24, v1'); a(f'v_and_b32 v{t3}, 3, v1'); a(f'v_lshl_add_u32 v{t2}, v{t3}, 1, v{t2}'); a(f'v_add_u32 v{t2}, v{t2}, v{t0}')
        a.extend(sx(s_t, [(s_h, 256)], P_NM)); a(f'v_lshl_add_u32 v{a_st}, v{t2}, 3, s{s_t}')
        a(f'v_mov_b32 v{t2}, {BIG}'); a(f'v_cmp_gt_u32 vcc, 384, v{t1}'); a(f'v_cndmask_b32 v{v_cs}, v{t2}, v{v_st}, vcc')
        a.extend(sx(s_t, [(s_h, 384)], P_CS)); a(f'v_lshl_add_u32 v{t1}, v{t0}, 3, v{t1}'); a(f'v_add_u32 v{a_cs}, s{s_t}, v{t1}')
        self.pointers()

        def touch_setup():
            if not self.touch: return
            c, gt = s_t + 2, s_t + 3
            def cls(b):
                a(f's_lshr_b32 s{gt}, s{b}, 7'); a(f's_sub_u32 s{gt}, 3, s{gt}'); a(f's_and_b32 s{gt}, s{gt}, 7')
                a(f's_sub_u32 s{c}, s{s_g}, s{gt}'); a(f's_and_b32 s{c}, s{c}, 7'); a(f's_sub_u32 s{c}, s{c}, 1')
                a(f's_and_b32 s{s_t}, s{s_g}, 8'); a(f's_add_u32 s{gt}, s{gt}, s{s_t}'); a(f's_lshl_b32 s{gt}, s{gt}, 7')
            a(f's_and_b32 s{s_t+4}, s{s_m}, {xm-1}'); a(f's_lshl_b32 s{s_t+4}, s{s_t+4}, 1'); a(f's_add_u32 s{s_t+4}, s{s_t+4}, s{s_h}')
            cls(sW)
            a(f's_cmp_ge_u32 s{c}, 3'); a(f's_cselect_b32 s{s_t}, {32*6144 - 3*2048}, 0'); a(f's_add_u32 s{gt}, s{gt}, s{s_t}')
            a(f's_lshl_b32 s{s_t}, s{c}, 11'); a(f's_add_u32 s{gt}, s{gt}, s{s_t}')
            a(f's_mul_i32 s{s_t}, s{s_t+4}, {(16//xm)*6144}'); a(f's_add_u32 s{gt}, s{gt}, s{s_t}')
            a(f's_cmp_lt_u32 s{c}, 6'); a(f's_cselect_b32 s{s_t}, {16//xm}, 0')
            a(f'v_mul_u32_u24 v{vtw}, 6144, v1'); a(f'v_add_u32 v{vtw}, s{gt}, v{vtw}')
            a(f'v_mov_b32 v{t0}, {BIG}'); a(f'v_cmp_gt_u32 vcc, s{s_t}, v1'); a(f'v_cndmask_b32 v{vtw}, v{t0}, v{vtw}, vcc')
            cls(sWO)
            a(f's_lshl_b32 s{s_t}, s{c}, 19'); a(f's_add_u32 s{gt}, s{gt}, s{s_t}')
            a(f's_mul_i32 s{s_t}, s{s_t+4}, {(128//xm)*2048}'); a(f's_add_u32 s{gt}, s{gt}, s{s_t}')
            a(f's_cmp_lt_u32 s{c}, 4'); a(f's_cselect_b32 s{s_t}, {32//xm}, 0')
            a(f'v_lshlrev_b32 v{vto}, 11, v1'); a(f'v_add_u32 v{vto}, s{gt}, v{vto}')
            a(f'v_cmp_gt_u32 vcc, s{s_t}, v1'); a(f'v_cndmask_b32 v{vto}, v{t0}, v{vto}, vcc')
        def touchW(st):
            if not self.touch: return
            a(f's_add_u32 s{s_tw}, s{s_rot}, {st}'); a(f's_and_b32 s{s_tw}, s{s_tw}, 15'); a(f's_mul_i32 s{s_tw}, s{s_tw}, {64*6144}')
            a(f'buffer_load_dword v{vd}, v{vtw}, {srd(sW)}, s{s_tw} offen')
        def touchO(k):
            if not self.touch: return
            a(f's_mov_b32 s{s_tw}, {k*(32//xm)*2048}')
            a(f'buffer_load_dword v{vd}, v{vto}, {srd(sWO)}, s{s_tw} offen')
        def phi_load():
            a(f's_mov_b64 s[{sX}:{sX+1}], s[{pPHI}:{pPHI+1}]'); a(f's_mov_b32 s{sX+2}, 65536')
            a.extend(sx(s_t, [(s_g, 4096), (s_h, 2048)])); a(f's_lshl_b32 s{s_t+1}, s{s_h}, 11'); a(f's_add_u32 m0, s{s_t+1}, {P_PHI}')
            for j in range(2): a(f'buffer_load_dwordx4 v{l16}, {srd(sX)}, s{s_t} offen offset:{1024*j} lds')
        self.w_dma_offsets(dw, s_h, t0, t1, t2)
        touch_setup()
        phi_load()
        for st in range(1, 3 + self.dist): touchW(st)

        def init_stores():
            for k in range(4): a(f'v_mov_b32 v{D+k}, -1')
            fill = f'buffer_store_dwordx4 {vr(D,4)}, v{l16}, {srd(sWS)}, s{s_t} offen'
            a.extend(sx(s_t, [(s_g, 131072), (s_h, 65536), (s_m, 2048)], WS_KVP)); a(fill + ' sc1'); a(fill + ' offset:1024 sc1')
            a(f's_add_u32 s{s_t}, s{s_t}, 32768'); a(fill + ' sc1'); a(fill + ' offset:1024 sc1')
            a('s_mov_b64 exec, 0xff')
            a.extend(sx(s_t, [(s_g, 8192), (s_h, 4096), (s_m, 128)], WS_KVF)); a(fill + ' sc1'); a(fill + ' offset:2048 sc1')
            a.extend(sx(s_t, [(s_g, 4096), (s_h, 2048), (s_m, 128)], WS_ZP)); a(fill + ' sc1')
            a.extend(sx(s_t, [(s_g, 256), (s_h, 128)], WS_ZF))
            a(f's_cmp_eq_u32 s{s_m}, s{s_g}'); a(f's_cselect_b32 s{s_t}, s{s_t}, {BIG}'); a(fill + ' sc1')
            a('s_mov_b64 exec, -1')
            a.extend(sx(s_t, [(2, 256), (s_h, BIG)]))
            a(f'v_mov_b32 v{t0}, 0')
            a(f'buffer_store_dword v{t0}, v{l4}, {srd(sWS)}, s{s_t} offen sc1')
            a(f'v_lshrrev_b32 v{t1}, 2, v1'); a(f'v_lshlrev_b32 v{t1}, 10, v{t1}'); a(f'v_and_or_b32 v{t1}, v1, 3, v{t1}'); a(f'v_lshlrev_b32 v{t1}, 7, v{t1}')
            a.extend(sx(s_t, [(s_m, 8192), (s_g, 512)], WS_RF)); a(f's_cmp_eq_u32 s{s_h}, 1'); a(f's_cselect_b32 s{s_t}, s{s_t}, {BIG}')
            a('s_mov_b64 exec, 0xfffffff')
            a(f'buffer_store_dword v{t0}, v{t1}, {srd(sWS)}, s{s_t} offen sc1')
            a('s_mov_b64 exec, -1')
            a.extend(sx(s_t, [(s_g, 16384), (s_m, 1024)], WS_CS)); a(f's_cmp_eq_u32 s{s_h}, 1'); a(f's_cselect_b32 s{s_t}, s{s_t}, {BIG}'); a(fill + ' sc1')
        for k in range(4): a(f'v_mov_b32 v{ones+k}, 0x3f803f80')
        def cs_reads(aw=aw):
            for s in range(2):
                for n in range(6):
                    for t in range(2):
                        a(f'ds_read_b64_tr_b16 {vr(F+24*s+4*n+2*t,2)}, v{aw+(n&1)} offset:{(n>>1)*8192+(32*s+4*t)*128}')
            a('s_waitcnt lgkmcnt(0)')
        def cs_publish():
            for s in range(2):
                for n in range(6): a(mf16(D+4*n, ones, F+24*s+4*n, D+4*n if s else None))
            a.extend(sx(s_t, [(s_l, 262144), (s_g, 16384), (s_m, 1024), (s_h, 128)], WS_CS))
            a('s_mov_b64 exec, 0xffff')
            for n in range(6): a(f'buffer_store_dword v{D+4*n}, v{l4}, {srd(sWS)}, s{s_t} offen offset:{(n>>1)*256+(n&1)*64} sc1')
            a('s_mov_b64 exec, -1')
        def chunk(t):
            a(f's_mul_i32 s{s_t}, s{s_m}, {64*6144}'); a(f's_mul_i32 s{s_t+1}, s{s_h}, 12288'); a(f's_add_u32 m0, s{s_t+1}, {L_SPARE + 4096*t}')
            for j in range(4): a(f'buffer_load_dwordx4 v{dw+4*t+j}, {srd(sW)}, s{s_t} offen offset:{1024*j} lds')
        def arrive():
            a(f's_getreg_b32 s{s_t}, hwreg(HW_REG_XCC_ID, 0, 3)'); a(f's_lshl_b32 s{s_t}, s{s_t}, 2'); a(f's_lshl_b32 s{s_t+1}, 1, s{s_t}')
            a.extend(sx(s_t, [(s_m, 16), (s_rot2, 1)]))
            a('s_mov_b64 exec, 1')
            a(f'v_mov_b32 v{t0}, s{s_t+1}')
            a(f'buffer_atomic_add v{t0}, off, {srd(sDBG)}, s{s_t} sc1')
            a('s_mov_b64 exec, -1')
        def init_wait():
            a(f'v_and_b32 v{t2}, 31, v1'); a(f'v_lshlrev_b32 v{t2}, 3, v{t2}')
            self.spin([f'buffer_load_dword v{t0}, v{t2}, {srd(sDBG)}, 0 offen sc1'],
                      [f'v_lshrrev_b32 v{t1}, 4, v{t0}', f'v_and_b32 v{t1}, 0x0f0f0f0f, v{t1}', f'v_and_b32 v{t3}, 0x0f0f0f0f, v{t0}',
                       f'v_sad_u8 v{t1}, v{t1}, 0, 0', f'v_sad_u8 v{t3}, v{t3}, 0, v{t1}', f'v_cmp_gt_u32 vcc, 8, v{t3}'], t3, 3)
            a(f's_lshr_b32 s{s_t}, s{s_rot2}, 3'); a(f's_lshl_b32 s{s_t+1}, s{s_m}, 1'); a(f's_add_u32 s{s_t}, s{s_t}, s{s_t+1}')
            a(f'v_readlane_b32 s{s_fast}, v{t0}, s{s_t}')
            a(f's_and_b32 s{s_fast}, s{s_fast}, 0x88888888'); a(f's_cselect_b32 s{s_fast}, {1 if self.local else 0}, 0')
            a(f'v_mov_b32 v{t3}, s{s_fast}'); a(f'v_mov_b32 v{t2}, {P_MODE}'); a(f'ds_write_b32 v{t2}, v{t3}')
        def gather(R, va, so, ks):
            L = []
            for k in ks: L += [f's_add_u32 s{s_t}, s{so}, {4096*(k//2)}', f'buffer_load_dwordx4 {vr(R+4*k,4)}, v{va}, {srd(sWS)}, s{s_t} offen offset:{2048*(k%2)} sc1']
            return L
        def total(R):
            n = 8
            while n > 1:
                n //= 2
                for k in range(4*n): a(f'v_add_f32 v{R+k}, v{R+k}, v{R+k+4*n}')
            a(sw32(R, R+2)); a(sw32(R+1, R+3)); a(f'v_add_f32 v{R}, v{R}, v{R+2}'); a(f'v_add_f32 v{R+1}, v{R+1}, v{R+3}')
        def stats_finish():
            for k in range(2): a(f'v_mov_b32_dpp v{SA+2+k}, v{SA+k} row_shl:4 row_mask:0xf bank_mask:0xf')
            for k in range(2): a(f'v_mul_f32 v{SA+k}, {f2u(-1/1024)}, v{SA+k}'); a(f'v_mul_f32 v{SA+2+k}, {f2u(1/1024)}, v{SA+2+k}')
            for k in range(2): a(f'v_fma_f32 v{SA+2+k}, -v{SA+k}, v{SA+k}, v{SA+2+k}')
            for k in range(2): a(f'v_max_f32 v{SA+2+k}, 0, v{SA+2+k}')
            for k in range(2): a(f'v_add_f32 v{SA+2+k}, {f2u(1e-5)}, v{SA+2+k}')
            for k in range(2): a(f'v_rsq_f32 v{SA+2+k}, v{SA+2+k}')
            a('s_mov_b32 exec_lo, 0x0f0f0f0f'); a('s_mov_b32 exec_hi, 0x0f0f0f0f')
            a(f'ds_write_b64 v{a_st}, {vr(SA,2)}'); a(f'ds_write_b64 v{a_st}, {vr(SA+2,2)} offset:512')
            a('s_mov_b64 exec, -1')
        def cs_finish():
            total(SC)
            a(f's_mul_i32 s{s_t}, s{s_l}, 768'); a(f'v_add_u32 v{t0}, s{s_t}, v{a_cs}')
            a('s_mov_b32 exec_lo, 0xffffff'); a('s_mov_b32 exec_hi, 0xffffff')
            a(f'ds_write_b64 v{t0}, {vr(SC,2)}')
            a('s_mov_b64 exec, -1')
        l0 = [f's_cmp_eq_u32 s{s_l}, 0']; ln0 = [f's_cmp_lg_u32 s{s_l}, 0']; l01 = [f's_cmp_lt_u32 s{s_l}, 2']
        a(f's_mov_b32 s{s_r}, 0')
        a.label('L_hp_layer')
        a.extend(sx(s_a, [(s_l, 262144), (s_m, 16384), (s_h, 512)], WS_ST))
        a.extend(sx(s_b, [(s_l, 262144), (s_g, 16384), (s_h, 384)], WS_CS))
        self.trickle_setup()
        hi = lambda: self.hprio and a(f's_setprio {self.hprio}')
        lo = lambda: self.hprio and a('s_setprio 0')
        l1 = [f's_cmp_eq_u32 s{s_l}, 1']
        for i in range(17):
            a('s_barrier')
            if i == 0: self.cond(l0, cs_reads)
            if i == 6: self.cond(l1, lambda: cs_reads(aw2))
            if i in (3, 5, 12): a('s_waitcnt vmcnt(0)')
            if i == 5: self.cond(ln0, lambda: self.flag_wait(s_r, vrf, vfl, 8, pre=True, nap=self.nap))
            if i <= 11: hi()
            if i == 9: self.cond(l0, init_wait)
            if i == 4: self.cond(ln0, lambda: a(self.flag_load(s_r, vrf, vfl)))
            if i + 3 + self.dist <= 15: touchW(i + 3 + self.dist)
            if 5 <= i <= 8: touchO(i - 5)
            if i == 1: self.cond(l0, init_stores)
            if i == 4: self.cond([f's_or_b32 s{s_t}, s{s_l}, s{s_h}', f's_cmp_eq_u32 s{s_t}, 0'], arrive)
            if 2 <= i <= 4: self.cond(l1, lambda: chunk(i - 2))
            if i == 6: self.cond([f's_cmp_eq_u32 s{s_l}, 2'], phi_load)
            if i in (9, 10): a.extend(gather(SA, v_st, s_a, range(4*(i-9), 4*(i-9)+4)))
            if i in (10, 11): self.cond(l01, lambda: a.extend(gather(SC, v_cs, s_b, range(4*(i-10), 4*(i-10)+4))))
            if i <= 11: lo()
            if 1 <= i <= 12: self.trickle(i - 1)
            if i == 7: self.cond(l01, cs_publish)
            if i == 12: self.ll_wait(gather(SA, v_st, s_a, range(8)), list(range(SA, SA+32)), t0, t1, 6, pre=True)
            if i == 13: total(SA)
            if i == 14: stats_finish()
            if i == 14: self.cond(l01, lambda: self.ll_wait(gather(SC, v_cs, s_b, range(8)), list(range(SC, SC+32)), t0, t1, 7, pre=True))
            if i == 15: self.cond(l01, cs_finish); a('s_waitcnt lgkmcnt(0)')
        a.extend(sx(s_t, [(s_l, 8192), (s_m, 256), (s_rot2, 16)])); a(f'buffer_load_dword v{vd}, off, {srd(sWS)}, s{s_t} sc1')
        a(f's_xor_b32 s{s_t}, s{s_t}, 128'); a.extend(sx(s_r, [(s_t, 32), (s_h, 256)], WS_RF))
        a(f's_mov_b32 s{s_rot}, s{s_rot2}')
        a(f's_bitcmp0_b32 s{s_l}, 0')
        a(f's_cselect_b64 s[{sW}:{sW+1}], s[{pBW}:{pBW+1}], s[{pAW}:{pAW+1}]')
        a(f's_cselect_b64 s[{sWO}:{sWO+1}], s[{pBWO}:{pBWO+1}], s[{pAWO}:{pAWO+1}]')
        touch_setup()
        touchW(0)
        a(f's_bitcmp1_b32 s{s_l}, 0'); a('s_cbranch_scc1 L_hp_B')
        self.reduce_job()
        a('s_branch L_hp_join')
        a.label('L_hp_B')
        a('s_barrier')
        a.label('L_hp_join')
        a('s_barrier')
        self.flag_wait(s_r, vrf, vfl, 9, nap=self.nap)
        a('s_barrier')
        a(f's_cmp_eq_u32 s{s_l}, 3'); a('s_cbranch_scc1 L_fin')
        for st in range(1, 3 + self.dist): touchW(st)
        a(f's_add_u32 s{s_r}, s{s_r}, {4096*32}')
        a(f's_add_u32 s{s_l}, s{s_l}, 1')
        a('s_barrier')
        a('s_branch L_hp_layer')

    def compute(self):
        a = self.a
        one, l16, voffR, voffI, a_tok, a_row, a_t32, a_csr, a_csv = 0, 2, 3, 4, 5, 6, 7, 8, 9
        ax, awq = 10, 12
        l4 = 14; vst = 15
        XR = 16
        ACC = 32
        FX = [128, 144]; FW = [160, 184]
        T = 208
        t0, t1, t2, t3 = T, T+1, T+2, T+3
        s_wm, s_wh, s_rslot, s_delta, s_stg, s_ones = 65, 66, 67, 68, 69, 70
        s_o = 71
        s_ob = 75
        s_obase, s_ooff, s_a, s_b, s_c, s_d, s_e, s_fp, s_st, s_fo = range(77, 87)
        a(f'v_lshrrev_b32 v{t0}, 4, v1')
        a(f'v_and_b32 v{t1}, 15, v1')
        a(f'v_and_b32 v{t2}, 1, v{t0}'); a(f'v_lshrrev_b32 v{t3}, 1, v{t0}'); a(f'v_lshl_add_u32 v{t2}, v{t2}, 1, v{t3}')
        a(f'v_lshlrev_b32 v{voffR}, 11, v{t1}'); a(f'v_lshl_add_u32 v{voffR}, v{t2}, 4, v{voffR}')
        a.extend(sx(s_t, [(s_m, 1 << 18), (s_wave, 1 << 16), (s_g, 128)])); a(f's_add_u32 s{s_t+1}, s{s_t}, 32768')
        self.pointers()
        for tb in range(2):
            for e in range(2): a(f'buffer_load_dwordx4 {vr(XR+8*tb+4*e,4)}, v{voffR}, {srd(sX)}, s{s_t+tb} offen offset:{64*e}')
        a(f's_lshr_b32 s{s_wm}, s{s_wave}, 1'); a(f's_and_b32 s{s_wh}, s{s_wave}, 1')
        a.extend(sx(s_ft, [(2, 8192), (s_wave, 2048)]))
        def wo_touch(r0, r1):
            for r in range(r0, r1 if self.warm else r0): a(f's_buffer_load_dwordx2 s[{s_fd}:{s_fd+1}], {srd(sWO)}, s{s_ft} offset:{128*r+60}')
        wo_touch(0, 7)
        a(f'v_mov_b32 v{one}, 1')
        a(f'v_lshl_add_u32 v{voffI}, v{t2}, 4, v{t1}'); a(f'v_lshlrev_b32 v{voffI}, 4, v{voffI}')
        a(f'v_lshlrev_b32 v{l16}, 4, v1'); a(f'v_lshlrev_b32 v{l4}, 2, v1')
        a.extend(sx(s_t, [(s_wm, 256)], P_NM))
        a(f'v_lshl_add_u32 v{a_tok}, v{t1}, 2, s{s_t}')
        a(f'v_lshl_add_u32 v{a_row}, v{t0}, 4, s{s_t}')
        a(f'v_and_b32 v{t3}, 31, v1'); a(f'v_lshl_add_u32 v{a_t32}, v{t3}, 2, s{s_t}')
        a.extend(sx(s_t, [(s_wh, 128)], P_CS))
        a(f'v_lshl_add_u32 v{a_csr}, v{t0}, 4, s{s_t}')
        a(f'v_lshl_add_u32 v{a_csv}, v{t1}, 2, s{s_t}')
        a(f's_mov_b32 s{s_stg}, {STG}'); a(f's_mov_b32 s{s_ones}, 0x3f803f80')
        a(f'v_lshrrev_b32 v{t2}, 1, v{t1}'); a(f'v_xor_b32 v{t2}, v{t2}, v{t0}')
        a.extend(sx(s_t, [(s_wm, 8192)], XOFF)); a(f'v_lshl_add_u32 v{t1}, v{t1}, 7, s{s_t}')
        for s in range(2):
            a(f'v_xor_b32 v{t3}, {4*s}, v{t2}'); a(f'v_lshl_add_u32 v{ax+s}, v{t3}, 4, v{t1}')
        a.extend(sx(s_st, [(s_m, 16384), (s_g, 1024), (s_wave, 256)], WS_ST))

        q = 200
        def stats():
            S = []
            for k in range(8):
                for tb in range(2):
                    r = XR + 8*tb + k
                    S += [f'v_dot2_f32_bf16 v{q+2*tb}, s{s_ones}, v{r}, ' + (f'v{q+2*tb}' if k else '0'),
                          f'v_dot2_f32_bf16 v{q+2*tb+1}, v{r}, v{r}, ' + (f'v{q+2*tb+1}' if k else '0')]
            return S + [sw32(q, q+2), sw32(q+1, q+3), pk('add', q, q, q+2), sw16(q, q+1), f'v_add_f32 v{q}, v{q}, v{q+1}']
        st_store = f'buffer_store_dword v{q}, v{l4}, {srd(sWS)}, s{s_st} offen sc1'
        def acc(b, n): return ACC + 4*(6*b + n)
        env = dict(locals())
        a.label('L_layer')
        a.extend(self.w_frag_addr(awq, s_wh, 0, t0, t1, t2))
        for r in range(0, 96, 2): a(f'v_mov_b64 {vr(ACC+r,2)}, 0')
        a(f's_mov_b32 s{s_rslot}, 0'); a(f's_mov_b32 s{s_i}, 0')
        a.extend(sx(s_t, [(s_l, 1 << 22), (s_m, 1 << 18)], WS_OI))
        a.extend(sx(s_obase, [(s_wave, 1 << 16), (s_t, 1)])); a(f's_lshl_b32 s{s_ooff}, s{s_rot2}, 11')
        a(f's_add_u32 s{s_ob}, s{s_obase}, s{s_ooff}'); a(f's_add_u32 s{s_ob+1}, s{s_ob}, 32768')
        a.extend(sx(s_a, [(s_wm, 1 << 17), (s_g, 2048), (s_wh, 1024), (s_t, 1)]))
        a.extend(sx(s_fp, [(s_l, 8192), (s_m, 256)])); a.extend(sx(s_fo, [(s_g, 16), (s_wave, 4), (s_fp, 1)])); a.extend(sx(s_fo+1, [(s_fo, 32)], WS_RF))
        a.extend(sx(s_t, [(s_wm, 8), (s_rot2, 16)])); a(f's_add_u32 s{s_fp}, s{s_fp}, s{s_t}')
        a.extend(sx(s_o, [(s_l, 1 << 22), (s_m, 1 << 18), (s_g, 16384), (s_wave, 4096)], WS_XI))
        for k in range(1, 4): a(f's_add_u32 s{s_o+k}, s{s_o}, {1024*k}')
        a(f'v_mov_b32 v{vst}, v{voffI}')
        def last():
            a(f's_mov_b64 s[{sOUT}:{sOUT+1}], s[{pOUT}:{pOUT+1}]'); a(f's_mov_b32 s{sOUT+2}, {2048*1024*2}')
            a.extend(sx(s_o, [(s_m, 1 << 18), (s_wave, 1 << 16), (s_g, 128)]))
            a(f's_add_u32 s{s_o+1}, s{s_o}, 64'); a(f's_add_u32 s{s_o+2}, s{s_o}, 32768'); a(f's_add_u32 s{s_o+3}, s{s_o}, {32768+64}')
            a(f'v_mov_b32 v{vst}, v{voffR}')
        self.cond([f's_cmp_eq_u32 s{s_l}, 3'], last)
        a(f's_bitcmp1_b32 s{s_l}, 0'); a('s_cbranch_scc1 L_preB')
        self.epiA(env, True)
        a('s_branch L_pre_done')
        a.label('L_preB')
        self.epiB(env, True)
        a.label('L_pre_done')
        def first():
            wo_touch(7, 16)
            a('s_waitcnt vmcnt(0)'); a.extend(stats()); a(st_store)
        self.cond([f's_cmp_eq_u32 s{s_l}, 0'], first)
        a(f's_add_u32 s{s_st}, s{s_st}, 262144')
        a('s_barrier')
        self.stamp(1)
        def reads(s, st):
            X = [f'ds_read_b128 {vr(FX[st]+4*b,4)}, v{ax+s} offset:{2048*b}' for b in range(4)]
            W = [[f'ds_read_b64_tr_b16 {vr(FW[st]+4*n+2*t,2)}, v{awq+(n&1)} offset:{(n>>1)*8192+(32*s+4*t)*128}' for t in range(2)] for n in range(6)]
            L = [X[0]] + W[0] + X[1:]
            for n in range(1, 6): L += W[n]
            return L
        def mfmas(st):
            L = []
            for n in range(6):
                for b in range(4):
                    if n < 4: L.append(mf16(acc(b, n), FW[st]+4*n, FX[st]+4*b, acc(b, n)))
                    else: L.append(mf16(acc(b, n), FX[st]+4*b, FW[st]+4*n, acc(b, n)))
            return L
        a.extend(reads(0, 0))
        a('.p2align 6')
        a.label('L_q')
        for s in range(2):
            M = mfmas(s); R = reads(1 - s, 1 - s)
            gaps = [[] for _ in range(24)]
            first = 0
            if s == 1:
                gaps[0] += [f'v_add_u32 v{r}, s{s_delta}, v{r}' for r in (ax, awq)]
                gaps[1] += [f'v_add_u32 v{r}, s{s_delta}, v{r}' for r in (awq+1,)] + ['s_barrier']
                gaps[20] += [f'v_add_u32 v{ax+1}, s{s_delta}, v{ax+1}']
                gaps[21] += ['s_waitcnt vmcnt(0)']
                gaps[22] += [f's_add_u32 s{s_i}, s{s_i}, 1']
                gaps[23] += [f's_cmp_lt_u32 s{s_i}, 16']
                first = 1
            else:
                gaps[18] += [f's_add_u32 s{s_rslot}, s{s_rslot}, 1', f's_cmp_eq_u32 s{s_rslot}, 3']
                gaps[19] += [f's_cselect_b32 s{s_delta}, {-2*STG}, s{s_stg}', f's_cselect_b32 s{s_rslot}, 0, s{s_rslot}']
            for k, r in enumerate(R): gaps[first + k].append(r)
            if self.prof == 5 and s == 0:
                a('s_memtime s[92:93]'); a(f's_lshl_b32 m0, s{s_l}, 4'); a(f's_add_u32 m0, m0, s{s_i}')
                gaps[0].insert(0, 'v_writelane_b32 v255, s92, m0')
            a('s_waitcnt lgkmcnt(0)')
            for k in range(24):
                a(M[k]); a.extend(gaps[k])
        a('s_cbranch_scc1 L_q')
        a('s_waitcnt lgkmcnt(0)')
        self.stamp(2)
        a(f's_bitcmp1_b32 s{s_l}, 0'); a('s_cbranch_scc1 L_epiB')
        self.epiA(env, False)
        a('s_branch L_ophase')
        a.label('L_epiB')
        self.epiB(env, False)
        a.label('L_ophase')
        a('s_barrier')
        PD = self.pd; NR = PD + 1
        OA, OW, awo, vf, RING = 128, [160, 176], 192, 196, 32
        assert RING + 8*NR <= 128
        u0, u1, u2 = 197, 198, 199
        a(f'v_mov_b32 v{u0}, {P_MODE}'); a(f'ds_read_b32 v{u0}, v{u0}')
        def oacc(tb, nb): return OA + 16*tb + 4*nb
        for k in range(4):
            a(sw16(XR+4*k, XR+4*k+2)); a(sw16(XR+4*k+1, XR+4*k+3))
        a('s_waitcnt lgkmcnt(0)'); a(f'v_readfirstlane_b32 s{s_fast}, v{u0}')
        a.extend(self.flag_addr(vf, u1, s_fp))
        for r in range(16):
            a(f'v_lshlrev_b32 v{OA+2*r}, 16, v{XR+r}'); a(f'v_and_b32 v{OA+2*r+1}, 0xffff0000, v{XR+r}')
        a.extend(self.w_frag_addr(awo, None, L_WO, u0, u1, u2, nb_list=(0, 1, 2, 3)))
        def oreads(h):
            return [f'ds_read_b64_tr_b16 {vr(OW[h&1]+4*nb+2*t,2)}, v{awo+nb} offset:{(h&15)*4096+512*t}' for nb in range(4) for t in range(2)]
        a.extend(oreads(0))
        a('s_waitcnt vmcnt(0) lgkmcnt(0)')
        self.stamp(8)
        self.flag_set(s_fo, one, 1)
        self.cond([f's_cmp_eq_u32 s{s_fast}, 0'], lambda: self.flag_set(s_fo, one, 2))
        self.flag_wait(s_fp, vf, u0, 4)
        self.flag_set(s_fo, one, 2)
        self.stamp(9)
        def oload(h, tb):
            L = [f'buffer_load_dwordx4 {vr(RING+8*(h%NR)+4*tb,4)}, v{l16}, {srd(sWS)}, s{s_ob+tb} offen offset:{1024*(h&3)} sc1']
            if h & 3 == 3 and h < 31:
                if tb == 0: L += [f's_add_u32 s{s_ooff}, s{s_ooff}, 4096', f's_and_b32 s{s_ooff}, s{s_ooff}, 0x7fff', f's_add_u32 s{s_ob}, s{s_obase}, s{s_ooff}']
                else: L += [f's_add_u32 s{s_ob+1}, s{s_ob}, 32768']
            return L
        S = []
        for h in range(PD): S += oload(h, 0) + oload(h, 1)
        for h in range(32):
            R = oreads(h+1) if h < 31 else []
            if h == 15: S += [f'v_add_u32 v{awo+nb}, 0x10000, v{awo+nb}' for nb in range(4)]
            k = 0
            for nb in range(4):
                for tb in range(2):
                    S.append(mf16(oacc(tb, nb), OW[h&1]+4*nb, RING+8*(h%NR)+4*tb, oacc(tb, nb)))
                    if R: S.append(R[k])
                    for j in range(2):
                        if k == self.opos[j] and h + PD < 32: S += oload(h+PD, j)
                    k += 1
            if h == 15 - PD: S.append('s_barrier')
            if h == self.bm: S.append('s_barrier')
        self.aw(S)
        self.stamp(10)
        S = []
        for k4 in (0, 2, 1, 3):
            for k in range(4): S.append(cvt(XR+4*k4+k, OA+8*k4+2*k, OA+8*k4+2*k+1))
            S += [sw16(XR+4*k4, XR+4*k4+2), sw16(XR+4*k4+1, XR+4*k4+3),
                  f'buffer_store_dwordx4 {vr(XR+4*k4,4)}, v{vst}, {srd(sOUT)}, s{s_o+k4} offen sc1']
        self.sw(S)
        a(f's_cmp_eq_u32 s{s_l}, 3'); a('s_cbranch_scc1 L_fin')
        a.extend(stats())
        a(f's_add_u32 s{s_fo}, s{s_fo}, 4096'); a(f's_add_u32 s{s_fo+1}, s{s_fo+1}, {4096*32}')
        a('s_waitcnt vmcnt(0)')
        self.stamp(11)
        self.flag_set(s_fo, one)
        a(st_store)
        a.extend(sx(s_t, [(s_wm, 8192)], XOFF))
        a(f'v_add_u32 v{ax}, s{s_t}, v{l16}'); a(f'v_add_u32 v{ax+1}, 1024, v{ax}')
        a(f's_add_u32 s{s_l}, s{s_l}, 1')
        a('s_branch L_layer')

    def epiA(self, E, pre):
        a = self.a
        acc = E['acc']; a_tok, a_row, a_t32, a_csr, a_csv, l16, l4 = (E[k] for k in ('a_tok', 'a_row', 'a_t32', 'a_csr', 'a_csv', 'l16', 'l4'))
        s_wm, s_wh, s_a, s_b, s_c, s_d, s_e = (E[k] for k in ('s_wm', 's_wh', 's_a', 's_b', 's_c', 's_d', 's_e'))
        PK = [128, 144]; EP, KV0, ZA, NR = 160, 176, 192, 208
        wphi, nml, c32, csv = 224, 232, 236, 238
        SEL = [240, 244]
        a_phi, a_w, a_r0, a_r1, a_z, x_w, x_r = range(248, 255)
        csk = EP; csq = NR
        nmr = [KV0, KV0+8, NR, NR+8]
        if pre:
            u0, u1, u2, u3, u4 = range(208, 213)
            S = [f'v_lshrrev_b32 v{u0}, 5, v1', f'v_bfe_u32 v{u1}, v1, 2, 2', f'v_lshl_add_u32 v{u1}, v{u0}, 3, v{u1}',
                 f'v_bfe_u32 v{u2}, v1, 4, 1', f'v_and_b32 v{u3}, 3, v1', f'v_lshlrev_b32 v{u4}, 3, v{u3}', f'v_lshl_add_u32 v{u2}, v{u2}, 5, v{u4}']
            S += sx(s_t, [(s_wh, 2048)], P_PHI) + [f'v_lshl_add_u32 v{u4}, v{u1}, 6, v{u2}', f'v_add_u32 v{a_phi}, s{s_t}, v{u4}']
            S += [f's_mul_i32 s{s_t+2}, s{s_wave}, {SCR}',
                  f'v_mul_u32_u24 v{u1}, 136, v{u1}', f'v_add3_u32 v{u1}, v{u1}, v{u2}, s{s_t+2}',
                  f's_lshl_b32 s{s_t+1}, s{s_wm}, 6', f'v_add_u32 v{a_r0}, s{s_t+1}, v{u1}',
                  f's_xor_b32 s{s_t+3}, s{s_t+1}, 64', f'v_add_u32 v{a_r1}, s{s_t+3}, v{u1}',
                  f'v_and_b32 v{u4}, 31, v1', f'v_mul_u32_u24 v{u4}, 136, v{u4}', f'v_lshl_add_u32 v{u4}, v{u0}, 3, v{u4}', f'v_add_u32 v{a_w}, s{s_t+2}, v{u4}',
                  f'v_add_u32 v{x_w}, s{s_t+2}, v{l16}', f's_xor_b32 s{s_t}, s{s_wave}, 2', f's_mul_i32 s{s_t}, s{s_t}, {SCR}', f'v_add_u32 v{x_r}, s{s_t}, v{l16}']
            S += [f'v_mov_b32 v{u4}, 0x3f803f80']
            for k in range(2):
                S += [f'v_cmp_eq_u32 vcc, {k}, v{u3}', f'v_cndmask_b32 v{SEL[k]}, 0, v{u4}, vcc', f'v_mov_b32 v{SEL[k]+1}, v{SEL[k]}',
                      f'v_mov_b64 {vr(SEL[k]+2,2)}, {vr(SEL[k],2)}']
            S += [f'v_and_b32 v{u0}, 18, v1', f'v_lshlrev_b32 v{u0}, 1, v{u0}', f'v_and_or_b32 v{u0}, v1, 8, v{u0}', f'v_and_b32 v{u1}, 4, v1',
                  f'v_lshl_or_b32 v{u0}, v{u1}, 2, v{u0}', f'v_and_b32 v{u1}, 33, v1', f'v_lshl_or_b32 v{a_z}, v{u1}, 25, v{u0}',
                  f'v_lshl_or_b32 v{a_z}, v{u1}, 30, v{a_z}']
            S += sx(s_t, [(s_l, 16), (s_g, 2), (s_wh, 1)])
            S += sx(s_d, [(s_t, 65536), (s_wm, 32768), (s_m, 2048)], WS_KVP) + sx(s_e, [(s_t, 2048), (s_m, 128), (s_wm, 64)], WS_ZP)
            S += sx(s_b, [(s_t, 128)], WS_ZF) + sx(s_c, [(s_t, 4096)], WS_KVF)
            a.extend(S)
            return
        S = []
        for b in range(4): S.append(f'ds_read_b32 v{nml+b}, v{a_tok} offset:{64*b}')
        for nb in range(2): S.append(f'ds_read_b128 {vr(csk+4*nb,4)}, v{a_csr} offset:{256+64*nb}')
        for u in range(2):
            for t in range(2): S.append(f'ds_read_b64_tr_b16 {vr(wphi+4*u+2*t,2)}, v{a_phi} offset:{(16*t+4*u)*64}')
        for nb in range(2): S.append(f'ds_read_b32 v{csv+nb}, v{a_csv} offset:{512+64*nb}')
        for b in range(4):
            S.append(f'ds_read_b128 {vr(nmr[b],4)}, v{a_row} offset:{64*b}')
            S.append(f'ds_read_b128 {vr(nmr[b]+4,4)}, v{a_row} offset:{512+64*b}')
            if b == 0:
                for Tt in range(2): S.append(f'ds_read_b32 v{c32+Tt}, v{a_t32} offset:{512+128*Tt}')
        def qk_prep(n0, cs):
            L = []
            for b in range(4):
                for k in range(4): L.append(pk('fma', acc(b, n0)+2*k, cs+2*k, ('b', nml+b), acc(b, n0)+2*k))
                for k in range(4): L.append(cvt(acc(b, n0)+k, acc(b, n0)+2*k, acc(b, n0)+2*k+1))
            for Tt in range(2):
                for k in range(4): L.append(sw16(acc(2*Tt, n0)+k, acc(2*Tt+1, n0)+k))
                L += [mf32(PK[Tt], wphi, acc(2*Tt, n0)), mf32(PK[Tt], wphi+4, acc(2*Tt+1, n0), PK[Tt])]
            return L
        def vprep(b):
            r = acc(b, 4); P, C = [], []
            for nb in range(2):
                for p in range(2): P.append(pk('fma', r+4*nb+2*p, nmr[b]+2*p, ('b', csv+nb), r+4*nb+2*p))
            for nb in range(2):
                for p in range(2): P.append(pk('mul', r+4*nb+2*p, r+4*nb+2*p, nmr[b]+4+2*p))
            for k in range(4): C.append(cvt(r+k, r+2*k, r+2*k+1))
            return P, C, [sw16(r, r+2), sw16(r+1, r+3)]
        def softmax(Tt):
            x = PK[Tt]; c = c32 + Tt
            ta, tb = ((acc(2, 3), acc(3, 3)), (acc(2, 2), acc(3, 2)))[Tt]
            mx, mn, bp, bm = ta, ta+1, tb, tb+1
            L = [f'v_max3_f32 v{mx}, v{x}, v{x+1}, v{x+2}', f'v_max3_f32 v{mn}, -v{x}, -v{x+1}, -v{x+2}']
            for k in range(3, 15, 2):
                L += [f'v_max3_f32 v{mx}, v{mx}, v{x+k}, v{x+k+1}', f'v_max3_f32 v{mn}, v{mn}, -v{x+k}, -v{x+k+1}']
            L += [f'v_max_f32 v{mx}, v{mx}, v{x+15}', f'v_max_f32 v{mn}, v{mn}, -v{x+15}']
            L += [sw32(mx, mn), f'v_max_f32 v{mx}, v{mx}, v{mn}', f'v_mul_f32 v{bm}, -v{mx}, v{c}', f'v_mov_b32 v{bp}, v{bm}', sw32(bp, bm)]
            parts = [L]; L = []
            for k in range(0, 16, 2): L.append(pk('fma', EP+k, x+k, ('b', c), ('b', bp)))
            for k in range(0, 16, 2): L.append(pk('fma', x+k, x+k, ('b', c), ('b', bm), neg=[1, 0, 0]))
            parts.append(L); L = []
            for k in range(16): L.append(f'v_exp_f32 v{EP+k}, v{EP+k}')
            for k in range(16): L.append(f'v_exp_f32 v{x+k}, v{x+k}')
            parts.append(L); L = []
            sp, sm = ta, ta+2
            r1, r2 = tb+2, tb+3
            L += [pk('add', sp, EP, EP+2), pk('add', sm, x, x+2)]
            for k in range(4, 16, 2): L += [pk('add', sp, sp, EP+k), pk('add', sm, sm, x+k)]
            L += [f'v_add_f32 v{sp}, v{sp}, v{sp+1}', f'v_add_f32 v{sm}, v{sm}, v{sm+1}', sw32(sp, sm), f'v_add_f32 v{sp}, v{sp}, v{sm}',
                  f'v_rcp_f32 v{r2}, v{sp}', f'v_mov_b32 v{r1}, v{r2}', sw32(r1, r2)]
            for k in range(0, 16, 2): L.append(pk('mul', x+k, x+k, ('b', r2)))
            for k in range(8): L.append(cvt(x+k, x+2*k, x+2*k+1))
            for k in range(0, 16, 2): L.append(pk('mul', EP+k, EP+k, ('b', r1)))
            for k in range(8): L.append(cvt(x+8+k, EP+2*k, EP+2*k+1))
            return parts + [L]
        FR = [[acc(0, 2), acc(0, 3)], [acc(1, 2), acc(1, 3)]]
        def to_lds(x):
            return [f'ds_write_b64 v{a_w}, {vr(x+8*(1-sg)+2*j,2)} offset:{64*sg+16*j}' for sg in (1, 0) for j in range(4)]
        def frags():
            return [f'ds_read_b64_tr_b16 {vr(FR[k][u]+2*tt,2)}, v{(a_r0, a_r1)[k]} offset:{(16*u+4*tt)*136}' for k in (1, 0) for u in range(2) for tt in range(2)]
        KV1 = PK[0]
        def kvm(Tt):
            L = []
            for k, K in ((1, KV1), (0, KV0)):
                for u in range(2): L.append(mf32(K, FR[k][u], acc(2*Tt+u, 4), None if (Tt == 0 and u == 0) else K))
                for u in range(2): L.append(mf32(ZA, SEL[k], FR[k][u], None if (Tt == 0 and u == 0 and k == 1) else ZA))
            return L
        sc = sched if self.sch else (lambda L: L)
        K = qk_prep(2, csk); isM = lambda t: t.startswith('v_mfma')
        VP_ = [vprep(b) for b in range(4)]
        sm0, sm1 = softmax(0), softmax(1)
        S = sc(S + [t for t in K if not isM(t)] + [f'v_mul_f32 v{c32+Tt}, {f2u(LOG2E)}, v{c32+Tt}' for Tt in range(2)] + VP_[0][0] + VP_[1][0])
        S += sc([t for t in K if isM(t)] + VP_[0][1] + VP_[1][1] + VP_[0][2] + VP_[1][2] + sm0[0])
        S += sc(sm0[1] + sm0[2] + sm1[0] + sm0[3] + to_lds(PK[0]) + frags())
        S += sm1[1] + interleave(kvm(0), sm1[2][2:], per=[4]*7 + [2]) + sm1[2][:2]
        S += sc(sm1[3] + to_lds(PK[1]) + frags() + sum((VP_[b][k] for k in range(3) for b in (2, 3)), []), lambda t: t.startswith('ds_read'))
        M = kvm(1)
        X = [f'ds_write_b128 v{x_w}, {vr(KV1+4*k,4)} offset:{1024*k}' for k in range(4)]
        S += M[0:5] + X[0:2] + M[5:6] + X[2:4] + [f'ds_write_b32 v{x_w}, v{ZA+1} offset:4096'] + M[6:8]
        self.aw(S); S = []
        S += ['s_waitcnt lgkmcnt(0)', 's_barrier']
        for k in range(4): S.append(f'ds_read_b128 {vr(EP+4*k,4)}, v{x_r} offset:{1024*k}')
        S.append(f'ds_read_b32 v{csv}, v{x_r} offset:4096')
        for u in range(2):
            for k in range(4): S.append(pk('add', KV0+8*u+2*k, KV0+8*u+2*k, EP+8*u+2*k))
            for k in range(4): S.append(cvt(KV0+8*u+k, KV0+8*u+2*k, KV0+8*u+2*k+1))
            S.append(f'buffer_store_dwordx4 {vr(KV0+8*u,4)}, v{l16}, {srd(sWS)}, s{s_d} offen offset:{1024*u} sc1')
        S += [f'v_add_f32 v{ZA}, v{ZA}, v{csv}', f'v_mov_b32_dpp v{ZA+3}, v{ZA} quad_perm:[1,0,3,2] row_mask:0xf bank_mask:0xf', cvt(ZA, ZA, ZA+3),
              f'buffer_store_dword v{ZA}, v{a_z}, {srd(sWS)}, s{s_e} offen sc1']
        self.sw(S, name='A k-part'); S = []
        a('s_barrier')
        self.stamp(3)
        u3, u4 = ZA + 4, ZA + 5
        for nb in range(2): S.append(f'ds_read_b128 {vr(csq+4*nb,4)}, v{a_csr} offset:{64*nb}')
        S += qk_prep(0, csq) + sum(softmax(0) + softmax(1), [])
        S += [f'v_lshrrev_b32 v{u3}, 5, v1', f'v_and_b32 v{u4}, 1, v1', f'v_lshlrev_b32 v{u4}, 6, v{u4}', f'v_lshl_add_u32 v{a_z}, v{u3}, 4, v{u4}',
              f'v_bfe_u32 v{u4}, v1, 4, 1', f'v_lshlrev_b32 v{u4}, 15, v{u4}', f'v_lshl_add_u32 v{u4}, v{u3}, 8, v{u4}',
              f'v_and_b32 v{u3}, 15, v1', f'v_lshl_add_u32 v{a_w}, v{u3}, 4, v{u4}', f's_add_u32 s{s_d}, s{s_a}, 65536']
        self.sw(S, name='A q-part'); S = []
        self.stamp(4)
        a('s_barrier')
        self.stamp(7)
        KF = KV0; ZF = EP
        self.ll_wait([f'buffer_load_dwordx4 {vr(ZF+4*u,4)}, v{a_z}, {srd(sWS)}, s{s_b} offen offset:{32*u} sc1' for u in range(2)] +
                     [f'buffer_load_dwordx4 {vr(KF+4*k,4)}, v{l16}, {srd(sWS)}, s{s_c} offen offset:{1024*k} sc1' for k in range(4)],
                     list(range(ZF, ZF+8)) + list(range(KF, KF+16)), u3, u4, 5)
        self.stamp(5)
        ACC = E['ACC']
        for Tt in range(2):
            N, DP, DM = ACC + 48*Tt, ACC + 48*Tt + 16, ACC + 48*Tt + 32
            x = PK[Tt]
            S += [mf32(DP, ZF, x+8), mf32(DP, ZF+4, x+12, DP), mf32(DM, ZF, x), mf32(DM, ZF+4, x+4, DM),
                  mf32(N, KF, x+8), mf32(N, KF+4, x+12, N), mf32(N, KF+8, x, N), mf32(N, KF+12, x+4, N)]
            S += [f'v_add_f32 v{DP}, v{DP}, v{DM+1}', f'v_add_f32 v{DP}, {f2u(1e-6)}, v{DP}', f'v_rcp_f32 v{DP}, v{DP}']
            for p in range(2):
                for jj in range(2):
                    j = p + 2*jj
                    for k in range(2):
                        r = N + 4*j + 2*k
                        if Tt == 0: S += [f'v_mul_f32 v{r}, v{DP}, v{r}', f'v_mul_f32 v{r+1}, v{DP}, v{r+1}']
                        else: S.append(pk('mul', r, r, ('b', DP)))
                        S.append(cvt(DM+4+4*p+2*jj+k, r, r+1))
                S.append(f'buffer_store_dwordx4 {vr(DM+4+4*p,4)}, v{a_w}, {srd(sWS)}, s{(s_a, s_d)[Tt]} offen offset:{512*p} sc1')
        self.sw(S, name='A finish')
        self.stamp(6)

    def epiB(self, E, pre):
        a = self.a
        acc = E['acc']; a_tok, a_row, a_csr, a_csv, l16 = (E[k] for k in ('a_tok', 'a_row', 'a_csr', 'a_csv', 'l16'))
        s_wm, s_wh, s_a, s_b, s_c, s_d, s_e = (E[k] for k in ('s_wm', 's_wh', 's_a', 's_b', 's_c', 's_d', 's_e'))
        BI, BI0, MK, a_h = 236, 244, 248, 252
        if pre:
            t1, t2, t3 = 208, 209, 210
            S = [f'v_and_b32 v{t1}, 15, v1', f'v_lshrrev_b32 v{t2}, 4, v1', f'v_lshlrev_b32 v{t2}, 2, v{t2}', f'v_sub_u32 v{t1}, v{t1}, v{t2}',
                 f'v_mov_b32 v{t3}, {f2u(-1e30)}']
            for blk in range(2):
                for i in range(4):
                    S += [f'v_add_u32 v{t2}, {(16 if blk == 0 else 0) - i}, v{t1}', f'v_and_b32 v{t2}, -15, v{t2}', f'v_cmp_eq_u32 vcc, 0, v{t2}',
                          f'v_cndmask_b32 v{BI+4*blk+i}, v{t3}, 0, vcc']
                    if i % 2 == 0: S += [f'v_cndmask_b32 v{MK+2*blk+i//2}, 0, -1, vcc', f'v_lshrrev_b32 v{MK+2*blk+i//2}, 16, v{MK+2*blk+i//2}']
                    else: S += [f'v_cndmask_b32 v{t2}, 0, -1, vcc', f'v_lshl_or_b32 v{MK+2*blk+i//2}, v{t2}, 16, v{MK+2*blk+i//2}']
            S += sx(s_b, [(s_l, 1 << 19), (s_m, 1 << 16), (s_g, 4096), (s_wh, 2048)], WS_HALO - (1 << 19))
            S += [f's_add_u32 s{s_c}, s{s_b}, 65536', f's_cmp_eq_u32 s{s_m}, 15', f's_cselect_b32 s{s_c}, {BIG}, s{s_c}',
                  f's_cmp_eq_u32 s{s_wm}, 0', f's_cselect_b32 s{s_c}, {BIG}, s{s_c}',
                  f's_or_b32 s{s_t}, s{s_m}, s{s_wm}', f's_cselect_b32 s{s_b}, s{s_b}, {BIG}', 's_cselect_b64 vcc, -1, 0']
            for i in range(4): S.append(f'v_cndmask_b32 v{BI0+i}, v{t3}, v{BI+i}, vcc')
            S += sx(s_t, [(s_wh, 2048)], P_PHI) + [f'v_add_u32 v{a_h}, s{s_t}, v{l16}']
            S += [f's_add_u32 s{s_t+1}, s{s_t}, 1024', f's_cmp_eq_u32 s{s_wm}, 0', f's_cselect_b32 s{s_t}, s{s_t}, {L_P + 7168}', f's_cselect_b32 s{s_t+1}, s{s_t+1}, {L_P + 7168}',
                  f'v_add_u32 v{a_h+1}, s{s_t}, v{l16}', f'v_add_u32 v{a_h+2}, s{s_t+1}, v{l16}']
            S += [f's_add_u32 s{s_d}, s{s_a}, 65536']
            a.extend(S)
            return
        V = Alloc('v', 128, 236)
        nmr = V.get(16, 4); rsr = V.get(16, 4)
        nml = V.get(4, 4); rsl = V.get(4, 4); csq = V.get(8, 4); csk = V.get(8, 4)
        VP = [V.get(12, 4), V.get(12, 4)]
        HB = V.get(8, 4)
        U = V.get(8, 4); M = V.get(4, 4); csv = V.get(2, 2); t1 = V.get(); t2 = V.get()
        S = []
        for b in (3, 0, 1, 2):
            S += [f'ds_read_b32 v{nml+b}, v{a_tok} offset:{64*b}', f'ds_read_b32 v{rsl+b}, v{a_tok} offset:{512+64*b}']
            if b == 3:
                for nb in range(2): S.append(f'ds_read_b128 {vr(csk+4*nb,4)}, v{a_csr} offset:{768+256+64*nb}')
                for nb in range(2): S.append(f'ds_read_b32 v{csv+nb}, v{a_csv} offset:{768+512+64*nb}')
            S += [f'ds_read_b128 {vr(nmr+4*b,4)}, v{a_row} offset:{64*b}', f'ds_read_b128 {vr(rsr+4*b,4)}, v{a_row} offset:{512+64*b}']
        for nb in range(2): S.append(f'ds_read_b128 {vr(csq+4*nb,4)}, v{a_csr} offset:{768+64*nb}')
        def kprep(b):
            r = acc(b, 2); L = []
            for k in range(4): L.append(pk('fma', r+2*k, csk+2*k, ('b', nml+b), r+2*k))
            for k in range(4): L.append(pk('mul', r+2*k, r+2*k, ('b', rsl+b)))
            for k in range(4): L.append(cvt(r+k, r+2*k, r+2*k+1))
            return L
        def vprep(b):
            r = acc(b, 4); L = []
            for nb in range(2):
                for p in range(2): L.append(pk('fma', r+4*nb+2*p, nmr+4*b+2*p, ('b', csv+nb), r+4*nb+2*p))
            for nb in range(2):
                for p in range(2): L.append(pk('mul', r+4*nb+2*p, r+4*nb+2*p, rsr+4*b+2*p))
            for nb in range(2):
                for p in range(2):
                    if b == 3: L.append(cvt(acc(3, 3)+2*nb+p, r+4*nb+2*p, r+4*nb+2*p+1))
                    else: L.append(cvt(VP[nb]+2+2*b+p, r+4*nb+2*p, r+4*nb+2*p+1))
            return L
        def qprep(b):
            r = acc(b, 0); L = []
            for k in range(4): L.append(pk('fma', r+2*k, csq+2*k, ('b', nml+b), r+2*k))
            for k in range(4): L.append(cvt(r+k, r+2*k, r+2*k+1))
            return L
        S += kprep(3) + vprep(3)
        for k in range(2): S.append(f'buffer_store_dwordx4 {vr(acc(3,2)+4*k,4)}, v{l16}, {srd(sWS)}, s{s_c} offen offset:{1024*k} sc1')
        for k in range(2): S.append(f'ds_write_b128 v{a_h+1+k}, {vr(acc(3,2)+4*k,4)}')
        for nb in range(2): S.append(f'v_mov_b64 {vr(VP[nb]+8,2)}, {vr(acc(3,3)+2*nb,2)}')
        for b in range(3): S += kprep(b) + vprep(b)
        for b in range(4): S += qprep(b)
        for b in range(4): S.append(f'v_mul_f32 v{rsl+b}, {f2u(LOG2E * 32 ** -0.5)}, v{rsl+b}')
        SS = nmr
        assert rsr == nmr + 16
        def logits(b):
            s = SS + 8*b
            L = [mf16(s, HB if b == 0 else acc(b-1, 2), acc(b, 0), BI0 if b == 0 else BI), mf16(s+4, acc(b, 2), acc(b, 0), BI+4)]
            for p in range(2):
                L += [f'v_max3_f32 v{U+2*b+p}, v{s+2*p}, v{s+2*p+1}, v{s+4+2*p}', f'v_max_f32 v{U+2*b+p}, v{U+2*b+p}, v{s+5+2*p}',
                      f'v_mul_f32 v{U+2*b+p}, v{rsl+b}, v{U+2*b+p}']
            L.append(f'v_max_f32 v{M+b}, v{U+2*b}, v{U+2*b+1}')
            return L
        for b in (1, 2, 3): S += logits(b)
        self.sw(S, crit=lambda t: t.startswith('buffer_store'), name='B prep'); S = []
        a('s_waitcnt lgkmcnt(0)'); a('s_barrier')
        self.stamp(3)
        L1, L3 = self.lab('hg'), self.lab('hd')
        a(f's_cmp_eq_u32 s{s_wm}, 0'); a(f's_cbranch_scc1 {L1}')
        for k in range(2): a(f'ds_read_b128 {vr(HB+4*k,4)}, v{a_h} offset:{1024*k}')
        a('s_waitcnt lgkmcnt(0)')
        a(f's_branch {L3}')
        a.label(L1)
        self.ll_wait([f'buffer_load_dwordx4 {vr(HB+4*k,4)}, v{l16}, {srd(sWS)}, s{s_b} offen offset:{1024*k} sc1' for k in range(2)],
                     list(range(HB, HB+8)), t1, t2, 0)
        a.label(L3)
        self.stamp(4)
        S += logits(0)
        for nb in range(2): S.append(f'v_mov_b64 {vr(VP[nb],2)}, {vr(HB+4+2*nb,2)}')
        def allred(op, mid):
            L = [sw32(M, M+2), sw32(M+1, M+3), f'{op} v{M}, v{M}, v{M+2}', f'{op} v{M+1}, v{M+1}, v{M+3}', sw16(M, M+1), f'{op} v{M+1}, v{M}, v{M+1}']
            L += mid
            L += [f'v_mov_b32 v{M}, v{M+1}', sw16(M, M+1), f'v_mov_b64 {vr(M+2,2)}, {vr(M,2)}', sw32(M, M+2), sw32(M+1, M+3)]
            return L
        S += allred('v_max_f32', [])
        for b in range(4): S.append(pk('add', U+2*b, U+2*b, ('b', M+b), neg=[0, 1]))
        for k in range(8): S.append(f'v_exp_f32 v{U+k}, v{U+k}')
        for b in range(4): S.append(f'v_add_f32 v{M+b}, v{U+2*b}, v{U+2*b+1}')
        S += allred('v_add_f32', [f'v_rcp_f32 v{M+1}, v{M+1}'])
        for b in range(4): S.append(pk('mul', U+2*b, U+2*b, ('b', M+b)))
        for b in range(4):
            P = SS + 8*b; O = acc(b, 4)
            for p in range(2): S.append(cvt(U+2*b+p, U+2*b+p, U+2*b+p))
            for blk in range(2):
                for p in range(2): S.append(f'v_and_b32 v{P+2*blk+p}, v{U+2*b+p}, v{MK+2*blk+p}')
            for db in range(2): S.append(mf16(O+4*db, VP[db]+2*b, P))
        S += [f's_add_u32 s{s_b}, s{s_a}, 32768', f's_add_u32 s{s_c}, s{s_d}, 32768']
        for b in range(4):
            O = acc(b, 4)
            for k in range(4): S.append(cvt(O+k, O+2*k, O+2*k+1))
            S.append(f'buffer_store_dwordx4 {vr(O,4)}, v{l16}, {srd(sWS)}, s{(s_a, s_b, s_d, s_c)[b]} offen sc1')
        self.sw(S, name='B finish')
        self.stamp(6)

    def build(self):
        a = self.a
        self.prologue()
        self.compute()
        self.loader()
        self.helper()
        a.label('L_fin')
        self.stamp(15)
        self.stamp_out()
        if self.probe:
            def body():
                a('s_sub_u32 s93, s94, s93'); a(f's_mul_i32 s93, s93, {self.probe[2]}'); a('s_min_u32 s93, s93, 100000')
                a(f's_memrealtime s[{s_t+6}:{s_t+7}]'); a('s_waitcnt lgkmcnt(0)'); a(f's_add_u32 s93, s93, s{s_t+6}')
                a.label('L_probe')
                a(f's_memrealtime s[{s_t+6}:{s_t+7}]'); a('s_waitcnt lgkmcnt(0)'); a(f's_sub_u32 s94, s{s_t+6}, s93'); a('s_cmp_lt_i32 s94, 0'); a('s_cbranch_scc1 L_probe')
            self.cond([f's_or_b32 s{s_t}, s2, s{s_wave}', f's_cmp_eq_u32 s{s_t}, 0'], body)
        a('s_waitcnt vmcnt(0)')
        a.label('L_end')
        a('s_endpgm')
        a.pad()
        assert a.maxreg('v') <= 255 and a.maxreg('s') < 96
        return a.text()


def generate(listform=False, **kw):
    body = Gen(**kw).build()
    ref = open('interleave_layers__linear_kernel_hedgehog__sliding_local_dilated__prompt.s.ref').read() if not listform else ''
    head = ''.join(l + '\n' for l in ref.split('\n') if l.startswith(';') and '@launch' not in l)
    if listform: head += f'; @launch kernel={KNAME} grid=(256,1,1) block=(512,1,1) lds={LDS_BYTES}\n'
    else: head += f'; @launch grid=(256,1,1) block=(512,1,1) lds={LDS_BYTES}\n'
    return head + '.amdgcn_target "amdgcn-amd-amdhsa--gfx950"\n' + kernel_head(KNAME) + body + kernel_desc(KNAME, 256, 96, 256)

if __name__ == '__main__':
    kw = eval(sys.argv[2]) if len(sys.argv) > 2 else {}
    open(sys.argv[1], 'w').write(generate(**kw))
```

```python
import sys, struct
sys.path.insert(0, 'work')
from asmlib import *

KNAME = 'interleave_layers__linear_kernel_hedgehog__sliding_local_dilated__prompt_kernel'

WS_CTR, WS_STAMP, WS_ST, WS_CS = 0x0, 0x100000, 0x200000, 0x300000
WS_HALO, WS_KVF, WS_ZP, WS_ZF, WS_KVP = 0x400000, 0x600000, 0x680000, 0x6C0000, 0x800000
WS_RF = 0x700000
WS_XI, WS_OI, WS_END = 0xC00000, 0x1800000, 0x2800000
BIG = 0x40000000
STG = 40960
XOFF = 24576
L_WO = 24576
L_SPARE = 3 * STG
L_P = 155648
P_NM, P_RS, P_CS, P_MODE, P_CNT, P_PHI = L_P, L_P + 512, L_P + 1024, L_P + 2816, L_P + 2832, L_P + 3072
LDS_BYTES = 163840
SCR = 5120
LOG2E = 1.4426950408889634
def f2u(x): return '0x%08x' % struct.unpack('<I', struct.pack('<f', x))[0]

s_fast = 3
pAX, pAW, pPHI, pAWO, pBW, pBWO, pOUT, pDBG, pWS = 4, 6, 8, 10, 14, 16, 18, 20, 22
sWS, sX, sW, sWO, sOUT, sDBG = 24, 28, 32, 36, 40, 44
s_m, s_g, s_wave, s_l = 48, 49, 50, 51
s_t = 52
s_cnt, s_x = 60, 61
s_i = 62
s_stamp = 63
s_rot = 64
s_rot2 = 95
s_ft, s_fn, s_fd = 90, 91, 88
def srd(b): return 's[%d:%d]' % (b, b + 3)


def sx(d, terms, const=0):
    L = []
    for n, (r, k) in enumerate([t for t in terms if t[1]]):
        t = d if n == 0 else s_x
        if k == 1 and n: t = r
        elif k == 1: L.append(f's_mov_b32 s{t}, s{r}')
        elif k > 0 and k & (k - 1) == 0: L.append(f's_lshl_b32 s{t}, s{r}, {k.bit_length()-1}')
        else: L.append(f's_mul_i32 s{t}, s{r}, {k}')
        if n: L.append(f's_add_u32 s{d}, s{d}, s{t}')
    if const: L.append(f's_add_u32 s{d}, s{d}, {const:#x}' if const > 0 else f's_sub_u32 s{d}, s{d}, {-const:#x}')
    return L

def pkop(r):
    if isinstance(r, tuple):
        return vr(r[1] & ~1, 2), r[1] & 1, r[1] & 1
    assert r % 2 == 0
    return vr(r, 2), 0, 1
def pk(op, d, *src, neg=None):
    o = [pkop(s) for s in src]
    t = 'v_pk_%s_f32 %s, %s' % (op, vr(d, 2), ', '.join(x[0] for x in o))
    lo = [x[1] for x in o]; hi = [x[2] for x in o]
    if any(lo): t += ' op_sel:[%s]' % ','.join(map(str, lo))
    if not all(hi): t += ' op_sel_hi:[%s]' % ','.join(map(str, hi))
    if neg: t += ' neg_lo:[%s] neg_hi:[%s]' % (','.join(map(str, neg)), ','.join(map(str, neg)))
    return t
def cvt(d, a, b): return f'v_cvt_pk_bf16_f32 v{d}, v{a}, v{b}'
def sw16(a, b): return f'v_permlane16_swap_b32 v{a}, v{b}'
def sw32(a, b): return f'v_permlane32_swap_b32 v{a}, v{b}'
def mf16(d, A, B, C=None): return f'v_mfma_f32_16x16x32_bf16 {vr(d,4)}, {vr(A,4)}, {vr(B,4)}, ' + (vr(C, 4) if C is not None else '0')
def mf32(d, A, B, C=None): return f'v_mfma_f32_32x32x16_bf16 {vr(d,16)}, {vr(A,4)}, {vr(B,4)}, ' + (vr(C, 16) if C is not None else '0')


class Gen:
    def __init__(self, prof=0, limit=40000, dist=2, touch=1, bm=27, local=1, pd=5, sch=1, hprio=2, opos=(1, 5), warm=1, nap=4, probe=None, snake=1, rf=2, hq=5, fine=0, llf='sc1', ot=0, hc=None, hpos=90, early=0, w2=0, w0b=0):
        self.a = Asm()
        assert bm >= 16
        self.__dict__.update(prof=prof, limit=limit, dist=dist, touch=touch, bm=bm, local=local, pd=pd, sch=sch, hprio=hprio, opos=opos, warm=warm, nap=nap, probe=probe, snake=snake, rf=rf, hq=hq, fine=fine, llf=llf, ot=ot, hc=hc, hpos=hpos, early=early, w2=w2, w0b=w0b)
        self.nlab = 0

    def lab(self, p):
        self.nlab += 1
        return 'L_%s_%d' % (p, self.nlab)

    def aw(self, L):
        self.a.extend(autowait(L))
    def sw(self, L, crit=None, name=''):
        if self.sch:
            L = sched(L, crit)
            if name and __name__ == '__main__': print('sched', name, len(L), 'instructions, about', sched.last_estimate, 'cycles', file=sys.stderr)
        self.a.extend(autowait(L))

    def cond(self, test, body):
        L = self.lab('skip')
        self.a.extend(test); self.a(f's_cbranch_scc0 {L}')
        body()
        self.a.label(L)

    def spin(self, issue, check, vt, tag, pre=False):
        a = self.a
        L, C, D = self.lab('spin'), self.lab('chk'), self.lab('done')
        a(f's_mov_b32 s{s_cnt}, 0')
        if pre:
            a(f's_branch {C}')
            a.label(L); a.extend(issue); a('s_waitcnt vmcnt(0)')
            a.label(C); a.extend(check)
        else:
            a.label(L); self.aw(list(issue) + list(check))
        a('s_cmp_eq_u64 vcc, 0'); a(f's_cbranch_scc1 {D}')
        a(f's_add_u32 s{s_cnt}, s{s_cnt}, 1')
        a(f's_cmp_lt_u32 s{s_cnt}, {self.limit}'); a(f's_cbranch_scc1 {L}')
        a(f'v_mov_b32 v{vt}, {1 << tag}')
        a(f'buffer_atomic_or v{vt}, off, {srd(sDBG)}, 0 offset:4 sc1')
        a.label(D)

    def ll_wait(self, loads, regs, t1, t2, tag, pre=False):
        S = []
        h = len(regs) // 2
        for t, R in ((t1, regs[:h]), (t2, regs[h:])):
            S.append(f'v_max_u32 v{t}, v{R[0]}, v{R[1]}')
            for k in range(2, len(R), 2): S.append(f'v_max3_u32 v{t}, v{t}, v{R[k]}, v{R[k+1]}')
        S += [f'v_max_u32 v{t1}, v{t1}, v{t2}', f'v_cmp_eq_u32 vcc, -1, v{t1}']
        loads = [l.replace('sc1', self.llf) for l in loads]
        self.spin(loads, S, t1, tag, pre)

    def flag_set(self, soff, vt, which=3):
        a = self.a
        a('s_mov_b64 exec, 1')
        if which & 1: a(f'buffer_store_dword v{vt}, off, {srd(sWS)}, s{soff}')
        if which & 2: a(f'buffer_store_dword v{vt}, off, {srd(sWS)}, s{soff+1} sc1')
        a('s_mov_b64 exec, -1')
    def flag_addr(self, va, vt, soff, remote=False):
        L = [f'v_bfe_u32 v{va}, v1, 1, 3', f'v_and_b32 v{vt}, 1, v1', f'v_lshl_add_u32 v{va}, v{va}, 2, v{vt}']
        if remote: return L + [f'v_lshlrev_b32 v{va}, 7, v{va}']
        return L + [f's_cmp_eq_u32 s{s_fast}, 1', f's_cselect_b32 s{s_t}, 0, 5', f's_cselect_b32 s{s_t+1}, 0, {WS_RF}',
                    f's_lshl_b32 s{soff}, s{soff}, s{s_t}', f's_add_u32 s{soff}, s{soff}, s{s_t+1}', f's_add_u32 s{s_t}, s{s_t}, 2',
                    f'v_lshlrev_b32 v{va}, s{s_t}, v{va}']
    def flag_load(self, soff, va, vt): return f'buffer_load_dword v{vt}, v{va}, {srd(sWS)}, s{soff} offen sc1'
    def flag_wait(self, soff, va, vt, tag, pre=False, nap=0):
        self.spin(([f's_sleep {nap}'] if nap else []) + [self.flag_load(soff, va, vt)], [f'v_cmp_eq_u32 vcc, 0, v{vt}'], vt, tag, pre)
    def get_mode(self, vt):
        self.a.extend([f'v_mov_b32 v{vt}, {P_MODE}', f'ds_read_b32 v{vt}, v{vt}', 's_waitcnt lgkmcnt(0)', f'v_readfirstlane_b32 s{s_fast}, v{vt}'])

    def stamp(self, k):
        if self.probe:
            for n, (pl, pk_) in enumerate(self.probe[:2]):
                if pk_ == k:
                    def body():
                        self.a(f's_memrealtime s[{s_t+6}:{s_t+7}]'); self.a('s_waitcnt lgkmcnt(0)'); self.a(f's_mov_b32 s{93+n}, s{s_t+6}')
                    self.cond([f's_cmp_eq_u32 s{s_l}, {pl}'], body)
        if not self.prof or self.prof >= 5: return
        a = self.a
        a(f'{"s_memtime" if self.prof == 4 else "s_memrealtime"} s[{s_t+6}:{s_t+7}]')
        a(f's_mov_b32 s{s_stamp}, m0')
        a(f's_lshl_b32 m0, s{s_l}, 4'); a(f's_add_u32 m0, m0, {k}')
        a('s_waitcnt lgkmcnt(0)')
        a(f'v_writelane_b32 v255, s{s_t+6}, m0')
        a(f's_mov_b32 m0, s{s_stamp}')
    def stamp_out(self):
        if not self.prof: return
        a = self.a
        a.extend(sx(s_t, [(2, 2048), (s_wave, 256)], WS_STAMP))
        a('v_lshlrev_b32 v254, 2, v1')
        a(f'buffer_store_dword v255, v254, {srd(sWS)}, s{s_t} offen')

    def prologue(self):
        a = self.a
        a('s_cmp_ge_u32 s2, 256'); a('s_cbranch_scc1 L_end')
        a('s_load_dwordx16 s[4:19], s[0:1], 0')
        a('s_load_dwordx4 s[20:23], s[0:1], 64')
        a('v_lshrrev_b32 v2, 6, v0')
        a(f'v_readfirstlane_b32 s{s_wave}, v2')
        a('v_and_b32 v1, 63, v0')
        a(f's_and_b32 s{s_rot}, s2, 3'); a(f's_lshl_b32 s{s_rot}, s{s_rot}, 2')
        a(f's_bfe_u32 s{s_t}, s2, 0x20003'); a(f's_add_u32 s{s_m}, s{s_rot}, s{s_t}')
        a(f's_mov_b32 s{s_rot}, s{s_m}')
        a(f's_and_b32 s{s_rot2}, s2, 4'); a(f's_lshl_b32 s{s_rot2}, s{s_rot2}, 1')
        a(f's_lshr_b32 s{s_g}, s2, 5'); a(f's_add_u32 s{s_g}, s{s_g}, s{s_rot2}')
        a(f's_mov_b32 s{s_l}, 0'); a(f's_mov_b32 s{s_fast}, 0')
        for b, n in ((sWS, WS_END), (sX, 2048*1024*2), (sW, 1024*3072*2), (sWO, 1024*1024*2), (sOUT, WS_END), (sDBG, 256)):
            a(f's_mov_b32 s{b+2}, {n}'); a(f's_mov_b32 s{b+3}, 0x20000')
        if self.prof: a('v_mov_b32 v255, 0')
        self.stamp(0)
        a(f's_cmp_ge_u32 s{s_wave}, 6'); a('s_cbranch_scc1 L_helper')
        a(f's_cmp_ge_u32 s{s_wave}, 4'); a('s_cbranch_scc1 L_loader')
    def pointers(self):
        a = self.a
        a('s_waitcnt lgkmcnt(0)')
        for b, p in ((sWS, pWS), (sX, pAX), (sW, pAW), (sWO, pAWO), (sOUT, pWS), (sDBG, pDBG)):
            a(f's_mov_b64 s[{b}:{b+1}], s[{p}:{p+1}]')

    def trickle_setup(self):
        a = self.a
        a(f's_cmp_eq_u32 s{s_l}, 0')
        a(f's_cselect_b64 s[{sOUT}:{sOUT+1}], s[{pBW}:{pBW+1}], s[{pBWO}:{pBWO+1}]')
        a(f's_cselect_b32 s{s_t}, 3, 1'); a(f's_lshl_b32 s{sOUT+2}, s{s_t}, 21'); a(f's_lshl_b32 s{s_fn}, s{s_t}, 2')
        a.extend(sx(s_ft, [(2, 8192), (s_wave, 2048)], -8192)); a(f's_mul_i32 s{s_ft}, s{s_ft}, s{s_t}')
        a(f's_cmp_lt_u32 s{s_l}, {2 if self.warm else 0}'); a(f's_cselect_b32 s{s_fn}, s{s_fn}, 0')
    def trickle(self, i):
        a = self.a
        def body():
            for r in range(4): a(f's_buffer_load_dwordx2 s[{s_fd}:{s_fd+1}], {srd(sOUT)}, s{s_ft} offset:{128*r+60}')
            a(f's_add_u32 s{s_ft}, s{s_ft}, 512')
        self.cond([f's_cmp_gt_u32 s{s_fn}, {i}'], body)

    def w_dma_offsets(self, dw, idx, t0, t1, t2):
        a = self.a
        a(f'v_lshrrev_b32 v{t0}, 3, v1'); a(f'v_mul_u32_u24 v{t0}, 6144, v{t0}')
        a(f'v_and_b32 v{t1}, 7, v1'); a(f'v_bfe_u32 v{t2}, v1, 4, 1'); a(f'v_lshlrev_b32 v{t2}, 1, v{t2}')
        a(f'v_xor_b32 v{t1}, v{t1}, v{t2}'); a(f'v_xor_b32 v{t2}, 4, v{t1}')
        a(f'v_lshl_add_u32 v{t1}, v{t1}, 4, v{t0}'); a(f'v_lshl_add_u32 v{t2}, v{t2}, 4, v{t0}')
        d = 8*6144 - 1024
        a(f's_lshl_b32 s{s_t+1}, s{s_g}, 7'); a(f'v_add_u32 v{t1}, s{s_t+1}, v{t1}'); a(f's_add_u32 s{s_t+1}, s{s_t+1}, {d}'); a(f'v_add_u32 v{t2}, s{s_t+1}, v{t2}')
        a(f's_cmp_eq_u32 s{idx}, 0')
        for t in range(3):
            c = [((3*w + t) & 1)*32*6144 + ((3*w + t) >> 1)*2048 for w in range(2)]
            a(f's_mov_b32 s{s_t}, {c[1]}'); a(f's_cmov_b32 s{s_t}, {c[0]}')
            a(f'v_add_u32 v{dw+4*t}, s{s_t}, v{t1}'); a(f'v_add_u32 v{dw+4*t+1}, s{s_t}, v{t2}')
            a(f'v_add_u32 v{dw+4*t+2}, {2*d}, v{dw+4*t}'); a(f'v_add_u32 v{dw+4*t+3}, {2*d}, v{dw+4*t+1}')

    def w_frag_addr(self, aw, head_sreg, base, t0, t1, t2, nb_list=(0, 1)):
        L = [f'v_lshrrev_b32 v{t2}, 4, v1', f'v_bfe_u32 v{t0}, v1, 2, 2', f'v_lshl_add_u32 v{t1}, v{t2}, 3, v{t0}',
             f'v_lshrrev_b32 v{t0}, 1, v{t0}', f'v_and_b32 v{t2}, 1, v{t2}', f'v_lshl_add_u32 v{t0}, v{t2}, 1, v{t0}']
        if head_sreg is not None: L += [f's_lshl_b32 s{s_t}, s{head_sreg}, 1', f'v_xor_b32 v{t0}, s{s_t}, v{t0}']
        L += [f'v_and_b32 v{t2}, 3, v1', f'v_lshlrev_b32 v{t2}, 3, v{t2}', f'v_lshl_add_u32 v{t2}, v{t1}, 7, v{t2}']
        if base: L.append(f'v_add_u32 v{t2}, {base}, v{t2}')
        for k, nb in enumerate(nb_list): L += [f'v_xor_b32 v{t1}, {nb}, v{t0}', f'v_lshl_add_u32 v{aw+k}, v{t1}, 5, v{t2}']
        return L

    def reduce_job(self, after_by=None, after_fill=None):
        a = self.a
        T = 200
        vA, vZ, vO, t1, t2 = T, T+1, T+2, T+3, T+4
        s_a, s_b, s_c, s_d, s_e = 80, 81, 82, 83, 84
        a.extend(sx(s_t, [(s_l, 32), (s_g, 4), (s_wave, 1)], -4))
        a.extend(sx(s_a, [(s_t, 32768), (s_m, 128)], WS_KVP)); a(f's_add_u32 s{s_b}, s{s_a}, 16384')
        a.extend(sx(s_d, [(s_t, 2048), (s_m, 128)], WS_KVF))
        a.extend(sx(s_c, [(s_t, 1024)], WS_ZP)); a.extend(sx(s_e, [(s_t, 64)], WS_ZF))
        a(f's_and_b32 s{s_t}, s{s_t}, 1'); a(f's_xor_b32 s{s_t+1}, s{s_m}, s{s_g}'); a(f's_or_b32 s{s_t}, s{s_t}, s{s_t+1}')
        a(f's_cselect_b32 s{s_c}, {BIG}, s{s_c}'); a(f's_cselect_b32 s{s_e}, {BIG}, s{s_e}')
        a(f'v_and_b32 v{t1}, 7, v1'); a(f'v_lshlrev_b32 v{t1}, 4, v{t1}')
        a(f'v_lshrrev_b32 v{t2}, 3, v1'); a(f'v_lshl_add_u32 v{vA}, v{t2}, 11, v{t1}')
        a(f'v_lshlrev_b32 v{vZ}, 4, v1')
        a(f'v_lshrrev_b32 v{t2}, 4, v1'); a(f'v_lshl_add_u32 v{vO}, v{t2}, 2, v{t1}')
        D = T + 8; U = 160
        def late_fill():
            for k in range(4): a(f'v_mov_b32 v{D+k}, -1')
            fill = f'buffer_store_dwordx4 {vr(D,4)}, v{vZ}, {srd(sWS)}, s{s_t} offen'
            a.extend(sx(s_t, [(s_g, 131072), (s_wave, 32768), (s_m, 2048)], WS_KVP + (1 << 21) - 4*32768)); a(fill + ' sc1'); a(fill + ' offset:1024 sc1')
            a(f's_lshr_b32 s{s_t+1}, s{s_wave}, 1'); a(f's_and_b32 s{s_t+2}, s{s_wave}, 1')
            a.extend(sx(s_t, [(s_t+2, 1 << 20), (s_m, 1 << 16), (s_g, 4096), (s_t+1, 2048)], WS_HALO - 2*2048)); a(fill + ' sc1'); a(fill + ' offset:1024 sc1')
            a.extend(sx(s_t, [(s_wave, 262144), (s_m, 16384), (s_g, 1024)], WS_ST - 3*262144))
            a.extend(sx(s_t+3, [(s_g, 16384), (s_m, 1024)], WS_CS + 262144))
            a(f's_cmp_eq_u32 s{s_wave}, 7'); a(f's_cselect_b32 s{s_t}, s{s_t+3}, s{s_t}'); a(fill + ' sc1')
            a('s_mov_b64 exec, 0xff')
            a(f's_add_u32 s{s_t}, s{s_d}, {1 << 17}'); a(fill + ' sc1')
            a(f's_add_u32 s{s_t}, s{s_e}, {1 << 12}'); a(fill + ' sc1')
            a.extend(sx(s_t, [(s_g, 4096), (s_t+1, 2048), (s_m, 128)], WS_ZP + (1 << 16) - 2*2048)); a(fill + ' sc1')
            a('s_mov_b64 exec, -1')
            a('s_waitcnt vmcnt(0)')
            if after_fill: after_fill()
        self.cond([f's_cmp_eq_u32 s{s_l}, 0'], late_fill)
        a('s_barrier')
        a('s_barrier')
        if after_by: after_by()
        self.ll_wait([f'buffer_load_dwordx4 {vr(D,4)}, v{vA}, {srd(sWS)}, s{s_a} offen sc1',
                      f'buffer_load_dwordx4 {vr(D+4,4)}, v{vA}, {srd(sWS)}, s{s_b} offen sc1',
                      f'buffer_load_dwordx4 {vr(D+8,4)}, v{vZ}, {srd(sWS)}, s{s_c} offen sc1',
                      f'buffer_load_dwordx4 {vr(D+12,4)}, v{vZ}, {srd(sWS)}, s{s_c} offen offset:1024 sc1'],
                     list(range(D, D+16)), t1, t2, 1)
        self.stamp(5)
        S = []
        for z in range(2):
            d, u = D + 8*z, U + 16*z
            for k in range(8): S += [f'v_lshlrev_b32 v{u+2*k}, 16, v{d+k}', f'v_and_b32 v{u+2*k+1}, 0xffff0000, v{d+k}']
            for k in range(4): S.append(pk('add', u+2*k, u+2*k, u+8+2*k))
            for k in range(4): S.append(sw32(u+k, u+4+k))
            S += [pk('add', u, u, u+4), pk('add', u+2, u+2, u+6), sw16(u, u+2), sw16(u+1, u+3), pk('add', u, u, u+2)]
            for k in range(2): S.append(f'v_add_f32_dpp v{u+k}, v{u+k}, v{u+k} row_ror:8 row_mask:0xf bank_mask:0xf')
            S.append(cvt(u, u, u+1))
        S += ['s_mov_b32 exec_lo, 0x00ff00ff', 's_mov_b32 exec_hi, 0x00ff00ff',
              f'buffer_store_dword v{U}, v{vO}, {srd(sWS)}, s{s_d} offen sc1',
              f'buffer_store_dword v{U+16}, v{vO}, {srd(sWS)}, s{s_e} offen sc1', 's_mov_b64 exec, -1']
        self.sw(S)
        a('s_barrier')

    def loader(self):
        a = self.a
        a.label('L_loader')
        dx, dw, dwo, t0, t1, t2, vf = 8, 16, 28, 2, 3, 4, 5
        s_ld, s_kx, s_kw, s_slot, s_mx, s_xstep, s_wo, s_wm0, s_sx, s_sw, s_xb, s_fl, s_mw = range(65, 78)
        a(f's_sub_u32 s{s_ld}, s{s_wave}, 4')
        self.w_dma_offsets(dw, s_ld, t0, t1, t2)
        a(f's_mul_i32 s{s_mw}, s{s_ld}, 12288')
        a(f's_lshl_b32 s{s_mx}, s{s_ld}, 13'); a(f's_add_u32 s{s_mx}, s{s_mx}, {XOFF}')
        s_flip = 78
        def nxt(r):
            return [f's_cmp_eq_u32 s{r}, s{s_flip}', f's_addc_u32 s{r}, s{r}, 1', f's_and_b32 s{r}, s{r}, 15']
        def wst(slot=None):
            L = []
            for j in range(12):
                if j == 0: L.append(f's_add_u32 m0, s{s_mw}, ' + (f's{s_slot}' if slot is None else str(slot*STG)))
                elif j % 4 == 0: L.append('s_add_u32 m0, m0, 4096')
                L.append(f'buffer_load_dwordx4 v{dw+j}, {srd(sW)}, s{s_kw} offen offset:{1024*(j%4)} lds')
            a.extend(L + nxt(s_sw) + [f's_mul_i32 s{s_kw}, s{s_sw}, {64*6144}'])
        def xst(slot=None):
            L = []
            for j in range(8):
                if j == 0: L.append(f's_add_u32 m0, s{s_mx}, ' + (f's{s_slot}' if slot is None else str(slot*STG)))
                elif j == 4: L.append('s_add_u32 m0, m0, 4096')
                L.append(f'buffer_load_dwordx4 v{dx+j}, {srd(sX)}, s{s_kx} offen offset:{1024*(j%4)} sc1 lds')
            a.extend(L + nxt(s_sx) + [f's_mul_i32 s{s_kx}, s{s_sx}, s{s_xstep}', f's_add_u32 s{s_kx}, s{s_kx}, s{s_xb}'])
        def kstart(first):
            if first:
                a(f's_mov_b32 s{s_sx}, s{s_m}'); a(f's_mov_b32 s{s_sw}, s{s_m}'); a(f's_mov_b32 s{s_flip}, 16')
            else:
                a(f's_add_u32 s{s_sw}, s{s_rot2}, 15'); a(f's_and_b32 s{s_sw}, s{s_sw}, 15'); a(f's_mov_b32 s{s_sx}, s{s_sw}')
                a(f's_add_u32 s{s_flip}, s{s_g}, 15'); a(f's_and_b32 s{s_flip}, s{s_flip}, 15'); a.extend(nxt(s_sx))
            a(f's_mul_i32 s{s_kw}, s{s_m if first else s_g}, {64*6144}'); a(f's_mul_i32 s{s_kx}, s{s_sx}, s{s_xstep}'); a(f's_add_u32 s{s_kx}, s{s_kx}, s{s_xb}')
        a(f's_lshl_b32 s{s_xb}, s{s_m}, 18'); a(f's_mov_b32 s{s_xstep}, 128'); kstart(True)
        self.pointers()
        wst(0)
        a(f'v_lshrrev_b32 v{t0}, 3, v1'); a(f'v_and_b32 v{t1}, 7, v1')
        a(f'v_lshrrev_b32 v{t2}, 4, v1'); a(f'v_xor_b32 v{t1}, v{t1}, v{t2}'); a(f'v_xor_b32 v{t2}, 4, v{t1}')
        a(f's_lshl_b32 s{s_t}, s{s_ld}, 17'); a(f'v_lshl_add_u32 v{t0}, v{t0}, 11, s{s_t}')
        a(f'v_lshl_add_u32 v{t1}, v{t1}, 4, v{t0}'); a(f'v_lshl_add_u32 v{t2}, v{t2}, 4, v{t0}')
        for j in range(8): a(f'v_add_u32 v{dx+j}, {j*16384 - 1024*(j%4)}, v{t1 if j % 2 == 0 else t2}')
        xst(0); wst(1)
        a(f'v_lshrrev_b32 v{t0}, 5, v1'); a(f'v_lshlrev_b32 v{t0}, 4, v{t0}')
        a(f'v_bfe_u32 v{t1}, v1, 3, 2'); a(f'v_add_u32 v{t0}, v{t0}, v{t1}')
        a(f's_lshl_b32 s{s_t}, s{s_g}, 7'); a(f'v_lshl_add_u32 v{t0}, v{t0}, 11, s{s_t}')
        a(f'v_and_b32 v{t1}, 7, v1'); a(f'v_bfe_u32 v{t2}, v1, 4, 1'); a(f'v_lshlrev_b32 v{t2}, 1, v{t2}')
        a(f'v_xor_b32 v{t1}, v{t1}, v{t2}'); a(f'v_xor_b32 v{t2}, 4, v{t1}')
        a(f'v_lshl_add_u32 v{t1}, v{t1}, 4, v{t0}'); a(f'v_lshl_add_u32 v{t2}, v{t2}, 4, v{t0}')
        for G in range(4): a(f'v_add_u32 v{dwo+G}, {G*4*2048 - 1024*G}, v{t1 if G % 2 == 0 else t2}')
        a('s_waitcnt vmcnt(12)'); a('s_barrier')
        xst(1); wst(2)
        a('s_waitcnt vmcnt(12)'); a('s_barrier')
        xst(2)
        a.label('L_ld_enter')
        a(f's_mov_b32 s{s_i}, 0'); a(f's_mov_b32 s{s_slot}, 0')
        self.trickle_setup()
        def loop(name, n, extra):
            a.label(name)
            xst(); wst()
            if extra:
                a(f's_add_u32 s{s_t}, s{s_i}, 1'); a(f's_and_b32 s{s_t}, s{s_t}, 7')
                a.extend(sx(s_wo, [(s_rot2, 2), (s_t, 1)], 24)); a(f's_and_b32 s{s_wo}, s{s_wo}, 31')
                a.extend(sx(s_wm0, [(s_wo, 65536), (s_ld, 2*4*2048)]))
                a.extend(sx(s_wo, [(s_t, 4096), (s_ld, 2048)], L_SPARE)); a(f's_mov_b32 m0, s{s_wo}')
                for G in range(2): a(f'buffer_load_dwordx4 v{dwo+G}, {srd(sWO)}, s{s_wm0} offen offset:{1024*G} lds')
            self.trickle(f's{s_i}')
            a(f's_add_u32 s{s_slot}, s{s_slot}, {STG}'); a(f's_cmp_eq_u32 s{s_slot}, {3*STG}'); a(f's_cselect_b32 s{s_slot}, 0, s{s_slot}')
            a(f's_add_u32 s{s_i}, s{s_i}, 1'); a(f's_cmp_lt_u32 s{s_i}, {n}')
            a(f's_waitcnt vmcnt({22 if extra else 20})')
            a('s_barrier')
            a(f's_cbranch_scc1 {name}')
        if self.early: loop('L_ld_loop', 5, False); loop('L_ld_loop2', 13, True)
        else: loop('L_ld_loop', 13, False)
        def wo(p0, n):
            a.extend(sx(s_wm0, [(s_ld, 4096)], L_WO + 4096*p0))
            a.extend(sx(s_wo, [(s_rot2, 2), (s_ld, 1)], p0)); a(f's_and_b32 s{s_wo}, s{s_wo}, 31'); a(f's_lshl_b32 s{s_wo}, s{s_wo}, 16')
            L = self.lab('wo')
            a(f's_mov_b32 s{s_i}, 0')
            a.label(L)
            a(f's_mov_b32 m0, s{s_wm0}')
            a(f's_add_u32 s{s_wm0}, s{s_wm0}, 8192')
            for G in range(4): a(f'buffer_load_dwordx4 v{dwo+G}, {srd(sWO)}, s{s_wo} offen offset:{1024*G} lds')
            a(f's_add_u32 s{s_wo}, s{s_wo}, 131072'); a(f's_and_b32 s{s_wo}, s{s_wo}, 0x1fffff')
            a(f's_add_u32 s{s_i}, s{s_i}, 1'); a(f's_cmp_lt_u32 s{s_i}, {n//2}'); a(f's_cbranch_scc1 {L}')
        if self.early:
            wo(4, 10)
            a('s_waitcnt vmcnt(20)'); a('s_barrier')
            wo(14, 10)
            a('s_barrier')
            wo(0, 4)
        else:
            wo(24, 8)
            a('s_waitcnt vmcnt(16)'); a('s_barrier')
            wo(4, 10)
            a('s_barrier')
            wo(14, 10); wo(0, 4)
        a.extend(sx(s_fl, [(s_l, 8192), (s_m, 256), (s_rot2, 16), (s_ld, 8)], 4096))
        self.get_mode(t0); a.extend(self.flag_addr(vf, t0, s_fl))
        a.extend(sx(s_xb, [(s_l, 1 << 22), (s_m, 1 << 18)], WS_XI))
        a(f's_bitcmp0_b32 s{s_l}, 0')
        a(f's_cselect_b64 s[{sW}:{sW+1}], s[{pBW}:{pBW+1}], s[{pAW}:{pAW+1}]')
        a(f's_cselect_b64 s[{sWO}:{sWO+1}], s[{pBWO}:{pBWO+1}], s[{pAWO}:{pAWO+1}]')
        a(f's_mov_b64 s[{sX}:{sX+1}], s[{pWS}:{pWS+1}]'); a(f's_mov_b32 s{sX+2}, {WS_END}')
        a(f's_mov_b32 s{s_xstep}, 16384'); kstart(False)
        a(f's_lshl_b32 s{s_t}, s{s_ld}, 13'); a(f'v_lshl_add_u32 v{t0}, v1, 4, s{s_t}')
        for j in range(8): a(f'v_add_u32 v{dx+j}, {4096*(j//4)}, v{t0}')
        a(f's_bitcmp1_b32 s{s_l}, 0'); a('s_cbranch_scc1 L_ld_B')
        self.reduce_job(lambda: wst(0))
        a('s_branch L_ld_join')
        a.label('L_ld_B')
        if self.w0b == 0: self.cond([f's_cmp_lg_u32 s{s_l}, 3'], lambda: wst(0))
        a('s_barrier')
        if self.w0b == 1: self.cond([f's_cmp_lg_u32 s{s_l}, 3'], lambda: wst(0))
        a.label('L_ld_join')
        a('s_waitcnt vmcnt(0)'); a('s_barrier')
        a(f's_cmp_eq_u32 s{s_l}, 3'); a('s_cbranch_scc1 L_fin')
        a(f's_add_u32 s{s_l}, s{s_l}, 1')
        a('s_barrier')
        wst(1)
        if self.w2 == 2: wst(2)
        a('s_barrier')
        if self.w2 == 0: wst(2)
        self.flag_wait(s_fl, vf, t0, 2)
        self.stamp(1)
        xst(1); xst(2)
        a('s_waitcnt vmcnt(8)'); a('s_barrier')
        if self.w2 == 1: wst(2)
        a('s_branch L_ld_enter')

    def helper(self):
        a = self.a
        a.label('L_helper')
        t0, t1, t2, t3, l4, l16, ones, a_st, a_cs, v_st, v_cs, aw, vtw, vto, vd = 2, 3, 4, 5, 6, 7, 8, 12, 13, 14, 15, 16, 18, 19, 20
        F, D, SA, SC = 32, 96, 128, 160
        s_h, s_tw, s_a, s_b, s_trot = 65, 66, 67, 68, 69
        xm = 4; s_r = 70; vrf, vfl, aw2, dw = 21, 22, 24, 80
        a(f's_sub_u32 s{s_h}, s{s_wave}, 6')
        a(f'v_lshlrev_b32 v{l4}, 2, v1'); a(f'v_lshlrev_b32 v{l16}, 4, v1')
        a.extend(self.w_frag_addr(aw, s_h, 0, t0, t1, t2))
        for k in range(2): a(f'v_add_u32 v{aw2+k}, {L_SPARE}, v{aw+k}')
        a.extend(self.flag_addr(vrf, t0, None, remote=True))
        a(f'v_lshrrev_b32 v{t0}, 5, v1'); a(f'v_and_b32 v{t1}, 31, v1'); a(f'v_lshlrev_b32 v{t1}, 4, v{t1}')
        a(f'v_lshl_add_u32 v{v_st}, v{t0}, 10, v{t1}')
        a(f'v_and_b32 v{t2}, 24, v1'); a(f'v_and_b32 v{t3}, 3, v1'); a(f'v_lshl_add_u32 v{t2}, v{t3}, 1, v{t2}'); a(f'v_add_u32 v{t2}, v{t2}, v{t0}')
        a.extend(sx(s_t, [(s_h, 256)], P_NM)); a(f'v_lshl_add_u32 v{a_st}, v{t2}, 3, s{s_t}')
        a(f'v_mov_b32 v{t2}, {BIG}'); a(f'v_cmp_gt_u32 vcc, 384, v{t1}'); a(f'v_cndmask_b32 v{v_cs}, v{t2}, v{v_st}, vcc')
        a.extend(sx(s_t, [(s_h, 384)], P_CS)); a(f'v_lshl_add_u32 v{t1}, v{t0}, 3, v{t1}'); a(f'v_add_u32 v{a_cs}, s{s_t}, v{t1}')
        self.pointers()

        def touch_setup(first=False):
            if not self.touch: return
            c, gt = s_t + 2, s_t + 3
            def cls(b):
                a(f's_lshr_b32 s{gt}, s{b}, 7'); a(f's_sub_u32 s{gt}, 3, s{gt}'); a(f's_and_b32 s{gt}, s{gt}, 7')
                a(f's_sub_u32 s{c}, s{s_g}, s{gt}'); a(f's_and_b32 s{c}, s{c}, 7'); a(f's_sub_u32 s{c}, s{c}, 1')
                a(f's_and_b32 s{s_t}, s{s_g}, 8'); a(f's_add_u32 s{gt}, s{gt}, s{s_t}'); a(f's_lshl_b32 s{gt}, s{gt}, 7')
            a(f's_and_b32 s{s_t+4}, s{s_m}, {xm-1}'); a(f's_lshl_b32 s{s_t+4}, s{s_t+4}, 1'); a(f's_add_u32 s{s_t+4}, s{s_t+4}, s{s_h}')
            cls(sW)
            if first: a(f's_or_b32 s{s_rot}, s{s_m}, 3'); a(f's_mov_b32 s{s_trot}, 0')
            else: a(f's_mov_b32 s{s_rot}, s{s_rot2}'); a(f's_bfe_u32 s{s_trot}, s{gt}, 0x30007')
            a(f's_cmp_ge_u32 s{c}, 3'); a(f's_cselect_b32 s{s_t}, {32*6144 - 3*2048}, 0'); a(f's_add_u32 s{gt}, s{gt}, s{s_t}')
            a(f's_lshl_b32 s{s_t}, s{c}, 11'); a(f's_add_u32 s{gt}, s{gt}, s{s_t}')
            a(f's_mul_i32 s{s_t}, s{s_t+4}, {(16//xm)*6144}'); a(f's_add_u32 s{gt}, s{gt}, s{s_t}')
            a(f's_cmp_lt_u32 s{c}, 6'); a(f's_cselect_b32 s{s_t}, {16//xm}, 0')
            a(f'v_mul_u32_u24 v{vtw}, 6144, v1'); a(f'v_add_u32 v{vtw}, s{gt}, v{vtw}')
            a(f'v_mov_b32 v{t0}, {BIG}'); a(f'v_cmp_gt_u32 vcc, s{s_t}, v1'); a(f'v_cndmask_b32 v{vtw}, v{t0}, v{vtw}, vcc')
            cls(sWO)
            a(f's_lshl_b32 s{s_t}, s{c}, 19'); a(f's_add_u32 s{gt}, s{gt}, s{s_t}')
            a(f's_mul_i32 s{s_t}, s{s_t+4}, {(128//xm)*2048}'); a(f's_add_u32 s{gt}, s{gt}, s{s_t}')
            a(f's_cmp_lt_u32 s{c}, 4'); a(f's_cselect_b32 s{s_t}, {32//xm}, 0')
            a(f'v_lshlrev_b32 v{vto}, 11, v1'); a(f'v_add_u32 v{vto}, s{gt}, v{vto}')
            a(f'v_cmp_gt_u32 vcc, s{s_t}, v1'); a(f'v_cndmask_b32 v{vto}, v{t0}, v{vto}, vcc')
        def touchW(st):
            if not self.touch: return
            if st == 0: a(f's_add_u32 s{s_tw}, s{s_rot}, s{s_trot}')
            else: a(f's_cmp_le_u32 s{s_trot}, {st-1}'); a(f's_addc_u32 s{s_tw}, s{s_rot}, {st-1}')
            a(f's_and_b32 s{s_tw}, s{s_tw}, 15'); a(f's_mul_i32 s{s_tw}, s{s_tw}, {64*6144}')
            a(f'buffer_load_dword v{vd}, v{vtw}, {srd(sW)}, s{s_tw} offen')
        def touchO(k):
            if not self.touch: return
            a(f's_mov_b32 s{s_tw}, {k*(32//xm)*2048}')
            a(f'buffer_load_dword v{vd}, v{vto}, {srd(sWO)}, s{s_tw} offen')
        def phi_load():
            a(f's_mov_b64 s[{sX}:{sX+1}], s[{pPHI}:{pPHI+1}]'); a(f's_mov_b32 s{sX+2}, 65536')
            a.extend(sx(s_t, [(s_g, 4096), (s_h, 2048)])); a(f's_lshl_b32 s{s_t+1}, s{s_h}, 11'); a(f's_add_u32 m0, s{s_t+1}, {P_PHI}')
            for j in range(2): a(f'buffer_load_dwordx4 v{l16}, {srd(sX)}, s{s_t} offen offset:{1024*j} lds')
        self.w_dma_offsets(dw, s_h, t0, t1, t2)
        touch_setup(True)
        phi_load()
        for st in range(1, 3 + self.dist): touchW(st)

        def init_stores():
            for k in range(4): a(f'v_mov_b32 v{D+k}, -1')
            fill = f'buffer_store_dwordx4 {vr(D,4)}, v{l16}, {srd(sWS)}, s{s_t} offen'
            a.extend(sx(s_t, [(s_g, 131072), (s_h, 65536), (s_m, 2048)], WS_KVP)); a(fill + ' sc1'); a(fill + ' offset:1024 sc1')
            a(f's_add_u32 s{s_t}, s{s_t}, 32768'); a(fill + ' sc1'); a(fill + ' offset:1024 sc1')
            a('s_mov_b64 exec, 0xff')
            a.extend(sx(s_t, [(s_g, 8192), (s_h, 4096), (s_m, 128)], WS_KVF)); a(fill + ' sc1'); a(fill + ' offset:2048 sc1')
            a.extend(sx(s_t, [(s_g, 4096), (s_h, 2048), (s_m, 128)], WS_ZP)); a(fill + ' sc1')
            a.extend(sx(s_t, [(s_g, 256), (s_h, 128)], WS_ZF))
            a(f's_cmp_eq_u32 s{s_m}, s{s_g}'); a(f's_cselect_b32 s{s_t}, s{s_t}, {BIG}'); a(fill + ' sc1')
            a('s_mov_b64 exec, -1')
            a.extend(sx(s_t, [(2, 256), (s_h, BIG)]))
            a(f'v_mov_b32 v{t0}, 0')
            a(f'buffer_store_dword v{t0}, v{l4}, {srd(sWS)}, s{s_t} offen sc1')
            a(f'v_lshrrev_b32 v{t1}, 2, v1'); a(f'v_lshlrev_b32 v{t1}, 10, v{t1}'); a(f'v_and_or_b32 v{t1}, v1, 3, v{t1}'); a(f'v_lshlrev_b32 v{t1}, 7, v{t1}')
            a.extend(sx(s_t, [(s_m, 8192), (s_g, 512)], WS_RF)); a(f's_cmp_eq_u32 s{s_h}, 1'); a(f's_cselect_b32 s{s_t}, s{s_t}, {BIG}')
            a('s_mov_b64 exec, 0xfffffff')
            a(f'buffer_store_dword v{t0}, v{t1}, {srd(sWS)}, s{s_t} offen sc1')
            a('s_mov_b64 exec, -1')
            a.extend(sx(s_t, [(s_g, 16384), (s_m, 1024)], WS_CS)); a(f's_cmp_eq_u32 s{s_h}, 1'); a(f's_cselect_b32 s{s_t}, s{s_t}, {BIG}'); a(fill + ' sc1')
        for k in range(4): a(f'v_mov_b32 v{ones+k}, 0x3f803f80')
        def cs_reads(aw=aw):
            for s in range(2):
                for n in range(6):
                    for t in range(2):
                        a(f'ds_read_b64_tr_b16 {vr(F+24*s+4*n+2*t,2)}, v{aw+(n&1)} offset:{(n>>1)*8192+(32*s+4*t)*128}')
            a('s_waitcnt lgkmcnt(0)')
        def cs_publish():
            for s in range(2):
                for n in range(6): a(mf16(D+4*n, ones, F+24*s+4*n, D+4*n if s else None))
            a.extend(sx(s_t, [(s_l, 262144), (s_g, 16384), (s_m, 1024), (s_h, 128)], WS_CS))
            a('s_mov_b64 exec, 0xffff')
            for n in range(6): a(f'buffer_store_dword v{D+4*n}, v{l4}, {srd(sWS)}, s{s_t} offen offset:{(n>>1)*256+(n&1)*64} sc1')
            a('s_mov_b64 exec, -1')
        def chunk(t):
            a(f's_mul_i32 s{s_t}, s{s_m}, {64*6144}'); a(f's_mul_i32 s{s_t+1}, s{s_h}, 12288'); a(f's_add_u32 m0, s{s_t+1}, {L_SPARE + 4096*t}')
            for j in range(4): a(f'buffer_load_dwordx4 v{dw+4*t+j}, {srd(sW)}, s{s_t} offen offset:{1024*j} lds')
        def arrive():
            a(f's_getreg_b32 s{s_t}, hwreg(HW_REG_XCC_ID, 0, 3)'); a(f's_lshl_b32 s{s_t}, s{s_t}, 2'); a(f's_lshl_b32 s{s_t+1}, 1, s{s_t}')
            a.extend(sx(s_t, [(s_m, 16), (s_rot2, 1)]))
            a('s_mov_b64 exec, 1')
            a(f'v_mov_b32 v{t0}, s{s_t+1}')
            a(f'buffer_atomic_add v{t0}, off, {srd(sDBG)}, s{s_t} sc1')
            a('s_mov_b64 exec, -1')
        def init_wait():
            a(f'v_and_b32 v{t2}, 31, v1'); a(f'v_lshlrev_b32 v{t2}, 3, v{t2}')
            self.spin([f'buffer_load_dword v{t0}, v{t2}, {srd(sDBG)}, 0 offen sc1'],
                      [f'v_lshrrev_b32 v{t1}, 4, v{t0}', f'v_and_b32 v{t1}, 0x0f0f0f0f, v{t1}', f'v_and_b32 v{t3}, 0x0f0f0f0f, v{t0}',
                       f'v_sad_u8 v{t1}, v{t1}, 0, 0', f'v_sad_u8 v{t3}, v{t3}, 0, v{t1}', f'v_cmp_gt_u32 vcc, 8, v{t3}'], t3, 3)
            a(f's_lshr_b32 s{s_t}, s{s_rot2}, 3'); a(f's_lshl_b32 s{s_t+1}, s{s_m}, 1'); a(f's_add_u32 s{s_t}, s{s_t}, s{s_t+1}')
            a(f'v_readlane_b32 s{s_fast}, v{t0}, s{s_t}')
            a(f's_and_b32 s{s_fast}, s{s_fast}, 0x88888888'); a(f's_cselect_b32 s{s_fast}, {1 if self.local else 0}, 0')
            a(f'v_mov_b32 v{t3}, s{s_fast}'); a(f'v_mov_b32 v{t2}, {P_MODE}'); a(f'ds_write_b32 v{t2}, v{t3}')
        def gather(R, va, so, ks):
            L = []
            for k in ks: L += [f's_add_u32 s{s_t}, s{so}, {4096*(k//2)}', f'buffer_load_dwordx4 {vr(R+4*k,4)}, v{va}, {srd(sWS)}, s{s_t} offen offset:{2048*(k%2)} sc1']
            return L
        def total(R):
            n = 8
            while n > 1:
                n //= 2
                for k in range(4*n): a(f'v_add_f32 v{R+k}, v{R+k}, v{R+k+4*n}')
            a(sw32(R, R+2)); a(sw32(R+1, R+3)); a(f'v_add_f32 v{R}, v{R}, v{R+2}'); a(f'v_add_f32 v{R+1}, v{R+1}, v{R+3}')
        def stats_finish():
            for k in range(2): a(f'v_mov_b32_dpp v{SA+2+k}, v{SA+k} row_shl:4 row_mask:0xf bank_mask:0xf')
            for k in range(2): a(f'v_mul_f32 v{SA+k}, {f2u(-1/1024)}, v{SA+k}'); a(f'v_mul_f32 v{SA+2+k}, {f2u(1/1024)}, v{SA+2+k}')
            for k in range(2): a(f'v_fma_f32 v{SA+2+k}, -v{SA+k}, v{SA+k}, v{SA+2+k}')
            for k in range(2): a(f'v_max_f32 v{SA+2+k}, 0, v{SA+2+k}')
            for k in range(2): a(f'v_add_f32 v{SA+2+k}, {f2u(1e-5)}, v{SA+2+k}')
            for k in range(2): a(f'v_rsq_f32 v{SA+2+k}, v{SA+2+k}')
            a('s_mov_b32 exec_lo, 0x0f0f0f0f'); a('s_mov_b32 exec_hi, 0x0f0f0f0f')
            a(f'ds_write_b64 v{a_st}, {vr(SA,2)}'); a(f'ds_write_b64 v{a_st}, {vr(SA+2,2)} offset:512')
            a('s_mov_b64 exec, -1')
        def cs_finish():
            total(SC)
            a(f's_mul_i32 s{s_t}, s{s_l}, 768'); a(f'v_add_u32 v{t0}, s{s_t}, v{a_cs}')
            a('s_mov_b32 exec_lo, 0xffffff'); a('s_mov_b32 exec_hi, 0xffffff')
            a(f'ds_write_b64 v{t0}, {vr(SC,2)}')
            a('s_mov_b64 exec, -1')
        l0 = [f's_cmp_eq_u32 s{s_l}, 0']; ln0 = [f's_cmp_lg_u32 s{s_l}, 0']; l01 = [f's_cmp_lt_u32 s{s_l}, 2']
        a(f's_mov_b32 s{s_r}, 0')
        a.label('L_hp_layer')
        a.extend(sx(s_a, [(s_l, 262144), (s_m, 16384), (s_h, 512)], WS_ST))
        a.extend(sx(s_b, [(s_l, 262144), (s_g, 16384), (s_h, 384)], WS_CS))
        self.trickle_setup()
        hi = lambda: self.hprio and a(f's_setprio {self.hprio}')
        lo = lambda: self.hprio and a('s_setprio 0')
        l1 = [f's_cmp_eq_u32 s{s_l}, 1']
        for i in range(17):
            a('s_barrier')
            if i == 0: self.cond(l0, cs_reads)
            if i == 6: self.cond(l1, lambda: cs_reads(aw2))
            if i in (3, 5, 12): a('s_waitcnt vmcnt(0)')
            if i == 5: self.cond(ln0, lambda: self.flag_wait(s_r, vrf, vfl, 8, pre=True, nap=self.nap))
            if i <= 11: hi()
            if i == 9: self.cond(l0, init_wait)
            if i == 4: self.cond(ln0, lambda: a(self.flag_load(s_r, vrf, vfl)))
            if i + 3 + self.dist <= 15: touchW(i + 3 + self.dist)
            if 0 <= i - (1 if self.early else 5) < 4: touchO(i - (1 if self.early else 5))
            if i == 1: self.cond(l0, init_stores)
            if i == 4: self.cond([f's_or_b32 s{s_t}, s{s_l}, s{s_h}', f's_cmp_eq_u32 s{s_t}, 0'], arrive)
            if 2 <= i <= 4: self.cond(l1, lambda: chunk(i - 2))
            if i == 6: self.cond([f's_cmp_eq_u32 s{s_l}, 2'], phi_load)
            if i in (9, 10): a.extend(gather(SA, v_st, s_a, range(4*(i-9), 4*(i-9)+4)))
            if i in (10, 11): self.cond(l01, lambda: a.extend(gather(SC, v_cs, s_b, range(4*(i-10), 4*(i-10)+4))))
            if i <= 11: lo()
            if 1 <= i <= 12: self.trickle(i - 1)
            if i == 7: self.cond(l01, cs_publish)
            if i == 12: self.ll_wait(gather(SA, v_st, s_a, range(8)), list(range(SA, SA+32)), t0, t1, 6, pre=True)
            if i == 13: total(SA)
            if i == 14: stats_finish()
            if i == 14: self.cond(l01, lambda: self.ll_wait(gather(SC, v_cs, s_b, range(8)), list(range(SC, SC+32)), t0, t1, 7, pre=True))
            if i == 15: self.cond(l01, cs_finish); a('s_waitcnt lgkmcnt(0)')
        a.extend(sx(s_t, [(s_l, 8192), (s_m, 256), (s_rot2, 16)])); a(f'buffer_load_dword v{vd}, off, {srd(sWS)}, s{s_t} sc1')
        a(f's_xor_b32 s{s_t}, s{s_t}, 128'); a.extend(sx(s_r, [(s_t, 32), (s_h, 256)], WS_RF))
        a(f's_bitcmp0_b32 s{s_l}, 0')
        a(f's_cselect_b64 s[{sW}:{sW+1}], s[{pBW}:{pBW+1}], s[{pAW}:{pAW+1}]')
        a(f's_cselect_b64 s[{sWO}:{sWO+1}], s[{pBWO}:{pBWO+1}], s[{pAWO}:{pAWO+1}]')
        touch_setup()
        touchW(0); touchW(1); touchW(2)
        a(f's_bitcmp1_b32 s{s_l}, 0'); a('s_cbranch_scc1 L_hp_B')
        self.reduce_job()
        a('s_branch L_hp_join')
        a.label('L_hp_B')
        a('s_barrier')
        a.label('L_hp_join')
        a('s_barrier')
        a(f's_cmp_eq_u32 s{s_l}, 3'); a('s_cbranch_scc1 L_fin')
        a(f's_add_u32 s{s_r}, s{s_r}, {4096*32}')
        a(f's_add_u32 s{s_l}, s{s_l}, 1')
        a('s_barrier')
        for st in range(3, 3 + self.dist): touchW(st)
        a('s_branch L_hp_layer')

    def compute(self):
        a = self.a
        one, l16, voffR, voffI, a_tok, a_row, a_t32, a_csr, a_csv = 0, 2, 3, 4, 5, 6, 7, 8, 9
        ax, awq = 10, 12
        l4 = 14; vst = 15
        XR = 16
        ACC = 32
        FX = [128, 144]; FW = [160, 184]
        T = 208
        t0, t1, t2, t3 = T, T+1, T+2, T+3
        s_wm, s_wh, s_rslot, s_delta, s_stg, s_ones = 65, 66, 67, 68, 69, 70
        s_o = 71
        s_ob = 75
        s_obase, s_ooff, s_a, s_b, s_c, s_d, s_e, s_fp, s_st, s_fo = range(77, 87)
        a(f'v_lshrrev_b32 v{t0}, 4, v1')
        a(f'v_and_b32 v{t1}, 15, v1')
        a(f'v_and_b32 v{t2}, 1, v{t0}'); a(f'v_lshrrev_b32 v{t3}, 1, v{t0}'); a(f'v_lshl_add_u32 v{t2}, v{t2}, 1, v{t3}')
        a(f'v_lshlrev_b32 v{voffR}, 11, v{t1}'); a(f'v_lshl_add_u32 v{voffR}, v{t2}, 4, v{voffR}')
        a.extend(sx(s_t, [(s_m, 1 << 18), (s_wave, 1 << 16), (s_g, 128)])); a(f's_add_u32 s{s_t+1}, s{s_t}, 32768')
        self.pointers()
        for tb in range(2):
            for e in range(2): a(f'buffer_load_dwordx4 {vr(XR+8*tb+4*e,4)}, v{voffR}, {srd(sX)}, s{s_t+tb} offen offset:{64*e}')
        a(f's_lshr_b32 s{s_wm}, s{s_wave}, 1'); a(f's_and_b32 s{s_wh}, s{s_wave}, 1')
        a.extend(sx(s_ft, [(2, 8192), (s_wave, 2048)]))
        def wo_touch(r0, r1):
            for r in range(r0, r1 if self.warm else r0): a(f's_buffer_load_dwordx2 s[{s_fd}:{s_fd+1}], {srd(sWO)}, s{s_ft} offset:{128*r+60}')
        wo_touch(0, 7)
        a(f'v_mov_b32 v{one}, 1')
        a(f'v_lshl_add_u32 v{voffI}, v{t2}, 4, v{t1}'); a(f'v_lshlrev_b32 v{voffI}, 4, v{voffI}'); a(f'v_mov_b32 v{vst}, v{voffI}')
        a(f'v_lshlrev_b32 v{l16}, 4, v1'); a(f'v_lshlrev_b32 v{l4}, 2, v1')
        a.extend(sx(s_t, [(s_wm, 256)], P_NM))
        a(f'v_lshl_add_u32 v{a_tok}, v{t1}, 2, s{s_t}')
        a(f'v_lshl_add_u32 v{a_row}, v{t0}, 4, s{s_t}')
        a(f'v_and_b32 v{t3}, 31, v1'); a(f'v_lshl_add_u32 v{a_t32}, v{t3}, 2, s{s_t}')
        a.extend(sx(s_t, [(s_wh, 128)], P_CS))
        a(f'v_lshl_add_u32 v{a_csr}, v{t0}, 4, s{s_t}')
        a(f'v_lshl_add_u32 v{a_csv}, v{t1}, 2, s{s_t}')
        a(f's_mov_b32 s{s_stg}, {STG}'); a(f's_mov_b32 s{s_ones}, 0x3f803f80')
        a(f'v_lshrrev_b32 v{t2}, 1, v{t1}'); a(f'v_xor_b32 v{t2}, v{t2}, v{t0}')
        a.extend(sx(s_t, [(s_wm, 8192)], XOFF)); a(f'v_lshl_add_u32 v{t1}, v{t1}, 7, s{s_t}')
        for s in range(2):
            a(f'v_xor_b32 v{t3}, {4*s}, v{t2}'); a(f'v_lshl_add_u32 v{ax+s}, v{t3}, 4, v{t1}')
        a.extend(sx(s_st, [(s_m, 16384), (s_g, 1024), (s_wave, 256)], WS_ST))

        q = 216
        def stats():
            S = []
            for k in range(8):
                for tb in range(2):
                    r = XR + 8*tb + k
                    S += [f'v_dot2_f32_bf16 v{q+2*tb}, s{s_ones}, v{r}, ' + (f'v{q+2*tb}' if k else '0'),
                          f'v_dot2_f32_bf16 v{q+2*tb+1}, v{r}, v{r}, ' + (f'v{q+2*tb+1}' if k else '0')]
            return S + [sw32(q, q+2), sw32(q+1, q+3), pk('add', q, q, q+2), sw16(q, q+1), f'v_add_f32 v{q}, v{q}, v{q+1}']
        st_store = f'buffer_store_dword v{q}, v{l4}, {srd(sWS)}, s{s_st} offen sc1'
        def acc(b, n): return ACC + 4*(6*b + n)
        def reads(s, st):
            X = [f'ds_read_b128 {vr(FX[st]+4*b,4)}, v{ax+s} offset:{2048*b}' for b in range(4)]
            W = [[f'ds_read_b64_tr_b16 {vr(FW[st]+4*n+2*t,2)}, v{awq+(n&1)} offset:{(n>>1)*8192+(32*s+4*t)*128}' for t in range(2)] for n in range(6)]
            L = [X[0]] + W[0] + X[1:]
            for n in range(1, 6): L += W[n]
            return L
        def mfma(st, b, n, zero=False):
            C = None if zero else acc(b, n)
            return mf16(acc(b, n), FW[st]+4*n, FX[st]+4*b, C) if n < 4 else mf16(acc(b, n), FX[st]+4*b, FW[st]+4*n, C)
        def mfmas(st, zero=False):
            return [mfma(st, b, n, zero) for n in range(6) for b in (range(4) if not (self.snake and n % 2) else range(3, -1, -1))]
        env = dict(locals())
        a.extend(self.w_frag_addr(awq, s_wh, 0, t0, t1, t2))
        self.epiA(env, 'v')
        wo_touch(7, 16)
        a('s_waitcnt vmcnt(0)')
        a.extend(stats()); a(st_store)
        a('s_waitcnt lgkmcnt(0)')
        a.label('L_first')
        a('s_barrier')
        self.stamp(12)
        self.aw(reads(0, 0) + interleave(mfmas(0, True), reads(1, 1), per=[0]*4 + [1]*20))
        a('s_waitcnt vmcnt(0) lgkmcnt(0)')
        self.stamp(11)
        self.cond([f's_cmp_lg_u32 s{s_l}, 0'], lambda: self.flag_set(s_fo, one))
        S = [f'v_add_u32 v{r}, s{s_stg}, v{r}' for r in (ax, ax+1, awq, awq+1)]
        S += [f's_mov_b32 s{s_rslot}, 1', f's_mov_b32 s{s_i}, 1']
        S += sx(s_t, [(s_l, 1 << 22), (s_m, 1 << 18)], WS_OI)
        S += sx(s_obase, [(s_wave, 1 << 16), (s_t, 1)]) + [f's_lshl_b32 s{s_ooff}, s{s_rot2}, 11']
        S += [f's_add_u32 s{s_ob}, s{s_obase}, s{s_ooff}', f's_add_u32 s{s_ob+1}, s{s_ob}, 32768']
        S += sx(s_a, [(s_wm, 1 << 17), (s_g, 2048), (s_wh, 1024), (s_t, 1)])
        S += sx(s_o, [(s_g, 16384), (s_wave, 4096), (s_t, 1)], WS_XI - WS_OI) + [f's_add_u32 s{s_o+k}, s{s_o}, {1024*k}' for k in range(1, 4)]
        S += sx(s_fp, [(s_l, 8192), (s_m, 256)]) + sx(s_fo, [(s_g, 16), (s_wave, 4), (s_fp, 1)]) + sx(s_fo+1, [(s_fo, 32)], WS_RF)
        S += sx(s_t, [(s_wm, 8), (s_rot2, 16)]) + [f's_add_u32 s{s_fp}, s{s_fp}, s{s_t}']
        a.extend(interleave(mfmas(1), S, per=[2]*24))
        a(f's_bitcmp1_b32 s{s_l}, 0'); a('s_cbranch_scc1 L_preB')
        self.epiA(env, 's')
        a(f's_cmp_eq_u32 s{s_l}, 0'); a('s_cbranch_scc1 L_go')
        a('s_branch L_pre_done')
        a.label('L_preB')
        self.epiB(env, 's')
        def last():
            a(f's_mov_b64 s[{sOUT}:{sOUT+1}], s[{pOUT}:{pOUT+1}]'); a(f's_mov_b32 s{sOUT+2}, {2048*1024*2}')
            a.extend(sx(s_o, [(s_m, 1 << 18), (s_wave, 1 << 16), (s_g, 128)]))
            a(f's_add_u32 s{s_o+1}, s{s_o}, 64'); a(f's_add_u32 s{s_o+2}, s{s_o}, 32768'); a(f's_add_u32 s{s_o+3}, s{s_o}, {32768+64}')
            a(f'v_mov_b32 v{vst}, v{voffR}')
        self.cond([f's_cmp_eq_u32 s{s_l}, 3'], last)
        a.label('L_pre_done')
        a(f's_add_u32 s{s_st}, s{s_st}, 262144')
        a.extend(stats()); a(st_store)
        a.label('L_go')
        a('s_barrier')
        self.stamp(1)
        a.extend(reads(0, 0))
        a('.p2align 6')
        a.label('L_q')
        for s in range(2):
            M = mfmas(s); R = reads(1 - s, 1 - s)
            gaps = [[] for _ in range(24)]
            first = 0
            if s == 1:
                gaps[0] += [f'v_add_u32 v{r}, s{s_delta}, v{r}' for r in (ax, awq)]
                gaps[1] += [f'v_add_u32 v{r}, s{s_delta}, v{r}' for r in (awq+1,)] + ['s_barrier', 's_cbranch_scc1 L_tail']
                gaps[20] += [f'v_add_u32 v{ax+1}, s{s_delta}, v{ax+1}']
                first = 1
            else:
                gaps[18] += [f's_add_u32 s{s_rslot}, s{s_rslot}, 1', f's_cmp_eq_u32 s{s_rslot}, 3']
                gaps[19] += [f's_cselect_b32 s{s_delta}, {-2*STG}, s{s_stg}', f's_cselect_b32 s{s_rslot}, 0, s{s_rslot}']
                gaps[21] += [f's_add_u32 s{s_i}, s{s_i}, 1']
                gaps[22] += [f's_cmp_eq_u32 s{s_i}, 16']
            for k, r in enumerate(R): gaps[first + k].append(r)
            if self.prof == 5 and s == 0:
                a('s_memtime s[92:93]'); a(f's_lshl_b32 m0, s{s_l}, 4'); a(f's_add_u32 m0, m0, s{s_i}')
                gaps[0].insert(0, 'v_writelane_b32 v255, s92, m0')
            a('s_waitcnt lgkmcnt(0)')
            for k in range(24):
                a(M[k]); a.extend(gaps[k])
        a('s_branch L_q')
        a.label('L_tail')
        self.stamp(2)
        a(f's_bitcmp1_b32 s{s_l}, 0'); a('s_cbranch_scc1 L_epiB')
        self.epiA(env, False)
        a('s_branch L_ophase')
        a.label('L_epiB')
        self.epiB(env, False)
        a.label('L_ophase')
        a('s_barrier')
        PD = self.pd; NR = PD + 1
        OA, OW, awo, vf, RING = 128, [160, 176], 192, 196, 32
        assert RING + 8*NR <= 128
        u0, u1, u2, vrf, vot, vxw = 197, 198, 199, 204, 205, 206
        a(f'v_mov_b32 v{u0}, {P_MODE}'); a(f'ds_read_b32 v{u0}, v{u0}')
        def oacc(tb, nb): return OA + 16*tb + 4*nb
        for k in range(4):
            a(sw16(XR+4*k, XR+4*k+2)); a(sw16(XR+4*k+1, XR+4*k+3))
        a('s_waitcnt lgkmcnt(0)'); a(f'v_readfirstlane_b32 s{s_fast}, v{u0}')
        a(f's_xor_b32 s{s_t}, s{s_fp}, 128'); a.extend(sx(s_e, [(s_t, 32)], WS_RF))
        a.extend(self.flag_addr(vrf, u1, None, remote=True))
        a.extend(self.flag_addr(vf, u1, s_fp))
        for r in range(16):
            a(f'v_lshlrev_b32 v{OA+2*r}, 16, v{XR+r}'); a(f'v_and_b32 v{OA+2*r+1}, 0xffff0000, v{XR+r}')
        a.extend(self.w_frag_addr(awo, None, L_WO, u0, u1, u2, nb_list=(0, 1, 2, 3)))
        a(f's_cmp_eq_u32 s{s_wh}, 0'); a('s_cselect_b64 vcc, -1, 0')
        for k in range(2): a(f'v_cndmask_b32 v{awq+k}, v{awo+2+k}, v{awo+k}, vcc')
        for k in range(2): a(f'v_subrev_u32 v{awq+k}, {L_WO}, v{awq+k}')
        a.extend(sx(s_t, [(s_wm, 8192)], XOFF)); a(f'v_add_u32 v{ax}, s{s_t}, v{l16}'); a(f'v_add_u32 v{ax+1}, 1024, v{ax}')
        a.extend(sx(s_t, [(s_wave, 4096)], XOFF)); a(f'v_add_u32 v{vxw}, s{s_t}, v{voffI}')
        def oreads(h):
            return [f'ds_read_b64_tr_b16 {vr(OW[h&1]+4*nb+2*t,2)}, v{awo+nb} offset:{(h&15)*4096+512*t}' for nb in range(4) for t in range(2)]
        a.extend(oreads(0))
        a('s_waitcnt vmcnt(0) lgkmcnt(0)')
        self.stamp(8)
        self.flag_set(s_fo, one, 1)
        a(self.flag_load(s_fp, vf, u0))
        self.flag_set(s_fo, one, 2)
        a(f's_bitcmp1_b32 s{s_l}, 0'); a('s_cbranch_scc1 L_nextA')
        self.epiB(env, 'v')
        a('s_branch L_next_done')
        a.label('L_nextA')
        self.cond([f's_cmp_lg_u32 s{s_l}, 3'], lambda: self.epiA(env, 'v'))
        a.label('L_next_done')
        a('s_waitcnt vmcnt(1)')
        self.flag_wait(s_fp, vf, u0, 4, pre=True)
        self.stamp(9)
        def oload(h, tb):
            L = [f'buffer_load_dwordx4 {vr(RING+8*(h%NR)+4*tb,4)}, v{l16}, {srd(sWS)}, s{s_ob+tb} offen offset:{1024*(h&3)} sc1']
            if h & 3 == 3 and h < 31:
                if tb == 0: L += [f's_add_u32 s{s_ooff}, s{s_ooff}, 4096', f's_and_b32 s{s_ooff}, s{s_ooff}, 0x7fff', f's_add_u32 s{s_ob}, s{s_obase}, s{s_ooff}']
                else: L += [f's_add_u32 s{s_ob+1}, s{s_ob}, 32768']
            return L
        S = []
        for h in range(PD): S += oload(h, 0) + oload(h, 1)
        for h in range(32):
            R = oreads(h+1) if h < 31 else []
            if h == 15: S += [f'v_add_u32 v{awo+nb}, 0x10000, v{awo+nb}' for nb in range(4)]
            k = 0
            for nb in range(4):
                for tb in range(2):
                    S.append(mf16(oacc(tb, nb), OW[h&1]+4*nb, RING+8*(h%NR)+4*tb, oacc(tb, nb)))
                    if R: S.append(R[k])
                    for j in range(2):
                        if k == self.opos[j] and h + PD < 32: S += oload(h+PD, j)
                    k += 1
            if h == self.hq: S.append(self.flag_load(s_e, vrf, u1))
            if h == (self.hc or 15 - PD): S += [f'v_cmp_eq_u32 vcc, 0, v{u1}', 's_nop 1']
            if h == self.bm: S.append('s_barrier')
        S = autowait(S); cut = S.index('s_nop 1') + 1
        a.extend(S[:cut])
        self.cond(['s_cmp_lg_u64 vcc, 0'], lambda: self.flag_wait(s_e, vrf, u1, 9, nap=self.nap))
        a.extend(S[cut:])
        self.stamp(10)
        S = []
        for k4 in (0, 2, 1, 3):
            for k in range(4): S.append(cvt(XR+4*k4+k, OA+8*k4+2*k, OA+8*k4+2*k+1))
            S += [sw16(XR+4*k4, XR+4*k4+2), sw16(XR+4*k4+1, XR+4*k4+3),
                  f'buffer_store_dwordx4 {vr(XR+4*k4,4)}, v{vst}, {srd(sOUT)}, s{s_o+k4} offen sc1',
                  f'ds_write_b128 v{vxw}, {vr(XR+4*k4,4)} offset:{1024*k4}']
        self.sw(S, crit=lambda t: t.startswith('buffer'))
        a(f's_cmp_eq_u32 s{s_l}, 3'); a('s_cbranch_scc1 L_fin')
        a(f's_add_u32 s{s_fo}, s{s_fo}, 4096'); a(f's_add_u32 s{s_fo+1}, s{s_fo+1}, {4096*32}')
        a(f's_add_u32 s{s_l}, s{s_l}, 1')
        a('s_waitcnt lgkmcnt(0)')
        a('s_branch L_first')

    def epiA(self, E, pre):
        a = self.a
        acc = E['acc']; a_tok, a_row, a_t32, a_csr, a_csv, l16, l4 = (E[k] for k in ('a_tok', 'a_row', 'a_t32', 'a_csr', 'a_csv', 'l16', 'l4'))
        s_wm, s_wh, s_a, s_b, s_c, s_d, s_e = (E[k] for k in ('s_wm', 's_wh', 's_a', 's_b', 's_c', 's_d', 's_e'))
        PK = [128, 144]; EP, KV0, ZA, NR = 160, 176, 192, 208
        wphi, nml, c32, csv = 224, 232, 236, 238
        SEL = [240, 244]
        a_phi, a_w, a_r0, a_r1, a_z, x_w, x_r = range(248, 255)
        csk = EP; csq = NR
        nmr = [KV0, EP+8, NR, NR+8]
        if pre == 'v':
            u0, u1, u2, u3, u4 = range(208, 213)
            S = [f'v_lshrrev_b32 v{u0}, 5, v1', f'v_bfe_u32 v{u1}, v1, 2, 2', f'v_lshl_add_u32 v{u1}, v{u0}, 3, v{u1}',
                 f'v_bfe_u32 v{u2}, v1, 4, 1', f'v_and_b32 v{u3}, 3, v1', f'v_lshlrev_b32 v{u4}, 3, v{u3}', f'v_lshl_add_u32 v{u2}, v{u2}, 5, v{u4}']
            S += sx(s_t, [(s_wh, 2048)], P_PHI) + [f'v_lshl_add_u32 v{u4}, v{u1}, 6, v{u2}', f'v_add_u32 v{a_phi}, s{s_t}, v{u4}']
            S += [f's_mul_i32 s{s_t+2}, s{s_wave}, {SCR}',
                  f'v_mul_u32_u24 v{u1}, 136, v{u1}', f'v_add3_u32 v{u1}, v{u1}, v{u2}, s{s_t+2}',
                  f's_lshl_b32 s{s_t+1}, s{s_wm}, 6', f'v_add_u32 v{a_r0}, s{s_t+1}, v{u1}',
                  f's_xor_b32 s{s_t+3}, s{s_t+1}, 64', f'v_add_u32 v{a_r1}, s{s_t+3}, v{u1}',
                  f'v_and_b32 v{u4}, 31, v1', f'v_mul_u32_u24 v{u4}, 136, v{u4}', f'v_lshl_add_u32 v{u4}, v{u0}, 3, v{u4}', f'v_add_u32 v{a_w}, s{s_t+2}, v{u4}',
                  f'v_add_u32 v{x_w}, s{s_t+2}, v{l16}', f's_xor_b32 s{s_t}, s{s_wave}, 2', f's_mul_i32 s{s_t}, s{s_t}, {SCR}', f'v_add_u32 v{x_r}, s{s_t}, v{l16}']
            S += [f'v_mov_b32 v{u4}, 0x3f803f80']
            for k in range(2):
                S += [f'v_cmp_eq_u32 vcc, {k}, v{u3}', f'v_cndmask_b32 v{SEL[k]}, 0, v{u4}, vcc', f'v_mov_b32 v{SEL[k]+1}, v{SEL[k]}',
                      f'v_mov_b64 {vr(SEL[k]+2,2)}, {vr(SEL[k],2)}']
            S += [f'v_and_b32 v{u0}, 18, v1', f'v_lshlrev_b32 v{u0}, 1, v{u0}', f'v_and_or_b32 v{u0}, v1, 8, v{u0}', f'v_and_b32 v{u1}, 4, v1',
                  f'v_lshl_or_b32 v{u0}, v{u1}, 2, v{u0}', f'v_and_b32 v{u1}, 33, v1', f'v_lshl_or_b32 v{a_z}, v{u1}, 25, v{u0}',
                  f'v_lshl_or_b32 v{a_z}, v{u1}, 30, v{a_z}']
            a.extend(S)
            return
        if pre == 's':
            S = sx(s_t, [(s_l, 16), (s_g, 2), (s_wh, 1)])
            S += sx(s_d, [(s_t, 65536), (s_wm, 32768), (s_m, 2048)], WS_KVP) + sx(s_e, [(s_t, 2048), (s_m, 128), (s_wm, 64)], WS_ZP)
            S += sx(s_b, [(s_t, 128)], WS_ZF) + sx(s_c, [(s_t, 4096)], WS_KVF)
            a.extend(S)
            return
        S = []
        for b in range(4): S.append(f'ds_read_b32 v{nml+b}, v{a_tok} offset:{64*b}')
        for nb in range(2): S.append(f'ds_read_b128 {vr(csk+4*nb,4)}, v{a_csr} offset:{256+64*nb}')
        for u in range(2):
            for t in range(2): S.append(f'ds_read_b64_tr_b16 {vr(wphi+4*u+2*t,2)}, v{a_phi} offset:{(16*t+4*u)*64}')
        for nb in range(2): S.append(f'ds_read_b32 v{csv+nb}, v{a_csv} offset:{512+64*nb}')
        for b in range(4):
            S.append(f'ds_read_b128 {vr(nmr[b],4)}, v{a_row} offset:{64*b}')
            S.append(f'ds_read_b128 {vr(nmr[b]+4,4)}, v{a_row} offset:{512+64*b}')
            if b == 0:
                for Tt in range(2): S.append(f'ds_read_b32 v{c32+Tt}, v{a_t32} offset:{512+128*Tt}')
        def qk_prep(n0, cs):
            L = []
            for b in range(4):
                for k in range(4): L.append(pk('fma', acc(b, n0)+2*k, cs+2*k, ('b', nml+b), acc(b, n0)+2*k))
                for k in range(4): L.append(cvt(acc(b, n0)+k, acc(b, n0)+2*k, acc(b, n0)+2*k+1))
            for Tt in range(2):
                for k in range(4): L.append(sw16(acc(2*Tt, n0)+k, acc(2*Tt+1, n0)+k))
                L += [mf32(PK[Tt], wphi, acc(2*Tt, n0)), mf32(PK[Tt], wphi+4, acc(2*Tt+1, n0), PK[Tt])]
            return L
        def vprep(b):
            r = acc(b, 4); P, C = [], []
            for nb in range(2):
                for p in range(2): P.append(pk('fma', r+4*nb+2*p, nmr[b]+2*p, ('b', csv+nb), r+4*nb+2*p))
            for nb in range(2):
                for p in range(2): P.append(pk('mul', r+4*nb+2*p, r+4*nb+2*p, nmr[b]+4+2*p))
            for k in range(4): C.append(cvt(r+k, r+2*k, r+2*k+1))
            return P, C, [sw16(r, r+2), sw16(r+1, r+3)]
        def softmax(Tt):
            x = PK[Tt]; c = c32 + Tt
            ta, tb = ((acc(2, 3), acc(3, 3)), (acc(2, 2), acc(3, 2)))[Tt]
            mx, mn, bp, bm = ta, ta+1, tb, tb+1
            L = [f'v_max3_f32 v{mx}, v{x}, v{x+1}, v{x+2}', f'v_max3_f32 v{mn}, -v{x}, -v{x+1}, -v{x+2}']
            for k in range(3, 15, 2):
                L += [f'v_max3_f32 v{mx}, v{mx}, v{x+k}, v{x+k+1}', f'v_max3_f32 v{mn}, v{mn}, -v{x+k}, -v{x+k+1}']
            L += [f'v_max_f32 v{mx}, v{mx}, v{x+15}', f'v_max_f32 v{mn}, v{mn}, -v{x+15}']
            L += [sw32(mx, mn), f'v_max_f32 v{mx}, v{mx}, v{mn}', f'v_mul_f32 v{bm}, -v{mx}, v{c}', f'v_mov_b32 v{bp}, v{bm}', sw32(bp, bm)]
            parts = [L]; L = []
            for k in range(0, 16, 2): L.append(pk('fma', EP+k, x+k, ('b', c), ('b', bp)))
            for k in range(0, 16, 2): L.append(pk('fma', x+k, x+k, ('b', c), ('b', bm), neg=[1, 0, 0]))
            parts.append(L); L = []
            for k in range(16): L.append(f'v_exp_f32 v{EP+k}, v{EP+k}')
            for k in range(16): L.append(f'v_exp_f32 v{x+k}, v{x+k}')
            parts.append(L); L = []
            sp, sm = ta, ta+2
            r1, r2 = tb+2, tb+3
            L += [pk('add', sp, EP, EP+2), pk('add', sm, x, x+2)]
            for k in range(4, 16, 2): L += [pk('add', sp, sp, EP+k), pk('add', sm, sm, x+k)]
            L += [f'v_add_f32 v{sp}, v{sp}, v{sp+1}', f'v_add_f32 v{sm}, v{sm}, v{sm+1}', sw32(sp, sm), f'v_add_f32 v{sp}, v{sp}, v{sm}',
                  f'v_rcp_f32 v{r2}, v{sp}', f'v_mov_b32 v{r1}, v{r2}', sw32(r1, r2)]
            for k in range(0, 16, 2): L.append(pk('mul', x+k, x+k, ('b', r2)))
            for k in range(8): L.append(cvt(x+k, x+2*k, x+2*k+1))
            for k in range(0, 16, 2): L.append(pk('mul', EP+k, EP+k, ('b', r1)))
            for k in range(8): L.append(cvt(x+8+k, EP+2*k, EP+2*k+1))
            return parts + [L]
        FR = [[acc(0, 2), acc(0, 3)], [acc(1, 2), acc(1, 3)]]
        def to_lds(x):
            return [f'ds_write_b64 v{a_w}, {vr(x+8*(1-sg)+2*j,2)} offset:{64*sg+16*j}' for sg in (1, 0) for j in range(4)]
        def frags():
            return [f'ds_read_b64_tr_b16 {vr(FR[k][u]+2*tt,2)}, v{(a_r0, a_r1)[k]} offset:{(16*u+4*tt)*136}' for k in (1, 0) for u in range(2) for tt in range(2)]
        KV1 = PK[0]
        def kvm(Tt):
            L = []
            for k, K in ((1, KV1), (0, KV0)):
                for u in range(2): L.append(mf32(K, FR[k][u], acc(2*Tt+u, 4), None if (Tt == 0 and u == 0) else K))
                for u in range(2): L.append(mf32(ZA, SEL[k], FR[k][u], None if (Tt == 0 and u == 0 and k == 1) else ZA))
            return L
        sc = sched if self.sch else (lambda L: L)
        K = qk_prep(2, csk); isM = lambda t: t.startswith('v_mfma')
        VP_ = [vprep(b) for b in range(4)]
        sm0, sm1 = softmax(0), softmax(1)
        mfma = E['mfma']
        TM = [mfma(1, b, n) for b in range(4) for n in (2, 3)] + [mfma(1, b, n) for b in range(4) for n in (4, 5)] + [mfma(1, b, 1) for b in range(4)] + [mfma(1, b, 0) for b in (2, 3)]
        K01 = []
        for b in range(2):
            K01 += [f'v_fmac_f32 v{acc(b,2)+k}, v{csk+k}, v{nml+b}' for k in range(8)] + K[8*b+4:8*b+8]
        S = interleave(TM, S + K01, per=[2]*22)
        S += sc([t for t in K[16:] if not isM(t)] + [f'v_mul_f32 v{c32+Tt}, {f2u(LOG2E)}, v{c32+Tt}' for Tt in range(2)] + VP_[0][0] + VP_[1][0])
        def cutA(n, k):
            nonlocal S
            if self.fine == n: self.aw(S + ['s_waitcnt lgkmcnt(0)']); S = []; self.stamp(k)
        cutA(1, 12)
        S += sc([t for t in K if isM(t)] + VP_[0][1] + VP_[1][1] + VP_[0][2] + VP_[1][2] + sm0[0])
        cutA(1, 13)
        S += sc(sm0[1] + sm0[2] + sm1[0] + sm0[3] + to_lds(PK[0]) + frags())
        cutA(1, 14)
        S += sm1[1] + interleave(kvm(0), sm1[2][2:], per=[4]*7 + [2]) + sm1[2][:2]
        cutA(2, 12)
        S += sc(sm1[3] + to_lds(PK[1]) + frags() + sum((VP_[b][k] for k in range(3) for b in (2, 3)), []), lambda t: t.startswith('ds_read'))
        cutA(2, 13)
        M = kvm(1)
        X = [f'ds_write_b128 v{x_w}, {vr(KV1+4*k,4)} offset:{1024*k}' for k in range(4)]
        S += M[0:5] + X[0:2] + M[5:6] + X[2:4] + [f'ds_write_b32 v{x_w}, v{ZA+1} offset:4096'] + M[6:8]
        cutA(2, 14)
        self.aw(S); S = []
        S += ['s_waitcnt lgkmcnt(0)', 's_barrier']
        for k in range(4): S.append(f'ds_read_b128 {vr(EP+4*k,4)}, v{x_r} offset:{1024*k}')
        S.append(f'ds_read_b32 v{csv}, v{x_r} offset:4096')
        for u in range(2):
            for k in range(4): S.append(pk('add', KV0+8*u+2*k, KV0+8*u+2*k, EP+8*u+2*k))
            for k in range(4): S.append(cvt(KV0+8*u+k, KV0+8*u+2*k, KV0+8*u+2*k+1))
            S.append(f'buffer_store_dwordx4 {vr(KV0+8*u,4)}, v{l16}, {srd(sWS)}, s{s_d} offen offset:{1024*u} sc1')
        S += [f'v_add_f32 v{ZA}, v{ZA}, v{csv}', f'v_mov_b32_dpp v{ZA+3}, v{ZA} quad_perm:[1,0,3,2] row_mask:0xf bank_mask:0xf', cvt(ZA, ZA, ZA+3),
              f'buffer_store_dword v{ZA}, v{a_z}, {srd(sWS)}, s{s_e} offen sc1']
        self.sw(S, name='A k-part'); S = []
        a('s_barrier')
        self.stamp(3)
        u3, u4 = ZA + 4, ZA + 5
        for nb in range(2): S.append(f'ds_read_b128 {vr(csq+4*nb,4)}, v{a_csr} offset:{64*nb}')
        S += qk_prep(0, csq) + sum(softmax(0) + softmax(1), [])
        S += [f'v_lshrrev_b32 v{u3}, 5, v1', f'v_and_b32 v{u4}, 1, v1', f'v_lshlrev_b32 v{u4}, 6, v{u4}', f'v_lshl_add_u32 v{a_z}, v{u3}, 4, v{u4}',
              f'v_bfe_u32 v{u4}, v1, 4, 1', f'v_lshlrev_b32 v{u4}, 15, v{u4}', f'v_lshl_add_u32 v{u4}, v{u3}, 8, v{u4}',
              f'v_and_b32 v{u3}, 15, v1', f'v_lshl_add_u32 v{a_w}, v{u3}, 4, v{u4}', f's_add_u32 s{s_d}, s{s_a}, 65536']
        self.sw(S, name='A q-part'); S = []
        self.stamp(4)
        a('s_barrier')
        self.stamp(7)
        KF = KV0; ZF = EP
        self.ll_wait([f'buffer_load_dwordx4 {vr(ZF+4*u,4)}, v{a_z}, {srd(sWS)}, s{s_b} offen offset:{32*u} sc1' for u in range(2)] +
                     [f'buffer_load_dwordx4 {vr(KF+4*k,4)}, v{l16}, {srd(sWS)}, s{s_c} offen offset:{1024*k} sc1' for k in range(4)],
                     list(range(ZF, ZF+8)) + list(range(KF, KF+16)), u3, u4, 5)
        self.stamp(5)
        ACC = E['ACC']
        for Tt in range(2):
            N, DP, DM = ACC + 48*Tt, ACC + 48*Tt + 16, ACC + 48*Tt + 32
            x = PK[Tt]
            S += [mf32(DP, ZF, x+8), mf32(DP, ZF+4, x+12, DP), mf32(DM, ZF, x), mf32(DM, ZF+4, x+4, DM),
                  mf32(N, KF, x+8), mf32(N, KF+4, x+12, N), mf32(N, KF+8, x, N), mf32(N, KF+12, x+4, N)]
            S += [f'v_add_f32 v{DP}, v{DP}, v{DM+1}', f'v_add_f32 v{DP}, {f2u(1e-6)}, v{DP}', f'v_rcp_f32 v{DP}, v{DP}']
            for p in range(2):
                for jj in range(2):
                    j = p + 2*jj
                    for k in range(2):
                        r = N + 4*j + 2*k
                        if Tt == 0: S += [f'v_mul_f32 v{r}, v{DP}, v{r}', f'v_mul_f32 v{r+1}, v{DP}, v{r+1}']
                        else: S.append(pk('mul', r, r, ('b', DP)))
                        S.append(cvt(DM+4+4*p+2*jj+k, r, r+1))
                S.append(f'buffer_store_dwordx4 {vr(DM+4+4*p,4)}, v{a_w}, {srd(sWS)}, s{(s_a, s_d)[Tt]} offen offset:{512*p} sc1')
        self.sw(S, name='A finish')
        self.stamp(6)

    def epiB(self, E, pre):
        a = self.a
        acc = E['acc']; a_tok, a_row, a_csr, a_csv, l16 = (E[k] for k in ('a_tok', 'a_row', 'a_csr', 'a_csv', 'l16'))
        s_wm, s_wh, s_a, s_b, s_c, s_d, s_e = (E[k] for k in ('s_wm', 's_wh', 's_a', 's_b', 's_c', 's_d', 's_e'))
        BI, BI0, MK, a_h = 236, 244, 248, 252
        if pre == 'v':
            t1, t2, t3 = 208, 209, 210
            S = [f'v_and_b32 v{t1}, 15, v1', f'v_lshrrev_b32 v{t2}, 4, v1', f'v_lshlrev_b32 v{t2}, 2, v{t2}', f'v_sub_u32 v{t1}, v{t1}, v{t2}',
                 f'v_mov_b32 v{t3}, {f2u(-1e30)}']
            for blk in range(2):
                for i in range(4):
                    S += [f'v_add_u32 v{t2}, {(16 if blk == 0 else 0) - i}, v{t1}', f'v_and_b32 v{t2}, -15, v{t2}', f'v_cmp_eq_u32 vcc, 0, v{t2}',
                          f'v_cndmask_b32 v{BI+4*blk+i}, v{t3}, 0, vcc']
                    if i % 2 == 0: S += [f'v_cndmask_b32 v{MK+2*blk+i//2}, 0, -1, vcc', f'v_lshrrev_b32 v{MK+2*blk+i//2}, 16, v{MK+2*blk+i//2}']
                    else: S += [f'v_cndmask_b32 v{t2}, 0, -1, vcc', f'v_lshl_or_b32 v{MK+2*blk+i//2}, v{t2}, 16, v{MK+2*blk+i//2}']
            S += [f's_or_b32 s{s_t}, s{s_m}, s{s_wm}', 's_cselect_b64 vcc, -1, 0']
            for i in range(4): S.append(f'v_cndmask_b32 v{BI0+i}, v{t3}, v{BI+i}, vcc')
            S += sx(s_t, [(s_wh, 2048)], P_PHI) + [f'v_add_u32 v{a_h}, s{s_t}, v{l16}']
            S += [f's_add_u32 s{s_t+1}, s{s_t}, 1024', f's_cmp_eq_u32 s{s_wm}, 0', f's_cselect_b32 s{s_t}, s{s_t}, {L_P + 7168}', f's_cselect_b32 s{s_t+1}, s{s_t+1}, {L_P + 7168}',
                  f'v_add_u32 v{a_h+1}, s{s_t}, v{l16}', f'v_add_u32 v{a_h+2}, s{s_t+1}, v{l16}']
            a.extend(S)
            return
        if pre == 's':
            S = sx(s_b, [(s_l, 1 << 19), (s_m, 1 << 16), (s_g, 4096), (s_wh, 2048)], WS_HALO - (1 << 19))
            S += [f's_add_u32 s{s_c}, s{s_b}, 65536', f's_cmp_eq_u32 s{s_m}, 15', f's_cselect_b32 s{s_c}, {BIG}, s{s_c}',
                  f's_cmp_eq_u32 s{s_wm}, 0', f's_cselect_b32 s{s_c}, {BIG}, s{s_c}', f's_cselect_b32 s{s_b}, s{s_b}, {BIG}',
                  f's_cmp_eq_u32 s{s_m}, 0', f's_cselect_b32 s{s_b}, {BIG}, s{s_b}', f's_add_u32 s{s_d}, s{s_a}, 65536']
            a.extend(S)
            return
        nr = [160, 168, 176, 208]
        nml, rsl, csk, csv, csq, HB = 216, 220, 224, 232, 128, 136
        VP = [184, 196]
        U, M, t1, t2 = 144, 152, 156, 157
        S = []
        for b in (3, 0, 1, 2):
            S += [f'ds_read_b32 v{nml+b}, v{a_tok} offset:{64*b}', f'ds_read_b32 v{rsl+b}, v{a_tok} offset:{512+64*b}']
            if b == 3:
                for nb in range(2): S.append(f'ds_read_b128 {vr(csk+4*nb,4)}, v{a_csr} offset:{768+256+64*nb}')
                for nb in range(2): S.append(f'ds_read_b32 v{csv+nb}, v{a_csv} offset:{768+512+64*nb}')
            S += [f'ds_read_b128 {vr(nr[b],4)}, v{a_row} offset:{64*b}', f'ds_read_b128 {vr(nr[b]+4,4)}, v{a_row} offset:{512+64*b}']
        for nb in range(2): S.append(f'ds_read_b128 {vr(csq+4*nb,4)}, v{a_csr} offset:{768+64*nb}')
        def kprep(b):
            r = acc(b, 2); L = []
            for k in range(4): L.append(pk('fma', r+2*k, csk+2*k, ('b', nml+b), r+2*k))
            for k in range(4): L.append(pk('mul', r+2*k, r+2*k, ('b', rsl+b)))
            for k in range(4): L.append(cvt(r+k, r+2*k, r+2*k+1))
            return L
        def vprep(b):
            r = acc(b, 4); L = []
            for nb in range(2):
                for p in range(2): L.append(pk('fma', r+4*nb+2*p, nr[b]+2*p, ('b', csv+nb), r+4*nb+2*p))
            for nb in range(2):
                for p in range(2): L.append(pk('mul', r+4*nb+2*p, r+4*nb+2*p, nr[b]+4+2*p))
            for nb in range(2):
                for p in range(2):
                    if b == 3: L.append(cvt(acc(3, 3)+2*nb+p, r+4*nb+2*p, r+4*nb+2*p+1))
                    else: L.append(cvt(VP[nb]+2+2*b+p, r+4*nb+2*p, r+4*nb+2*p+1))
            return L
        def qprep(b):
            r = acc(b, 0); L = []
            for k in range(4): L.append(pk('fma', r+2*k, csq+2*k, ('b', nml+b), r+2*k))
            for k in range(4): L.append(cvt(r+k, r+2*k, r+2*k+1))
            return L
        mfma = E['mfma']
        TM = [mfma(1, b, n) for b in (3, 0, 1, 2) for n in (2, 3, 4, 5)] + [mfma(1, b, 1) for b in range(4)] + [mfma(1, b, 0) for b in (2, 3)]
        rk, rv = acc(3, 2), acc(3, 4)
        P3 = [f'v_fmac_f32 v{rk+k}, v{csk+k}, v{nml+3}' for k in range(8)] + [f'v_mul_f32 v{rk+k}, v{rsl+3}, v{rk+k}' for k in range(8)] + kprep(3)[8:]
        P3 += [f'v_fmac_f32 v{rv+k}, v{nr[3]+k%4}, v{csv+k//4}' for k in range(8)] + [f'v_mul_f32 v{rv+k}, v{nr[3]+4+k%4}, v{rv+k}' for k in range(8)] + vprep(3)[8:]
        T0 = interleave(TM, S[:14] + P3, per=[2]*22); S = S[14:]
        for k in range(2): T0.append(f'buffer_store_dwordx4 {vr(acc(3,2)+4*k,4)}, v{l16}, {srd(sWS)}, s{s_c} offen offset:{1024*k} sc1')
        for k in range(2): S.append(f'ds_write_b128 v{a_h+1+k}, {vr(acc(3,2)+4*k,4)}')
        for nb in range(2): S.append(f'v_mov_b64 {vr(VP[nb]+8,2)}, {vr(acc(3,3)+2*nb,2)}')
        for b in range(3): S += kprep(b) + vprep(b)
        for b in range(4): S += qprep(b)
        for b in range(4): S.append(f'v_mul_f32 v{rsl+b}, {f2u(LOG2E * 32 ** -0.5)}, v{rsl+b}')
        def logits(b):
            s = nr[b]
            L = [mf16(s, HB if b == 0 else acc(b-1, 2), acc(b, 0), BI0 if b == 0 else BI), mf16(s+4, acc(b, 2), acc(b, 0), BI+4)]
            for p in range(2):
                L += [f'v_max3_f32 v{U+2*b+p}, v{s+2*p}, v{s+2*p+1}, v{s+4+2*p}', f'v_max_f32 v{U+2*b+p}, v{U+2*b+p}, v{s+5+2*p}',
                      f'v_mul_f32 v{U+2*b+p}, v{rsl+b}, v{U+2*b+p}']
            L.append(f'v_max_f32 v{M+b}, v{U+2*b}, v{U+2*b+1}')
            return L
        for b in (1, 2, 3): S += logits(b)
        if self.sch: S = sched(S)
        HL = [f'buffer_load_dwordx4 {vr(HB+4*k,4)}, v{l16}, {srd(sWS)}, s{s_b} offen offset:{1024*k} sc1' for k in range(2)]
        self.aw(T0 + S[:self.hpos] + HL + S[self.hpos:]); S = []
        a('s_waitcnt lgkmcnt(0)'); a('s_barrier')
        self.stamp(3)
        L1, L3 = self.lab('hg'), self.lab('hd')
        a('s_waitcnt vmcnt(0)')
        a(f's_cmp_eq_u32 s{s_wm}, 0'); a(f's_cbranch_scc1 {L1}')
        for k in range(2): a(f'ds_read_b128 {vr(HB+4*k,4)}, v{a_h} offset:{1024*k}')
        a('s_waitcnt lgkmcnt(0)')
        a(f's_branch {L3}')
        a.label(L1)
        self.ll_wait(HL, list(range(HB, HB+8)), t1, t2, 0, pre=True)
        a.label(L3)
        self.stamp(4)
        S += logits(0)
        for nb in range(2): S.append(f'v_mov_b64 {vr(VP[nb],2)}, {vr(HB+4+2*nb,2)}')
        def allred(op, mid):
            L = [sw32(M, M+2), sw32(M+1, M+3), f'{op} v{M}, v{M}, v{M+2}', f'{op} v{M+1}, v{M+1}, v{M+3}', sw16(M, M+1), f'{op} v{M+1}, v{M}, v{M+1}']
            L += mid
            L += [f'v_mov_b32 v{M}, v{M+1}', sw16(M, M+1), f'v_mov_b64 {vr(M+2,2)}, {vr(M,2)}', sw32(M, M+2), sw32(M+1, M+3)]
            return L
        S += allred('v_max_f32', [])
        for b in range(4): S.append(pk('add', U+2*b, U+2*b, ('b', M+b), neg=[0, 1]))
        for k in range(8): S.append(f'v_exp_f32 v{U+k}, v{U+k}')
        for b in range(4): S.append(f'v_add_f32 v{M+b}, v{U+2*b}, v{U+2*b+1}')
        S += allred('v_add_f32', [f'v_rcp_f32 v{M+1}, v{M+1}'])
        for b in range(4): S.append(pk('mul', U+2*b, U+2*b, ('b', M+b)))
        for b in range(4):
            P = nr[b]; O = acc(b, 4)
            for p in range(2): S.append(cvt(U+2*b+p, U+2*b+p, U+2*b+p))
            for blk in range(2):
                for p in range(2): S.append(f'v_and_b32 v{P+2*blk+p}, v{U+2*b+p}, v{MK+2*blk+p}')
            for db in range(2): S.append(mf16(O+4*db, VP[db]+2*b, P))
        S += [f's_add_u32 s{s_b}, s{s_a}, 32768', f's_add_u32 s{s_c}, s{s_d}, 32768']
        for b in range(4):
            O = acc(b, 4)
            for k in range(4): S.append(cvt(O+k, O+2*k, O+2*k+1))
            S.append(f'buffer_store_dwordx4 {vr(O,4)}, v{l16}, {srd(sWS)}, s{(s_a, s_b, s_d, s_c)[b]} offen sc1')
        self.sw(S, name='B finish')
        self.stamp(6)

    def build(self):
        a = self.a
        self.prologue()
        self.compute()
        self.loader()
        self.helper()
        a.label('L_fin')
        self.stamp(15)
        self.stamp_out()
        if self.probe:
            def body():
                a('s_sub_u32 s93, s94, s93'); a(f's_mul_i32 s93, s93, {self.probe[2]}'); a('s_min_u32 s93, s93, 100000')
                a(f's_memrealtime s[{s_t+6}:{s_t+7}]'); a('s_waitcnt lgkmcnt(0)'); a(f's_add_u32 s93, s93, s{s_t+6}')
                a.label('L_probe')
                a(f's_memrealtime s[{s_t+6}:{s_t+7}]'); a('s_waitcnt lgkmcnt(0)'); a(f's_sub_u32 s94, s{s_t+6}, s93'); a('s_cmp_lt_i32 s94, 0'); a('s_cbranch_scc1 L_probe')
            self.cond([f's_or_b32 s{s_t}, s2, s{s_wave}', f's_cmp_eq_u32 s{s_t}, 0'], body)
        a('s_waitcnt vmcnt(0)')
        a.label('L_end')
        a('s_endpgm')
        a.pad()
        assert a.maxreg('v') <= 255 and a.maxreg('s') < 96
        return a.text()


def generate(listform=False, **kw):
    body = Gen(**kw).build()
    ref = open('interleave_layers__linear_kernel_hedgehog__sliding_local_dilated__prompt.s.ref').read() if not listform else ''
    head = ''.join(l + '\n' for l in ref.split('\n') if l.startswith(';') and '@launch' not in l)
    if listform: head += f'; @launch kernel={KNAME} grid=(256,1,1) block=(512,1,1) lds={LDS_BYTES}\n'
    else: head += f'; @launch grid=(256,1,1) block=(512,1,1) lds={LDS_BYTES}\n'
    return head + '.amdgcn_target "amdgcn-amd-amdhsa--gfx950"\n' + kernel_head(KNAME) + body + kernel_desc(KNAME, 256, 96, 256)

if __name__ == '__main__':
    kw = eval(sys.argv[2]) if len(sys.argv) > 2 else {}
    open(sys.argv[1], 'w').write(generate(**kw))
```

```python
import sys, struct
sys.path.insert(0, 'work')
from asmlib import *

KNAME = 'interleave_layers__linear_kernel_hedgehog__sliding_local_dilated__prompt_kernel'

WS_CTR, WS_STAMP, WS_ST, WS_CS = 0x0, 0x100000, 0x200000, 0x300000
WS_HALO, WS_KVF, WS_ZP, WS_ZF, WS_KVP = 0x400000, 0x600000, 0x680000, 0x6C0000, 0x800000
WS_RF = 0x700000
WS_XI, WS_OI, WS_END = 0xC00000, 0x1800000, 0x2800000
BIG = 0x40000000
STG = 40960
XOFF = 24576
L_WO = 24576
L_SPARE = 3 * STG
L_P = 155648
P_NM, P_RS, P_CS, P_MODE, P_CNT, P_PHI = L_P, L_P + 512, L_P + 1024, L_P + 2816, L_P + 2832, L_P + 3072
LDS_BYTES = 163840
SCR = 5120
LOG2E = 1.4426950408889634
def f2u(x): return '0x%08x' % struct.unpack('<I', struct.pack('<f', x))[0]

s_fast = 3
pAX, pAW, pPHI, pAWO, pBW, pBWO, pOUT, pDBG, pWS = 4, 6, 8, 10, 14, 16, 18, 20, 22
sWS, sX, sW, sWO, sOUT, sDBG = 24, 28, 32, 36, 40, 44
s_m, s_g, s_wave, s_l = 48, 49, 50, 51
s_t = 52
s_cnt, s_x = 60, 61
s_i = 62
s_stamp = 63
s_rot = 64
s_rot2 = 95
s_ft, s_fn, s_fd = 90, 91, 88
def srd(b): return 's[%d:%d]' % (b, b + 3)


def sx(d, terms, const=0):
    L = []
    for n, (r, k) in enumerate([t for t in terms if t[1]]):
        t = d if n == 0 else s_x
        if k == 1 and n: t = r
        elif k == 1: L.append(f's_mov_b32 s{t}, s{r}')
        elif k > 0 and k & (k - 1) == 0: L.append(f's_lshl_b32 s{t}, s{r}, {k.bit_length()-1}')
        else: L.append(f's_mul_i32 s{t}, s{r}, {k}')
        if n: L.append(f's_add_u32 s{d}, s{d}, s{t}')
    if const: L.append(f's_add_u32 s{d}, s{d}, {const:#x}' if const > 0 else f's_sub_u32 s{d}, s{d}, {-const:#x}')
    return L

def pkop(r):
    if isinstance(r, tuple):
        return vr(r[1] & ~1, 2), r[1] & 1, r[1] & 1
    assert r % 2 == 0
    return vr(r, 2), 0, 1
def pk(op, d, *src, neg=None):
    o = [pkop(s) for s in src]
    t = 'v_pk_%s_f32 %s, %s' % (op, vr(d, 2), ', '.join(x[0] for x in o))
    lo = [x[1] for x in o]; hi = [x[2] for x in o]
    if any(lo): t += ' op_sel:[%s]' % ','.join(map(str, lo))
    if not all(hi): t += ' op_sel_hi:[%s]' % ','.join(map(str, hi))
    if neg: t += ' neg_lo:[%s] neg_hi:[%s]' % (','.join(map(str, neg)), ','.join(map(str, neg)))
    return t
def cvt(d, a, b): return f'v_cvt_pk_bf16_f32 v{d}, v{a}, v{b}'
def sw16(a, b): return f'v_permlane16_swap_b32 v{a}, v{b}'
def sw32(a, b): return f'v_permlane32_swap_b32 v{a}, v{b}'
def mf16(d, A, B, C=None): return f'v_mfma_f32_16x16x32_bf16 {vr(d,4)}, {vr(A,4)}, {vr(B,4)}, ' + (vr(C, 4) if C is not None else '0')
def mf32(d, A, B, C=None): return f'v_mfma_f32_32x32x16_bf16 {vr(d,16)}, {vr(A,4)}, {vr(B,4)}, ' + (vr(C, 16) if C is not None else '0')


class Gen:
    def __init__(self, prof=0, limit=40000, dist=2, touch=1, bm=27, local=1, pd=5, sch=1, hprio=2, opos=(1, 5), warm=1, nap=4, probe=None, snake=1, rf=2, hq=5, fine=0, llf='sc1', ot=0, hc=None, hpos=90, early=0, w2=0, w0b=0, cpf=0, tr=4, bpos=1, r0=2):
        self.a = Asm()
        assert bm >= 16
        self.__dict__.update(prof=prof, limit=limit, dist=dist, touch=touch, bm=bm, local=local, pd=pd, sch=sch, hprio=hprio, opos=opos, warm=warm, nap=nap, probe=probe, snake=snake, rf=rf, hq=hq, fine=fine, llf=llf, ot=ot, hc=hc, hpos=hpos, early=early, w2=w2, w0b=w0b, cpf=cpf, tr=tr, bpos=bpos, r0=r0)
        self.nlab = 0

    def lab(self, p):
        self.nlab += 1
        return 'L_%s_%d' % (p, self.nlab)

    def aw(self, L):
        self.a.extend(autowait(L))
    def sw(self, L, crit=None, name=''):
        if self.sch:
            L = sched(L, crit)
            if name and __name__ == '__main__': print('sched', name, len(L), 'instructions, about', sched.last_estimate, 'cycles', file=sys.stderr)
        self.a.extend(autowait(L))

    def cond(self, test, body):
        L = self.lab('skip')
        self.a.extend(test); self.a(f's_cbranch_scc0 {L}')
        body()
        self.a.label(L)

    def spin(self, issue, check, vt, tag, pre=False):
        a = self.a
        L, C, D = self.lab('spin'), self.lab('chk'), self.lab('done')
        a(f's_mov_b32 s{s_cnt}, 0')
        if pre:
            a(f's_branch {C}')
            a.label(L); a.extend(issue); a('s_waitcnt vmcnt(0)')
            a.label(C); a.extend(check)
        else:
            a.label(L); self.aw(list(issue) + list(check))
        a('s_cmp_eq_u64 vcc, 0'); a(f's_cbranch_scc1 {D}')
        a(f's_add_u32 s{s_cnt}, s{s_cnt}, 1')
        a(f's_cmp_lt_u32 s{s_cnt}, {self.limit}'); a(f's_cbranch_scc1 {L}')
        a(f'v_mov_b32 v{vt}, {1 << tag}')
        a(f'buffer_atomic_or v{vt}, off, {srd(sDBG)}, 0 offset:4 sc1')
        a.label(D)

    def ll_wait(self, loads, regs, t1, t2, tag, pre=False):
        S = []
        h = len(regs) // 2
        for t, R in ((t1, regs[:h]), (t2, regs[h:])):
            S.append(f'v_max_u32 v{t}, v{R[0]}, v{R[1]}')
            for k in range(2, len(R), 2): S.append(f'v_max3_u32 v{t}, v{t}, v{R[k]}, v{R[k+1]}')
        S += [f'v_max_u32 v{t1}, v{t1}, v{t2}', f'v_cmp_eq_u32 vcc, -1, v{t1}']
        loads = [l.replace('sc1', self.llf) for l in loads]
        self.spin(loads, S, t1, tag, pre)

    def flag_set(self, soff, vt, which=3):
        a = self.a
        a('s_mov_b64 exec, 1')
        if which & 1: a(f'buffer_store_dword v{vt}, off, {srd(sWS)}, s{soff}')
        if which & 2: a(f'buffer_store_dword v{vt}, off, {srd(sWS)}, s{soff+1} sc1')
        a('s_mov_b64 exec, -1')
    def flag_addr(self, va, vt, soff, remote=False):
        L = [f'v_bfe_u32 v{va}, v1, 1, 3', f'v_and_b32 v{vt}, 1, v1', f'v_lshl_add_u32 v{va}, v{va}, 2, v{vt}']
        if remote: return L + [f'v_lshlrev_b32 v{va}, 7, v{va}']
        return L + [f's_cmp_eq_u32 s{s_fast}, 1', f's_cselect_b32 s{s_t}, 0, 5', f's_cselect_b32 s{s_t+1}, 0, {WS_RF}',
                    f's_lshl_b32 s{soff}, s{soff}, s{s_t}', f's_add_u32 s{soff}, s{soff}, s{s_t+1}', f's_add_u32 s{s_t}, s{s_t}, 2',
                    f'v_lshlrev_b32 v{va}, s{s_t}, v{va}']
    def flag_load(self, soff, va, vt): return f'buffer_load_dword v{vt}, v{va}, {srd(sWS)}, s{soff} offen sc1'
    def flag_wait(self, soff, va, vt, tag, pre=False, nap=0):
        self.spin(([f's_sleep {nap}'] if nap else []) + [self.flag_load(soff, va, vt)], [f'v_cmp_eq_u32 vcc, 0, v{vt}'], vt, tag, pre)
    def get_mode(self, vt):
        self.a.extend([f'v_mov_b32 v{vt}, {P_MODE}', f'ds_read_b32 v{vt}, v{vt}', 's_waitcnt lgkmcnt(0)', f'v_readfirstlane_b32 s{s_fast}, v{vt}'])

    def stamp(self, k):
        if self.probe:
            for n, (pl, pk_) in enumerate(self.probe[:2]):
                if pk_ == k:
                    def body():
                        self.a(f's_memrealtime s[{s_t+6}:{s_t+7}]'); self.a('s_waitcnt lgkmcnt(0)'); self.a(f's_mov_b32 s{93+n}, s{s_t+6}')
                    self.cond([f's_cmp_eq_u32 s{s_l}, {pl}'], body)
        if not self.prof or self.prof >= 5: return
        a = self.a
        a(f'{"s_memtime" if self.prof == 4 else "s_memrealtime"} s[{s_t+6}:{s_t+7}]')
        a(f's_mov_b32 s{s_stamp}, m0')
        a(f's_lshl_b32 m0, s{s_l}, 4'); a(f's_add_u32 m0, m0, {k}')
        a('s_waitcnt lgkmcnt(0)')
        a(f'v_writelane_b32 v255, s{s_t+6}, m0')
        a(f's_mov_b32 m0, s{s_stamp}')
    def stamp_out(self):
        if not self.prof: return
        a = self.a
        a.extend(sx(s_t, [(2, 2048), (s_wave, 256)], WS_STAMP))
        a('v_lshlrev_b32 v254, 2, v1')
        a(f'buffer_store_dword v255, v254, {srd(sWS)}, s{s_t} offen')

    def prologue(self):
        a = self.a
        a('s_cmp_ge_u32 s2, 256'); a('s_cbranch_scc1 L_end')
        a('s_load_dwordx16 s[4:19], s[0:1], 0')
        a('s_load_dwordx4 s[20:23], s[0:1], 64')
        a('v_lshrrev_b32 v2, 6, v0')
        a(f'v_readfirstlane_b32 s{s_wave}, v2')
        a('v_and_b32 v1, 63, v0')
        a(f's_and_b32 s{s_rot}, s2, 3'); a(f's_lshl_b32 s{s_rot}, s{s_rot}, 2')
        a(f's_bfe_u32 s{s_t}, s2, 0x20003'); a(f's_add_u32 s{s_m}, s{s_rot}, s{s_t}')
        a(f's_mov_b32 s{s_rot}, s{s_m}')
        a(f's_and_b32 s{s_rot2}, s2, 4'); a(f's_lshl_b32 s{s_rot2}, s{s_rot2}, 1')
        a(f's_lshr_b32 s{s_g}, s2, 5'); a(f's_add_u32 s{s_g}, s{s_g}, s{s_rot2}')
        a(f's_mov_b32 s{s_l}, 0'); a(f's_mov_b32 s{s_fast}, 0')
        for b, n in ((sWS, WS_END), (sX, 2048*1024*2), (sW, 1024*3072*2), (sWO, 1024*1024*2), (sOUT, WS_END), (sDBG, 256)):
            a(f's_mov_b32 s{b+2}, {n}'); a(f's_mov_b32 s{b+3}, 0x20000')
        if self.prof: a('v_mov_b32 v255, 0')
        self.stamp(0)
        a(f's_cmp_ge_u32 s{s_wave}, 6'); a('s_cbranch_scc1 L_helper')
        a(f's_cmp_ge_u32 s{s_wave}, 4'); a('s_cbranch_scc1 L_loader')
    def pointers(self):
        a = self.a
        a('s_waitcnt lgkmcnt(0)')
        for b, p in ((sWS, pWS), (sX, pAX), (sW, pAW), (sWO, pAWO), (sOUT, pWS), (sDBG, pDBG)):
            a(f's_mov_b64 s[{b}:{b+1}], s[{p}:{p+1}]')

    def trickle_setup(self):
        a = self.a
        a(f's_mov_b64 s[{sOUT}:{sOUT+1}], s[{sWO}:{sWO+1}]'); a(f's_mov_b32 s{sOUT+2}, {1 << 21}')
        a.extend(sx(s_ft, [(2, 8192), (s_wave, 2048)], -8192))
        n1 = -(-16 // self.tr)
        a(f's_cmp_eq_u32 s{s_l}, 0'); a(f's_cselect_b32 s{s_fn}, 12, {n1}')
        a(f's_cmp_lt_u32 s{s_l}, {2 if self.warm else 0}'); a(f's_cselect_b32 s{s_fn}, s{s_fn}, 0')
    def trickle_lines(self, n):
        a = self.a
        a(f's_sub_u32 s{s_t}, s{sOUT+2}, {128*n}'); a(f's_min_u32 s{s_t}, s{s_t}, s{s_ft}')
        for r in range(n): a(f's_buffer_load_dwordx2 s[{s_fd}:{s_fd+1}], {srd(sOUT)}, s{s_t} offset:{128*r+60}')
        a(f's_add_u32 s{s_ft}, s{s_ft}, {128*n}')
    def trickle(self, i):
        a = self.a
        n1 = -(-16 // self.tr)
        def nxt():
            a(f's_mov_b64 s[{sOUT}:{sOUT+1}], s[{pBW}:{pBW+1}]'); a(f's_mov_b32 s{sOUT+2}, {3 << 21}')
            a.extend(sx(s_ft, [(2, 24576), (s_wave, 6144)], -24576))
        def body():
            if isinstance(i, str): self.cond([f's_cmp_eq_u32 {i}, {n1}'], nxt)
            elif i == n1: nxt()
            self.trickle_lines(self.tr)
        self.cond([f's_cmp_gt_u32 s{s_fn}, {i}'], body)
    def trickle_rest(self, part):
        rest = 48 - self.tr * (12 - -(-16 // self.tr))
        n = rest
        self.cond([f's_cmp_eq_u32 s{s_fn}, 12'], lambda: self.trickle_lines(n))

    def w_dma_offsets(self, dw, idx, t0, t1, t2):
        a = self.a
        a(f'v_lshrrev_b32 v{t0}, 3, v1'); a(f'v_mul_u32_u24 v{t0}, 6144, v{t0}')
        a(f'v_and_b32 v{t1}, 7, v1'); a(f'v_bfe_u32 v{t2}, v1, 4, 1'); a(f'v_lshlrev_b32 v{t2}, 1, v{t2}')
        a(f'v_xor_b32 v{t1}, v{t1}, v{t2}'); a(f'v_xor_b32 v{t2}, 4, v{t1}')
        a(f'v_lshl_add_u32 v{t1}, v{t1}, 4, v{t0}'); a(f'v_lshl_add_u32 v{t2}, v{t2}, 4, v{t0}')
        d = 8*6144 - 1024
        a(f's_lshl_b32 s{s_t+1}, s{s_g}, 7'); a(f'v_add_u32 v{t1}, s{s_t+1}, v{t1}'); a(f's_add_u32 s{s_t+1}, s{s_t+1}, {d}'); a(f'v_add_u32 v{t2}, s{s_t+1}, v{t2}')
        a(f's_cmp_eq_u32 s{idx}, 0')
        for t in range(3):
            c = [((3*w + t) & 1)*32*6144 + ((3*w + t) >> 1)*2048 for w in range(2)]
            a(f's_mov_b32 s{s_t}, {c[1]}'); a(f's_cmov_b32 s{s_t}, {c[0]}')
            a(f'v_add_u32 v{dw+4*t}, s{s_t}, v{t1}'); a(f'v_add_u32 v{dw+4*t+1}, s{s_t}, v{t2}')
            a(f'v_add_u32 v{dw+4*t+2}, {2*d}, v{dw+4*t}'); a(f'v_add_u32 v{dw+4*t+3}, {2*d}, v{dw+4*t+1}')

    def w_frag_addr(self, aw, head_sreg, base, t0, t1, t2, nb_list=(0, 1)):
        L = [f'v_lshrrev_b32 v{t2}, 4, v1', f'v_bfe_u32 v{t0}, v1, 2, 2', f'v_lshl_add_u32 v{t1}, v{t2}, 3, v{t0}',
             f'v_lshrrev_b32 v{t0}, 1, v{t0}', f'v_and_b32 v{t2}, 1, v{t2}', f'v_lshl_add_u32 v{t0}, v{t2}, 1, v{t0}']
        if head_sreg is not None: L += [f's_lshl_b32 s{s_t}, s{head_sreg}, 1', f'v_xor_b32 v{t0}, s{s_t}, v{t0}']
        L += [f'v_and_b32 v{t2}, 3, v1', f'v_lshlrev_b32 v{t2}, 3, v{t2}', f'v_lshl_add_u32 v{t2}, v{t1}, 7, v{t2}']
        if base: L.append(f'v_add_u32 v{t2}, {base}, v{t2}')
        for k, nb in enumerate(nb_list): L += [f'v_xor_b32 v{t1}, {nb}, v{t0}', f'v_lshl_add_u32 v{aw+k}, v{t1}, 5, v{t2}']
        return L

    def reduce_job(self, after_by=None, after_fill=None):
        a = self.a
        T = 200
        vA, vZ, vO, t1, t2 = T, T+1, T+2, T+3, T+4
        s_a, s_b, s_c, s_d, s_e = 80, 81, 82, 83, 84
        a.extend(sx(s_t, [(s_l, 32), (s_g, 4), (s_wave, 1)], -4))
        a.extend(sx(s_a, [(s_t, 32768), (s_m, 128)], WS_KVP)); a(f's_add_u32 s{s_b}, s{s_a}, 16384')
        a.extend(sx(s_d, [(s_t, 2048), (s_m, 128)], WS_KVF))
        a.extend(sx(s_c, [(s_t, 1024)], WS_ZP)); a.extend(sx(s_e, [(s_t, 64)], WS_ZF))
        a(f's_and_b32 s{s_t}, s{s_t}, 1'); a(f's_xor_b32 s{s_t+1}, s{s_m}, s{s_g}'); a(f's_or_b32 s{s_t}, s{s_t}, s{s_t+1}')
        a(f's_cselect_b32 s{s_c}, {BIG}, s{s_c}'); a(f's_cselect_b32 s{s_e}, {BIG}, s{s_e}')
        a(f'v_and_b32 v{t1}, 7, v1'); a(f'v_lshlrev_b32 v{t1}, 4, v{t1}')
        a(f'v_lshrrev_b32 v{t2}, 3, v1'); a(f'v_lshl_add_u32 v{vA}, v{t2}, 11, v{t1}')
        a(f'v_lshlrev_b32 v{vZ}, 4, v1')
        a(f'v_lshrrev_b32 v{t2}, 4, v1'); a(f'v_lshl_add_u32 v{vO}, v{t2}, 2, v{t1}')
        D = T + 8; U = 160
        def late_fill():
            for k in range(4): a(f'v_mov_b32 v{D+k}, -1')
            fill = f'buffer_store_dwordx4 {vr(D,4)}, v{vZ}, {srd(sWS)}, s{s_t} offen'
            a.extend(sx(s_t, [(s_g, 131072), (s_wave, 32768), (s_m, 2048)], WS_KVP + (1 << 21) - 4*32768)); a(fill + ' sc1'); a(fill + ' offset:1024 sc1')
            a(f's_lshr_b32 s{s_t+1}, s{s_wave}, 1'); a(f's_and_b32 s{s_t+2}, s{s_wave}, 1')
            a.extend(sx(s_t, [(s_t+2, 1 << 20), (s_m, 1 << 16), (s_g, 4096), (s_t+1, 2048)], WS_HALO - 2*2048)); a(fill + ' sc1'); a(fill + ' offset:1024 sc1')
            a.extend(sx(s_t, [(s_wave, 262144), (s_m, 16384), (s_g, 1024)], WS_ST - 3*262144))
            a.extend(sx(s_t+3, [(s_g, 16384), (s_m, 1024)], WS_CS + 262144))
            a(f's_cmp_eq_u32 s{s_wave}, 7'); a(f's_cselect_b32 s{s_t}, s{s_t+3}, s{s_t}'); a(fill + ' sc1')
            a('s_mov_b64 exec, 0xff')
            a(f's_add_u32 s{s_t}, s{s_d}, {1 << 17}'); a(fill + ' sc1')
            a(f's_add_u32 s{s_t}, s{s_e}, {1 << 12}'); a(fill + ' sc1')
            a.extend(sx(s_t, [(s_g, 4096), (s_t+1, 2048), (s_m, 128)], WS_ZP + (1 << 16) - 2*2048)); a(fill + ' sc1')
            a('s_mov_b64 exec, -1')
            a('s_waitcnt vmcnt(0)')
        self.cond([f's_cmp_eq_u32 s{s_l}, 0'], late_fill)
        a('s_barrier')
        a('s_barrier')
        if after_by: after_by()
        self.ll_wait([f'buffer_load_dwordx4 {vr(D,4)}, v{vA}, {srd(sWS)}, s{s_a} offen sc1',
                      f'buffer_load_dwordx4 {vr(D+4,4)}, v{vA}, {srd(sWS)}, s{s_b} offen sc1',
                      f'buffer_load_dwordx4 {vr(D+8,4)}, v{vZ}, {srd(sWS)}, s{s_c} offen sc1',
                      f'buffer_load_dwordx4 {vr(D+12,4)}, v{vZ}, {srd(sWS)}, s{s_c} offen offset:1024 sc1'],
                     list(range(D, D+16)), t1, t2, 1)
        self.stamp(5)
        S = []
        for z in range(2):
            d, u = D + 8*z, U + 16*z
            for k in range(8): S += [f'v_lshlrev_b32 v{u+2*k}, 16, v{d+k}', f'v_and_b32 v{u+2*k+1}, 0xffff0000, v{d+k}']
            for k in range(4): S.append(pk('add', u+2*k, u+2*k, u+8+2*k))
            for k in range(4): S.append(sw32(u+k, u+4+k))
            S += [pk('add', u, u, u+4), pk('add', u+2, u+2, u+6), sw16(u, u+2), sw16(u+1, u+3), pk('add', u, u, u+2)]
            for k in range(2): S.append(f'v_add_f32_dpp v{u+k}, v{u+k}, v{u+k} row_ror:8 row_mask:0xf bank_mask:0xf')
            S.append(cvt(u, u, u+1))
        S += ['s_mov_b32 exec_lo, 0x00ff00ff', 's_mov_b32 exec_hi, 0x00ff00ff',
              f'buffer_store_dword v{U}, v{vO}, {srd(sWS)}, s{s_d} offen sc1',
              f'buffer_store_dword v{U+16}, v{vO}, {srd(sWS)}, s{s_e} offen sc1', 's_mov_b64 exec, -1']
        self.sw(S)
        a('s_barrier')

    def loader(self):
        a = self.a
        a.label('L_loader')
        dx, dw, dwo, t0, t1, t2, vf = 8, 16, 28, 2, 3, 4, 5
        s_ld, s_kx, s_kw, s_slot, s_mx, s_xstep, s_wo, s_wm0, s_sx, s_sw, s_xb, s_fl, s_mw = range(65, 78)
        a(f's_sub_u32 s{s_ld}, s{s_wave}, 4')
        self.w_dma_offsets(dw, s_ld, t0, t1, t2)
        a(f's_mul_i32 s{s_mw}, s{s_ld}, 12288')
        a(f's_lshl_b32 s{s_mx}, s{s_ld}, 13'); a(f's_add_u32 s{s_mx}, s{s_mx}, {XOFF}')
        s_flip = 78
        def nxt(r):
            return [f's_cmp_eq_u32 s{r}, s{s_flip}', f's_addc_u32 s{r}, s{r}, 1', f's_and_b32 s{r}, s{r}, 15']
        def wst(slot=None):
            L = []
            for j in range(12):
                if j == 0: L.append(f's_add_u32 m0, s{s_mw}, ' + (f's{s_slot}' if slot is None else str(slot*STG)))
                elif j % 4 == 0: L.append('s_add_u32 m0, m0, 4096')
                L.append(f'buffer_load_dwordx4 v{dw+j}, {srd(sW)}, s{s_kw} offen offset:{1024*(j%4)} lds')
            a.extend(L + nxt(s_sw) + [f's_mul_i32 s{s_kw}, s{s_sw}, {64*6144}'])
        def xst(slot=None):
            L = []
            for j in range(8):
                if j == 0: L.append(f's_add_u32 m0, s{s_mx}, ' + (f's{s_slot}' if slot is None else str(slot*STG)))
                elif j == 4: L.append('s_add_u32 m0, m0, 4096')
                L.append(f'buffer_load_dwordx4 v{dx+j}, {srd(sX)}, s{s_kx} offen offset:{1024*(j%4)} sc1 lds')
            a.extend(L + nxt(s_sx) + [f's_mul_i32 s{s_kx}, s{s_sx}, s{s_xstep}', f's_add_u32 s{s_kx}, s{s_kx}, s{s_xb}'])
        def kstart(first):
            if first:
                a(f's_mov_b32 s{s_sx}, s{s_m}'); a(f's_mov_b32 s{s_sw}, s{s_m}'); a(f's_mov_b32 s{s_flip}, 16')
            else:
                a(f's_add_u32 s{s_sw}, s{s_rot2}, 15'); a(f's_and_b32 s{s_sw}, s{s_sw}, 15'); a(f's_mov_b32 s{s_sx}, s{s_sw}')
                a(f's_add_u32 s{s_flip}, s{s_g}, 15'); a(f's_and_b32 s{s_flip}, s{s_flip}, 15'); a.extend(nxt(s_sx))
            a(f's_mul_i32 s{s_kw}, s{s_m if first else s_g}, {64*6144}'); a(f's_mul_i32 s{s_kx}, s{s_sx}, s{s_xstep}'); a(f's_add_u32 s{s_kx}, s{s_kx}, s{s_xb}')
        a(f's_lshl_b32 s{s_xb}, s{s_m}, 18'); a(f's_mov_b32 s{s_xstep}, 128'); kstart(True)
        self.pointers()
        wst(0)
        a(f'v_lshrrev_b32 v{t0}, 3, v1'); a(f'v_and_b32 v{t1}, 7, v1')
        a(f'v_lshrrev_b32 v{t2}, 4, v1'); a(f'v_xor_b32 v{t1}, v{t1}, v{t2}'); a(f'v_xor_b32 v{t2}, 4, v{t1}')
        a(f's_lshl_b32 s{s_t}, s{s_ld}, 17'); a(f'v_lshl_add_u32 v{t0}, v{t0}, 11, s{s_t}')
        a(f'v_lshl_add_u32 v{t1}, v{t1}, 4, v{t0}'); a(f'v_lshl_add_u32 v{t2}, v{t2}, 4, v{t0}')
        for j in range(8): a(f'v_add_u32 v{dx+j}, {j*16384 - 1024*(j%4)}, v{t1 if j % 2 == 0 else t2}')
        xst(0); wst(1)
        a(f'v_lshrrev_b32 v{t0}, 5, v1'); a(f'v_lshlrev_b32 v{t0}, 4, v{t0}')
        a(f'v_bfe_u32 v{t1}, v1, 3, 2'); a(f'v_add_u32 v{t0}, v{t0}, v{t1}')
        a(f's_lshl_b32 s{s_t}, s{s_g}, 7'); a(f'v_lshl_add_u32 v{t0}, v{t0}, 11, s{s_t}')
        a(f'v_and_b32 v{t1}, 7, v1'); a(f'v_bfe_u32 v{t2}, v1, 4, 1'); a(f'v_lshlrev_b32 v{t2}, 1, v{t2}')
        a(f'v_xor_b32 v{t1}, v{t1}, v{t2}'); a(f'v_xor_b32 v{t2}, 4, v{t1}')
        a(f'v_lshl_add_u32 v{t1}, v{t1}, 4, v{t0}'); a(f'v_lshl_add_u32 v{t2}, v{t2}, 4, v{t0}')
        for G in range(4): a(f'v_add_u32 v{dwo+G}, {G*4*2048 - 1024*G}, v{t1 if G % 2 == 0 else t2}')
        a('s_waitcnt vmcnt(12)'); a('s_barrier')
        xst(1); wst(2)
        a('s_waitcnt vmcnt(12)'); a('s_barrier')
        xst(2)
        a.label('L_ld_enter')
        a(f's_mov_b32 s{s_i}, 0'); a(f's_mov_b32 s{s_slot}, 0')
        self.trickle_setup()
        def loop(name, n, extra):
            a.label(name)
            xst(); wst()
            if extra:
                a(f's_add_u32 s{s_t}, s{s_i}, 1'); a(f's_and_b32 s{s_t}, s{s_t}, 7')
                a.extend(sx(s_wo, [(s_rot2, 2), (s_t, 1)], 24)); a(f's_and_b32 s{s_wo}, s{s_wo}, 31')
                a.extend(sx(s_wm0, [(s_wo, 65536), (s_ld, 2*4*2048)]))
                a.extend(sx(s_wo, [(s_t, 4096), (s_ld, 2048)], L_SPARE)); a(f's_mov_b32 m0, s{s_wo}')
                for G in range(2): a(f'buffer_load_dwordx4 v{dwo+G}, {srd(sWO)}, s{s_wm0} offen offset:{1024*G} lds')
            self.trickle(f's{s_i}')
            a(f's_add_u32 s{s_slot}, s{s_slot}, {STG}'); a(f's_cmp_eq_u32 s{s_slot}, {3*STG}'); a(f's_cselect_b32 s{s_slot}, 0, s{s_slot}')
            a(f's_add_u32 s{s_i}, s{s_i}, 1'); a(f's_cmp_lt_u32 s{s_i}, {n}')
            a(f's_waitcnt vmcnt({22 if extra else 20})')
            a('s_barrier')
            a(f's_cbranch_scc1 {name}')
        if self.early: loop('L_ld_loop', 5, False); loop('L_ld_loop2', 13, True)
        else: loop('L_ld_loop', 13, False)
        def wo(p0, n):
            a.extend(sx(s_wm0, [(s_ld, 4096)], L_WO + 4096*p0))
            a.extend(sx(s_wo, [(s_rot2, 2), (s_ld, 1)], p0)); a(f's_and_b32 s{s_wo}, s{s_wo}, 31'); a(f's_lshl_b32 s{s_wo}, s{s_wo}, 16')
            L = self.lab('wo')
            a(f's_mov_b32 s{s_i}, 0')
            a.label(L)
            a(f's_mov_b32 m0, s{s_wm0}')
            a(f's_add_u32 s{s_wm0}, s{s_wm0}, 8192')
            for G in range(4): a(f'buffer_load_dwordx4 v{dwo+G}, {srd(sWO)}, s{s_wo} offen offset:{1024*G} lds')
            a(f's_add_u32 s{s_wo}, s{s_wo}, 131072'); a(f's_and_b32 s{s_wo}, s{s_wo}, 0x1fffff')
            a(f's_add_u32 s{s_i}, s{s_i}, 1'); a(f's_cmp_lt_u32 s{s_i}, {n//2}'); a(f's_cbranch_scc1 {L}')
        if self.early:
            wo(4, 10)
            a('s_waitcnt vmcnt(20)'); a('s_barrier')
            wo(14, 10)
            a('s_barrier')
            wo(0, 4)
        else:
            wo(24, 8)
            a('s_waitcnt vmcnt(16)'); a('s_barrier')
            wo(4, 10)
            a('s_barrier')
            wo(14, 10); wo(0, 4)
        a.extend(sx(s_fl, [(s_l, 8192), (s_m, 256), (s_rot2, 16), (s_ld, 8)], 4096))
        self.get_mode(t0); a.extend(self.flag_addr(vf, t0, s_fl))
        a.extend(sx(s_xb, [(s_l, 1 << 22), (s_m, 1 << 18)], WS_XI))
        a(f's_bitcmp0_b32 s{s_l}, 0')
        a(f's_cselect_b64 s[{sW}:{sW+1}], s[{pBW}:{pBW+1}], s[{pAW}:{pAW+1}]')
        a(f's_cselect_b64 s[{sWO}:{sWO+1}], s[{pBWO}:{pBWO+1}], s[{pAWO}:{pAWO+1}]')
        a(f's_mov_b64 s[{sX}:{sX+1}], s[{pWS}:{pWS+1}]'); a(f's_mov_b32 s{sX+2}, {WS_END}')
        a(f's_mov_b32 s{s_xstep}, 16384'); kstart(False)
        a(f's_lshl_b32 s{s_t}, s{s_ld}, 13'); a(f'v_lshl_add_u32 v{t0}, v1, 4, s{s_t}')
        for j in range(8): a(f'v_add_u32 v{dx+j}, {4096*(j//4)}, v{t0}')
        a(f's_bitcmp1_b32 s{s_l}, 0'); a('s_cbranch_scc1 L_ld_B')
        self.reduce_job(lambda: wst(0))
        a('s_branch L_ld_join')
        a.label('L_ld_B')
        if self.w0b == 0: self.cond([f's_cmp_lg_u32 s{s_l}, 3'], lambda: wst(0))
        a('s_barrier')
        if self.w0b == 1: self.cond([f's_cmp_lg_u32 s{s_l}, 3'], lambda: wst(0))
        a.label('L_ld_join')
        a('s_waitcnt vmcnt(0)'); a('s_barrier')
        a(f's_cmp_eq_u32 s{s_l}, 3'); a('s_cbranch_scc1 L_fin')
        self.trickle_rest(1)
        a(f's_add_u32 s{s_l}, s{s_l}, 1')
        a('s_barrier')
        wst(1)
        if self.w2 == 2: wst(2)
        a('s_barrier')
        if self.w2 == 0: wst(2)
        self.flag_wait(s_fl, vf, t0, 2)
        self.stamp(1)
        xst(1); xst(2)
        a('s_waitcnt vmcnt(8)'); a('s_barrier')
        if self.w2 == 1: wst(2)
        a('s_branch L_ld_enter')

    def helper(self):
        a = self.a
        a.label('L_helper')
        t0, t1, t2, t3, l4, l16, ones, a_st, a_cs, v_st, v_cs, aw, vtw, vto, vd = 2, 3, 4, 5, 6, 7, 8, 12, 13, 14, 15, 16, 18, 19, 20
        F, D, SA, SC = 32, 96, 128, 160
        s_h, s_tw, s_a, s_b, s_trot = 65, 66, 67, 68, 69
        xm = 4; s_r = 70; vrf, vfl, aw2, dw = 21, 22, 24, 80
        a(f's_sub_u32 s{s_h}, s{s_wave}, 6')
        a(f'v_lshlrev_b32 v{l4}, 2, v1'); a(f'v_lshlrev_b32 v{l16}, 4, v1')
        a.extend(self.w_frag_addr(aw, s_h, 0, t0, t1, t2))
        for k in range(2): a(f'v_add_u32 v{aw2+k}, {L_SPARE}, v{aw+k}')
        a.extend(self.flag_addr(vrf, t0, None, remote=True))
        a(f'v_lshrrev_b32 v{t0}, 5, v1'); a(f'v_and_b32 v{t1}, 31, v1'); a(f'v_lshlrev_b32 v{t1}, 4, v{t1}')
        a(f'v_lshl_add_u32 v{v_st}, v{t0}, 10, v{t1}')
        a(f'v_and_b32 v{t2}, 24, v1'); a(f'v_and_b32 v{t3}, 3, v1'); a(f'v_lshl_add_u32 v{t2}, v{t3}, 1, v{t2}'); a(f'v_add_u32 v{t2}, v{t2}, v{t0}')
        a.extend(sx(s_t, [(s_h, 256)], P_NM)); a(f'v_lshl_add_u32 v{a_st}, v{t2}, 3, s{s_t}')
        a(f'v_mov_b32 v{t2}, {BIG}'); a(f'v_cmp_gt_u32 vcc, 384, v{t1}'); a(f'v_cndmask_b32 v{v_cs}, v{t2}, v{v_st}, vcc')
        a.extend(sx(s_t, [(s_h, 384)], P_CS)); a(f'v_lshl_add_u32 v{t1}, v{t0}, 3, v{t1}'); a(f'v_add_u32 v{a_cs}, s{s_t}, v{t1}')
        self.pointers()

        def touch_setup(first=False):
            if not self.touch: return
            c, gt = s_t + 2, s_t + 3
            def cls(b):
                a(f's_lshr_b32 s{gt}, s{b}, 7'); a(f's_sub_u32 s{gt}, 3, s{gt}'); a(f's_and_b32 s{gt}, s{gt}, 7')
                a(f's_sub_u32 s{c}, s{s_g}, s{gt}'); a(f's_and_b32 s{c}, s{c}, 7'); a(f's_sub_u32 s{c}, s{c}, 1')
                a(f's_and_b32 s{s_t}, s{s_g}, 8'); a(f's_add_u32 s{gt}, s{gt}, s{s_t}'); a(f's_lshl_b32 s{gt}, s{gt}, 7')
            a(f's_and_b32 s{s_t+4}, s{s_m}, {xm-1}'); a(f's_lshl_b32 s{s_t+4}, s{s_t+4}, 1'); a(f's_add_u32 s{s_t+4}, s{s_t+4}, s{s_h}')
            cls(sW)
            if first: a(f's_or_b32 s{s_rot}, s{s_m}, 3'); a(f's_mov_b32 s{s_trot}, 0')
            else: a(f's_mov_b32 s{s_rot}, s{s_rot2}'); a(f's_bfe_u32 s{s_trot}, s{gt}, 0x30007')
            a(f's_cmp_ge_u32 s{c}, 3'); a(f's_cselect_b32 s{s_t}, {32*6144 - 3*2048}, 0'); a(f's_add_u32 s{gt}, s{gt}, s{s_t}')
            a(f's_lshl_b32 s{s_t}, s{c}, 11'); a(f's_add_u32 s{gt}, s{gt}, s{s_t}')
            a(f's_mul_i32 s{s_t}, s{s_t+4}, {(16//xm)*6144}'); a(f's_add_u32 s{gt}, s{gt}, s{s_t}')
            a(f's_cmp_lt_u32 s{c}, 6'); a(f's_cselect_b32 s{s_t}, {16//xm}, 0')
            a(f'v_mul_u32_u24 v{vtw}, 6144, v1'); a(f'v_add_u32 v{vtw}, s{gt}, v{vtw}')
            a(f'v_mov_b32 v{t0}, {BIG}'); a(f'v_cmp_gt_u32 vcc, s{s_t}, v1'); a(f'v_cndmask_b32 v{vtw}, v{t0}, v{vtw}, vcc')
            cls(sWO)
            a(f's_lshl_b32 s{s_t}, s{c}, 19'); a(f's_add_u32 s{gt}, s{gt}, s{s_t}')
            a(f's_mul_i32 s{s_t}, s{s_t+4}, {(128//xm)*2048}'); a(f's_add_u32 s{gt}, s{gt}, s{s_t}')
            a(f's_cmp_lt_u32 s{c}, 4'); a(f's_cselect_b32 s{s_t}, {32//xm}, 0')
            a(f'v_lshlrev_b32 v{vto}, 11, v1'); a(f'v_add_u32 v{vto}, s{gt}, v{vto}')
            a(f'v_cmp_gt_u32 vcc, s{s_t}, v1'); a(f'v_cndmask_b32 v{vto}, v{t0}, v{vto}, vcc')
        def touchW(st):
            if not self.touch: return
            if st == 0: a(f's_add_u32 s{s_tw}, s{s_rot}, s{s_trot}')
            else: a(f's_cmp_le_u32 s{s_trot}, {st-1}'); a(f's_addc_u32 s{s_tw}, s{s_rot}, {st-1}')
            a(f's_and_b32 s{s_tw}, s{s_tw}, 15'); a(f's_mul_i32 s{s_tw}, s{s_tw}, {64*6144}')
            a(f'buffer_load_dword v{vd}, v{vtw}, {srd(sW)}, s{s_tw} offen')
        def touchO(k):
            if not self.touch: return
            a(f's_mov_b32 s{s_tw}, {k*(32//xm)*2048}')
            a(f'buffer_load_dword v{vd}, v{vto}, {srd(sWO)}, s{s_tw} offen')
        def phi_load():
            a(f's_mov_b64 s[{sX}:{sX+1}], s[{pPHI}:{pPHI+1}]'); a(f's_mov_b32 s{sX+2}, 65536')
            a.extend(sx(s_t, [(s_g, 4096), (s_h, 2048)])); a(f's_lshl_b32 s{s_t+1}, s{s_h}, 11'); a(f's_add_u32 m0, s{s_t+1}, {P_PHI}')
            for j in range(2): a(f'buffer_load_dwordx4 v{l16}, {srd(sX)}, s{s_t} offen offset:{1024*j} lds')
        self.w_dma_offsets(dw, s_h, t0, t1, t2)
        touch_setup(True)
        phi_load()
        for st in range(1, 3 + self.dist): touchW(st)

        def init_stores():
            for k in range(4): a(f'v_mov_b32 v{D+k}, -1')
            fill = f'buffer_store_dwordx4 {vr(D,4)}, v{l16}, {srd(sWS)}, s{s_t} offen'
            a.extend(sx(s_t, [(s_g, 131072), (s_h, 65536), (s_m, 2048)], WS_KVP)); a(fill + ' sc1'); a(fill + ' offset:1024 sc1')
            a(f's_add_u32 s{s_t}, s{s_t}, 32768'); a(fill + ' sc1'); a(fill + ' offset:1024 sc1')
            a('s_mov_b64 exec, 0xff')
            a.extend(sx(s_t, [(s_g, 8192), (s_h, 4096), (s_m, 128)], WS_KVF)); a(fill + ' sc1'); a(fill + ' offset:2048 sc1')
            a.extend(sx(s_t, [(s_g, 4096), (s_h, 2048), (s_m, 128)], WS_ZP)); a(fill + ' sc1')
            a.extend(sx(s_t, [(s_g, 256), (s_h, 128)], WS_ZF))
            a(f's_cmp_eq_u32 s{s_m}, s{s_g}'); a(f's_cselect_b32 s{s_t}, s{s_t}, {BIG}'); a(fill + ' sc1')
            a('s_mov_b64 exec, -1')
            a.extend(sx(s_t, [(2, 256), (s_h, BIG)]))
            a(f'v_mov_b32 v{t0}, 0')
            a(f'buffer_store_dword v{t0}, v{l4}, {srd(sWS)}, s{s_t} offen sc1')
            a(f'v_lshrrev_b32 v{t1}, 2, v1'); a(f'v_lshlrev_b32 v{t1}, 10, v{t1}'); a(f'v_and_or_b32 v{t1}, v1, 3, v{t1}'); a(f'v_lshlrev_b32 v{t1}, 7, v{t1}')
            a.extend(sx(s_t, [(s_m, 8192), (s_g, 512)], WS_RF)); a(f's_cmp_eq_u32 s{s_h}, 1'); a(f's_cselect_b32 s{s_t}, s{s_t}, {BIG}')
            a('s_mov_b64 exec, 0xfffffff')
            a(f'buffer_store_dword v{t0}, v{t1}, {srd(sWS)}, s{s_t} offen sc1')
            a('s_mov_b64 exec, -1')
            a.extend(sx(s_t, [(s_g, 16384), (s_m, 1024)], WS_CS)); a(f's_cmp_eq_u32 s{s_h}, 1'); a(f's_cselect_b32 s{s_t}, s{s_t}, {BIG}'); a(fill + ' sc1')
        for k in range(4): a(f'v_mov_b32 v{ones+k}, 0x3f803f80')
        def cs_reads(aw=aw):
            for s in range(2):
                for n in range(6):
                    for t in range(2):
                        a(f'ds_read_b64_tr_b16 {vr(F+24*s+4*n+2*t,2)}, v{aw+(n&1)} offset:{(n>>1)*8192+(32*s+4*t)*128}')
            a('s_waitcnt lgkmcnt(0)')
        def cs_publish():
            for s in range(2):
                for n in range(6): a(mf16(D+4*n, ones, F+24*s+4*n, D+4*n if s else None))
            a.extend(sx(s_t, [(s_l, 262144), (s_g, 16384), (s_m, 1024), (s_h, 128)], WS_CS))
            a('s_mov_b64 exec, 0xffff')
            for n in range(6): a(f'buffer_store_dword v{D+4*n}, v{l4}, {srd(sWS)}, s{s_t} offen offset:{(n>>1)*256+(n&1)*64} sc1')
            a('s_mov_b64 exec, -1')
        def chunk(t):
            a(f's_mul_i32 s{s_t}, s{s_m}, {64*6144}'); a(f's_mul_i32 s{s_t+1}, s{s_h}, 12288'); a(f's_add_u32 m0, s{s_t+1}, {L_SPARE + 4096*t}')
            for j in range(4): a(f'buffer_load_dwordx4 v{dw+4*t+j}, {srd(sW)}, s{s_t} offen offset:{1024*j} lds')
        def arrive():
            a(f's_getreg_b32 s{s_t}, hwreg(HW_REG_XCC_ID, 0, 3)'); a(f's_lshl_b32 s{s_t}, s{s_t}, 2'); a(f's_lshl_b32 s{s_t+1}, 1, s{s_t}')
            a.extend(sx(s_t, [(s_m, 16), (s_rot2, 1)]))
            a('s_mov_b64 exec, 1')
            a(f'v_mov_b32 v{t0}, s{s_t+1}')
            a(f'buffer_atomic_add v{t0}, off, {srd(sDBG)}, s{s_t} sc1')
            a('s_mov_b64 exec, -1')
        def init_wait():
            a(f'v_and_b32 v{t2}, 31, v1'); a(f'v_lshlrev_b32 v{t2}, 3, v{t2}')
            self.spin([f'buffer_load_dword v{t0}, v{t2}, {srd(sDBG)}, 0 offen sc1'],
                      [f'v_lshrrev_b32 v{t1}, 4, v{t0}', f'v_and_b32 v{t1}, 0x0f0f0f0f, v{t1}', f'v_and_b32 v{t3}, 0x0f0f0f0f, v{t0}',
                       f'v_sad_u8 v{t1}, v{t1}, 0, 0', f'v_sad_u8 v{t3}, v{t3}, 0, v{t1}', f'v_cmp_gt_u32 vcc, 8, v{t3}'], t3, 3)
            a(f's_lshr_b32 s{s_t}, s{s_rot2}, 3'); a(f's_lshl_b32 s{s_t+1}, s{s_m}, 1'); a(f's_add_u32 s{s_t}, s{s_t}, s{s_t+1}')
            a(f'v_readlane_b32 s{s_fast}, v{t0}, s{s_t}')
            a(f's_and_b32 s{s_fast}, s{s_fast}, 0x88888888'); a(f's_cselect_b32 s{s_fast}, {1 if self.local else 0}, 0')
            a(f'v_mov_b32 v{t3}, s{s_fast}'); a(f'v_mov_b32 v{t2}, {P_MODE}'); a(f'ds_write_b32 v{t2}, v{t3}')
        def gather(R, va, so, ks):
            L = []
            for k in ks: L += [f's_add_u32 s{s_t}, s{so}, {4096*(k//2)}', f'buffer_load_dwordx4 {vr(R+4*k,4)}, v{va}, {srd(sWS)}, s{s_t} offen offset:{2048*(k%2)} sc1']
            return L
        def total(R):
            n = 8
            while n > 1:
                n //= 2
                for k in range(4*n): a(f'v_add_f32 v{R+k}, v{R+k}, v{R+k+4*n}')
            a(sw32(R, R+2)); a(sw32(R+1, R+3)); a(f'v_add_f32 v{R}, v{R}, v{R+2}'); a(f'v_add_f32 v{R+1}, v{R+1}, v{R+3}')
        def stats_finish():
            for k in range(2): a(f'v_mov_b32_dpp v{SA+2+k}, v{SA+k} row_shl:4 row_mask:0xf bank_mask:0xf')
            for k in range(2): a(f'v_mul_f32 v{SA+k}, {f2u(-1/1024)}, v{SA+k}'); a(f'v_mul_f32 v{SA+2+k}, {f2u(1/1024)}, v{SA+2+k}')
            for k in range(2): a(f'v_fma_f32 v{SA+2+k}, -v{SA+k}, v{SA+k}, v{SA+2+k}')
            for k in range(2): a(f'v_max_f32 v{SA+2+k}, 0, v{SA+2+k}')
            for k in range(2): a(f'v_add_f32 v{SA+2+k}, {f2u(1e-5)}, v{SA+2+k}')
            for k in range(2): a(f'v_rsq_f32 v{SA+2+k}, v{SA+2+k}')
            a('s_mov_b32 exec_lo, 0x0f0f0f0f'); a('s_mov_b32 exec_hi, 0x0f0f0f0f')
            a(f'ds_write_b64 v{a_st}, {vr(SA,2)}'); a(f'ds_write_b64 v{a_st}, {vr(SA+2,2)} offset:512')
            a('s_mov_b64 exec, -1')
        def cs_finish():
            total(SC)
            a(f's_mul_i32 s{s_t}, s{s_l}, 768'); a(f'v_add_u32 v{t0}, s{s_t}, v{a_cs}')
            a('s_mov_b32 exec_lo, 0xffffff'); a('s_mov_b32 exec_hi, 0xffffff')
            a(f'ds_write_b64 v{t0}, {vr(SC,2)}')
            a('s_mov_b64 exec, -1')
        l0 = [f's_cmp_eq_u32 s{s_l}, 0']; ln0 = [f's_cmp_lg_u32 s{s_l}, 0']; l01 = [f's_cmp_lt_u32 s{s_l}, 2']
        a(f's_mov_b32 s{s_r}, 0')
        a.label('L_hp_layer')
        a.extend(sx(s_a, [(s_l, 262144), (s_m, 16384), (s_h, 512)], WS_ST))
        a.extend(sx(s_b, [(s_l, 262144), (s_g, 16384), (s_h, 384)], WS_CS))
        self.trickle_setup()
        hi = lambda: self.hprio and a(f's_setprio {self.hprio}')
        lo = lambda: self.hprio and a('s_setprio 0')
        l1 = [f's_cmp_eq_u32 s{s_l}, 1']
        for i in range(17):
            a('s_barrier')
            if i == 0: self.cond(l0, cs_reads)
            if i == 6: self.cond(l1, lambda: cs_reads(aw2))
            if i in (3, 5, 12): a('s_waitcnt vmcnt(0)')
            if i == 5: self.cond(ln0, lambda: self.flag_wait(s_r, vrf, vfl, 8, pre=True, nap=self.nap))
            if i <= 11: hi()
            if i == 9: self.cond(l0, init_wait)
            if i == 4: self.cond(ln0, lambda: a(self.flag_load(s_r, vrf, vfl)))
            if i + 3 + self.dist <= 15: touchW(i + 3 + self.dist)
            if 0 <= i - (1 if self.early else 5) < 4: touchO(i - (1 if self.early else 5))
            if i == 1: self.cond(l0, init_stores)
            if i == 4: self.cond([f's_or_b32 s{s_t}, s{s_l}, s{s_h}', f's_cmp_eq_u32 s{s_t}, 0'], arrive)
            if 2 <= i <= 4: self.cond(l1, lambda: chunk(i - 2))
            if i == 6: self.cond([f's_cmp_eq_u32 s{s_l}, 2'], phi_load)
            if i in (9, 10): a.extend(gather(SA, v_st, s_a, range(4*(i-9), 4*(i-9)+4)))
            if i in (10, 11): self.cond(l01, lambda: a.extend(gather(SC, v_cs, s_b, range(4*(i-10), 4*(i-10)+4))))
            if i <= 11: lo()
            if 1 <= i <= 12: self.trickle(i - 1)
            if i == 7: self.cond(l01, cs_publish)
            if i == 12: self.ll_wait(gather(SA, v_st, s_a, range(8)), list(range(SA, SA+32)), t0, t1, 6, pre=True)
            if i == 13: total(SA)
            if i == 14: stats_finish()
            if i == 14: self.cond(l01, lambda: self.ll_wait(gather(SC, v_cs, s_b, range(8)), list(range(SC, SC+32)), t0, t1, 7, pre=True))
            if i == 15: self.cond(l01, cs_finish); a('s_waitcnt lgkmcnt(0)')
        a.extend(sx(s_t, [(s_l, 8192), (s_m, 256), (s_rot2, 16)])); a(f'buffer_load_dword v{vd}, off, {srd(sWS)}, s{s_t} sc1')
        a(f's_xor_b32 s{s_t}, s{s_t}, 128'); a.extend(sx(s_r, [(s_t, 32), (s_h, 256)], WS_RF))
        a(f's_bitcmp0_b32 s{s_l}, 0')
        a(f's_cselect_b64 s[{sW}:{sW+1}], s[{pBW}:{pBW+1}], s[{pAW}:{pAW+1}]')
        a(f's_cselect_b64 s[{sWO}:{sWO+1}], s[{pBWO}:{pBWO+1}], s[{pAWO}:{pAWO+1}]')
        touch_setup()
        touchW(0); touchW(1); touchW(2)
        a(f's_bitcmp1_b32 s{s_l}, 0'); a('s_cbranch_scc1 L_hp_B')
        self.reduce_job()
        a('s_branch L_hp_join')
        a.label('L_hp_B')
        a('s_barrier')
        a.label('L_hp_join')
        a('s_barrier')
        a(f's_cmp_eq_u32 s{s_l}, 3'); a('s_cbranch_scc1 L_fin')
        self.trickle_rest(1)
        a(f's_add_u32 s{s_r}, s{s_r}, {4096*32}')
        a(f's_add_u32 s{s_l}, s{s_l}, 1')
        a('s_barrier')
        for st in range(3, 3 + self.dist): touchW(st)
        a('s_branch L_hp_layer')

    def compute(self):
        a = self.a
        one, l16, voffR, voffI, a_tok, a_row, a_t32, a_csr, a_csv = 0, 2, 3, 4, 5, 6, 7, 8, 9
        ax, awq = 10, 12
        l4 = 14; vst = 15
        XR = 16
        ACC = 32
        FX = [128, 144]; FW = [160, 184]
        T = 208
        t0, t1, t2, t3 = T, T+1, T+2, T+3
        s_wm, s_wh, s_rslot, s_delta, s_stg, s_ones = 65, 66, 67, 68, 69, 70
        s_o = 71
        s_ob = 75
        s_obase, s_ooff, s_a, s_b, s_c, s_d, s_e, s_fp, s_st, s_fo = range(77, 87)
        a(f'v_lshrrev_b32 v{t0}, 4, v1')
        a(f'v_and_b32 v{t1}, 15, v1')
        a(f'v_and_b32 v{t2}, 1, v{t0}'); a(f'v_lshrrev_b32 v{t3}, 1, v{t0}'); a(f'v_lshl_add_u32 v{t2}, v{t2}, 1, v{t3}')
        a(f'v_lshlrev_b32 v{voffR}, 11, v{t1}'); a(f'v_lshl_add_u32 v{voffR}, v{t2}, 4, v{voffR}')
        a.extend(sx(s_t, [(s_m, 1 << 18), (s_wave, 1 << 16), (s_g, 128)])); a(f's_add_u32 s{s_t+1}, s{s_t}, 32768')
        self.pointers()
        for tb in range(2):
            for e in range(2): a(f'buffer_load_dwordx4 {vr(XR+8*tb+4*e,4)}, v{voffR}, {srd(sX)}, s{s_t+tb} offen offset:{64*e}')
        a(f's_lshr_b32 s{s_wm}, s{s_wave}, 1'); a(f's_and_b32 s{s_wh}, s{s_wave}, 1')
        a(f'v_mov_b32 v{one}, 1')
        a(f'v_lshl_add_u32 v{voffI}, v{t2}, 4, v{t1}'); a(f'v_lshlrev_b32 v{voffI}, 4, v{voffI}'); a(f'v_mov_b32 v{vst}, v{voffI}')
        a(f'v_lshlrev_b32 v{l16}, 4, v1'); a(f'v_lshlrev_b32 v{l4}, 2, v1')
        a.extend(sx(s_t, [(s_wm, 256)], P_NM))
        a(f'v_lshl_add_u32 v{a_tok}, v{t1}, 2, s{s_t}')
        a(f'v_lshl_add_u32 v{a_row}, v{t0}, 4, s{s_t}')
        a(f'v_and_b32 v{t3}, 31, v1'); a(f'v_lshl_add_u32 v{a_t32}, v{t3}, 2, s{s_t}')
        a.extend(sx(s_t, [(s_wh, 128)], P_CS))
        a(f'v_lshl_add_u32 v{a_csr}, v{t0}, 4, s{s_t}')
        a(f'v_lshl_add_u32 v{a_csv}, v{t1}, 2, s{s_t}')
        a(f's_mov_b32 s{s_stg}, {STG}'); a(f's_mov_b32 s{s_ones}, 0x3f803f80')
        a(f'v_lshrrev_b32 v{t2}, 1, v{t1}'); a(f'v_xor_b32 v{t2}, v{t2}, v{t0}')
        a.extend(sx(s_t, [(s_wm, 8192)], XOFF)); a(f'v_lshl_add_u32 v{t1}, v{t1}, 7, s{s_t}')
        for s in range(2):
            a(f'v_xor_b32 v{t3}, {4*s}, v{t2}'); a(f'v_lshl_add_u32 v{ax+s}, v{t3}, 4, v{t1}')
        a.extend(sx(s_st, [(s_m, 16384), (s_g, 1024), (s_wave, 256)], WS_ST))

        q = 216
        def stats():
            S = []
            for k in range(8):
                for tb in range(2):
                    r = XR + 8*tb + k
                    S += [f'v_dot2_f32_bf16 v{q+2*tb}, s{s_ones}, v{r}, ' + (f'v{q+2*tb}' if k else '0'),
                          f'v_dot2_f32_bf16 v{q+2*tb+1}, v{r}, v{r}, ' + (f'v{q+2*tb+1}' if k else '0')]
            return S + [sw32(q, q+2), sw32(q+1, q+3), pk('add', q, q, q+2), sw16(q, q+1), f'v_add_f32 v{q}, v{q}, v{q+1}']
        st_store = f'buffer_store_dword v{q}, v{l4}, {srd(sWS)}, s{s_st} offen sc1'
        def acc(b, n): return ACC + 4*(6*b + n)
        A2 = 208
        def reads(s, st, slot=0):
            x, w, o = (ax, awq, STG*slot) if slot < 2 else (A2, A2+2, 0)
            X = [f'ds_read_b128 {vr(FX[st]+4*b,4)}, v{x+s} offset:{o+2048*b}' for b in range(4)]
            W = [[f'ds_read_b64_tr_b16 {vr(FW[st]+4*n+2*t,2)}, v{w+(n&1)} offset:{o+(n>>1)*8192+(32*s+4*t)*128}' for t in range(2)] for n in range(6)]
            L = [X[0]] + W[0] + X[1:]
            for n in range(1, 6): L += W[n]
            return L
        def mfma(st, b, n, zero=False):
            C = None if zero else acc(b, n)
            return mf16(acc(b, n), FW[st]+4*n, FX[st]+4*b, C) if n < 4 else mf16(acc(b, n), FX[st]+4*b, FW[st]+4*n, C)
        def mfmas(st, zero=False):
            return [mfma(st, b, n, zero) for n in range(6) for b in (range(4) if not (self.snake and n % 2) else range(3, -1, -1))]
        env = dict(locals())
        a.extend(self.w_frag_addr(awq, s_wh, 0, t0, t1, t2))
        self.epiA(env, 'v')
        a('s_waitcnt vmcnt(0)')
        a.extend(stats()); a(st_store)
        a.label('L_first')
        a('s_barrier')
        self.stamp(12)
        self.aw(reads(0, 0) + interleave(mfmas(0, True), reads(1, 1), per=[0]*4 + [1]*20))
        a('s_waitcnt vmcnt(0) lgkmcnt(0)')
        self.stamp(11)
        self.cond([f's_cmp_lg_u32 s{s_l}, 0'], lambda: self.flag_set(s_fo, one))
        S = [f'v_add_u32 v{A2+k}, {2*STG}, v{ax+k}' for k in range(4)] + [f's_mov_b32 s{s_i}, 0']
        assert awq == ax + 2
        S += sx(s_t, [(s_l, 1 << 22), (s_m, 1 << 18)], WS_OI)
        S += sx(s_obase, [(s_wave, 1 << 16), (s_t, 1)]) + [f's_lshl_b32 s{s_ooff}, s{s_rot2}, 11']
        S += [f's_add_u32 s{s_ob}, s{s_obase}, s{s_ooff}', f's_add_u32 s{s_ob+1}, s{s_ob}, 32768']
        S += sx(s_a, [(s_wm, 1 << 17), (s_g, 2048), (s_wh, 1024), (s_t, 1)])
        S += sx(s_o, [(s_g, 16384), (s_wave, 4096), (s_t, 1)], WS_XI - WS_OI) + [f's_add_u32 s{s_o+k}, s{s_o}, {1024*k}' for k in range(1, 4)]
        S += sx(s_fp, [(s_l, 8192), (s_m, 256)]) + sx(s_fo, [(s_g, 16), (s_wave, 4), (s_fp, 1)]) + sx(s_fo+1, [(s_fo, 32)], WS_RF)
        S += sx(s_t, [(s_wm, 8), (s_rot2, 16)]) + [f's_add_u32 s{s_fp}, s{s_fp}, s{s_t}']
        a.extend(interleave(mfmas(1), S, per=[2]*24))
        a(f's_bitcmp1_b32 s{s_l}, 0'); a('s_cbranch_scc1 L_preB')
        self.epiA(env, 's')
        a(f's_cmp_eq_u32 s{s_l}, 0'); a('s_cbranch_scc1 L_go')
        a('s_branch L_pre_done')
        a.label('L_preB')
        self.epiB(env, 's')
        def last():
            a(f's_mov_b64 s[{sOUT}:{sOUT+1}], s[{pOUT}:{pOUT+1}]'); a(f's_mov_b32 s{sOUT+2}, {2048*1024*2}')
            a.extend(sx(s_o, [(s_m, 1 << 18), (s_wave, 1 << 16), (s_g, 128)]))
            a(f's_add_u32 s{s_o+1}, s{s_o}, 64'); a(f's_add_u32 s{s_o+2}, s{s_o}, 32768'); a(f's_add_u32 s{s_o+3}, s{s_o}, {32768+64}')
            a(f'v_mov_b32 v{vst}, v{voffR}')
        self.cond([f's_cmp_eq_u32 s{s_l}, 3'], last)
        a.label('L_pre_done')
        a(f's_add_u32 s{s_st}, s{s_st}, 262144')
        a.extend(stats()); a(st_store)
        a.label('L_go')
        a('s_barrier')
        self.stamp(1)
        a.extend(reads(0, 0, 1))
        a('s_branch L_q1')
        nb = self.bpos + 1
        def half0(slot):
            if self.prof == 5:
                a('s_memtime s[92:93]'); a(f's_lshl_b32 m0, s{s_l}, 4'); a(f's_add_u32 m0, m0, s{s_i}'); a(f's_add_u32 m0, m0, {(slot+2)%3+1}')
            a('s_waitcnt lgkmcnt(0)')
            F = reads(1, 1, slot)
            if self.prof == 5: F = ['v_writelane_b32 v255, s92, m0'] + F
            if slot == 0: F += [f's_add_u32 s{s_i}, s{s_i}, 3', f's_cmp_lt_u32 s{s_i}, 15']
            a.extend(interleave(mfmas(0), F, per=[0]*self.r0 + [1]*24))
            a('s_waitcnt lgkmcnt(0)')
            a.extend(mfmas(1)[:nb]); a('s_barrier')
        def half1(slot):
            R = reads(0, 0, (slot+1) % 3)
            a(R[0]); a.extend(interleave(mfmas(1)[nb:], R[1:], per=[1]*24))
        a('.p2align 6')
        a.label('L_q')
        half1(0)
        a.label('L_q1')
        half0(1); half1(1); half0(2); half1(2); half0(0)
        a('s_cbranch_scc1 L_q')
        a.label('L_tail')
        self.stamp(2)
        a(f's_bitcmp1_b32 s{s_l}, 0'); a('s_cbranch_scc1 L_epiB')
        self.epiA(env, False)
        a('s_branch L_ophase')
        a.label('L_epiB')
        self.epiB(env, False)
        a.label('L_ophase')
        a('s_barrier')
        PD = self.pd; NR = PD + 1
        OA, OW, awo, vf, RING = 128, [160, 176], 192, 196, 32
        assert RING + 8*NR <= 128
        u0, u1, u2, vrf, vot, vxw = 197, 198, 199, 204, 205, 206
        a(f'v_mov_b32 v{u0}, {P_MODE}'); a(f'ds_read_b32 v{u0}, v{u0}')
        def oacc(tb, nb): return OA + 16*tb + 4*nb
        for k in range(4):
            a(sw16(XR+4*k, XR+4*k+2)); a(sw16(XR+4*k+1, XR+4*k+3))
        a('s_waitcnt lgkmcnt(0)'); a(f'v_readfirstlane_b32 s{s_fast}, v{u0}')
        a(f's_xor_b32 s{s_t}, s{s_fp}, 128'); a.extend(sx(s_e, [(s_t, 32)], WS_RF))
        a.extend(self.flag_addr(vrf, u1, None, remote=True))
        a.extend(self.flag_addr(vf, u1, s_fp))
        for r in range(16):
            a(f'v_lshlrev_b32 v{OA+2*r}, 16, v{XR+r}'); a(f'v_and_b32 v{OA+2*r+1}, 0xffff0000, v{XR+r}')
        a.extend(self.w_frag_addr(awo, None, L_WO, u0, u1, u2, nb_list=(0, 1, 2, 3)))
        a(f's_cmp_eq_u32 s{s_wh}, 0'); a('s_cselect_b64 vcc, -1, 0')
        for k in range(2): a(f'v_cndmask_b32 v{awq+k}, v{awo+2+k}, v{awo+k}, vcc')
        for k in range(2): a(f'v_subrev_u32 v{awq+k}, {L_WO}, v{awq+k}')
        a.extend(sx(s_t, [(s_wm, 8192)], XOFF)); a(f'v_add_u32 v{ax}, s{s_t}, v{l16}'); a(f'v_add_u32 v{ax+1}, 1024, v{ax}')
        a.extend(sx(s_t, [(s_wave, 4096)], XOFF)); a(f'v_add_u32 v{vxw}, s{s_t}, v{voffI}')
        def oreads(h):
            return [f'ds_read_b64_tr_b16 {vr(OW[h&1]+4*nb+2*t,2)}, v{awo+nb} offset:{(h&15)*4096+512*t}' for nb in range(4) for t in range(2)]
        a.extend(oreads(0))
        a('s_waitcnt vmcnt(0) lgkmcnt(0)')
        self.stamp(8)
        self.flag_set(s_fo, one, 1)
        a(self.flag_load(s_fp, vf, u0))
        self.flag_set(s_fo, one, 2)
        a(f's_bitcmp1_b32 s{s_l}, 0'); a('s_cbranch_scc1 L_nextA')
        self.epiB(env, 'v')
        a('s_branch L_next_done')
        a.label('L_nextA')
        self.cond([f's_cmp_lg_u32 s{s_l}, 3'], lambda: self.epiA(env, 'v'))
        a.label('L_next_done')
        a('s_waitcnt vmcnt(1)')
        self.flag_wait(s_fp, vf, u0, 4, pre=True)
        self.stamp(9)
        def oload(h, tb):
            L = [f'buffer_load_dwordx4 {vr(RING+8*(h%NR)+4*tb,4)}, v{l16}, {srd(sWS)}, s{s_ob+tb} offen offset:{1024*(h&3)} sc1']
            if h & 3 == 3 and h < 31:
                if tb == 0: L += [f's_add_u32 s{s_ooff}, s{s_ooff}, 4096', f's_and_b32 s{s_ooff}, s{s_ooff}, 0x7fff', f's_add_u32 s{s_ob}, s{s_obase}, s{s_ooff}']
                else: L += [f's_add_u32 s{s_ob+1}, s{s_ob}, 32768']
            return L
        S = []
        for h in range(PD): S += oload(h, 0) + oload(h, 1)
        for h in range(32):
            R = oreads(h+1) if h < 31 else []
            if h == 15: S += [f'v_add_u32 v{awo+nb}, 0x10000, v{awo+nb}' for nb in range(4)]
            k = 0
            for nb in range(4):
                for tb in range(2):
                    S.append(mf16(oacc(tb, nb), OW[h&1]+4*nb, RING+8*(h%NR)+4*tb, oacc(tb, nb)))
                    if R: S.append(R[k])
                    for j in range(2):
                        if k == self.opos[j] and h + PD < 32: S += oload(h+PD, j)
                    k += 1
            if h == self.hq: S.append(self.flag_load(s_e, vrf, u1))
            if h == (self.hc or 15 - PD): S += [f'v_cmp_eq_u32 vcc, 0, v{u1}', 's_nop 1']
            if h == self.bm: S.append('s_barrier')
        S = autowait(S); cut = S.index('s_nop 1') + 1
        a.extend(S[:cut])
        self.cond(['s_cmp_lg_u64 vcc, 0'], lambda: self.flag_wait(s_e, vrf, u1, 9, nap=self.nap))
        a.extend(S[cut:])
        self.stamp(10)
        S = []
        for k4 in (0, 2, 1, 3):
            for k in range(4): S.append(cvt(XR+4*k4+k, OA+8*k4+2*k, OA+8*k4+2*k+1))
            S += [sw16(XR+4*k4, XR+4*k4+2), sw16(XR+4*k4+1, XR+4*k4+3),
                  f'buffer_store_dwordx4 {vr(XR+4*k4,4)}, v{vst}, {srd(sOUT)}, s{s_o+k4} offen sc1',
                  f'ds_write_b128 v{vxw}, {vr(XR+4*k4,4)} offset:{1024*k4}']
        self.sw(S, crit=lambda t: t.startswith('buffer'))
        a(f's_cmp_eq_u32 s{s_l}, 3'); a('s_cbranch_scc1 L_fin')
        a(f's_add_u32 s{s_fo}, s{s_fo}, 4096'); a(f's_add_u32 s{s_fo+1}, s{s_fo+1}, {4096*32}')
        a(f's_add_u32 s{s_l}, s{s_l}, 1')
        a('s_waitcnt lgkmcnt(0)')
        a('s_branch L_first')

    def epiA(self, E, pre):
        a = self.a
        acc = E['acc']; a_tok, a_row, a_t32, a_csr, a_csv, l16, l4 = (E[k] for k in ('a_tok', 'a_row', 'a_t32', 'a_csr', 'a_csv', 'l16', 'l4'))
        s_wm, s_wh, s_a, s_b, s_c, s_d, s_e = (E[k] for k in ('s_wm', 's_wh', 's_a', 's_b', 's_c', 's_d', 's_e'))
        PK = [128, 144]; EP, KV0, ZA, NR = 160, 176, 192, 208
        wphi, nml, c32, csv = 224, 232, 236, 238
        SEL = [240, 244]
        a_phi, a_w, a_r0, a_r1, a_z, x_w, x_r = range(248, 255)
        csk = EP; csq = NR
        nmr = [KV0, EP+8, NR, NR+8]
        if pre == 'v':
            u0, u1, u2, u3, u4 = range(208, 213)
            S = [f'v_lshrrev_b32 v{u0}, 5, v1', f'v_bfe_u32 v{u1}, v1, 2, 2', f'v_lshl_add_u32 v{u1}, v{u0}, 3, v{u1}',
                 f'v_bfe_u32 v{u2}, v1, 4, 1', f'v_and_b32 v{u3}, 3, v1', f'v_lshlrev_b32 v{u4}, 3, v{u3}', f'v_lshl_add_u32 v{u2}, v{u2}, 5, v{u4}']
            S += sx(s_t, [(s_wh, 2048)], P_PHI) + [f'v_lshl_add_u32 v{u4}, v{u1}, 6, v{u2}', f'v_add_u32 v{a_phi}, s{s_t}, v{u4}']
            S += [f's_mul_i32 s{s_t+2}, s{s_wave}, {SCR}',
                  f'v_mul_u32_u24 v{u1}, 136, v{u1}', f'v_add3_u32 v{u1}, v{u1}, v{u2}, s{s_t+2}',
                  f's_lshl_b32 s{s_t+1}, s{s_wm}, 6', f'v_add_u32 v{a_r0}, s{s_t+1}, v{u1}',
                  f's_xor_b32 s{s_t+3}, s{s_t+1}, 64', f'v_add_u32 v{a_r1}, s{s_t+3}, v{u1}',
                  f'v_and_b32 v{u4}, 31, v1', f'v_mul_u32_u24 v{u4}, 136, v{u4}', f'v_lshl_add_u32 v{u4}, v{u0}, 3, v{u4}', f'v_add_u32 v{a_w}, s{s_t+2}, v{u4}',
                  f'v_add_u32 v{x_w}, s{s_t+2}, v{l16}', f's_xor_b32 s{s_t}, s{s_wave}, 2', f's_mul_i32 s{s_t}, s{s_t}, {SCR}', f'v_add_u32 v{x_r}, s{s_t}, v{l16}']
            S += [f'v_mov_b32 v{u4}, 0x3f803f80']
            for k in range(2):
                S += [f'v_cmp_eq_u32 vcc, {k}, v{u3}', f'v_cndmask_b32 v{SEL[k]}, 0, v{u4}, vcc', f'v_mov_b32 v{SEL[k]+1}, v{SEL[k]}',
                      f'v_mov_b64 {vr(SEL[k]+2,2)}, {vr(SEL[k],2)}']
            S += [f'v_and_b32 v{u0}, 18, v1', f'v_lshlrev_b32 v{u0}, 1, v{u0}', f'v_and_or_b32 v{u0}, v1, 8, v{u0}', f'v_and_b32 v{u1}, 4, v1',
                  f'v_lshl_or_b32 v{u0}, v{u1}, 2, v{u0}', f'v_and_b32 v{u1}, 33, v1', f'v_lshl_or_b32 v{a_z}, v{u1}, 25, v{u0}',
                  f'v_lshl_or_b32 v{a_z}, v{u1}, 30, v{a_z}']
            a.extend(S)
            return
        if pre == 's':
            S = sx(s_t, [(s_l, 16), (s_g, 2), (s_wh, 1)])
            S += sx(s_d, [(s_t, 65536), (s_wm, 32768), (s_m, 2048)], WS_KVP) + sx(s_e, [(s_t, 2048), (s_m, 128), (s_wm, 64)], WS_ZP)
            S += sx(s_b, [(s_t, 128)], WS_ZF) + sx(s_c, [(s_t, 4096)], WS_KVF)
            a.extend(S)
            return
        S = []
        for b in range(4): S.append(f'ds_read_b32 v{nml+b}, v{a_tok} offset:{64*b}')
        for nb in range(2): S.append(f'ds_read_b128 {vr(csk+4*nb,4)}, v{a_csr} offset:{256+64*nb}')
        for u in range(2):
            for t in range(2): S.append(f'ds_read_b64_tr_b16 {vr(wphi+4*u+2*t,2)}, v{a_phi} offset:{(16*t+4*u)*64}')
        for nb in range(2): S.append(f'ds_read_b32 v{csv+nb}, v{a_csv} offset:{512+64*nb}')
        for b in range(4):
            S.append(f'ds_read_b128 {vr(nmr[b],4)}, v{a_row} offset:{64*b}')
            S.append(f'ds_read_b128 {vr(nmr[b]+4,4)}, v{a_row} offset:{512+64*b}')
            if b == 0:
                for Tt in range(2): S.append(f'ds_read_b32 v{c32+Tt}, v{a_t32} offset:{512+128*Tt}')
        def qk_prep(n0, cs):
            L = []
            for b in range(4):
                for k in range(4): L.append(pk('fma', acc(b, n0)+2*k, cs+2*k, ('b', nml+b), acc(b, n0)+2*k))
                for k in range(4): L.append(cvt(acc(b, n0)+k, acc(b, n0)+2*k, acc(b, n0)+2*k+1))
            for Tt in range(2):
                for k in range(4): L.append(sw16(acc(2*Tt, n0)+k, acc(2*Tt+1, n0)+k))
                L += [mf32(PK[Tt], wphi, acc(2*Tt, n0)), mf32(PK[Tt], wphi+4, acc(2*Tt+1, n0), PK[Tt])]
            return L
        def vprep(b):
            r = acc(b, 4); P, C = [], []
            for nb in range(2):
                for p in range(2): P.append(pk('fma', r+4*nb+2*p, nmr[b]+2*p, ('b', csv+nb), r+4*nb+2*p))
            for nb in range(2):
                for p in range(2): P.append(pk('mul', r+4*nb+2*p, r+4*nb+2*p, nmr[b]+4+2*p))
            for k in range(4): C.append(cvt(r+k, r+2*k, r+2*k+1))
            return P, C, [sw16(r, r+2), sw16(r+1, r+3)]
        def softmax(Tt):
            x = PK[Tt]; c = c32 + Tt
            ta, tb = ((acc(2, 3), acc(3, 3)), (acc(2, 2), acc(3, 2)))[Tt]
            mx, mn, bp, bm = ta, ta+1, tb, tb+1
            L = [f'v_max3_f32 v{mx}, v{x}, v{x+1}, v{x+2}', f'v_max3_f32 v{mn}, -v{x}, -v{x+1}, -v{x+2}']
            for k in range(3, 15, 2):
                L += [f'v_max3_f32 v{mx}, v{mx}, v{x+k}, v{x+k+1}', f'v_max3_f32 v{mn}, v{mn}, -v{x+k}, -v{x+k+1}']
            L += [f'v_max_f32 v{mx}, v{mx}, v{x+15}', f'v_max_f32 v{mn}, v{mn}, -v{x+15}']
            L += [sw32(mx, mn), f'v_max_f32 v{mx}, v{mx}, v{mn}', f'v_mul_f32 v{bm}, -v{mx}, v{c}', f'v_mov_b32 v{bp}, v{bm}', sw32(bp, bm)]
            parts = [L]; L = []
            for k in range(0, 16, 2): L.append(pk('fma', EP+k, x+k, ('b', c), ('b', bp)))
            for k in range(0, 16, 2): L.append(pk('fma', x+k, x+k, ('b', c), ('b', bm), neg=[1, 0, 0]))
            parts.append(L); L = []
            for k in range(16): L.append(f'v_exp_f32 v{EP+k}, v{EP+k}')
            for k in range(16): L.append(f'v_exp_f32 v{x+k}, v{x+k}')
            parts.append(L); L = []
            sp, sm = ta, ta+2
            r1, r2 = tb+2, tb+3
            L += [pk('add', sp, EP, EP+2), pk('add', sm, x, x+2)]
            for k in range(4, 16, 2): L += [pk('add', sp, sp, EP+k), pk('add', sm, sm, x+k)]
            L += [f'v_add_f32 v{sp}, v{sp}, v{sp+1}', f'v_add_f32 v{sm}, v{sm}, v{sm+1}', sw32(sp, sm), f'v_add_f32 v{sp}, v{sp}, v{sm}',
                  f'v_rcp_f32 v{r2}, v{sp}', f'v_mov_b32 v{r1}, v{r2}', sw32(r1, r2)]
            for k in range(0, 16, 2): L.append(pk('mul', x+k, x+k, ('b', r2)))
            for k in range(8): L.append(cvt(x+k, x+2*k, x+2*k+1))
            for k in range(0, 16, 2): L.append(pk('mul', EP+k, EP+k, ('b', r1)))
            for k in range(8): L.append(cvt(x+8+k, EP+2*k, EP+2*k+1))
            return parts + [L]
        FR = [[acc(0, 2), acc(0, 3)], [acc(1, 2), acc(1, 3)]]
        def to_lds(x):
            return [f'ds_write_b64 v{a_w}, {vr(x+8*(1-sg)+2*j,2)} offset:{64*sg+16*j}' for sg in (1, 0) for j in range(4)]
        def frags():
            return [f'ds_read_b64_tr_b16 {vr(FR[k][u]+2*tt,2)}, v{(a_r0, a_r1)[k]} offset:{(16*u+4*tt)*136}' for k in (1, 0) for u in range(2) for tt in range(2)]
        KV1 = PK[0]
        def kvm(Tt):
            L = []
            for k, K in ((1, KV1), (0, KV0)):
                for u in range(2): L.append(mf32(K, FR[k][u], acc(2*Tt+u, 4), None if (Tt == 0 and u == 0) else K))
                for u in range(2): L.append(mf32(ZA, SEL[k], FR[k][u], None if (Tt == 0 and u == 0 and k == 1) else ZA))
            return L
        sc = sched if self.sch else (lambda L: L)
        K = qk_prep(2, csk); isM = lambda t: t.startswith('v_mfma')
        VP_ = [vprep(b) for b in range(4)]
        sm0, sm1 = softmax(0), softmax(1)
        mfma = E['mfma']
        TM = [mfma(1, b, n) for b in range(4) for n in (2, 3)] + [mfma(1, b, n) for b in range(4) for n in (4, 5)] + [mfma(1, b, 1) for b in range(4)] + [mfma(1, b, 0) for b in range(self.bpos+1, 4)]
        K01 = []
        for b in range(2):
            K01 += [f'v_fmac_f32 v{acc(b,2)+k}, v{csk+k}, v{nml+b}' for k in range(8)] + K[8*b+4:8*b+8]
        S = interleave(TM, S + K01, per=[2]*24)
        S += sc([t for t in K[16:] if not isM(t)] + [f'v_mul_f32 v{c32+Tt}, {f2u(LOG2E)}, v{c32+Tt}' for Tt in range(2)] + VP_[0][0] + VP_[1][0])
        def cutA(n, k):
            nonlocal S
            if self.fine == n: self.aw(S + ['s_waitcnt lgkmcnt(0)']); S = []; self.stamp(k)
        cutA(1, 12)
        S += sc([t for t in K if isM(t)] + VP_[0][1] + VP_[1][1] + VP_[0][2] + VP_[1][2] + sm0[0])
        cutA(1, 13)
        S += sc(sm0[1] + sm0[2] + sm1[0] + sm0[3] + to_lds(PK[0]) + frags())
        cutA(1, 14)
        S += sm1[1] + interleave(kvm(0), sm1[2][2:], per=[4]*7 + [2]) + sm1[2][:2]
        cutA(2, 12)
        S += sc(sm1[3] + to_lds(PK[1]) + frags() + sum((VP_[b][k] for k in range(3) for b in (2, 3)), []), lambda t: t.startswith('ds_read'))
        cutA(2, 13)
        M = kvm(1)
        X = [f'ds_write_b128 v{x_w}, {vr(KV1+4*k,4)} offset:{1024*k}' for k in range(4)]
        S += M[0:5] + X[0:2] + M[5:6] + X[2:4] + [f'ds_write_b32 v{x_w}, v{ZA+1} offset:4096'] + M[6:8]
        cutA(2, 14)
        self.aw(S); S = []
        S += ['s_waitcnt lgkmcnt(0)', 's_barrier']
        for k in range(4): S.append(f'ds_read_b128 {vr(EP+4*k,4)}, v{x_r} offset:{1024*k}')
        S.append(f'ds_read_b32 v{csv}, v{x_r} offset:4096')
        for u in range(2):
            for k in range(4): S.append(pk('add', KV0+8*u+2*k, KV0+8*u+2*k, EP+8*u+2*k))
            for k in range(4): S.append(cvt(KV0+8*u+k, KV0+8*u+2*k, KV0+8*u+2*k+1))
            S.append(f'buffer_store_dwordx4 {vr(KV0+8*u,4)}, v{l16}, {srd(sWS)}, s{s_d} offen offset:{1024*u} sc1')
        S += [f'v_add_f32 v{ZA}, v{ZA}, v{csv}', f'v_mov_b32_dpp v{ZA+3}, v{ZA} quad_perm:[1,0,3,2] row_mask:0xf bank_mask:0xf', cvt(ZA, ZA, ZA+3),
              f'buffer_store_dword v{ZA}, v{a_z}, {srd(sWS)}, s{s_e} offen sc1']
        self.sw(S, name='A k-part'); S = []
        a('s_barrier')
        self.stamp(3)
        u3, u4 = ZA + 4, ZA + 5
        for nb in range(2): S.append(f'ds_read_b128 {vr(csq+4*nb,4)}, v{a_csr} offset:{64*nb}')
        S += qk_prep(0, csq) + sum(softmax(0) + softmax(1), [])
        S += [f'v_lshrrev_b32 v{u3}, 5, v1', f'v_and_b32 v{u4}, 1, v1', f'v_lshlrev_b32 v{u4}, 6, v{u4}', f'v_lshl_add_u32 v{a_z}, v{u3}, 4, v{u4}',
              f'v_bfe_u32 v{u4}, v1, 4, 1', f'v_lshlrev_b32 v{u4}, 15, v{u4}', f'v_lshl_add_u32 v{u4}, v{u3}, 8, v{u4}',
              f'v_and_b32 v{u3}, 15, v1', f'v_lshl_add_u32 v{a_w}, v{u3}, 4, v{u4}', f's_add_u32 s{s_d}, s{s_a}, 65536']
        self.sw(S, name='A q-part'); S = []
        self.stamp(4)
        a('s_barrier')
        self.stamp(7)
        KF = KV0; ZF = EP
        self.ll_wait([f'buffer_load_dwordx4 {vr(ZF+4*u,4)}, v{a_z}, {srd(sWS)}, s{s_b} offen offset:{32*u} sc1' for u in range(2)] +
                     [f'buffer_load_dwordx4 {vr(KF+4*k,4)}, v{l16}, {srd(sWS)}, s{s_c} offen offset:{1024*k} sc1' for k in range(4)],
                     list(range(ZF, ZF+8)) + list(range(KF, KF+16)), u3, u4, 5)
        self.stamp(5)
        ACC = E['ACC']
        for Tt in range(2):
            N, DP, DM = ACC + 48*Tt, ACC + 48*Tt + 16, ACC + 48*Tt + 32
            x = PK[Tt]
            S += [mf32(DP, ZF, x+8), mf32(DP, ZF+4, x+12, DP), mf32(DM, ZF, x), mf32(DM, ZF+4, x+4, DM),
                  mf32(N, KF, x+8), mf32(N, KF+4, x+12, N), mf32(N, KF+8, x, N), mf32(N, KF+12, x+4, N)]
            S += [f'v_add_f32 v{DP}, v{DP}, v{DM+1}', f'v_add_f32 v{DP}, {f2u(1e-6)}, v{DP}', f'v_rcp_f32 v{DP}, v{DP}']
            for p in range(2):
                for jj in range(2):
                    j = p + 2*jj
                    for k in range(2):
                        r = N + 4*j + 2*k
                        if Tt == 0: S += [f'v_mul_f32 v{r}, v{DP}, v{r}', f'v_mul_f32 v{r+1}, v{DP}, v{r+1}']
                        else: S.append(pk('mul', r, r, ('b', DP)))
                        S.append(cvt(DM+4+4*p+2*jj+k, r, r+1))
                S.append(f'buffer_store_dwordx4 {vr(DM+4+4*p,4)}, v{a_w}, {srd(sWS)}, s{(s_a, s_d)[Tt]} offen offset:{512*p} sc1')
        self.sw(S, name='A finish')
        self.stamp(6)

    def epiB(self, E, pre):
        a = self.a
        acc = E['acc']; a_tok, a_row, a_csr, a_csv, l16 = (E[k] for k in ('a_tok', 'a_row', 'a_csr', 'a_csv', 'l16'))
        s_wm, s_wh, s_a, s_b, s_c, s_d, s_e = (E[k] for k in ('s_wm', 's_wh', 's_a', 's_b', 's_c', 's_d', 's_e'))
        BI, BI0, MK, a_h = 236, 244, 248, 252
        if pre == 'v':
            t1, t2, t3 = 208, 209, 210
            S = [f'v_and_b32 v{t1}, 15, v1', f'v_lshrrev_b32 v{t2}, 4, v1', f'v_lshlrev_b32 v{t2}, 2, v{t2}', f'v_sub_u32 v{t1}, v{t1}, v{t2}',
                 f'v_mov_b32 v{t3}, {f2u(-1e30)}']
            for blk in range(2):
                for i in range(4):
                    S += [f'v_add_u32 v{t2}, {(16 if blk == 0 else 0) - i}, v{t1}', f'v_and_b32 v{t2}, -15, v{t2}', f'v_cmp_eq_u32 vcc, 0, v{t2}',
                          f'v_cndmask_b32 v{BI+4*blk+i}, v{t3}, 0, vcc']
                    if i % 2 == 0: S += [f'v_cndmask_b32 v{MK+2*blk+i//2}, 0, -1, vcc', f'v_lshrrev_b32 v{MK+2*blk+i//2}, 16, v{MK+2*blk+i//2}']
                    else: S += [f'v_cndmask_b32 v{t2}, 0, -1, vcc', f'v_lshl_or_b32 v{MK+2*blk+i//2}, v{t2}, 16, v{MK+2*blk+i//2}']
            S += [f's_or_b32 s{s_t}, s{s_m}, s{s_wm}', 's_cselect_b64 vcc, -1, 0']
            for i in range(4): S.append(f'v_cndmask_b32 v{BI0+i}, v{t3}, v{BI+i}, vcc')
            S += sx(s_t, [(s_wh, 2048)], P_PHI) + [f'v_add_u32 v{a_h}, s{s_t}, v{l16}']
            S += [f's_add_u32 s{s_t+1}, s{s_t}, 1024', f's_cmp_eq_u32 s{s_wm}, 0', f's_cselect_b32 s{s_t}, s{s_t}, {L_P + 7168}', f's_cselect_b32 s{s_t+1}, s{s_t+1}, {L_P + 7168}',
                  f'v_add_u32 v{a_h+1}, s{s_t}, v{l16}', f'v_add_u32 v{a_h+2}, s{s_t+1}, v{l16}']
            a.extend(S)
            return
        if pre == 's':
            S = sx(s_b, [(s_l, 1 << 19), (s_m, 1 << 16), (s_g, 4096), (s_wh, 2048)], WS_HALO - (1 << 19))
            S += [f's_add_u32 s{s_c}, s{s_b}, 65536', f's_cmp_eq_u32 s{s_m}, 15', f's_cselect_b32 s{s_c}, {BIG}, s{s_c}',
                  f's_cmp_eq_u32 s{s_wm}, 0', f's_cselect_b32 s{s_c}, {BIG}, s{s_c}', f's_cselect_b32 s{s_b}, s{s_b}, {BIG}',
                  f's_cmp_eq_u32 s{s_m}, 0', f's_cselect_b32 s{s_b}, {BIG}, s{s_b}', f's_add_u32 s{s_d}, s{s_a}, 65536']
            a.extend(S)
            return
        nr = [160, 168, 176, 208]
        nml, rsl, csk, csv, csq, HB = 216, 220, 224, 232, 128, 136
        VP = [184, 196]
        U, M, t1, t2 = 144, 152, 156, 157
        S = []
        for b in (3, 0, 1, 2):
            S += [f'ds_read_b32 v{nml+b}, v{a_tok} offset:{64*b}', f'ds_read_b32 v{rsl+b}, v{a_tok} offset:{512+64*b}']
            if b == 3:
                for nb in range(2): S.append(f'ds_read_b128 {vr(csk+4*nb,4)}, v{a_csr} offset:{768+256+64*nb}')
                for nb in range(2): S.append(f'ds_read_b32 v{csv+nb}, v{a_csv} offset:{768+512+64*nb}')
            S += [f'ds_read_b128 {vr(nr[b],4)}, v{a_row} offset:{64*b}', f'ds_read_b128 {vr(nr[b]+4,4)}, v{a_row} offset:{512+64*b}']
        for nb in range(2): S.append(f'ds_read_b128 {vr(csq+4*nb,4)}, v{a_csr} offset:{768+64*nb}')
        def kprep(b):
            r = acc(b, 2); L = []
            for k in range(4): L.append(pk('fma', r+2*k, csk+2*k, ('b', nml+b), r+2*k))
            for k in range(4): L.append(pk('mul', r+2*k, r+2*k, ('b', rsl+b)))
            for k in range(4): L.append(cvt(r+k, r+2*k, r+2*k+1))
            return L
        def vprep(b):
            r = acc(b, 4); L = []
            for nb in range(2):
                for p in range(2): L.append(pk('fma', r+4*nb+2*p, nr[b]+2*p, ('b', csv+nb), r+4*nb+2*p))
            for nb in range(2):
                for p in range(2): L.append(pk('mul', r+4*nb+2*p, r+4*nb+2*p, nr[b]+4+2*p))
            for nb in range(2):
                for p in range(2):
                    if b == 3: L.append(cvt(acc(3, 3)+2*nb+p, r+4*nb+2*p, r+4*nb+2*p+1))
                    else: L.append(cvt(VP[nb]+2+2*b+p, r+4*nb+2*p, r+4*nb+2*p+1))
            return L
        def qprep(b):
            r = acc(b, 0); L = []
            for k in range(4): L.append(pk('fma', r+2*k, csq+2*k, ('b', nml+b), r+2*k))
            for k in range(4): L.append(cvt(r+k, r+2*k, r+2*k+1))
            return L
        mfma = E['mfma']
        TM = [mfma(1, b, n) for b in (3, 0, 1, 2) for n in (2, 3, 4, 5)] + [mfma(1, b, 1) for b in range(4)] + [mfma(1, b, 0) for b in range(self.bpos+1, 4)]
        rk, rv = acc(3, 2), acc(3, 4)
        P3 = [f'v_fmac_f32 v{rk+k}, v{csk+k}, v{nml+3}' for k in range(8)] + [f'v_mul_f32 v{rk+k}, v{rsl+3}, v{rk+k}' for k in range(8)] + kprep(3)[8:]
        P3 += [f'v_fmac_f32 v{rv+k}, v{nr[3]+k%4}, v{csv+k//4}' for k in range(8)] + [f'v_mul_f32 v{rv+k}, v{nr[3]+4+k%4}, v{rv+k}' for k in range(8)] + vprep(3)[8:]
        T0 = interleave(TM, S[:14] + P3, per=[2]*24); S = S[14:]
        for k in range(2): T0.append(f'buffer_store_dwordx4 {vr(acc(3,2)+4*k,4)}, v{l16}, {srd(sWS)}, s{s_c} offen offset:{1024*k} sc1')
        for k in range(2): S.append(f'ds_write_b128 v{a_h+1+k}, {vr(acc(3,2)+4*k,4)}')
        for nb in range(2): S.append(f'v_mov_b64 {vr(VP[nb]+8,2)}, {vr(acc(3,3)+2*nb,2)}')
        for b in range(3): S += kprep(b) + vprep(b)
        for b in range(4): S += qprep(b)
        for b in range(4): S.append(f'v_mul_f32 v{rsl+b}, {f2u(LOG2E * 32 ** -0.5)}, v{rsl+b}')
        def logits(b):
            s = nr[b]
            L = [mf16(s, HB if b == 0 else acc(b-1, 2), acc(b, 0), BI0 if b == 0 else BI), mf16(s+4, acc(b, 2), acc(b, 0), BI+4)]
            for p in range(2):
                L += [f'v_max3_f32 v{U+2*b+p}, v{s+2*p}, v{s+2*p+1}, v{s+4+2*p}', f'v_max_f32 v{U+2*b+p}, v{U+2*b+p}, v{s+5+2*p}',
                      f'v_mul_f32 v{U+2*b+p}, v{rsl+b}, v{U+2*b+p}']
            L.append(f'v_max_f32 v{M+b}, v{U+2*b}, v{U+2*b+1}')
            return L
        for b in (1, 2, 3): S += logits(b)
        if self.sch: S = sched(S)
        HL = [f'buffer_load_dwordx4 {vr(HB+4*k,4)}, v{l16}, {srd(sWS)}, s{s_b} offen offset:{1024*k} sc1' for k in range(2)]
        self.aw(T0 + S[:self.hpos] + HL + S[self.hpos:]); S = []
        a('s_waitcnt lgkmcnt(0)'); a('s_barrier')
        self.stamp(3)
        L1, L3 = self.lab('hg'), self.lab('hd')
        a('s_waitcnt vmcnt(0)')
        a(f's_cmp_eq_u32 s{s_wm}, 0'); a(f's_cbranch_scc1 {L1}')
        for k in range(2): a(f'ds_read_b128 {vr(HB+4*k,4)}, v{a_h} offset:{1024*k}')
        a('s_waitcnt lgkmcnt(0)')
        a(f's_branch {L3}')
        a.label(L1)
        self.ll_wait(HL, list(range(HB, HB+8)), t1, t2, 0, pre=True)
        a.label(L3)
        self.stamp(4)
        S += logits(0)
        for nb in range(2): S.append(f'v_mov_b64 {vr(VP[nb],2)}, {vr(HB+4+2*nb,2)}')
        def allred(op, mid):
            L = [sw32(M, M+2), sw32(M+1, M+3), f'{op} v{M}, v{M}, v{M+2}', f'{op} v{M+1}, v{M+1}, v{M+3}', sw16(M, M+1), f'{op} v{M+1}, v{M}, v{M+1}']
            L += mid
            L += [f'v_mov_b32 v{M}, v{M+1}', sw16(M, M+1), f'v_mov_b64 {vr(M+2,2)}, {vr(M,2)}', sw32(M, M+2), sw32(M+1, M+3)]
            return L
        S += allred('v_max_f32', [])
        for b in range(4): S.append(pk('add', U+2*b, U+2*b, ('b', M+b), neg=[0, 1]))
        for k in range(8): S.append(f'v_exp_f32 v{U+k}, v{U+k}')
        for b in range(4): S.append(f'v_add_f32 v{M+b}, v{U+2*b}, v{U+2*b+1}')
        S += allred('v_add_f32', [f'v_rcp_f32 v{M+1}, v{M+1}'])
        for b in range(4): S.append(pk('mul', U+2*b, U+2*b, ('b', M+b)))
        for b in range(4):
            P = nr[b]; O = acc(b, 4)
            for p in range(2): S.append(cvt(U+2*b+p, U+2*b+p, U+2*b+p))
            for blk in range(2):
                for p in range(2): S.append(f'v_and_b32 v{P+2*blk+p}, v{U+2*b+p}, v{MK+2*blk+p}')
            for db in range(2): S.append(mf16(O+4*db, VP[db]+2*b, P))
        S += [f's_add_u32 s{s_b}, s{s_a}, 32768', f's_add_u32 s{s_c}, s{s_d}, 32768']
        for b in range(4):
            O = acc(b, 4)
            for k in range(4): S.append(cvt(O+k, O+2*k, O+2*k+1))
            S.append(f'buffer_store_dwordx4 {vr(O,4)}, v{l16}, {srd(sWS)}, s{(s_a, s_b, s_d, s_c)[b]} offen sc1')
        self.sw(S, name='B finish')
        self.stamp(6)

    def build(self):
        a = self.a
        self.prologue()
        self.compute()
        self.loader()
        self.helper()
        a.label('L_fin')
        self.stamp(15)
        self.stamp_out()
        if self.probe:
            def body():
                a('s_sub_u32 s93, s94, s93'); a(f's_mul_i32 s93, s93, {self.probe[2]}'); a('s_min_u32 s93, s93, 100000')
                a(f's_memrealtime s[{s_t+6}:{s_t+7}]'); a('s_waitcnt lgkmcnt(0)'); a(f's_add_u32 s93, s93, s{s_t+6}')
                a.label('L_probe')
                a(f's_memrealtime s[{s_t+6}:{s_t+7}]'); a('s_waitcnt lgkmcnt(0)'); a(f's_sub_u32 s94, s{s_t+6}, s93'); a('s_cmp_lt_i32 s94, 0'); a('s_cbranch_scc1 L_probe')
            self.cond([f's_or_b32 s{s_t}, s2, s{s_wave}', f's_cmp_eq_u32 s{s_t}, 0'], body)
        a('s_waitcnt vmcnt(0)')
        a.label('L_end')
        a('s_endpgm')
        a.pad()
        assert a.maxreg('v') <= 255 and a.maxreg('s') < 96
        return a.text()


def generate(listform=False, **kw):
    body = Gen(**kw).build()
    ref = open('interleave_layers__linear_kernel_hedgehog__sliding_local_dilated__prompt.s.ref').read() if not listform else ''
    head = ''.join(l + '\n' for l in ref.split('\n') if l.startswith(';') and '@launch' not in l)
    if listform: head += f'; @launch kernel={KNAME} grid=(256,1,1) block=(512,1,1) lds={LDS_BYTES}\n'
    else: head += f'; @launch grid=(256,1,1) block=(512,1,1) lds={LDS_BYTES}\n'
    return head + '.amdgcn_target "amdgcn-amd-amdhsa--gfx950"\n' + kernel_head(KNAME) + body + kernel_desc(KNAME, 256, 96, 256)

if __name__ == '__main__':
    kw = eval(sys.argv[2]) if len(sys.argv) > 2 else {}
    open(sys.argv[1], 'w').write(generate(**kw))
```

```python
import sys, struct
sys.path.insert(0, 'work')
from asmlib import *

KNAME = 'interleave_layers__linear_kernel_hedgehog__sliding_local_dilated__prompt_kernel'

WS_CTR, WS_STAMP, WS_ST, WS_CS = 0x0, 0x100000, 0x200000, 0x300000
WS_HALO, WS_KVF, WS_ZP, WS_ZF, WS_KVP = 0x400000, 0x600000, 0x680000, 0x6C0000, 0x800000
WS_RF = 0x700000
WS_XI, WS_OI, WS_END = 0xC00000, 0x1800000, 0x2800000
BIG = 0x40000000
STG = 40960
XOFF = 24576
L_WO = 24576
L_SPARE = 3 * STG
L_P = 155648
P_NM, P_RS, P_CS, P_MODE, P_CNT, P_PHI = L_P, L_P + 512, L_P + 1024, L_P + 2816, L_P + 2832, L_P + 3072
LDS_BYTES = 163840
SCR = 5120
LOG2E = 1.4426950408889634
def f2u(x): return '0x%08x' % struct.unpack('<I', struct.pack('<f', x))[0]

s_fast = 3
pAX, pAW, pPHI, pAWO, pBW, pBWO, pOUT, pDBG, pWS = 4, 6, 8, 10, 14, 16, 18, 20, 22
sWS, sX, sW, sWO, sOUT, sDBG = 24, 28, 32, 36, 40, 44
s_m, s_g, s_wave, s_l = 48, 49, 50, 51
s_t = 52
s_cnt, s_x = 60, 61
s_i = 62
s_stamp = 63
s_rot = 64
s_rot2 = 95
s_ft, s_fn, s_fd, s_po = 90, 91, 88, 87
def srd(b): return 's[%d:%d]' % (b, b + 3)


def sx(d, terms, const=0):
    L = []
    for n, (r, k) in enumerate([t for t in terms if t[1]]):
        t = d if n == 0 else s_x
        if k == 1 and n: t = r
        elif k == 1: L.append(f's_mov_b32 s{t}, s{r}')
        elif k > 0 and k & (k - 1) == 0: L.append(f's_lshl_b32 s{t}, s{r}, {k.bit_length()-1}')
        else: L.append(f's_mul_i32 s{t}, s{r}, {k}')
        if n: L.append(f's_add_u32 s{d}, s{d}, s{t}')
    if const: L.append(f's_add_u32 s{d}, s{d}, {const:#x}' if const > 0 else f's_sub_u32 s{d}, s{d}, {-const:#x}')
    return L

def pkop(r):
    if isinstance(r, tuple):
        return vr(r[1] & ~1, 2), r[1] & 1, r[1] & 1
    assert r % 2 == 0
    return vr(r, 2), 0, 1
def pk(op, d, *src, neg=None):
    o = [pkop(s) for s in src]
    t = 'v_pk_%s_f32 %s, %s' % (op, vr(d, 2), ', '.join(x[0] for x in o))
    lo = [x[1] for x in o]; hi = [x[2] for x in o]
    if any(lo): t += ' op_sel:[%s]' % ','.join(map(str, lo))
    if not all(hi): t += ' op_sel_hi:[%s]' % ','.join(map(str, hi))
    if neg: t += ' neg_lo:[%s] neg_hi:[%s]' % (','.join(map(str, neg)), ','.join(map(str, neg)))
    return t
def cvt(d, a, b): return f'v_cvt_pk_bf16_f32 v{d}, v{a}, v{b}'
def sw16(a, b): return f'v_permlane16_swap_b32 v{a}, v{b}'
def sw32(a, b): return f'v_permlane32_swap_b32 v{a}, v{b}'
def mf16(d, A, B, C=None): return f'v_mfma_f32_16x16x32_bf16 {vr(d,4)}, {vr(A,4)}, {vr(B,4)}, ' + (vr(C, 4) if C is not None else '0')
def mf32(d, A, B, C=None): return f'v_mfma_f32_32x32x16_bf16 {vr(d,16)}, {vr(A,4)}, {vr(B,4)}, ' + (vr(C, 16) if C is not None else '0')


class Gen:
    def __init__(self, prof=0, limit=40000, dist=2, touch=1, bm=27, local=1, pd=5, sch=1, hprio=2, opos=(1, 5), warm=1, nap=4, probe=None, snake=1, rf=2, hq=5, fine=0, llf='sc1', ot=0, hc=None, hpos=90, early=0, w2=0, w0b=0, cpf=0, tr=4, bpos=1, r0=2, rprio=3, w0a=1, pipe=0, b1=0, b2=0, n1=0, n2=0, zw=2, yw=60, thr=None, pw=0, po=0):
        self.a = Asm()
        assert bm >= 16 and not early
        self.__dict__.update(prof=prof, limit=limit, dist=dist, touch=touch, bm=bm, local=local, pd=pd, sch=sch, hprio=hprio, opos=opos, warm=warm, nap=nap, probe=probe, snake=snake, rf=rf, hq=hq, fine=fine, llf=llf, ot=ot, hc=hc, hpos=hpos, early=early, w2=w2, w0b=w0b, cpf=cpf, tr=tr, bpos=bpos, r0=r0, rprio=rprio, w0a=w0a, pipe=pipe, b1=b1, b2=b2, n1=n1, n2=n2, zw=zw, yw=yw, thr=thr, pw=pw, po=po)
        self.nlab = 0

    def lab(self, p):
        self.nlab += 1
        return 'L_%s_%d' % (p, self.nlab)

    def aw(self, L):
        self.a.extend(autowait(L))
    def sw(self, L, crit=None, name=''):
        if self.sch:
            L = sched(L, crit)
            if name and __name__ == '__main__': print('sched', name, len(L), 'instructions, about', sched.last_estimate, 'cycles', file=sys.stderr)
        self.a.extend(autowait(L))

    def cond(self, test, body):
        L = self.lab('skip')
        self.a.extend(test); self.a(f's_cbranch_scc0 {L}')
        body()
        self.a.label(L)

    def spin(self, issue, check, vt, tag, pre=False, pipe=0):
        a = self.a
        L, C, D = self.lab('spin'), self.lab('chk'), self.lab('done')
        a(f's_mov_b32 s{s_cnt}, 0')
        if pipe:
            for _ in range(pipe): a.extend(issue)
            a.label(L); a.extend(issue); a(f's_waitcnt vmcnt({pipe*len(issue)})'); a.extend(check)
        elif pre:
            a(f's_branch {C}')
            a.label(L); a.extend(issue); a('s_waitcnt vmcnt(0)')
            a.label(C); a.extend(check)
        else:
            a.label(L); self.aw(list(issue) + list(check))
        a('s_cmp_eq_u64 vcc, 0'); a(f's_cbranch_scc1 {D}')
        a(f's_add_u32 s{s_cnt}, s{s_cnt}, 1')
        a(f's_cmp_lt_u32 s{s_cnt}, {self.limit}'); a(f's_cbranch_scc1 {L}')
        a(f'v_mov_b32 v{vt}, {1 << tag}')
        a(f'buffer_atomic_or v{vt}, off, {srd(sDBG)}, 0 offset:4 sc1')
        a.label(D)

    def ll_wait(self, loads, regs, t1, t2, tag, pre=False, pipe=0):
        S = []
        h = len(regs) // 2
        for t, R in ((t1, regs[:h]), (t2, regs[h:])):
            S.append(f'v_max_u32 v{t}, v{R[0]}, v{R[1]}')
            for k in range(2, len(R), 2): S.append(f'v_max3_u32 v{t}, v{t}, v{R[k]}, v{R[k+1]}')
        S += [f'v_max_u32 v{t1}, v{t1}, v{t2}', f'v_cmp_eq_u32 vcc, -1, v{t1}']
        loads = [l.replace('sc1', self.llf) for l in loads]
        self.spin(loads, S, t1, tag, pre, pipe)

    def flag_set(self, soff, vt, which=3):
        a = self.a
        a('s_mov_b64 exec, 1')
        if which & 1: a(f'buffer_store_dword v{vt}, off, {srd(sWS)}, s{soff}')
        if which & 2: a(f'buffer_store_dword v{vt}, off, {srd(sWS)}, s{soff+1} sc1')
        a('s_mov_b64 exec, -1')
    def flag_addr(self, va, vt, soff, remote=False):
        L = [f'v_bfe_u32 v{va}, v1, 1, 3', f'v_and_b32 v{vt}, 1, v1', f'v_lshl_add_u32 v{va}, v{va}, 2, v{vt}']
        if remote: return L + [f'v_lshlrev_b32 v{va}, 7, v{va}']
        return L + [f's_cmp_eq_u32 s{s_fast}, 1', f's_cselect_b32 s{s_t}, 0, 5', f's_cselect_b32 s{s_t+1}, 0, {WS_RF}',
                    f's_lshl_b32 s{soff}, s{soff}, s{s_t}', f's_add_u32 s{soff}, s{soff}, s{s_t+1}', f's_add_u32 s{s_t}, s{s_t}, 2',
                    f'v_lshlrev_b32 v{va}, s{s_t}, v{va}']
    def flag_load(self, soff, va, vt): return f'buffer_load_dword v{vt}, v{va}, {srd(sWS)}, s{soff} offen sc1'
    def flag_wait(self, soff, va, vt, tag, pre=False, nap=0, pipe=0):
        self.spin(([f's_sleep {nap}'] if nap else []) + [self.flag_load(soff, va, vt)], [f'v_cmp_eq_u32 vcc, 0, v{vt}'], vt, tag, pre, pipe)
    def get_mode(self, vt):
        self.a.extend([f'v_mov_b32 v{vt}, {P_MODE}', f'ds_read_b32 v{vt}, v{vt}', 's_waitcnt lgkmcnt(0)', f'v_readfirstlane_b32 s{s_fast}, v{vt}'])

    def stamp(self, k):
        if self.probe:
            for n, (pl, pk_) in enumerate(self.probe[:2]):
                if pk_ == k:
                    def body():
                        self.a(f's_memrealtime s[{s_t+6}:{s_t+7}]'); self.a('s_waitcnt lgkmcnt(0)'); self.a(f's_mov_b32 s{93+n}, s{s_t+6}')
                    self.cond([f's_cmp_eq_u32 s{s_l}, {pl}'], body)
        if not self.prof or self.prof >= 5: return
        a = self.a
        a(f'{"s_memtime" if self.prof == 4 else "s_memrealtime"} s[{s_t+6}:{s_t+7}]')
        a(f's_mov_b32 s{s_stamp}, m0')
        a(f's_lshl_b32 m0, s{s_l}, 4'); a(f's_add_u32 m0, m0, {k}')
        a('s_waitcnt lgkmcnt(0)')
        a(f'v_writelane_b32 v255, s{s_t+6}, m0')
        a(f's_mov_b32 m0, s{s_stamp}')
    def stamp_out(self):
        if not self.prof: return
        a = self.a
        a.extend(sx(s_t, [(2, 2048), (s_wave, 256)], WS_STAMP))
        a('v_lshlrev_b32 v254, 2, v1')
        a(f'buffer_store_dword v255, v254, {srd(sWS)}, s{s_t} offen')

    def prologue(self):
        a = self.a
        a('s_cmp_ge_u32 s2, 256'); a('s_cbranch_scc1 L_end')
        a('s_load_dwordx16 s[4:19], s[0:1], 0')
        a('s_load_dwordx4 s[20:23], s[0:1], 64')
        a('v_lshrrev_b32 v2, 6, v0')
        a(f'v_readfirstlane_b32 s{s_wave}, v2')
        a('v_and_b32 v1, 63, v0')
        a(f's_and_b32 s{s_rot}, s2, 3'); a(f's_lshl_b32 s{s_rot}, s{s_rot}, 2')
        a(f's_bfe_u32 s{s_t}, s2, 0x20003'); a(f's_add_u32 s{s_m}, s{s_rot}, s{s_t}')
        a(f's_mov_b32 s{s_rot}, s{s_m}')
        a(f's_and_b32 s{s_rot2}, s2, 4'); a(f's_lshl_b32 s{s_rot2}, s{s_rot2}, 1')
        a(f's_lshr_b32 s{s_g}, s2, 5'); a(f's_add_u32 s{s_g}, s{s_g}, s{s_rot2}')
        a(f's_mov_b32 s{s_l}, 0'); a(f's_mov_b32 s{s_fast}, 0')
        for b, n in ((sWS, WS_END), (sX, 2048*1024*2), (sW, 1024*3072*2), (sWO, 1024*1024*2), (sOUT, WS_END), (sDBG, 256)):
            a(f's_mov_b32 s{b+2}, {n}'); a(f's_mov_b32 s{b+3}, 0x20000')
        if self.prof: a('v_mov_b32 v255, 0')
        self.stamp(0)
        a(f's_cmp_ge_u32 s{s_wave}, 6'); a('s_cbranch_scc1 L_helper')
        a(f's_cmp_ge_u32 s{s_wave}, 4'); a('s_cbranch_scc1 L_loader')
    def pointers(self):
        a = self.a
        a('s_waitcnt lgkmcnt(0)')
        for b, p in ((sWS, pWS), (sX, pAX), (sW, pAW), (sWO, pAWO), (sOUT, pWS), (sDBG, pDBG)):
            a(f's_mov_b64 s[{b}:{b+1}], s[{p}:{p+1}]')

    def trickle_setup(self):
        a = self.a
        a(f's_mov_b64 s[{sOUT}:{sOUT+1}], s[{sWO}:{sWO+1}]'); a(f's_mov_b32 s{sOUT+2}, {1 << 21}')
        a.extend(sx(s_ft, [(2, 8192), (s_wave, 2048)], -8192))
        n1 = -(-16 // self.tr)
        a(f's_cmp_eq_u32 s{s_l}, 0'); a(f's_cselect_b32 s{s_fn}, 12, {n1}')
        a(f's_cmp_lt_u32 s{s_l}, {2 if self.warm else 0}'); a(f's_cselect_b32 s{s_fn}, s{s_fn}, 0')
    def trickle_lines(self, n):
        a = self.a
        a(f's_sub_u32 s{s_t}, s{sOUT+2}, {128*n}'); a(f's_min_u32 s{s_t}, s{s_t}, s{s_ft}')
        for r in range(n): a(f's_buffer_load_dwordx2 s[{s_fd}:{s_fd+1}], {srd(sOUT)}, s{s_t} offset:{128*r+60}')
        a(f's_add_u32 s{s_ft}, s{s_ft}, {128*n}')
    def trickle(self, i):
        a = self.a
        n1 = -(-16 // self.tr)
        def nxt():
            a(f's_mov_b64 s[{sOUT}:{sOUT+1}], s[{pBW}:{pBW+1}]'); a(f's_mov_b32 s{sOUT+2}, {3 << 21}')
            a.extend(sx(s_ft, [(2, 24576), (s_wave, 6144)], -24576))
        def body():
            if isinstance(i, str): self.cond([f's_cmp_eq_u32 {i}, {n1}'], nxt)
            elif i == n1: nxt()
            self.trickle_lines(self.tr)
        self.cond([f's_cmp_gt_u32 s{s_fn}, {i}'], body)
    def trickle_rest(self, part):
        rest = 48 - self.tr * (12 - -(-16 // self.tr))
        n = rest
        self.cond([f's_cmp_eq_u32 s{s_fn}, 12'], lambda: self.trickle_lines(n))

    def warm_w(self):
        a = self.a
        if not self.pw: return
        a(f's_and_b32 s{s_t}, s{s_m}, 3'); a.extend(sx(s_t+1, [(s_t, 16*6144), (s_wave, 4*6144), (s_g, 128)], -16*6144))
        a(f's_and_b32 s{s_t+2}, s{s_g}, 7')
        for st in range(1, 1 + self.pw):
            a(f's_cmp_le_u32 s{s_t+2}, {st-1}'); a(f's_addc_u32 s{s_t}, s{s_rot2}, {st-1}')
            a(f's_mul_i32 s{s_t}, s{s_t}, {64*6144}'); a(f's_add_u32 s{s_t}, s{s_t}, s{s_t+1}')
            for k in range(12): a(f's_buffer_load_dwordx2 s[{s_fd}:{s_fd+1}], {srd(sW)}, s{s_t} offset:{2048*k+60}')
    def warm_wo_setup(self):
        a = self.a
        a(f's_and_b32 s{s_t}, s{s_m}, 3'); a.extend(sx(s_po, [(s_t, 256*2048), (s_wave, 64*2048), (s_g, 128)], -256*2048))
    def warm_wo(self, n):
        a = self.a
        def body():
            for k in range(n): a(f's_buffer_load_dwordx2 s[{s_fd}:{s_fd+1}], {srd(sWO)}, s{s_po} offset:{2048*k+60}')
            a(f's_add_u32 s{s_po}, s{s_po}, {2048*n}'); a(f's_min_u32 s{s_po}, s{s_po}, {(1 << 21) - 2048*n}')
        if self.po: self.cond([f's_lshr_b32 s{s_t}, {self.po}, s{s_l}', f's_bitcmp1_b32 s{s_t}, 0'], body)

    def w_dma_offsets(self, dw, idx, t0, t1, t2):
        a = self.a
        a(f'v_lshrrev_b32 v{t0}, 3, v1'); a(f'v_mul_u32_u24 v{t0}, 6144, v{t0}')
        a(f'v_and_b32 v{t1}, 7, v1'); a(f'v_bfe_u32 v{t2}, v1, 4, 1'); a(f'v_lshlrev_b32 v{t2}, 1, v{t2}')
        a(f'v_xor_b32 v{t1}, v{t1}, v{t2}'); a(f'v_xor_b32 v{t2}, 4, v{t1}')
        a(f'v_lshl_add_u32 v{t1}, v{t1}, 4, v{t0}'); a(f'v_lshl_add_u32 v{t2}, v{t2}, 4, v{t0}')
        d = 8*6144 - 1024
        a(f's_lshl_b32 s{s_t+1}, s{s_g}, 7'); a(f'v_add_u32 v{t1}, s{s_t+1}, v{t1}'); a(f's_add_u32 s{s_t+1}, s{s_t+1}, {d}'); a(f'v_add_u32 v{t2}, s{s_t+1}, v{t2}')
        a(f's_cmp_eq_u32 s{idx}, 0')
        for t in range(3):
            c = [((3*w + t) & 1)*32*6144 + ((3*w + t) >> 1)*2048 for w in range(2)]
            a(f's_mov_b32 s{s_t}, {c[1]}'); a(f's_cmov_b32 s{s_t}, {c[0]}')
            a(f'v_add_u32 v{dw+4*t}, s{s_t}, v{t1}'); a(f'v_add_u32 v{dw+4*t+1}, s{s_t}, v{t2}')
            a(f'v_add_u32 v{dw+4*t+2}, {2*d}, v{dw+4*t}'); a(f'v_add_u32 v{dw+4*t+3}, {2*d}, v{dw+4*t+1}')

    def w_frag_addr(self, aw, head_sreg, base, t0, t1, t2, nb_list=(0, 1)):
        L = [f'v_lshrrev_b32 v{t2}, 4, v1', f'v_bfe_u32 v{t0}, v1, 2, 2', f'v_lshl_add_u32 v{t1}, v{t2}, 3, v{t0}',
             f'v_lshrrev_b32 v{t0}, 1, v{t0}', f'v_and_b32 v{t2}, 1, v{t2}', f'v_lshl_add_u32 v{t0}, v{t2}, 1, v{t0}']
        if head_sreg is not None: L += [f's_lshl_b32 s{s_t}, s{head_sreg}, 1', f'v_xor_b32 v{t0}, s{s_t}, v{t0}']
        L += [f'v_and_b32 v{t2}, 3, v1', f'v_lshlrev_b32 v{t2}, 3, v{t2}', f'v_lshl_add_u32 v{t2}, v{t1}, 7, v{t2}']
        if base: L.append(f'v_add_u32 v{t2}, {base}, v{t2}')
        for k, nb in enumerate(nb_list): L += [f'v_xor_b32 v{t1}, {nb}, v{t0}', f'v_lshl_add_u32 v{aw+k}, v{t1}, 5, v{t2}']
        return L

    def reduce_job(self, after_by=None, after_fill=None):
        a = self.a
        T = 200
        vA, vZ, vO, t1, t2 = T, T+1, T+2, T+3, T+4
        s_a, s_b, s_c, s_d, s_e = 80, 81, 82, 83, 84
        a.extend(sx(s_t, [(s_l, 32), (s_g, 4), (s_wave, 1)], -4))
        a.extend(sx(s_a, [(s_t, 32768), (s_m, 128)], WS_KVP)); a(f's_add_u32 s{s_b}, s{s_a}, 16384')
        a.extend(sx(s_d, [(s_t, 2048), (s_m, 128)], WS_KVF))
        a.extend(sx(s_c, [(s_t, 1024)], WS_ZP)); a.extend(sx(s_e, [(s_t, 64)], WS_ZF))
        a(f's_and_b32 s{s_t}, s{s_t}, 1'); a(f's_xor_b32 s{s_t+1}, s{s_m}, s{s_g}'); a(f's_or_b32 s{s_t}, s{s_t}, s{s_t+1}')
        a(f's_cselect_b32 s{s_c}, {BIG}, s{s_c}'); a(f's_cselect_b32 s{s_e}, {BIG}, s{s_e}')
        a(f'v_and_b32 v{t1}, 7, v1'); a(f'v_lshlrev_b32 v{t1}, 4, v{t1}')
        a(f'v_lshrrev_b32 v{t2}, 3, v1'); a(f'v_lshl_add_u32 v{vA}, v{t2}, 11, v{t1}')
        a(f'v_lshlrev_b32 v{vZ}, 4, v1')
        a(f'v_lshrrev_b32 v{t2}, 4, v1'); a(f'v_lshl_add_u32 v{vO}, v{t2}, 2, v{t1}')
        D = T + 8; U = 160
        def late_fill():
            for k in range(4): a(f'v_mov_b32 v{D+k}, -1')
            fill = f'buffer_store_dwordx4 {vr(D,4)}, v{vZ}, {srd(sWS)}, s{s_t} offen'
            a.extend(sx(s_t, [(s_g, 131072), (s_wave, 32768), (s_m, 2048)], WS_KVP + (1 << 21) - 4*32768)); a(fill + ' sc1'); a(fill + ' offset:1024 sc1')
            a(f's_lshr_b32 s{s_t+1}, s{s_wave}, 1'); a(f's_and_b32 s{s_t+2}, s{s_wave}, 1')
            a.extend(sx(s_t, [(s_t+2, 1 << 20), (s_m, 1 << 16), (s_g, 4096), (s_t+1, 2048)], WS_HALO - 2*2048)); a(fill + ' sc1'); a(fill + ' offset:1024 sc1')
            a.extend(sx(s_t, [(s_wave, 262144), (s_m, 16384), (s_g, 1024)], WS_ST - 3*262144))
            a.extend(sx(s_t+3, [(s_g, 16384), (s_m, 1024)], WS_CS + 262144))
            a(f's_cmp_eq_u32 s{s_wave}, 7'); a(f's_cselect_b32 s{s_t}, s{s_t+3}, s{s_t}'); a(fill + ' sc1')
            a('s_mov_b64 exec, 0xff')
            a(f's_add_u32 s{s_t}, s{s_d}, {1 << 17}'); a(fill + ' sc1')
            a(f's_add_u32 s{s_t}, s{s_e}, {1 << 12}'); a(fill + ' sc1')
            a.extend(sx(s_t, [(s_g, 4096), (s_t+1, 2048), (s_m, 128)], WS_ZP + (1 << 16) - 2*2048)); a(fill + ' sc1')
            a('s_mov_b64 exec, -1')
            a('s_waitcnt vmcnt(0)')
        self.cond([f's_cmp_eq_u32 s{s_l}, 0'], late_fill)
        a('s_barrier')
        if self.rprio: a(f's_setprio {self.rprio}')
        a('s_barrier')
        if after_by and self.w0a == 0: after_by()
        if self.b1: a(f's_sleep {self.b1}')
        self.ll_wait(([f's_sleep {self.n1}'] if self.n1 else []) + [f'buffer_load_dwordx4 {vr(D,4)}, v{vA}, {srd(sWS)}, s{s_a} offen sc1',
                      f'buffer_load_dwordx4 {vr(D+4,4)}, v{vA}, {srd(sWS)}, s{s_b} offen sc1',
                      f'buffer_load_dwordx4 {vr(D+8,4)}, v{vZ}, {srd(sWS)}, s{s_c} offen sc1',
                      f'buffer_load_dwordx4 {vr(D+12,4)}, v{vZ}, {srd(sWS)}, s{s_c} offen offset:1024 sc1'],
                     list(range(D, D+16)), t1, t2, 1, pipe=self.pipe & 1)
        self.stamp(5)
        S = []
        for z in range(2):
            d, u = D + 8*z, U + 16*z
            for k in range(8): S += [f'v_lshlrev_b32 v{u+2*k}, 16, v{d+k}', f'v_and_b32 v{u+2*k+1}, 0xffff0000, v{d+k}']
            for k in range(4): S.append(pk('add', u+2*k, u+2*k, u+8+2*k))
            for k in range(4): S.append(sw32(u+k, u+4+k))
            S += [pk('add', u, u, u+4), pk('add', u+2, u+2, u+6), sw16(u, u+2), sw16(u+1, u+3), pk('add', u, u, u+2)]
            for k in range(2): S.append(f'v_add_f32_dpp v{u+k}, v{u+k}, v{u+k} row_ror:8 row_mask:0xf bank_mask:0xf')
            S.append(cvt(u, u, u+1))
        S += ['s_mov_b32 exec_lo, 0x00ff00ff', 's_mov_b32 exec_hi, 0x00ff00ff',
              f'buffer_store_dword v{U}, v{vO}, {srd(sWS)}, s{s_d} offen sc1',
              f'buffer_store_dword v{U+16}, v{vO}, {srd(sWS)}, s{s_e} offen sc1', 's_mov_b64 exec, -1']
        self.sw(S)
        if self.rprio: a('s_setprio 0')
        if after_by and self.w0a == 1: after_by()
        if self.zw: a(f's_waitcnt vmcnt({12 if (after_by and self.w0a == 1 and self.zw == 1) else 0})')
        a('s_barrier')
        if after_by and self.w0a == 2: after_by()

    def loader(self):
        a = self.a
        a.label('L_loader')
        dx, dw, dwo, t0, t1, t2, vf = 8, 16, 28, 2, 3, 4, 5
        s_ld, s_kx, s_kw, s_slot, s_mx, s_xstep, s_wo, s_wm0, s_sx, s_sw, s_xb, s_fl, s_mw = range(65, 78)
        a(f's_sub_u32 s{s_ld}, s{s_wave}, 4')
        self.w_dma_offsets(dw, s_ld, t0, t1, t2)
        a(f's_mul_i32 s{s_mw}, s{s_ld}, 12288')
        a(f's_lshl_b32 s{s_mx}, s{s_ld}, 13'); a(f's_add_u32 s{s_mx}, s{s_mx}, {XOFF}')
        s_flip = 78
        def nxt(r):
            return [f's_cmp_eq_u32 s{r}, s{s_flip}', f's_addc_u32 s{r}, s{r}, 1', f's_and_b32 s{r}, s{r}, 15']
        def wst(slot=None):
            L = []
            for j in range(12):
                if j == 0: L.append(f's_add_u32 m0, s{s_mw}, ' + (f's{s_slot}' if slot is None else str(slot*STG)))
                elif j % 4 == 0: L.append('s_add_u32 m0, m0, 4096')
                L.append(f'buffer_load_dwordx4 v{dw+j}, {srd(sW)}, s{s_kw} offen offset:{1024*(j%4)} lds')
            a.extend(L + nxt(s_sw) + [f's_mul_i32 s{s_kw}, s{s_sw}, {64*6144}'])
        def xst(slot=None):
            L = []
            for j in range(8):
                if j == 0: L.append(f's_add_u32 m0, s{s_mx}, ' + (f's{s_slot}' if slot is None else str(slot*STG)))
                elif j == 4: L.append('s_add_u32 m0, m0, 4096')
                L.append(f'buffer_load_dwordx4 v{dx+j}, {srd(sX)}, s{s_kx} offen offset:{1024*(j%4)} sc1 lds')
            a.extend(L + nxt(s_sx) + [f's_mul_i32 s{s_kx}, s{s_sx}, s{s_xstep}', f's_add_u32 s{s_kx}, s{s_kx}, s{s_xb}'])
        def kstart(first):
            if first:
                a(f's_mov_b32 s{s_sx}, s{s_m}'); a(f's_mov_b32 s{s_sw}, s{s_m}'); a(f's_mov_b32 s{s_flip}, 16')
            else:
                a(f's_add_u32 s{s_sw}, s{s_rot2}, 15'); a(f's_and_b32 s{s_sw}, s{s_sw}, 15'); a(f's_mov_b32 s{s_sx}, s{s_sw}')
                a(f's_add_u32 s{s_flip}, s{s_g}, 15'); a(f's_and_b32 s{s_flip}, s{s_flip}, 15'); a.extend(nxt(s_sx))
            a(f's_mul_i32 s{s_kw}, s{s_m if first else s_g}, {64*6144}'); a(f's_mul_i32 s{s_kx}, s{s_sx}, s{s_xstep}'); a(f's_add_u32 s{s_kx}, s{s_kx}, s{s_xb}')
        a(f's_lshl_b32 s{s_xb}, s{s_m}, 18'); a(f's_mov_b32 s{s_xstep}, 128'); kstart(True)
        self.pointers()
        wst(0)
        a(f'v_lshrrev_b32 v{t0}, 3, v1'); a(f'v_and_b32 v{t1}, 7, v1')
        a(f'v_lshrrev_b32 v{t2}, 4, v1'); a(f'v_xor_b32 v{t1}, v{t1}, v{t2}'); a(f'v_xor_b32 v{t2}, 4, v{t1}')
        a(f's_lshl_b32 s{s_t}, s{s_ld}, 17'); a(f'v_lshl_add_u32 v{t0}, v{t0}, 11, s{s_t}')
        a(f'v_lshl_add_u32 v{t1}, v{t1}, 4, v{t0}'); a(f'v_lshl_add_u32 v{t2}, v{t2}, 4, v{t0}')
        for j in range(8): a(f'v_add_u32 v{dx+j}, {j*16384 - 1024*(j%4)}, v{t1 if j % 2 == 0 else t2}')
        xst(0); wst(1)
        a(f'v_lshrrev_b32 v{t0}, 5, v1'); a(f'v_lshlrev_b32 v{t0}, 4, v{t0}')
        a(f'v_bfe_u32 v{t1}, v1, 3, 2'); a(f'v_add_u32 v{t0}, v{t0}, v{t1}')
        a(f's_lshl_b32 s{s_t}, s{s_g}, 7'); a(f'v_lshl_add_u32 v{t0}, v{t0}, 11, s{s_t}')
        a(f'v_and_b32 v{t1}, 7, v1'); a(f'v_bfe_u32 v{t2}, v1, 4, 1'); a(f'v_lshlrev_b32 v{t2}, 1, v{t2}')
        a(f'v_xor_b32 v{t1}, v{t1}, v{t2}'); a(f'v_xor_b32 v{t2}, 4, v{t1}')
        a(f'v_lshl_add_u32 v{t1}, v{t1}, 4, v{t0}'); a(f'v_lshl_add_u32 v{t2}, v{t2}, 4, v{t0}')
        for G in range(4): a(f'v_add_u32 v{dwo+G}, {G*4*2048 - 1024*G}, v{t1 if G % 2 == 0 else t2}')
        a('s_waitcnt vmcnt(12)'); a('s_barrier')
        xst(1); wst(2)
        a('s_waitcnt vmcnt(12)'); a('s_barrier')
        xst(2)
        a.label('L_ld_enter')
        a(f's_mov_b32 s{s_i}, 0'); a(f's_mov_b32 s{s_slot}, 0')
        self.trickle_setup(); self.warm_wo_setup()
        def loop(name, n, extra):
            a.label(name)
            xst(); wst()
            if extra:
                a(f's_add_u32 s{s_t}, s{s_i}, 1'); a(f's_and_b32 s{s_t}, s{s_t}, 7')
                a.extend(sx(s_wo, [(s_rot2, 2), (s_t, 1)], 24)); a(f's_and_b32 s{s_wo}, s{s_wo}, 31')
                a.extend(sx(s_wm0, [(s_wo, 65536), (s_ld, 2*4*2048)]))
                a.extend(sx(s_wo, [(s_t, 4096), (s_ld, 2048)], L_SPARE)); a(f's_mov_b32 m0, s{s_wo}')
                for G in range(2): a(f'buffer_load_dwordx4 v{dwo+G}, {srd(sWO)}, s{s_wm0} offen offset:{1024*G} lds')
            self.trickle(f's{s_i}'); self.warm_wo(5)
            a(f's_add_u32 s{s_slot}, s{s_slot}, {STG}'); a(f's_cmp_eq_u32 s{s_slot}, {3*STG}'); a(f's_cselect_b32 s{s_slot}, 0, s{s_slot}')
            a(f's_add_u32 s{s_i}, s{s_i}, 1'); a(f's_cmp_lt_u32 s{s_i}, {n}')
            a(f's_waitcnt vmcnt({22 if extra else 20})')
            a('s_barrier')
            a(f's_cbranch_scc1 {name}')
        if self.early: loop('L_ld_loop', 5, False); loop('L_ld_loop2', 13, True)
        else: loop('L_ld_loop', 13, False)
        def wo(p0, n, thr=None):
            a.extend(sx(s_wm0, [(s_ld, 4096)], L_WO + 4096*p0))
            a.extend(sx(s_wo, [(s_rot2, 2), (s_ld, 1)], p0)); a(f's_and_b32 s{s_wo}, s{s_wo}, 31'); a(f's_lshl_b32 s{s_wo}, s{s_wo}, 16')
            L = self.lab('wo')
            a(f's_mov_b32 s{s_i}, 0')
            a.label(L)
            if thr is not None: a(f's_waitcnt vmcnt({thr})')
            a(f's_mov_b32 m0, s{s_wm0}')
            a(f's_add_u32 s{s_wm0}, s{s_wm0}, 8192')
            for G in range(4): a(f'buffer_load_dwordx4 v{dwo+G}, {srd(sWO)}, s{s_wo} offen offset:{1024*G} lds')
            a(f's_add_u32 s{s_wo}, s{s_wo}, 131072'); a(f's_and_b32 s{s_wo}, s{s_wo}, 0x1fffff')
            a(f's_add_u32 s{s_i}, s{s_i}, 1'); a(f's_cmp_lt_u32 s{s_i}, {n//2}'); a(f's_cbranch_scc1 {L}')
        if self.early:
            wo(4, 10)
            a('s_waitcnt vmcnt(20)'); a('s_barrier')
            wo(14, 10)
            a('s_barrier')
            wo(0, 4)
        else:
            wo(24, 8)
            a('s_waitcnt vmcnt(16)'); a('s_barrier')
            wo(4, 10)
            a('s_barrier')
            wo(14, 10, self.thr); wo(0, 4, self.thr)
        a.extend(sx(s_fl, [(s_l, 8192), (s_m, 256), (s_rot2, 16), (s_ld, 8)], 4096))
        self.get_mode(t0); a.extend(self.flag_addr(vf, t0, s_fl))
        a.extend(sx(s_xb, [(s_l, 1 << 22), (s_m, 1 << 18)], WS_XI))
        a(f's_bitcmp0_b32 s{s_l}, 0')
        a(f's_cselect_b64 s[{sW}:{sW+1}], s[{pBW}:{pBW+1}], s[{pAW}:{pAW+1}]')
        a(f's_cselect_b64 s[{sWO}:{sWO+1}], s[{pBWO}:{pBWO+1}], s[{pAWO}:{pAWO+1}]')
        a(f's_mov_b64 s[{sX}:{sX+1}], s[{pWS}:{pWS+1}]'); a(f's_mov_b32 s{sX+2}, {WS_END}')
        a(f's_mov_b32 s{s_xstep}, 16384'); kstart(False)
        a(f's_lshl_b32 s{s_t}, s{s_ld}, 13'); a(f'v_lshl_add_u32 v{t0}, v1, 4, s{s_t}')
        for j in range(8): a(f'v_add_u32 v{dx+j}, {4096*(j//4)}, v{t0}')
        a(f's_bitcmp1_b32 s{s_l}, 0'); a('s_cbranch_scc1 L_ld_B')
        self.reduce_job(lambda: wst(0))
        a('s_branch L_ld_join')
        a.label('L_ld_B')
        if self.w0b == 0: self.cond([f's_cmp_lg_u32 s{s_l}, 3'], lambda: wst(0))
        a('s_barrier')
        if self.w0b == 1: self.cond([f's_cmp_lg_u32 s{s_l}, 3'], lambda: wst(0))
        a.label('L_ld_join')
        a('s_waitcnt vmcnt(0)'); a('s_barrier')
        a(f's_cmp_eq_u32 s{s_l}, 3'); a('s_cbranch_scc1 L_fin')
        self.trickle_rest(1); self.warm_w()
        a(f's_add_u32 s{s_l}, s{s_l}, 1')
        a('s_barrier')
        wst(1)
        if self.w2 == 2: wst(2)
        a('s_barrier')
        if self.w2 == 0: wst(2)
        self.flag_wait(s_fl, vf, t0, 2, pipe=2 if self.pipe & 4 else 0)
        self.stamp(1)
        xst(1); xst(2)
        a('s_waitcnt vmcnt(8)'); a('s_barrier')
        if self.w2 == 1: wst(2)
        a('s_branch L_ld_enter')

    def helper(self):
        a = self.a
        a.label('L_helper')
        t0, t1, t2, t3, l4, l16, ones, a_st, a_cs, v_st, v_cs, aw, vtw, vto, vd = 2, 3, 4, 5, 6, 7, 8, 12, 13, 14, 15, 16, 18, 19, 20
        F, D, SA, SC = 32, 96, 128, 160
        s_h, s_tw, s_a, s_b, s_trot = 65, 66, 67, 68, 69
        xm = 4; s_r = 70; vrf, vfl, aw2, dw = 21, 22, 24, 80
        a(f's_sub_u32 s{s_h}, s{s_wave}, 6')
        a(f'v_lshlrev_b32 v{l4}, 2, v1'); a(f'v_lshlrev_b32 v{l16}, 4, v1')
        a.extend(self.w_frag_addr(aw, s_h, 0, t0, t1, t2))
        for k in range(2): a(f'v_add_u32 v{aw2+k}, {L_SPARE}, v{aw+k}')
        a.extend(self.flag_addr(vrf, t0, None, remote=True))
        a(f'v_lshrrev_b32 v{t0}, 5, v1'); a(f'v_and_b32 v{t1}, 31, v1'); a(f'v_lshlrev_b32 v{t1}, 4, v{t1}')
        a(f'v_lshl_add_u32 v{v_st}, v{t0}, 10, v{t1}')
        a(f'v_and_b32 v{t2}, 24, v1'); a(f'v_and_b32 v{t3}, 3, v1'); a(f'v_lshl_add_u32 v{t2}, v{t3}, 1, v{t2}'); a(f'v_add_u32 v{t2}, v{t2}, v{t0}')
        a.extend(sx(s_t, [(s_h, 256)], P_NM)); a(f'v_lshl_add_u32 v{a_st}, v{t2}, 3, s{s_t}')
        a(f'v_mov_b32 v{t2}, {BIG}'); a(f'v_cmp_gt_u32 vcc, 384, v{t1}'); a(f'v_cndmask_b32 v{v_cs}, v{t2}, v{v_st}, vcc')
        a.extend(sx(s_t, [(s_h, 384)], P_CS)); a(f'v_lshl_add_u32 v{t1}, v{t0}, 3, v{t1}'); a(f'v_add_u32 v{a_cs}, s{s_t}, v{t1}')
        self.pointers()

        def touch_setup(first=False):
            if not self.touch: return
            c, gt = s_t + 2, s_t + 3
            def cls(b):
                a(f's_lshr_b32 s{gt}, s{b}, 7'); a(f's_sub_u32 s{gt}, 3, s{gt}'); a(f's_and_b32 s{gt}, s{gt}, 7')
                a(f's_sub_u32 s{c}, s{s_g}, s{gt}'); a(f's_and_b32 s{c}, s{c}, 7'); a(f's_sub_u32 s{c}, s{c}, 1')
                a(f's_and_b32 s{s_t}, s{s_g}, 8'); a(f's_add_u32 s{gt}, s{gt}, s{s_t}'); a(f's_lshl_b32 s{gt}, s{gt}, 7')
            a(f's_and_b32 s{s_t+4}, s{s_m}, {xm-1}'); a(f's_lshl_b32 s{s_t+4}, s{s_t+4}, 1'); a(f's_add_u32 s{s_t+4}, s{s_t+4}, s{s_h}')
            cls(sW)
            if first: a(f's_or_b32 s{s_rot}, s{s_m}, 3'); a(f's_mov_b32 s{s_trot}, 0')
            else: a(f's_mov_b32 s{s_rot}, s{s_rot2}'); a(f's_bfe_u32 s{s_trot}, s{gt}, 0x30007')
            a(f's_cmp_ge_u32 s{c}, 3'); a(f's_cselect_b32 s{s_t}, {32*6144 - 3*2048}, 0'); a(f's_add_u32 s{gt}, s{gt}, s{s_t}')
            a(f's_lshl_b32 s{s_t}, s{c}, 11'); a(f's_add_u32 s{gt}, s{gt}, s{s_t}')
            a(f's_mul_i32 s{s_t}, s{s_t+4}, {(16//xm)*6144}'); a(f's_add_u32 s{gt}, s{gt}, s{s_t}')
            a(f's_cmp_lt_u32 s{c}, 6'); a(f's_cselect_b32 s{s_t}, {16//xm}, 0')
            a(f'v_mul_u32_u24 v{vtw}, 6144, v1'); a(f'v_add_u32 v{vtw}, s{gt}, v{vtw}')
            a(f'v_mov_b32 v{t0}, {BIG}'); a(f'v_cmp_gt_u32 vcc, s{s_t}, v1'); a(f'v_cndmask_b32 v{vtw}, v{t0}, v{vtw}, vcc')
            cls(sWO)
            a(f's_lshl_b32 s{s_t}, s{c}, 19'); a(f's_add_u32 s{gt}, s{gt}, s{s_t}')
            a(f's_mul_i32 s{s_t}, s{s_t+4}, {(128//xm)*2048}'); a(f's_add_u32 s{gt}, s{gt}, s{s_t}')
            a(f's_cmp_lt_u32 s{c}, 4'); a(f's_cselect_b32 s{s_t}, {32//xm}, 0')
            a(f'v_lshlrev_b32 v{vto}, 11, v1'); a(f'v_add_u32 v{vto}, s{gt}, v{vto}')
            a(f'v_cmp_gt_u32 vcc, s{s_t}, v1'); a(f'v_cndmask_b32 v{vto}, v{t0}, v{vto}, vcc')
        def touchW(st):
            if not self.touch: return
            if st == 0: a(f's_add_u32 s{s_tw}, s{s_rot}, s{s_trot}')
            else: a(f's_cmp_le_u32 s{s_trot}, {st-1}'); a(f's_addc_u32 s{s_tw}, s{s_rot}, {st-1}')
            a(f's_and_b32 s{s_tw}, s{s_tw}, 15'); a(f's_mul_i32 s{s_tw}, s{s_tw}, {64*6144}')
            a(f'buffer_load_dword v{vd}, v{vtw}, {srd(sW)}, s{s_tw} offen')
        def touchO(k):
            if not self.touch: return
            a(f's_mov_b32 s{s_tw}, {k*(32//xm)*2048}')
            a(f'buffer_load_dword v{vd}, v{vto}, {srd(sWO)}, s{s_tw} offen')
        def phi_load():
            a(f's_mov_b64 s[{sX}:{sX+1}], s[{pPHI}:{pPHI+1}]'); a(f's_mov_b32 s{sX+2}, 65536')
            a.extend(sx(s_t, [(s_g, 4096), (s_h, 2048)])); a(f's_lshl_b32 s{s_t+1}, s{s_h}, 11'); a(f's_add_u32 m0, s{s_t+1}, {P_PHI}')
            for j in range(2): a(f'buffer_load_dwordx4 v{l16}, {srd(sX)}, s{s_t} offen offset:{1024*j} lds')
        self.w_dma_offsets(dw, s_h, t0, t1, t2)
        touch_setup(True)
        phi_load()
        for st in range(1, 3 + self.dist): touchW(st)

        def init_stores():
            for k in range(4): a(f'v_mov_b32 v{D+k}, -1')
            fill = f'buffer_store_dwordx4 {vr(D,4)}, v{l16}, {srd(sWS)}, s{s_t} offen'
            a.extend(sx(s_t, [(s_g, 131072), (s_h, 65536), (s_m, 2048)], WS_KVP)); a(fill + ' sc1'); a(fill + ' offset:1024 sc1')
            a(f's_add_u32 s{s_t}, s{s_t}, 32768'); a(fill + ' sc1'); a(fill + ' offset:1024 sc1')
            a('s_mov_b64 exec, 0xff')
            a.extend(sx(s_t, [(s_g, 8192), (s_h, 4096), (s_m, 128)], WS_KVF)); a(fill + ' sc1'); a(fill + ' offset:2048 sc1')
            a.extend(sx(s_t, [(s_g, 4096), (s_h, 2048), (s_m, 128)], WS_ZP)); a(fill + ' sc1')
            a.extend(sx(s_t, [(s_g, 256), (s_h, 128)], WS_ZF))
            a(f's_cmp_eq_u32 s{s_m}, s{s_g}'); a(f's_cselect_b32 s{s_t}, s{s_t}, {BIG}'); a(fill + ' sc1')
            a('s_mov_b64 exec, -1')
            a.extend(sx(s_t, [(2, 256), (s_h, BIG)]))
            a(f'v_mov_b32 v{t0}, 0')
            a(f'buffer_store_dword v{t0}, v{l4}, {srd(sWS)}, s{s_t} offen sc1')
            a(f'v_lshrrev_b32 v{t1}, 2, v1'); a(f'v_lshlrev_b32 v{t1}, 10, v{t1}'); a(f'v_and_or_b32 v{t1}, v1, 3, v{t1}'); a(f'v_lshlrev_b32 v{t1}, 7, v{t1}')
            a.extend(sx(s_t, [(s_m, 8192), (s_g, 512)], WS_RF)); a(f's_cmp_eq_u32 s{s_h}, 1'); a(f's_cselect_b32 s{s_t}, s{s_t}, {BIG}')
            a('s_mov_b64 exec, 0xfffffff')
            a(f'buffer_store_dword v{t0}, v{t1}, {srd(sWS)}, s{s_t} offen sc1')
            a('s_mov_b64 exec, -1')
        for k in range(4): a(f'v_mov_b32 v{ones+k}, 0x3f803f80')
        def cs_reads(aw=aw):
            for s in range(2):
                for n in range(6):
                    for t in range(2):
                        a(f'ds_read_b64_tr_b16 {vr(F+24*s+4*n+2*t,2)}, v{aw+(n&1)} offset:{(n>>1)*8192+(32*s+4*t)*128}')
            a('s_waitcnt lgkmcnt(0)')
        def cs_publish():
            for s in range(2):
                for n in range(6): a(mf16(D+4*n, ones, F+24*s+4*n, D+4*n if s else None))
            a.extend(sx(s_t, [(s_l, 262144), (s_g, 16384), (s_m, 1024), (s_h, 128)], WS_CS))
            a('s_mov_b64 exec, 0xffff')
            for n in range(6): a(f'buffer_store_dword v{D+4*n}, v{l4}, {srd(sWS)}, s{s_t} offen offset:{(n>>1)*256+(n&1)*64} sc1')
            a('s_mov_b64 exec, -1')
        def chunk(t):
            a(f's_mul_i32 s{s_t}, s{s_m}, {64*6144}'); a(f's_mul_i32 s{s_t+1}, s{s_h}, 12288'); a(f's_add_u32 m0, s{s_t+1}, {L_SPARE + 4096*(t//2)}')
            for j in range(2*t, 2*t+2): a(f'buffer_load_dwordx4 v{dw+j}, {srd(sW)}, s{s_t} offen offset:{1024*(j%4)} lds')
        def arrive():
            a(f's_getreg_b32 s{s_t}, hwreg(HW_REG_XCC_ID, 0, 3)'); a(f's_lshl_b32 s{s_t}, s{s_t}, 2'); a(f's_lshl_b32 s{s_t+1}, 1, s{s_t}')
            a.extend(sx(s_t, [(s_m, 16), (s_rot2, 1)]))
            a('s_mov_b64 exec, 1')
            a(f'v_mov_b32 v{t0}, s{s_t+1}')
            a(f'buffer_atomic_add v{t0}, off, {srd(sDBG)}, s{s_t} sc1')
            a('s_mov_b64 exec, -1')
        def init_wait():
            a(f'v_and_b32 v{t2}, 31, v1'); a(f'v_lshlrev_b32 v{t2}, 3, v{t2}')
            self.spin([f'buffer_load_dword v{t0}, v{t2}, {srd(sDBG)}, 0 offen sc1'],
                      [f'v_lshrrev_b32 v{t1}, 4, v{t0}', f'v_and_b32 v{t1}, 0x0f0f0f0f, v{t1}', f'v_and_b32 v{t3}, 0x0f0f0f0f, v{t0}',
                       f'v_sad_u8 v{t1}, v{t1}, 0, 0', f'v_sad_u8 v{t3}, v{t3}, 0, v{t1}', f'v_cmp_gt_u32 vcc, 8, v{t3}'], t3, 3)
            a(f's_lshr_b32 s{s_t}, s{s_rot2}, 3'); a(f's_lshl_b32 s{s_t+1}, s{s_m}, 1'); a(f's_add_u32 s{s_t}, s{s_t}, s{s_t+1}')
            a(f'v_readlane_b32 s{s_fast}, v{t0}, s{s_t}')
            a(f's_and_b32 s{s_fast}, s{s_fast}, 0x88888888'); a(f's_cselect_b32 s{s_fast}, {1 if self.local else 0}, 0')
            a(f'v_mov_b32 v{t3}, s{s_fast}'); a(f'v_mov_b32 v{t2}, {P_MODE}'); a(f'ds_write_b32 v{t2}, v{t3}')
        def gather(R, va, so, ks):
            L = []
            for k in ks: L += [f's_add_u32 s{s_t}, s{so}, {4096*(k//2)}', f'buffer_load_dwordx4 {vr(R+4*k,4)}, v{va}, {srd(sWS)}, s{s_t} offen offset:{2048*(k%2)} sc1']
            return L
        def total(R):
            n = 8
            while n > 1:
                n //= 2
                for k in range(4*n): a(f'v_add_f32 v{R+k}, v{R+k}, v{R+k+4*n}')
            a(sw32(R, R+2)); a(sw32(R+1, R+3)); a(f'v_add_f32 v{R}, v{R}, v{R+2}'); a(f'v_add_f32 v{R+1}, v{R+1}, v{R+3}')
        def stats_finish():
            for k in range(2): a(f'v_mov_b32_dpp v{SA+2+k}, v{SA+k} row_shl:4 row_mask:0xf bank_mask:0xf')
            for k in range(2): a(f'v_mul_f32 v{SA+k}, {f2u(-1/1024)}, v{SA+k}'); a(f'v_mul_f32 v{SA+2+k}, {f2u(1/1024)}, v{SA+2+k}')
            for k in range(2): a(f'v_fma_f32 v{SA+2+k}, -v{SA+k}, v{SA+k}, v{SA+2+k}')
            for k in range(2): a(f'v_max_f32 v{SA+2+k}, 0, v{SA+2+k}')
            for k in range(2): a(f'v_add_f32 v{SA+2+k}, {f2u(1e-5)}, v{SA+2+k}')
            for k in range(2): a(f'v_rsq_f32 v{SA+2+k}, v{SA+2+k}')
            a('s_mov_b32 exec_lo, 0x0f0f0f0f'); a('s_mov_b32 exec_hi, 0x0f0f0f0f')
            a(f'ds_write_b64 v{a_st}, {vr(SA,2)}'); a(f'ds_write_b64 v{a_st}, {vr(SA+2,2)} offset:512')
            a('s_mov_b64 exec, -1')
        def cs_finish():
            total(SC)
            a(f's_mul_i32 s{s_t}, s{s_l}, 768'); a(f'v_add_u32 v{t0}, s{s_t}, v{a_cs}')
            a('s_mov_b32 exec_lo, 0xffffff'); a('s_mov_b32 exec_hi, 0xffffff')
            a(f'ds_write_b64 v{t0}, {vr(SC,2)}')
            a('s_mov_b64 exec, -1')
        l0 = [f's_cmp_eq_u32 s{s_l}, 0']; ln0 = [f's_cmp_lg_u32 s{s_l}, 0']; l01 = [f's_cmp_lt_u32 s{s_l}, 2']
        a(f's_mov_b32 s{s_r}, 0')
        a.label('L_hp_layer')
        a.extend(sx(s_a, [(s_l, 262144), (s_m, 16384), (s_h, 512)], WS_ST))
        a.extend(sx(s_b, [(s_l, 262144), (s_g, 16384), (s_h, 384)], WS_CS))
        self.trickle_setup(); self.warm_wo_setup()
        hi = lambda: self.hprio and a(f's_setprio {self.hprio}')
        lo = lambda: self.hprio and a('s_setprio 0')
        l1 = [f's_cmp_eq_u32 s{s_l}, 1']
        for i in range(17):
            a('s_barrier')
            if i == 0: self.cond(l0, lambda: (cs_reads(), cs_publish()))
            if i == 8: self.cond(l1, lambda: (cs_reads(aw2), cs_publish()))
            if i in (3, 5, 7, 12, 14): a('s_waitcnt vmcnt(0)')
            if i == 5: self.cond(ln0, lambda: self.flag_wait(s_r, vrf, vfl, 8, pre=True, nap=self.nap))
            if i <= 12: hi()
            if i == 9: self.cond(l0, init_wait)
            if i == 4: self.cond(ln0, lambda: a(self.flag_load(s_r, vrf, vfl)))
            if i + 3 + self.dist <= 15: touchW(i + 3 + self.dist)
            if 0 <= i - (1 if self.early else 5) < 4: touchO(i - (1 if self.early else 5))
            if i == 1: self.cond(l0, init_stores)
            if i == 4: self.cond([f's_or_b32 s{s_t}, s{s_l}, s{s_h}', f's_cmp_eq_u32 s{s_t}, 0'], arrive)
            if 1 <= i <= 6: self.cond(l1, lambda: chunk(i - 1))
            if i == 6: self.cond([f's_cmp_eq_u32 s{s_l}, 2'], phi_load)
            if i in (9, 10): a.extend(gather(SA, v_st, s_a, range(4*(i-9), 4*(i-9)+4)))
            if i in (11, 12): self.cond(l01, lambda: a.extend(gather(SC, v_cs, s_b, range(4*(i-11), 4*(i-11)+4))))
            if i <= 12: lo()
            if 1 <= i <= 12: self.trickle(i - 1)
            if 0 <= i <= 12: self.warm_wo(5)
            if i == 12: self.ll_wait(gather(SA, v_st, s_a, range(8)), list(range(SA, SA+32)), t0, t1, 6, pre=True)
            if i == 13: total(SA)
            if i == 14: stats_finish()
            if i == 14: self.cond(l01, lambda: self.ll_wait(gather(SC, v_cs, s_b, range(8)), list(range(SC, SC+32)), t0, t1, 7, pre=True))
            if i == 15: self.cond(l01, cs_finish); a('s_waitcnt lgkmcnt(0)')
        a.extend(sx(s_t, [(s_l, 8192), (s_m, 256), (s_rot2, 16)])); a(f'buffer_load_dword v{vd}, off, {srd(sWS)}, s{s_t} sc1')
        a(f's_xor_b32 s{s_t}, s{s_t}, 128'); a.extend(sx(s_r, [(s_t, 32), (s_h, 256)], WS_RF))
        a(f's_bitcmp0_b32 s{s_l}, 0')
        a(f's_cselect_b64 s[{sW}:{sW+1}], s[{pBW}:{pBW+1}], s[{pAW}:{pAW+1}]')
        a(f's_cselect_b64 s[{sWO}:{sWO+1}], s[{pBWO}:{pBWO+1}], s[{pAWO}:{pAWO+1}]')
        touch_setup()
        touchW(0); touchW(1); touchW(2)
        a(f's_bitcmp1_b32 s{s_l}, 0'); a('s_cbranch_scc1 L_hp_B')
        self.reduce_job()
        a('s_branch L_hp_join')
        a.label('L_hp_B')
        a('s_barrier')
        a.label('L_hp_join')
        a('s_barrier')
        a(f's_cmp_eq_u32 s{s_l}, 3'); a('s_cbranch_scc1 L_fin')
        self.trickle_rest(1); self.warm_w()
        a(f's_add_u32 s{s_r}, s{s_r}, {4096*32}')
        a(f's_add_u32 s{s_l}, s{s_l}, 1')
        a('s_barrier')
        for st in range(3, 3 + self.dist): touchW(st)
        a('s_branch L_hp_layer')

    def compute(self):
        a = self.a
        one, l16, voffR, voffI, a_tok, a_row, a_t32, a_csr, a_csv = 0, 2, 3, 4, 5, 6, 7, 8, 9
        ax, awq = 10, 12
        l4 = 14; vst = 15
        XR = 16
        ACC = 32
        FX = [128, 144]; FW = [160, 184]
        T = 208
        t0, t1, t2, t3 = T, T+1, T+2, T+3
        s_wm, s_wh, s_rslot, s_delta, s_stg, s_ones = 65, 66, 67, 68, 69, 70
        s_o = 71
        s_ob = 75
        s_obase, s_ooff, s_a, s_b, s_c, s_d, s_e, s_fp, s_st, s_fo = range(77, 87)
        a(f'v_lshrrev_b32 v{t0}, 4, v1')
        a(f'v_and_b32 v{t1}, 15, v1')
        a(f'v_and_b32 v{t2}, 1, v{t0}'); a(f'v_lshrrev_b32 v{t3}, 1, v{t0}'); a(f'v_lshl_add_u32 v{t2}, v{t2}, 1, v{t3}')
        a(f'v_lshlrev_b32 v{voffR}, 11, v{t1}'); a(f'v_lshl_add_u32 v{voffR}, v{t2}, 4, v{voffR}')
        a.extend(sx(s_t, [(s_m, 1 << 18), (s_wave, 1 << 16), (s_g, 128)])); a(f's_add_u32 s{s_t+1}, s{s_t}, 32768')
        self.pointers()
        for tb in range(2):
            for e in range(2): a(f'buffer_load_dwordx4 {vr(XR+8*tb+4*e,4)}, v{voffR}, {srd(sX)}, s{s_t+tb} offen offset:{64*e}')
        a(f's_lshr_b32 s{s_wm}, s{s_wave}, 1'); a(f's_and_b32 s{s_wh}, s{s_wave}, 1')
        a(f'v_mov_b32 v{one}, 1')
        a(f'v_lshl_add_u32 v{voffI}, v{t2}, 4, v{t1}'); a(f'v_lshlrev_b32 v{voffI}, 4, v{voffI}'); a(f'v_mov_b32 v{vst}, v{voffI}')
        a(f'v_lshlrev_b32 v{l16}, 4, v1'); a(f'v_lshlrev_b32 v{l4}, 2, v1')
        a.extend(sx(s_t, [(s_wm, 256)], P_NM))
        a(f'v_lshl_add_u32 v{a_tok}, v{t1}, 2, s{s_t}')
        a(f'v_lshl_add_u32 v{a_row}, v{t0}, 4, s{s_t}')
        a(f'v_and_b32 v{t3}, 31, v1'); a(f'v_lshl_add_u32 v{a_t32}, v{t3}, 2, s{s_t}')
        a.extend(sx(s_t, [(s_wh, 128)], P_CS))
        a(f'v_lshl_add_u32 v{a_csr}, v{t0}, 4, s{s_t}')
        a(f'v_lshl_add_u32 v{a_csv}, v{t1}, 2, s{s_t}')
        a(f's_mov_b32 s{s_stg}, {STG}'); a(f's_mov_b32 s{s_ones}, 0x3f803f80')
        a(f'v_lshrrev_b32 v{t2}, 1, v{t1}'); a(f'v_xor_b32 v{t2}, v{t2}, v{t0}')
        a.extend(sx(s_t, [(s_wm, 8192)], XOFF)); a(f'v_lshl_add_u32 v{t1}, v{t1}, 7, s{s_t}')
        for s in range(2):
            a(f'v_xor_b32 v{t3}, {4*s}, v{t2}'); a(f'v_lshl_add_u32 v{ax+s}, v{t3}, 4, v{t1}')
        a.extend(sx(s_st, [(s_m, 16384), (s_g, 1024), (s_wave, 256)], WS_ST))

        q = 216
        def stats():
            S = []
            for k in range(8):
                for tb in range(2):
                    r = XR + 8*tb + k
                    S += [f'v_dot2_f32_bf16 v{q+2*tb}, s{s_ones}, v{r}, ' + (f'v{q+2*tb}' if k else '0'),
                          f'v_dot2_f32_bf16 v{q+2*tb+1}, v{r}, v{r}, ' + (f'v{q+2*tb+1}' if k else '0')]
            return S + [sw32(q, q+2), sw32(q+1, q+3), pk('add', q, q, q+2), sw16(q, q+1), f'v_add_f32 v{q}, v{q}, v{q+1}']
        st_store = f'buffer_store_dword v{q}, v{l4}, {srd(sWS)}, s{s_st} offen sc1'
        def acc(b, n): return ACC + 4*(6*b + n)
        A2 = 208
        def reads(s, st, slot=0):
            x, w, o = (ax, awq, STG*slot) if slot < 2 else (A2, A2+2, 0)
            X = [f'ds_read_b128 {vr(FX[st]+4*b,4)}, v{x+s} offset:{o+2048*b}' for b in range(4)]
            W = [[f'ds_read_b64_tr_b16 {vr(FW[st]+4*n+2*t,2)}, v{w+(n&1)} offset:{o+(n>>1)*8192+(32*s+4*t)*128}' for t in range(2)] for n in range(6)]
            L = [X[0]] + W[0] + X[1:]
            for n in range(1, 6): L += W[n]
            return L
        def mfma(st, b, n, zero=False):
            C = None if zero else acc(b, n)
            return mf16(acc(b, n), FW[st]+4*n, FX[st]+4*b, C) if n < 4 else mf16(acc(b, n), FX[st]+4*b, FW[st]+4*n, C)
        def mfmas(st, zero=False):
            return [mfma(st, b, n, zero) for n in range(6) for b in (range(4) if not (self.snake and n % 2) else range(3, -1, -1))]
        env = dict(locals())
        a.extend(self.w_frag_addr(awq, s_wh, 0, t0, t1, t2))
        self.epiA(env, 'v')
        a('s_waitcnt vmcnt(0)')
        a.extend(stats()); a(st_store)
        a.label('L_first')
        a('s_barrier')
        self.stamp(12)
        self.aw(reads(0, 0) + interleave(mfmas(0, True), reads(1, 1), per=[0]*4 + [1]*20))
        a('s_waitcnt vmcnt(0) lgkmcnt(0)')
        self.stamp(11)
        self.cond([f's_cmp_lg_u32 s{s_l}, 0'], lambda: self.flag_set(s_fo, one))
        S = [f'v_add_u32 v{A2+k}, {2*STG}, v{ax+k}' for k in range(4)] + [f's_mov_b32 s{s_i}, 0']
        assert awq == ax + 2
        S += sx(s_t, [(s_l, 1 << 22), (s_m, 1 << 18)], WS_OI)
        S += sx(s_obase, [(s_wave, 1 << 16), (s_t, 1)]) + [f's_lshl_b32 s{s_ooff}, s{s_rot2}, 11']
        S += [f's_add_u32 s{s_ob}, s{s_obase}, s{s_ooff}', f's_add_u32 s{s_ob+1}, s{s_ob}, 32768']
        S += sx(s_a, [(s_wm, 1 << 17), (s_g, 2048), (s_wh, 1024), (s_t, 1)])
        S += sx(s_o, [(s_g, 16384), (s_wave, 4096), (s_t, 1)], WS_XI - WS_OI) + [f's_add_u32 s{s_o+k}, s{s_o}, {1024*k}' for k in range(1, 4)]
        S += sx(s_fp, [(s_l, 8192), (s_m, 256)]) + sx(s_fo, [(s_g, 16), (s_wave, 4), (s_fp, 1)]) + sx(s_fo+1, [(s_fo, 32)], WS_RF)
        S += sx(s_t, [(s_wm, 8), (s_rot2, 16)]) + [f's_add_u32 s{s_fp}, s{s_fp}, s{s_t}']
        a.extend(interleave(mfmas(1), S, per=[2]*24))
        a(f's_bitcmp1_b32 s{s_l}, 0'); a('s_cbranch_scc1 L_preB')
        self.epiA(env, 's')
        a(f's_cmp_eq_u32 s{s_l}, 0'); a('s_cbranch_scc1 L_go')
        a('s_branch L_pre_done')
        a.label('L_preB')
        self.epiB(env, 's')
        def last():
            a(f's_mov_b64 s[{sOUT}:{sOUT+1}], s[{pOUT}:{pOUT+1}]'); a(f's_mov_b32 s{sOUT+2}, {2048*1024*2}')
            a.extend(sx(s_o, [(s_m, 1 << 18), (s_wave, 1 << 16), (s_g, 128)]))
            a(f's_add_u32 s{s_o+1}, s{s_o}, 64'); a(f's_add_u32 s{s_o+2}, s{s_o}, 32768'); a(f's_add_u32 s{s_o+3}, s{s_o}, {32768+64}')
            a(f'v_mov_b32 v{vst}, v{voffR}')
        self.cond([f's_cmp_eq_u32 s{s_l}, 3'], last)
        a.label('L_pre_done')
        a(f's_add_u32 s{s_st}, s{s_st}, 262144')
        a.extend(stats()); a(st_store)
        a.label('L_go')
        a('s_barrier')
        self.stamp(1)
        a.extend(reads(0, 0, 1))
        a('s_branch L_q1')
        nb = self.bpos + 1
        def half0(slot):
            if self.prof == 5:
                a('s_memtime s[92:93]'); a(f's_lshl_b32 m0, s{s_l}, 4'); a(f's_add_u32 m0, m0, s{s_i}'); a(f's_add_u32 m0, m0, {(slot+2)%3+1}')
            a('s_waitcnt lgkmcnt(0)')
            F = reads(1, 1, slot)
            if self.prof == 5: F = ['v_writelane_b32 v255, s92, m0'] + F
            if slot == 0: F += [f's_add_u32 s{s_i}, s{s_i}, 3', f's_cmp_lt_u32 s{s_i}, 15']
            a.extend(interleave(mfmas(0), F, per=[0]*self.r0 + [1]*24))
            a('s_waitcnt lgkmcnt(0)')
            a.extend(mfmas(1)[:nb]); a('s_barrier')
        def half1(slot):
            R = reads(0, 0, (slot+1) % 3)
            a(R[0]); a.extend(interleave(mfmas(1)[nb:], R[1:], per=[1]*24))
        a('.p2align 6')
        a.label('L_q')
        half1(0)
        a.label('L_q1')
        half0(1); half1(1); half0(2); half1(2); half0(0)
        a('s_cbranch_scc1 L_q')
        a.label('L_tail')
        self.stamp(2)
        a(f's_bitcmp1_b32 s{s_l}, 0'); a('s_cbranch_scc1 L_epiB')
        self.epiA(env, False)
        a('s_branch L_ophase')
        a.label('L_epiB')
        self.epiB(env, False)
        a.label('L_ophase')
        a('s_barrier')
        PD = self.pd; NR = PD + 1
        OA, OW, awo, vf, RING = 128, [160, 176], 192, 196, 32
        assert RING + 8*NR <= 128
        u0, u1, u2, vrf, vot, vxw = 197, 198, 199, 204, 205, 206
        a(f'v_mov_b32 v{u0}, {P_MODE}'); a(f'ds_read_b32 v{u0}, v{u0}')
        def oacc(tb, nb): return OA + 16*tb + 4*nb
        for k in range(4):
            a(sw16(XR+4*k, XR+4*k+2)); a(sw16(XR+4*k+1, XR+4*k+3))
        a('s_waitcnt lgkmcnt(0)'); a(f'v_readfirstlane_b32 s{s_fast}, v{u0}')
        a(f's_xor_b32 s{s_t}, s{s_fp}, 128'); a.extend(sx(s_e, [(s_t, 32)], WS_RF))
        a.extend(self.flag_addr(vrf, u1, None, remote=True))
        a.extend(self.flag_addr(vf, u1, s_fp))
        for r in range(16):
            a(f'v_lshlrev_b32 v{OA+2*r}, 16, v{XR+r}'); a(f'v_and_b32 v{OA+2*r+1}, 0xffff0000, v{XR+r}')
        a.extend(self.w_frag_addr(awo, None, L_WO, u0, u1, u2, nb_list=(0, 1, 2, 3)))
        a(f's_cmp_eq_u32 s{s_wh}, 0'); a('s_cselect_b64 vcc, -1, 0')
        for k in range(2): a(f'v_cndmask_b32 v{awq+k}, v{awo+2+k}, v{awo+k}, vcc')
        for k in range(2): a(f'v_subrev_u32 v{awq+k}, {L_WO}, v{awq+k}')
        a.extend(sx(s_t, [(s_wm, 8192)], XOFF)); a(f'v_add_u32 v{ax}, s{s_t}, v{l16}'); a(f'v_add_u32 v{ax+1}, 1024, v{ax}')
        a.extend(sx(s_t, [(s_wave, 4096)], XOFF)); a(f'v_add_u32 v{vxw}, s{s_t}, v{voffI}')
        def oreads(h):
            return [f'ds_read_b64_tr_b16 {vr(OW[h&1]+4*nb+2*t,2)}, v{awo+nb} offset:{(h&15)*4096+512*t}' for nb in range(4) for t in range(2)]
        a('s_waitcnt vmcnt(0)')
        self.stamp(8)
        self.flag_set(s_fo, one, 1)
        a(self.flag_load(s_fp, vf, u0))
        self.flag_set(s_fo, one, 2)
        a.extend(oreads(0))
        a(f's_bitcmp1_b32 s{s_l}, 0'); a('s_cbranch_scc1 L_nextA')
        self.epiB(env, 'v')
        a('s_branch L_next_done')
        a.label('L_nextA')
        self.cond([f's_cmp_lg_u32 s{s_l}, 3'], lambda: self.epiA(env, 'v'))
        a.label('L_next_done')
        a('s_waitcnt vmcnt(1) lgkmcnt(0)')
        self.flag_wait(s_fp, vf, u0, 4, pre=True)
        self.stamp(9)
        def oload(h, tb):
            L = [f'buffer_load_dwordx4 {vr(RING+8*(h%NR)+4*tb,4)}, v{l16}, {srd(sWS)}, s{s_ob+tb} offen offset:{1024*(h&3)} sc1']
            if h & 3 == 3 and h < 31:
                if tb == 0: L += [f's_add_u32 s{s_ooff}, s{s_ooff}, 4096', f's_and_b32 s{s_ooff}, s{s_ooff}, 0x7fff', f's_add_u32 s{s_ob}, s{s_obase}, s{s_ooff}']
                else: L += [f's_add_u32 s{s_ob+1}, s{s_ob}, 32768']
            return L
        S = []
        for h in range(PD): S += oload(h, 0) + oload(h, 1)
        for h in range(32):
            R = oreads(h+1) if h < 31 else []
            if h == 15: S += [f'v_add_u32 v{awo+nb}, 0x10000, v{awo+nb}' for nb in range(4)]
            k = 0
            for nb in range(4):
                for tb in range(2):
                    S.append(mf16(oacc(tb, nb), OW[h&1]+4*nb, RING+8*(h%NR)+4*tb, oacc(tb, nb)))
                    if R: S.append(R[k])
                    for j in range(2):
                        if k == self.opos[j] and h + PD < 32: S += oload(h+PD, j)
                    k += 1
            if h == self.hq: S.append(self.flag_load(s_e, vrf, u1))
            if h == (self.hc or 15 - PD): S += [f'v_cmp_eq_u32 vcc, 0, v{u1}', 's_nop 1']
            if h == self.bm: S.append('s_barrier')
        S = autowait(S); cut = S.index('s_nop 1') + 1
        a.extend(S[:cut])
        self.cond(['s_cmp_lg_u64 vcc, 0'], lambda: self.flag_wait(s_e, vrf, u1, 9, nap=self.nap))
        a.extend(S[cut:])
        self.stamp(10)
        S = []
        for k4 in (0, 2, 1, 3):
            for k in range(4): S.append(cvt(XR+4*k4+k, OA+8*k4+2*k, OA+8*k4+2*k+1))
            S += [sw16(XR+4*k4, XR+4*k4+2), sw16(XR+4*k4+1, XR+4*k4+3),
                  f'buffer_store_dwordx4 {vr(XR+4*k4,4)}, v{vst}, {srd(sOUT)}, s{s_o+k4} offen sc1',
                  f'ds_write_b128 v{vxw}, {vr(XR+4*k4,4)} offset:{1024*k4}']
        self.sw(S, crit=lambda t: t.startswith('buffer'))
        a(f's_cmp_eq_u32 s{s_l}, 3'); a('s_cbranch_scc1 L_fin')
        a(f's_add_u32 s{s_fo}, s{s_fo}, 4096'); a(f's_add_u32 s{s_fo+1}, s{s_fo+1}, {4096*32}')
        a(f's_add_u32 s{s_l}, s{s_l}, 1')
        a('s_waitcnt lgkmcnt(0)')
        a('s_branch L_first')

    def epiA(self, E, pre):
        a = self.a
        acc = E['acc']; a_tok, a_row, a_t32, a_csr, a_csv, l16, l4 = (E[k] for k in ('a_tok', 'a_row', 'a_t32', 'a_csr', 'a_csv', 'l16', 'l4'))
        s_wm, s_wh, s_a, s_b, s_c, s_d, s_e = (E[k] for k in ('s_wm', 's_wh', 's_a', 's_b', 's_c', 's_d', 's_e'))
        PK = [128, 144]; EP, KV0, ZA, NR = 160, 176, 192, 208
        wphi, nml, c32, csv = 224, 232, 236, 238
        SEL = [240, 244]
        a_phi, a_w, a_r0, a_r1, a_z, x_w, x_r = range(248, 255)
        csk = EP; csq = NR
        nmr = [KV0, EP+8, NR, NR+8]
        if pre == 'v':
            u0, u1, u2, u3, u4 = range(208, 213)
            S = [f'v_lshrrev_b32 v{u0}, 5, v1', f'v_bfe_u32 v{u1}, v1, 2, 2', f'v_lshl_add_u32 v{u1}, v{u0}, 3, v{u1}',
                 f'v_bfe_u32 v{u2}, v1, 4, 1', f'v_and_b32 v{u3}, 3, v1', f'v_lshlrev_b32 v{u4}, 3, v{u3}', f'v_lshl_add_u32 v{u2}, v{u2}, 5, v{u4}']
            S += sx(s_t, [(s_wh, 2048)], P_PHI) + [f'v_lshl_add_u32 v{u4}, v{u1}, 6, v{u2}', f'v_add_u32 v{a_phi}, s{s_t}, v{u4}']
            S += [f's_mul_i32 s{s_t+2}, s{s_wave}, {SCR}',
                  f'v_mul_u32_u24 v{u1}, 136, v{u1}', f'v_add3_u32 v{u1}, v{u1}, v{u2}, s{s_t+2}',
                  f's_lshl_b32 s{s_t+1}, s{s_wm}, 6', f'v_add_u32 v{a_r0}, s{s_t+1}, v{u1}',
                  f's_xor_b32 s{s_t+3}, s{s_t+1}, 64', f'v_add_u32 v{a_r1}, s{s_t+3}, v{u1}',
                  f'v_and_b32 v{u4}, 31, v1', f'v_mul_u32_u24 v{u4}, 136, v{u4}', f'v_lshl_add_u32 v{u4}, v{u0}, 3, v{u4}', f'v_add_u32 v{a_w}, s{s_t+2}, v{u4}',
                  f'v_add_u32 v{x_w}, s{s_t+2}, v{l16}', f's_xor_b32 s{s_t}, s{s_wave}, 2', f's_mul_i32 s{s_t}, s{s_t}, {SCR}', f'v_add_u32 v{x_r}, s{s_t}, v{l16}']
            S += [f'v_mov_b32 v{u4}, 0x3f803f80']
            for k in range(2):
                S += [f'v_cmp_eq_u32 vcc, {k}, v{u3}', f'v_cndmask_b32 v{SEL[k]}, 0, v{u4}, vcc', f'v_mov_b32 v{SEL[k]+1}, v{SEL[k]}',
                      f'v_mov_b64 {vr(SEL[k]+2,2)}, {vr(SEL[k],2)}']
            S += [f'v_and_b32 v{u0}, 18, v1', f'v_lshlrev_b32 v{u0}, 1, v{u0}', f'v_and_or_b32 v{u0}, v1, 8, v{u0}', f'v_and_b32 v{u1}, 4, v1',
                  f'v_lshl_or_b32 v{u0}, v{u1}, 2, v{u0}', f'v_and_b32 v{u1}, 33, v1', f'v_lshl_or_b32 v{a_z}, v{u1}, 25, v{u0}',
                  f'v_lshl_or_b32 v{a_z}, v{u1}, 30, v{a_z}']
            a.extend(S)
            return
        if pre == 's':
            S = sx(s_t, [(s_l, 16), (s_g, 2), (s_wh, 1)])
            S += sx(s_d, [(s_t, 65536), (s_wm, 32768), (s_m, 2048)], WS_KVP) + sx(s_e, [(s_t, 2048), (s_m, 128), (s_wm, 64)], WS_ZP)
            S += sx(s_b, [(s_t, 128)], WS_ZF) + sx(s_c, [(s_t, 4096)], WS_KVF)
            a.extend(S)
            return
        S = []
        for b in range(4): S.append(f'ds_read_b32 v{nml+b}, v{a_tok} offset:{64*b}')
        for nb in range(2): S.append(f'ds_read_b128 {vr(csk+4*nb,4)}, v{a_csr} offset:{256+64*nb}')
        for u in range(2):
            for t in range(2): S.append(f'ds_read_b64_tr_b16 {vr(wphi+4*u+2*t,2)}, v{a_phi} offset:{(16*t+4*u)*64}')
        for nb in range(2): S.append(f'ds_read_b32 v{csv+nb}, v{a_csv} offset:{512+64*nb}')
        for b in range(4):
            S.append(f'ds_read_b128 {vr(nmr[b],4)}, v{a_row} offset:{64*b}')
            S.append(f'ds_read_b128 {vr(nmr[b]+4,4)}, v{a_row} offset:{512+64*b}')
            if b == 0:
                for Tt in range(2): S.append(f'ds_read_b32 v{c32+Tt}, v{a_t32} offset:{512+128*Tt}')
        def qk_prep(n0, cs):
            L = []
            for b in range(4):
                for k in range(4): L.append(pk('fma', acc(b, n0)+2*k, cs+2*k, ('b', nml+b), acc(b, n0)+2*k))
                for k in range(4): L.append(cvt(acc(b, n0)+k, acc(b, n0)+2*k, acc(b, n0)+2*k+1))
            for Tt in range(2):
                for k in range(4): L.append(sw16(acc(2*Tt, n0)+k, acc(2*Tt+1, n0)+k))
                L += [mf32(PK[Tt], wphi, acc(2*Tt, n0)), mf32(PK[Tt], wphi+4, acc(2*Tt+1, n0), PK[Tt])]
            return L
        def vprep(b):
            r = acc(b, 4); P, C = [], []
            for nb in range(2):
                for p in range(2): P.append(pk('fma', r+4*nb+2*p, nmr[b]+2*p, ('b', csv+nb), r+4*nb+2*p))
            for nb in range(2):
                for p in range(2): P.append(pk('mul', r+4*nb+2*p, r+4*nb+2*p, nmr[b]+4+2*p))
            for k in range(4): C.append(cvt(r+k, r+2*k, r+2*k+1))
            return P, C, [sw16(r, r+2), sw16(r+1, r+3)]
        def softmax(Tt):
            x = PK[Tt]; c = c32 + Tt
            ta, tb = ((acc(2, 3), acc(3, 3)), (acc(2, 2), acc(3, 2)))[Tt]
            mx, mn, bp, bm = ta, ta+1, tb, tb+1
            L = [f'v_max3_f32 v{mx}, v{x}, v{x+1}, v{x+2}', f'v_max3_f32 v{mn}, -v{x}, -v{x+1}, -v{x+2}']
            for k in range(3, 15, 2):
                L += [f'v_max3_f32 v{mx}, v{mx}, v{x+k}, v{x+k+1}', f'v_max3_f32 v{mn}, v{mn}, -v{x+k}, -v{x+k+1}']
            L += [f'v_max_f32 v{mx}, v{mx}, v{x+15}', f'v_max_f32 v{mn}, v{mn}, -v{x+15}']
            L += [sw32(mx, mn), f'v_max_f32 v{mx}, v{mx}, v{mn}', f'v_mul_f32 v{bm}, -v{mx}, v{c}', f'v_mov_b32 v{bp}, v{bm}', sw32(bp, bm)]
            parts = [L]; L = []
            for k in range(0, 16, 2): L.append(pk('fma', EP+k, x+k, ('b', c), ('b', bp)))
            for k in range(0, 16, 2): L.append(pk('fma', x+k, x+k, ('b', c), ('b', bm), neg=[1, 0, 0]))
            parts.append(L); L = []
            for k in range(16): L.append(f'v_exp_f32 v{EP+k}, v{EP+k}')
            for k in range(16): L.append(f'v_exp_f32 v{x+k}, v{x+k}')
            parts.append(L); L = []
            sp, sm = ta, ta+2
            r1, r2 = tb+2, tb+3
            L += [pk('add', sp, EP, EP+2), pk('add', sm, x, x+2)]
            for k in range(4, 16, 2): L += [pk('add', sp, sp, EP+k), pk('add', sm, sm, x+k)]
            L += [f'v_add_f32 v{sp}, v{sp}, v{sp+1}', f'v_add_f32 v{sm}, v{sm}, v{sm+1}', sw32(sp, sm), f'v_add_f32 v{sp}, v{sp}, v{sm}',
                  f'v_rcp_f32 v{r2}, v{sp}', f'v_mov_b32 v{r1}, v{r2}', sw32(r1, r2)]
            for k in range(0, 16, 2): L.append(pk('mul', x+k, x+k, ('b', r2)))
            for k in range(8): L.append(cvt(x+k, x+2*k, x+2*k+1))
            for k in range(0, 16, 2): L.append(pk('mul', EP+k, EP+k, ('b', r1)))
            for k in range(8): L.append(cvt(x+8+k, EP+2*k, EP+2*k+1))
            return parts + [L]
        FR = [[acc(0, 2), acc(0, 3)], [acc(1, 2), acc(1, 3)]]
        def to_lds(x):
            return [f'ds_write_b64 v{a_w}, {vr(x+8*(1-sg)+2*j,2)} offset:{64*sg+16*j}' for sg in (1, 0) for j in range(4)]
        def frags():
            return [f'ds_read_b64_tr_b16 {vr(FR[k][u]+2*tt,2)}, v{(a_r0, a_r1)[k]} offset:{(16*u+4*tt)*136}' for k in (1, 0) for u in range(2) for tt in range(2)]
        KV1 = PK[0]
        def kvm(Tt):
            L = []
            for k, K in ((1, KV1), (0, KV0)):
                for u in range(2): L.append(mf32(K, FR[k][u], acc(2*Tt+u, 4), None if (Tt == 0 and u == 0) else K))
                for u in range(2): L.append(mf32(ZA, SEL[k], FR[k][u], None if (Tt == 0 and u == 0 and k == 1) else ZA))
            return L
        sc = sched if self.sch else (lambda L: L)
        K = qk_prep(2, csk); isM = lambda t: t.startswith('v_mfma')
        VP_ = [vprep(b) for b in range(4)]
        sm0, sm1 = softmax(0), softmax(1)
        mfma = E['mfma']
        TM = [mfma(1, b, n) for b in range(4) for n in (2, 3)] + [mfma(1, b, n) for b in range(4) for n in (4, 5)] + [mfma(1, b, 1) for b in range(4)] + [mfma(1, b, 0) for b in range(self.bpos+1, 4)]
        K01 = []
        for b in range(2):
            K01 += [f'v_fmac_f32 v{acc(b,2)+k}, v{csk+k}, v{nml+b}' for k in range(8)] + K[8*b+4:8*b+8]
        S = interleave(TM, S + K01, per=[2]*24)
        S += sc([t for t in K[16:] if not isM(t)] + [f'v_mul_f32 v{c32+Tt}, {f2u(LOG2E)}, v{c32+Tt}' for Tt in range(2)] + VP_[0][0] + VP_[1][0])
        def cutA(n, k):
            nonlocal S
            if self.fine == n: self.aw(S + ['s_waitcnt lgkmcnt(0)']); S = []; self.stamp(k)
        cutA(1, 12)
        S += sc([t for t in K if isM(t)] + VP_[0][1] + VP_[1][1] + VP_[0][2] + VP_[1][2] + sm0[0])
        cutA(1, 13)
        S += sc(sm0[1] + sm0[2] + sm1[0] + sm0[3] + to_lds(PK[0]) + frags())
        cutA(1, 14)
        S += sm1[1] + interleave(kvm(0), sm1[2][2:], per=[4]*7 + [2]) + sm1[2][:2]
        cutA(2, 12)
        S += sc(sm1[3] + to_lds(PK[1]) + frags() + sum((VP_[b][k] for k in range(3) for b in (2, 3)), []), lambda t: t.startswith('ds_read'))
        cutA(2, 13)
        M = kvm(1)
        X = [f'ds_write_b128 v{x_w}, {vr(KV1+4*k,4)} offset:{1024*k}' for k in range(4)]
        S += M[0:5] + X[0:2] + M[5:6] + X[2:4] + [f'ds_write_b32 v{x_w}, v{ZA+1} offset:4096'] + M[6:8]
        cutA(2, 14)
        self.aw(S); S = []
        S += ['s_waitcnt lgkmcnt(0)', 's_barrier']
        for k in range(4): S.append(f'ds_read_b128 {vr(EP+4*k,4)}, v{x_r} offset:{1024*k}')
        S.append(f'ds_read_b32 v{csv}, v{x_r} offset:4096')
        for u in range(2):
            for k in range(4): S.append(pk('add', KV0+8*u+2*k, KV0+8*u+2*k, EP+8*u+2*k))
            for k in range(4): S.append(cvt(KV0+8*u+k, KV0+8*u+2*k, KV0+8*u+2*k+1))
            S.append(f'buffer_store_dwordx4 {vr(KV0+8*u,4)}, v{l16}, {srd(sWS)}, s{s_d} offen offset:{1024*u} sc1')
        S += [f'v_add_f32 v{ZA}, v{ZA}, v{csv}', f'v_mov_b32_dpp v{ZA+3}, v{ZA} quad_perm:[1,0,3,2] row_mask:0xf bank_mask:0xf', cvt(ZA, ZA, ZA+3),
              f'buffer_store_dword v{ZA}, v{a_z}, {srd(sWS)}, s{s_e} offen sc1']
        self.sw(S, name='A k-part'); S = []
        if not self.yw: a('s_barrier')
        self.stamp(3)
        u3, u4 = ZA + 4, ZA + 5
        for nb in range(2): S.append(f'ds_read_b128 {vr(csq+4*nb,4)}, v{a_csr} offset:{64*nb}')
        S += qk_prep(0, csq) + sum(softmax(0) + softmax(1), [])
        S += [f'v_lshrrev_b32 v{u3}, 5, v1', f'v_and_b32 v{u4}, 1, v1', f'v_lshlrev_b32 v{u4}, 6, v{u4}', f'v_lshl_add_u32 v{a_z}, v{u3}, 4, v{u4}',
              f'v_bfe_u32 v{u4}, v1, 4, 1', f'v_lshlrev_b32 v{u4}, 15, v{u4}', f'v_lshl_add_u32 v{u4}, v{u3}, 8, v{u4}',
              f'v_and_b32 v{u3}, 15, v1', f'v_lshl_add_u32 v{a_w}, v{u3}, 4, v{u4}', f's_add_u32 s{s_d}, s{s_a}, 65536']
        if self.yw:
            S = sched(S); S.insert(self.yw, 's_barrier'); self.aw(S); S = []
        else: self.sw(S, name='A q-part'); S = []
        self.stamp(4)
        a('s_barrier')
        self.stamp(7)
        KF = KV0; ZF = EP
        if self.b2: a(f's_sleep {self.b2}')
        self.ll_wait(([f's_sleep {self.n2}'] if self.n2 else []) + [f'buffer_load_dwordx4 {vr(ZF+4*u,4)}, v{a_z}, {srd(sWS)}, s{s_b} offen offset:{32*u} sc1' for u in range(2)] +
                     [f'buffer_load_dwordx4 {vr(KF+4*k,4)}, v{l16}, {srd(sWS)}, s{s_c} offen offset:{1024*k} sc1' for k in range(4)],
                     list(range(ZF, ZF+8)) + list(range(KF, KF+16)), u3, u4, 5, pipe=(self.pipe >> 1) & 1)
        self.stamp(5)
        ACC = E['ACC']
        for Tt in range(2):
            N, DP, DM = ACC + 48*Tt, ACC + 48*Tt + 16, ACC + 48*Tt + 32
            x = PK[Tt]
            S += [mf32(DP, ZF, x+8), mf32(DP, ZF+4, x+12, DP), mf32(DM, ZF, x), mf32(DM, ZF+4, x+4, DM),
                  mf32(N, KF, x+8), mf32(N, KF+4, x+12, N), mf32(N, KF+8, x, N), mf32(N, KF+12, x+4, N)]
            S += [f'v_add_f32 v{DP}, v{DP}, v{DM+1}', f'v_add_f32 v{DP}, {f2u(1e-6)}, v{DP}', f'v_rcp_f32 v{DP}, v{DP}']
            for p in range(2):
                for jj in range(2):
                    j = p + 2*jj
                    for k in range(2):
                        r = N + 4*j + 2*k
                        if Tt == 0: S += [f'v_mul_f32 v{r}, v{DP}, v{r}', f'v_mul_f32 v{r+1}, v{DP}, v{r+1}']
                        else: S.append(pk('mul', r, r, ('b', DP)))
                        S.append(cvt(DM+4+4*p+2*jj+k, r, r+1))
                S.append(f'buffer_store_dwordx4 {vr(DM+4+4*p,4)}, v{a_w}, {srd(sWS)}, s{(s_a, s_d)[Tt]} offen offset:{512*p} sc1')
        self.sw(S, name='A finish')
        self.stamp(6)

    def epiB(self, E, pre):
        a = self.a
        acc = E['acc']; a_tok, a_row, a_csr, a_csv, l16 = (E[k] for k in ('a_tok', 'a_row', 'a_csr', 'a_csv', 'l16'))
        s_wm, s_wh, s_a, s_b, s_c, s_d, s_e = (E[k] for k in ('s_wm', 's_wh', 's_a', 's_b', 's_c', 's_d', 's_e'))
        BI, BI0, MK, a_h = 236, 244, 248, 252
        if pre == 'v':
            t1, t2, t3 = 208, 209, 210
            S = [f'v_and_b32 v{t1}, 15, v1', f'v_lshrrev_b32 v{t2}, 4, v1', f'v_lshlrev_b32 v{t2}, 2, v{t2}', f'v_sub_u32 v{t1}, v{t1}, v{t2}',
                 f'v_mov_b32 v{t3}, {f2u(-1e30)}']
            for blk in range(2):
                for i in range(4):
                    S += [f'v_add_u32 v{t2}, {(16 if blk == 0 else 0) - i}, v{t1}', f'v_and_b32 v{t2}, -15, v{t2}', f'v_cmp_eq_u32 vcc, 0, v{t2}',
                          f'v_cndmask_b32 v{BI+4*blk+i}, v{t3}, 0, vcc']
                    if i % 2 == 0: S += [f'v_cndmask_b32 v{MK+2*blk+i//2}, 0, -1, vcc', f'v_lshrrev_b32 v{MK+2*blk+i//2}, 16, v{MK+2*blk+i//2}']
                    else: S += [f'v_cndmask_b32 v{t2}, 0, -1, vcc', f'v_lshl_or_b32 v{MK+2*blk+i//2}, v{t2}, 16, v{MK+2*blk+i//2}']
            S += [f's_or_b32 s{s_t}, s{s_m}, s{s_wm}', 's_cselect_b64 vcc, -1, 0']
            for i in range(4): S.append(f'v_cndmask_b32 v{BI0+i}, v{t3}, v{BI+i}, vcc')
            S += sx(s_t, [(s_wh, 2048)], P_PHI) + [f'v_add_u32 v{a_h}, s{s_t}, v{l16}']
            S += [f's_add_u32 s{s_t+1}, s{s_t}, 1024', f's_cmp_eq_u32 s{s_wm}, 0', f's_cselect_b32 s{s_t}, s{s_t}, {L_P + 7168}', f's_cselect_b32 s{s_t+1}, s{s_t+1}, {L_P + 7168}',
                  f'v_add_u32 v{a_h+1}, s{s_t}, v{l16}', f'v_add_u32 v{a_h+2}, s{s_t+1}, v{l16}']
            a.extend(S)
            return
        if pre == 's':
            S = sx(s_b, [(s_l, 1 << 19), (s_m, 1 << 16), (s_g, 4096), (s_wh, 2048)], WS_HALO - (1 << 19))
            S += [f's_add_u32 s{s_c}, s{s_b}, 65536', f's_cmp_eq_u32 s{s_m}, 15', f's_cselect_b32 s{s_c}, {BIG}, s{s_c}',
                  f's_cmp_eq_u32 s{s_wm}, 0', f's_cselect_b32 s{s_c}, {BIG}, s{s_c}', f's_cselect_b32 s{s_b}, s{s_b}, {BIG}',
                  f's_cmp_eq_u32 s{s_m}, 0', f's_cselect_b32 s{s_b}, {BIG}, s{s_b}', f's_add_u32 s{s_d}, s{s_a}, 65536']
            a.extend(S)
            return
        nr = [160, 168, 176, 208]
        nml, rsl, csk, csv, csq, HB = 216, 220, 224, 232, 128, 136
        VP = [184, 196]
        U, M, t1, t2 = 144, 152, 156, 157
        S = []
        for b in (3, 0, 1, 2):
            S += [f'ds_read_b32 v{nml+b}, v{a_tok} offset:{64*b}', f'ds_read_b32 v{rsl+b}, v{a_tok} offset:{512+64*b}']
            if b == 3:
                for nb in range(2): S.append(f'ds_read_b128 {vr(csk+4*nb,4)}, v{a_csr} offset:{768+256+64*nb}')
                for nb in range(2): S.append(f'ds_read_b32 v{csv+nb}, v{a_csv} offset:{768+512+64*nb}')
            S += [f'ds_read_b128 {vr(nr[b],4)}, v{a_row} offset:{64*b}', f'ds_read_b128 {vr(nr[b]+4,4)}, v{a_row} offset:{512+64*b}']
        for nb in range(2): S.append(f'ds_read_b128 {vr(csq+4*nb,4)}, v{a_csr} offset:{768+64*nb}')
        def kprep(b):
            r = acc(b, 2); L = []
            for k in range(4): L.append(pk('fma', r+2*k, csk+2*k, ('b', nml+b), r+2*k))
            for k in range(4): L.append(pk('mul', r+2*k, r+2*k, ('b', rsl+b)))
            for k in range(4): L.append(cvt(r+k, r+2*k, r+2*k+1))
            return L
        def vprep(b):
            r = acc(b, 4); L = []
            for nb in range(2):
                for p in range(2): L.append(pk('fma', r+4*nb+2*p, nr[b]+2*p, ('b', csv+nb), r+4*nb+2*p))
            for nb in range(2):
                for p in range(2): L.append(pk('mul', r+4*nb+2*p, r+4*nb+2*p, nr[b]+4+2*p))
            for nb in range(2):
                for p in range(2):
                    if b == 3: L.append(cvt(acc(3, 3)+2*nb+p, r+4*nb+2*p, r+4*nb+2*p+1))
                    else: L.append(cvt(VP[nb]+2+2*b+p, r+4*nb+2*p, r+4*nb+2*p+1))
            return L
        def qprep(b):
            r = acc(b, 0); L = []
            for k in range(4): L.append(pk('fma', r+2*k, csq+2*k, ('b', nml+b), r+2*k))
            for k in range(4): L.append(cvt(r+k, r+2*k, r+2*k+1))
            return L
        mfma = E['mfma']
        TM = [mfma(1, b, n) for b in (3, 0, 1, 2) for n in (2, 3, 4, 5)] + [mfma(1, b, 1) for b in range(4)] + [mfma(1, b, 0) for b in range(self.bpos+1, 4)]
        rk, rv = acc(3, 2), acc(3, 4)
        P3 = [f'v_fmac_f32 v{rk+k}, v{csk+k}, v{nml+3}' for k in range(8)] + [f'v_mul_f32 v{rk+k}, v{rsl+3}, v{rk+k}' for k in range(8)] + kprep(3)[8:]
        P3 += [f'v_fmac_f32 v{rv+k}, v{nr[3]+k%4}, v{csv+k//4}' for k in range(8)] + [f'v_mul_f32 v{rv+k}, v{nr[3]+4+k%4}, v{rv+k}' for k in range(8)] + vprep(3)[8:]
        T0 = interleave(TM, S[:14] + P3, per=[2]*24); S = S[14:]
        for k in range(2): T0.append(f'buffer_store_dwordx4 {vr(acc(3,2)+4*k,4)}, v{l16}, {srd(sWS)}, s{s_c} offen offset:{1024*k} sc1')
        for k in range(2): S.append(f'ds_write_b128 v{a_h+1+k}, {vr(acc(3,2)+4*k,4)}')
        for nb in range(2): S.append(f'v_mov_b64 {vr(VP[nb]+8,2)}, {vr(acc(3,3)+2*nb,2)}')
        for b in range(3): S += kprep(b) + vprep(b)
        for b in range(4): S += qprep(b)
        for b in range(4): S.append(f'v_mul_f32 v{rsl+b}, {f2u(LOG2E * 32 ** -0.5)}, v{rsl+b}')
        def logits(b):
            s = nr[b]
            L = [mf16(s, HB if b == 0 else acc(b-1, 2), acc(b, 0), BI0 if b == 0 else BI), mf16(s+4, acc(b, 2), acc(b, 0), BI+4)]
            for p in range(2):
                L += [f'v_max3_f32 v{U+2*b+p}, v{s+2*p}, v{s+2*p+1}, v{s+4+2*p}', f'v_max_f32 v{U+2*b+p}, v{U+2*b+p}, v{s+5+2*p}',
                      f'v_mul_f32 v{U+2*b+p}, v{rsl+b}, v{U+2*b+p}']
            L.append(f'v_max_f32 v{M+b}, v{U+2*b}, v{U+2*b+1}')
            return L
        for b in (1, 2, 3): S += logits(b)
        if self.sch: S = sched(S)
        HL = [f'buffer_load_dwordx4 {vr(HB+4*k,4)}, v{l16}, {srd(sWS)}, s{s_b} offen offset:{1024*k} sc1' for k in range(2)]
        if self.fine == 3: self.aw(T0 + ['s_waitcnt lgkmcnt(0)']); T0 = []; self.stamp(13)
        self.aw(T0 + S[:self.hpos] + HL + S[self.hpos:]); S = []
        if self.fine == 3: self.stamp(14)
        a('s_waitcnt lgkmcnt(0)'); a('s_barrier')
        self.stamp(3)
        L1, L3 = self.lab('hg'), self.lab('hd')
        a('s_waitcnt vmcnt(0)')
        if self.fine == 3: self.stamp(7)
        a(f's_cmp_eq_u32 s{s_wm}, 0'); a(f's_cbranch_scc1 {L1}')
        for k in range(2): a(f'ds_read_b128 {vr(HB+4*k,4)}, v{a_h} offset:{1024*k}')
        a('s_waitcnt lgkmcnt(0)')
        a(f's_branch {L3}')
        a.label(L1)
        self.ll_wait(HL, list(range(HB, HB+8)), t1, t2, 0, pre=True)
        a.label(L3)
        self.stamp(4)
        S += logits(0)
        for nb in range(2): S.append(f'v_mov_b64 {vr(VP[nb],2)}, {vr(HB+4+2*nb,2)}')
        def allred(op, mid):
            L = [sw32(M, M+2), sw32(M+1, M+3), f'{op} v{M}, v{M}, v{M+2}', f'{op} v{M+1}, v{M+1}, v{M+3}', sw16(M, M+1), f'{op} v{M+1}, v{M}, v{M+1}']
            L += mid
            L += [f'v_mov_b32 v{M}, v{M+1}', sw16(M, M+1), f'v_mov_b64 {vr(M+2,2)}, {vr(M,2)}', sw32(M, M+2), sw32(M+1, M+3)]
            return L
        S += allred('v_max_f32', [])
        for b in range(4): S.append(pk('add', U+2*b, U+2*b, ('b', M+b), neg=[0, 1]))
        for k in range(8): S.append(f'v_exp_f32 v{U+k}, v{U+k}')
        for b in range(4): S.append(f'v_add_f32 v{M+b}, v{U+2*b}, v{U+2*b+1}')
        S += allred('v_add_f32', [f'v_rcp_f32 v{M+1}, v{M+1}'])
        for b in range(4): S.append(pk('mul', U+2*b, U+2*b, ('b', M+b)))
        for b in range(4):
            P = nr[b]; O = acc(b, 4)
            for p in range(2): S.append(cvt(U+2*b+p, U+2*b+p, U+2*b+p))
            for blk in range(2):
                for p in range(2): S.append(f'v_and_b32 v{P+2*blk+p}, v{U+2*b+p}, v{MK+2*blk+p}')
            for db in range(2): S.append(mf16(O+4*db, VP[db]+2*b, P))
        S += [f's_add_u32 s{s_b}, s{s_a}, 32768', f's_add_u32 s{s_c}, s{s_d}, 32768']
        for b in range(4):
            O = acc(b, 4)
            for k in range(4): S.append(cvt(O+k, O+2*k, O+2*k+1))
            S.append(f'buffer_store_dwordx4 {vr(O,4)}, v{l16}, {srd(sWS)}, s{(s_a, s_b, s_d, s_c)[b]} offen sc1')
        self.sw(S, name='B finish')
        self.stamp(6)

    def build(self):
        a = self.a
        self.prologue()
        self.compute()
        self.loader()
        self.helper()
        a.label('L_fin')
        self.stamp(15)
        self.stamp_out()
        if self.probe:
            def body():
                a('s_sub_u32 s93, s94, s93'); a(f's_mul_i32 s93, s93, {self.probe[2]}'); a('s_min_u32 s93, s93, 100000')
                a(f's_memrealtime s[{s_t+6}:{s_t+7}]'); a('s_waitcnt lgkmcnt(0)'); a(f's_add_u32 s93, s93, s{s_t+6}')
                a.label('L_probe')
                a(f's_memrealtime s[{s_t+6}:{s_t+7}]'); a('s_waitcnt lgkmcnt(0)'); a(f's_sub_u32 s94, s{s_t+6}, s93'); a('s_cmp_lt_i32 s94, 0'); a('s_cbranch_scc1 L_probe')
            self.cond([f's_or_b32 s{s_t}, s2, s{s_wave}', f's_cmp_eq_u32 s{s_t}, 0'], body)
        a('s_waitcnt vmcnt(0)')
        a.label('L_end')
        a('s_endpgm')
        a.pad()
        assert a.maxreg('v') <= 255 and a.maxreg('s') < 96
        return a.text()


def generate(listform=False, **kw):
    body = Gen(**kw).build()
    ref = open('interleave_layers__linear_kernel_hedgehog__sliding_local_dilated__prompt.s.ref').read() if not listform else ''
    head = ''.join(l + '\n' for l in ref.split('\n') if l.startswith(';') and '@launch' not in l)
    if listform: head += f'; @launch kernel={KNAME} grid=(256,1,1) block=(512,1,1) lds={LDS_BYTES}\n'
    else: head += f'; @launch grid=(256,1,1) block=(512,1,1) lds={LDS_BYTES}\n'
    return head + '.amdgcn_target "amdgcn-amd-amdhsa--gfx950"\n' + kernel_head(KNAME) + body + kernel_desc(KNAME, 256, 96, 256)

if __name__ == '__main__':
    kw = eval(sys.argv[2]) if len(sys.argv) > 2 else {}
    open(sys.argv[1], 'w').write(generate(**kw))
```

```python
import sys, struct
sys.path.insert(0, 'work')
from asmlib import *

KNAME = 'interleave_layers__linear_kernel_hedgehog__sliding_local_dilated__prompt_kernel'

WS_CTR, WS_STAMP, WS_ST, WS_CS = 0x0, 0x100000, 0x200000, 0x300000
WS_HALO, WS_KVF, WS_ZP, WS_ZF, WS_KVP = 0x400000, 0x600000, 0x680000, 0x6C0000, 0x800000
WS_RF = 0x700000
WS_XI, WS_OI, WS_END = 0xC00000, 0x1800000, 0x2800000
BIG = 0x40000000
STG = 40960
XOFF = 24576
L_WO = 24576
L_SPARE = 3 * STG
L_P = 155648
P_NM, P_RS, P_CS, P_MODE, P_CNT, P_PHI = L_P, L_P + 512, L_P + 1024, L_P + 2816, L_P + 2832, L_P + 3072
LDS_BYTES = 163840
SCR = 5120
LOG2E = 1.4426950408889634
def f2u(x): return '0x%08x' % struct.unpack('<I', struct.pack('<f', x))[0]

s_fast = 3
pAX, pAW, pPHI, pAWO, pBW, pBWO, pOUT, pDBG, pWS = 4, 6, 8, 10, 14, 16, 18, 20, 22
sWS, sX, sW, sWO, sOUT, sDBG = 24, 28, 32, 36, 40, 44
s_m, s_g, s_wave, s_l = 48, 49, 50, 51
s_t = 52
s_cnt, s_x = 60, 61
s_i = 62
s_stamp = 63
s_rot = 64
s_rot2 = 95
s_ft, s_fn, s_fd, s_po = 90, 91, 88, 87
def srd(b): return 's[%d:%d]' % (b, b + 3)


def sx(d, terms, const=0):
    L = []
    for n, (r, k) in enumerate([t for t in terms if t[1]]):
        t = d if n == 0 else s_x
        if k == 1 and n: t = r
        elif k == 1: L.append(f's_mov_b32 s{t}, s{r}')
        elif k > 0 and k & (k - 1) == 0: L.append(f's_lshl_b32 s{t}, s{r}, {k.bit_length()-1}')
        else: L.append(f's_mul_i32 s{t}, s{r}, {k}')
        if n: L.append(f's_add_u32 s{d}, s{d}, s{t}')
    if const: L.append(f's_add_u32 s{d}, s{d}, {const:#x}' if const > 0 else f's_sub_u32 s{d}, s{d}, {-const:#x}')
    return L

def pkop(r):
    if isinstance(r, tuple):
        return vr(r[1] & ~1, 2), r[1] & 1, r[1] & 1
    assert r % 2 == 0
    return vr(r, 2), 0, 1
def pk(op, d, *src, neg=None):
    o = [pkop(s) for s in src]
    t = 'v_pk_%s_f32 %s, %s' % (op, vr(d, 2), ', '.join(x[0] for x in o))
    lo = [x[1] for x in o]; hi = [x[2] for x in o]
    if any(lo): t += ' op_sel:[%s]' % ','.join(map(str, lo))
    if not all(hi): t += ' op_sel_hi:[%s]' % ','.join(map(str, hi))
    if neg: t += ' neg_lo:[%s] neg_hi:[%s]' % (','.join(map(str, neg)), ','.join(map(str, neg)))
    return t
def cvt(d, a, b): return f'v_cvt_pk_bf16_f32 v{d}, v{a}, v{b}'
def sw16(a, b): return f'v_permlane16_swap_b32 v{a}, v{b}'
def sw32(a, b): return f'v_permlane32_swap_b32 v{a}, v{b}'
def mf16(d, A, B, C=None): return f'v_mfma_f32_16x16x32_bf16 {vr(d,4)}, {vr(A,4)}, {vr(B,4)}, ' + (vr(C, 4) if C is not None else '0')
def mf32(d, A, B, C=None): return f'v_mfma_f32_32x32x16_bf16 {vr(d,16)}, {vr(A,4)}, {vr(B,4)}, ' + (vr(C, 16) if C is not None else '0')


class Gen:
    def __init__(self, prof=0, limit=40000, dist=2, touch=1, bm=27, local=1, pd=5, sch=1, hprio=2, opos=(1, 5), warm=1, nap=4, probe=None, snake=1, rf=2, hq=5, fine=0, llf='sc1', ot=0, hc=None, hpos=90, early=0, w2=0, w0b=0, cpf=0, tr=4, bpos=1, r0=2, rprio=3, w0a=1, pipe=0, b1=0, b2=0, n1=0, n2=0, zw=2, yw=60, thr=None, pw=0, po=0, jit=0, st0=6, vpos=1, fst='sc1', rot0=12):
        self.a = Asm()
        assert bm >= 16 and not early
        self.__dict__.update(prof=prof, limit=limit, dist=dist, touch=touch, bm=bm, local=local, pd=pd, sch=sch, hprio=hprio, opos=opos, warm=warm, nap=nap, probe=probe, snake=snake, rf=rf, hq=hq, fine=fine, llf=llf, ot=ot, hc=hc, hpos=hpos, early=early, w2=w2, w0b=w0b, cpf=cpf, tr=tr, bpos=bpos, r0=r0, rprio=rprio, w0a=w0a, pipe=pipe, b1=b1, b2=b2, n1=n1, n2=n2, zw=zw, yw=yw, thr=thr, pw=pw, po=po, jit=jit, st0=st0, vpos=vpos, fst=fst, rot0=rot0)
        self.nlab = 0

    def lab(self, p):
        self.nlab += 1
        return 'L_%s_%d' % (p, self.nlab)

    def aw(self, L):
        self.a.extend(autowait(L))
    def sw(self, L, crit=None, name=''):
        if self.sch:
            L = sched(L, crit)
            if name and __name__ == '__main__': print('sched', name, len(L), 'instructions, about', sched.last_estimate, 'cycles', file=sys.stderr)
        self.a.extend(autowait(L))

    def cond(self, test, body):
        L = self.lab('skip')
        self.a.extend(test); self.a(f's_cbranch_scc0 {L}')
        body()
        self.a.label(L)

    def spin(self, issue, check, vt, tag, pre=False, pipe=0):
        a = self.a
        L, C, D = self.lab('spin'), self.lab('chk'), self.lab('done')
        a(f's_mov_b32 s{s_cnt}, 0')
        if pipe:
            for _ in range(pipe): a.extend(issue)
            a.label(L); a.extend(issue); a(f's_waitcnt vmcnt({pipe*len(issue)})'); a.extend(check)
        elif pre:
            a(f's_branch {C}')
            a.label(L); a.extend(issue); a('s_waitcnt vmcnt(0)')
            a.label(C); a.extend(check)
        else:
            a.label(L); self.aw(list(issue) + list(check))
        a('s_cmp_eq_u64 vcc, 0'); a(f's_cbranch_scc1 {D}')
        a(f's_add_u32 s{s_cnt}, s{s_cnt}, 1')
        a(f's_cmp_lt_u32 s{s_cnt}, {self.limit}'); a(f's_cbranch_scc1 {L}')
        a(f'v_mov_b32 v{vt}, {1 << tag}')
        a(f'buffer_atomic_or v{vt}, off, {srd(sDBG)}, 0 offset:4 sc1')
        a.label(D)

    def ll_wait(self, loads, regs, t1, t2, tag, pre=False, pipe=0):
        S = []
        h = len(regs) // 2
        for t, R in ((t1, regs[:h]), (t2, regs[h:])):
            S.append(f'v_max_u32 v{t}, v{R[0]}, v{R[1]}')
            for k in range(2, len(R), 2): S.append(f'v_max3_u32 v{t}, v{t}, v{R[k]}, v{R[k+1]}')
        S += [f'v_max_u32 v{t1}, v{t1}, v{t2}', f'v_cmp_eq_u32 vcc, -1, v{t1}']
        loads = [l.replace('sc1', self.llf) for l in loads]
        self.spin(loads, S, t1, tag, pre, pipe)

    def flag_set(self, soff, vt, which=3):
        a = self.a
        a('s_mov_b64 exec, 1')
        if which & 1: a(f'buffer_store_dword v{vt}, off, {srd(sWS)}, s{soff}')
        if which & 2: a(f'buffer_store_dword v{vt}, off, {srd(sWS)}, s{soff+1} sc1')
        a('s_mov_b64 exec, -1')
    def flag_addr(self, va, vt, soff, remote=False):
        L = [f'v_bfe_u32 v{va}, v1, 1, 3', f'v_and_b32 v{vt}, 1, v1', f'v_lshl_add_u32 v{va}, v{va}, 2, v{vt}']
        if remote: return L + [f'v_lshlrev_b32 v{va}, 7, v{va}']
        return L + [f's_cmp_eq_u32 s{s_fast}, 1', f's_cselect_b32 s{s_t}, 0, 5', f's_cselect_b32 s{s_t+1}, 0, {WS_RF}',
                    f's_lshl_b32 s{soff}, s{soff}, s{s_t}', f's_add_u32 s{soff}, s{soff}, s{s_t+1}', f's_add_u32 s{s_t}, s{s_t}, 2',
                    f'v_lshlrev_b32 v{va}, s{s_t}, v{va}']
    def flag_load(self, soff, va, vt): return f'buffer_load_dword v{vt}, v{va}, {srd(sWS)}, s{soff} offen sc1'
    def flag_wait(self, soff, va, vt, tag, pre=False, nap=0, pipe=0):
        self.spin(([f's_sleep {nap}'] if nap else []) + [self.flag_load(soff, va, vt)], [f'v_cmp_eq_u32 vcc, 0, v{vt}'], vt, tag, pre, pipe)
    def get_mode(self, vt):
        self.a.extend([f'v_mov_b32 v{vt}, {P_MODE}', f'ds_read_b32 v{vt}, v{vt}', 's_waitcnt lgkmcnt(0)', f'v_readfirstlane_b32 s{s_fast}, v{vt}'])

    def jitter(self, k):
        a = self.a
        L = self.lab('jit')
        a.extend([f's_lshl_b32 s{s_t+6}, s2, 3', f's_add_u32 s{s_t+6}, s{s_t+6}, s{s_wave}', f's_lshl_b32 s{s_t+6}, s{s_t+6}, 2', f's_add_u32 s{s_t+6}, s{s_t+6}, s{s_l}',
                  f's_add_u32 s{s_t+6}, s{s_t+6}, {(k*7919 + self.jit*104729) & 0xffffff}', f's_mul_i32 s{s_t+6}, s{s_t+6}, 0x9e3779b1', f's_lshr_b32 s{s_t+7}, s{s_t+6}, 13',
                  f's_xor_b32 s{s_t+6}, s{s_t+6}, s{s_t+7}', f's_mul_i32 s{s_t+6}, s{s_t+6}, 0x85ebca6b', f's_lshr_b32 s{s_t+7}, s{s_t+6}, 29',
                  f's_lshr_b32 s{s_t+6}, s{s_t+6}, 8', f's_and_b32 s{s_t+6}, s{s_t+6}, 127', f's_lshr_b32 s{s_t+6}, s{s_t+6}, s{s_t+7}'])
        a.label(L)
        a.extend(['s_sleep 1', f's_sub_u32 s{s_t+6}, s{s_t+6}, 1', f's_cbranch_scc0 {L}'])
    def stamp(self, k):
        if self.jit: self.jitter(k)
        if self.probe:
            for n, (pl, pk_) in enumerate(self.probe[:2]):
                if pk_ == k:
                    def body():
                        self.a(f's_memrealtime s[{s_t+6}:{s_t+7}]'); self.a('s_waitcnt lgkmcnt(0)'); self.a(f's_mov_b32 s{93+n}, s{s_t+6}')
                    self.cond([f's_cmp_eq_u32 s{s_l}, {pl}'], body)
        if not self.prof or self.prof >= 5: return
        a = self.a
        a(f'{"s_memtime" if self.prof == 4 else "s_memrealtime"} s[{s_t+6}:{s_t+7}]')
        a(f's_mov_b32 s{s_stamp}, m0')
        a(f's_lshl_b32 m0, s{s_l}, 4'); a(f's_add_u32 m0, m0, {k}')
        a('s_waitcnt lgkmcnt(0)')
        a(f'v_writelane_b32 v255, s{s_t+6}, m0')
        a(f's_mov_b32 m0, s{s_stamp}')
    def stamp_out(self):
        if not self.prof: return
        a = self.a
        a.extend(sx(s_t, [(2, 2048), (s_wave, 256)], WS_STAMP))
        a('v_lshlrev_b32 v254, 2, v1')
        a(f'buffer_store_dword v255, v254, {srd(sWS)}, s{s_t} offen')

    def prologue(self):
        a = self.a
        a('s_cmp_ge_u32 s2, 256'); a('s_cbranch_scc1 L_end')
        a('s_load_dwordx16 s[4:19], s[0:1], 0')
        a('s_load_dwordx4 s[20:23], s[0:1], 64')
        a('v_lshrrev_b32 v2, 6, v0')
        a(f'v_readfirstlane_b32 s{s_wave}, v2')
        a('v_and_b32 v1, 63, v0')
        a(f's_and_b32 s{s_rot}, s2, 3'); a(f's_lshl_b32 s{s_rot}, s{s_rot}, 2')
        a(f's_bfe_u32 s{s_t}, s2, 0x20003'); a(f's_add_u32 s{s_m}, s{s_rot}, s{s_t}')
        a(f's_mov_b32 s{s_rot}, s{s_m}')
        a(f's_and_b32 s{s_rot2}, s2, 4'); a(f's_lshl_b32 s{s_rot2}, s{s_rot2}, 1')
        a(f's_lshr_b32 s{s_g}, s2, 5'); a(f's_add_u32 s{s_g}, s{s_g}, s{s_rot2}')
        a(f's_mov_b32 s{s_l}, 0'); a(f's_mov_b32 s{s_fast}, 0')
        for b, n in ((sWS, WS_END), (sX, 2048*1024*2), (sW, 1024*3072*2), (sWO, 1024*1024*2), (sOUT, WS_END), (sDBG, 256)):
            a(f's_mov_b32 s{b+2}, {n}'); a(f's_mov_b32 s{b+3}, 0x20000')
        if self.prof: a('v_mov_b32 v255, 0')
        self.stamp(0)
        a(f's_cmp_ge_u32 s{s_wave}, 6'); a('s_cbranch_scc1 L_helper')
        if self.st0 & 1: a(f's_cmp_lt_u32 s{s_wave}, 4'); a('s_cbranch_scc1 L_compute')
        else: a(f's_cmp_ge_u32 s{s_wave}, 4'); a('s_cbranch_scc1 L_loader')
    def pointers(self):
        a = self.a
        a('s_waitcnt lgkmcnt(0)')
        for b, p in ((sWS, pWS), (sX, pAX), (sW, pAW), (sWO, pAWO), (sOUT, pWS), (sDBG, pDBG)):
            a(f's_mov_b64 s[{b}:{b+1}], s[{p}:{p+1}]')

    def trickle_setup(self):
        a = self.a
        a(f's_mov_b64 s[{sOUT}:{sOUT+1}], s[{sWO}:{sWO+1}]'); a(f's_mov_b32 s{sOUT+2}, {1 << 21}')
        a.extend(sx(s_ft, [(2, 8192), (s_wave, 2048)], -8192))
        n1 = -(-16 // self.tr)
        a(f's_cmp_eq_u32 s{s_l}, 0'); a(f's_cselect_b32 s{s_fn}, 12, {n1}')
        a(f's_cmp_lt_u32 s{s_l}, {2 if self.warm else 0}'); a(f's_cselect_b32 s{s_fn}, s{s_fn}, 0')
    def trickle_lines(self, n):
        a = self.a
        a(f's_sub_u32 s{s_t}, s{sOUT+2}, {128*n}'); a(f's_min_u32 s{s_t}, s{s_t}, s{s_ft}')
        for r in range(n): a(f's_buffer_load_dwordx2 s[{s_fd}:{s_fd+1}], {srd(sOUT)}, s{s_t} offset:{128*r+60}')
        a(f's_add_u32 s{s_ft}, s{s_ft}, {128*n}')
    def trickle(self, i):
        a = self.a
        n1 = -(-16 // self.tr)
        def nxt():
            a(f's_mov_b64 s[{sOUT}:{sOUT+1}], s[{pBW}:{pBW+1}]'); a(f's_mov_b32 s{sOUT+2}, {3 << 21}')
            a.extend(sx(s_ft, [(2, 24576), (s_wave, 6144)], -24576))
        def body():
            if isinstance(i, str): self.cond([f's_cmp_eq_u32 {i}, {n1}'], nxt)
            elif i == n1: nxt()
            self.trickle_lines(self.tr)
        self.cond([f's_cmp_gt_u32 s{s_fn}, {i}'], body)
    def trickle_rest(self, part):
        rest = 48 - self.tr * (12 - -(-16 // self.tr))
        n = rest
        self.cond([f's_cmp_eq_u32 s{s_fn}, 12'], lambda: self.trickle_lines(n))

    def warm_w(self):
        a = self.a
        if not self.pw: return
        a(f's_and_b32 s{s_t}, s{s_m}, 3'); a.extend(sx(s_t+1, [(s_t, 16*6144), (s_wave, 4*6144), (s_g, 128)], -16*6144))
        a(f's_and_b32 s{s_t+2}, s{s_g}, 7')
        for st in range(1, 1 + self.pw):
            a(f's_cmp_le_u32 s{s_t+2}, {st-1}'); a(f's_addc_u32 s{s_t}, s{s_rot2}, {st-1}')
            a(f's_mul_i32 s{s_t}, s{s_t}, {64*6144}'); a(f's_add_u32 s{s_t}, s{s_t}, s{s_t+1}')
            for k in range(12): a(f's_buffer_load_dwordx2 s[{s_fd}:{s_fd+1}], {srd(sW)}, s{s_t} offset:{2048*k+60}')
    def warm_wo_setup(self):
        a = self.a
        a(f's_and_b32 s{s_t}, s{s_m}, 3'); a.extend(sx(s_po, [(s_t, 256*2048), (s_wave, 64*2048), (s_g, 128)], -256*2048))
    def warm_wo(self, n):
        a = self.a
        def body():
            for k in range(n): a(f's_buffer_load_dwordx2 s[{s_fd}:{s_fd+1}], {srd(sWO)}, s{s_po} offset:{2048*k+60}')
            a(f's_add_u32 s{s_po}, s{s_po}, {2048*n}'); a(f's_min_u32 s{s_po}, s{s_po}, {(1 << 21) - 2048*n}')
        if self.po: self.cond([f's_lshr_b32 s{s_t}, {self.po}, s{s_l}', f's_bitcmp1_b32 s{s_t}, 0'], body)

    def w_dma_offsets(self, dw, idx, t0, t1, t2):
        a = self.a
        a(f'v_lshrrev_b32 v{t0}, 3, v1'); a(f'v_mul_u32_u24 v{t0}, 6144, v{t0}')
        a(f'v_and_b32 v{t1}, 7, v1'); a(f'v_bfe_u32 v{t2}, v1, 4, 1'); a(f'v_lshlrev_b32 v{t2}, 1, v{t2}')
        a(f'v_xor_b32 v{t1}, v{t1}, v{t2}'); a(f'v_xor_b32 v{t2}, 4, v{t1}')
        a(f'v_lshl_add_u32 v{t1}, v{t1}, 4, v{t0}'); a(f'v_lshl_add_u32 v{t2}, v{t2}, 4, v{t0}')
        d = 8*6144 - 1024
        a(f's_lshl_b32 s{s_t+1}, s{s_g}, 7'); a(f'v_add_u32 v{t1}, s{s_t+1}, v{t1}'); a(f's_add_u32 s{s_t+1}, s{s_t+1}, {d}'); a(f'v_add_u32 v{t2}, s{s_t+1}, v{t2}')
        a(f's_cmp_eq_u32 s{idx}, 0')
        for t in range(3):
            c = [((3*w + t) & 1)*32*6144 + ((3*w + t) >> 1)*2048 for w in range(2)]
            a(f's_mov_b32 s{s_t}, {c[1]}'); a(f's_cmov_b32 s{s_t}, {c[0]}')
            a(f'v_add_u32 v{dw+4*t}, s{s_t}, v{t1}'); a(f'v_add_u32 v{dw+4*t+1}, s{s_t}, v{t2}')
            a(f'v_add_u32 v{dw+4*t+2}, {2*d}, v{dw+4*t}'); a(f'v_add_u32 v{dw+4*t+3}, {2*d}, v{dw+4*t+1}')

    def w_frag_addr(self, aw, head_sreg, base, t0, t1, t2, nb_list=(0, 1)):
        L = [f'v_lshrrev_b32 v{t2}, 4, v1', f'v_bfe_u32 v{t0}, v1, 2, 2', f'v_lshl_add_u32 v{t1}, v{t2}, 3, v{t0}',
             f'v_lshrrev_b32 v{t0}, 1, v{t0}', f'v_and_b32 v{t2}, 1, v{t2}', f'v_lshl_add_u32 v{t0}, v{t2}, 1, v{t0}']
        if head_sreg is not None: L += [f's_lshl_b32 s{s_t}, s{head_sreg}, 1', f'v_xor_b32 v{t0}, s{s_t}, v{t0}']
        L += [f'v_and_b32 v{t2}, 3, v1', f'v_lshlrev_b32 v{t2}, 3, v{t2}', f'v_lshl_add_u32 v{t2}, v{t1}, 7, v{t2}']
        if base: L.append(f'v_add_u32 v{t2}, {base}, v{t2}')
        for k, nb in enumerate(nb_list): L += [f'v_xor_b32 v{t1}, {nb}, v{t0}', f'v_lshl_add_u32 v{aw+k}, v{t1}, 5, v{t2}']
        return L

    def reduce_job(self, after_by=None, after_fill=None):
        a = self.a
        T = 200
        vA, vZ, vO, t1, t2 = T, T+1, T+2, T+3, T+4
        s_a, s_b, s_c, s_d, s_e = 80, 81, 82, 83, 84
        a.extend(sx(s_t, [(s_l, 32), (s_g, 4), (s_wave, 1)], -4))
        a.extend(sx(s_a, [(s_t, 32768), (s_m, 128)], WS_KVP)); a(f's_add_u32 s{s_b}, s{s_a}, 16384')
        a.extend(sx(s_d, [(s_t, 2048), (s_m, 128)], WS_KVF))
        a.extend(sx(s_c, [(s_t, 1024)], WS_ZP)); a.extend(sx(s_e, [(s_t, 64)], WS_ZF))
        a(f's_and_b32 s{s_t}, s{s_t}, 1'); a(f's_xor_b32 s{s_t+1}, s{s_m}, s{s_g}'); a(f's_or_b32 s{s_t}, s{s_t}, s{s_t+1}')
        a(f's_cselect_b32 s{s_c}, {BIG}, s{s_c}'); a(f's_cselect_b32 s{s_e}, {BIG}, s{s_e}')
        a(f'v_and_b32 v{t1}, 7, v1'); a(f'v_lshlrev_b32 v{t1}, 4, v{t1}')
        a(f'v_lshrrev_b32 v{t2}, 3, v1'); a(f'v_lshl_add_u32 v{vA}, v{t2}, 11, v{t1}')
        a(f'v_lshlrev_b32 v{vZ}, 4, v1')
        a(f'v_lshrrev_b32 v{t2}, 4, v1'); a(f'v_lshl_add_u32 v{vO}, v{t2}, 2, v{t1}')
        D = T + 8; U = 160
        def late_fill():
            for k in range(4): a(f'v_mov_b32 v{D+k}, -1')
            fill = f'buffer_store_dwordx4 {vr(D,4)}, v{vZ}, {srd(sWS)}, s{s_t} offen'
            a.extend(sx(s_t, [(s_g, 131072), (s_wave, 32768), (s_m, 2048)], WS_KVP + (1 << 21) - 4*32768)); a(fill + ' sc1'); a(fill + ' offset:1024 sc1')
            a(f's_lshr_b32 s{s_t+1}, s{s_wave}, 1'); a(f's_and_b32 s{s_t+2}, s{s_wave}, 1')
            a.extend(sx(s_t, [(s_t+2, 1 << 20), (s_m, 1 << 16), (s_g, 4096), (s_t+1, 2048)], WS_HALO - 2*2048)); a(fill + ' sc1'); a(fill + ' offset:1024 sc1')
            a.extend(sx(s_t, [(s_wave, 262144), (s_m, 16384), (s_g, 1024)], WS_ST - 3*262144))
            a.extend(sx(s_t+3, [(s_g, 16384), (s_m, 1024)], WS_CS + 262144))
            a(f's_cmp_eq_u32 s{s_wave}, 7'); a(f's_cselect_b32 s{s_t}, s{s_t+3}, s{s_t}'); a(fill + ' sc1')
            a('s_mov_b64 exec, 0xff')
            a(f's_add_u32 s{s_t}, s{s_d}, {1 << 17}'); a(fill + ' sc1')
            a(f's_add_u32 s{s_t}, s{s_e}, {1 << 12}'); a(fill + ' sc1')
            a.extend(sx(s_t, [(s_g, 4096), (s_t+1, 2048), (s_m, 128)], WS_ZP + (1 << 16) - 2*2048)); a(fill + ' sc1')
            a('s_mov_b64 exec, -1')
            a('s_waitcnt vmcnt(0)')
        self.cond([f's_cmp_eq_u32 s{s_l}, 0'], late_fill)
        a('s_barrier')
        if self.jit: self.jitter(20)
        if self.rprio: a(f's_setprio {self.rprio}')
        a('s_barrier')
        if after_by and self.w0a == 0: after_by()
        if self.b1: a(f's_sleep {self.b1}')
        self.ll_wait(([f's_sleep {self.n1}'] if self.n1 else []) + [f'buffer_load_dwordx4 {vr(D,4)}, v{vA}, {srd(sWS)}, s{s_a} offen sc1',
                      f'buffer_load_dwordx4 {vr(D+4,4)}, v{vA}, {srd(sWS)}, s{s_b} offen sc1',
                      f'buffer_load_dwordx4 {vr(D+8,4)}, v{vZ}, {srd(sWS)}, s{s_c} offen sc1',
                      f'buffer_load_dwordx4 {vr(D+12,4)}, v{vZ}, {srd(sWS)}, s{s_c} offen offset:1024 sc1'],
                     list(range(D, D+16)), t1, t2, 1, pipe=self.pipe & 1)
        self.stamp(5)
        S = []
        for z in range(2):
            d, u = D + 8*z, U + 16*z
            for k in range(8): S += [f'v_lshlrev_b32 v{u+2*k}, 16, v{d+k}', f'v_and_b32 v{u+2*k+1}, 0xffff0000, v{d+k}']
            for k in range(4): S.append(pk('add', u+2*k, u+2*k, u+8+2*k))
            for k in range(4): S.append(sw32(u+k, u+4+k))
            S += [pk('add', u, u, u+4), pk('add', u+2, u+2, u+6), sw16(u, u+2), sw16(u+1, u+3), pk('add', u, u, u+2)]
            for k in range(2): S.append(f'v_add_f32_dpp v{u+k}, v{u+k}, v{u+k} row_ror:8 row_mask:0xf bank_mask:0xf')
            S.append(cvt(u, u, u+1))
        S += ['s_mov_b32 exec_lo, 0x00ff00ff', 's_mov_b32 exec_hi, 0x00ff00ff',
              f'buffer_store_dword v{U}, v{vO}, {srd(sWS)}, s{s_d} offen sc1',
              f'buffer_store_dword v{U+16}, v{vO}, {srd(sWS)}, s{s_e} offen sc1', 's_mov_b64 exec, -1']
        self.sw(S)
        if self.rprio: a('s_setprio 0')
        if after_by and self.w0a == 1: after_by()
        if self.zw: a(f's_waitcnt vmcnt({12 if (after_by and self.w0a == 1 and self.zw == 1) else 0})')
        a('s_barrier')
        if after_by and self.w0a == 2: after_by()

    def loader(self):
        a = self.a
        a.label('L_loader')
        dx, dw, dwo, t0, t1, t2, vf = 8, 16, 28, 2, 3, 4, 5
        s_ld, s_kx, s_kw, s_slot, s_mx, s_xstep, s_wo, s_wm0, s_sx, s_sw, s_xb, s_fl, s_mw = range(65, 78)
        a(f's_sub_u32 s{s_ld}, s{s_wave}, 4')
        self.w_dma_offsets(dw, s_ld, t0, t1, t2)
        a(f's_mul_i32 s{s_mw}, s{s_ld}, 12288')
        a(f's_lshl_b32 s{s_mx}, s{s_ld}, 13'); a(f's_add_u32 s{s_mx}, s{s_mx}, {XOFF}')
        s_flip = 78
        def nxt(r):
            return [f's_cmp_eq_u32 s{r}, s{s_flip}', f's_addc_u32 s{r}, s{r}, 1', f's_and_b32 s{r}, s{r}, 15']
        def wst(slot=None):
            L = []
            for j in range(12):
                if j == 0: L.append(f's_add_u32 m0, s{s_mw}, ' + (f's{s_slot}' if slot is None else str(slot*STG)))
                elif j % 4 == 0: L.append('s_add_u32 m0, m0, 4096')
                L.append(f'buffer_load_dwordx4 v{dw+j}, {srd(sW)}, s{s_kw} offen offset:{1024*(j%4)} lds')
            a.extend(L + nxt(s_sw) + [f's_mul_i32 s{s_kw}, s{s_sw}, {64*6144}'])
        def xst(slot=None):
            L = []
            for j in range(8):
                if j == 0: L.append(f's_add_u32 m0, s{s_mx}, ' + (f's{s_slot}' if slot is None else str(slot*STG)))
                elif j == 4: L.append('s_add_u32 m0, m0, 4096')
                L.append(f'buffer_load_dwordx4 v{dx+j}, {srd(sX)}, s{s_kx} offen offset:{1024*(j%4)} sc1 lds')
            a.extend(L + nxt(s_sx) + [f's_mul_i32 s{s_kx}, s{s_sx}, s{s_xstep}', f's_add_u32 s{s_kx}, s{s_kx}, s{s_xb}'])
        def kstart(first):
            if first:
                a(f's_and_b32 s{s_sx}, s{s_m}, {self.rot0}'); a(f's_mov_b32 s{s_sw}, s{s_sx}'); a(f's_mov_b32 s{s_flip}, 16')
            else:
                a(f's_add_u32 s{s_sw}, s{s_rot2}, 15'); a(f's_and_b32 s{s_sw}, s{s_sw}, 15'); a(f's_mov_b32 s{s_sx}, s{s_sw}')
                a(f's_add_u32 s{s_flip}, s{s_g}, 15'); a(f's_and_b32 s{s_flip}, s{s_flip}, 15'); a.extend(nxt(s_sx))
            a(f's_mul_i32 s{s_kw}, s{s_sw if first else s_g}, {64*6144}'); a(f's_mul_i32 s{s_kx}, s{s_sx}, s{s_xstep}'); a(f's_add_u32 s{s_kx}, s{s_kx}, s{s_xb}')
        a(f's_lshl_b32 s{s_xb}, s{s_m}, 18'); a(f's_mov_b32 s{s_xstep}, 128'); kstart(True)
        self.pointers()
        wst(0)
        a(f'v_lshrrev_b32 v{t0}, 3, v1'); a(f'v_and_b32 v{t1}, 7, v1')
        a(f'v_lshrrev_b32 v{t2}, 4, v1'); a(f'v_xor_b32 v{t1}, v{t1}, v{t2}'); a(f'v_xor_b32 v{t2}, 4, v{t1}')
        a(f's_lshl_b32 s{s_t}, s{s_ld}, 17'); a(f'v_lshl_add_u32 v{t0}, v{t0}, 11, s{s_t}')
        a(f'v_lshl_add_u32 v{t1}, v{t1}, 4, v{t0}'); a(f'v_lshl_add_u32 v{t2}, v{t2}, 4, v{t0}')
        for j in range(8): a(f'v_add_u32 v{dx+j}, {j*16384 - 1024*(j%4)}, v{t1 if j % 2 == 0 else t2}')
        xst(0); wst(1)
        a(f'v_lshrrev_b32 v{t0}, 5, v1'); a(f'v_lshlrev_b32 v{t0}, 4, v{t0}')
        a(f'v_bfe_u32 v{t1}, v1, 3, 2'); a(f'v_add_u32 v{t0}, v{t0}, v{t1}')
        a(f's_lshl_b32 s{s_t}, s{s_g}, 7'); a(f'v_lshl_add_u32 v{t0}, v{t0}, 11, s{s_t}')
        a(f'v_and_b32 v{t1}, 7, v1'); a(f'v_bfe_u32 v{t2}, v1, 4, 1'); a(f'v_lshlrev_b32 v{t2}, 1, v{t2}')
        a(f'v_xor_b32 v{t1}, v{t1}, v{t2}'); a(f'v_xor_b32 v{t2}, 4, v{t1}')
        a(f'v_lshl_add_u32 v{t1}, v{t1}, 4, v{t0}'); a(f'v_lshl_add_u32 v{t2}, v{t2}, 4, v{t0}')
        for G in range(4): a(f'v_add_u32 v{dwo+G}, {G*4*2048 - 1024*G}, v{t1 if G % 2 == 0 else t2}')
        a('s_waitcnt vmcnt(12)'); a('s_barrier')
        xst(1); wst(2)
        a('s_waitcnt vmcnt(12)'); a('s_barrier')
        xst(2)
        a.label('L_ld_enter')
        a(f's_mov_b32 s{s_i}, 0'); a(f's_mov_b32 s{s_slot}, 0')
        self.trickle_setup(); self.warm_wo_setup()
        def loop(name, n, extra):
            a.label(name)
            xst(); wst()
            if extra:
                a(f's_add_u32 s{s_t}, s{s_i}, 1'); a(f's_and_b32 s{s_t}, s{s_t}, 7')
                a.extend(sx(s_wo, [(s_rot2, 2), (s_t, 1)], 24)); a(f's_and_b32 s{s_wo}, s{s_wo}, 31')
                a.extend(sx(s_wm0, [(s_wo, 65536), (s_ld, 2*4*2048)]))
                a.extend(sx(s_wo, [(s_t, 4096), (s_ld, 2048)], L_SPARE)); a(f's_mov_b32 m0, s{s_wo}')
                for G in range(2): a(f'buffer_load_dwordx4 v{dwo+G}, {srd(sWO)}, s{s_wm0} offen offset:{1024*G} lds')
            self.trickle(f's{s_i}'); self.warm_wo(5)
            a(f's_add_u32 s{s_slot}, s{s_slot}, {STG}'); a(f's_cmp_eq_u32 s{s_slot}, {3*STG}'); a(f's_cselect_b32 s{s_slot}, 0, s{s_slot}')
            a(f's_add_u32 s{s_i}, s{s_i}, 1'); a(f's_cmp_lt_u32 s{s_i}, {n}')
            a(f's_waitcnt vmcnt({22 if extra else 20})')
            a('s_barrier')
            a(f's_cbranch_scc1 {name}')
        if self.early: loop('L_ld_loop', 5, False); loop('L_ld_loop2', 13, True)
        else: loop('L_ld_loop', 13, False)
        def wo(p0, n, thr=None):
            a.extend(sx(s_wm0, [(s_ld, 4096)], L_WO + 4096*p0))
            a.extend(sx(s_wo, [(s_rot2, 2), (s_ld, 1)], p0)); a(f's_and_b32 s{s_wo}, s{s_wo}, 31'); a(f's_lshl_b32 s{s_wo}, s{s_wo}, 16')
            L = self.lab('wo')
            a(f's_mov_b32 s{s_i}, 0')
            a.label(L)
            if thr is not None: a(f's_waitcnt vmcnt({thr})')
            a(f's_mov_b32 m0, s{s_wm0}')
            a(f's_add_u32 s{s_wm0}, s{s_wm0}, 8192')
            for G in range(4): a(f'buffer_load_dwordx4 v{dwo+G}, {srd(sWO)}, s{s_wo} offen offset:{1024*G} lds')
            a(f's_add_u32 s{s_wo}, s{s_wo}, 131072'); a(f's_and_b32 s{s_wo}, s{s_wo}, 0x1fffff')
            a(f's_add_u32 s{s_i}, s{s_i}, 1'); a(f's_cmp_lt_u32 s{s_i}, {n//2}'); a(f's_cbranch_scc1 {L}')
        if self.early:
            wo(4, 10)
            a('s_waitcnt vmcnt(20)'); a('s_barrier')
            wo(14, 10)
            a('s_barrier')
            wo(0, 4)
        else:
            wo(24, 8)
            a('s_waitcnt vmcnt(16)'); a('s_barrier')
            wo(4, 10)
            a('s_barrier')
            wo(14, 10, self.thr); wo(0, 4, self.thr)
        if self.jit: self.jitter(23)
        a.extend(sx(s_fl, [(s_l, 8192), (s_m, 256), (s_rot2, 16), (s_ld, 8)], 4096))
        self.get_mode(t0); a.extend(self.flag_addr(vf, t0, s_fl))
        a.extend(sx(s_xb, [(s_l, 1 << 22), (s_m, 1 << 18)], WS_XI))
        a(f's_bitcmp0_b32 s{s_l}, 0')
        a(f's_cselect_b64 s[{sW}:{sW+1}], s[{pBW}:{pBW+1}], s[{pAW}:{pAW+1}]')
        a(f's_cselect_b64 s[{sWO}:{sWO+1}], s[{pBWO}:{pBWO+1}], s[{pAWO}:{pAWO+1}]')
        a(f's_mov_b64 s[{sX}:{sX+1}], s[{pWS}:{pWS+1}]'); a(f's_mov_b32 s{sX+2}, {WS_END}')
        a(f's_mov_b32 s{s_xstep}, 16384'); kstart(False)
        a(f's_lshl_b32 s{s_t}, s{s_ld}, 13'); a(f'v_lshl_add_u32 v{t0}, v1, 4, s{s_t}')
        for j in range(8): a(f'v_add_u32 v{dx+j}, {4096*(j//4)}, v{t0}')
        a(f's_bitcmp1_b32 s{s_l}, 0'); a('s_cbranch_scc1 L_ld_B')
        self.reduce_job(lambda: wst(0))
        a('s_branch L_ld_join')
        a.label('L_ld_B')
        if self.w0b == 0: self.cond([f's_cmp_lg_u32 s{s_l}, 3'], lambda: wst(0))
        a('s_barrier')
        if self.w0b == 1: self.cond([f's_cmp_lg_u32 s{s_l}, 3'], lambda: wst(0))
        a.label('L_ld_join')
        a('s_waitcnt vmcnt(0)'); a('s_barrier')
        a(f's_cmp_eq_u32 s{s_l}, 3'); a('s_cbranch_scc1 L_fin')
        self.trickle_rest(1); self.warm_w()
        a(f's_add_u32 s{s_l}, s{s_l}, 1')
        if self.jit: self.jitter(21)
        a('s_barrier')
        if self.jit: self.jitter(22)
        wst(1)
        if self.w2 == 2: wst(2)
        a('s_barrier')
        if self.w2 == 0: wst(2)
        self.flag_wait(s_fl, vf, t0, 2, pipe=2 if self.pipe & 4 else 0)
        self.stamp(1)
        xst(1); xst(2)
        a('s_waitcnt vmcnt(8)'); a('s_barrier')
        if self.w2 == 1: wst(2)
        a('s_branch L_ld_enter')

    def helper(self):
        a = self.a
        a.label('L_helper')
        t0, t1, t2, t3, l4, l16, ones, a_st, a_cs, v_st, v_cs, aw, vtw, vto, vd = 2, 3, 4, 5, 6, 7, 8, 12, 13, 14, 15, 16, 18, 19, 20
        F, D, SA, SC = 32, 96, 128, 160
        s_h, s_tw, s_a, s_b, s_trot = 65, 66, 67, 68, 69
        xm = 4; s_r = 70; vrf, vfl, aw2, dw = 21, 22, 24, 80
        a(f's_sub_u32 s{s_h}, s{s_wave}, 6')
        a(f'v_lshlrev_b32 v{l4}, 2, v1'); a(f'v_lshlrev_b32 v{l16}, 4, v1')
        a.extend(self.w_frag_addr(aw, s_h, 0, t0, t1, t2))
        for k in range(2): a(f'v_add_u32 v{aw2+k}, {L_SPARE}, v{aw+k}')
        a(f's_and_b32 s{s_t+1}, s{s_m}, {15 - self.rot0}'); a(f's_cmp_eq_u32 s{s_t+1}, 3'); a(f's_cselect_b32 s{s_t+1}, 0, s{s_t+1}'); a(f's_mul_i32 s{s_t+1}, s{s_t+1}, {STG}')
        for k in range(2): a(f'v_add_u32 v{aw+k}, s{s_t+1}, v{aw+k}')
        a.extend(self.flag_addr(vrf, t0, None, remote=True))
        a(f'v_lshrrev_b32 v{t0}, 5, v1'); a(f'v_and_b32 v{t1}, 31, v1'); a(f'v_lshlrev_b32 v{t1}, 4, v{t1}')
        a(f'v_lshl_add_u32 v{v_st}, v{t0}, 10, v{t1}')
        a(f'v_and_b32 v{t2}, 24, v1'); a(f'v_and_b32 v{t3}, 3, v1'); a(f'v_lshl_add_u32 v{t2}, v{t3}, 1, v{t2}'); a(f'v_add_u32 v{t2}, v{t2}, v{t0}')
        a.extend(sx(s_t, [(s_h, 256)], P_NM)); a(f'v_lshl_add_u32 v{a_st}, v{t2}, 3, s{s_t}')
        a(f'v_mov_b32 v{t2}, {BIG}'); a(f'v_cmp_gt_u32 vcc, 384, v{t1}'); a(f'v_cndmask_b32 v{v_cs}, v{t2}, v{v_st}, vcc')
        a.extend(sx(s_t, [(s_h, 384)], P_CS)); a(f'v_lshl_add_u32 v{t1}, v{t0}, 3, v{t1}'); a(f'v_add_u32 v{a_cs}, s{s_t}, v{t1}')
        self.pointers()

        def touch_setup(first=False):
            if not self.touch: return
            c, gt = s_t + 2, s_t + 3
            def cls(b):
                a(f's_lshr_b32 s{gt}, s{b}, 7'); a(f's_sub_u32 s{gt}, 3, s{gt}'); a(f's_and_b32 s{gt}, s{gt}, 7')
                a(f's_sub_u32 s{c}, s{s_g}, s{gt}'); a(f's_and_b32 s{c}, s{c}, 7'); a(f's_sub_u32 s{c}, s{c}, 1')
                a(f's_and_b32 s{s_t}, s{s_g}, 8'); a(f's_add_u32 s{gt}, s{gt}, s{s_t}'); a(f's_lshl_b32 s{gt}, s{gt}, 7')
            a(f's_and_b32 s{s_t+4}, s{s_m}, {xm-1}'); a(f's_lshl_b32 s{s_t+4}, s{s_t+4}, 1'); a(f's_add_u32 s{s_t+4}, s{s_t+4}, s{s_h}')
            cls(sW)
            if first: a(f's_or_b32 s{s_rot}, s{s_m}, 3'); a(f's_and_b32 s{s_rot}, s{s_rot}, {self.rot0}'); a(f's_mov_b32 s{s_trot}, 0')
            else: a(f's_mov_b32 s{s_rot}, s{s_rot2}'); a(f's_bfe_u32 s{s_trot}, s{gt}, 0x30007')
            a(f's_cmp_ge_u32 s{c}, 3'); a(f's_cselect_b32 s{s_t}, {32*6144 - 3*2048}, 0'); a(f's_add_u32 s{gt}, s{gt}, s{s_t}')
            a(f's_lshl_b32 s{s_t}, s{c}, 11'); a(f's_add_u32 s{gt}, s{gt}, s{s_t}')
            a(f's_mul_i32 s{s_t}, s{s_t+4}, {(16//xm)*6144}'); a(f's_add_u32 s{gt}, s{gt}, s{s_t}')
            a(f's_cmp_lt_u32 s{c}, 6'); a(f's_cselect_b32 s{s_t}, {16//xm}, 0')
            a(f'v_mul_u32_u24 v{vtw}, 6144, v1'); a(f'v_add_u32 v{vtw}, s{gt}, v{vtw}')
            a(f'v_mov_b32 v{t0}, {BIG}'); a(f'v_cmp_gt_u32 vcc, s{s_t}, v1'); a(f'v_cndmask_b32 v{vtw}, v{t0}, v{vtw}, vcc')
            cls(sWO)
            a(f's_lshl_b32 s{s_t}, s{c}, 19'); a(f's_add_u32 s{gt}, s{gt}, s{s_t}')
            a(f's_mul_i32 s{s_t}, s{s_t+4}, {(128//xm)*2048}'); a(f's_add_u32 s{gt}, s{gt}, s{s_t}')
            a(f's_cmp_lt_u32 s{c}, 4'); a(f's_cselect_b32 s{s_t}, {32//xm}, 0')
            a(f'v_lshlrev_b32 v{vto}, 11, v1'); a(f'v_add_u32 v{vto}, s{gt}, v{vto}')
            a(f'v_cmp_gt_u32 vcc, s{s_t}, v1'); a(f'v_cndmask_b32 v{vto}, v{t0}, v{vto}, vcc')
        def touchW(st):
            if not self.touch: return
            if st == 0: a(f's_add_u32 s{s_tw}, s{s_rot}, s{s_trot}')
            else: a(f's_cmp_le_u32 s{s_trot}, {st-1}'); a(f's_addc_u32 s{s_tw}, s{s_rot}, {st-1}')
            a(f's_and_b32 s{s_tw}, s{s_tw}, 15'); a(f's_mul_i32 s{s_tw}, s{s_tw}, {64*6144}')
            a(f'buffer_load_dword v{vd}, v{vtw}, {srd(sW)}, s{s_tw} offen')
        def touchO(k):
            if not self.touch: return
            a(f's_mov_b32 s{s_tw}, {k*(32//xm)*2048}')
            a(f'buffer_load_dword v{vd}, v{vto}, {srd(sWO)}, s{s_tw} offen')
        def phi_load():
            a(f's_mov_b64 s[{sX}:{sX+1}], s[{pPHI}:{pPHI+1}]'); a(f's_mov_b32 s{sX+2}, 65536')
            a.extend(sx(s_t, [(s_g, 4096), (s_h, 2048)])); a(f's_lshl_b32 s{s_t+1}, s{s_h}, 11'); a(f's_add_u32 m0, s{s_t+1}, {P_PHI}')
            for j in range(2): a(f'buffer_load_dwordx4 v{l16}, {srd(sX)}, s{s_t} offen offset:{1024*j} lds')
        self.w_dma_offsets(dw, s_h, t0, t1, t2)
        touch_setup(True)
        if not self.st0 & 4: phi_load()
        for st in range(1, 3 + self.dist): touchW(st)

        def init_stores():
            for k in range(4): a(f'v_mov_b32 v{SA+k}, -1')
            fill = f'buffer_store_dwordx4 {vr(SA,4)}, v{l16}, {srd(sWS)}, s{s_t} offen'
            a.extend(sx(s_t, [(s_g, 131072), (s_h, 65536), (s_m, 2048)], WS_KVP)); a(fill + ' sc1'); a(fill + ' offset:1024 sc1')
            a(f's_add_u32 s{s_t}, s{s_t}, 32768'); a(fill + ' sc1'); a(fill + ' offset:1024 sc1')
            a('s_mov_b64 exec, 0xff')
            a.extend(sx(s_t, [(s_g, 8192), (s_h, 4096), (s_m, 128)], WS_KVF)); a(fill + ' sc1'); a(fill + ' offset:2048 sc1')
            a.extend(sx(s_t, [(s_g, 4096), (s_h, 2048), (s_m, 128)], WS_ZP)); a(fill + ' sc1')
            a.extend(sx(s_t, [(s_g, 256), (s_h, 128)], WS_ZF))
            a(f's_cmp_eq_u32 s{s_m}, s{s_g}'); a(f's_cselect_b32 s{s_t}, s{s_t}, {BIG}'); a(fill + ' sc1')
            a('s_mov_b64 exec, -1')
            a(f's_and_b32 s{s_t+1}, s{s_g}, 7'); a.extend(sx(s_t, [(s_t+1, 4096), (s_m, 256), (s_rot2, 16), (s_h, BIG)]))
            a(f'v_mov_b32 v{t0}, 0'); a('s_mov_b32 exec_hi, 0')
            a(f'buffer_store_dword v{t0}, v{l4}, {srd(sWS)}, s{s_t} offen sc1')
            a('s_mov_b32 exec_hi, -1')
            a(f'v_lshrrev_b32 v{t1}, 2, v1'); a(f'v_lshlrev_b32 v{t1}, 10, v{t1}'); a(f'v_and_or_b32 v{t1}, v1, 3, v{t1}'); a(f'v_lshlrev_b32 v{t1}, 7, v{t1}')
            a.extend(sx(s_t, [(s_m, 8192), (s_g, 512)], WS_RF)); a(f's_cmp_eq_u32 s{s_h}, 1'); a(f's_cselect_b32 s{s_t}, s{s_t}, {BIG}')
            a('s_mov_b64 exec, 0xfffffff')
            a(f'buffer_store_dword v{t0}, v{t1}, {srd(sWS)}, s{s_t} offen sc1')
            a('s_mov_b64 exec, -1')
        for k in range(4): a(f'v_mov_b32 v{ones+k}, 0x3f803f80')
        def cs_reads(aw=aw):
            for s in range(2):
                for n in range(6):
                    for t in range(2):
                        a(f'ds_read_b64_tr_b16 {vr(F+24*s+4*n+2*t,2)}, v{aw+(n&1)} offset:{(n>>1)*8192+(32*s+4*t)*128}')
            a('s_waitcnt lgkmcnt(0)')
        def cs_publish():
            for s in range(2):
                for n in range(6): a(mf16(D+4*n, ones, F+24*s+4*n, D+4*n if s else None))
            a.extend(sx(s_t, [(s_l, 262144), (s_g, 16384), (s_m, 1024), (s_h, 128)], WS_CS))
            a('s_mov_b64 exec, 0xffff')
            for n in range(6): a(f'buffer_store_dword v{D+4*n}, v{l4}, {srd(sWS)}, s{s_t} offen offset:{(n>>1)*256+(n&1)*64} sc1')
            a('s_mov_b64 exec, -1')
        def chunk(t):
            a(f's_mul_i32 s{s_t}, s{s_m}, {64*6144}'); a(f's_mul_i32 s{s_t+1}, s{s_h}, 12288'); a(f's_add_u32 m0, s{s_t+1}, {L_SPARE + 4096*(t//2)}')
            for j in range(2*t, 2*t+2): a(f'buffer_load_dwordx4 v{dw+j}, {srd(sW)}, s{s_t} offen offset:{1024*(j%4)} lds')
        def arrive():
            a(f's_getreg_b32 s{s_t}, hwreg(HW_REG_XCC_ID, 0, 3)'); a(f's_lshl_b32 s{s_t}, s{s_t}, 2'); a(f's_lshl_b32 s{s_t+1}, 1, s{s_t}')
            a.extend(sx(s_t, [(s_m, 16), (s_rot2, 1)]))
            a('s_mov_b64 exec, 1')
            a(f'v_mov_b32 v{t0}, s{s_t+1}')
            a(f'buffer_atomic_add v{t0}, off, {srd(sDBG)}, s{s_t} sc1')
            a('s_mov_b64 exec, -1')
        def init_wait():
            a(f'v_and_b32 v{t2}, 31, v1'); a(f'v_lshlrev_b32 v{t2}, 3, v{t2}')
            self.spin([f'buffer_load_dword v{t0}, v{t2}, {srd(sDBG)}, 0 offen sc1'],
                      [f'v_lshrrev_b32 v{t1}, 4, v{t0}', f'v_and_b32 v{t1}, 0x0f0f0f0f, v{t1}', f'v_and_b32 v{t3}, 0x0f0f0f0f, v{t0}',
                       f'v_sad_u8 v{t1}, v{t1}, 0, 0', f'v_sad_u8 v{t3}, v{t3}, 0, v{t1}', f'v_cmp_gt_u32 vcc, 8, v{t3}'], t3, 3)
            a(f's_lshr_b32 s{s_t}, s{s_rot2}, 3'); a(f's_lshl_b32 s{s_t+1}, s{s_m}, 1'); a(f's_add_u32 s{s_t}, s{s_t}, s{s_t+1}')
            a(f'v_readlane_b32 s{s_fast}, v{t0}, s{s_t}')
            a(f's_and_b32 s{s_fast}, s{s_fast}, 0x88888888'); a(f's_cselect_b32 s{s_fast}, {1 if self.local else 0}, 0')
            a(f'v_mov_b32 v{t3}, s{s_fast}'); a(f'v_mov_b32 v{t2}, {P_MODE}'); a(f'ds_write_b32 v{t2}, v{t3}')
        def gather(R, va, so, ks):
            L = []
            for k in ks: L += [f's_add_u32 s{s_t}, s{so}, {4096*(k//2)}', f'buffer_load_dwordx4 {vr(R+4*k,4)}, v{va}, {srd(sWS)}, s{s_t} offen offset:{2048*(k%2)} sc1']
            return L
        def total(R):
            n = 8
            while n > 1:
                n //= 2
                for k in range(4*n): a(f'v_add_f32 v{R+k}, v{R+k}, v{R+k+4*n}')
            a(sw32(R, R+2)); a(sw32(R+1, R+3)); a(f'v_add_f32 v{R}, v{R}, v{R+2}'); a(f'v_add_f32 v{R+1}, v{R+1}, v{R+3}')
        def stats_finish():
            for k in range(2): a(f'v_mov_b32_dpp v{SA+2+k}, v{SA+k} row_shl:4 row_mask:0xf bank_mask:0xf')
            for k in range(2): a(f'v_mul_f32 v{SA+k}, {f2u(-1/1024)}, v{SA+k}'); a(f'v_mul_f32 v{SA+2+k}, {f2u(1/1024)}, v{SA+2+k}')
            for k in range(2): a(f'v_fma_f32 v{SA+2+k}, -v{SA+k}, v{SA+k}, v{SA+2+k}')
            for k in range(2): a(f'v_max_f32 v{SA+2+k}, 0, v{SA+2+k}')
            for k in range(2): a(f'v_add_f32 v{SA+2+k}, {f2u(1e-5)}, v{SA+2+k}')
            for k in range(2): a(f'v_rsq_f32 v{SA+2+k}, v{SA+2+k}')
            a('s_mov_b32 exec_lo, 0x0f0f0f0f'); a('s_mov_b32 exec_hi, 0x0f0f0f0f')
            a(f'ds_write_b64 v{a_st}, {vr(SA,2)}'); a(f'ds_write_b64 v{a_st}, {vr(SA+2,2)} offset:512')
            a('s_mov_b64 exec, -1')
        def cs_finish():
            total(SC)
            a(f's_mul_i32 s{s_t}, s{s_l}, 768'); a(f'v_add_u32 v{t0}, s{s_t}, v{a_cs}')
            a('s_mov_b32 exec_lo, 0xffffff'); a('s_mov_b32 exec_hi, 0xffffff')
            a(f'ds_write_b64 v{t0}, {vr(SC,2)}')
            a('s_mov_b64 exec, -1')
        l0 = [f's_cmp_eq_u32 s{s_l}, 0']; ln0 = [f's_cmp_lg_u32 s{s_l}, 0']; l01 = [f's_cmp_lt_u32 s{s_l}, 2']
        a(f's_mov_b32 s{s_r}, 0')
        a.label('L_hp_layer')
        a.extend(sx(s_a, [(s_l, 262144), (s_m, 16384), (s_h, 512)], WS_ST))
        a.extend(sx(s_b, [(s_l, 262144), (s_g, 16384), (s_h, 384)], WS_CS))
        self.trickle_setup(); self.warm_wo_setup()
        hi = lambda: self.hprio and a(f's_setprio {self.hprio}')
        lo = lambda: self.hprio and a('s_setprio 0')
        l1 = [f's_cmp_eq_u32 s{s_l}, 1']
        for i in range(17):
            a('s_barrier')
            if self.jit and i in (0, 1, 4, 8, 9, 12, 16): self.jitter(30 + i)
            ncs = 16 - self.rot0
            if i < ncs: self.cond([f's_and_b32 s{s_t}, s{s_m}, {ncs-1}', f's_lshl_b32 s{s_t+1}, s{s_l}, 2', f's_or_b32 s{s_t}, s{s_t}, s{s_t+1}', f's_cmp_eq_u32 s{s_t}, {i}'], cs_reads)
            if i == ncs - 1: self.cond(l0, cs_publish)
            if i == 8: self.cond(l1, lambda: (cs_reads(aw2), cs_publish()))
            if i in ((3, 5, 7, 12, 14) if self.rot0 > 12 else (5, 7, 12, 14)): a('s_waitcnt vmcnt(0)')
            if i == 5: self.cond(ln0, lambda: self.flag_wait(s_r, vrf, vfl, 8, pre=True, nap=self.nap))
            if i <= 12: hi()
            if i == 9: self.cond(l0, init_wait)
            if i == 4: self.cond(ln0, lambda: a(self.flag_load(s_r, vrf, vfl)))
            if i + 3 + self.dist <= 15: touchW(i + 3 + self.dist)
            if 0 <= i - (1 if self.early else 5) < 4: touchO(i - (1 if self.early else 5))
            if i == 1: self.cond(l0, init_stores)
            if i == (4 if self.rot0 > 12 else 6): self.cond([f's_or_b32 s{s_t}, s{s_l}, s{s_h}', f's_cmp_eq_u32 s{s_t}, 0'], arrive)
            if 1 <= i <= 6: self.cond(l1, lambda: chunk(i - 1))
            if i == 6: self.cond([f's_cmp_eq_u32 s{s_l}, 2'], phi_load)
            if i == 0 and self.st0 & 4: self.cond(l0, phi_load)
            if i in (9, 10): a.extend(gather(SA, v_st, s_a, range(4*(i-9), 4*(i-9)+4)))
            if i in (11, 12): self.cond(l01, lambda: a.extend(gather(SC, v_cs, s_b, range(4*(i-11), 4*(i-11)+4))))
            if i <= 12: lo()
            if 1 <= i <= 12: self.trickle(i - 1)
            if 0 <= i <= 12: self.warm_wo(5)
            if i == 12: self.ll_wait(gather(SA, v_st, s_a, range(8)), list(range(SA, SA+32)), t0, t1, 6, pre=True)
            if i == 13: total(SA)
            if i == 14: stats_finish()
            if i == 14: self.cond(l01, lambda: self.ll_wait(gather(SC, v_cs, s_b, range(8)), list(range(SC, SC+32)), t0, t1, 7, pre=True))
            if i == 15: self.cond(l01, cs_finish); a('s_waitcnt lgkmcnt(0)')
        a.extend(sx(s_t, [(s_l, 8192), (s_m, 256), (s_rot2, 16)])); a(f'buffer_load_dword v{vd}, off, {srd(sWS)}, s{s_t} sc1')
        a(f's_xor_b32 s{s_t}, s{s_t}, 128'); a.extend(sx(s_r, [(s_t, 32), (s_h, 256)], WS_RF))
        a(f's_bitcmp0_b32 s{s_l}, 0')
        a(f's_cselect_b64 s[{sW}:{sW+1}], s[{pBW}:{pBW+1}], s[{pAW}:{pAW+1}]')
        a(f's_cselect_b64 s[{sWO}:{sWO+1}], s[{pBWO}:{pBWO+1}], s[{pAWO}:{pAWO+1}]')
        touch_setup()
        touchW(0); touchW(1); touchW(2)
        a(f's_bitcmp1_b32 s{s_l}, 0'); a('s_cbranch_scc1 L_hp_B')
        self.reduce_job()
        a('s_branch L_hp_join')
        a.label('L_hp_B')
        a('s_barrier')
        a.label('L_hp_join')
        a('s_barrier')
        a(f's_cmp_eq_u32 s{s_l}, 3'); a('s_cbranch_scc1 L_fin')
        self.trickle_rest(1); self.warm_w()
        a(f's_add_u32 s{s_r}, s{s_r}, {4096*32}')
        a(f's_add_u32 s{s_l}, s{s_l}, 1')
        a('s_barrier')
        for st in range(3, 3 + self.dist): touchW(st)
        a('s_branch L_hp_layer')

    def compute(self):
        a = self.a
        one, l16, voffR, voffI, a_tok, a_row, a_t32, a_csr, a_csv = 0, 2, 3, 4, 5, 6, 7, 8, 9
        ax, awq = 10, 12
        l4 = 14; vst = 15
        XR = 16
        ACC = 32
        FX = [128, 144]; FW = [160, 184]
        T = 208
        t0, t1, t2, t3 = T, T+1, T+2, T+3
        s_wm, s_wh, s_rslot, s_delta, s_stg, s_ones = 65, 66, 67, 68, 69, 70
        s_o = 71
        s_ob = 75
        s_obase, s_ooff, s_a, s_b, s_c, s_d, s_e, s_fp, s_st, s_fo = range(77, 87)
        a(f'v_lshrrev_b32 v{t0}, 4, v1')
        a(f'v_and_b32 v{t1}, 15, v1')
        a(f'v_and_b32 v{t2}, 1, v{t0}'); a(f'v_lshrrev_b32 v{t3}, 1, v{t0}'); a(f'v_lshl_add_u32 v{t2}, v{t2}, 1, v{t3}')
        a(f'v_lshlrev_b32 v{voffR}, 11, v{t1}'); a(f'v_lshl_add_u32 v{voffR}, v{t2}, 4, v{voffR}')
        def x0():
            a.extend(sx(s_t, [(s_m, 1 << 18), (s_wave, 1 << 16), (s_g, 128)])); a(f's_add_u32 s{s_t+1}, s{s_t}, 32768')
            if not self.st0 & 16: self.pointers()
            for tb in range(2):
                for e in range(2): a(f'buffer_load_dwordx4 {vr(XR+8*tb+4*e,4)}, v{voffR}, {srd(sX)}, s{s_t+tb} offen offset:{64*e}')
        if self.st0 & 16: self.pointers()
        elif not self.st0 & 8: x0()
        a(f's_lshr_b32 s{s_wm}, s{s_wave}, 1'); a(f's_and_b32 s{s_wh}, s{s_wave}, 1')
        a(f'v_mov_b32 v{one}, 1')
        a(f'v_lshl_add_u32 v{voffI}, v{t2}, 4, v{t1}'); a(f'v_lshlrev_b32 v{voffI}, 4, v{voffI}'); a(f'v_mov_b32 v{vst}, v{voffI}')
        a(f'v_lshlrev_b32 v{l16}, 4, v1'); a(f'v_lshlrev_b32 v{l4}, 2, v1')
        a.extend(sx(s_t, [(s_wm, 256)], P_NM))
        a(f'v_lshl_add_u32 v{a_tok}, v{t1}, 2, s{s_t}')
        a(f'v_lshl_add_u32 v{a_row}, v{t0}, 4, s{s_t}')
        a(f'v_and_b32 v{t3}, 31, v1'); a(f'v_lshl_add_u32 v{a_t32}, v{t3}, 2, s{s_t}')
        a.extend(sx(s_t, [(s_wh, 128)], P_CS))
        a(f'v_lshl_add_u32 v{a_csr}, v{t0}, 4, s{s_t}')
        a(f'v_lshl_add_u32 v{a_csv}, v{t1}, 2, s{s_t}')
        a(f's_mov_b32 s{s_stg}, {STG}'); a(f's_mov_b32 s{s_ones}, 0x3f803f80')
        a(f'v_lshrrev_b32 v{t2}, 1, v{t1}'); a(f'v_xor_b32 v{t2}, v{t2}, v{t0}')
        a.extend(sx(s_t, [(s_wm, 8192)], XOFF)); a(f'v_lshl_add_u32 v{t1}, v{t1}, 7, s{s_t}')
        for s in range(2):
            a(f'v_xor_b32 v{t3}, {4*s}, v{t2}'); a(f'v_lshl_add_u32 v{ax+s}, v{t3}, 4, v{t1}')
        a.extend(sx(s_st, [(s_m, 16384), (s_g, 1024), (s_wave, 256)], WS_ST))

        q = 216
        def stats():
            S = []
            for k in range(8):
                for tb in range(2):
                    r = XR + 8*tb + k
                    S += [f'v_dot2_f32_bf16 v{q+2*tb}, s{s_ones}, v{r}, ' + (f'v{q+2*tb}' if k else '0'),
                          f'v_dot2_f32_bf16 v{q+2*tb+1}, v{r}, v{r}, ' + (f'v{q+2*tb+1}' if k else '0')]
            return S + [sw32(q, q+2), sw32(q+1, q+3), pk('add', q, q, q+2), sw16(q, q+1), f'v_add_f32 v{q}, v{q}, v{q+1}']
        st_store = f'buffer_store_dword v{q}, v{l4}, {srd(sWS)}, s{s_st} offen sc1'
        def acc(b, n): return ACC + 4*(6*b + n)
        A2 = 208
        def reads(s, st, slot=0):
            x, w, o = (ax, awq, STG*slot) if slot < 2 else (A2, A2+2, 0)
            X = [f'ds_read_b128 {vr(FX[st]+4*b,4)}, v{x+s} offset:{o+2048*b}' for b in range(4)]
            W = [[f'ds_read_b64_tr_b16 {vr(FW[st]+4*n+2*t,2)}, v{w+(n&1)} offset:{o+(n>>1)*8192+(32*s+4*t)*128}' for t in range(2)] for n in range(6)]
            L = [X[0]] + W[0] + X[1:]
            for n in range(1, 6): L += W[n]
            return L
        def mfma(st, b, n, zero=False):
            C = None if zero else acc(b, n)
            return mf16(acc(b, n), FW[st]+4*n, FX[st]+4*b, C) if n < 4 else mf16(acc(b, n), FX[st]+4*b, FW[st]+4*n, C)
        def mfmas(st, zero=False):
            return [mfma(st, b, n, zero) for n in range(6) for b in (range(4) if not (self.snake and n % 2) else range(3, -1, -1))]
        env = dict(locals())
        a.extend(self.w_frag_addr(awq, s_wh, 0, t0, t1, t2))
        self.epiA(env, 'v')
        if self.st0 & 8: x0()
        if self.st0 & 2: a(f's_sub_u32 s{s_st}, s{s_st}, 262144')
        else: a('s_waitcnt vmcnt(0)'); a.extend(stats()); a(st_store)
        a.label('L_first')
        a('s_barrier')
        self.stamp(12)
        if self.st0 & 16: self.cond([f's_cmp_eq_u32 s{s_l}, 0'], x0)
        self.aw(reads(0, 0) + interleave(mfmas(0, True), reads(1, 1), per=[0]*4 + [1]*20))
        a('s_waitcnt vmcnt(0) lgkmcnt(0)')
        self.stamp(11)
        self.cond([f's_cmp_lg_u32 s{s_l}, 0'], lambda: self.flag_set(s_fo, one))
        S = [f'v_add_u32 v{A2+k}, {2*STG}, v{ax+k}' for k in range(4)] + [f's_mov_b32 s{s_i}, 0']
        assert awq == ax + 2
        S += sx(s_t, [(s_l, 1 << 22), (s_m, 1 << 18)], WS_OI)
        S += sx(s_obase, [(s_wave, 1 << 16), (s_t, 1)]) + [f's_lshl_b32 s{s_ooff}, s{s_rot2}, 11']
        S += [f's_add_u32 s{s_ob}, s{s_obase}, s{s_ooff}', f's_add_u32 s{s_ob+1}, s{s_ob}, 32768']
        S += sx(s_a, [(s_wm, 1 << 17), (s_g, 2048), (s_wh, 1024), (s_t, 1)])
        S += sx(s_o, [(s_g, 16384), (s_wave, 4096), (s_t, 1)], WS_XI - WS_OI) + [f's_add_u32 s{s_o+k}, s{s_o}, {1024*k}' for k in range(1, 4)]
        S += sx(s_fp, [(s_l, 8192), (s_m, 256)]) + sx(s_fo, [(s_g, 16), (s_wave, 4), (s_fp, 1)]) + sx(s_fo+1, [(s_fo, 32)], WS_RF)
        S += sx(s_t, [(s_wm, 8), (s_rot2, 16)]) + [f's_add_u32 s{s_fp}, s{s_fp}, s{s_t}']
        a.extend(interleave(mfmas(1), S, per=[2]*24))
        a(f's_bitcmp1_b32 s{s_l}, 0'); a('s_cbranch_scc1 L_preB')
        self.epiA(env, 's')
        if not self.st0 & 2: a(f's_cmp_eq_u32 s{s_l}, 0'); a('s_cbranch_scc1 L_go')
        a('s_branch L_pre_done')
        a.label('L_preB')
        self.epiB(env, 's')
        def last():
            a(f's_mov_b64 s[{sOUT}:{sOUT+1}], s[{pOUT}:{pOUT+1}]'); a(f's_mov_b32 s{sOUT+2}, {2048*1024*2}')
            a.extend(sx(s_o, [(s_m, 1 << 18), (s_wave, 1 << 16), (s_g, 128)]))
            a(f's_add_u32 s{s_o+1}, s{s_o}, 64'); a(f's_add_u32 s{s_o+2}, s{s_o}, 32768'); a(f's_add_u32 s{s_o+3}, s{s_o}, {32768+64}')
            a(f'v_mov_b32 v{vst}, v{voffR}')
        self.cond([f's_cmp_eq_u32 s{s_l}, 3'], last)
        a.label('L_pre_done')
        a(f's_add_u32 s{s_st}, s{s_st}, 262144')
        a.extend(stats()); a(st_store)
        a.label('L_go')
        a('s_barrier')
        self.stamp(1)
        a.extend(reads(0, 0, 1))
        a('s_branch L_q1')
        nb = self.bpos + 1
        def half0(slot):
            if self.prof == 5:
                a('s_memtime s[92:93]'); a(f's_lshl_b32 m0, s{s_l}, 4'); a(f's_add_u32 m0, m0, s{s_i}'); a(f's_add_u32 m0, m0, {(slot+2)%3+1}')
            a('s_waitcnt lgkmcnt(0)')
            F = reads(1, 1, slot)
            if self.prof == 5: F = ['v_writelane_b32 v255, s92, m0'] + F
            if slot == 0: F += [f's_add_u32 s{s_i}, s{s_i}, 3', f's_cmp_lt_u32 s{s_i}, 15']
            a.extend(interleave(mfmas(0), F, per=[0]*self.r0 + [1]*24))
            a('s_waitcnt vmcnt(0) lgkmcnt(0)' if slot == 2 else 's_waitcnt lgkmcnt(0)')
            a.extend(mfmas(1)[:nb]); a('s_barrier')
        def half1(slot):
            R = reads(0, 0, (slot+1) % 3)
            a(R[0]); a.extend(interleave(mfmas(1)[nb:], R[1:], per=[1]*24))
        a('.p2align 6')
        a.label('L_q')
        half1(0)
        a.label('L_q1')
        half0(1); half1(1); half0(2); half1(2); half0(0)
        a('s_cbranch_scc1 L_q')
        a.label('L_tail')
        self.stamp(2)
        a(f's_bitcmp1_b32 s{s_l}, 0'); a('s_cbranch_scc1 L_epiB')
        self.epiA(env, False)
        a('s_branch L_ophase')
        a.label('L_epiB')
        self.epiB(env, False)
        a.label('L_ophase')
        a('s_barrier')
        PD = self.pd; NR = PD + 1
        OA, OW, awo, vf, RING = 128, [160, 176], 192, 196, 32
        assert RING + 8*NR <= 128
        u0, u1, u2, vrf, vot, vxw = 197, 198, 199, 204, 205, 206
        a(f'v_mov_b32 v{u0}, {P_MODE}'); a(f'ds_read_b32 v{u0}, v{u0}')
        def oacc(tb, nb): return OA + 16*tb + 4*nb
        for k in range(4):
            a(sw16(XR+4*k, XR+4*k+2)); a(sw16(XR+4*k+1, XR+4*k+3))
        a('s_waitcnt lgkmcnt(0)'); a(f'v_readfirstlane_b32 s{s_fast}, v{u0}')
        a(f's_xor_b32 s{s_t}, s{s_fp}, 128'); a.extend(sx(s_e, [(s_t, 32)], WS_RF))
        a.extend(self.flag_addr(vrf, u1, None, remote=True))
        a.extend(self.flag_addr(vf, u1, s_fp))
        for r in range(16):
            a(f'v_lshlrev_b32 v{OA+2*r}, 16, v{XR+r}'); a(f'v_and_b32 v{OA+2*r+1}, 0xffff0000, v{XR+r}')
        a.extend(self.w_frag_addr(awo, None, L_WO, u0, u1, u2, nb_list=(0, 1, 2, 3)))
        a(f's_cmp_eq_u32 s{s_wh}, 0'); a('s_cselect_b64 vcc, -1, 0')
        for k in range(2): a(f'v_cndmask_b32 v{awq+k}, v{awo+2+k}, v{awo+k}, vcc')
        for k in range(2): a(f'v_subrev_u32 v{awq+k}, {L_WO}, v{awq+k}')
        a.extend(sx(s_t, [(s_wm, 8192)], XOFF)); a(f'v_add_u32 v{ax}, s{s_t}, v{l16}'); a(f'v_add_u32 v{ax+1}, 1024, v{ax}')
        a.extend(sx(s_t, [(s_wave, 4096)], XOFF)); a(f'v_add_u32 v{vxw}, s{s_t}, v{voffI}')
        def oreads(h):
            return [f'ds_read_b64_tr_b16 {vr(OW[h&1]+4*nb+2*t,2)}, v{awo+nb} offset:{(h&15)*4096+512*t}' for nb in range(4) for t in range(2)]
        a('s_waitcnt vmcnt(0)')
        self.stamp(8)
        self.flag_set(s_fo, one, 1)
        a(self.flag_load(s_fp, vf, u0))
        self.flag_set(s_fo, one, 2)
        a.extend(oreads(0))
        def next_consts():
            a(f's_bitcmp1_b32 s{s_l}, 0'); a('s_cbranch_scc1 L_nextA')
            self.epiB(env, 'v')
            a('s_branch L_next_done')
            a.label('L_nextA')
            self.cond([f's_cmp_lg_u32 s{s_l}, 3'], lambda: self.epiA(env, 'v'))
            a.label('L_next_done')
        if not self.vpos: next_consts()
        a('s_waitcnt vmcnt(1) lgkmcnt(0)')
        self.flag_wait(s_fp, vf, u0, 4, pre=True)
        self.stamp(9)
        def oload(h, tb):
            L = [f'buffer_load_dwordx4 {vr(RING+8*(h%NR)+4*tb,4)}, v{l16}, {srd(sWS)}, s{s_ob+tb} offen offset:{1024*(h&3)} sc1']
            if h & 3 == 3 and h < 31:
                if tb == 0: L += [f's_add_u32 s{s_ooff}, s{s_ooff}, 4096', f's_and_b32 s{s_ooff}, s{s_ooff}, 0x7fff', f's_add_u32 s{s_ob}, s{s_obase}, s{s_ooff}']
                else: L += [f's_add_u32 s{s_ob+1}, s{s_ob}, 32768']
            return L
        S = []
        for h in range(PD): S += oload(h, 0) + oload(h, 1)
        S.append('s_nop 2')
        for h in range(32):
            R = oreads(h+1) if h < 31 else []
            if h == 15: S += [f'v_add_u32 v{awo+nb}, 0x10000, v{awo+nb}' for nb in range(4)]
            k = 0
            for nb in range(4):
                for tb in range(2):
                    S.append(mf16(oacc(tb, nb), OW[h&1]+4*nb, RING+8*(h%NR)+4*tb, oacc(tb, nb)))
                    if R: S.append(R[k])
                    for j in range(2):
                        if k == self.opos[j] and h + PD < 32: S += oload(h+PD, j)
                    k += 1
            if h == self.hq: S.append(self.flag_load(s_e, vrf, u1))
            if h == (self.hc or 15 - PD): S += [f'v_cmp_eq_u32 vcc, 0, v{u1}', 's_nop 1']
            if h == self.bm: S.append('s_barrier')
        S = autowait(S); cut0 = S.index('s_nop 2'); cut = S.index('s_nop 1') + 1
        a.extend(S[:cut0])
        if self.vpos: next_consts()
        a.extend(S[cut0+1:cut])
        self.cond(['s_cmp_lg_u64 vcc, 0'], lambda: self.flag_wait(s_e, vrf, u1, 9, nap=self.nap))
        a.extend(S[cut:])
        self.stamp(10)
        S = []
        for k4 in (0, 2, 1, 3):
            for k in range(4): S.append(cvt(XR+4*k4+k, OA+8*k4+2*k, OA+8*k4+2*k+1))
            S += [sw16(XR+4*k4, XR+4*k4+2), sw16(XR+4*k4+1, XR+4*k4+3),
                  f'buffer_store_dwordx4 {vr(XR+4*k4,4)}, v{vst}, {srd(sOUT)}, s{s_o+k4} offen sc1',
                  f'ds_write_b128 v{vxw}, {vr(XR+4*k4,4)} offset:{1024*k4}']
        if self.fst != 'sc1':
            a(f's_cmp_lg_u32 s{s_l}, 3'); a('s_cbranch_scc1 L_notlast')
            self.sw([t.replace('sc1', self.fst) for t in S if not t.startswith('ds_')], crit=lambda t: t.startswith('buffer'))
            a('s_branch L_fin')
            a.label('L_notlast')
        self.sw(S, crit=lambda t: t.startswith('buffer'))
        a(f's_cmp_eq_u32 s{s_l}, 3'); a('s_cbranch_scc1 L_fin')
        a(f's_add_u32 s{s_fo}, s{s_fo}, 4096'); a(f's_add_u32 s{s_fo+1}, s{s_fo+1}, {4096*32}')
        a(f's_add_u32 s{s_l}, s{s_l}, 1')
        a('s_waitcnt lgkmcnt(0)')
        a('s_branch L_first')

    def epiA(self, E, pre):
        a = self.a
        acc = E['acc']; a_tok, a_row, a_t32, a_csr, a_csv, l16, l4 = (E[k] for k in ('a_tok', 'a_row', 'a_t32', 'a_csr', 'a_csv', 'l16', 'l4'))
        s_wm, s_wh, s_a, s_b, s_c, s_d, s_e = (E[k] for k in ('s_wm', 's_wh', 's_a', 's_b', 's_c', 's_d', 's_e'))
        PK = [128, 144]; EP, KV0, ZA, NR = 160, 176, 192, 208
        wphi, nml, c32, csv = 224, 232, 236, 238
        SEL = [240, 244]
        a_phi, a_w, a_r0, a_r1, a_z, x_w, x_r = range(248, 255)
        csk = EP; csq = NR
        nmr = [KV0, EP+8, NR, NR+8]
        if pre == 'v':
            u0, u1, u2, u3, u4 = range(208, 213)
            S = [f'v_lshrrev_b32 v{u0}, 5, v1', f'v_bfe_u32 v{u1}, v1, 2, 2', f'v_lshl_add_u32 v{u1}, v{u0}, 3, v{u1}',
                 f'v_bfe_u32 v{u2}, v1, 4, 1', f'v_and_b32 v{u3}, 3, v1', f'v_lshlrev_b32 v{u4}, 3, v{u3}', f'v_lshl_add_u32 v{u2}, v{u2}, 5, v{u4}']
            S += sx(s_t, [(s_wh, 2048)], P_PHI) + [f'v_lshl_add_u32 v{u4}, v{u1}, 6, v{u2}', f'v_add_u32 v{a_phi}, s{s_t}, v{u4}']
            S += [f's_mul_i32 s{s_t+2}, s{s_wave}, {SCR}',
                  f'v_mul_u32_u24 v{u1}, 136, v{u1}', f'v_add3_u32 v{u1}, v{u1}, v{u2}, s{s_t+2}',
                  f's_lshl_b32 s{s_t+1}, s{s_wm}, 6', f'v_add_u32 v{a_r0}, s{s_t+1}, v{u1}',
                  f's_xor_b32 s{s_t+3}, s{s_t+1}, 64', f'v_add_u32 v{a_r1}, s{s_t+3}, v{u1}',
                  f'v_and_b32 v{u4}, 31, v1', f'v_mul_u32_u24 v{u4}, 136, v{u4}', f'v_lshl_add_u32 v{u4}, v{u0}, 3, v{u4}', f'v_add_u32 v{a_w}, s{s_t+2}, v{u4}',
                  f'v_add_u32 v{x_w}, s{s_t+2}, v{l16}', f's_xor_b32 s{s_t}, s{s_wave}, 2', f's_mul_i32 s{s_t}, s{s_t}, {SCR}', f'v_add_u32 v{x_r}, s{s_t}, v{l16}']
            S += [f'v_mov_b32 v{u4}, 0x3f803f80']
            for k in range(2):
                S += [f'v_cmp_eq_u32 vcc, {k}, v{u3}', f'v_cndmask_b32 v{SEL[k]}, 0, v{u4}, vcc', f'v_mov_b32 v{SEL[k]+1}, v{SEL[k]}',
                      f'v_mov_b64 {vr(SEL[k]+2,2)}, {vr(SEL[k],2)}']
            S += [f'v_and_b32 v{u0}, 18, v1', f'v_lshlrev_b32 v{u0}, 1, v{u0}', f'v_and_or_b32 v{u0}, v1, 8, v{u0}', f'v_and_b32 v{u1}, 4, v1',
                  f'v_lshl_or_b32 v{u0}, v{u1}, 2, v{u0}', f'v_and_b32 v{u1}, 33, v1', f'v_lshl_or_b32 v{a_z}, v{u1}, 25, v{u0}',
                  f'v_lshl_or_b32 v{a_z}, v{u1}, 30, v{a_z}']
            a.extend(S)
            return
        if pre == 's':
            S = sx(s_t, [(s_l, 16), (s_g, 2), (s_wh, 1)])
            S += sx(s_d, [(s_t, 65536), (s_wm, 32768), (s_m, 2048)], WS_KVP) + sx(s_e, [(s_t, 2048), (s_m, 128), (s_wm, 64)], WS_ZP)
            S += sx(s_b, [(s_t, 128)], WS_ZF) + sx(s_c, [(s_t, 4096)], WS_KVF)
            a.extend(S)
            return
        S = []
        for b in range(4): S.append(f'ds_read_b32 v{nml+b}, v{a_tok} offset:{64*b}')
        for nb in range(2): S.append(f'ds_read_b128 {vr(csk+4*nb,4)}, v{a_csr} offset:{256+64*nb}')
        for u in range(2):
            for t in range(2): S.append(f'ds_read_b64_tr_b16 {vr(wphi+4*u+2*t,2)}, v{a_phi} offset:{(16*t+4*u)*64}')
        for nb in range(2): S.append(f'ds_read_b32 v{csv+nb}, v{a_csv} offset:{512+64*nb}')
        for b in range(4):
            S.append(f'ds_read_b128 {vr(nmr[b],4)}, v{a_row} offset:{64*b}')
            S.append(f'ds_read_b128 {vr(nmr[b]+4,4)}, v{a_row} offset:{512+64*b}')
            if b == 0:
                for Tt in range(2): S.append(f'ds_read_b32 v{c32+Tt}, v{a_t32} offset:{512+128*Tt}')
        def qk_prep(n0, cs):
            L = []
            for b in range(4):
                for k in range(4): L.append(pk('fma', acc(b, n0)+2*k, cs+2*k, ('b', nml+b), acc(b, n0)+2*k))
                for k in range(4): L.append(cvt(acc(b, n0)+k, acc(b, n0)+2*k, acc(b, n0)+2*k+1))
            for Tt in range(2):
                for k in range(4): L.append(sw16(acc(2*Tt, n0)+k, acc(2*Tt+1, n0)+k))
                L += [mf32(PK[Tt], wphi, acc(2*Tt, n0)), mf32(PK[Tt], wphi+4, acc(2*Tt+1, n0), PK[Tt])]
            return L
        def vprep(b):
            r = acc(b, 4); P, C = [], []
            for nb in range(2):
                for p in range(2): P.append(pk('fma', r+4*nb+2*p, nmr[b]+2*p, ('b', csv+nb), r+4*nb+2*p))
            for nb in range(2):
                for p in range(2): P.append(pk('mul', r+4*nb+2*p, r+4*nb+2*p, nmr[b]+4+2*p))
            for k in range(4): C.append(cvt(r+k, r+2*k, r+2*k+1))
            return P, C, [sw16(r, r+2), sw16(r+1, r+3)]
        def softmax(Tt):
            x = PK[Tt]; c = c32 + Tt
            ta, tb = ((acc(2, 3), acc(3, 3)), (acc(2, 2), acc(3, 2)))[Tt]
            mx, mn, bp, bm = ta, ta+1, tb, tb+1
            L = [f'v_max3_f32 v{mx}, v{x}, v{x+1}, v{x+2}', f'v_max3_f32 v{mn}, -v{x}, -v{x+1}, -v{x+2}']
            for k in range(3, 15, 2):
                L += [f'v_max3_f32 v{mx}, v{mx}, v{x+k}, v{x+k+1}', f'v_max3_f32 v{mn}, v{mn}, -v{x+k}, -v{x+k+1}']
            L += [f'v_max_f32 v{mx}, v{mx}, v{x+15}', f'v_max_f32 v{mn}, v{mn}, -v{x+15}']
            L += [sw32(mx, mn), f'v_max_f32 v{mx}, v{mx}, v{mn}', f'v_mul_f32 v{bm}, -v{mx}, v{c}', f'v_mov_b32 v{bp}, v{bm}', sw32(bp, bm)]
            parts = [L]; L = []
            for k in range(0, 16, 2): L.append(pk('fma', EP+k, x+k, ('b', c), ('b', bp)))
            for k in range(0, 16, 2): L.append(pk('fma', x+k, x+k, ('b', c), ('b', bm), neg=[1, 0, 0]))
            parts.append(L); L = []
            for k in range(16): L.append(f'v_exp_f32 v{EP+k}, v{EP+k}')
            for k in range(16): L.append(f'v_exp_f32 v{x+k}, v{x+k}')
            parts.append(L); L = []
            sp, sm = ta, ta+2
            r1, r2 = tb+2, tb+3
            L += [pk('add', sp, EP, EP+2), pk('add', sm, x, x+2)]
            for k in range(4, 16, 2): L += [pk('add', sp, sp, EP+k), pk('add', sm, sm, x+k)]
            L += [f'v_add_f32 v{sp}, v{sp}, v{sp+1}', f'v_add_f32 v{sm}, v{sm}, v{sm+1}', sw32(sp, sm), f'v_add_f32 v{sp}, v{sp}, v{sm}',
                  f'v_rcp_f32 v{r2}, v{sp}', f'v_mov_b32 v{r1}, v{r2}', sw32(r1, r2)]
            for k in range(0, 16, 2): L.append(pk('mul', x+k, x+k, ('b', r2)))
            for k in range(8): L.append(cvt(x+k, x+2*k, x+2*k+1))
            for k in range(0, 16, 2): L.append(pk('mul', EP+k, EP+k, ('b', r1)))
            for k in range(8): L.append(cvt(x+8+k, EP+2*k, EP+2*k+1))
            return parts + [L]
        FR = [[acc(0, 2), acc(0, 3)], [acc(1, 2), acc(1, 3)]]
        def to_lds(x):
            return [f'ds_write_b64 v{a_w}, {vr(x+8*(1-sg)+2*j,2)} offset:{64*sg+16*j}' for sg in (1, 0) for j in range(4)]
        def frags():
            return [f'ds_read_b64_tr_b16 {vr(FR[k][u]+2*tt,2)}, v{(a_r0, a_r1)[k]} offset:{(16*u+4*tt)*136}' for k in (1, 0) for u in range(2) for tt in range(2)]
        KV1 = PK[0]
        def kvm(Tt):
            L = []
            for k, K in ((1, KV1), (0, KV0)):
                for u in range(2): L.append(mf32(K, FR[k][u], acc(2*Tt+u, 4), None if (Tt == 0 and u == 0) else K))
                for u in range(2): L.append(mf32(ZA, SEL[k], FR[k][u], None if (Tt == 0 and u == 0 and k == 1) else ZA))
            return L
        sc = sched if self.sch else (lambda L: L)
        K = qk_prep(2, csk); isM = lambda t: t.startswith('v_mfma')
        VP_ = [vprep(b) for b in range(4)]
        sm0, sm1 = softmax(0), softmax(1)
        mfma = E['mfma']
        TM = [mfma(1, b, n) for b in range(4) for n in (2, 3)] + [mfma(1, b, n) for b in range(4) for n in (4, 5)] + [mfma(1, b, 1) for b in range(4)] + [mfma(1, b, 0) for b in range(self.bpos+1, 4)]
        K01 = []
        for b in range(2):
            K01 += [f'v_fmac_f32 v{acc(b,2)+k}, v{csk+k}, v{nml+b}' for k in range(8)] + K[8*b+4:8*b+8]
        S = interleave(TM, S + K01, per=[2]*24)
        S += sc([t for t in K[16:] if not isM(t)] + [f'v_mul_f32 v{c32+Tt}, {f2u(LOG2E)}, v{c32+Tt}' for Tt in range(2)] + VP_[0][0] + VP_[1][0])
        def cutA(n, k):
            nonlocal S
            if self.fine == n: self.aw(S + ['s_waitcnt lgkmcnt(0)']); S = []; self.stamp(k)
        cutA(1, 12)
        S += sc([t for t in K if isM(t)] + VP_[0][1] + VP_[1][1] + VP_[0][2] + VP_[1][2] + sm0[0])
        cutA(1, 13)
        S += sc(sm0[1] + sm0[2] + sm1[0] + sm0[3] + to_lds(PK[0]) + frags())
        cutA(1, 14)
        S += sm1[1] + interleave(kvm(0), sm1[2][2:], per=[4]*7 + [2]) + sm1[2][:2]
        cutA(2, 12)
        S += sc(sm1[3] + to_lds(PK[1]) + frags() + sum((VP_[b][k] for k in range(3) for b in (2, 3)), []), lambda t: t.startswith('ds_read'))
        cutA(2, 13)
        M = kvm(1)
        X = [f'ds_write_b128 v{x_w}, {vr(KV1+4*k,4)} offset:{1024*k}' for k in range(4)]
        S += M[0:5] + X[0:2] + M[5:6] + X[2:4] + [f'ds_write_b32 v{x_w}, v{ZA+1} offset:4096'] + M[6:8]
        cutA(2, 14)
        self.aw(S); S = []
        S += ['s_waitcnt lgkmcnt(0)', 's_barrier']
        for k in range(4): S.append(f'ds_read_b128 {vr(EP+4*k,4)}, v{x_r} offset:{1024*k}')
        S.append(f'ds_read_b32 v{csv}, v{x_r} offset:4096')
        for u in range(2):
            for k in range(4): S.append(pk('add', KV0+8*u+2*k, KV0+8*u+2*k, EP+8*u+2*k))
            for k in range(4): S.append(cvt(KV0+8*u+k, KV0+8*u+2*k, KV0+8*u+2*k+1))
            S.append(f'buffer_store_dwordx4 {vr(KV0+8*u,4)}, v{l16}, {srd(sWS)}, s{s_d} offen offset:{1024*u} sc1')
        S += [f'v_add_f32 v{ZA}, v{ZA}, v{csv}', f'v_mov_b32_dpp v{ZA+3}, v{ZA} quad_perm:[1,0,3,2] row_mask:0xf bank_mask:0xf', cvt(ZA, ZA, ZA+3),
              f'buffer_store_dword v{ZA}, v{a_z}, {srd(sWS)}, s{s_e} offen sc1']
        self.sw(S, name='A k-part'); S = []
        if not self.yw: a('s_barrier')
        self.stamp(3)
        u3, u4 = ZA + 4, ZA + 5
        for nb in range(2): S.append(f'ds_read_b128 {vr(csq+4*nb,4)}, v{a_csr} offset:{64*nb}')
        S += qk_prep(0, csq) + sum(softmax(0) + softmax(1), [])
        S += [f'v_lshrrev_b32 v{u3}, 5, v1', f'v_and_b32 v{u4}, 1, v1', f'v_lshlrev_b32 v{u4}, 6, v{u4}', f'v_lshl_add_u32 v{a_z}, v{u3}, 4, v{u4}',
              f'v_bfe_u32 v{u4}, v1, 4, 1', f'v_lshlrev_b32 v{u4}, 15, v{u4}', f'v_lshl_add_u32 v{u4}, v{u3}, 8, v{u4}',
              f'v_and_b32 v{u3}, 15, v1', f'v_lshl_add_u32 v{a_w}, v{u3}, 4, v{u4}', f's_add_u32 s{s_d}, s{s_a}, 65536']
        if self.yw:
            S = sched(S); S.insert(self.yw, 's_barrier'); self.aw(S); S = []
        else: self.sw(S, name='A q-part'); S = []
        self.stamp(4)
        a('s_barrier')
        self.stamp(7)
        KF = KV0; ZF = EP
        if self.b2: a(f's_sleep {self.b2}')
        self.ll_wait(([f's_sleep {self.n2}'] if self.n2 else []) + [f'buffer_load_dwordx4 {vr(ZF+4*u,4)}, v{a_z}, {srd(sWS)}, s{s_b} offen offset:{32*u} sc1' for u in range(2)] +
                     [f'buffer_load_dwordx4 {vr(KF+4*k,4)}, v{l16}, {srd(sWS)}, s{s_c} offen offset:{1024*k} sc1' for k in range(4)],
                     list(range(ZF, ZF+8)) + list(range(KF, KF+16)), u3, u4, 5, pipe=(self.pipe >> 1) & 1)
        self.stamp(5)
        ACC = E['ACC']
        for Tt in range(2):
            N, DP, DM = ACC + 48*Tt, ACC + 48*Tt + 16, ACC + 48*Tt + 32
            x = PK[Tt]
            S += [mf32(DP, ZF, x+8), mf32(DP, ZF+4, x+12, DP), mf32(DM, ZF, x), mf32(DM, ZF+4, x+4, DM),
                  mf32(N, KF, x+8), mf32(N, KF+4, x+12, N), mf32(N, KF+8, x, N), mf32(N, KF+12, x+4, N)]
            S += [f'v_add_f32 v{DP}, v{DP}, v{DM+1}', f'v_add_f32 v{DP}, {f2u(1e-6)}, v{DP}', f'v_rcp_f32 v{DP}, v{DP}']
            for p in range(2):
                for jj in range(2):
                    j = p + 2*jj
                    for k in range(2):
                        r = N + 4*j + 2*k
                        if Tt == 0: S += [f'v_mul_f32 v{r}, v{DP}, v{r}', f'v_mul_f32 v{r+1}, v{DP}, v{r+1}']
                        else: S.append(pk('mul', r, r, ('b', DP)))
                        S.append(cvt(DM+4+4*p+2*jj+k, r, r+1))
                S.append(f'buffer_store_dwordx4 {vr(DM+4+4*p,4)}, v{a_w}, {srd(sWS)}, s{(s_a, s_d)[Tt]} offen offset:{512*p} sc1')
        self.sw(S, name='A finish')
        self.stamp(6)

    def epiB(self, E, pre):
        a = self.a
        acc = E['acc']; a_tok, a_row, a_csr, a_csv, l16 = (E[k] for k in ('a_tok', 'a_row', 'a_csr', 'a_csv', 'l16'))
        s_wm, s_wh, s_a, s_b, s_c, s_d, s_e = (E[k] for k in ('s_wm', 's_wh', 's_a', 's_b', 's_c', 's_d', 's_e'))
        BI, BI0, MK, a_h = 236, 244, 248, 252
        if pre == 'v':
            t1, t2, t3 = 208, 209, 210
            S = [f'v_and_b32 v{t1}, 15, v1', f'v_lshrrev_b32 v{t2}, 4, v1', f'v_lshlrev_b32 v{t2}, 2, v{t2}', f'v_sub_u32 v{t1}, v{t1}, v{t2}',
                 f'v_mov_b32 v{t3}, {f2u(-1e30)}']
            for blk in range(2):
                for i in range(4):
                    S += [f'v_add_u32 v{t2}, {(16 if blk == 0 else 0) - i}, v{t1}', f'v_and_b32 v{t2}, -15, v{t2}', f'v_cmp_eq_u32 vcc, 0, v{t2}',
                          f'v_cndmask_b32 v{BI+4*blk+i}, v{t3}, 0, vcc']
                    if i % 2 == 0: S += [f'v_cndmask_b32 v{MK+2*blk+i//2}, 0, -1, vcc', f'v_lshrrev_b32 v{MK+2*blk+i//2}, 16, v{MK+2*blk+i//2}']
                    else: S += [f'v_cndmask_b32 v{t2}, 0, -1, vcc', f'v_lshl_or_b32 v{MK+2*blk+i//2}, v{t2}, 16, v{MK+2*blk+i//2}']
            S += [f's_or_b32 s{s_t}, s{s_m}, s{s_wm}', 's_cselect_b64 vcc, -1, 0']
            for i in range(4): S.append(f'v_cndmask_b32 v{BI0+i}, v{t3}, v{BI+i}, vcc')
            S += sx(s_t, [(s_wh, 2048)], P_PHI) + [f'v_add_u32 v{a_h}, s{s_t}, v{l16}']
            S += [f's_add_u32 s{s_t+1}, s{s_t}, 1024', f's_cmp_eq_u32 s{s_wm}, 0', f's_cselect_b32 s{s_t}, s{s_t}, {L_P + 7168}', f's_cselect_b32 s{s_t+1}, s{s_t+1}, {L_P + 7168}',
                  f'v_add_u32 v{a_h+1}, s{s_t}, v{l16}', f'v_add_u32 v{a_h+2}, s{s_t+1}, v{l16}']
            a.extend(S)
            return
        if pre == 's':
            S = sx(s_b, [(s_l, 1 << 19), (s_m, 1 << 16), (s_g, 4096), (s_wh, 2048)], WS_HALO - (1 << 19))
            S += [f's_add_u32 s{s_c}, s{s_b}, 65536', f's_cmp_eq_u32 s{s_m}, 15', f's_cselect_b32 s{s_c}, {BIG}, s{s_c}',
                  f's_cmp_eq_u32 s{s_wm}, 0', f's_cselect_b32 s{s_c}, {BIG}, s{s_c}', f's_cselect_b32 s{s_b}, s{s_b}, {BIG}',
                  f's_cmp_eq_u32 s{s_m}, 0', f's_cselect_b32 s{s_b}, {BIG}, s{s_b}', f's_add_u32 s{s_d}, s{s_a}, 65536']
            a.extend(S)
            return
        nr = [160, 168, 176, 208]
        nml, rsl, csk, csv, csq, HB = 216, 220, 224, 232, 128, 136
        VP = [184, 196]
        U, M, t1, t2 = 144, 152, 156, 157
        S = []
        for b in (3, 0, 1, 2):
            S += [f'ds_read_b32 v{nml+b}, v{a_tok} offset:{64*b}', f'ds_read_b32 v{rsl+b}, v{a_tok} offset:{512+64*b}']
            if b == 3:
                for nb in range(2): S.append(f'ds_read_b128 {vr(csk+4*nb,4)}, v{a_csr} offset:{768+256+64*nb}')
                for nb in range(2): S.append(f'ds_read_b32 v{csv+nb}, v{a_csv} offset:{768+512+64*nb}')
            S += [f'ds_read_b128 {vr(nr[b],4)}, v{a_row} offset:{64*b}', f'ds_read_b128 {vr(nr[b]+4,4)}, v{a_row} offset:{512+64*b}']
        for nb in range(2): S.append(f'ds_read_b128 {vr(csq+4*nb,4)}, v{a_csr} offset:{768+64*nb}')
        def kprep(b):
            r = acc(b, 2); L = []
            for k in range(4): L.append(pk('fma', r+2*k, csk+2*k, ('b', nml+b), r+2*k))
            for k in range(4): L.append(pk('mul', r+2*k, r+2*k, ('b', rsl+b)))
            for k in range(4): L.append(cvt(r+k, r+2*k, r+2*k+1))
            return L
        def vprep(b):
            r = acc(b, 4); L = []
            for nb in range(2):
                for p in range(2): L.append(pk('fma', r+4*nb+2*p, nr[b]+2*p, ('b', csv+nb), r+4*nb+2*p))
            for nb in range(2):
                for p in range(2): L.append(pk('mul', r+4*nb+2*p, r+4*nb+2*p, nr[b]+4+2*p))
            for nb in range(2):
                for p in range(2):
                    if b == 3: L.append(cvt(acc(3, 3)+2*nb+p, r+4*nb+2*p, r+4*nb+2*p+1))
                    else: L.append(cvt(VP[nb]+2+2*b+p, r+4*nb+2*p, r+4*nb+2*p+1))
            return L
        def qprep(b):
            r = acc(b, 0); L = []
            for k in range(4): L.append(pk('fma', r+2*k, csq+2*k, ('b', nml+b), r+2*k))
            for k in range(4): L.append(cvt(r+k, r+2*k, r+2*k+1))
            return L
        mfma = E['mfma']
        TM = [mfma(1, b, n) for b in (3, 0, 1, 2) for n in (2, 3, 4, 5)] + [mfma(1, b, 1) for b in range(4)] + [mfma(1, b, 0) for b in range(self.bpos+1, 4)]
        rk, rv = acc(3, 2), acc(3, 4)
        P3 = [f'v_fmac_f32 v{rk+k}, v{csk+k}, v{nml+3}' for k in range(8)] + [f'v_mul_f32 v{rk+k}, v{rsl+3}, v{rk+k}' for k in range(8)] + kprep(3)[8:]
        P3 += [f'v_fmac_f32 v{rv+k}, v{nr[3]+k%4}, v{csv+k//4}' for k in range(8)] + [f'v_mul_f32 v{rv+k}, v{nr[3]+4+k%4}, v{rv+k}' for k in range(8)] + vprep(3)[8:]
        T0 = interleave(TM, S[:14] + P3, per=[2]*24); S = S[14:]
        for k in range(2): T0.append(f'buffer_store_dwordx4 {vr(acc(3,2)+4*k,4)}, v{l16}, {srd(sWS)}, s{s_c} offen offset:{1024*k} sc1')
        for k in range(2): S.append(f'ds_write_b128 v{a_h+1+k}, {vr(acc(3,2)+4*k,4)}')
        for nb in range(2): S.append(f'v_mov_b64 {vr(VP[nb]+8,2)}, {vr(acc(3,3)+2*nb,2)}')
        for b in range(3): S += kprep(b) + vprep(b)
        for b in range(4): S += qprep(b)
        for b in range(4): S.append(f'v_mul_f32 v{rsl+b}, {f2u(LOG2E * 32 ** -0.5)}, v{rsl+b}')
        def logits(b):
            s = nr[b]
            L = [mf16(s, HB if b == 0 else acc(b-1, 2), acc(b, 0), BI0 if b == 0 else BI), mf16(s+4, acc(b, 2), acc(b, 0), BI+4)]
            for p in range(2):
                L += [f'v_max3_f32 v{U+2*b+p}, v{s+2*p}, v{s+2*p+1}, v{s+4+2*p}', f'v_max_f32 v{U+2*b+p}, v{U+2*b+p}, v{s+5+2*p}',
                      f'v_mul_f32 v{U+2*b+p}, v{rsl+b}, v{U+2*b+p}']
            L.append(f'v_max_f32 v{M+b}, v{U+2*b}, v{U+2*b+1}')
            return L
        for b in (1, 2, 3): S += logits(b)
        if self.sch: S = sched(S)
        HL = [f'buffer_load_dwordx4 {vr(HB+4*k,4)}, v{l16}, {srd(sWS)}, s{s_b} offen offset:{1024*k} sc1' for k in range(2)]
        if self.fine == 3: self.aw(T0 + ['s_waitcnt lgkmcnt(0)']); T0 = []; self.stamp(13)
        self.aw(T0 + S[:self.hpos] + HL + S[self.hpos:]); S = []
        if self.fine == 3: self.stamp(14)
        a('s_waitcnt lgkmcnt(0)'); a('s_barrier')
        self.stamp(3)
        L1, L3 = self.lab('hg'), self.lab('hd')
        a('s_waitcnt vmcnt(0)')
        if self.fine == 3: self.stamp(7)
        a(f's_cmp_eq_u32 s{s_wm}, 0'); a(f's_cbranch_scc1 {L1}')
        for k in range(2): a(f'ds_read_b128 {vr(HB+4*k,4)}, v{a_h} offset:{1024*k}')
        a('s_waitcnt lgkmcnt(0)')
        a(f's_branch {L3}')
        a.label(L1)
        self.ll_wait(HL, list(range(HB, HB+8)), t1, t2, 0, pre=True)
        a.label(L3)
        self.stamp(4)
        S += logits(0)
        for nb in range(2): S.append(f'v_mov_b64 {vr(VP[nb],2)}, {vr(HB+4+2*nb,2)}')
        def allred(op, mid):
            L = [sw32(M, M+2), sw32(M+1, M+3), f'{op} v{M}, v{M}, v{M+2}', f'{op} v{M+1}, v{M+1}, v{M+3}', sw16(M, M+1), f'{op} v{M+1}, v{M}, v{M+1}']
            L += mid
            L += [f'v_mov_b32 v{M}, v{M+1}', sw16(M, M+1), f'v_mov_b64 {vr(M+2,2)}, {vr(M,2)}', sw32(M, M+2), sw32(M+1, M+3)]
            return L
        S += allred('v_max_f32', [])
        for b in range(4): S.append(pk('add', U+2*b, U+2*b, ('b', M+b), neg=[0, 1]))
        for k in range(8): S.append(f'v_exp_f32 v{U+k}, v{U+k}')
        for b in range(4): S.append(f'v_add_f32 v{M+b}, v{U+2*b}, v{U+2*b+1}')
        S += allred('v_add_f32', [f'v_rcp_f32 v{M+1}, v{M+1}'])
        for b in range(4): S.append(pk('mul', U+2*b, U+2*b, ('b', M+b)))
        for b in range(4):
            P = nr[b]; O = acc(b, 4)
            for p in range(2): S.append(cvt(U+2*b+p, U+2*b+p, U+2*b+p))
            for blk in range(2):
                for p in range(2): S.append(f'v_and_b32 v{P+2*blk+p}, v{U+2*b+p}, v{MK+2*blk+p}')
            for db in range(2): S.append(mf16(O+4*db, VP[db]+2*b, P))
        S += [f's_add_u32 s{s_b}, s{s_a}, 32768', f's_add_u32 s{s_c}, s{s_d}, 32768']
        for b in range(4):
            O = acc(b, 4)
            for k in range(4): S.append(cvt(O+k, O+2*k, O+2*k+1))
            S.append(f'buffer_store_dwordx4 {vr(O,4)}, v{l16}, {srd(sWS)}, s{(s_a, s_b, s_d, s_c)[b]} offen sc1')
        self.sw(S, name='B finish')
        self.stamp(6)

    def build(self):
        a = self.a
        self.prologue()
        if self.st0 & 1: self.loader(); a.label('L_compute'); self.compute()
        else: self.compute(); self.loader()
        self.helper()
        a.label('L_fin')
        self.stamp(15)
        self.stamp_out()
        if self.probe:
            def body():
                a('s_sub_u32 s93, s94, s93'); a(f's_mul_i32 s93, s93, {self.probe[2]}'); a('s_min_u32 s93, s93, 100000')
                a(f's_memrealtime s[{s_t+6}:{s_t+7}]'); a('s_waitcnt lgkmcnt(0)'); a(f's_add_u32 s93, s93, s{s_t+6}')
                a.label('L_probe')
                a(f's_memrealtime s[{s_t+6}:{s_t+7}]'); a('s_waitcnt lgkmcnt(0)'); a(f's_sub_u32 s94, s{s_t+6}, s93'); a('s_cmp_lt_i32 s94, 0'); a('s_cbranch_scc1 L_probe')
            self.cond([f's_or_b32 s{s_t}, s2, s{s_wave}', f's_cmp_eq_u32 s{s_t}, 0'], body)
        a('s_waitcnt vmcnt(0)')
        a.label('L_end')
        a('s_endpgm')
        a.pad()
        assert a.maxreg('v') <= 255 and a.maxreg('s') < 96
        return a.text()


def generate(listform=False, **kw):
    body = Gen(**kw).build()
    ref = open('interleave_layers__linear_kernel_hedgehog__sliding_local_dilated__prompt.s.ref').read() if not listform else ''
    head = ''.join(l + '\n' for l in ref.split('\n') if l.startswith(';') and '@launch' not in l)
    if listform: head += f'; @launch kernel={KNAME} grid=(256,1,1) block=(512,1,1) lds={LDS_BYTES}\n'
    else: head += f'; @launch grid=(256,1,1) block=(512,1,1) lds={LDS_BYTES}\n'
    return head + '.amdgcn_target "amdgcn-amd-amdhsa--gfx950"\n' + kernel_head(KNAME) + body + kernel_desc(KNAME, 256, 96, 256)

if __name__ == '__main__':
    kw = eval(sys.argv[2]) if len(sys.argv) > 2 else {}
    open(sys.argv[1], 'w').write(generate(**kw))
```

```python
import sys, struct
sys.path.insert(0, 'work')
from asmlib import *

KNAME = 'interleave_layers__linear_kernel_hedgehog__sliding_local_dilated__prompt_kernel'

WS_CTR, WS_STAMP, WS_ST, WS_CS = 0x0, 0x100000, 0x200000, 0x300000
WS_HALO, WS_KVF, WS_ZP, WS_ZF, WS_KVP = 0x400000, 0x600000, 0x680000, 0x6C0000, 0x800000
WS_RF = 0x700000
WS_XI, WS_OI, WS_END = 0xC00000, 0x1800000, 0x2800000
BIG = 0x40000000
STG = 40960
XOFF = 24576
L_WO = 24576
L_SPARE = 3 * STG
L_P = 155648
P_NM, P_RS, P_CS, P_MODE, P_CNT, P_PHI = L_P, L_P + 512, L_P + 1024, L_P + 2816, L_P + 2832, L_P + 3072
LDS_BYTES = 163840
SCR = 5120
LOG2E = 1.4426950408889634
def f2u(x): return '0x%08x' % struct.unpack('<I', struct.pack('<f', x))[0]

s_fast = 3
pAX, pAW, pPHI, pAWO, pBW, pBWO, pOUT, pDBG, pWS = 4, 6, 8, 10, 14, 16, 18, 20, 22
sWS, sX, sW, sWO, sOUT, sDBG = 24, 28, 32, 36, 40, 44
s_m, s_g, s_wave, s_l = 48, 49, 50, 51
s_t = 52
s_cnt, s_x = 60, 61
s_i = 62
s_stamp = 63
s_rot = 64
s_rot2 = 95
s_ft, s_fn, s_fd, s_po = 90, 91, 88, 87
def srd(b): return 's[%d:%d]' % (b, b + 3)


def sx(d, terms, const=0):
    L = []
    for n, (r, k) in enumerate([t for t in terms if t[1]]):
        t = d if n == 0 else s_x
        if k == 1 and n: t = r
        elif k == 1: L.append(f's_mov_b32 s{t}, s{r}')
        elif k > 0 and k & (k - 1) == 0: L.append(f's_lshl_b32 s{t}, s{r}, {k.bit_length()-1}')
        else: L.append(f's_mul_i32 s{t}, s{r}, {k}')
        if n: L.append(f's_add_u32 s{d}, s{d}, s{t}')
    if const: L.append(f's_add_u32 s{d}, s{d}, {const:#x}' if const > 0 else f's_sub_u32 s{d}, s{d}, {-const:#x}')
    return L

def pkop(r):
    if isinstance(r, tuple):
        return vr(r[1] & ~1, 2), r[1] & 1, r[1] & 1
    assert r % 2 == 0
    return vr(r, 2), 0, 1
def pk(op, d, *src, neg=None):
    o = [pkop(s) for s in src]
    t = 'v_pk_%s_f32 %s, %s' % (op, vr(d, 2), ', '.join(x[0] for x in o))
    lo = [x[1] for x in o]; hi = [x[2] for x in o]
    if any(lo): t += ' op_sel:[%s]' % ','.join(map(str, lo))
    if not all(hi): t += ' op_sel_hi:[%s]' % ','.join(map(str, hi))
    if neg: t += ' neg_lo:[%s] neg_hi:[%s]' % (','.join(map(str, neg)), ','.join(map(str, neg)))
    return t
def cvt(d, a, b): return f'v_cvt_pk_bf16_f32 v{d}, v{a}, v{b}'
def sw16(a, b): return f'v_permlane16_swap_b32 v{a}, v{b}'
def sw32(a, b): return f'v_permlane32_swap_b32 v{a}, v{b}'
def mf16(d, A, B, C=None): return f'v_mfma_f32_16x16x32_bf16 {vr(d,4)}, {vr(A,4)}, {vr(B,4)}, ' + (vr(C, 4) if C is not None else '0')
def mf32(d, A, B, C=None): return f'v_mfma_f32_32x32x16_bf16 {vr(d,16)}, {vr(A,4)}, {vr(B,4)}, ' + (vr(C, 16) if C is not None else '0')


class Gen:
    def __init__(self, prof=0, limit=40000, dist=2, touch=1, bm=27, local=1, pd=5, sch=1, hprio=2, opos=(1, 5), warm=1, nap=4, probe=None, snake=1, rf=2, hq=5, fine=0, llf='sc1', ot=0, hc=None, hpos=90, early=0, w2=0, w0b=0, cpf=0, tr=4, bpos=1, r0=2, rprio=3, w0a=1, pipe=0, b1=0, b2=0, n1=0, n2=0, zw=2, yw=60, thr=None, pw=0, po=0, jit=0, st0=6, vpos=1, fst='sc1', rot0=12):
        self.a = Asm()
        assert bm >= 16 and not early
        self.__dict__.update(prof=prof, limit=limit, dist=dist, touch=touch, bm=bm, local=local, pd=pd, sch=sch, hprio=hprio, opos=opos, warm=warm, nap=nap, probe=probe, snake=snake, rf=rf, hq=hq, fine=fine, llf=llf, ot=ot, hc=hc, hpos=hpos, early=early, w2=w2, w0b=w0b, cpf=cpf, tr=tr, bpos=bpos, r0=r0, rprio=rprio, w0a=w0a, pipe=pipe, b1=b1, b2=b2, n1=n1, n2=n2, zw=zw, yw=yw, thr=thr, pw=pw, po=po, jit=jit, st0=st0, vpos=vpos, fst=fst, rot0=rot0)
        self.nlab = 0

    def lab(self, p):
        self.nlab += 1
        return 'L_%s_%d' % (p, self.nlab)

    def aw(self, L):
        self.a.extend(autowait(L))
    def sw(self, L, crit=None, name=''):
        if self.sch:
            L = sched(L, crit)
            if name and __name__ == '__main__': print('sched', name, len(L), 'instructions, about', sched.last_estimate, 'cycles', file=sys.stderr)
        self.a.extend(autowait(L))

    def cond(self, test, body):
        L = self.lab('skip')
        self.a.extend(test); self.a(f's_cbranch_scc0 {L}')
        body()
        self.a.label(L)

    def spin(self, issue, check, vt, tag, pre=False, pipe=0):
        a = self.a
        L, C, D = self.lab('spin'), self.lab('chk'), self.lab('done')
        a(f's_mov_b32 s{s_cnt}, 0')
        if pipe:
            for _ in range(pipe): a.extend(issue)
            a.label(L); a.extend(issue); a(f's_waitcnt vmcnt({pipe*len(issue)})'); a.extend(check)
        elif pre:
            a(f's_branch {C}')
            a.label(L); a.extend(issue); a('s_waitcnt vmcnt(0)')
            a.label(C); a.extend(check)
        else:
            a.label(L); self.aw(list(issue) + list(check))
        a('s_cmp_eq_u64 vcc, 0'); a(f's_cbranch_scc1 {D}')
        a(f's_add_u32 s{s_cnt}, s{s_cnt}, 1')
        a(f's_cmp_lt_u32 s{s_cnt}, {self.limit}'); a(f's_cbranch_scc1 {L}')
        a(f'v_mov_b32 v{vt}, {1 << tag}')
        a(f'buffer_atomic_or v{vt}, off, {srd(sDBG)}, 0 offset:4 sc1')
        a.label(D)

    def ll_wait(self, loads, regs, t1, t2, tag, pre=False, pipe=0):
        S = []
        h = len(regs) // 2
        for t, R in ((t1, regs[:h]), (t2, regs[h:])):
            S.append(f'v_max_u32 v{t}, v{R[0]}, v{R[1]}')
            for k in range(2, len(R), 2): S.append(f'v_max3_u32 v{t}, v{t}, v{R[k]}, v{R[k+1]}')
        S += [f'v_max_u32 v{t1}, v{t1}, v{t2}', f'v_cmp_eq_u32 vcc, -1, v{t1}']
        loads = [l.replace('sc1', self.llf) for l in loads]
        self.spin(loads, S, t1, tag, pre, pipe)

    def flag_set(self, soff, vt, which=3):
        a = self.a
        a('s_mov_b64 exec, 1')
        if which & 1: a(f'buffer_store_dword v{vt}, off, {srd(sWS)}, s{soff}')
        if which & 2: a(f'buffer_store_dword v{vt}, off, {srd(sWS)}, s{soff+1} sc1')
        a('s_mov_b64 exec, -1')
    def flag_addr(self, va, vt, soff, remote=False):
        L = [f'v_bfe_u32 v{va}, v1, 1, 3', f'v_and_b32 v{vt}, 1, v1', f'v_lshl_add_u32 v{va}, v{va}, 2, v{vt}']
        if remote: return L + [f'v_lshlrev_b32 v{va}, 7, v{va}']
        return L + [f's_cmp_eq_u32 s{s_fast}, 1', f's_cselect_b32 s{s_t}, 0, 5', f's_cselect_b32 s{s_t+1}, 0, {WS_RF}',
                    f's_lshl_b32 s{soff}, s{soff}, s{s_t}', f's_add_u32 s{soff}, s{soff}, s{s_t+1}', f's_add_u32 s{s_t}, s{s_t}, 2',
                    f'v_lshlrev_b32 v{va}, s{s_t}, v{va}']
    def flag_load(self, soff, va, vt): return f'buffer_load_dword v{vt}, v{va}, {srd(sWS)}, s{soff} offen sc1'
    def flag_wait(self, soff, va, vt, tag, pre=False, nap=0, pipe=0):
        self.spin(([f's_sleep {nap}'] if nap else []) + [self.flag_load(soff, va, vt)], [f'v_cmp_eq_u32 vcc, 0, v{vt}'], vt, tag, pre, pipe)
    def get_mode(self, vt):
        self.a.extend([f'v_mov_b32 v{vt}, {P_MODE}', f'ds_read_b32 v{vt}, v{vt}', 's_waitcnt lgkmcnt(0)', f'v_readfirstlane_b32 s{s_fast}, v{vt}'])

    def jitter(self, k):
        a = self.a
        L = self.lab('jit')
        a.extend([f's_lshl_b32 s{s_t+6}, s2, 3', f's_add_u32 s{s_t+6}, s{s_t+6}, s{s_wave}', f's_lshl_b32 s{s_t+6}, s{s_t+6}, 2', f's_add_u32 s{s_t+6}, s{s_t+6}, s{s_l}',
                  f's_add_u32 s{s_t+6}, s{s_t+6}, {(k*7919 + self.jit*104729) & 0xffffff}', f's_mul_i32 s{s_t+6}, s{s_t+6}, 0x9e3779b1', f's_lshr_b32 s{s_t+7}, s{s_t+6}, 13',
                  f's_xor_b32 s{s_t+6}, s{s_t+6}, s{s_t+7}', f's_mul_i32 s{s_t+6}, s{s_t+6}, 0x85ebca6b', f's_lshr_b32 s{s_t+7}, s{s_t+6}, 29',
                  f's_lshr_b32 s{s_t+6}, s{s_t+6}, 8', f's_and_b32 s{s_t+6}, s{s_t+6}, 127', f's_lshr_b32 s{s_t+6}, s{s_t+6}, s{s_t+7}'])
        a.label(L)
        a.extend(['s_sleep 1', f's_sub_u32 s{s_t+6}, s{s_t+6}, 1', f's_cbranch_scc0 {L}'])
    def stamp(self, k):
        if self.jit: self.jitter(k)
        if self.probe:
            for n, (pl, pk_) in enumerate(self.probe[:2]):
                if pk_ == k:
                    def body():
                        self.a(f's_memrealtime s[{s_t+6}:{s_t+7}]'); self.a('s_waitcnt lgkmcnt(0)'); self.a(f's_mov_b32 s{93+n}, s{s_t+6}')
                    self.cond([f's_cmp_eq_u32 s{s_l}, {pl}'], body)
        if not self.prof or self.prof >= 5: return
        a = self.a
        a(f'{"s_memtime" if self.prof == 4 else "s_memrealtime"} s[{s_t+6}:{s_t+7}]')
        a(f's_mov_b32 s{s_stamp}, m0')
        a(f's_lshl_b32 m0, s{s_l}, 4'); a(f's_add_u32 m0, m0, {k}')
        a('s_waitcnt lgkmcnt(0)')
        a(f'v_writelane_b32 v255, s{s_t+6}, m0')
        a(f's_mov_b32 m0, s{s_stamp}')
    def stamp_out(self):
        if not self.prof: return
        a = self.a
        a.extend(sx(s_t, [(2, 2048), (s_wave, 256)], WS_STAMP))
        a('v_lshlrev_b32 v254, 2, v1')
        a(f'buffer_store_dword v255, v254, {srd(sWS)}, s{s_t} offen')

    def prologue(self):
        a = self.a
        a('s_cmp_ge_u32 s2, 256'); a('s_cbranch_scc1 L_end')
        a('s_load_dwordx16 s[4:19], s[0:1], 0')
        a('s_load_dwordx4 s[20:23], s[0:1], 64')
        a('v_lshrrev_b32 v2, 6, v0')
        a(f'v_readfirstlane_b32 s{s_wave}, v2')
        a('v_and_b32 v1, 63, v0')
        a(f's_and_b32 s{s_rot}, s2, 3'); a(f's_lshl_b32 s{s_rot}, s{s_rot}, 2')
        a(f's_bfe_u32 s{s_t}, s2, 0x20003'); a(f's_add_u32 s{s_m}, s{s_rot}, s{s_t}')
        a(f's_mov_b32 s{s_rot}, s{s_m}')
        a(f's_and_b32 s{s_rot2}, s2, 4'); a(f's_lshl_b32 s{s_rot2}, s{s_rot2}, 1')
        a(f's_lshr_b32 s{s_g}, s2, 5'); a(f's_add_u32 s{s_g}, s{s_g}, s{s_rot2}')
        a(f's_mov_b32 s{s_l}, 0'); a(f's_mov_b32 s{s_fast}, 0')
        for b, n in ((sWS, WS_END), (sX, 2048*1024*2), (sW, 1024*3072*2), (sWO, 1024*1024*2), (sOUT, WS_END), (sDBG, 256)):
            a(f's_mov_b32 s{b+2}, {n}'); a(f's_mov_b32 s{b+3}, 0x20000')
        if self.prof: a('v_mov_b32 v255, 0')
        self.stamp(0)
        a(f's_cmp_ge_u32 s{s_wave}, 6'); a('s_cbranch_scc1 L_helper')
        if self.st0 & 1: a(f's_cmp_lt_u32 s{s_wave}, 4'); a('s_cbranch_scc1 L_compute')
        else: a(f's_cmp_ge_u32 s{s_wave}, 4'); a('s_cbranch_scc1 L_loader')
    def pointers(self):
        a = self.a
        a('s_waitcnt lgkmcnt(0)')
        for b, p in ((sWS, pWS), (sX, pAX), (sW, pAW), (sWO, pAWO), (sOUT, pWS), (sDBG, pDBG)):
            a(f's_mov_b64 s[{b}:{b+1}], s[{p}:{p+1}]')

    def trickle_setup(self):
        a = self.a
        a(f's_mov_b64 s[{sOUT}:{sOUT+1}], s[{sWO}:{sWO+1}]'); a(f's_mov_b32 s{sOUT+2}, {1 << 21}')
        a.extend(sx(s_ft, [(2, 8192), (s_wave, 2048)], -8192))
        n1 = -(-16 // self.tr)
        a(f's_cmp_eq_u32 s{s_l}, 0'); a(f's_cselect_b32 s{s_fn}, 12, {n1}')
        a(f's_cmp_lt_u32 s{s_l}, {2 if self.warm else 0}'); a(f's_cselect_b32 s{s_fn}, s{s_fn}, 0')
    def trickle_lines(self, n):
        a = self.a
        a(f's_sub_u32 s{s_t}, s{sOUT+2}, {128*n}'); a(f's_min_u32 s{s_t}, s{s_t}, s{s_ft}')
        for r in range(n): a(f's_buffer_load_dwordx2 s[{s_fd}:{s_fd+1}], {srd(sOUT)}, s{s_t} offset:{128*r+60}')
        a(f's_add_u32 s{s_ft}, s{s_ft}, {128*n}')
    def trickle(self, i):
        a = self.a
        n1 = -(-16 // self.tr)
        def nxt():
            a(f's_mov_b64 s[{sOUT}:{sOUT+1}], s[{pBW}:{pBW+1}]'); a(f's_mov_b32 s{sOUT+2}, {3 << 21}')
            a.extend(sx(s_ft, [(2, 24576), (s_wave, 6144)], -24576))
        def body():
            if isinstance(i, str): self.cond([f's_cmp_eq_u32 {i}, {n1}'], nxt)
            elif i == n1: nxt()
            self.trickle_lines(self.tr)
        self.cond([f's_cmp_gt_u32 s{s_fn}, {i}'], body)
    def trickle_rest(self, part):
        rest = 48 - self.tr * (12 - -(-16 // self.tr))
        n = rest
        self.cond([f's_cmp_eq_u32 s{s_fn}, 12'], lambda: self.trickle_lines(n))

    def warm_w(self):
        a = self.a
        if not self.pw: return
        a(f's_and_b32 s{s_t}, s{s_m}, 3'); a.extend(sx(s_t+1, [(s_t, 16*6144), (s_wave, 4*6144), (s_g, 128)], -16*6144))
        a(f's_and_b32 s{s_t+2}, s{s_g}, 7')
        for st in range(1, 1 + self.pw):
            a(f's_cmp_le_u32 s{s_t+2}, {st-1}'); a(f's_addc_u32 s{s_t}, s{s_rot2}, {st-1}')
            a(f's_mul_i32 s{s_t}, s{s_t}, {64*6144}'); a(f's_add_u32 s{s_t}, s{s_t}, s{s_t+1}')
            for k in range(12): a(f's_buffer_load_dwordx2 s[{s_fd}:{s_fd+1}], {srd(sW)}, s{s_t} offset:{2048*k+60}')
    def warm_wo_setup(self):
        a = self.a
        a(f's_and_b32 s{s_t}, s{s_m}, 3'); a.extend(sx(s_po, [(s_t, 256*2048), (s_wave, 64*2048), (s_g, 128)], -256*2048))
    def warm_wo(self, n):
        a = self.a
        def body():
            for k in range(n): a(f's_buffer_load_dwordx2 s[{s_fd}:{s_fd+1}], {srd(sWO)}, s{s_po} offset:{2048*k+60}')
            a(f's_add_u32 s{s_po}, s{s_po}, {2048*n}'); a(f's_min_u32 s{s_po}, s{s_po}, {(1 << 21) - 2048*n}')
        if self.po: self.cond([f's_lshr_b32 s{s_t}, {self.po}, s{s_l}', f's_bitcmp1_b32 s{s_t}, 0'], body)

    def w_dma_offsets(self, dw, idx, t0, t1, t2):
        a = self.a
        a(f'v_lshrrev_b32 v{t0}, 3, v1'); a(f'v_mul_u32_u24 v{t0}, 6144, v{t0}')
        a(f'v_and_b32 v{t1}, 7, v1'); a(f'v_bfe_u32 v{t2}, v1, 4, 1'); a(f'v_lshlrev_b32 v{t2}, 1, v{t2}')
        a(f'v_xor_b32 v{t1}, v{t1}, v{t2}'); a(f'v_xor_b32 v{t2}, 4, v{t1}')
        a(f'v_lshl_add_u32 v{t1}, v{t1}, 4, v{t0}'); a(f'v_lshl_add_u32 v{t2}, v{t2}, 4, v{t0}')
        d = 8*6144 - 1024
        a(f's_lshl_b32 s{s_t+1}, s{s_g}, 7'); a(f'v_add_u32 v{t1}, s{s_t+1}, v{t1}'); a(f's_add_u32 s{s_t+1}, s{s_t+1}, {d}'); a(f'v_add_u32 v{t2}, s{s_t+1}, v{t2}')
        a(f's_cmp_eq_u32 s{idx}, 0')
        for t in range(3):
            c = [((3*w + t) & 1)*32*6144 + ((3*w + t) >> 1)*2048 for w in range(2)]
            a(f's_mov_b32 s{s_t}, {c[1]}'); a(f's_cmov_b32 s{s_t}, {c[0]}')
            a(f'v_add_u32 v{dw+4*t}, s{s_t}, v{t1}'); a(f'v_add_u32 v{dw+4*t+1}, s{s_t}, v{t2}')
            a(f'v_add_u32 v{dw+4*t+2}, {2*d}, v{dw+4*t}'); a(f'v_add_u32 v{dw+4*t+3}, {2*d}, v{dw+4*t+1}')

    def w_frag_addr(self, aw, head_sreg, base, t0, t1, t2, nb_list=(0, 1)):
        L = [f'v_lshrrev_b32 v{t2}, 4, v1', f'v_bfe_u32 v{t0}, v1, 2, 2', f'v_lshl_add_u32 v{t1}, v{t2}, 3, v{t0}',
             f'v_lshrrev_b32 v{t0}, 1, v{t0}', f'v_and_b32 v{t2}, 1, v{t2}', f'v_lshl_add_u32 v{t0}, v{t2}, 1, v{t0}']
        if head_sreg is not None: L += [f's_lshl_b32 s{s_t}, s{head_sreg}, 1', f'v_xor_b32 v{t0}, s{s_t}, v{t0}']
        L += [f'v_and_b32 v{t2}, 3, v1', f'v_lshlrev_b32 v{t2}, 3, v{t2}', f'v_lshl_add_u32 v{t2}, v{t1}, 7, v{t2}']
        if base: L.append(f'v_add_u32 v{t2}, {base}, v{t2}')
        for k, nb in enumerate(nb_list): L += [f'v_xor_b32 v{t1}, {nb}, v{t0}', f'v_lshl_add_u32 v{aw+k}, v{t1}, 5, v{t2}']
        return L

    def reduce_job(self, after_by=None, after_fill=None):
        a = self.a
        T = 200
        vA, vZ, vO, t1, t2 = T, T+1, T+2, T+3, T+4
        s_a, s_b, s_c, s_d, s_e = 80, 81, 82, 83, 84
        a.extend(sx(s_t, [(s_l, 32), (s_g, 4), (s_wave, 1)], -4))
        a.extend(sx(s_a, [(s_t, 32768), (s_m, 128)], WS_KVP)); a(f's_add_u32 s{s_b}, s{s_a}, 16384')
        a.extend(sx(s_d, [(s_t, 2048), (s_m, 128)], WS_KVF))
        a.extend(sx(s_c, [(s_t, 1024)], WS_ZP)); a.extend(sx(s_e, [(s_t, 64)], WS_ZF))
        a(f's_and_b32 s{s_t}, s{s_t}, 1'); a(f's_xor_b32 s{s_t+1}, s{s_m}, s{s_g}'); a(f's_or_b32 s{s_t}, s{s_t}, s{s_t+1}')
        a(f's_cselect_b32 s{s_c}, {BIG}, s{s_c}'); a(f's_cselect_b32 s{s_e}, {BIG}, s{s_e}')
        a(f'v_and_b32 v{t1}, 7, v1'); a(f'v_lshlrev_b32 v{t1}, 4, v{t1}')
        a(f'v_lshrrev_b32 v{t2}, 3, v1'); a(f'v_lshl_add_u32 v{vA}, v{t2}, 11, v{t1}')
        a(f'v_lshlrev_b32 v{vZ}, 4, v1')
        a(f'v_lshrrev_b32 v{t2}, 4, v1'); a(f'v_lshl_add_u32 v{vO}, v{t2}, 2, v{t1}')
        D = T + 8; U = 160
        def late_fill():
            for k in range(4): a(f'v_mov_b32 v{D+k}, -1')
            fill = f'buffer_store_dwordx4 {vr(D,4)}, v{vZ}, {srd(sWS)}, s{s_t} offen'
            a.extend(sx(s_t, [(s_g, 131072), (s_wave, 32768), (s_m, 2048)], WS_KVP + (1 << 21) - 4*32768)); a(fill + ' sc1'); a(fill + ' offset:1024 sc1')
            a(f's_lshr_b32 s{s_t+1}, s{s_wave}, 1'); a(f's_and_b32 s{s_t+2}, s{s_wave}, 1')
            a.extend(sx(s_t, [(s_t+2, 1 << 20), (s_m, 1 << 16), (s_g, 4096), (s_t+1, 2048)], WS_HALO - 2*2048)); a(fill + ' sc1'); a(fill + ' offset:1024 sc1')
            a.extend(sx(s_t, [(s_wave, 262144), (s_m, 16384), (s_g, 1024)], WS_ST - 3*262144))
            a.extend(sx(s_t+3, [(s_g, 16384), (s_m, 1024)], WS_CS + 262144))
            a(f's_cmp_eq_u32 s{s_wave}, 7'); a(f's_cselect_b32 s{s_t}, s{s_t+3}, s{s_t}'); a(fill + ' sc1')
            a('s_mov_b64 exec, 0xff')
            a(f's_add_u32 s{s_t}, s{s_d}, {1 << 17}'); a(fill + ' sc1')
            a(f's_add_u32 s{s_t}, s{s_e}, {1 << 12}'); a(fill + ' sc1')
            a.extend(sx(s_t, [(s_g, 4096), (s_t+1, 2048), (s_m, 128)], WS_ZP + (1 << 16) - 2*2048)); a(fill + ' sc1')
            a('s_mov_b64 exec, -1')
            a('s_waitcnt vmcnt(0)')
        self.cond([f's_cmp_eq_u32 s{s_l}, 0'], late_fill)
        a('s_barrier')
        if self.jit: self.jitter(20)
        if self.rprio: a(f's_setprio {self.rprio}')
        a('s_barrier')
        if after_by and self.w0a == 0: after_by()
        if self.b1: a(f's_sleep {self.b1}')
        self.ll_wait(([f's_sleep {self.n1}'] if self.n1 else []) + [f'buffer_load_dwordx4 {vr(D,4)}, v{vA}, {srd(sWS)}, s{s_a} offen sc1',
                      f'buffer_load_dwordx4 {vr(D+4,4)}, v{vA}, {srd(sWS)}, s{s_b} offen sc1',
                      f'buffer_load_dwordx4 {vr(D+8,4)}, v{vZ}, {srd(sWS)}, s{s_c} offen sc1',
                      f'buffer_load_dwordx4 {vr(D+12,4)}, v{vZ}, {srd(sWS)}, s{s_c} offen offset:1024 sc1'],
                     list(range(D, D+16)), t1, t2, 1, pipe=self.pipe & 1)
        self.stamp(5)
        S = []
        for z in range(2):
            d, u = D + 8*z, U + 16*z
            for k in range(8): S += [f'v_lshlrev_b32 v{u+2*k}, 16, v{d+k}', f'v_and_b32 v{u+2*k+1}, 0xffff0000, v{d+k}']
            for k in range(4): S.append(pk('add', u+2*k, u+2*k, u+8+2*k))
            for k in range(4): S.append(sw32(u+k, u+4+k))
            S += [pk('add', u, u, u+4), pk('add', u+2, u+2, u+6), sw16(u, u+2), sw16(u+1, u+3), pk('add', u, u, u+2)]
            for k in range(2): S.append(f'v_add_f32_dpp v{u+k}, v{u+k}, v{u+k} row_ror:8 row_mask:0xf bank_mask:0xf')
            S.append(cvt(u, u, u+1))
        S += ['s_mov_b32 exec_lo, 0x00ff00ff', 's_mov_b32 exec_hi, 0x00ff00ff',
              f'buffer_store_dword v{U}, v{vO}, {srd(sWS)}, s{s_d} offen sc1',
              f'buffer_store_dword v{U+16}, v{vO}, {srd(sWS)}, s{s_e} offen sc1', 's_mov_b64 exec, -1']
        self.sw(S)
        if self.rprio: a('s_setprio 0')
        if after_by and self.w0a == 1: after_by()
        if self.zw: a(f's_waitcnt vmcnt({12 if (after_by and self.w0a == 1 and self.zw == 1) else 0})')
        a('s_barrier')
        if after_by and self.w0a == 2: after_by()

    def loader(self):
        a = self.a
        a.label('L_loader')
        dx, dw, dwo, t0, t1, t2, vf = 8, 16, 28, 2, 3, 4, 5
        s_ld, s_kx, s_kw, s_slot, s_mx, s_xstep, s_wo, s_wm0, s_sx, s_sw, s_xb, s_fl, s_mw = range(65, 78)
        a(f's_sub_u32 s{s_ld}, s{s_wave}, 4')
        self.w_dma_offsets(dw, s_ld, t0, t1, t2)
        a(f's_mul_i32 s{s_mw}, s{s_ld}, 12288')
        a(f's_lshl_b32 s{s_mx}, s{s_ld}, 13'); a(f's_add_u32 s{s_mx}, s{s_mx}, {XOFF}')
        s_flip = 78
        def nxt(r):
            return [f's_cmp_eq_u32 s{r}, s{s_flip}', f's_addc_u32 s{r}, s{r}, 1', f's_and_b32 s{r}, s{r}, 15']
        def wst(slot=None):
            L = []
            for j in range(12):
                if j == 0: L.append(f's_add_u32 m0, s{s_mw}, ' + (f's{s_slot}' if slot is None else str(slot*STG)))
                elif j % 4 == 0: L.append('s_add_u32 m0, m0, 4096')
                L.append(f'buffer_load_dwordx4 v{dw+j}, {srd(sW)}, s{s_kw} offen offset:{1024*(j%4)} lds')
            a.extend(L + nxt(s_sw) + [f's_mul_i32 s{s_kw}, s{s_sw}, {64*6144}'])
        def xst(slot=None):
            L = []
            for j in range(8):
                if j == 0: L.append(f's_add_u32 m0, s{s_mx}, ' + (f's{s_slot}' if slot is None else str(slot*STG)))
                elif j == 4: L.append('s_add_u32 m0, m0, 4096')
                L.append(f'buffer_load_dwordx4 v{dx+j}, {srd(sX)}, s{s_kx} offen offset:{1024*(j%4)} sc1 lds')
            a.extend(L + nxt(s_sx) + [f's_mul_i32 s{s_kx}, s{s_sx}, s{s_xstep}', f's_add_u32 s{s_kx}, s{s_kx}, s{s_xb}'])
        def kstart(first):
            if first:
                a(f's_and_b32 s{s_sx}, s{s_m}, {self.rot0}'); a(f's_mov_b32 s{s_sw}, s{s_sx}'); a(f's_mov_b32 s{s_flip}, 16')
            else:
                a(f's_add_u32 s{s_sw}, s{s_rot2}, 15'); a(f's_and_b32 s{s_sw}, s{s_sw}, 15'); a(f's_mov_b32 s{s_sx}, s{s_sw}')
                a(f's_add_u32 s{s_flip}, s{s_g}, 15'); a(f's_and_b32 s{s_flip}, s{s_flip}, 15'); a.extend(nxt(s_sx))
            a(f's_mul_i32 s{s_kw}, s{s_sw if first else s_g}, {64*6144}'); a(f's_mul_i32 s{s_kx}, s{s_sx}, s{s_xstep}'); a(f's_add_u32 s{s_kx}, s{s_kx}, s{s_xb}')
        a(f's_lshl_b32 s{s_xb}, s{s_m}, 18'); a(f's_mov_b32 s{s_xstep}, 128'); kstart(True)
        self.pointers()
        wst(0)
        a(f'v_lshrrev_b32 v{t0}, 3, v1'); a(f'v_and_b32 v{t1}, 7, v1')
        a(f'v_lshrrev_b32 v{t2}, 4, v1'); a(f'v_xor_b32 v{t1}, v{t1}, v{t2}'); a(f'v_xor_b32 v{t2}, 4, v{t1}')
        a(f's_lshl_b32 s{s_t}, s{s_ld}, 17'); a(f'v_lshl_add_u32 v{t0}, v{t0}, 11, s{s_t}')
        a(f'v_lshl_add_u32 v{t1}, v{t1}, 4, v{t0}'); a(f'v_lshl_add_u32 v{t2}, v{t2}, 4, v{t0}')
        for j in range(8): a(f'v_add_u32 v{dx+j}, {j*16384 - 1024*(j%4)}, v{t1 if j % 2 == 0 else t2}')
        xst(0); wst(1)
        a(f'v_lshrrev_b32 v{t0}, 5, v1'); a(f'v_lshlrev_b32 v{t0}, 4, v{t0}')
        a(f'v_bfe_u32 v{t1}, v1, 3, 2'); a(f'v_add_u32 v{t0}, v{t0}, v{t1}')
        a(f's_lshl_b32 s{s_t}, s{s_g}, 7'); a(f'v_lshl_add_u32 v{t0}, v{t0}, 11, s{s_t}')
        a(f'v_and_b32 v{t1}, 7, v1'); a(f'v_bfe_u32 v{t2}, v1, 4, 1'); a(f'v_lshlrev_b32 v{t2}, 1, v{t2}')
        a(f'v_xor_b32 v{t1}, v{t1}, v{t2}'); a(f'v_xor_b32 v{t2}, 4, v{t1}')
        a(f'v_lshl_add_u32 v{t1}, v{t1}, 4, v{t0}'); a(f'v_lshl_add_u32 v{t2}, v{t2}, 4, v{t0}')
        for G in range(4): a(f'v_add_u32 v{dwo+G}, {G*4*2048 - 1024*G}, v{t1 if G % 2 == 0 else t2}')
        a('s_waitcnt vmcnt(12)'); a('s_barrier')
        xst(1); wst(2)
        a('s_waitcnt vmcnt(12)'); a('s_barrier')
        xst(2)
        a.label('L_ld_enter')
        a(f's_mov_b32 s{s_i}, 0'); a(f's_mov_b32 s{s_slot}, 0')
        self.trickle_setup(); self.warm_wo_setup()
        def loop(name, n, extra):
            a.label(name)
            xst(); wst()
            if extra:
                a(f's_add_u32 s{s_t}, s{s_i}, 1'); a(f's_and_b32 s{s_t}, s{s_t}, 7')
                a.extend(sx(s_wo, [(s_rot2, 2), (s_t, 1)], 24)); a(f's_and_b32 s{s_wo}, s{s_wo}, 31')
                a.extend(sx(s_wm0, [(s_wo, 65536), (s_ld, 2*4*2048)]))
                a.extend(sx(s_wo, [(s_t, 4096), (s_ld, 2048)], L_SPARE)); a(f's_mov_b32 m0, s{s_wo}')
                for G in range(2): a(f'buffer_load_dwordx4 v{dwo+G}, {srd(sWO)}, s{s_wm0} offen offset:{1024*G} lds')
            self.trickle(f's{s_i}'); self.warm_wo(5)
            a(f's_add_u32 s{s_slot}, s{s_slot}, {STG}'); a(f's_cmp_eq_u32 s{s_slot}, {3*STG}'); a(f's_cselect_b32 s{s_slot}, 0, s{s_slot}')
            a(f's_add_u32 s{s_i}, s{s_i}, 1'); a(f's_cmp_lt_u32 s{s_i}, {n}')
            a(f's_waitcnt vmcnt({22 if extra else 20})')
            a('s_barrier')
            a(f's_cbranch_scc1 {name}')
        if self.early: loop('L_ld_loop', 5, False); loop('L_ld_loop2', 13, True)
        else: loop('L_ld_loop', 13, False)
        def wo(p0, n, thr=None):
            a.extend(sx(s_wm0, [(s_ld, 4096)], L_WO + 4096*p0))
            a.extend(sx(s_wo, [(s_rot2, 2), (s_ld, 1)], p0)); a(f's_and_b32 s{s_wo}, s{s_wo}, 31'); a(f's_lshl_b32 s{s_wo}, s{s_wo}, 16')
            L = self.lab('wo')
            a(f's_mov_b32 s{s_i}, 0')
            a.label(L)
            if thr is not None: a(f's_waitcnt vmcnt({thr})')
            a(f's_mov_b32 m0, s{s_wm0}')
            a(f's_add_u32 s{s_wm0}, s{s_wm0}, 8192')
            for G in range(4): a(f'buffer_load_dwordx4 v{dwo+G}, {srd(sWO)}, s{s_wo} offen offset:{1024*G} lds')
            a(f's_add_u32 s{s_wo}, s{s_wo}, 131072'); a(f's_and_b32 s{s_wo}, s{s_wo}, 0x1fffff')
            a(f's_add_u32 s{s_i}, s{s_i}, 1'); a(f's_cmp_lt_u32 s{s_i}, {n//2}'); a(f's_cbranch_scc1 {L}')
        if self.early:
            wo(4, 10)
            a('s_waitcnt vmcnt(20)'); a('s_barrier')
            wo(14, 10)
            a('s_barrier')
            wo(0, 4)
        else:
            wo(24, 8)
            a('s_waitcnt vmcnt(16)'); a('s_barrier')
            wo(4, 10)
            a('s_barrier')
            wo(14, 10, self.thr); wo(0, 4, self.thr)
        if self.jit: self.jitter(23)
        a.extend(sx(s_fl, [(s_l, 8192), (s_m, 256), (s_rot2, 16), (s_ld, 8)], 4096))
        self.get_mode(t0); a.extend(self.flag_addr(vf, t0, s_fl))
        a.extend(sx(s_xb, [(s_l, 1 << 22), (s_m, 1 << 18)], WS_XI))
        a(f's_bitcmp0_b32 s{s_l}, 0')
        a(f's_cselect_b64 s[{sW}:{sW+1}], s[{pBW}:{pBW+1}], s[{pAW}:{pAW+1}]')
        a(f's_cselect_b64 s[{sWO}:{sWO+1}], s[{pBWO}:{pBWO+1}], s[{pAWO}:{pAWO+1}]')
        a(f's_mov_b64 s[{sX}:{sX+1}], s[{pWS}:{pWS+1}]'); a(f's_mov_b32 s{sX+2}, {WS_END}')
        a(f's_mov_b32 s{s_xstep}, 16384'); kstart(False)
        a(f's_lshl_b32 s{s_t}, s{s_ld}, 13'); a(f'v_lshl_add_u32 v{t0}, v1, 4, s{s_t}')
        for j in range(8): a(f'v_add_u32 v{dx+j}, {4096*(j//4)}, v{t0}')
        a(f's_bitcmp1_b32 s{s_l}, 0'); a('s_cbranch_scc1 L_ld_B')
        self.reduce_job(lambda: wst(0))
        a('s_branch L_ld_join')
        a.label('L_ld_B')
        if self.w0b == 0: self.cond([f's_cmp_lg_u32 s{s_l}, 3'], lambda: wst(0))
        a('s_barrier')
        if self.w0b == 1: self.cond([f's_cmp_lg_u32 s{s_l}, 3'], lambda: wst(0))
        a.label('L_ld_join')
        a('s_waitcnt vmcnt(0)'); a('s_barrier')
        a(f's_cmp_eq_u32 s{s_l}, 3'); a('s_cbranch_scc1 L_fin')
        self.trickle_rest(1); self.warm_w()
        a(f's_add_u32 s{s_l}, s{s_l}, 1')
        if self.jit: self.jitter(21)
        a('s_barrier')
        if self.jit: self.jitter(22)
        wst(1)
        if self.w2 == 2: wst(2)
        a('s_barrier')
        if self.w2 == 0: wst(2)
        self.flag_wait(s_fl, vf, t0, 2, pipe=2 if self.pipe & 4 else 0)
        self.stamp(1)
        xst(1); xst(2)
        a('s_waitcnt vmcnt(8)'); a('s_barrier')
        if self.w2 == 1: wst(2)
        a('s_branch L_ld_enter')

    def helper(self):
        a = self.a
        a.label('L_helper')
        t0, t1, t2, t3, l4, l16, ones, a_st, a_cs, v_st, v_cs, aw, vtw, vto, vd = 2, 3, 4, 5, 6, 7, 8, 12, 13, 14, 15, 16, 18, 19, 20
        F, D, SA, SC = 32, 96, 128, 160
        s_h, s_tw, s_a, s_b, s_trot = 65, 66, 67, 68, 69
        xm = 4; s_r = 70; vrf, vfl, aw2, dw = 21, 22, 24, 80
        a(f's_sub_u32 s{s_h}, s{s_wave}, 6')
        a(f'v_lshlrev_b32 v{l4}, 2, v1'); a(f'v_lshlrev_b32 v{l16}, 4, v1')
        a.extend(self.w_frag_addr(aw, s_h, 0, t0, t1, t2))
        for k in range(2): a(f'v_add_u32 v{aw2+k}, {L_SPARE}, v{aw+k}')
        a(f's_and_b32 s{s_t+1}, s{s_m}, {15 - self.rot0}'); a(f's_cmp_eq_u32 s{s_t+1}, 3'); a(f's_cselect_b32 s{s_t+1}, 0, s{s_t+1}'); a(f's_mul_i32 s{s_t+1}, s{s_t+1}, {STG}')
        for k in range(2): a(f'v_add_u32 v{aw+k}, s{s_t+1}, v{aw+k}')
        a.extend(self.flag_addr(vrf, t0, None, remote=True))
        a(f'v_lshrrev_b32 v{t0}, 5, v1'); a(f'v_and_b32 v{t1}, 31, v1'); a(f'v_lshlrev_b32 v{t1}, 4, v{t1}')
        a(f'v_lshl_add_u32 v{v_st}, v{t0}, 10, v{t1}')
        a(f'v_and_b32 v{t2}, 24, v1'); a(f'v_and_b32 v{t3}, 3, v1'); a(f'v_lshl_add_u32 v{t2}, v{t3}, 1, v{t2}'); a(f'v_add_u32 v{t2}, v{t2}, v{t0}')
        a.extend(sx(s_t, [(s_h, 256)], P_NM)); a(f'v_lshl_add_u32 v{a_st}, v{t2}, 3, s{s_t}')
        a(f'v_mov_b32 v{t2}, {BIG}'); a(f'v_cmp_gt_u32 vcc, 384, v{t1}'); a(f'v_cndmask_b32 v{v_cs}, v{t2}, v{v_st}, vcc')
        a.extend(sx(s_t, [(s_h, 384)], P_CS)); a(f'v_lshl_add_u32 v{t1}, v{t0}, 3, v{t1}'); a(f'v_add_u32 v{a_cs}, s{s_t}, v{t1}')
        self.pointers()

        def touch_setup(first=False):
            if not self.touch: return
            c, gt = s_t + 2, s_t + 3
            def cls(b):
                a(f's_lshr_b32 s{gt}, s{b}, 7'); a(f's_sub_u32 s{gt}, 3, s{gt}'); a(f's_and_b32 s{gt}, s{gt}, 7')
                a(f's_sub_u32 s{c}, s{s_g}, s{gt}'); a(f's_and_b32 s{c}, s{c}, 7'); a(f's_sub_u32 s{c}, s{c}, 1')
                a(f's_and_b32 s{s_t}, s{s_g}, 8'); a(f's_add_u32 s{gt}, s{gt}, s{s_t}'); a(f's_lshl_b32 s{gt}, s{gt}, 7')
            a(f's_and_b32 s{s_t+4}, s{s_m}, {xm-1}'); a(f's_lshl_b32 s{s_t+4}, s{s_t+4}, 1'); a(f's_add_u32 s{s_t+4}, s{s_t+4}, s{s_h}')
            cls(sW)
            if first: a(f's_or_b32 s{s_rot}, s{s_m}, 3'); a(f's_and_b32 s{s_rot}, s{s_rot}, {self.rot0}'); a(f's_mov_b32 s{s_trot}, 0')
            else: a(f's_mov_b32 s{s_rot}, s{s_rot2}'); a(f's_bfe_u32 s{s_trot}, s{gt}, 0x30007')
            a(f's_cmp_ge_u32 s{c}, 3'); a(f's_cselect_b32 s{s_t}, {32*6144 - 3*2048}, 0'); a(f's_add_u32 s{gt}, s{gt}, s{s_t}')
            a(f's_lshl_b32 s{s_t}, s{c}, 11'); a(f's_add_u32 s{gt}, s{gt}, s{s_t}')
            a(f's_mul_i32 s{s_t}, s{s_t+4}, {(16//xm)*6144}'); a(f's_add_u32 s{gt}, s{gt}, s{s_t}')
            a(f's_cmp_lt_u32 s{c}, 6'); a(f's_cselect_b32 s{s_t}, {16//xm}, 0')
            a(f'v_mul_u32_u24 v{vtw}, 6144, v1'); a(f'v_add_u32 v{vtw}, s{gt}, v{vtw}')
            a(f'v_mov_b32 v{t0}, {BIG}'); a(f'v_cmp_gt_u32 vcc, s{s_t}, v1'); a(f'v_cndmask_b32 v{vtw}, v{t0}, v{vtw}, vcc')
            cls(sWO)
            a(f's_lshl_b32 s{s_t}, s{c}, 19'); a(f's_add_u32 s{gt}, s{gt}, s{s_t}')
            a(f's_mul_i32 s{s_t}, s{s_t+4}, {(128//xm)*2048}'); a(f's_add_u32 s{gt}, s{gt}, s{s_t}')
            a(f's_cmp_lt_u32 s{c}, 4'); a(f's_cselect_b32 s{s_t}, {32//xm}, 0')
            a(f'v_lshlrev_b32 v{vto}, 11, v1'); a(f'v_add_u32 v{vto}, s{gt}, v{vto}')
            a(f'v_cmp_gt_u32 vcc, s{s_t}, v1'); a(f'v_cndmask_b32 v{vto}, v{t0}, v{vto}, vcc')
        def touchW(st):
            if not self.touch: return
            if st == 0: a(f's_add_u32 s{s_tw}, s{s_rot}, s{s_trot}')
            else: a(f's_cmp_le_u32 s{s_trot}, {st-1}'); a(f's_addc_u32 s{s_tw}, s{s_rot}, {st-1}')
            a(f's_and_b32 s{s_tw}, s{s_tw}, 15'); a(f's_mul_i32 s{s_tw}, s{s_tw}, {64*6144}')
            a(f'buffer_load_dword v{vd}, v{vtw}, {srd(sW)}, s{s_tw} offen')
        def touchO(k):
            if not self.touch: return
            a(f's_mov_b32 s{s_tw}, {k*(32//xm)*2048}')
            a(f'buffer_load_dword v{vd}, v{vto}, {srd(sWO)}, s{s_tw} offen')
        def phi_load():
            a(f's_mov_b64 s[{sX}:{sX+1}], s[{pPHI}:{pPHI+1}]'); a(f's_mov_b32 s{sX+2}, 65536')
            a.extend(sx(s_t, [(s_g, 4096), (s_h, 2048)])); a(f's_lshl_b32 s{s_t+1}, s{s_h}, 11'); a(f's_add_u32 m0, s{s_t+1}, {P_PHI}')
            for j in range(2): a(f'buffer_load_dwordx4 v{l16}, {srd(sX)}, s{s_t} offen offset:{1024*j} lds')
        self.w_dma_offsets(dw, s_h, t0, t1, t2)
        touch_setup(True)
        for st in range(1, 3 + self.dist): touchW(st)

        def init_stores():
            for k in range(4): a(f'v_mov_b32 v{SA+k}, -1')
            fill = f'buffer_store_dwordx4 {vr(SA,4)}, v{l16}, {srd(sWS)}, s{s_t} offen'
            a.extend(sx(s_t, [(s_g, 131072), (s_h, 65536), (s_m, 2048)], WS_KVP)); a(fill + ' sc1'); a(fill + ' offset:1024 sc1')
            a(f's_add_u32 s{s_t}, s{s_t}, 32768'); a(fill + ' sc1'); a(fill + ' offset:1024 sc1')
            a('s_mov_b64 exec, 0xff')
            a.extend(sx(s_t, [(s_g, 8192), (s_h, 4096), (s_m, 128)], WS_KVF)); a(fill + ' sc1'); a(fill + ' offset:2048 sc1')
            a.extend(sx(s_t, [(s_g, 4096), (s_h, 2048), (s_m, 128)], WS_ZP)); a(fill + ' sc1')
            a.extend(sx(s_t, [(s_g, 256), (s_h, 128)], WS_ZF))
            a(f's_cmp_eq_u32 s{s_m}, s{s_g}'); a(f's_cselect_b32 s{s_t}, s{s_t}, {BIG}'); a(fill + ' sc1')
            a('s_mov_b64 exec, -1')
            a(f's_and_b32 s{s_t+1}, s{s_g}, 7'); a.extend(sx(s_t, [(s_t+1, 4096), (s_m, 256), (s_rot2, 16), (s_h, BIG)]))
            a(f'v_mov_b32 v{t0}, 0'); a('s_mov_b32 exec_hi, 0')
            a(f'buffer_store_dword v{t0}, v{l4}, {srd(sWS)}, s{s_t} offen sc1')
            a('s_mov_b32 exec_hi, -1')
            a(f'v_lshrrev_b32 v{t1}, 2, v1'); a(f'v_lshlrev_b32 v{t1}, 10, v{t1}'); a(f'v_and_or_b32 v{t1}, v1, 3, v{t1}'); a(f'v_lshlrev_b32 v{t1}, 7, v{t1}')
            a.extend(sx(s_t, [(s_m, 8192), (s_g, 512)], WS_RF)); a(f's_cmp_eq_u32 s{s_h}, 1'); a(f's_cselect_b32 s{s_t}, s{s_t}, {BIG}')
            a('s_mov_b64 exec, 0xfffffff')
            a(f'buffer_store_dword v{t0}, v{t1}, {srd(sWS)}, s{s_t} offen sc1')
            a('s_mov_b64 exec, -1')
            a.extend(sx(s_t, [(s_g, 16384), (s_m, 1024)], WS_CS)); a(f's_cmp_eq_u32 s{s_h}, 1'); a(f's_cselect_b32 s{s_t}, s{s_t}, {BIG}'); a(fill + ' sc1')
        for k in range(4): a(f'v_mov_b32 v{ones+k}, 0x3f803f80')
        def cs_reads(aw=aw):
            for s in range(2):
                for n in range(6):
                    for t in range(2):
                        a(f'ds_read_b64_tr_b16 {vr(F+24*s+4*n+2*t,2)}, v{aw+(n&1)} offset:{(n>>1)*8192+(32*s+4*t)*128}')
            a('s_waitcnt lgkmcnt(0)')
        def cs_publish():
            for s in range(2):
                for n in range(6): a(mf16(D+4*n, ones, F+24*s+4*n, D+4*n if s else None))
            a.extend(sx(s_t, [(s_l, 262144), (s_g, 16384), (s_m, 1024), (s_h, 128)], WS_CS))
            a('s_mov_b64 exec, 0xffff')
            for n in range(6): a(f'buffer_store_dword v{D+4*n}, v{l4}, {srd(sWS)}, s{s_t} offen offset:{(n>>1)*256+(n&1)*64} sc1')
            a('s_mov_b64 exec, -1')
        def chunk(t):
            a(f's_mul_i32 s{s_t}, s{s_m}, {64*6144}'); a(f's_mul_i32 s{s_t+1}, s{s_h}, 12288'); a(f's_add_u32 m0, s{s_t+1}, {L_SPARE + 4096*(t//2)}')
            for j in range(2*t, 2*t+2): a(f'buffer_load_dwordx4 v{dw+j}, {srd(sW)}, s{s_t} offen offset:{1024*(j%4)} lds')
        def arrive():
            a(f's_getreg_b32 s{s_t}, hwreg(HW_REG_XCC_ID, 0, 3)'); a(f's_lshl_b32 s{s_t}, s{s_t}, 2'); a(f's_lshl_b32 s{s_t+1}, 1, s{s_t}')
            a.extend(sx(s_t, [(s_m, 16), (s_rot2, 1)]))
            a('s_mov_b64 exec, 1')
            a(f'v_mov_b32 v{t0}, s{s_t+1}')
            a(f'buffer_atomic_add v{t0}, off, {srd(sDBG)}, s{s_t} sc1')
            a('s_mov_b64 exec, -1')
        iload = f'buffer_load_dword v{vfl}, v{t2}, {srd(sDBG)}, 0 offen sc1'
        def init_look():
            a(f'v_and_b32 v{t2}, 31, v1'); a(f'v_lshlrev_b32 v{t2}, 3, v{t2}'); a(iload)
        def init_wait():
            a('s_waitcnt vmcnt(0)')
            self.spin(['s_sleep 16', iload],
                      [f'v_lshrrev_b32 v{t1}, 4, v{vfl}', f'v_and_b32 v{t1}, 0x0f0f0f0f, v{t1}', f'v_and_b32 v{t3}, 0x0f0f0f0f, v{vfl}',
                       f'v_sad_u8 v{t1}, v{t1}, 0, 0', f'v_sad_u8 v{t3}, v{t3}, 0, v{t1}', f'v_cmp_gt_u32 vcc, 8, v{t3}'], t3, 3, pre=True)
            a(f's_lshr_b32 s{s_t}, s{s_rot2}, 3'); a(f's_lshl_b32 s{s_t+1}, s{s_m}, 1'); a(f's_add_u32 s{s_t}, s{s_t}, s{s_t+1}')
            a(f'v_readlane_b32 s{s_fast}, v{vfl}, s{s_t}')
            a(f's_and_b32 s{s_fast}, s{s_fast}, 0x88888888'); a(f's_cselect_b32 s{s_fast}, {1 if self.local else 0}, 0')
            a(f'v_mov_b32 v{t3}, s{s_fast}'); a(f'v_mov_b32 v{t2}, {P_MODE}'); a(f'ds_write_b32 v{t2}, v{t3}')
        def gather(R, va, so, ks):
            L = []
            for k in ks: L += [f's_add_u32 s{s_t}, s{so}, {4096*(k//2)}', f'buffer_load_dwordx4 {vr(R+4*k,4)}, v{va}, {srd(sWS)}, s{s_t} offen offset:{2048*(k%2)} sc1']
            return L
        def total(R):
            n = 8
            while n > 1:
                n //= 2
                for k in range(4*n): a(f'v_add_f32 v{R+k}, v{R+k}, v{R+k+4*n}')
            a(sw32(R, R+2)); a(sw32(R+1, R+3)); a(f'v_add_f32 v{R}, v{R}, v{R+2}'); a(f'v_add_f32 v{R+1}, v{R+1}, v{R+3}')
        def stats_finish():
            for k in range(2): a(f'v_mov_b32_dpp v{SA+2+k}, v{SA+k} row_shl:4 row_mask:0xf bank_mask:0xf')
            for k in range(2): a(f'v_mul_f32 v{SA+k}, {f2u(-1/1024)}, v{SA+k}'); a(f'v_mul_f32 v{SA+2+k}, {f2u(1/1024)}, v{SA+2+k}')
            for k in range(2): a(f'v_fma_f32 v{SA+2+k}, -v{SA+k}, v{SA+k}, v{SA+2+k}')
            for k in range(2): a(f'v_max_f32 v{SA+2+k}, 0, v{SA+2+k}')
            for k in range(2): a(f'v_add_f32 v{SA+2+k}, {f2u(1e-5)}, v{SA+2+k}')
            for k in range(2): a(f'v_rsq_f32 v{SA+2+k}, v{SA+2+k}')
            a('s_mov_b32 exec_lo, 0x0f0f0f0f'); a('s_mov_b32 exec_hi, 0x0f0f0f0f')
            a(f'ds_write_b64 v{a_st}, {vr(SA,2)}'); a(f'ds_write_b64 v{a_st}, {vr(SA+2,2)} offset:512')
            a('s_mov_b64 exec, -1')
        def cs_finish():
            total(SC)
            a(f's_mul_i32 s{s_t}, s{s_l}, 768'); a(f'v_add_u32 v{t0}, s{s_t}, v{a_cs}')
            a('s_mov_b32 exec_lo, 0xffffff'); a('s_mov_b32 exec_hi, 0xffffff')
            a(f'ds_write_b64 v{t0}, {vr(SC,2)}')
            a('s_mov_b64 exec, -1')
        l0 = [f's_cmp_eq_u32 s{s_l}, 0']; ln0 = [f's_cmp_lg_u32 s{s_l}, 0']; l01 = [f's_cmp_lt_u32 s{s_l}, 2']
        a(f's_mov_b32 s{s_r}, 0')
        a.label('L_hp_layer')
        a.extend(sx(s_a, [(s_l, 262144), (s_m, 16384), (s_h, 512)], WS_ST))
        a.extend(sx(s_b, [(s_l, 262144), (s_g, 16384), (s_h, 384)], WS_CS))
        self.trickle_setup(); self.warm_wo_setup()
        hi = lambda: self.hprio and a(f's_setprio {self.hprio}')
        lo = lambda: self.hprio and a('s_setprio 0')
        l1 = [f's_cmp_eq_u32 s{s_l}, 1']
        for i in range(17):
            a('s_barrier')
            if self.jit and i in (0, 1, 4, 8, 9, 12, 16): self.jitter(30 + i)
            ncs = 16 - self.rot0
            l0h0 = [f's_or_b32 s{s_t}, s{s_l}, s{s_h}', f's_cmp_eq_u32 s{s_t}, 0']
            if i < ncs: self.cond([f's_and_b32 s{s_t}, s{s_m}, {ncs-1}', f's_lshl_b32 s{s_t+1}, s{s_l}, 2', f's_or_b32 s{s_t}, s{s_t}, s{s_t+1}', f's_cmp_eq_u32 s{s_t}, {i}'], cs_reads)
            if i == 3: self.cond(l0, cs_publish)
            if i == 8: self.cond(l1, lambda: (cs_reads(aw2), cs_publish()))
            if i in (1, 5, 7, 13): a('s_waitcnt vmcnt(0)')
            if i == 5: self.cond(ln0, lambda: self.flag_wait(s_r, vrf, vfl, 8, pre=True, nap=self.nap))
            if i == 9: self.cond(l0h0, init_wait)
            if i <= 12: hi()
            if i == 0: self.cond(l0, lambda: (init_stores(), phi_load()))
            if i == 2: self.cond(l0h0, arrive)
            if i == 8: self.cond(l0h0, init_look)
            if i == 4: self.cond(ln0, lambda: a(self.flag_load(s_r, vrf, vfl)))
            if i + 3 + self.dist <= 15: touchW(i + 3 + self.dist)
            if 5 <= i <= 8: touchO(i - 5)
            if 1 <= i <= 6: self.cond(l1, lambda: chunk(i - 1))
            if i == 6: self.cond([f's_cmp_eq_u32 s{s_l}, 2'], phi_load)
            if i in (10, 11): a.extend(gather(SA, v_st, s_a, range(4*(i-10), 4*(i-10)+4)))
            if i in (11, 12): self.cond(l01, lambda: a.extend(gather(SC, v_cs, s_b, range(4*(i-11), 4*(i-11)+4))))
            if i <= 12: lo()
            if 1 <= i <= 12: self.trickle(i - 1)
            if i == 13: self.ll_wait(gather(SA, v_st, s_a, range(8)), list(range(SA, SA+32)), t0, t1, 6, pre=True); total(SA)
            if i == 14: stats_finish()
            if i == 14: self.cond(l01, lambda: self.ll_wait(gather(SC, v_cs, s_b, range(8)), list(range(SC, SC+32)), t0, t1, 7, pre=True))
            if i == 15: self.cond(l01, cs_finish); a('s_waitcnt lgkmcnt(0)')
        a.extend(sx(s_t, [(s_l, 8192), (s_m, 256), (s_rot2, 16)])); a(f'buffer_load_dword v{vd}, off, {srd(sWS)}, s{s_t} sc1')
        a(f's_xor_b32 s{s_t}, s{s_t}, 128'); a.extend(sx(s_r, [(s_t, 32), (s_h, 256)], WS_RF))
        a(f's_bitcmp0_b32 s{s_l}, 0')
        a(f's_cselect_b64 s[{sW}:{sW+1}], s[{pBW}:{pBW+1}], s[{pAW}:{pAW+1}]')
        a(f's_cselect_b64 s[{sWO}:{sWO+1}], s[{pBWO}:{pBWO+1}], s[{pAWO}:{pAWO+1}]')
        touch_setup()
        touchW(0); touchW(1); touchW(2)
        a(f's_bitcmp1_b32 s{s_l}, 0'); a('s_cbranch_scc1 L_hp_B')
        self.reduce_job()
        a('s_branch L_hp_join')
        a.label('L_hp_B')
        a('s_barrier')
        a.label('L_hp_join')
        a('s_barrier')
        a(f's_cmp_eq_u32 s{s_l}, 3'); a('s_cbranch_scc1 L_fin')
        self.trickle_rest(1); self.warm_w()
        a(f's_add_u32 s{s_r}, s{s_r}, {4096*32}')
        a(f's_add_u32 s{s_l}, s{s_l}, 1')
        a('s_barrier')
        for st in range(3, 3 + self.dist): touchW(st)
        a('s_branch L_hp_layer')

    def compute(self):
        a = self.a
        one, l16, voffR, voffI, a_tok, a_row, a_t32, a_csr, a_csv = 0, 2, 3, 4, 5, 6, 7, 8, 9
        ax, awq = 10, 12
        l4 = 14; vst = 15
        XR = 16
        ACC = 32
        FX = [128, 144]; FW = [160, 184]
        T = 208
        t0, t1, t2, t3 = T, T+1, T+2, T+3
        s_wm, s_wh, s_rslot, s_delta, s_stg, s_ones = 65, 66, 67, 68, 69, 70
        s_o = 71
        s_ob = 75
        s_obase, s_ooff, s_a, s_b, s_c, s_d, s_e, s_fp, s_st, s_fo = range(77, 87)
        a(f'v_lshrrev_b32 v{t0}, 4, v1')
        a(f'v_and_b32 v{t1}, 15, v1')
        a(f'v_and_b32 v{t2}, 1, v{t0}'); a(f'v_lshrrev_b32 v{t3}, 1, v{t0}'); a(f'v_lshl_add_u32 v{t2}, v{t2}, 1, v{t3}')
        a(f'v_lshlrev_b32 v{voffR}, 11, v{t1}'); a(f'v_lshl_add_u32 v{voffR}, v{t2}, 4, v{voffR}')
        def x0():
            a.extend(sx(s_t, [(s_m, 1 << 18), (s_wave, 1 << 16), (s_g, 128)])); a(f's_add_u32 s{s_t+1}, s{s_t}, 32768')
            if not self.st0 & 16: self.pointers()
            for tb in range(2):
                for e in range(2): a(f'buffer_load_dwordx4 {vr(XR+8*tb+4*e,4)}, v{voffR}, {srd(sX)}, s{s_t+tb} offen offset:{64*e}')
        if self.st0 & 16: self.pointers()
        elif not self.st0 & 8: x0()
        a(f's_lshr_b32 s{s_wm}, s{s_wave}, 1'); a(f's_and_b32 s{s_wh}, s{s_wave}, 1')
        a(f'v_mov_b32 v{one}, 1')
        a(f'v_lshl_add_u32 v{voffI}, v{t2}, 4, v{t1}'); a(f'v_lshlrev_b32 v{voffI}, 4, v{voffI}'); a(f'v_mov_b32 v{vst}, v{voffI}')
        a(f'v_lshlrev_b32 v{l16}, 4, v1'); a(f'v_lshlrev_b32 v{l4}, 2, v1')
        a.extend(sx(s_t, [(s_wm, 256)], P_NM))
        a(f'v_lshl_add_u32 v{a_tok}, v{t1}, 2, s{s_t}')
        a(f'v_lshl_add_u32 v{a_row}, v{t0}, 4, s{s_t}')
        a(f'v_and_b32 v{t3}, 31, v1'); a(f'v_lshl_add_u32 v{a_t32}, v{t3}, 2, s{s_t}')
        a.extend(sx(s_t, [(s_wh, 128)], P_CS))
        a(f'v_lshl_add_u32 v{a_csr}, v{t0}, 4, s{s_t}')
        a(f'v_lshl_add_u32 v{a_csv}, v{t1}, 2, s{s_t}')
        a(f's_mov_b32 s{s_stg}, {STG}'); a(f's_mov_b32 s{s_ones}, 0x3f803f80')
        a(f'v_lshrrev_b32 v{t2}, 1, v{t1}'); a(f'v_xor_b32 v{t2}, v{t2}, v{t0}')
        a.extend(sx(s_t, [(s_wm, 8192)], XOFF)); a(f'v_lshl_add_u32 v{t1}, v{t1}, 7, s{s_t}')
        for s in range(2):
            a(f'v_xor_b32 v{t3}, {4*s}, v{t2}'); a(f'v_lshl_add_u32 v{ax+s}, v{t3}, 4, v{t1}')
        a.extend(sx(s_st, [(s_m, 16384), (s_g, 1024), (s_wave, 256)], WS_ST))

        q = 216
        def stats():
            S = []
            for k in range(8):
                for tb in range(2):
                    r = XR + 8*tb + k
                    S += [f'v_dot2_f32_bf16 v{q+2*tb}, s{s_ones}, v{r}, ' + (f'v{q+2*tb}' if k else '0'),
                          f'v_dot2_f32_bf16 v{q+2*tb+1}, v{r}, v{r}, ' + (f'v{q+2*tb+1}' if k else '0')]
            return S + [sw32(q, q+2), sw32(q+1, q+3), pk('add', q, q, q+2), sw16(q, q+1), f'v_add_f32 v{q}, v{q}, v{q+1}']
        st_store = f'buffer_store_dword v{q}, v{l4}, {srd(sWS)}, s{s_st} offen sc1'
        def acc(b, n): return ACC + 4*(6*b + n)
        A2 = 208
        def reads(s, st, slot=0):
            x, w, o = (ax, awq, STG*slot) if slot < 2 else (A2, A2+2, 0)
            X = [f'ds_read_b128 {vr(FX[st]+4*b,4)}, v{x+s} offset:{o+2048*b}' for b in range(4)]
            W = [[f'ds_read_b64_tr_b16 {vr(FW[st]+4*n+2*t,2)}, v{w+(n&1)} offset:{o+(n>>1)*8192+(32*s+4*t)*128}' for t in range(2)] for n in range(6)]
            L = [X[0]] + W[0] + X[1:]
            for n in range(1, 6): L += W[n]
            return L
        def mfma(st, b, n, zero=False):
            C = None if zero else acc(b, n)
            return mf16(acc(b, n), FW[st]+4*n, FX[st]+4*b, C) if n < 4 else mf16(acc(b, n), FX[st]+4*b, FW[st]+4*n, C)
        def mfmas(st, zero=False):
            return [mfma(st, b, n, zero) for n in range(6) for b in (range(4) if not (self.snake and n % 2) else range(3, -1, -1))]
        env = dict(locals())
        a.extend(self.w_frag_addr(awq, s_wh, 0, t0, t1, t2))
        self.epiA(env, 'v')
        if self.st0 & 8: x0()
        a(f'v_mov_b32 v{q}, -1'); a(st_store)
        a(f's_sub_u32 s{s_st}, s{s_st}, 262144')
        a.label('L_first')
        a('s_barrier')
        self.stamp(12)
        if self.st0 & 16: self.cond([f's_cmp_eq_u32 s{s_l}, 0'], x0)
        self.aw(reads(0, 0) + interleave(mfmas(0, True), reads(1, 1), per=[0]*4 + [1]*20))
        a('s_waitcnt vmcnt(0) lgkmcnt(0)')
        self.stamp(11)
        self.cond([f's_cmp_lg_u32 s{s_l}, 0'], lambda: self.flag_set(s_fo, one))
        S = [f'v_add_u32 v{A2+k}, {2*STG}, v{ax+k}' for k in range(4)] + [f's_mov_b32 s{s_i}, 0']
        assert awq == ax + 2
        S += sx(s_t, [(s_l, 1 << 22), (s_m, 1 << 18)], WS_OI)
        S += sx(s_obase, [(s_wave, 1 << 16), (s_t, 1)]) + [f's_lshl_b32 s{s_ooff}, s{s_rot2}, 11']
        S += [f's_add_u32 s{s_ob}, s{s_obase}, s{s_ooff}', f's_add_u32 s{s_ob+1}, s{s_ob}, 32768']
        S += sx(s_a, [(s_wm, 1 << 17), (s_g, 2048), (s_wh, 1024), (s_t, 1)])
        S += sx(s_o, [(s_g, 16384), (s_wave, 4096), (s_t, 1)], WS_XI - WS_OI) + [f's_add_u32 s{s_o+k}, s{s_o}, {1024*k}' for k in range(1, 4)]
        S += sx(s_fp, [(s_l, 8192), (s_m, 256)]) + sx(s_fo, [(s_g, 16), (s_wave, 4), (s_fp, 1)]) + sx(s_fo+1, [(s_fo, 32)], WS_RF)
        S += sx(s_t, [(s_wm, 8), (s_rot2, 16)]) + [f's_add_u32 s{s_fp}, s{s_fp}, s{s_t}']
        a.extend(interleave(mfmas(1), S, per=[2]*24))
        a(f's_bitcmp1_b32 s{s_l}, 0'); a('s_cbranch_scc1 L_preB')
        self.epiA(env, 's')
        a('s_branch L_pre_done')
        a.label('L_preB')
        self.epiB(env, 's')
        def last():
            a(f's_mov_b64 s[{sOUT}:{sOUT+1}], s[{pOUT}:{pOUT+1}]'); a(f's_mov_b32 s{sOUT+2}, {2048*1024*2}')
            a.extend(sx(s_o, [(s_m, 1 << 18), (s_wave, 1 << 16), (s_g, 128)]))
            a(f's_add_u32 s{s_o+1}, s{s_o}, 64'); a(f's_add_u32 s{s_o+2}, s{s_o}, 32768'); a(f's_add_u32 s{s_o+3}, s{s_o}, {32768+64}')
            a(f'v_mov_b32 v{vst}, v{voffR}')
        self.cond([f's_cmp_eq_u32 s{s_l}, 3'], last)
        a.label('L_pre_done')
        a(f's_add_u32 s{s_st}, s{s_st}, 262144')
        a.extend(stats()); a(st_store)
        a.label('L_go')
        a('s_barrier')
        self.stamp(1)
        a.extend(reads(0, 0, 1))
        a('s_branch L_q1')
        nb = self.bpos + 1
        def half0(slot):
            if self.prof == 5:
                a('s_memtime s[92:93]'); a(f's_lshl_b32 m0, s{s_l}, 4'); a(f's_add_u32 m0, m0, s{s_i}'); a(f's_add_u32 m0, m0, {(slot+2)%3+1}')
            a('s_waitcnt lgkmcnt(0)')
            F = reads(1, 1, slot)
            if self.prof == 5: F = ['v_writelane_b32 v255, s92, m0'] + F
            if slot == 0: F += [f's_add_u32 s{s_i}, s{s_i}, 3', f's_cmp_lt_u32 s{s_i}, 15']
            a.extend(interleave(mfmas(0), F, per=[0]*self.r0 + [1]*24))
            a('s_waitcnt lgkmcnt(0)')
            a.extend(mfmas(1)[:nb]); a('s_barrier')
        def half1(slot):
            R = reads(0, 0, (slot+1) % 3)
            a(R[0]); a.extend(interleave(mfmas(1)[nb:], R[1:], per=[1]*24))
        a('.p2align 6')
        a.label('L_q')
        half1(0)
        a.label('L_q1')
        half0(1); half1(1); half0(2); half1(2); half0(0)
        a('s_cbranch_scc1 L_q')
        a.label('L_tail')
        self.stamp(2)
        a(f's_bitcmp1_b32 s{s_l}, 0'); a('s_cbranch_scc1 L_epiB')
        self.epiA(env, False)
        a('s_branch L_ophase')
        a.label('L_epiB')
        self.epiB(env, False)
        a.label('L_ophase')
        a('s_barrier')
        PD = self.pd; NR = PD + 1
        OA, OW, awo, vf, RING = 128, [160, 176], 192, 196, 32
        assert RING + 8*NR <= 128
        u0, u1, u2, vrf, vot, vxw = 197, 198, 199, 204, 205, 206
        a(f'v_mov_b32 v{u0}, {P_MODE}'); a(f'ds_read_b32 v{u0}, v{u0}')
        def oacc(tb, nb): return OA + 16*tb + 4*nb
        for k in range(4):
            a(sw16(XR+4*k, XR+4*k+2)); a(sw16(XR+4*k+1, XR+4*k+3))
        a('s_waitcnt lgkmcnt(0)'); a(f'v_readfirstlane_b32 s{s_fast}, v{u0}')
        a(f's_xor_b32 s{s_t}, s{s_fp}, 128'); a.extend(sx(s_e, [(s_t, 32)], WS_RF))
        a.extend(self.flag_addr(vrf, u1, None, remote=True))
        a.extend(self.flag_addr(vf, u1, s_fp))
        for r in range(16):
            a(f'v_lshlrev_b32 v{OA+2*r}, 16, v{XR+r}'); a(f'v_and_b32 v{OA+2*r+1}, 0xffff0000, v{XR+r}')
        a.extend(self.w_frag_addr(awo, None, L_WO, u0, u1, u2, nb_list=(0, 1, 2, 3)))
        a(f's_cmp_eq_u32 s{s_wh}, 0'); a('s_cselect_b64 vcc, -1, 0')
        for k in range(2): a(f'v_cndmask_b32 v{awq+k}, v{awo+2+k}, v{awo+k}, vcc')
        for k in range(2): a(f'v_subrev_u32 v{awq+k}, {L_WO}, v{awq+k}')
        a.extend(sx(s_t, [(s_wm, 8192)], XOFF)); a(f'v_add_u32 v{ax}, s{s_t}, v{l16}'); a(f'v_add_u32 v{ax+1}, 1024, v{ax}')
        a.extend(sx(s_t, [(s_wave, 4096)], XOFF)); a(f'v_add_u32 v{vxw}, s{s_t}, v{voffI}')
        def oreads(h):
            return [f'ds_read_b64_tr_b16 {vr(OW[h&1]+4*nb+2*t,2)}, v{awo+nb} offset:{(h&15)*4096+512*t}' for nb in range(4) for t in range(2)]
        a('s_waitcnt vmcnt(0)')
        self.stamp(8)
        self.flag_set(s_fo, one, 1)
        a(self.flag_load(s_fp, vf, u0))
        self.flag_set(s_fo, one, 2)
        a.extend(oreads(0))
        def next_consts():
            a(f's_bitcmp1_b32 s{s_l}, 0'); a('s_cbranch_scc1 L_nextA')
            self.epiB(env, 'v')
            a('s_branch L_next_done')
            a.label('L_nextA')
            self.cond([f's_cmp_lg_u32 s{s_l}, 3'], lambda: self.epiA(env, 'v'))
            a.label('L_next_done')
        if not self.vpos: next_consts()
        a('s_waitcnt vmcnt(1) lgkmcnt(0)')
        self.flag_wait(s_fp, vf, u0, 4, pre=True)
        self.stamp(9)
        def oload(h, tb):
            L = [f'buffer_load_dwordx4 {vr(RING+8*(h%NR)+4*tb,4)}, v{l16}, {srd(sWS)}, s{s_ob+tb} offen offset:{1024*(h&3)} sc1']
            if h & 3 == 3 and h < 31:
                if tb == 0: L += [f's_add_u32 s{s_ooff}, s{s_ooff}, 4096', f's_and_b32 s{s_ooff}, s{s_ooff}, 0x7fff', f's_add_u32 s{s_ob}, s{s_obase}, s{s_ooff}']
                else: L += [f's_add_u32 s{s_ob+1}, s{s_ob}, 32768']
            return L
        S = []
        for h in range(PD): S += oload(h, 0) + oload(h, 1)
        S.append('s_nop 2')
        for h in range(32):
            R = oreads(h+1) if h < 31 else []
            if h == 15: S += [f'v_add_u32 v{awo+nb}, 0x10000, v{awo+nb}' for nb in range(4)]
            k = 0
            for nb in range(4):
                for tb in range(2):
                    S.append(mf16(oacc(tb, nb), OW[h&1]+4*nb, RING+8*(h%NR)+4*tb, oacc(tb, nb)))
                    if R: S.append(R[k])
                    for j in range(2):
                        if k == self.opos[j] and h + PD < 32: S += oload(h+PD, j)
                    k += 1
            if h == self.hq: S.append(self.flag_load(s_e, vrf, u1))
            if h == (self.hc or 15 - PD): S += [f'v_cmp_eq_u32 vcc, 0, v{u1}', 's_nop 1']
            if h == self.bm: S.append('s_barrier')
        S = autowait(S); cut0 = S.index('s_nop 2'); cut = S.index('s_nop 1') + 1
        a.extend(S[:cut0])
        if self.vpos: next_consts()
        a.extend(S[cut0+1:cut])
        self.cond(['s_cmp_lg_u64 vcc, 0'], lambda: self.flag_wait(s_e, vrf, u1, 9, nap=self.nap))
        a.extend(S[cut:])
        self.stamp(10)
        S = []
        for k4 in (0, 2, 1, 3):
            for k in range(4): S.append(cvt(XR+4*k4+k, OA+8*k4+2*k, OA+8*k4+2*k+1))
            S += [sw16(XR+4*k4, XR+4*k4+2), sw16(XR+4*k4+1, XR+4*k4+3),
                  f'buffer_store_dwordx4 {vr(XR+4*k4,4)}, v{vst}, {srd(sOUT)}, s{s_o+k4} offen sc1',
                  f'ds_write_b128 v{vxw}, {vr(XR+4*k4,4)} offset:{1024*k4}']
        if self.fst != 'sc1':
            a(f's_cmp_lg_u32 s{s_l}, 3'); a('s_cbranch_scc1 L_notlast')
            self.sw([t.replace('sc1', self.fst) for t in S if not t.startswith('ds_')], crit=lambda t: t.startswith('buffer'))
            a('s_branch L_fin')
            a.label('L_notlast')
        self.sw(S, crit=lambda t: t.startswith('buffer'))
        a(f's_cmp_eq_u32 s{s_l}, 3'); a('s_cbranch_scc1 L_fin')
        a(f's_add_u32 s{s_fo}, s{s_fo}, 4096'); a(f's_add_u32 s{s_fo+1}, s{s_fo+1}, {4096*32}')
        a(f's_add_u32 s{s_l}, s{s_l}, 1')
        a('s_waitcnt lgkmcnt(0)')
        a('s_branch L_first')

    def epiA(self, E, pre):
        a = self.a
        acc = E['acc']; a_tok, a_row, a_t32, a_csr, a_csv, l16, l4 = (E[k] for k in ('a_tok', 'a_row', 'a_t32', 'a_csr', 'a_csv', 'l16', 'l4'))
        s_wm, s_wh, s_a, s_b, s_c, s_d, s_e = (E[k] for k in ('s_wm', 's_wh', 's_a', 's_b', 's_c', 's_d', 's_e'))
        PK = [128, 144]; EP, KV0, ZA, NR = 160, 176, 192, 208
        wphi, nml, c32, csv = 224, 232, 236, 238
        SEL = [240, 244]
        a_phi, a_w, a_r0, a_r1, a_z, x_w, x_r = range(248, 255)
        csk = EP; csq = NR
        nmr = [KV0, EP+8, NR, NR+8]
        if pre == 'v':
            u0, u1, u2, u3, u4 = range(208, 213)
            S = [f'v_lshrrev_b32 v{u0}, 5, v1', f'v_bfe_u32 v{u1}, v1, 2, 2', f'v_lshl_add_u32 v{u1}, v{u0}, 3, v{u1}',
                 f'v_bfe_u32 v{u2}, v1, 4, 1', f'v_and_b32 v{u3}, 3, v1', f'v_lshlrev_b32 v{u4}, 3, v{u3}', f'v_lshl_add_u32 v{u2}, v{u2}, 5, v{u4}']
            S += sx(s_t, [(s_wh, 2048)], P_PHI) + [f'v_lshl_add_u32 v{u4}, v{u1}, 6, v{u2}', f'v_add_u32 v{a_phi}, s{s_t}, v{u4}']
            S += [f's_mul_i32 s{s_t+2}, s{s_wave}, {SCR}',
                  f'v_mul_u32_u24 v{u1}, 136, v{u1}', f'v_add3_u32 v{u1}, v{u1}, v{u2}, s{s_t+2}',
                  f's_lshl_b32 s{s_t+1}, s{s_wm}, 6', f'v_add_u32 v{a_r0}, s{s_t+1}, v{u1}',
                  f's_xor_b32 s{s_t+3}, s{s_t+1}, 64', f'v_add_u32 v{a_r1}, s{s_t+3}, v{u1}',
                  f'v_and_b32 v{u4}, 31, v1', f'v_mul_u32_u24 v{u4}, 136, v{u4}', f'v_lshl_add_u32 v{u4}, v{u0}, 3, v{u4}', f'v_add_u32 v{a_w}, s{s_t+2}, v{u4}',
                  f'v_add_u32 v{x_w}, s{s_t+2}, v{l16}', f's_xor_b32 s{s_t}, s{s_wave}, 2', f's_mul_i32 s{s_t}, s{s_t}, {SCR}', f'v_add_u32 v{x_r}, s{s_t}, v{l16}']
            S += [f'v_mov_b32 v{u4}, 0x3f803f80']
            for k in range(2):
                S += [f'v_cmp_eq_u32 vcc, {k}, v{u3}', f'v_cndmask_b32 v{SEL[k]}, 0, v{u4}, vcc', f'v_mov_b32 v{SEL[k]+1}, v{SEL[k]}',
                      f'v_mov_b64 {vr(SEL[k]+2,2)}, {vr(SEL[k],2)}']
            S += [f'v_and_b32 v{u0}, 18, v1', f'v_lshlrev_b32 v{u0}, 1, v{u0}', f'v_and_or_b32 v{u0}, v1, 8, v{u0}', f'v_and_b32 v{u1}, 4, v1',
                  f'v_lshl_or_b32 v{u0}, v{u1}, 2, v{u0}', f'v_and_b32 v{u1}, 33, v1', f'v_lshl_or_b32 v{a_z}, v{u1}, 25, v{u0}',
                  f'v_lshl_or_b32 v{a_z}, v{u1}, 30, v{a_z}']
            a.extend(S)
            return
        if pre == 's':
            S = sx(s_t, [(s_l, 16), (s_g, 2), (s_wh, 1)])
            S += sx(s_d, [(s_t, 65536), (s_wm, 32768), (s_m, 2048)], WS_KVP) + sx(s_e, [(s_t, 2048), (s_m, 128), (s_wm, 64)], WS_ZP)
            S += sx(s_b, [(s_t, 128)], WS_ZF) + sx(s_c, [(s_t, 4096)], WS_KVF)
            a.extend(S)
            return
        S = []
        for b in range(4): S.append(f'ds_read_b32 v{nml+b}, v{a_tok} offset:{64*b}')
        for nb in range(2): S.append(f'ds_read_b128 {vr(csk+4*nb,4)}, v{a_csr} offset:{256+64*nb}')
        for u in range(2):
            for t in range(2): S.append(f'ds_read_b64_tr_b16 {vr(wphi+4*u+2*t,2)}, v{a_phi} offset:{(16*t+4*u)*64}')
        for nb in range(2): S.append(f'ds_read_b32 v{csv+nb}, v{a_csv} offset:{512+64*nb}')
        for b in range(4):
            S.append(f'ds_read_b128 {vr(nmr[b],4)}, v{a_row} offset:{64*b}')
            S.append(f'ds_read_b128 {vr(nmr[b]+4,4)}, v{a_row} offset:{512+64*b}')
            if b == 0:
                for Tt in range(2): S.append(f'ds_read_b32 v{c32+Tt}, v{a_t32} offset:{512+128*Tt}')
        def qk_prep(n0, cs):
            L = []
            for b in range(4):
                for k in range(4): L.append(pk('fma', acc(b, n0)+2*k, cs+2*k, ('b', nml+b), acc(b, n0)+2*k))
                for k in range(4): L.append(cvt(acc(b, n0)+k, acc(b, n0)+2*k, acc(b, n0)+2*k+1))
            for Tt in range(2):
                for k in range(4): L.append(sw16(acc(2*Tt, n0)+k, acc(2*Tt+1, n0)+k))
                L += [mf32(PK[Tt], wphi, acc(2*Tt, n0)), mf32(PK[Tt], wphi+4, acc(2*Tt+1, n0), PK[Tt])]
            return L
        def vprep(b):
            r = acc(b, 4); P, C = [], []
            for nb in range(2):
                for p in range(2): P.append(pk('fma', r+4*nb+2*p, nmr[b]+2*p, ('b', csv+nb), r+4*nb+2*p))
            for nb in range(2):
                for p in range(2): P.append(pk('mul', r+4*nb+2*p, r+4*nb+2*p, nmr[b]+4+2*p))
            for k in range(4): C.append(cvt(r+k, r+2*k, r+2*k+1))
            return P, C, [sw16(r, r+2), sw16(r+1, r+3)]
        def softmax(Tt):
            x = PK[Tt]; c = c32 + Tt
            ta, tb = ((acc(2, 3), acc(3, 3)), (acc(2, 2), acc(3, 2)))[Tt]
            mx, mn, bp, bm = ta, ta+1, tb, tb+1
            L = [f'v_max3_f32 v{mx}, v{x}, v{x+1}, v{x+2}', f'v_max3_f32 v{mn}, -v{x}, -v{x+1}, -v{x+2}']
            for k in range(3, 15, 2):
                L += [f'v_max3_f32 v{mx}, v{mx}, v{x+k}, v{x+k+1}', f'v_max3_f32 v{mn}, v{mn}, -v{x+k}, -v{x+k+1}']
            L += [f'v_max_f32 v{mx}, v{mx}, v{x+15}', f'v_max_f32 v{mn}, v{mn}, -v{x+15}']
            L += [sw32(mx, mn), f'v_max_f32 v{mx}, v{mx}, v{mn}', f'v_mul_f32 v{bm}, -v{mx}, v{c}', f'v_mov_b32 v{bp}, v{bm}', sw32(bp, bm)]
            parts = [L]; L = []
            for k in range(0, 16, 2): L.append(pk('fma', EP+k, x+k, ('b', c), ('b', bp)))
            for k in range(0, 16, 2): L.append(pk('fma', x+k, x+k, ('b', c), ('b', bm), neg=[1, 0, 0]))
            parts.append(L); L = []
            for k in range(16): L.append(f'v_exp_f32 v{EP+k}, v{EP+k}')
            for k in range(16): L.append(f'v_exp_f32 v{x+k}, v{x+k}')
            parts.append(L); L = []
            sp, sm = ta, ta+2
            r1, r2 = tb+2, tb+3
            L += [pk('add', sp, EP, EP+2), pk('add', sm, x, x+2)]
            for k in range(4, 16, 2): L += [pk('add', sp, sp, EP+k), pk('add', sm, sm, x+k)]
            L += [f'v_add_f32 v{sp}, v{sp}, v{sp+1}', f'v_add_f32 v{sm}, v{sm}, v{sm+1}', sw32(sp, sm), f'v_add_f32 v{sp}, v{sp}, v{sm}',
                  f'v_rcp_f32 v{r2}, v{sp}', f'v_mov_b32 v{r1}, v{r2}', sw32(r1, r2)]
            for k in range(0, 16, 2): L.append(pk('mul', x+k, x+k, ('b', r2)))
            for k in range(8): L.append(cvt(x+k, x+2*k, x+2*k+1))
            for k in range(0, 16, 2): L.append(pk('mul', EP+k, EP+k, ('b', r1)))
            for k in range(8): L.append(cvt(x+8+k, EP+2*k, EP+2*k+1))
            return parts + [L]
        FR = [[acc(0, 2), acc(0, 3)], [acc(1, 2), acc(1, 3)]]
        def to_lds(x):
            return [f'ds_write_b64 v{a_w}, {vr(x+8*(1-sg)+2*j,2)} offset:{64*sg+16*j}' for sg in (1, 0) for j in range(4)]
        def frags():
            return [f'ds_read_b64_tr_b16 {vr(FR[k][u]+2*tt,2)}, v{(a_r0, a_r1)[k]} offset:{(16*u+4*tt)*136}' for k in (1, 0) for u in range(2) for tt in range(2)]
        KV1 = PK[0]
        def kvm(Tt):
            L = []
            for k, K in ((1, KV1), (0, KV0)):
                for u in range(2): L.append(mf32(K, FR[k][u], acc(2*Tt+u, 4), None if (Tt == 0 and u == 0) else K))
                for u in range(2): L.append(mf32(ZA, SEL[k], FR[k][u], None if (Tt == 0 and u == 0 and k == 1) else ZA))
            return L
        sc = sched if self.sch else (lambda L: L)
        K = qk_prep(2, csk); isM = lambda t: t.startswith('v_mfma')
        VP_ = [vprep(b) for b in range(4)]
        sm0, sm1 = softmax(0), softmax(1)
        mfma = E['mfma']
        TM = [mfma(1, b, n) for b in range(4) for n in (2, 3)] + [mfma(1, b, n) for b in range(4) for n in (4, 5)] + [mfma(1, b, 1) for b in range(4)] + [mfma(1, b, 0) for b in range(self.bpos+1, 4)]
        K01 = []
        for b in range(2):
            K01 += [f'v_fmac_f32 v{acc(b,2)+k}, v{csk+k}, v{nml+b}' for k in range(8)] + K[8*b+4:8*b+8]
        S = interleave(TM, S + K01, per=[2]*24)
        S += sc([t for t in K[16:] if not isM(t)] + [f'v_mul_f32 v{c32+Tt}, {f2u(LOG2E)}, v{c32+Tt}' for Tt in range(2)] + VP_[0][0] + VP_[1][0])
        def cutA(n, k):
            nonlocal S
            if self.fine == n: self.aw(S + ['s_waitcnt lgkmcnt(0)']); S = []; self.stamp(k)
        cutA(1, 12)
        S += sc([t for t in K if isM(t)] + VP_[0][1] + VP_[1][1] + VP_[0][2] + VP_[1][2] + sm0[0])
        cutA(1, 13)
        S += sc(sm0[1] + sm0[2] + sm1[0] + sm0[3] + to_lds(PK[0]) + frags())
        cutA(1, 14)
        S += sm1[1] + interleave(kvm(0), sm1[2][2:], per=[4]*7 + [2]) + sm1[2][:2]
        cutA(2, 12)
        S += sc(sm1[3] + to_lds(PK[1]) + frags() + sum((VP_[b][k] for k in range(3) for b in (2, 3)), []), lambda t: t.startswith('ds_read'))
        cutA(2, 13)
        M = kvm(1)
        X = [f'ds_write_b128 v{x_w}, {vr(KV1+4*k,4)} offset:{1024*k}' for k in range(4)]
        S += M[0:5] + X[0:2] + M[5:6] + X[2:4] + [f'ds_write_b32 v{x_w}, v{ZA+1} offset:4096'] + M[6:8]
        cutA(2, 14)
        self.aw(S); S = []
        S += ['s_waitcnt lgkmcnt(0)', 's_barrier']
        for k in range(4): S.append(f'ds_read_b128 {vr(EP+4*k,4)}, v{x_r} offset:{1024*k}')
        S.append(f'ds_read_b32 v{csv}, v{x_r} offset:4096')
        for u in range(2):
            for k in range(4): S.append(pk('add', KV0+8*u+2*k, KV0+8*u+2*k, EP+8*u+2*k))
            for k in range(4): S.append(cvt(KV0+8*u+k, KV0+8*u+2*k, KV0+8*u+2*k+1))
            S.append(f'buffer_store_dwordx4 {vr(KV0+8*u,4)}, v{l16}, {srd(sWS)}, s{s_d} offen offset:{1024*u} sc1')
        S += [f'v_add_f32 v{ZA}, v{ZA}, v{csv}', f'v_mov_b32_dpp v{ZA+3}, v{ZA} quad_perm:[1,0,3,2] row_mask:0xf bank_mask:0xf', cvt(ZA, ZA, ZA+3),
              f'buffer_store_dword v{ZA}, v{a_z}, {srd(sWS)}, s{s_e} offen sc1']
        self.sw(S, name='A k-part'); S = []
        if not self.yw: a('s_barrier')
        self.stamp(3)
        u3, u4 = ZA + 4, ZA + 5
        for nb in range(2): S.append(f'ds_read_b128 {vr(csq+4*nb,4)}, v{a_csr} offset:{64*nb}')
        S += qk_prep(0, csq) + sum(softmax(0) + softmax(1), [])
        S += [f'v_lshrrev_b32 v{u3}, 5, v1', f'v_and_b32 v{u4}, 1, v1', f'v_lshlrev_b32 v{u4}, 6, v{u4}', f'v_lshl_add_u32 v{a_z}, v{u3}, 4, v{u4}',
              f'v_bfe_u32 v{u4}, v1, 4, 1', f'v_lshlrev_b32 v{u4}, 15, v{u4}', f'v_lshl_add_u32 v{u4}, v{u3}, 8, v{u4}',
              f'v_and_b32 v{u3}, 15, v1', f'v_lshl_add_u32 v{a_w}, v{u3}, 4, v{u4}', f's_add_u32 s{s_d}, s{s_a}, 65536']
        if self.yw:
            S = sched(S); S.insert(self.yw, 's_barrier'); self.aw(S); S = []
        else: self.sw(S, name='A q-part'); S = []
        self.stamp(4)
        a('s_barrier')
        self.stamp(7)
        KF = KV0; ZF = EP
        if self.b2: a(f's_sleep {self.b2}')
        self.ll_wait(([f's_sleep {self.n2}'] if self.n2 else []) + [f'buffer_load_dwordx4 {vr(ZF+4*u,4)}, v{a_z}, {srd(sWS)}, s{s_b} offen offset:{32*u} sc1' for u in range(2)] +
                     [f'buffer_load_dwordx4 {vr(KF+4*k,4)}, v{l16}, {srd(sWS)}, s{s_c} offen offset:{1024*k} sc1' for k in range(4)],
                     list(range(ZF, ZF+8)) + list(range(KF, KF+16)), u3, u4, 5, pipe=(self.pipe >> 1) & 1)
        self.stamp(5)
        ACC = E['ACC']
        for Tt in range(2):
            N, DP, DM = ACC + 48*Tt, ACC + 48*Tt + 16, ACC + 48*Tt + 32
            x = PK[Tt]
            S += [mf32(DP, ZF, x+8), mf32(DP, ZF+4, x+12, DP), mf32(DM, ZF, x), mf32(DM, ZF+4, x+4, DM),
                  mf32(N, KF, x+8), mf32(N, KF+4, x+12, N), mf32(N, KF+8, x, N), mf32(N, KF+12, x+4, N)]
            S += [f'v_add_f32 v{DP}, v{DP}, v{DM+1}', f'v_add_f32 v{DP}, {f2u(1e-6)}, v{DP}', f'v_rcp_f32 v{DP}, v{DP}']
            for p in range(2):
                for jj in range(2):
                    j = p + 2*jj
                    for k in range(2):
                        r = N + 4*j + 2*k
                        if Tt == 0: S += [f'v_mul_f32 v{r}, v{DP}, v{r}', f'v_mul_f32 v{r+1}, v{DP}, v{r+1}']
                        else: S.append(pk('mul', r, r, ('b', DP)))
                        S.append(cvt(DM+4+4*p+2*jj+k, r, r+1))
                S.append(f'buffer_store_dwordx4 {vr(DM+4+4*p,4)}, v{a_w}, {srd(sWS)}, s{(s_a, s_d)[Tt]} offen offset:{512*p} sc1')
        self.sw(S, name='A finish')
        self.stamp(6)

    def epiB(self, E, pre):
        a = self.a
        acc = E['acc']; a_tok, a_row, a_csr, a_csv, l16 = (E[k] for k in ('a_tok', 'a_row', 'a_csr', 'a_csv', 'l16'))
        s_wm, s_wh, s_a, s_b, s_c, s_d, s_e = (E[k] for k in ('s_wm', 's_wh', 's_a', 's_b', 's_c', 's_d', 's_e'))
        BI, BI0, MK, a_h = 236, 244, 248, 252
        if pre == 'v':
            t1, t2, t3 = 208, 209, 210
            S = [f'v_and_b32 v{t1}, 15, v1', f'v_lshrrev_b32 v{t2}, 4, v1', f'v_lshlrev_b32 v{t2}, 2, v{t2}', f'v_sub_u32 v{t1}, v{t1}, v{t2}',
                 f'v_mov_b32 v{t3}, {f2u(-1e30)}']
            for blk in range(2):
                for i in range(4):
                    S += [f'v_add_u32 v{t2}, {(16 if blk == 0 else 0) - i}, v{t1}', f'v_and_b32 v{t2}, -15, v{t2}', f'v_cmp_eq_u32 vcc, 0, v{t2}',
                          f'v_cndmask_b32 v{BI+4*blk+i}, v{t3}, 0, vcc']
                    if i % 2 == 0: S += [f'v_cndmask_b32 v{MK+2*blk+i//2}, 0, -1, vcc', f'v_lshrrev_b32 v{MK+2*blk+i//2}, 16, v{MK+2*blk+i//2}']
                    else: S += [f'v_cndmask_b32 v{t2}, 0, -1, vcc', f'v_lshl_or_b32 v{MK+2*blk+i//2}, v{t2}, 16, v{MK+2*blk+i//2}']
            S += [f's_or_b32 s{s_t}, s{s_m}, s{s_wm}', 's_cselect_b64 vcc, -1, 0']
            for i in range(4): S.append(f'v_cndmask_b32 v{BI0+i}, v{t3}, v{BI+i}, vcc')
            S += sx(s_t, [(s_wh, 2048)], P_PHI) + [f'v_add_u32 v{a_h}, s{s_t}, v{l16}']
            S += [f's_add_u32 s{s_t+1}, s{s_t}, 1024', f's_cmp_eq_u32 s{s_wm}, 0', f's_cselect_b32 s{s_t}, s{s_t}, {L_P + 7168}', f's_cselect_b32 s{s_t+1}, s{s_t+1}, {L_P + 7168}',
                  f'v_add_u32 v{a_h+1}, s{s_t}, v{l16}', f'v_add_u32 v{a_h+2}, s{s_t+1}, v{l16}']
            a.extend(S)
            return
        if pre == 's':
            S = sx(s_b, [(s_l, 1 << 19), (s_m, 1 << 16), (s_g, 4096), (s_wh, 2048)], WS_HALO - (1 << 19))
            S += [f's_add_u32 s{s_c}, s{s_b}, 65536', f's_cmp_eq_u32 s{s_m}, 15', f's_cselect_b32 s{s_c}, {BIG}, s{s_c}',
                  f's_cmp_eq_u32 s{s_wm}, 0', f's_cselect_b32 s{s_c}, {BIG}, s{s_c}', f's_cselect_b32 s{s_b}, s{s_b}, {BIG}',
                  f's_cmp_eq_u32 s{s_m}, 0', f's_cselect_b32 s{s_b}, {BIG}, s{s_b}', f's_add_u32 s{s_d}, s{s_a}, 65536']
            a.extend(S)
            return
        nr = [160, 168, 176, 208]
        nml, rsl, csk, csv, csq, HB = 216, 220, 224, 232, 128, 136
        VP = [184, 196]
        U, M, t1, t2 = 144, 152, 156, 157
        S = []
        for b in (3, 0, 1, 2):
            S += [f'ds_read_b32 v{nml+b}, v{a_tok} offset:{64*b}', f'ds_read_b32 v{rsl+b}, v{a_tok} offset:{512+64*b}']
            if b == 3:
                for nb in range(2): S.append(f'ds_read_b128 {vr(csk+4*nb,4)}, v{a_csr} offset:{768+256+64*nb}')
                for nb in range(2): S.append(f'ds_read_b32 v{csv+nb}, v{a_csv} offset:{768+512+64*nb}')
            S += [f'ds_read_b128 {vr(nr[b],4)}, v{a_row} offset:{64*b}', f'ds_read_b128 {vr(nr[b]+4,4)}, v{a_row} offset:{512+64*b}']
        for nb in range(2): S.append(f'ds_read_b128 {vr(csq+4*nb,4)}, v{a_csr} offset:{768+64*nb}')
        def kprep(b):
            r = acc(b, 2); L = []
            for k in range(4): L.append(pk('fma', r+2*k, csk+2*k, ('b', nml+b), r+2*k))
            for k in range(4): L.append(pk('mul', r+2*k, r+2*k, ('b', rsl+b)))
            for k in range(4): L.append(cvt(r+k, r+2*k, r+2*k+1))
            return L
        def vprep(b):
            r = acc(b, 4); L = []
            for nb in range(2):
                for p in range(2): L.append(pk('fma', r+4*nb+2*p, nr[b]+2*p, ('b', csv+nb), r+4*nb+2*p))
            for nb in range(2):
                for p in range(2): L.append(pk('mul', r+4*nb+2*p, r+4*nb+2*p, nr[b]+4+2*p))
            for nb in range(2):
                for p in range(2):
                    if b == 3: L.append(cvt(acc(3, 3)+2*nb+p, r+4*nb+2*p, r+4*nb+2*p+1))
                    else: L.append(cvt(VP[nb]+2+2*b+p, r+4*nb+2*p, r+4*nb+2*p+1))
            return L
        def qprep(b):
            r = acc(b, 0); L = []
            for k in range(4): L.append(pk('fma', r+2*k, csq+2*k, ('b', nml+b), r+2*k))
            for k in range(4): L.append(cvt(r+k, r+2*k, r+2*k+1))
            return L
        mfma = E['mfma']
        TM = [mfma(1, b, n) for b in (3, 0, 1, 2) for n in (2, 3, 4, 5)] + [mfma(1, b, 1) for b in range(4)] + [mfma(1, b, 0) for b in range(self.bpos+1, 4)]
        rk, rv = acc(3, 2), acc(3, 4)
        P3 = [f'v_fmac_f32 v{rk+k}, v{csk+k}, v{nml+3}' for k in range(8)] + [f'v_mul_f32 v{rk+k}, v{rsl+3}, v{rk+k}' for k in range(8)] + kprep(3)[8:]
        P3 += [f'v_fmac_f32 v{rv+k}, v{nr[3]+k%4}, v{csv+k//4}' for k in range(8)] + [f'v_mul_f32 v{rv+k}, v{nr[3]+4+k%4}, v{rv+k}' for k in range(8)] + vprep(3)[8:]
        T0 = interleave(TM, S[:14] + P3, per=[2]*24); S = S[14:]
        for k in range(2): T0.append(f'buffer_store_dwordx4 {vr(acc(3,2)+4*k,4)}, v{l16}, {srd(sWS)}, s{s_c} offen offset:{1024*k} sc1')
        for k in range(2): S.append(f'ds_write_b128 v{a_h+1+k}, {vr(acc(3,2)+4*k,4)}')
        for nb in range(2): S.append(f'v_mov_b64 {vr(VP[nb]+8,2)}, {vr(acc(3,3)+2*nb,2)}')
        for b in range(3): S += kprep(b) + vprep(b)
        for b in range(4): S += qprep(b)
        for b in range(4): S.append(f'v_mul_f32 v{rsl+b}, {f2u(LOG2E * 32 ** -0.5)}, v{rsl+b}')
        def logits(b):
            s = nr[b]
            L = [mf16(s, HB if b == 0 else acc(b-1, 2), acc(b, 0), BI0 if b == 0 else BI), mf16(s+4, acc(b, 2), acc(b, 0), BI+4)]
            for p in range(2):
                L += [f'v_max3_f32 v{U+2*b+p}, v{s+2*p}, v{s+2*p+1}, v{s+4+2*p}', f'v_max_f32 v{U+2*b+p}, v{U+2*b+p}, v{s+5+2*p}',
                      f'v_mul_f32 v{U+2*b+p}, v{rsl+b}, v{U+2*b+p}']
            L.append(f'v_max_f32 v{M+b}, v{U+2*b}, v{U+2*b+1}')
            return L
        for b in (1, 2, 3): S += logits(b)
        if self.sch: S = sched(S)
        HL = [f'buffer_load_dwordx4 {vr(HB+4*k,4)}, v{l16}, {srd(sWS)}, s{s_b} offen offset:{1024*k} sc1' for k in range(2)]
        if self.fine == 3: self.aw(T0 + ['s_waitcnt lgkmcnt(0)']); T0 = []; self.stamp(13)
        self.aw(T0 + S[:self.hpos] + HL + S[self.hpos:]); S = []
        if self.fine == 3: self.stamp(14)
        a('s_waitcnt lgkmcnt(0)'); a('s_barrier')
        self.stamp(3)
        L1, L3 = self.lab('hg'), self.lab('hd')
        a('s_waitcnt vmcnt(0)')
        if self.fine == 3: self.stamp(7)
        a(f's_cmp_eq_u32 s{s_wm}, 0'); a(f's_cbranch_scc1 {L1}')
        for k in range(2): a(f'ds_read_b128 {vr(HB+4*k,4)}, v{a_h} offset:{1024*k}')
        a('s_waitcnt lgkmcnt(0)')
        a(f's_branch {L3}')
        a.label(L1)
        self.ll_wait(HL, list(range(HB, HB+8)), t1, t2, 0, pre=True)
        a.label(L3)
        self.stamp(4)
        S += logits(0)
        for nb in range(2): S.append(f'v_mov_b64 {vr(VP[nb],2)}, {vr(HB+4+2*nb,2)}')
        def allred(op, mid):
            L = [sw32(M, M+2), sw32(M+1, M+3), f'{op} v{M}, v{M}, v{M+2}', f'{op} v{M+1}, v{M+1}, v{M+3}', sw16(M, M+1), f'{op} v{M+1}, v{M}, v{M+1}']
            L += mid
            L += [f'v_mov_b32 v{M}, v{M+1}', sw16(M, M+1), f'v_mov_b64 {vr(M+2,2)}, {vr(M,2)}', sw32(M, M+2), sw32(M+1, M+3)]
            return L
        S += allred('v_max_f32', [])
        for b in range(4): S.append(pk('add', U+2*b, U+2*b, ('b', M+b), neg=[0, 1]))
        for k in range(8): S.append(f'v_exp_f32 v{U+k}, v{U+k}')
        for b in range(4): S.append(f'v_add_f32 v{M+b}, v{U+2*b}, v{U+2*b+1}')
        S += allred('v_add_f32', [f'v_rcp_f32 v{M+1}, v{M+1}'])
        for b in range(4): S.append(pk('mul', U+2*b, U+2*b, ('b', M+b)))
        for b in range(4):
            P = nr[b]; O = acc(b, 4)
            for p in range(2): S.append(cvt(U+2*b+p, U+2*b+p, U+2*b+p))
            for blk in range(2):
                for p in range(2): S.append(f'v_and_b32 v{P+2*blk+p}, v{U+2*b+p}, v{MK+2*blk+p}')
            for db in range(2): S.append(mf16(O+4*db, VP[db]+2*b, P))
        S += [f's_add_u32 s{s_b}, s{s_a}, 32768', f's_add_u32 s{s_c}, s{s_d}, 32768']
        for b in range(4):
            O = acc(b, 4)
            for k in range(4): S.append(cvt(O+k, O+2*k, O+2*k+1))
            S.append(f'buffer_store_dwordx4 {vr(O,4)}, v{l16}, {srd(sWS)}, s{(s_a, s_b, s_d, s_c)[b]} offen sc1')
        self.sw(S, name='B finish')
        self.stamp(6)

    def build(self):
        a = self.a
        self.prologue()
        if self.st0 & 1: self.loader(); a.label('L_compute'); self.compute()
        else: self.compute(); self.loader()
        self.helper()
        a.label('L_fin')
        self.stamp(15)
        self.stamp_out()
        if self.probe:
            def body():
                a('s_sub_u32 s93, s94, s93'); a(f's_mul_i32 s93, s93, {self.probe[2]}'); a('s_min_u32 s93, s93, 100000')
                a(f's_memrealtime s[{s_t+6}:{s_t+7}]'); a('s_waitcnt lgkmcnt(0)'); a(f's_add_u32 s93, s93, s{s_t+6}')
                a.label('L_probe')
                a(f's_memrealtime s[{s_t+6}:{s_t+7}]'); a('s_waitcnt lgkmcnt(0)'); a(f's_sub_u32 s94, s{s_t+6}, s93'); a('s_cmp_lt_i32 s94, 0'); a('s_cbranch_scc1 L_probe')
            self.cond([f's_or_b32 s{s_t}, s2, s{s_wave}', f's_cmp_eq_u32 s{s_t}, 0'], body)
        a('s_waitcnt vmcnt(0)')
        a.label('L_end')
        a('s_endpgm')
        a.pad()
        assert a.maxreg('v') <= 255 and a.maxreg('s') < 96
        return a.text()


def generate(listform=False, **kw):
    body = Gen(**kw).build()
    ref = open('interleave_layers__linear_kernel_hedgehog__sliding_local_dilated__prompt.s.ref').read() if not listform else ''
    head = ''.join(l + '\n' for l in ref.split('\n') if l.startswith(';') and '@launch' not in l)
    if listform: head += f'; @launch kernel={KNAME} grid=(256,1,1) block=(512,1,1) lds={LDS_BYTES}\n'
    else: head += f'; @launch grid=(256,1,1) block=(512,1,1) lds={LDS_BYTES}\n'
    return head + '.amdgcn_target "amdgcn-amd-amdhsa--gfx950"\n' + kernel_head(KNAME) + body + kernel_desc(KNAME, 256, 96, 256)

if __name__ == '__main__':
    kw = eval(sys.argv[2]) if len(sys.argv) > 2 else {}
    open(sys.argv[1], 'w').write(generate(**kw))
```

```python
import sys, struct
sys.path.insert(0, 'work')
from asmlib import *

KNAME = 'interleave_layers__linear_kernel_hedgehog__sliding_local_dilated__prompt_kernel'

WS_CTR, WS_STAMP, WS_ST, WS_CS = 0x0, 0x100000, 0x200000, 0x300000
WS_HALO, WS_KVF, WS_ZP, WS_ZF, WS_KVP = 0x400000, 0x600000, 0x680000, 0x6C0000, 0x800000
WS_RF = 0x700000
WS_XI, WS_OI, WS_END = 0xC00000, 0x1800000, 0x2800000
BIG = 0x40000000
STG = 40960
XOFF = 24576
L_WO = 24576
L_SPARE = 3 * STG
L_P = 155648
P_NM, P_RS, P_CS, P_MODE, P_CNT, P_PHI = L_P, L_P + 512, L_P + 1024, L_P + 2816, L_P + 2832, L_P + 3072
LDS_BYTES = 163840
SCR = 5120
LOG2E = 1.4426950408889634
def f2u(x): return '0x%08x' % struct.unpack('<I', struct.pack('<f', x))[0]

s_fast = 3
pAX, pAW, pPHI, pAWO, pBW, pBWO, pOUT, pDBG, pWS = 4, 6, 8, 10, 14, 16, 18, 20, 22
sWS, sX, sW, sWO, sOUT, sDBG = 24, 28, 32, 36, 40, 44
s_m, s_g, s_wave, s_l = 48, 49, 50, 51
s_t = 52
s_cnt, s_x = 60, 61
s_i = 62
s_stamp = 63
s_rot = 64
s_rot2 = 95
s_ft, s_fn, s_fd, s_po = 90, 91, 88, 87
def srd(b): return 's[%d:%d]' % (b, b + 3)


def sx(d, terms, const=0):
    L = []
    for n, (r, k) in enumerate([t for t in terms if t[1]]):
        t = d if n == 0 else s_x
        if k == 1 and n: t = r
        elif k == 1: L.append(f's_mov_b32 s{t}, s{r}')
        elif k > 0 and k & (k - 1) == 0: L.append(f's_lshl_b32 s{t}, s{r}, {k.bit_length()-1}')
        else: L.append(f's_mul_i32 s{t}, s{r}, {k}')
        if n: L.append(f's_add_u32 s{d}, s{d}, s{t}')
    if const: L.append(f's_add_u32 s{d}, s{d}, {const:#x}' if const > 0 else f's_sub_u32 s{d}, s{d}, {-const:#x}')
    return L

def pkop(r):
    if isinstance(r, tuple):
        return vr(r[1] & ~1, 2), r[1] & 1, r[1] & 1
    assert r % 2 == 0
    return vr(r, 2), 0, 1
def pk(op, d, *src, neg=None):
    o = [pkop(s) for s in src]
    t = 'v_pk_%s_f32 %s, %s' % (op, vr(d, 2), ', '.join(x[0] for x in o))
    lo = [x[1] for x in o]; hi = [x[2] for x in o]
    if any(lo): t += ' op_sel:[%s]' % ','.join(map(str, lo))
    if not all(hi): t += ' op_sel_hi:[%s]' % ','.join(map(str, hi))
    if neg: t += ' neg_lo:[%s] neg_hi:[%s]' % (','.join(map(str, neg)), ','.join(map(str, neg)))
    return t
def cvt(d, a, b): return f'v_cvt_pk_bf16_f32 v{d}, v{a}, v{b}'
def sw16(a, b): return f'v_permlane16_swap_b32 v{a}, v{b}'
def sw32(a, b): return f'v_permlane32_swap_b32 v{a}, v{b}'
def mf16(d, A, B, C=None): return f'v_mfma_f32_16x16x32_bf16 {vr(d,4)}, {vr(A,4)}, {vr(B,4)}, ' + (vr(C, 4) if C is not None else '0')
def mf32(d, A, B, C=None): return f'v_mfma_f32_32x32x16_bf16 {vr(d,16)}, {vr(A,4)}, {vr(B,4)}, ' + (vr(C, 16) if C is not None else '0')


class Gen:
    def __init__(self, prof=0, limit=40000, dist=2, touch=1, bm=27, local=1, pd=5, sch=1, hprio=2, opos=(1, 5), warm=1, nap=4, probe=None, snake=1, rf=2, hq=5, fine=0, llf='sc1', ot=0, hc=None, hpos=90, early=0, w2=0, w0b=0, cpf=0, tr=4, bpos=1, r0=2, rprio=3, w0a=1, pipe=0, b1=0, b2=0, n1=0, n2=0, zw=2, yw=60, thr=None, pw=0, po=0, jit=0, st0=6, vpos=1, fst='sc1', rot0=12):
        self.a = Asm()
        assert bm >= 16 and not early
        self.__dict__.update(prof=prof, limit=limit, dist=dist, touch=touch, bm=bm, local=local, pd=pd, sch=sch, hprio=hprio, opos=opos, warm=warm, nap=nap, probe=probe, snake=snake, rf=rf, hq=hq, fine=fine, llf=llf, ot=ot, hc=hc, hpos=hpos, early=early, w2=w2, w0b=w0b, cpf=cpf, tr=tr, bpos=bpos, r0=r0, rprio=rprio, w0a=w0a, pipe=pipe, b1=b1, b2=b2, n1=n1, n2=n2, zw=zw, yw=yw, thr=thr, pw=pw, po=po, jit=jit, st0=st0, vpos=vpos, fst=fst, rot0=rot0)
        self.nlab = 0

    def lab(self, p):
        self.nlab += 1
        return 'L_%s_%d' % (p, self.nlab)

    def aw(self, L):
        self.a.extend(autowait(L))
    def sw(self, L, crit=None, name=''):
        if self.sch:
            L = sched(L, crit)
            if name and __name__ == '__main__': print('sched', name, len(L), 'instructions, about', sched.last_estimate, 'cycles', file=sys.stderr)
        self.a.extend(autowait(L))

    def cond(self, test, body):
        L = self.lab('skip')
        self.a.extend(test); self.a(f's_cbranch_scc0 {L}')
        body()
        self.a.label(L)

    def spin(self, issue, check, vt, tag, pre=False, pipe=0):
        a = self.a
        L, C, D = self.lab('spin'), self.lab('chk'), self.lab('done')
        a(f's_mov_b32 s{s_cnt}, 0')
        if pipe:
            for _ in range(pipe): a.extend(issue)
            a.label(L); a.extend(issue); a(f's_waitcnt vmcnt({pipe*len(issue)})'); a.extend(check)
        elif pre:
            a(f's_branch {C}')
            a.label(L); a.extend(issue); a('s_waitcnt vmcnt(0)')
            a.label(C); a.extend(check)
        else:
            a.label(L); self.aw(list(issue) + list(check))
        a('s_cmp_eq_u64 vcc, 0'); a(f's_cbranch_scc1 {D}')
        a(f's_add_u32 s{s_cnt}, s{s_cnt}, 1')
        a(f's_cmp_lt_u32 s{s_cnt}, {self.limit}'); a(f's_cbranch_scc1 {L}')
        a(f'v_mov_b32 v{vt}, {1 << tag}')
        a(f'buffer_atomic_or v{vt}, off, {srd(sDBG)}, 0 offset:4 sc1')
        a.label(D)

    def ll_wait(self, loads, regs, t1, t2, tag, pre=False, pipe=0):
        S = []
        h = len(regs) // 2
        for t, R in ((t1, regs[:h]), (t2, regs[h:])):
            S.append(f'v_max_u32 v{t}, v{R[0]}, v{R[1]}')
            for k in range(2, len(R), 2): S.append(f'v_max3_u32 v{t}, v{t}, v{R[k]}, v{R[k+1]}')
        S += [f'v_max_u32 v{t1}, v{t1}, v{t2}', f'v_cmp_eq_u32 vcc, -1, v{t1}']
        loads = [l.replace('sc1', self.llf) for l in loads]
        self.spin(loads, S, t1, tag, pre, pipe)

    def flag_set(self, soff, vt, which=3):
        a = self.a
        a('s_mov_b64 exec, 1')
        if which & 1: a(f'buffer_store_dword v{vt}, off, {srd(sWS)}, s{soff}')
        if which & 2: a(f'buffer_store_dword v{vt}, off, {srd(sWS)}, s{soff+1} sc1')
        a('s_mov_b64 exec, -1')
    def flag_addr(self, va, vt, soff, remote=False):
        L = [f'v_bfe_u32 v{va}, v1, 1, 3', f'v_and_b32 v{vt}, 1, v1', f'v_lshl_add_u32 v{va}, v{va}, 2, v{vt}']
        if remote: return L + [f'v_lshlrev_b32 v{va}, 7, v{va}']
        return L + [f's_cmp_eq_u32 s{s_fast}, 1', f's_cselect_b32 s{s_t}, 0, 5', f's_cselect_b32 s{s_t+1}, 0, {WS_RF}',
                    f's_lshl_b32 s{soff}, s{soff}, s{s_t}', f's_add_u32 s{soff}, s{soff}, s{s_t+1}', f's_add_u32 s{s_t}, s{s_t}, 2',
                    f'v_lshlrev_b32 v{va}, s{s_t}, v{va}']
    def flag_load(self, soff, va, vt): return f'buffer_load_dword v{vt}, v{va}, {srd(sWS)}, s{soff} offen sc1'
    def flag_wait(self, soff, va, vt, tag, pre=False, nap=0, pipe=0):
        self.spin(([f's_sleep {nap}'] if nap else []) + [self.flag_load(soff, va, vt)], [f'v_cmp_eq_u32 vcc, 0, v{vt}'], vt, tag, pre, pipe)
    def get_mode(self, vt):
        self.a.extend([f'v_mov_b32 v{vt}, {P_MODE}', f'ds_read_b32 v{vt}, v{vt}', 's_waitcnt lgkmcnt(0)', f'v_readfirstlane_b32 s{s_fast}, v{vt}'])

    def jitter(self, k):
        a = self.a
        L = self.lab('jit')
        a.extend([f's_lshl_b32 s{s_t+6}, s2, 3', f's_add_u32 s{s_t+6}, s{s_t+6}, s{s_wave}', f's_lshl_b32 s{s_t+6}, s{s_t+6}, 2', f's_add_u32 s{s_t+6}, s{s_t+6}, s{s_l}',
                  f's_add_u32 s{s_t+6}, s{s_t+6}, {(k*7919 + self.jit*104729) & 0xffffff}', f's_mul_i32 s{s_t+6}, s{s_t+6}, 0x9e3779b1', f's_lshr_b32 s{s_t+7}, s{s_t+6}, 13',
                  f's_xor_b32 s{s_t+6}, s{s_t+6}, s{s_t+7}', f's_mul_i32 s{s_t+6}, s{s_t+6}, 0x85ebca6b', f's_lshr_b32 s{s_t+7}, s{s_t+6}, 29',
                  f's_lshr_b32 s{s_t+6}, s{s_t+6}, 8', f's_and_b32 s{s_t+6}, s{s_t+6}, 127', f's_lshr_b32 s{s_t+6}, s{s_t+6}, s{s_t+7}'])
        a.label(L)
        a.extend(['s_sleep 1', f's_sub_u32 s{s_t+6}, s{s_t+6}, 1', f's_cbranch_scc0 {L}'])
    def stamp(self, k):
        if self.jit: self.jitter(k)
        if self.probe:
            for n, (pl, pk_) in enumerate(self.probe[:2]):
                if pk_ == k:
                    def body():
                        self.a(f's_memrealtime s[{s_t+6}:{s_t+7}]'); self.a('s_waitcnt lgkmcnt(0)'); self.a(f's_mov_b32 s{93+n}, s{s_t+6}')
                    self.cond([f's_cmp_eq_u32 s{s_l}, {pl}'], body)
        if not self.prof or self.prof >= 5: return
        a = self.a
        a(f'{"s_memtime" if self.prof == 4 else "s_memrealtime"} s[{s_t+6}:{s_t+7}]')
        a(f's_mov_b32 s{s_stamp}, m0')
        a(f's_lshl_b32 m0, s{s_l}, 4'); a(f's_add_u32 m0, m0, {k}')
        a('s_waitcnt lgkmcnt(0)')
        a(f'v_writelane_b32 v255, s{s_t+6}, m0')
        a(f's_mov_b32 m0, s{s_stamp}')
    def stamp_out(self):
        if not self.prof: return
        a = self.a
        a.extend(sx(s_t, [(2, 2048), (s_wave, 256)], WS_STAMP))
        a('v_lshlrev_b32 v254, 2, v1')
        a(f'buffer_store_dword v255, v254, {srd(sWS)}, s{s_t} offen')

    def prologue(self):
        a = self.a
        a('s_cmp_ge_u32 s2, 256'); a('s_cbranch_scc1 L_end')
        a('s_load_dwordx16 s[4:19], s[0:1], 0')
        a('s_load_dwordx4 s[20:23], s[0:1], 64')
        a('v_lshrrev_b32 v2, 6, v0')
        a(f'v_readfirstlane_b32 s{s_wave}, v2')
        a('v_and_b32 v1, 63, v0')
        a(f's_and_b32 s{s_rot}, s2, 3'); a(f's_lshl_b32 s{s_rot}, s{s_rot}, 2')
        a(f's_bfe_u32 s{s_t}, s2, 0x20003'); a(f's_add_u32 s{s_m}, s{s_rot}, s{s_t}')
        a(f's_mov_b32 s{s_rot}, s{s_m}')
        a(f's_and_b32 s{s_rot2}, s2, 4'); a(f's_lshl_b32 s{s_rot2}, s{s_rot2}, 1')
        a(f's_lshr_b32 s{s_g}, s2, 5'); a(f's_add_u32 s{s_g}, s{s_g}, s{s_rot2}')
        a(f's_mov_b32 s{s_l}, 0'); a(f's_mov_b32 s{s_fast}, 0')
        for b, n in ((sWS, WS_END), (sX, 2048*1024*2), (sW, 1024*3072*2), (sWO, 1024*1024*2), (sOUT, WS_END), (sDBG, 256)):
            a(f's_mov_b32 s{b+2}, {n}'); a(f's_mov_b32 s{b+3}, 0x20000')
        if self.prof: a('v_mov_b32 v255, 0')
        self.stamp(0)
        a(f's_cmp_ge_u32 s{s_wave}, 6'); a('s_cbranch_scc1 L_helper')
        if self.st0 & 1: a(f's_cmp_lt_u32 s{s_wave}, 4'); a('s_cbranch_scc1 L_compute')
        else: a(f's_cmp_ge_u32 s{s_wave}, 4'); a('s_cbranch_scc1 L_loader')
    def pointers(self):
        a = self.a
        a('s_waitcnt lgkmcnt(0)')
        for b, p in ((sWS, pWS), (sX, pAX), (sW, pAW), (sWO, pAWO), (sOUT, pWS), (sDBG, pDBG)):
            a(f's_mov_b64 s[{b}:{b+1}], s[{p}:{p+1}]')

    def trickle_setup(self):
        a = self.a
        a(f's_mov_b64 s[{sOUT}:{sOUT+1}], s[{sWO}:{sWO+1}]'); a(f's_mov_b32 s{sOUT+2}, {1 << 21}')
        a.extend(sx(s_ft, [(2, 8192), (s_wave, 2048)], -8192))
        n1 = -(-16 // self.tr)
        a(f's_cmp_eq_u32 s{s_l}, 0'); a(f's_cselect_b32 s{s_fn}, 12, {n1}')
        a(f's_cmp_lt_u32 s{s_l}, {2 if self.warm else 0}'); a(f's_cselect_b32 s{s_fn}, s{s_fn}, 0')
    def trickle_lines(self, n):
        a = self.a
        a(f's_sub_u32 s{s_t}, s{sOUT+2}, {128*n}'); a(f's_min_u32 s{s_t}, s{s_t}, s{s_ft}')
        for r in range(n): a(f's_buffer_load_dwordx2 s[{s_fd}:{s_fd+1}], {srd(sOUT)}, s{s_t} offset:{128*r+60}')
        a(f's_add_u32 s{s_ft}, s{s_ft}, {128*n}')
    def trickle(self, i):
        a = self.a
        n1 = -(-16 // self.tr)
        def nxt():
            a(f's_mov_b64 s[{sOUT}:{sOUT+1}], s[{pBW}:{pBW+1}]'); a(f's_mov_b32 s{sOUT+2}, {3 << 21}')
            a.extend(sx(s_ft, [(2, 24576), (s_wave, 6144)], -24576))
        def body():
            if isinstance(i, str): self.cond([f's_cmp_eq_u32 {i}, {n1}'], nxt)
            elif i == n1: nxt()
            self.trickle_lines(self.tr)
        self.cond([f's_cmp_gt_u32 s{s_fn}, {i}'], body)
    def trickle_rest(self, part):
        rest = 48 - self.tr * (12 - -(-16 // self.tr))
        n = rest
        self.cond([f's_cmp_eq_u32 s{s_fn}, 12'], lambda: self.trickle_lines(n))

    def warm_w(self):
        a = self.a
        if not self.pw: return
        a(f's_and_b32 s{s_t}, s{s_m}, 3'); a.extend(sx(s_t+1, [(s_t, 16*6144), (s_wave, 4*6144), (s_g, 128)], -16*6144))
        a(f's_and_b32 s{s_t+2}, s{s_g}, 7')
        for st in range(1, 1 + self.pw):
            a(f's_cmp_le_u32 s{s_t+2}, {st-1}'); a(f's_addc_u32 s{s_t}, s{s_rot2}, {st-1}')
            a(f's_mul_i32 s{s_t}, s{s_t}, {64*6144}'); a(f's_add_u32 s{s_t}, s{s_t}, s{s_t+1}')
            for k in range(12): a(f's_buffer_load_dwordx2 s[{s_fd}:{s_fd+1}], {srd(sW)}, s{s_t} offset:{2048*k+60}')
    def warm_wo_setup(self):
        a = self.a
        a(f's_and_b32 s{s_t}, s{s_m}, 3'); a.extend(sx(s_po, [(s_t, 256*2048), (s_wave, 64*2048), (s_g, 128)], -256*2048))
    def warm_wo(self, n):
        a = self.a
        def body():
            for k in range(n): a(f's_buffer_load_dwordx2 s[{s_fd}:{s_fd+1}], {srd(sWO)}, s{s_po} offset:{2048*k+60}')
            a(f's_add_u32 s{s_po}, s{s_po}, {2048*n}'); a(f's_min_u32 s{s_po}, s{s_po}, {(1 << 21) - 2048*n}')
        if self.po: self.cond([f's_lshr_b32 s{s_t}, {self.po}, s{s_l}', f's_bitcmp1_b32 s{s_t}, 0'], body)

    def w_dma_offsets(self, dw, idx, t0, t1, t2):
        a = self.a
        a(f'v_lshrrev_b32 v{t0}, 3, v1'); a(f'v_mul_u32_u24 v{t0}, 6144, v{t0}')
        a(f'v_and_b32 v{t1}, 7, v1'); a(f'v_bfe_u32 v{t2}, v1, 4, 1'); a(f'v_lshlrev_b32 v{t2}, 1, v{t2}')
        a(f'v_xor_b32 v{t1}, v{t1}, v{t2}'); a(f'v_xor_b32 v{t2}, 4, v{t1}')
        a(f'v_lshl_add_u32 v{t1}, v{t1}, 4, v{t0}'); a(f'v_lshl_add_u32 v{t2}, v{t2}, 4, v{t0}')
        d = 8*6144 - 1024
        a(f's_lshl_b32 s{s_t+1}, s{s_g}, 7'); a(f'v_add_u32 v{t1}, s{s_t+1}, v{t1}'); a(f's_add_u32 s{s_t+1}, s{s_t+1}, {d}'); a(f'v_add_u32 v{t2}, s{s_t+1}, v{t2}')
        a(f's_cmp_eq_u32 s{idx}, 0')
        for t in range(3):
            c = [((3*w + t) & 1)*32*6144 + ((3*w + t) >> 1)*2048 for w in range(2)]
            a(f's_mov_b32 s{s_t}, {c[1]}'); a(f's_cmov_b32 s{s_t}, {c[0]}')
            a(f'v_add_u32 v{dw+4*t}, s{s_t}, v{t1}'); a(f'v_add_u32 v{dw+4*t+1}, s{s_t}, v{t2}')
            a(f'v_add_u32 v{dw+4*t+2}, {2*d}, v{dw+4*t}'); a(f'v_add_u32 v{dw+4*t+3}, {2*d}, v{dw+4*t+1}')

    def w_frag_addr(self, aw, head_sreg, base, t0, t1, t2, nb_list=(0, 1)):
        L = [f'v_lshrrev_b32 v{t2}, 4, v1', f'v_bfe_u32 v{t0}, v1, 2, 2', f'v_lshl_add_u32 v{t1}, v{t2}, 3, v{t0}',
             f'v_lshrrev_b32 v{t0}, 1, v{t0}', f'v_and_b32 v{t2}, 1, v{t2}', f'v_lshl_add_u32 v{t0}, v{t2}, 1, v{t0}']
        if head_sreg is not None: L += [f's_lshl_b32 s{s_t}, s{head_sreg}, 1', f'v_xor_b32 v{t0}, s{s_t}, v{t0}']
        L += [f'v_and_b32 v{t2}, 3, v1', f'v_lshlrev_b32 v{t2}, 3, v{t2}', f'v_lshl_add_u32 v{t2}, v{t1}, 7, v{t2}']
        if base: L.append(f'v_add_u32 v{t2}, {base}, v{t2}')
        for k, nb in enumerate(nb_list): L += [f'v_xor_b32 v{t1}, {nb}, v{t0}', f'v_lshl_add_u32 v{aw+k}, v{t1}, 5, v{t2}']
        return L

    def reduce_job(self, after_by=None, after_fill=None):
        a = self.a
        T = 200
        vA, vZ, vO, t1, t2 = T, T+1, T+2, T+3, T+4
        s_a, s_b, s_c, s_d, s_e = 80, 81, 82, 83, 84
        a.extend(sx(s_t, [(s_l, 32), (s_g, 4), (s_wave, 1)], -4))
        a.extend(sx(s_a, [(s_t, 32768), (s_m, 128)], WS_KVP)); a(f's_add_u32 s{s_b}, s{s_a}, 16384')
        a.extend(sx(s_d, [(s_t, 2048), (s_m, 128)], WS_KVF))
        a.extend(sx(s_c, [(s_t, 1024)], WS_ZP)); a.extend(sx(s_e, [(s_t, 64)], WS_ZF))
        a(f's_and_b32 s{s_t}, s{s_t}, 1'); a(f's_xor_b32 s{s_t+1}, s{s_m}, s{s_g}'); a(f's_or_b32 s{s_t}, s{s_t}, s{s_t+1}')
        a(f's_cselect_b32 s{s_c}, {BIG}, s{s_c}'); a(f's_cselect_b32 s{s_e}, {BIG}, s{s_e}')
        a(f'v_and_b32 v{t1}, 7, v1'); a(f'v_lshlrev_b32 v{t1}, 4, v{t1}')
        a(f'v_lshrrev_b32 v{t2}, 3, v1'); a(f'v_lshl_add_u32 v{vA}, v{t2}, 11, v{t1}')
        a(f'v_lshlrev_b32 v{vZ}, 4, v1')
        a(f'v_lshrrev_b32 v{t2}, 4, v1'); a(f'v_lshl_add_u32 v{vO}, v{t2}, 2, v{t1}')
        D = T + 8; U = 160
        def late_fill():
            for k in range(4): a(f'v_mov_b32 v{D+k}, -1')
            fill = f'buffer_store_dwordx4 {vr(D,4)}, v{vZ}, {srd(sWS)}, s{s_t} offen'
            a.extend(sx(s_t, [(s_g, 131072), (s_wave, 32768), (s_m, 2048)], WS_KVP + (1 << 21) - 4*32768)); a(fill + ' sc1'); a(fill + ' offset:1024 sc1')
            a(f's_lshr_b32 s{s_t+1}, s{s_wave}, 1'); a(f's_and_b32 s{s_t+2}, s{s_wave}, 1')
            a.extend(sx(s_t, [(s_t+2, 1 << 20), (s_m, 1 << 16), (s_g, 4096), (s_t+1, 2048)], WS_HALO - 2*2048)); a(fill + ' sc1'); a(fill + ' offset:1024 sc1')
            a.extend(sx(s_t, [(s_wave, 262144), (s_m, 16384), (s_g, 1024)], WS_ST - 3*262144))
            a.extend(sx(s_t+3, [(s_g, 16384), (s_m, 1024)], WS_CS + 262144))
            a(f's_cmp_eq_u32 s{s_wave}, 7'); a(f's_cselect_b32 s{s_t}, s{s_t+3}, s{s_t}'); a(fill + ' sc1')
            a('s_mov_b64 exec, 0xff')
            a(f's_add_u32 s{s_t}, s{s_d}, {1 << 17}'); a(fill + ' sc1')
            a(f's_add_u32 s{s_t}, s{s_e}, {1 << 12}'); a(fill + ' sc1')
            a.extend(sx(s_t, [(s_g, 4096), (s_t+1, 2048), (s_m, 128)], WS_ZP + (1 << 16) - 2*2048)); a(fill + ' sc1')
            a('s_mov_b64 exec, -1')
            a('s_waitcnt vmcnt(0)')
        self.cond([f's_cmp_eq_u32 s{s_l}, 0'], late_fill)
        a('s_barrier')
        if self.jit: self.jitter(20)
        if self.rprio: a(f's_setprio {self.rprio}')
        a('s_barrier')
        if after_by and self.w0a == 0: after_by()
        if self.b1: a(f's_sleep {self.b1}')
        self.ll_wait(([f's_sleep {self.n1}'] if self.n1 else []) + [f'buffer_load_dwordx4 {vr(D,4)}, v{vA}, {srd(sWS)}, s{s_a} offen sc1',
                      f'buffer_load_dwordx4 {vr(D+4,4)}, v{vA}, {srd(sWS)}, s{s_b} offen sc1',
                      f'buffer_load_dwordx4 {vr(D+8,4)}, v{vZ}, {srd(sWS)}, s{s_c} offen sc1',
                      f'buffer_load_dwordx4 {vr(D+12,4)}, v{vZ}, {srd(sWS)}, s{s_c} offen offset:1024 sc1'],
                     list(range(D, D+16)), t1, t2, 1, pipe=self.pipe & 1)
        self.stamp(5)
        S = []
        for z in range(2):
            d, u = D + 8*z, U + 16*z
            for k in range(8): S += [f'v_lshlrev_b32 v{u+2*k}, 16, v{d+k}', f'v_and_b32 v{u+2*k+1}, 0xffff0000, v{d+k}']
            for k in range(4): S.append(pk('add', u+2*k, u+2*k, u+8+2*k))
            for k in range(4): S.append(sw32(u+k, u+4+k))
            S += [pk('add', u, u, u+4), pk('add', u+2, u+2, u+6), sw16(u, u+2), sw16(u+1, u+3), pk('add', u, u, u+2)]
            for k in range(2): S.append(f'v_add_f32_dpp v{u+k}, v{u+k}, v{u+k} row_ror:8 row_mask:0xf bank_mask:0xf')
            S.append(cvt(u, u, u+1))
        S += ['s_mov_b32 exec_lo, 0x00ff00ff', 's_mov_b32 exec_hi, 0x00ff00ff',
              f'buffer_store_dword v{U}, v{vO}, {srd(sWS)}, s{s_d} offen sc1',
              f'buffer_store_dword v{U+16}, v{vO}, {srd(sWS)}, s{s_e} offen sc1', 's_mov_b64 exec, -1']
        self.sw(S)
        if self.rprio: a('s_setprio 0')
        if after_by and self.w0a == 1: after_by()
        if self.zw: a(f's_waitcnt vmcnt({12 if (after_by and self.w0a == 1 and self.zw == 1) else 0})')
        a('s_barrier')
        if after_by and self.w0a == 2: after_by()

    def loader(self):
        a = self.a
        a.label('L_loader')
        dx, dw, dwo, t0, t1, t2, vf = 8, 16, 28, 2, 3, 4, 5
        s_ld, s_kx, s_kw, s_slot, s_mx, s_xstep, s_wo, s_wm0, s_sx, s_sw, s_xb, s_fl, s_mw = range(65, 78)
        a(f's_sub_u32 s{s_ld}, s{s_wave}, 4')
        self.w_dma_offsets(dw, s_ld, t0, t1, t2)
        a(f's_mul_i32 s{s_mw}, s{s_ld}, 12288')
        a(f's_lshl_b32 s{s_mx}, s{s_ld}, 13'); a(f's_add_u32 s{s_mx}, s{s_mx}, {XOFF}')
        s_flip = 78
        def nxt(r):
            return [f's_cmp_eq_u32 s{r}, s{s_flip}', f's_addc_u32 s{r}, s{r}, 1', f's_and_b32 s{r}, s{r}, 15']
        def wst(slot=None):
            L = []
            for j in range(12):
                if j == 0: L.append(f's_add_u32 m0, s{s_mw}, ' + (f's{s_slot}' if slot is None else str(slot*STG)))
                elif j % 4 == 0: L.append('s_add_u32 m0, m0, 4096')
                L.append(f'buffer_load_dwordx4 v{dw+j}, {srd(sW)}, s{s_kw} offen offset:{1024*(j%4)} lds')
            a.extend(L + nxt(s_sw) + [f's_mul_i32 s{s_kw}, s{s_sw}, {64*6144}'])
        def xst(slot=None):
            L = []
            for j in range(8):
                if j == 0: L.append(f's_add_u32 m0, s{s_mx}, ' + (f's{s_slot}' if slot is None else str(slot*STG)))
                elif j == 4: L.append('s_add_u32 m0, m0, 4096')
                L.append(f'buffer_load_dwordx4 v{dx+j}, {srd(sX)}, s{s_kx} offen offset:{1024*(j%4)} sc1 lds')
            a.extend(L + nxt(s_sx) + [f's_mul_i32 s{s_kx}, s{s_sx}, s{s_xstep}', f's_add_u32 s{s_kx}, s{s_kx}, s{s_xb}'])
        def kstart(first):
            if first:
                a(f's_and_b32 s{s_sx}, s{s_m}, {self.rot0}'); a(f's_mov_b32 s{s_sw}, s{s_sx}'); a(f's_mov_b32 s{s_flip}, 16')
            else:
                a(f's_add_u32 s{s_sw}, s{s_rot2}, 15'); a(f's_and_b32 s{s_sw}, s{s_sw}, 15'); a(f's_mov_b32 s{s_sx}, s{s_sw}')
                a(f's_add_u32 s{s_flip}, s{s_g}, 15'); a(f's_and_b32 s{s_flip}, s{s_flip}, 15'); a.extend(nxt(s_sx))
            a(f's_mul_i32 s{s_kw}, s{s_sw if first else s_g}, {64*6144}'); a(f's_mul_i32 s{s_kx}, s{s_sx}, s{s_xstep}'); a(f's_add_u32 s{s_kx}, s{s_kx}, s{s_xb}')
        a(f's_lshl_b32 s{s_xb}, s{s_m}, 18'); a(f's_mov_b32 s{s_xstep}, 128'); kstart(True)
        self.pointers()
        wst(0)
        a(f'v_lshrrev_b32 v{t0}, 3, v1'); a(f'v_and_b32 v{t1}, 7, v1')
        a(f'v_lshrrev_b32 v{t2}, 4, v1'); a(f'v_xor_b32 v{t1}, v{t1}, v{t2}'); a(f'v_xor_b32 v{t2}, 4, v{t1}')
        a(f's_lshl_b32 s{s_t}, s{s_ld}, 17'); a(f'v_lshl_add_u32 v{t0}, v{t0}, 11, s{s_t}')
        a(f'v_lshl_add_u32 v{t1}, v{t1}, 4, v{t0}'); a(f'v_lshl_add_u32 v{t2}, v{t2}, 4, v{t0}')
        for j in range(8): a(f'v_add_u32 v{dx+j}, {j*16384 - 1024*(j%4)}, v{t1 if j % 2 == 0 else t2}')
        xst(0); wst(1)
        a(f'v_lshrrev_b32 v{t0}, 5, v1'); a(f'v_lshlrev_b32 v{t0}, 4, v{t0}')
        a(f'v_bfe_u32 v{t1}, v1, 3, 2'); a(f'v_add_u32 v{t0}, v{t0}, v{t1}')
        a(f's_lshl_b32 s{s_t}, s{s_g}, 7'); a(f'v_lshl_add_u32 v{t0}, v{t0}, 11, s{s_t}')
        a(f'v_and_b32 v{t1}, 7, v1'); a(f'v_bfe_u32 v{t2}, v1, 4, 1'); a(f'v_lshlrev_b32 v{t2}, 1, v{t2}')
        a(f'v_xor_b32 v{t1}, v{t1}, v{t2}'); a(f'v_xor_b32 v{t2}, 4, v{t1}')
        a(f'v_lshl_add_u32 v{t1}, v{t1}, 4, v{t0}'); a(f'v_lshl_add_u32 v{t2}, v{t2}, 4, v{t0}')
        for G in range(4): a(f'v_add_u32 v{dwo+G}, {G*4*2048 - 1024*G}, v{t1 if G % 2 == 0 else t2}')
        a('s_waitcnt vmcnt(12)'); a('s_barrier')
        xst(1); wst(2)
        a('s_waitcnt vmcnt(12)'); a('s_barrier')
        xst(2)
        a.label('L_ld_enter')
        a(f's_mov_b32 s{s_i}, 0'); a(f's_mov_b32 s{s_slot}, 0')
        self.trickle_setup(); self.warm_wo_setup()
        def loop(name, n, extra):
            a.label(name)
            xst(); wst()
            if extra:
                a(f's_add_u32 s{s_t}, s{s_i}, 1'); a(f's_and_b32 s{s_t}, s{s_t}, 7')
                a.extend(sx(s_wo, [(s_rot2, 2), (s_t, 1)], 24)); a(f's_and_b32 s{s_wo}, s{s_wo}, 31')
                a.extend(sx(s_wm0, [(s_wo, 65536), (s_ld, 2*4*2048)]))
                a.extend(sx(s_wo, [(s_t, 4096), (s_ld, 2048)], L_SPARE)); a(f's_mov_b32 m0, s{s_wo}')
                for G in range(2): a(f'buffer_load_dwordx4 v{dwo+G}, {srd(sWO)}, s{s_wm0} offen offset:{1024*G} lds')
            self.trickle(f's{s_i}'); self.warm_wo(5)
            a(f's_add_u32 s{s_slot}, s{s_slot}, {STG}'); a(f's_cmp_eq_u32 s{s_slot}, {3*STG}'); a(f's_cselect_b32 s{s_slot}, 0, s{s_slot}')
            a(f's_add_u32 s{s_i}, s{s_i}, 1'); a(f's_cmp_lt_u32 s{s_i}, {n}')
            a(f's_waitcnt vmcnt({22 if extra else 20})')
            a('s_barrier')
            a(f's_cbranch_scc1 {name}')
        if self.early: loop('L_ld_loop', 5, False); loop('L_ld_loop2', 13, True)
        else: loop('L_ld_loop', 13, False)
        def wo(p0, n, thr=None):
            a.extend(sx(s_wm0, [(s_ld, 4096)], L_WO + 4096*p0))
            a.extend(sx(s_wo, [(s_rot2, 2), (s_ld, 1)], p0)); a(f's_and_b32 s{s_wo}, s{s_wo}, 31'); a(f's_lshl_b32 s{s_wo}, s{s_wo}, 16')
            L = self.lab('wo')
            a(f's_mov_b32 s{s_i}, 0')
            a.label(L)
            if thr is not None: a(f's_waitcnt vmcnt({thr})')
            a(f's_mov_b32 m0, s{s_wm0}')
            a(f's_add_u32 s{s_wm0}, s{s_wm0}, 8192')
            for G in range(4): a(f'buffer_load_dwordx4 v{dwo+G}, {srd(sWO)}, s{s_wo} offen offset:{1024*G} lds')
            a(f's_add_u32 s{s_wo}, s{s_wo}, 131072'); a(f's_and_b32 s{s_wo}, s{s_wo}, 0x1fffff')
            a(f's_add_u32 s{s_i}, s{s_i}, 1'); a(f's_cmp_lt_u32 s{s_i}, {n//2}'); a(f's_cbranch_scc1 {L}')
        if self.early:
            wo(4, 10)
            a('s_waitcnt vmcnt(20)'); a('s_barrier')
            wo(14, 10)
            a('s_barrier')
            wo(0, 4)
        else:
            wo(24, 8)
            a('s_waitcnt vmcnt(16)'); a('s_barrier')
            wo(4, 10)
            a('s_barrier')
            wo(14, 10, self.thr); wo(0, 4, self.thr)
        if self.jit: self.jitter(23)
        a.extend(sx(s_fl, [(s_l, 8192), (s_m, 256), (s_rot2, 16), (s_ld, 8)], 4096))
        self.get_mode(t0); a.extend(self.flag_addr(vf, t0, s_fl))
        a.extend(sx(s_xb, [(s_l, 1 << 22), (s_m, 1 << 18)], WS_XI))
        a(f's_bitcmp0_b32 s{s_l}, 0')
        a(f's_cselect_b64 s[{sW}:{sW+1}], s[{pBW}:{pBW+1}], s[{pAW}:{pAW+1}]')
        a(f's_cselect_b64 s[{sWO}:{sWO+1}], s[{pBWO}:{pBWO+1}], s[{pAWO}:{pAWO+1}]')
        a(f's_mov_b64 s[{sX}:{sX+1}], s[{pWS}:{pWS+1}]'); a(f's_mov_b32 s{sX+2}, {WS_END}')
        a(f's_mov_b32 s{s_xstep}, 16384'); kstart(False)
        a(f's_lshl_b32 s{s_t}, s{s_ld}, 13'); a(f'v_lshl_add_u32 v{t0}, v1, 4, s{s_t}')
        for j in range(8): a(f'v_add_u32 v{dx+j}, {4096*(j//4)}, v{t0}')
        a(f's_bitcmp1_b32 s{s_l}, 0'); a('s_cbranch_scc1 L_ld_B')
        self.reduce_job(lambda: wst(0))
        a('s_branch L_ld_join')
        a.label('L_ld_B')
        if self.w0b == 0: self.cond([f's_cmp_lg_u32 s{s_l}, 3'], lambda: wst(0))
        a('s_barrier')
        if self.w0b == 1: self.cond([f's_cmp_lg_u32 s{s_l}, 3'], lambda: wst(0))
        a.label('L_ld_join')
        a('s_waitcnt vmcnt(0)'); a('s_barrier')
        a(f's_cmp_eq_u32 s{s_l}, 3'); a('s_cbranch_scc1 L_fin')
        self.trickle_rest(1); self.warm_w()
        a(f's_add_u32 s{s_l}, s{s_l}, 1')
        if self.jit: self.jitter(21)
        a('s_barrier')
        if self.jit: self.jitter(22)
        wst(1)
        if self.w2 == 2: wst(2)
        a('s_barrier')
        if self.w2 == 0: wst(2)
        self.flag_wait(s_fl, vf, t0, 2, pipe=2 if self.pipe & 4 else 0)
        self.stamp(1)
        xst(1); xst(2)
        a('s_waitcnt vmcnt(8)'); a('s_barrier')
        if self.w2 == 1: wst(2)
        a('s_branch L_ld_enter')

    def helper(self):
        a = self.a
        a.label('L_helper')
        t0, t1, t2, t3, l4, l16, ones, a_st, a_cs, v_st, v_cs, aw, vtw, vto, vd = 2, 3, 4, 5, 6, 7, 8, 12, 13, 14, 15, 16, 18, 19, 20
        F, D, SA, SC = 32, 96, 128, 160
        s_h, s_tw, s_a, s_b, s_trot = 65, 66, 67, 68, 69
        xm = 4; s_r = 70; vrf, vfl, aw2, dw = 21, 22, 24, 80
        a(f's_sub_u32 s{s_h}, s{s_wave}, 6')
        a(f'v_lshlrev_b32 v{l4}, 2, v1'); a(f'v_lshlrev_b32 v{l16}, 4, v1')
        a.extend(self.w_frag_addr(aw, s_h, 0, t0, t1, t2))
        for k in range(2): a(f'v_add_u32 v{aw2+k}, {L_SPARE}, v{aw+k}')
        a(f's_and_b32 s{s_t+1}, s{s_m}, {15 - self.rot0}'); a(f's_cmp_eq_u32 s{s_t+1}, 3'); a(f's_cselect_b32 s{s_t+1}, 0, s{s_t+1}'); a(f's_mul_i32 s{s_t+1}, s{s_t+1}, {STG}')
        for k in range(2): a(f'v_add_u32 v{aw+k}, s{s_t+1}, v{aw+k}')
        a.extend(self.flag_addr(vrf, t0, None, remote=True))
        a(f'v_lshrrev_b32 v{t0}, 5, v1'); a(f'v_and_b32 v{t1}, 31, v1'); a(f'v_lshlrev_b32 v{t1}, 4, v{t1}')
        a(f'v_lshl_add_u32 v{v_st}, v{t0}, 10, v{t1}')
        a(f'v_and_b32 v{t2}, 24, v1'); a(f'v_and_b32 v{t3}, 3, v1'); a(f'v_lshl_add_u32 v{t2}, v{t3}, 1, v{t2}'); a(f'v_add_u32 v{t2}, v{t2}, v{t0}')
        a.extend(sx(s_t, [(s_h, 256)], P_NM)); a(f'v_lshl_add_u32 v{a_st}, v{t2}, 3, s{s_t}')
        a(f'v_mov_b32 v{t2}, {BIG}'); a(f'v_cmp_gt_u32 vcc, 384, v{t1}'); a(f'v_cndmask_b32 v{v_cs}, v{t2}, v{v_st}, vcc')
        a.extend(sx(s_t, [(s_h, 384)], P_CS)); a(f'v_lshl_add_u32 v{t1}, v{t0}, 3, v{t1}'); a(f'v_add_u32 v{a_cs}, s{s_t}, v{t1}')
        self.pointers()

        def touch_setup(first=False):
            if not self.touch: return
            c, gt = s_t + 2, s_t + 3
            def cls(b):
                a(f's_lshr_b32 s{gt}, s{b}, 7'); a(f's_sub_u32 s{gt}, 3, s{gt}'); a(f's_and_b32 s{gt}, s{gt}, 7')
                a(f's_sub_u32 s{c}, s{s_g}, s{gt}'); a(f's_and_b32 s{c}, s{c}, 7'); a(f's_sub_u32 s{c}, s{c}, 1')
                a(f's_and_b32 s{s_t}, s{s_g}, 8'); a(f's_add_u32 s{gt}, s{gt}, s{s_t}'); a(f's_lshl_b32 s{gt}, s{gt}, 7')
            a(f's_and_b32 s{s_t+4}, s{s_m}, {xm-1}'); a(f's_lshl_b32 s{s_t+4}, s{s_t+4}, 1'); a(f's_add_u32 s{s_t+4}, s{s_t+4}, s{s_h}')
            cls(sW)
            if first: a(f's_or_b32 s{s_rot}, s{s_m}, 3'); a(f's_and_b32 s{s_rot}, s{s_rot}, {self.rot0}'); a(f's_mov_b32 s{s_trot}, 0')
            else: a(f's_mov_b32 s{s_rot}, s{s_rot2}'); a(f's_bfe_u32 s{s_trot}, s{gt}, 0x30007')
            a(f's_cmp_ge_u32 s{c}, 3'); a(f's_cselect_b32 s{s_t}, {32*6144 - 3*2048}, 0'); a(f's_add_u32 s{gt}, s{gt}, s{s_t}')
            a(f's_lshl_b32 s{s_t}, s{c}, 11'); a(f's_add_u32 s{gt}, s{gt}, s{s_t}')
            a(f's_mul_i32 s{s_t}, s{s_t+4}, {(16//xm)*6144}'); a(f's_add_u32 s{gt}, s{gt}, s{s_t}')
            a(f's_cmp_lt_u32 s{c}, 6'); a(f's_cselect_b32 s{s_t}, {16//xm}, 0')
            a(f'v_mul_u32_u24 v{vtw}, 6144, v1'); a(f'v_add_u32 v{vtw}, s{gt}, v{vtw}')
            a(f'v_mov_b32 v{t0}, {BIG}'); a(f'v_cmp_gt_u32 vcc, s{s_t}, v1'); a(f'v_cndmask_b32 v{vtw}, v{t0}, v{vtw}, vcc')
            cls(sWO)
            a(f's_lshl_b32 s{s_t}, s{c}, 19'); a(f's_add_u32 s{gt}, s{gt}, s{s_t}')
            a(f's_mul_i32 s{s_t}, s{s_t+4}, {(128//xm)*2048}'); a(f's_add_u32 s{gt}, s{gt}, s{s_t}')
            a(f's_cmp_lt_u32 s{c}, 4'); a(f's_cselect_b32 s{s_t}, {32//xm}, 0')
            a(f'v_lshlrev_b32 v{vto}, 11, v1'); a(f'v_add_u32 v{vto}, s{gt}, v{vto}')
            a(f'v_cmp_gt_u32 vcc, s{s_t}, v1'); a(f'v_cndmask_b32 v{vto}, v{t0}, v{vto}, vcc')
        def touchW(st):
            if not self.touch: return
            if st == 0: a(f's_add_u32 s{s_tw}, s{s_rot}, s{s_trot}')
            else: a(f's_cmp_le_u32 s{s_trot}, {st-1}'); a(f's_addc_u32 s{s_tw}, s{s_rot}, {st-1}')
            a(f's_and_b32 s{s_tw}, s{s_tw}, 15'); a(f's_mul_i32 s{s_tw}, s{s_tw}, {64*6144}')
            a(f'buffer_load_dword v{vd}, v{vtw}, {srd(sW)}, s{s_tw} offen')
        def touchO(k):
            if not self.touch: return
            a(f's_mov_b32 s{s_tw}, {k*(32//xm)*2048}')
            a(f'buffer_load_dword v{vd}, v{vto}, {srd(sWO)}, s{s_tw} offen')
        def phi_load():
            a(f's_mov_b64 s[{sX}:{sX+1}], s[{pPHI}:{pPHI+1}]'); a(f's_mov_b32 s{sX+2}, 65536')
            a.extend(sx(s_t, [(s_g, 4096), (s_h, 2048)])); a(f's_lshl_b32 s{s_t+1}, s{s_h}, 11'); a(f's_add_u32 m0, s{s_t+1}, {P_PHI}')
            for j in range(2): a(f'buffer_load_dwordx4 v{l16}, {srd(sX)}, s{s_t} offen offset:{1024*j} lds')
        self.w_dma_offsets(dw, s_h, t0, t1, t2)
        touch_setup(True)
        for st in range(1, 3 + self.dist): touchW(st)

        def init_stores():
            for k in range(4): a(f'v_mov_b32 v{SA+k}, -1')
            fill = f'buffer_store_dwordx4 {vr(SA,4)}, v{l16}, {srd(sWS)}, s{s_t} offen'
            a.extend(sx(s_t, [(s_g, 131072), (s_h, 65536), (s_m, 2048)], WS_KVP)); a(fill + ' sc1'); a(fill + ' offset:1024 sc1')
            a(f's_add_u32 s{s_t}, s{s_t}, 32768'); a(fill + ' sc1'); a(fill + ' offset:1024 sc1')
            a('s_mov_b64 exec, 0xff')
            a.extend(sx(s_t, [(s_g, 8192), (s_h, 4096), (s_m, 128)], WS_KVF)); a(fill + ' sc1'); a(fill + ' offset:2048 sc1')
            a.extend(sx(s_t, [(s_g, 4096), (s_h, 2048), (s_m, 128)], WS_ZP)); a(fill + ' sc1')
            a.extend(sx(s_t, [(s_g, 256), (s_h, 128)], WS_ZF))
            a(f's_cmp_eq_u32 s{s_m}, s{s_g}'); a(f's_cselect_b32 s{s_t}, s{s_t}, {BIG}'); a(fill + ' sc1')
            a('s_mov_b64 exec, -1')
            a(f's_and_b32 s{s_t+1}, s{s_g}, 7'); a.extend(sx(s_t, [(s_t+1, 4096), (s_m, 256), (s_rot2, 16), (s_h, BIG)]))
            a(f'v_mov_b32 v{t0}, 0'); a('s_mov_b32 exec_hi, 0')
            a(f'buffer_store_dword v{t0}, v{l4}, {srd(sWS)}, s{s_t} offen sc1')
            a('s_mov_b32 exec_hi, -1')
            a(f'v_lshrrev_b32 v{t1}, 2, v1'); a(f'v_lshlrev_b32 v{t1}, 10, v{t1}'); a(f'v_and_or_b32 v{t1}, v1, 3, v{t1}'); a(f'v_lshlrev_b32 v{t1}, 7, v{t1}')
            a.extend(sx(s_t, [(s_m, 8192), (s_g, 512)], WS_RF)); a(f's_cmp_eq_u32 s{s_h}, 1'); a(f's_cselect_b32 s{s_t}, s{s_t}, {BIG}')
            a('s_mov_b64 exec, 0xfffffff')
            a(f'buffer_store_dword v{t0}, v{t1}, {srd(sWS)}, s{s_t} offen sc1')
            a('s_mov_b64 exec, -1')
            a.extend(sx(s_t, [(s_g, 16384), (s_m, 1024)], WS_CS)); a(f's_cmp_eq_u32 s{s_h}, 1'); a(f's_cselect_b32 s{s_t}, s{s_t}, {BIG}'); a(fill + ' sc1')
        for k in range(4): a(f'v_mov_b32 v{ones+k}, 0x3f803f80')
        def cs_reads(aw=aw):
            for s in range(2):
                for n in range(6):
                    for t in range(2):
                        a(f'ds_read_b64_tr_b16 {vr(F+24*s+4*n+2*t,2)}, v{aw+(n&1)} offset:{(n>>1)*8192+(32*s+4*t)*128}')
            a('s_waitcnt lgkmcnt(0)')
        def cs_publish():
            for s in range(2):
                for n in range(6): a(mf16(D+4*n, ones, F+24*s+4*n, D+4*n if s else None))
            a.extend(sx(s_t, [(s_l, 262144), (s_g, 16384), (s_m, 1024), (s_h, 128)], WS_CS))
            a('s_mov_b64 exec, 0xffff')
            for n in range(6): a(f'buffer_store_dword v{D+4*n}, v{l4}, {srd(sWS)}, s{s_t} offen offset:{(n>>1)*256+(n&1)*64} sc1')
            a('s_mov_b64 exec, -1')
        def chunk(t):
            a(f's_mul_i32 s{s_t}, s{s_m}, {64*6144}'); a(f's_mul_i32 s{s_t+1}, s{s_h}, 12288'); a(f's_add_u32 m0, s{s_t+1}, {L_SPARE + 4096*(t//2)}')
            for j in range(2*t, 2*t+2): a(f'buffer_load_dwordx4 v{dw+j}, {srd(sW)}, s{s_t} offen offset:{1024*(j%4)} lds')
        def arrive():
            a(f's_getreg_b32 s{s_t}, hwreg(HW_REG_XCC_ID, 0, 3)'); a(f's_lshl_b32 s{s_t}, s{s_t}, 2'); a(f's_lshl_b32 s{s_t+1}, 1, s{s_t}')
            a.extend(sx(s_t, [(s_m, 16), (s_rot2, 1)]))
            a('s_mov_b64 exec, 1')
            a(f'v_mov_b32 v{t0}, s{s_t+1}')
            a(f'buffer_atomic_add v{t0}, off, {srd(sDBG)}, s{s_t} sc1')
            a('s_mov_b64 exec, -1')
        iload = f'buffer_load_dword v{vfl}, v{t2}, {srd(sDBG)}, 0 offen sc1'
        def init_look():
            a(f'v_and_b32 v{t2}, 31, v1'); a(f'v_lshlrev_b32 v{t2}, 3, v{t2}'); a(iload)
        def init_wait():
            a('s_waitcnt vmcnt(0)')
            self.spin(['s_sleep 16', iload],
                      [f'v_lshrrev_b32 v{t1}, 4, v{vfl}', f'v_and_b32 v{t1}, 0x0f0f0f0f, v{t1}', f'v_and_b32 v{t3}, 0x0f0f0f0f, v{vfl}',
                       f'v_sad_u8 v{t1}, v{t1}, 0, 0', f'v_sad_u8 v{t3}, v{t3}, 0, v{t1}', f'v_cmp_gt_u32 vcc, 8, v{t3}'], t3, 3, pre=True)
            a(f's_lshr_b32 s{s_t}, s{s_rot2}, 3'); a(f's_lshl_b32 s{s_t+1}, s{s_m}, 1'); a(f's_add_u32 s{s_t}, s{s_t}, s{s_t+1}')
            a(f'v_readlane_b32 s{s_fast}, v{vfl}, s{s_t}')
            a(f's_and_b32 s{s_fast}, s{s_fast}, 0x88888888'); a(f's_cselect_b32 s{s_fast}, {1 if self.local else 0}, 0')
            a(f'v_mov_b32 v{t3}, s{s_fast}'); a(f'v_mov_b32 v{t2}, {P_MODE}'); a(f'ds_write_b32 v{t2}, v{t3}')
        def gather(R, va, so, ks):
            L = []
            for k in ks: L += [f's_add_u32 s{s_t}, s{so}, {4096*(k//2)}', f'buffer_load_dwordx4 {vr(R+4*k,4)}, v{va}, {srd(sWS)}, s{s_t} offen offset:{2048*(k%2)} sc1']
            return L
        def total(R):
            n = 8
            while n > 1:
                n //= 2
                for k in range(4*n): a(f'v_add_f32 v{R+k}, v{R+k}, v{R+k+4*n}')
            a(sw32(R, R+2)); a(sw32(R+1, R+3)); a(f'v_add_f32 v{R}, v{R}, v{R+2}'); a(f'v_add_f32 v{R+1}, v{R+1}, v{R+3}')
        def stats_finish():
            for k in range(2): a(f'v_mov_b32_dpp v{SA+2+k}, v{SA+k} row_shl:4 row_mask:0xf bank_mask:0xf')
            for k in range(2): a(f'v_mul_f32 v{SA+k}, {f2u(-1/1024)}, v{SA+k}'); a(f'v_mul_f32 v{SA+2+k}, {f2u(1/1024)}, v{SA+2+k}')
            for k in range(2): a(f'v_fma_f32 v{SA+2+k}, -v{SA+k}, v{SA+k}, v{SA+2+k}')
            for k in range(2): a(f'v_max_f32 v{SA+2+k}, 0, v{SA+2+k}')
            for k in range(2): a(f'v_add_f32 v{SA+2+k}, {f2u(1e-5)}, v{SA+2+k}')
            for k in range(2): a(f'v_rsq_f32 v{SA+2+k}, v{SA+2+k}')
            a('s_mov_b32 exec_lo, 0x0f0f0f0f'); a('s_mov_b32 exec_hi, 0x0f0f0f0f')
            a(f'ds_write_b64 v{a_st}, {vr(SA,2)}'); a(f'ds_write_b64 v{a_st}, {vr(SA+2,2)} offset:512')
            a('s_mov_b64 exec, -1')
        def cs_finish():
            total(SC)
            a(f's_mul_i32 s{s_t}, s{s_l}, 768'); a(f'v_add_u32 v{t0}, s{s_t}, v{a_cs}')
            a('s_mov_b32 exec_lo, 0xffffff'); a('s_mov_b32 exec_hi, 0xffffff')
            a(f'ds_write_b64 v{t0}, {vr(SC,2)}')
            a('s_mov_b64 exec, -1')
        l0 = [f's_cmp_eq_u32 s{s_l}, 0']; ln0 = [f's_cmp_lg_u32 s{s_l}, 0']; l01 = [f's_cmp_lt_u32 s{s_l}, 2']
        a(f's_mov_b32 s{s_r}, 0')
        a.label('L_hp_layer')
        a.extend(sx(s_a, [(s_l, 262144), (s_m, 16384), (s_h, 512)], WS_ST))
        a.extend(sx(s_b, [(s_l, 262144), (s_g, 16384), (s_h, 384)], WS_CS))
        self.trickle_setup(); self.warm_wo_setup()
        hi = lambda: self.hprio and a(f's_setprio {self.hprio}')
        lo = lambda: self.hprio and a('s_setprio 0')
        l1 = [f's_cmp_eq_u32 s{s_l}, 1']
        for i in range(17):
            a('s_barrier')
            if self.jit and i in (0, 1, 4, 8, 9, 12, 16): self.jitter(30 + i)
            ncs = 16 - self.rot0
            l0h0 = [f's_or_b32 s{s_t}, s{s_l}, s{s_h}', f's_cmp_eq_u32 s{s_t}, 0']
            if i < ncs: self.cond([f's_and_b32 s{s_t}, s{s_m}, {ncs-1}', f's_lshl_b32 s{s_t+1}, s{s_l}, 2', f's_or_b32 s{s_t}, s{s_t}, s{s_t+1}', f's_cmp_eq_u32 s{s_t}, {i}'], cs_reads)
            if i == 3: self.cond(l0, cs_publish)
            if i == 8: self.cond(l1, lambda: (cs_reads(aw2), cs_publish()))
            if i in (1, 5, 7, 13): a('s_waitcnt vmcnt(0)')
            if i == 5: self.cond(ln0, lambda: self.flag_wait(s_r, vrf, vfl, 8, pre=True, nap=self.nap))
            if i == 9: self.cond(l0h0, init_wait)
            if i <= 12: hi()
            if i == 0: self.cond(l0, lambda: (init_stores(), phi_load()))
            if i == 2: self.cond(l0h0, arrive)
            if i == 8: self.cond(l0h0, init_look)
            if i == 4: self.cond(ln0, lambda: a(self.flag_load(s_r, vrf, vfl)))
            if i + 3 + self.dist <= 15: touchW(i + 3 + self.dist)
            if 5 <= i <= 8: touchO(i - 5)
            if 1 <= i <= 6: self.cond(l1, lambda: chunk(i - 1))
            if i == 6: self.cond([f's_cmp_eq_u32 s{s_l}, 2'], phi_load)
            if i in (10, 11): a.extend(gather(SA, v_st, s_a, range(4*(i-10), 4*(i-10)+4)))
            if i in (11, 12): self.cond(l01, lambda: a.extend(gather(SC, v_cs, s_b, range(4*(i-11), 4*(i-11)+4))))
            if i <= 12: lo()
            if 1 <= i <= 12: self.trickle(i - 1)
            if i == 13: self.ll_wait(gather(SA, v_st, s_a, range(8)), list(range(SA, SA+32)), t0, t1, 6, pre=True); total(SA)
            if i == 14: stats_finish()
            if i == 14: self.cond(l01, lambda: self.ll_wait(gather(SC, v_cs, s_b, range(8)), list(range(SC, SC+32)), t0, t1, 7, pre=True))
            if i == 15: self.cond(l01, cs_finish); a('s_waitcnt lgkmcnt(0)')
        a.extend(sx(s_t, [(s_l, 8192), (s_m, 256), (s_rot2, 16)])); a(f'buffer_load_dword v{vd}, off, {srd(sWS)}, s{s_t} sc1')
        a(f's_xor_b32 s{s_t}, s{s_t}, 128'); a.extend(sx(s_r, [(s_t, 32), (s_h, 256)], WS_RF))
        a(f's_bitcmp0_b32 s{s_l}, 0')
        a(f's_cselect_b64 s[{sW}:{sW+1}], s[{pBW}:{pBW+1}], s[{pAW}:{pAW+1}]')
        a(f's_cselect_b64 s[{sWO}:{sWO+1}], s[{pBWO}:{pBWO+1}], s[{pAWO}:{pAWO+1}]')
        touch_setup()
        touchW(0); touchW(1); touchW(2)
        a(f's_bitcmp1_b32 s{s_l}, 0'); a('s_cbranch_scc1 L_hp_B')
        self.reduce_job()
        a('s_branch L_hp_join')
        a.label('L_hp_B')
        a('s_barrier')
        a.label('L_hp_join')
        a('s_barrier')
        a(f's_cmp_eq_u32 s{s_l}, 3'); a('s_cbranch_scc1 L_fin')
        self.trickle_rest(1); self.warm_w()
        a(f's_add_u32 s{s_r}, s{s_r}, {4096*32}')
        a(f's_add_u32 s{s_l}, s{s_l}, 1')
        a('s_barrier')
        for st in range(3, 3 + self.dist): touchW(st)
        a('s_branch L_hp_layer')

    def compute(self):
        a = self.a
        one, l16, voffR, voffI, a_tok, a_row, a_t32, a_csr, a_csv = 0, 2, 3, 4, 5, 6, 7, 8, 9
        ax, awq = 10, 12
        l4 = 14; vst = 15
        XR = 16
        ACC = 32
        FX = [128, 144]; FW = [160, 184]
        T = 208
        t0, t1, t2, t3 = T, T+1, T+2, T+3
        s_wm, s_wh, s_rslot, s_delta, s_stg, s_ones = 65, 66, 67, 68, 69, 70
        s_o = 71
        s_ob = 75
        s_obase, s_ooff, s_a, s_b, s_c, s_d, s_e, s_fp, s_st, s_fo = range(77, 87)
        a(f'v_lshrrev_b32 v{t0}, 4, v1')
        a(f'v_and_b32 v{t1}, 15, v1')
        a(f'v_and_b32 v{t2}, 1, v{t0}'); a(f'v_lshrrev_b32 v{t3}, 1, v{t0}'); a(f'v_lshl_add_u32 v{t2}, v{t2}, 1, v{t3}')
        a(f'v_lshlrev_b32 v{voffR}, 11, v{t1}'); a(f'v_lshl_add_u32 v{voffR}, v{t2}, 4, v{voffR}')
        def x0():
            a.extend(sx(s_t, [(s_m, 1 << 18), (s_wave, 1 << 16), (s_g, 128)])); a(f's_add_u32 s{s_t+1}, s{s_t}, 32768')
            if not self.st0 & 16: self.pointers()
            for tb in range(2):
                for e in range(2): a(f'buffer_load_dwordx4 {vr(XR+8*tb+4*e,4)}, v{voffR}, {srd(sX)}, s{s_t+tb} offen offset:{64*e}')
        if self.st0 & 16: self.pointers()
        elif not self.st0 & 8: x0()
        a(f's_lshr_b32 s{s_wm}, s{s_wave}, 1'); a(f's_and_b32 s{s_wh}, s{s_wave}, 1')
        a(f'v_mov_b32 v{one}, 1')
        a(f'v_lshl_add_u32 v{voffI}, v{t2}, 4, v{t1}'); a(f'v_lshlrev_b32 v{voffI}, 4, v{voffI}'); a(f'v_mov_b32 v{vst}, v{voffI}')
        a(f'v_lshlrev_b32 v{l16}, 4, v1'); a(f'v_lshlrev_b32 v{l4}, 2, v1')
        a.extend(sx(s_t, [(s_wm, 256)], P_NM))
        a(f'v_lshl_add_u32 v{a_tok}, v{t1}, 2, s{s_t}')
        a(f'v_lshl_add_u32 v{a_row}, v{t0}, 4, s{s_t}')
        a(f'v_and_b32 v{t3}, 31, v1'); a(f'v_lshl_add_u32 v{a_t32}, v{t3}, 2, s{s_t}')
        a.extend(sx(s_t, [(s_wh, 128)], P_CS))
        a(f'v_lshl_add_u32 v{a_csr}, v{t0}, 4, s{s_t}')
        a(f'v_lshl_add_u32 v{a_csv}, v{t1}, 2, s{s_t}')
        a(f's_mov_b32 s{s_stg}, {STG}'); a(f's_mov_b32 s{s_ones}, 0x3f803f80')
        a(f'v_lshrrev_b32 v{t2}, 1, v{t1}'); a(f'v_xor_b32 v{t2}, v{t2}, v{t0}')
        a.extend(sx(s_t, [(s_wm, 8192)], XOFF)); a(f'v_lshl_add_u32 v{t1}, v{t1}, 7, s{s_t}')
        for s in range(2):
            a(f'v_xor_b32 v{t3}, {4*s}, v{t2}'); a(f'v_lshl_add_u32 v{ax+s}, v{t3}, 4, v{t1}')
        a.extend(sx(s_st, [(s_m, 16384), (s_g, 1024), (s_wave, 256)], WS_ST))

        q = 216
        def stats():
            S = []
            for k in range(8):
                for tb in range(2):
                    r = XR + 8*tb + k
                    S += [f'v_dot2_f32_bf16 v{q+2*tb}, s{s_ones}, v{r}, ' + (f'v{q+2*tb}' if k else '0'),
                          f'v_dot2_f32_bf16 v{q+2*tb+1}, v{r}, v{r}, ' + (f'v{q+2*tb+1}' if k else '0')]
            return S + [sw32(q, q+2), sw32(q+1, q+3), pk('add', q, q, q+2), sw16(q, q+1), f'v_add_f32 v{q}, v{q}, v{q+1}']
        st_store = f'buffer_store_dword v{q}, v{l4}, {srd(sWS)}, s{s_st} offen sc1'
        def acc(b, n): return ACC + 4*(6*b + n)
        A2 = 208
        def reads(s, st, slot=0):
            x, w, o = (ax, awq, STG*slot) if slot < 2 else (A2, A2+2, 0)
            X = [f'ds_read_b128 {vr(FX[st]+4*b,4)}, v{x+s} offset:{o+2048*b}' for b in range(4)]
            W = [[f'ds_read_b64_tr_b16 {vr(FW[st]+4*n+2*t,2)}, v{w+(n&1)} offset:{o+(n>>1)*8192+(32*s+4*t)*128}' for t in range(2)] for n in range(6)]
            L = [X[0]] + W[0] + X[1:]
            for n in range(1, 6): L += W[n]
            return L
        def mfma(st, b, n, zero=False):
            C = None if zero else acc(b, n)
            return mf16(acc(b, n), FW[st]+4*n, FX[st]+4*b, C) if n < 4 else mf16(acc(b, n), FX[st]+4*b, FW[st]+4*n, C)
        def mfmas(st, zero=False):
            return [mfma(st, b, n, zero) for n in range(6) for b in (range(4) if not (self.snake and n % 2) else range(3, -1, -1))]
        env = dict(locals())
        a.extend(self.w_frag_addr(awq, s_wh, 0, t0, t1, t2))
        self.epiA(env, 'v')
        if self.st0 & 8: x0()
        a(f'v_mov_b32 v{q}, -1'); a(st_store)
        a(f's_sub_u32 s{s_st}, s{s_st}, 262144')
        a.label('L_first')
        a('s_barrier')
        self.stamp(12)
        if self.st0 & 16: self.cond([f's_cmp_eq_u32 s{s_l}, 0'], x0)
        self.aw(reads(0, 0) + interleave(mfmas(0, True), reads(1, 1), per=[0]*4 + [1]*20))
        a('s_waitcnt vmcnt(0) lgkmcnt(0)')
        self.stamp(11)
        self.cond([f's_cmp_lg_u32 s{s_l}, 0'], lambda: self.flag_set(s_fo, one))
        S = [f'v_add_u32 v{A2+k}, {2*STG}, v{ax+k}' for k in range(4)] + [f's_mov_b32 s{s_i}, 0']
        assert awq == ax + 2
        S += sx(s_t, [(s_l, 1 << 22), (s_m, 1 << 18)], WS_OI)
        S += sx(s_obase, [(s_wave, 1 << 16), (s_t, 1)]) + [f's_lshl_b32 s{s_ooff}, s{s_rot2}, 11']
        S += [f's_add_u32 s{s_ob}, s{s_obase}, s{s_ooff}', f's_add_u32 s{s_ob+1}, s{s_ob}, 32768']
        S += sx(s_a, [(s_wm, 1 << 17), (s_g, 2048), (s_wh, 1024), (s_t, 1)])
        S += sx(s_o, [(s_g, 16384), (s_wave, 4096), (s_t, 1)], WS_XI - WS_OI) + [f's_add_u32 s{s_o+k}, s{s_o}, {1024*k}' for k in range(1, 4)]
        S += sx(s_fp, [(s_l, 8192), (s_m, 256)]) + sx(s_fo, [(s_g, 16), (s_wave, 4), (s_fp, 1)]) + sx(s_fo+1, [(s_fo, 32)], WS_RF)
        S += sx(s_t, [(s_wm, 8), (s_rot2, 16)]) + [f's_add_u32 s{s_fp}, s{s_fp}, s{s_t}']
        a.extend(interleave(mfmas(1), S, per=[2]*24))
        a(f's_bitcmp1_b32 s{s_l}, 0'); a('s_cbranch_scc1 L_preB')
        self.epiA(env, 's')
        a('s_branch L_pre_done')
        a.label('L_preB')
        self.epiB(env, 's')
        def last():
            a(f's_mov_b64 s[{sOUT}:{sOUT+1}], s[{pOUT}:{pOUT+1}]'); a(f's_mov_b32 s{sOUT+2}, {2048*1024*2}')
            a.extend(sx(s_o, [(s_m, 1 << 18), (s_wave, 1 << 16), (s_g, 128)]))
            a(f's_add_u32 s{s_o+1}, s{s_o}, 64'); a(f's_add_u32 s{s_o+2}, s{s_o}, 32768'); a(f's_add_u32 s{s_o+3}, s{s_o}, {32768+64}')
            a(f'v_mov_b32 v{vst}, v{voffR}')
        self.cond([f's_cmp_eq_u32 s{s_l}, 3'], last)
        a.label('L_pre_done')
        a(f's_add_u32 s{s_st}, s{s_st}, 262144')
        a.extend(stats()); a(st_store)
        a.label('L_go')
        a('s_barrier')
        self.stamp(1)
        a.extend(reads(0, 0, 1))
        a('s_branch L_q1')
        nb = self.bpos + 1
        def half0(slot):
            if self.prof == 5:
                a('s_memtime s[92:93]'); a(f's_lshl_b32 m0, s{s_l}, 4'); a(f's_add_u32 m0, m0, s{s_i}'); a(f's_add_u32 m0, m0, {(slot+2)%3+1}')
            a('s_waitcnt lgkmcnt(0)')
            F = reads(1, 1, slot)
            if self.prof == 5: F = ['v_writelane_b32 v255, s92, m0'] + F
            if slot == 0: F += [f's_add_u32 s{s_i}, s{s_i}, 3', f's_cmp_lt_u32 s{s_i}, 15']
            a.extend(interleave(mfmas(0), F, per=[0]*self.r0 + [1]*24))
            a('s_waitcnt lgkmcnt(0)')
            a.extend(mfmas(1)[:nb]); a('s_barrier')
        def half1(slot):
            R = reads(0, 0, (slot+1) % 3)
            a(R[0]); a.extend(interleave(mfmas(1)[nb:], R[1:], per=[1]*24))
        a('.p2align 6')
        a.label('L_q')
        half1(0)
        a.label('L_q1')
        half0(1); half1(1); half0(2); half1(2); half0(0)
        a('s_cbranch_scc1 L_q')
        a.label('L_tail')
        self.stamp(2)
        a(f's_bitcmp1_b32 s{s_l}, 0'); a('s_cbranch_scc1 L_epiB')
        self.epiA(env, False)
        a('s_branch L_ophase')
        a.label('L_epiB')
        self.epiB(env, False)
        a.label('L_ophase')
        a('s_barrier')
        PD = self.pd; NR = PD + 1
        OA, OW, awo, vf, RING = 128, [160, 176], 192, 196, 32
        assert RING + 8*NR <= 128
        u0, u1, u2, vrf, vot, vxw = 197, 198, 199, 204, 205, 206
        a(f'v_mov_b32 v{u0}, {P_MODE}'); a(f'ds_read_b32 v{u0}, v{u0}')
        def oacc(tb, nb): return OA + 16*tb + 4*nb
        for k in range(4):
            a(sw16(XR+4*k, XR+4*k+2)); a(sw16(XR+4*k+1, XR+4*k+3))
        a('s_waitcnt lgkmcnt(0)'); a(f'v_readfirstlane_b32 s{s_fast}, v{u0}')
        a(f's_xor_b32 s{s_t}, s{s_fp}, 128'); a.extend(sx(s_e, [(s_t, 32)], WS_RF))
        a.extend(self.flag_addr(vrf, u1, None, remote=True))
        a.extend(self.flag_addr(vf, u1, s_fp))
        for r in range(16):
            a(f'v_lshlrev_b32 v{OA+2*r}, 16, v{XR+r}'); a(f'v_and_b32 v{OA+2*r+1}, 0xffff0000, v{XR+r}')
        a.extend(self.w_frag_addr(awo, None, L_WO, u0, u1, u2, nb_list=(0, 1, 2, 3)))
        a(f's_cmp_eq_u32 s{s_wh}, 0'); a('s_cselect_b64 vcc, -1, 0')
        for k in range(2): a(f'v_cndmask_b32 v{awq+k}, v{awo+2+k}, v{awo+k}, vcc')
        for k in range(2): a(f'v_subrev_u32 v{awq+k}, {L_WO}, v{awq+k}')
        a.extend(sx(s_t, [(s_wm, 8192)], XOFF)); a(f'v_add_u32 v{ax}, s{s_t}, v{l16}'); a(f'v_add_u32 v{ax+1}, 1024, v{ax}')
        a.extend(sx(s_t, [(s_wave, 4096)], XOFF)); a(f'v_add_u32 v{vxw}, s{s_t}, v{voffI}')
        def oreads(h):
            return [f'ds_read_b64_tr_b16 {vr(OW[h&1]+4*nb+2*t,2)}, v{awo+nb} offset:{(h&15)*4096+512*t}' for nb in range(4) for t in range(2)]
        a('s_waitcnt vmcnt(0)')
        self.stamp(8)
        self.flag_set(s_fo, one, 1)
        a(self.flag_load(s_fp, vf, u0))
        self.flag_set(s_fo, one, 2)
        a.extend(oreads(0))
        def next_consts():
            a(f's_bitcmp1_b32 s{s_l}, 0'); a('s_cbranch_scc1 L_nextA')
            self.epiB(env, 'v')
            a('s_branch L_next_done')
            a.label('L_nextA')
            self.cond([f's_cmp_lg_u32 s{s_l}, 3'], lambda: self.epiA(env, 'v'))
            a.label('L_next_done')
        if not self.vpos: next_consts()
        a('s_waitcnt vmcnt(1) lgkmcnt(0)')
        self.flag_wait(s_fp, vf, u0, 4, pre=True)
        self.stamp(9)
        def oload(h, tb):
            L = [f'buffer_load_dwordx4 {vr(RING+8*(h%NR)+4*tb,4)}, v{l16}, {srd(sWS)}, s{s_ob+tb} offen offset:{1024*(h&3)} sc1']
            if h & 3 == 3 and h < 31:
                if tb == 0: L += [f's_add_u32 s{s_ooff}, s{s_ooff}, 4096', f's_and_b32 s{s_ooff}, s{s_ooff}, 0x7fff', f's_add_u32 s{s_ob}, s{s_obase}, s{s_ooff}']
                else: L += [f's_add_u32 s{s_ob+1}, s{s_ob}, 32768']
            return L
        S = []
        for h in range(PD): S += oload(h, 0) + oload(h, 1)
        S.append('s_nop 2')
        for h in range(32):
            R = oreads(h+1) if h < 31 else []
            if h == 15: S += [f'v_add_u32 v{awo+nb}, 0x10000, v{awo+nb}' for nb in range(4)]
            k = 0
            for nb in range(4):
                for tb in range(2):
                    S.append(mf16(oacc(tb, nb), OW[h&1]+4*nb, RING+8*(h%NR)+4*tb, oacc(tb, nb)))
                    if R: S.append(R[k])
                    for j in range(2):
                        if k == self.opos[j] and h + PD < 32: S += oload(h+PD, j)
                    k += 1
            if h == self.hq: S.append(self.flag_load(s_e, vrf, u1))
            if h == (self.hc or 15 - PD): S += [f'v_cmp_eq_u32 vcc, 0, v{u1}', 's_nop 1']
            if h == self.bm: S.append('s_barrier')
        S = autowait(S); cut0 = S.index('s_nop 2'); cut = S.index('s_nop 1') + 1
        a.extend(S[:cut0])
        if self.vpos: next_consts()
        a.extend(S[cut0+1:cut])
        self.cond(['s_cmp_lg_u64 vcc, 0'], lambda: self.flag_wait(s_e, vrf, u1, 9, nap=self.nap))
        a.extend(S[cut:])
        self.stamp(10)
        S = []
        for k4 in (0, 2, 1, 3):
            for k in range(4): S.append(cvt(XR+4*k4+k, OA+8*k4+2*k, OA+8*k4+2*k+1))
            S += [sw16(XR+4*k4, XR+4*k4+2), sw16(XR+4*k4+1, XR+4*k4+3),
                  f'buffer_store_dwordx4 {vr(XR+4*k4,4)}, v{vst}, {srd(sOUT)}, s{s_o+k4} offen sc1',
                  f'ds_write_b128 v{vxw}, {vr(XR+4*k4,4)} offset:{1024*k4}']
        if self.fst != 'sc1':
            a(f's_cmp_lg_u32 s{s_l}, 3'); a('s_cbranch_scc1 L_notlast')
            self.sw([t.replace('sc1', self.fst) for t in S if not t.startswith('ds_')], crit=lambda t: t.startswith('buffer'))
            a('s_branch L_fin')
            a.label('L_notlast')
        self.sw(S, crit=lambda t: t.startswith('buffer'))
        a(f's_cmp_eq_u32 s{s_l}, 3'); a('s_cbranch_scc1 L_fin')
        a(f's_add_u32 s{s_fo}, s{s_fo}, 4096'); a(f's_add_u32 s{s_fo+1}, s{s_fo+1}, {4096*32}')
        a(f's_add_u32 s{s_l}, s{s_l}, 1')
        a('s_waitcnt lgkmcnt(0)')
        a('s_branch L_first')

    def epiA(self, E, pre):
        a = self.a
        acc = E['acc']; a_tok, a_row, a_t32, a_csr, a_csv, l16, l4 = (E[k] for k in ('a_tok', 'a_row', 'a_t32', 'a_csr', 'a_csv', 'l16', 'l4'))
        s_wm, s_wh, s_a, s_b, s_c, s_d, s_e = (E[k] for k in ('s_wm', 's_wh', 's_a', 's_b', 's_c', 's_d', 's_e'))
        PK = [128, 144]; EP, KV0, ZA, NR = 160, 176, 192, 208
        wphi, nml, c32, csv = 224, 232, 236, 238
        SEL = [240, 244]
        a_phi, a_w, a_r0, a_r1, a_z, x_w, x_r = range(248, 255)
        csk = EP; csq = NR
        nmr = [KV0, EP+8, NR, NR+8]
        if pre == 'v':
            u0, u1, u2, u3, u4 = range(208, 213)
            S = [f'v_lshrrev_b32 v{u0}, 5, v1', f'v_bfe_u32 v{u1}, v1, 2, 2', f'v_lshl_add_u32 v{u1}, v{u0}, 3, v{u1}',
                 f'v_bfe_u32 v{u2}, v1, 4, 1', f'v_and_b32 v{u3}, 3, v1', f'v_lshlrev_b32 v{u4}, 3, v{u3}', f'v_lshl_add_u32 v{u2}, v{u2}, 5, v{u4}']
            S += sx(s_t, [(s_wh, 2048)], P_PHI) + [f'v_lshl_add_u32 v{u4}, v{u1}, 6, v{u2}', f'v_add_u32 v{a_phi}, s{s_t}, v{u4}']
            S += [f's_mul_i32 s{s_t+2}, s{s_wave}, {SCR}',
                  f'v_mul_u32_u24 v{u1}, 136, v{u1}', f'v_add3_u32 v{u1}, v{u1}, v{u2}, s{s_t+2}',
                  f's_lshl_b32 s{s_t+1}, s{s_wm}, 6', f'v_add_u32 v{a_r0}, s{s_t+1}, v{u1}',
                  f's_xor_b32 s{s_t+3}, s{s_t+1}, 64', f'v_add_u32 v{a_r1}, s{s_t+3}, v{u1}',
                  f'v_and_b32 v{u4}, 31, v1', f'v_mul_u32_u24 v{u4}, 136, v{u4}', f'v_lshl_add_u32 v{u4}, v{u0}, 3, v{u4}', f'v_add_u32 v{a_w}, s{s_t+2}, v{u4}',
                  f'v_add_u32 v{x_w}, s{s_t+2}, v{l16}', f's_xor_b32 s{s_t}, s{s_wave}, 2', f's_mul_i32 s{s_t}, s{s_t}, {SCR}', f'v_add_u32 v{x_r}, s{s_t}, v{l16}']
            S += [f'v_mov_b32 v{u4}, 0x3f803f80']
            for k in range(2):
                S += [f'v_cmp_eq_u32 vcc, {k}, v{u3}', f'v_cndmask_b32 v{SEL[k]}, 0, v{u4}, vcc', f'v_mov_b32 v{SEL[k]+1}, v{SEL[k]}',
                      f'v_mov_b64 {vr(SEL[k]+2,2)}, {vr(SEL[k],2)}']
            S += [f'v_and_b32 v{u0}, 18, v1', f'v_lshlrev_b32 v{u0}, 1, v{u0}', f'v_and_or_b32 v{u0}, v1, 8, v{u0}', f'v_and_b32 v{u1}, 4, v1',
                  f'v_lshl_or_b32 v{u0}, v{u1}, 2, v{u0}', f'v_and_b32 v{u1}, 33, v1', f'v_lshl_or_b32 v{a_z}, v{u1}, 25, v{u0}',
                  f'v_lshl_or_b32 v{a_z}, v{u1}, 30, v{a_z}']
            a.extend(S)
            return
        if pre == 's':
            S = sx(s_t, [(s_l, 16), (s_g, 2), (s_wh, 1)])
            S += sx(s_d, [(s_t, 65536), (s_wm, 32768), (s_m, 2048)], WS_KVP) + sx(s_e, [(s_t, 2048), (s_m, 128), (s_wm, 64)], WS_ZP)
            S += sx(s_b, [(s_t, 128)], WS_ZF) + sx(s_c, [(s_t, 4096)], WS_KVF)
            a.extend(S)
            return
        S = []
        for b in range(4): S.append(f'ds_read_b32 v{nml+b}, v{a_tok} offset:{64*b}')
        for nb in range(2): S.append(f'ds_read_b128 {vr(csk+4*nb,4)}, v{a_csr} offset:{256+64*nb}')
        for u in range(2):
            for t in range(2): S.append(f'ds_read_b64_tr_b16 {vr(wphi+4*u+2*t,2)}, v{a_phi} offset:{(16*t+4*u)*64}')
        for nb in range(2): S.append(f'ds_read_b32 v{csv+nb}, v{a_csv} offset:{512+64*nb}')
        for b in range(4):
            S.append(f'ds_read_b128 {vr(nmr[b],4)}, v{a_row} offset:{64*b}')
            S.append(f'ds_read_b128 {vr(nmr[b]+4,4)}, v{a_row} offset:{512+64*b}')
            if b == 0:
                for Tt in range(2): S.append(f'ds_read_b32 v{c32+Tt}, v{a_t32} offset:{512+128*Tt}')
        def qk_prep(n0, cs):
            L = []
            for b in range(4):
                for k in range(4): L.append(pk('fma', acc(b, n0)+2*k, cs+2*k, ('b', nml+b), acc(b, n0)+2*k))
                for k in range(4): L.append(cvt(acc(b, n0)+k, acc(b, n0)+2*k, acc(b, n0)+2*k+1))
            for Tt in range(2):
                for k in range(4): L.append(sw16(acc(2*Tt, n0)+k, acc(2*Tt+1, n0)+k))
                L += [mf32(PK[Tt], wphi, acc(2*Tt, n0)), mf32(PK[Tt], wphi+4, acc(2*Tt+1, n0), PK[Tt])]
            return L
        def vprep(b):
            r = acc(b, 4); P, C = [], []
            for nb in range(2):
                for p in range(2): P.append(pk('fma', r+4*nb+2*p, nmr[b]+2*p, ('b', csv+nb), r+4*nb+2*p))
            for nb in range(2):
                for p in range(2): P.append(pk('mul', r+4*nb+2*p, r+4*nb+2*p, nmr[b]+4+2*p))
            for k in range(4): C.append(cvt(r+k, r+2*k, r+2*k+1))
            return P, C, [sw16(r, r+2), sw16(r+1, r+3)]
        def softmax(Tt):
            x = PK[Tt]; c = c32 + Tt
            ta, tb = ((acc(2, 3), acc(3, 3)), (acc(2, 2), acc(3, 2)))[Tt]
            mx, mn, bp, bm = ta, ta+1, tb, tb+1
            L = [f'v_max3_f32 v{mx}, v{x}, v{x+1}, v{x+2}', f'v_max3_f32 v{mn}, -v{x}, -v{x+1}, -v{x+2}']
            for k in range(3, 15, 2):
                L += [f'v_max3_f32 v{mx}, v{mx}, v{x+k}, v{x+k+1}', f'v_max3_f32 v{mn}, v{mn}, -v{x+k}, -v{x+k+1}']
            L += [f'v_max_f32 v{mx}, v{mx}, v{x+15}', f'v_max_f32 v{mn}, v{mn}, -v{x+15}']
            L += [sw32(mx, mn), f'v_max_f32 v{mx}, v{mx}, v{mn}', f'v_mul_f32 v{bm}, -v{mx}, v{c}', f'v_mov_b32 v{bp}, v{bm}', sw32(bp, bm)]
            parts = [L]; L = []
            for k in range(0, 16, 2): L.append(pk('fma', EP+k, x+k, ('b', c), ('b', bp)))
            for k in range(0, 16, 2): L.append(pk('fma', x+k, x+k, ('b', c), ('b', bm), neg=[1, 0, 0]))
            parts.append(L); L = []
            for k in range(16): L.append(f'v_exp_f32 v{EP+k}, v{EP+k}')
            for k in range(16): L.append(f'v_exp_f32 v{x+k}, v{x+k}')
            parts.append(L); L = []
            sp, sm = ta, ta+2
            r1, r2 = tb+2, tb+3
            L += [pk('add', sp, EP, EP+2), pk('add', sm, x, x+2)]
            for k in range(4, 16, 2): L += [pk('add', sp, sp, EP+k), pk('add', sm, sm, x+k)]
            L += [f'v_add_f32 v{sp}, v{sp}, v{sp+1}', f'v_add_f32 v{sm}, v{sm}, v{sm+1}', sw32(sp, sm), f'v_add_f32 v{sp}, v{sp}, v{sm}',
                  f'v_rcp_f32 v{r2}, v{sp}', f'v_mov_b32 v{r1}, v{r2}', sw32(r1, r2)]
            for k in range(0, 16, 2): L.append(pk('mul', x+k, x+k, ('b', r2)))
            for k in range(8): L.append(cvt(x+k, x+2*k, x+2*k+1))
            for k in range(0, 16, 2): L.append(pk('mul', EP+k, EP+k, ('b', r1)))
            for k in range(8): L.append(cvt(x+8+k, EP+2*k, EP+2*k+1))
            return parts + [L]
        FR = [[acc(0, 2), acc(0, 3)], [acc(1, 2), acc(1, 3)]]
        def to_lds(x):
            return [f'ds_write_b64 v{a_w}, {vr(x+8*(1-sg)+2*j,2)} offset:{64*sg+16*j}' for sg in (1, 0) for j in range(4)]
        def frags():
            return [f'ds_read_b64_tr_b16 {vr(FR[k][u]+2*tt,2)}, v{(a_r0, a_r1)[k]} offset:{(16*u+4*tt)*136}' for k in (1, 0) for u in range(2) for tt in range(2)]
        KV1 = PK[0]
        def kvm(Tt):
            L = []
            for k, K in ((1, KV1), (0, KV0)):
                for u in range(2): L.append(mf32(K, FR[k][u], acc(2*Tt+u, 4), None if (Tt == 0 and u == 0) else K))
                for u in range(2): L.append(mf32(ZA, SEL[k], FR[k][u], None if (Tt == 0 and u == 0 and k == 1) else ZA))
            return L
        sc = sched if self.sch else (lambda L: L)
        K = qk_prep(2, csk); isM = lambda t: t.startswith('v_mfma')
        VP_ = [vprep(b) for b in range(4)]
        sm0, sm1 = softmax(0), softmax(1)
        mfma = E['mfma']
        TM = [mfma(1, b, n) for b in range(4) for n in (2, 3)] + [mfma(1, b, n) for b in range(4) for n in (4, 5)] + [mfma(1, b, 1) for b in range(4)] + [mfma(1, b, 0) for b in range(self.bpos+1, 4)]
        K01 = []
        for b in range(2):
            K01 += [f'v_fmac_f32 v{acc(b,2)+k}, v{csk+k}, v{nml+b}' for k in range(8)] + K[8*b+4:8*b+8]
        S = interleave(TM, S + K01, per=[2]*24)
        S += sc([t for t in K[16:] if not isM(t)] + [f'v_mul_f32 v{c32+Tt}, {f2u(LOG2E)}, v{c32+Tt}' for Tt in range(2)] + VP_[0][0] + VP_[1][0])
        def cutA(n, k):
            nonlocal S
            if self.fine == n: self.aw(S + ['s_waitcnt lgkmcnt(0)']); S = []; self.stamp(k)
        cutA(1, 12)
        S += sc([t for t in K if isM(t)] + VP_[0][1] + VP_[1][1] + VP_[0][2] + VP_[1][2] + sm0[0])
        cutA(1, 13)
        S += sc(sm0[1] + sm0[2] + sm1[0] + sm0[3] + to_lds(PK[0]) + frags())
        cutA(1, 14)
        S += sm1[1] + interleave(kvm(0), sm1[2][2:], per=[4]*7 + [2]) + sm1[2][:2]
        cutA(2, 12)
        S += sc(sm1[3] + to_lds(PK[1]) + frags() + sum((VP_[b][k] for k in range(3) for b in (2, 3)), []), lambda t: t.startswith('ds_read'))
        cutA(2, 13)
        M = kvm(1)
        X = [f'ds_write_b128 v{x_w}, {vr(KV1+4*k,4)} offset:{1024*k}' for k in range(4)]
        S += M[0:5] + X[0:2] + M[5:6] + X[2:4] + [f'ds_write_b32 v{x_w}, v{ZA+1} offset:4096'] + M[6:8]
        cutA(2, 14)
        self.aw(S); S = []
        S += ['s_waitcnt lgkmcnt(0)', 's_barrier']
        for k in range(4): S.append(f'ds_read_b128 {vr(EP+4*k,4)}, v{x_r} offset:{1024*k}')
        S.append(f'ds_read_b32 v{csv}, v{x_r} offset:4096')
        for u in range(2):
            for k in range(4): S.append(pk('add', KV0+8*u+2*k, KV0+8*u+2*k, EP+8*u+2*k))
            for k in range(4): S.append(cvt(KV0+8*u+k, KV0+8*u+2*k, KV0+8*u+2*k+1))
            S.append(f'buffer_store_dwordx4 {vr(KV0+8*u,4)}, v{l16}, {srd(sWS)}, s{s_d} offen offset:{1024*u} sc1')
        S += [f'v_add_f32 v{ZA}, v{ZA}, v{csv}', f'v_mov_b32_dpp v{ZA+3}, v{ZA} quad_perm:[1,0,3,2] row_mask:0xf bank_mask:0xf', cvt(ZA, ZA, ZA+3),
              f'buffer_store_dword v{ZA}, v{a_z}, {srd(sWS)}, s{s_e} offen sc1']
        self.sw(S, name='A k-part'); S = []
        if not self.yw: a('s_barrier')
        self.stamp(3)
        u3, u4 = ZA + 4, ZA + 5
        for nb in range(2): S.append(f'ds_read_b128 {vr(csq+4*nb,4)}, v{a_csr} offset:{64*nb}')
        S += qk_prep(0, csq) + sum(softmax(0) + softmax(1), [])
        S += [f'v_lshrrev_b32 v{u3}, 5, v1', f'v_and_b32 v{u4}, 1, v1', f'v_lshlrev_b32 v{u4}, 6, v{u4}', f'v_lshl_add_u32 v{a_z}, v{u3}, 4, v{u4}',
              f'v_bfe_u32 v{u4}, v1, 4, 1', f'v_lshlrev_b32 v{u4}, 15, v{u4}', f'v_lshl_add_u32 v{u4}, v{u3}, 8, v{u4}',
              f'v_and_b32 v{u3}, 15, v1', f'v_lshl_add_u32 v{a_w}, v{u3}, 4, v{u4}', f's_add_u32 s{s_d}, s{s_a}, 65536']
        if self.yw:
            S = sched(S); S.insert(self.yw, 's_barrier'); self.aw(S); S = []
        else: self.sw(S, name='A q-part'); S = []
        self.stamp(4)
        a('s_barrier')
        self.stamp(7)
        KF = KV0; ZF = EP
        if self.b2: a(f's_sleep {self.b2}')
        self.ll_wait(([f's_sleep {self.n2}'] if self.n2 else []) + [f'buffer_load_dwordx4 {vr(ZF+4*u,4)}, v{a_z}, {srd(sWS)}, s{s_b} offen offset:{32*u} sc1' for u in range(2)] +
                     [f'buffer_load_dwordx4 {vr(KF+4*k,4)}, v{l16}, {srd(sWS)}, s{s_c} offen offset:{1024*k} sc1' for k in range(4)],
                     list(range(ZF, ZF+8)) + list(range(KF, KF+16)), u3, u4, 5, pipe=(self.pipe >> 1) & 1)
        self.stamp(5)
        ACC = E['ACC']
        for Tt in range(2):
            N, DP, DM = ACC + 48*Tt, ACC + 48*Tt + 16, ACC + 48*Tt + 32
            x = PK[Tt]
            S += [mf32(DP, ZF, x+8), mf32(DP, ZF+4, x+12, DP), mf32(DM, ZF, x), mf32(DM, ZF+4, x+4, DM),
                  mf32(N, KF, x+8), mf32(N, KF+4, x+12, N), mf32(N, KF+8, x, N), mf32(N, KF+12, x+4, N)]
            S += [f'v_add_f32 v{DP}, v{DP}, v{DM+1}', f'v_add_f32 v{DP}, {f2u(1e-6)}, v{DP}', f'v_rcp_f32 v{DP}, v{DP}']
            for p in range(2):
                for jj in range(2):
                    j = p + 2*jj
                    for k in range(2):
                        r = N + 4*j + 2*k
                        if Tt == 0: S += [f'v_mul_f32 v{r}, v{DP}, v{r}', f'v_mul_f32 v{r+1}, v{DP}, v{r+1}']
                        else: S.append(pk('mul', r, r, ('b', DP)))
                        S.append(cvt(DM+4+4*p+2*jj+k, r, r+1))
                S.append(f'buffer_store_dwordx4 {vr(DM+4+4*p,4)}, v{a_w}, {srd(sWS)}, s{(s_a, s_d)[Tt]} offen offset:{512*p} sc1')
        self.sw(S, name='A finish')
        self.stamp(6)

    def epiB(self, E, pre):
        a = self.a
        acc = E['acc']; a_tok, a_row, a_csr, a_csv, l16 = (E[k] for k in ('a_tok', 'a_row', 'a_csr', 'a_csv', 'l16'))
        s_wm, s_wh, s_a, s_b, s_c, s_d, s_e = (E[k] for k in ('s_wm', 's_wh', 's_a', 's_b', 's_c', 's_d', 's_e'))
        BI, BI0, MK, a_h = 236, 244, 248, 252
        if pre == 'v':
            t1, t2, t3 = 208, 209, 210
            S = [f'v_and_b32 v{t1}, 15, v1', f'v_lshrrev_b32 v{t2}, 4, v1', f'v_lshlrev_b32 v{t2}, 2, v{t2}', f'v_sub_u32 v{t1}, v{t1}, v{t2}',
                 f'v_mov_b32 v{t3}, {f2u(-1e30)}']
            for blk in range(2):
                for i in range(4):
                    S += [f'v_add_u32 v{t2}, {(16 if blk == 0 else 0) - i}, v{t1}', f'v_and_b32 v{t2}, -15, v{t2}', f'v_cmp_eq_u32 vcc, 0, v{t2}',
                          f'v_cndmask_b32 v{BI+4*blk+i}, v{t3}, 0, vcc']
                    if i % 2 == 0: S += [f'v_cndmask_b32 v{MK+2*blk+i//2}, 0, -1, vcc', f'v_lshrrev_b32 v{MK+2*blk+i//2}, 16, v{MK+2*blk+i//2}']
                    else: S += [f'v_cndmask_b32 v{t2}, 0, -1, vcc', f'v_lshl_or_b32 v{MK+2*blk+i//2}, v{t2}, 16, v{MK+2*blk+i//2}']
            S += [f's_or_b32 s{s_t}, s{s_m}, s{s_wm}', 's_cselect_b64 vcc, -1, 0']
            for i in range(4): S.append(f'v_cndmask_b32 v{BI0+i}, v{t3}, v{BI+i}, vcc')
            S += sx(s_t, [(s_wh, 2048)], P_PHI) + [f'v_add_u32 v{a_h}, s{s_t}, v{l16}']
            S += [f's_add_u32 s{s_t+1}, s{s_t}, 1024', f's_cmp_eq_u32 s{s_wm}, 0', f's_cselect_b32 s{s_t}, s{s_t}, {L_P + 7168}', f's_cselect_b32 s{s_t+1}, s{s_t+1}, {L_P + 7168}',
                  f'v_add_u32 v{a_h+1}, s{s_t}, v{l16}', f'v_add_u32 v{a_h+2}, s{s_t+1}, v{l16}']
            a.extend(S)
            return
        if pre == 's':
            S = sx(s_b, [(s_l, 1 << 19), (s_m, 1 << 16), (s_g, 4096), (s_wh, 2048)], WS_HALO - (1 << 19))
            S += [f's_add_u32 s{s_c}, s{s_b}, 65536', f's_cmp_eq_u32 s{s_m}, 15', f's_cselect_b32 s{s_c}, {BIG}, s{s_c}',
                  f's_cmp_eq_u32 s{s_wm}, 0', f's_cselect_b32 s{s_c}, {BIG}, s{s_c}', f's_cselect_b32 s{s_b}, s{s_b}, {BIG}',
                  f's_cmp_eq_u32 s{s_m}, 0', f's_cselect_b32 s{s_b}, {BIG}, s{s_b}', f's_add_u32 s{s_d}, s{s_a}, 65536']
            a.extend(S)
            return
        nr = [160, 168, 176, 208]
        nml, rsl, csk, csv, csq, HB = 216, 220, 224, 232, 128, 136
        VP = [184, 196]
        U, M, t1, t2 = 144, 152, 156, 157
        S = []
        for b in (3, 0, 1, 2):
            S += [f'ds_read_b32 v{nml+b}, v{a_tok} offset:{64*b}', f'ds_read_b32 v{rsl+b}, v{a_tok} offset:{512+64*b}']
            if b == 3:
                for nb in range(2): S.append(f'ds_read_b128 {vr(csk+4*nb,4)}, v{a_csr} offset:{768+256+64*nb}')
                for nb in range(2): S.append(f'ds_read_b32 v{csv+nb}, v{a_csv} offset:{768+512+64*nb}')
            S += [f'ds_read_b128 {vr(nr[b],4)}, v{a_row} offset:{64*b}', f'ds_read_b128 {vr(nr[b]+4,4)}, v{a_row} offset:{512+64*b}']
        for nb in range(2): S.append(f'ds_read_b128 {vr(csq+4*nb,4)}, v{a_csr} offset:{768+64*nb}')
        def kprep(b):
            r = acc(b, 2); L = []
            for k in range(4): L.append(pk('fma', r+2*k, csk+2*k, ('b', nml+b), r+2*k))
            for k in range(4): L.append(pk('mul', r+2*k, r+2*k, ('b', rsl+b)))
            for k in range(4): L.append(cvt(r+k, r+2*k, r+2*k+1))
            return L
        def vprep(b):
            r = acc(b, 4); L = []
            for nb in range(2):
                for p in range(2): L.append(pk('fma', r+4*nb+2*p, nr[b]+2*p, ('b', csv+nb), r+4*nb+2*p))
            for nb in range(2):
                for p in range(2): L.append(pk('mul', r+4*nb+2*p, r+4*nb+2*p, nr[b]+4+2*p))
            for nb in range(2):
                for p in range(2):
                    if b == 3: L.append(cvt(acc(3, 3)+2*nb+p, r+4*nb+2*p, r+4*nb+2*p+1))
                    else: L.append(cvt(VP[nb]+2+2*b+p, r+4*nb+2*p, r+4*nb+2*p+1))
            return L
        def qprep(b):
            r = acc(b, 0); L = []
            for k in range(4): L.append(pk('fma', r+2*k, csq+2*k, ('b', nml+b), r+2*k))
            for k in range(4): L.append(cvt(r+k, r+2*k, r+2*k+1))
            return L
        mfma = E['mfma']
        TM = [mfma(1, b, n) for b in (3, 0, 1, 2) for n in (2, 3, 4, 5)] + [mfma(1, b, 1) for b in range(4)] + [mfma(1, b, 0) for b in range(self.bpos+1, 4)]
        rk, rv = acc(3, 2), acc(3, 4)
        P3 = [f'v_fmac_f32 v{rk+k}, v{csk+k}, v{nml+3}' for k in range(8)] + [f'v_mul_f32 v{rk+k}, v{rsl+3}, v{rk+k}' for k in range(8)] + kprep(3)[8:]
        P3 += [f'v_fmac_f32 v{rv+k}, v{nr[3]+k%4}, v{csv+k//4}' for k in range(8)] + [f'v_mul_f32 v{rv+k}, v{nr[3]+4+k%4}, v{rv+k}' for k in range(8)] + vprep(3)[8:]
        T0 = interleave(TM, S[:14] + P3, per=[2]*24); S = S[14:]
        for k in range(2): T0.append(f'buffer_store_dwordx4 {vr(acc(3,2)+4*k,4)}, v{l16}, {srd(sWS)}, s{s_c} offen offset:{1024*k} sc1')
        for k in range(2): S.append(f'ds_write_b128 v{a_h+1+k}, {vr(acc(3,2)+4*k,4)}')
        for nb in range(2): S.append(f'v_mov_b64 {vr(VP[nb]+8,2)}, {vr(acc(3,3)+2*nb,2)}')
        for b in range(3): S += kprep(b) + vprep(b)
        for b in range(4): S += qprep(b)
        for b in range(4): S.append(f'v_mul_f32 v{rsl+b}, {f2u(LOG2E * 32 ** -0.5)}, v{rsl+b}')
        def logits(b):
            s = nr[b]
            L = [mf16(s, HB if b == 0 else acc(b-1, 2), acc(b, 0), BI0 if b == 0 else BI), mf16(s+4, acc(b, 2), acc(b, 0), BI+4)]
            for p in range(2):
                L += [f'v_max3_f32 v{U+2*b+p}, v{s+2*p}, v{s+2*p+1}, v{s+4+2*p}', f'v_max_f32 v{U+2*b+p}, v{U+2*b+p}, v{s+5+2*p}',
                      f'v_mul_f32 v{U+2*b+p}, v{rsl+b}, v{U+2*b+p}']
            L.append(f'v_max_f32 v{M+b}, v{U+2*b}, v{U+2*b+1}')
            return L
        for b in (1, 2, 3): S += logits(b)
        if self.sch: S = sched(S)
        HL = [f'buffer_load_dwordx4 {vr(HB+4*k,4)}, v{l16}, {srd(sWS)}, s{s_b} offen offset:{1024*k} sc1' for k in range(2)]
        if self.fine == 3: self.aw(T0 + ['s_waitcnt lgkmcnt(0)']); T0 = []; self.stamp(13)
        self.aw(T0 + S[:self.hpos] + HL + S[self.hpos:]); S = []
        if self.fine == 3: self.stamp(14)
        a('s_waitcnt lgkmcnt(0)'); a('s_barrier')
        self.stamp(3)
        L1, L3 = self.lab('hg'), self.lab('hd')
        a('s_waitcnt vmcnt(0)')
        if self.fine == 3: self.stamp(7)
        a(f's_cmp_eq_u32 s{s_wm}, 0'); a(f's_cbranch_scc1 {L1}')
        for k in range(2): a(f'ds_read_b128 {vr(HB+4*k,4)}, v{a_h} offset:{1024*k}')
        a('s_waitcnt lgkmcnt(0)')
        a(f's_branch {L3}')
        a.label(L1)
        self.ll_wait(HL, list(range(HB, HB+8)), t1, t2, 0, pre=True)
        a.label(L3)
        self.stamp(4)
        S += logits(0)
        for nb in range(2): S.append(f'v_mov_b64 {vr(VP[nb],2)}, {vr(HB+4+2*nb,2)}')
        def allred(op, mid):
            L = [sw32(M, M+2), sw32(M+1, M+3), f'{op} v{M}, v{M}, v{M+2}', f'{op} v{M+1}, v{M+1}, v{M+3}', sw16(M, M+1), f'{op} v{M+1}, v{M}, v{M+1}']
            L += mid
            L += [f'v_mov_b32 v{M}, v{M+1}', sw16(M, M+1), f'v_mov_b64 {vr(M+2,2)}, {vr(M,2)}', sw32(M, M+2), sw32(M+1, M+3)]
            return L
        S += allred('v_max_f32', [])
        for b in range(4): S.append(pk('add', U+2*b, U+2*b, ('b', M+b), neg=[0, 1]))
        for k in range(8): S.append(f'v_exp_f32 v{U+k}, v{U+k}')
        for b in range(4): S.append(f'v_add_f32 v{M+b}, v{U+2*b}, v{U+2*b+1}')
        S += allred('v_add_f32', [f'v_rcp_f32 v{M+1}, v{M+1}'])
        for b in range(4): S.append(pk('mul', U+2*b, U+2*b, ('b', M+b)))
        for b in range(4):
            P = nr[b]; O = acc(b, 4)
            for p in range(2): S.append(cvt(U+2*b+p, U+2*b+p, U+2*b+p))
            for blk in range(2):
                for p in range(2): S.append(f'v_and_b32 v{P+2*blk+p}, v{U+2*b+p}, v{MK+2*blk+p}')
            for db in range(2): S.append(mf16(O+4*db, VP[db]+2*b, P))
        S += [f's_add_u32 s{s_b}, s{s_a}, 32768', f's_add_u32 s{s_c}, s{s_d}, 32768']
        for b in range(4):
            O = acc(b, 4)
            for k in range(4): S.append(cvt(O+k, O+2*k, O+2*k+1))
            S.append(f'buffer_store_dwordx4 {vr(O,4)}, v{l16}, {srd(sWS)}, s{(s_a, s_b, s_d, s_c)[b]} offen sc1')
        self.sw(S, name='B finish')
        self.stamp(6)

    def build(self):
        a = self.a
        self.prologue()
        if self.st0 & 1: self.loader(); a.label('L_compute'); self.compute()
        else: self.compute(); self.loader()
        self.helper()
        a.label('L_fin')
        self.stamp(15)
        self.stamp_out()
        if self.probe and len(self.probe) > 3:
            def pub():
                a('s_mov_b64 exec, 1'); a('v_mov_b32 v2, s94'); a('s_not_b32 s93, s93'); a('v_mov_b32 v3, s93')
                a(f'buffer_atomic_umax v2, off, {srd(sDBG)}, 0 offset:12 sc1'); a(f'buffer_atomic_umax v3, off, {srd(sDBG)}, 0 offset:140 sc1')
                a('s_waitcnt vmcnt(0)'); a('v_mov_b32 v2, 1'); a(f'buffer_atomic_add v2, off, {srd(sDBG)}, 0 offset:20 sc1'); a('s_waitcnt vmcnt(0)')
                def w0():
                    self.spin(['s_sleep 8', f'buffer_load_dword v2, off, {srd(sDBG)}, 0 offset:20 sc1'], ['v_cmp_gt_u32 vcc, 0x100, v2'], 4, 10)
                    a(f'buffer_load_dword v2, off, {srd(sDBG)}, 0 offset:12 sc1'); a(f'buffer_load_dword v3, off, {srd(sDBG)}, 0 offset:140 sc1'); a('s_waitcnt vmcnt(0)')
                    a('v_readfirstlane_b32 s94, v2'); a('v_readfirstlane_b32 s93, v3'); a('s_not_b32 s93, s93')
                self.cond(['s_cmp_eq_u32 s2, 0'], w0)
                a('s_mov_b64 exec, -1')
            self.cond([f's_cmp_eq_u32 s{s_wave}, 0'], pub)
        if self.probe:
            def body():
                a('s_sub_u32 s93, s94, s93'); a(f's_mul_i32 s93, s93, {self.probe[2]}'); a('s_min_u32 s93, s93, 100000')
                a(f's_memrealtime s[{s_t+6}:{s_t+7}]'); a('s_waitcnt lgkmcnt(0)'); a(f's_add_u32 s93, s93, s{s_t+6}')
                a.label('L_probe')
                a(f's_memrealtime s[{s_t+6}:{s_t+7}]'); a('s_waitcnt lgkmcnt(0)'); a(f's_sub_u32 s94, s{s_t+6}, s93'); a('s_cmp_lt_i32 s94, 0'); a('s_cbranch_scc1 L_probe')
            self.cond([f's_or_b32 s{s_t}, s2, s{s_wave}', f's_cmp_eq_u32 s{s_t}, 0'], body)
        a('s_waitcnt vmcnt(0)')
        a.label('L_end')
        a('s_endpgm')
        a.pad()
        assert a.maxreg('v') <= 255 and a.maxreg('s') < 96
        return a.text()


def generate(listform=False, **kw):
    body = Gen(**kw).build()
    ref = open('interleave_layers__linear_kernel_hedgehog__sliding_local_dilated__prompt.s.ref').read() if not listform else ''
    head = ''.join(l + '\n' for l in ref.split('\n') if l.startswith(';') and '@launch' not in l)
    if listform: head += f'; @launch kernel={KNAME} grid=(256,1,1) block=(512,1,1) lds={LDS_BYTES}\n'
    else: head += f'; @launch grid=(256,1,1) block=(512,1,1) lds={LDS_BYTES}\n'
    return head + '.amdgcn_target "amdgcn-amd-amdhsa--gfx950"\n' + kernel_head(KNAME) + body + kernel_desc(KNAME, 256, 96, 256)

if __name__ == '__main__':
    kw = eval(sys.argv[2]) if len(sys.argv) > 2 else {}
    open(sys.argv[1], 'w').write(generate(**kw))
```

```python
import sys, struct
sys.path.insert(0, 'work')
from asmlib import *

KNAME = 'interleave_layers__linear_kernel_hedgehog__sliding_local_dilated__prompt_kernel'

WS_CTR, WS_STAMP, WS_ST, WS_CS = 0x0, 0x100000, 0x200000, 0x300000
WS_HALO, WS_KVF, WS_ZP, WS_ZF, WS_KVP = 0x400000, 0x600000, 0x680000, 0x6C0000, 0x800000
WS_RF = 0x700000
WS_XI, WS_OI, WS_END = 0xC00000, 0x1800000, 0x2800000
BIG = 0x40000000
STG = 40960
XOFF = 24576
L_WO = 24576
L_SPARE = 3 * STG
L_P = 155648
P_NM, P_RS, P_CS, P_MODE, P_CNT, P_PHI = L_P, L_P + 512, L_P + 1024, L_P + 2816, L_P + 2832, L_P + 3072
LDS_BYTES = 163840
SCR = 5120
LOG2E = 1.4426950408889634
def f2u(x): return '0x%08x' % struct.unpack('<I', struct.pack('<f', x))[0]

s_fast = 3
pAX, pAW, pPHI, pAWO, pBW, pBWO, pOUT, pDBG, pWS = 4, 6, 8, 10, 14, 16, 18, 20, 22
sWS, sX, sW, sWO, sOUT, sDBG = 24, 28, 32, 36, 40, 44
s_m, s_g, s_wave, s_l = 48, 49, 50, 51
s_t = 52
s_cnt, s_x = 60, 61
s_i = 62
s_stamp = 63
s_rot = 64
s_rot2 = 95
s_ft, s_fn, s_fd, s_po = 90, 91, 88, 87
def srd(b): return 's[%d:%d]' % (b, b + 3)


def sx(d, terms, const=0):
    L = []
    for n, (r, k) in enumerate([t for t in terms if t[1]]):
        t = d if n == 0 else s_x
        if k == 1 and n: t = r
        elif k == 1: L.append(f's_mov_b32 s{t}, s{r}')
        elif k > 0 and k & (k - 1) == 0: L.append(f's_lshl_b32 s{t}, s{r}, {k.bit_length()-1}')
        else: L.append(f's_mul_i32 s{t}, s{r}, {k}')
        if n: L.append(f's_add_u32 s{d}, s{d}, s{t}')
    if const: L.append(f's_add_u32 s{d}, s{d}, {const:#x}' if const > 0 else f's_sub_u32 s{d}, s{d}, {-const:#x}')
    return L

def pkop(r):
    if isinstance(r, tuple):
        return vr(r[1] & ~1, 2), r[1] & 1, r[1] & 1
    assert r % 2 == 0
    return vr(r, 2), 0, 1
def pk(op, d, *src, neg=None):
    o = [pkop(s) for s in src]
    t = 'v_pk_%s_f32 %s, %s' % (op, vr(d, 2), ', '.join(x[0] for x in o))
    lo = [x[1] for x in o]; hi = [x[2] for x in o]
    if any(lo): t += ' op_sel:[%s]' % ','.join(map(str, lo))
    if not all(hi): t += ' op_sel_hi:[%s]' % ','.join(map(str, hi))
    if neg: t += ' neg_lo:[%s] neg_hi:[%s]' % (','.join(map(str, neg)), ','.join(map(str, neg)))
    return t
def cvt(d, a, b): return f'v_cvt_pk_bf16_f32 v{d}, v{a}, v{b}'
def sw16(a, b): return f'v_permlane16_swap_b32 v{a}, v{b}'
def sw32(a, b): return f'v_permlane32_swap_b32 v{a}, v{b}'
def mf16(d, A, B, C=None): return f'v_mfma_f32_16x16x32_bf16 {vr(d,4)}, {vr(A,4)}, {vr(B,4)}, ' + (vr(C, 4) if C is not None else '0')
def mf32(d, A, B, C=None): return f'v_mfma_f32_32x32x16_bf16 {vr(d,16)}, {vr(A,4)}, {vr(B,4)}, ' + (vr(C, 16) if C is not None else '0')


class Gen:
    def __init__(self, prof=0, limit=40000, dist=2, touch=1, bm=25, local=1, pd=6, sch=1, hprio=2, opos=(1, 5), warm=1, nap=1, probe=None, snake=1, rf=2, hq=4, fine=0, llf='sc1', ot=0, hc=None, hpos=90, early=0, w2=0, w0b=0, cpf=0, tr=3, bpos=1, r0=2, rprio=3, w0a=1, pipe=0, b1=0, b2=0, n1=0, n2=0, zw=2, yw=60, thr=None, pw=0, po=0, jit=0, st0=6, vpos=1, fst='sc1', rot0=12, iw=2, oh=(0, 9), dl=6, lprio=3, fpos=24, lf='', lfl=0, xnap=0, ls=0, pf='nt'):
        self.a = Asm()
        assert 16 <= bm < 32 - dl//2 and not early
        self.__dict__.update(prof=prof, limit=limit, dist=dist, touch=touch, bm=bm, local=local, pd=pd, sch=sch, hprio=hprio, opos=opos, warm=warm, nap=nap, probe=probe, snake=snake, rf=rf, hq=hq, fine=fine, llf=llf, ot=ot, hc=hc, hpos=hpos, early=early, w2=w2, w0b=w0b, cpf=cpf, tr=tr, bpos=bpos, r0=r0, rprio=rprio, w0a=w0a, pipe=pipe, b1=b1, b2=b2, n1=n1, n2=n2, zw=zw, yw=yw, thr=thr, pw=pw, po=po, jit=jit, st0=st0, vpos=vpos, fst=fst, rot0=rot0, iw=iw, oh=oh, dl=dl, lprio=lprio, fpos=fpos, lf=lf, lfl=lfl, xnap=xnap, ls=ls, pf=pf)
        self.nlab = 0; self.later = []

    def lab(self, p):
        self.nlab += 1
        return 'L_%s_%d' % (p, self.nlab)

    def aw(self, L):
        self.a.extend(autowait(L))
    def sw(self, L, crit=None, name=''):
        if self.sch:
            L = sched(L, crit)
            if name and __name__ == '__main__': print('sched', name, len(L), 'instructions, about', sched.last_estimate, 'cycles', file=sys.stderr)
        self.a.extend(autowait(L))

    def cond(self, test, body):
        L = self.lab('skip')
        self.a.extend(test); self.a(f's_cbranch_scc0 {L}')
        body()
        self.a.label(L)

    def aside(self, f):
        main, self.a = self.a, Asm()
        f()
        self.later.append(self.a); self.a = main

    def spin(self, issue, check, vt, tag, pre=False, alt=None, checked=False):
        a = self.a
        L, C, T, A, D = (self.lab(x) for x in ('spin', 'chk', 'tmo', 'alt', 'done'))
        count = [f's_add_u32 s{s_cnt}, s{s_cnt}, 1', f's_cmp_lt_u32 s{s_cnt}, {self.limit}', f's_cbranch_scc0 {T}']
        if checked:
            alt = issue; a(f's_cbranch_vccnz {A}')
        else:
            a(f's_mov_b32 s{s_cnt}, 0')
            if alt: a(f's_cmp_eq_u32 s{s_fast}, 1'); a(f's_cbranch_scc0 {A}')
            if pre:
                a(f's_branch {C}')
                a.label(L); a.extend(issue); a.extend(count); a('s_waitcnt vmcnt(0)')
                a.label(C)
                if pre is not True: a(pre)
                a.extend(check)
            else:
                S = autowait(list(issue) + ['s_nop 3'] + list(check)); k = S.index('s_nop 3')
                a.label(L); a.extend(S[:k]); a.extend(count); a.extend(S[k+1:])
            a(f's_cbranch_vccnz {L}')
        a.label(D)
        def rest():
            a = self.a
            if alt:
                L2 = self.lab('spin')
                a.label(A); a(f's_mov_b32 s{s_cnt}, 0')
                a.label(L2); a.extend(alt); a.extend(count); a('s_waitcnt vmcnt(0)' if checked else 's_waitcnt vmcnt(0) lgkmcnt(0)'); a.extend(check)
                a(f's_cbranch_vccnz {L2}'); a(f's_branch {D}')
            a.label(T)
            a('s_waitcnt vmcnt(0)' if checked else 's_waitcnt vmcnt(0) lgkmcnt(0)')
            a(f'v_mov_b32 v{vt}, {1 << tag}')
            a(f'buffer_atomic_or v{vt}, off, {srd(sDBG)}, 0 offset:4 sc1')
            a(f's_branch {D}')
        self.aside(rest)

    def ll_wait(self, loads, regs, t1, t2, tag, pre=False):
        S = []
        h = len(regs) // 2
        for t, R in ((t1, regs[:h]), (t2, regs[h:])):
            S.append(f'v_max_u32 v{t}, v{R[0]}, v{R[1]}')
            for k in range(2, len(R), 2): S.append(f'v_max3_u32 v{t}, v{t}, v{R[k]}, v{R[k+1]}')
        S += [f'v_max_u32 v{t1}, v{t1}, v{t2}', f'v_cmp_eq_u32 vcc, -1, v{t1}']
        loads = [l.replace('sc1', self.llf) for l in loads]
        self.spin(loads, S, t1, tag, pre)

    def flag_set(self, soff, vt, which=3):
        a = self.a
        a('s_mov_b64 exec, 1')
        if which & 1: a(f'buffer_store_dword v{vt}, off, {srd(sWS)}, s{soff} {self.lf}')
        if which == 3 and self.lfl == 1: a(f'buffer_load_dword v220, off, {srd(sWS)}, s{soff} sc1')
        if which == 3 and self.lfl == 2: which = 1
        if which & 2: a(f'buffer_store_dword v{vt}, off, {srd(sWS)}, s{soff+1} sc1')
        a('s_mov_b64 exec, -1')
    def flag_addr(self, va, vt, soff, remote=False):
        L = [f'v_bfe_u32 v{va}, v1, 1, 3', f'v_and_b32 v{vt}, 1, v1', f'v_lshl_add_u32 v{va}, v{va}, 2, v{vt}']
        if remote: return L + [f'v_lshlrev_b32 v{va}, 7, v{va}']
        return L + [f's_cmp_eq_u32 s{s_fast}, 1', f's_cselect_b32 s{s_t}, {self.ls}, 5', f's_cselect_b32 s{s_t+1}, 0, {WS_RF}',
                    f's_lshl_b32 s{soff}, s{soff}, s{s_t}', f's_add_u32 s{soff}, s{soff}, s{s_t+1}', f's_add_u32 s{s_t}, s{s_t}, 2',
                    f'v_lshlrev_b32 v{va}, s{s_t}, v{va}']
    def flag_load(self, soff, va, vt, fl='sc1'): return f'buffer_load_dword v{vt}, v{va}, {srd(sWS)}, s{soff} offen {fl}'
    def flag_wait(self, soff, va, vt, tag, pre=False, nap=0, own=False, checked=False):
        z = [f's_sleep {nap}'] if nap else []
        self.spin(z + [self.flag_load(soff, va, vt, self.pf if own else 'sc1')], [f'v_cmp_eq_u32 vcc, 0, v{vt}'], vt, tag, pre,
                  z + [self.flag_load(soff, va, vt)] if own else None, checked)
    def get_mode(self, vt):
        self.a.extend([f'v_mov_b32 v{vt}, {P_MODE}', f'ds_read_b32 v{vt}, v{vt}', 's_waitcnt lgkmcnt(0)', f'v_readfirstlane_b32 s{s_fast}, v{vt}'])

    def jitter(self, k):
        a = self.a
        L = self.lab('jit')
        a.extend([f's_lshl_b32 s{s_t+6}, s2, 3', f's_add_u32 s{s_t+6}, s{s_t+6}, s{s_wave}', f's_lshl_b32 s{s_t+6}, s{s_t+6}, 2', f's_add_u32 s{s_t+6}, s{s_t+6}, s{s_l}',
                  f's_add_u32 s{s_t+6}, s{s_t+6}, {(k*7919 + self.jit*104729) & 0xffffff}', f's_mul_i32 s{s_t+6}, s{s_t+6}, 0x9e3779b1', f's_lshr_b32 s{s_t+7}, s{s_t+6}, 13',
                  f's_xor_b32 s{s_t+6}, s{s_t+6}, s{s_t+7}', f's_mul_i32 s{s_t+6}, s{s_t+6}, 0x85ebca6b', f's_lshr_b32 s{s_t+7}, s{s_t+6}, 29',
                  f's_lshr_b32 s{s_t+6}, s{s_t+6}, 8', f's_and_b32 s{s_t+6}, s{s_t+6}, 127', f's_lshr_b32 s{s_t+6}, s{s_t+6}, s{s_t+7}'])
        a.label(L)
        a.extend(['s_sleep 1', f's_sub_u32 s{s_t+6}, s{s_t+6}, 1', f's_cbranch_scc0 {L}'])
    def stamp(self, k):
        if self.jit: self.jitter(k)
        if self.probe:
            for n, (pl, pk_) in enumerate(self.probe[:2]):
                if pk_ == k:
                    def body():
                        self.a(f's_memrealtime s[{s_t+6}:{s_t+7}]'); self.a('s_waitcnt lgkmcnt(0)'); self.a(f's_mov_b32 s{93+n}, s{s_t+6}')
                    self.cond([f's_cmp_eq_u32 s{s_l}, {pl}'], body)
        if not self.prof or self.prof >= 5: return
        a = self.a
        a(f'{"s_memtime" if self.prof == 4 else "s_memrealtime"} s[{s_t+6}:{s_t+7}]')
        a(f's_mov_b32 s{s_stamp}, m0')
        a(f's_lshl_b32 m0, s{s_l}, 4'); a(f's_add_u32 m0, m0, {k}')
        a('s_waitcnt lgkmcnt(0)')
        a(f'v_writelane_b32 v255, s{s_t+6}, m0')
        a(f's_mov_b32 m0, s{s_stamp}')
    def stamp_out(self):
        if not self.prof: return
        a = self.a
        a.extend(sx(s_t, [(2, 2048), (s_wave, 256)], WS_STAMP))
        a('v_lshlrev_b32 v254, 2, v1')
        a(f'buffer_store_dword v255, v254, {srd(sWS)}, s{s_t} offen')

    def prologue(self):
        a = self.a
        a('s_cmp_ge_u32 s2, 256'); a('s_cbranch_scc1 L_end')
        a('s_load_dwordx16 s[4:19], s[0:1], 0')
        a('s_load_dwordx4 s[20:23], s[0:1], 64')
        a('v_lshrrev_b32 v2, 6, v0')
        a(f'v_readfirstlane_b32 s{s_wave}, v2')
        a('v_and_b32 v1, 63, v0')
        a(f's_and_b32 s{s_rot}, s2, 3'); a(f's_lshl_b32 s{s_rot}, s{s_rot}, 2')
        a(f's_bfe_u32 s{s_t}, s2, 0x20003'); a(f's_add_u32 s{s_m}, s{s_rot}, s{s_t}')
        a(f's_mov_b32 s{s_rot}, s{s_m}')
        a(f's_and_b32 s{s_rot2}, s2, 4'); a(f's_lshl_b32 s{s_rot2}, s{s_rot2}, 1')
        a(f's_lshr_b32 s{s_g}, s2, 5'); a(f's_add_u32 s{s_g}, s{s_g}, s{s_rot2}')
        a(f's_mov_b32 s{s_l}, 0'); a(f's_mov_b32 s{s_fast}, 0')
        for b, n in ((sWS, WS_END), (sX, 2048*1024*2), (sW, 1024*3072*2), (sWO, 1024*1024*2), (sOUT, WS_END), (sDBG, 256)):
            a(f's_mov_b32 s{b+2}, {n}'); a(f's_mov_b32 s{b+3}, 0x20000')
        if self.prof: a('v_mov_b32 v255, 0')
        self.stamp(0)
        a(f's_cmp_ge_u32 s{s_wave}, 6'); a('s_cbranch_scc1 L_helper')
        if self.st0 & 1: a(f's_cmp_lt_u32 s{s_wave}, 4'); a('s_cbranch_scc1 L_compute')
        else: a(f's_cmp_ge_u32 s{s_wave}, 4'); a('s_cbranch_scc1 L_loader')
    def pointers(self):
        a = self.a
        a('s_waitcnt lgkmcnt(0)')
        for b, p in ((sWS, pWS), (sX, pAX), (sW, pAW), (sWO, pAWO), (sOUT, pWS), (sDBG, pDBG)):
            a(f's_mov_b64 s[{b}:{b+1}], s[{p}:{p+1}]')

    def trickle_setup(self):
        a = self.a
        a(f's_mov_b64 s[{sOUT}:{sOUT+1}], s[{sWO}:{sWO+1}]'); a(f's_mov_b32 s{sOUT+2}, {1 << 21}')
        a.extend(sx(s_ft, [(2, 8192), (s_wave, 2048)], -8192))
        n1 = -(-16 // self.tr)
        a(f's_cmp_eq_u32 s{s_l}, 0'); a(f's_cselect_b32 s{s_fn}, 12, {n1}')
        a(f's_cmp_lt_u32 s{s_l}, {2 if self.warm else 0}'); a(f's_cselect_b32 s{s_fn}, s{s_fn}, 0')
    def trickle_lines(self, n):
        a = self.a
        a(f's_sub_u32 s{s_t}, s{sOUT+2}, {128*n}'); a(f's_min_u32 s{s_t}, s{s_t}, s{s_ft}')
        for r in range(n): a(f's_buffer_load_dwordx2 s[{s_fd}:{s_fd+1}], {srd(sOUT)}, s{s_t} offset:{128*r+60}')
        a(f's_add_u32 s{s_ft}, s{s_ft}, {128*n}')
    def trickle(self, i):
        a = self.a
        n1 = -(-16 // self.tr)
        def nxt():
            a(f's_mov_b64 s[{sOUT}:{sOUT+1}], s[{pBW}:{pBW+1}]'); a(f's_mov_b32 s{sOUT+2}, {3 << 21}')
            a.extend(sx(s_ft, [(2, 24576), (s_wave, 6144)], -24576))
        def body():
            if isinstance(i, str): self.cond([f's_cmp_eq_u32 {i}, {n1}'], nxt)
            elif i == n1: nxt()
            self.trickle_lines(self.tr)
        self.cond([f's_cmp_gt_u32 s{s_fn}, {i}'], body)
    def trickle_rest(self, part):
        rest = 48 - self.tr * (12 - -(-16 // self.tr))
        n = rest
        self.cond([f's_cmp_eq_u32 s{s_fn}, 12'], lambda: self.trickle_lines(n))

    def warm_w(self):
        a = self.a
        if not self.pw: return
        a(f's_and_b32 s{s_t}, s{s_m}, 3'); a.extend(sx(s_t+1, [(s_t, 16*6144), (s_wave, 4*6144), (s_g, 128)], -16*6144))
        a(f's_and_b32 s{s_t+2}, s{s_g}, 7')
        for st in range(1, 1 + self.pw):
            a(f's_cmp_le_u32 s{s_t+2}, {st-1}'); a(f's_addc_u32 s{s_t}, s{s_rot2}, {st-1}')
            a(f's_mul_i32 s{s_t}, s{s_t}, {64*6144}'); a(f's_add_u32 s{s_t}, s{s_t}, s{s_t+1}')
            for k in range(12): a(f's_buffer_load_dwordx2 s[{s_fd}:{s_fd+1}], {srd(sW)}, s{s_t} offset:{2048*k+60}')
    def warm_wo_setup(self):
        a = self.a
        a(f's_and_b32 s{s_t}, s{s_m}, 3'); a.extend(sx(s_po, [(s_t, 256*2048), (s_wave, 64*2048), (s_g, 128)], -256*2048))
    def warm_wo(self, n):
        a = self.a
        def body():
            for k in range(n): a(f's_buffer_load_dwordx2 s[{s_fd}:{s_fd+1}], {srd(sWO)}, s{s_po} offset:{2048*k+60}')
            a(f's_add_u32 s{s_po}, s{s_po}, {2048*n}'); a(f's_min_u32 s{s_po}, s{s_po}, {(1 << 21) - 2048*n}')
        if self.po: self.cond([f's_lshr_b32 s{s_t}, {self.po}, s{s_l}', f's_bitcmp1_b32 s{s_t}, 0'], body)

    def w_dma_offsets(self, dw, idx, t0, t1, t2):
        a = self.a
        a(f'v_lshrrev_b32 v{t0}, 3, v1'); a(f'v_mul_u32_u24 v{t0}, 6144, v{t0}')
        a(f'v_and_b32 v{t1}, 7, v1'); a(f'v_bfe_u32 v{t2}, v1, 4, 1'); a(f'v_lshlrev_b32 v{t2}, 1, v{t2}')
        a(f'v_xor_b32 v{t1}, v{t1}, v{t2}'); a(f'v_xor_b32 v{t2}, 4, v{t1}')
        a(f'v_lshl_add_u32 v{t1}, v{t1}, 4, v{t0}'); a(f'v_lshl_add_u32 v{t2}, v{t2}, 4, v{t0}')
        d = 8*6144 - 1024
        a(f's_lshl_b32 s{s_t+1}, s{s_g}, 7'); a(f'v_add_u32 v{t1}, s{s_t+1}, v{t1}'); a(f's_add_u32 s{s_t+1}, s{s_t+1}, {d}'); a(f'v_add_u32 v{t2}, s{s_t+1}, v{t2}')
        a(f's_cmp_eq_u32 s{idx}, 0')
        for t in range(3):
            c = [((3*w + t) & 1)*32*6144 + ((3*w + t) >> 1)*2048 for w in range(2)]
            a(f's_mov_b32 s{s_t}, {c[1]}'); a(f's_cmov_b32 s{s_t}, {c[0]}')
            a(f'v_add_u32 v{dw+4*t}, s{s_t}, v{t1}'); a(f'v_add_u32 v{dw+4*t+1}, s{s_t}, v{t2}')
            a(f'v_add_u32 v{dw+4*t+2}, {2*d}, v{dw+4*t}'); a(f'v_add_u32 v{dw+4*t+3}, {2*d}, v{dw+4*t+1}')

    def w_frag_addr(self, aw, head_sreg, base, t0, t1, t2, nb_list=(0, 1)):
        L = [f'v_lshrrev_b32 v{t2}, 4, v1', f'v_bfe_u32 v{t0}, v1, 2, 2', f'v_lshl_add_u32 v{t1}, v{t2}, 3, v{t0}',
             f'v_lshrrev_b32 v{t0}, 1, v{t0}', f'v_and_b32 v{t2}, 1, v{t2}', f'v_lshl_add_u32 v{t0}, v{t2}, 1, v{t0}']
        if head_sreg is not None: L += [f's_lshl_b32 s{s_t}, s{head_sreg}, 1', f'v_xor_b32 v{t0}, s{s_t}, v{t0}']
        L += [f'v_and_b32 v{t2}, 3, v1', f'v_lshlrev_b32 v{t2}, 3, v{t2}', f'v_lshl_add_u32 v{t2}, v{t1}, 7, v{t2}']
        if base: L.append(f'v_add_u32 v{t2}, {base}, v{t2}')
        for k, nb in enumerate(nb_list): L += [f'v_xor_b32 v{t1}, {nb}, v{t0}', f'v_lshl_add_u32 v{aw+k}, v{t1}, 5, v{t2}']
        return L

    def reduce_job(self, after_by=None, after_fill=None):
        a = self.a
        T = 200
        vA, vZ, vO, t1, t2 = T, T+1, T+2, T+3, T+4
        s_a, s_b, s_c, s_d, s_e = 80, 81, 82, 83, 84
        a.extend(sx(s_t, [(s_l, 32), (s_g, 4), (s_wave, 1)], -4))
        a.extend(sx(s_a, [(s_t, 32768), (s_m, 128)], WS_KVP)); a(f's_add_u32 s{s_b}, s{s_a}, 16384')
        a.extend(sx(s_d, [(s_t, 2048), (s_m, 128)], WS_KVF))
        a.extend(sx(s_c, [(s_t, 1024)], WS_ZP)); a.extend(sx(s_e, [(s_t, 64)], WS_ZF))
        a(f's_and_b32 s{s_t}, s{s_t}, 1'); a(f's_xor_b32 s{s_t+1}, s{s_m}, s{s_g}'); a(f's_or_b32 s{s_t}, s{s_t}, s{s_t+1}')
        a(f's_cselect_b32 s{s_c}, {BIG}, s{s_c}'); a(f's_cselect_b32 s{s_e}, {BIG}, s{s_e}')
        a(f'v_and_b32 v{t1}, 7, v1'); a(f'v_lshlrev_b32 v{t1}, 4, v{t1}')
        a(f'v_lshrrev_b32 v{t2}, 3, v1'); a(f'v_lshl_add_u32 v{vA}, v{t2}, 11, v{t1}')
        a(f'v_lshlrev_b32 v{vZ}, 4, v1')
        a(f'v_lshrrev_b32 v{t2}, 4, v1'); a(f'v_lshl_add_u32 v{vO}, v{t2}, 2, v{t1}')
        D = T + 8; U = 160
        def late_fill():
            for k in range(4): a(f'v_mov_b32 v{D+k}, -1')
            fill = f'buffer_store_dwordx4 {vr(D,4)}, v{vZ}, {srd(sWS)}, s{s_t} offen'
            a.extend(sx(s_t, [(s_g, 131072), (s_wave, 32768), (s_m, 2048)], WS_KVP + (1 << 21) - 4*32768)); a(fill + ' sc1'); a(fill + ' offset:1024 sc1')
            a(f's_lshr_b32 s{s_t+1}, s{s_wave}, 1'); a(f's_and_b32 s{s_t+2}, s{s_wave}, 1')
            a.extend(sx(s_t, [(s_t+2, 1 << 20), (s_m, 1 << 16), (s_g, 4096), (s_t+1, 2048)], WS_HALO - 2*2048)); a(fill + ' sc1'); a(fill + ' offset:1024 sc1')
            a.extend(sx(s_t, [(s_wave, 262144), (s_m, 16384), (s_g, 1024)], WS_ST - 3*262144))
            a.extend(sx(s_t+3, [(s_g, 16384), (s_m, 1024)], WS_CS + 262144))
            a(f's_cmp_eq_u32 s{s_wave}, 7'); a(f's_cselect_b32 s{s_t}, s{s_t+3}, s{s_t}'); a(fill + ' sc1')
            a('s_mov_b64 exec, 0xff')
            a(f's_add_u32 s{s_t}, s{s_d}, {1 << 17}'); a(fill + ' sc1')
            a(f's_add_u32 s{s_t}, s{s_e}, {1 << 12}'); a(fill + ' sc1')
            a.extend(sx(s_t, [(s_g, 4096), (s_t+1, 2048), (s_m, 128)], WS_ZP + (1 << 16) - 2*2048)); a(fill + ' sc1')
            a('s_mov_b64 exec, -1')
            a('s_waitcnt vmcnt(0)')
        self.cond([f's_cmp_eq_u32 s{s_l}, 0'], late_fill)
        a('s_barrier')
        if self.jit: self.jitter(20)
        if self.rprio: a(f's_setprio {self.rprio}')
        a('s_barrier')
        if after_by and self.w0a == 0: after_by()
        if self.b1: a(f's_sleep {self.b1}')
        self.ll_wait(([f's_sleep {self.n1}'] if self.n1 else []) + [f'buffer_load_dwordx4 {vr(D,4)}, v{vA}, {srd(sWS)}, s{s_a} offen sc1',
                      f'buffer_load_dwordx4 {vr(D+4,4)}, v{vA}, {srd(sWS)}, s{s_b} offen sc1',
                      f'buffer_load_dwordx4 {vr(D+8,4)}, v{vZ}, {srd(sWS)}, s{s_c} offen sc1',
                      f'buffer_load_dwordx4 {vr(D+12,4)}, v{vZ}, {srd(sWS)}, s{s_c} offen offset:1024 sc1'],
                     list(range(D, D+16)), t1, t2, 1)
        self.stamp(5)
        S = []
        for z in range(2):
            d, u = D + 8*z, U + 16*z
            for k in range(8): S += [f'v_lshlrev_b32 v{u+2*k}, 16, v{d+k}', f'v_and_b32 v{u+2*k+1}, 0xffff0000, v{d+k}']
            for k in range(4): S.append(pk('add', u+2*k, u+2*k, u+8+2*k))
            for k in range(4): S.append(sw32(u+k, u+4+k))
            S += [pk('add', u, u, u+4), pk('add', u+2, u+2, u+6), sw16(u, u+2), sw16(u+1, u+3), pk('add', u, u, u+2)]
            for k in range(2): S.append(f'v_add_f32_dpp v{u+k}, v{u+k}, v{u+k} row_ror:8 row_mask:0xf bank_mask:0xf')
            S.append(cvt(u, u, u+1))
        S += ['s_mov_b32 exec_lo, 0x00ff00ff', 's_mov_b32 exec_hi, 0x00ff00ff',
              f'buffer_store_dword v{U}, v{vO}, {srd(sWS)}, s{s_d} offen sc1',
              f'buffer_store_dword v{U+16}, v{vO}, {srd(sWS)}, s{s_e} offen sc1', 's_mov_b64 exec, -1']
        self.sw(S)
        if self.rprio: a('s_setprio 0')
        if after_by and self.w0a == 1: after_by()
        if self.zw: a(f's_waitcnt vmcnt({12 if (after_by and self.w0a == 1 and self.zw == 1) else 0})')
        a('s_barrier')
        if after_by and self.w0a == 2: after_by()

    def loader(self):
        a = self.a
        a.label('L_loader')
        dx, dw, dwo, t0, t1, t2, vf = 8, 16, 28, 2, 3, 4, 5
        s_ld, s_kx, s_kw, s_slot, s_mx, s_xstep, s_wo, s_wm0, s_sx, s_sw, s_xb, s_fl, s_mw = range(65, 78)
        a(f's_sub_u32 s{s_ld}, s{s_wave}, 4')
        self.w_dma_offsets(dw, s_ld, t0, t1, t2)
        a(f's_mul_i32 s{s_mw}, s{s_ld}, 12288')
        a(f's_lshl_b32 s{s_mx}, s{s_ld}, 13'); a(f's_add_u32 s{s_mx}, s{s_mx}, {XOFF}')
        s_flip = 78
        def nxt(r):
            return [f's_cmp_eq_u32 s{r}, s{s_flip}', f's_addc_u32 s{r}, s{r}, 1', f's_and_b32 s{r}, s{r}, 15']
        def wst(slot=None):
            L = []
            for j in range(12):
                if j == 0: L.append(f's_add_u32 m0, s{s_mw}, ' + (f's{s_slot}' if slot is None else str(slot*STG)))
                elif j % 4 == 0: L.append('s_add_u32 m0, m0, 4096')
                L.append(f'buffer_load_dwordx4 v{dw+j}, {srd(sW)}, s{s_kw} offen offset:{1024*(j%4)} lds')
            a.extend(L + nxt(s_sw) + [f's_mul_i32 s{s_kw}, s{s_sw}, {64*6144}'])
        def xst(slot=None):
            L = []
            for j in range(8):
                if j == 0: L.append(f's_add_u32 m0, s{s_mx}, ' + (f's{s_slot}' if slot is None else str(slot*STG)))
                elif j == 4: L.append('s_add_u32 m0, m0, 4096')
                L.append(f'buffer_load_dwordx4 v{dx+j}, {srd(sX)}, s{s_kx} offen offset:{1024*(j%4)} sc1 lds')
            a.extend(L + nxt(s_sx) + [f's_mul_i32 s{s_kx}, s{s_sx}, s{s_xstep}', f's_add_u32 s{s_kx}, s{s_kx}, s{s_xb}'])
        def kstart(first):
            if first:
                a(f's_and_b32 s{s_sx}, s{s_m}, {self.rot0}'); a(f's_mov_b32 s{s_sw}, s{s_sx}'); a(f's_mov_b32 s{s_flip}, 16')
            else:
                a(f's_add_u32 s{s_sw}, s{s_rot2}, 15'); a(f's_and_b32 s{s_sw}, s{s_sw}, 15'); a(f's_mov_b32 s{s_sx}, s{s_sw}')
                a(f's_add_u32 s{s_flip}, s{s_g}, 15'); a(f's_and_b32 s{s_flip}, s{s_flip}, 15'); a.extend(nxt(s_sx))
            a(f's_mul_i32 s{s_kw}, s{s_sw if first else s_g}, {64*6144}'); a(f's_mul_i32 s{s_kx}, s{s_sx}, s{s_xstep}'); a(f's_add_u32 s{s_kx}, s{s_kx}, s{s_xb}')
        a(f's_lshl_b32 s{s_xb}, s{s_m}, 18'); a(f's_mov_b32 s{s_xstep}, 128'); kstart(True)
        self.pointers()
        wst(0)
        a(f'v_lshrrev_b32 v{t0}, 3, v1'); a(f'v_and_b32 v{t1}, 7, v1')
        a(f'v_lshrrev_b32 v{t2}, 4, v1'); a(f'v_xor_b32 v{t1}, v{t1}, v{t2}'); a(f'v_xor_b32 v{t2}, 4, v{t1}')
        a(f's_lshl_b32 s{s_t}, s{s_ld}, 17'); a(f'v_lshl_add_u32 v{t0}, v{t0}, 11, s{s_t}')
        a(f'v_lshl_add_u32 v{t1}, v{t1}, 4, v{t0}'); a(f'v_lshl_add_u32 v{t2}, v{t2}, 4, v{t0}')
        for j in range(8): a(f'v_add_u32 v{dx+j}, {j*16384 - 1024*(j%4)}, v{t1 if j % 2 == 0 else t2}')
        xst(0); wst(1)
        a(f'v_lshrrev_b32 v{t0}, 5, v1'); a(f'v_lshlrev_b32 v{t0}, 4, v{t0}')
        a(f'v_bfe_u32 v{t1}, v1, 3, 2'); a(f'v_add_u32 v{t0}, v{t0}, v{t1}')
        a(f's_lshl_b32 s{s_t}, s{s_g}, 7'); a(f'v_lshl_add_u32 v{t0}, v{t0}, 11, s{s_t}')
        a(f'v_and_b32 v{t1}, 7, v1'); a(f'v_bfe_u32 v{t2}, v1, 4, 1'); a(f'v_lshlrev_b32 v{t2}, 1, v{t2}')
        a(f'v_xor_b32 v{t1}, v{t1}, v{t2}'); a(f'v_xor_b32 v{t2}, 4, v{t1}')
        a(f'v_lshl_add_u32 v{t1}, v{t1}, 4, v{t0}'); a(f'v_lshl_add_u32 v{t2}, v{t2}, 4, v{t0}')
        for G in range(4): a(f'v_add_u32 v{dwo+G}, {G*4*2048 - 1024*G}, v{t1 if G % 2 == 0 else t2}')
        a('s_waitcnt vmcnt(12)'); a('s_barrier')
        xst(1); wst(2)
        a('s_waitcnt vmcnt(12)'); a('s_barrier')
        xst(2)
        a.label('L_ld_enter')
        a(f's_mov_b32 s{s_i}, 0'); a(f's_mov_b32 s{s_slot}, 0')
        self.trickle_setup(); self.warm_wo_setup()
        def loop(name, n, extra):
            a.label(name)
            xst(); wst()
            if extra:
                a(f's_add_u32 s{s_t}, s{s_i}, 1'); a(f's_and_b32 s{s_t}, s{s_t}, 7')
                a.extend(sx(s_wo, [(s_rot2, 2), (s_t, 1)], 24)); a(f's_and_b32 s{s_wo}, s{s_wo}, 31')
                a.extend(sx(s_wm0, [(s_wo, 65536), (s_ld, 2*4*2048)]))
                a.extend(sx(s_wo, [(s_t, 4096), (s_ld, 2048)], L_SPARE)); a(f's_mov_b32 m0, s{s_wo}')
                for G in range(2): a(f'buffer_load_dwordx4 v{dwo+G}, {srd(sWO)}, s{s_wm0} offen offset:{1024*G} lds')
            self.trickle(f's{s_i}'); self.warm_wo(5)
            a(f's_add_u32 s{s_slot}, s{s_slot}, {STG}'); a(f's_cmp_eq_u32 s{s_slot}, {3*STG}'); a(f's_cselect_b32 s{s_slot}, 0, s{s_slot}')
            a(f's_add_u32 s{s_i}, s{s_i}, 1'); a(f's_cmp_lt_u32 s{s_i}, {n}')
            a(f's_waitcnt vmcnt({22 if extra else 20})')
            a('s_barrier')
            a(f's_cbranch_scc1 {name}')
        if self.early: loop('L_ld_loop', 5, False); loop('L_ld_loop2', 13, True)
        else: loop('L_ld_loop', 13, False)
        def wo(p0, n, thr=None):
            a.extend(sx(s_wm0, [(s_ld, 4096)], L_WO + 4096*p0))
            a.extend(sx(s_wo, [(s_rot2, 2), (s_ld, 1)], p0)); a(f's_and_b32 s{s_wo}, s{s_wo}, 31'); a(f's_lshl_b32 s{s_wo}, s{s_wo}, 16')
            L = self.lab('wo')
            a(f's_mov_b32 s{s_i}, 0')
            a.label(L)
            if thr is not None: a(f's_waitcnt vmcnt({thr})')
            a(f's_mov_b32 m0, s{s_wm0}')
            a(f's_add_u32 s{s_wm0}, s{s_wm0}, 8192')
            for G in range(4): a(f'buffer_load_dwordx4 v{dwo+G}, {srd(sWO)}, s{s_wo} offen offset:{1024*G} lds')
            a(f's_add_u32 s{s_wo}, s{s_wo}, 131072'); a(f's_and_b32 s{s_wo}, s{s_wo}, 0x1fffff')
            a(f's_add_u32 s{s_i}, s{s_i}, 1'); a(f's_cmp_lt_u32 s{s_i}, {n//2}'); a(f's_cbranch_scc1 {L}')
        if self.early:
            wo(4, 10)
            a('s_waitcnt vmcnt(20)'); a('s_barrier')
            wo(14, 10)
            a('s_barrier')
            wo(0, 4)
        else:
            wo(24, 8)
            a('s_waitcnt vmcnt(16)'); a('s_barrier')
            wo(4, 10)
            a('s_barrier')
            wo(14, 10, self.thr); wo(0, 4, self.thr)
        if self.jit: self.jitter(23)
        a.extend(sx(s_fl, [(s_l, 8192), (s_m, 256), (s_rot2, 16), (s_ld, 8)], 4096))
        self.get_mode(t0); a.extend(self.flag_addr(vf, t0, s_fl))
        a.extend(sx(s_xb, [(s_l, 1 << 22), (s_m, 1 << 18)], WS_XI))
        a(f's_bitcmp0_b32 s{s_l}, 0')
        a(f's_cselect_b64 s[{sW}:{sW+1}], s[{pBW}:{pBW+1}], s[{pAW}:{pAW+1}]')
        a(f's_cselect_b64 s[{sWO}:{sWO+1}], s[{pBWO}:{pBWO+1}], s[{pAWO}:{pAWO+1}]')
        a(f's_mov_b64 s[{sX}:{sX+1}], s[{pWS}:{pWS+1}]'); a(f's_mov_b32 s{sX+2}, {WS_END}')
        a(f's_mov_b32 s{s_xstep}, 16384'); kstart(False)
        a(f's_lshl_b32 s{s_t}, s{s_ld}, 13'); a(f'v_lshl_add_u32 v{t0}, v1, 4, s{s_t}')
        for j in range(8): a(f'v_add_u32 v{dx+j}, {4096*(j//4)}, v{t0}')
        a(f's_bitcmp1_b32 s{s_l}, 0'); a('s_cbranch_scc1 L_ld_B')
        self.reduce_job(lambda: wst(0))
        a('s_branch L_ld_join')
        a.label('L_ld_B')
        if self.w0b == 0: self.cond([f's_cmp_lg_u32 s{s_l}, 3'], lambda: wst(0))
        a('s_barrier')
        if self.w0b == 1: self.cond([f's_cmp_lg_u32 s{s_l}, 3'], lambda: wst(0))
        a.label('L_ld_join')
        a('s_waitcnt vmcnt(0)'); a('s_barrier')
        a(f's_cmp_eq_u32 s{s_l}, 3'); a('s_cbranch_scc1 L_fin')
        self.trickle_rest(1); self.warm_w()
        a(f's_add_u32 s{s_l}, s{s_l}, 1')
        if self.jit: self.jitter(21)
        a('s_barrier')
        if self.jit: self.jitter(22)
        wst(1)
        if self.w2 == 2: wst(2)
        a('s_barrier')
        if self.w2 == 0: wst(2)
        if self.lprio: a(f's_setprio {self.lprio}')
        self.flag_wait(s_fl, vf, t0, 2, nap=self.xnap, own=True)
        self.stamp(1)
        xst(1); xst(2)
        if self.lprio: a('s_setprio 0')
        a('s_waitcnt vmcnt(8)'); a('s_barrier')
        if self.w2 == 1: wst(2)
        a('s_branch L_ld_enter')

    def helper(self):
        a = self.a
        a.label('L_helper')
        t0, t1, t2, t3, l4, l16, ones, a_st, a_cs, v_st, v_cs, aw, vtw, vto, vd = 2, 3, 4, 5, 6, 7, 8, 12, 13, 14, 15, 16, 18, 19, 20
        F, D, SA, SC = 32, 96, 128, 160
        s_h, s_tw, s_a, s_b, s_trot = 65, 66, 67, 68, 69
        xm = 4; s_r = 70; vrf, vfl, aw2, dw = 21, 22, 24, 80
        a(f's_sub_u32 s{s_h}, s{s_wave}, 6')
        a(f'v_lshlrev_b32 v{l4}, 2, v1'); a(f'v_lshlrev_b32 v{l16}, 4, v1')
        a.extend(self.w_frag_addr(aw, s_h, 0, t0, t1, t2))
        for k in range(2): a(f'v_add_u32 v{aw2+k}, {L_SPARE}, v{aw+k}')
        a(f's_and_b32 s{s_t+1}, s{s_m}, {15 - self.rot0}'); a(f's_cmp_eq_u32 s{s_t+1}, 3'); a(f's_cselect_b32 s{s_t+1}, 0, s{s_t+1}'); a(f's_mul_i32 s{s_t+1}, s{s_t+1}, {STG}')
        for k in range(2): a(f'v_add_u32 v{aw+k}, s{s_t+1}, v{aw+k}')
        a.extend(self.flag_addr(vrf, t0, None, remote=True))
        a(f'v_lshrrev_b32 v{t0}, 5, v1'); a(f'v_and_b32 v{t1}, 31, v1'); a(f'v_lshlrev_b32 v{t1}, 4, v{t1}')
        a(f'v_lshl_add_u32 v{v_st}, v{t0}, 10, v{t1}')
        a(f'v_and_b32 v{t2}, 24, v1'); a(f'v_and_b32 v{t3}, 3, v1'); a(f'v_lshl_add_u32 v{t2}, v{t3}, 1, v{t2}'); a(f'v_add_u32 v{t2}, v{t2}, v{t0}')
        a.extend(sx(s_t, [(s_h, 256)], P_NM)); a(f'v_lshl_add_u32 v{a_st}, v{t2}, 3, s{s_t}')
        a(f'v_mov_b32 v{t2}, {BIG}'); a(f'v_cmp_gt_u32 vcc, 384, v{t1}'); a(f'v_cndmask_b32 v{v_cs}, v{t2}, v{v_st}, vcc')
        a.extend(sx(s_t, [(s_h, 384)], P_CS)); a(f'v_lshl_add_u32 v{t1}, v{t0}, 3, v{t1}'); a(f'v_add_u32 v{a_cs}, s{s_t}, v{t1}')
        self.pointers()

        def touch_setup(first=False):
            if not self.touch: return
            c, gt = s_t + 2, s_t + 3
            def cls(b):
                a(f's_lshr_b32 s{gt}, s{b}, 7'); a(f's_sub_u32 s{gt}, 3, s{gt}'); a(f's_and_b32 s{gt}, s{gt}, 7')
                a(f's_sub_u32 s{c}, s{s_g}, s{gt}'); a(f's_and_b32 s{c}, s{c}, 7'); a(f's_sub_u32 s{c}, s{c}, 1')
                a(f's_and_b32 s{s_t}, s{s_g}, 8'); a(f's_add_u32 s{gt}, s{gt}, s{s_t}'); a(f's_lshl_b32 s{gt}, s{gt}, 7')
            a(f's_and_b32 s{s_t+4}, s{s_m}, {xm-1}'); a(f's_lshl_b32 s{s_t+4}, s{s_t+4}, 1'); a(f's_add_u32 s{s_t+4}, s{s_t+4}, s{s_h}')
            cls(sW)
            if first: a(f's_or_b32 s{s_rot}, s{s_m}, 3'); a(f's_and_b32 s{s_rot}, s{s_rot}, {self.rot0}'); a(f's_mov_b32 s{s_trot}, 0')
            else: a(f's_mov_b32 s{s_rot}, s{s_rot2}'); a(f's_bfe_u32 s{s_trot}, s{gt}, 0x30007')
            a(f's_cmp_ge_u32 s{c}, 3'); a(f's_cselect_b32 s{s_t}, {32*6144 - 3*2048}, 0'); a(f's_add_u32 s{gt}, s{gt}, s{s_t}')
            a(f's_lshl_b32 s{s_t}, s{c}, 11'); a(f's_add_u32 s{gt}, s{gt}, s{s_t}')
            a(f's_mul_i32 s{s_t}, s{s_t+4}, {(16//xm)*6144}'); a(f's_add_u32 s{gt}, s{gt}, s{s_t}')
            a(f's_cmp_lt_u32 s{c}, 6'); a(f's_cselect_b32 s{s_t}, {16//xm}, 0')
            a(f'v_mul_u32_u24 v{vtw}, 6144, v1'); a(f'v_add_u32 v{vtw}, s{gt}, v{vtw}')
            a(f'v_mov_b32 v{t0}, {BIG}'); a(f'v_cmp_gt_u32 vcc, s{s_t}, v1'); a(f'v_cndmask_b32 v{vtw}, v{t0}, v{vtw}, vcc')
            cls(sWO)
            a(f's_lshl_b32 s{s_t}, s{c}, 19'); a(f's_add_u32 s{gt}, s{gt}, s{s_t}')
            a(f's_mul_i32 s{s_t}, s{s_t+4}, {(128//xm)*2048}'); a(f's_add_u32 s{gt}, s{gt}, s{s_t}')
            a(f's_cmp_lt_u32 s{c}, 4'); a(f's_cselect_b32 s{s_t}, {32//xm}, 0')
            a(f'v_lshlrev_b32 v{vto}, 11, v1'); a(f'v_add_u32 v{vto}, s{gt}, v{vto}')
            a(f'v_cmp_gt_u32 vcc, s{s_t}, v1'); a(f'v_cndmask_b32 v{vto}, v{t0}, v{vto}, vcc')
        def touchW(st):
            if not self.touch: return
            if st == 0: a(f's_add_u32 s{s_tw}, s{s_rot}, s{s_trot}')
            else: a(f's_cmp_le_u32 s{s_trot}, {st-1}'); a(f's_addc_u32 s{s_tw}, s{s_rot}, {st-1}')
            a(f's_and_b32 s{s_tw}, s{s_tw}, 15'); a(f's_mul_i32 s{s_tw}, s{s_tw}, {64*6144}')
            a(f'buffer_load_dword v{vd}, v{vtw}, {srd(sW)}, s{s_tw} offen')
        def touchO(k):
            if not self.touch: return
            a(f's_mov_b32 s{s_tw}, {k*(32//xm)*2048}')
            a(f'buffer_load_dword v{vd}, v{vto}, {srd(sWO)}, s{s_tw} offen')
        def phi_load():
            a(f's_mov_b64 s[{sX}:{sX+1}], s[{pPHI}:{pPHI+1}]'); a(f's_mov_b32 s{sX+2}, 65536')
            a.extend(sx(s_t, [(s_g, 4096), (s_h, 2048)])); a(f's_lshl_b32 s{s_t+1}, s{s_h}, 11'); a(f's_add_u32 m0, s{s_t+1}, {P_PHI}')
            for j in range(2): a(f'buffer_load_dwordx4 v{l16}, {srd(sX)}, s{s_t} offen offset:{1024*j} lds')
        self.w_dma_offsets(dw, s_h, t0, t1, t2)
        touch_setup(True)
        for st in range(1, 3 + self.dist): touchW(st)

        def init_stores():
            for k in range(4): a(f'v_mov_b32 v{SA+k}, -1')
            fill = f'buffer_store_dwordx4 {vr(SA,4)}, v{l16}, {srd(sWS)}, s{s_t} offen'
            a.extend(sx(s_t, [(s_g, 131072), (s_h, 65536), (s_m, 2048)], WS_KVP)); a(fill + ' sc1'); a(fill + ' offset:1024 sc1')
            a(f's_add_u32 s{s_t}, s{s_t}, 32768'); a(fill + ' sc1'); a(fill + ' offset:1024 sc1')
            a('s_mov_b64 exec, 0xff')
            a.extend(sx(s_t, [(s_g, 8192), (s_h, 4096), (s_m, 128)], WS_KVF)); a(fill + ' sc1'); a(fill + ' offset:2048 sc1')
            a.extend(sx(s_t, [(s_g, 4096), (s_h, 2048), (s_m, 128)], WS_ZP)); a(fill + ' sc1')
            a.extend(sx(s_t, [(s_g, 256), (s_h, 128)], WS_ZF))
            a(f's_cmp_eq_u32 s{s_m}, s{s_g}'); a(f's_cselect_b32 s{s_t}, s{s_t}, {BIG}'); a(fill + ' sc1')
            a('s_mov_b64 exec, -1')
            a(f'v_lshrrev_b32 v{t1}, 2, v1'); a(f'v_lshlrev_b32 v{t1}, 10, v{t1}'); a(f'v_and_or_b32 v{t1}, v1, 3, v{t1}')
            a.extend(sx(s_t, [(s_m, 64), (s_g, 4)])); a(f'v_add_u32 v{t1}, s{s_t}, v{t1}')
            a(f's_cmp_eq_u32 s{s_h}, 0'); a(f's_cselect_b32 s{s_t+1}, {2 + self.ls}, 7'); a(f's_cselect_b32 s{s_t}, 0, {WS_RF}')
            a(f'v_lshlrev_b32 v{t1}, s{s_t+1}, v{t1}'); a(f'v_mov_b32 v{t0}, 0')
            a('s_mov_b64 exec, 0xfffffff')
            a(f'buffer_store_dword v{t0}, v{t1}, {srd(sWS)}, s{s_t} offen sc1')
            a('s_mov_b64 exec, -1')
            a.extend(sx(s_t, [(s_g, 16384), (s_m, 1024)], WS_CS)); a(f's_cmp_eq_u32 s{s_h}, 1'); a(f's_cselect_b32 s{s_t}, s{s_t}, {BIG}'); a(fill + ' sc1')
        for k in range(4): a(f'v_mov_b32 v{ones+k}, 0x3f803f80')
        def cs_reads(aw=aw):
            for s in range(2):
                for n in range(6):
                    for t in range(2):
                        a(f'ds_read_b64_tr_b16 {vr(F+24*s+4*n+2*t,2)}, v{aw+(n&1)} offset:{(n>>1)*8192+(32*s+4*t)*128}')
            a('s_waitcnt lgkmcnt(0)')
        def cs_publish():
            for s in range(2):
                for n in range(6): a(mf16(D+4*n, ones, F+24*s+4*n, D+4*n if s else None))
            a.extend(sx(s_t, [(s_l, 262144), (s_g, 16384), (s_m, 1024), (s_h, 128)], WS_CS))
            a('s_mov_b64 exec, 0xffff')
            for n in range(6): a(f'buffer_store_dword v{D+4*n}, v{l4}, {srd(sWS)}, s{s_t} offen offset:{(n>>1)*256+(n&1)*64} sc1')
            a('s_mov_b64 exec, -1')
        def chunk(t):
            a(f's_mul_i32 s{s_t}, s{s_m}, {64*6144}'); a(f's_mul_i32 s{s_t+1}, s{s_h}, 12288'); a(f's_add_u32 m0, s{s_t+1}, {L_SPARE + 4096*(t//2)}')
            for j in range(2*t, 2*t+2): a(f'buffer_load_dwordx4 v{dw+j}, {srd(sW)}, s{s_t} offen offset:{1024*(j%4)} lds')
        def arrive():
            a(f's_getreg_b32 s{s_t}, hwreg(HW_REG_XCC_ID, 0, 3)'); a(f's_lshl_b32 s{s_t}, s{s_t}, 2'); a(f's_lshl_b32 s{s_t+1}, 1, s{s_t}')
            a.extend(sx(s_t, [(s_m, 16), (s_rot2, 1)]))
            a('s_mov_b64 exec, 1')
            a(f'v_mov_b32 v{t0}, s{s_t+1}')
            a(f'buffer_atomic_add v{t0}, off, {srd(sDBG)}, s{s_t} sc1')
            a('s_mov_b64 exec, -1')
        iload = f'buffer_load_dword v{vfl}, v{t2}, {srd(sDBG)}, 0 offen sc1'
        def init_look():
            a(f'v_and_b32 v{t2}, 31, v1'); a(f'v_lshlrev_b32 v{t2}, 3, v{t2}'); a(iload)
        def init_wait():
            a('s_waitcnt vmcnt(0)')
            self.spin(['s_sleep 16', iload],
                      [f'v_lshrrev_b32 v{t1}, 4, v{vfl}', f'v_and_b32 v{t1}, 0x0f0f0f0f, v{t1}', f'v_and_b32 v{t3}, 0x0f0f0f0f, v{vfl}',
                       f'v_sad_u8 v{t1}, v{t1}, 0, 0', f'v_sad_u8 v{t3}, v{t3}, 0, v{t1}', f'v_cmp_gt_u32 vcc, 8, v{t3}'], t3, 3, pre=True)
            a(f's_lshr_b32 s{s_t}, s{s_rot2}, 3'); a(f's_lshl_b32 s{s_t+1}, s{s_m}, 1'); a(f's_add_u32 s{s_t}, s{s_t}, s{s_t+1}')
            a(f'v_readlane_b32 s{s_fast}, v{vfl}, s{s_t}')
            a(f's_and_b32 s{s_fast}, s{s_fast}, 0x88888888'); a(f's_cselect_b32 s{s_fast}, {1 if self.local else 0}, 0')
            a(f'v_mov_b32 v{t3}, s{s_fast}'); a(f'v_mov_b32 v{t2}, {P_MODE}'); a(f'ds_write_b32 v{t2}, v{t3}')
        def gather(R, va, so, ks):
            L = []
            for k in ks: L += [f's_add_u32 s{s_t}, s{so}, {4096*(k//2)}', f'buffer_load_dwordx4 {vr(R+4*k,4)}, v{va}, {srd(sWS)}, s{s_t} offen offset:{2048*(k%2)} sc1']
            return L
        def total(R):
            n = 8
            while n > 1:
                n //= 2
                for k in range(4*n): a(f'v_add_f32 v{R+k}, v{R+k}, v{R+k+4*n}')
            a(sw32(R, R+2)); a(sw32(R+1, R+3)); a(f'v_add_f32 v{R}, v{R}, v{R+2}'); a(f'v_add_f32 v{R+1}, v{R+1}, v{R+3}')
        def stats_finish():
            for k in range(2): a(f'v_mov_b32_dpp v{SA+2+k}, v{SA+k} row_shl:4 row_mask:0xf bank_mask:0xf')
            for k in range(2): a(f'v_mul_f32 v{SA+k}, {f2u(-1/1024)}, v{SA+k}'); a(f'v_mul_f32 v{SA+2+k}, {f2u(1/1024)}, v{SA+2+k}')
            for k in range(2): a(f'v_fma_f32 v{SA+2+k}, -v{SA+k}, v{SA+k}, v{SA+2+k}')
            for k in range(2): a(f'v_max_f32 v{SA+2+k}, 0, v{SA+2+k}')
            for k in range(2): a(f'v_add_f32 v{SA+2+k}, {f2u(1e-5)}, v{SA+2+k}')
            for k in range(2): a(f'v_rsq_f32 v{SA+2+k}, v{SA+2+k}')
            a('s_mov_b32 exec_lo, 0x0f0f0f0f'); a('s_mov_b32 exec_hi, 0x0f0f0f0f')
            a(f'ds_write_b64 v{a_st}, {vr(SA,2)}'); a(f'ds_write_b64 v{a_st}, {vr(SA+2,2)} offset:512')
            a('s_mov_b64 exec, -1')
        def cs_finish():
            total(SC)
            a(f's_mul_i32 s{s_t}, s{s_l}, 768'); a(f'v_add_u32 v{t0}, s{s_t}, v{a_cs}')
            a('s_mov_b32 exec_lo, 0xffffff'); a('s_mov_b32 exec_hi, 0xffffff')
            a(f'ds_write_b64 v{t0}, {vr(SC,2)}')
            a('s_mov_b64 exec, -1')
        l0 = [f's_cmp_eq_u32 s{s_l}, 0']; ln0 = [f's_cmp_lg_u32 s{s_l}, 0']; l01 = [f's_cmp_lt_u32 s{s_l}, 2']
        a(f's_mov_b32 s{s_r}, 0')
        a.label('L_hp_layer')
        a.extend(sx(s_a, [(s_l, 262144), (s_m, 16384), (s_h, 512)], WS_ST))
        a.extend(sx(s_b, [(s_l, 262144), (s_g, 16384), (s_h, 384)], WS_CS))
        self.trickle_setup(); self.warm_wo_setup()
        hi = lambda: self.hprio and a(f's_setprio {self.hprio}')
        lo = lambda: self.hprio and a('s_setprio 0')
        l1 = [f's_cmp_eq_u32 s{s_l}, 1']
        for i in range(17):
            a('s_barrier')
            if self.jit and i in (0, 1, 4, 8, 9, 12, 16): self.jitter(30 + i)
            ncs = 16 - self.rot0
            l0h0 = [f's_or_b32 s{s_t}, s{s_l}, s{s_h}', f's_cmp_eq_u32 s{s_t}, 0']
            if i < ncs: self.cond([f's_and_b32 s{s_t}, s{s_m}, {ncs-1}', f's_lshl_b32 s{s_t+1}, s{s_l}, 2', f's_or_b32 s{s_t}, s{s_t}, s{s_t+1}', f's_cmp_eq_u32 s{s_t}, {i}'], cs_reads)
            if i == 8: self.cond(l1, lambda: cs_reads(aw2))
            if i in (self.iw, 5, 7, 13): a('s_waitcnt vmcnt(0)')
            if i == 5: self.cond(ln0, lambda: self.flag_wait(s_r, vrf, vfl, 8, pre=True, nap=self.nap))
            if i == 9: self.cond(l0h0, init_wait)
            if i <= 12: hi()
            if i == 0: self.cond(l0, lambda: (init_stores(), phi_load()))
            if i == self.iw + 1: self.cond(l0h0, arrive)
            if i == 4: self.cond(l0, cs_publish)
            if i == 9: self.cond(l1, cs_publish)
            if i == 8: self.cond(l0h0, init_look)
            if i == 4: self.cond(ln0, lambda: a(self.flag_load(s_r, vrf, vfl)))
            if i + 3 + self.dist <= 15: touchW(i + 3 + self.dist)
            if 5 <= i <= 8: touchO(i - 5)
            if 1 <= i <= 6: self.cond(l1, lambda: chunk(i - 1))
            if i == 6: self.cond([f's_cmp_eq_u32 s{s_l}, 2'], phi_load)
            if i in (10, 11): a.extend(gather(SA, v_st, s_a, range(4*(i-10), 4*(i-10)+4)))
            if i in (11, 12): self.cond(l01, lambda: a.extend(gather(SC, v_cs, s_b, range(4*(i-11), 4*(i-11)+4))))
            if i <= 12: lo()
            if 1 <= i <= 12: self.trickle(i - 1)
            if i == 13: self.ll_wait(gather(SA, v_st, s_a, range(8)), list(range(SA, SA+32)), t0, t1, 6, pre=True); total(SA)
            if i == 14: stats_finish()
            if i == 14: self.cond(l01, lambda: self.ll_wait(gather(SC, v_cs, s_b, range(8)), list(range(SC, SC+32)), t0, t1, 7, pre=True))
            if i == 15: self.cond(l01, cs_finish); a('s_waitcnt lgkmcnt(0)')
        a.extend(sx(s_t+1, [(s_l, 8192), (s_m, 256), (s_g, 16), (s_h, 4096)])); a(f's_lshl_b32 s{s_t+1}, s{s_t+1}, {self.ls}')
        a(f'v_and_b32 v{t0}, 3, v1'); a(f'v_lshlrev_b32 v{t0}, {2 + self.ls}, v{t0}'); a(f'buffer_load_dword v{vd}, v{t0}, {srd(sWS)}, s{s_t+1} offen sc1')
        a.extend(sx(s_t, [(s_l, 8192), (s_m, 256), (s_rot2, 16)]))
        a(f's_xor_b32 s{s_t}, s{s_t}, 128'); a.extend(sx(s_r, [(s_t, 32), (s_h, 256)], WS_RF))
        a(f's_bitcmp0_b32 s{s_l}, 0')
        a(f's_cselect_b64 s[{sW}:{sW+1}], s[{pBW}:{pBW+1}], s[{pAW}:{pAW+1}]')
        a(f's_cselect_b64 s[{sWO}:{sWO+1}], s[{pBWO}:{pBWO+1}], s[{pAWO}:{pAWO+1}]')
        touch_setup()
        touchW(0); touchW(1); touchW(2)
        a(f's_bitcmp1_b32 s{s_l}, 0'); a('s_cbranch_scc1 L_hp_B')
        self.reduce_job()
        a('s_branch L_hp_join')
        a.label('L_hp_B')
        a('s_barrier')
        a.label('L_hp_join')
        a('s_barrier')
        a(f's_cmp_eq_u32 s{s_l}, 3'); a('s_cbranch_scc1 L_fin')
        self.trickle_rest(1); self.warm_w()
        a(f's_add_u32 s{s_r}, s{s_r}, {4096*32}')
        a(f's_add_u32 s{s_l}, s{s_l}, 1')
        a('s_barrier')
        for st in range(3, 3 + self.dist): touchW(st)
        a('s_branch L_hp_layer')

    def compute(self):
        a = self.a
        one, l16, voffR, voffI, a_tok, a_row, a_t32, a_csr, a_csv = 0, 2, 3, 4, 5, 6, 7, 8, 9
        ax, awq = 10, 12
        l4 = 14; vst = 15
        XR = 16
        ACC = 32
        FX = [128, 144]; FW = [160, 184]
        T = 208
        t0, t1, t2, t3 = T, T+1, T+2, T+3
        s_wm, s_wh, s_rslot, s_delta, s_stg, s_ones = 65, 66, 67, 68, 69, 70
        s_o = 71
        s_ob = 75
        s_obase, s_ooff, s_a, s_b, s_c, s_d, s_e, s_fp, s_st, s_fo = range(77, 87)
        a(f'v_lshrrev_b32 v{t0}, 4, v1')
        a(f'v_and_b32 v{t1}, 15, v1')
        a(f'v_and_b32 v{t2}, 1, v{t0}'); a(f'v_lshrrev_b32 v{t3}, 1, v{t0}'); a(f'v_lshl_add_u32 v{t2}, v{t2}, 1, v{t3}')
        a(f'v_lshlrev_b32 v{voffR}, 11, v{t1}'); a(f'v_lshl_add_u32 v{voffR}, v{t2}, 4, v{voffR}')
        def x0():
            a.extend(sx(s_t, [(s_m, 1 << 18), (s_wave, 1 << 16), (s_g, 128)])); a(f's_add_u32 s{s_t+1}, s{s_t}, 32768')
            if not self.st0 & 16: self.pointers()
            for tb in range(2):
                for e in range(2): a(f'buffer_load_dwordx4 {vr(XR+8*tb+4*e,4)}, v{voffR}, {srd(sX)}, s{s_t+tb} offen offset:{64*e}')
        if self.st0 & 16: self.pointers()
        elif not self.st0 & 8: x0()
        a(f's_lshr_b32 s{s_wm}, s{s_wave}, 1'); a(f's_and_b32 s{s_wh}, s{s_wave}, 1')
        a(f'v_mov_b32 v{one}, 1')
        a(f'v_lshl_add_u32 v{voffI}, v{t2}, 4, v{t1}'); a(f'v_lshlrev_b32 v{voffI}, 4, v{voffI}'); a(f'v_mov_b32 v{vst}, v{voffI}')
        a(f'v_lshlrev_b32 v{l16}, 4, v1'); a(f'v_lshlrev_b32 v{l4}, 2, v1')
        a.extend(sx(s_t, [(s_wm, 256)], P_NM))
        a(f'v_lshl_add_u32 v{a_tok}, v{t1}, 2, s{s_t}')
        a(f'v_lshl_add_u32 v{a_row}, v{t0}, 4, s{s_t}')
        a(f'v_and_b32 v{t3}, 31, v1'); a(f'v_lshl_add_u32 v{a_t32}, v{t3}, 2, s{s_t}')
        a.extend(sx(s_t, [(s_wh, 128)], P_CS))
        a(f'v_lshl_add_u32 v{a_csr}, v{t0}, 4, s{s_t}')
        a(f'v_lshl_add_u32 v{a_csv}, v{t1}, 2, s{s_t}')
        a(f's_mov_b32 s{s_stg}, {STG}'); a(f's_mov_b32 s{s_ones}, 0x3f803f80')
        a(f'v_lshrrev_b32 v{t2}, 1, v{t1}'); a(f'v_xor_b32 v{t2}, v{t2}, v{t0}')
        a.extend(sx(s_t, [(s_wm, 8192)], XOFF)); a(f'v_lshl_add_u32 v{t1}, v{t1}, 7, s{s_t}')
        for s in range(2):
            a(f'v_xor_b32 v{t3}, {4*s}, v{t2}'); a(f'v_lshl_add_u32 v{ax+s}, v{t3}, 4, v{t1}')
        a.extend(sx(s_st, [(s_m, 16384), (s_g, 1024), (s_wave, 256)], WS_ST))

        q = 216
        def stats():
            S = []
            for k in range(8):
                for tb in range(2):
                    r = XR + 8*tb + k
                    S += [f'v_dot2_f32_bf16 v{q+2*tb}, s{s_ones}, v{r}, ' + (f'v{q+2*tb}' if k else '0'),
                          f'v_dot2_f32_bf16 v{q+2*tb+1}, v{r}, v{r}, ' + (f'v{q+2*tb+1}' if k else '0')]
            return S + [sw32(q, q+2), sw32(q+1, q+3), pk('add', q, q, q+2), sw16(q, q+1), f'v_add_f32 v{q}, v{q}, v{q+1}']
        st_store = f'buffer_store_dword v{q}, v{l4}, {srd(sWS)}, s{s_st} offen sc1'
        def acc(b, n): return ACC + 4*(6*b + n)
        A2 = 208
        def reads(s, st, slot=0):
            x, w, o = (ax, awq, STG*slot) if slot < 2 else (A2, A2+2, 0)
            X = [f'ds_read_b128 {vr(FX[st]+4*b,4)}, v{x+s} offset:{o+2048*b}' for b in range(4)]
            W = [[f'ds_read_b64_tr_b16 {vr(FW[st]+4*n+2*t,2)}, v{w+(n&1)} offset:{o+(n>>1)*8192+(32*s+4*t)*128}' for t in range(2)] for n in range(6)]
            L = [X[0]] + W[0] + X[1:]
            for n in range(1, 6): L += W[n]
            return L
        def mfma(st, b, n, zero=False):
            C = None if zero else acc(b, n)
            return mf16(acc(b, n), FW[st]+4*n, FX[st]+4*b, C) if n < 4 else mf16(acc(b, n), FX[st]+4*b, FW[st]+4*n, C)
        def mfmas(st, zero=False):
            return [mfma(st, b, n, zero) for n in range(6) for b in (range(4) if not (self.snake and n % 2) else range(3, -1, -1))]
        env = dict(locals())
        a.extend(self.w_frag_addr(awq, s_wh, 0, t0, t1, t2))
        self.epiA(env, 'v')
        if self.st0 & 8: x0()
        a(f'v_mov_b32 v{q}, -1'); a(st_store)
        a(f's_sub_u32 s{s_st}, s{s_st}, 262144')
        a.label('L_first')
        a('s_barrier')
        self.stamp(12)
        if self.st0 & 16: self.cond([f's_cmp_eq_u32 s{s_l}, 0'], x0)
        S = autowait(reads(0, 0) + interleave(mfmas(0, True), reads(1, 1), per=[0]*4 + [1]*20))
        cut = [k for k, t in enumerate(S) if t.startswith('v_mfma')][self.fpos-1] + 1
        a.extend(S[:cut])
        a('s_waitcnt vmcnt(0)')
        self.stamp(11)
        self.cond([f's_cmp_lg_u32 s{s_l}, 0'], lambda: self.flag_set(s_fo, one))
        a.extend(S[cut:])
        a('s_waitcnt lgkmcnt(0)')
        S = [f'v_add_u32 v{A2+k}, {2*STG}, v{ax+k}' for k in range(4)] + [f's_mov_b32 s{s_i}, 0']
        assert awq == ax + 2
        S += sx(s_t, [(s_l, 1 << 22), (s_m, 1 << 18)], WS_OI)
        S += sx(s_obase, [(s_wave, 1 << 16), (s_t, 1)]) + [f's_lshl_b32 s{s_ooff}, s{s_rot2}, 11']
        S += [f's_add_u32 s{s_ob}, s{s_obase}, s{s_ooff}', f's_add_u32 s{s_ob+1}, s{s_ob}, 32768']
        S += sx(s_a, [(s_wm, 1 << 17), (s_g, 2048), (s_wh, 1024), (s_t, 1)])
        S += sx(s_o, [(s_g, 16384), (s_wave, 4096), (s_t, 1)], WS_XI - WS_OI) + [f's_add_u32 s{s_o+k}, s{s_o}, {1024*k}' for k in range(1, 4)]
        S += sx(s_fp, [(s_l, 8192), (s_m, 256)]) + sx(s_fo, [(s_g, 16), (s_wave, 4), (s_fp, 1)]) + sx(s_fo+1, [(s_fo, 32)], WS_RF) + [f's_lshl_b32 s{s_fo}, s{s_fo}, {self.ls}']
        S += sx(s_t, [(s_wm, 8), (s_rot2, 16)]) + [f's_add_u32 s{s_fp}, s{s_fp}, s{s_t}']
        a.extend(interleave(mfmas(1), S, per=[2]*20 + [3]*4))
        if self.lfl == 2: self.cond([f's_cmp_lg_u32 s{s_l}, 0'], lambda: (a(f's_sub_u32 s{s_t+1}, s{s_fo+1}, {4096*32}'), self.flag_set(s_t, one, 2)))
        a(f's_bitcmp1_b32 s{s_l}, 0'); a('s_cbranch_scc1 L_preB')
        self.epiA(env, 's')
        a('s_branch L_pre_done')
        a.label('L_preB')
        self.epiB(env, 's')
        def last():
            a(f's_mov_b64 s[{sOUT}:{sOUT+1}], s[{pOUT}:{pOUT+1}]'); a(f's_mov_b32 s{sOUT+2}, {2048*1024*2}')
            a.extend(sx(s_o, [(s_m, 1 << 18), (s_wave, 1 << 16), (s_g, 128)]))
            a(f's_add_u32 s{s_o+1}, s{s_o}, 64'); a(f's_add_u32 s{s_o+2}, s{s_o}, 32768'); a(f's_add_u32 s{s_o+3}, s{s_o}, {32768+64}')
            a(f'v_mov_b32 v{vst}, v{voffR}')
        self.cond([f's_cmp_eq_u32 s{s_l}, 3'], last)
        a.label('L_pre_done')
        a(f's_add_u32 s{s_st}, s{s_st}, 262144')
        a.extend(stats()); a(st_store)
        a.label('L_go')
        a('s_barrier')
        self.stamp(1)
        a.extend(reads(0, 0, 1))
        a('s_branch L_q1')
        nb = self.bpos + 1
        def half0(slot):
            if self.prof >= 5:
                a('s_memtime s[92:93]' if self.prof == 5 else 's_memrealtime s[92:93]'); a(f's_lshl_b32 m0, s{s_l}, 4'); a(f's_add_u32 m0, m0, s{s_i}'); a(f's_add_u32 m0, m0, {(slot+2)%3+1}')
            a('s_waitcnt lgkmcnt(0)')
            F = reads(1, 1, slot)
            if self.prof >= 5: F = ['v_writelane_b32 v255, s92, m0'] + F
            if slot == 0: F += [f's_add_u32 s{s_i}, s{s_i}, 3', f's_cmp_lt_u32 s{s_i}, 15']
            a.extend(interleave(mfmas(0), F, per=[0]*self.r0 + [1]*24))
            a('s_waitcnt lgkmcnt(0)')
            a.extend(mfmas(1)[:nb]); a('s_barrier')
        def half1(slot):
            R = reads(0, 0, (slot+1) % 3)
            a(R[0]); a.extend(interleave(mfmas(1)[nb:], R[1:], per=[1]*24))
        a('.p2align 6')
        a.label('L_q')
        half1(0)
        a.label('L_q1')
        half0(1); half1(1); half0(2); half1(2); half0(0)
        a('s_cbranch_scc1 L_q')
        a.label('L_tail')
        self.stamp(2)
        a(f's_bitcmp1_b32 s{s_l}, 0'); a('s_cbranch_scc1 L_epiB')
        self.epiA(env, False)
        a('s_branch L_ophase')
        a.label('L_epiB')
        self.epiB(env, False)
        a.label('L_ophase')
        a('s_barrier')
        PD = self.pd; NR = PD + 1
        OA, OW, awo, vf, RING = 128, [160, 176], 192, 196, 32
        assert RING + 8*NR <= 128
        u0, u1, u2, vrf, vot, vxw = 197, 198, 199, 204, 205, 206
        a(f'v_mov_b32 v{u0}, {P_MODE}'); a(f'ds_read_b32 v{u0}, v{u0}')
        def oacc(tb, nb): return OA + 16*tb + 4*nb
        for k in range(4):
            a(sw16(XR+4*k, XR+4*k+2)); a(sw16(XR+4*k+1, XR+4*k+3))
        a('s_waitcnt lgkmcnt(0)'); a(f'v_readfirstlane_b32 s{s_fast}, v{u0}')
        a(f's_xor_b32 s{s_t}, s{s_fp}, 128'); a.extend(sx(s_e, [(s_t, 32)], WS_RF))
        a.extend(self.flag_addr(vrf, u1, None, remote=True))
        a.extend(self.flag_addr(vf, u1, s_fp))
        s_fq = s_d
        a(f's_cmp_eq_u32 s{s_fast}, 1'); a(f's_cselect_b32 s{s_fq}, s{s_fp}, {BIG}')
        for r in range(16):
            a(f'v_lshlrev_b32 v{OA+2*r}, 16, v{XR+r}'); a(f'v_and_b32 v{OA+2*r+1}, 0xffff0000, v{XR+r}')
        a.extend(self.w_frag_addr(awo, None, L_WO, u0, u1, u2, nb_list=(0, 1, 2, 3)))
        a(f's_cmp_eq_u32 s{s_wh}, 0'); a('s_cselect_b64 vcc, -1, 0')
        for k in range(2): a(f'v_cndmask_b32 v{awq+k}, v{awo+2+k}, v{awo+k}, vcc')
        for k in range(2): a(f'v_subrev_u32 v{awq+k}, {L_WO}, v{awq+k}')
        a.extend(sx(s_t, [(s_wm, 8192)], XOFF)); a(f'v_add_u32 v{ax}, s{s_t}, v{l16}'); a(f'v_add_u32 v{ax+1}, 1024, v{ax}')
        a.extend(sx(s_t, [(s_wave, 4096)], XOFF)); a(f'v_add_u32 v{vxw}, s{s_t}, v{voffI}')
        def oreads(h):
            return [f'ds_read_b64_tr_b16 {vr(OW[h&1]+4*nb+2*t,2)}, v{awo+nb} offset:{(h&15)*4096+512*t}' for nb in range(4) for t in range(2)]
        a('s_waitcnt vmcnt(0)')
        self.stamp(8)
        self.flag_set(s_fo, one, 1)
        a(self.flag_load(s_fq, vf, u0, self.pf))
        self.flag_set(s_fo, one, 2)
        a.extend(oreads(0))
        def next_consts():
            a(f's_bitcmp1_b32 s{s_l}, 0'); a('s_cbranch_scc1 L_nextA')
            self.epiB(env, 'v')
            a('s_branch L_next_done')
            a.label('L_nextA')
            self.cond([f's_cmp_lg_u32 s{s_l}, 3'], lambda: self.epiA(env, 'v'))
            a.label('L_next_done')
        if not self.vpos: next_consts()
        self.flag_wait(s_fp, vf, u0, 4, pre='s_waitcnt vmcnt(1) lgkmcnt(0)', own=True)
        self.stamp(9)
        def oload(h, tb):
            L = [f'buffer_load_dwordx4 {vr(RING+8*(h%NR)+4*tb,4)}, v{l16}, {srd(sWS)}, s{s_ob+tb} offen offset:{1024*(h&3)} sc1']
            if h & 3 == 3 and h < 31:
                if tb == 0: L += [f's_add_u32 s{s_ooff}, s{s_ooff}, 4096', f's_and_b32 s{s_ooff}, s{s_ooff}, 0x7fff', f's_add_u32 s{s_ob}, s{s_obase}, s{s_ooff}']
                else: L += [f's_add_u32 s{s_ob+1}, s{s_ob}, 32768']
            return L
        S = []
        for h in range(PD): S += oload(h, 0) + oload(h, 1)
        S.append('s_nop 2')
        hc = self.hc or 15 - PD
        DL = self.dl; assert DL <= PD and DL % 2 == 0
        UN = [(p, nb) for p in range(32 - DL) for nb in range(4)] + [(p, nb) for e in range(2) for p in range(32 - DL, 32) for nb in (2*e, 2*e+1)]
        def out(k4):
            return [cvt(XR+4*k4+k, OA+8*k4+2*k, OA+8*k4+2*k+1) for k in (0, 2, 1, 3)], [sw16(XR+4*k4, XR+4*k4+2), sw16(XR+4*k4+1, XR+4*k4+3)], [
                    f'buffer_store_dwordx4 {vr(XR+4*k4,4)}, v{vst}, {srd(sOUT)}, s{s_o+k4} offen sc1', f'ds_write_b128 v{vxw}, {vr(XR+4*k4,4)} offset:{1024*k4}']
        early = (out(0)[0] + out(2)[0][:2] + out(0)[1] + out(2)[0][2:] + out(0)[2][:1] + out(2)[1] + out(0)[2][1:] + out(2)[2]) if DL else []
        for h in range(32):
            if h == 15: S += [f'v_add_u32 v{awo+nb}, 0x10000, v{awo+nb}' for nb in range(4)]
            for k in range(8):
                u, tb = 4*h + k//2, k % 2
                p, nb = UN[u]
                S.append(mf16(oacc(tb, nb), OW[0]+4*(u%8), RING+8*(p%NR)+4*tb, oacc(tb, nb)))
                if u + 4 < 128:
                    p2, nb2 = UN[u+4]
                    S.append(f'ds_read_b64_tr_b16 {vr(OW[0]+4*((u+4)%8)+2*tb,2)}, v{awo+nb2} offset:{(p2&15)*4096+512*tb}')
                for j in range(2):
                    if k == self.opos[j] and h + PD < 32 and not (h + PD >= 16 and h <= hc): S += oload(h+PD, j)
                if 2*u + tb >= 256 - 4*DL + 2:
                    n = 2
                    S += early[:n]; early = early[n:]
            if h == self.hq: S.append(self.flag_load(s_e, vrf, u1))
            if h == hc:
                S += [f'v_cmp_eq_u32 vcc, 0, v{u1}', 's_nop 1']
                for p in range(16, hc + PD + 1): S += oload(p, 0) + oload(p, 1)
            if self.fine == 4 and h in self.oh: S.append(f's_nop {4 + self.oh.index(h)}')
            if h == self.bm: S.append('s_barrier')
        S = autowait(S + early); cut0 = S.index('s_nop 2'); cut = S.index('s_nop 1'); S.pop(cut)
        a.extend(S[:cut0])
        if self.vpos: next_consts()
        def emit(L):
            for t in L:
                if t in ('s_nop 4', 's_nop 5'): self.stamp(13 + int(t[-1]) - 4)
                else: a(t)
        emit(S[cut0+1:cut])
        self.flag_wait(s_e, vrf, u1, 9, pre=True, nap=self.nap, checked=True)
        emit(S[cut:])
        self.stamp(10)
        self.sw(sum((sum(out(k4), []) for k4 in ((1, 3) if DL else (0, 2, 1, 3))), []), crit=lambda t: t.startswith('buffer'))
        a(f's_cmp_eq_u32 s{s_l}, 3'); a('s_cbranch_scc1 L_fin')
        a(f's_add_u32 s{s_fo}, s{s_fo}, {4096 << self.ls}'); a(f's_add_u32 s{s_fo+1}, s{s_fo+1}, {4096*32}')
        a(f's_add_u32 s{s_l}, s{s_l}, 1')
        a('s_waitcnt lgkmcnt(0)')
        a('s_branch L_first')

    def epiA(self, E, pre):
        a = self.a
        acc = E['acc']; a_tok, a_row, a_t32, a_csr, a_csv, l16, l4 = (E[k] for k in ('a_tok', 'a_row', 'a_t32', 'a_csr', 'a_csv', 'l16', 'l4'))
        s_wm, s_wh, s_a, s_b, s_c, s_d, s_e = (E[k] for k in ('s_wm', 's_wh', 's_a', 's_b', 's_c', 's_d', 's_e'))
        PK = [128, 144]; EP, KV0, ZA, NR = 160, 176, 192, 208
        wphi, nml, c32, csv = 224, 232, 236, 238
        SEL = [240, 244]
        a_phi, a_w, a_r0, a_r1, a_z, x_w, x_r = range(248, 255)
        csk = EP; csq = NR
        nmr = [KV0, EP+8, NR, NR+8]
        if pre == 'v':
            u0, u1, u2, u3, u4 = range(208, 213)
            S = [f'v_lshrrev_b32 v{u0}, 5, v1', f'v_bfe_u32 v{u1}, v1, 2, 2', f'v_lshl_add_u32 v{u1}, v{u0}, 3, v{u1}',
                 f'v_bfe_u32 v{u2}, v1, 4, 1', f'v_and_b32 v{u3}, 3, v1', f'v_lshlrev_b32 v{u4}, 3, v{u3}', f'v_lshl_add_u32 v{u2}, v{u2}, 5, v{u4}']
            S += sx(s_t, [(s_wh, 2048)], P_PHI) + [f'v_lshl_add_u32 v{u4}, v{u1}, 6, v{u2}', f'v_add_u32 v{a_phi}, s{s_t}, v{u4}']
            S += [f's_mul_i32 s{s_t+2}, s{s_wave}, {SCR}',
                  f'v_mul_u32_u24 v{u1}, 136, v{u1}', f'v_add3_u32 v{u1}, v{u1}, v{u2}, s{s_t+2}',
                  f's_lshl_b32 s{s_t+1}, s{s_wm}, 6', f'v_add_u32 v{a_r0}, s{s_t+1}, v{u1}',
                  f's_xor_b32 s{s_t+3}, s{s_t+1}, 64', f'v_add_u32 v{a_r1}, s{s_t+3}, v{u1}',
                  f'v_and_b32 v{u4}, 31, v1', f'v_mul_u32_u24 v{u4}, 136, v{u4}', f'v_lshl_add_u32 v{u4}, v{u0}, 3, v{u4}', f'v_add_u32 v{a_w}, s{s_t+2}, v{u4}',
                  f'v_add_u32 v{x_w}, s{s_t+2}, v{l16}', f's_xor_b32 s{s_t}, s{s_wave}, 2', f's_mul_i32 s{s_t}, s{s_t}, {SCR}', f'v_add_u32 v{x_r}, s{s_t}, v{l16}']
            S += [f'v_mov_b32 v{u4}, 0x3f803f80']
            for k in range(2):
                S += [f'v_cmp_eq_u32 vcc, {k}, v{u3}', f'v_cndmask_b32 v{SEL[k]}, 0, v{u4}, vcc', f'v_mov_b32 v{SEL[k]+1}, v{SEL[k]}',
                      f'v_mov_b64 {vr(SEL[k]+2,2)}, {vr(SEL[k],2)}']
            S += [f'v_and_b32 v{u0}, 18, v1', f'v_lshlrev_b32 v{u0}, 1, v{u0}', f'v_and_or_b32 v{u0}, v1, 8, v{u0}', f'v_and_b32 v{u1}, 4, v1',
                  f'v_lshl_or_b32 v{u0}, v{u1}, 2, v{u0}', f'v_and_b32 v{u1}, 33, v1', f'v_lshl_or_b32 v{a_z}, v{u1}, 25, v{u0}',
                  f'v_lshl_or_b32 v{a_z}, v{u1}, 30, v{a_z}']
            a.extend(S)
            return
        if pre == 's':
            S = sx(s_t, [(s_l, 16), (s_g, 2), (s_wh, 1)])
            S += sx(s_d, [(s_t, 65536), (s_wm, 32768), (s_m, 2048)], WS_KVP) + sx(s_e, [(s_t, 2048), (s_m, 128), (s_wm, 64)], WS_ZP)
            S += sx(s_b, [(s_t, 128)], WS_ZF) + sx(s_c, [(s_t, 4096)], WS_KVF)
            a.extend(S)
            return
        S = []
        for b in range(4): S.append(f'ds_read_b32 v{nml+b}, v{a_tok} offset:{64*b}')
        for nb in range(2): S.append(f'ds_read_b128 {vr(csk+4*nb,4)}, v{a_csr} offset:{256+64*nb}')
        for u in range(2):
            for t in range(2): S.append(f'ds_read_b64_tr_b16 {vr(wphi+4*u+2*t,2)}, v{a_phi} offset:{(16*t+4*u)*64}')
        for nb in range(2): S.append(f'ds_read_b32 v{csv+nb}, v{a_csv} offset:{512+64*nb}')
        for b in range(4):
            S.append(f'ds_read_b128 {vr(nmr[b],4)}, v{a_row} offset:{64*b}')
            S.append(f'ds_read_b128 {vr(nmr[b]+4,4)}, v{a_row} offset:{512+64*b}')
            if b == 0:
                for Tt in range(2): S.append(f'ds_read_b32 v{c32+Tt}, v{a_t32} offset:{512+128*Tt}')
        def qk_prep(n0, cs):
            L = []
            for b in range(4):
                for k in range(4): L.append(pk('fma', acc(b, n0)+2*k, cs+2*k, ('b', nml+b), acc(b, n0)+2*k))
                for k in range(4): L.append(cvt(acc(b, n0)+k, acc(b, n0)+2*k, acc(b, n0)+2*k+1))
            for Tt in range(2):
                for k in range(4): L.append(sw16(acc(2*Tt, n0)+k, acc(2*Tt+1, n0)+k))
                L += [mf32(PK[Tt], wphi, acc(2*Tt, n0)), mf32(PK[Tt], wphi+4, acc(2*Tt+1, n0), PK[Tt])]
            return L
        def vprep(b):
            r = acc(b, 4); P, C = [], []
            for nb in range(2):
                for p in range(2): P.append(pk('fma', r+4*nb+2*p, nmr[b]+2*p, ('b', csv+nb), r+4*nb+2*p))
            for nb in range(2):
                for p in range(2): P.append(pk('mul', r+4*nb+2*p, r+4*nb+2*p, nmr[b]+4+2*p))
            for k in range(4): C.append(cvt(r+k, r+2*k, r+2*k+1))
            return P, C, [sw16(r, r+2), sw16(r+1, r+3)]
        def softmax(Tt):
            x = PK[Tt]; c = c32 + Tt
            ta, tb = ((acc(2, 3), acc(3, 3)), (acc(2, 2), acc(3, 2)))[Tt]
            mx, mn, bp, bm = ta, ta+1, tb, tb+1
            L = [f'v_max3_f32 v{mx}, v{x}, v{x+1}, v{x+2}', f'v_max3_f32 v{mn}, -v{x}, -v{x+1}, -v{x+2}']
            for k in range(3, 15, 2):
                L += [f'v_max3_f32 v{mx}, v{mx}, v{x+k}, v{x+k+1}', f'v_max3_f32 v{mn}, v{mn}, -v{x+k}, -v{x+k+1}']
            L += [f'v_max_f32 v{mx}, v{mx}, v{x+15}', f'v_max_f32 v{mn}, v{mn}, -v{x+15}']
            L += [sw32(mx, mn), f'v_max_f32 v{mx}, v{mx}, v{mn}', f'v_mul_f32 v{bm}, -v{mx}, v{c}', f'v_mov_b32 v{bp}, v{bm}', sw32(bp, bm)]
            parts = [L]; L = []
            for k in range(0, 16, 2): L.append(pk('fma', EP+k, x+k, ('b', c), ('b', bp)))
            for k in range(0, 16, 2): L.append(pk('fma', x+k, x+k, ('b', c), ('b', bm), neg=[1, 0, 0]))
            parts.append(L); L = []
            for k in range(16): L.append(f'v_exp_f32 v{EP+k}, v{EP+k}')
            for k in range(16): L.append(f'v_exp_f32 v{x+k}, v{x+k}')
            parts.append(L); L = []
            sp, sm = ta, ta+2
            r1, r2 = tb+2, tb+3
            L += [pk('add', sp, EP, EP+2), pk('add', sm, x, x+2)]
            for k in range(4, 16, 2): L += [pk('add', sp, sp, EP+k), pk('add', sm, sm, x+k)]
            L += [f'v_add_f32 v{sp}, v{sp}, v{sp+1}', f'v_add_f32 v{sm}, v{sm}, v{sm+1}', sw32(sp, sm), f'v_add_f32 v{sp}, v{sp}, v{sm}',
                  f'v_rcp_f32 v{r2}, v{sp}', f'v_mov_b32 v{r1}, v{r2}', sw32(r1, r2)]
            for k in range(0, 16, 2): L.append(pk('mul', x+k, x+k, ('b', r2)))
            for k in range(8): L.append(cvt(x+k, x+2*k, x+2*k+1))
            for k in range(0, 16, 2): L.append(pk('mul', EP+k, EP+k, ('b', r1)))
            for k in range(8): L.append(cvt(x+8+k, EP+2*k, EP+2*k+1))
            return parts + [L]
        FR = [[acc(0, 2), acc(0, 3)], [acc(1, 2), acc(1, 3)]]
        def to_lds(x):
            return [f'ds_write_b64 v{a_w}, {vr(x+8*(1-sg)+2*j,2)} offset:{64*sg+16*j}' for sg in (1, 0) for j in range(4)]
        def frags():
            return [f'ds_read_b64_tr_b16 {vr(FR[k][u]+2*tt,2)}, v{(a_r0, a_r1)[k]} offset:{(16*u+4*tt)*136}' for k in (1, 0) for u in range(2) for tt in range(2)]
        KV1 = PK[0]
        def kvm(Tt):
            L = []
            for k, K in ((1, KV1), (0, KV0)):
                for u in range(2): L.append(mf32(K, FR[k][u], acc(2*Tt+u, 4), None if (Tt == 0 and u == 0) else K))
                for u in range(2): L.append(mf32(ZA, SEL[k], FR[k][u], None if (Tt == 0 and u == 0 and k == 1) else ZA))
            return L
        sc = sched if self.sch else (lambda L: L)
        K = qk_prep(2, csk); isM = lambda t: t.startswith('v_mfma')
        VP_ = [vprep(b) for b in range(4)]
        sm0, sm1 = softmax(0), softmax(1)
        mfma = E['mfma']
        TM = [mfma(1, b, n) for b in range(4) for n in (2, 3)] + [mfma(1, b, n) for b in range(4) for n in (4, 5)] + [mfma(1, b, 1) for b in range(4)] + [mfma(1, b, 0) for b in range(self.bpos+1, 4)]
        K01 = []
        for b in range(2):
            K01 += [f'v_fmac_f32 v{acc(b,2)+k}, v{csk+k}, v{nml+b}' for k in range(8)] + K[8*b+4:8*b+8]
        S = interleave(TM, S + K01, per=[2]*24)
        S += sc([t for t in K[16:] if not isM(t)] + [f'v_mul_f32 v{c32+Tt}, {f2u(LOG2E)}, v{c32+Tt}' for Tt in range(2)] + VP_[0][0] + VP_[1][0])
        def cutA(n, k):
            nonlocal S
            if self.fine == n: self.aw(S + ['s_waitcnt lgkmcnt(0)']); S = []; self.stamp(k)
        cutA(1, 12)
        S += sc([t for t in K if isM(t)] + VP_[0][1] + VP_[1][1] + VP_[0][2] + VP_[1][2] + sm0[0])
        cutA(1, 13)
        S += sc(sm0[1] + sm0[2] + sm1[0] + sm0[3] + to_lds(PK[0]) + frags())
        cutA(1, 14)
        S += sm1[1] + interleave(kvm(0), sm1[2][2:], per=[4]*7 + [2]) + sm1[2][:2]
        cutA(2, 12)
        S += sc(sm1[3] + to_lds(PK[1]) + frags() + sum((VP_[b][k] for k in range(3) for b in (2, 3)), []), lambda t: t.startswith('ds_read'))
        cutA(2, 13)
        M = kvm(1)
        X = [f'ds_write_b128 v{x_w}, {vr(KV1+4*k,4)} offset:{1024*k}' for k in range(4)]
        S += M[0:5] + X[0:2] + M[5:6] + X[2:4] + [f'ds_write_b32 v{x_w}, v{ZA+1} offset:4096'] + M[6:8]
        cutA(2, 14)
        self.aw(S); S = []
        S += ['s_waitcnt lgkmcnt(0)', 's_barrier']
        for k in range(4): S.append(f'ds_read_b128 {vr(EP+4*k,4)}, v{x_r} offset:{1024*k}')
        S.append(f'ds_read_b32 v{csv}, v{x_r} offset:4096')
        for u in range(2):
            for k in range(4): S.append(pk('add', KV0+8*u+2*k, KV0+8*u+2*k, EP+8*u+2*k))
            for k in range(4): S.append(cvt(KV0+8*u+k, KV0+8*u+2*k, KV0+8*u+2*k+1))
            S.append(f'buffer_store_dwordx4 {vr(KV0+8*u,4)}, v{l16}, {srd(sWS)}, s{s_d} offen offset:{1024*u} sc1')
        S += [f'v_add_f32 v{ZA}, v{ZA}, v{csv}', f'v_mov_b32_dpp v{ZA+3}, v{ZA} quad_perm:[1,0,3,2] row_mask:0xf bank_mask:0xf', cvt(ZA, ZA, ZA+3),
              f'buffer_store_dword v{ZA}, v{a_z}, {srd(sWS)}, s{s_e} offen sc1']
        self.sw(S, name='A k-part'); S = []
        if not self.yw: a('s_barrier')
        self.stamp(3)
        u3, u4 = ZA + 4, ZA + 5
        for nb in range(2): S.append(f'ds_read_b128 {vr(csq+4*nb,4)}, v{a_csr} offset:{64*nb}')
        S += qk_prep(0, csq) + sum(softmax(0) + softmax(1), [])
        S += [f'v_lshrrev_b32 v{u3}, 5, v1', f'v_and_b32 v{u4}, 1, v1', f'v_lshlrev_b32 v{u4}, 6, v{u4}', f'v_lshl_add_u32 v{a_z}, v{u3}, 4, v{u4}',
              f'v_bfe_u32 v{u4}, v1, 4, 1', f'v_lshlrev_b32 v{u4}, 15, v{u4}', f'v_lshl_add_u32 v{u4}, v{u3}, 8, v{u4}',
              f'v_and_b32 v{u3}, 15, v1', f'v_lshl_add_u32 v{a_w}, v{u3}, 4, v{u4}', f's_add_u32 s{s_d}, s{s_a}, 65536']
        if self.yw:
            S = sched(S); S.insert(self.yw, 's_barrier'); self.aw(S); S = []
        else: self.sw(S, name='A q-part'); S = []
        self.stamp(4)
        a('s_barrier')
        self.stamp(7)
        KF = KV0; ZF = EP
        if self.b2: a(f's_sleep {self.b2}')
        self.ll_wait(([f's_sleep {self.n2}'] if self.n2 else []) + [f'buffer_load_dwordx4 {vr(ZF+4*u,4)}, v{a_z}, {srd(sWS)}, s{s_b} offen offset:{32*u} sc1' for u in range(2)] +
                     [f'buffer_load_dwordx4 {vr(KF+4*k,4)}, v{l16}, {srd(sWS)}, s{s_c} offen offset:{1024*k} sc1' for k in range(4)],
                     list(range(ZF, ZF+8)) + list(range(KF, KF+16)), u3, u4, 5)
        self.stamp(5)
        ACC = E['ACC']
        for Tt in range(2):
            N, DP, DM = ACC + 48*Tt, ACC + 48*Tt + 16, ACC + 48*Tt + 32
            x = PK[Tt]
            S += [mf32(DP, ZF, x+8), mf32(DP, ZF+4, x+12, DP), mf32(DM, ZF, x), mf32(DM, ZF+4, x+4, DM),
                  mf32(N, KF, x+8), mf32(N, KF+4, x+12, N), mf32(N, KF+8, x, N), mf32(N, KF+12, x+4, N)]
            S += [f'v_add_f32 v{DP}, v{DP}, v{DM+1}', f'v_add_f32 v{DP}, {f2u(1e-6)}, v{DP}', f'v_rcp_f32 v{DP}, v{DP}']
            for p in range(2):
                for jj in range(2):
                    j = p + 2*jj
                    for k in range(2):
                        r = N + 4*j + 2*k
                        if Tt == 0: S += [f'v_mul_f32 v{r}, v{DP}, v{r}', f'v_mul_f32 v{r+1}, v{DP}, v{r+1}']
                        else: S.append(pk('mul', r, r, ('b', DP)))
                        S.append(cvt(DM+4+4*p+2*jj+k, r, r+1))
                S.append(f'buffer_store_dwordx4 {vr(DM+4+4*p,4)}, v{a_w}, {srd(sWS)}, s{(s_a, s_d)[Tt]} offen offset:{512*p} sc1')
        self.sw(S, name='A finish')
        self.stamp(6)

    def epiB(self, E, pre):
        a = self.a
        acc = E['acc']; a_tok, a_row, a_csr, a_csv, l16 = (E[k] for k in ('a_tok', 'a_row', 'a_csr', 'a_csv', 'l16'))
        s_wm, s_wh, s_a, s_b, s_c, s_d, s_e = (E[k] for k in ('s_wm', 's_wh', 's_a', 's_b', 's_c', 's_d', 's_e'))
        BI, BI0, MK, a_h = 236, 244, 248, 252
        if pre == 'v':
            t1, t2, t3 = 208, 209, 210
            S = [f'v_and_b32 v{t1}, 15, v1', f'v_lshrrev_b32 v{t2}, 4, v1', f'v_lshlrev_b32 v{t2}, 2, v{t2}', f'v_sub_u32 v{t1}, v{t1}, v{t2}',
                 f'v_mov_b32 v{t3}, {f2u(-1e30)}']
            for blk in range(2):
                for i in range(4):
                    S += [f'v_add_u32 v{t2}, {(16 if blk == 0 else 0) - i}, v{t1}', f'v_and_b32 v{t2}, -15, v{t2}', f'v_cmp_eq_u32 vcc, 0, v{t2}',
                          f'v_cndmask_b32 v{BI+4*blk+i}, v{t3}, 0, vcc']
                    if i % 2 == 0: S += [f'v_cndmask_b32 v{MK+2*blk+i//2}, 0, -1, vcc', f'v_lshrrev_b32 v{MK+2*blk+i//2}, 16, v{MK+2*blk+i//2}']
                    else: S += [f'v_cndmask_b32 v{t2}, 0, -1, vcc', f'v_lshl_or_b32 v{MK+2*blk+i//2}, v{t2}, 16, v{MK+2*blk+i//2}']
            S += [f's_or_b32 s{s_t}, s{s_m}, s{s_wm}', 's_cselect_b64 vcc, -1, 0']
            for i in range(4): S.append(f'v_cndmask_b32 v{BI0+i}, v{t3}, v{BI+i}, vcc')
            S += sx(s_t, [(s_wh, 2048)], P_PHI) + [f'v_add_u32 v{a_h}, s{s_t}, v{l16}']
            S += [f's_add_u32 s{s_t+1}, s{s_t}, 1024', f's_cmp_eq_u32 s{s_wm}, 0', f's_cselect_b32 s{s_t}, s{s_t}, {L_P + 7168}', f's_cselect_b32 s{s_t+1}, s{s_t+1}, {L_P + 7168}',
                  f'v_add_u32 v{a_h+1}, s{s_t}, v{l16}', f'v_add_u32 v{a_h+2}, s{s_t+1}, v{l16}']
            a.extend(S)
            return
        if pre == 's':
            S = sx(s_b, [(s_l, 1 << 19), (s_m, 1 << 16), (s_g, 4096), (s_wh, 2048)], WS_HALO - (1 << 19))
            S += [f's_add_u32 s{s_c}, s{s_b}, 65536', f's_cmp_eq_u32 s{s_m}, 15', f's_cselect_b32 s{s_c}, {BIG}, s{s_c}',
                  f's_cmp_eq_u32 s{s_wm}, 0', f's_cselect_b32 s{s_c}, {BIG}, s{s_c}', f's_cselect_b32 s{s_b}, s{s_b}, {BIG}',
                  f's_cmp_eq_u32 s{s_m}, 0', f's_cselect_b32 s{s_b}, {BIG}, s{s_b}', f's_add_u32 s{s_d}, s{s_a}, 65536']
            a.extend(S)
            return
        nr = [160, 168, 176, 208]
        nml, rsl, csk, csv, csq, HB = 216, 220, 224, 232, 128, 136
        VP = [184, 196]
        U, M, t1, t2 = 144, 152, 156, 157
        S = []
        for b in (3, 0, 1, 2):
            S += [f'ds_read_b32 v{nml+b}, v{a_tok} offset:{64*b}', f'ds_read_b32 v{rsl+b}, v{a_tok} offset:{512+64*b}']
            if b == 3:
                for nb in range(2): S.append(f'ds_read_b128 {vr(csk+4*nb,4)}, v{a_csr} offset:{768+256+64*nb}')
                for nb in range(2): S.append(f'ds_read_b32 v{csv+nb}, v{a_csv} offset:{768+512+64*nb}')
            S += [f'ds_read_b128 {vr(nr[b],4)}, v{a_row} offset:{64*b}', f'ds_read_b128 {vr(nr[b]+4,4)}, v{a_row} offset:{512+64*b}']
        for nb in range(2): S.append(f'ds_read_b128 {vr(csq+4*nb,4)}, v{a_csr} offset:{768+64*nb}')
        def kprep(b):
            r = acc(b, 2); L = []
            for k in range(4): L.append(pk('fma', r+2*k, csk+2*k, ('b', nml+b), r+2*k))
            for k in range(4): L.append(pk('mul', r+2*k, r+2*k, ('b', rsl+b)))
            for k in range(4): L.append(cvt(r+k, r+2*k, r+2*k+1))
            return L
        def vprep(b):
            r = acc(b, 4); L = []
            for nb in range(2):
                for p in range(2): L.append(pk('fma', r+4*nb+2*p, nr[b]+2*p, ('b', csv+nb), r+4*nb+2*p))
            for nb in range(2):
                for p in range(2): L.append(pk('mul', r+4*nb+2*p, r+4*nb+2*p, nr[b]+4+2*p))
            for nb in range(2):
                for p in range(2):
                    if b == 3: L.append(cvt(acc(3, 3)+2*nb+p, r+4*nb+2*p, r+4*nb+2*p+1))
                    else: L.append(cvt(VP[nb]+2+2*b+p, r+4*nb+2*p, r+4*nb+2*p+1))
            return L
        def qprep(b):
            r = acc(b, 0); L = []
            for k in range(4): L.append(pk('fma', r+2*k, csq+2*k, ('b', nml+b), r+2*k))
            for k in range(4): L.append(cvt(r+k, r+2*k, r+2*k+1))
            return L
        mfma = E['mfma']
        TM = [mfma(1, b, n) for b in (3, 0, 1, 2) for n in (2, 3, 4, 5)] + [mfma(1, b, 1) for b in range(4)] + [mfma(1, b, 0) for b in range(self.bpos+1, 4)]
        rk, rv = acc(3, 2), acc(3, 4)
        P3 = [f'v_fmac_f32 v{rk+k}, v{csk+k}, v{nml+3}' for k in range(8)] + [f'v_mul_f32 v{rk+k}, v{rsl+3}, v{rk+k}' for k in range(8)] + kprep(3)[8:]
        P3 += [f'v_fmac_f32 v{rv+k}, v{nr[3]+k%4}, v{csv+k//4}' for k in range(8)] + [f'v_mul_f32 v{rv+k}, v{nr[3]+4+k%4}, v{rv+k}' for k in range(8)] + vprep(3)[8:]
        T0 = interleave(TM, S[:14] + P3, per=[2]*24); S = S[14:]
        for k in range(2): T0.append(f'buffer_store_dwordx4 {vr(acc(3,2)+4*k,4)}, v{l16}, {srd(sWS)}, s{s_c} offen offset:{1024*k} sc1')
        for k in range(2): S.append(f'ds_write_b128 v{a_h+1+k}, {vr(acc(3,2)+4*k,4)}')
        for nb in range(2): S.append(f'v_mov_b64 {vr(VP[nb]+8,2)}, {vr(acc(3,3)+2*nb,2)}')
        for b in range(3): S += kprep(b) + vprep(b)
        for b in range(4): S += qprep(b)
        for b in range(4): S.append(f'v_mul_f32 v{rsl+b}, {f2u(LOG2E * 32 ** -0.5)}, v{rsl+b}')
        def logits(b):
            s = nr[b]
            L = [mf16(s, HB if b == 0 else acc(b-1, 2), acc(b, 0), BI0 if b == 0 else BI), mf16(s+4, acc(b, 2), acc(b, 0), BI+4)]
            for p in range(2):
                L += [f'v_max3_f32 v{U+2*b+p}, v{s+2*p}, v{s+2*p+1}, v{s+4+2*p}', f'v_max_f32 v{U+2*b+p}, v{U+2*b+p}, v{s+5+2*p}',
                      f'v_mul_f32 v{U+2*b+p}, v{rsl+b}, v{U+2*b+p}']
            L.append(f'v_max_f32 v{M+b}, v{U+2*b}, v{U+2*b+1}')
            return L
        for b in (1, 2, 3): S += logits(b)
        if self.sch: S = sched(S)
        HL = [f'buffer_load_dwordx4 {vr(HB+4*k,4)}, v{l16}, {srd(sWS)}, s{s_b} offen offset:{1024*k} sc1' for k in range(2)]
        if self.fine == 3: self.aw(T0 + ['s_waitcnt lgkmcnt(0)']); T0 = []; self.stamp(13)
        self.aw(T0 + S[:self.hpos] + HL + S[self.hpos:]); S = []
        if self.fine == 3: self.stamp(14)
        a('s_waitcnt lgkmcnt(0)'); a('s_barrier')
        self.stamp(3)
        L1, L3 = self.lab('hg'), self.lab('hd')
        a(f's_cmp_eq_u32 s{s_wm}, 0'); a(f's_cbranch_scc1 {L1}')
        a('s_waitcnt vmcnt(0)')
        for k in range(2): a(f'ds_read_b128 {vr(HB+4*k,4)}, v{a_h} offset:{1024*k}')
        a('s_waitcnt lgkmcnt(0)')
        a(f's_branch {L3}')
        a.label(L1)
        self.ll_wait(HL, list(range(HB, HB+8)), t1, t2, 0, pre='s_waitcnt vmcnt(0)')
        a.label(L3)
        self.stamp(4)
        S += logits(0)
        for nb in range(2): S.append(f'v_mov_b64 {vr(VP[nb],2)}, {vr(HB+4+2*nb,2)}')
        def allred(op, mid):
            L = [sw32(M, M+2), sw32(M+1, M+3), f'{op} v{M}, v{M}, v{M+2}', f'{op} v{M+1}, v{M+1}, v{M+3}', sw16(M, M+1), f'{op} v{M+1}, v{M}, v{M+1}']
            L += mid
            L += [f'v_mov_b32 v{M}, v{M+1}', sw16(M, M+1), f'v_mov_b64 {vr(M+2,2)}, {vr(M,2)}', sw32(M, M+2), sw32(M+1, M+3)]
            return L
        S += allred('v_max_f32', [])
        for b in range(4): S.append(pk('add', U+2*b, U+2*b, ('b', M+b), neg=[0, 1]))
        for k in range(8): S.append(f'v_exp_f32 v{U+k}, v{U+k}')
        for b in range(4): S.append(f'v_add_f32 v{M+b}, v{U+2*b}, v{U+2*b+1}')
        S += allred('v_add_f32', [f'v_rcp_f32 v{M+1}, v{M+1}'])
        for b in range(4): S.append(pk('mul', U+2*b, U+2*b, ('b', M+b)))
        for b in range(4):
            P = nr[b]; O = acc(b, 4)
            for p in range(2): S.append(cvt(U+2*b+p, U+2*b+p, U+2*b+p))
            for blk in range(2):
                for p in range(2): S.append(f'v_and_b32 v{P+2*blk+p}, v{U+2*b+p}, v{MK+2*blk+p}')
            for db in range(2): S.append(mf16(O+4*db, VP[db]+2*b, P))
        S += [f's_add_u32 s{s_b}, s{s_a}, 32768', f's_add_u32 s{s_c}, s{s_d}, 32768']
        for b in range(4):
            O = acc(b, 4)
            for k in range(4): S.append(cvt(O+k, O+2*k, O+2*k+1))
            S.append(f'buffer_store_dwordx4 {vr(O,4)}, v{l16}, {srd(sWS)}, s{(s_a, s_b, s_d, s_c)[b]} offen sc1')
        self.sw(S, name='B finish')
        self.stamp(6)

    def build(self):
        a = self.a
        self.prologue()
        if self.st0 & 1: self.loader(); a.label('L_compute'); self.compute()
        else: self.compute(); self.loader()
        self.helper()
        a.label('L_fin')
        self.stamp(15)
        self.stamp_out()
        if self.probe and len(self.probe) > 3:
            def pub():
                a('s_mov_b64 exec, 1'); a('v_mov_b32 v2, s94'); a('s_not_b32 s93, s93'); a('v_mov_b32 v3, s93')
                a(f'buffer_atomic_umax v2, off, {srd(sDBG)}, 0 offset:12 sc1'); a(f'buffer_atomic_umax v3, off, {srd(sDBG)}, 0 offset:140 sc1')
                a('s_waitcnt vmcnt(0)'); a('v_mov_b32 v2, 1'); a(f'buffer_atomic_add v2, off, {srd(sDBG)}, 0 offset:20 sc1'); a('s_waitcnt vmcnt(0)')
                def w0():
                    self.spin(['s_sleep 8', f'buffer_load_dword v2, off, {srd(sDBG)}, 0 offset:20 sc1'], ['v_cmp_gt_u32 vcc, 0x100, v2'], 4, 10)
                    a(f'buffer_load_dword v2, off, {srd(sDBG)}, 0 offset:12 sc1'); a(f'buffer_load_dword v3, off, {srd(sDBG)}, 0 offset:140 sc1'); a('s_waitcnt vmcnt(0)')
                    a('v_readfirstlane_b32 s94, v2'); a('v_readfirstlane_b32 s93, v3'); a('s_not_b32 s93, s93')
                self.cond(['s_cmp_eq_u32 s2, 0'], w0)
                a('s_mov_b64 exec, -1')
            self.cond([f's_cmp_eq_u32 s{s_wave}, 0'], pub)
        if self.probe:
            def body():
                a('s_sub_u32 s93, s94, s93'); a(f's_mul_i32 s93, s93, {self.probe[2]}'); a('s_min_u32 s93, s93, 100000')
                a(f's_memrealtime s[{s_t+6}:{s_t+7}]'); a('s_waitcnt lgkmcnt(0)'); a(f's_add_u32 s93, s93, s{s_t+6}')
                a.label('L_probe')
                a(f's_memrealtime s[{s_t+6}:{s_t+7}]'); a('s_waitcnt lgkmcnt(0)'); a(f's_sub_u32 s94, s{s_t+6}, s93'); a('s_cmp_lt_i32 s94, 0'); a('s_cbranch_scc1 L_probe')
            self.cond([f's_or_b32 s{s_t}, s2, s{s_wave}', f's_cmp_eq_u32 s{s_t}, 0'], body)
        a('s_waitcnt vmcnt(0)')
        a.label('L_end')
        a('s_endpgm')
        for b in self.later: a.ins += b.ins
        a.pad()
        assert a.maxreg('v') <= 255 and a.maxreg('s') < 96
        return a.text()


def generate(listform=False, **kw):
    body = Gen(**kw).build()
    ref = open('interleave_layers__linear_kernel_hedgehog__sliding_local_dilated__prompt.s.ref').read() if not listform else ''
    head = ''.join(l + '\n' for l in ref.split('\n') if l.startswith(';') and '@launch' not in l)
    if listform: head += f'; @launch kernel={KNAME} grid=(256,1,1) block=(512,1,1) lds={LDS_BYTES}\n'
    else: head += f'; @launch grid=(256,1,1) block=(512,1,1) lds={LDS_BYTES}\n'
    return head + '.amdgcn_target "amdgcn-amd-amdhsa--gfx950"\n' + kernel_head(KNAME) + body + kernel_desc(KNAME, 256, 96, 256)

if __name__ == '__main__':
    kw = eval(sys.argv[2]) if len(sys.argv) > 2 else {}
    open(sys.argv[1], 'w').write(generate(**kw))
```

```python
import sys, struct
sys.path.insert(0, 'work')
from asmlib import *

KNAME = 'interleave_layers__linear_kernel_hedgehog__sliding_local_dilated__prompt_kernel'

WS_CTR, WS_STAMP, WS_ST, WS_CS = 0x0, 0x100000, 0x200000, 0x300000
WS_HALO, WS_KVF, WS_ZP, WS_ZF, WS_KVP = 0x400000, 0x600000, 0x680000, 0x6C0000, 0x800000
WS_RF = 0x700000
WS_XI, WS_OI, WS_END = 0xC00000, 0x1800000, 0x2800000
BIG = 0x40000000
STG = 40960
XOFF = 24576
L_WO = 24576
L_SPARE = 3 * STG
L_P = 155648
P_NM, P_RS, P_CS, P_MODE, P_CNT, P_PHI = L_P, L_P + 512, L_P + 1024, L_P + 2816, L_P + 2832, L_P + 3072
LDS_BYTES = 163840
SCR = 5120
LOG2E = 1.4426950408889634
def f2u(x): return '0x%08x' % struct.unpack('<I', struct.pack('<f', x))[0]

s_fast = 3
pAX, pAW, pPHI, pAWO, pBW, pBWO, pOUT, pDBG, pWS = 4, 6, 8, 10, 14, 16, 18, 20, 22
sWS, sX, sW, sWO, sOUT, sDBG = 24, 28, 32, 36, 40, 44
s_m, s_g, s_wave, s_l = 48, 49, 50, 51
s_t = 52
s_cnt, s_x = 60, 61
s_i = 62
s_stamp = 63
s_rot = 64
s_rot2 = 95
s_ft, s_fn, s_fd, s_po = 90, 91, 88, 87
def srd(b): return 's[%d:%d]' % (b, b + 3)


def sx(d, terms, const=0):
    L = []
    for n, (r, k) in enumerate([t for t in terms if t[1]]):
        t = d if n == 0 else s_x
        if k == 1 and n: t = r
        elif k == 1: L.append(f's_mov_b32 s{t}, s{r}')
        elif k > 0 and k & (k - 1) == 0: L.append(f's_lshl_b32 s{t}, s{r}, {k.bit_length()-1}')
        else: L.append(f's_mul_i32 s{t}, s{r}, {k}')
        if n: L.append(f's_add_u32 s{d}, s{d}, s{t}')
    if const: L.append(f's_add_u32 s{d}, s{d}, {const:#x}' if const > 0 else f's_sub_u32 s{d}, s{d}, {-const:#x}')
    return L

def pkop(r):
    if isinstance(r, tuple):
        return vr(r[1] & ~1, 2), r[1] & 1, r[1] & 1
    assert r % 2 == 0
    return vr(r, 2), 0, 1
def pk(op, d, *src, neg=None):
    o = [pkop(s) for s in src]
    t = 'v_pk_%s_f32 %s, %s' % (op, vr(d, 2), ', '.join(x[0] for x in o))
    lo = [x[1] for x in o]; hi = [x[2] for x in o]
    if any(lo): t += ' op_sel:[%s]' % ','.join(map(str, lo))
    if not all(hi): t += ' op_sel_hi:[%s]' % ','.join(map(str, hi))
    if neg: t += ' neg_lo:[%s] neg_hi:[%s]' % (','.join(map(str, neg)), ','.join(map(str, neg)))
    return t
def cvt(d, a, b): return f'v_cvt_pk_bf16_f32 v{d}, v{a}, v{b}'
def sw16(a, b): return f'v_permlane16_swap_b32 v{a}, v{b}'
def sw32(a, b): return f'v_permlane32_swap_b32 v{a}, v{b}'
def mf16(d, A, B, C=None): return f'v_mfma_f32_16x16x32_bf16 {vr(d,4)}, {vr(A,4)}, {vr(B,4)}, ' + (vr(C, 4) if C is not None else '0')
def mf32(d, A, B, C=None): return f'v_mfma_f32_32x32x16_bf16 {vr(d,16)}, {vr(A,4)}, {vr(B,4)}, ' + (vr(C, 16) if C is not None else '0')


class Gen:
    def __init__(self, prof=0, limit=40000, dist=2, touch=1, bm=25, local=1, pd=6, sch=1, hprio=2, opos=(1, 5), warm=1, nap=1, probe=None, snake=1, rf=2, hq=4, fine=0, llf='sc1', ot=0, hc=None, hpos=90, early=0, w2=0, w0b=0, cpf=0, tr=3, bpos=1, r0=2, rprio=3, w0a=1, pipe=0, b1=0, b2=0, n1=0, n2=0, zw=2, yw=60, thr=None, pw=0, po=0, jit=0, st0=6, vpos=1, fst='sc1', rot0=12, iw=2, oh=(0, 9), dl=6, lprio=3, fpos=24, lf='', lfl=0, xnap=0, ls=0, pf='nt'):
        self.a = Asm()
        assert 16 <= bm < 32 - dl//2 and not early
        self.__dict__.update(prof=prof, limit=limit, dist=dist, touch=touch, bm=bm, local=local, pd=pd, sch=sch, hprio=hprio, opos=opos, warm=warm, nap=nap, probe=probe, snake=snake, rf=rf, hq=hq, fine=fine, llf=llf, ot=ot, hc=hc, hpos=hpos, early=early, w2=w2, w0b=w0b, cpf=cpf, tr=tr, bpos=bpos, r0=r0, rprio=rprio, w0a=w0a, pipe=pipe, b1=b1, b2=b2, n1=n1, n2=n2, zw=zw, yw=yw, thr=thr, pw=pw, po=po, jit=jit, st0=st0, vpos=vpos, fst=fst, rot0=rot0, iw=iw, oh=oh, dl=dl, lprio=lprio, fpos=fpos, lf=lf, lfl=lfl, xnap=xnap, ls=ls, pf=pf)
        self.nlab = 0; self.later = []

    def lab(self, p):
        self.nlab += 1
        return 'L_%s_%d' % (p, self.nlab)

    def aw(self, L):
        self.a.extend(autowait(L))
    def sw(self, L, crit=None, name=''):
        if self.sch:
            L = sched(L, crit)
            if name and __name__ == '__main__': print('sched', name, len(L), 'instructions, about', sched.last_estimate, 'cycles', file=sys.stderr)
        self.a.extend(autowait(L))

    def cond(self, test, body):
        L = self.lab('skip')
        self.a.extend(test); self.a(f's_cbranch_scc0 {L}')
        body()
        self.a.label(L)

    def aside(self, f):
        main, self.a = self.a, Asm()
        f()
        self.later.append(self.a); self.a = main

    def spin(self, issue, check, vt, tag, pre=False, alt=None, checked=False):
        a = self.a
        L, C, T, A, D = (self.lab(x) for x in ('spin', 'chk', 'tmo', 'alt', 'done'))
        count = [f's_add_u32 s{s_cnt}, s{s_cnt}, 1', f's_cmp_lt_u32 s{s_cnt}, {self.limit}', f's_cbranch_scc0 {T}']
        if checked:
            alt = issue; a(f's_cbranch_vccnz {A}')
        else:
            a(f's_mov_b32 s{s_cnt}, 0')
            if alt: a(f's_cmp_eq_u32 s{s_fast}, 1'); a(f's_cbranch_scc0 {A}')
            if pre:
                a(f's_branch {C}')
                a.label(L); a.extend(issue); a.extend(count); a('s_waitcnt vmcnt(0)')
                a.label(C)
                if pre is not True: a(pre)
                a.extend(check)
            else:
                S = autowait(list(issue) + ['s_nop 3'] + list(check)); k = S.index('s_nop 3')
                a.label(L); a.extend(S[:k]); a.extend(count); a.extend(S[k+1:])
            a(f's_cbranch_vccnz {L}')
        a.label(D)
        def rest():
            a = self.a
            if alt:
                L2 = self.lab('spin')
                a.label(A); a(f's_mov_b32 s{s_cnt}, 0')
                a.label(L2); a.extend(alt); a.extend(count); a('s_waitcnt vmcnt(0)' if checked else 's_waitcnt vmcnt(0) lgkmcnt(0)'); a.extend(check)
                a(f's_cbranch_vccnz {L2}'); a(f's_branch {D}')
            a.label(T)
            a('s_waitcnt vmcnt(0)' if checked else 's_waitcnt vmcnt(0) lgkmcnt(0)')
            a(f'v_mov_b32 v{vt}, {1 << tag}')
            a(f'buffer_atomic_or v{vt}, off, {srd(sDBG)}, 0 offset:4 sc1')
            a(f's_branch {D}')
        self.aside(rest)

    def ll_wait(self, loads, regs, t1, t2, tag, pre=False):
        S = []
        h = len(regs) // 2
        for t, R in ((t1, regs[:h]), (t2, regs[h:])):
            S.append(f'v_max_u32 v{t}, v{R[0]}, v{R[1]}')
            for k in range(2, len(R), 2): S.append(f'v_max3_u32 v{t}, v{t}, v{R[k]}, v{R[k+1]}')
        S += [f'v_max_u32 v{t1}, v{t1}, v{t2}', f'v_cmp_eq_u32 vcc, -1, v{t1}']
        loads = [l.replace('sc1', self.llf) for l in loads]
        self.spin(loads, S, t1, tag, pre)

    def flag_set(self, soff, vt, which=3):
        a = self.a
        a('s_mov_b64 exec, 1')
        if which & 1: a(f'buffer_store_dword v{vt}, off, {srd(sWS)}, s{soff} {self.lf}')
        if which == 3 and self.lfl == 1: a(f'buffer_load_dword v220, off, {srd(sWS)}, s{soff} sc1')
        if which == 3 and self.lfl == 2: which = 1
        if which & 2: a(f'buffer_store_dword v{vt}, off, {srd(sWS)}, s{soff+1} sc1')
        a('s_mov_b64 exec, -1')
    def flag_addr(self, va, vt, soff, remote=False):
        L = [f'v_bfe_u32 v{va}, v1, 1, 3', f'v_and_b32 v{vt}, 1, v1', f'v_lshl_add_u32 v{va}, v{va}, 2, v{vt}']
        if remote: return L + [f'v_lshlrev_b32 v{va}, 7, v{va}']
        return L + [f's_cmp_eq_u32 s{s_fast}, 1', f's_cselect_b32 s{s_t}, {self.ls}, 5', f's_cselect_b32 s{s_t+1}, 0, {WS_RF}',
                    f's_lshl_b32 s{soff}, s{soff}, s{s_t}', f's_add_u32 s{soff}, s{soff}, s{s_t+1}', f's_add_u32 s{s_t}, s{s_t}, 2',
                    f'v_lshlrev_b32 v{va}, s{s_t}, v{va}']
    def flag_load(self, soff, va, vt, fl='sc1'): return f'buffer_load_dword v{vt}, v{va}, {srd(sWS)}, s{soff} offen {fl}'
    def flag_wait(self, soff, va, vt, tag, pre=False, nap=0, own=False, checked=False):
        z = [f's_sleep {nap}'] if nap else []
        self.spin(z + [self.flag_load(soff, va, vt, self.pf if own else 'sc1')], [f'v_cmp_eq_u32 vcc, 0, v{vt}'], vt, tag, pre,
                  z + [self.flag_load(soff, va, vt)] if own else None, checked)
    def get_mode(self, vt):
        self.a.extend([f'v_mov_b32 v{vt}, {P_MODE}', f'ds_read_b32 v{vt}, v{vt}', 's_waitcnt lgkmcnt(0)', f'v_readfirstlane_b32 s{s_fast}, v{vt}'])

    def jitter(self, k):
        a = self.a
        L = self.lab('jit')
        a.extend([f's_lshl_b32 s{s_t+6}, s2, 3', f's_add_u32 s{s_t+6}, s{s_t+6}, s{s_wave}', f's_lshl_b32 s{s_t+6}, s{s_t+6}, 2', f's_add_u32 s{s_t+6}, s{s_t+6}, s{s_l}',
                  f's_add_u32 s{s_t+6}, s{s_t+6}, {(k*7919 + self.jit*104729) & 0xffffff}', f's_mul_i32 s{s_t+6}, s{s_t+6}, 0x9e3779b1', f's_lshr_b32 s{s_t+7}, s{s_t+6}, 13',
                  f's_xor_b32 s{s_t+6}, s{s_t+6}, s{s_t+7}', f's_mul_i32 s{s_t+6}, s{s_t+6}, 0x85ebca6b', f's_lshr_b32 s{s_t+7}, s{s_t+6}, 29',
                  f's_lshr_b32 s{s_t+6}, s{s_t+6}, 8', f's_and_b32 s{s_t+6}, s{s_t+6}, 127', f's_lshr_b32 s{s_t+6}, s{s_t+6}, s{s_t+7}'])
        a.label(L)
        a.extend(['s_sleep 1', f's_sub_u32 s{s_t+6}, s{s_t+6}, 1', f's_cbranch_scc0 {L}'])
    def stamp(self, k):
        if self.jit: self.jitter(k)
        if self.probe:
            for n, (pl, pk_) in enumerate(self.probe[:2]):
                if pk_ == k:
                    def body():
                        self.a(f's_memrealtime s[{s_t+6}:{s_t+7}]'); self.a('s_waitcnt lgkmcnt(0)'); self.a(f's_mov_b32 s{93+n}, s{s_t+6}')
                    self.cond([f's_cmp_eq_u32 s{s_l}, {pl}'], body)
        if not self.prof or self.prof >= 5: return
        a = self.a
        a(f'{"s_memtime" if self.prof == 4 else "s_memrealtime"} s[{s_t+6}:{s_t+7}]')
        a(f's_mov_b32 s{s_stamp}, m0')
        a(f's_lshl_b32 m0, s{s_l}, 4'); a(f's_add_u32 m0, m0, {k}')
        a('s_waitcnt lgkmcnt(0)')
        a(f'v_writelane_b32 v255, s{s_t+6}, m0')
        a(f's_mov_b32 m0, s{s_stamp}')
    def stamp_out(self):
        if not self.prof: return
        a = self.a
        a.extend(sx(s_t, [(2, 2048), (s_wave, 256)], WS_STAMP))
        a('v_lshlrev_b32 v254, 2, v1')
        a(f'buffer_store_dword v255, v254, {srd(sWS)}, s{s_t} offen')

    def prologue(self):
        a = self.a
        a('s_cmp_ge_u32 s2, 256'); a('s_cbranch_scc1 L_end')
        a('s_load_dwordx16 s[4:19], s[0:1], 0')
        a('s_load_dwordx4 s[20:23], s[0:1], 64')
        a('v_lshrrev_b32 v2, 6, v0')
        a(f'v_readfirstlane_b32 s{s_wave}, v2')
        a('v_and_b32 v1, 63, v0')
        a(f's_and_b32 s{s_rot}, s2, 3'); a(f's_lshl_b32 s{s_rot}, s{s_rot}, 2')
        a(f's_bfe_u32 s{s_t}, s2, 0x20003'); a(f's_add_u32 s{s_m}, s{s_rot}, s{s_t}')
        a(f's_mov_b32 s{s_rot}, s{s_m}')
        a(f's_and_b32 s{s_rot2}, s2, 4'); a(f's_lshl_b32 s{s_rot2}, s{s_rot2}, 1')
        a(f's_lshr_b32 s{s_g}, s2, 5'); a(f's_add_u32 s{s_g}, s{s_g}, s{s_rot2}')
        a(f's_mov_b32 s{s_l}, 0'); a(f's_mov_b32 s{s_fast}, 0')
        for b, n in ((sWS, WS_END), (sX, 2048*1024*2), (sW, 1024*3072*2), (sWO, 1024*1024*2), (sOUT, WS_END), (sDBG, 256)):
            a(f's_mov_b32 s{b+2}, {n}'); a(f's_mov_b32 s{b+3}, 0x20000')
        if self.prof: a('v_mov_b32 v255, 0')
        self.stamp(0)
        a(f's_cmp_ge_u32 s{s_wave}, 6'); a('s_cbranch_scc1 L_helper')
        if self.st0 & 1: a(f's_cmp_lt_u32 s{s_wave}, 4'); a('s_cbranch_scc1 L_compute')
        else: a(f's_cmp_ge_u32 s{s_wave}, 4'); a('s_cbranch_scc1 L_loader')
    def pointers(self):
        a = self.a
        a('s_waitcnt lgkmcnt(0)')
        for b, p in ((sWS, pWS), (sX, pAX), (sW, pAW), (sWO, pAWO), (sOUT, pWS), (sDBG, pDBG)):
            a(f's_mov_b64 s[{b}:{b+1}], s[{p}:{p+1}]')

    def trickle_setup(self):
        a = self.a
        a(f's_mov_b64 s[{sOUT}:{sOUT+1}], s[{sWO}:{sWO+1}]'); a(f's_mov_b32 s{sOUT+2}, {1 << 21}')
        a.extend(sx(s_ft, [(2, 8192), (s_wave, 2048)], -8192))
        n1 = -(-16 // self.tr)
        a(f's_cmp_eq_u32 s{s_l}, 0'); a(f's_cselect_b32 s{s_fn}, 12, {n1}')
        a(f's_cmp_lt_u32 s{s_l}, {2 if self.warm else 0}'); a(f's_cselect_b32 s{s_fn}, s{s_fn}, 0')
    def trickle_lines(self, n):
        a = self.a
        a(f's_sub_u32 s{s_t}, s{sOUT+2}, {128*n}'); a(f's_min_u32 s{s_t}, s{s_t}, s{s_ft}')
        for r in range(n): a(f's_buffer_load_dwordx2 s[{s_fd}:{s_fd+1}], {srd(sOUT)}, s{s_t} offset:{128*r+60}')
        a(f's_add_u32 s{s_ft}, s{s_ft}, {128*n}')
    def trickle(self, i):
        a = self.a
        n1 = -(-16 // self.tr)
        def nxt():
            a(f's_mov_b64 s[{sOUT}:{sOUT+1}], s[{pBW}:{pBW+1}]'); a(f's_mov_b32 s{sOUT+2}, {3 << 21}')
            a.extend(sx(s_ft, [(2, 24576), (s_wave, 6144)], -24576))
        def body():
            if isinstance(i, str): self.cond([f's_cmp_eq_u32 {i}, {n1}'], nxt)
            elif i == n1: nxt()
            self.trickle_lines(self.tr)
        self.cond([f's_cmp_gt_u32 s{s_fn}, {i}'], body)
    def trickle_rest(self, part):
        rest = 48 - self.tr * (12 - -(-16 // self.tr))
        n = rest
        self.cond([f's_cmp_eq_u32 s{s_fn}, 12'], lambda: self.trickle_lines(n))

    def warm_w(self):
        a = self.a
        if not self.pw: return
        a(f's_and_b32 s{s_t}, s{s_m}, 3'); a.extend(sx(s_t+1, [(s_t, 16*6144), (s_wave, 4*6144), (s_g, 128)], -16*6144))
        a(f's_and_b32 s{s_t+2}, s{s_g}, 7')
        for st in range(1, 1 + self.pw):
            a(f's_cmp_le_u32 s{s_t+2}, {st-1}'); a(f's_addc_u32 s{s_t}, s{s_rot2}, {st-1}')
            a(f's_mul_i32 s{s_t}, s{s_t}, {64*6144}'); a(f's_add_u32 s{s_t}, s{s_t}, s{s_t+1}')
            for k in range(12): a(f's_buffer_load_dwordx2 s[{s_fd}:{s_fd+1}], {srd(sW)}, s{s_t} offset:{2048*k+60}')
    def warm_wo_setup(self):
        a = self.a
        a(f's_and_b32 s{s_t}, s{s_m}, 3'); a.extend(sx(s_po, [(s_t, 256*2048), (s_wave, 64*2048), (s_g, 128)], -256*2048))
    def warm_wo(self, n):
        a = self.a
        def body():
            for k in range(n): a(f's_buffer_load_dwordx2 s[{s_fd}:{s_fd+1}], {srd(sWO)}, s{s_po} offset:{2048*k+60}')
            a(f's_add_u32 s{s_po}, s{s_po}, {2048*n}'); a(f's_min_u32 s{s_po}, s{s_po}, {(1 << 21) - 2048*n}')
        if self.po: self.cond([f's_lshr_b32 s{s_t}, {self.po}, s{s_l}', f's_bitcmp1_b32 s{s_t}, 0'], body)

    def w_dma_offsets(self, dw, idx, t0, t1, t2):
        a = self.a
        a(f'v_lshrrev_b32 v{t0}, 3, v1'); a(f'v_mul_u32_u24 v{t0}, 6144, v{t0}')
        a(f'v_and_b32 v{t1}, 7, v1'); a(f'v_bfe_u32 v{t2}, v1, 4, 1'); a(f'v_lshlrev_b32 v{t2}, 1, v{t2}')
        a(f'v_xor_b32 v{t1}, v{t1}, v{t2}'); a(f'v_xor_b32 v{t2}, 4, v{t1}')
        a(f'v_lshl_add_u32 v{t1}, v{t1}, 4, v{t0}'); a(f'v_lshl_add_u32 v{t2}, v{t2}, 4, v{t0}')
        d = 8*6144 - 1024
        a(f's_lshl_b32 s{s_t+1}, s{s_g}, 7'); a(f'v_add_u32 v{t1}, s{s_t+1}, v{t1}'); a(f's_add_u32 s{s_t+1}, s{s_t+1}, {d}'); a(f'v_add_u32 v{t2}, s{s_t+1}, v{t2}')
        a(f's_cmp_eq_u32 s{idx}, 0')
        for t in range(3):
            c = [((3*w + t) & 1)*32*6144 + ((3*w + t) >> 1)*2048 for w in range(2)]
            a(f's_mov_b32 s{s_t}, {c[1]}'); a(f's_cmov_b32 s{s_t}, {c[0]}')
            a(f'v_add_u32 v{dw+4*t}, s{s_t}, v{t1}'); a(f'v_add_u32 v{dw+4*t+1}, s{s_t}, v{t2}')
            a(f'v_add_u32 v{dw+4*t+2}, {2*d}, v{dw+4*t}'); a(f'v_add_u32 v{dw+4*t+3}, {2*d}, v{dw+4*t+1}')

    def w_frag_addr(self, aw, head_sreg, base, t0, t1, t2, nb_list=(0, 1)):
        L = [f'v_lshrrev_b32 v{t2}, 4, v1', f'v_bfe_u32 v{t0}, v1, 2, 2', f'v_lshl_add_u32 v{t1}, v{t2}, 3, v{t0}',
             f'v_lshrrev_b32 v{t0}, 1, v{t0}', f'v_and_b32 v{t2}, 1, v{t2}', f'v_lshl_add_u32 v{t0}, v{t2}, 1, v{t0}']
        if head_sreg is not None: L += [f's_lshl_b32 s{s_t}, s{head_sreg}, 1', f'v_xor_b32 v{t0}, s{s_t}, v{t0}']
        L += [f'v_and_b32 v{t2}, 3, v1', f'v_lshlrev_b32 v{t2}, 3, v{t2}', f'v_lshl_add_u32 v{t2}, v{t1}, 7, v{t2}']
        if base: L.append(f'v_add_u32 v{t2}, {base}, v{t2}')
        for k, nb in enumerate(nb_list): L += [f'v_xor_b32 v{t1}, {nb}, v{t0}', f'v_lshl_add_u32 v{aw+k}, v{t1}, 5, v{t2}']
        return L

    def reduce_job(self, after_by=None, after_fill=None):
        a = self.a
        T = 200
        vA, vZ, vO, t1, t2 = T, T+1, T+2, T+3, T+4
        s_a, s_b, s_c, s_d, s_e = 80, 81, 82, 83, 84
        a.extend(sx(s_t, [(s_l, 32), (s_g, 4), (s_wave, 1)], -4))
        a.extend(sx(s_a, [(s_t, 32768), (s_m, 128)], WS_KVP)); a(f's_add_u32 s{s_b}, s{s_a}, 16384')
        a.extend(sx(s_d, [(s_t, 2048), (s_m, 128)], WS_KVF))
        a.extend(sx(s_c, [(s_t, 1024)], WS_ZP)); a.extend(sx(s_e, [(s_t, 64)], WS_ZF))
        a(f's_and_b32 s{s_t}, s{s_t}, 1'); a(f's_xor_b32 s{s_t+1}, s{s_m}, s{s_g}'); a(f's_or_b32 s{s_t}, s{s_t}, s{s_t+1}')
        a(f's_cselect_b32 s{s_c}, {BIG}, s{s_c}'); a(f's_cselect_b32 s{s_e}, {BIG}, s{s_e}')
        a(f'v_and_b32 v{t1}, 7, v1'); a(f'v_lshlrev_b32 v{t1}, 4, v{t1}')
        a(f'v_lshrrev_b32 v{t2}, 3, v1'); a(f'v_lshl_add_u32 v{vA}, v{t2}, 11, v{t1}')
        a(f'v_lshlrev_b32 v{vZ}, 4, v1')
        a(f'v_lshrrev_b32 v{t2}, 4, v1'); a(f'v_lshl_add_u32 v{vO}, v{t2}, 2, v{t1}')
        D = T + 8; U = 160
        def late_fill():
            for k in range(4): a(f'v_mov_b32 v{D+k}, -1')
            fill = f'buffer_store_dwordx4 {vr(D,4)}, v{vZ}, {srd(sWS)}, s{s_t} offen'
            a.extend(sx(s_t, [(s_g, 131072), (s_wave, 32768), (s_m, 2048)], WS_KVP + (1 << 21) - 4*32768)); a(fill + ' sc1'); a(fill + ' offset:1024 sc1')
            a(f's_lshr_b32 s{s_t+1}, s{s_wave}, 1'); a(f's_and_b32 s{s_t+2}, s{s_wave}, 1')
            a.extend(sx(s_t, [(s_t+2, 1 << 20), (s_m, 1 << 16), (s_g, 4096), (s_t+1, 2048)], WS_HALO - 2*2048)); a(fill + ' sc1'); a(fill + ' offset:1024 sc1')
            a.extend(sx(s_t, [(s_wave, 262144), (s_m, 16384), (s_g, 1024)], WS_ST - 3*262144))
            a.extend(sx(s_t+3, [(s_g, 16384), (s_m, 1024)], WS_CS + 262144))
            a(f's_cmp_eq_u32 s{s_wave}, 7'); a(f's_cselect_b32 s{s_t}, s{s_t+3}, s{s_t}'); a(fill + ' sc1')
            a('s_mov_b64 exec, 0xff')
            a(f's_add_u32 s{s_t}, s{s_d}, {1 << 17}'); a(fill + ' sc1')
            a(f's_add_u32 s{s_t}, s{s_e}, {1 << 12}'); a(fill + ' sc1')
            a.extend(sx(s_t, [(s_g, 4096), (s_t+1, 2048), (s_m, 128)], WS_ZP + (1 << 16) - 2*2048)); a(fill + ' sc1')
            a('s_mov_b64 exec, -1')
            a('s_waitcnt vmcnt(0)')
        self.cond([f's_cmp_eq_u32 s{s_l}, 0'], late_fill)
        a('s_barrier')
        if self.jit: self.jitter(20)
        if self.rprio: a(f's_setprio {self.rprio}')
        a('s_barrier')
        if after_by and self.w0a == 0: after_by()
        if self.b1: a(f's_sleep {self.b1}')
        self.ll_wait(([f's_sleep {self.n1}'] if self.n1 else []) + [f'buffer_load_dwordx4 {vr(D,4)}, v{vA}, {srd(sWS)}, s{s_a} offen sc1',
                      f'buffer_load_dwordx4 {vr(D+4,4)}, v{vA}, {srd(sWS)}, s{s_b} offen sc1',
                      f'buffer_load_dwordx4 {vr(D+8,4)}, v{vZ}, {srd(sWS)}, s{s_c} offen sc1',
                      f'buffer_load_dwordx4 {vr(D+12,4)}, v{vZ}, {srd(sWS)}, s{s_c} offen offset:1024 sc1'],
                     list(range(D, D+16)), t1, t2, 1)
        self.stamp(5)
        S = []
        for z in range(2):
            d, u = D + 8*z, U + 16*z
            for k in range(8): S += [f'v_lshlrev_b32 v{u+2*k}, 16, v{d+k}', f'v_and_b32 v{u+2*k+1}, 0xffff0000, v{d+k}']
            for k in range(4): S.append(pk('add', u+2*k, u+2*k, u+8+2*k))
            for k in range(4): S.append(sw32(u+k, u+4+k))
            S += [pk('add', u, u, u+4), pk('add', u+2, u+2, u+6), sw16(u, u+2), sw16(u+1, u+3), pk('add', u, u, u+2)]
            for k in range(2): S.append(f'v_add_f32_dpp v{u+k}, v{u+k}, v{u+k} row_ror:8 row_mask:0xf bank_mask:0xf')
            S.append(cvt(u, u, u+1))
        S += ['s_mov_b32 exec_lo, 0x00ff00ff', 's_mov_b32 exec_hi, 0x00ff00ff',
              f'buffer_store_dword v{U}, v{vO}, {srd(sWS)}, s{s_d} offen sc1',
              f'buffer_store_dword v{U+16}, v{vO}, {srd(sWS)}, s{s_e} offen sc1', 's_mov_b64 exec, -1']
        self.sw(S)
        if self.rprio: a('s_setprio 0')
        if after_by and self.w0a == 1: after_by()
        if self.zw: a(f's_waitcnt vmcnt({12 if (after_by and self.w0a == 1 and self.zw == 1) else 0})')
        a('s_barrier')
        if after_by and self.w0a == 2: after_by()

    def loader(self):
        a = self.a
        a.label('L_loader')
        dx, dw, dwo, t0, t1, t2, vf = 8, 16, 28, 2, 3, 4, 5
        s_ld, s_kx, s_kw, s_slot, s_mx, s_xstep, s_wo, s_wm0, s_sx, s_sw, s_xb, s_fl, s_mw = range(65, 78)
        a(f's_sub_u32 s{s_ld}, s{s_wave}, 4')
        self.w_dma_offsets(dw, s_ld, t0, t1, t2)
        a(f's_mul_i32 s{s_mw}, s{s_ld}, 12288')
        a(f's_lshl_b32 s{s_mx}, s{s_ld}, 13'); a(f's_add_u32 s{s_mx}, s{s_mx}, {XOFF}')
        s_flip = 78
        def nxt(r):
            return [f's_cmp_eq_u32 s{r}, s{s_flip}', f's_addc_u32 s{r}, s{r}, 1', f's_and_b32 s{r}, s{r}, 15']
        def wst(slot=None):
            L = []
            for j in range(12):
                if j == 0: L.append(f's_add_u32 m0, s{s_mw}, ' + (f's{s_slot}' if slot is None else str(slot*STG)))
                elif j % 4 == 0: L.append('s_add_u32 m0, m0, 4096')
                L.append(f'buffer_load_dwordx4 v{dw+j}, {srd(sW)}, s{s_kw} offen offset:{1024*(j%4)} lds')
            a.extend(L + nxt(s_sw) + [f's_mul_i32 s{s_kw}, s{s_sw}, {64*6144}'])
        def xst(slot=None):
            L = []
            for j in range(8):
                if j == 0: L.append(f's_add_u32 m0, s{s_mx}, ' + (f's{s_slot}' if slot is None else str(slot*STG)))
                elif j == 4: L.append('s_add_u32 m0, m0, 4096')
                L.append(f'buffer_load_dwordx4 v{dx+j}, {srd(sX)}, s{s_kx} offen offset:{1024*(j%4)} sc1 lds')
            a.extend(L + nxt(s_sx) + [f's_mul_i32 s{s_kx}, s{s_sx}, s{s_xstep}', f's_add_u32 s{s_kx}, s{s_kx}, s{s_xb}'])
        def kstart(first):
            if first:
                a(f's_and_b32 s{s_sx}, s{s_m}, {self.rot0}'); a(f's_mov_b32 s{s_sw}, s{s_sx}'); a(f's_mov_b32 s{s_flip}, 16')
            else:
                a(f's_add_u32 s{s_sw}, s{s_rot2}, 15'); a(f's_and_b32 s{s_sw}, s{s_sw}, 15'); a(f's_mov_b32 s{s_sx}, s{s_sw}')
                a(f's_add_u32 s{s_flip}, s{s_g}, 15'); a(f's_and_b32 s{s_flip}, s{s_flip}, 15'); a.extend(nxt(s_sx))
            a(f's_mul_i32 s{s_kw}, s{s_sw if first else s_g}, {64*6144}'); a(f's_mul_i32 s{s_kx}, s{s_sx}, s{s_xstep}'); a(f's_add_u32 s{s_kx}, s{s_kx}, s{s_xb}')
        a(f's_lshl_b32 s{s_xb}, s{s_m}, 18'); a(f's_mov_b32 s{s_xstep}, 128'); kstart(True)
        self.pointers()
        wst(0)
        a(f'v_lshrrev_b32 v{t0}, 3, v1'); a(f'v_and_b32 v{t1}, 7, v1')
        a(f'v_lshrrev_b32 v{t2}, 4, v1'); a(f'v_xor_b32 v{t1}, v{t1}, v{t2}'); a(f'v_xor_b32 v{t2}, 4, v{t1}')
        a(f's_lshl_b32 s{s_t}, s{s_ld}, 17'); a(f'v_lshl_add_u32 v{t0}, v{t0}, 11, s{s_t}')
        a(f'v_lshl_add_u32 v{t1}, v{t1}, 4, v{t0}'); a(f'v_lshl_add_u32 v{t2}, v{t2}, 4, v{t0}')
        for j in range(8): a(f'v_add_u32 v{dx+j}, {j*16384 - 1024*(j%4)}, v{t1 if j % 2 == 0 else t2}')
        xst(0); wst(1)
        a(f'v_lshrrev_b32 v{t0}, 5, v1'); a(f'v_lshlrev_b32 v{t0}, 4, v{t0}')
        a(f'v_bfe_u32 v{t1}, v1, 3, 2'); a(f'v_add_u32 v{t0}, v{t0}, v{t1}')
        a(f's_lshl_b32 s{s_t}, s{s_g}, 7'); a(f'v_lshl_add_u32 v{t0}, v{t0}, 11, s{s_t}')
        a(f'v_and_b32 v{t1}, 7, v1'); a(f'v_bfe_u32 v{t2}, v1, 4, 1'); a(f'v_lshlrev_b32 v{t2}, 1, v{t2}')
        a(f'v_xor_b32 v{t1}, v{t1}, v{t2}'); a(f'v_xor_b32 v{t2}, 4, v{t1}')
        a(f'v_lshl_add_u32 v{t1}, v{t1}, 4, v{t0}'); a(f'v_lshl_add_u32 v{t2}, v{t2}, 4, v{t0}')
        for G in range(4): a(f'v_add_u32 v{dwo+G}, {G*4*2048 - 1024*G}, v{t1 if G % 2 == 0 else t2}')
        a('s_waitcnt vmcnt(12)'); a('s_barrier')
        xst(1); wst(2)
        a('s_waitcnt vmcnt(12)'); a('s_barrier')
        xst(2)
        a.label('L_ld_enter')
        a(f's_mov_b32 s{s_i}, 0'); a(f's_mov_b32 s{s_slot}, 0')
        self.trickle_setup(); self.warm_wo_setup()
        def loop(name, n, extra):
            a.label(name)
            xst(); wst()
            if extra:
                a(f's_add_u32 s{s_t}, s{s_i}, 1'); a(f's_and_b32 s{s_t}, s{s_t}, 7')
                a.extend(sx(s_wo, [(s_rot2, 2), (s_t, 1)], 24)); a(f's_and_b32 s{s_wo}, s{s_wo}, 31')
                a.extend(sx(s_wm0, [(s_wo, 65536), (s_ld, 2*4*2048)]))
                a.extend(sx(s_wo, [(s_t, 4096), (s_ld, 2048)], L_SPARE)); a(f's_mov_b32 m0, s{s_wo}')
                for G in range(2): a(f'buffer_load_dwordx4 v{dwo+G}, {srd(sWO)}, s{s_wm0} offen offset:{1024*G} lds')
            self.trickle(f's{s_i}'); self.warm_wo(5)
            a(f's_add_u32 s{s_slot}, s{s_slot}, {STG}'); a(f's_cmp_eq_u32 s{s_slot}, {3*STG}'); a(f's_cselect_b32 s{s_slot}, 0, s{s_slot}')
            a(f's_add_u32 s{s_i}, s{s_i}, 1'); a(f's_cmp_lt_u32 s{s_i}, {n}')
            a(f's_waitcnt vmcnt({22 if extra else 20})')
            a('s_barrier')
            a(f's_cbranch_scc1 {name}')
        if self.early: loop('L_ld_loop', 5, False); loop('L_ld_loop2', 13, True)
        else: loop('L_ld_loop', 13, False)
        def wo(p0, n, thr=None):
            a.extend(sx(s_wm0, [(s_ld, 4096)], L_WO + 4096*p0))
            a.extend(sx(s_wo, [(s_rot2, 2), (s_ld, 1)], p0)); a(f's_and_b32 s{s_wo}, s{s_wo}, 31'); a(f's_lshl_b32 s{s_wo}, s{s_wo}, 16')
            L = self.lab('wo')
            a(f's_mov_b32 s{s_i}, 0')
            a.label(L)
            if thr is not None: a(f's_waitcnt vmcnt({thr})')
            a(f's_mov_b32 m0, s{s_wm0}')
            a(f's_add_u32 s{s_wm0}, s{s_wm0}, 8192')
            for G in range(4): a(f'buffer_load_dwordx4 v{dwo+G}, {srd(sWO)}, s{s_wo} offen offset:{1024*G} lds')
            a(f's_add_u32 s{s_wo}, s{s_wo}, 131072'); a(f's_and_b32 s{s_wo}, s{s_wo}, 0x1fffff')
            a(f's_add_u32 s{s_i}, s{s_i}, 1'); a(f's_cmp_lt_u32 s{s_i}, {n//2}'); a(f's_cbranch_scc1 {L}')
        if self.early:
            wo(4, 10)
            a('s_waitcnt vmcnt(20)'); a('s_barrier')
            wo(14, 10)
            a('s_barrier')
            wo(0, 4)
        else:
            wo(24, 8)
            a('s_waitcnt vmcnt(16)'); a('s_barrier')
            wo(4, 10)
            a('s_barrier')
            wo(14, 10, self.thr); wo(0, 4, self.thr)
        if self.jit: self.jitter(23)
        a.extend(sx(s_fl, [(s_l, 8192), (s_m, 256), (s_rot2, 16), (s_ld, 8)], 4096))
        self.get_mode(t0); a.extend(self.flag_addr(vf, t0, s_fl))
        a.extend(sx(s_xb, [(s_l, 1 << 22), (s_m, 1 << 18)], WS_XI))
        a(f's_bitcmp0_b32 s{s_l}, 0')
        a(f's_cselect_b64 s[{sW}:{sW+1}], s[{pBW}:{pBW+1}], s[{pAW}:{pAW+1}]')
        a(f's_cselect_b64 s[{sWO}:{sWO+1}], s[{pBWO}:{pBWO+1}], s[{pAWO}:{pAWO+1}]')
        a(f's_mov_b64 s[{sX}:{sX+1}], s[{pWS}:{pWS+1}]'); a(f's_mov_b32 s{sX+2}, {WS_END}')
        a(f's_mov_b32 s{s_xstep}, 16384'); kstart(False)
        a(f's_lshl_b32 s{s_t}, s{s_ld}, 13'); a(f'v_lshl_add_u32 v{t0}, v1, 4, s{s_t}')
        for j in range(8): a(f'v_add_u32 v{dx+j}, {4096*(j//4)}, v{t0}')
        a(f's_bitcmp1_b32 s{s_l}, 0'); a('s_cbranch_scc1 L_ld_B')
        self.reduce_job(lambda: wst(0))
        a('s_branch L_ld_join')
        a.label('L_ld_B')
        if self.w0b == 0: self.cond([f's_cmp_lg_u32 s{s_l}, 3'], lambda: wst(0))
        a('s_barrier')
        if self.w0b == 1: self.cond([f's_cmp_lg_u32 s{s_l}, 3'], lambda: wst(0))
        a.label('L_ld_join')
        a('s_waitcnt vmcnt(0)'); a('s_barrier')
        a(f's_cmp_eq_u32 s{s_l}, 3'); a('s_cbranch_scc1 L_fin')
        self.trickle_rest(1); self.warm_w()
        a(f's_add_u32 s{s_l}, s{s_l}, 1')
        if self.jit: self.jitter(21)
        a('s_barrier')
        if self.jit: self.jitter(22)
        wst(1)
        if self.w2 == 2: wst(2)
        a('s_barrier')
        if self.w2 == 0: wst(2)
        if self.lprio: a(f's_setprio {self.lprio}')
        self.flag_wait(s_fl, vf, t0, 2, nap=self.xnap, own=True)
        self.stamp(1)
        xst(1); xst(2)
        if self.lprio: a('s_setprio 0')
        a('s_waitcnt vmcnt(8)'); a('s_barrier')
        if self.w2 == 1: wst(2)
        a('s_branch L_ld_enter')

    def helper(self):
        a = self.a
        a.label('L_helper')
        t0, t1, t2, t3, l4, l16, ones, a_st, a_cs, v_st, v_cs, aw, vtw, vto, vd = 2, 3, 4, 5, 6, 7, 8, 12, 13, 14, 15, 16, 18, 19, 20
        F, D, SA, SC = 32, 96, 128, 160
        s_h, s_tw, s_a, s_b, s_trot = 65, 66, 67, 68, 69
        xm = 4; s_r = 70; vrf, vfl, aw2, dw = 21, 22, 24, 80
        a(f's_sub_u32 s{s_h}, s{s_wave}, 6')
        a(f'v_lshlrev_b32 v{l4}, 2, v1'); a(f'v_lshlrev_b32 v{l16}, 4, v1')
        a.extend(self.w_frag_addr(aw, s_h, 0, t0, t1, t2))
        for k in range(2): a(f'v_add_u32 v{aw2+k}, {L_SPARE}, v{aw+k}')
        a(f's_and_b32 s{s_t+1}, s{s_m}, {15 - self.rot0}'); a(f's_cmp_eq_u32 s{s_t+1}, 3'); a(f's_cselect_b32 s{s_t+1}, 0, s{s_t+1}'); a(f's_mul_i32 s{s_t+1}, s{s_t+1}, {STG}')
        for k in range(2): a(f'v_add_u32 v{aw+k}, s{s_t+1}, v{aw+k}')
        a.extend(self.flag_addr(vrf, t0, None, remote=True))
        a(f'v_lshrrev_b32 v{t0}, 5, v1'); a(f'v_and_b32 v{t1}, 31, v1'); a(f'v_lshlrev_b32 v{t1}, 4, v{t1}')
        a(f'v_lshl_add_u32 v{v_st}, v{t0}, 10, v{t1}')
        a(f'v_and_b32 v{t2}, 24, v1'); a(f'v_and_b32 v{t3}, 3, v1'); a(f'v_lshl_add_u32 v{t2}, v{t3}, 1, v{t2}'); a(f'v_add_u32 v{t2}, v{t2}, v{t0}')
        a.extend(sx(s_t, [(s_h, 256)], P_NM)); a(f'v_lshl_add_u32 v{a_st}, v{t2}, 3, s{s_t}')
        a(f'v_mov_b32 v{t2}, {BIG}'); a(f'v_cmp_gt_u32 vcc, 384, v{t1}'); a(f'v_cndmask_b32 v{v_cs}, v{t2}, v{v_st}, vcc')
        a.extend(sx(s_t, [(s_h, 384)], P_CS)); a(f'v_lshl_add_u32 v{t1}, v{t0}, 3, v{t1}'); a(f'v_add_u32 v{a_cs}, s{s_t}, v{t1}')
        self.pointers()

        def touch_setup(first=False):
            if not self.touch: return
            c, gt = s_t + 2, s_t + 3
            def cls(b):
                a(f's_lshr_b32 s{gt}, s{b}, 7'); a(f's_sub_u32 s{gt}, 3, s{gt}'); a(f's_and_b32 s{gt}, s{gt}, 7')
                a(f's_sub_u32 s{c}, s{s_g}, s{gt}'); a(f's_and_b32 s{c}, s{c}, 7'); a(f's_sub_u32 s{c}, s{c}, 1')
                a(f's_and_b32 s{s_t}, s{s_g}, 8'); a(f's_add_u32 s{gt}, s{gt}, s{s_t}'); a(f's_lshl_b32 s{gt}, s{gt}, 7')
            a(f's_and_b32 s{s_t+4}, s{s_m}, {xm-1}'); a(f's_lshl_b32 s{s_t+4}, s{s_t+4}, 1'); a(f's_add_u32 s{s_t+4}, s{s_t+4}, s{s_h}')
            cls(sW)
            if first: a(f's_or_b32 s{s_rot}, s{s_m}, 3'); a(f's_and_b32 s{s_rot}, s{s_rot}, {self.rot0}'); a(f's_mov_b32 s{s_trot}, 0')
            else: a(f's_mov_b32 s{s_rot}, s{s_rot2}'); a(f's_bfe_u32 s{s_trot}, s{gt}, 0x30007')
            a(f's_cmp_ge_u32 s{c}, 3'); a(f's_cselect_b32 s{s_t}, {32*6144 - 3*2048}, 0'); a(f's_add_u32 s{gt}, s{gt}, s{s_t}')
            a(f's_lshl_b32 s{s_t}, s{c}, 11'); a(f's_add_u32 s{gt}, s{gt}, s{s_t}')
            a(f's_mul_i32 s{s_t}, s{s_t+4}, {(16//xm)*6144}'); a(f's_add_u32 s{gt}, s{gt}, s{s_t}')
            a(f's_cmp_lt_u32 s{c}, 6'); a(f's_cselect_b32 s{s_t}, {16//xm}, 0')
            a(f'v_mul_u32_u24 v{vtw}, 6144, v1'); a(f'v_add_u32 v{vtw}, s{gt}, v{vtw}')
            a(f'v_mov_b32 v{t0}, {BIG}'); a(f'v_cmp_gt_u32 vcc, s{s_t}, v1'); a(f'v_cndmask_b32 v{vtw}, v{t0}, v{vtw}, vcc')
            cls(sWO)
            a(f's_lshl_b32 s{s_t}, s{c}, 19'); a(f's_add_u32 s{gt}, s{gt}, s{s_t}')
            a(f's_mul_i32 s{s_t}, s{s_t+4}, {(128//xm)*2048}'); a(f's_add_u32 s{gt}, s{gt}, s{s_t}')
            a(f's_cmp_lt_u32 s{c}, 4'); a(f's_cselect_b32 s{s_t}, {32//xm}, 0')
            a(f'v_lshlrev_b32 v{vto}, 11, v1'); a(f'v_add_u32 v{vto}, s{gt}, v{vto}')
            a(f'v_cmp_gt_u32 vcc, s{s_t}, v1'); a(f'v_cndmask_b32 v{vto}, v{t0}, v{vto}, vcc')
        def touchW(st):
            if not self.touch: return
            if st == 0: a(f's_add_u32 s{s_tw}, s{s_rot}, s{s_trot}')
            else: a(f's_cmp_le_u32 s{s_trot}, {st-1}'); a(f's_addc_u32 s{s_tw}, s{s_rot}, {st-1}')
            a(f's_and_b32 s{s_tw}, s{s_tw}, 15'); a(f's_mul_i32 s{s_tw}, s{s_tw}, {64*6144}')
            a(f'buffer_load_dword v{vd}, v{vtw}, {srd(sW)}, s{s_tw} offen')
        def touchO(k):
            if not self.touch: return
            a(f's_mov_b32 s{s_tw}, {k*(32//xm)*2048}')
            a(f'buffer_load_dword v{vd}, v{vto}, {srd(sWO)}, s{s_tw} offen')
        def phi_load():
            a(f's_mov_b64 s[{sX}:{sX+1}], s[{pPHI}:{pPHI+1}]'); a(f's_mov_b32 s{sX+2}, 65536')
            a.extend(sx(s_t, [(s_g, 4096), (s_h, 2048)])); a(f's_lshl_b32 s{s_t+1}, s{s_h}, 11'); a(f's_add_u32 m0, s{s_t+1}, {P_PHI}')
            for j in range(2): a(f'buffer_load_dwordx4 v{l16}, {srd(sX)}, s{s_t} offen offset:{1024*j} lds')
        vc = 26
        if self.cpf: a(f's_getpc_b64 s[{s_t}:{s_t+1}]')
        if self.cpf: a.label('L_pc')
        if self.cpf: a(f's_sub_u32 s{s_t}, s{s_t}, L_pc-{KNAME}'); a(f's_subb_u32 s{s_t+1}, s{s_t+1}, 0')
        if self.cpf: a(f's_lshr_b32 s{s_t+2}, s2, 3'); a.extend(sx(s_t+3, [(s_t+2, 1280), (s_h, 640)]))
        if self.cpf: a(f'v_lshl_add_u32 v{t0}, v1, 7, s{s_t+3}'); a(f'v_min_u32 v{t0}, L_last-{KNAME}, v{t0}')
        if self.cpf: a(f'v_mov_b32 v{vc+1}, s{s_t+1}'); a(f'v_add_co_u32 v{vc}, vcc, s{s_t}, v{t0}'); a(f'v_addc_co_u32 v{vc+1}, vcc, 0, v{vc+1}, vcc')
        def code_touch():
            a('s_mov_b64 exec, 31'); a(f'global_load_dword v{vd}, {vr(vc,2)}, off'); a('s_mov_b64 exec, -1')
        if self.cpf & 1: code_touch()
        self.w_dma_offsets(dw, s_h, t0, t1, t2)
        touch_setup(True)
        for st in range(1, 3 + self.dist): touchW(st)

        def init_stores():
            for k in range(4): a(f'v_mov_b32 v{SA+k}, -1')
            fill = f'buffer_store_dwordx4 {vr(SA,4)}, v{l16}, {srd(sWS)}, s{s_t} offen'
            a.extend(sx(s_t, [(s_g, 131072), (s_h, 65536), (s_m, 2048)], WS_KVP)); a(fill + ' sc1'); a(fill + ' offset:1024 sc1')
            a(f's_add_u32 s{s_t}, s{s_t}, 32768'); a(fill + ' sc1'); a(fill + ' offset:1024 sc1')
            a('s_mov_b64 exec, 0xff')
            a.extend(sx(s_t, [(s_g, 8192), (s_h, 4096), (s_m, 128)], WS_KVF)); a(fill + ' sc1'); a(fill + ' offset:2048 sc1')
            a.extend(sx(s_t, [(s_g, 4096), (s_h, 2048), (s_m, 128)], WS_ZP)); a(fill + ' sc1')
            a.extend(sx(s_t, [(s_g, 256), (s_h, 128)], WS_ZF))
            a(f's_cmp_eq_u32 s{s_m}, s{s_g}'); a(f's_cselect_b32 s{s_t}, s{s_t}, {BIG}'); a(fill + ' sc1')
            a('s_mov_b64 exec, -1')
            a(f'v_lshrrev_b32 v{t1}, 2, v1'); a(f'v_lshlrev_b32 v{t1}, 10, v{t1}'); a(f'v_and_or_b32 v{t1}, v1, 3, v{t1}')
            a.extend(sx(s_t, [(s_m, 64), (s_g, 4)])); a(f'v_add_u32 v{t1}, s{s_t}, v{t1}')
            a(f's_cmp_eq_u32 s{s_h}, 0'); a(f's_cselect_b32 s{s_t+1}, {2 + self.ls}, 7'); a(f's_cselect_b32 s{s_t}, 0, {WS_RF}')
            a(f'v_lshlrev_b32 v{t1}, s{s_t+1}, v{t1}'); a(f'v_mov_b32 v{t0}, 0')
            a('s_mov_b64 exec, 0xfffffff')
            a(f'buffer_store_dword v{t0}, v{t1}, {srd(sWS)}, s{s_t} offen sc1')
            a('s_mov_b64 exec, -1')
            a.extend(sx(s_t, [(s_g, 16384), (s_m, 1024)], WS_CS)); a(f's_cmp_eq_u32 s{s_h}, 1'); a(f's_cselect_b32 s{s_t}, s{s_t}, {BIG}'); a(fill + ' sc1')
        for k in range(4): a(f'v_mov_b32 v{ones+k}, 0x3f803f80')
        def cs_reads(aw=aw):
            for s in range(2):
                for n in range(6):
                    for t in range(2):
                        a(f'ds_read_b64_tr_b16 {vr(F+24*s+4*n+2*t,2)}, v{aw+(n&1)} offset:{(n>>1)*8192+(32*s+4*t)*128}')
            a('s_waitcnt lgkmcnt(0)')
        def cs_publish():
            for s in range(2):
                for n in range(6): a(mf16(D+4*n, ones, F+24*s+4*n, D+4*n if s else None))
            a.extend(sx(s_t, [(s_l, 262144), (s_g, 16384), (s_m, 1024), (s_h, 128)], WS_CS))
            a('s_mov_b64 exec, 0xffff')
            for n in range(6): a(f'buffer_store_dword v{D+4*n}, v{l4}, {srd(sWS)}, s{s_t} offen offset:{(n>>1)*256+(n&1)*64} sc1')
            a('s_mov_b64 exec, -1')
        def chunk(t):
            a(f's_mul_i32 s{s_t}, s{s_m}, {64*6144}'); a(f's_mul_i32 s{s_t+1}, s{s_h}, 12288'); a(f's_add_u32 m0, s{s_t+1}, {L_SPARE + 4096*(t//2)}')
            for j in range(2*t, 2*t+2): a(f'buffer_load_dwordx4 v{dw+j}, {srd(sW)}, s{s_t} offen offset:{1024*(j%4)} lds')
        def arrive():
            a(f's_getreg_b32 s{s_t}, hwreg(HW_REG_XCC_ID, 0, 3)'); a(f's_lshl_b32 s{s_t}, s{s_t}, 2'); a(f's_lshl_b32 s{s_t+1}, 1, s{s_t}')
            a.extend(sx(s_t, [(s_m, 16), (s_rot2, 1)]))
            a('s_mov_b64 exec, 1')
            a(f'v_mov_b32 v{t0}, s{s_t+1}')
            a(f'buffer_atomic_add v{t0}, off, {srd(sDBG)}, s{s_t} sc1')
            a('s_mov_b64 exec, -1')
        iload = f'buffer_load_dword v{vfl}, v{t2}, {srd(sDBG)}, 0 offen sc1'
        def init_look():
            a(f'v_and_b32 v{t2}, 31, v1'); a(f'v_lshlrev_b32 v{t2}, 3, v{t2}'); a(iload)
        def init_wait():
            a('s_waitcnt vmcnt(0)')
            self.spin(['s_sleep 16', iload],
                      [f'v_lshrrev_b32 v{t1}, 4, v{vfl}', f'v_and_b32 v{t1}, 0x0f0f0f0f, v{t1}', f'v_and_b32 v{t3}, 0x0f0f0f0f, v{vfl}',
                       f'v_sad_u8 v{t1}, v{t1}, 0, 0', f'v_sad_u8 v{t3}, v{t3}, 0, v{t1}', f'v_cmp_gt_u32 vcc, 8, v{t3}'], t3, 3, pre=True)
            a(f's_lshr_b32 s{s_t}, s{s_rot2}, 3'); a(f's_lshl_b32 s{s_t+1}, s{s_m}, 1'); a(f's_add_u32 s{s_t}, s{s_t}, s{s_t+1}')
            a(f'v_readlane_b32 s{s_fast}, v{vfl}, s{s_t}')
            a(f's_and_b32 s{s_fast}, s{s_fast}, 0x88888888'); a(f's_cselect_b32 s{s_fast}, {1 if self.local else 0}, 0')
            a(f'v_mov_b32 v{t3}, s{s_fast}'); a(f'v_mov_b32 v{t2}, {P_MODE}'); a(f'ds_write_b32 v{t2}, v{t3}')
        def gather(R, va, so, ks):
            L = []
            for k in ks: L += [f's_add_u32 s{s_t}, s{so}, {4096*(k//2)}', f'buffer_load_dwordx4 {vr(R+4*k,4)}, v{va}, {srd(sWS)}, s{s_t} offen offset:{2048*(k%2)} sc1']
            return L
        def total(R):
            n = 8
            while n > 1:
                n //= 2
                for k in range(4*n): a(f'v_add_f32 v{R+k}, v{R+k}, v{R+k+4*n}')
            a(sw32(R, R+2)); a(sw32(R+1, R+3)); a(f'v_add_f32 v{R}, v{R}, v{R+2}'); a(f'v_add_f32 v{R+1}, v{R+1}, v{R+3}')
        def stats_finish():
            for k in range(2): a(f'v_mov_b32_dpp v{SA+2+k}, v{SA+k} row_shl:4 row_mask:0xf bank_mask:0xf')
            for k in range(2): a(f'v_mul_f32 v{SA+k}, {f2u(-1/1024)}, v{SA+k}'); a(f'v_mul_f32 v{SA+2+k}, {f2u(1/1024)}, v{SA+2+k}')
            for k in range(2): a(f'v_fma_f32 v{SA+2+k}, -v{SA+k}, v{SA+k}, v{SA+2+k}')
            for k in range(2): a(f'v_max_f32 v{SA+2+k}, 0, v{SA+2+k}')
            for k in range(2): a(f'v_add_f32 v{SA+2+k}, {f2u(1e-5)}, v{SA+2+k}')
            for k in range(2): a(f'v_rsq_f32 v{SA+2+k}, v{SA+2+k}')
            a('s_mov_b32 exec_lo, 0x0f0f0f0f'); a('s_mov_b32 exec_hi, 0x0f0f0f0f')
            a(f'ds_write_b64 v{a_st}, {vr(SA,2)}'); a(f'ds_write_b64 v{a_st}, {vr(SA+2,2)} offset:512')
            a('s_mov_b64 exec, -1')
        def cs_finish():
            total(SC)
            a(f's_mul_i32 s{s_t}, s{s_l}, 768'); a(f'v_add_u32 v{t0}, s{s_t}, v{a_cs}')
            a('s_mov_b32 exec_lo, 0xffffff'); a('s_mov_b32 exec_hi, 0xffffff')
            a(f'ds_write_b64 v{t0}, {vr(SC,2)}')
            a('s_mov_b64 exec, -1')
        l0 = [f's_cmp_eq_u32 s{s_l}, 0']; ln0 = [f's_cmp_lg_u32 s{s_l}, 0']; l01 = [f's_cmp_lt_u32 s{s_l}, 2']
        a(f's_mov_b32 s{s_r}, 0')
        a.label('L_hp_layer')
        a.extend(sx(s_a, [(s_l, 262144), (s_m, 16384), (s_h, 512)], WS_ST))
        a.extend(sx(s_b, [(s_l, 262144), (s_g, 16384), (s_h, 384)], WS_CS))
        self.trickle_setup(); self.warm_wo_setup()
        hi = lambda: self.hprio and a(f's_setprio {self.hprio}')
        lo = lambda: self.hprio and a('s_setprio 0')
        l1 = [f's_cmp_eq_u32 s{s_l}, 1']
        for i in range(17):
            a('s_barrier')
            if self.jit and i in (0, 1, 4, 8, 9, 12, 16): self.jitter(30 + i)
            ncs = 16 - self.rot0
            l0h0 = [f's_or_b32 s{s_t}, s{s_l}, s{s_h}', f's_cmp_eq_u32 s{s_t}, 0']
            if i < ncs: self.cond([f's_and_b32 s{s_t}, s{s_m}, {ncs-1}', f's_lshl_b32 s{s_t+1}, s{s_l}, 2', f's_or_b32 s{s_t}, s{s_t}, s{s_t+1}', f's_cmp_eq_u32 s{s_t}, {i}'], cs_reads)
            if i == 8: self.cond(l1, lambda: cs_reads(aw2))
            if i in (self.iw, 5, 7, 13): a('s_waitcnt vmcnt(0)')
            if i == 5: self.cond(ln0, lambda: self.flag_wait(s_r, vrf, vfl, 8, pre=True, nap=self.nap))
            if i == 9: self.cond(l0h0, init_wait)
            if i <= 12: hi()
            if i == 0: self.cond(l0, lambda: (init_stores(), phi_load()))
            if i == self.iw + 1: self.cond(l0h0, arrive)
            if i == 4: self.cond(l0, cs_publish)
            if i == 9: self.cond(l1, cs_publish)
            if i == 8: self.cond(l0h0, init_look)
            if i == 11 and self.cpf & 2: self.cond(l01, code_touch)
            if i == 4: self.cond(ln0, lambda: a(self.flag_load(s_r, vrf, vfl)))
            if i + 3 + self.dist <= 15: touchW(i + 3 + self.dist)
            if 5 <= i <= 8: touchO(i - 5)
            if 1 <= i <= 6: self.cond(l1, lambda: chunk(i - 1))
            if i == 6: self.cond([f's_cmp_eq_u32 s{s_l}, 2'], phi_load)
            if i in (10, 11): a.extend(gather(SA, v_st, s_a, range(4*(i-10), 4*(i-10)+4)))
            if i in (11, 12): self.cond(l01, lambda: a.extend(gather(SC, v_cs, s_b, range(4*(i-11), 4*(i-11)+4))))
            if i <= 12: lo()
            if 1 <= i <= 12: self.trickle(i - 1)
            if i == 13: self.ll_wait(gather(SA, v_st, s_a, range(8)), list(range(SA, SA+32)), t0, t1, 6, pre=True); total(SA)
            if i == 14: stats_finish()
            if i == 14: self.cond(l01, lambda: self.ll_wait(gather(SC, v_cs, s_b, range(8)), list(range(SC, SC+32)), t0, t1, 7, pre=True))
            if i == 15: self.cond(l01, cs_finish); a('s_waitcnt lgkmcnt(0)')
        a.extend(sx(s_t+1, [(s_l, 8192), (s_m, 256), (s_g, 16), (s_h, 4096)])); a(f's_lshl_b32 s{s_t+1}, s{s_t+1}, {self.ls}')
        a(f'v_and_b32 v{t0}, 3, v1'); a(f'v_lshlrev_b32 v{t0}, {2 + self.ls}, v{t0}'); a(f'buffer_load_dword v{vd}, v{t0}, {srd(sWS)}, s{s_t+1} offen sc1')
        a.extend(sx(s_t, [(s_l, 8192), (s_m, 256), (s_rot2, 16)]))
        a(f's_xor_b32 s{s_t}, s{s_t}, 128'); a.extend(sx(s_r, [(s_t, 32), (s_h, 256)], WS_RF))
        a(f's_bitcmp0_b32 s{s_l}, 0')
        a(f's_cselect_b64 s[{sW}:{sW+1}], s[{pBW}:{pBW+1}], s[{pAW}:{pAW+1}]')
        a(f's_cselect_b64 s[{sWO}:{sWO+1}], s[{pBWO}:{pBWO+1}], s[{pAWO}:{pAWO+1}]')
        touch_setup()
        touchW(0); touchW(1); touchW(2)
        a(f's_bitcmp1_b32 s{s_l}, 0'); a('s_cbranch_scc1 L_hp_B')
        self.reduce_job()
        a('s_branch L_hp_join')
        a.label('L_hp_B')
        a('s_barrier')
        a.label('L_hp_join')
        a('s_barrier')
        a(f's_cmp_eq_u32 s{s_l}, 3'); a('s_cbranch_scc1 L_fin')
        self.trickle_rest(1); self.warm_w()
        a(f's_add_u32 s{s_r}, s{s_r}, {4096*32}')
        a(f's_add_u32 s{s_l}, s{s_l}, 1')
        a('s_barrier')
        for st in range(3, 3 + self.dist): touchW(st)
        a('s_branch L_hp_layer')

    def compute(self):
        a = self.a
        one, l16, voffR, voffI, a_tok, a_row, a_t32, a_csr, a_csv = 0, 2, 3, 4, 5, 6, 7, 8, 9
        ax, awq = 10, 12
        l4 = 14; vst = 15
        XR = 16
        ACC = 32
        FX = [128, 144]; FW = [160, 184]
        T = 208
        t0, t1, t2, t3 = T, T+1, T+2, T+3
        s_wm, s_wh, s_rslot, s_delta, s_stg, s_ones = 65, 66, 67, 68, 69, 70
        s_o = 71
        s_ob = 75
        s_obase, s_ooff, s_a, s_b, s_c, s_d, s_e, s_fp, s_st, s_fo = range(77, 87)
        a(f'v_lshrrev_b32 v{t0}, 4, v1')
        a(f'v_and_b32 v{t1}, 15, v1')
        a(f'v_and_b32 v{t2}, 1, v{t0}'); a(f'v_lshrrev_b32 v{t3}, 1, v{t0}'); a(f'v_lshl_add_u32 v{t2}, v{t2}, 1, v{t3}')
        a(f'v_lshlrev_b32 v{voffR}, 11, v{t1}'); a(f'v_lshl_add_u32 v{voffR}, v{t2}, 4, v{voffR}')
        def x0():
            a.extend(sx(s_t, [(s_m, 1 << 18), (s_wave, 1 << 16), (s_g, 128)])); a(f's_add_u32 s{s_t+1}, s{s_t}, 32768')
            if not self.st0 & 16: self.pointers()
            for tb in range(2):
                for e in range(2): a(f'buffer_load_dwordx4 {vr(XR+8*tb+4*e,4)}, v{voffR}, {srd(sX)}, s{s_t+tb} offen offset:{64*e}')
        if self.st0 & 16: self.pointers()
        elif not self.st0 & 8: x0()
        a(f's_lshr_b32 s{s_wm}, s{s_wave}, 1'); a(f's_and_b32 s{s_wh}, s{s_wave}, 1')
        a(f'v_mov_b32 v{one}, 1')
        a(f'v_lshl_add_u32 v{voffI}, v{t2}, 4, v{t1}'); a(f'v_lshlrev_b32 v{voffI}, 4, v{voffI}'); a(f'v_mov_b32 v{vst}, v{voffI}')
        a(f'v_lshlrev_b32 v{l16}, 4, v1'); a(f'v_lshlrev_b32 v{l4}, 2, v1')
        a.extend(sx(s_t, [(s_wm, 256)], P_NM))
        a(f'v_lshl_add_u32 v{a_tok}, v{t1}, 2, s{s_t}')
        a(f'v_lshl_add_u32 v{a_row}, v{t0}, 4, s{s_t}')
        a(f'v_and_b32 v{t3}, 31, v1'); a(f'v_lshl_add_u32 v{a_t32}, v{t3}, 2, s{s_t}')
        a.extend(sx(s_t, [(s_wh, 128)], P_CS))
        a(f'v_lshl_add_u32 v{a_csr}, v{t0}, 4, s{s_t}')
        a(f'v_lshl_add_u32 v{a_csv}, v{t1}, 2, s{s_t}')
        a(f's_mov_b32 s{s_stg}, {STG}'); a(f's_mov_b32 s{s_ones}, 0x3f803f80')
        a(f'v_lshrrev_b32 v{t2}, 1, v{t1}'); a(f'v_xor_b32 v{t2}, v{t2}, v{t0}')
        a.extend(sx(s_t, [(s_wm, 8192)], XOFF)); a(f'v_lshl_add_u32 v{t1}, v{t1}, 7, s{s_t}')
        for s in range(2):
            a(f'v_xor_b32 v{t3}, {4*s}, v{t2}'); a(f'v_lshl_add_u32 v{ax+s}, v{t3}, 4, v{t1}')
        a.extend(sx(s_st, [(s_m, 16384), (s_g, 1024), (s_wave, 256)], WS_ST))

        q = 216
        def stats():
            S = []
            for k in range(8):
                for tb in range(2):
                    r = XR + 8*tb + k
                    S += [f'v_dot2_f32_bf16 v{q+2*tb}, s{s_ones}, v{r}, ' + (f'v{q+2*tb}' if k else '0'),
                          f'v_dot2_f32_bf16 v{q+2*tb+1}, v{r}, v{r}, ' + (f'v{q+2*tb+1}' if k else '0')]
            return S + [sw32(q, q+2), sw32(q+1, q+3), pk('add', q, q, q+2), sw16(q, q+1), f'v_add_f32 v{q}, v{q}, v{q+1}']
        st_store = f'buffer_store_dword v{q}, v{l4}, {srd(sWS)}, s{s_st} offen sc1'
        def acc(b, n): return ACC + 4*(6*b + n)
        A2 = 208
        def reads(s, st, slot=0):
            x, w, o = (ax, awq, STG*slot) if slot < 2 else (A2, A2+2, 0)
            X = [f'ds_read_b128 {vr(FX[st]+4*b,4)}, v{x+s} offset:{o+2048*b}' for b in range(4)]
            W = [[f'ds_read_b64_tr_b16 {vr(FW[st]+4*n+2*t,2)}, v{w+(n&1)} offset:{o+(n>>1)*8192+(32*s+4*t)*128}' for t in range(2)] for n in range(6)]
            L = [X[0]] + W[0] + X[1:]
            for n in range(1, 6): L += W[n]
            return L
        def mfma(st, b, n, zero=False):
            C = None if zero else acc(b, n)
            return mf16(acc(b, n), FW[st]+4*n, FX[st]+4*b, C) if n < 4 else mf16(acc(b, n), FX[st]+4*b, FW[st]+4*n, C)
        def mfmas(st, zero=False):
            return [mfma(st, b, n, zero) for n in range(6) for b in (range(4) if not (self.snake and n % 2) else range(3, -1, -1))]
        env = dict(locals())
        a.extend(self.w_frag_addr(awq, s_wh, 0, t0, t1, t2))
        self.epiA(env, 'v')
        if self.st0 & 8: x0()
        a(f'v_mov_b32 v{q}, -1'); a(st_store)
        a(f's_sub_u32 s{s_st}, s{s_st}, 262144')
        a.label('L_first')
        a('s_barrier')
        self.stamp(12)
        if self.st0 & 16: self.cond([f's_cmp_eq_u32 s{s_l}, 0'], x0)
        S = autowait(reads(0, 0) + interleave(mfmas(0, True), reads(1, 1), per=[0]*4 + [1]*20))
        cut = [k for k, t in enumerate(S) if t.startswith('v_mfma')][self.fpos-1] + 1
        a.extend(S[:cut])
        a('s_waitcnt vmcnt(0)')
        self.stamp(11)
        self.cond([f's_cmp_lg_u32 s{s_l}, 0'], lambda: self.flag_set(s_fo, one))
        a.extend(S[cut:])
        a('s_waitcnt lgkmcnt(0)')
        S = [f'v_add_u32 v{A2+k}, {2*STG}, v{ax+k}' for k in range(4)] + [f's_mov_b32 s{s_i}, 0']
        assert awq == ax + 2
        S += sx(s_t, [(s_l, 1 << 22), (s_m, 1 << 18)], WS_OI)
        S += sx(s_obase, [(s_wave, 1 << 16), (s_t, 1)]) + [f's_lshl_b32 s{s_ooff}, s{s_rot2}, 11']
        S += [f's_add_u32 s{s_ob}, s{s_obase}, s{s_ooff}', f's_add_u32 s{s_ob+1}, s{s_ob}, 32768']
        S += sx(s_a, [(s_wm, 1 << 17), (s_g, 2048), (s_wh, 1024), (s_t, 1)])
        S += sx(s_o, [(s_g, 16384), (s_wave, 4096), (s_t, 1)], WS_XI - WS_OI) + [f's_add_u32 s{s_o+k}, s{s_o}, {1024*k}' for k in range(1, 4)]
        S += sx(s_fp, [(s_l, 8192), (s_m, 256)]) + sx(s_fo, [(s_g, 16), (s_wave, 4), (s_fp, 1)]) + sx(s_fo+1, [(s_fo, 32)], WS_RF) + [f's_lshl_b32 s{s_fo}, s{s_fo}, {self.ls}']
        S += sx(s_t, [(s_wm, 8), (s_rot2, 16)]) + [f's_add_u32 s{s_fp}, s{s_fp}, s{s_t}']
        a.extend(interleave(mfmas(1), S, per=[2]*20 + [3]*4))
        if self.lfl == 2: self.cond([f's_cmp_lg_u32 s{s_l}, 0'], lambda: (a(f's_sub_u32 s{s_t+1}, s{s_fo+1}, {4096*32}'), self.flag_set(s_t, one, 2)))
        a(f's_bitcmp1_b32 s{s_l}, 0'); a('s_cbranch_scc1 L_preB')
        self.epiA(env, 's')
        a('s_branch L_pre_done')
        a.label('L_preB')
        self.epiB(env, 's')
        def last():
            a(f's_mov_b64 s[{sOUT}:{sOUT+1}], s[{pOUT}:{pOUT+1}]'); a(f's_mov_b32 s{sOUT+2}, {2048*1024*2}')
            a.extend(sx(s_o, [(s_m, 1 << 18), (s_wave, 1 << 16), (s_g, 128)]))
            a(f's_add_u32 s{s_o+1}, s{s_o}, 64'); a(f's_add_u32 s{s_o+2}, s{s_o}, 32768'); a(f's_add_u32 s{s_o+3}, s{s_o}, {32768+64}')
            a(f'v_mov_b32 v{vst}, v{voffR}')
        self.cond([f's_cmp_eq_u32 s{s_l}, 3'], last)
        a.label('L_pre_done')
        a(f's_add_u32 s{s_st}, s{s_st}, 262144')
        a.extend(stats()); a(st_store)
        a.label('L_go')
        a('s_barrier')
        self.stamp(1)
        a.extend(reads(0, 0, 1))
        a('s_branch L_q1')
        nb = self.bpos + 1
        def half0(slot):
            if self.prof >= 5:
                a('s_memtime s[92:93]' if self.prof == 5 else 's_memrealtime s[92:93]'); a(f's_lshl_b32 m0, s{s_l}, 4'); a(f's_add_u32 m0, m0, s{s_i}'); a(f's_add_u32 m0, m0, {(slot+2)%3+1}')
            a('s_waitcnt lgkmcnt(0)')
            F = reads(1, 1, slot)
            if self.prof >= 5: F = ['v_writelane_b32 v255, s92, m0'] + F
            if slot == 0: F += [f's_add_u32 s{s_i}, s{s_i}, 3', f's_cmp_lt_u32 s{s_i}, 15']
            a.extend(interleave(mfmas(0), F, per=[0]*self.r0 + [1]*24))
            a('s_waitcnt lgkmcnt(0)')
            a.extend(mfmas(1)[:nb]); a('s_barrier')
        def half1(slot):
            R = reads(0, 0, (slot+1) % 3)
            a(R[0]); a.extend(interleave(mfmas(1)[nb:], R[1:], per=[1]*24))
        a('.p2align 6')
        a.label('L_q')
        half1(0)
        a.label('L_q1')
        half0(1); half1(1); half0(2); half1(2); half0(0)
        a('s_cbranch_scc1 L_q')
        a.label('L_tail')
        self.stamp(2)
        a(f's_bitcmp1_b32 s{s_l}, 0'); a('s_cbranch_scc1 L_epiB')
        self.epiA(env, False)
        a('s_branch L_ophase')
        a.label('L_epiB')
        self.epiB(env, False)
        a.label('L_ophase')
        a('s_barrier')
        PD = self.pd; NR = PD + 1
        OA, OW, awo, vf, RING = 128, [160, 176], 192, 196, 32
        assert RING + 8*NR <= 128
        u0, u1, u2, vrf, vot, vxw = 197, 198, 199, 204, 205, 206
        a(f'v_mov_b32 v{u0}, {P_MODE}'); a(f'ds_read_b32 v{u0}, v{u0}')
        def oacc(tb, nb): return OA + 16*tb + 4*nb
        for k in range(4):
            a(sw16(XR+4*k, XR+4*k+2)); a(sw16(XR+4*k+1, XR+4*k+3))
        a('s_waitcnt lgkmcnt(0)'); a(f'v_readfirstlane_b32 s{s_fast}, v{u0}')
        a(f's_xor_b32 s{s_t}, s{s_fp}, 128'); a.extend(sx(s_e, [(s_t, 32)], WS_RF))
        a.extend(self.flag_addr(vrf, u1, None, remote=True))
        a.extend(self.flag_addr(vf, u1, s_fp))
        s_fq = s_d
        a(f's_cmp_eq_u32 s{s_fast}, 1'); a(f's_cselect_b32 s{s_fq}, s{s_fp}, {BIG}')
        for r in range(16):
            a(f'v_lshlrev_b32 v{OA+2*r}, 16, v{XR+r}'); a(f'v_and_b32 v{OA+2*r+1}, 0xffff0000, v{XR+r}')
        a.extend(self.w_frag_addr(awo, None, L_WO, u0, u1, u2, nb_list=(0, 1, 2, 3)))
        a(f's_cmp_eq_u32 s{s_wh}, 0'); a('s_cselect_b64 vcc, -1, 0')
        for k in range(2): a(f'v_cndmask_b32 v{awq+k}, v{awo+2+k}, v{awo+k}, vcc')
        for k in range(2): a(f'v_subrev_u32 v{awq+k}, {L_WO}, v{awq+k}')
        a.extend(sx(s_t, [(s_wm, 8192)], XOFF)); a(f'v_add_u32 v{ax}, s{s_t}, v{l16}'); a(f'v_add_u32 v{ax+1}, 1024, v{ax}')
        a.extend(sx(s_t, [(s_wave, 4096)], XOFF)); a(f'v_add_u32 v{vxw}, s{s_t}, v{voffI}')
        def oreads(h):
            return [f'ds_read_b64_tr_b16 {vr(OW[h&1]+4*nb+2*t,2)}, v{awo+nb} offset:{(h&15)*4096+512*t}' for nb in range(4) for t in range(2)]
        a('s_waitcnt vmcnt(0)')
        self.stamp(8)
        self.flag_set(s_fo, one, 1)
        a(self.flag_load(s_fq, vf, u0, self.pf))
        self.flag_set(s_fo, one, 2)
        a.extend(oreads(0))
        def next_consts():
            a(f's_bitcmp1_b32 s{s_l}, 0'); a('s_cbranch_scc1 L_nextA')
            self.epiB(env, 'v')
            a('s_branch L_next_done')
            a.label('L_nextA')
            self.cond([f's_cmp_lg_u32 s{s_l}, 3'], lambda: self.epiA(env, 'v'))
            a.label('L_next_done')
        if not self.vpos: next_consts()
        self.flag_wait(s_fp, vf, u0, 4, pre='s_waitcnt vmcnt(1) lgkmcnt(0)', own=True)
        self.stamp(9)
        def oload(h, tb):
            L = [f'buffer_load_dwordx4 {vr(RING+8*(h%NR)+4*tb,4)}, v{l16}, {srd(sWS)}, s{s_ob+tb} offen offset:{1024*(h&3)} sc1']
            if h & 3 == 3 and h < 31:
                if tb == 0: L += [f's_add_u32 s{s_ooff}, s{s_ooff}, 4096', f's_and_b32 s{s_ooff}, s{s_ooff}, 0x7fff', f's_add_u32 s{s_ob}, s{s_obase}, s{s_ooff}']
                else: L += [f's_add_u32 s{s_ob+1}, s{s_ob}, 32768']
            return L
        S = []
        for h in range(PD): S += oload(h, 0) + oload(h, 1)
        S.append('s_nop 2')
        hc = self.hc or 15 - PD
        DL = self.dl; assert DL <= PD and DL % 2 == 0
        UN = [(p, nb) for p in range(32 - DL) for nb in range(4)] + [(p, nb) for e in range(2) for p in range(32 - DL, 32) for nb in (2*e, 2*e+1)]
        def out(k4):
            return [cvt(XR+4*k4+k, OA+8*k4+2*k, OA+8*k4+2*k+1) for k in (0, 2, 1, 3)], [sw16(XR+4*k4, XR+4*k4+2), sw16(XR+4*k4+1, XR+4*k4+3)], [
                    f'buffer_store_dwordx4 {vr(XR+4*k4,4)}, v{vst}, {srd(sOUT)}, s{s_o+k4} offen sc1', f'ds_write_b128 v{vxw}, {vr(XR+4*k4,4)} offset:{1024*k4}']
        early = (out(0)[0] + out(2)[0][:2] + out(0)[1] + out(2)[0][2:] + out(0)[2][:1] + out(2)[1] + out(0)[2][1:] + out(2)[2]) if DL else []
        for h in range(32):
            if h == 15: S += [f'v_add_u32 v{awo+nb}, 0x10000, v{awo+nb}' for nb in range(4)]
            for k in range(8):
                u, tb = 4*h + k//2, k % 2
                p, nb = UN[u]
                S.append(mf16(oacc(tb, nb), OW[0]+4*(u%8), RING+8*(p%NR)+4*tb, oacc(tb, nb)))
                if u + 4 < 128:
                    p2, nb2 = UN[u+4]
                    S.append(f'ds_read_b64_tr_b16 {vr(OW[0]+4*((u+4)%8)+2*tb,2)}, v{awo+nb2} offset:{(p2&15)*4096+512*tb}')
                for j in range(2):
                    if k == self.opos[j] and h + PD < 32 and not (h + PD >= 16 and h <= hc): S += oload(h+PD, j)
                if 2*u + tb >= 256 - 4*DL + 2:
                    n = 2
                    S += early[:n]; early = early[n:]
            if h == self.hq: S.append(self.flag_load(s_e, vrf, u1))
            if h == hc:
                S += [f'v_cmp_eq_u32 vcc, 0, v{u1}', 's_nop 1']
                for p in range(16, hc + PD + 1): S += oload(p, 0) + oload(p, 1)
            if self.fine == 4 and h in self.oh: S.append(f's_nop {4 + self.oh.index(h)}')
            if h == self.bm: S.append('s_barrier')
        S = autowait(S + early); cut0 = S.index('s_nop 2'); cut = S.index('s_nop 1'); S.pop(cut)
        a.extend(S[:cut0])
        if self.vpos: next_consts()
        def emit(L):
            for t in L:
                if t in ('s_nop 4', 's_nop 5'): self.stamp(13 + int(t[-1]) - 4)
                else: a(t)
        emit(S[cut0+1:cut])
        self.flag_wait(s_e, vrf, u1, 9, pre=True, nap=self.nap, checked=True)
        emit(S[cut:])
        self.stamp(10)
        self.sw(sum((sum(out(k4), []) for k4 in ((1, 3) if DL else (0, 2, 1, 3))), []), crit=lambda t: t.startswith('buffer'))
        a(f's_cmp_eq_u32 s{s_l}, 3'); a('s_cbranch_scc1 L_fin')
        a(f's_add_u32 s{s_fo}, s{s_fo}, {4096 << self.ls}'); a(f's_add_u32 s{s_fo+1}, s{s_fo+1}, {4096*32}')
        a(f's_add_u32 s{s_l}, s{s_l}, 1')
        a('s_waitcnt lgkmcnt(0)')
        a('s_branch L_first')

    def epiA(self, E, pre):
        a = self.a
        acc = E['acc']; a_tok, a_row, a_t32, a_csr, a_csv, l16, l4 = (E[k] for k in ('a_tok', 'a_row', 'a_t32', 'a_csr', 'a_csv', 'l16', 'l4'))
        s_wm, s_wh, s_a, s_b, s_c, s_d, s_e = (E[k] for k in ('s_wm', 's_wh', 's_a', 's_b', 's_c', 's_d', 's_e'))
        PK = [128, 144]; EP, KV0, ZA, NR = 160, 176, 192, 208
        wphi, nml, c32, csv = 224, 232, 236, 238
        SEL = 240; ZK, ZS = ZA, ZA + 8
        a_phi, a_w, a_r0, a_r1, a_z, x_w, x_r = range(248, 255)
        csk = EP; csq = NR
        nmr = [KV0, EP+8, NR, NR+8]
        if pre == 'v':
            u0, u1, u2, u3, u4 = range(208, 213)
            S = [f'v_lshrrev_b32 v{u0}, 5, v1', f'v_bfe_u32 v{u1}, v1, 2, 2', f'v_lshl_add_u32 v{u1}, v{u0}, 3, v{u1}',
                 f'v_bfe_u32 v{u2}, v1, 4, 1', f'v_and_b32 v{u3}, 3, v1', f'v_lshlrev_b32 v{u4}, 3, v{u3}', f'v_lshl_add_u32 v{u2}, v{u2}, 5, v{u4}']
            S += sx(s_t, [(s_wh, 2048)], P_PHI) + [f'v_lshl_add_u32 v{u4}, v{u1}, 6, v{u2}', f'v_add_u32 v{a_phi}, s{s_t}, v{u4}']
            S += [f's_mul_i32 s{s_t+2}, s{s_wave}, {SCR}',
                  f'v_mul_u32_u24 v{u1}, 136, v{u1}', f'v_add3_u32 v{u1}, v{u1}, v{u2}, s{s_t+2}',
                  f's_lshl_b32 s{s_t+1}, s{s_wm}, 6', f'v_add_u32 v{a_r0}, s{s_t+1}, v{u1}',
                  f's_xor_b32 s{s_t+3}, s{s_t+1}, 64', f'v_add_u32 v{a_r1}, s{s_t+3}, v{u1}',
                  f'v_and_b32 v{u4}, 31, v1', f'v_mul_u32_u24 v{u4}, 136, v{u4}', f'v_lshl_add_u32 v{u4}, v{u0}, 3, v{u4}', f'v_add_u32 v{a_w}, s{s_t+2}, v{u4}',
                  f'v_add_u32 v{x_w}, s{s_t+2}, v{l16}', f's_xor_b32 s{s_t}, s{s_wave}, 2', f's_mul_i32 s{s_t}, s{s_t}, {SCR}', f'v_add_u32 v{x_r}, s{s_t}, v{l16}']
            S += [f'v_lshrrev_b32 v{u4}, 4, v1', f'v_xor_b32 v{u4}, v{u4}, v1', f'v_and_b32 v{u4}, 1, v{u4}', f'v_cmp_eq_u32 vcc, 0, v{u4}', f'v_mov_b32 v{u4}, 0x3f803f80',
                  f'v_cndmask_b32 v{SEL}, 0, v{u4}, vcc', f'v_mov_b32 v{SEL+1}, v{SEL}', f'v_mov_b64 {vr(SEL+2,2)}, {vr(SEL,2)}']
            S += [f'v_and_b32 v{u0}, 18, v1', f'v_lshlrev_b32 v{u0}, 1, v{u0}', f'v_and_or_b32 v{u0}, v1, 8, v{u0}', f'v_and_b32 v{u1}, 4, v1',
                  f'v_lshl_or_b32 v{u0}, v{u1}, 2, v{u0}', f'v_and_b32 v{u1}, 33, v1', f'v_lshl_or_b32 v{a_z}, v{u1}, 25, v{u0}',
                  f'v_lshl_or_b32 v{a_z}, v{u1}, 30, v{a_z}']
            a.extend(S)
            return
        if pre == 's':
            S = sx(s_t, [(s_l, 16), (s_g, 2), (s_wh, 1)])
            S += sx(s_d, [(s_t, 65536), (s_wm, 32768), (s_m, 2048)], WS_KVP) + sx(s_e, [(s_t, 2048), (s_m, 128), (s_wm, 64)], WS_ZP)
            S += sx(s_b, [(s_t, 128)], WS_ZF) + sx(s_c, [(s_t, 4096)], WS_KVF)
            a.extend(S)
            return
        S = []
        for b in range(4): S.append(f'ds_read_b32 v{nml+b}, v{a_tok} offset:{64*b}')
        for nb in range(2): S.append(f'ds_read_b128 {vr(csk+4*nb,4)}, v{a_csr} offset:{256+64*nb}')
        for u in range(2):
            for t in range(2): S.append(f'ds_read_b64_tr_b16 {vr(wphi+4*u+2*t,2)}, v{a_phi} offset:{(16*t+4*u)*64}')
        for nb in range(2): S.append(f'ds_read_b32 v{csv+nb}, v{a_csv} offset:{512+64*nb}')
        for b in range(4):
            S.append(f'ds_read_b128 {vr(nmr[b],4)}, v{a_row} offset:{64*b}')
            S.append(f'ds_read_b128 {vr(nmr[b]+4,4)}, v{a_row} offset:{512+64*b}')
            if b == 0:
                for Tt in range(2): S.append(f'ds_read_b32 v{c32+Tt}, v{a_t32} offset:{512+128*Tt}')
        def qk_prep(n0, cs):
            L = []
            for b in range(4):
                for k in range(4): L.append(pk('fma', acc(b, n0)+2*k, cs+2*k, ('b', nml+b), acc(b, n0)+2*k))
                for k in range(4): L.append(cvt(acc(b, n0)+k, acc(b, n0)+2*k, acc(b, n0)+2*k+1))
            for Tt in range(2):
                for k in range(4): L.append(sw16(acc(2*Tt, n0)+k, acc(2*Tt+1, n0)+k))
                L += [mf32(PK[Tt], wphi, acc(2*Tt, n0)), mf32(PK[Tt], wphi+4, acc(2*Tt+1, n0), PK[Tt])]
            return L
        def vprep(b):
            r = acc(b, 4); P, C = [], []
            for nb in range(2):
                for p in range(2): P.append(pk('fma', r+4*nb+2*p, nmr[b]+2*p, ('b', csv+nb), r+4*nb+2*p))
            for nb in range(2):
                for p in range(2): P.append(pk('mul', r+4*nb+2*p, r+4*nb+2*p, nmr[b]+4+2*p))
            for k in range(4): C.append(cvt(r+k, r+2*k, r+2*k+1))
            return P, C, [sw16(r, r+2), sw16(r+1, r+3)]
        def softmax(Tt):
            x = PK[Tt]; c = c32 + Tt
            ta, tb = ((acc(2, 3), acc(3, 3)), (acc(2, 2), acc(3, 2)))[Tt]
            mx, mn, bp, bm = ta, ta+1, tb, tb+1
            L = [f'v_max3_f32 v{mx}, v{x}, v{x+1}, v{x+2}', f'v_max3_f32 v{mn}, -v{x}, -v{x+1}, -v{x+2}']
            for k in range(3, 15, 2):
                L += [f'v_max3_f32 v{mx}, v{mx}, v{x+k}, v{x+k+1}', f'v_max3_f32 v{mn}, v{mn}, -v{x+k}, -v{x+k+1}']
            L += [f'v_max_f32 v{mx}, v{mx}, v{x+15}', f'v_max_f32 v{mn}, v{mn}, -v{x+15}']
            L += [sw32(mx, mn), f'v_max_f32 v{mx}, v{mx}, v{mn}', f'v_mul_f32 v{bm}, -v{mx}, v{c}', f'v_mov_b32 v{bp}, v{bm}', sw32(bp, bm)]
            parts = [L]; L = []
            for k in range(0, 16, 2): L.append(pk('fma', EP+k, x+k, ('b', c), ('b', bp)))
            for k in range(0, 16, 2): L.append(pk('fma', x+k, x+k, ('b', c), ('b', bm), neg=[1, 0, 0]))
            parts.append(L); L = []
            for k in range(16): L.append(f'v_exp_f32 v{EP+k}, v{EP+k}')
            for k in range(16): L.append(f'v_exp_f32 v{x+k}, v{x+k}')
            parts.append(L); L = []
            sp, sm = ta, ta+2
            r1, r2 = tb+2, tb+3
            L += [pk('add', sp, EP, EP+2), pk('add', sm, x, x+2)]
            for k in range(4, 16, 2): L += [pk('add', sp, sp, EP+k), pk('add', sm, sm, x+k)]
            L += [f'v_add_f32 v{sp}, v{sp}, v{sp+1}', f'v_add_f32 v{sm}, v{sm}, v{sm+1}', sw32(sp, sm), f'v_add_f32 v{sp}, v{sp}, v{sm}',
                  f'v_rcp_f32 v{r2}, v{sp}', f'v_mov_b32 v{r1}, v{r2}', sw32(r1, r2)]
            for k in range(0, 16, 2): L.append(pk('mul', x+k, x+k, ('b', r2)))
            for k in range(8): L.append(cvt(x+k, x+2*k, x+2*k+1))
            for k in range(0, 16, 2): L.append(pk('mul', EP+k, EP+k, ('b', r1)))
            for k in range(8): L.append(cvt(x+8+k, EP+2*k, EP+2*k+1))
            return parts + [L]
        FR = [[acc(0, 2), acc(0, 3)], [acc(1, 2), acc(1, 3)]]
        def to_lds(x):
            return [f'ds_write_b64 v{a_w}, {vr(x+8*(1-sg)+2*j,2)} offset:{64*sg+16*j}' for sg in (1, 0) for j in range(4)]
        def frags():
            return [f'ds_read_b64_tr_b16 {vr(FR[k][u]+2*tt,2)}, v{(a_r0, a_r1)[k]} offset:{(16*u+4*tt)*136}' for k in (1, 0) for u in range(2) for tt in range(2)]
        KV1 = PK[0]
        def kvm(Tt):
            L = []
            for k, K, Z in ((1, KV1, ZS), (0, KV0, ZK)):
                for u in range(2): L.append(mf32(K, FR[k][u], acc(2*Tt+u, 4), None if (Tt == 0 and u == 0) else K))
                for u in range(2): L.append(mf16(Z, SEL, FR[k][u], None if (Tt == 0 and u == 0) else Z))
            return L
        sc = sched if self.sch else (lambda L: L)
        K = qk_prep(2, csk); isM = lambda t: t.startswith('v_mfma')
        VP_ = [vprep(b) for b in range(4)]
        sm0, sm1 = softmax(0), softmax(1)
        mfma = E['mfma']
        TM = [mfma(1, b, n) for b in range(4) for n in (2, 3)] + [mfma(1, b, n) for b in range(4) for n in (4, 5)] + [mfma(1, b, 1) for b in range(4)] + [mfma(1, b, 0) for b in range(self.bpos+1, 4)]
        K01 = []
        for b in range(2):
            K01 += [f'v_fmac_f32 v{acc(b,2)+k}, v{csk+k}, v{nml+b}' for k in range(8)] + K[8*b+4:8*b+8]
        S = interleave(TM, S + K01, per=[2]*24)
        S += sc([t for t in K[16:] if not isM(t)] + [f'v_mul_f32 v{c32+Tt}, {f2u(LOG2E)}, v{c32+Tt}' for Tt in range(2)] + VP_[0][0] + VP_[1][0])
        def cutA(n, k):
            nonlocal S
            if self.fine == n: self.aw(S + ['s_waitcnt lgkmcnt(0)']); S = []; self.stamp(k)
        cutA(1, 12)
        S += sc([t for t in K if isM(t)] + VP_[0][1] + VP_[1][1] + VP_[0][2] + VP_[1][2] + sm0[0])
        cutA(1, 13)
        S += sc(sm0[1] + sm0[2] + sm1[0] + sm0[3] + to_lds(PK[0]) + frags())
        cutA(1, 14)
        S += sm1[1] + interleave(kvm(0), sm1[2], per=[3, 3, 1, 1, 3, 3, 1, 1])
        cutA(2, 12)
        S += sc(sm1[3] + to_lds(PK[1]) + frags() + sum((VP_[b][k] for k in range(3) for b in (2, 3)), []), lambda t: t.startswith('ds_read'))
        cutA(2, 13)
        M = kvm(1)
        X = [f'ds_write_b128 v{x_w}, {vr(KV1+4*k,4)} offset:{1024*k}' for k in range(4)]
        hi16 = ['s_mov_b32 vcc_lo, 0xffff0000', 's_mov_b32 vcc_hi, 0xffff0000']
        S += M[0:2] + hi16 + M[2:6] + X + [f'v_cndmask_b32 v{ZS}, v{ZS}, v{ZS+1}, vcc', f'ds_write_b32 v{x_w}, v{ZS} offset:4096'] + M[6:8]
        cutA(2, 14)
        self.aw(S); S = []
        S += ['s_waitcnt lgkmcnt(0)', 's_barrier']
        S.append(f'ds_read_b32 v{csv}, v{x_r} offset:4096')
        for k in range(4): S.append(f'ds_read_b128 {vr(EP+4*k,4)}, v{x_r} offset:{1024*k}')
        add = [pk('add', KV0+2*k, KV0+2*k, EP+2*k) for k in range(8)]
        cv = [cvt(KV0+8*(k//4)+k%4, KV0+2*k, KV0+2*k+1) for k in range(8)]
        st = [f'buffer_store_dwordx4 {vr(KV0+8*u,4)}, v{l16}, {srd(sWS)}, s{s_d} offen offset:{1024*u} sc1' for u in range(2)]
        S += [f'v_cndmask_b32 v{ZK}, v{ZK}, v{ZK+1}, vcc', f'v_add_f32 v{ZK}, v{ZK}, v{csv}'] + add[:2]
        S += [f'v_mov_b32_dpp v{ZK+3}, v{ZK} quad_perm:[1,0,3,2] row_mask:0xf bank_mask:0xf'] + add[2:4] + cv[:4] + st[:1] + [cvt(ZK, ZK, ZK+3)]
        S += add[4:] + [f'buffer_store_dword v{ZK}, v{a_z}, {srd(sWS)}, s{s_e} offen sc1'] + cv[4:] + st[1:]
        self.aw(S); S = []
        if not self.yw: a('s_barrier')
        self.stamp(3)
        u3, u4 = ZA + 4, ZA + 5
        for nb in range(2): S.append(f'ds_read_b128 {vr(csq+4*nb,4)}, v{a_csr} offset:{64*nb}')
        S += qk_prep(0, csq) + sum(softmax(0) + softmax(1), [])
        S += [f'v_lshrrev_b32 v{u3}, 5, v1', f'v_and_b32 v{u4}, 2, v1', f'v_lshlrev_b32 v{u4}, 5, v{u4}', f'v_lshl_add_u32 v{a_z}, v{u3}, 4, v{u4}',
              f'v_not_b32 v{u4}, v{SEL}', f'v_and_b32 v{u4}, 0x20000000, v{u4}', f'v_lshl_or_b32 v{a_z}, v{u4}, 1, v{a_z}',
              f'v_bfe_u32 v{u4}, v1, 4, 1', f'v_lshlrev_b32 v{u4}, 15, v{u4}', f'v_lshl_add_u32 v{u4}, v{u3}, 8, v{u4}',
              f'v_and_b32 v{u3}, 15, v1', f'v_lshl_add_u32 v{a_w}, v{u3}, 4, v{u4}', f's_add_u32 s{s_d}, s{s_a}, 65536']
        if self.yw:
            S = sched(S); S.insert(self.yw, 's_barrier'); self.aw(S); S = []
        else: self.sw(S, name='A q-part'); S = []
        self.stamp(4)
        a('s_barrier')
        self.stamp(7)
        KF = KV0; ZF = EP
        if self.b2: a(f's_sleep {self.b2}')
        self.ll_wait(([f's_sleep {self.n2}'] if self.n2 else []) + [f'buffer_load_dwordx4 {vr(ZF+4*u,4)}, v{a_z}, {srd(sWS)}, s{s_b} offen offset:{32*u} sc1' for u in range(2)] +
                     [f'buffer_load_dwordx4 {vr(KF+4*k,4)}, v{l16}, {srd(sWS)}, s{s_c} offen offset:{1024*k} sc1' for k in range(4)],
                     list(range(ZF, ZF+8)) + list(range(KF, KF+16)), u3, u4, 5)
        self.stamp(5)
        ACC = E['ACC']
        den, num, rcp, fin = [], [], [], []
        for Tt in range(2):
            N, DP, DM = ACC + 48*Tt, ACC + 48*Tt + 16, ACC + 48*Tt + 32
            x = PK[Tt]
            den.append([mf16(DP, ZF, x+8), mf16(DM, ZF, x), mf16(DP, ZF+4, x+12, DP), mf16(DM, ZF+4, x+4, DM)])
            num.append([mf32(N, KF, x+8), mf32(N, KF+4, x+12, N), mf32(N, KF+8, x, N), mf32(N, KF+12, x+4, N)])
            rcp.append([f'v_add_f32 v{DP}, v{DP}, v{DM+2}', f'v_add_f32 v{DP+1}, v{DP+1}, v{DM+3}', f'v_cndmask_b32 v{DP}, v{DP}, v{DP+1}, vcc',
                        f'v_add_f32 v{DP}, {f2u(1e-6)}, v{DP}', f'v_rcp_f32 v{DP}, v{DP}'])
            L = []
            for p in range(2):
                R = [(N + 4*(p + 2*jj) + 2*k, DM+4+4*p+2*jj+k) for jj in range(2) for k in range(2)]
                for r, d in R:
                    if Tt == 0: L += [f'v_mul_f32 v{r}, v{DP}, v{r}', f'v_mul_f32 v{r+1}, v{DP}, v{r+1}']
                    else: L.append(pk('mul', r, r, ('b', DP)))
                L += [cvt(d, r, r+1) for r, d in R]
                L.append(f'buffer_store_dwordx4 {vr(DM+4+4*p,4)}, v{a_w}, {srd(sWS)}, s{(s_a, s_d)[Tt]} offen offset:{512*p} sc1')
            fin.append(L)
        a.extend(den[0] + num[0] + interleave(den[1], hi16 + rcp[0], per=[2, 2, 2, 1]))
        a.extend(interleave(num[1], fin[0][:13] + rcp[1] + fin[0][13:], per=[6, 6, 6, 13]) + fin[1])
        self.stamp(6)

    def epiB(self, E, pre):
        a = self.a
        acc = E['acc']; a_tok, a_row, a_csr, a_csv, l16 = (E[k] for k in ('a_tok', 'a_row', 'a_csr', 'a_csv', 'l16'))
        s_wm, s_wh, s_a, s_b, s_c, s_d, s_e = (E[k] for k in ('s_wm', 's_wh', 's_a', 's_b', 's_c', 's_d', 's_e'))
        BI, BI0, MK, a_h = 236, 244, 248, 252
        if pre == 'v':
            t1, t2, t3 = 208, 209, 210
            S = [f'v_and_b32 v{t1}, 15, v1', f'v_lshrrev_b32 v{t2}, 4, v1', f'v_lshlrev_b32 v{t2}, 2, v{t2}', f'v_sub_u32 v{t1}, v{t1}, v{t2}',
                 f'v_mov_b32 v{t3}, {f2u(-1e30)}']
            for blk in range(2):
                for i in range(4):
                    S += [f'v_add_u32 v{t2}, {(16 if blk == 0 else 0) - i}, v{t1}', f'v_and_b32 v{t2}, -15, v{t2}', f'v_cmp_eq_u32 vcc, 0, v{t2}',
                          f'v_cndmask_b32 v{BI+4*blk+i}, v{t3}, 0, vcc']
                    if i % 2 == 0: S += [f'v_cndmask_b32 v{MK+2*blk+i//2}, 0, -1, vcc', f'v_lshrrev_b32 v{MK+2*blk+i//2}, 16, v{MK+2*blk+i//2}']
                    else: S += [f'v_cndmask_b32 v{t2}, 0, -1, vcc', f'v_lshl_or_b32 v{MK+2*blk+i//2}, v{t2}, 16, v{MK+2*blk+i//2}']
            S += [f's_or_b32 s{s_t}, s{s_m}, s{s_wm}', 's_cselect_b64 vcc, -1, 0']
            for i in range(4): S.append(f'v_cndmask_b32 v{BI0+i}, v{t3}, v{BI+i}, vcc')
            S += sx(s_t, [(s_wh, 2048)], P_PHI) + [f'v_add_u32 v{a_h}, s{s_t}, v{l16}']
            S += [f's_add_u32 s{s_t+1}, s{s_t}, 1024', f's_cmp_eq_u32 s{s_wm}, 0', f's_cselect_b32 s{s_t}, s{s_t}, {L_P + 7168}', f's_cselect_b32 s{s_t+1}, s{s_t+1}, {L_P + 7168}',
                  f'v_add_u32 v{a_h+1}, s{s_t}, v{l16}', f'v_add_u32 v{a_h+2}, s{s_t+1}, v{l16}']
            a.extend(S)
            return
        if pre == 's':
            S = sx(s_b, [(s_l, 1 << 19), (s_m, 1 << 16), (s_g, 4096), (s_wh, 2048)], WS_HALO - (1 << 19))
            S += [f's_add_u32 s{s_c}, s{s_b}, 65536', f's_cmp_eq_u32 s{s_m}, 15', f's_cselect_b32 s{s_c}, {BIG}, s{s_c}',
                  f's_cmp_eq_u32 s{s_wm}, 0', f's_cselect_b32 s{s_c}, {BIG}, s{s_c}', f's_cselect_b32 s{s_b}, s{s_b}, {BIG}',
                  f's_cmp_eq_u32 s{s_m}, 0', f's_cselect_b32 s{s_b}, {BIG}, s{s_b}', f's_add_u32 s{s_d}, s{s_a}, 65536']
            a.extend(S)
            return
        nr = [160, 168, 176, 208]
        nml, rsl, csk, csv, csq, HB = 216, 220, 224, 232, 128, 136
        VP = [184, 196]
        U, M, t1, t2 = 144, 152, 156, 157
        S = []
        for b in (3, 0, 1, 2):
            S += [f'ds_read_b32 v{nml+b}, v{a_tok} offset:{64*b}', f'ds_read_b32 v{rsl+b}, v{a_tok} offset:{512+64*b}']
            if b == 3:
                for nb in range(2): S.append(f'ds_read_b128 {vr(csk+4*nb,4)}, v{a_csr} offset:{768+256+64*nb}')
                for nb in range(2): S.append(f'ds_read_b32 v{csv+nb}, v{a_csv} offset:{768+512+64*nb}')
            S += [f'ds_read_b128 {vr(nr[b],4)}, v{a_row} offset:{64*b}', f'ds_read_b128 {vr(nr[b]+4,4)}, v{a_row} offset:{512+64*b}']
        for nb in range(2): S.append(f'ds_read_b128 {vr(csq+4*nb,4)}, v{a_csr} offset:{768+64*nb}')
        def kprep(b):
            r = acc(b, 2); L = []
            for k in range(4): L.append(pk('fma', r+2*k, csk+2*k, ('b', nml+b), r+2*k))
            for k in range(4): L.append(pk('mul', r+2*k, r+2*k, ('b', rsl+b)))
            for k in range(4): L.append(cvt(r+k, r+2*k, r+2*k+1))
            return L
        def vprep(b):
            r = acc(b, 4); L = []
            for nb in range(2):
                for p in range(2): L.append(pk('fma', r+4*nb+2*p, nr[b]+2*p, ('b', csv+nb), r+4*nb+2*p))
            for nb in range(2):
                for p in range(2): L.append(pk('mul', r+4*nb+2*p, r+4*nb+2*p, nr[b]+4+2*p))
            for nb in range(2):
                for p in range(2):
                    if b == 3: L.append(cvt(acc(3, 3)+2*nb+p, r+4*nb+2*p, r+4*nb+2*p+1))
                    else: L.append(cvt(VP[nb]+2+2*b+p, r+4*nb+2*p, r+4*nb+2*p+1))
            return L
        def qprep(b):
            r = acc(b, 0); L = []
            for k in range(4): L.append(pk('fma', r+2*k, csq+2*k, ('b', nml+b), r+2*k))
            for k in range(4): L.append(cvt(r+k, r+2*k, r+2*k+1))
            return L
        mfma = E['mfma']
        TM = [mfma(1, b, n) for b in (3, 0, 1, 2) for n in (2, 3, 4, 5)] + [mfma(1, b, 1) for b in range(4)] + [mfma(1, b, 0) for b in range(self.bpos+1, 4)]
        rk, rv = acc(3, 2), acc(3, 4)
        P3 = [f'v_fmac_f32 v{rk+k}, v{csk+k}, v{nml+3}' for k in range(8)] + [f'v_mul_f32 v{rk+k}, v{rsl+3}, v{rk+k}' for k in range(8)] + kprep(3)[8:]
        P3 += [f'v_fmac_f32 v{rv+k}, v{nr[3]+k%4}, v{csv+k//4}' for k in range(8)] + [f'v_mul_f32 v{rv+k}, v{nr[3]+4+k%4}, v{rv+k}' for k in range(8)] + vprep(3)[8:]
        T0 = interleave(TM, S[:14] + P3, per=[2]*24); S = S[14:]
        for k in range(2): T0.append(f'buffer_store_dwordx4 {vr(acc(3,2)+4*k,4)}, v{l16}, {srd(sWS)}, s{s_c} offen offset:{1024*k} sc1')
        for k in range(2): S.append(f'ds_write_b128 v{a_h+1+k}, {vr(acc(3,2)+4*k,4)}')
        for nb in range(2): S.append(f'v_mov_b64 {vr(VP[nb]+8,2)}, {vr(acc(3,3)+2*nb,2)}')
        for b in range(3): S += kprep(b) + vprep(b)
        for b in range(4): S += qprep(b)
        for b in range(4): S.append(f'v_mul_f32 v{rsl+b}, {f2u(LOG2E * 32 ** -0.5)}, v{rsl+b}')
        def logits(b):
            s = nr[b]
            L = [mf16(s, HB if b == 0 else acc(b-1, 2), acc(b, 0), BI0 if b == 0 else BI), mf16(s+4, acc(b, 2), acc(b, 0), BI+4)]
            for p in range(2):
                L += [f'v_max3_f32 v{U+2*b+p}, v{s+2*p}, v{s+2*p+1}, v{s+4+2*p}', f'v_max_f32 v{U+2*b+p}, v{U+2*b+p}, v{s+5+2*p}',
                      f'v_mul_f32 v{U+2*b+p}, v{rsl+b}, v{U+2*b+p}']
            L.append(f'v_max_f32 v{M+b}, v{U+2*b}, v{U+2*b+1}')
            return L
        for b in (1, 2, 3): S += logits(b)
        if self.sch: S = sched(S)
        HL = [f'buffer_load_dwordx4 {vr(HB+4*k,4)}, v{l16}, {srd(sWS)}, s{s_b} offen offset:{1024*k} sc1' for k in range(2)]
        if self.fine == 3: self.aw(T0 + ['s_waitcnt lgkmcnt(0)']); T0 = []; self.stamp(13)
        self.aw(T0 + S[:self.hpos] + HL + S[self.hpos:]); S = []
        if self.fine == 3: self.stamp(14)
        a('s_waitcnt lgkmcnt(0)'); a('s_barrier')
        self.stamp(3)
        L1, L3 = self.lab('hg'), self.lab('hd')
        a(f's_cmp_eq_u32 s{s_wm}, 0'); a(f's_cbranch_scc1 {L1}')
        a('s_waitcnt vmcnt(0)')
        for k in range(2): a(f'ds_read_b128 {vr(HB+4*k,4)}, v{a_h} offset:{1024*k}')
        a('s_waitcnt lgkmcnt(0)')
        a(f's_branch {L3}')
        a.label(L1)
        self.ll_wait(HL, list(range(HB, HB+8)), t1, t2, 0, pre='s_waitcnt vmcnt(0)')
        a.label(L3)
        self.stamp(4)
        S += logits(0)
        for nb in range(2): S.append(f'v_mov_b64 {vr(VP[nb],2)}, {vr(HB+4+2*nb,2)}')
        def allred(op, mid):
            L = [sw32(M, M+2), sw32(M+1, M+3), f'{op} v{M}, v{M}, v{M+2}', f'{op} v{M+1}, v{M+1}, v{M+3}', sw16(M, M+1), f'{op} v{M+1}, v{M}, v{M+1}']
            L += mid
            L += [f'v_mov_b32 v{M}, v{M+1}', sw16(M, M+1), f'v_mov_b64 {vr(M+2,2)}, {vr(M,2)}', sw32(M, M+2), sw32(M+1, M+3)]
            return L
        S += allred('v_max_f32', [])
        for b in range(4): S.append(pk('add', U+2*b, U+2*b, ('b', M+b), neg=[0, 1]))
        for k in range(8): S.append(f'v_exp_f32 v{U+k}, v{U+k}')
        for b in range(4): S.append(f'v_add_f32 v{M+b}, v{U+2*b}, v{U+2*b+1}')
        S += allred('v_add_f32', [f'v_rcp_f32 v{M+1}, v{M+1}'])
        for b in range(4): S.append(pk('mul', U+2*b, U+2*b, ('b', M+b)))
        for b in range(4):
            P = nr[b]; O = acc(b, 4)
            for p in range(2): S.append(cvt(U+2*b+p, U+2*b+p, U+2*b+p))
            for blk in range(2):
                for p in range(2): S.append(f'v_and_b32 v{P+2*blk+p}, v{U+2*b+p}, v{MK+2*blk+p}')
            for db in range(2): S.append(mf16(O+4*db, VP[db]+2*b, P))
        S += [f's_add_u32 s{s_b}, s{s_a}, 32768', f's_add_u32 s{s_c}, s{s_d}, 32768']
        for b in range(4):
            O = acc(b, 4)
            for k in range(4): S.append(cvt(O+k, O+2*k, O+2*k+1))
            S.append(f'buffer_store_dwordx4 {vr(O,4)}, v{l16}, {srd(sWS)}, s{(s_a, s_b, s_d, s_c)[b]} offen sc1')
        self.sw(S, name='B finish')
        self.stamp(6)

    def build(self):
        a = self.a
        self.prologue()
        if self.st0 & 1: self.loader(); a.label('L_compute'); self.compute()
        else: self.compute(); self.loader()
        self.helper()
        a.label('L_fin')
        self.stamp(15)
        self.stamp_out()
        if self.probe and len(self.probe) > 3:
            def pub():
                a('s_mov_b64 exec, 1'); a('v_mov_b32 v2, s94'); a('s_not_b32 s93, s93'); a('v_mov_b32 v3, s93')
                a(f'buffer_atomic_umax v2, off, {srd(sDBG)}, 0 offset:12 sc1'); a(f'buffer_atomic_umax v3, off, {srd(sDBG)}, 0 offset:140 sc1')
                a('s_waitcnt vmcnt(0)'); a('v_mov_b32 v2, 1'); a(f'buffer_atomic_add v2, off, {srd(sDBG)}, 0 offset:20 sc1'); a('s_waitcnt vmcnt(0)')
                def w0():
                    self.spin(['s_sleep 8', f'buffer_load_dword v2, off, {srd(sDBG)}, 0 offset:20 sc1'], ['v_cmp_gt_u32 vcc, 0x100, v2'], 4, 10)
                    a(f'buffer_load_dword v2, off, {srd(sDBG)}, 0 offset:12 sc1'); a(f'buffer_load_dword v3, off, {srd(sDBG)}, 0 offset:140 sc1'); a('s_waitcnt vmcnt(0)')
                    a('v_readfirstlane_b32 s94, v2'); a('v_readfirstlane_b32 s93, v3'); a('s_not_b32 s93, s93')
                self.cond(['s_cmp_eq_u32 s2, 0'], w0)
                a('s_mov_b64 exec, -1')
            self.cond([f's_cmp_eq_u32 s{s_wave}, 0'], pub)
        if self.probe:
            def body():
                a('s_sub_u32 s93, s94, s93'); a(f's_mul_i32 s93, s93, {self.probe[2]}'); a('s_min_u32 s93, s93, 100000')
                a(f's_memrealtime s[{s_t+6}:{s_t+7}]'); a('s_waitcnt lgkmcnt(0)'); a(f's_add_u32 s93, s93, s{s_t+6}')
                a.label('L_probe')
                a(f's_memrealtime s[{s_t+6}:{s_t+7}]'); a('s_waitcnt lgkmcnt(0)'); a(f's_sub_u32 s94, s{s_t+6}, s93'); a('s_cmp_lt_i32 s94, 0'); a('s_cbranch_scc1 L_probe')
            self.cond([f's_or_b32 s{s_t}, s2, s{s_wave}', f's_cmp_eq_u32 s{s_t}, 0'], body)
        a('s_waitcnt vmcnt(0)')
        a.label('L_end')
        a('s_endpgm')
        for b in self.later: a.ins += b.ins
        if self.cpf: a.label('L_last'); a('s_endpgm')
        a.pad()
        assert a.maxreg('v') <= 255 and a.maxreg('s') < 96
        return a.text()


def generate(listform=False, **kw):
    body = Gen(**kw).build()
    ref = open('interleave_layers__linear_kernel_hedgehog__sliding_local_dilated__prompt.s.ref').read() if not listform else ''
    head = ''.join(l + '\n' for l in ref.split('\n') if l.startswith(';') and '@launch' not in l)
    if listform: head += f'; @launch kernel={KNAME} grid=(256,1,1) block=(512,1,1) lds={LDS_BYTES}\n'
    else: head += f'; @launch grid=(256,1,1) block=(512,1,1) lds={LDS_BYTES}\n'
    return head + '.amdgcn_target "amdgcn-amd-amdhsa--gfx950"\n' + kernel_head(KNAME) + body + kernel_desc(KNAME, 256, 96, 256)

if __name__ == '__main__':
    kw = eval(sys.argv[2]) if len(sys.argv) > 2 else {}
    open(sys.argv[1], 'w').write(generate(**kw))
```

```python
import sys, struct
sys.path.insert(0, 'work')
from asmlib import *

KNAME = 'interleave_layers__linear_kernel_hedgehog__sliding_local_dilated__prompt_kernel'

WS_CTR, WS_STAMP, WS_ST, WS_CS = 0x0, 0x100000, 0x200000, 0x300000
WS_HALO, WS_KVF, WS_ZP, WS_ZF, WS_KVP = 0x400000, 0x600000, 0x680000, 0x6C0000, 0x800000
WS_RF = 0x700000
WS_XI, WS_OI, WS_END = 0xC00000, 0x1800000, 0x2800000
BIG = 0x40000000
STG = 40960
XOFF = 24576
L_WO = 24576
L_SPARE = 3 * STG
L_P = 155648
P_NM, P_RS, P_CS, P_MODE, P_CNT, P_PHI = L_P, L_P + 512, L_P + 1024, L_P + 2816, L_P + 2832, L_P + 3072
LDS_BYTES = 163840
SCR = 5120
LOG2E = 1.4426950408889634
def f2u(x): return '0x%08x' % struct.unpack('<I', struct.pack('<f', x))[0]

s_fast = 3
pAX, pAW, pPHI, pAWO, pBW, pBWO, pOUT, pDBG, pWS = 4, 6, 8, 10, 14, 16, 18, 20, 22
sWS, sX, sW, sWO, sOUT, sDBG = 24, 28, 32, 36, 40, 44
s_m, s_g, s_wave, s_l = 48, 49, 50, 51
s_t = 52
s_cnt, s_x = 60, 61
s_i = 62
s_stamp = 63
s_rot = 64
s_rot2 = 95
s_ft, s_fn, s_fd, s_po = 90, 91, 88, 87
def srd(b): return 's[%d:%d]' % (b, b + 3)


def sx(d, terms, const=0):
    L = []
    for n, (r, k) in enumerate([t for t in terms if t[1]]):
        t = d if n == 0 else s_x
        if k == 1 and n: t = r
        elif k == 1: L.append(f's_mov_b32 s{t}, s{r}')
        elif k > 0 and k & (k - 1) == 0: L.append(f's_lshl_b32 s{t}, s{r}, {k.bit_length()-1}')
        else: L.append(f's_mul_i32 s{t}, s{r}, {k}')
        if n: L.append(f's_add_u32 s{d}, s{d}, s{t}')
    if const: L.append(f's_add_u32 s{d}, s{d}, {const:#x}' if const > 0 else f's_sub_u32 s{d}, s{d}, {-const:#x}')
    return L

def pkop(r):
    if isinstance(r, tuple):
        return vr(r[1] & ~1, 2), r[1] & 1, r[1] & 1
    assert r % 2 == 0
    return vr(r, 2), 0, 1
def pk(op, d, *src, neg=None):
    o = [pkop(s) for s in src]
    t = 'v_pk_%s_f32 %s, %s' % (op, vr(d, 2), ', '.join(x[0] for x in o))
    lo = [x[1] for x in o]; hi = [x[2] for x in o]
    if any(lo): t += ' op_sel:[%s]' % ','.join(map(str, lo))
    if not all(hi): t += ' op_sel_hi:[%s]' % ','.join(map(str, hi))
    if neg: t += ' neg_lo:[%s] neg_hi:[%s]' % (','.join(map(str, neg)), ','.join(map(str, neg)))
    return t
def cvt(d, a, b): return f'v_cvt_pk_bf16_f32 v{d}, v{a}, v{b}'
def sw16(a, b): return f'v_permlane16_swap_b32 v{a}, v{b}'
def sw32(a, b): return f'v_permlane32_swap_b32 v{a}, v{b}'
def mf16(d, A, B, C=None): return f'v_mfma_f32_16x16x32_bf16 {vr(d,4)}, {vr(A,4)}, {vr(B,4)}, ' + (vr(C, 4) if C is not None else '0')
def mf32(d, A, B, C=None): return f'v_mfma_f32_32x32x16_bf16 {vr(d,16)}, {vr(A,4)}, {vr(B,4)}, ' + (vr(C, 16) if C is not None else '0')


class Gen:
    def __init__(self, prof=0, limit=40000, dist=2, touch=1, bm=25, local=1, pd=6, sch=1, hprio=2, opos=(1, 5), warm=1, nap=1, probe=None, snake=1, rf=2, hq=4, fine=0, llf='sc1', ot=0, hc=None, hpos=90, early=0, w2=0, w0b=0, cpf=0, tr=4, bpos=1, r0=2, rprio=3, w0a=1, pipe=0, b1=0, b2=0, n1=0, n2=0, zw=2, yw=60, thr=None, pw=0, po=0, jit=0, st0=6, vpos=1, fst='sc1', rot0=12, iw=2, oh=(0, 9), dl=6, lprio=3, fpos=24, lf='', lfl=0, xnap=0, ls=0, pf='nt', mix=0, bw=0):
        self.a = Asm()
        assert 16 <= bm < 32 - dl//2 and not early
        self.__dict__.update(prof=prof, limit=limit, dist=dist, touch=touch, bm=bm, local=local, pd=pd, sch=sch, hprio=hprio, opos=opos, warm=warm, nap=nap, probe=probe, snake=snake, rf=rf, hq=hq, fine=fine, llf=llf, ot=ot, hc=hc, hpos=hpos, early=early, w2=w2, w0b=w0b, cpf=cpf, tr=tr, bpos=bpos, r0=r0, rprio=rprio, w0a=w0a, pipe=pipe, b1=b1, b2=b2, n1=n1, n2=n2, zw=zw, yw=yw, thr=thr, pw=pw, po=po, jit=jit, st0=st0, vpos=vpos, fst=fst, rot0=rot0, iw=iw, oh=oh, dl=dl, lprio=lprio, fpos=fpos, lf=lf, lfl=lfl, xnap=xnap, ls=ls, pf=pf, mix=mix, bw=bw)
        self.nlab = 0; self.later = []

    def lab(self, p):
        self.nlab += 1
        return 'L_%s_%d' % (p, self.nlab)

    def aw(self, L):
        self.a.extend(autowait(L))
    def sw(self, L, crit=None, name=''):
        if self.sch:
            L = sched(L, crit)
            if name and __name__ == '__main__': print('sched', name, len(L), 'instructions, about', sched.last_estimate, 'cycles', file=sys.stderr)
        self.a.extend(autowait(L))

    def cond(self, test, body):
        L = self.lab('skip')
        self.a.extend(test); self.a(f's_cbranch_scc0 {L}')
        body()
        self.a.label(L)

    def aside(self, f):
        main, self.a = self.a, Asm()
        f()
        self.later.append(self.a); self.a = main

    def spin(self, issue, check, vt, tag, pre=False, alt=None, checked=False):
        a = self.a
        L, C, T, A, D = (self.lab(x) for x in ('spin', 'chk', 'tmo', 'alt', 'done'))
        count = [f's_add_u32 s{s_cnt}, s{s_cnt}, 1', f's_cmp_lt_u32 s{s_cnt}, {self.limit}', f's_cbranch_scc0 {T}']
        if checked:
            alt = issue; a(f's_cbranch_vccnz {A}')
        else:
            a(f's_mov_b32 s{s_cnt}, 0')
            if alt: a(f's_cmp_eq_u32 s{s_fast}, 1'); a(f's_cbranch_scc0 {A}')
            if pre:
                a(f's_branch {C}')
                a.label(L); a.extend(issue); a.extend(count); a('s_waitcnt vmcnt(0)')
                a.label(C)
                if pre is not True: a(pre)
                a.extend(check)
            else:
                S = autowait(list(issue) + ['s_nop 3'] + list(check)); k = S.index('s_nop 3')
                a.label(L); a.extend(S[:k]); a.extend(count); a.extend(S[k+1:])
            a(f's_cbranch_vccnz {L}')
        a.label(D)
        def rest():
            a = self.a
            if alt:
                L2 = self.lab('spin')
                a.label(A); a(f's_mov_b32 s{s_cnt}, 0')
                a.label(L2); a.extend(alt); a.extend(count); a('s_waitcnt vmcnt(0)' if checked else 's_waitcnt vmcnt(0) lgkmcnt(0)'); a.extend(check)
                a(f's_cbranch_vccnz {L2}'); a(f's_branch {D}')
            a.label(T)
            a('s_waitcnt vmcnt(0)' if checked else 's_waitcnt vmcnt(0) lgkmcnt(0)')
            a(f'v_mov_b32 v{vt}, {1 << tag}')
            a(f'buffer_atomic_or v{vt}, off, {srd(sDBG)}, 0 offset:4 sc1')
            a(f's_branch {D}')
        self.aside(rest)

    def ll_wait(self, loads, regs, t1, t2, tag, pre=False):
        S = []
        h = len(regs) // 2
        for t, R in ((t1, regs[:h]), (t2, regs[h:])):
            S.append(f'v_max_u32 v{t}, v{R[0]}, v{R[1]}')
            for k in range(2, len(R), 2): S.append(f'v_max3_u32 v{t}, v{t}, v{R[k]}, v{R[k+1]}')
        S += [f'v_max_u32 v{t1}, v{t1}, v{t2}', f'v_cmp_eq_u32 vcc, -1, v{t1}']
        loads = [l.replace('sc1', self.llf) for l in loads]
        self.spin(loads, S, t1, tag, pre)

    def flag_set(self, soff, vt, which=3):
        a = self.a
        a('s_mov_b64 exec, 1')
        if which & 1: a(f'buffer_store_dword v{vt}, off, {srd(sWS)}, s{soff} {self.lf}')
        if which == 3 and self.lfl == 1: a(f'buffer_load_dword v220, off, {srd(sWS)}, s{soff} sc1')
        if which == 3 and self.lfl == 2: which = 1
        if which & 2: a(f'buffer_store_dword v{vt}, off, {srd(sWS)}, s{soff+1} sc1')
        a('s_mov_b64 exec, -1')
    def flag_addr(self, va, vt, soff, remote=False):
        L = [f'v_bfe_u32 v{va}, v1, 1, 3', f'v_and_b32 v{vt}, 1, v1', f'v_lshl_add_u32 v{va}, v{va}, 2, v{vt}']
        if remote: return L + [f'v_lshlrev_b32 v{va}, 7, v{va}']
        return L + [f's_cmp_eq_u32 s{s_fast}, 1', f's_cselect_b32 s{s_t}, {self.ls}, 5', f's_cselect_b32 s{s_t+1}, 0, {WS_RF}',
                    f's_lshl_b32 s{soff}, s{soff}, s{s_t}', f's_add_u32 s{soff}, s{soff}, s{s_t+1}', f's_add_u32 s{s_t}, s{s_t}, 2',
                    f'v_lshlrev_b32 v{va}, s{s_t}, v{va}']
    def flag_load(self, soff, va, vt, fl='sc1'): return f'buffer_load_dword v{vt}, v{va}, {srd(sWS)}, s{soff} offen {fl}'
    def flag_wait(self, soff, va, vt, tag, pre=False, nap=0, own=False, checked=False):
        z = [f's_sleep {nap}'] if nap else []
        self.spin(z + [self.flag_load(soff, va, vt, self.pf if own else 'sc1')], [f'v_cmp_eq_u32 vcc, 0, v{vt}'], vt, tag, pre,
                  z + [self.flag_load(soff, va, vt)] if own else None, checked)
    def get_mode(self, vt):
        self.a.extend([f'v_mov_b32 v{vt}, {P_MODE}', f'ds_read_b32 v{vt}, v{vt}', 's_waitcnt lgkmcnt(0)', f'v_readfirstlane_b32 s{s_fast}, v{vt}'])

    def jitter(self, k):
        a = self.a
        L = self.lab('jit')
        a.extend([f's_lshl_b32 s{s_t+6}, s2, 3', f's_add_u32 s{s_t+6}, s{s_t+6}, s{s_wave}', f's_lshl_b32 s{s_t+6}, s{s_t+6}, 2', f's_add_u32 s{s_t+6}, s{s_t+6}, s{s_l}',
                  f's_add_u32 s{s_t+6}, s{s_t+6}, {(k*7919 + self.jit*104729) & 0xffffff}', f's_mul_i32 s{s_t+6}, s{s_t+6}, 0x9e3779b1', f's_lshr_b32 s{s_t+7}, s{s_t+6}, 13',
                  f's_xor_b32 s{s_t+6}, s{s_t+6}, s{s_t+7}', f's_mul_i32 s{s_t+6}, s{s_t+6}, 0x85ebca6b', f's_lshr_b32 s{s_t+7}, s{s_t+6}, 29',
                  f's_lshr_b32 s{s_t+6}, s{s_t+6}, 8', f's_and_b32 s{s_t+6}, s{s_t+6}, 127', f's_lshr_b32 s{s_t+6}, s{s_t+6}, s{s_t+7}'])
        a.label(L)
        a.extend(['s_sleep 1', f's_sub_u32 s{s_t+6}, s{s_t+6}, 1', f's_cbranch_scc0 {L}'])
    def stamp(self, k):
        if self.jit: self.jitter(k)
        if self.probe:
            for n, (pl, pk_) in enumerate(self.probe[:2]):
                if pk_ == k:
                    def body():
                        self.a(f's_memrealtime s[{s_t+6}:{s_t+7}]'); self.a('s_waitcnt lgkmcnt(0)'); self.a(f's_mov_b32 s{93+n}, s{s_t+6}')
                    self.cond([f's_cmp_eq_u32 s{s_l}, {pl}'], body)
        if not self.prof or self.prof >= 5: return
        a = self.a
        a(f'{"s_memtime" if self.prof == 4 else "s_memrealtime"} s[{s_t+6}:{s_t+7}]')
        a(f's_mov_b32 s{s_stamp}, m0')
        a(f's_lshl_b32 m0, s{s_l}, 4'); a(f's_add_u32 m0, m0, {k}')
        a('s_waitcnt lgkmcnt(0)')
        a(f'v_writelane_b32 v255, s{s_t+6}, m0')
        a(f's_mov_b32 m0, s{s_stamp}')
    def stamp_out(self):
        if not self.prof: return
        a = self.a
        a.extend(sx(s_t, [(2, 2048), (s_wave, 256)], WS_STAMP))
        a('v_lshlrev_b32 v254, 2, v1')
        a(f'buffer_store_dword v255, v254, {srd(sWS)}, s{s_t} offen')

    def prologue(self):
        a = self.a
        a('s_cmp_ge_u32 s2, 256'); a('s_cbranch_scc1 L_end')
        a('s_load_dwordx16 s[4:19], s[0:1], 0')
        a('s_load_dwordx4 s[20:23], s[0:1], 64')
        a('v_lshrrev_b32 v2, 6, v0')
        a(f'v_readfirstlane_b32 s{s_wave}, v2')
        a('v_and_b32 v1, 63, v0')
        a(f's_and_b32 s{s_rot}, s2, 3'); a(f's_lshl_b32 s{s_rot}, s{s_rot}, 2')
        a(f's_bfe_u32 s{s_t}, s2, 0x20003'); a(f's_add_u32 s{s_m}, s{s_rot}, s{s_t}')
        a(f's_mov_b32 s{s_rot}, s{s_m}')
        a(f's_and_b32 s{s_rot2}, s2, 4'); a(f's_lshl_b32 s{s_rot2}, s{s_rot2}, 1')
        a(f's_lshr_b32 s{s_g}, s2, 5'); a(f's_add_u32 s{s_g}, s{s_g}, s{s_rot2}')
        a(f's_mov_b32 s{s_l}, 0'); a(f's_mov_b32 s{s_fast}, 0')
        for b, n in ((sWS, WS_END), (sX, 2048*1024*2), (sW, 1024*3072*2), (sWO, 1024*1024*2), (sOUT, WS_END), (sDBG, 256)):
            a(f's_mov_b32 s{b+2}, {n}'); a(f's_mov_b32 s{b+3}, 0x20000')
        if self.prof: a('v_mov_b32 v255, 0')
        self.stamp(0)
        a(f's_cmp_ge_u32 s{s_wave}, 6'); a('s_cbranch_scc1 L_helper')
        if self.st0 & 1: a(f's_cmp_lt_u32 s{s_wave}, 4'); a('s_cbranch_scc1 L_compute')
        else: a(f's_cmp_ge_u32 s{s_wave}, 4'); a('s_cbranch_scc1 L_loader')
    def pointers(self):
        a = self.a
        a('s_waitcnt lgkmcnt(0)')
        for b, p in ((sWS, pWS), (sX, pAX), (sW, pAW), (sWO, pAWO), (sOUT, pWS), (sDBG, pDBG)):
            a(f's_mov_b64 s[{b}:{b+1}], s[{p}:{p+1}]')

    def trickle_setup(self):
        a = self.a
        a(f's_mov_b64 s[{sOUT}:{sOUT+1}], s[{sWO}:{sWO+1}]'); a(f's_mov_b32 s{sOUT+2}, {1 << 21}')
        a.extend(sx(s_ft, [(2, 8192), (s_wave, 2048)], -8192))
        n1 = -(-16 // self.tr)
        a(f's_cmp_eq_u32 s{s_l}, 0'); a(f's_cselect_b32 s{s_fn}, 12, {n1}')
        a(f's_cmp_lt_u32 s{s_l}, {2 if self.warm else 0}'); a(f's_cselect_b32 s{s_fn}, s{s_fn}, 0')
    def trickle_lines(self, n):
        a = self.a
        a(f's_sub_u32 s{s_t}, s{sOUT+2}, {128*n}'); a(f's_min_u32 s{s_t}, s{s_t}, s{s_ft}')
        for r in range(n): a(f's_buffer_load_dwordx2 s[{s_fd}:{s_fd+1}], {srd(sOUT)}, s{s_t} offset:{128*r+60}')
        a(f's_add_u32 s{s_ft}, s{s_ft}, {128*n}')
    def trickle(self, i):
        a = self.a
        n1 = -(-16 // self.tr)
        def nxt():
            a(f's_mov_b64 s[{sOUT}:{sOUT+1}], s[{pBW}:{pBW+1}]'); a(f's_mov_b32 s{sOUT+2}, {3 << 21}')
            a.extend(sx(s_ft, [(2, 24576), (s_wave, 6144)], -24576))
        def body():
            if isinstance(i, str): self.cond([f's_cmp_eq_u32 {i}, {n1}'], nxt)
            elif i == n1: nxt()
            self.trickle_lines(self.tr)
        self.cond([f's_cmp_gt_u32 s{s_fn}, {i}'], body)
    def trickle_rest(self, part):
        rest = 48 - self.tr * (12 - -(-16 // self.tr))
        n = rest
        self.cond([f's_cmp_eq_u32 s{s_fn}, 12'], lambda: self.trickle_lines(n))

    def warm_w(self):
        a = self.a
        if not self.pw: return
        a(f's_and_b32 s{s_t}, s{s_m}, 3'); a.extend(sx(s_t+1, [(s_t, 16*6144), (s_wave, 4*6144), (s_g, 128)], -16*6144))
        a(f's_and_b32 s{s_t+2}, s{s_g}, 7')
        for st in range(1, 1 + self.pw):
            a(f's_cmp_le_u32 s{s_t+2}, {st-1}'); a(f's_addc_u32 s{s_t}, s{s_rot2}, {st-1}')
            a(f's_mul_i32 s{s_t}, s{s_t}, {64*6144}'); a(f's_add_u32 s{s_t}, s{s_t}, s{s_t+1}')
            for k in range(12): a(f's_buffer_load_dwordx2 s[{s_fd}:{s_fd+1}], {srd(sW)}, s{s_t} offset:{2048*k+60}')
    def warm_wo_setup(self):
        a = self.a
        a(f's_and_b32 s{s_t}, s{s_m}, 3'); a.extend(sx(s_po, [(s_t, 256*2048), (s_wave, 64*2048), (s_g, 128)], -256*2048))
    def warm_wo(self, n):
        a = self.a
        def body():
            for k in range(n): a(f's_buffer_load_dwordx2 s[{s_fd}:{s_fd+1}], {srd(sWO)}, s{s_po} offset:{2048*k+60}')
            a(f's_add_u32 s{s_po}, s{s_po}, {2048*n}'); a(f's_min_u32 s{s_po}, s{s_po}, {(1 << 21) - 2048*n}')
        if self.po: self.cond([f's_lshr_b32 s{s_t}, {self.po}, s{s_l}', f's_bitcmp1_b32 s{s_t}, 0'], body)

    def w_dma_offsets(self, dw, idx, t0, t1, t2):
        a = self.a
        a(f'v_lshrrev_b32 v{t0}, 3, v1'); a(f'v_mul_u32_u24 v{t0}, 6144, v{t0}')
        a(f'v_and_b32 v{t1}, 7, v1'); a(f'v_bfe_u32 v{t2}, v1, 4, 1'); a(f'v_lshlrev_b32 v{t2}, 1, v{t2}')
        a(f'v_xor_b32 v{t1}, v{t1}, v{t2}'); a(f'v_xor_b32 v{t2}, 4, v{t1}')
        a(f'v_lshl_add_u32 v{t1}, v{t1}, 4, v{t0}'); a(f'v_lshl_add_u32 v{t2}, v{t2}, 4, v{t0}')
        d = 8*6144 - 1024
        a(f's_lshl_b32 s{s_t+1}, s{s_g}, 7'); a(f'v_add_u32 v{t1}, s{s_t+1}, v{t1}'); a(f's_add_u32 s{s_t+1}, s{s_t+1}, {d}'); a(f'v_add_u32 v{t2}, s{s_t+1}, v{t2}')
        a(f's_cmp_eq_u32 s{idx}, 0')
        for t in range(3):
            c = [((3*w + t) & 1)*32*6144 + ((3*w + t) >> 1)*2048 for w in range(2)]
            a(f's_mov_b32 s{s_t}, {c[1]}'); a(f's_cmov_b32 s{s_t}, {c[0]}')
            a(f'v_add_u32 v{dw+4*t}, s{s_t}, v{t1}'); a(f'v_add_u32 v{dw+4*t+1}, s{s_t}, v{t2}')
            a(f'v_add_u32 v{dw+4*t+2}, {2*d}, v{dw+4*t}'); a(f'v_add_u32 v{dw+4*t+3}, {2*d}, v{dw+4*t+1}')

    def w_frag_addr(self, aw, head_sreg, base, t0, t1, t2, nb_list=(0, 1)):
        L = [f'v_lshrrev_b32 v{t2}, 4, v1', f'v_bfe_u32 v{t0}, v1, 2, 2', f'v_lshl_add_u32 v{t1}, v{t2}, 3, v{t0}',
             f'v_lshrrev_b32 v{t0}, 1, v{t0}', f'v_and_b32 v{t2}, 1, v{t2}', f'v_lshl_add_u32 v{t0}, v{t2}, 1, v{t0}']
        if head_sreg is not None: L += [f's_lshl_b32 s{s_t}, s{head_sreg}, 1', f'v_xor_b32 v{t0}, s{s_t}, v{t0}']
        L += [f'v_and_b32 v{t2}, 3, v1', f'v_lshlrev_b32 v{t2}, 3, v{t2}', f'v_lshl_add_u32 v{t2}, v{t1}, 7, v{t2}']
        if base: L.append(f'v_add_u32 v{t2}, {base}, v{t2}')
        for k, nb in enumerate(nb_list): L += [f'v_xor_b32 v{t1}, {nb}, v{t0}', f'v_lshl_add_u32 v{aw+k}, v{t1}, 5, v{t2}']
        return L

    def reduce_job(self, after_by=None, after_fill=None):
        a = self.a
        T = 200
        vA, vZ, vO, t1, t2 = T, T+1, T+2, T+3, T+4
        s_a, s_b, s_c, s_d, s_e = 80, 81, 82, 83, 84
        a.extend(sx(s_t, [(s_l, 32), (s_g, 4), (s_wave, 1)], -4))
        a.extend(sx(s_a, [(s_t, 32768), (s_m, 128)], WS_KVP)); a(f's_add_u32 s{s_b}, s{s_a}, 16384')
        a.extend(sx(s_d, [(s_t, 2048), (s_m, 128)], WS_KVF))
        a.extend(sx(s_c, [(s_t, 1024)], WS_ZP)); a.extend(sx(s_e, [(s_t, 64)], WS_ZF))
        a(f's_and_b32 s{s_t}, s{s_t}, 1'); a(f's_xor_b32 s{s_t+1}, s{s_m}, s{s_g}'); a(f's_or_b32 s{s_t}, s{s_t}, s{s_t+1}')
        a(f's_cselect_b32 s{s_c}, {BIG}, s{s_c}'); a(f's_cselect_b32 s{s_e}, {BIG}, s{s_e}')
        a(f'v_and_b32 v{t1}, 7, v1'); a(f'v_lshlrev_b32 v{t1}, 4, v{t1}')
        a(f'v_lshrrev_b32 v{t2}, 3, v1'); a(f'v_lshl_add_u32 v{vA}, v{t2}, 11, v{t1}')
        a(f'v_lshlrev_b32 v{vZ}, 4, v1')
        a(f'v_lshrrev_b32 v{t2}, 4, v1'); a(f'v_lshl_add_u32 v{vO}, v{t2}, 2, v{t1}')
        D = T + 8; U = 160
        def late_fill():
            for k in range(4): a(f'v_mov_b32 v{D+k}, -1')
            fill = f'buffer_store_dwordx4 {vr(D,4)}, v{vZ}, {srd(sWS)}, s{s_t} offen'
            a.extend(sx(s_t, [(s_g, 131072), (s_wave, 32768), (s_m, 2048)], WS_KVP + (1 << 21) - 4*32768)); a(fill + ' sc1'); a(fill + ' offset:1024 sc1')
            a(f's_lshr_b32 s{s_t+1}, s{s_wave}, 1'); a(f's_and_b32 s{s_t+2}, s{s_wave}, 1')
            a.extend(sx(s_t, [(s_t+2, 1 << 20), (s_m, 1 << 16), (s_g, 4096), (s_t+1, 2048)], WS_HALO - 2*2048)); a(fill + ' sc1'); a(fill + ' offset:1024 sc1')
            a.extend(sx(s_t, [(s_wave, 262144), (s_m, 16384), (s_g, 1024)], WS_ST - 3*262144))
            a.extend(sx(s_t+3, [(s_g, 16384), (s_m, 1024)], WS_CS + 262144))
            a(f's_cmp_eq_u32 s{s_wave}, 7'); a(f's_cselect_b32 s{s_t}, s{s_t+3}, s{s_t}'); a(fill + ' sc1')
            a('s_mov_b64 exec, 0xff')
            a(f's_add_u32 s{s_t}, s{s_d}, {1 << 17}'); a(fill + ' sc1')
            a(f's_add_u32 s{s_t}, s{s_e}, {1 << 12}'); a(fill + ' sc1')
            a.extend(sx(s_t, [(s_g, 4096), (s_t+1, 2048), (s_m, 128)], WS_ZP + (1 << 16) - 2*2048)); a(fill + ' sc1')
            a('s_mov_b64 exec, -1')
            a('s_waitcnt vmcnt(0)')
        self.cond([f's_cmp_eq_u32 s{s_l}, 0'], late_fill)
        a('s_barrier')
        if self.jit: self.jitter(20)
        if self.rprio: a(f's_setprio {self.rprio}')
        a('s_barrier')
        if after_by and self.w0a == 0: after_by()
        if self.b1: a(f's_sleep {self.b1}')
        self.ll_wait(([f's_sleep {self.n1}'] if self.n1 else []) + [f'buffer_load_dwordx4 {vr(D,4)}, v{vA}, {srd(sWS)}, s{s_a} offen sc1',
                      f'buffer_load_dwordx4 {vr(D+4,4)}, v{vA}, {srd(sWS)}, s{s_b} offen sc1',
                      f'buffer_load_dwordx4 {vr(D+8,4)}, v{vZ}, {srd(sWS)}, s{s_c} offen sc1',
                      f'buffer_load_dwordx4 {vr(D+12,4)}, v{vZ}, {srd(sWS)}, s{s_c} offen offset:1024 sc1'],
                     list(range(D, D+16)), t1, t2, 1)
        self.stamp(5)
        S = []
        for z in range(2):
            d, u = D + 8*z, U + 16*z
            for k in range(8): S += [f'v_lshlrev_b32 v{u+2*k}, 16, v{d+k}', f'v_and_b32 v{u+2*k+1}, 0xffff0000, v{d+k}']
            for k in range(4): S.append(pk('add', u+2*k, u+2*k, u+8+2*k))
            for k in range(4): S.append(sw32(u+k, u+4+k))
            S += [pk('add', u, u, u+4), pk('add', u+2, u+2, u+6), sw16(u, u+2), sw16(u+1, u+3), pk('add', u, u, u+2)]
            for k in range(2): S.append(f'v_add_f32_dpp v{u+k}, v{u+k}, v{u+k} row_ror:8 row_mask:0xf bank_mask:0xf')
            S.append(cvt(u, u, u+1))
        S += ['s_mov_b32 exec_lo, 0x00ff00ff', 's_mov_b32 exec_hi, 0x00ff00ff',
              f'buffer_store_dword v{U}, v{vO}, {srd(sWS)}, s{s_d} offen sc1',
              f'buffer_store_dword v{U+16}, v{vO}, {srd(sWS)}, s{s_e} offen sc1', 's_mov_b64 exec, -1']
        self.sw(S)
        if self.rprio: a('s_setprio 0')
        if after_by and self.w0a == 1: after_by()
        if self.zw: a(f's_waitcnt vmcnt({12 if (after_by and self.w0a == 1 and self.zw == 1) else 0})')
        a('s_barrier')
        if after_by and self.w0a == 2: after_by()

    def loader(self):
        a = self.a
        a.label('L_loader')
        dx, dw, dwo, t0, t1, t2, vf = 8, 16, 28, 2, 3, 4, 5
        s_ld, s_kx, s_kw, s_slot, s_mx, s_xstep, s_wo, s_wm0, s_sx, s_sw, s_xb, s_fl, s_mw = range(65, 78)
        a(f's_sub_u32 s{s_ld}, s{s_wave}, 4')
        self.w_dma_offsets(dw, s_ld, t0, t1, t2)
        a(f's_mul_i32 s{s_mw}, s{s_ld}, 12288')
        a(f's_lshl_b32 s{s_mx}, s{s_ld}, 13'); a(f's_add_u32 s{s_mx}, s{s_mx}, {XOFF}')
        s_flip = 78
        def nxt(r):
            return [f's_cmp_eq_u32 s{r}, s{s_flip}', f's_addc_u32 s{r}, s{r}, 1', f's_and_b32 s{r}, s{r}, 15']
        def wst(slot=None):
            L = []
            for j in range(12):
                if j == 0: L.append(f's_add_u32 m0, s{s_mw}, ' + (f's{s_slot}' if slot is None else str(slot*STG)))
                elif j % 4 == 0: L.append('s_add_u32 m0, m0, 4096')
                L.append(f'buffer_load_dwordx4 v{dw+j}, {srd(sW)}, s{s_kw} offen offset:{1024*(j%4)} lds')
            a.extend(L + nxt(s_sw) + [f's_mul_i32 s{s_kw}, s{s_sw}, {64*6144}'])
        def xst(slot=None):
            L = []
            for j in range(8):
                if j == 0: L.append(f's_add_u32 m0, s{s_mx}, ' + (f's{s_slot}' if slot is None else str(slot*STG)))
                elif j == 4: L.append('s_add_u32 m0, m0, 4096')
                L.append(f'buffer_load_dwordx4 v{dx+j}, {srd(sX)}, s{s_kx} offen offset:{1024*(j%4)} sc1 lds')
            a.extend(L + nxt(s_sx) + [f's_mul_i32 s{s_kx}, s{s_sx}, s{s_xstep}', f's_add_u32 s{s_kx}, s{s_kx}, s{s_xb}'])
        def kstart(first):
            if first:
                a(f's_and_b32 s{s_sx}, s{s_m}, {self.rot0}'); a(f's_mov_b32 s{s_sw}, s{s_sx}'); a(f's_mov_b32 s{s_flip}, 16')
            else:
                a(f's_add_u32 s{s_sw}, s{s_rot2}, 15'); a(f's_and_b32 s{s_sw}, s{s_sw}, 15'); a(f's_mov_b32 s{s_sx}, s{s_sw}')
                a(f's_add_u32 s{s_flip}, s{s_g}, 15'); a(f's_and_b32 s{s_flip}, s{s_flip}, 15'); a.extend(nxt(s_sx))
            a(f's_mul_i32 s{s_kw}, s{s_sw if first else s_g}, {64*6144}'); a(f's_mul_i32 s{s_kx}, s{s_sx}, s{s_xstep}'); a(f's_add_u32 s{s_kx}, s{s_kx}, s{s_xb}')
        a(f's_lshl_b32 s{s_xb}, s{s_m}, 18'); a(f's_mov_b32 s{s_xstep}, 128'); kstart(True)
        self.pointers()
        wst(0)
        a(f'v_lshrrev_b32 v{t0}, 3, v1'); a(f'v_and_b32 v{t1}, 7, v1')
        a(f'v_lshrrev_b32 v{t2}, 4, v1'); a(f'v_xor_b32 v{t1}, v{t1}, v{t2}'); a(f'v_xor_b32 v{t2}, 4, v{t1}')
        a(f's_lshl_b32 s{s_t}, s{s_ld}, 17'); a(f'v_lshl_add_u32 v{t0}, v{t0}, 11, s{s_t}')
        a(f'v_lshl_add_u32 v{t1}, v{t1}, 4, v{t0}'); a(f'v_lshl_add_u32 v{t2}, v{t2}, 4, v{t0}')
        for j in range(8): a(f'v_add_u32 v{dx+j}, {j*16384 - 1024*(j%4)}, v{t1 if j % 2 == 0 else t2}')
        xst(0); wst(1)
        a(f'v_lshrrev_b32 v{t0}, 5, v1'); a(f'v_lshlrev_b32 v{t0}, 4, v{t0}')
        a(f'v_bfe_u32 v{t1}, v1, 3, 2'); a(f'v_add_u32 v{t0}, v{t0}, v{t1}')
        a(f's_lshl_b32 s{s_t}, s{s_g}, 7'); a(f'v_lshl_add_u32 v{t0}, v{t0}, 11, s{s_t}')
        a(f'v_and_b32 v{t1}, 7, v1'); a(f'v_bfe_u32 v{t2}, v1, 4, 1'); a(f'v_lshlrev_b32 v{t2}, 1, v{t2}')
        a(f'v_xor_b32 v{t1}, v{t1}, v{t2}'); a(f'v_xor_b32 v{t2}, 4, v{t1}')
        a(f'v_lshl_add_u32 v{t1}, v{t1}, 4, v{t0}'); a(f'v_lshl_add_u32 v{t2}, v{t2}, 4, v{t0}')
        for G in range(4): a(f'v_add_u32 v{dwo+G}, {G*4*2048 - 1024*G}, v{t1 if G % 2 == 0 else t2}')
        a('s_waitcnt vmcnt(12)'); a('s_barrier')
        xst(1); wst(2)
        a('s_waitcnt vmcnt(12)'); a('s_barrier')
        xst(2)
        a.label('L_ld_enter')
        a(f's_mov_b32 s{s_i}, 0'); a(f's_mov_b32 s{s_slot}, 0')
        self.trickle_setup(); self.warm_wo_setup()
        def loop(name, n, extra):
            a.label(name)
            xst(); wst()
            if extra:
                a(f's_add_u32 s{s_t}, s{s_i}, 1'); a(f's_and_b32 s{s_t}, s{s_t}, 7')
                a.extend(sx(s_wo, [(s_rot2, 2), (s_t, 1)], 24)); a(f's_and_b32 s{s_wo}, s{s_wo}, 31')
                a.extend(sx(s_wm0, [(s_wo, 65536), (s_ld, 2*4*2048)]))
                a.extend(sx(s_wo, [(s_t, 4096), (s_ld, 2048)], L_SPARE)); a(f's_mov_b32 m0, s{s_wo}')
                for G in range(2): a(f'buffer_load_dwordx4 v{dwo+G}, {srd(sWO)}, s{s_wm0} offen offset:{1024*G} lds')
            self.trickle(f's{s_i}'); self.warm_wo(5)
            a(f's_add_u32 s{s_slot}, s{s_slot}, {STG}'); a(f's_cmp_eq_u32 s{s_slot}, {3*STG}'); a(f's_cselect_b32 s{s_slot}, 0, s{s_slot}')
            a(f's_add_u32 s{s_i}, s{s_i}, 1'); a(f's_cmp_lt_u32 s{s_i}, {n}')
            a(f's_waitcnt vmcnt({22 if extra else 20})')
            a('s_barrier')
            a(f's_cbranch_scc1 {name}')
        if self.early: loop('L_ld_loop', 5, False); loop('L_ld_loop2', 13, True)
        else: loop('L_ld_loop', 13, False)
        def wo(p0, n, thr=None):
            a.extend(sx(s_wm0, [(s_ld, 4096)], L_WO + 4096*p0))
            a.extend(sx(s_wo, [(s_rot2, 2), (s_ld, 1)], p0)); a(f's_and_b32 s{s_wo}, s{s_wo}, 31'); a(f's_lshl_b32 s{s_wo}, s{s_wo}, 16')
            L = self.lab('wo')
            a(f's_mov_b32 s{s_i}, 0')
            a.label(L)
            if thr is not None: a(f's_waitcnt vmcnt({thr})')
            a(f's_mov_b32 m0, s{s_wm0}')
            a(f's_add_u32 s{s_wm0}, s{s_wm0}, 8192')
            for G in range(4): a(f'buffer_load_dwordx4 v{dwo+G}, {srd(sWO)}, s{s_wo} offen offset:{1024*G} lds')
            a(f's_add_u32 s{s_wo}, s{s_wo}, 131072'); a(f's_and_b32 s{s_wo}, s{s_wo}, 0x1fffff')
            a(f's_add_u32 s{s_i}, s{s_i}, 1'); a(f's_cmp_lt_u32 s{s_i}, {n//2}'); a(f's_cbranch_scc1 {L}')
        if self.early:
            wo(4, 10)
            a('s_waitcnt vmcnt(20)'); a('s_barrier')
            wo(14, 10)
            a('s_barrier')
            wo(0, 4)
        else:
            wo(24, 8)
            a('s_waitcnt vmcnt(16)'); a('s_barrier')
            wo(4, 10)
            a('s_barrier')
            wo(14, 10, self.thr); wo(0, 4, self.thr)
        if self.jit: self.jitter(23)
        a.extend(sx(s_fl, [(s_l, 8192), (s_m, 256), (s_rot2, 16), (s_ld, 8)], 4096))
        self.get_mode(t0); a.extend(self.flag_addr(vf, t0, s_fl))
        a.extend(sx(s_xb, [(s_l, 1 << 22), (s_m, 1 << 18)], WS_XI))
        a(f's_bitcmp0_b32 s{s_l}, 0')
        a(f's_cselect_b64 s[{sW}:{sW+1}], s[{pBW}:{pBW+1}], s[{pAW}:{pAW+1}]')
        a(f's_cselect_b64 s[{sWO}:{sWO+1}], s[{pBWO}:{pBWO+1}], s[{pAWO}:{pAWO+1}]')
        a(f's_mov_b64 s[{sX}:{sX+1}], s[{pWS}:{pWS+1}]'); a(f's_mov_b32 s{sX+2}, {WS_END}')
        a(f's_mov_b32 s{s_xstep}, 16384'); kstart(False)
        a(f's_lshl_b32 s{s_t}, s{s_ld}, 13'); a(f'v_lshl_add_u32 v{t0}, v1, 4, s{s_t}')
        for j in range(8): a(f'v_add_u32 v{dx+j}, {4096*(j//4)}, v{t0}')
        a(f's_bitcmp1_b32 s{s_l}, 0'); a('s_cbranch_scc1 L_ld_B')
        self.reduce_job(lambda: wst(0))
        a('s_branch L_ld_join')
        a.label('L_ld_B')
        if self.w0b == 0: self.cond([f's_cmp_lg_u32 s{s_l}, 3'], lambda: wst(0))
        a('s_barrier')
        if self.w0b == 1: self.cond([f's_cmp_lg_u32 s{s_l}, 3'], lambda: wst(0))
        a.label('L_ld_join')
        a('s_waitcnt vmcnt(0)'); a('s_barrier')
        a(f's_cmp_eq_u32 s{s_l}, 3'); a('s_cbranch_scc1 L_fin')
        self.trickle_rest(1); self.warm_w()
        a(f's_add_u32 s{s_l}, s{s_l}, 1')
        if self.jit: self.jitter(21)
        a('s_barrier')
        if self.jit: self.jitter(22)
        wst(1)
        if self.w2 == 2: wst(2)
        a('s_barrier')
        if self.w2 == 0: wst(2)
        if self.lprio: a(f's_setprio {self.lprio}')
        self.flag_wait(s_fl, vf, t0, 2, nap=self.xnap, own=True)
        self.stamp(1)
        xst(1); xst(2)
        if self.lprio: a('s_setprio 0')
        a('s_waitcnt vmcnt(8)'); a('s_barrier')
        if self.w2 == 1: wst(2)
        a('s_branch L_ld_enter')

    def helper(self):
        a = self.a
        a.label('L_helper')
        t0, t1, t2, t3, l4, l16, ones, a_st, a_cs, v_st, v_cs, aw, vtw, vto, vd = 2, 3, 4, 5, 6, 7, 8, 12, 13, 14, 15, 16, 18, 19, 20
        F, D, SA, SC = 32, 96, 128, 160
        s_h, s_tw, s_a, s_b, s_trot = 65, 66, 67, 68, 69
        xm = 4; s_r = 70; vrf, vfl, aw2, dw = 21, 22, 24, 80
        a(f's_sub_u32 s{s_h}, s{s_wave}, 6')
        a(f'v_lshlrev_b32 v{l4}, 2, v1'); a(f'v_lshlrev_b32 v{l16}, 4, v1')
        a.extend(self.w_frag_addr(aw, s_h, 0, t0, t1, t2))
        for k in range(2): a(f'v_add_u32 v{aw2+k}, {L_SPARE}, v{aw+k}')
        a(f's_and_b32 s{s_t+1}, s{s_m}, {15 - self.rot0}'); a(f's_cmp_eq_u32 s{s_t+1}, 3'); a(f's_cselect_b32 s{s_t+1}, 0, s{s_t+1}'); a(f's_mul_i32 s{s_t+1}, s{s_t+1}, {STG}')
        for k in range(2): a(f'v_add_u32 v{aw+k}, s{s_t+1}, v{aw+k}')
        a.extend(self.flag_addr(vrf, t0, None, remote=True))
        a(f'v_lshrrev_b32 v{t0}, 5, v1'); a(f'v_and_b32 v{t1}, 31, v1'); a(f'v_lshlrev_b32 v{t1}, 4, v{t1}')
        a(f'v_lshl_add_u32 v{v_st}, v{t0}, 10, v{t1}')
        a(f'v_and_b32 v{t2}, 24, v1'); a(f'v_and_b32 v{t3}, 3, v1'); a(f'v_lshl_add_u32 v{t2}, v{t3}, 1, v{t2}'); a(f'v_add_u32 v{t2}, v{t2}, v{t0}')
        a.extend(sx(s_t, [(s_h, 256)], P_NM)); a(f'v_lshl_add_u32 v{a_st}, v{t2}, 3, s{s_t}')
        a(f'v_mov_b32 v{t2}, {BIG}'); a(f'v_cmp_gt_u32 vcc, 384, v{t1}'); a(f'v_cndmask_b32 v{v_cs}, v{t2}, v{v_st}, vcc')
        a.extend(sx(s_t, [(s_h, 384)], P_CS)); a(f'v_lshl_add_u32 v{t1}, v{t0}, 3, v{t1}'); a(f'v_add_u32 v{a_cs}, s{s_t}, v{t1}')
        self.pointers()

        def touch_setup(first=False):
            if not self.touch: return
            c, gt = s_t + 2, s_t + 3
            def cls(b):
                a(f's_lshr_b32 s{gt}, s{b}, 7'); a(f's_sub_u32 s{gt}, 3, s{gt}'); a(f's_and_b32 s{gt}, s{gt}, 7')
                a(f's_sub_u32 s{c}, s{s_g}, s{gt}'); a(f's_and_b32 s{c}, s{c}, 7'); a(f's_sub_u32 s{c}, s{c}, 1')
                a(f's_and_b32 s{s_t}, s{s_g}, 8'); a(f's_add_u32 s{gt}, s{gt}, s{s_t}'); a(f's_lshl_b32 s{gt}, s{gt}, 7')
            a(f's_and_b32 s{s_t+4}, s{s_m}, {xm-1}'); a(f's_lshl_b32 s{s_t+4}, s{s_t+4}, 1'); a(f's_add_u32 s{s_t+4}, s{s_t+4}, s{s_h}')
            cls(sW)
            if first: a(f's_or_b32 s{s_rot}, s{s_m}, 3'); a(f's_and_b32 s{s_rot}, s{s_rot}, {self.rot0}'); a(f's_mov_b32 s{s_trot}, 0')
            else: a(f's_mov_b32 s{s_rot}, s{s_rot2}'); a(f's_bfe_u32 s{s_trot}, s{gt}, 0x30007')
            a(f's_cmp_ge_u32 s{c}, 3'); a(f's_cselect_b32 s{s_t}, {32*6144 - 3*2048}, 0'); a(f's_add_u32 s{gt}, s{gt}, s{s_t}')
            a(f's_lshl_b32 s{s_t}, s{c}, 11'); a(f's_add_u32 s{gt}, s{gt}, s{s_t}')
            a(f's_mul_i32 s{s_t}, s{s_t+4}, {(16//xm)*6144}'); a(f's_add_u32 s{gt}, s{gt}, s{s_t}')
            a(f's_cmp_lt_u32 s{c}, 6'); a(f's_cselect_b32 s{s_t}, {16//xm}, 0')
            a(f'v_mul_u32_u24 v{vtw}, 6144, v1'); a(f'v_add_u32 v{vtw}, s{gt}, v{vtw}')
            a(f'v_mov_b32 v{t0}, {BIG}'); a(f'v_cmp_gt_u32 vcc, s{s_t}, v1'); a(f'v_cndmask_b32 v{vtw}, v{t0}, v{vtw}, vcc')
            cls(sWO)
            a(f's_lshl_b32 s{s_t}, s{c}, 19'); a(f's_add_u32 s{gt}, s{gt}, s{s_t}')
            a(f's_mul_i32 s{s_t}, s{s_t+4}, {(128//xm)*2048}'); a(f's_add_u32 s{gt}, s{gt}, s{s_t}')
            a(f's_cmp_lt_u32 s{c}, 4'); a(f's_cselect_b32 s{s_t}, {32//xm}, 0')
            a(f'v_lshlrev_b32 v{vto}, 11, v1'); a(f'v_add_u32 v{vto}, s{gt}, v{vto}')
            a(f'v_cmp_gt_u32 vcc, s{s_t}, v1'); a(f'v_cndmask_b32 v{vto}, v{t0}, v{vto}, vcc')
        def touchW(st):
            if not self.touch: return
            if st == 0: a(f's_add_u32 s{s_tw}, s{s_rot}, s{s_trot}')
            else: a(f's_cmp_le_u32 s{s_trot}, {st-1}'); a(f's_addc_u32 s{s_tw}, s{s_rot}, {st-1}')
            a(f's_and_b32 s{s_tw}, s{s_tw}, 15'); a(f's_mul_i32 s{s_tw}, s{s_tw}, {64*6144}')
            a(f'buffer_load_dword v{vd}, v{vtw}, {srd(sW)}, s{s_tw} offen')
        def touchO(k):
            if not self.touch: return
            a(f's_mov_b32 s{s_tw}, {k*(32//xm)*2048}')
            a(f'buffer_load_dword v{vd}, v{vto}, {srd(sWO)}, s{s_tw} offen')
        def phi_load():
            a(f's_mov_b64 s[{sX}:{sX+1}], s[{pPHI}:{pPHI+1}]'); a(f's_mov_b32 s{sX+2}, 65536')
            a.extend(sx(s_t, [(s_g, 4096), (s_h, 2048)])); a(f's_lshl_b32 s{s_t+1}, s{s_h}, 11'); a(f's_add_u32 m0, s{s_t+1}, {P_PHI}')
            for j in range(2): a(f'buffer_load_dwordx4 v{l16}, {srd(sX)}, s{s_t} offen offset:{1024*j} lds')
        vc = 26
        if self.cpf: a(f's_getpc_b64 s[{s_t}:{s_t+1}]')
        if self.cpf: a.label('L_pc')
        if self.cpf: a(f's_sub_u32 s{s_t}, s{s_t}, L_pc-{KNAME}'); a(f's_subb_u32 s{s_t+1}, s{s_t+1}, 0')
        if self.cpf: a(f's_lshr_b32 s{s_t+2}, s2, 3'); a.extend(sx(s_t+3, [(s_t+2, 1280), (s_h, 640)]))
        if self.cpf: a(f'v_lshl_add_u32 v{t0}, v1, 7, s{s_t+3}'); a(f'v_min_u32 v{t0}, L_last-{KNAME}, v{t0}')
        if self.cpf: a(f'v_mov_b32 v{vc+1}, s{s_t+1}'); a(f'v_add_co_u32 v{vc}, vcc, s{s_t}, v{t0}'); a(f'v_addc_co_u32 v{vc+1}, vcc, 0, v{vc+1}, vcc')
        def code_touch():
            a('s_mov_b64 exec, 31'); a(f'global_load_dword v{vd}, {vr(vc,2)}, off'); a('s_mov_b64 exec, -1')
        if self.cpf & 1: code_touch()
        self.w_dma_offsets(dw, s_h, t0, t1, t2)
        touch_setup(True)
        for st in range(1, 3 + self.dist): touchW(st)

        def init_stores():
            for k in range(4): a(f'v_mov_b32 v{SA+k}, -1')
            fill = f'buffer_store_dwordx4 {vr(SA,4)}, v{l16}, {srd(sWS)}, s{s_t} offen'
            a.extend(sx(s_t, [(s_g, 131072), (s_h, 65536), (s_m, 2048)], WS_KVP)); a(fill + ' sc1'); a(fill + ' offset:1024 sc1')
            a(f's_add_u32 s{s_t}, s{s_t}, 32768'); a(fill + ' sc1'); a(fill + ' offset:1024 sc1')
            a('s_mov_b64 exec, 0xff')
            a.extend(sx(s_t, [(s_g, 8192), (s_h, 4096), (s_m, 128)], WS_KVF)); a(fill + ' sc1'); a(fill + ' offset:2048 sc1')
            a.extend(sx(s_t, [(s_g, 4096), (s_h, 2048), (s_m, 128)], WS_ZP)); a(fill + ' sc1')
            a.extend(sx(s_t, [(s_g, 256), (s_h, 128)], WS_ZF))
            a(f's_cmp_eq_u32 s{s_m}, s{s_g}'); a(f's_cselect_b32 s{s_t}, s{s_t}, {BIG}'); a(fill + ' sc1')
            a('s_mov_b64 exec, -1')
            a(f'v_lshrrev_b32 v{t1}, 2, v1'); a(f'v_lshlrev_b32 v{t1}, 10, v{t1}'); a(f'v_and_or_b32 v{t1}, v1, 3, v{t1}')
            a.extend(sx(s_t, [(s_m, 64), (s_g, 4)])); a(f'v_add_u32 v{t1}, s{s_t}, v{t1}')
            a(f's_cmp_eq_u32 s{s_h}, 0'); a(f's_cselect_b32 s{s_t+1}, {2 + self.ls}, 7'); a(f's_cselect_b32 s{s_t}, 0, {WS_RF}')
            a(f'v_lshlrev_b32 v{t1}, s{s_t+1}, v{t1}'); a(f'v_mov_b32 v{t0}, 0')
            a('s_mov_b64 exec, 0xfffffff')
            a(f'buffer_store_dword v{t0}, v{t1}, {srd(sWS)}, s{s_t} offen sc1')
            a('s_mov_b64 exec, -1')
            a.extend(sx(s_t, [(s_g, 16384), (s_m, 1024)], WS_CS)); a(f's_cmp_eq_u32 s{s_h}, 1'); a(f's_cselect_b32 s{s_t}, s{s_t}, {BIG}'); a(fill + ' sc1')
        for k in range(4): a(f'v_mov_b32 v{ones+k}, 0x3f803f80')
        def cs_reads(aw=aw):
            for s in range(2):
                for n in range(6):
                    for t in range(2):
                        a(f'ds_read_b64_tr_b16 {vr(F+24*s+4*n+2*t,2)}, v{aw+(n&1)} offset:{(n>>1)*8192+(32*s+4*t)*128}')
            a('s_waitcnt lgkmcnt(0)')
        def cs_publish():
            for s in range(2):
                for n in range(6): a(mf16(D+4*n, ones, F+24*s+4*n, D+4*n if s else None))
            a.extend(sx(s_t, [(s_l, 262144), (s_g, 16384), (s_m, 1024), (s_h, 128)], WS_CS))
            a('s_mov_b64 exec, 0xffff')
            for n in range(6): a(f'buffer_store_dword v{D+4*n}, v{l4}, {srd(sWS)}, s{s_t} offen offset:{(n>>1)*256+(n&1)*64} sc1')
            a('s_mov_b64 exec, -1')
        def chunk(t):
            a(f's_mul_i32 s{s_t}, s{s_m}, {64*6144}'); a(f's_mul_i32 s{s_t+1}, s{s_h}, 12288'); a(f's_add_u32 m0, s{s_t+1}, {L_SPARE + 4096*(t//2)}')
            for j in range(2*t, 2*t+2): a(f'buffer_load_dwordx4 v{dw+j}, {srd(sW)}, s{s_t} offen offset:{1024*(j%4)} lds')
        def arrive():
            a(f's_getreg_b32 s{s_t}, hwreg(HW_REG_XCC_ID, 0, 3)'); a(f's_lshl_b32 s{s_t}, s{s_t}, 2'); a(f's_lshl_b32 s{s_t+1}, 1, s{s_t}')
            a.extend(sx(s_t, [(s_m, 16), (s_rot2, 1)]))
            a('s_mov_b64 exec, 1')
            a(f'v_mov_b32 v{t0}, s{s_t+1}')
            a(f'buffer_atomic_add v{t0}, off, {srd(sDBG)}, s{s_t} sc1')
            a('s_mov_b64 exec, -1')
        iload = f'buffer_load_dword v{vfl}, v{t2}, {srd(sDBG)}, 0 offen sc1'
        def init_look():
            a(f'v_and_b32 v{t2}, 31, v1'); a(f'v_lshlrev_b32 v{t2}, 3, v{t2}'); a(iload)
        def init_wait():
            a('s_waitcnt vmcnt(0)')
            self.spin(['s_sleep 16', iload],
                      [f'v_lshrrev_b32 v{t1}, 4, v{vfl}', f'v_and_b32 v{t1}, 0x0f0f0f0f, v{t1}', f'v_and_b32 v{t3}, 0x0f0f0f0f, v{vfl}',
                       f'v_sad_u8 v{t1}, v{t1}, 0, 0', f'v_sad_u8 v{t3}, v{t3}, 0, v{t1}', f'v_cmp_gt_u32 vcc, 8, v{t3}'], t3, 3, pre=True)
            a(f's_lshr_b32 s{s_t}, s{s_rot2}, 3'); a(f's_lshl_b32 s{s_t+1}, s{s_m}, 1'); a(f's_add_u32 s{s_t}, s{s_t}, s{s_t+1}')
            a(f'v_readlane_b32 s{s_fast}, v{vfl}, s{s_t}')
            a(f's_and_b32 s{s_fast}, s{s_fast}, 0x88888888'); a(f's_cselect_b32 s{s_fast}, {1 if self.local else 0}, 0')
            a(f'v_mov_b32 v{t3}, s{s_fast}'); a(f'v_mov_b32 v{t2}, {P_MODE}'); a(f'ds_write_b32 v{t2}, v{t3}')
        def gather(R, va, so, ks):
            L = []
            for k in ks: L += [f's_add_u32 s{s_t}, s{so}, {4096*(k//2)}', f'buffer_load_dwordx4 {vr(R+4*k,4)}, v{va}, {srd(sWS)}, s{s_t} offen offset:{2048*(k%2)} sc1']
            return L
        def total(R):
            n = 8
            while n > 1:
                n //= 2
                for k in range(4*n): a(f'v_add_f32 v{R+k}, v{R+k}, v{R+k+4*n}')
            a(sw32(R, R+2)); a(sw32(R+1, R+3)); a(f'v_add_f32 v{R}, v{R}, v{R+2}'); a(f'v_add_f32 v{R+1}, v{R+1}, v{R+3}')
        def stats_finish():
            for k in range(2): a(f'v_mov_b32_dpp v{SA+2+k}, v{SA+k} row_shl:4 row_mask:0xf bank_mask:0xf')
            for k in range(2): a(f'v_mul_f32 v{SA+k}, {f2u(-1/1024)}, v{SA+k}'); a(f'v_mul_f32 v{SA+2+k}, {f2u(1/1024)}, v{SA+2+k}')
            for k in range(2): a(f'v_fma_f32 v{SA+2+k}, -v{SA+k}, v{SA+k}, v{SA+2+k}')
            for k in range(2): a(f'v_max_f32 v{SA+2+k}, 0, v{SA+2+k}')
            for k in range(2): a(f'v_add_f32 v{SA+2+k}, {f2u(1e-5)}, v{SA+2+k}')
            for k in range(2): a(f'v_rsq_f32 v{SA+2+k}, v{SA+2+k}')
            a('s_mov_b32 exec_lo, 0x0f0f0f0f'); a('s_mov_b32 exec_hi, 0x0f0f0f0f')
            a(f'ds_write_b64 v{a_st}, {vr(SA,2)}'); a(f'ds_write_b64 v{a_st}, {vr(SA+2,2)} offset:512')
            a('s_mov_b64 exec, -1')
        def cs_finish():
            total(SC)
            a(f's_mul_i32 s{s_t}, s{s_l}, 768'); a(f'v_add_u32 v{t0}, s{s_t}, v{a_cs}')
            a('s_mov_b32 exec_lo, 0xffffff'); a('s_mov_b32 exec_hi, 0xffffff')
            a(f'ds_write_b64 v{t0}, {vr(SC,2)}')
            a('s_mov_b64 exec, -1')
        l0 = [f's_cmp_eq_u32 s{s_l}, 0']; ln0 = [f's_cmp_lg_u32 s{s_l}, 0']; l01 = [f's_cmp_lt_u32 s{s_l}, 2']
        a(f's_mov_b32 s{s_r}, 0')
        a.label('L_hp_layer')
        a.extend(sx(s_a, [(s_l, 262144), (s_m, 16384), (s_h, 512)], WS_ST))
        a.extend(sx(s_b, [(s_l, 262144), (s_g, 16384), (s_h, 384)], WS_CS))
        self.trickle_setup(); self.warm_wo_setup()
        hi = lambda: self.hprio and a(f's_setprio {self.hprio}')
        lo = lambda: self.hprio and a('s_setprio 0')
        l1 = [f's_cmp_eq_u32 s{s_l}, 1']
        for i in range(17):
            a('s_barrier')
            if self.jit and i in (0, 1, 4, 8, 9, 12, 16): self.jitter(30 + i)
            ncs = 16 - self.rot0
            l0h0 = [f's_or_b32 s{s_t}, s{s_l}, s{s_h}', f's_cmp_eq_u32 s{s_t}, 0']
            if i < ncs: self.cond([f's_and_b32 s{s_t}, s{s_m}, {ncs-1}', f's_lshl_b32 s{s_t+1}, s{s_l}, 2', f's_or_b32 s{s_t}, s{s_t}, s{s_t+1}', f's_cmp_eq_u32 s{s_t}, {i}'], cs_reads)
            if i == 8: self.cond(l1, lambda: cs_reads(aw2))
            if i in (self.iw, 5, 7, 13): a('s_waitcnt vmcnt(0)')
            if i == 5: self.cond(ln0, lambda: self.flag_wait(s_r, vrf, vfl, 8, pre=True, nap=self.nap))
            if i == 9: self.cond(l0h0, init_wait)
            if i <= 12: hi()
            if i == 0: self.cond(l0, lambda: (init_stores(), phi_load()))
            if i == self.iw + 1: self.cond(l0h0, arrive)
            if i == 4: self.cond(l0, cs_publish)
            if i == 9: self.cond(l1, cs_publish)
            if i == 8: self.cond(l0h0, init_look)
            if i == 11 and self.cpf & 2: self.cond(l01, code_touch)
            if i == 4: self.cond(ln0, lambda: a(self.flag_load(s_r, vrf, vfl)))
            if i + 3 + self.dist <= 15: touchW(i + 3 + self.dist)
            if 5 <= i <= 8: touchO(i - 5)
            if 1 <= i <= 6: self.cond(l1, lambda: chunk(i - 1))
            if i == 6: self.cond([f's_cmp_eq_u32 s{s_l}, 2'], phi_load)
            if i in (10, 11): a.extend(gather(SA, v_st, s_a, range(4*(i-10), 4*(i-10)+4)))
            if i in (11, 12): self.cond(l01, lambda: a.extend(gather(SC, v_cs, s_b, range(4*(i-11), 4*(i-11)+4))))
            if i <= 12: lo()
            if 1 <= i <= 12: self.trickle(i - 1)
            if i == 13: self.ll_wait(gather(SA, v_st, s_a, range(8)), list(range(SA, SA+32)), t0, t1, 6, pre=True); total(SA)
            if i == 14: stats_finish()
            if i == 14: self.cond(l01, lambda: self.ll_wait(gather(SC, v_cs, s_b, range(8)), list(range(SC, SC+32)), t0, t1, 7, pre=True))
            if i == 15: self.cond(l01, cs_finish); a('s_waitcnt lgkmcnt(0)')
        a.extend(sx(s_t+1, [(s_l, 8192), (s_m, 256), (s_g, 16), (s_h, 4096)])); a(f's_lshl_b32 s{s_t+1}, s{s_t+1}, {self.ls}')
        a(f'v_and_b32 v{t0}, 3, v1'); a(f'v_lshlrev_b32 v{t0}, {2 + self.ls}, v{t0}'); a(f'buffer_load_dword v{vd}, v{t0}, {srd(sWS)}, s{s_t+1} offen sc1')
        a.extend(sx(s_t, [(s_l, 8192), (s_m, 256), (s_rot2, 16)]))
        a(f's_xor_b32 s{s_t}, s{s_t}, 128'); a.extend(sx(s_r, [(s_t, 32), (s_h, 256)], WS_RF))
        a(f's_bitcmp0_b32 s{s_l}, 0')
        a(f's_cselect_b64 s[{sW}:{sW+1}], s[{pBW}:{pBW+1}], s[{pAW}:{pAW+1}]')
        a(f's_cselect_b64 s[{sWO}:{sWO+1}], s[{pBWO}:{pBWO+1}], s[{pAWO}:{pAWO+1}]')
        touch_setup()
        touchW(0); touchW(1); touchW(2)
        a(f's_bitcmp1_b32 s{s_l}, 0'); a('s_cbranch_scc1 L_hp_B')
        self.reduce_job()
        a('s_branch L_hp_join')
        a.label('L_hp_B')
        a('s_barrier')
        a.label('L_hp_join')
        a('s_barrier')
        a(f's_cmp_eq_u32 s{s_l}, 3'); a('s_cbranch_scc1 L_fin')
        self.trickle_rest(1); self.warm_w()
        a(f's_add_u32 s{s_r}, s{s_r}, {4096*32}')
        a(f's_add_u32 s{s_l}, s{s_l}, 1')
        a('s_barrier')
        for st in range(3, 3 + self.dist): touchW(st)
        a('s_branch L_hp_layer')

    def compute(self):
        a = self.a
        one, l16, voffR, voffI, a_tok, a_row, a_t32, a_csr, a_csv = 0, 2, 3, 4, 5, 6, 7, 8, 9
        ax, awq = 10, 12
        l4 = 14; vst = 15
        XR = 16
        ACC = 32
        FX = [128, 144]; FW = [160, 184]
        T = 208
        t0, t1, t2, t3 = T, T+1, T+2, T+3
        s_wm, s_wh, s_rslot, s_delta, s_stg, s_ones = 65, 66, 67, 68, 69, 70
        s_o = 71
        s_ob = 75
        s_obase, s_ooff, s_a, s_b, s_c, s_d, s_e, s_fp, s_st, s_fo = range(77, 87)
        a(f'v_lshrrev_b32 v{t0}, 4, v1')
        a(f'v_and_b32 v{t1}, 15, v1')
        a(f'v_and_b32 v{t2}, 1, v{t0}'); a(f'v_lshrrev_b32 v{t3}, 1, v{t0}'); a(f'v_lshl_add_u32 v{t2}, v{t2}, 1, v{t3}')
        a(f'v_lshlrev_b32 v{voffR}, 11, v{t1}'); a(f'v_lshl_add_u32 v{voffR}, v{t2}, 4, v{voffR}')
        def x0():
            a.extend(sx(s_t, [(s_m, 1 << 18), (s_wave, 1 << 16), (s_g, 128)])); a(f's_add_u32 s{s_t+1}, s{s_t}, 32768')
            if not self.st0 & 16: self.pointers()
            for tb in range(2):
                for e in range(2): a(f'buffer_load_dwordx4 {vr(XR+8*tb+4*e,4)}, v{voffR}, {srd(sX)}, s{s_t+tb} offen offset:{64*e}')
        if self.st0 & 16: self.pointers()
        elif not self.st0 & 8: x0()
        a(f's_lshr_b32 s{s_wm}, s{s_wave}, 1'); a(f's_and_b32 s{s_wh}, s{s_wave}, 1')
        a(f'v_mov_b32 v{one}, 1')
        a(f'v_lshl_add_u32 v{voffI}, v{t2}, 4, v{t1}'); a(f'v_lshlrev_b32 v{voffI}, 4, v{voffI}'); a(f'v_mov_b32 v{vst}, v{voffI}')
        a(f'v_lshlrev_b32 v{l16}, 4, v1'); a(f'v_lshlrev_b32 v{l4}, 2, v1')
        a.extend(sx(s_t, [(s_wm, 256)], P_NM))
        a(f'v_lshl_add_u32 v{a_tok}, v{t1}, 2, s{s_t}')
        a(f'v_lshl_add_u32 v{a_row}, v{t0}, 4, s{s_t}')
        a(f'v_and_b32 v{t3}, 31, v1'); a(f'v_lshl_add_u32 v{a_t32}, v{t3}, 2, s{s_t}')
        a.extend(sx(s_t, [(s_wh, 128)], P_CS))
        a(f'v_lshl_add_u32 v{a_csr}, v{t0}, 4, s{s_t}')
        a(f'v_lshl_add_u32 v{a_csv}, v{t1}, 2, s{s_t}')
        a(f's_mov_b32 s{s_stg}, {STG}'); a(f's_mov_b32 s{s_ones}, 0x3f803f80')
        a(f'v_lshrrev_b32 v{t2}, 1, v{t1}'); a(f'v_xor_b32 v{t2}, v{t2}, v{t0}')
        a.extend(sx(s_t, [(s_wm, 8192)], XOFF)); a(f'v_lshl_add_u32 v{t1}, v{t1}, 7, s{s_t}')
        for s in range(2):
            a(f'v_xor_b32 v{t3}, {4*s}, v{t2}'); a(f'v_lshl_add_u32 v{ax+s}, v{t3}, 4, v{t1}')
        a.extend(sx(s_st, [(s_m, 16384), (s_g, 1024), (s_wave, 256)], WS_ST))

        q = 216
        def stats():
            S = []
            for k in range(8):
                for tb in range(2):
                    r = XR + 8*tb + k
                    S += [f'v_dot2_f32_bf16 v{q+2*tb}, s{s_ones}, v{r}, ' + (f'v{q+2*tb}' if k else '0'),
                          f'v_dot2_f32_bf16 v{q+2*tb+1}, v{r}, v{r}, ' + (f'v{q+2*tb+1}' if k else '0')]
            return S + [sw32(q, q+2), sw32(q+1, q+3), pk('add', q, q, q+2), sw16(q, q+1), f'v_add_f32 v{q}, v{q}, v{q+1}']
        st_store = f'buffer_store_dword v{q}, v{l4}, {srd(sWS)}, s{s_st} offen sc1'
        def acc(b, n): return ACC + 4*(6*b + n)
        A2 = 208
        def reads(s, st, slot=0):
            x, w, o = (ax, awq, STG*slot) if slot < 2 else (A2, A2+2, 0)
            X = [f'ds_read_b128 {vr(FX[st]+4*b,4)}, v{x+s} offset:{o+2048*b}' for b in range(4)]
            W = [[f'ds_read_b64_tr_b16 {vr(FW[st]+4*n+2*t,2)}, v{w+(n&1)} offset:{o+(n>>1)*8192+(32*s+4*t)*128}' for t in range(2)] for n in range(6)]
            L = [X[0]] + W[0] + X[1:]
            for n in range(1, 6): L += W[n]
            return L
        def mfma(st, b, n, zero=False):
            C = None if zero else acc(b, n)
            return mf16(acc(b, n), FW[st]+4*n, FX[st]+4*b, C) if n < 4 else mf16(acc(b, n), FX[st]+4*b, FW[st]+4*n, C)
        def mfmas(st, zero=False):
            return [mfma(st, b, n, zero) for n in range(6) for b in (range(4) if not (self.snake and n % 2) else range(3, -1, -1))]
        env = dict(locals())
        a.extend(self.w_frag_addr(awq, s_wh, 0, t0, t1, t2))
        self.epiA(env, 'v')
        if self.st0 & 8: x0()
        a(f'v_mov_b32 v{q}, -1'); a(st_store)
        a(f's_sub_u32 s{s_st}, s{s_st}, 262144')
        a.label('L_first')
        a('s_barrier')
        self.stamp(12)
        if self.st0 & 16: self.cond([f's_cmp_eq_u32 s{s_l}, 0'], x0)
        S = autowait(reads(0, 0) + interleave(mfmas(0, True), reads(1, 1), per=[0]*4 + [1]*20))
        cut = [k for k, t in enumerate(S) if t.startswith('v_mfma')][self.fpos-1] + 1
        a.extend(S[:cut])
        a('s_waitcnt vmcnt(0)')
        self.stamp(11)
        self.cond([f's_cmp_lg_u32 s{s_l}, 0'], lambda: self.flag_set(s_fo, one))
        a.extend(S[cut:])
        a('s_waitcnt lgkmcnt(0)')
        S = [f'v_add_u32 v{A2+k}, {2*STG}, v{ax+k}' for k in range(4)] + [f's_mov_b32 s{s_i}, 0']
        assert awq == ax + 2
        S += sx(s_t, [(s_l, 1 << 22), (s_m, 1 << 18)], WS_OI)
        S += sx(s_obase, [(s_wave, 1 << 16), (s_t, 1)]) + [f's_lshl_b32 s{s_ooff}, s{s_rot2}, 11']
        S += [f's_add_u32 s{s_ob}, s{s_obase}, s{s_ooff}', f's_add_u32 s{s_ob+1}, s{s_ob}, 32768']
        S += sx(s_a, [(s_wm, 1 << 17), (s_g, 2048), (s_wh, 1024), (s_t, 1)])
        S += sx(s_o, [(s_g, 16384), (s_wave, 4096), (s_t, 1)], WS_XI - WS_OI) + [f's_add_u32 s{s_o+k}, s{s_o}, {1024*k}' for k in range(1, 4)]
        S += sx(s_fp, [(s_l, 8192), (s_m, 256)]) + sx(s_fo, [(s_g, 16), (s_wave, 4), (s_fp, 1)]) + sx(s_fo+1, [(s_fo, 32)], WS_RF) + [f's_lshl_b32 s{s_fo}, s{s_fo}, {self.ls}']
        S += sx(s_t, [(s_wm, 8), (s_rot2, 16)]) + [f's_add_u32 s{s_fp}, s{s_fp}, s{s_t}']
        a.extend(interleave(mfmas(1), S, per=[2]*20 + [3]*4))
        if self.lfl == 2: self.cond([f's_cmp_lg_u32 s{s_l}, 0'], lambda: (a(f's_sub_u32 s{s_t+1}, s{s_fo+1}, {4096*32}'), self.flag_set(s_t, one, 2)))
        a(f's_bitcmp1_b32 s{s_l}, 0'); a('s_cbranch_scc1 L_preB')
        self.epiA(env, 's')
        a('s_branch L_pre_done')
        a.label('L_preB')
        self.epiB(env, 's')
        def last():
            a(f's_mov_b64 s[{sOUT}:{sOUT+1}], s[{pOUT}:{pOUT+1}]'); a(f's_mov_b32 s{sOUT+2}, {2048*1024*2}')
            a.extend(sx(s_o, [(s_m, 1 << 18), (s_wave, 1 << 16), (s_g, 128)]))
            a(f's_add_u32 s{s_o+1}, s{s_o}, 64'); a(f's_add_u32 s{s_o+2}, s{s_o}, 32768'); a(f's_add_u32 s{s_o+3}, s{s_o}, {32768+64}')
            a(f'v_mov_b32 v{vst}, v{voffR}')
        self.cond([f's_cmp_eq_u32 s{s_l}, 3'], last)
        a.label('L_pre_done')
        a(f's_add_u32 s{s_st}, s{s_st}, 262144')
        a.extend(stats()); a(st_store)
        a.label('L_go')
        a('s_barrier')
        self.stamp(1)
        a.extend(reads(0, 0, 1))
        a('s_branch L_q1')
        nb = self.bpos + 1
        def half0(slot):
            if self.prof >= 5:
                a('s_memtime s[92:93]' if self.prof == 5 else 's_memrealtime s[92:93]'); a(f's_lshl_b32 m0, s{s_l}, 4'); a(f's_add_u32 m0, m0, s{s_i}'); a(f's_add_u32 m0, m0, {(slot+2)%3+1}')
            a('s_waitcnt lgkmcnt(0)')
            F = reads(1, 1, slot)
            if self.prof >= 5: F = ['v_writelane_b32 v255, s92, m0'] + F
            if slot == 0: F += [f's_add_u32 s{s_i}, s{s_i}, 3', f's_cmp_lt_u32 s{s_i}, 15']
            a.extend(interleave(mfmas(0), F, per=[0]*self.r0 + [1]*24))
            a('s_waitcnt lgkmcnt(0)')
            a.extend(mfmas(1)[:nb]); a('s_barrier')
        def half1(slot):
            R = reads(0, 0, (slot+1) % 3)
            a(R[0]); a.extend(interleave(mfmas(1)[nb:], R[1:], per=[1]*24))
        a('.p2align 6')
        a.label('L_q')
        half1(0)
        a.label('L_q1')
        half0(1); half1(1); half0(2); half1(2); half0(0)
        a('s_cbranch_scc1 L_q')
        a.label('L_tail')
        self.stamp(2)
        a(f's_bitcmp1_b32 s{s_l}, 0'); a('s_cbranch_scc1 L_epiB')
        self.epiA(env, False)
        a('s_branch L_ophase')
        a.label('L_epiB')
        self.epiB(env, False)
        a.label('L_ophase')
        PD = self.pd; NR = PD + 1
        OA, OW, awo, vf, RING = 128, [160, 176], 192, 196, 32
        assert RING + 8*NR <= 128
        u0, u1, u2, vrf, vot, vxw = 197, 198, 199, 204, 205, 206
        a(f'v_mov_b32 v{u0}, {P_MODE}'); a(f'ds_read_b32 v{u0}, v{u0}')
        def oacc(tb, nb): return OA + 16*tb + 4*nb
        for k in range(4):
            a(sw16(XR+4*k, XR+4*k+2)); a(sw16(XR+4*k+1, XR+4*k+3))
        a('s_waitcnt lgkmcnt(0)'); a(f'v_readfirstlane_b32 s{s_fast}, v{u0}')
        a(f's_xor_b32 s{s_t}, s{s_fp}, 128'); a.extend(sx(s_e, [(s_t, 32)], WS_RF))
        a.extend(self.flag_addr(vrf, u1, None, remote=True))
        a.extend(self.flag_addr(vf, u1, s_fp))
        s_fq = s_d
        a(f's_cmp_eq_u32 s{s_fast}, 1'); a(f's_cselect_b32 s{s_fq}, s{s_fp}, {BIG}')
        for r in range(16):
            a(f'v_lshlrev_b32 v{OA+2*r}, 16, v{XR+r}'); a(f'v_and_b32 v{OA+2*r+1}, 0xffff0000, v{XR+r}')
        def oreads(h):
            return [f'ds_read_b64_tr_b16 {vr(OW[h&1]+4*nb+2*t,2)}, v{awo+nb} offset:{(h&15)*4096+512*t}' for nb in range(4) for t in range(2)]
        a('s_waitcnt vmcnt(0)')
        self.stamp(8)
        self.flag_set(s_fo, one, 1)
        a(self.flag_load(s_fq, vf, u0, self.pf))
        self.flag_set(s_fo, one, 2)
        a.extend(self.w_frag_addr(awo, None, L_WO, vxw, u1, u2, nb_list=(0, 1, 2, 3)))
        if not self.bw: a('s_barrier'); a.extend(oreads(0))
        def next_consts():
            a(f's_cmp_eq_u32 s{s_wh}, 0'); a('s_cselect_b64 vcc, -1, 0')
            for k in range(2): a(f'v_cndmask_b32 v{awq+k}, v{awo+2+k}, v{awo+k}, vcc')
            for k in range(2): a(f'v_subrev_u32 v{awq+k}, {L_WO}, v{awq+k}')
            a.extend(sx(s_t, [(s_wm, 8192)], XOFF)); a(f'v_add_u32 v{ax}, s{s_t}, v{l16}'); a(f'v_add_u32 v{ax+1}, 1024, v{ax}')
            a.extend(sx(s_t, [(s_wave, 4096)], XOFF)); a(f'v_add_u32 v{vxw}, s{s_t}, v{voffI}')
            a(f's_bitcmp1_b32 s{s_l}, 0'); a('s_cbranch_scc1 L_nextA')
            self.epiB(env, 'v')
            a('s_branch L_next_done')
            a.label('L_nextA')
            self.cond([f's_cmp_lg_u32 s{s_l}, 3'], lambda: self.epiA(env, 'v'))
            a.label('L_next_done')
        if not self.vpos: next_consts()
        self.flag_wait(s_fp, vf, u0, 4, pre='s_waitcnt vmcnt(1) lgkmcnt(0)', own=True)
        self.stamp(9)
        def oload(h, tb):
            L = [f'buffer_load_dwordx4 {vr(RING+8*(h%NR)+4*tb,4)}, v{l16}, {srd(sWS)}, s{s_ob+tb} offen offset:{1024*(h&3)} sc1']
            if h & 3 == 3 and h < 31:
                if tb == 0: L += [f's_add_u32 s{s_ooff}, s{s_ooff}, 4096', f's_and_b32 s{s_ooff}, s{s_ooff}, 0x7fff', f's_add_u32 s{s_ob}, s{s_obase}, s{s_ooff}']
                else: L += [f's_add_u32 s{s_ob+1}, s{s_ob}, 32768']
            return L
        S = []
        for h in range(PD):
            S += oload(h, 0) + oload(h, 1)
            if self.bw and h == 3: S += ['s_barrier'] + oreads(0)
        S.append('s_nop 2')
        hc = self.hc or 15 - PD
        DL = self.dl; assert DL <= PD and DL % 2 == 0
        UN = [(p, nb) for p in range(32 - DL) for nb in range(4)] + [(p, nb) for e in range(2) for p in range(32 - DL, 32) for nb in (2*e, 2*e+1)]
        def out(k4):
            return [cvt(XR+4*k4+k, OA+8*k4+2*k, OA+8*k4+2*k+1) for k in (0, 2, 1, 3)], [sw16(XR+4*k4, XR+4*k4+2), sw16(XR+4*k4+1, XR+4*k4+3)], [
                    f'buffer_store_dwordx4 {vr(XR+4*k4,4)}, v{vst}, {srd(sOUT)}, s{s_o+k4} offen sc1', f'ds_write_b128 v{vxw}, {vr(XR+4*k4,4)} offset:{1024*k4}']
        early = (out(0)[0] + out(2)[0][:2] + out(0)[1] + out(2)[0][2:] + out(0)[2][:1] + out(2)[1] + out(0)[2][1:] + out(2)[2]) if DL else []
        for h in range(32):
            if h == 15: S += [f'v_add_u32 v{awo+nb}, 0x10000, v{awo+nb}' for nb in range(4)]
            for k in range(8):
                u, tb = 4*h + k//2, k % 2
                p, nb = UN[u]
                S.append(mf16(oacc(tb, nb), OW[0]+4*(u%8), RING+8*(p%NR)+4*tb, oacc(tb, nb)))
                if u + 4 < 128:
                    p2, nb2 = UN[u+4]
                    S.append(f'ds_read_b64_tr_b16 {vr(OW[0]+4*((u+4)%8)+2*tb,2)}, v{awo+nb2} offset:{(p2&15)*4096+512*tb}')
                for j in range(2):
                    if k == self.opos[j] and h + PD < 32 and not (h + PD >= 16 and h <= hc): S += oload(h+PD, j)
                if 2*u + tb >= 256 - 4*DL + 2:
                    n = 2
                    S += early[:n]; early = early[n:]
            if h == self.hq: S.append(self.flag_load(s_e, vrf, u1))
            if h == hc:
                S += [f'v_cmp_eq_u32 vcc, 0, v{u1}', 's_nop 1']
                for p in range(16, hc + PD + 1): S += oload(p, 0) + oload(p, 1)
            if self.fine == 4 and h in self.oh: S.append(f's_nop {4 + self.oh.index(h)}')
            if h == self.bm: S.append('s_barrier')
        S = autowait(S + early); cut0 = S.index('s_nop 2'); cut = S.index('s_nop 1'); S.pop(cut)
        a.extend(S[:cut0])
        if self.vpos: next_consts()
        def emit(L):
            for t in L:
                if t in ('s_nop 4', 's_nop 5'): self.stamp(13 + int(t[-1]) - 4)
                else: a(t)
        emit(S[cut0+1:cut])
        self.flag_wait(s_e, vrf, u1, 9, pre=True, nap=self.nap, checked=True)
        emit(S[cut:])
        self.stamp(10)
        self.sw(sum((sum(out(k4), []) for k4 in ((1, 3) if DL else (0, 2, 1, 3))), []), crit=lambda t: t.startswith('buffer'))
        a(f's_cmp_eq_u32 s{s_l}, 3'); a('s_cbranch_scc1 L_fin')
        a(f's_add_u32 s{s_fo}, s{s_fo}, {4096 << self.ls}'); a(f's_add_u32 s{s_fo+1}, s{s_fo+1}, {4096*32}')
        a(f's_add_u32 s{s_l}, s{s_l}, 1')
        a('s_waitcnt lgkmcnt(0)')
        a('s_branch L_first')

    def epiA(self, E, pre):
        a = self.a
        acc = E['acc']; a_tok, a_row, a_t32, a_csr, a_csv, l16, l4 = (E[k] for k in ('a_tok', 'a_row', 'a_t32', 'a_csr', 'a_csv', 'l16', 'l4'))
        s_wm, s_wh, s_a, s_b, s_c, s_d, s_e = (E[k] for k in ('s_wm', 's_wh', 's_a', 's_b', 's_c', 's_d', 's_e'))
        PK = [128, 144]; EP, KV0, ZA, NR = 160, 176, 192, 208
        wphi, nml, c32, csv = 224, 232, 236, 238
        SEL = 240; ZK, ZS = ZA, ZA + 8
        a_phi, a_w, a_r0, a_r1, a_z, x_w, x_r = range(248, 255)
        csk = EP; csq = NR
        nmr = [KV0, EP+8, NR, NR+8]
        if pre == 'v':
            u0, u1, u2, u3, u4 = range(208, 213)
            S = [f'v_lshrrev_b32 v{u0}, 5, v1', f'v_bfe_u32 v{u1}, v1, 2, 2', f'v_lshl_add_u32 v{u1}, v{u0}, 3, v{u1}',
                 f'v_bfe_u32 v{u2}, v1, 4, 1', f'v_and_b32 v{u3}, 3, v1', f'v_lshlrev_b32 v{u4}, 3, v{u3}', f'v_lshl_add_u32 v{u2}, v{u2}, 5, v{u4}']
            S += sx(s_t, [(s_wh, 2048)], P_PHI) + [f'v_lshl_add_u32 v{u4}, v{u1}, 6, v{u2}', f'v_add_u32 v{a_phi}, s{s_t}, v{u4}']
            S += [f's_mul_i32 s{s_t+2}, s{s_wave}, {SCR}',
                  f'v_mul_u32_u24 v{u1}, 136, v{u1}', f'v_add3_u32 v{u1}, v{u1}, v{u2}, s{s_t+2}',
                  f's_lshl_b32 s{s_t+1}, s{s_wm}, 6', f'v_add_u32 v{a_r0}, s{s_t+1}, v{u1}',
                  f's_xor_b32 s{s_t+3}, s{s_t+1}, 64', f'v_add_u32 v{a_r1}, s{s_t+3}, v{u1}',
                  f'v_and_b32 v{u4}, 31, v1', f'v_mul_u32_u24 v{u4}, 136, v{u4}', f'v_lshl_add_u32 v{u4}, v{u0}, 3, v{u4}', f'v_add_u32 v{a_w}, s{s_t+2}, v{u4}',
                  f'v_add_u32 v{x_w}, s{s_t+2}, v{l16}', f's_xor_b32 s{s_t}, s{s_wave}, 2', f's_mul_i32 s{s_t}, s{s_t}, {SCR}', f'v_add_u32 v{x_r}, s{s_t}, v{l16}']
            S += [f'v_lshrrev_b32 v{u4}, 4, v1', f'v_xor_b32 v{u4}, v{u4}, v1', f'v_and_b32 v{u4}, 1, v{u4}', f'v_cmp_eq_u32 vcc, 0, v{u4}', f'v_mov_b32 v{u4}, 0x3f803f80',
                  f'v_cndmask_b32 v{SEL}, 0, v{u4}, vcc', f'v_mov_b32 v{SEL+1}, v{SEL}', f'v_mov_b64 {vr(SEL+2,2)}, {vr(SEL,2)}']
            S += [f'v_and_b32 v{u0}, 18, v1', f'v_lshlrev_b32 v{u0}, 1, v{u0}', f'v_and_or_b32 v{u0}, v1, 8, v{u0}', f'v_and_b32 v{u1}, 4, v1',
                  f'v_lshl_or_b32 v{u0}, v{u1}, 2, v{u0}', f'v_and_b32 v{u1}, 33, v1', f'v_lshl_or_b32 v{a_z}, v{u1}, 25, v{u0}',
                  f'v_lshl_or_b32 v{a_z}, v{u1}, 30, v{a_z}']
            a.extend(S)
            return
        if pre == 's':
            S = sx(s_t, [(s_l, 16), (s_g, 2), (s_wh, 1)])
            S += sx(s_d, [(s_t, 65536), (s_wm, 32768), (s_m, 2048)], WS_KVP) + sx(s_e, [(s_t, 2048), (s_m, 128), (s_wm, 64)], WS_ZP)
            S += sx(s_b, [(s_t, 128)], WS_ZF) + sx(s_c, [(s_t, 4096)], WS_KVF)
            a.extend(S)
            return
        S = []
        for b in range(4): S.append(f'ds_read_b32 v{nml+b}, v{a_tok} offset:{64*b}')
        for nb in range(2): S.append(f'ds_read_b128 {vr(csk+4*nb,4)}, v{a_csr} offset:{256+64*nb}')
        for u in range(2):
            for t in range(2): S.append(f'ds_read_b64_tr_b16 {vr(wphi+4*u+2*t,2)}, v{a_phi} offset:{(16*t+4*u)*64}')
        for nb in range(2): S.append(f'ds_read_b32 v{csv+nb}, v{a_csv} offset:{512+64*nb}')
        for b in range(4):
            S.append(f'ds_read_b128 {vr(nmr[b],4)}, v{a_row} offset:{64*b}')
            S.append(f'ds_read_b128 {vr(nmr[b]+4,4)}, v{a_row} offset:{512+64*b}')
            if b == 0:
                for Tt in range(2): S.append(f'ds_read_b32 v{c32+Tt}, v{a_t32} offset:{512+128*Tt}')
        def qk_prep(n0, cs):
            L = []
            for b in range(4):
                for k in range(4): L.append(pk('fma', acc(b, n0)+2*k, cs+2*k, ('b', nml+b), acc(b, n0)+2*k))
                for k in range(4): L.append(cvt(acc(b, n0)+k, acc(b, n0)+2*k, acc(b, n0)+2*k+1))
            for Tt in range(2):
                for k in range(4): L.append(sw16(acc(2*Tt, n0)+k, acc(2*Tt+1, n0)+k))
                L += [mf32(PK[Tt], wphi, acc(2*Tt, n0)), mf32(PK[Tt], wphi+4, acc(2*Tt+1, n0), PK[Tt])]
            return L
        def vprep(b):
            r = acc(b, 4); P, C = [], []
            for nb in range(2):
                for p in range(2): P.append(pk('fma', r+4*nb+2*p, nmr[b]+2*p, ('b', csv+nb), r+4*nb+2*p))
            for nb in range(2):
                for p in range(2): P.append(pk('mul', r+4*nb+2*p, r+4*nb+2*p, nmr[b]+4+2*p))
            for k in range(4): C.append(cvt(r+k, r+2*k, r+2*k+1))
            return P, C, [sw16(r, r+2), sw16(r+1, r+3)]
        def softmax(Tt):
            x = PK[Tt]; c = c32 + Tt
            ta, tb = ((acc(2, 3), acc(3, 3)), (acc(2, 2), acc(3, 2)))[Tt]
            mx, mn, bp, bm = ta, ta+1, tb, tb+1
            L = [f'v_max3_f32 v{mx}, v{x}, v{x+1}, v{x+2}', f'v_max3_f32 v{mn}, -v{x}, -v{x+1}, -v{x+2}']
            for k in range(3, 15, 2):
                L += [f'v_max3_f32 v{mx}, v{mx}, v{x+k}, v{x+k+1}', f'v_max3_f32 v{mn}, v{mn}, -v{x+k}, -v{x+k+1}']
            L += [f'v_max_f32 v{mx}, v{mx}, v{x+15}', f'v_max_f32 v{mn}, v{mn}, -v{x+15}']
            L += [sw32(mx, mn), f'v_max_f32 v{mx}, v{mx}, v{mn}', f'v_mul_f32 v{bm}, -v{mx}, v{c}', f'v_mov_b32 v{bp}, v{bm}', sw32(bp, bm)]
            parts = [L]; L = []
            for k in range(0, 16, 2): L.append(pk('fma', EP+k, x+k, ('b', c), ('b', bp)))
            for k in range(0, 16, 2): L.append(pk('fma', x+k, x+k, ('b', c), ('b', bm), neg=[1, 0, 0]))
            parts.append(L); L = []
            for k in range(16): L.append(f'v_exp_f32 v{EP+k}, v{EP+k}')
            for k in range(16): L.append(f'v_exp_f32 v{x+k}, v{x+k}')
            parts.append(L); L = []
            sp, sm = ta, ta+2
            r1, r2 = tb+2, tb+3
            L += [pk('add', sp, EP, EP+2), pk('add', sm, x, x+2)]
            for k in range(4, 16, 2): L += [pk('add', sp, sp, EP+k), pk('add', sm, sm, x+k)]
            L += [f'v_add_f32 v{sp}, v{sp}, v{sp+1}', f'v_add_f32 v{sm}, v{sm}, v{sm+1}', sw32(sp, sm), f'v_add_f32 v{sp}, v{sp}, v{sm}',
                  f'v_rcp_f32 v{r2}, v{sp}', f'v_mov_b32 v{r1}, v{r2}', sw32(r1, r2)]
            for k in range(0, 16, 2): L.append(pk('mul', x+k, x+k, ('b', r2)))
            for k in range(8): L.append(cvt(x+k, x+2*k, x+2*k+1))
            for k in range(0, 16, 2): L.append(pk('mul', EP+k, EP+k, ('b', r1)))
            for k in range(8): L.append(cvt(x+8+k, EP+2*k, EP+2*k+1))
            return parts + [L]
        FR = [[acc(0, 2), acc(0, 3)], [acc(1, 2), acc(1, 3)]]
        def to_lds(x):
            return [f'ds_write_b64 v{a_w}, {vr(x+8*(1-sg)+2*j,2)} offset:{64*sg+16*j}' for sg in (1, 0) for j in range(4)]
        def frags():
            return [f'ds_read_b64_tr_b16 {vr(FR[k][u]+2*tt,2)}, v{(a_r0, a_r1)[k]} offset:{(16*u+4*tt)*136}' for k in (1, 0) for u in range(2) for tt in range(2)]
        KV1 = PK[0]
        def kvm(Tt):
            L = []
            for k, K, Z in ((1, KV1, ZS), (0, KV0, ZK)):
                for u in range(2): L.append(mf32(K, FR[k][u], acc(2*Tt+u, 4), None if (Tt == 0 and u == 0) else K))
                for u in range(2): L.append(mf16(Z, SEL, FR[k][u], None if (Tt == 0 and u == 0) else Z))
            return L
        sc = sched if self.sch else (lambda L: L)
        K = qk_prep(2, csk); isM = lambda t: t.startswith('v_mfma')
        VP_ = [vprep(b) for b in range(4)]
        sm0, sm1 = softmax(0), softmax(1)
        mfma = E['mfma']
        TM = [mfma(1, b, n) for b in range(4) for n in (2, 3)] + [mfma(1, b, n) for b in range(4) for n in (4, 5)] + [mfma(1, b, 1) for b in range(4)] + [mfma(1, b, 0) for b in range(self.bpos+1, 4)]
        K01 = []
        for b in range(2):
            K01 += [f'v_fmac_f32 v{acc(b,2)+k}, v{csk+k}, v{nml+b}' for k in range(8)] + K[8*b+4:8*b+8]
        S = interleave(TM, S + K01, per=[2]*24)
        S += sc([t for t in K[16:] if not isM(t)] + [f'v_mul_f32 v{c32+Tt}, {f2u(LOG2E)}, v{c32+Tt}' for Tt in range(2)] + VP_[0][0] + VP_[1][0])
        def cutA(n, k):
            nonlocal S
            if self.fine == n: self.aw(S + ['s_waitcnt lgkmcnt(0)']); S = []; self.stamp(k)
        cutA(1, 12)
        S += sc([t for t in K if isM(t)] + VP_[0][1] + VP_[1][1] + VP_[0][2] + VP_[1][2] + sm0[0])
        cutA(1, 13)
        def mixed(sm, extra):
            F, X, A = sm[1], sm[2], sm[3][:14]
            A = A[0::2] + A[1::2]; extra = list(extra); L = F[:2]
            for k in range(16):
                L += [X[2*k]] + F[k+2:k+3] + [X[2*k+1]]
                j = k - 2 if k < 9 else k - 3
                if k >= 2 and k != 9: L.append(A[j])
                if extra: L.append(extra.pop(0))
            return L + extra + A[13:]
        if self.mix: S += mixed(sm0, sm1[0][:16]) + sc(sm1[0][16:] + sm0[3][14:] + to_lds(PK[0]) + frags())
        else: S += sc(sm0[1] + sm0[2] + sm1[0] + sm0[3] + to_lds(PK[0]) + frags())
        cutA(1, 14)
        if self.mix: S += sm1[1][:2] + interleave(sm1[2][:14], sm1[1][2:], per=[1]*14) + interleave(kvm(0), sm1[2][14:], per=[3, 3, 1, 1, 3, 3, 1, 3])
        else: S += sm1[1] + interleave(kvm(0), sm1[2], per=[3, 3, 1, 1, 3, 3, 1, 1])
        cutA(2, 12)
        S += sc(sm1[3] + to_lds(PK[1]) + frags() + sum((VP_[b][k] for k in range(3) for b in (2, 3)), []), lambda t: t.startswith('ds_read'))
        cutA(2, 13)
        M = kvm(1)
        X = [f'ds_write_b128 v{x_w}, {vr(KV1+4*k,4)} offset:{1024*k}' for k in range(4)]
        hi16 = ['s_mov_b32 vcc_lo, 0xffff0000', 's_mov_b32 vcc_hi, 0xffff0000']
        S += M[0:2] + hi16 + M[2:6] + X + [f'v_cndmask_b32 v{ZS}, v{ZS}, v{ZS+1}, vcc', f'ds_write_b32 v{x_w}, v{ZS} offset:4096'] + M[6:8]
        cutA(2, 14)
        self.aw(S); S = []
        S += ['s_waitcnt lgkmcnt(0)', 's_barrier']
        S.append(f'ds_read_b32 v{csv}, v{x_r} offset:4096')
        for k in range(4): S.append(f'ds_read_b128 {vr(EP+4*k,4)}, v{x_r} offset:{1024*k}')
        add = [pk('add', KV0+2*k, KV0+2*k, EP+2*k) for k in range(8)]
        cv = [cvt(KV0+8*(k//4)+k%4, KV0+2*k, KV0+2*k+1) for k in range(8)]
        st = [f'buffer_store_dwordx4 {vr(KV0+8*u,4)}, v{l16}, {srd(sWS)}, s{s_d} offen offset:{1024*u} sc1' for u in range(2)]
        S += [f'v_cndmask_b32 v{ZK}, v{ZK}, v{ZK+1}, vcc', f'v_add_f32 v{ZK}, v{ZK}, v{csv}'] + add[:2]
        S += [f'v_mov_b32_dpp v{ZK+3}, v{ZK} quad_perm:[1,0,3,2] row_mask:0xf bank_mask:0xf'] + add[2:4] + cv[:4] + st[:1] + [cvt(ZK, ZK, ZK+3)]
        S += add[4:] + [f'buffer_store_dword v{ZK}, v{a_z}, {srd(sWS)}, s{s_e} offen sc1'] + cv[4:] + st[1:]
        self.aw(S); S = []
        if not self.yw: a('s_barrier')
        self.stamp(3)
        u3, u4 = ZA + 4, ZA + 5
        for nb in range(2): S.append(f'ds_read_b128 {vr(csq+4*nb,4)}, v{a_csr} offset:{64*nb}')
        S += qk_prep(0, csq) + sum(softmax(0) + softmax(1), [])
        S += [f'v_lshrrev_b32 v{u3}, 5, v1', f'v_and_b32 v{u4}, 2, v1', f'v_lshlrev_b32 v{u4}, 5, v{u4}', f'v_lshl_add_u32 v{a_z}, v{u3}, 4, v{u4}',
              f'v_not_b32 v{u4}, v{SEL}', f'v_and_b32 v{u4}, 0x20000000, v{u4}', f'v_lshl_or_b32 v{a_z}, v{u4}, 1, v{a_z}',
              f'v_bfe_u32 v{u4}, v1, 4, 1', f'v_lshlrev_b32 v{u4}, 15, v{u4}', f'v_lshl_add_u32 v{u4}, v{u3}, 8, v{u4}',
              f'v_and_b32 v{u3}, 15, v1', f'v_lshl_add_u32 v{a_w}, v{u3}, 4, v{u4}', f's_add_u32 s{s_d}, s{s_a}, 65536']
        if self.yw:
            S = sched(S); S.insert(self.yw, 's_barrier'); self.aw(S); S = []
        else: self.sw(S, name='A q-part'); S = []
        self.stamp(4)
        a('s_barrier')
        self.stamp(7)
        KF = KV0; ZF = EP
        if self.b2: a(f's_sleep {self.b2}')
        self.ll_wait(([f's_sleep {self.n2}'] if self.n2 else []) + [f'buffer_load_dwordx4 {vr(ZF+4*u,4)}, v{a_z}, {srd(sWS)}, s{s_b} offen offset:{32*u} sc1' for u in range(2)] +
                     [f'buffer_load_dwordx4 {vr(KF+4*k,4)}, v{l16}, {srd(sWS)}, s{s_c} offen offset:{1024*k} sc1' for k in range(4)],
                     list(range(ZF, ZF+8)) + list(range(KF, KF+16)), u3, u4, 5)
        self.stamp(5)
        ACC = E['ACC']
        den, num, rcp, fin = [], [], [], []
        for Tt in range(2):
            N, DP, DM = ACC + 48*Tt, ACC + 48*Tt + 16, ACC + 48*Tt + 32
            x = PK[Tt]
            den.append([mf16(DP, ZF, x+8), mf16(DM, ZF, x), mf16(DP, ZF+4, x+12, DP), mf16(DM, ZF+4, x+4, DM)])
            num.append([mf32(N, KF, x+8), mf32(N, KF+4, x+12, N), mf32(N, KF+8, x, N), mf32(N, KF+12, x+4, N)])
            rcp.append([f'v_add_f32 v{DP}, v{DP}, v{DM+2}', f'v_add_f32 v{DP+1}, v{DP+1}, v{DM+3}', f'v_cndmask_b32 v{DP}, v{DP}, v{DP+1}, vcc',
                        f'v_add_f32 v{DP}, {f2u(1e-6)}, v{DP}', f'v_rcp_f32 v{DP}, v{DP}'])
            L = []
            for p in range(2):
                R = [(N + 4*(p + 2*jj) + 2*k, DM+4+4*p+2*jj+k) for jj in range(2) for k in range(2)]
                for r, d in R:
                    if Tt == 0: L += [f'v_mul_f32 v{r}, v{DP}, v{r}', f'v_mul_f32 v{r+1}, v{DP}, v{r+1}']
                    else: L.append(pk('mul', r, r, ('b', DP)))
                L += [cvt(d, r, r+1) for r, d in R]
                L.append(f'buffer_store_dwordx4 {vr(DM+4+4*p,4)}, v{a_w}, {srd(sWS)}, s{(s_a, s_d)[Tt]} offen offset:{512*p} sc1')
            fin.append(L)
        a.extend(den[0] + num[0] + interleave(den[1], hi16 + rcp[0], per=[2, 2, 2, 1]))
        a.extend(interleave(num[1], fin[0][:13] + rcp[1] + fin[0][13:], per=[6, 6, 6, 13]) + fin[1])
        self.stamp(6)

    def epiB(self, E, pre):
        a = self.a
        acc = E['acc']; a_tok, a_row, a_csr, a_csv, l16 = (E[k] for k in ('a_tok', 'a_row', 'a_csr', 'a_csv', 'l16'))
        s_wm, s_wh, s_a, s_b, s_c, s_d, s_e = (E[k] for k in ('s_wm', 's_wh', 's_a', 's_b', 's_c', 's_d', 's_e'))
        BI, BI0, MK, a_h = 236, 244, 248, 252
        if pre == 'v':
            t1, t2, t3 = 208, 209, 210
            S = [f'v_and_b32 v{t1}, 15, v1', f'v_lshrrev_b32 v{t2}, 4, v1', f'v_lshlrev_b32 v{t2}, 2, v{t2}', f'v_sub_u32 v{t1}, v{t1}, v{t2}',
                 f'v_mov_b32 v{t3}, {f2u(-1e30)}']
            for blk in range(2):
                for i in range(4):
                    S += [f'v_add_u32 v{t2}, {(16 if blk == 0 else 0) - i}, v{t1}', f'v_and_b32 v{t2}, -15, v{t2}', f'v_cmp_eq_u32 vcc, 0, v{t2}',
                          f'v_cndmask_b32 v{BI+4*blk+i}, v{t3}, 0, vcc']
                    if i % 2 == 0: S += [f'v_cndmask_b32 v{MK+2*blk+i//2}, 0, -1, vcc', f'v_lshrrev_b32 v{MK+2*blk+i//2}, 16, v{MK+2*blk+i//2}']
                    else: S += [f'v_cndmask_b32 v{t2}, 0, -1, vcc', f'v_lshl_or_b32 v{MK+2*blk+i//2}, v{t2}, 16, v{MK+2*blk+i//2}']
            S += [f's_or_b32 s{s_t}, s{s_m}, s{s_wm}', 's_cselect_b64 vcc, -1, 0']
            for i in range(4): S.append(f'v_cndmask_b32 v{BI0+i}, v{t3}, v{BI+i}, vcc')
            S += sx(s_t, [(s_wh, 2048)], P_PHI) + [f'v_add_u32 v{a_h}, s{s_t}, v{l16}']
            S += [f's_add_u32 s{s_t+1}, s{s_t}, 1024', f's_cmp_eq_u32 s{s_wm}, 0', f's_cselect_b32 s{s_t}, s{s_t}, {L_P + 7168}', f's_cselect_b32 s{s_t+1}, s{s_t+1}, {L_P + 7168}',
                  f'v_add_u32 v{a_h+1}, s{s_t}, v{l16}', f'v_add_u32 v{a_h+2}, s{s_t+1}, v{l16}']
            a.extend(S)
            return
        if pre == 's':
            S = sx(s_b, [(s_l, 1 << 19), (s_m, 1 << 16), (s_g, 4096), (s_wh, 2048)], WS_HALO - (1 << 19))
            S += [f's_add_u32 s{s_c}, s{s_b}, 65536', f's_cmp_eq_u32 s{s_m}, 15', f's_cselect_b32 s{s_c}, {BIG}, s{s_c}',
                  f's_cmp_eq_u32 s{s_wm}, 0', f's_cselect_b32 s{s_c}, {BIG}, s{s_c}', f's_cselect_b32 s{s_b}, s{s_b}, {BIG}',
                  f's_cmp_eq_u32 s{s_m}, 0', f's_cselect_b32 s{s_b}, {BIG}, s{s_b}', f's_add_u32 s{s_d}, s{s_a}, 65536']
            a.extend(S)
            return
        nr = [160, 168, 176, 208]
        nml, rsl, csk, csv, csq, HB = 216, 220, 224, 232, 128, 136
        VP = [184, 196]
        U, M, t1, t2 = 144, 152, 156, 157
        S = []
        for b in (3, 0, 1, 2):
            S += [f'ds_read_b32 v{nml+b}, v{a_tok} offset:{64*b}', f'ds_read_b32 v{rsl+b}, v{a_tok} offset:{512+64*b}']
            if b == 3:
                for nb in range(2): S.append(f'ds_read_b128 {vr(csk+4*nb,4)}, v{a_csr} offset:{768+256+64*nb}')
                for nb in range(2): S.append(f'ds_read_b32 v{csv+nb}, v{a_csv} offset:{768+512+64*nb}')
            S += [f'ds_read_b128 {vr(nr[b],4)}, v{a_row} offset:{64*b}', f'ds_read_b128 {vr(nr[b]+4,4)}, v{a_row} offset:{512+64*b}']
        for nb in range(2): S.append(f'ds_read_b128 {vr(csq+4*nb,4)}, v{a_csr} offset:{768+64*nb}')
        def kprep(b):
            r = acc(b, 2); L = []
            for k in range(4): L.append(pk('fma', r+2*k, csk+2*k, ('b', nml+b), r+2*k))
            for k in range(4): L.append(pk('mul', r+2*k, r+2*k, ('b', rsl+b)))
            for k in range(4): L.append(cvt(r+k, r+2*k, r+2*k+1))
            return L
        def vprep(b):
            r = acc(b, 4); L = []
            for nb in range(2):
                for p in range(2): L.append(pk('fma', r+4*nb+2*p, nr[b]+2*p, ('b', csv+nb), r+4*nb+2*p))
            for nb in range(2):
                for p in range(2): L.append(pk('mul', r+4*nb+2*p, r+4*nb+2*p, nr[b]+4+2*p))
            for nb in range(2):
                for p in range(2):
                    if b == 3: L.append(cvt(acc(3, 3)+2*nb+p, r+4*nb+2*p, r+4*nb+2*p+1))
                    else: L.append(cvt(VP[nb]+2+2*b+p, r+4*nb+2*p, r+4*nb+2*p+1))
            return L
        def qprep(b):
            r = acc(b, 0); L = []
            for k in range(4): L.append(pk('fma', r+2*k, csq+2*k, ('b', nml+b), r+2*k))
            for k in range(4): L.append(cvt(r+k, r+2*k, r+2*k+1))
            return L
        mfma = E['mfma']
        TM = [mfma(1, b, n) for b in (3, 0, 1, 2) for n in (2, 3, 4, 5)] + [mfma(1, b, 1) for b in range(4)] + [mfma(1, b, 0) for b in range(self.bpos+1, 4)]
        rk, rv = acc(3, 2), acc(3, 4)
        P3 = [f'v_fmac_f32 v{rk+k}, v{csk+k}, v{nml+3}' for k in range(8)] + [f'v_mul_f32 v{rk+k}, v{rsl+3}, v{rk+k}' for k in range(8)] + kprep(3)[8:]
        P3 += [f'v_fmac_f32 v{rv+k}, v{nr[3]+k%4}, v{csv+k//4}' for k in range(8)] + [f'v_mul_f32 v{rv+k}, v{nr[3]+4+k%4}, v{rv+k}' for k in range(8)] + vprep(3)[8:]
        T0 = interleave(TM, S[:14] + P3, per=[2]*24); S = S[14:]
        for k in range(2): T0.append(f'buffer_store_dwordx4 {vr(acc(3,2)+4*k,4)}, v{l16}, {srd(sWS)}, s{s_c} offen offset:{1024*k} sc1')
        for k in range(2): S.append(f'ds_write_b128 v{a_h+1+k}, {vr(acc(3,2)+4*k,4)}')
        for nb in range(2): S.append(f'v_mov_b64 {vr(VP[nb]+8,2)}, {vr(acc(3,3)+2*nb,2)}')
        for b in range(3): S += kprep(b) + vprep(b)
        for b in range(4): S += qprep(b)
        for b in range(4): S.append(f'v_mul_f32 v{rsl+b}, {f2u(LOG2E * 32 ** -0.5)}, v{rsl+b}')
        def logits(b):
            s = nr[b]
            L = [mf16(s, HB if b == 0 else acc(b-1, 2), acc(b, 0), BI0 if b == 0 else BI), mf16(s+4, acc(b, 2), acc(b, 0), BI+4)]
            for p in range(2):
                L += [f'v_max3_f32 v{U+2*b+p}, v{s+2*p}, v{s+2*p+1}, v{s+4+2*p}', f'v_max_f32 v{U+2*b+p}, v{U+2*b+p}, v{s+5+2*p}',
                      f'v_mul_f32 v{U+2*b+p}, v{rsl+b}, v{U+2*b+p}']
            L.append(f'v_max_f32 v{M+b}, v{U+2*b}, v{U+2*b+1}')
            return L
        for b in (1, 2, 3): S += logits(b)
        L0 = logits(0); S.append(L0.pop(1))
        self.aw(T0 + (sched(S) if self.sch else S)); S = []
        HL = [f'buffer_load_dwordx4 {vr(HB+4*k,4)}, v{l16}, {srd(sWS)}, s{s_b} offen offset:{1024*k} sc1' for k in range(2)]
        L1, L3 = self.lab('hg'), self.lab('hd')
        a(f's_cmp_eq_u32 s{s_wm}, 0'); a(f's_cbranch_scc0 {L1}')
        a.extend(HL)
        a.label(L1)
        a('s_waitcnt lgkmcnt(0)'); a('s_barrier')
        a(f's_cbranch_scc1 {L3}')
        for k in range(2): a(f'ds_read_b128 {vr(HB+4*k,4)}, v{a_h} offset:{1024*k}')
        a.label(L3)
        self.stamp(3)
        def allred(op, mid):
            L = [sw32(M, M+2), sw32(M+1, M+3), f'{op} v{M}, v{M}, v{M+2}', f'{op} v{M+1}, v{M+1}, v{M+3}', sw16(M, M+1), f'{op} v{M+1}, v{M}, v{M+1}']
            L += mid
            L += [f'v_mov_b32 v{M}, v{M+1}', sw16(M, M+1), f'v_mov_b64 {vr(M+2,2)}, {vr(M,2)}', sw32(M, M+2), sw32(M+1, M+3)]
            return L
        def pv(b):
            P = nr[b]; L = []
            for p in range(2): L.append(cvt(U+2*b+p, U+2*b+p, U+2*b+p))
            for blk in range(2):
                for p in range(2): L.append(f'v_and_b32 v{P+2*blk+p}, v{U+2*b+p}, v{MK+2*blk+p}')
            return L + [mf16(acc(b, 4)+4*db, VP[db]+2*b, P) for db in range(2)]
        def put(b):
            O = acc(b, 4)
            return [cvt(O+k, O+2*k, O+2*k+1) for k in range(4)] + [f'buffer_store_dwordx4 {vr(O,4)}, v{l16}, {srd(sWS)}, s{(s_a, s_e, s_d, s_c)[b]} offen sc1']
        ONE, SUM = csk, csk + 4
        S += allred('v_max_f32', [])
        for b in (1, 2, 3): S.append(pk('add', U+2*b, U+2*b, ('b', M+b), neg=[0, 1]))
        for k in range(2, 8): S.append(f'v_exp_f32 v{U+k}, v{U+k}')
        for b in (1, 2, 3): S.append(f'v_add_f32 v{M+b}, v{U+2*b}, v{U+2*b+1}')
        S += allred('v_add_f32', [f'v_rcp_f32 v{M+1}, v{M+1}'])
        for b in (1, 2, 3): S.append(pk('mul', U+2*b, U+2*b, ('b', M+b)))
        S += pv(1) + pv(2) + pv(3) + [f's_add_u32 s{s_e}, s{s_a}, 32768', f's_add_u32 s{s_c}, s{s_d}, 32768'] + put(1) + put(2) + put(3)
        S += [f'v_mov_b32 v{ONE+k}, 0x3f803f80' for k in range(4)]
        self.sw(S, name='B blocks 1-3', crit=lambda t: t.startswith('buffer')); S = []
        self.ll_wait(HL, list(range(HB, HB+8)), t1, t2, 0, pre='s_waitcnt vmcnt(3) lgkmcnt(0)')
        self.stamp(4)
        S += L0 + [f'v_mov_b64 {vr(VP[nb],2)}, {vr(HB+4+2*nb,2)}' for nb in range(2)]
        S += [f'v_mov_b32 v{M+1}, v{M}', sw32(M, M+1), f'v_max_f32 v{M}, v{M}, v{M+1}', f'v_mov_b32 v{M+1}, v{M}', sw16(M, M+1), f'v_max_f32 v{M}, v{M}, v{M+1}']
        S += [f'v_sub_f32 v{U+k}, v{U+k}, v{M}' for k in range(2)] + [f'v_exp_f32 v{U+k}, v{U+k}' for k in range(2)]
        P0 = pv(0); S += P0[:-2] + [mf16(SUM, ONE, nr[0])] + P0[-2:] + [f'v_rcp_f32 v{SUM}, v{SUM}']
        S += [pk('mul', acc(0, 4)+2*k, acc(0, 4)+2*k, ('b', SUM)) for k in range(4)] + put(0)
        self.sw(S, name='B block 0')
        self.stamp(6)

    def build(self):
        a = self.a
        self.prologue()
        if self.st0 & 1: self.loader(); a.label('L_compute'); self.compute()
        else: self.compute(); self.loader()
        self.helper()
        a.label('L_fin')
        self.stamp(15)
        self.stamp_out()
        if self.probe and len(self.probe) > 3:
            def pub():
                a('s_mov_b64 exec, 1'); a('v_mov_b32 v2, s94'); a('s_not_b32 s93, s93'); a('v_mov_b32 v3, s93')
                a(f'buffer_atomic_umax v2, off, {srd(sDBG)}, 0 offset:12 sc1'); a(f'buffer_atomic_umax v3, off, {srd(sDBG)}, 0 offset:140 sc1')
                a('s_waitcnt vmcnt(0)'); a('v_mov_b32 v2, 1'); a(f'buffer_atomic_add v2, off, {srd(sDBG)}, 0 offset:20 sc1'); a('s_waitcnt vmcnt(0)')
                def w0():
                    self.spin(['s_sleep 8', f'buffer_load_dword v2, off, {srd(sDBG)}, 0 offset:20 sc1'], ['v_cmp_gt_u32 vcc, 0x100, v2'], 4, 10)
                    a(f'buffer_load_dword v2, off, {srd(sDBG)}, 0 offset:12 sc1'); a(f'buffer_load_dword v3, off, {srd(sDBG)}, 0 offset:140 sc1'); a('s_waitcnt vmcnt(0)')
                    a('v_readfirstlane_b32 s94, v2'); a('v_readfirstlane_b32 s93, v3'); a('s_not_b32 s93, s93')
                self.cond(['s_cmp_eq_u32 s2, 0'], w0)
                a('s_mov_b64 exec, -1')
            self.cond([f's_cmp_eq_u32 s{s_wave}, 0'], pub)
        if self.probe:
            def body():
                a('s_sub_u32 s93, s94, s93'); a(f's_mul_i32 s93, s93, {self.probe[2]}'); a('s_min_u32 s93, s93, 100000')
                a(f's_memrealtime s[{s_t+6}:{s_t+7}]'); a('s_waitcnt lgkmcnt(0)'); a(f's_add_u32 s93, s93, s{s_t+6}')
                a.label('L_probe')
                a(f's_memrealtime s[{s_t+6}:{s_t+7}]'); a('s_waitcnt lgkmcnt(0)'); a(f's_sub_u32 s94, s{s_t+6}, s93'); a('s_cmp_lt_i32 s94, 0'); a('s_cbranch_scc1 L_probe')
            self.cond([f's_or_b32 s{s_t}, s2, s{s_wave}', f's_cmp_eq_u32 s{s_t}, 0'], body)
        a('s_waitcnt vmcnt(0)')
        a.label('L_end')
        a('s_endpgm')
        for b in self.later: a.ins += b.ins
        if self.cpf: a.label('L_last'); a('s_endpgm')
        a.pad()
        assert a.maxreg('v') <= 255 and a.maxreg('s') < 96
        return a.text()


DOC = """
; ---------------------------------------------------------------------------------------------------------------------
;
;
; Hand-offs between workgroups go through d_ws, stored write-through (sc1) and read with sc1 loads:
; ---------------------------------------------------------------------------------------------------------------------
"""

def generate(listform=False, **kw):
    body = Gen(**kw).build()
    ref = open('interleave_layers__linear_kernel_hedgehog__sliding_local_dilated__prompt.s.ref').read() if not listform else ''
    head = ''.join(l + '\n' for l in ref.split('\n') if l.startswith(';') and '@launch' not in l)
    if listform: head += f'; @launch kernel={KNAME} grid=(256,1,1) block=(512,1,1) lds={LDS_BYTES}\n'
    else: head += f'; @launch grid=(256,1,1) block=(512,1,1) lds={LDS_BYTES}\n'
    return head + '.amdgcn_target "amdgcn-amd-amdhsa--gfx950"' + DOC + kernel_head(KNAME) + body + kernel_desc(KNAME, 256, 96, 256)

if __name__ == '__main__':
    kw = eval(sys.argv[2]) if len(sys.argv) > 2 else {}
    open(sys.argv[1], 'w').write(generate(**kw))
```

```python
import sys, struct
sys.path.insert(0, 'work')
from asmlib import *

KNAME = 'interleave_layers__linear_kernel_hedgehog__sliding_local_dilated__prompt_kernel'

WS_CTR, WS_STAMP, WS_ST, WS_CS = 0x0, 0x100000, 0x200000, 0x300000
WS_HALO, WS_KVF, WS_ZP, WS_ZF, WS_KVP = 0x400000, 0x600000, 0x680000, 0x6C0000, 0x800000
WS_RF = 0x700000
WS_XI, WS_OI, WS_END = 0xC00000, 0x1800000, 0x2800000
BIG = 0x40000000
STG = 40960
XOFF = 24576
L_WO = 24576
L_SPARE = 3 * STG
L_P = 155648
P_NM, P_RS, P_CS, P_MODE, P_CNT, P_PHI = L_P, L_P + 512, L_P + 1024, L_P + 2816, L_P + 2832, L_P + 3072
LDS_BYTES = 163840
SCR = 5120
LOG2E = 1.4426950408889634
def f2u(x): return '0x%08x' % struct.unpack('<I', struct.pack('<f', x))[0]

s_fast = 3
pAX, pAW, pPHI, pAWO, pBW, pBWO, pOUT, pDBG, pWS = 4, 6, 8, 10, 14, 16, 18, 20, 22
sWS, sX, sW, sWO, sOUT, sDBG = 24, 28, 32, 36, 40, 44
s_m, s_g, s_wave, s_l = 48, 49, 50, 51
s_t = 52
s_cnt, s_x = 60, 61
s_i = 62
s_stamp = 63
s_rot = 64
s_rot2 = 95
s_ft, s_fn, s_fd, s_po = 90, 91, 88, 87
def srd(b): return 's[%d:%d]' % (b, b + 3)


def sx(d, terms, const=0):
    L = []
    for n, (r, k) in enumerate([t for t in terms if t[1]]):
        t = d if n == 0 else s_x
        if k == 1 and n: t = r
        elif k == 1: L.append(f's_mov_b32 s{t}, s{r}')
        elif k > 0 and k & (k - 1) == 0: L.append(f's_lshl_b32 s{t}, s{r}, {k.bit_length()-1}')
        else: L.append(f's_mul_i32 s{t}, s{r}, {k}')
        if n: L.append(f's_add_u32 s{d}, s{d}, s{t}')
    if const: L.append(f's_add_u32 s{d}, s{d}, {const:#x}' if const > 0 else f's_sub_u32 s{d}, s{d}, {-const:#x}')
    return L

def pkop(r):
    if isinstance(r, tuple):
        return vr(r[1] & ~1, 2), r[1] & 1, r[1] & 1
    assert r % 2 == 0
    return vr(r, 2), 0, 1
def pk(op, d, *src, neg=None):
    o = [pkop(s) for s in src]
    t = 'v_pk_%s_f32 %s, %s' % (op, vr(d, 2), ', '.join(x[0] for x in o))
    lo = [x[1] for x in o]; hi = [x[2] for x in o]
    if any(lo): t += ' op_sel:[%s]' % ','.join(map(str, lo))
    if not all(hi): t += ' op_sel_hi:[%s]' % ','.join(map(str, hi))
    if neg: t += ' neg_lo:[%s] neg_hi:[%s]' % (','.join(map(str, neg)), ','.join(map(str, neg)))
    return t
def cvt(d, a, b): return f'v_cvt_pk_bf16_f32 v{d}, v{a}, v{b}'
def sw16(a, b): return f'v_permlane16_swap_b32 v{a}, v{b}'
def sw32(a, b): return f'v_permlane32_swap_b32 v{a}, v{b}'
def mf16(d, A, B, C=None): return f'v_mfma_f32_16x16x32_bf16 {vr(d,4)}, {vr(A,4)}, {vr(B,4)}, ' + (vr(C, 4) if C is not None else '0')
def mf32(d, A, B, C=None): return f'v_mfma_f32_32x32x16_bf16 {vr(d,16)}, {vr(A,4)}, {vr(B,4)}, ' + (vr(C, 16) if C is not None else '0')


class Gen:
    def __init__(self, prof=0, limit=40000, dist=2, touch=1, bm=25, local=1, pd=6, sch=1, hprio=2, opos=(1, 5), warm=1, nap=1, probe=None, snake=1, rf=2, hq=4, fine=0, llf='sc1', ot=0, hc=None, hpos=90, early=0, w2=0, w0b=0, cpf=0, tr=4, bpos=1, r0=2, rprio=3, w0a=1, pipe=0, b1=0, b2=0, n1=0, n2=0, zw=2, yw=60, thr=None, pw=0, po=0, jit=0, st0=6, vpos=1, fst='sc1', rot0=12, iw=2, oh=(0, 9), dl=6, lprio=3, fpos=24, lf='', lfl=0, xnap=0, ls=0, pf='nt', mix=0, bw=0, t0s=(), xd=None):
        self.a = Asm()
        assert 16 <= bm < 32 - dl//2 and not early
        self.__dict__.update(prof=prof, limit=limit, dist=dist, touch=touch, bm=bm, local=local, pd=pd, sch=sch, hprio=hprio, opos=opos, warm=warm, nap=nap, probe=probe, snake=snake, rf=rf, hq=hq, fine=fine, llf=llf, ot=ot, hc=hc, hpos=hpos, early=early, w2=w2, w0b=w0b, cpf=cpf, tr=tr, bpos=bpos, r0=r0, rprio=rprio, w0a=w0a, pipe=pipe, b1=b1, b2=b2, n1=n1, n2=n2, zw=zw, yw=yw, thr=thr, pw=pw, po=po, jit=jit, st0=st0, vpos=vpos, fst=fst, rot0=rot0, iw=iw, oh=oh, dl=dl, lprio=lprio, fpos=fpos, lf=lf, lfl=lfl, xnap=xnap, ls=ls, pf=pf, mix=mix, bw=bw, t0s=t0s, xd=xd)
        self.nlab = 0; self.later = []

    def lab(self, p):
        self.nlab += 1
        return 'L_%s_%d' % (p, self.nlab)

    def aw(self, L):
        self.a.extend(autowait(L))
    def sw(self, L, crit=None, name=''):
        if self.sch:
            L = sched(L, crit)
            if name and __name__ == '__main__': print('sched', name, len(L), 'instructions, about', sched.last_estimate, 'cycles', file=sys.stderr)
        self.a.extend(autowait(L))

    def cond(self, test, body):
        L = self.lab('skip')
        self.a.extend(test); self.a(f's_cbranch_scc0 {L}')
        body()
        self.a.label(L)

    def aside(self, f):
        main, self.a = self.a, Asm()
        f()
        self.later.append(self.a); self.a = main

    def spin(self, issue, check, vt, tag, pre=False, alt=None, checked=False):
        a = self.a
        L, C, T, A, D = (self.lab(x) for x in ('spin', 'chk', 'tmo', 'alt', 'done'))
        count = [f's_add_u32 s{s_cnt}, s{s_cnt}, 1', f's_cmp_lt_u32 s{s_cnt}, {self.limit}', f's_cbranch_scc0 {T}']
        if checked:
            alt = issue; a(f's_cbranch_vccnz {A}')
        else:
            a(f's_mov_b32 s{s_cnt}, 0')
            if alt: a(f's_cmp_eq_u32 s{s_fast}, 1'); a(f's_cbranch_scc0 {A}')
            if pre:
                a(f's_branch {C}')
                a.label(L); a.extend(issue); a.extend(count); a('s_waitcnt vmcnt(0)')
                a.label(C)
                if pre is not True: a(pre)
                a.extend(check)
            else:
                S = autowait(list(issue) + ['s_nop 3'] + list(check)); k = S.index('s_nop 3')
                a.label(L); a.extend(S[:k]); a.extend(count); a.extend(S[k+1:])
            a(f's_cbranch_vccnz {L}')
        a.label(D)
        def rest():
            a = self.a
            if alt:
                L2 = self.lab('spin')
                a.label(A); a(f's_mov_b32 s{s_cnt}, 0')
                a.label(L2); a.extend(alt); a.extend(count); a('s_waitcnt vmcnt(0)' if checked else 's_waitcnt vmcnt(0) lgkmcnt(0)'); a.extend(check)
                a(f's_cbranch_vccnz {L2}'); a(f's_branch {D}')
            a.label(T)
            a('s_waitcnt vmcnt(0)' if checked else 's_waitcnt vmcnt(0) lgkmcnt(0)')
            a(f'v_mov_b32 v{vt}, {1 << tag}')
            a(f'buffer_atomic_or v{vt}, off, {srd(sDBG)}, 0 offset:4 sc1')
            a(f's_branch {D}')
        self.aside(rest)

    def ll_wait(self, loads, regs, t1, t2, tag, pre=False):
        S = []
        h = len(regs) // 2
        for t, R in ((t1, regs[:h]), (t2, regs[h:])):
            S.append(f'v_max_u32 v{t}, v{R[0]}, v{R[1]}')
            for k in range(2, len(R), 2): S.append(f'v_max3_u32 v{t}, v{t}, v{R[k]}, v{R[k+1]}')
        S += [f'v_max_u32 v{t1}, v{t1}, v{t2}', f'v_cmp_eq_u32 vcc, -1, v{t1}']
        loads = [l.replace('sc1', self.llf) for l in loads]
        self.spin(loads, S, t1, tag, pre)

    def flag_set(self, soff, vt, which=3):
        a = self.a
        a('s_mov_b64 exec, 1')
        if which & 1: a(f'buffer_store_dword v{vt}, off, {srd(sWS)}, s{soff} {self.lf}')
        if which == 3 and self.lfl == 1: a(f'buffer_load_dword v220, off, {srd(sWS)}, s{soff} sc1')
        if which == 3 and self.lfl == 2: which = 1
        if which & 2: a(f'buffer_store_dword v{vt}, off, {srd(sWS)}, s{soff+1} sc1')
        a('s_mov_b64 exec, -1')
    def flag_addr(self, va, vt, soff, remote=False):
        L = [f'v_bfe_u32 v{va}, v1, 1, 3', f'v_and_b32 v{vt}, 1, v1', f'v_lshl_add_u32 v{va}, v{va}, 2, v{vt}']
        if remote: return L + [f'v_lshlrev_b32 v{va}, 7, v{va}']
        return L + [f's_cmp_eq_u32 s{s_fast}, 1', f's_cselect_b32 s{s_t}, {self.ls}, 5', f's_cselect_b32 s{s_t+1}, 0, {WS_RF}',
                    f's_lshl_b32 s{soff}, s{soff}, s{s_t}', f's_add_u32 s{soff}, s{soff}, s{s_t+1}', f's_add_u32 s{s_t}, s{s_t}, 2',
                    f'v_lshlrev_b32 v{va}, s{s_t}, v{va}']
    def flag_load(self, soff, va, vt, fl='sc1'): return f'buffer_load_dword v{vt}, v{va}, {srd(sWS)}, s{soff} offen {fl}'
    def flag_wait(self, soff, va, vt, tag, pre=False, nap=0, own=False, checked=False):
        z = [f's_sleep {nap}'] if nap else []
        self.spin(z + [self.flag_load(soff, va, vt, self.pf if own else 'sc1')], [f'v_cmp_eq_u32 vcc, 0, v{vt}'], vt, tag, pre,
                  z + [self.flag_load(soff, va, vt)] if own else None, checked)
    def get_mode(self, vt):
        self.a.extend([f'v_mov_b32 v{vt}, {P_MODE}', f'ds_read_b32 v{vt}, v{vt}', 's_waitcnt lgkmcnt(0)', f'v_readfirstlane_b32 s{s_fast}, v{vt}'])

    def jitter(self, k):
        a = self.a
        L = self.lab('jit')
        a.extend([f's_lshl_b32 s{s_t+6}, s2, 3', f's_add_u32 s{s_t+6}, s{s_t+6}, s{s_wave}', f's_lshl_b32 s{s_t+6}, s{s_t+6}, 2', f's_add_u32 s{s_t+6}, s{s_t+6}, s{s_l}',
                  f's_add_u32 s{s_t+6}, s{s_t+6}, {(k*7919 + self.jit*104729) & 0xffffff}', f's_mul_i32 s{s_t+6}, s{s_t+6}, 0x9e3779b1', f's_lshr_b32 s{s_t+7}, s{s_t+6}, 13',
                  f's_xor_b32 s{s_t+6}, s{s_t+6}, s{s_t+7}', f's_mul_i32 s{s_t+6}, s{s_t+6}, 0x85ebca6b', f's_lshr_b32 s{s_t+7}, s{s_t+6}, 29',
                  f's_lshr_b32 s{s_t+6}, s{s_t+6}, 8', f's_and_b32 s{s_t+6}, s{s_t+6}, 127', f's_lshr_b32 s{s_t+6}, s{s_t+6}, s{s_t+7}'])
        a.label(L)
        a.extend(['s_sleep 1', f's_sub_u32 s{s_t+6}, s{s_t+6}, 1', f's_cbranch_scc0 {L}'])
    def stamp(self, k):
        if self.jit: self.jitter(k)
        if self.probe:
            for n, (pl, pk_) in enumerate(self.probe[:2]):
                if pk_ == k:
                    def body():
                        self.a(f's_memrealtime s[{s_t+6}:{s_t+7}]'); self.a('s_waitcnt lgkmcnt(0)'); self.a(f's_mov_b32 s{93+n}, s{s_t+6}')
                    self.cond([f's_cmp_eq_u32 s{s_l}, {pl}'], body)
        if not self.prof or self.prof >= 5: return
        a = self.a
        a(f'{"s_memtime" if self.prof == 4 else "s_memrealtime"} s[{s_t+6}:{s_t+7}]')
        a(f's_mov_b32 s{s_stamp}, m0')
        a(f's_lshl_b32 m0, s{s_l}, 4'); a(f's_add_u32 m0, m0, {k}')
        a('s_waitcnt lgkmcnt(0)')
        a(f'v_writelane_b32 v255, s{s_t+6}, m0')
        a(f's_mov_b32 m0, s{s_stamp}')
    def stamp_out(self):
        if not self.prof: return
        a = self.a
        a.extend(sx(s_t, [(2, 2048), (s_wave, 256)], WS_STAMP))
        a('v_lshlrev_b32 v254, 2, v1')
        a(f'buffer_store_dword v255, v254, {srd(sWS)}, s{s_t} offen')

    def prologue(self):
        a = self.a
        a('s_cmp_ge_u32 s2, 256'); a('s_cbranch_scc1 L_end')
        a('s_load_dwordx16 s[4:19], s[0:1], 0')
        a('s_load_dwordx4 s[20:23], s[0:1], 64')
        a('v_lshrrev_b32 v2, 6, v0')
        a(f'v_readfirstlane_b32 s{s_wave}, v2')
        a('v_and_b32 v1, 63, v0')
        a(f's_and_b32 s{s_rot}, s2, 3'); a(f's_lshl_b32 s{s_rot}, s{s_rot}, 2')
        a(f's_bfe_u32 s{s_t}, s2, 0x20003'); a(f's_add_u32 s{s_m}, s{s_rot}, s{s_t}')
        a(f's_mov_b32 s{s_rot}, s{s_m}')
        a(f's_and_b32 s{s_rot2}, s2, 4'); a(f's_lshl_b32 s{s_rot2}, s{s_rot2}, 1')
        a(f's_lshr_b32 s{s_g}, s2, 5'); a(f's_add_u32 s{s_g}, s{s_g}, s{s_rot2}')
        a(f's_mov_b32 s{s_l}, 0'); a(f's_mov_b32 s{s_fast}, 0')
        for b, n in ((sWS, WS_END), (sX, 2048*1024*2), (sW, 1024*3072*2), (sWO, 1024*1024*2), (sOUT, WS_END), (sDBG, 256)):
            a(f's_mov_b32 s{b+2}, {n}'); a(f's_mov_b32 s{b+3}, 0x20000')
        if self.prof: a('v_mov_b32 v255, 0')
        self.stamp(0)
        a(f's_cmp_ge_u32 s{s_wave}, 6'); a('s_cbranch_scc1 L_helper')
        if self.st0 & 1: a(f's_cmp_lt_u32 s{s_wave}, 4'); a('s_cbranch_scc1 L_compute')
        else: a(f's_cmp_ge_u32 s{s_wave}, 4'); a('s_cbranch_scc1 L_loader')
    def pointers(self):
        a = self.a
        a('s_waitcnt lgkmcnt(0)')
        for b, p in ((sWS, pWS), (sX, pAX), (sW, pAW), (sWO, pAWO), (sOUT, pWS), (sDBG, pDBG)):
            a(f's_mov_b64 s[{b}:{b+1}], s[{p}:{p+1}]')

    def trickle_setup(self):
        a = self.a
        a(f's_mov_b64 s[{sOUT}:{sOUT+1}], s[{sWO}:{sWO+1}]'); a(f's_mov_b32 s{sOUT+2}, {1 << 21}')
        a.extend(sx(s_ft, [(2, 8192), (s_wave, 2048)], -8192))
        n1 = -(-16 // self.tr)
        a(f's_cmp_eq_u32 s{s_l}, 0'); a(f's_cselect_b32 s{s_fn}, 12, {n1}')
        a(f's_cmp_lt_u32 s{s_l}, {2 if self.warm else 0}'); a(f's_cselect_b32 s{s_fn}, s{s_fn}, 0')
    def trickle_lines(self, n):
        a = self.a
        a(f's_sub_u32 s{s_t}, s{sOUT+2}, {128*n}'); a(f's_min_u32 s{s_t}, s{s_t}, s{s_ft}')
        for r in range(n): a(f's_buffer_load_dwordx2 s[{s_fd}:{s_fd+1}], {srd(sOUT)}, s{s_t} offset:{128*r+60}')
        a(f's_add_u32 s{s_ft}, s{s_ft}, {128*n}')
    def trickle(self, i):
        a = self.a
        n1 = -(-16 // self.tr)
        def nxt():
            a(f's_mov_b64 s[{sOUT}:{sOUT+1}], s[{pBW}:{pBW+1}]'); a(f's_mov_b32 s{sOUT+2}, {3 << 21}')
            a.extend(sx(s_ft, [(2, 24576), (s_wave, 6144)], -24576))
        def body():
            if isinstance(i, str): self.cond([f's_cmp_eq_u32 {i}, {n1}'], nxt)
            elif i == n1: nxt()
            self.trickle_lines(self.tr)
        self.cond([f's_cmp_gt_u32 s{s_fn}, {i}'], body)
    def trickle_rest(self, part):
        rest = 48 - self.tr * (12 - -(-16 // self.tr))
        n = rest
        self.cond([f's_cmp_eq_u32 s{s_fn}, 12'], lambda: self.trickle_lines(n))

    def warm_w(self):
        a = self.a
        if not self.pw: return
        a(f's_and_b32 s{s_t}, s{s_m}, 3'); a.extend(sx(s_t+1, [(s_t, 16*6144), (s_wave, 4*6144), (s_g, 128)], -16*6144))
        a(f's_and_b32 s{s_t+2}, s{s_g}, 7')
        for st in range(1, 1 + self.pw):
            a(f's_cmp_le_u32 s{s_t+2}, {st-1}'); a(f's_addc_u32 s{s_t}, s{s_rot2}, {st-1}')
            a(f's_mul_i32 s{s_t}, s{s_t}, {64*6144}'); a(f's_add_u32 s{s_t}, s{s_t}, s{s_t+1}')
            for k in range(12): a(f's_buffer_load_dwordx2 s[{s_fd}:{s_fd+1}], {srd(sW)}, s{s_t} offset:{2048*k+60}')
    def warm_wo_setup(self):
        a = self.a
        a(f's_and_b32 s{s_t}, s{s_m}, 3'); a.extend(sx(s_po, [(s_t, 256*2048), (s_wave, 64*2048), (s_g, 128)], -256*2048))
    def warm_wo(self, n):
        a = self.a
        def body():
            for k in range(n): a(f's_buffer_load_dwordx2 s[{s_fd}:{s_fd+1}], {srd(sWO)}, s{s_po} offset:{2048*k+60}')
            a(f's_add_u32 s{s_po}, s{s_po}, {2048*n}'); a(f's_min_u32 s{s_po}, s{s_po}, {(1 << 21) - 2048*n}')
        if self.po: self.cond([f's_lshr_b32 s{s_t}, {self.po}, s{s_l}', f's_bitcmp1_b32 s{s_t}, 0'], body)

    def w_dma_offsets(self, dw, idx, t0, t1, t2):
        a = self.a
        a(f'v_lshrrev_b32 v{t0}, 3, v1'); a(f'v_mul_u32_u24 v{t0}, 6144, v{t0}')
        a(f'v_and_b32 v{t1}, 7, v1'); a(f'v_bfe_u32 v{t2}, v1, 4, 1'); a(f'v_lshlrev_b32 v{t2}, 1, v{t2}')
        a(f'v_xor_b32 v{t1}, v{t1}, v{t2}'); a(f'v_xor_b32 v{t2}, 4, v{t1}')
        a(f'v_lshl_add_u32 v{t1}, v{t1}, 4, v{t0}'); a(f'v_lshl_add_u32 v{t2}, v{t2}, 4, v{t0}')
        d = 8*6144 - 1024
        a(f's_lshl_b32 s{s_t+1}, s{s_g}, 7'); a(f'v_add_u32 v{t1}, s{s_t+1}, v{t1}'); a(f's_add_u32 s{s_t+1}, s{s_t+1}, {d}'); a(f'v_add_u32 v{t2}, s{s_t+1}, v{t2}')
        a(f's_cmp_eq_u32 s{idx}, 0')
        for t in range(3):
            c = [((3*w + t) & 1)*32*6144 + ((3*w + t) >> 1)*2048 for w in range(2)]
            a(f's_mov_b32 s{s_t}, {c[1]}'); a(f's_cmov_b32 s{s_t}, {c[0]}')
            a(f'v_add_u32 v{dw+4*t}, s{s_t}, v{t1}'); a(f'v_add_u32 v{dw+4*t+1}, s{s_t}, v{t2}')
            a(f'v_add_u32 v{dw+4*t+2}, {2*d}, v{dw+4*t}'); a(f'v_add_u32 v{dw+4*t+3}, {2*d}, v{dw+4*t+1}')

    def w_frag_addr(self, aw, head_sreg, base, t0, t1, t2, nb_list=(0, 1)):
        L = [f'v_lshrrev_b32 v{t2}, 4, v1', f'v_bfe_u32 v{t0}, v1, 2, 2', f'v_lshl_add_u32 v{t1}, v{t2}, 3, v{t0}',
             f'v_lshrrev_b32 v{t0}, 1, v{t0}', f'v_and_b32 v{t2}, 1, v{t2}', f'v_lshl_add_u32 v{t0}, v{t2}, 1, v{t0}']
        if head_sreg is not None: L += [f's_lshl_b32 s{s_t}, s{head_sreg}, 1', f'v_xor_b32 v{t0}, s{s_t}, v{t0}']
        L += [f'v_and_b32 v{t2}, 3, v1', f'v_lshlrev_b32 v{t2}, 3, v{t2}', f'v_lshl_add_u32 v{t2}, v{t1}, 7, v{t2}']
        if base: L.append(f'v_add_u32 v{t2}, {base}, v{t2}')
        for k, nb in enumerate(nb_list): L += [f'v_xor_b32 v{t1}, {nb}, v{t0}', f'v_lshl_add_u32 v{aw+k}, v{t1}, 5, v{t2}']
        return L

    def reduce_job(self, after_by=None, after_fill=None):
        a = self.a
        T = 200
        vA, vZ, vO, t1, t2 = T, T+1, T+2, T+3, T+4
        s_a, s_b, s_c, s_d, s_e = 80, 81, 82, 83, 84
        a.extend(sx(s_t, [(s_l, 32), (s_g, 4), (s_wave, 1)], -4))
        a.extend(sx(s_a, [(s_t, 32768), (s_m, 128)], WS_KVP)); a(f's_add_u32 s{s_b}, s{s_a}, 16384')
        a.extend(sx(s_d, [(s_t, 2048), (s_m, 128)], WS_KVF))
        a.extend(sx(s_c, [(s_t, 1024)], WS_ZP)); a.extend(sx(s_e, [(s_t, 64)], WS_ZF))
        a(f's_and_b32 s{s_t}, s{s_t}, 1'); a(f's_xor_b32 s{s_t+1}, s{s_m}, s{s_g}'); a(f's_or_b32 s{s_t}, s{s_t}, s{s_t+1}')
        a(f's_cselect_b32 s{s_c}, {BIG}, s{s_c}'); a(f's_cselect_b32 s{s_e}, {BIG}, s{s_e}')
        a(f'v_and_b32 v{t1}, 7, v1'); a(f'v_lshlrev_b32 v{t1}, 4, v{t1}')
        a(f'v_lshrrev_b32 v{t2}, 3, v1'); a(f'v_lshl_add_u32 v{vA}, v{t2}, 11, v{t1}')
        a(f'v_lshlrev_b32 v{vZ}, 4, v1')
        a(f'v_lshrrev_b32 v{t2}, 4, v1'); a(f'v_lshl_add_u32 v{vO}, v{t2}, 2, v{t1}')
        D = T + 8; U = 160
        def late_fill():
            for k in range(4): a(f'v_mov_b32 v{D+k}, -1')
            fill = f'buffer_store_dwordx4 {vr(D,4)}, v{vZ}, {srd(sWS)}, s{s_t} offen'
            a.extend(sx(s_t, [(s_g, 131072), (s_wave, 32768), (s_m, 2048)], WS_KVP + (1 << 21) - 4*32768)); a(fill + ' sc1'); a(fill + ' offset:1024 sc1')
            a(f's_lshr_b32 s{s_t+1}, s{s_wave}, 1'); a(f's_and_b32 s{s_t+2}, s{s_wave}, 1')
            a.extend(sx(s_t, [(s_t+2, 1 << 20), (s_m, 1 << 16), (s_g, 4096), (s_t+1, 2048)], WS_HALO - 2*2048)); a(fill + ' sc1'); a(fill + ' offset:1024 sc1')
            a.extend(sx(s_t, [(s_wave, 262144), (s_m, 16384), (s_g, 1024)], WS_ST - 3*262144))
            a.extend(sx(s_t+3, [(s_g, 16384), (s_m, 1024)], WS_CS + 262144))
            a(f's_cmp_eq_u32 s{s_wave}, 7'); a(f's_cselect_b32 s{s_t}, s{s_t+3}, s{s_t}'); a(fill + ' sc1')
            a('s_mov_b64 exec, 0xff')
            a(f's_add_u32 s{s_t}, s{s_d}, {1 << 17}'); a(fill + ' sc1')
            a(f's_add_u32 s{s_t}, s{s_e}, {1 << 12}'); a(fill + ' sc1')
            a.extend(sx(s_t, [(s_g, 4096), (s_t+1, 2048), (s_m, 128)], WS_ZP + (1 << 16) - 2*2048)); a(fill + ' sc1')
            a('s_mov_b64 exec, -1')
            a('s_waitcnt vmcnt(0)')
        self.cond([f's_cmp_eq_u32 s{s_l}, 0'], late_fill)
        a('s_barrier')
        if self.jit: self.jitter(20)
        if self.rprio: a(f's_setprio {self.rprio}')
        a('s_barrier')
        if after_by and self.w0a == 0: after_by()
        if self.b1: a(f's_sleep {self.b1}')
        self.ll_wait(([f's_sleep {self.n1}'] if self.n1 else []) + [f'buffer_load_dwordx4 {vr(D,4)}, v{vA}, {srd(sWS)}, s{s_a} offen sc1',
                      f'buffer_load_dwordx4 {vr(D+4,4)}, v{vA}, {srd(sWS)}, s{s_b} offen sc1',
                      f'buffer_load_dwordx4 {vr(D+8,4)}, v{vZ}, {srd(sWS)}, s{s_c} offen sc1',
                      f'buffer_load_dwordx4 {vr(D+12,4)}, v{vZ}, {srd(sWS)}, s{s_c} offen offset:1024 sc1'],
                     list(range(D, D+16)), t1, t2, 1)
        self.stamp(5)
        S = []
        for z in range(2):
            d, u = D + 8*z, U + 16*z
            for k in range(8): S += [f'v_lshlrev_b32 v{u+2*k}, 16, v{d+k}', f'v_and_b32 v{u+2*k+1}, 0xffff0000, v{d+k}']
            for k in range(4): S.append(pk('add', u+2*k, u+2*k, u+8+2*k))
            for k in range(4): S.append(sw32(u+k, u+4+k))
            S += [pk('add', u, u, u+4), pk('add', u+2, u+2, u+6), sw16(u, u+2), sw16(u+1, u+3), pk('add', u, u, u+2)]
            for k in range(2): S.append(f'v_add_f32_dpp v{u+k}, v{u+k}, v{u+k} row_ror:8 row_mask:0xf bank_mask:0xf')
            S.append(cvt(u, u, u+1))
        S += ['s_mov_b32 exec_lo, 0x00ff00ff', 's_mov_b32 exec_hi, 0x00ff00ff',
              f'buffer_store_dword v{U}, v{vO}, {srd(sWS)}, s{s_d} offen sc1',
              f'buffer_store_dword v{U+16}, v{vO}, {srd(sWS)}, s{s_e} offen sc1', 's_mov_b64 exec, -1']
        self.sw(S)
        if self.rprio: a('s_setprio 0')
        if after_by and self.w0a == 1: after_by()
        if self.zw: a(f's_waitcnt vmcnt({12 if (after_by and self.w0a == 1 and self.zw == 1) else 0})')
        a('s_barrier')
        if after_by and self.w0a == 2: after_by()

    def loader(self):
        a = self.a
        a.label('L_loader')
        dx, dw, dwo, t0, t1, t2, vf = 8, 16, 28, 2, 3, 4, 5
        s_ld, s_kx, s_kw, s_slot, s_mx, s_xstep, s_wo, s_wm0, s_sx, s_sw, s_xb, s_fl, s_mw = range(65, 78)
        a(f's_sub_u32 s{s_ld}, s{s_wave}, 4')
        self.w_dma_offsets(dw, s_ld, t0, t1, t2)
        a(f's_mul_i32 s{s_mw}, s{s_ld}, 12288')
        a(f's_lshl_b32 s{s_mx}, s{s_ld}, 13'); a(f's_add_u32 s{s_mx}, s{s_mx}, {XOFF}')
        s_flip = 78
        def nxt(r):
            return [f's_cmp_eq_u32 s{r}, s{s_flip}', f's_addc_u32 s{r}, s{r}, 1', f's_and_b32 s{r}, s{r}, 15']
        def wst(slot=None):
            L = []
            for j in range(12):
                if j == 0: L.append(f's_add_u32 m0, s{s_mw}, ' + (f's{s_slot}' if slot is None else str(slot*STG)))
                elif j % 4 == 0: L.append('s_add_u32 m0, m0, 4096')
                L.append(f'buffer_load_dwordx4 v{dw+j}, {srd(sW)}, s{s_kw} offen offset:{1024*(j%4)} lds')
            a.extend(L + nxt(s_sw) + [f's_mul_i32 s{s_kw}, s{s_sw}, {64*6144}'])
        def xst(slot=None):
            L = []
            for j in range(8):
                if j == 0: L.append(f's_add_u32 m0, s{s_mx}, ' + (f's{s_slot}' if slot is None else str(slot*STG)))
                elif j == 4: L.append('s_add_u32 m0, m0, 4096')
                L.append(f'buffer_load_dwordx4 v{dx+j}, {srd(sX)}, s{s_kx} offen offset:{1024*(j%4)} sc1 lds')
            a.extend(L + nxt(s_sx) + [f's_mul_i32 s{s_kx}, s{s_sx}, s{s_xstep}', f's_add_u32 s{s_kx}, s{s_kx}, s{s_xb}'])
        def kstart(first):
            if first:
                a(f's_and_b32 s{s_sx}, s{s_m}, {self.rot0}'); a(f's_mov_b32 s{s_sw}, s{s_sx}'); a(f's_mov_b32 s{s_flip}, 16')
            else:
                a(f's_add_u32 s{s_sw}, s{s_rot2}, 15'); a(f's_and_b32 s{s_sw}, s{s_sw}, 15'); a(f's_mov_b32 s{s_sx}, s{s_sw}')
                a(f's_add_u32 s{s_flip}, s{s_g}, 15'); a(f's_and_b32 s{s_flip}, s{s_flip}, 15'); a.extend(nxt(s_sx))
            a(f's_mul_i32 s{s_kw}, s{s_sw if first else s_g}, {64*6144}'); a(f's_mul_i32 s{s_kx}, s{s_sx}, s{s_xstep}'); a(f's_add_u32 s{s_kx}, s{s_kx}, s{s_xb}')
        a(f's_lshl_b32 s{s_xb}, s{s_m}, 18'); a(f's_mov_b32 s{s_xstep}, 128'); kstart(True)
        self.pointers()
        wst(0)
        a(f'v_lshrrev_b32 v{t0}, 3, v1'); a(f'v_and_b32 v{t1}, 7, v1')
        a(f'v_lshrrev_b32 v{t2}, 4, v1'); a(f'v_xor_b32 v{t1}, v{t1}, v{t2}'); a(f'v_xor_b32 v{t2}, 4, v{t1}')
        a(f's_lshl_b32 s{s_t}, s{s_ld}, 17'); a(f'v_lshl_add_u32 v{t0}, v{t0}, 11, s{s_t}')
        a(f'v_lshl_add_u32 v{t1}, v{t1}, 4, v{t0}'); a(f'v_lshl_add_u32 v{t2}, v{t2}, 4, v{t0}')
        for j in range(8): a(f'v_add_u32 v{dx+j}, {j*16384 - 1024*(j%4)}, v{t1 if j % 2 == 0 else t2}')
        xst(0); wst(1)
        a(f'v_lshrrev_b32 v{t0}, 5, v1'); a(f'v_lshlrev_b32 v{t0}, 4, v{t0}')
        a(f'v_bfe_u32 v{t1}, v1, 3, 2'); a(f'v_add_u32 v{t0}, v{t0}, v{t1}')
        a(f's_lshl_b32 s{s_t}, s{s_g}, 7'); a(f'v_lshl_add_u32 v{t0}, v{t0}, 11, s{s_t}')
        a(f'v_and_b32 v{t1}, 7, v1'); a(f'v_bfe_u32 v{t2}, v1, 4, 1'); a(f'v_lshlrev_b32 v{t2}, 1, v{t2}')
        a(f'v_xor_b32 v{t1}, v{t1}, v{t2}'); a(f'v_xor_b32 v{t2}, 4, v{t1}')
        a(f'v_lshl_add_u32 v{t1}, v{t1}, 4, v{t0}'); a(f'v_lshl_add_u32 v{t2}, v{t2}, 4, v{t0}')
        for G in range(4): a(f'v_add_u32 v{dwo+G}, {G*4*2048 - 1024*G}, v{t1 if G % 2 == 0 else t2}')
        a('s_waitcnt vmcnt(12)'); a('s_barrier')
        xst(1); wst(2)
        a('s_waitcnt vmcnt(12)'); a('s_barrier')
        xst(2)
        a.label('L_ld_enter')
        a(f's_mov_b32 s{s_i}, 0'); a(f's_mov_b32 s{s_slot}, 0')
        self.trickle_setup(); self.warm_wo_setup()
        def loop(name, n, extra):
            a.label(name)
            xst(); wst()
            if extra:
                a(f's_add_u32 s{s_t}, s{s_i}, 1'); a(f's_and_b32 s{s_t}, s{s_t}, 7')
                a.extend(sx(s_wo, [(s_rot2, 2), (s_t, 1)], 24)); a(f's_and_b32 s{s_wo}, s{s_wo}, 31')
                a.extend(sx(s_wm0, [(s_wo, 65536), (s_ld, 2*4*2048)]))
                a.extend(sx(s_wo, [(s_t, 4096), (s_ld, 2048)], L_SPARE)); a(f's_mov_b32 m0, s{s_wo}')
                for G in range(2): a(f'buffer_load_dwordx4 v{dwo+G}, {srd(sWO)}, s{s_wm0} offen offset:{1024*G} lds')
            self.trickle(f's{s_i}'); self.warm_wo(5)
            a(f's_add_u32 s{s_slot}, s{s_slot}, {STG}'); a(f's_cmp_eq_u32 s{s_slot}, {3*STG}'); a(f's_cselect_b32 s{s_slot}, 0, s{s_slot}')
            a(f's_add_u32 s{s_i}, s{s_i}, 1'); a(f's_cmp_lt_u32 s{s_i}, {n}')
            a(f's_waitcnt vmcnt({22 if extra else 20})')
            a('s_barrier')
            a(f's_cbranch_scc1 {name}')
        if self.early: loop('L_ld_loop', 5, False); loop('L_ld_loop2', 13, True)
        else: loop('L_ld_loop', 13, False)
        def wo(p0, n, thr=None):
            a.extend(sx(s_wm0, [(s_ld, 4096)], L_WO + 4096*p0))
            a.extend(sx(s_wo, [(s_rot2, 2), (s_ld, 1)], p0)); a(f's_and_b32 s{s_wo}, s{s_wo}, 31'); a(f's_lshl_b32 s{s_wo}, s{s_wo}, 16')
            L = self.lab('wo')
            a(f's_mov_b32 s{s_i}, 0')
            a.label(L)
            if thr is not None: a(f's_waitcnt vmcnt({thr})')
            a(f's_mov_b32 m0, s{s_wm0}')
            a(f's_add_u32 s{s_wm0}, s{s_wm0}, 8192')
            for G in range(4): a(f'buffer_load_dwordx4 v{dwo+G}, {srd(sWO)}, s{s_wo} offen offset:{1024*G} lds')
            a(f's_add_u32 s{s_wo}, s{s_wo}, 131072'); a(f's_and_b32 s{s_wo}, s{s_wo}, 0x1fffff')
            a(f's_add_u32 s{s_i}, s{s_i}, 1'); a(f's_cmp_lt_u32 s{s_i}, {n//2}'); a(f's_cbranch_scc1 {L}')
        if self.early:
            wo(4, 10)
            a('s_waitcnt vmcnt(20)'); a('s_barrier')
            wo(14, 10)
            a('s_barrier')
            wo(0, 4)
        else:
            wo(24, 8)
            a('s_waitcnt vmcnt(16)'); a('s_barrier')
            wo(4, 10)
            a('s_barrier')
            wo(14, 10, self.thr); wo(0, 4, self.thr)
        if self.jit: self.jitter(23)
        a.extend(sx(s_fl, [(s_l, 8192), (s_m, 256), (s_rot2, 16), (s_ld, 8)], 4096))
        self.get_mode(t0); a.extend(self.flag_addr(vf, t0, s_fl))
        a.extend(sx(s_xb, [(s_l, 1 << 22), (s_m, 1 << 18)], WS_XI))
        a(f's_bitcmp0_b32 s{s_l}, 0')
        a(f's_cselect_b64 s[{sW}:{sW+1}], s[{pBW}:{pBW+1}], s[{pAW}:{pAW+1}]')
        a(f's_cselect_b64 s[{sWO}:{sWO+1}], s[{pBWO}:{pBWO+1}], s[{pAWO}:{pAWO+1}]')
        a(f's_mov_b64 s[{sX}:{sX+1}], s[{pWS}:{pWS+1}]'); a(f's_mov_b32 s{sX+2}, {WS_END}')
        a(f's_mov_b32 s{s_xstep}, 16384'); kstart(False)
        a(f's_lshl_b32 s{s_t}, s{s_ld}, 13'); a(f'v_lshl_add_u32 v{t0}, v1, 4, s{s_t}')
        for j in range(8): a(f'v_add_u32 v{dx+j}, {4096*(j//4)}, v{t0}')
        a(f's_bitcmp1_b32 s{s_l}, 0'); a('s_cbranch_scc1 L_ld_B')
        self.reduce_job(lambda: wst(0))
        a('s_branch L_ld_join')
        a.label('L_ld_B')
        if self.w0b == 0: self.cond([f's_cmp_lg_u32 s{s_l}, 3'], lambda: wst(0))
        a('s_barrier')
        if self.w0b == 1: self.cond([f's_cmp_lg_u32 s{s_l}, 3'], lambda: wst(0))
        a.label('L_ld_join')
        a('s_waitcnt vmcnt(0)'); a('s_barrier')
        a(f's_cmp_eq_u32 s{s_l}, 3'); a('s_cbranch_scc1 L_fin')
        self.trickle_rest(1); self.warm_w()
        a(f's_add_u32 s{s_l}, s{s_l}, 1')
        if self.jit: self.jitter(21)
        a('s_barrier')
        if self.jit: self.jitter(22)
        wst(1)
        if self.w2 == 2: wst(2)
        a('s_barrier')
        if self.w2 == 0: wst(2)
        if self.lprio: a(f's_setprio {self.lprio}')
        self.flag_wait(s_fl, vf, t0, 2, nap=self.xnap, own=True)
        self.stamp(1)
        xst(1); xst(2)
        if self.lprio: a('s_setprio 0')
        a('s_waitcnt vmcnt(8)'); a('s_barrier')
        if self.w2 == 1: wst(2)
        a('s_branch L_ld_enter')

    def helper(self):
        a = self.a
        a.label('L_helper')
        t0, t1, t2, t3, l4, l16, ones, a_st, a_cs, v_st, v_cs, aw, vtw, vto, vd = 2, 3, 4, 5, 6, 7, 8, 12, 13, 14, 15, 16, 18, 19, 20
        F, D, SA, SC = 32, 96, 128, 160
        s_h, s_tw, s_a, s_b, s_trot = 65, 66, 67, 68, 69
        xm = 4; s_r = 70; vrf, vfl, aw2, dw = 21, 22, 24, 80
        a(f's_sub_u32 s{s_h}, s{s_wave}, 6')
        a(f'v_lshlrev_b32 v{l4}, 2, v1'); a(f'v_lshlrev_b32 v{l16}, 4, v1')
        a.extend(self.w_frag_addr(aw, s_h, 0, t0, t1, t2))
        for k in range(2): a(f'v_add_u32 v{aw2+k}, {L_SPARE}, v{aw+k}')
        a(f's_and_b32 s{s_t+1}, s{s_m}, {15 - self.rot0}'); a(f's_cmp_eq_u32 s{s_t+1}, 3'); a(f's_cselect_b32 s{s_t+1}, 0, s{s_t+1}'); a(f's_mul_i32 s{s_t+1}, s{s_t+1}, {STG}')
        for k in range(2): a(f'v_add_u32 v{aw+k}, s{s_t+1}, v{aw+k}')
        a.extend(self.flag_addr(vrf, t0, None, remote=True))
        a(f'v_lshrrev_b32 v{t0}, 5, v1'); a(f'v_and_b32 v{t1}, 31, v1'); a(f'v_lshlrev_b32 v{t1}, 4, v{t1}')
        a(f'v_lshl_add_u32 v{v_st}, v{t0}, 10, v{t1}')
        a(f'v_and_b32 v{t2}, 24, v1'); a(f'v_and_b32 v{t3}, 3, v1'); a(f'v_lshl_add_u32 v{t2}, v{t3}, 1, v{t2}'); a(f'v_add_u32 v{t2}, v{t2}, v{t0}')
        a.extend(sx(s_t, [(s_h, 256)], P_NM)); a(f'v_lshl_add_u32 v{a_st}, v{t2}, 3, s{s_t}')
        a(f'v_mov_b32 v{t2}, {BIG}'); a(f'v_cmp_gt_u32 vcc, 384, v{t1}'); a(f'v_cndmask_b32 v{v_cs}, v{t2}, v{v_st}, vcc')
        a.extend(sx(s_t, [(s_h, 384)], P_CS)); a(f'v_lshl_add_u32 v{t1}, v{t0}, 3, v{t1}'); a(f'v_add_u32 v{a_cs}, s{s_t}, v{t1}')
        self.pointers()

        def touch_setup(first=False):
            if not self.touch: return
            c, gt = s_t + 2, s_t + 3
            def cls(b):
                a(f's_lshr_b32 s{gt}, s{b}, 7'); a(f's_sub_u32 s{gt}, 3, s{gt}'); a(f's_and_b32 s{gt}, s{gt}, 7')
                a(f's_sub_u32 s{c}, s{s_g}, s{gt}'); a(f's_and_b32 s{c}, s{c}, 7'); a(f's_sub_u32 s{c}, s{c}, 1')
                a(f's_and_b32 s{s_t}, s{s_g}, 8'); a(f's_add_u32 s{gt}, s{gt}, s{s_t}'); a(f's_lshl_b32 s{gt}, s{gt}, 7')
            a(f's_and_b32 s{s_t+4}, s{s_m}, {xm-1}'); a(f's_lshl_b32 s{s_t+4}, s{s_t+4}, 1'); a(f's_add_u32 s{s_t+4}, s{s_t+4}, s{s_h}')
            cls(sW)
            if first: a(f's_or_b32 s{s_rot}, s{s_m}, 3'); a(f's_and_b32 s{s_rot}, s{s_rot}, {self.rot0}'); a(f's_mov_b32 s{s_trot}, 0')
            else: a(f's_mov_b32 s{s_rot}, s{s_rot2}'); a(f's_bfe_u32 s{s_trot}, s{gt}, 0x30007')
            a(f's_cmp_ge_u32 s{c}, 3'); a(f's_cselect_b32 s{s_t}, {32*6144 - 3*2048}, 0'); a(f's_add_u32 s{gt}, s{gt}, s{s_t}')
            a(f's_lshl_b32 s{s_t}, s{c}, 11'); a(f's_add_u32 s{gt}, s{gt}, s{s_t}')
            a(f's_mul_i32 s{s_t}, s{s_t+4}, {(16//xm)*6144}'); a(f's_add_u32 s{gt}, s{gt}, s{s_t}')
            a(f's_cmp_lt_u32 s{c}, 6'); a(f's_cselect_b32 s{s_t}, {16//xm}, 0')
            a(f'v_mul_u32_u24 v{vtw}, 6144, v1'); a(f'v_add_u32 v{vtw}, s{gt}, v{vtw}')
            a(f'v_mov_b32 v{t0}, {BIG}'); a(f'v_cmp_gt_u32 vcc, s{s_t}, v1'); a(f'v_cndmask_b32 v{vtw}, v{t0}, v{vtw}, vcc')
            cls(sWO)
            a(f's_lshl_b32 s{s_t}, s{c}, 19'); a(f's_add_u32 s{gt}, s{gt}, s{s_t}')
            a(f's_mul_i32 s{s_t}, s{s_t+4}, {(128//xm)*2048}'); a(f's_add_u32 s{gt}, s{gt}, s{s_t}')
            a(f's_cmp_lt_u32 s{c}, 4'); a(f's_cselect_b32 s{s_t}, {32//xm}, 0')
            a(f'v_lshlrev_b32 v{vto}, 11, v1'); a(f'v_add_u32 v{vto}, s{gt}, v{vto}')
            a(f'v_cmp_gt_u32 vcc, s{s_t}, v1'); a(f'v_cndmask_b32 v{vto}, v{t0}, v{vto}, vcc')
        def touchW(st):
            if not self.touch: return
            if st == 0: a(f's_add_u32 s{s_tw}, s{s_rot}, s{s_trot}')
            else: a(f's_cmp_le_u32 s{s_trot}, {st-1}'); a(f's_addc_u32 s{s_tw}, s{s_rot}, {st-1}')
            a(f's_and_b32 s{s_tw}, s{s_tw}, 15'); a(f's_mul_i32 s{s_tw}, s{s_tw}, {64*6144}')
            a(f'buffer_load_dword v{vd}, v{vtw}, {srd(sW)}, s{s_tw} offen')
        def touchO(k):
            if not self.touch: return
            a(f's_mov_b32 s{s_tw}, {k*(32//xm)*2048}')
            a(f'buffer_load_dword v{vd}, v{vto}, {srd(sWO)}, s{s_tw} offen')
        def phi_load():
            a(f's_mov_b64 s[{sX}:{sX+1}], s[{pPHI}:{pPHI+1}]'); a(f's_mov_b32 s{sX+2}, 65536')
            a.extend(sx(s_t, [(s_g, 4096), (s_h, 2048)])); a(f's_lshl_b32 s{s_t+1}, s{s_h}, 11'); a(f's_add_u32 m0, s{s_t+1}, {P_PHI}')
            for j in range(2): a(f'buffer_load_dwordx4 v{l16}, {srd(sX)}, s{s_t} offen offset:{1024*j} lds')
        vc = 26
        if self.cpf: a(f's_getpc_b64 s[{s_t}:{s_t+1}]')
        if self.cpf: a.label('L_pc')
        if self.cpf: a(f's_sub_u32 s{s_t}, s{s_t}, L_pc-{KNAME}'); a(f's_subb_u32 s{s_t+1}, s{s_t+1}, 0')
        if self.cpf: a(f's_lshr_b32 s{s_t+2}, s2, 3'); a.extend(sx(s_t+3, [(s_t+2, 1280), (s_h, 640)]))
        if self.cpf: a(f'v_lshl_add_u32 v{t0}, v1, 7, s{s_t+3}'); a(f'v_min_u32 v{t0}, L_last-{KNAME}, v{t0}')
        if self.cpf: a(f'v_mov_b32 v{vc+1}, s{s_t+1}'); a(f'v_add_co_u32 v{vc}, vcc, s{s_t}, v{t0}'); a(f'v_addc_co_u32 v{vc+1}, vcc, 0, v{vc+1}, vcc')
        def code_touch():
            a('s_mov_b64 exec, 31'); a(f'global_load_dword v{vd}, {vr(vc,2)}, off'); a('s_mov_b64 exec, -1')
        if self.cpf & 1: code_touch()
        def cold_touch():
            a(f's_and_b32 s{s_t}, s{s_m}, 3'); a(f's_and_b32 s{s_t+1}, s{s_m}, 12')
            a.extend(sx(s_t+2, [(s_t, 16*6144), (s_t+1, 64*6144), (s_h, 64*6144), (s_g, 128)]))
            a(f'v_lshlrev_b32 v{t0}, 11, v1'); a('s_mov_b32 exec_hi, 0xffff')
            for st in self.t0s:
                a(f's_add_u32 s{s_t}, s{s_t+2}, {abs(st)*64*6144}'); a(f'buffer_load_dword v{vd}, v{t0}, {srd(sW)}, s{s_t} offen')
            a('s_mov_b32 exec_hi, -1')
        if self.t0s and self.t0s[0] < 0: cold_touch()
        self.w_dma_offsets(dw, s_h, t0, t1, t2)
        touch_setup(True)
        if self.t0s and self.t0s[0] >= 0: cold_touch()
        for st in range(1, 3 + self.dist): touchW(st)

        def init_stores():
            for k in range(4): a(f'v_mov_b32 v{SA+k}, -1')
            fill = f'buffer_store_dwordx4 {vr(SA,4)}, v{l16}, {srd(sWS)}, s{s_t} offen'
            a.extend(sx(s_t, [(s_g, 131072), (s_h, 65536), (s_m, 2048)], WS_KVP)); a(fill + ' sc1'); a(fill + ' offset:1024 sc1')
            a(f's_add_u32 s{s_t}, s{s_t}, 32768'); a(fill + ' sc1'); a(fill + ' offset:1024 sc1')
            a('s_mov_b64 exec, 0xff')
            a.extend(sx(s_t, [(s_g, 8192), (s_h, 4096), (s_m, 128)], WS_KVF)); a(fill + ' sc1'); a(fill + ' offset:2048 sc1')
            a.extend(sx(s_t, [(s_g, 4096), (s_h, 2048), (s_m, 128)], WS_ZP)); a(fill + ' sc1')
            a.extend(sx(s_t, [(s_g, 256), (s_h, 128)], WS_ZF))
            a(f's_cmp_eq_u32 s{s_m}, s{s_g}'); a(f's_cselect_b32 s{s_t}, s{s_t}, {BIG}'); a(fill + ' sc1')
            a('s_mov_b64 exec, -1')
            a(f'v_lshrrev_b32 v{t1}, 2, v1'); a(f'v_lshlrev_b32 v{t1}, 10, v{t1}'); a(f'v_and_or_b32 v{t1}, v1, 3, v{t1}')
            a.extend(sx(s_t, [(s_m, 64), (s_g, 4)])); a(f'v_add_u32 v{t1}, s{s_t}, v{t1}')
            a(f's_cmp_eq_u32 s{s_h}, 0'); a(f's_cselect_b32 s{s_t+1}, {2 + self.ls}, 7'); a(f's_cselect_b32 s{s_t}, 0, {WS_RF}')
            a(f'v_lshlrev_b32 v{t1}, s{s_t+1}, v{t1}'); a(f'v_mov_b32 v{t0}, 0')
            a('s_mov_b64 exec, 0xfffffff')
            a(f'buffer_store_dword v{t0}, v{t1}, {srd(sWS)}, s{s_t} offen sc1')
            a('s_mov_b64 exec, -1')
            a.extend(sx(s_t, [(s_g, 16384), (s_m, 1024)], WS_CS)); a(f's_cmp_eq_u32 s{s_h}, 1'); a(f's_cselect_b32 s{s_t}, s{s_t}, {BIG}'); a(fill + ' sc1')
        for k in range(4): a(f'v_mov_b32 v{ones+k}, 0x3f803f80')
        def cs_reads(aw=aw):
            for s in range(2):
                for n in range(6):
                    for t in range(2):
                        a(f'ds_read_b64_tr_b16 {vr(F+24*s+4*n+2*t,2)}, v{aw+(n&1)} offset:{(n>>1)*8192+(32*s+4*t)*128}')
            a('s_waitcnt lgkmcnt(0)')
        def cs_publish():
            for s in range(2):
                for n in range(6): a(mf16(D+4*n, ones, F+24*s+4*n, D+4*n if s else None))
            a.extend(sx(s_t, [(s_l, 262144), (s_g, 16384), (s_m, 1024), (s_h, 128)], WS_CS))
            a('s_mov_b64 exec, 0xffff')
            for n in range(6): a(f'buffer_store_dword v{D+4*n}, v{l4}, {srd(sWS)}, s{s_t} offen offset:{(n>>1)*256+(n&1)*64} sc1')
            a('s_mov_b64 exec, -1')
        def chunk(t):
            a(f's_mul_i32 s{s_t}, s{s_m}, {64*6144}'); a(f's_mul_i32 s{s_t+1}, s{s_h}, 12288'); a(f's_add_u32 m0, s{s_t+1}, {L_SPARE + 4096*(t//2)}')
            for j in range(2*t, 2*t+2): a(f'buffer_load_dwordx4 v{dw+j}, {srd(sW)}, s{s_t} offen offset:{1024*(j%4)} lds')
        def arrive():
            a(f's_getreg_b32 s{s_t}, hwreg(HW_REG_XCC_ID, 0, 3)'); a(f's_lshl_b32 s{s_t}, s{s_t}, 2'); a(f's_lshl_b32 s{s_t+1}, 1, s{s_t}')
            a.extend(sx(s_t, [(s_m, 16), (s_rot2, 1)]))
            a('s_mov_b64 exec, 1')
            a(f'v_mov_b32 v{t0}, s{s_t+1}')
            a(f'buffer_atomic_add v{t0}, off, {srd(sDBG)}, s{s_t} sc1')
            a('s_mov_b64 exec, -1')
        iload = f'buffer_load_dword v{vfl}, v{t2}, {srd(sDBG)}, 0 offen sc1'
        def init_look():
            a(f'v_and_b32 v{t2}, 31, v1'); a(f'v_lshlrev_b32 v{t2}, 3, v{t2}'); a(iload)
        def init_wait():
            a('s_waitcnt vmcnt(0)')
            self.spin(['s_sleep 16', iload],
                      [f'v_lshrrev_b32 v{t1}, 4, v{vfl}', f'v_and_b32 v{t1}, 0x0f0f0f0f, v{t1}', f'v_and_b32 v{t3}, 0x0f0f0f0f, v{vfl}',
                       f'v_sad_u8 v{t1}, v{t1}, 0, 0', f'v_sad_u8 v{t3}, v{t3}, 0, v{t1}', f'v_cmp_gt_u32 vcc, 8, v{t3}'], t3, 3, pre=True)
            a(f's_lshr_b32 s{s_t}, s{s_rot2}, 3'); a(f's_lshl_b32 s{s_t+1}, s{s_m}, 1'); a(f's_add_u32 s{s_t}, s{s_t}, s{s_t+1}')
            a(f'v_readlane_b32 s{s_fast}, v{vfl}, s{s_t}')
            a(f's_and_b32 s{s_fast}, s{s_fast}, 0x88888888'); a(f's_cselect_b32 s{s_fast}, {1 if self.local else 0}, 0')
            a(f'v_mov_b32 v{t3}, s{s_fast}'); a(f'v_mov_b32 v{t2}, {P_MODE}'); a(f'ds_write_b32 v{t2}, v{t3}')
        def gather(R, va, so, ks):
            L = []
            for k in ks: L += [f's_add_u32 s{s_t}, s{so}, {4096*(k//2)}', f'buffer_load_dwordx4 {vr(R+4*k,4)}, v{va}, {srd(sWS)}, s{s_t} offen offset:{2048*(k%2)} sc1']
            return L
        def total(R):
            n = 8
            while n > 1:
                n //= 2
                for k in range(4*n): a(f'v_add_f32 v{R+k}, v{R+k}, v{R+k+4*n}')
            a(sw32(R, R+2)); a(sw32(R+1, R+3)); a(f'v_add_f32 v{R}, v{R}, v{R+2}'); a(f'v_add_f32 v{R+1}, v{R+1}, v{R+3}')
        def stats_finish():
            for k in range(2): a(f'v_mov_b32_dpp v{SA+2+k}, v{SA+k} row_shl:4 row_mask:0xf bank_mask:0xf')
            for k in range(2): a(f'v_mul_f32 v{SA+k}, {f2u(-1/1024)}, v{SA+k}'); a(f'v_mul_f32 v{SA+2+k}, {f2u(1/1024)}, v{SA+2+k}')
            for k in range(2): a(f'v_fma_f32 v{SA+2+k}, -v{SA+k}, v{SA+k}, v{SA+2+k}')
            for k in range(2): a(f'v_max_f32 v{SA+2+k}, 0, v{SA+2+k}')
            for k in range(2): a(f'v_add_f32 v{SA+2+k}, {f2u(1e-5)}, v{SA+2+k}')
            for k in range(2): a(f'v_rsq_f32 v{SA+2+k}, v{SA+2+k}')
            a('s_mov_b32 exec_lo, 0x0f0f0f0f'); a('s_mov_b32 exec_hi, 0x0f0f0f0f')
            a(f'ds_write_b64 v{a_st}, {vr(SA,2)}'); a(f'ds_write_b64 v{a_st}, {vr(SA+2,2)} offset:512')
            a('s_mov_b64 exec, -1')
        def cs_finish():
            total(SC)
            a(f's_mul_i32 s{s_t}, s{s_l}, 768'); a(f'v_add_u32 v{t0}, s{s_t}, v{a_cs}')
            a('s_mov_b32 exec_lo, 0xffffff'); a('s_mov_b32 exec_hi, 0xffffff')
            a(f'ds_write_b64 v{t0}, {vr(SC,2)}')
            a('s_mov_b64 exec, -1')
        l0 = [f's_cmp_eq_u32 s{s_l}, 0']; ln0 = [f's_cmp_lg_u32 s{s_l}, 0']; l01 = [f's_cmp_lt_u32 s{s_l}, 2']
        a(f's_mov_b32 s{s_r}, 0')
        a.label('L_hp_layer')
        a.extend(sx(s_a, [(s_l, 262144), (s_m, 16384), (s_h, 512)], WS_ST))
        a.extend(sx(s_b, [(s_l, 262144), (s_g, 16384), (s_h, 384)], WS_CS))
        self.trickle_setup(); self.warm_wo_setup()
        hi = lambda: self.hprio and a(f's_setprio {self.hprio}')
        lo = lambda: self.hprio and a('s_setprio 0')
        l1 = [f's_cmp_eq_u32 s{s_l}, 1']
        for i in range(17):
            a('s_barrier')
            if self.jit and i in (0, 1, 4, 8, 9, 12, 16): self.jitter(30 + i)
            ncs = 16 - self.rot0
            l0h0 = [f's_or_b32 s{s_t}, s{s_l}, s{s_h}', f's_cmp_eq_u32 s{s_t}, 0']
            if i < ncs: self.cond([f's_and_b32 s{s_t}, s{s_m}, {ncs-1}', f's_lshl_b32 s{s_t+1}, s{s_l}, 2', f's_or_b32 s{s_t}, s{s_t}, s{s_t+1}', f's_cmp_eq_u32 s{s_t}, {i}'], cs_reads)
            if i == 8: self.cond(l1, lambda: cs_reads(aw2))
            if i in (self.iw, 5, 7, 13): a('s_waitcnt vmcnt(0)')
            if i == 5: self.cond(ln0, lambda: self.flag_wait(s_r, vrf, vfl, 8, pre=True, nap=self.nap))
            if i == 9: self.cond(l0h0, init_wait)
            if i <= 12: hi()
            if i == 0: self.cond(l0, lambda: (init_stores(), phi_load()))
            if i == self.iw + 1: self.cond(l0h0, arrive)
            if i == 4: self.cond(l0, cs_publish)
            if i == 9: self.cond(l1, cs_publish)
            if i == 8: self.cond(l0h0, init_look)
            if i == 11 and self.cpf & 2: self.cond(l01, code_touch)
            if i == 4: self.cond(ln0, lambda: a(self.flag_load(s_r, vrf, vfl)))
            if i + 3 + self.dist <= 15: touchW(i + 3 + self.dist)
            if 5 <= i <= 8: touchO(i - 5)
            if 1 <= i <= 6: self.cond(l1, lambda: chunk(i - 1))
            if i == 6: self.cond([f's_cmp_eq_u32 s{s_l}, 2'], phi_load)
            if i in (10, 11): a.extend(gather(SA, v_st, s_a, range(4*(i-10), 4*(i-10)+4)))
            if i in (11, 12): self.cond(l01, lambda: a.extend(gather(SC, v_cs, s_b, range(4*(i-11), 4*(i-11)+4))))
            if i <= 12: lo()
            if 1 <= i <= 12: self.trickle(i - 1)
            if i == 13: self.ll_wait(gather(SA, v_st, s_a, range(8)), list(range(SA, SA+32)), t0, t1, 6, pre=True); total(SA)
            if i == 14: stats_finish()
            if i == 14: self.cond(l01, lambda: self.ll_wait(gather(SC, v_cs, s_b, range(8)), list(range(SC, SC+32)), t0, t1, 7, pre=True))
            if i == 15: self.cond(l01, cs_finish); a('s_waitcnt lgkmcnt(0)')
        a.extend(sx(s_t+1, [(s_l, 8192), (s_m, 256), (s_g, 16), (s_h, 4096)])); a(f's_lshl_b32 s{s_t+1}, s{s_t+1}, {self.ls}')
        a(f'v_and_b32 v{t0}, 3, v1'); a(f'v_lshlrev_b32 v{t0}, {2 + self.ls}, v{t0}'); a(f'buffer_load_dword v{vd}, v{t0}, {srd(sWS)}, s{s_t+1} offen sc1')
        a.extend(sx(s_t, [(s_l, 8192), (s_m, 256), (s_rot2, 16)]))
        a(f's_xor_b32 s{s_t}, s{s_t}, 128'); a.extend(sx(s_r, [(s_t, 32), (s_h, 256)], WS_RF))
        a(f's_bitcmp0_b32 s{s_l}, 0')
        a(f's_cselect_b64 s[{sW}:{sW+1}], s[{pBW}:{pBW+1}], s[{pAW}:{pAW+1}]')
        a(f's_cselect_b64 s[{sWO}:{sWO+1}], s[{pBWO}:{pBWO+1}], s[{pAWO}:{pAWO+1}]')
        touch_setup()
        touchW(0); touchW(1); touchW(2)
        a(f's_bitcmp1_b32 s{s_l}, 0'); a('s_cbranch_scc1 L_hp_B')
        self.reduce_job()
        a('s_branch L_hp_join')
        a.label('L_hp_B')
        a('s_barrier')
        a.label('L_hp_join')
        a('s_barrier')
        a(f's_cmp_eq_u32 s{s_l}, 3'); a('s_cbranch_scc1 L_fin')
        self.trickle_rest(1); self.warm_w()
        a(f's_add_u32 s{s_r}, s{s_r}, {4096*32}')
        a(f's_add_u32 s{s_l}, s{s_l}, 1')
        a('s_barrier')
        for st in range(3, 3 + self.dist): touchW(st)
        a('s_branch L_hp_layer')

    def compute(self):
        a = self.a
        one, l16, voffR, voffI, a_tok, a_row, a_t32, a_csr, a_csv = 0, 2, 3, 4, 5, 6, 7, 8, 9
        ax, awq = 10, 12
        l4 = 14; vst = 15
        XR = 16
        ACC = 32
        FX = [128, 144]; FW = [160, 184]
        T = 208
        t0, t1, t2, t3 = T, T+1, T+2, T+3
        s_wm, s_wh, s_rslot, s_delta, s_stg, s_ones = 65, 66, 67, 68, 69, 70
        s_o = 71
        s_ob = 75
        s_obase, s_ooff, s_a, s_b, s_c, s_d, s_e, s_fp, s_st, s_fo = range(77, 87)
        a(f'v_lshrrev_b32 v{t0}, 4, v1')
        a(f'v_and_b32 v{t1}, 15, v1')
        a(f'v_and_b32 v{t2}, 1, v{t0}'); a(f'v_lshrrev_b32 v{t3}, 1, v{t0}'); a(f'v_lshl_add_u32 v{t2}, v{t2}, 1, v{t3}')
        a(f'v_lshlrev_b32 v{voffR}, 11, v{t1}'); a(f'v_lshl_add_u32 v{voffR}, v{t2}, 4, v{voffR}')
        def x0():
            a = self.a
            a.extend(sx(s_t, [(s_m, 1 << 18), (s_wave, 1 << 16), (s_g, 128)])); a(f's_add_u32 s{s_t+1}, s{s_t}, 32768')
            if not self.st0 & 16 and self.xd is None: self.pointers()
            for tb in range(2):
                for e in range(2): a(f'buffer_load_dwordx4 {vr(XR+8*tb+4*e,4)}, v{voffR}, {srd(sX)}, s{s_t+tb} offen offset:{64*e}')
        if self.st0 & 16 or self.xd is not None: self.pointers()
        elif not self.st0 & 8: x0()
        a(f's_lshr_b32 s{s_wm}, s{s_wave}, 1'); a(f's_and_b32 s{s_wh}, s{s_wave}, 1')
        a(f'v_mov_b32 v{one}, 1')
        a(f'v_lshl_add_u32 v{voffI}, v{t2}, 4, v{t1}'); a(f'v_lshlrev_b32 v{voffI}, 4, v{voffI}'); a(f'v_mov_b32 v{vst}, v{voffI}')
        a(f'v_lshlrev_b32 v{l16}, 4, v1'); a(f'v_lshlrev_b32 v{l4}, 2, v1')
        a.extend(sx(s_t, [(s_wm, 256)], P_NM))
        a(f'v_lshl_add_u32 v{a_tok}, v{t1}, 2, s{s_t}')
        a(f'v_lshl_add_u32 v{a_row}, v{t0}, 4, s{s_t}')
        a(f'v_and_b32 v{t3}, 31, v1'); a(f'v_lshl_add_u32 v{a_t32}, v{t3}, 2, s{s_t}')
        a.extend(sx(s_t, [(s_wh, 128)], P_CS))
        a(f'v_lshl_add_u32 v{a_csr}, v{t0}, 4, s{s_t}')
        a(f'v_lshl_add_u32 v{a_csv}, v{t1}, 2, s{s_t}')
        a(f's_mov_b32 s{s_stg}, {STG}'); a(f's_mov_b32 s{s_ones}, 0x3f803f80')
        a(f'v_lshrrev_b32 v{t2}, 1, v{t1}'); a(f'v_xor_b32 v{t2}, v{t2}, v{t0}')
        a.extend(sx(s_t, [(s_wm, 8192)], XOFF)); a(f'v_lshl_add_u32 v{t1}, v{t1}, 7, s{s_t}')
        for s in range(2):
            a(f'v_xor_b32 v{t3}, {4*s}, v{t2}'); a(f'v_lshl_add_u32 v{ax+s}, v{t3}, 4, v{t1}')
        a.extend(sx(s_st, [(s_m, 16384), (s_g, 1024), (s_wave, 256)], WS_ST))

        q = 216
        def stats():
            S = []
            for k in range(8):
                for tb in range(2):
                    r = XR + 8*tb + k
                    S += [f'v_dot2_f32_bf16 v{q+2*tb}, s{s_ones}, v{r}, ' + (f'v{q+2*tb}' if k else '0'),
                          f'v_dot2_f32_bf16 v{q+2*tb+1}, v{r}, v{r}, ' + (f'v{q+2*tb+1}' if k else '0')]
            return S + [sw32(q, q+2), sw32(q+1, q+3), pk('add', q, q, q+2), sw16(q, q+1), f'v_add_f32 v{q}, v{q}, v{q+1}']
        st_store = f'buffer_store_dword v{q}, v{l4}, {srd(sWS)}, s{s_st} offen sc1'
        def acc(b, n): return ACC + 4*(6*b + n)
        A2 = 208
        def reads(s, st, slot=0):
            x, w, o = (ax, awq, STG*slot) if slot < 2 else (A2, A2+2, 0)
            X = [f'ds_read_b128 {vr(FX[st]+4*b,4)}, v{x+s} offset:{o+2048*b}' for b in range(4)]
            W = [[f'ds_read_b64_tr_b16 {vr(FW[st]+4*n+2*t,2)}, v{w+(n&1)} offset:{o+(n>>1)*8192+(32*s+4*t)*128}' for t in range(2)] for n in range(6)]
            L = [X[0]] + W[0] + X[1:]
            for n in range(1, 6): L += W[n]
            return L
        def mfma(st, b, n, zero=False):
            C = None if zero else acc(b, n)
            return mf16(acc(b, n), FW[st]+4*n, FX[st]+4*b, C) if n < 4 else mf16(acc(b, n), FX[st]+4*b, FW[st]+4*n, C)
        def mfmas(st, zero=False):
            return [mfma(st, b, n, zero) for n in range(6) for b in (range(4) if not (self.snake and n % 2) else range(3, -1, -1))]
        env = dict(locals())
        a.extend(self.w_frag_addr(awq, s_wh, 0, t0, t1, t2))
        self.epiA(env, 'v')
        if self.st0 & 8: x0()
        a(f'v_mov_b32 v{q}, -1'); a(st_store)
        a(f's_sub_u32 s{s_st}, s{s_st}, 262144')
        a.label('L_first')
        a('s_barrier')
        self.stamp(12)
        if self.st0 & 16: self.cond([f's_cmp_eq_u32 s{s_l}, 0'], x0)
        S = autowait(reads(0, 0) + interleave(mfmas(0, True), reads(1, 1), per=[0]*4 + [1]*20))
        cut = [k for k, t in enumerate(S) if t.startswith('v_mfma')][self.fpos-1] + 1
        a.extend(S[:cut])
        a('s_waitcnt vmcnt(0)')
        self.stamp(11)
        self.cond([f's_cmp_lg_u32 s{s_l}, 0'], lambda: self.flag_set(s_fo, one))
        a.extend(S[cut:])
        a('s_waitcnt lgkmcnt(0)')
        S = [f'v_add_u32 v{A2+k}, {2*STG}, v{ax+k}' for k in range(4)] + [f's_mov_b32 s{s_i}, 0']
        assert awq == ax + 2
        S += sx(s_t, [(s_l, 1 << 22), (s_m, 1 << 18)], WS_OI)
        S += sx(s_obase, [(s_wave, 1 << 16), (s_t, 1)]) + [f's_lshl_b32 s{s_ooff}, s{s_rot2}, 11']
        S += [f's_add_u32 s{s_ob}, s{s_obase}, s{s_ooff}', f's_add_u32 s{s_ob+1}, s{s_ob}, 32768']
        S += sx(s_a, [(s_wm, 1 << 17), (s_g, 2048), (s_wh, 1024), (s_t, 1)])
        S += sx(s_o, [(s_g, 16384), (s_wave, 4096), (s_t, 1)], WS_XI - WS_OI) + [f's_add_u32 s{s_o+k}, s{s_o}, {1024*k}' for k in range(1, 4)]
        S += sx(s_fp, [(s_l, 8192), (s_m, 256)]) + sx(s_fo, [(s_g, 16), (s_wave, 4), (s_fp, 1)]) + sx(s_fo+1, [(s_fo, 32)], WS_RF) + [f's_lshl_b32 s{s_fo}, s{s_fo}, {self.ls}']
        S += sx(s_t, [(s_wm, 8), (s_rot2, 16)]) + [f's_add_u32 s{s_fp}, s{s_fp}, s{s_t}']
        a.extend(interleave(mfmas(1), S, per=[2]*20 + [3]*4))
        if self.lfl == 2: self.cond([f's_cmp_lg_u32 s{s_l}, 0'], lambda: (a(f's_sub_u32 s{s_t+1}, s{s_fo+1}, {4096*32}'), self.flag_set(s_t, one, 2)))
        a(f's_bitcmp1_b32 s{s_l}, 0'); a('s_cbranch_scc1 L_preB')
        self.epiA(env, 's')
        a('s_branch L_pre_done')
        a.label('L_preB')
        self.epiB(env, 's')
        def last():
            a(f's_mov_b64 s[{sOUT}:{sOUT+1}], s[{pOUT}:{pOUT+1}]'); a(f's_mov_b32 s{sOUT+2}, {2048*1024*2}')
            a.extend(sx(s_o, [(s_m, 1 << 18), (s_wave, 1 << 16), (s_g, 128)]))
            a(f's_add_u32 s{s_o+1}, s{s_o}, 64'); a(f's_add_u32 s{s_o+2}, s{s_o}, 32768'); a(f's_add_u32 s{s_o+3}, s{s_o}, {32768+64}')
            a(f'v_mov_b32 v{vst}, v{voffR}')
        self.cond([f's_cmp_eq_u32 s{s_l}, 3'], last)
        a.label('L_pre_done')
        a(f's_add_u32 s{s_st}, s{s_st}, 262144')
        if self.xd is not None: a(f's_cmp_eq_u32 s{s_l}, 0'); a(f's_cselect_b32 s{s_rslot}, 6, 0'); a('s_cbranch_scc1 L_go')
        a.extend(stats()); a(st_store)
        a.label('L_go')
        a('s_barrier')
        self.stamp(1)
        a.extend(reads(0, 0, 1))
        a('s_branch L_q1')
        nb = self.bpos + 1
        def half0(slot):
            if self.prof >= 5:
                a('s_memtime s[92:93]' if self.prof == 5 else 's_memrealtime s[92:93]'); a(f's_lshl_b32 m0, s{s_l}, 4'); a(f's_add_u32 m0, m0, s{s_i}'); a(f's_add_u32 m0, m0, {(slot+2)%3+1}')
            if self.probe and self.probe[1][1] >= 20 and (self.probe[1][1] - 20) % 3 == slot:
                self.cond([f's_cmp_eq_u32 s{s_i}, {(self.probe[1][1] - 21) // 3 * 3}'], lambda: self.stamp(self.probe[1][1]))
            if slot == self.xd:
                a(f's_cmp_lt_u32 s{s_i}, s{s_rslot}'); a('s_cbranch_scc1 L_x0'); a.label('L_x0_back')
                def ev():
                    a = self.a
                    a.label('L_x0'); a(f's_cmp_eq_u32 s{s_i}, 0'); a('s_cbranch_scc0 L_x0_stats')
                    x0(); a('s_branch L_x0_back')
                    a.label('L_x0_stats'); a('s_waitcnt vmcnt(0)'); a.extend(stats()); a(st_store); a('s_branch L_x0_back')
                self.aside(ev)
            a('s_waitcnt lgkmcnt(0)')
            F = reads(1, 1, slot)
            if self.prof >= 5: F = ['v_writelane_b32 v255, s92, m0'] + F
            if slot == 0: F += [f's_add_u32 s{s_i}, s{s_i}, 3', f's_cmp_lt_u32 s{s_i}, 15']
            a.extend(interleave(mfmas(0), F, per=[0]*self.r0 + [1]*24))
            a('s_waitcnt lgkmcnt(0)')
            a.extend(mfmas(1)[:nb]); a('s_barrier')
        def half1(slot):
            R = reads(0, 0, (slot+1) % 3)
            a(R[0]); a.extend(interleave(mfmas(1)[nb:], R[1:], per=[1]*24))
        a('.p2align 6')
        a.label('L_q')
        half1(0)
        a.label('L_q1')
        half0(1); half1(1); half0(2); half1(2); half0(0)
        a('s_cbranch_scc1 L_q')
        a.label('L_tail')
        self.stamp(2)
        a(f's_bitcmp1_b32 s{s_l}, 0'); a('s_cbranch_scc1 L_epiB')
        self.epiA(env, False)
        a('s_branch L_ophase')
        a.label('L_epiB')
        self.epiB(env, False)
        a.label('L_ophase')
        PD = self.pd; NR = PD + 1
        OA, OW, awo, vf, RING = 128, [160, 176], 192, 196, 32
        assert RING + 8*NR <= 128
        u0, u1, u2, vrf, vot, vxw = 197, 198, 199, 204, 205, 206
        a(f'v_mov_b32 v{u0}, {P_MODE}'); a(f'ds_read_b32 v{u0}, v{u0}')
        def oacc(tb, nb): return OA + 16*tb + 4*nb
        for k in range(4):
            a(sw16(XR+4*k, XR+4*k+2)); a(sw16(XR+4*k+1, XR+4*k+3))
        a('s_waitcnt lgkmcnt(0)'); a(f'v_readfirstlane_b32 s{s_fast}, v{u0}')
        a(f's_xor_b32 s{s_t}, s{s_fp}, 128'); a.extend(sx(s_e, [(s_t, 32)], WS_RF))
        a.extend(self.flag_addr(vrf, u1, None, remote=True))
        a.extend(self.flag_addr(vf, u1, s_fp))
        s_fq = s_d
        a(f's_cmp_eq_u32 s{s_fast}, 1'); a(f's_cselect_b32 s{s_fq}, s{s_fp}, {BIG}')
        for r in range(16):
            a(f'v_lshlrev_b32 v{OA+2*r}, 16, v{XR+r}'); a(f'v_and_b32 v{OA+2*r+1}, 0xffff0000, v{XR+r}')
        def oreads(h):
            return [f'ds_read_b64_tr_b16 {vr(OW[h&1]+4*nb+2*t,2)}, v{awo+nb} offset:{(h&15)*4096+512*t}' for nb in range(4) for t in range(2)]
        a('s_waitcnt vmcnt(0)')
        self.stamp(8)
        self.flag_set(s_fo, one, 1)
        a(self.flag_load(s_fq, vf, u0, self.pf))
        self.flag_set(s_fo, one, 2)
        a.extend(self.w_frag_addr(awo, None, L_WO, vxw, u1, u2, nb_list=(0, 1, 2, 3)))
        if not self.bw: a('s_barrier'); a.extend(oreads(0))
        def next_consts():
            a(f's_cmp_eq_u32 s{s_wh}, 0'); a('s_cselect_b64 vcc, -1, 0')
            for k in range(2): a(f'v_cndmask_b32 v{awq+k}, v{awo+2+k}, v{awo+k}, vcc')
            for k in range(2): a(f'v_subrev_u32 v{awq+k}, {L_WO}, v{awq+k}')
            a.extend(sx(s_t, [(s_wm, 8192)], XOFF)); a(f'v_add_u32 v{ax}, s{s_t}, v{l16}'); a(f'v_add_u32 v{ax+1}, 1024, v{ax}')
            a.extend(sx(s_t, [(s_wave, 4096)], XOFF)); a(f'v_add_u32 v{vxw}, s{s_t}, v{voffI}')
            a(f's_bitcmp1_b32 s{s_l}, 0'); a('s_cbranch_scc1 L_nextA')
            self.epiB(env, 'v')
            a('s_branch L_next_done')
            a.label('L_nextA')
            self.cond([f's_cmp_lg_u32 s{s_l}, 3'], lambda: self.epiA(env, 'v'))
            a.label('L_next_done')
        if not self.vpos: next_consts()
        self.flag_wait(s_fp, vf, u0, 4, pre='s_waitcnt vmcnt(1) lgkmcnt(0)', own=True)
        self.stamp(9)
        def oload(h, tb):
            L = [f'buffer_load_dwordx4 {vr(RING+8*(h%NR)+4*tb,4)}, v{l16}, {srd(sWS)}, s{s_ob+tb} offen offset:{1024*(h&3)} sc1']
            if h & 3 == 3 and h < 31:
                if tb == 0: L += [f's_add_u32 s{s_ooff}, s{s_ooff}, 4096', f's_and_b32 s{s_ooff}, s{s_ooff}, 0x7fff', f's_add_u32 s{s_ob}, s{s_obase}, s{s_ooff}']
                else: L += [f's_add_u32 s{s_ob+1}, s{s_ob}, 32768']
            return L
        S = []
        for h in range(PD):
            S += oload(h, 0) + oload(h, 1)
            if self.bw and h == 3: S += ['s_barrier'] + oreads(0)
        S.append('s_nop 2')
        hc = self.hc or 15 - PD
        DL = self.dl; assert DL <= PD and DL % 2 == 0
        UN = [(p, nb) for p in range(32 - DL) for nb in range(4)] + [(p, nb) for e in range(2) for p in range(32 - DL, 32) for nb in (2*e, 2*e+1)]
        def out(k4):
            return [cvt(XR+4*k4+k, OA+8*k4+2*k, OA+8*k4+2*k+1) for k in (0, 2, 1, 3)], [sw16(XR+4*k4, XR+4*k4+2), sw16(XR+4*k4+1, XR+4*k4+3)], [
                    f'buffer_store_dwordx4 {vr(XR+4*k4,4)}, v{vst}, {srd(sOUT)}, s{s_o+k4} offen sc1', f'ds_write_b128 v{vxw}, {vr(XR+4*k4,4)} offset:{1024*k4}']
        early = (out(0)[0] + out(2)[0][:2] + out(0)[1] + out(2)[0][2:] + out(0)[2][:1] + out(2)[1] + out(0)[2][1:] + out(2)[2]) if DL else []
        for h in range(32):
            if h == 15: S += [f'v_add_u32 v{awo+nb}, 0x10000, v{awo+nb}' for nb in range(4)]
            for k in range(8):
                u, tb = 4*h + k//2, k % 2
                p, nb = UN[u]
                S.append(mf16(oacc(tb, nb), OW[0]+4*(u%8), RING+8*(p%NR)+4*tb, oacc(tb, nb)))
                if u + 4 < 128:
                    p2, nb2 = UN[u+4]
                    S.append(f'ds_read_b64_tr_b16 {vr(OW[0]+4*((u+4)%8)+2*tb,2)}, v{awo+nb2} offset:{(p2&15)*4096+512*tb}')
                for j in range(2):
                    if k == self.opos[j] and h + PD < 32 and not (h + PD >= 16 and h <= hc): S += oload(h+PD, j)
                if 2*u + tb >= 256 - 4*DL + 2:
                    n = 2
                    S += early[:n]; early = early[n:]
            if h == self.hq: S.append(self.flag_load(s_e, vrf, u1))
            if h == hc:
                S += [f'v_cmp_eq_u32 vcc, 0, v{u1}', 's_nop 1']
                for p in range(16, hc + PD + 1): S += oload(p, 0) + oload(p, 1)
            if self.fine == 4 and h in self.oh: S.append(f's_nop {4 + self.oh.index(h)}')
            if h == self.bm: S.append('s_barrier')
        S = autowait(S + early); cut0 = S.index('s_nop 2'); cut = S.index('s_nop 1'); S.pop(cut)
        a.extend(S[:cut0])
        if self.vpos: next_consts()
        def emit(L):
            for t in L:
                if t in ('s_nop 4', 's_nop 5'): self.stamp(13 + int(t[-1]) - 4)
                else: a(t)
        emit(S[cut0+1:cut])
        self.flag_wait(s_e, vrf, u1, 9, pre=True, nap=self.nap, checked=True)
        emit(S[cut:])
        self.stamp(10)
        self.sw(sum((sum(out(k4), []) for k4 in ((1, 3) if DL else (0, 2, 1, 3))), []), crit=lambda t: t.startswith('buffer'))
        a(f's_cmp_eq_u32 s{s_l}, 3'); a('s_cbranch_scc1 L_fin')
        a(f's_add_u32 s{s_fo}, s{s_fo}, {4096 << self.ls}'); a(f's_add_u32 s{s_fo+1}, s{s_fo+1}, {4096*32}')
        a(f's_add_u32 s{s_l}, s{s_l}, 1')
        a('s_waitcnt lgkmcnt(0)')
        a('s_branch L_first')

    def epiA(self, E, pre):
        a = self.a
        acc = E['acc']; a_tok, a_row, a_t32, a_csr, a_csv, l16, l4 = (E[k] for k in ('a_tok', 'a_row', 'a_t32', 'a_csr', 'a_csv', 'l16', 'l4'))
        s_wm, s_wh, s_a, s_b, s_c, s_d, s_e = (E[k] for k in ('s_wm', 's_wh', 's_a', 's_b', 's_c', 's_d', 's_e'))
        PK = [128, 144]; EP, KV0, ZA, NR = 160, 176, 192, 208
        wphi, nml, c32, csv = 224, 232, 236, 238
        SEL = 240; ZK, ZS = ZA, ZA + 8
        a_phi, a_w, a_r0, a_r1, a_z, x_w, x_r = range(248, 255)
        csk = EP; csq = NR
        nmr = [KV0, EP+8, NR, NR+8]
        if pre == 'v':
            u0, u1, u2, u3, u4 = range(208, 213)
            S = [f'v_lshrrev_b32 v{u0}, 5, v1', f'v_bfe_u32 v{u1}, v1, 2, 2', f'v_lshl_add_u32 v{u1}, v{u0}, 3, v{u1}',
                 f'v_bfe_u32 v{u2}, v1, 4, 1', f'v_and_b32 v{u3}, 3, v1', f'v_lshlrev_b32 v{u4}, 3, v{u3}', f'v_lshl_add_u32 v{u2}, v{u2}, 5, v{u4}']
            S += sx(s_t, [(s_wh, 2048)], P_PHI) + [f'v_lshl_add_u32 v{u4}, v{u1}, 6, v{u2}', f'v_add_u32 v{a_phi}, s{s_t}, v{u4}']
            S += [f's_mul_i32 s{s_t+2}, s{s_wave}, {SCR}',
                  f'v_mul_u32_u24 v{u1}, 136, v{u1}', f'v_add3_u32 v{u1}, v{u1}, v{u2}, s{s_t+2}',
                  f's_lshl_b32 s{s_t+1}, s{s_wm}, 6', f'v_add_u32 v{a_r0}, s{s_t+1}, v{u1}',
                  f's_xor_b32 s{s_t+3}, s{s_t+1}, 64', f'v_add_u32 v{a_r1}, s{s_t+3}, v{u1}',
                  f'v_and_b32 v{u4}, 31, v1', f'v_mul_u32_u24 v{u4}, 136, v{u4}', f'v_lshl_add_u32 v{u4}, v{u0}, 3, v{u4}', f'v_add_u32 v{a_w}, s{s_t+2}, v{u4}',
                  f'v_add_u32 v{x_w}, s{s_t+2}, v{l16}', f's_xor_b32 s{s_t}, s{s_wave}, 2', f's_mul_i32 s{s_t}, s{s_t}, {SCR}', f'v_add_u32 v{x_r}, s{s_t}, v{l16}']
            S += [f'v_lshrrev_b32 v{u4}, 4, v1', f'v_xor_b32 v{u4}, v{u4}, v1', f'v_and_b32 v{u4}, 1, v{u4}', f'v_cmp_eq_u32 vcc, 0, v{u4}', f'v_mov_b32 v{u4}, 0x3f803f80',
                  f'v_cndmask_b32 v{SEL}, 0, v{u4}, vcc', f'v_mov_b32 v{SEL+1}, v{SEL}', f'v_mov_b64 {vr(SEL+2,2)}, {vr(SEL,2)}']
            S += [f'v_and_b32 v{u0}, 18, v1', f'v_lshlrev_b32 v{u0}, 1, v{u0}', f'v_and_or_b32 v{u0}, v1, 8, v{u0}', f'v_and_b32 v{u1}, 4, v1',
                  f'v_lshl_or_b32 v{u0}, v{u1}, 2, v{u0}', f'v_and_b32 v{u1}, 33, v1', f'v_lshl_or_b32 v{a_z}, v{u1}, 25, v{u0}',
                  f'v_lshl_or_b32 v{a_z}, v{u1}, 30, v{a_z}']
            a.extend(S)
            return
        if pre == 's':
            S = sx(s_t, [(s_l, 16), (s_g, 2), (s_wh, 1)])
            S += sx(s_d, [(s_t, 65536), (s_wm, 32768), (s_m, 2048)], WS_KVP) + sx(s_e, [(s_t, 2048), (s_m, 128), (s_wm, 64)], WS_ZP)
            S += sx(s_b, [(s_t, 128)], WS_ZF) + sx(s_c, [(s_t, 4096)], WS_KVF)
            a.extend(S)
            return
        S = []
        for b in range(4): S.append(f'ds_read_b32 v{nml+b}, v{a_tok} offset:{64*b}')
        for nb in range(2): S.append(f'ds_read_b128 {vr(csk+4*nb,4)}, v{a_csr} offset:{256+64*nb}')
        for u in range(2):
            for t in range(2): S.append(f'ds_read_b64_tr_b16 {vr(wphi+4*u+2*t,2)}, v{a_phi} offset:{(16*t+4*u)*64}')
        for nb in range(2): S.append(f'ds_read_b32 v{csv+nb}, v{a_csv} offset:{512+64*nb}')
        for b in range(4):
            S.append(f'ds_read_b128 {vr(nmr[b],4)}, v{a_row} offset:{64*b}')
            S.append(f'ds_read_b128 {vr(nmr[b]+4,4)}, v{a_row} offset:{512+64*b}')
            if b == 0:
                for Tt in range(2): S.append(f'ds_read_b32 v{c32+Tt}, v{a_t32} offset:{512+128*Tt}')
        def qk_prep(n0, cs):
            L = []
            for b in range(4):
                for k in range(4): L.append(pk('fma', acc(b, n0)+2*k, cs+2*k, ('b', nml+b), acc(b, n0)+2*k))
                for k in range(4): L.append(cvt(acc(b, n0)+k, acc(b, n0)+2*k, acc(b, n0)+2*k+1))
            for Tt in range(2):
                for k in range(4): L.append(sw16(acc(2*Tt, n0)+k, acc(2*Tt+1, n0)+k))
                L += [mf32(PK[Tt], wphi, acc(2*Tt, n0)), mf32(PK[Tt], wphi+4, acc(2*Tt+1, n0), PK[Tt])]
            return L
        def vprep(b):
            r = acc(b, 4); P, C = [], []
            for nb in range(2):
                for p in range(2): P.append(pk('fma', r+4*nb+2*p, nmr[b]+2*p, ('b', csv+nb), r+4*nb+2*p))
            for nb in range(2):
                for p in range(2): P.append(pk('mul', r+4*nb+2*p, r+4*nb+2*p, nmr[b]+4+2*p))
            for k in range(4): C.append(cvt(r+k, r+2*k, r+2*k+1))
            return P, C, [sw16(r, r+2), sw16(r+1, r+3)]
        def softmax(Tt):
            x = PK[Tt]; c = c32 + Tt
            ta, tb = ((acc(2, 3), acc(3, 3)), (acc(2, 2), acc(3, 2)))[Tt]
            mx, mn, bp, bm = ta, ta+1, tb, tb+1
            L = [f'v_max3_f32 v{mx}, v{x}, v{x+1}, v{x+2}', f'v_max3_f32 v{mn}, -v{x}, -v{x+1}, -v{x+2}']
            for k in range(3, 15, 2):
                L += [f'v_max3_f32 v{mx}, v{mx}, v{x+k}, v{x+k+1}', f'v_max3_f32 v{mn}, v{mn}, -v{x+k}, -v{x+k+1}']
            L += [f'v_max_f32 v{mx}, v{mx}, v{x+15}', f'v_max_f32 v{mn}, v{mn}, -v{x+15}']
            L += [sw32(mx, mn), f'v_max_f32 v{mx}, v{mx}, v{mn}', f'v_mul_f32 v{bm}, -v{mx}, v{c}', f'v_mov_b32 v{bp}, v{bm}', sw32(bp, bm)]
            parts = [L]; L = []
            for k in range(0, 16, 2): L.append(pk('fma', EP+k, x+k, ('b', c), ('b', bp)))
            for k in range(0, 16, 2): L.append(pk('fma', x+k, x+k, ('b', c), ('b', bm), neg=[1, 0, 0]))
            parts.append(L); L = []
            for k in range(16): L.append(f'v_exp_f32 v{EP+k}, v{EP+k}')
            for k in range(16): L.append(f'v_exp_f32 v{x+k}, v{x+k}')
            parts.append(L); L = []
            sp, sm = ta, ta+2
            r1, r2 = tb+2, tb+3
            L += [pk('add', sp, EP, EP+2), pk('add', sm, x, x+2)]
            for k in range(4, 16, 2): L += [pk('add', sp, sp, EP+k), pk('add', sm, sm, x+k)]
            L += [f'v_add_f32 v{sp}, v{sp}, v{sp+1}', f'v_add_f32 v{sm}, v{sm}, v{sm+1}', sw32(sp, sm), f'v_add_f32 v{sp}, v{sp}, v{sm}',
                  f'v_rcp_f32 v{r2}, v{sp}', f'v_mov_b32 v{r1}, v{r2}', sw32(r1, r2)]
            for k in range(0, 16, 2): L.append(pk('mul', x+k, x+k, ('b', r2)))
            for k in range(8): L.append(cvt(x+k, x+2*k, x+2*k+1))
            for k in range(0, 16, 2): L.append(pk('mul', EP+k, EP+k, ('b', r1)))
            for k in range(8): L.append(cvt(x+8+k, EP+2*k, EP+2*k+1))
            return parts + [L]
        FR = [[acc(0, 2), acc(0, 3)], [acc(1, 2), acc(1, 3)]]
        def to_lds(x):
            return [f'ds_write_b64 v{a_w}, {vr(x+8*(1-sg)+2*j,2)} offset:{64*sg+16*j}' for sg in (1, 0) for j in range(4)]
        def frags():
            return [f'ds_read_b64_tr_b16 {vr(FR[k][u]+2*tt,2)}, v{(a_r0, a_r1)[k]} offset:{(16*u+4*tt)*136}' for k in (1, 0) for u in range(2) for tt in range(2)]
        KV1 = PK[0]
        def kvm(Tt):
            L = []
            for k, K, Z in ((1, KV1, ZS), (0, KV0, ZK)):
                for u in range(2): L.append(mf32(K, FR[k][u], acc(2*Tt+u, 4), None if (Tt == 0 and u == 0) else K))
                for u in range(2): L.append(mf16(Z, SEL, FR[k][u], None if (Tt == 0 and u == 0) else Z))
            return L
        sc = sched if self.sch else (lambda L: L)
        K = qk_prep(2, csk); isM = lambda t: t.startswith('v_mfma')
        VP_ = [vprep(b) for b in range(4)]
        sm0, sm1 = softmax(0), softmax(1)
        mfma = E['mfma']
        TM = [mfma(1, b, n) for b in range(4) for n in (2, 3)] + [mfma(1, b, n) for b in range(4) for n in (4, 5)] + [mfma(1, b, 1) for b in range(4)] + [mfma(1, b, 0) for b in range(self.bpos+1, 4)]
        K01 = []
        for b in range(2):
            K01 += [f'v_fmac_f32 v{acc(b,2)+k}, v{csk+k}, v{nml+b}' for k in range(8)] + K[8*b+4:8*b+8]
        S = interleave(TM, S + K01, per=[2]*24)
        S += sc([t for t in K[16:] if not isM(t)] + [f'v_mul_f32 v{c32+Tt}, {f2u(LOG2E)}, v{c32+Tt}' for Tt in range(2)] + VP_[0][0] + VP_[1][0])
        def cutA(n, k):
            nonlocal S
            if self.fine == n: self.aw(S + ['s_waitcnt lgkmcnt(0)']); S = []; self.stamp(k)
        cutA(1, 12)
        S += sc([t for t in K if isM(t)] + VP_[0][1] + VP_[1][1] + VP_[0][2] + VP_[1][2] + sm0[0])
        cutA(1, 13)
        def mixed(sm, extra):
            F, X, A = sm[1], sm[2], sm[3][:14]
            A = A[0::2] + A[1::2]; extra = list(extra); L = F[:2]
            for k in range(16):
                L += [X[2*k]] + F[k+2:k+3] + [X[2*k+1]]
                j = k - 2 if k < 9 else k - 3
                if k >= 2 and k != 9: L.append(A[j])
                if extra: L.append(extra.pop(0))
            return L + extra + A[13:]
        if self.mix: S += mixed(sm0, sm1[0][:16]) + sc(sm1[0][16:] + sm0[3][14:] + to_lds(PK[0]) + frags())
        else: S += sc(sm0[1] + sm0[2] + sm1[0] + sm0[3] + to_lds(PK[0]) + frags())
        cutA(1, 14)
        if self.mix: S += sm1[1][:2] + interleave(sm1[2][:14], sm1[1][2:], per=[1]*14) + interleave(kvm(0), sm1[2][14:], per=[3, 3, 1, 1, 3, 3, 1, 3])
        else: S += sm1[1] + interleave(kvm(0), sm1[2], per=[3, 3, 1, 1, 3, 3, 1, 1])
        cutA(2, 12)
        S += sc(sm1[3] + to_lds(PK[1]) + frags() + sum((VP_[b][k] for k in range(3) for b in (2, 3)), []), lambda t: t.startswith('ds_read'))
        cutA(2, 13)
        M = kvm(1)
        X = [f'ds_write_b128 v{x_w}, {vr(KV1+4*k,4)} offset:{1024*k}' for k in range(4)]
        hi16 = ['s_mov_b32 vcc_lo, 0xffff0000', 's_mov_b32 vcc_hi, 0xffff0000']
        S += M[0:2] + hi16 + M[2:6] + X + [f'v_cndmask_b32 v{ZS}, v{ZS}, v{ZS+1}, vcc', f'ds_write_b32 v{x_w}, v{ZS} offset:4096'] + M[6:8]
        cutA(2, 14)
        self.aw(S); S = []
        S += ['s_waitcnt lgkmcnt(0)', 's_barrier']
        S.append(f'ds_read_b32 v{csv}, v{x_r} offset:4096')
        for k in range(4): S.append(f'ds_read_b128 {vr(EP+4*k,4)}, v{x_r} offset:{1024*k}')
        add = [pk('add', KV0+2*k, KV0+2*k, EP+2*k) for k in range(8)]
        cv = [cvt(KV0+8*(k//4)+k%4, KV0+2*k, KV0+2*k+1) for k in range(8)]
        st = [f'buffer_store_dwordx4 {vr(KV0+8*u,4)}, v{l16}, {srd(sWS)}, s{s_d} offen offset:{1024*u} sc1' for u in range(2)]
        S += [f'v_cndmask_b32 v{ZK}, v{ZK}, v{ZK+1}, vcc', f'v_add_f32 v{ZK}, v{ZK}, v{csv}'] + add[:2]
        S += [f'v_mov_b32_dpp v{ZK+3}, v{ZK} quad_perm:[1,0,3,2] row_mask:0xf bank_mask:0xf'] + add[2:4] + cv[:4] + st[:1] + [cvt(ZK, ZK, ZK+3)]
        S += add[4:] + [f'buffer_store_dword v{ZK}, v{a_z}, {srd(sWS)}, s{s_e} offen sc1'] + cv[4:] + st[1:]
        self.aw(S); S = []
        if not self.yw: a('s_barrier')
        self.stamp(3)
        u3, u4 = ZA + 4, ZA + 5
        for nb in range(2): S.append(f'ds_read_b128 {vr(csq+4*nb,4)}, v{a_csr} offset:{64*nb}')
        S += qk_prep(0, csq) + sum(softmax(0) + softmax(1), [])
        S += [f'v_lshrrev_b32 v{u3}, 5, v1', f'v_and_b32 v{u4}, 2, v1', f'v_lshlrev_b32 v{u4}, 5, v{u4}', f'v_lshl_add_u32 v{a_z}, v{u3}, 4, v{u4}',
              f'v_not_b32 v{u4}, v{SEL}', f'v_and_b32 v{u4}, 0x20000000, v{u4}', f'v_lshl_or_b32 v{a_z}, v{u4}, 1, v{a_z}',
              f'v_bfe_u32 v{u4}, v1, 4, 1', f'v_lshlrev_b32 v{u4}, 15, v{u4}', f'v_lshl_add_u32 v{u4}, v{u3}, 8, v{u4}',
              f'v_and_b32 v{u3}, 15, v1', f'v_lshl_add_u32 v{a_w}, v{u3}, 4, v{u4}', f's_add_u32 s{s_d}, s{s_a}, 65536']
        if self.yw:
            S = sched(S); S.insert(self.yw, 's_barrier'); self.aw(S); S = []
        else: self.sw(S, name='A q-part'); S = []
        self.stamp(4)
        a('s_barrier')
        self.stamp(7)
        KF = KV0; ZF = EP
        if self.b2: a(f's_sleep {self.b2}')
        self.ll_wait(([f's_sleep {self.n2}'] if self.n2 else []) + [f'buffer_load_dwordx4 {vr(ZF+4*u,4)}, v{a_z}, {srd(sWS)}, s{s_b} offen offset:{32*u} sc1' for u in range(2)] +
                     [f'buffer_load_dwordx4 {vr(KF+4*k,4)}, v{l16}, {srd(sWS)}, s{s_c} offen offset:{1024*k} sc1' for k in range(4)],
                     list(range(ZF, ZF+8)) + list(range(KF, KF+16)), u3, u4, 5)
        self.stamp(5)
        ACC = E['ACC']
        den, num, rcp, fin = [], [], [], []
        for Tt in range(2):
            N, DP, DM = ACC + 48*Tt, ACC + 48*Tt + 16, ACC + 48*Tt + 32
            x = PK[Tt]
            den.append([mf16(DP, ZF, x+8), mf16(DM, ZF, x), mf16(DP, ZF+4, x+12, DP), mf16(DM, ZF+4, x+4, DM)])
            num.append([mf32(N, KF, x+8), mf32(N, KF+4, x+12, N), mf32(N, KF+8, x, N), mf32(N, KF+12, x+4, N)])
            rcp.append([f'v_add_f32 v{DP}, v{DP}, v{DM+2}', f'v_add_f32 v{DP+1}, v{DP+1}, v{DM+3}', f'v_cndmask_b32 v{DP}, v{DP}, v{DP+1}, vcc',
                        f'v_add_f32 v{DP}, {f2u(1e-6)}, v{DP}', f'v_rcp_f32 v{DP}, v{DP}'])
            L = []
            for p in range(2):
                R = [(N + 4*(p + 2*jj) + 2*k, DM+4+4*p+2*jj+k) for jj in range(2) for k in range(2)]
                for r, d in R:
                    if Tt == 0: L += [f'v_mul_f32 v{r}, v{DP}, v{r}', f'v_mul_f32 v{r+1}, v{DP}, v{r+1}']
                    else: L.append(pk('mul', r, r, ('b', DP)))
                L += [cvt(d, r, r+1) for r, d in R]
                L.append(f'buffer_store_dwordx4 {vr(DM+4+4*p,4)}, v{a_w}, {srd(sWS)}, s{(s_a, s_d)[Tt]} offen offset:{512*p} sc1')
            fin.append(L)
        a.extend(den[0] + num[0] + interleave(den[1], hi16 + rcp[0], per=[2, 2, 2, 1]))
        a.extend(interleave(num[1], fin[0][:13] + rcp[1] + fin[0][13:], per=[6, 6, 6, 13]) + fin[1])
        self.stamp(6)

    def epiB(self, E, pre):
        a = self.a
        acc = E['acc']; a_tok, a_row, a_csr, a_csv, l16 = (E[k] for k in ('a_tok', 'a_row', 'a_csr', 'a_csv', 'l16'))
        s_wm, s_wh, s_a, s_b, s_c, s_d, s_e = (E[k] for k in ('s_wm', 's_wh', 's_a', 's_b', 's_c', 's_d', 's_e'))
        BI, BI0, MK, a_h = 236, 244, 248, 252
        if pre == 'v':
            t1, t2, t3 = 208, 209, 210
            S = [f'v_and_b32 v{t1}, 15, v1', f'v_lshrrev_b32 v{t2}, 4, v1', f'v_lshlrev_b32 v{t2}, 2, v{t2}', f'v_sub_u32 v{t1}, v{t1}, v{t2}',
                 f'v_mov_b32 v{t3}, {f2u(-1e30)}']
            for blk in range(2):
                for i in range(4):
                    S += [f'v_add_u32 v{t2}, {(16 if blk == 0 else 0) - i}, v{t1}', f'v_and_b32 v{t2}, -15, v{t2}', f'v_cmp_eq_u32 vcc, 0, v{t2}',
                          f'v_cndmask_b32 v{BI+4*blk+i}, v{t3}, 0, vcc']
                    if i % 2 == 0: S += [f'v_cndmask_b32 v{MK+2*blk+i//2}, 0, -1, vcc', f'v_lshrrev_b32 v{MK+2*blk+i//2}, 16, v{MK+2*blk+i//2}']
                    else: S += [f'v_cndmask_b32 v{t2}, 0, -1, vcc', f'v_lshl_or_b32 v{MK+2*blk+i//2}, v{t2}, 16, v{MK+2*blk+i//2}']
            S += [f's_or_b32 s{s_t}, s{s_m}, s{s_wm}', 's_cselect_b64 vcc, -1, 0']
            for i in range(4): S.append(f'v_cndmask_b32 v{BI0+i}, v{t3}, v{BI+i}, vcc')
            S += sx(s_t, [(s_wh, 2048)], P_PHI) + [f'v_add_u32 v{a_h}, s{s_t}, v{l16}']
            S += [f's_add_u32 s{s_t+1}, s{s_t}, 1024', f's_cmp_eq_u32 s{s_wm}, 0', f's_cselect_b32 s{s_t}, s{s_t}, {L_P + 7168}', f's_cselect_b32 s{s_t+1}, s{s_t+1}, {L_P + 7168}',
                  f'v_add_u32 v{a_h+1}, s{s_t}, v{l16}', f'v_add_u32 v{a_h+2}, s{s_t+1}, v{l16}']
            a.extend(S)
            return
        if pre == 's':
            S = sx(s_b, [(s_l, 1 << 19), (s_m, 1 << 16), (s_g, 4096), (s_wh, 2048)], WS_HALO - (1 << 19))
            S += [f's_add_u32 s{s_c}, s{s_b}, 65536', f's_cmp_eq_u32 s{s_m}, 15', f's_cselect_b32 s{s_c}, {BIG}, s{s_c}',
                  f's_cmp_eq_u32 s{s_wm}, 0', f's_cselect_b32 s{s_c}, {BIG}, s{s_c}', f's_cselect_b32 s{s_b}, s{s_b}, {BIG}',
                  f's_cmp_eq_u32 s{s_m}, 0', f's_cselect_b32 s{s_b}, {BIG}, s{s_b}', f's_add_u32 s{s_d}, s{s_a}, 65536']
            a.extend(S)
            return
        nr = [160, 168, 176, 208]
        nml, rsl, csk, csv, csq, HB = 216, 220, 224, 232, 128, 136
        VP = [184, 196]
        U, M, t1, t2 = 144, 152, 156, 157
        S = []
        for b in (3, 0, 1, 2):
            S += [f'ds_read_b32 v{nml+b}, v{a_tok} offset:{64*b}', f'ds_read_b32 v{rsl+b}, v{a_tok} offset:{512+64*b}']
            if b == 3:
                for nb in range(2): S.append(f'ds_read_b128 {vr(csk+4*nb,4)}, v{a_csr} offset:{768+256+64*nb}')
                for nb in range(2): S.append(f'ds_read_b32 v{csv+nb}, v{a_csv} offset:{768+512+64*nb}')
            S += [f'ds_read_b128 {vr(nr[b],4)}, v{a_row} offset:{64*b}', f'ds_read_b128 {vr(nr[b]+4,4)}, v{a_row} offset:{512+64*b}']
        for nb in range(2): S.append(f'ds_read_b128 {vr(csq+4*nb,4)}, v{a_csr} offset:{768+64*nb}')
        def kprep(b):
            r = acc(b, 2); L = []
            for k in range(4): L.append(pk('fma', r+2*k, csk+2*k, ('b', nml+b), r+2*k))
            for k in range(4): L.append(pk('mul', r+2*k, r+2*k, ('b', rsl+b)))
            for k in range(4): L.append(cvt(r+k, r+2*k, r+2*k+1))
            return L
        def vprep(b):
            r = acc(b, 4); L = []
            for nb in range(2):
                for p in range(2): L.append(pk('fma', r+4*nb+2*p, nr[b]+2*p, ('b', csv+nb), r+4*nb+2*p))
            for nb in range(2):
                for p in range(2): L.append(pk('mul', r+4*nb+2*p, r+4*nb+2*p, nr[b]+4+2*p))
            for nb in range(2):
                for p in range(2):
                    if b == 3: L.append(cvt(acc(3, 3)+2*nb+p, r+4*nb+2*p, r+4*nb+2*p+1))
                    else: L.append(cvt(VP[nb]+2+2*b+p, r+4*nb+2*p, r+4*nb+2*p+1))
            return L
        def qprep(b):
            r = acc(b, 0); L = []
            for k in range(4): L.append(pk('fma', r+2*k, csq+2*k, ('b', nml+b), r+2*k))
            for k in range(4): L.append(cvt(r+k, r+2*k, r+2*k+1))
            return L
        mfma = E['mfma']
        TM = [mfma(1, b, n) for b in (3, 0, 1, 2) for n in (2, 3, 4, 5)] + [mfma(1, b, 1) for b in range(4)] + [mfma(1, b, 0) for b in range(self.bpos+1, 4)]
        rk, rv = acc(3, 2), acc(3, 4)
        P3 = [f'v_fmac_f32 v{rk+k}, v{csk+k}, v{nml+3}' for k in range(8)] + [f'v_mul_f32 v{rk+k}, v{rsl+3}, v{rk+k}' for k in range(8)] + kprep(3)[8:]
        P3 += [f'v_fmac_f32 v{rv+k}, v{nr[3]+k%4}, v{csv+k//4}' for k in range(8)] + [f'v_mul_f32 v{rv+k}, v{nr[3]+4+k%4}, v{rv+k}' for k in range(8)] + vprep(3)[8:]
        T0 = interleave(TM, S[:14] + P3, per=[2]*24); S = S[14:]
        for k in range(2): T0.append(f'buffer_store_dwordx4 {vr(acc(3,2)+4*k,4)}, v{l16}, {srd(sWS)}, s{s_c} offen offset:{1024*k} sc1')
        for k in range(2): S.append(f'ds_write_b128 v{a_h+1+k}, {vr(acc(3,2)+4*k,4)}')
        for nb in range(2): S.append(f'v_mov_b64 {vr(VP[nb]+8,2)}, {vr(acc(3,3)+2*nb,2)}')
        for b in range(3): S += kprep(b) + vprep(b)
        for b in range(4): S += qprep(b)
        for b in range(4): S.append(f'v_mul_f32 v{rsl+b}, {f2u(LOG2E * 32 ** -0.5)}, v{rsl+b}')
        def logits(b):
            s = nr[b]
            L = [mf16(s, HB if b == 0 else acc(b-1, 2), acc(b, 0), BI0 if b == 0 else BI), mf16(s+4, acc(b, 2), acc(b, 0), BI+4)]
            for p in range(2):
                L += [f'v_max3_f32 v{U+2*b+p}, v{s+2*p}, v{s+2*p+1}, v{s+4+2*p}', f'v_max_f32 v{U+2*b+p}, v{U+2*b+p}, v{s+5+2*p}',
                      f'v_mul_f32 v{U+2*b+p}, v{rsl+b}, v{U+2*b+p}']
            L.append(f'v_max_f32 v{M+b}, v{U+2*b}, v{U+2*b+1}')
            return L
        for b in (1, 2, 3): S += logits(b)
        L0 = logits(0); S.append(L0.pop(1))
        self.aw(T0 + (sched(S) if self.sch else S)); S = []
        HL = [f'buffer_load_dwordx4 {vr(HB+4*k,4)}, v{l16}, {srd(sWS)}, s{s_b} offen offset:{1024*k} sc1' for k in range(2)]
        L1, L3 = self.lab('hg'), self.lab('hd')
        a(f's_cmp_eq_u32 s{s_wm}, 0'); a(f's_cbranch_scc0 {L1}')
        a.extend(HL)
        a.label(L1)
        a('s_waitcnt lgkmcnt(0)'); a('s_barrier')
        a(f's_cbranch_scc1 {L3}')
        for k in range(2): a(f'ds_read_b128 {vr(HB+4*k,4)}, v{a_h} offset:{1024*k}')
        a.label(L3)
        self.stamp(3)
        def allred(op, mid):
            L = [sw32(M, M+2), sw32(M+1, M+3), f'{op} v{M}, v{M}, v{M+2}', f'{op} v{M+1}, v{M+1}, v{M+3}', sw16(M, M+1), f'{op} v{M+1}, v{M}, v{M+1}']
            L += mid
            L += [f'v_mov_b32 v{M}, v{M+1}', sw16(M, M+1), f'v_mov_b64 {vr(M+2,2)}, {vr(M,2)}', sw32(M, M+2), sw32(M+1, M+3)]
            return L
        def pv(b):
            P = nr[b]; L = []
            for p in range(2): L.append(cvt(U+2*b+p, U+2*b+p, U+2*b+p))
            for blk in range(2):
                for p in range(2): L.append(f'v_and_b32 v{P+2*blk+p}, v{U+2*b+p}, v{MK+2*blk+p}')
            return L + [mf16(acc(b, 4)+4*db, VP[db]+2*b, P) for db in range(2)]
        def put(b):
            O = acc(b, 4)
            return [cvt(O+k, O+2*k, O+2*k+1) for k in range(4)] + [f'buffer_store_dwordx4 {vr(O,4)}, v{l16}, {srd(sWS)}, s{(s_a, s_e, s_d, s_c)[b]} offen sc1']
        ONE, SUM = csk, csk + 4
        S += allred('v_max_f32', [])
        for b in (1, 2, 3): S.append(pk('add', U+2*b, U+2*b, ('b', M+b), neg=[0, 1]))
        for k in range(2, 8): S.append(f'v_exp_f32 v{U+k}, v{U+k}')
        for b in (1, 2, 3): S.append(f'v_add_f32 v{M+b}, v{U+2*b}, v{U+2*b+1}')
        S += allred('v_add_f32', [f'v_rcp_f32 v{M+1}, v{M+1}'])
        for b in (1, 2, 3): S.append(pk('mul', U+2*b, U+2*b, ('b', M+b)))
        S += pv(1) + pv(2) + pv(3) + [f's_add_u32 s{s_e}, s{s_a}, 32768', f's_add_u32 s{s_c}, s{s_d}, 32768'] + put(1) + put(2) + put(3)
        S += [f'v_mov_b32 v{ONE+k}, 0x3f803f80' for k in range(4)]
        self.sw(S, name='B blocks 1-3', crit=lambda t: t.startswith('buffer')); S = []
        self.ll_wait(HL, list(range(HB, HB+8)), t1, t2, 0, pre='s_waitcnt vmcnt(3) lgkmcnt(0)')
        self.stamp(4)
        S += L0 + [f'v_mov_b64 {vr(VP[nb],2)}, {vr(HB+4+2*nb,2)}' for nb in range(2)]
        S += [f'v_mov_b32 v{M+1}, v{M}', sw32(M, M+1), f'v_max_f32 v{M}, v{M}, v{M+1}', f'v_mov_b32 v{M+1}, v{M}', sw16(M, M+1), f'v_max_f32 v{M}, v{M}, v{M+1}']
        S += [f'v_sub_f32 v{U+k}, v{U+k}, v{M}' for k in range(2)] + [f'v_exp_f32 v{U+k}, v{U+k}' for k in range(2)]
        P0 = pv(0); S += P0[:-2] + [mf16(SUM, ONE, nr[0])] + P0[-2:] + [f'v_rcp_f32 v{SUM}, v{SUM}']
        S += [pk('mul', acc(0, 4)+2*k, acc(0, 4)+2*k, ('b', SUM)) for k in range(4)] + put(0)
        self.sw(S, name='B block 0')
        self.stamp(6)

    def build(self):
        a = self.a
        self.prologue()
        if self.st0 & 1: self.loader(); a.label('L_compute'); self.compute()
        else: self.compute(); self.loader()
        self.helper()
        a.label('L_fin')
        self.stamp(15)
        self.stamp_out()
        if self.probe and len(self.probe) > 3:
            def pub():
                a('s_mov_b64 exec, 1'); a('v_mov_b32 v2, s94'); a('s_not_b32 s93, s93'); a('v_mov_b32 v3, s93')
                a(f'buffer_atomic_umax v2, off, {srd(sDBG)}, 0 offset:12 sc1'); a(f'buffer_atomic_umax v3, off, {srd(sDBG)}, 0 offset:140 sc1')
                a('s_waitcnt vmcnt(0)'); a('v_mov_b32 v2, 1'); a(f'buffer_atomic_add v2, off, {srd(sDBG)}, 0 offset:20 sc1'); a('s_waitcnt vmcnt(0)')
                def w0():
                    self.spin(['s_sleep 8', f'buffer_load_dword v2, off, {srd(sDBG)}, 0 offset:20 sc1'], ['v_cmp_gt_u32 vcc, 0x100, v2'], 4, 10)
                    a(f'buffer_load_dword v2, off, {srd(sDBG)}, 0 offset:12 sc1'); a(f'buffer_load_dword v3, off, {srd(sDBG)}, 0 offset:140 sc1'); a('s_waitcnt vmcnt(0)')
                    a('v_readfirstlane_b32 s94, v2'); a('v_readfirstlane_b32 s93, v3'); a('s_not_b32 s93, s93')
                self.cond(['s_cmp_eq_u32 s2, 0'], w0)
                a('s_mov_b64 exec, -1')
            self.cond([f's_cmp_eq_u32 s{s_wave}, 0'], pub)
        if self.probe:
            def body():
                a('s_sub_u32 s93, s94, s93'); a(f's_mul_i32 s93, s93, {self.probe[2]}'); a('s_min_u32 s93, s93, 100000')
                a(f's_memrealtime s[{s_t+6}:{s_t+7}]'); a('s_waitcnt lgkmcnt(0)'); a(f's_add_u32 s93, s93, s{s_t+6}')
                a.label('L_probe')
                a(f's_memrealtime s[{s_t+6}:{s_t+7}]'); a('s_waitcnt lgkmcnt(0)'); a(f's_sub_u32 s94, s{s_t+6}, s93'); a('s_cmp_lt_i32 s94, 0'); a('s_cbranch_scc1 L_probe')
            self.cond([f's_or_b32 s{s_t}, s2, s{s_wave}', f's_cmp_eq_u32 s{s_t}, 0'], body)
        a('s_waitcnt vmcnt(0)')
        a.label('L_end')
        a('s_endpgm')
        for b in self.later: a.ins += b.ins
        if self.cpf: a.label('L_last'); a('s_endpgm')
        a.pad()
        assert a.maxreg('v') <= 255 and a.maxreg('s') < 96
        return a.text()


DOC = """
; ---------------------------------------------------------------------------------------------------------------------
;
;
; Hand-offs between workgroups go through d_ws, stored write-through (sc1) and read with sc1 loads:
; ---------------------------------------------------------------------------------------------------------------------
"""

def generate(listform=False, **kw):
    body = Gen(**kw).build()
    ref = open('interleave_layers__linear_kernel_hedgehog__sliding_local_dilated__prompt.s.ref').read() if not listform else ''
    head = ''.join(l + '\n' for l in ref.split('\n') if l.startswith(';') and '@launch' not in l)
    if listform: head += f'; @launch kernel={KNAME} grid=(256,1,1) block=(512,1,1) lds={LDS_BYTES}\n'
    else: head += f'; @launch grid=(256,1,1) block=(512,1,1) lds={LDS_BYTES}\n'
    return head + '.amdgcn_target "amdgcn-amd-amdhsa--gfx950"' + DOC + kernel_head(KNAME) + body + kernel_desc(KNAME, 256, 96, 256)

if __name__ == '__main__':
    kw = eval(sys.argv[2]) if len(sys.argv) > 2 else {}
    open(sys.argv[1], 'w').write(generate(**kw))
```

```python
import sys, struct
sys.path.insert(0, 'work')
from asmlib import *

KNAME = 'interleave_layers__linear_kernel_hedgehog__sliding_local_dilated__prompt_kernel'

WS_CTR, WS_STAMP, WS_ST, WS_CS = 0x0, 0x100000, 0x200000, 0x300000
WS_HALO, WS_KVF, WS_ZP, WS_ZF, WS_KVP = 0x400000, 0x600000, 0x680000, 0x6C0000, 0x800000
WS_RF = 0x700000
WS_XI, WS_OI, WS_END = 0xC00000, 0x1800000, 0x2800000
BIG = 0x40000000
STG = 40960
XOFF = 24576
L_WO = 24576
L_SPARE = 3 * STG
L_P = 155648
P_NM, P_RS, P_CS, P_MODE, P_CNT, P_PHI = L_P, L_P + 512, L_P + 1024, L_P + 2816, L_P + 2832, L_P + 3072
LDS_BYTES = 163840
SCR = 5120
LOG2E = 1.4426950408889634
def f2u(x): return '0x%08x' % struct.unpack('<I', struct.pack('<f', x))[0]

s_fast = 3
pAX, pAW, pPHI, pAWO, pBW, pBWO, pOUT, pDBG, pWS = 4, 6, 8, 10, 14, 16, 18, 20, 22
sWS, sX, sW, sWO, sOUT, sDBG = 24, 28, 32, 36, 40, 44
s_m, s_g, s_wave, s_l = 48, 49, 50, 51
s_t = 52
s_cnt, s_x = 60, 61
s_i = 62
s_stamp = 63
s_rot = 64
s_rot2 = 95
s_ft, s_fn, s_fd, s_po = 90, 91, 88, 87
def srd(b): return 's[%d:%d]' % (b, b + 3)


def sx(d, terms, const=0):
    L = []
    for n, (r, k) in enumerate([t for t in terms if t[1]]):
        t = d if n == 0 else s_x
        if k == 1 and n: t = r
        elif k == 1: L.append(f's_mov_b32 s{t}, s{r}')
        elif k > 0 and k & (k - 1) == 0: L.append(f's_lshl_b32 s{t}, s{r}, {k.bit_length()-1}')
        else: L.append(f's_mul_i32 s{t}, s{r}, {k}')
        if n: L.append(f's_add_u32 s{d}, s{d}, s{t}')
    if const: L.append(f's_add_u32 s{d}, s{d}, {const:#x}' if const > 0 else f's_sub_u32 s{d}, s{d}, {-const:#x}')
    return L

def pkop(r):
    if isinstance(r, tuple):
        return vr(r[1] & ~1, 2), r[1] & 1, r[1] & 1
    assert r % 2 == 0
    return vr(r, 2), 0, 1
def pk(op, d, *src, neg=None):
    o = [pkop(s) for s in src]
    t = 'v_pk_%s_f32 %s, %s' % (op, vr(d, 2), ', '.join(x[0] for x in o))
    lo = [x[1] for x in o]; hi = [x[2] for x in o]
    if any(lo): t += ' op_sel:[%s]' % ','.join(map(str, lo))
    if not all(hi): t += ' op_sel_hi:[%s]' % ','.join(map(str, hi))
    if neg: t += ' neg_lo:[%s] neg_hi:[%s]' % (','.join(map(str, neg)), ','.join(map(str, neg)))
    return t
def cvt(d, a, b): return f'v_cvt_pk_bf16_f32 v{d}, v{a}, v{b}'
def sw16(a, b): return f'v_permlane16_swap_b32 v{a}, v{b}'
def sw32(a, b): return f'v_permlane32_swap_b32 v{a}, v{b}'
def mf16(d, A, B, C=None): return f'v_mfma_f32_16x16x32_bf16 {vr(d,4)}, {vr(A,4)}, {vr(B,4)}, ' + (vr(C, 4) if C is not None else '0')
def mf32(d, A, B, C=None): return f'v_mfma_f32_32x32x16_bf16 {vr(d,16)}, {vr(A,4)}, {vr(B,4)}, ' + (vr(C, 16) if C is not None else '0')


class Gen:
    def __init__(self, prof=0, limit=40000, dist=2, touch=1, bm=25, local=1, pd=6, sch=1, hprio=2, opos=(1, 5), warm=1, nap=1, probe=None, snake=1, rf=2, hq=4, fine=0, llf='sc1', ot=0, hc=None, hpos=90, early=0, w2=0, w0b=0, cpf=0, tr=4, bpos=1, r0=2, rprio=3, w0a=1, pipe=0, b1=0, b2=0, n1=0, n2=0, zw=2, yw=60, thr=None, pw=0, po=0, jit=0, st0=6, vpos=1, fst='sc1', rot0=12, iw=2, oh=(0, 9), dl=6, lprio=3, fpos=24, lf='', lfl=0, xnap=0, ls=0, pf='nt', mix=0, bw=0, t0s=(), xd=None, tlb=0, crow=0, ramp=0):
        self.a = Asm()
        assert 16 <= bm < 32 - dl//2 and not early
        self.__dict__.update(prof=prof, limit=limit, dist=dist, touch=touch, bm=bm, local=local, pd=pd, sch=sch, hprio=hprio, opos=opos, warm=warm, nap=nap, probe=probe, snake=snake, rf=rf, hq=hq, fine=fine, llf=llf, ot=ot, hc=hc, hpos=hpos, early=early, w2=w2, w0b=w0b, cpf=cpf, tr=tr, bpos=bpos, r0=r0, rprio=rprio, w0a=w0a, pipe=pipe, b1=b1, b2=b2, n1=n1, n2=n2, zw=zw, yw=yw, thr=thr, pw=pw, po=po, jit=jit, st0=st0, vpos=vpos, fst=fst, rot0=rot0, iw=iw, oh=oh, dl=dl, lprio=lprio, fpos=fpos, lf=lf, lfl=lfl, xnap=xnap, ls=ls, pf=pf, mix=mix, bw=bw, t0s=t0s, xd=xd, tlb=tlb, crow=crow, ramp=ramp)
        self.nlab = 0; self.later = []

    def lab(self, p):
        self.nlab += 1
        return 'L_%s_%d' % (p, self.nlab)

    def aw(self, L):
        self.a.extend(autowait(L))
    def sw(self, L, crit=None, name=''):
        if self.sch:
            L = sched(L, crit)
            if name and __name__ == '__main__': print('sched', name, len(L), 'instructions, about', sched.last_estimate, 'cycles', file=sys.stderr)
        self.a.extend(autowait(L))

    def cond(self, test, body):
        L = self.lab('skip')
        self.a.extend(test); self.a(f's_cbranch_scc0 {L}')
        body()
        self.a.label(L)

    def aside(self, f):
        main, self.a = self.a, Asm()
        f()
        self.later.append(self.a); self.a = main

    def spin(self, issue, check, vt, tag, pre=False, alt=None, checked=False):
        a = self.a
        L, C, T, A, D = (self.lab(x) for x in ('spin', 'chk', 'tmo', 'alt', 'done'))
        count = [f's_add_u32 s{s_cnt}, s{s_cnt}, 1', f's_cmp_lt_u32 s{s_cnt}, {self.limit}', f's_cbranch_scc0 {T}']
        if checked:
            alt = issue; a(f's_cbranch_vccnz {A}')
        else:
            a(f's_mov_b32 s{s_cnt}, 0')
            if alt: a(f's_cmp_eq_u32 s{s_fast}, 1'); a(f's_cbranch_scc0 {A}')
            if pre:
                a(f's_branch {C}')
                a.label(L); a.extend(issue); a.extend(count); a('s_waitcnt vmcnt(0)')
                a.label(C)
                if pre is not True: a(pre)
                a.extend(check)
            else:
                S = autowait(list(issue) + ['s_nop 3'] + list(check)); k = S.index('s_nop 3')
                a.label(L); a.extend(S[:k]); a.extend(count); a.extend(S[k+1:])
            a(f's_cbranch_vccnz {L}')
        a.label(D)
        def rest():
            a = self.a
            if alt:
                L2 = self.lab('spin')
                a.label(A); a(f's_mov_b32 s{s_cnt}, 0')
                a.label(L2); a.extend(alt); a.extend(count); a('s_waitcnt vmcnt(0)' if checked else 's_waitcnt vmcnt(0) lgkmcnt(0)'); a.extend(check)
                a(f's_cbranch_vccnz {L2}'); a(f's_branch {D}')
            a.label(T)
            a('s_waitcnt vmcnt(0)' if checked else 's_waitcnt vmcnt(0) lgkmcnt(0)')
            a(f'v_mov_b32 v{vt}, {1 << tag}')
            a(f'buffer_atomic_or v{vt}, off, {srd(sDBG)}, 0 offset:4 sc1')
            a(f's_branch {D}')
        self.aside(rest)

    def ll_wait(self, loads, regs, t1, t2, tag, pre=False):
        S = []
        h = len(regs) // 2
        for t, R in ((t1, regs[:h]), (t2, regs[h:])):
            S.append(f'v_max_u32 v{t}, v{R[0]}, v{R[1]}')
            for k in range(2, len(R), 2): S.append(f'v_max3_u32 v{t}, v{t}, v{R[k]}, v{R[k+1]}')
        S += [f'v_max_u32 v{t1}, v{t1}, v{t2}', f'v_cmp_eq_u32 vcc, -1, v{t1}']
        loads = [l.replace('sc1', self.llf) for l in loads]
        self.spin(loads, S, t1, tag, pre)

    def flag_set(self, soff, vt, which=3):
        a = self.a
        a('s_mov_b64 exec, 1')
        if which & 1: a(f'buffer_store_dword v{vt}, off, {srd(sWS)}, s{soff} {self.lf}')
        if which == 3 and self.lfl == 1: a(f'buffer_load_dword v220, off, {srd(sWS)}, s{soff} sc1')
        if which == 3 and self.lfl == 2: which = 1
        if which & 2: a(f'buffer_store_dword v{vt}, off, {srd(sWS)}, s{soff+1} sc1')
        a('s_mov_b64 exec, -1')
    def flag_addr(self, va, vt, soff, remote=False):
        L = [f'v_bfe_u32 v{va}, v1, 1, 3', f'v_and_b32 v{vt}, 1, v1', f'v_lshl_add_u32 v{va}, v{va}, 2, v{vt}']
        if remote: return L + [f'v_lshlrev_b32 v{va}, 7, v{va}']
        return L + [f's_cmp_eq_u32 s{s_fast}, 1', f's_cselect_b32 s{s_t}, {self.ls}, 5', f's_cselect_b32 s{s_t+1}, 0, {WS_RF}',
                    f's_lshl_b32 s{soff}, s{soff}, s{s_t}', f's_add_u32 s{soff}, s{soff}, s{s_t+1}', f's_add_u32 s{s_t}, s{s_t}, 2',
                    f'v_lshlrev_b32 v{va}, s{s_t}, v{va}']
    def flag_load(self, soff, va, vt, fl='sc1'): return f'buffer_load_dword v{vt}, v{va}, {srd(sWS)}, s{soff} offen {fl}'
    def flag_wait(self, soff, va, vt, tag, pre=False, nap=0, own=False, checked=False):
        z = [f's_sleep {nap}'] if nap else []
        self.spin(z + [self.flag_load(soff, va, vt, self.pf if own else 'sc1')], [f'v_cmp_eq_u32 vcc, 0, v{vt}'], vt, tag, pre,
                  z + [self.flag_load(soff, va, vt)] if own else None, checked)
    def get_mode(self, vt):
        self.a.extend([f'v_mov_b32 v{vt}, {P_MODE}', f'ds_read_b32 v{vt}, v{vt}', 's_waitcnt lgkmcnt(0)', f'v_readfirstlane_b32 s{s_fast}, v{vt}'])

    def jitter(self, k):
        a = self.a
        L = self.lab('jit')
        a.extend([f's_lshl_b32 s{s_t+6}, s2, 3', f's_add_u32 s{s_t+6}, s{s_t+6}, s{s_wave}', f's_lshl_b32 s{s_t+6}, s{s_t+6}, 2', f's_add_u32 s{s_t+6}, s{s_t+6}, s{s_l}',
                  f's_add_u32 s{s_t+6}, s{s_t+6}, {(k*7919 + self.jit*104729) & 0xffffff}', f's_mul_i32 s{s_t+6}, s{s_t+6}, 0x9e3779b1', f's_lshr_b32 s{s_t+7}, s{s_t+6}, 13',
                  f's_xor_b32 s{s_t+6}, s{s_t+6}, s{s_t+7}', f's_mul_i32 s{s_t+6}, s{s_t+6}, 0x85ebca6b', f's_lshr_b32 s{s_t+7}, s{s_t+6}, 29',
                  f's_lshr_b32 s{s_t+6}, s{s_t+6}, 8', f's_and_b32 s{s_t+6}, s{s_t+6}, 127', f's_lshr_b32 s{s_t+6}, s{s_t+6}, s{s_t+7}'])
        a.label(L)
        a.extend(['s_sleep 1', f's_sub_u32 s{s_t+6}, s{s_t+6}, 1', f's_cbranch_scc0 {L}'])
    def stamp(self, k):
        if self.jit: self.jitter(k)
        if self.probe:
            for n, (pl, pk_) in enumerate(self.probe[:2]):
                if pk_ == k:
                    def body():
                        self.a(f's_memrealtime s[{s_t+6}:{s_t+7}]'); self.a('s_waitcnt lgkmcnt(0)'); self.a(f's_mov_b32 s{93+n}, s{s_t+6}')
                    self.cond([f's_cmp_eq_u32 s{s_l}, {pl}'], body)
        if not self.prof or self.prof >= 5: return
        a = self.a
        a(f'{"s_memtime" if self.prof == 4 else "s_memrealtime"} s[{s_t+6}:{s_t+7}]')
        a(f's_mov_b32 s{s_stamp}, m0')
        a(f's_lshl_b32 m0, s{s_l}, 4'); a(f's_add_u32 m0, m0, {k}')
        a('s_waitcnt lgkmcnt(0)')
        a(f'v_writelane_b32 v255, s{s_t+6}, m0')
        a(f's_mov_b32 m0, s{s_stamp}')
    def stamp_out(self):
        if not self.prof: return
        a = self.a
        a.extend(sx(s_t, [(2, 2048), (s_wave, 256)], WS_STAMP))
        a('v_lshlrev_b32 v254, 2, v1')
        a(f'buffer_store_dword v255, v254, {srd(sWS)}, s{s_t} offen')

    def prologue(self):
        a = self.a
        a('s_cmp_ge_u32 s2, 256'); a('s_cbranch_scc1 L_end')
        a('s_load_dwordx16 s[4:19], s[0:1], 0')
        a('s_load_dwordx4 s[20:23], s[0:1], 64')
        a('v_lshrrev_b32 v2, 6, v0')
        a(f'v_readfirstlane_b32 s{s_wave}, v2')
        a('v_and_b32 v1, 63, v0')
        a(f's_and_b32 s{s_rot}, s2, 3'); a(f's_lshl_b32 s{s_rot}, s{s_rot}, 2')
        a(f's_bfe_u32 s{s_t}, s2, 0x20003'); a(f's_add_u32 s{s_m}, s{s_rot}, s{s_t}')
        a(f's_mov_b32 s{s_rot}, s{s_m}')
        a(f's_and_b32 s{s_rot2}, s2, 4'); a(f's_lshl_b32 s{s_rot2}, s{s_rot2}, 1')
        a(f's_lshr_b32 s{s_g}, s2, 5'); a(f's_add_u32 s{s_g}, s{s_g}, s{s_rot2}')
        a(f's_mov_b32 s{s_l}, 0'); a(f's_mov_b32 s{s_fast}, 0')
        for b, n in ((sWS, WS_END), (sX, 2048*1024*2), (sW, 1024*3072*2), (sWO, 1024*1024*2), (sOUT, WS_END), (sDBG, 256)):
            a(f's_mov_b32 s{b+2}, {n}'); a(f's_mov_b32 s{b+3}, 0x20000')
        if self.prof: a('v_mov_b32 v255, 0')
        self.stamp(0)
        a(f's_cmp_ge_u32 s{s_wave}, 6'); a('s_cbranch_scc1 L_helper')
        if self.st0 & 1: a(f's_cmp_lt_u32 s{s_wave}, 4'); a('s_cbranch_scc1 L_compute')
        else: a(f's_cmp_ge_u32 s{s_wave}, 4'); a('s_cbranch_scc1 L_loader')
    def pointers(self):
        a = self.a
        a('s_waitcnt lgkmcnt(0)')
        for b, p in ((sWS, pWS), (sX, pAX), (sW, pAW), (sWO, pAWO), (sOUT, pWS), (sDBG, pDBG)):
            a(f's_mov_b64 s[{b}:{b+1}], s[{p}:{p+1}]')

    def trickle_setup(self):
        a = self.a
        a(f's_mov_b64 s[{sOUT}:{sOUT+1}], s[{sWO}:{sWO+1}]'); a(f's_mov_b32 s{sOUT+2}, {1 << 21}')
        a.extend(sx(s_ft, [(2, 8192), (s_wave, 2048)], -8192))
        n1 = -(-16 // self.tr)
        a(f's_cmp_eq_u32 s{s_l}, 0'); a(f's_cselect_b32 s{s_fn}, 12, {n1}')
        a(f's_cmp_lt_u32 s{s_l}, {2 if self.warm else 0}'); a(f's_cselect_b32 s{s_fn}, s{s_fn}, 0')
    def trickle_lines(self, n):
        a = self.a
        a(f's_sub_u32 s{s_t}, s{sOUT+2}, {128*n}'); a(f's_min_u32 s{s_t}, s{s_t}, s{s_ft}')
        for r in range(n): a(f's_buffer_load_dwordx2 s[{s_fd}:{s_fd+1}], {srd(sOUT)}, s{s_t} offset:{128*r+60}')
        a(f's_add_u32 s{s_ft}, s{s_ft}, {128*n}')
    def trickle(self, i):
        a = self.a
        n1 = -(-16 // self.tr)
        def nxt():
            a(f's_mov_b64 s[{sOUT}:{sOUT+1}], s[{pBW}:{pBW+1}]'); a(f's_mov_b32 s{sOUT+2}, {3 << 21}')
            a.extend(sx(s_ft, [(2, 24576), (s_wave, 6144)], -24576))
        def body():
            if isinstance(i, str): self.cond([f's_cmp_eq_u32 {i}, {n1}'], nxt)
            elif i == n1: nxt()
            self.trickle_lines(self.tr)
        self.cond([f's_cmp_gt_u32 s{s_fn}, {i}'], body)
    def trickle_rest(self, part):
        rest = 48 - self.tr * (12 - -(-16 // self.tr))
        n = rest
        self.cond([f's_cmp_eq_u32 s{s_fn}, 12'], lambda: self.trickle_lines(n))

    def warm_w(self):
        a = self.a
        if not self.pw: return
        a(f's_and_b32 s{s_t}, s{s_m}, 3'); a.extend(sx(s_t+1, [(s_t, 16*6144), (s_wave, 4*6144), (s_g, 128)], -16*6144))
        a(f's_and_b32 s{s_t+2}, s{s_g}, 7')
        for st in range(1, 1 + self.pw):
            a(f's_cmp_le_u32 s{s_t+2}, {st-1}'); a(f's_addc_u32 s{s_t}, s{s_rot2}, {st-1}')
            a(f's_mul_i32 s{s_t}, s{s_t}, {64*6144}'); a(f's_add_u32 s{s_t}, s{s_t}, s{s_t+1}')
            for k in range(12): a(f's_buffer_load_dwordx2 s[{s_fd}:{s_fd+1}], {srd(sW)}, s{s_t} offset:{2048*k+60}')
    def warm_wo_setup(self):
        a = self.a
        a(f's_and_b32 s{s_t}, s{s_m}, 3'); a.extend(sx(s_po, [(s_t, 256*2048), (s_wave, 64*2048), (s_g, 128)], -256*2048))
    def warm_wo(self, n):
        a = self.a
        def body():
            for k in range(n): a(f's_buffer_load_dwordx2 s[{s_fd}:{s_fd+1}], {srd(sWO)}, s{s_po} offset:{2048*k+60}')
            a(f's_add_u32 s{s_po}, s{s_po}, {2048*n}'); a(f's_min_u32 s{s_po}, s{s_po}, {(1 << 21) - 2048*n}')
        if self.po: self.cond([f's_lshr_b32 s{s_t}, {self.po}, s{s_l}', f's_bitcmp1_b32 s{s_t}, 0'], body)

    def w_dma_offsets(self, dw, idx, t0, t1, t2):
        a = self.a
        a(f'v_lshrrev_b32 v{t0}, 3, v1'); a(f'v_mul_u32_u24 v{t0}, 6144, v{t0}')
        a(f'v_and_b32 v{t1}, 7, v1'); a(f'v_bfe_u32 v{t2}, v1, 4, 1'); a(f'v_lshlrev_b32 v{t2}, 1, v{t2}')
        a(f'v_xor_b32 v{t1}, v{t1}, v{t2}'); a(f'v_xor_b32 v{t2}, 4, v{t1}')
        a(f'v_lshl_add_u32 v{t1}, v{t1}, 4, v{t0}'); a(f'v_lshl_add_u32 v{t2}, v{t2}, 4, v{t0}')
        d = 8*6144 - 1024
        a(f's_lshl_b32 s{s_t+1}, s{s_g}, 7'); a(f'v_add_u32 v{t1}, s{s_t+1}, v{t1}'); a(f's_add_u32 s{s_t+1}, s{s_t+1}, {d}'); a(f'v_add_u32 v{t2}, s{s_t+1}, v{t2}')
        a(f's_cmp_eq_u32 s{idx}, 0')
        for t in range(3):
            c = [((3*w + t) & 1)*32*6144 + ((3*w + t) >> 1)*2048 for w in range(2)]
            a(f's_mov_b32 s{s_t}, {c[1]}'); a(f's_cmov_b32 s{s_t}, {c[0]}')
            a(f'v_add_u32 v{dw+4*t}, s{s_t}, v{t1}'); a(f'v_add_u32 v{dw+4*t+1}, s{s_t}, v{t2}')
            a(f'v_add_u32 v{dw+4*t+2}, {2*d}, v{dw+4*t}'); a(f'v_add_u32 v{dw+4*t+3}, {2*d}, v{dw+4*t+1}')

    def w_frag_addr(self, aw, head_sreg, base, t0, t1, t2, nb_list=(0, 1)):
        L = [f'v_lshrrev_b32 v{t2}, 4, v1', f'v_bfe_u32 v{t0}, v1, 2, 2', f'v_lshl_add_u32 v{t1}, v{t2}, 3, v{t0}',
             f'v_lshrrev_b32 v{t0}, 1, v{t0}', f'v_and_b32 v{t2}, 1, v{t2}', f'v_lshl_add_u32 v{t0}, v{t2}, 1, v{t0}']
        if head_sreg is not None: L += [f's_lshl_b32 s{s_t}, s{head_sreg}, 1', f'v_xor_b32 v{t0}, s{s_t}, v{t0}']
        L += [f'v_and_b32 v{t2}, 3, v1', f'v_lshlrev_b32 v{t2}, 3, v{t2}', f'v_lshl_add_u32 v{t2}, v{t1}, 7, v{t2}']
        if base: L.append(f'v_add_u32 v{t2}, {base}, v{t2}')
        for k, nb in enumerate(nb_list): L += [f'v_xor_b32 v{t1}, {nb}, v{t0}', f'v_lshl_add_u32 v{aw+k}, v{t1}, 5, v{t2}']
        return L

    def reduce_job(self, after_by=None, after_fill=None):
        a = self.a
        T = 200
        vA, vZ, vO, t1, t2 = T, T+1, T+2, T+3, T+4
        s_a, s_b, s_c, s_d, s_e = 80, 81, 82, 83, 84
        a.extend(sx(s_t, [(s_l, 32), (s_g, 4), (s_wave, 1)], -4))
        a.extend(sx(s_a, [(s_t, 32768), (s_m, 128)], WS_KVP)); a(f's_add_u32 s{s_b}, s{s_a}, 16384')
        a.extend(sx(s_d, [(s_t, 2048), (s_m, 128)], WS_KVF))
        a.extend(sx(s_c, [(s_t, 1024)], WS_ZP)); a.extend(sx(s_e, [(s_t, 64)], WS_ZF))
        a(f's_and_b32 s{s_t}, s{s_t}, 1'); a(f's_xor_b32 s{s_t+1}, s{s_m}, s{s_g}'); a(f's_or_b32 s{s_t}, s{s_t}, s{s_t+1}')
        a(f's_cselect_b32 s{s_c}, {BIG}, s{s_c}'); a(f's_cselect_b32 s{s_e}, {BIG}, s{s_e}')
        a(f'v_and_b32 v{t1}, 7, v1'); a(f'v_lshlrev_b32 v{t1}, 4, v{t1}')
        a(f'v_lshrrev_b32 v{t2}, 3, v1'); a(f'v_lshl_add_u32 v{vA}, v{t2}, 11, v{t1}')
        a(f'v_lshlrev_b32 v{vZ}, 4, v1')
        a(f'v_lshrrev_b32 v{t2}, 4, v1'); a(f'v_lshl_add_u32 v{vO}, v{t2}, 2, v{t1}')
        D = T + 8; U = 160
        def late_fill():
            for k in range(4): a(f'v_mov_b32 v{D+k}, -1')
            fill = f'buffer_store_dwordx4 {vr(D,4)}, v{vZ}, {srd(sWS)}, s{s_t} offen'
            a.extend(sx(s_t, [(s_g, 131072), (s_wave, 32768), (s_m, 2048)], WS_KVP + (1 << 21) - 4*32768)); a(fill + ' sc1'); a(fill + ' offset:1024 sc1')
            a(f's_lshr_b32 s{s_t+1}, s{s_wave}, 1'); a(f's_and_b32 s{s_t+2}, s{s_wave}, 1')
            a.extend(sx(s_t, [(s_t+2, 1 << 20), (s_m, 1 << 16), (s_g, 4096), (s_t+1, 2048)], WS_HALO - 2*2048)); a(fill + ' sc1'); a(fill + ' offset:1024 sc1')
            a.extend(sx(s_t, [(s_wave, 262144), (s_m, 16384), (s_g, 1024)], WS_ST - 3*262144))
            a.extend(sx(s_t+3, [(s_g, 16384), (s_m, 1024)], WS_CS + 262144))
            a(f's_cmp_eq_u32 s{s_wave}, 7'); a(f's_cselect_b32 s{s_t}, s{s_t+3}, s{s_t}'); a(fill + ' sc1')
            a('s_mov_b64 exec, 0xff')
            a(f's_add_u32 s{s_t}, s{s_d}, {1 << 17}'); a(fill + ' sc1')
            a(f's_add_u32 s{s_t}, s{s_e}, {1 << 12}'); a(fill + ' sc1')
            a.extend(sx(s_t, [(s_g, 4096), (s_t+1, 2048), (s_m, 128)], WS_ZP + (1 << 16) - 2*2048)); a(fill + ' sc1')
            a('s_mov_b64 exec, -1')
            a('s_waitcnt vmcnt(0)')
        self.cond([f's_cmp_eq_u32 s{s_l}, 0'], late_fill)
        a('s_barrier')
        if self.jit: self.jitter(20)
        if self.rprio: a(f's_setprio {self.rprio}')
        a('s_barrier')
        if after_by and self.w0a == 0: after_by()
        if self.b1: a(f's_sleep {self.b1}')
        self.ll_wait(([f's_sleep {self.n1}'] if self.n1 else []) + [f'buffer_load_dwordx4 {vr(D,4)}, v{vA}, {srd(sWS)}, s{s_a} offen sc1',
                      f'buffer_load_dwordx4 {vr(D+4,4)}, v{vA}, {srd(sWS)}, s{s_b} offen sc1',
                      f'buffer_load_dwordx4 {vr(D+8,4)}, v{vZ}, {srd(sWS)}, s{s_c} offen sc1',
                      f'buffer_load_dwordx4 {vr(D+12,4)}, v{vZ}, {srd(sWS)}, s{s_c} offen offset:1024 sc1'],
                     list(range(D, D+16)), t1, t2, 1)
        self.stamp(5)
        S = []
        for z in range(2):
            d, u = D + 8*z, U + 16*z
            for k in range(8): S += [f'v_lshlrev_b32 v{u+2*k}, 16, v{d+k}', f'v_and_b32 v{u+2*k+1}, 0xffff0000, v{d+k}']
            for k in range(4): S.append(pk('add', u+2*k, u+2*k, u+8+2*k))
            for k in range(4): S.append(sw32(u+k, u+4+k))
            S += [pk('add', u, u, u+4), pk('add', u+2, u+2, u+6), sw16(u, u+2), sw16(u+1, u+3), pk('add', u, u, u+2)]
            for k in range(2): S.append(f'v_add_f32_dpp v{u+k}, v{u+k}, v{u+k} row_ror:8 row_mask:0xf bank_mask:0xf')
            S.append(cvt(u, u, u+1))
        S += ['s_mov_b32 exec_lo, 0x00ff00ff', 's_mov_b32 exec_hi, 0x00ff00ff',
              f'buffer_store_dword v{U}, v{vO}, {srd(sWS)}, s{s_d} offen sc1',
              f'buffer_store_dword v{U+16}, v{vO}, {srd(sWS)}, s{s_e} offen sc1', 's_mov_b64 exec, -1']
        self.sw(S)
        if self.rprio: a('s_setprio 0')
        if after_by and self.w0a == 1: after_by()
        if self.zw: a(f's_waitcnt vmcnt({12 if (after_by and self.w0a == 1 and self.zw == 1) else 0})')
        a('s_barrier')
        if after_by and self.w0a == 2: after_by()

    def loader(self):
        a = self.a
        a.label('L_loader')
        dx, dw, dwo, t0, t1, t2, vf = 8, 16, 28, 2, 3, 4, 5
        s_ld, s_kx, s_kw, s_slot, s_mx, s_xstep, s_wo, s_wm0, s_sx, s_sw, s_xb, s_fl, s_mw = range(65, 78)
        a(f's_sub_u32 s{s_ld}, s{s_wave}, 4')
        self.w_dma_offsets(dw, s_ld, t0, t1, t2)
        a(f's_mul_i32 s{s_mw}, s{s_ld}, 12288')
        a(f's_lshl_b32 s{s_mx}, s{s_ld}, 13'); a(f's_add_u32 s{s_mx}, s{s_mx}, {XOFF}')
        s_flip = 78
        def nxt(r):
            return [f's_cmp_eq_u32 s{r}, s{s_flip}', f's_addc_u32 s{r}, s{r}, 1', f's_and_b32 s{r}, s{r}, 15']
        def wst(slot=None):
            L = []
            for j in range(12):
                if j == 0: L.append(f's_add_u32 m0, s{s_mw}, ' + (f's{s_slot}' if slot is None else str(slot*STG)))
                elif j % 4 == 0: L.append('s_add_u32 m0, m0, 4096')
                L.append(f'buffer_load_dwordx4 v{dw+j}, {srd(sW)}, s{s_kw} offen offset:{1024*(j%4)} lds')
            a.extend(L + nxt(s_sw) + [f's_mul_i32 s{s_kw}, s{s_sw}, {64*6144}'])
        def xst(slot=None):
            L = []
            for j in range(8):
                if j == 0: L.append(f's_add_u32 m0, s{s_mx}, ' + (f's{s_slot}' if slot is None else str(slot*STG)))
                elif j == 4: L.append('s_add_u32 m0, m0, 4096')
                L.append(f'buffer_load_dwordx4 v{dx+j}, {srd(sX)}, s{s_kx} offen offset:{1024*(j%4)} sc1 lds')
            a.extend(L + nxt(s_sx) + [f's_mul_i32 s{s_kx}, s{s_sx}, s{s_xstep}', f's_add_u32 s{s_kx}, s{s_kx}, s{s_xb}'])
        def kstart(first):
            if first:
                a(f's_and_b32 s{s_sx}, s{s_m}, {self.rot0}'); a(f's_mov_b32 s{s_sw}, s{s_sx}'); a(f's_mov_b32 s{s_flip}, 16')
            else:
                a(f's_add_u32 s{s_sw}, s{s_rot2}, 15'); a(f's_and_b32 s{s_sw}, s{s_sw}, 15'); a(f's_mov_b32 s{s_sx}, s{s_sw}')
                a(f's_add_u32 s{s_flip}, s{s_g}, 15'); a(f's_and_b32 s{s_flip}, s{s_flip}, 15'); a.extend(nxt(s_sx))
            a(f's_mul_i32 s{s_kw}, s{s_sw if first else s_g}, {64*6144}'); a(f's_mul_i32 s{s_kx}, s{s_sx}, s{s_xstep}'); a(f's_add_u32 s{s_kx}, s{s_kx}, s{s_xb}')
        a(f's_lshl_b32 s{s_xb}, s{s_m}, 18'); a(f's_mov_b32 s{s_xstep}, 128'); kstart(True)
        self.pointers()
        wst(0)
        a(f'v_lshrrev_b32 v{t0}, 3, v1'); a(f'v_and_b32 v{t1}, 7, v1')
        a(f'v_lshrrev_b32 v{t2}, 4, v1'); a(f'v_xor_b32 v{t1}, v{t1}, v{t2}'); a(f'v_xor_b32 v{t2}, 4, v{t1}')
        a(f's_lshl_b32 s{s_t}, s{s_ld}, 17'); a(f'v_lshl_add_u32 v{t0}, v{t0}, 11, s{s_t}')
        a(f'v_lshl_add_u32 v{t1}, v{t1}, 4, v{t0}'); a(f'v_lshl_add_u32 v{t2}, v{t2}, 4, v{t0}')
        for j in range(8): a(f'v_add_u32 v{dx+j}, {j*16384 - 1024*(j%4)}, v{t1 if j % 2 == 0 else t2}')
        xst(0); wst(1)
        a(f'v_lshrrev_b32 v{t0}, 5, v1'); a(f'v_lshlrev_b32 v{t0}, 4, v{t0}')
        a(f'v_bfe_u32 v{t1}, v1, 3, 2'); a(f'v_add_u32 v{t0}, v{t0}, v{t1}')
        a(f's_lshl_b32 s{s_t}, s{s_g}, 7'); a(f'v_lshl_add_u32 v{t0}, v{t0}, 11, s{s_t}')
        a(f'v_and_b32 v{t1}, 7, v1'); a(f'v_bfe_u32 v{t2}, v1, 4, 1'); a(f'v_lshlrev_b32 v{t2}, 1, v{t2}')
        a(f'v_xor_b32 v{t1}, v{t1}, v{t2}'); a(f'v_xor_b32 v{t2}, 4, v{t1}')
        a(f'v_lshl_add_u32 v{t1}, v{t1}, 4, v{t0}'); a(f'v_lshl_add_u32 v{t2}, v{t2}, 4, v{t0}')
        for G in range(4): a(f'v_add_u32 v{dwo+G}, {G*4*2048 - 1024*G}, v{t1 if G % 2 == 0 else t2}')
        a('s_waitcnt vmcnt(12)'); a('s_barrier')
        xst(1); wst(2)
        a('s_waitcnt vmcnt(12)'); a('s_barrier')
        xst(2)
        if self.ramp:
            for k in range(self.ramp):
                xst(k % 3); a('s_waitcnt vmcnt(8)'); a('s_barrier'); wst(k % 3)
            a(f's_mov_b32 s{s_i}, {self.ramp}'); a(f's_mov_b32 s{s_slot}, {(self.ramp % 3)*STG}')
            a('s_branch L_ld_enter2')
        a.label('L_ld_enter')
        a(f's_mov_b32 s{s_i}, 0'); a(f's_mov_b32 s{s_slot}, 0')
        a.label('L_ld_enter2')
        self.trickle_setup(); self.warm_wo_setup()
        def loop(name, n, extra):
            a.label(name)
            xst(); wst()
            if extra:
                a(f's_add_u32 s{s_t}, s{s_i}, 1'); a(f's_and_b32 s{s_t}, s{s_t}, 7')
                a.extend(sx(s_wo, [(s_rot2, 2), (s_t, 1)], 24)); a(f's_and_b32 s{s_wo}, s{s_wo}, 31')
                a.extend(sx(s_wm0, [(s_wo, 65536), (s_ld, 2*4*2048)]))
                a.extend(sx(s_wo, [(s_t, 4096), (s_ld, 2048)], L_SPARE)); a(f's_mov_b32 m0, s{s_wo}')
                for G in range(2): a(f'buffer_load_dwordx4 v{dwo+G}, {srd(sWO)}, s{s_wm0} offen offset:{1024*G} lds')
            self.trickle(f's{s_i}'); self.warm_wo(5)
            a(f's_add_u32 s{s_slot}, s{s_slot}, {STG}'); a(f's_cmp_eq_u32 s{s_slot}, {3*STG}'); a(f's_cselect_b32 s{s_slot}, 0, s{s_slot}')
            a(f's_add_u32 s{s_i}, s{s_i}, 1'); a(f's_cmp_lt_u32 s{s_i}, {n}')
            a(f's_waitcnt vmcnt({22 if extra else 20})')
            a('s_barrier')
            a(f's_cbranch_scc1 {name}')
        if self.early: loop('L_ld_loop', 5, False); loop('L_ld_loop2', 13, True)
        else: loop('L_ld_loop', 13, False)
        def wo(p0, n, thr=None):
            a.extend(sx(s_wm0, [(s_ld, 4096)], L_WO + 4096*p0))
            a.extend(sx(s_wo, [(s_rot2, 2), (s_ld, 1)], p0)); a(f's_and_b32 s{s_wo}, s{s_wo}, 31'); a(f's_lshl_b32 s{s_wo}, s{s_wo}, 16')
            L = self.lab('wo')
            a(f's_mov_b32 s{s_i}, 0')
            a.label(L)
            if thr is not None: a(f's_waitcnt vmcnt({thr})')
            a(f's_mov_b32 m0, s{s_wm0}')
            a(f's_add_u32 s{s_wm0}, s{s_wm0}, 8192')
            for G in range(4): a(f'buffer_load_dwordx4 v{dwo+G}, {srd(sWO)}, s{s_wo} offen offset:{1024*G} lds')
            a(f's_add_u32 s{s_wo}, s{s_wo}, 131072'); a(f's_and_b32 s{s_wo}, s{s_wo}, 0x1fffff')
            a(f's_add_u32 s{s_i}, s{s_i}, 1'); a(f's_cmp_lt_u32 s{s_i}, {n//2}'); a(f's_cbranch_scc1 {L}')
        if self.early:
            wo(4, 10)
            a('s_waitcnt vmcnt(20)'); a('s_barrier')
            wo(14, 10)
            a('s_barrier')
            wo(0, 4)
        else:
            wo(24, 8)
            a('s_waitcnt vmcnt(16)'); a('s_barrier')
            wo(4, 10)
            a('s_barrier')
            wo(14, 10, self.thr); wo(0, 4, self.thr)
        if self.jit: self.jitter(23)
        a.extend(sx(s_fl, [(s_l, 8192), (s_m, 256), (s_rot2, 16), (s_ld, 8)], 4096))
        self.get_mode(t0); a.extend(self.flag_addr(vf, t0, s_fl))
        a.extend(sx(s_xb, [(s_l, 1 << 22), (s_m, 1 << 18)], WS_XI))
        a(f's_bitcmp0_b32 s{s_l}, 0')
        a(f's_cselect_b64 s[{sW}:{sW+1}], s[{pBW}:{pBW+1}], s[{pAW}:{pAW+1}]')
        a(f's_cselect_b64 s[{sWO}:{sWO+1}], s[{pBWO}:{pBWO+1}], s[{pAWO}:{pAWO+1}]')
        a(f's_mov_b64 s[{sX}:{sX+1}], s[{pWS}:{pWS+1}]'); a(f's_mov_b32 s{sX+2}, {WS_END}')
        a(f's_mov_b32 s{s_xstep}, 16384'); kstart(False)
        a(f's_lshl_b32 s{s_t}, s{s_ld}, 13'); a(f'v_lshl_add_u32 v{t0}, v1, 4, s{s_t}')
        for j in range(8): a(f'v_add_u32 v{dx+j}, {4096*(j//4)}, v{t0}')
        a(f's_bitcmp1_b32 s{s_l}, 0'); a('s_cbranch_scc1 L_ld_B')
        self.reduce_job(lambda: wst(0))
        a('s_branch L_ld_join')
        a.label('L_ld_B')
        if self.w0b == 0: self.cond([f's_cmp_lg_u32 s{s_l}, 3'], lambda: wst(0))
        a('s_barrier')
        if self.w0b == 1: self.cond([f's_cmp_lg_u32 s{s_l}, 3'], lambda: wst(0))
        a.label('L_ld_join')
        a('s_waitcnt vmcnt(0)'); a('s_barrier')
        a(f's_cmp_eq_u32 s{s_l}, 3'); a('s_cbranch_scc1 L_fin')
        self.trickle_rest(1); self.warm_w()
        a(f's_add_u32 s{s_l}, s{s_l}, 1')
        if self.jit: self.jitter(21)
        a('s_barrier')
        if self.jit: self.jitter(22)
        wst(1)
        if self.w2 == 2: wst(2)
        a('s_barrier')
        if self.w2 == 0: wst(2)
        if self.lprio: a(f's_setprio {self.lprio}')
        self.flag_wait(s_fl, vf, t0, 2, nap=self.xnap, own=True)
        self.stamp(1)
        xst(1); xst(2)
        if self.lprio: a('s_setprio 0')
        a('s_waitcnt vmcnt(8)'); a('s_barrier')
        if self.w2 == 1: wst(2)
        a('s_branch L_ld_enter')

    def helper(self):
        a = self.a
        a.label('L_helper')
        t0, t1, t2, t3, l4, l16, ones, a_st, a_cs, v_st, v_cs, aw, vtw, vto, vd = 2, 3, 4, 5, 6, 7, 8, 12, 13, 14, 15, 16, 18, 19, 20
        F, D, SA, SC = 32, 96, 128, 160
        s_h, s_tw, s_a, s_b, s_trot = 65, 66, 67, 68, 69
        xm = 4; s_r = 70; vrf, vfl, aw2, dw = 21, 22, 24, 80
        a(f's_sub_u32 s{s_h}, s{s_wave}, 6')
        if self.tlb:
            self.pointers()
            def others():
                for p, n in ((pPHI, 65536), (pDBG, 256), (pAWO, 1 << 21), (pBW, 3 << 21), (pBWO, 1 << 21), (pOUT, 1 << 22)):
                    for o in list(range(0, n, 1 << 21)) + ([n - 4] if n >= 1 << 21 else []):
                        a(f's_mov_b32 s{s_t}, {o}'); a(f's_load_dword s{s_fd}, s[{p}:{p+1}], s{s_t}')
            def wsp():
                a(f's_lshr_b32 s{s_t}, s2, 3'); a(f's_lshl_b32 s{s_t}, s{s_t}, 21'); a(f's_add_u32 s{s_t}, s{s_t}, 0x80000'); a(f's_min_u32 s{s_t}, s{s_t}, {WS_END - 4}')
                a(f's_load_dword s{s_fd}, s[{pWS}:{pWS+1}], s{s_t}')
                if self.tlb == 2:
                    for k in range(6): a(f's_mov_b32 s{s_t}, {(k << 21) + 0x80000}'); a(f's_load_dword s{s_fd}, s[{pWS}:{pWS+1}], s{s_t}')
            self.cond([f's_cmp_eq_u32 s{s_h}, 0'], wsp)
            self.cond([f's_cmp_eq_u32 s{s_h}, 1'], others)
        a(f'v_lshlrev_b32 v{l4}, 2, v1'); a(f'v_lshlrev_b32 v{l16}, 4, v1')
        a.extend(self.w_frag_addr(aw, s_h, 0, t0, t1, t2))
        for k in range(2): a(f'v_add_u32 v{aw2+k}, {L_SPARE}, v{aw+k}')
        a(f's_and_b32 s{s_t+1}, s{s_m}, {15 - self.rot0}'); a(f's_cmp_eq_u32 s{s_t+1}, 3'); a(f's_cselect_b32 s{s_t+1}, 0, s{s_t+1}'); a(f's_mul_i32 s{s_t+1}, s{s_t+1}, {STG}')
        for k in range(2): a(f'v_add_u32 v{aw+k}, s{s_t+1}, v{aw+k}')
        a.extend(self.flag_addr(vrf, t0, None, remote=True))
        a(f'v_lshrrev_b32 v{t0}, 5, v1'); a(f'v_and_b32 v{t1}, 31, v1'); a(f'v_lshlrev_b32 v{t1}, 4, v{t1}')
        a(f'v_lshl_add_u32 v{v_st}, v{t0}, 10, v{t1}')
        a(f'v_and_b32 v{t2}, 24, v1'); a(f'v_and_b32 v{t3}, 3, v1'); a(f'v_lshl_add_u32 v{t2}, v{t3}, 1, v{t2}'); a(f'v_add_u32 v{t2}, v{t2}, v{t0}')
        a.extend(sx(s_t, [(s_h, 256)], P_NM)); a(f'v_lshl_add_u32 v{a_st}, v{t2}, 3, s{s_t}')
        a(f'v_mov_b32 v{t2}, {BIG}'); a(f'v_cmp_gt_u32 vcc, 384, v{t1}'); a(f'v_cndmask_b32 v{v_cs}, v{t2}, v{v_st}, vcc')
        a.extend(sx(s_t, [(s_h, 384)], P_CS)); a(f'v_lshl_add_u32 v{t1}, v{t0}, 3, v{t1}'); a(f'v_add_u32 v{a_cs}, s{s_t}, v{t1}')
        if not self.tlb: self.pointers()

        def touch_setup(first=False):
            if not self.touch: return
            c, gt = s_t + 2, s_t + 3
            def cls(b):
                a(f's_lshr_b32 s{gt}, s{b}, 7'); a(f's_sub_u32 s{gt}, 3, s{gt}'); a(f's_and_b32 s{gt}, s{gt}, 7')
                a(f's_sub_u32 s{c}, s{s_g}, s{gt}'); a(f's_and_b32 s{c}, s{c}, 7'); a(f's_sub_u32 s{c}, s{c}, 1')
                a(f's_and_b32 s{s_t}, s{s_g}, 8'); a(f's_add_u32 s{gt}, s{gt}, s{s_t}'); a(f's_lshl_b32 s{gt}, s{gt}, 7')
            a(f's_and_b32 s{s_t+4}, s{s_m}, {xm-1}'); a(f's_lshl_b32 s{s_t+4}, s{s_t+4}, 1'); a(f's_add_u32 s{s_t+4}, s{s_t+4}, s{s_h}')
            cls(sW)
            if first: a(f's_or_b32 s{s_rot}, s{s_m}, 3'); a(f's_and_b32 s{s_rot}, s{s_rot}, {self.rot0}'); a(f's_mov_b32 s{s_trot}, 0')
            else: a(f's_mov_b32 s{s_rot}, s{s_rot2}'); a(f's_bfe_u32 s{s_trot}, s{gt}, 0x30007')
            a(f's_cmp_ge_u32 s{c}, 3'); a(f's_cselect_b32 s{s_t}, {32*6144 - 3*2048}, 0'); a(f's_add_u32 s{gt}, s{gt}, s{s_t}')
            a(f's_lshl_b32 s{s_t}, s{c}, 11'); a(f's_add_u32 s{gt}, s{gt}, s{s_t}')
            a(f's_mul_i32 s{s_t}, s{s_t+4}, {(16//xm)*6144}'); a(f's_add_u32 s{gt}, s{gt}, s{s_t}')
            a(f's_cmp_lt_u32 s{c}, 6'); a(f's_cselect_b32 s{s_t}, {16//xm}, 0')
            a(f'v_mul_u32_u24 v{vtw}, 6144, v1'); a(f'v_add_u32 v{vtw}, s{gt}, v{vtw}')
            a(f'v_mov_b32 v{t0}, {BIG}'); a(f'v_cmp_gt_u32 vcc, s{s_t}, v1'); a(f'v_cndmask_b32 v{vtw}, v{t0}, v{vtw}, vcc')
            cls(sWO)
            a(f's_lshl_b32 s{s_t}, s{c}, 19'); a(f's_add_u32 s{gt}, s{gt}, s{s_t}')
            a(f's_mul_i32 s{s_t}, s{s_t+4}, {(128//xm)*2048}'); a(f's_add_u32 s{gt}, s{gt}, s{s_t}')
            a(f's_cmp_lt_u32 s{c}, 4'); a(f's_cselect_b32 s{s_t}, {32//xm}, 0')
            a(f'v_lshlrev_b32 v{vto}, 11, v1'); a(f'v_add_u32 v{vto}, s{gt}, v{vto}')
            a(f'v_cmp_gt_u32 vcc, s{s_t}, v1'); a(f'v_cndmask_b32 v{vto}, v{t0}, v{vto}, vcc')
        def touchW(st):
            if not self.touch: return
            if st == 0: a(f's_add_u32 s{s_tw}, s{s_rot}, s{s_trot}')
            else: a(f's_cmp_le_u32 s{s_trot}, {st-1}'); a(f's_addc_u32 s{s_tw}, s{s_rot}, {st-1}')
            a(f's_and_b32 s{s_tw}, s{s_tw}, 15'); a(f's_mul_i32 s{s_tw}, s{s_tw}, {64*6144}')
            a(f'buffer_load_dword v{vd}, v{vtw}, {srd(sW)}, s{s_tw} offen')
        def touchO(k):
            if not self.touch: return
            a(f's_mov_b32 s{s_tw}, {k*(32//xm)*2048}')
            a(f'buffer_load_dword v{vd}, v{vto}, {srd(sWO)}, s{s_tw} offen')
        def phi_load():
            a(f's_mov_b64 s[{sX}:{sX+1}], s[{pPHI}:{pPHI+1}]'); a(f's_mov_b32 s{sX+2}, 65536')
            a.extend(sx(s_t, [(s_g, 4096), (s_h, 2048)])); a(f's_lshl_b32 s{s_t+1}, s{s_h}, 11'); a(f's_add_u32 m0, s{s_t+1}, {P_PHI}')
            for j in range(2): a(f'buffer_load_dwordx4 v{l16}, {srd(sX)}, s{s_t} offen offset:{1024*j} lds')
        vc = 26
        if self.cpf: a(f's_getpc_b64 s[{s_t}:{s_t+1}]')
        if self.cpf: a.label('L_pc')
        if self.cpf: a(f's_sub_u32 s{s_t}, s{s_t}, L_pc-{KNAME}'); a(f's_subb_u32 s{s_t+1}, s{s_t+1}, 0')
        if self.cpf: a(f's_lshr_b32 s{s_t+2}, s2, 3'); a.extend(sx(s_t+3, [(s_t+2, 1280), (s_h, 640)]))
        if self.cpf: a(f'v_lshl_add_u32 v{t0}, v1, 7, s{s_t+3}'); a(f'v_min_u32 v{t0}, L_last-{KNAME}, v{t0}')
        if self.cpf: a(f'v_mov_b32 v{vc+1}, s{s_t+1}'); a(f'v_add_co_u32 v{vc}, vcc, s{s_t}, v{t0}'); a(f'v_addc_co_u32 v{vc+1}, vcc, 0, v{vc+1}, vcc')
        def code_touch():
            a('s_mov_b64 exec, 31'); a(f'global_load_dword v{vd}, {vr(vc,2)}, off'); a('s_mov_b64 exec, -1')
        if self.cpf & 1: code_touch()
        def cold_touch():
            a(f's_and_b32 s{s_t}, s{s_m}, 3'); a(f's_and_b32 s{s_t+1}, s{s_m}, 12')
            a.extend(sx(s_t+2, [(s_t, 16*6144), (s_t+1, 64*6144), (s_h, 64*6144), (s_g, 128)]))
            a(f'v_lshlrev_b32 v{t0}, 11, v1'); a('s_mov_b32 exec_hi, 0xffff')
            for st in self.t0s:
                a(f's_add_u32 s{s_t}, s{s_t+2}, {abs(st)*64*6144}'); a(f'buffer_load_dword v{vd}, v{t0}, {srd(sW)}, s{s_t} offen')
            a('s_mov_b32 exec_hi, -1')
        if self.t0s and self.t0s[0] < 0: cold_touch()
        self.w_dma_offsets(dw, s_h, t0, t1, t2)
        touch_setup(True)
        if self.t0s and self.t0s[0] >= 0: cold_touch()
        for st in range(1, 3 + self.dist): touchW(st)

        def init_stores():
            for k in range(4): a(f'v_mov_b32 v{SA+k}, -1')
            fill = f'buffer_store_dwordx4 {vr(SA,4)}, v{l16}, {srd(sWS)}, s{s_t} offen'
            a.extend(sx(s_t, [(s_g, 131072), (s_h, 65536), (s_m, 2048)], WS_KVP)); a(fill + ' sc1'); a(fill + ' offset:1024 sc1')
            a(f's_add_u32 s{s_t}, s{s_t}, 32768'); a(fill + ' sc1'); a(fill + ' offset:1024 sc1')
            a('s_mov_b64 exec, 0xff')
            a.extend(sx(s_t, [(s_g, 8192), (s_h, 4096), (s_m, 128)], WS_KVF)); a(fill + ' sc1'); a(fill + ' offset:2048 sc1')
            a.extend(sx(s_t, [(s_g, 4096), (s_h, 2048), (s_m, 128)], WS_ZP)); a(fill + ' sc1')
            a.extend(sx(s_t, [(s_g, 256), (s_h, 128)], WS_ZF))
            a(f's_cmp_eq_u32 s{s_m}, s{s_g}'); a(f's_cselect_b32 s{s_t}, s{s_t}, {BIG}'); a(fill + ' sc1')
            a('s_mov_b64 exec, -1')
            a(f'v_lshrrev_b32 v{t1}, 2, v1'); a(f'v_lshlrev_b32 v{t1}, 10, v{t1}'); a(f'v_and_or_b32 v{t1}, v1, 3, v{t1}')
            a.extend(sx(s_t, [(s_m, 64), (s_g, 4)])); a(f'v_add_u32 v{t1}, s{s_t}, v{t1}')
            a(f's_cmp_eq_u32 s{s_h}, 0'); a(f's_cselect_b32 s{s_t+1}, {2 + self.ls}, 7'); a(f's_cselect_b32 s{s_t}, 0, {WS_RF}')
            a(f'v_lshlrev_b32 v{t1}, s{s_t+1}, v{t1}'); a(f'v_mov_b32 v{t0}, 0')
            a('s_mov_b64 exec, 0xfffffff')
            a(f'buffer_store_dword v{t0}, v{t1}, {srd(sWS)}, s{s_t} offen sc1')
            a('s_mov_b64 exec, -1')
            a.extend(sx(s_t, [(s_g, 16384), (s_m, 1024)], WS_CS)); a(f's_cmp_eq_u32 s{s_h}, 1'); a(f's_cselect_b32 s{s_t}, s{s_t}, {BIG}'); a(fill + ' sc1')
        for k in range(4): a(f'v_mov_b32 v{ones+k}, 0x3f803f80')
        def cs_reads(aw=aw):
            for s in range(2):
                for n in range(6):
                    for t in range(2):
                        a(f'ds_read_b64_tr_b16 {vr(F+24*s+4*n+2*t,2)}, v{aw+(n&1)} offset:{(n>>1)*8192+(32*s+4*t)*128}')
            a('s_waitcnt lgkmcnt(0)')
        def cs_publish():
            for s in range(2):
                for n in range(6): a(mf16(D+4*n, ones, F+24*s+4*n, D+4*n if s else None))
            a.extend(sx(s_t, [(s_l, 262144), (s_g, 16384), (s_m, 1024), (s_h, 128)], WS_CS))
            a('s_mov_b64 exec, 0xffff')
            for n in range(6): a(f'buffer_store_dword v{D+4*n}, v{l4}, {srd(sWS)}, s{s_t} offen offset:{(n>>1)*256+(n&1)*64} sc1')
            a('s_mov_b64 exec, -1')
        def chunk(t):
            a(f's_mul_i32 s{s_t}, s{s_m}, {64*6144}'); a(f's_mul_i32 s{s_t+1}, s{s_h}, 12288'); a(f's_add_u32 m0, s{s_t+1}, {L_SPARE + 4096*(t//2)}')
            for j in range(2*t, 2*t+2): a(f'buffer_load_dwordx4 v{dw+j}, {srd(sW)}, s{s_t} offen offset:{1024*(j%4)} lds')
        def arrive():
            a(f's_getreg_b32 s{s_t}, hwreg(HW_REG_XCC_ID, 0, 3)'); a(f's_lshl_b32 s{s_t}, s{s_t}, 2'); a(f's_lshl_b32 s{s_t+1}, 1, s{s_t}')
            a.extend(sx(s_t, [(s_m, 16), (s_rot2, 1)]))
            a('s_mov_b64 exec, 1')
            a(f'v_mov_b32 v{t0}, s{s_t+1}')
            a(f'buffer_atomic_add v{t0}, off, {srd(sDBG)}, s{s_t} sc1')
            a('s_mov_b64 exec, -1')
        iload = f'buffer_load_dword v{vfl}, v{t2}, {srd(sDBG)}, 0 offen sc1'
        def init_look():
            a(f'v_and_b32 v{t2}, 31, v1'); a(f'v_lshlrev_b32 v{t2}, 3, v{t2}'); a(iload)
        def init_wait():
            a('s_waitcnt vmcnt(0)')
            self.spin(['s_sleep 16', iload],
                      [f'v_lshrrev_b32 v{t1}, 4, v{vfl}', f'v_and_b32 v{t1}, 0x0f0f0f0f, v{t1}', f'v_and_b32 v{t3}, 0x0f0f0f0f, v{vfl}',
                       f'v_sad_u8 v{t1}, v{t1}, 0, 0', f'v_sad_u8 v{t3}, v{t3}, 0, v{t1}', f'v_cmp_gt_u32 vcc, 8, v{t3}'], t3, 3, pre=True)
            a(f's_lshr_b32 s{s_t}, s{s_rot2}, 3'); a(f's_lshl_b32 s{s_t+1}, s{s_m}, 1'); a(f's_add_u32 s{s_t}, s{s_t}, s{s_t+1}')
            a(f'v_readlane_b32 s{s_fast}, v{vfl}, s{s_t}')
            a(f's_and_b32 s{s_fast}, s{s_fast}, 0x88888888'); a(f's_cselect_b32 s{s_fast}, {1 if self.local else 0}, 0')
            a(f'v_mov_b32 v{t3}, s{s_fast}'); a(f'v_mov_b32 v{t2}, {P_MODE}'); a(f'ds_write_b32 v{t2}, v{t3}')
        def gather(R, va, so, ks):
            L = []
            for k in ks: L += [f's_add_u32 s{s_t}, s{so}, {4096*(k//2)}', f'buffer_load_dwordx4 {vr(R+4*k,4)}, v{va}, {srd(sWS)}, s{s_t} offen offset:{2048*(k%2)} sc1']
            return L
        def total(R):
            n = 8
            while n > 1:
                n //= 2
                for k in range(4*n): a(f'v_add_f32 v{R+k}, v{R+k}, v{R+k+4*n}')
            a(sw32(R, R+2)); a(sw32(R+1, R+3)); a(f'v_add_f32 v{R}, v{R}, v{R+2}'); a(f'v_add_f32 v{R+1}, v{R+1}, v{R+3}')
        def stats_finish():
            for k in range(2): a(f'v_mov_b32_dpp v{SA+2+k}, v{SA+k} row_shl:4 row_mask:0xf bank_mask:0xf')
            for k in range(2): a(f'v_mul_f32 v{SA+k}, {f2u(-1/1024)}, v{SA+k}'); a(f'v_mul_f32 v{SA+2+k}, {f2u(1/1024)}, v{SA+2+k}')
            for k in range(2): a(f'v_fma_f32 v{SA+2+k}, -v{SA+k}, v{SA+k}, v{SA+2+k}')
            for k in range(2): a(f'v_max_f32 v{SA+2+k}, 0, v{SA+2+k}')
            for k in range(2): a(f'v_add_f32 v{SA+2+k}, {f2u(1e-5)}, v{SA+2+k}')
            for k in range(2): a(f'v_rsq_f32 v{SA+2+k}, v{SA+2+k}')
            a('s_mov_b32 exec_lo, 0x0f0f0f0f'); a('s_mov_b32 exec_hi, 0x0f0f0f0f')
            a(f'ds_write_b64 v{a_st}, {vr(SA,2)}'); a(f'ds_write_b64 v{a_st}, {vr(SA+2,2)} offset:512')
            a('s_mov_b64 exec, -1')
        def cs_finish():
            total(SC)
            a(f's_mul_i32 s{s_t}, s{s_l}, 768'); a(f'v_add_u32 v{t0}, s{s_t}, v{a_cs}')
            a('s_mov_b32 exec_lo, 0xffffff'); a('s_mov_b32 exec_hi, 0xffffff')
            a(f'ds_write_b64 v{t0}, {vr(SC,2)}')
            a('s_mov_b64 exec, -1')
        l0 = [f's_cmp_eq_u32 s{s_l}, 0']; ln0 = [f's_cmp_lg_u32 s{s_l}, 0']; l01 = [f's_cmp_lt_u32 s{s_l}, 2']
        a(f's_mov_b32 s{s_r}, 0')
        a.label('L_hp_layer')
        a.extend(sx(s_a, [(s_l, 262144), (s_m, 16384), (s_h, 512)], WS_ST))
        a.extend(sx(s_b, [(s_l, 262144), (s_g, 16384), (s_h, 384)], WS_CS))
        self.trickle_setup(); self.warm_wo_setup()
        hi = lambda: self.hprio and a(f's_setprio {self.hprio}')
        lo = lambda: self.hprio and a('s_setprio 0')
        l1 = [f's_cmp_eq_u32 s{s_l}, 1']
        for i in range(17):
            a('s_barrier')
            if self.jit and i in (0, 1, 4, 8, 9, 12, 16): self.jitter(30 + i)
            ncs = 16 - self.rot0
            l0h0 = [f's_or_b32 s{s_t}, s{s_l}, s{s_h}', f's_cmp_eq_u32 s{s_t}, 0']
            if i < ncs: self.cond([f's_and_b32 s{s_t}, s{s_m}, {ncs-1}', f's_lshl_b32 s{s_t+1}, s{s_l}, 2', f's_or_b32 s{s_t}, s{s_t}, s{s_t+1}', f's_cmp_eq_u32 s{s_t}, {i}'], cs_reads)
            if i == 8: self.cond(l1, lambda: cs_reads(aw2))
            if i in (self.iw, 5, 7, 13): a('s_waitcnt vmcnt(0)')
            if i == 5: self.cond(ln0, lambda: self.flag_wait(s_r, vrf, vfl, 8, pre=True, nap=self.nap))
            if i == 9: self.cond(l0h0, init_wait)
            if i <= 12: hi()
            if i == 0: self.cond(l0, lambda: (init_stores(), phi_load()))
            if i == self.iw + 1: self.cond(l0h0, arrive)
            if i == 4: self.cond(l0, cs_publish)
            if i == 9: self.cond(l1, cs_publish)
            if i == 8: self.cond(l0h0, init_look)
            if i == 11 and self.cpf & 2: self.cond(l01, code_touch)
            if i == 4: self.cond(ln0, lambda: a(self.flag_load(s_r, vrf, vfl)))
            if i + 3 + self.dist <= 15: touchW(i + 3 + self.dist)
            if 5 <= i <= 8: touchO(i - 5)
            if 1 <= i <= 6: self.cond(l1, lambda: chunk(i - 1))
            if i == 6: self.cond([f's_cmp_eq_u32 s{s_l}, 2'], phi_load)
            if i in (10, 11): a.extend(gather(SA, v_st, s_a, range(4*(i-10), 4*(i-10)+4)))
            if i in (11, 12): self.cond(l01, lambda: a.extend(gather(SC, v_cs, s_b, range(4*(i-11), 4*(i-11)+4))))
            if i <= 12: lo()
            if 1 <= i <= 12: self.trickle(i - 1)
            if i == 13: self.ll_wait(gather(SA, v_st, s_a, range(8)), list(range(SA, SA+32)), t0, t1, 6, pre=True); total(SA)
            if i == 14: stats_finish()
            if i == 14: self.cond(l01, lambda: self.ll_wait(gather(SC, v_cs, s_b, range(8)), list(range(SC, SC+32)), t0, t1, 7, pre=True))
            if i == 15: self.cond(l01, cs_finish); a('s_waitcnt lgkmcnt(0)')
        a.extend(sx(s_t+1, [(s_l, 8192), (s_m, 256), (s_g, 16), (s_h, 4096)])); a(f's_lshl_b32 s{s_t+1}, s{s_t+1}, {self.ls}')
        a(f'v_and_b32 v{t0}, 3, v1'); a(f'v_lshlrev_b32 v{t0}, {2 + self.ls}, v{t0}'); a(f'buffer_load_dword v{vd}, v{t0}, {srd(sWS)}, s{s_t+1} offen sc1')
        a.extend(sx(s_t, [(s_l, 8192), (s_m, 256), (s_rot2, 16)]))
        a(f's_xor_b32 s{s_t}, s{s_t}, 128'); a.extend(sx(s_r, [(s_t, 32), (s_h, 256)], WS_RF))
        a(f's_bitcmp0_b32 s{s_l}, 0')
        a(f's_cselect_b64 s[{sW}:{sW+1}], s[{pBW}:{pBW+1}], s[{pAW}:{pAW+1}]')
        a(f's_cselect_b64 s[{sWO}:{sWO+1}], s[{pBWO}:{pBWO+1}], s[{pAWO}:{pAWO+1}]')
        touch_setup()
        touchW(0); touchW(1); touchW(2)
        a(f's_bitcmp1_b32 s{s_l}, 0'); a('s_cbranch_scc1 L_hp_B')
        self.reduce_job()
        a('s_branch L_hp_join')
        a.label('L_hp_B')
        a('s_barrier')
        a.label('L_hp_join')
        a('s_barrier')
        a(f's_cmp_eq_u32 s{s_l}, 3'); a('s_cbranch_scc1 L_fin')
        self.trickle_rest(1); self.warm_w()
        a(f's_add_u32 s{s_r}, s{s_r}, {4096*32}')
        a(f's_add_u32 s{s_l}, s{s_l}, 1')
        a('s_barrier')
        for st in range(3, 3 + self.dist): touchW(st)
        a('s_branch L_hp_layer')

    def compute(self):
        a = self.a
        one, l16, voffR, voffI, a_tok, a_row, a_t32, a_csr, a_csv = 0, 2, 3, 4, 5, 6, 7, 8, 9
        ax, awq = 10, 12
        l4 = 14; vst = 15
        XR = 16
        ACC = 32
        FX = [128, 144]; FW = [160, 184]
        T = 208
        t0, t1, t2, t3 = T, T+1, T+2, T+3
        s_wm, s_wh, s_rslot, s_delta, s_stg, s_ones = 65, 66, 67, 68, 69, 70
        s_o = 71
        s_ob = 75
        s_obase, s_ooff, s_a, s_b, s_c, s_d, s_e, s_fp, s_st, s_fo = range(77, 87)
        a(f'v_lshrrev_b32 v{t0}, 4, v1')
        a(f'v_and_b32 v{t1}, 15, v1')
        a(f'v_and_b32 v{t2}, 1, v{t0}'); a(f'v_lshrrev_b32 v{t3}, 1, v{t0}'); a(f'v_lshl_add_u32 v{t2}, v{t2}, 1, v{t3}')
        a(f'v_lshlrev_b32 v{voffR}, 11, v{t1}'); a(f'v_lshl_add_u32 v{voffR}, v{t2}, 4, v{voffR}')
        def x0():
            a = self.a
            a.extend(sx(s_t, [(s_m, 1 << 18), (s_wave, 1 << 16), (s_g, 128)])); a(f's_add_u32 s{s_t+1}, s{s_t}, 32768')
            if not self.st0 & 16 and self.xd is None: self.pointers()
            if self.crow & 1:
                a.extend(sx(s_t+2, [(2, 4*6144), (s_wave, 6144)])); a(f'v_lshlrev_b32 v{T+8}, 7, v1'); a('s_mov_b32 exec_hi, 0xffff')
                a(f'buffer_load_dword v{T+9}, v{T+8}, {srd(sW)}, s{s_t+2} offen'); a('s_mov_b32 exec_hi, -1')
            if self.crow & 2:
                a.extend(sx(s_t+2, [(2, 4*4096), (s_wave, 4096)])); a(f'v_lshlrev_b32 v{T+8}, 7, v1'); a('s_mov_b32 exec_hi, 0')
                a(f'buffer_load_dword v{T+9}, v{T+8}, {srd(sX)}, s{s_t+2} offen'); a('s_mov_b32 exec_hi, -1')
            for tb in range(2):
                for e in range(2): a(f'buffer_load_dwordx4 {vr(XR+8*tb+4*e,4)}, v{voffR}, {srd(sX)}, s{s_t+tb} offen offset:{64*e}')
        if self.st0 & 16 or self.xd is not None: self.pointers()
        elif not self.st0 & 8: x0()
        a(f's_lshr_b32 s{s_wm}, s{s_wave}, 1'); a(f's_and_b32 s{s_wh}, s{s_wave}, 1')
        a(f'v_mov_b32 v{one}, 1')
        a(f'v_lshl_add_u32 v{voffI}, v{t2}, 4, v{t1}'); a(f'v_lshlrev_b32 v{voffI}, 4, v{voffI}'); a(f'v_mov_b32 v{vst}, v{voffI}')
        a(f'v_lshlrev_b32 v{l16}, 4, v1'); a(f'v_lshlrev_b32 v{l4}, 2, v1')
        a.extend(sx(s_t, [(s_wm, 256)], P_NM))
        a(f'v_lshl_add_u32 v{a_tok}, v{t1}, 2, s{s_t}')
        a(f'v_lshl_add_u32 v{a_row}, v{t0}, 4, s{s_t}')
        a(f'v_and_b32 v{t3}, 31, v1'); a(f'v_lshl_add_u32 v{a_t32}, v{t3}, 2, s{s_t}')
        a.extend(sx(s_t, [(s_wh, 128)], P_CS))
        a(f'v_lshl_add_u32 v{a_csr}, v{t0}, 4, s{s_t}')
        a(f'v_lshl_add_u32 v{a_csv}, v{t1}, 2, s{s_t}')
        a(f's_mov_b32 s{s_stg}, {STG}'); a(f's_mov_b32 s{s_ones}, 0x3f803f80')
        a(f'v_lshrrev_b32 v{t2}, 1, v{t1}'); a(f'v_xor_b32 v{t2}, v{t2}, v{t0}')
        a.extend(sx(s_t, [(s_wm, 8192)], XOFF)); a(f'v_lshl_add_u32 v{t1}, v{t1}, 7, s{s_t}')
        for s in range(2):
            a(f'v_xor_b32 v{t3}, {4*s}, v{t2}'); a(f'v_lshl_add_u32 v{ax+s}, v{t3}, 4, v{t1}')
        a.extend(sx(s_st, [(s_m, 16384), (s_g, 1024), (s_wave, 256)], WS_ST))

        q = 216
        def stats():
            S = []
            for k in range(8):
                for tb in range(2):
                    r = XR + 8*tb + k
                    S += [f'v_dot2_f32_bf16 v{q+2*tb}, s{s_ones}, v{r}, ' + (f'v{q+2*tb}' if k else '0'),
                          f'v_dot2_f32_bf16 v{q+2*tb+1}, v{r}, v{r}, ' + (f'v{q+2*tb+1}' if k else '0')]
            return S + [sw32(q, q+2), sw32(q+1, q+3), pk('add', q, q, q+2), sw16(q, q+1), f'v_add_f32 v{q}, v{q}, v{q+1}']
        st_store = f'buffer_store_dword v{q}, v{l4}, {srd(sWS)}, s{s_st} offen sc1'
        def acc(b, n): return ACC + 4*(6*b + n)
        A2 = 208
        def reads(s, st, slot=0):
            x, w, o = (ax, awq, STG*slot) if slot < 2 else (A2, A2+2, 0)
            X = [f'ds_read_b128 {vr(FX[st]+4*b,4)}, v{x+s} offset:{o+2048*b}' for b in range(4)]
            W = [[f'ds_read_b64_tr_b16 {vr(FW[st]+4*n+2*t,2)}, v{w+(n&1)} offset:{o+(n>>1)*8192+(32*s+4*t)*128}' for t in range(2)] for n in range(6)]
            L = [X[0]] + W[0] + X[1:]
            for n in range(1, 6): L += W[n]
            return L
        def mfma(st, b, n, zero=False):
            C = None if zero else acc(b, n)
            return mf16(acc(b, n), FW[st]+4*n, FX[st]+4*b, C) if n < 4 else mf16(acc(b, n), FX[st]+4*b, FW[st]+4*n, C)
        def mfmas(st, zero=False):
            return [mfma(st, b, n, zero) for n in range(6) for b in (range(4) if not (self.snake and n % 2) else range(3, -1, -1))]
        env = dict(locals())
        a.extend(self.w_frag_addr(awq, s_wh, 0, t0, t1, t2))
        self.epiA(env, 'v')
        if self.st0 & 8: x0()
        a(f'v_mov_b32 v{q}, -1'); a(st_store)
        a(f's_sub_u32 s{s_st}, s{s_st}, 262144')
        a.label('L_first')
        a('s_barrier')
        self.stamp(12)
        if self.st0 & 16: self.cond([f's_cmp_eq_u32 s{s_l}, 0'], x0)
        S = autowait(reads(0, 0) + interleave(mfmas(0, True), reads(1, 1), per=[0]*4 + [1]*20))
        cut = [k for k, t in enumerate(S) if t.startswith('v_mfma')][self.fpos-1] + 1
        a.extend(S[:cut])
        a('s_waitcnt vmcnt(0)')
        self.stamp(11)
        self.cond([f's_cmp_lg_u32 s{s_l}, 0'], lambda: self.flag_set(s_fo, one))
        a.extend(S[cut:])
        a('s_waitcnt lgkmcnt(0)')
        S = [f'v_add_u32 v{A2+k}, {2*STG}, v{ax+k}' for k in range(4)] + [f's_mov_b32 s{s_i}, 0']
        assert awq == ax + 2
        S += sx(s_t, [(s_l, 1 << 22), (s_m, 1 << 18)], WS_OI)
        S += sx(s_obase, [(s_wave, 1 << 16), (s_t, 1)]) + [f's_lshl_b32 s{s_ooff}, s{s_rot2}, 11']
        S += [f's_add_u32 s{s_ob}, s{s_obase}, s{s_ooff}', f's_add_u32 s{s_ob+1}, s{s_ob}, 32768']
        S += sx(s_a, [(s_wm, 1 << 17), (s_g, 2048), (s_wh, 1024), (s_t, 1)])
        S += sx(s_o, [(s_g, 16384), (s_wave, 4096), (s_t, 1)], WS_XI - WS_OI) + [f's_add_u32 s{s_o+k}, s{s_o}, {1024*k}' for k in range(1, 4)]
        S += sx(s_fp, [(s_l, 8192), (s_m, 256)]) + sx(s_fo, [(s_g, 16), (s_wave, 4), (s_fp, 1)]) + sx(s_fo+1, [(s_fo, 32)], WS_RF) + [f's_lshl_b32 s{s_fo}, s{s_fo}, {self.ls}']
        S += sx(s_t, [(s_wm, 8), (s_rot2, 16)]) + [f's_add_u32 s{s_fp}, s{s_fp}, s{s_t}']
        a.extend(interleave(mfmas(1), S, per=[2]*20 + [3]*4))
        if self.lfl == 2: self.cond([f's_cmp_lg_u32 s{s_l}, 0'], lambda: (a(f's_sub_u32 s{s_t+1}, s{s_fo+1}, {4096*32}'), self.flag_set(s_t, one, 2)))
        a(f's_bitcmp1_b32 s{s_l}, 0'); a('s_cbranch_scc1 L_preB')
        self.epiA(env, 's')
        a('s_branch L_pre_done')
        a.label('L_preB')
        self.epiB(env, 's')
        def last():
            a(f's_mov_b64 s[{sOUT}:{sOUT+1}], s[{pOUT}:{pOUT+1}]'); a(f's_mov_b32 s{sOUT+2}, {2048*1024*2}')
            a.extend(sx(s_o, [(s_m, 1 << 18), (s_wave, 1 << 16), (s_g, 128)]))
            a(f's_add_u32 s{s_o+1}, s{s_o}, 64'); a(f's_add_u32 s{s_o+2}, s{s_o}, 32768'); a(f's_add_u32 s{s_o+3}, s{s_o}, {32768+64}')
            a(f'v_mov_b32 v{vst}, v{voffR}')
        self.cond([f's_cmp_eq_u32 s{s_l}, 3'], last)
        a.label('L_pre_done')
        a(f's_add_u32 s{s_st}, s{s_st}, 262144')
        if self.xd is not None: a(f's_cmp_eq_u32 s{s_l}, 0'); a(f's_cselect_b32 s{s_rslot}, 6, 0'); a('s_cbranch_scc1 L_go')
        a.extend(stats()); a(st_store)
        a.label('L_go')
        a('s_barrier')
        self.stamp(1)
        a.extend(reads(0, 0, 1))
        a('s_branch L_q1')
        nb = self.bpos + 1
        def half0(slot):
            if self.prof >= 5:
                a('s_memtime s[92:93]' if self.prof == 5 else 's_memrealtime s[92:93]'); a(f's_lshl_b32 m0, s{s_l}, 4'); a(f's_add_u32 m0, m0, s{s_i}'); a(f's_add_u32 m0, m0, {(slot+2)%3+1}')
            if self.probe and self.probe[1][1] >= 20 and (self.probe[1][1] - 20) % 3 == slot:
                self.cond([f's_cmp_eq_u32 s{s_i}, {(self.probe[1][1] - 21) // 3 * 3}'], lambda: self.stamp(self.probe[1][1]))
            if slot == self.xd:
                a(f's_cmp_lt_u32 s{s_i}, s{s_rslot}'); a('s_cbranch_scc1 L_x0'); a.label('L_x0_back')
                def ev():
                    a = self.a
                    a.label('L_x0'); a(f's_cmp_eq_u32 s{s_i}, 0'); a('s_cbranch_scc0 L_x0_stats')
                    x0(); a('s_branch L_x0_back')
                    a.label('L_x0_stats'); a('s_waitcnt vmcnt(0)'); a.extend(stats()); a(st_store); a('s_branch L_x0_back')
                self.aside(ev)
            a('s_waitcnt lgkmcnt(0)')
            F = reads(1, 1, slot)
            if self.prof >= 5: F = ['v_writelane_b32 v255, s92, m0'] + F
            if slot == 0: F += [f's_add_u32 s{s_i}, s{s_i}, 3', f's_cmp_lt_u32 s{s_i}, 15']
            a.extend(interleave(mfmas(0), F, per=[0]*self.r0 + [1]*24))
            a('s_waitcnt lgkmcnt(0)')
            a.extend(mfmas(1)[:nb]); a('s_barrier')
        def half1(slot):
            R = reads(0, 0, (slot+1) % 3)
            a(R[0]); a.extend(interleave(mfmas(1)[nb:], R[1:], per=[1]*24))
        a('.p2align 6')
        a.label('L_q')
        half1(0)
        a.label('L_q1')
        half0(1); half1(1); half0(2); half1(2); half0(0)
        a('s_cbranch_scc1 L_q')
        a.label('L_tail')
        self.stamp(2)
        a(f's_bitcmp1_b32 s{s_l}, 0'); a('s_cbranch_scc1 L_epiB')
        self.epiA(env, False)
        a('s_branch L_ophase')
        a.label('L_epiB')
        self.epiB(env, False)
        a.label('L_ophase')
        PD = self.pd; NR = PD + 1
        OA, OW, awo, vf, RING = 128, [160, 176], 192, 196, 32
        assert RING + 8*NR <= 128
        u0, u1, u2, vrf, vot, vxw = 197, 198, 199, 204, 205, 206
        a(f'v_mov_b32 v{u0}, {P_MODE}'); a(f'ds_read_b32 v{u0}, v{u0}')
        def oacc(tb, nb): return OA + 16*tb + 4*nb
        for k in range(4):
            a(sw16(XR+4*k, XR+4*k+2)); a(sw16(XR+4*k+1, XR+4*k+3))
        a('s_waitcnt lgkmcnt(0)'); a(f'v_readfirstlane_b32 s{s_fast}, v{u0}')
        a(f's_xor_b32 s{s_t}, s{s_fp}, 128'); a.extend(sx(s_e, [(s_t, 32)], WS_RF))
        a.extend(self.flag_addr(vrf, u1, None, remote=True))
        a.extend(self.flag_addr(vf, u1, s_fp))
        s_fq = s_d
        a(f's_cmp_eq_u32 s{s_fast}, 1'); a(f's_cselect_b32 s{s_fq}, s{s_fp}, {BIG}')
        for r in range(16):
            a(f'v_lshlrev_b32 v{OA+2*r}, 16, v{XR+r}'); a(f'v_and_b32 v{OA+2*r+1}, 0xffff0000, v{XR+r}')
        def oreads(h):
            return [f'ds_read_b64_tr_b16 {vr(OW[h&1]+4*nb+2*t,2)}, v{awo+nb} offset:{(h&15)*4096+512*t}' for nb in range(4) for t in range(2)]
        a('s_waitcnt vmcnt(0)')
        self.stamp(8)
        self.flag_set(s_fo, one, 1)
        a(self.flag_load(s_fq, vf, u0, self.pf))
        self.flag_set(s_fo, one, 2)
        a.extend(self.w_frag_addr(awo, None, L_WO, vxw, u1, u2, nb_list=(0, 1, 2, 3)))
        if not self.bw: a('s_barrier'); a.extend(oreads(0))
        def next_consts():
            a(f's_cmp_eq_u32 s{s_wh}, 0'); a('s_cselect_b64 vcc, -1, 0')
            for k in range(2): a(f'v_cndmask_b32 v{awq+k}, v{awo+2+k}, v{awo+k}, vcc')
            for k in range(2): a(f'v_subrev_u32 v{awq+k}, {L_WO}, v{awq+k}')
            a.extend(sx(s_t, [(s_wm, 8192)], XOFF)); a(f'v_add_u32 v{ax}, s{s_t}, v{l16}'); a(f'v_add_u32 v{ax+1}, 1024, v{ax}')
            a.extend(sx(s_t, [(s_wave, 4096)], XOFF)); a(f'v_add_u32 v{vxw}, s{s_t}, v{voffI}')
            a(f's_bitcmp1_b32 s{s_l}, 0'); a('s_cbranch_scc1 L_nextA')
            self.epiB(env, 'v')
            a('s_branch L_next_done')
            a.label('L_nextA')
            self.cond([f's_cmp_lg_u32 s{s_l}, 3'], lambda: self.epiA(env, 'v'))
            a.label('L_next_done')
        if not self.vpos: next_consts()
        self.flag_wait(s_fp, vf, u0, 4, pre='s_waitcnt vmcnt(1) lgkmcnt(0)', own=True)
        self.stamp(9)
        def oload(h, tb):
            L = [f'buffer_load_dwordx4 {vr(RING+8*(h%NR)+4*tb,4)}, v{l16}, {srd(sWS)}, s{s_ob+tb} offen offset:{1024*(h&3)} sc1']
            if h & 3 == 3 and h < 31:
                if tb == 0: L += [f's_add_u32 s{s_ooff}, s{s_ooff}, 4096', f's_and_b32 s{s_ooff}, s{s_ooff}, 0x7fff', f's_add_u32 s{s_ob}, s{s_obase}, s{s_ooff}']
                else: L += [f's_add_u32 s{s_ob+1}, s{s_ob}, 32768']
            return L
        S = []
        for h in range(PD):
            S += oload(h, 0) + oload(h, 1)
            if self.bw and h == 3: S += ['s_barrier'] + oreads(0)
        S.append('s_nop 2')
        hc = self.hc or 15 - PD
        DL = self.dl; assert DL <= PD and DL % 2 == 0
        UN = [(p, nb) for p in range(32 - DL) for nb in range(4)] + [(p, nb) for e in range(2) for p in range(32 - DL, 32) for nb in (2*e, 2*e+1)]
        def out(k4):
            return [cvt(XR+4*k4+k, OA+8*k4+2*k, OA+8*k4+2*k+1) for k in (0, 2, 1, 3)], [sw16(XR+4*k4, XR+4*k4+2), sw16(XR+4*k4+1, XR+4*k4+3)], [
                    f'buffer_store_dwordx4 {vr(XR+4*k4,4)}, v{vst}, {srd(sOUT)}, s{s_o+k4} offen sc1', f'ds_write_b128 v{vxw}, {vr(XR+4*k4,4)} offset:{1024*k4}']
        early = (out(0)[0] + out(2)[0][:2] + out(0)[1] + out(2)[0][2:] + out(0)[2][:1] + out(2)[1] + out(0)[2][1:] + out(2)[2]) if DL else []
        for h in range(32):
            if h == 15: S += [f'v_add_u32 v{awo+nb}, 0x10000, v{awo+nb}' for nb in range(4)]
            for k in range(8):
                u, tb = 4*h + k//2, k % 2
                p, nb = UN[u]
                S.append(mf16(oacc(tb, nb), OW[0]+4*(u%8), RING+8*(p%NR)+4*tb, oacc(tb, nb)))
                if u + 4 < 128:
                    p2, nb2 = UN[u+4]
                    S.append(f'ds_read_b64_tr_b16 {vr(OW[0]+4*((u+4)%8)+2*tb,2)}, v{awo+nb2} offset:{(p2&15)*4096+512*tb}')
                for j in range(2):
                    if k == self.opos[j] and h + PD < 32 and not (h + PD >= 16 and h <= hc): S += oload(h+PD, j)
                if 2*u + tb >= 256 - 4*DL + 2:
                    n = 2
                    S += early[:n]; early = early[n:]
            if h == self.hq: S.append(self.flag_load(s_e, vrf, u1))
            if h == hc:
                S += [f'v_cmp_eq_u32 vcc, 0, v{u1}', 's_nop 1']
                for p in range(16, hc + PD + 1): S += oload(p, 0) + oload(p, 1)
            if self.fine == 4 and h in self.oh: S.append(f's_nop {4 + self.oh.index(h)}')
            if h == self.bm: S.append('s_barrier')
        S = autowait(S + early); cut0 = S.index('s_nop 2'); cut = S.index('s_nop 1'); S.pop(cut)
        a.extend(S[:cut0])
        if self.vpos: next_consts()
        def emit(L):
            for t in L:
                if t in ('s_nop 4', 's_nop 5'): self.stamp(13 + int(t[-1]) - 4)
                else: a(t)
        emit(S[cut0+1:cut])
        self.flag_wait(s_e, vrf, u1, 9, pre=True, nap=self.nap, checked=True)
        emit(S[cut:])
        self.stamp(10)
        self.sw(sum((sum(out(k4), []) for k4 in ((1, 3) if DL else (0, 2, 1, 3))), []), crit=lambda t: t.startswith('buffer'))
        a(f's_cmp_eq_u32 s{s_l}, 3'); a('s_cbranch_scc1 L_fin')
        a(f's_add_u32 s{s_fo}, s{s_fo}, {4096 << self.ls}'); a(f's_add_u32 s{s_fo+1}, s{s_fo+1}, {4096*32}')
        a(f's_add_u32 s{s_l}, s{s_l}, 1')
        a('s_waitcnt lgkmcnt(0)')
        a('s_branch L_first')

    def epiA(self, E, pre):
        a = self.a
        acc = E['acc']; a_tok, a_row, a_t32, a_csr, a_csv, l16, l4 = (E[k] for k in ('a_tok', 'a_row', 'a_t32', 'a_csr', 'a_csv', 'l16', 'l4'))
        s_wm, s_wh, s_a, s_b, s_c, s_d, s_e = (E[k] for k in ('s_wm', 's_wh', 's_a', 's_b', 's_c', 's_d', 's_e'))
        PK = [128, 144]; EP, KV0, ZA, NR = 160, 176, 192, 208
        wphi, nml, c32, csv = 224, 232, 236, 238
        SEL = 240; ZK, ZS = ZA, ZA + 8
        a_phi, a_w, a_r0, a_r1, a_z, x_w, x_r = range(248, 255)
        csk = EP; csq = NR
        nmr = [KV0, EP+8, NR, NR+8]
        if pre == 'v':
            u0, u1, u2, u3, u4 = range(208, 213)
            S = [f'v_lshrrev_b32 v{u0}, 5, v1', f'v_bfe_u32 v{u1}, v1, 2, 2', f'v_lshl_add_u32 v{u1}, v{u0}, 3, v{u1}',
                 f'v_bfe_u32 v{u2}, v1, 4, 1', f'v_and_b32 v{u3}, 3, v1', f'v_lshlrev_b32 v{u4}, 3, v{u3}', f'v_lshl_add_u32 v{u2}, v{u2}, 5, v{u4}']
            S += sx(s_t, [(s_wh, 2048)], P_PHI) + [f'v_lshl_add_u32 v{u4}, v{u1}, 6, v{u2}', f'v_add_u32 v{a_phi}, s{s_t}, v{u4}']
            S += [f's_mul_i32 s{s_t+2}, s{s_wave}, {SCR}',
                  f'v_mul_u32_u24 v{u1}, 136, v{u1}', f'v_add3_u32 v{u1}, v{u1}, v{u2}, s{s_t+2}',
                  f's_lshl_b32 s{s_t+1}, s{s_wm}, 6', f'v_add_u32 v{a_r0}, s{s_t+1}, v{u1}',
                  f's_xor_b32 s{s_t+3}, s{s_t+1}, 64', f'v_add_u32 v{a_r1}, s{s_t+3}, v{u1}',
                  f'v_and_b32 v{u4}, 31, v1', f'v_mul_u32_u24 v{u4}, 136, v{u4}', f'v_lshl_add_u32 v{u4}, v{u0}, 3, v{u4}', f'v_add_u32 v{a_w}, s{s_t+2}, v{u4}',
                  f'v_add_u32 v{x_w}, s{s_t+2}, v{l16}', f's_xor_b32 s{s_t}, s{s_wave}, 2', f's_mul_i32 s{s_t}, s{s_t}, {SCR}', f'v_add_u32 v{x_r}, s{s_t}, v{l16}']
            S += [f'v_lshrrev_b32 v{u4}, 4, v1', f'v_xor_b32 v{u4}, v{u4}, v1', f'v_and_b32 v{u4}, 1, v{u4}', f'v_cmp_eq_u32 vcc, 0, v{u4}', f'v_mov_b32 v{u4}, 0x3f803f80',
                  f'v_cndmask_b32 v{SEL}, 0, v{u4}, vcc', f'v_mov_b32 v{SEL+1}, v{SEL}', f'v_mov_b64 {vr(SEL+2,2)}, {vr(SEL,2)}']
            S += [f'v_and_b32 v{u0}, 18, v1', f'v_lshlrev_b32 v{u0}, 1, v{u0}', f'v_and_or_b32 v{u0}, v1, 8, v{u0}', f'v_and_b32 v{u1}, 4, v1',
                  f'v_lshl_or_b32 v{u0}, v{u1}, 2, v{u0}', f'v_and_b32 v{u1}, 33, v1', f'v_lshl_or_b32 v{a_z}, v{u1}, 25, v{u0}',
                  f'v_lshl_or_b32 v{a_z}, v{u1}, 30, v{a_z}']
            a.extend(S)
            return
        if pre == 's':
            S = sx(s_t, [(s_l, 16), (s_g, 2), (s_wh, 1)])
            S += sx(s_d, [(s_t, 65536), (s_wm, 32768), (s_m, 2048)], WS_KVP) + sx(s_e, [(s_t, 2048), (s_m, 128), (s_wm, 64)], WS_ZP)
            S += sx(s_b, [(s_t, 128)], WS_ZF) + sx(s_c, [(s_t, 4096)], WS_KVF)
            a.extend(S)
            return
        S = []
        for b in range(4): S.append(f'ds_read_b32 v{nml+b}, v{a_tok} offset:{64*b}')
        for nb in range(2): S.append(f'ds_read_b128 {vr(csk+4*nb,4)}, v{a_csr} offset:{256+64*nb}')
        for u in range(2):
            for t in range(2): S.append(f'ds_read_b64_tr_b16 {vr(wphi+4*u+2*t,2)}, v{a_phi} offset:{(16*t+4*u)*64}')
        for nb in range(2): S.append(f'ds_read_b32 v{csv+nb}, v{a_csv} offset:{512+64*nb}')
        for b in range(4):
            S.append(f'ds_read_b128 {vr(nmr[b],4)}, v{a_row} offset:{64*b}')
            S.append(f'ds_read_b128 {vr(nmr[b]+4,4)}, v{a_row} offset:{512+64*b}')
            if b == 0:
                for Tt in range(2): S.append(f'ds_read_b32 v{c32+Tt}, v{a_t32} offset:{512+128*Tt}')
        def qk_prep(n0, cs):
            L = []
            for b in range(4):
                for k in range(4): L.append(pk('fma', acc(b, n0)+2*k, cs+2*k, ('b', nml+b), acc(b, n0)+2*k))
                for k in range(4): L.append(cvt(acc(b, n0)+k, acc(b, n0)+2*k, acc(b, n0)+2*k+1))
            for Tt in range(2):
                for k in range(4): L.append(sw16(acc(2*Tt, n0)+k, acc(2*Tt+1, n0)+k))
                L += [mf32(PK[Tt], wphi, acc(2*Tt, n0)), mf32(PK[Tt], wphi+4, acc(2*Tt+1, n0), PK[Tt])]
            return L
        def vprep(b):
            r = acc(b, 4); P, C = [], []
            for nb in range(2):
                for p in range(2): P.append(pk('fma', r+4*nb+2*p, nmr[b]+2*p, ('b', csv+nb), r+4*nb+2*p))
            for nb in range(2):
                for p in range(2): P.append(pk('mul', r+4*nb+2*p, r+4*nb+2*p, nmr[b]+4+2*p))
            for k in range(4): C.append(cvt(r+k, r+2*k, r+2*k+1))
            return P, C, [sw16(r, r+2), sw16(r+1, r+3)]
        def softmax(Tt):
            x = PK[Tt]; c = c32 + Tt
            ta, tb = ((acc(2, 3), acc(3, 3)), (acc(2, 2), acc(3, 2)))[Tt]
            mx, mn, bp, bm = ta, ta+1, tb, tb+1
            L = [f'v_max3_f32 v{mx}, v{x}, v{x+1}, v{x+2}', f'v_max3_f32 v{mn}, -v{x}, -v{x+1}, -v{x+2}']
            for k in range(3, 15, 2):
                L += [f'v_max3_f32 v{mx}, v{mx}, v{x+k}, v{x+k+1}', f'v_max3_f32 v{mn}, v{mn}, -v{x+k}, -v{x+k+1}']
            L += [f'v_max_f32 v{mx}, v{mx}, v{x+15}', f'v_max_f32 v{mn}, v{mn}, -v{x+15}']
            L += [sw32(mx, mn), f'v_max_f32 v{mx}, v{mx}, v{mn}', f'v_mul_f32 v{bm}, -v{mx}, v{c}', f'v_mov_b32 v{bp}, v{bm}', sw32(bp, bm)]
            parts = [L]; L = []
            for k in range(0, 16, 2): L.append(pk('fma', EP+k, x+k, ('b', c), ('b', bp)))
            for k in range(0, 16, 2): L.append(pk('fma', x+k, x+k, ('b', c), ('b', bm), neg=[1, 0, 0]))
            parts.append(L); L = []
            for k in range(16): L.append(f'v_exp_f32 v{EP+k}, v{EP+k}')
            for k in range(16): L.append(f'v_exp_f32 v{x+k}, v{x+k}')
            parts.append(L); L = []
            sp, sm = ta, ta+2
            r1, r2 = tb+2, tb+3
            L += [pk('add', sp, EP, EP+2), pk('add', sm, x, x+2)]
            for k in range(4, 16, 2): L += [pk('add', sp, sp, EP+k), pk('add', sm, sm, x+k)]
            L += [f'v_add_f32 v{sp}, v{sp}, v{sp+1}', f'v_add_f32 v{sm}, v{sm}, v{sm+1}', sw32(sp, sm), f'v_add_f32 v{sp}, v{sp}, v{sm}',
                  f'v_rcp_f32 v{r2}, v{sp}', f'v_mov_b32 v{r1}, v{r2}', sw32(r1, r2)]
            for k in range(0, 16, 2): L.append(pk('mul', x+k, x+k, ('b', r2)))
            for k in range(8): L.append(cvt(x+k, x+2*k, x+2*k+1))
            for k in range(0, 16, 2): L.append(pk('mul', EP+k, EP+k, ('b', r1)))
            for k in range(8): L.append(cvt(x+8+k, EP+2*k, EP+2*k+1))
            return parts + [L]
        FR = [[acc(0, 2), acc(0, 3)], [acc(1, 2), acc(1, 3)]]
        def to_lds(x):
            return [f'ds_write_b64 v{a_w}, {vr(x+8*(1-sg)+2*j,2)} offset:{64*sg+16*j}' for sg in (1, 0) for j in range(4)]
        def frags():
            return [f'ds_read_b64_tr_b16 {vr(FR[k][u]+2*tt,2)}, v{(a_r0, a_r1)[k]} offset:{(16*u+4*tt)*136}' for k in (1, 0) for u in range(2) for tt in range(2)]
        KV1 = PK[0]
        def kvm(Tt):
            L = []
            for k, K, Z in ((1, KV1, ZS), (0, KV0, ZK)):
                for u in range(2): L.append(mf32(K, FR[k][u], acc(2*Tt+u, 4), None if (Tt == 0 and u == 0) else K))
                for u in range(2): L.append(mf16(Z, SEL, FR[k][u], None if (Tt == 0 and u == 0) else Z))
            return L
        sc = sched if self.sch else (lambda L: L)
        K = qk_prep(2, csk); isM = lambda t: t.startswith('v_mfma')
        VP_ = [vprep(b) for b in range(4)]
        sm0, sm1 = softmax(0), softmax(1)
        mfma = E['mfma']
        TM = [mfma(1, b, n) for b in range(4) for n in (2, 3)] + [mfma(1, b, n) for b in range(4) for n in (4, 5)] + [mfma(1, b, 1) for b in range(4)] + [mfma(1, b, 0) for b in range(self.bpos+1, 4)]
        K01 = []
        for b in range(2):
            K01 += [f'v_fmac_f32 v{acc(b,2)+k}, v{csk+k}, v{nml+b}' for k in range(8)] + K[8*b+4:8*b+8]
        S = interleave(TM, S + K01, per=[2]*24)
        S += sc([t for t in K[16:] if not isM(t)] + [f'v_mul_f32 v{c32+Tt}, {f2u(LOG2E)}, v{c32+Tt}' for Tt in range(2)] + VP_[0][0] + VP_[1][0])
        def cutA(n, k):
            nonlocal S
            if self.fine == n: self.aw(S + ['s_waitcnt lgkmcnt(0)']); S = []; self.stamp(k)
        cutA(1, 12)
        S += sc([t for t in K if isM(t)] + VP_[0][1] + VP_[1][1] + VP_[0][2] + VP_[1][2] + sm0[0])
        cutA(1, 13)
        def mixed(sm, extra):
            F, X, A = sm[1], sm[2], sm[3][:14]
            A = A[0::2] + A[1::2]; extra = list(extra); L = F[:2]
            for k in range(16):
                L += [X[2*k]] + F[k+2:k+3] + [X[2*k+1]]
                j = k - 2 if k < 9 else k - 3
                if k >= 2 and k != 9: L.append(A[j])
                if extra: L.append(extra.pop(0))
            return L + extra + A[13:]
        if self.mix: S += mixed(sm0, sm1[0][:16]) + sc(sm1[0][16:] + sm0[3][14:] + to_lds(PK[0]) + frags())
        else: S += sc(sm0[1] + sm0[2] + sm1[0] + sm0[3] + to_lds(PK[0]) + frags())
        cutA(1, 14)
        if self.mix: S += sm1[1][:2] + interleave(sm1[2][:14], sm1[1][2:], per=[1]*14) + interleave(kvm(0), sm1[2][14:], per=[3, 3, 1, 1, 3, 3, 1, 3])
        else: S += sm1[1] + interleave(kvm(0), sm1[2], per=[3, 3, 1, 1, 3, 3, 1, 1])
        cutA(2, 12)
        S += sc(sm1[3] + to_lds(PK[1]) + frags() + sum((VP_[b][k] for k in range(3) for b in (2, 3)), []), lambda t: t.startswith('ds_read'))
        cutA(2, 13)
        M = kvm(1)
        X = [f'ds_write_b128 v{x_w}, {vr(KV1+4*k,4)} offset:{1024*k}' for k in range(4)]
        hi16 = ['s_mov_b32 vcc_lo, 0xffff0000', 's_mov_b32 vcc_hi, 0xffff0000']
        S += M[0:2] + hi16 + M[2:6] + X + [f'v_cndmask_b32 v{ZS}, v{ZS}, v{ZS+1}, vcc', f'ds_write_b32 v{x_w}, v{ZS} offset:4096'] + M[6:8]
        cutA(2, 14)
        self.aw(S); S = []
        S += ['s_waitcnt lgkmcnt(0)', 's_barrier']
        S.append(f'ds_read_b32 v{csv}, v{x_r} offset:4096')
        for k in range(4): S.append(f'ds_read_b128 {vr(EP+4*k,4)}, v{x_r} offset:{1024*k}')
        add = [pk('add', KV0+2*k, KV0+2*k, EP+2*k) for k in range(8)]
        cv = [cvt(KV0+8*(k//4)+k%4, KV0+2*k, KV0+2*k+1) for k in range(8)]
        st = [f'buffer_store_dwordx4 {vr(KV0+8*u,4)}, v{l16}, {srd(sWS)}, s{s_d} offen offset:{1024*u} sc1' for u in range(2)]
        S += [f'v_cndmask_b32 v{ZK}, v{ZK}, v{ZK+1}, vcc', f'v_add_f32 v{ZK}, v{ZK}, v{csv}'] + add[:2]
        S += [f'v_mov_b32_dpp v{ZK+3}, v{ZK} quad_perm:[1,0,3,2] row_mask:0xf bank_mask:0xf'] + add[2:4] + cv[:4] + st[:1] + [cvt(ZK, ZK, ZK+3)]
        S += add[4:] + [f'buffer_store_dword v{ZK}, v{a_z}, {srd(sWS)}, s{s_e} offen sc1'] + cv[4:] + st[1:]
        self.aw(S); S = []
        if not self.yw: a('s_barrier')
        self.stamp(3)
        u3, u4 = ZA + 4, ZA + 5
        for nb in range(2): S.append(f'ds_read_b128 {vr(csq+4*nb,4)}, v{a_csr} offset:{64*nb}')
        S += qk_prep(0, csq) + sum(softmax(0) + softmax(1), [])
        S += [f'v_lshrrev_b32 v{u3}, 5, v1', f'v_and_b32 v{u4}, 2, v1', f'v_lshlrev_b32 v{u4}, 5, v{u4}', f'v_lshl_add_u32 v{a_z}, v{u3}, 4, v{u4}',
              f'v_not_b32 v{u4}, v{SEL}', f'v_and_b32 v{u4}, 0x20000000, v{u4}', f'v_lshl_or_b32 v{a_z}, v{u4}, 1, v{a_z}',
              f'v_bfe_u32 v{u4}, v1, 4, 1', f'v_lshlrev_b32 v{u4}, 15, v{u4}', f'v_lshl_add_u32 v{u4}, v{u3}, 8, v{u4}',
              f'v_and_b32 v{u3}, 15, v1', f'v_lshl_add_u32 v{a_w}, v{u3}, 4, v{u4}', f's_add_u32 s{s_d}, s{s_a}, 65536']
        if self.yw:
            S = sched(S); S.insert(self.yw, 's_barrier'); self.aw(S); S = []
        else: self.sw(S, name='A q-part'); S = []
        self.stamp(4)
        a('s_barrier')
        self.stamp(7)
        KF = KV0; ZF = EP
        if self.b2: a(f's_sleep {self.b2}')
        self.ll_wait(([f's_sleep {self.n2}'] if self.n2 else []) + [f'buffer_load_dwordx4 {vr(ZF+4*u,4)}, v{a_z}, {srd(sWS)}, s{s_b} offen offset:{32*u} sc1' for u in range(2)] +
                     [f'buffer_load_dwordx4 {vr(KF+4*k,4)}, v{l16}, {srd(sWS)}, s{s_c} offen offset:{1024*k} sc1' for k in range(4)],
                     list(range(ZF, ZF+8)) + list(range(KF, KF+16)), u3, u4, 5)
        self.stamp(5)
        ACC = E['ACC']
        den, num, rcp, fin = [], [], [], []
        for Tt in range(2):
            N, DP, DM = ACC + 48*Tt, ACC + 48*Tt + 16, ACC + 48*Tt + 32
            x = PK[Tt]
            den.append([mf16(DP, ZF, x+8), mf16(DM, ZF, x), mf16(DP, ZF+4, x+12, DP), mf16(DM, ZF+4, x+4, DM)])
            num.append([mf32(N, KF, x+8), mf32(N, KF+4, x+12, N), mf32(N, KF+8, x, N), mf32(N, KF+12, x+4, N)])
            rcp.append([f'v_add_f32 v{DP}, v{DP}, v{DM+2}', f'v_add_f32 v{DP+1}, v{DP+1}, v{DM+3}', f'v_cndmask_b32 v{DP}, v{DP}, v{DP+1}, vcc',
                        f'v_add_f32 v{DP}, {f2u(1e-6)}, v{DP}', f'v_rcp_f32 v{DP}, v{DP}'])
            L = []
            for p in range(2):
                R = [(N + 4*(p + 2*jj) + 2*k, DM+4+4*p+2*jj+k) for jj in range(2) for k in range(2)]
                for r, d in R:
                    if Tt == 0: L += [f'v_mul_f32 v{r}, v{DP}, v{r}', f'v_mul_f32 v{r+1}, v{DP}, v{r+1}']
                    else: L.append(pk('mul', r, r, ('b', DP)))
                L += [cvt(d, r, r+1) for r, d in R]
                L.append(f'buffer_store_dwordx4 {vr(DM+4+4*p,4)}, v{a_w}, {srd(sWS)}, s{(s_a, s_d)[Tt]} offen offset:{512*p} sc1')
            fin.append(L)
        a.extend(den[0] + num[0] + interleave(den[1], hi16 + rcp[0], per=[2, 2, 2, 1]))
        a.extend(interleave(num[1], fin[0][:13] + rcp[1] + fin[0][13:], per=[6, 6, 6, 13]) + fin[1])
        self.stamp(6)

    def epiB(self, E, pre):
        a = self.a
        acc = E['acc']; a_tok, a_row, a_csr, a_csv, l16 = (E[k] for k in ('a_tok', 'a_row', 'a_csr', 'a_csv', 'l16'))
        s_wm, s_wh, s_a, s_b, s_c, s_d, s_e = (E[k] for k in ('s_wm', 's_wh', 's_a', 's_b', 's_c', 's_d', 's_e'))
        BI, BI0, MK, a_h = 236, 244, 248, 252
        if pre == 'v':
            t1, t2, t3 = 208, 209, 210
            S = [f'v_and_b32 v{t1}, 15, v1', f'v_lshrrev_b32 v{t2}, 4, v1', f'v_lshlrev_b32 v{t2}, 2, v{t2}', f'v_sub_u32 v{t1}, v{t1}, v{t2}',
                 f'v_mov_b32 v{t3}, {f2u(-1e30)}']
            for blk in range(2):
                for i in range(4):
                    S += [f'v_add_u32 v{t2}, {(16 if blk == 0 else 0) - i}, v{t1}', f'v_and_b32 v{t2}, -15, v{t2}', f'v_cmp_eq_u32 vcc, 0, v{t2}',
                          f'v_cndmask_b32 v{BI+4*blk+i}, v{t3}, 0, vcc']
                    if i % 2 == 0: S += [f'v_cndmask_b32 v{MK+2*blk+i//2}, 0, -1, vcc', f'v_lshrrev_b32 v{MK+2*blk+i//2}, 16, v{MK+2*blk+i//2}']
                    else: S += [f'v_cndmask_b32 v{t2}, 0, -1, vcc', f'v_lshl_or_b32 v{MK+2*blk+i//2}, v{t2}, 16, v{MK+2*blk+i//2}']
            S += [f's_or_b32 s{s_t}, s{s_m}, s{s_wm}', 's_cselect_b64 vcc, -1, 0']
            for i in range(4): S.append(f'v_cndmask_b32 v{BI0+i}, v{t3}, v{BI+i}, vcc')
            S += sx(s_t, [(s_wh, 2048)], P_PHI) + [f'v_add_u32 v{a_h}, s{s_t}, v{l16}']
            S += [f's_add_u32 s{s_t+1}, s{s_t}, 1024', f's_cmp_eq_u32 s{s_wm}, 0', f's_cselect_b32 s{s_t}, s{s_t}, {L_P + 7168}', f's_cselect_b32 s{s_t+1}, s{s_t+1}, {L_P + 7168}',
                  f'v_add_u32 v{a_h+1}, s{s_t}, v{l16}', f'v_add_u32 v{a_h+2}, s{s_t+1}, v{l16}']
            a.extend(S)
            return
        if pre == 's':
            S = sx(s_b, [(s_l, 1 << 19), (s_m, 1 << 16), (s_g, 4096), (s_wh, 2048)], WS_HALO - (1 << 19))
            S += [f's_add_u32 s{s_c}, s{s_b}, 65536', f's_cmp_eq_u32 s{s_m}, 15', f's_cselect_b32 s{s_c}, {BIG}, s{s_c}',
                  f's_cmp_eq_u32 s{s_wm}, 0', f's_cselect_b32 s{s_c}, {BIG}, s{s_c}', f's_cselect_b32 s{s_b}, s{s_b}, {BIG}',
                  f's_cmp_eq_u32 s{s_m}, 0', f's_cselect_b32 s{s_b}, {BIG}, s{s_b}', f's_add_u32 s{s_d}, s{s_a}, 65536']
            a.extend(S)
            return
        nr = [160, 168, 176, 208]
        nml, rsl, csk, csv, csq, HB = 216, 220, 224, 232, 128, 136
        VP = [184, 196]
        U, M, t1, t2 = 144, 152, 156, 157
        S = []
        for b in (3, 0, 1, 2):
            S += [f'ds_read_b32 v{nml+b}, v{a_tok} offset:{64*b}', f'ds_read_b32 v{rsl+b}, v{a_tok} offset:{512+64*b}']
            if b == 3:
                for nb in range(2): S.append(f'ds_read_b128 {vr(csk+4*nb,4)}, v{a_csr} offset:{768+256+64*nb}')
                for nb in range(2): S.append(f'ds_read_b32 v{csv+nb}, v{a_csv} offset:{768+512+64*nb}')
            S += [f'ds_read_b128 {vr(nr[b],4)}, v{a_row} offset:{64*b}', f'ds_read_b128 {vr(nr[b]+4,4)}, v{a_row} offset:{512+64*b}']
        for nb in range(2): S.append(f'ds_read_b128 {vr(csq+4*nb,4)}, v{a_csr} offset:{768+64*nb}')
        def kprep(b):
            r = acc(b, 2); L = []
            for k in range(4): L.append(pk('fma', r+2*k, csk+2*k, ('b', nml+b), r+2*k))
            for k in range(4): L.append(pk('mul', r+2*k, r+2*k, ('b', rsl+b)))
            for k in range(4): L.append(cvt(r+k, r+2*k, r+2*k+1))
            return L
        def vprep(b):
            r = acc(b, 4); L = []
            for nb in range(2):
                for p in range(2): L.append(pk('fma', r+4*nb+2*p, nr[b]+2*p, ('b', csv+nb), r+4*nb+2*p))
            for nb in range(2):
                for p in range(2): L.append(pk('mul', r+4*nb+2*p, r+4*nb+2*p, nr[b]+4+2*p))
            for nb in range(2):
                for p in range(2):
                    if b == 3: L.append(cvt(acc(3, 3)+2*nb+p, r+4*nb+2*p, r+4*nb+2*p+1))
                    else: L.append(cvt(VP[nb]+2+2*b+p, r+4*nb+2*p, r+4*nb+2*p+1))
            return L
        def qprep(b):
            r = acc(b, 0); L = []
            for k in range(4): L.append(pk('fma', r+2*k, csq+2*k, ('b', nml+b), r+2*k))
            for k in range(4): L.append(cvt(r+k, r+2*k, r+2*k+1))
            return L
        mfma = E['mfma']
        TM = [mfma(1, b, n) for b in (3, 0, 1, 2) for n in (2, 3, 4, 5)] + [mfma(1, b, 1) for b in range(4)] + [mfma(1, b, 0) for b in range(self.bpos+1, 4)]
        rk, rv = acc(3, 2), acc(3, 4)
        P3 = [f'v_fmac_f32 v{rk+k}, v{csk+k}, v{nml+3}' for k in range(8)] + [f'v_mul_f32 v{rk+k}, v{rsl+3}, v{rk+k}' for k in range(8)] + kprep(3)[8:]
        P3 += [f'v_fmac_f32 v{rv+k}, v{nr[3]+k%4}, v{csv+k//4}' for k in range(8)] + [f'v_mul_f32 v{rv+k}, v{nr[3]+4+k%4}, v{rv+k}' for k in range(8)] + vprep(3)[8:]
        T0 = interleave(TM, S[:14] + P3, per=[2]*24); S = S[14:]
        for k in range(2): T0.append(f'buffer_store_dwordx4 {vr(acc(3,2)+4*k,4)}, v{l16}, {srd(sWS)}, s{s_c} offen offset:{1024*k} sc1')
        for k in range(2): S.append(f'ds_write_b128 v{a_h+1+k}, {vr(acc(3,2)+4*k,4)}')
        for nb in range(2): S.append(f'v_mov_b64 {vr(VP[nb]+8,2)}, {vr(acc(3,3)+2*nb,2)}')
        for b in range(3): S += kprep(b) + vprep(b)
        for b in range(4): S += qprep(b)
        for b in range(4): S.append(f'v_mul_f32 v{rsl+b}, {f2u(LOG2E * 32 ** -0.5)}, v{rsl+b}')
        def logits(b):
            s = nr[b]
            L = [mf16(s, HB if b == 0 else acc(b-1, 2), acc(b, 0), BI0 if b == 0 else BI), mf16(s+4, acc(b, 2), acc(b, 0), BI+4)]
            for p in range(2):
                L += [f'v_max3_f32 v{U+2*b+p}, v{s+2*p}, v{s+2*p+1}, v{s+4+2*p}', f'v_max_f32 v{U+2*b+p}, v{U+2*b+p}, v{s+5+2*p}',
                      f'v_mul_f32 v{U+2*b+p}, v{rsl+b}, v{U+2*b+p}']
            L.append(f'v_max_f32 v{M+b}, v{U+2*b}, v{U+2*b+1}')
            return L
        for b in (1, 2, 3): S += logits(b)
        L0 = logits(0); S.append(L0.pop(1))
        self.aw(T0 + (sched(S) if self.sch else S)); S = []
        HL = [f'buffer_load_dwordx4 {vr(HB+4*k,4)}, v{l16}, {srd(sWS)}, s{s_b} offen offset:{1024*k} sc1' for k in range(2)]
        L1, L3 = self.lab('hg'), self.lab('hd')
        a(f's_cmp_eq_u32 s{s_wm}, 0'); a(f's_cbranch_scc0 {L1}')
        a.extend(HL)
        a.label(L1)
        a('s_waitcnt lgkmcnt(0)'); a('s_barrier')
        a(f's_cbranch_scc1 {L3}')
        for k in range(2): a(f'ds_read_b128 {vr(HB+4*k,4)}, v{a_h} offset:{1024*k}')
        a.label(L3)
        self.stamp(3)
        def allred(op, mid):
            L = [sw32(M, M+2), sw32(M+1, M+3), f'{op} v{M}, v{M}, v{M+2}', f'{op} v{M+1}, v{M+1}, v{M+3}', sw16(M, M+1), f'{op} v{M+1}, v{M}, v{M+1}']
            L += mid
            L += [f'v_mov_b32 v{M}, v{M+1}', sw16(M, M+1), f'v_mov_b64 {vr(M+2,2)}, {vr(M,2)}', sw32(M, M+2), sw32(M+1, M+3)]
            return L
        def pv(b):
            P = nr[b]; L = []
            for p in range(2): L.append(cvt(U+2*b+p, U+2*b+p, U+2*b+p))
            for blk in range(2):
                for p in range(2): L.append(f'v_and_b32 v{P+2*blk+p}, v{U+2*b+p}, v{MK+2*blk+p}')
            return L + [mf16(acc(b, 4)+4*db, VP[db]+2*b, P) for db in range(2)]
        def put(b):
            O = acc(b, 4)
            return [cvt(O+k, O+2*k, O+2*k+1) for k in range(4)] + [f'buffer_store_dwordx4 {vr(O,4)}, v{l16}, {srd(sWS)}, s{(s_a, s_e, s_d, s_c)[b]} offen sc1']
        ONE, SUM = csk, csk + 4
        S += allred('v_max_f32', [])
        for b in (1, 2, 3): S.append(pk('add', U+2*b, U+2*b, ('b', M+b), neg=[0, 1]))
        for k in range(2, 8): S.append(f'v_exp_f32 v{U+k}, v{U+k}')
        for b in (1, 2, 3): S.append(f'v_add_f32 v{M+b}, v{U+2*b}, v{U+2*b+1}')
        S += allred('v_add_f32', [f'v_rcp_f32 v{M+1}, v{M+1}'])
        for b in (1, 2, 3): S.append(pk('mul', U+2*b, U+2*b, ('b', M+b)))
        S += pv(1) + pv(2) + pv(3) + [f's_add_u32 s{s_e}, s{s_a}, 32768', f's_add_u32 s{s_c}, s{s_d}, 32768'] + put(1) + put(2) + put(3)
        S += [f'v_mov_b32 v{ONE+k}, 0x3f803f80' for k in range(4)]
        self.sw(S, name='B blocks 1-3', crit=lambda t: t.startswith('buffer')); S = []
        self.ll_wait(HL, list(range(HB, HB+8)), t1, t2, 0, pre='s_waitcnt vmcnt(3) lgkmcnt(0)')
        self.stamp(4)
        S += L0 + [f'v_mov_b64 {vr(VP[nb],2)}, {vr(HB+4+2*nb,2)}' for nb in range(2)]
        S += [f'v_mov_b32 v{M+1}, v{M}', sw32(M, M+1), f'v_max_f32 v{M}, v{M}, v{M+1}', f'v_mov_b32 v{M+1}, v{M}', sw16(M, M+1), f'v_max_f32 v{M}, v{M}, v{M+1}']
        S += [f'v_sub_f32 v{U+k}, v{U+k}, v{M}' for k in range(2)] + [f'v_exp_f32 v{U+k}, v{U+k}' for k in range(2)]
        P0 = pv(0); S += P0[:-2] + [mf16(SUM, ONE, nr[0])] + P0[-2:] + [f'v_rcp_f32 v{SUM}, v{SUM}']
        S += [pk('mul', acc(0, 4)+2*k, acc(0, 4)+2*k, ('b', SUM)) for k in range(4)] + put(0)
        self.sw(S, name='B block 0')
        self.stamp(6)

    def build(self):
        a = self.a
        self.prologue()
        if self.st0 & 1: self.loader(); a.label('L_compute'); self.compute()
        else: self.compute(); self.loader()
        self.helper()
        a.label('L_fin')
        self.stamp(15)
        self.stamp_out()
        if self.probe and len(self.probe) > 3:
            def pub():
                a('s_mov_b64 exec, 1'); a('v_mov_b32 v2, s94'); a('s_not_b32 s93, s93'); a('v_mov_b32 v3, s93')
                a(f'buffer_atomic_umax v2, off, {srd(sDBG)}, 0 offset:12 sc1'); a(f'buffer_atomic_umax v3, off, {srd(sDBG)}, 0 offset:140 sc1')
                a('s_waitcnt vmcnt(0)'); a('v_mov_b32 v2, 1'); a(f'buffer_atomic_add v2, off, {srd(sDBG)}, 0 offset:20 sc1'); a('s_waitcnt vmcnt(0)')
                def w0():
                    self.spin(['s_sleep 8', f'buffer_load_dword v2, off, {srd(sDBG)}, 0 offset:20 sc1'], ['v_cmp_gt_u32 vcc, 0x100, v2'], 4, 10)
                    a(f'buffer_load_dword v2, off, {srd(sDBG)}, 0 offset:12 sc1'); a(f'buffer_load_dword v3, off, {srd(sDBG)}, 0 offset:140 sc1'); a('s_waitcnt vmcnt(0)')
                    a('v_readfirstlane_b32 s94, v2'); a('v_readfirstlane_b32 s93, v3'); a('s_not_b32 s93, s93')
                self.cond(['s_cmp_eq_u32 s2, 0'], w0)
                a('s_mov_b64 exec, -1')
            self.cond([f's_cmp_eq_u32 s{s_wave}, 0'], pub)
        if self.probe:
            def body():
                a('s_sub_u32 s93, s94, s93'); a(f's_mul_i32 s93, s93, {self.probe[2]}'); a('s_min_u32 s93, s93, 100000')
                a(f's_memrealtime s[{s_t+6}:{s_t+7}]'); a('s_waitcnt lgkmcnt(0)'); a(f's_add_u32 s93, s93, s{s_t+6}')
                a.label('L_probe')
                a(f's_memrealtime s[{s_t+6}:{s_t+7}]'); a('s_waitcnt lgkmcnt(0)'); a(f's_sub_u32 s94, s{s_t+6}, s93'); a('s_cmp_lt_i32 s94, 0'); a('s_cbranch_scc1 L_probe')
            self.cond([f's_or_b32 s{s_t}, s2, s{s_wave}', f's_cmp_eq_u32 s{s_t}, 0'], body)
        a('s_waitcnt vmcnt(0)')
        a.label('L_end')
        a('s_endpgm')
        for b in self.later: a.ins += b.ins
        if self.cpf: a.label('L_last'); a('s_endpgm')
        a.pad()
        assert a.maxreg('v') <= 255 and a.maxreg('s') < 96
        return a.text()


DOC = """
; ---------------------------------------------------------------------------------------------------------------------
;
;
; Hand-offs between workgroups go through d_ws, stored write-through (sc1) and read with sc1 loads:
; ---------------------------------------------------------------------------------------------------------------------
"""

def generate(listform=False, **kw):
    body = Gen(**kw).build()
    ref = open('interleave_layers__linear_kernel_hedgehog__sliding_local_dilated__prompt.s.ref').read() if not listform else ''
    head = ''.join(l + '\n' for l in ref.split('\n') if l.startswith(';') and '@launch' not in l)
    if listform: head += f'; @launch kernel={KNAME} grid=(256,1,1) block=(512,1,1) lds={LDS_BYTES}\n'
    else: head += f'; @launch grid=(256,1,1) block=(512,1,1) lds={LDS_BYTES}\n'
    return head + '.amdgcn_target "amdgcn-amd-amdhsa--gfx950"' + DOC + kernel_head(KNAME) + body + kernel_desc(KNAME, 256, 96, 256)

if __name__ == '__main__':
    kw = eval(sys.argv[2]) if len(sys.argv) > 2 else {}
    open(sys.argv[1], 'w').write(generate(**kw))
```

```python
import sys, struct
sys.path.insert(0, 'work')
from asmlib import *

KNAME = 'interleave_layers__linear_kernel_hedgehog__sliding_local_dilated__prompt_kernel'

WS_CTR, WS_STAMP, WS_ST, WS_CS = 0x0, 0x100000, 0x200000, 0x300000
WS_HALO, WS_KVF, WS_ZP, WS_ZF, WS_KVP = 0x400000, 0x600000, 0x680000, 0x6C0000, 0x800000
WS_RF = 0x700000
WS_XI, WS_OI, WS_END = 0xC00000, 0x1800000, 0x2800000
BIG = 0x40000000
STG = 40960
XOFF = 24576
L_WO = 24576
L_SPARE = 3 * STG
L_P = 155648
P_NM, P_RS, P_CS, P_MODE, P_CNT, P_PHI = L_P, L_P + 512, L_P + 1024, L_P + 2816, L_P + 2832, L_P + 3072
LDS_BYTES = 163840
SCR = 5120
LOG2E = 1.4426950408889634
def f2u(x): return '0x%08x' % struct.unpack('<I', struct.pack('<f', x))[0]

s_fast = 3
pAX, pAW, pPHI, pAWO, pBW, pBWO, pOUT, pDBG, pWS = 4, 6, 8, 10, 14, 16, 18, 20, 22
sWS, sX, sW, sWO, sOUT, sDBG = 24, 28, 32, 36, 40, 44
s_m, s_g, s_wave, s_l = 48, 49, 50, 51
s_t = 52
s_cnt, s_x = 60, 61
s_i = 62
s_stamp = 63
s_rot = 64
s_rot2 = 95
s_ft, s_fn, s_fd, s_po = 90, 91, 88, 87
def srd(b): return 's[%d:%d]' % (b, b + 3)


def sx(d, terms, const=0):
    L = []
    for n, (r, k) in enumerate([t for t in terms if t[1]]):
        t = d if n == 0 else s_x
        if k == 1 and n: t = r
        elif k == 1: L.append(f's_mov_b32 s{t}, s{r}')
        elif k > 0 and k & (k - 1) == 0: L.append(f's_lshl_b32 s{t}, s{r}, {k.bit_length()-1}')
        else: L.append(f's_mul_i32 s{t}, s{r}, {k}')
        if n: L.append(f's_add_u32 s{d}, s{d}, s{t}')
    if const: L.append(f's_add_u32 s{d}, s{d}, {const:#x}' if const > 0 else f's_sub_u32 s{d}, s{d}, {-const:#x}')
    return L

def pkop(r):
    if isinstance(r, tuple):
        return vr(r[1] & ~1, 2), r[1] & 1, r[1] & 1
    assert r % 2 == 0
    return vr(r, 2), 0, 1
def pk(op, d, *src, neg=None):
    o = [pkop(s) for s in src]
    t = 'v_pk_%s_f32 %s, %s' % (op, vr(d, 2), ', '.join(x[0] for x in o))
    lo = [x[1] for x in o]; hi = [x[2] for x in o]
    if any(lo): t += ' op_sel:[%s]' % ','.join(map(str, lo))
    if not all(hi): t += ' op_sel_hi:[%s]' % ','.join(map(str, hi))
    if neg: t += ' neg_lo:[%s] neg_hi:[%s]' % (','.join(map(str, neg)), ','.join(map(str, neg)))
    return t
def cvt(d, a, b): return f'v_cvt_pk_bf16_f32 v{d}, v{a}, v{b}'
def sw16(a, b): return f'v_permlane16_swap_b32 v{a}, v{b}'
def sw32(a, b): return f'v_permlane32_swap_b32 v{a}, v{b}'
def mf16(d, A, B, C=None): return f'v_mfma_f32_16x16x32_bf16 {vr(d,4)}, {vr(A,4)}, {vr(B,4)}, ' + (vr(C, 4) if C is not None else '0')
def mf32(d, A, B, C=None): return f'v_mfma_f32_32x32x16_bf16 {vr(d,16)}, {vr(A,4)}, {vr(B,4)}, ' + (vr(C, 16) if C is not None else '0')


class Gen:
    def __init__(self, prof=0, limit=40000, dist=2, touch=1, bm=25, local=1, pd=6, sch=1, hprio=2, opos=(1, 5), warm=1, nap=1, probe=None, snake=1, rf=2, hq=4, fine=0, llf='sc1', ot=0, hc=None, hpos=90, early=0, w2=0, w0b=0, cpf=0, tr=4, bpos=1, r0=2, rprio=3, w0a=1, pipe=0, b1=0, b2=0, n1=0, n2=0, zw=2, yw=60, thr=None, pw=0, po=0, jit=0, st0=6, vpos=1, fst='sc1', rot0=12, iw=2, oh=(0, 9), dl=6, lprio=3, fpos=24, lf='', lfl=0, xnap=0, ls=0, pf='nt', mix=0, bw=0, t0s=(), xd=None, tlb=0, crow=0, ramp=0, xl=0, i0=0):
        self.a = Asm()
        assert 16 <= bm < 32 - dl//2 and not early
        self.__dict__.update(prof=prof, limit=limit, dist=dist, touch=touch, bm=bm, local=local, pd=pd, sch=sch, hprio=hprio, opos=opos, warm=warm, nap=nap, probe=probe, snake=snake, rf=rf, hq=hq, fine=fine, llf=llf, ot=ot, hc=hc, hpos=hpos, early=early, w2=w2, w0b=w0b, cpf=cpf, tr=tr, bpos=bpos, r0=r0, rprio=rprio, w0a=w0a, pipe=pipe, b1=b1, b2=b2, n1=n1, n2=n2, zw=zw, yw=yw, thr=thr, pw=pw, po=po, jit=jit, st0=st0, vpos=vpos, fst=fst, rot0=rot0, iw=iw, oh=oh, dl=dl, lprio=lprio, fpos=fpos, lf=lf, lfl=lfl, xnap=xnap, ls=ls, pf=pf, mix=mix, bw=bw, t0s=t0s, xd=xd, tlb=tlb, crow=crow, ramp=ramp, xl=xl, i0=i0)
        self.nlab = 0; self.later = []

    def lab(self, p):
        self.nlab += 1
        return 'L_%s_%d' % (p, self.nlab)

    def aw(self, L):
        self.a.extend(autowait(L))
    def sw(self, L, crit=None, name=''):
        if self.sch:
            L = sched(L, crit)
            if name and __name__ == '__main__': print('sched', name, len(L), 'instructions, about', sched.last_estimate, 'cycles', file=sys.stderr)
        self.a.extend(autowait(L))

    def cond(self, test, body):
        L = self.lab('skip')
        self.a.extend(test); self.a(f's_cbranch_scc0 {L}')
        body()
        self.a.label(L)

    def aside(self, f):
        main, self.a = self.a, Asm()
        f()
        self.later.append(self.a); self.a = main

    def spin(self, issue, check, vt, tag, pre=False, alt=None, checked=False):
        a = self.a
        L, C, T, A, D = (self.lab(x) for x in ('spin', 'chk', 'tmo', 'alt', 'done'))
        count = [f's_add_u32 s{s_cnt}, s{s_cnt}, 1', f's_cmp_lt_u32 s{s_cnt}, {self.limit}', f's_cbranch_scc0 {T}']
        if checked:
            alt = issue; a(f's_cbranch_vccnz {A}')
        else:
            a(f's_mov_b32 s{s_cnt}, 0')
            if alt: a(f's_cmp_eq_u32 s{s_fast}, 1'); a(f's_cbranch_scc0 {A}')
            if pre:
                a(f's_branch {C}')
                a.label(L); a.extend(issue); a.extend(count); a('s_waitcnt vmcnt(0)')
                a.label(C)
                if pre is not True: a(pre)
                a.extend(check)
            else:
                S = autowait(list(issue) + ['s_nop 3'] + list(check)); k = S.index('s_nop 3')
                a.label(L); a.extend(S[:k]); a.extend(count); a.extend(S[k+1:])
            a(f's_cbranch_vccnz {L}')
        a.label(D)
        def rest():
            a = self.a
            if alt:
                L2 = self.lab('spin')
                a.label(A); a(f's_mov_b32 s{s_cnt}, 0')
                a.label(L2); a.extend(alt); a.extend(count); a('s_waitcnt vmcnt(0)' if checked else 's_waitcnt vmcnt(0) lgkmcnt(0)'); a.extend(check)
                a(f's_cbranch_vccnz {L2}'); a(f's_branch {D}')
            a.label(T)
            a('s_waitcnt vmcnt(0)' if checked else 's_waitcnt vmcnt(0) lgkmcnt(0)')
            a(f'v_mov_b32 v{vt}, {1 << tag}')
            a(f'buffer_atomic_or v{vt}, off, {srd(sDBG)}, 0 offset:4 sc1')
            a(f's_branch {D}')
        self.aside(rest)

    def ll_wait(self, loads, regs, t1, t2, tag, pre=False):
        S = []
        h = len(regs) // 2
        for t, R in ((t1, regs[:h]), (t2, regs[h:])):
            S.append(f'v_max_u32 v{t}, v{R[0]}, v{R[1]}')
            for k in range(2, len(R), 2): S.append(f'v_max3_u32 v{t}, v{t}, v{R[k]}, v{R[k+1]}')
        S += [f'v_max_u32 v{t1}, v{t1}, v{t2}', f'v_cmp_eq_u32 vcc, -1, v{t1}']
        loads = [l.replace('sc1', self.llf) for l in loads]
        self.spin(loads, S, t1, tag, pre)

    def flag_set(self, soff, vt, which=3):
        a = self.a
        a('s_mov_b64 exec, 1')
        if which & 1: a(f'buffer_store_dword v{vt}, off, {srd(sWS)}, s{soff} {self.lf}')
        if which == 3 and self.lfl == 1: a(f'buffer_load_dword v220, off, {srd(sWS)}, s{soff} sc1')
        if which == 3 and self.lfl == 2: which = 1
        if which & 2: a(f'buffer_store_dword v{vt}, off, {srd(sWS)}, s{soff+1} sc1')
        a('s_mov_b64 exec, -1')
    def flag_addr(self, va, vt, soff, remote=False):
        L = [f'v_bfe_u32 v{va}, v1, 1, 3', f'v_and_b32 v{vt}, 1, v1', f'v_lshl_add_u32 v{va}, v{va}, 2, v{vt}']
        if remote: return L + [f'v_lshlrev_b32 v{va}, 7, v{va}']
        return L + [f's_cmp_eq_u32 s{s_fast}, 1', f's_cselect_b32 s{s_t}, {self.ls}, 5', f's_cselect_b32 s{s_t+1}, 0, {WS_RF}',
                    f's_lshl_b32 s{soff}, s{soff}, s{s_t}', f's_add_u32 s{soff}, s{soff}, s{s_t+1}', f's_add_u32 s{s_t}, s{s_t}, 2',
                    f'v_lshlrev_b32 v{va}, s{s_t}, v{va}']
    def flag_load(self, soff, va, vt, fl='sc1'): return f'buffer_load_dword v{vt}, v{va}, {srd(sWS)}, s{soff} offen {fl}'
    def flag_wait(self, soff, va, vt, tag, pre=False, nap=0, own=False, checked=False):
        z = [f's_sleep {nap}'] if nap else []
        self.spin(z + [self.flag_load(soff, va, vt, self.pf if own else 'sc1')], [f'v_cmp_eq_u32 vcc, 0, v{vt}'], vt, tag, pre,
                  z + [self.flag_load(soff, va, vt)] if own else None, checked)
    def get_mode(self, vt):
        self.a.extend([f'v_mov_b32 v{vt}, {P_MODE}', f'ds_read_b32 v{vt}, v{vt}', 's_waitcnt lgkmcnt(0)', f'v_readfirstlane_b32 s{s_fast}, v{vt}'])

    def jitter(self, k):
        a = self.a
        L = self.lab('jit')
        a.extend([f's_lshl_b32 s{s_t+6}, s2, 3', f's_add_u32 s{s_t+6}, s{s_t+6}, s{s_wave}', f's_lshl_b32 s{s_t+6}, s{s_t+6}, 2', f's_add_u32 s{s_t+6}, s{s_t+6}, s{s_l}',
                  f's_add_u32 s{s_t+6}, s{s_t+6}, {(k*7919 + self.jit*104729) & 0xffffff}', f's_mul_i32 s{s_t+6}, s{s_t+6}, 0x9e3779b1', f's_lshr_b32 s{s_t+7}, s{s_t+6}, 13',
                  f's_xor_b32 s{s_t+6}, s{s_t+6}, s{s_t+7}', f's_mul_i32 s{s_t+6}, s{s_t+6}, 0x85ebca6b', f's_lshr_b32 s{s_t+7}, s{s_t+6}, 29',
                  f's_lshr_b32 s{s_t+6}, s{s_t+6}, 8', f's_and_b32 s{s_t+6}, s{s_t+6}, 127', f's_lshr_b32 s{s_t+6}, s{s_t+6}, s{s_t+7}'])
        a.label(L)
        a.extend(['s_sleep 1', f's_sub_u32 s{s_t+6}, s{s_t+6}, 1', f's_cbranch_scc0 {L}'])
    def stamp(self, k):
        if self.jit: self.jitter(k)
        if self.probe:
            for n, (pl, pk_) in enumerate(self.probe[:2]):
                if pk_ == k:
                    def body():
                        self.a(f's_memrealtime s[{s_t+6}:{s_t+7}]'); self.a('s_waitcnt lgkmcnt(0)'); self.a(f's_mov_b32 s{93+n}, s{s_t+6}')
                    self.cond([f's_cmp_eq_u32 s{s_l}, {pl}'], body)
        if not self.prof or self.prof >= 5: return
        a = self.a
        a(f'{"s_memtime" if self.prof == 4 else "s_memrealtime"} s[{s_t+6}:{s_t+7}]')
        a(f's_mov_b32 s{s_stamp}, m0')
        a(f's_lshl_b32 m0, s{s_l}, 4'); a(f's_add_u32 m0, m0, {k}')
        a('s_waitcnt lgkmcnt(0)')
        a(f'v_writelane_b32 v255, s{s_t+6}, m0')
        a(f's_mov_b32 m0, s{s_stamp}')
    def stamp_out(self):
        if not self.prof: return
        a = self.a
        a.extend(sx(s_t, [(2, 2048), (s_wave, 256)], WS_STAMP))
        a('v_lshlrev_b32 v254, 2, v1')
        a(f'buffer_store_dword v255, v254, {srd(sWS)}, s{s_t} offen')

    def prologue(self):
        a = self.a
        a('s_cmp_ge_u32 s2, 256'); a('s_cbranch_scc1 L_end')
        a('s_load_dwordx16 s[4:19], s[0:1], 0')
        a('s_load_dwordx4 s[20:23], s[0:1], 64')
        a('v_lshrrev_b32 v2, 6, v0')
        a(f'v_readfirstlane_b32 s{s_wave}, v2')
        a('v_and_b32 v1, 63, v0')
        a(f's_and_b32 s{s_rot}, s2, 3'); a(f's_lshl_b32 s{s_rot}, s{s_rot}, 2')
        a(f's_bfe_u32 s{s_t}, s2, 0x20003'); a(f's_add_u32 s{s_m}, s{s_rot}, s{s_t}')
        a(f's_mov_b32 s{s_rot}, s{s_m}')
        a(f's_and_b32 s{s_rot2}, s2, 4'); a(f's_lshl_b32 s{s_rot2}, s{s_rot2}, 1')
        a(f's_lshr_b32 s{s_g}, s2, 5'); a(f's_add_u32 s{s_g}, s{s_g}, s{s_rot2}')
        a(f's_mov_b32 s{s_l}, 0'); a(f's_mov_b32 s{s_fast}, 0')
        for b, n in ((sWS, WS_END), (sX, 2048*1024*2), (sW, 1024*3072*2), (sWO, 1024*1024*2), (sOUT, WS_END), (sDBG, 256)):
            a(f's_mov_b32 s{b+2}, {n}'); a(f's_mov_b32 s{b+3}, 0x20000')
        if self.prof: a('v_mov_b32 v255, 0')
        self.stamp(0)
        a(f's_cmp_ge_u32 s{s_wave}, 6'); a('s_cbranch_scc1 L_helper')
        if self.st0 & 1: a(f's_cmp_lt_u32 s{s_wave}, 4'); a('s_cbranch_scc1 L_compute')
        else: a(f's_cmp_ge_u32 s{s_wave}, 4'); a('s_cbranch_scc1 L_loader')
    def pointers(self):
        a = self.a
        a('s_waitcnt lgkmcnt(0)')
        for b, p in ((sWS, pWS), (sX, pAX), (sW, pAW), (sWO, pAWO), (sOUT, pWS), (sDBG, pDBG)):
            a(f's_mov_b64 s[{b}:{b+1}], s[{p}:{p+1}]')

    def trickle_setup(self):
        a = self.a
        a(f's_mov_b64 s[{sOUT}:{sOUT+1}], s[{sWO}:{sWO+1}]'); a(f's_mov_b32 s{sOUT+2}, {1 << 21}')
        a.extend(sx(s_ft, [(2, 8192), (s_wave, 2048)], -8192))
        n1 = -(-16 // self.tr)
        a(f's_cmp_eq_u32 s{s_l}, 0'); a(f's_cselect_b32 s{s_fn}, 12, {n1}')
        a(f's_cmp_lt_u32 s{s_l}, {2 if self.warm else 0}'); a(f's_cselect_b32 s{s_fn}, s{s_fn}, 0')
    def trickle_lines(self, n):
        a = self.a
        a(f's_sub_u32 s{s_t}, s{sOUT+2}, {128*n}'); a(f's_min_u32 s{s_t}, s{s_t}, s{s_ft}')
        for r in range(n): a(f's_buffer_load_dwordx2 s[{s_fd}:{s_fd+1}], {srd(sOUT)}, s{s_t} offset:{128*r+60}')
        a(f's_add_u32 s{s_ft}, s{s_ft}, {128*n}')
    def trickle(self, i):
        a = self.a
        n1 = -(-16 // self.tr)
        def nxt():
            a(f's_mov_b64 s[{sOUT}:{sOUT+1}], s[{pBW}:{pBW+1}]'); a(f's_mov_b32 s{sOUT+2}, {3 << 21}')
            a.extend(sx(s_ft, [(2, 24576), (s_wave, 6144)], -24576))
        def body():
            if isinstance(i, str): self.cond([f's_cmp_eq_u32 {i}, {n1}'], nxt)
            elif i == n1: nxt()
            self.trickle_lines(self.tr)
        self.cond([f's_cmp_gt_u32 s{s_fn}, {i}'], body)
    def trickle_rest(self, part):
        rest = 48 - self.tr * (12 - -(-16 // self.tr))
        n = rest
        self.cond([f's_cmp_eq_u32 s{s_fn}, 12'], lambda: self.trickle_lines(n))

    def warm_w(self):
        a = self.a
        if not self.pw: return
        a(f's_and_b32 s{s_t}, s{s_m}, 3'); a.extend(sx(s_t+1, [(s_t, 16*6144), (s_wave, 4*6144), (s_g, 128)], -16*6144))
        a(f's_and_b32 s{s_t+2}, s{s_g}, 7')
        for st in range(1, 1 + self.pw):
            a(f's_cmp_le_u32 s{s_t+2}, {st-1}'); a(f's_addc_u32 s{s_t}, s{s_rot2}, {st-1}')
            a(f's_mul_i32 s{s_t}, s{s_t}, {64*6144}'); a(f's_add_u32 s{s_t}, s{s_t}, s{s_t+1}')
            for k in range(12): a(f's_buffer_load_dwordx2 s[{s_fd}:{s_fd+1}], {srd(sW)}, s{s_t} offset:{2048*k+60}')
    def warm_wo_setup(self):
        a = self.a
        a(f's_and_b32 s{s_t}, s{s_m}, 3'); a.extend(sx(s_po, [(s_t, 256*2048), (s_wave, 64*2048), (s_g, 128)], -256*2048))
    def warm_wo(self, n):
        a = self.a
        def body():
            for k in range(n): a(f's_buffer_load_dwordx2 s[{s_fd}:{s_fd+1}], {srd(sWO)}, s{s_po} offset:{2048*k+60}')
            a(f's_add_u32 s{s_po}, s{s_po}, {2048*n}'); a(f's_min_u32 s{s_po}, s{s_po}, {(1 << 21) - 2048*n}')
        if self.po: self.cond([f's_lshr_b32 s{s_t}, {self.po}, s{s_l}', f's_bitcmp1_b32 s{s_t}, 0'], body)

    def w_dma_offsets(self, dw, idx, t0, t1, t2):
        a = self.a
        a(f'v_lshrrev_b32 v{t0}, 3, v1'); a(f'v_mul_u32_u24 v{t0}, 6144, v{t0}')
        a(f'v_and_b32 v{t1}, 7, v1'); a(f'v_bfe_u32 v{t2}, v1, 4, 1'); a(f'v_lshlrev_b32 v{t2}, 1, v{t2}')
        a(f'v_xor_b32 v{t1}, v{t1}, v{t2}'); a(f'v_xor_b32 v{t2}, 4, v{t1}')
        a(f'v_lshl_add_u32 v{t1}, v{t1}, 4, v{t0}'); a(f'v_lshl_add_u32 v{t2}, v{t2}, 4, v{t0}')
        d = 8*6144 - 1024
        a(f's_lshl_b32 s{s_t+1}, s{s_g}, 7'); a(f'v_add_u32 v{t1}, s{s_t+1}, v{t1}'); a(f's_add_u32 s{s_t+1}, s{s_t+1}, {d}'); a(f'v_add_u32 v{t2}, s{s_t+1}, v{t2}')
        a(f's_cmp_eq_u32 s{idx}, 0')
        for t in range(3):
            c = [((3*w + t) & 1)*32*6144 + ((3*w + t) >> 1)*2048 for w in range(2)]
            a(f's_mov_b32 s{s_t}, {c[1]}'); a(f's_cmov_b32 s{s_t}, {c[0]}')
            a(f'v_add_u32 v{dw+4*t}, s{s_t}, v{t1}'); a(f'v_add_u32 v{dw+4*t+1}, s{s_t}, v{t2}')
            a(f'v_add_u32 v{dw+4*t+2}, {2*d}, v{dw+4*t}'); a(f'v_add_u32 v{dw+4*t+3}, {2*d}, v{dw+4*t+1}')

    def w_frag_addr(self, aw, head_sreg, base, t0, t1, t2, nb_list=(0, 1)):
        L = [f'v_lshrrev_b32 v{t2}, 4, v1', f'v_bfe_u32 v{t0}, v1, 2, 2', f'v_lshl_add_u32 v{t1}, v{t2}, 3, v{t0}',
             f'v_lshrrev_b32 v{t0}, 1, v{t0}', f'v_and_b32 v{t2}, 1, v{t2}', f'v_lshl_add_u32 v{t0}, v{t2}, 1, v{t0}']
        if head_sreg is not None: L += [f's_lshl_b32 s{s_t}, s{head_sreg}, 1', f'v_xor_b32 v{t0}, s{s_t}, v{t0}']
        L += [f'v_and_b32 v{t2}, 3, v1', f'v_lshlrev_b32 v{t2}, 3, v{t2}', f'v_lshl_add_u32 v{t2}, v{t1}, 7, v{t2}']
        if base: L.append(f'v_add_u32 v{t2}, {base}, v{t2}')
        for k, nb in enumerate(nb_list): L += [f'v_xor_b32 v{t1}, {nb}, v{t0}', f'v_lshl_add_u32 v{aw+k}, v{t1}, 5, v{t2}']
        return L

    def reduce_job(self, after_by=None, after_fill=None):
        a = self.a
        T = 200
        vA, vZ, vO, t1, t2 = T, T+1, T+2, T+3, T+4
        s_a, s_b, s_c, s_d, s_e = 80, 81, 82, 83, 84
        a.extend(sx(s_t, [(s_l, 32), (s_g, 4), (s_wave, 1)], -4))
        a.extend(sx(s_a, [(s_t, 32768), (s_m, 128)], WS_KVP)); a(f's_add_u32 s{s_b}, s{s_a}, 16384')
        a.extend(sx(s_d, [(s_t, 2048), (s_m, 128)], WS_KVF))
        a.extend(sx(s_c, [(s_t, 1024)], WS_ZP)); a.extend(sx(s_e, [(s_t, 64)], WS_ZF))
        a(f's_and_b32 s{s_t}, s{s_t}, 1'); a(f's_xor_b32 s{s_t+1}, s{s_m}, s{s_g}'); a(f's_or_b32 s{s_t}, s{s_t}, s{s_t+1}')
        a(f's_cselect_b32 s{s_c}, {BIG}, s{s_c}'); a(f's_cselect_b32 s{s_e}, {BIG}, s{s_e}')
        a(f'v_and_b32 v{t1}, 7, v1'); a(f'v_lshlrev_b32 v{t1}, 4, v{t1}')
        a(f'v_lshrrev_b32 v{t2}, 3, v1'); a(f'v_lshl_add_u32 v{vA}, v{t2}, 11, v{t1}')
        a(f'v_lshlrev_b32 v{vZ}, 4, v1')
        a(f'v_lshrrev_b32 v{t2}, 4, v1'); a(f'v_lshl_add_u32 v{vO}, v{t2}, 2, v{t1}')
        D = T + 8; U = 160
        def late_fill():
            for k in range(4): a(f'v_mov_b32 v{D+k}, -1')
            fill = f'buffer_store_dwordx4 {vr(D,4)}, v{vZ}, {srd(sWS)}, s{s_t} offen'
            a.extend(sx(s_t, [(s_g, 131072), (s_wave, 32768), (s_m, 2048)], WS_KVP + (1 << 21) - 4*32768)); a(fill + ' sc1'); a(fill + ' offset:1024 sc1')
            a(f's_lshr_b32 s{s_t+1}, s{s_wave}, 1'); a(f's_and_b32 s{s_t+2}, s{s_wave}, 1')
            a.extend(sx(s_t, [(s_t+2, 1 << 20), (s_m, 1 << 16), (s_g, 4096), (s_t+1, 2048)], WS_HALO - 2*2048)); a(fill + ' sc1'); a(fill + ' offset:1024 sc1')
            a.extend(sx(s_t, [(s_wave, 262144), (s_m, 16384), (s_g, 1024)], WS_ST - 3*262144))
            a.extend(sx(s_t+3, [(s_g, 16384), (s_m, 1024)], WS_CS + 262144))
            a(f's_cmp_eq_u32 s{s_wave}, 7'); a(f's_cselect_b32 s{s_t}, s{s_t+3}, s{s_t}'); a(fill + ' sc1')
            a('s_mov_b64 exec, 0xff')
            a(f's_add_u32 s{s_t}, s{s_d}, {1 << 17}'); a(fill + ' sc1')
            a(f's_add_u32 s{s_t}, s{s_e}, {1 << 12}'); a(fill + ' sc1')
            a.extend(sx(s_t, [(s_g, 4096), (s_t+1, 2048), (s_m, 128)], WS_ZP + (1 << 16) - 2*2048)); a(fill + ' sc1')
            a('s_mov_b64 exec, -1')
            a('s_waitcnt vmcnt(0)')
        self.cond([f's_cmp_eq_u32 s{s_l}, 0'], late_fill)
        a('s_barrier')
        if self.jit: self.jitter(20)
        if self.rprio: a(f's_setprio {self.rprio}')
        a('s_barrier')
        if after_by and self.w0a == 0: after_by()
        if self.b1: a(f's_sleep {self.b1}')
        self.ll_wait(([f's_sleep {self.n1}'] if self.n1 else []) + [f'buffer_load_dwordx4 {vr(D,4)}, v{vA}, {srd(sWS)}, s{s_a} offen sc1',
                      f'buffer_load_dwordx4 {vr(D+4,4)}, v{vA}, {srd(sWS)}, s{s_b} offen sc1',
                      f'buffer_load_dwordx4 {vr(D+8,4)}, v{vZ}, {srd(sWS)}, s{s_c} offen sc1',
                      f'buffer_load_dwordx4 {vr(D+12,4)}, v{vZ}, {srd(sWS)}, s{s_c} offen offset:1024 sc1'],
                     list(range(D, D+16)), t1, t2, 1)
        self.stamp(5)
        S = []
        for z in range(2):
            d, u = D + 8*z, U + 16*z
            for k in range(8): S += [f'v_lshlrev_b32 v{u+2*k}, 16, v{d+k}', f'v_and_b32 v{u+2*k+1}, 0xffff0000, v{d+k}']
            for k in range(4): S.append(pk('add', u+2*k, u+2*k, u+8+2*k))
            for k in range(4): S.append(sw32(u+k, u+4+k))
            S += [pk('add', u, u, u+4), pk('add', u+2, u+2, u+6), sw16(u, u+2), sw16(u+1, u+3), pk('add', u, u, u+2)]
            for k in range(2): S.append(f'v_add_f32_dpp v{u+k}, v{u+k}, v{u+k} row_ror:8 row_mask:0xf bank_mask:0xf')
            S.append(cvt(u, u, u+1))
        S += ['s_mov_b32 exec_lo, 0x00ff00ff', 's_mov_b32 exec_hi, 0x00ff00ff',
              f'buffer_store_dword v{U}, v{vO}, {srd(sWS)}, s{s_d} offen sc1',
              f'buffer_store_dword v{U+16}, v{vO}, {srd(sWS)}, s{s_e} offen sc1', 's_mov_b64 exec, -1']
        self.sw(S)
        if self.rprio: a('s_setprio 0')
        if after_by and self.w0a == 1: after_by()
        if self.zw: a(f's_waitcnt vmcnt({12 if (after_by and self.w0a == 1 and self.zw == 1) else 0})')
        a('s_barrier')
        if after_by and self.w0a == 2: after_by()

    def loader(self):
        a = self.a
        a.label('L_loader')
        dx, dw, dwo, t0, t1, t2, vf = 8, 16, 28, 2, 3, 4, 5
        s_ld, s_kx, s_kw, s_slot, s_mx, s_xstep, s_wo, s_wm0, s_sx, s_sw, s_xb, s_fl, s_mw = range(65, 78)
        a(f's_sub_u32 s{s_ld}, s{s_wave}, 4')
        self.w_dma_offsets(dw, s_ld, t0, t1, t2)
        a(f's_mul_i32 s{s_mw}, s{s_ld}, 12288')
        a(f's_lshl_b32 s{s_mx}, s{s_ld}, 13'); a(f's_add_u32 s{s_mx}, s{s_mx}, {XOFF}')
        s_flip = 78
        def nxt(r):
            return [f's_cmp_eq_u32 s{r}, s{s_flip}', f's_addc_u32 s{r}, s{r}, 1', f's_and_b32 s{r}, s{r}, 15']
        def wst(slot=None):
            L = []
            for j in range(12):
                if j == 0: L.append(f's_add_u32 m0, s{s_mw}, ' + (f's{s_slot}' if slot is None else str(slot*STG)))
                elif j % 4 == 0: L.append('s_add_u32 m0, m0, 4096')
                L.append(f'buffer_load_dwordx4 v{dw+j}, {srd(sW)}, s{s_kw} offen offset:{1024*(j%4)} lds')
            a.extend(L + nxt(s_sw) + [f's_mul_i32 s{s_kw}, s{s_sw}, {64*6144}'])
        def xst(slot=None):
            L = []
            for j in range(8):
                if j == 0: L.append(f's_add_u32 m0, s{s_mx}, ' + (f's{s_slot}' if slot is None else str(slot*STG)))
                elif j == 4: L.append('s_add_u32 m0, m0, 4096')
                L.append(f'buffer_load_dwordx4 v{dx+j}, {srd(sX)}, s{s_kx} offen offset:{1024*(j%4)} sc1 lds')
            a.extend(L + nxt(s_sx) + [f's_mul_i32 s{s_kx}, s{s_sx}, s{s_xstep}', f's_add_u32 s{s_kx}, s{s_kx}, s{s_xb}'])
        def kstart(first):
            if first:
                a(f's_and_b32 s{s_sx}, s{s_m}, {self.rot0}'); a(f's_mov_b32 s{s_sw}, s{s_sx}'); a(f's_mov_b32 s{s_flip}, 16')
            else:
                a(f's_add_u32 s{s_sw}, s{s_rot2}, 15'); a(f's_and_b32 s{s_sw}, s{s_sw}, 15'); a(f's_mov_b32 s{s_sx}, s{s_sw}')
                a(f's_add_u32 s{s_flip}, s{s_g}, 15'); a(f's_and_b32 s{s_flip}, s{s_flip}, 15'); a.extend(nxt(s_sx))
            a(f's_mul_i32 s{s_kw}, s{s_sw if first else s_g}, {64*6144}'); a(f's_mul_i32 s{s_kx}, s{s_sx}, s{s_xstep}'); a(f's_add_u32 s{s_kx}, s{s_kx}, s{s_xb}')
        a(f's_lshl_b32 s{s_xb}, s{s_m}, 18'); a(f's_mov_b32 s{s_xstep}, 128'); kstart(True)
        self.pointers()
        wst(0)
        a(f'v_lshrrev_b32 v{t0}, 3, v1'); a(f'v_and_b32 v{t1}, 7, v1')
        a(f'v_lshrrev_b32 v{t2}, 4, v1'); a(f'v_xor_b32 v{t1}, v{t1}, v{t2}'); a(f'v_xor_b32 v{t2}, 4, v{t1}')
        a(f's_lshl_b32 s{s_t}, s{s_ld}, 17'); a(f'v_lshl_add_u32 v{t0}, v{t0}, 11, s{s_t}')
        a(f'v_lshl_add_u32 v{t1}, v{t1}, 4, v{t0}'); a(f'v_lshl_add_u32 v{t2}, v{t2}, 4, v{t0}')
        for j in range(8): a(f'v_add_u32 v{dx+j}, {j*16384 - 1024*(j%4)}, v{t1 if j % 2 == 0 else t2}')
        xst(0); wst(1)
        if self.ramp == -2: xst(1)
        a(f'v_lshrrev_b32 v{t0}, 5, v1'); a(f'v_lshlrev_b32 v{t0}, 4, v{t0}')
        a(f'v_bfe_u32 v{t1}, v1, 3, 2'); a(f'v_add_u32 v{t0}, v{t0}, v{t1}')
        a(f's_lshl_b32 s{s_t}, s{s_g}, 7'); a(f'v_lshl_add_u32 v{t0}, v{t0}, 11, s{s_t}')
        a(f'v_and_b32 v{t1}, 7, v1'); a(f'v_bfe_u32 v{t2}, v1, 4, 1'); a(f'v_lshlrev_b32 v{t2}, 1, v{t2}')
        a(f'v_xor_b32 v{t1}, v{t1}, v{t2}'); a(f'v_xor_b32 v{t2}, 4, v{t1}')
        a(f'v_lshl_add_u32 v{t1}, v{t1}, 4, v{t0}'); a(f'v_lshl_add_u32 v{t2}, v{t2}, 4, v{t0}')
        for G in range(4): a(f'v_add_u32 v{dwo+G}, {G*4*2048 - 1024*G}, v{t1 if G % 2 == 0 else t2}')
        a(f's_waitcnt vmcnt({20 if self.ramp == -2 else 12})'); a('s_barrier')
        if self.ramp != -2: xst(1)
        wst(2)
        if self.ramp < 0: xst(2)
        a(f's_waitcnt vmcnt({20 if self.ramp < 0 else 12})'); a('s_barrier')
        if self.ramp >= 0: xst(2)
        if self.ramp > 0:
            for k in range(self.ramp):
                xst(k % 3); a('s_waitcnt vmcnt(8)'); a('s_barrier'); wst(k % 3)
            a(f's_mov_b32 s{s_i}, {self.ramp}'); a(f's_mov_b32 s{s_slot}, {(self.ramp % 3)*STG}')
            a('s_branch L_ld_enter2')
        a.label('L_ld_enter')
        a(f's_mov_b32 s{s_i}, 0'); a(f's_mov_b32 s{s_slot}, 0')
        a.label('L_ld_enter2')
        self.trickle_setup(); self.warm_wo_setup()
        def loop(name, n, extra):
            a.label(name)
            xst(); wst()
            if extra:
                a(f's_add_u32 s{s_t}, s{s_i}, 1'); a(f's_and_b32 s{s_t}, s{s_t}, 7')
                a.extend(sx(s_wo, [(s_rot2, 2), (s_t, 1)], 24)); a(f's_and_b32 s{s_wo}, s{s_wo}, 31')
                a.extend(sx(s_wm0, [(s_wo, 65536), (s_ld, 2*4*2048)]))
                a.extend(sx(s_wo, [(s_t, 4096), (s_ld, 2048)], L_SPARE)); a(f's_mov_b32 m0, s{s_wo}')
                for G in range(2): a(f'buffer_load_dwordx4 v{dwo+G}, {srd(sWO)}, s{s_wm0} offen offset:{1024*G} lds')
            self.trickle(f's{s_i}'); self.warm_wo(5)
            a(f's_add_u32 s{s_slot}, s{s_slot}, {STG}'); a(f's_cmp_eq_u32 s{s_slot}, {3*STG}'); a(f's_cselect_b32 s{s_slot}, 0, s{s_slot}')
            a(f's_add_u32 s{s_i}, s{s_i}, 1'); a(f's_cmp_lt_u32 s{s_i}, {n}')
            a(f's_waitcnt vmcnt({22 if extra else 20})')
            a('s_barrier')
            a(f's_cbranch_scc1 {name}')
        if self.early: loop('L_ld_loop', 5, False); loop('L_ld_loop2', 13, True)
        else: loop('L_ld_loop', 13, False)
        def wo(p0, n, thr=None):
            a.extend(sx(s_wm0, [(s_ld, 4096)], L_WO + 4096*p0))
            a.extend(sx(s_wo, [(s_rot2, 2), (s_ld, 1)], p0)); a(f's_and_b32 s{s_wo}, s{s_wo}, 31'); a(f's_lshl_b32 s{s_wo}, s{s_wo}, 16')
            L = self.lab('wo')
            a(f's_mov_b32 s{s_i}, 0')
            a.label(L)
            if thr is not None: a(f's_waitcnt vmcnt({thr})')
            a(f's_mov_b32 m0, s{s_wm0}')
            a(f's_add_u32 s{s_wm0}, s{s_wm0}, 8192')
            for G in range(4): a(f'buffer_load_dwordx4 v{dwo+G}, {srd(sWO)}, s{s_wo} offen offset:{1024*G} lds')
            a(f's_add_u32 s{s_wo}, s{s_wo}, 131072'); a(f's_and_b32 s{s_wo}, s{s_wo}, 0x1fffff')
            a(f's_add_u32 s{s_i}, s{s_i}, 1'); a(f's_cmp_lt_u32 s{s_i}, {n//2}'); a(f's_cbranch_scc1 {L}')
        if self.early:
            wo(4, 10)
            a('s_waitcnt vmcnt(20)'); a('s_barrier')
            wo(14, 10)
            a('s_barrier')
            wo(0, 4)
        else:
            wo(24, 8)
            a('s_waitcnt vmcnt(16)'); a('s_barrier')
            wo(4, 10)
            a('s_barrier')
            wo(14, 10, self.thr); wo(0, 4, self.thr)
        if self.jit: self.jitter(23)
        a.extend(sx(s_fl, [(s_l, 8192), (s_m, 256), (s_rot2, 16), (s_ld, 8)], 4096))
        self.get_mode(t0); a.extend(self.flag_addr(vf, t0, s_fl))
        a.extend(sx(s_xb, [(s_l, 1 << 22), (s_m, 1 << 18)], WS_XI))
        a(f's_bitcmp0_b32 s{s_l}, 0')
        a(f's_cselect_b64 s[{sW}:{sW+1}], s[{pBW}:{pBW+1}], s[{pAW}:{pAW+1}]')
        a(f's_cselect_b64 s[{sWO}:{sWO+1}], s[{pBWO}:{pBWO+1}], s[{pAWO}:{pAWO+1}]')
        a(f's_mov_b64 s[{sX}:{sX+1}], s[{pWS}:{pWS+1}]'); a(f's_mov_b32 s{sX+2}, {WS_END}')
        a(f's_mov_b32 s{s_xstep}, 16384'); kstart(False)
        a(f's_lshl_b32 s{s_t}, s{s_ld}, 13'); a(f'v_lshl_add_u32 v{t0}, v1, 4, s{s_t}')
        for j in range(8): a(f'v_add_u32 v{dx+j}, {4096*(j//4)}, v{t0}')
        a(f's_bitcmp1_b32 s{s_l}, 0'); a('s_cbranch_scc1 L_ld_B')
        self.reduce_job(lambda: wst(0))
        a('s_branch L_ld_join')
        a.label('L_ld_B')
        if self.w0b == 0: self.cond([f's_cmp_lg_u32 s{s_l}, 3'], lambda: wst(0))
        a('s_barrier')
        if self.w0b == 1: self.cond([f's_cmp_lg_u32 s{s_l}, 3'], lambda: wst(0))
        a.label('L_ld_join')
        a('s_waitcnt vmcnt(0)'); a('s_barrier')
        a(f's_cmp_eq_u32 s{s_l}, 3'); a('s_cbranch_scc1 L_fin')
        self.trickle_rest(1); self.warm_w()
        a(f's_add_u32 s{s_l}, s{s_l}, 1')
        if self.jit: self.jitter(21)
        a('s_barrier')
        if self.jit: self.jitter(22)
        wst(1)
        if self.w2 == 2: wst(2)
        a('s_barrier')
        if self.w2 == 0: wst(2)
        if self.lprio: a(f's_setprio {self.lprio}')
        self.flag_wait(s_fl, vf, t0, 2, nap=self.xnap, own=True)
        self.stamp(1)
        xst(1); xst(2)
        if self.lprio: a('s_setprio 0')
        a('s_waitcnt vmcnt(8)'); a('s_barrier')
        if self.w2 == 1: wst(2)
        a('s_branch L_ld_enter')

    def helper(self):
        a = self.a
        a.label('L_helper')
        t0, t1, t2, t3, l4, l16, ones, a_st, a_cs, v_st, v_cs, aw, vtw, vto, vd = 2, 3, 4, 5, 6, 7, 8, 12, 13, 14, 15, 16, 18, 19, 20
        F, D, SA, SC = 32, 96, 128, 160
        s_h, s_tw, s_a, s_b, s_trot = 65, 66, 67, 68, 69
        xm = 4; s_r = 70; vrf, vfl, aw2, dw = 21, 22, 24, 80
        a(f's_sub_u32 s{s_h}, s{s_wave}, 6')
        if self.tlb:
            self.pointers()
            def others():
                for p, n in ((pPHI, 65536), (pDBG, 256), (pAWO, 1 << 21), (pBW, 3 << 21), (pBWO, 1 << 21), (pOUT, 1 << 22)):
                    for o in list(range(0, n, 1 << 21)) + ([n - 4] if n >= 1 << 21 else []):
                        a(f's_mov_b32 s{s_t}, {o}'); a(f's_load_dword s{s_fd}, s[{p}:{p+1}], s{s_t}')
            def wsp():
                a(f's_lshr_b32 s{s_t}, s2, 3'); a(f's_lshl_b32 s{s_t}, s{s_t}, 21'); a(f's_add_u32 s{s_t}, s{s_t}, 0x80000'); a(f's_min_u32 s{s_t}, s{s_t}, {WS_END - 4}')
                a(f's_load_dword s{s_fd}, s[{pWS}:{pWS+1}], s{s_t}')
                if self.tlb == 2:
                    for k in range(6): a(f's_mov_b32 s{s_t}, {(k << 21) + 0x80000}'); a(f's_load_dword s{s_fd}, s[{pWS}:{pWS+1}], s{s_t}')
            self.cond([f's_cmp_eq_u32 s{s_h}, 0'], wsp)
            self.cond([f's_cmp_eq_u32 s{s_h}, 1'], others)
        a(f'v_lshlrev_b32 v{l4}, 2, v1'); a(f'v_lshlrev_b32 v{l16}, 4, v1')
        a.extend(self.w_frag_addr(aw, s_h, 0, t0, t1, t2))
        for k in range(2): a(f'v_add_u32 v{aw2+k}, {L_SPARE}, v{aw+k}')
        a(f's_and_b32 s{s_t+1}, s{s_m}, {15 - self.rot0}'); a(f's_cmp_eq_u32 s{s_t+1}, 3'); a(f's_cselect_b32 s{s_t+1}, 0, s{s_t+1}'); a(f's_mul_i32 s{s_t+1}, s{s_t+1}, {STG}')
        for k in range(2): a(f'v_add_u32 v{aw+k}, s{s_t+1}, v{aw+k}')
        a.extend(self.flag_addr(vrf, t0, None, remote=True))
        a(f'v_lshrrev_b32 v{t0}, 5, v1'); a(f'v_and_b32 v{t1}, 31, v1'); a(f'v_lshlrev_b32 v{t1}, 4, v{t1}')
        a(f'v_lshl_add_u32 v{v_st}, v{t0}, 10, v{t1}')
        a(f'v_and_b32 v{t2}, 24, v1'); a(f'v_and_b32 v{t3}, 3, v1'); a(f'v_lshl_add_u32 v{t2}, v{t3}, 1, v{t2}'); a(f'v_add_u32 v{t2}, v{t2}, v{t0}')
        a.extend(sx(s_t, [(s_h, 256)], P_NM)); a(f'v_lshl_add_u32 v{a_st}, v{t2}, 3, s{s_t}')
        a(f'v_mov_b32 v{t2}, {BIG}'); a(f'v_cmp_gt_u32 vcc, 384, v{t1}'); a(f'v_cndmask_b32 v{v_cs}, v{t2}, v{v_st}, vcc')
        a.extend(sx(s_t, [(s_h, 384)], P_CS)); a(f'v_lshl_add_u32 v{t1}, v{t0}, 3, v{t1}'); a(f'v_add_u32 v{a_cs}, s{s_t}, v{t1}')
        if not self.tlb: self.pointers()

        def touch_setup(first=False):
            if not self.touch: return
            c, gt = s_t + 2, s_t + 3
            def cls(b):
                a(f's_lshr_b32 s{gt}, s{b}, 7'); a(f's_sub_u32 s{gt}, 3, s{gt}'); a(f's_and_b32 s{gt}, s{gt}, 7')
                a(f's_sub_u32 s{c}, s{s_g}, s{gt}'); a(f's_and_b32 s{c}, s{c}, 7'); a(f's_sub_u32 s{c}, s{c}, 1')
                a(f's_and_b32 s{s_t}, s{s_g}, 8'); a(f's_add_u32 s{gt}, s{gt}, s{s_t}'); a(f's_lshl_b32 s{gt}, s{gt}, 7')
            a(f's_and_b32 s{s_t+4}, s{s_m}, {xm-1}'); a(f's_lshl_b32 s{s_t+4}, s{s_t+4}, 1'); a(f's_add_u32 s{s_t+4}, s{s_t+4}, s{s_h}')
            cls(sW)
            if first: a(f's_or_b32 s{s_rot}, s{s_m}, 3'); a(f's_and_b32 s{s_rot}, s{s_rot}, {self.rot0}'); a(f's_mov_b32 s{s_trot}, 0')
            else: a(f's_mov_b32 s{s_rot}, s{s_rot2}'); a(f's_bfe_u32 s{s_trot}, s{gt}, 0x30007')
            a(f's_cmp_ge_u32 s{c}, 3'); a(f's_cselect_b32 s{s_t}, {32*6144 - 3*2048}, 0'); a(f's_add_u32 s{gt}, s{gt}, s{s_t}')
            a(f's_lshl_b32 s{s_t}, s{c}, 11'); a(f's_add_u32 s{gt}, s{gt}, s{s_t}')
            a(f's_mul_i32 s{s_t}, s{s_t+4}, {(16//xm)*6144}'); a(f's_add_u32 s{gt}, s{gt}, s{s_t}')
            a(f's_cmp_lt_u32 s{c}, 6'); a(f's_cselect_b32 s{s_t}, {16//xm}, 0')
            a(f'v_mul_u32_u24 v{vtw}, 6144, v1'); a(f'v_add_u32 v{vtw}, s{gt}, v{vtw}')
            a(f'v_mov_b32 v{t0}, {BIG}'); a(f'v_cmp_gt_u32 vcc, s{s_t}, v1'); a(f'v_cndmask_b32 v{vtw}, v{t0}, v{vtw}, vcc')
            cls(sWO)
            a(f's_lshl_b32 s{s_t}, s{c}, 19'); a(f's_add_u32 s{gt}, s{gt}, s{s_t}')
            a(f's_mul_i32 s{s_t}, s{s_t+4}, {(128//xm)*2048}'); a(f's_add_u32 s{gt}, s{gt}, s{s_t}')
            a(f's_cmp_lt_u32 s{c}, 4'); a(f's_cselect_b32 s{s_t}, {32//xm}, 0')
            a(f'v_lshlrev_b32 v{vto}, 11, v1'); a(f'v_add_u32 v{vto}, s{gt}, v{vto}')
            a(f'v_cmp_gt_u32 vcc, s{s_t}, v1'); a(f'v_cndmask_b32 v{vto}, v{t0}, v{vto}, vcc')
        def touchW(st):
            if not self.touch: return
            if st == 0: a(f's_add_u32 s{s_tw}, s{s_rot}, s{s_trot}')
            else: a(f's_cmp_le_u32 s{s_trot}, {st-1}'); a(f's_addc_u32 s{s_tw}, s{s_rot}, {st-1}')
            a(f's_and_b32 s{s_tw}, s{s_tw}, 15'); a(f's_mul_i32 s{s_tw}, s{s_tw}, {64*6144}')
            a(f'buffer_load_dword v{vd}, v{vtw}, {srd(sW)}, s{s_tw} offen')
        def touchO(k):
            if not self.touch: return
            a(f's_mov_b32 s{s_tw}, {k*(32//xm)*2048}')
            a(f'buffer_load_dword v{vd}, v{vto}, {srd(sWO)}, s{s_tw} offen')
        def phi_load():
            a(f's_mov_b64 s[{sX}:{sX+1}], s[{pPHI}:{pPHI+1}]'); a(f's_mov_b32 s{sX+2}, 65536')
            a.extend(sx(s_t, [(s_g, 4096), (s_h, 2048)])); a(f's_lshl_b32 s{s_t+1}, s{s_h}, 11'); a(f's_add_u32 m0, s{s_t+1}, {P_PHI}')
            for j in range(2): a(f'buffer_load_dwordx4 v{l16}, {srd(sX)}, s{s_t} offen offset:{1024*j} lds')
        vc = 26
        if self.cpf: a(f's_getpc_b64 s[{s_t}:{s_t+1}]')
        if self.cpf: a.label('L_pc')
        if self.cpf: a(f's_sub_u32 s{s_t}, s{s_t}, L_pc-{KNAME}'); a(f's_subb_u32 s{s_t+1}, s{s_t+1}, 0')
        if self.cpf: a(f's_lshr_b32 s{s_t+2}, s2, 3'); a.extend(sx(s_t+3, [(s_t+2, 1280), (s_h, 640)]))
        if self.cpf: a(f'v_lshl_add_u32 v{t0}, v1, 7, s{s_t+3}'); a(f'v_min_u32 v{t0}, L_last-{KNAME}, v{t0}')
        if self.cpf: a(f'v_mov_b32 v{vc+1}, s{s_t+1}'); a(f'v_add_co_u32 v{vc}, vcc, s{s_t}, v{t0}'); a(f'v_addc_co_u32 v{vc+1}, vcc, 0, v{vc+1}, vcc')
        def code_touch():
            a('s_mov_b64 exec, 31'); a(f'global_load_dword v{vd}, {vr(vc,2)}, off'); a('s_mov_b64 exec, -1')
        if self.cpf & 1: code_touch()
        def cold_touch():
            a(f's_and_b32 s{s_t}, s{s_m}, 3'); a(f's_and_b32 s{s_t+1}, s{s_m}, 12')
            a.extend(sx(s_t+2, [(s_t, 16*6144), (s_t+1, 64*6144), (s_h, 64*6144), (s_g, 128)]))
            a(f'v_lshlrev_b32 v{t0}, 11, v1'); a('s_mov_b32 exec_hi, 0xffff')
            for st in self.t0s:
                a(f's_add_u32 s{s_t}, s{s_t+2}, {abs(st)*64*6144}'); a(f'buffer_load_dword v{vd}, v{t0}, {srd(sW)}, s{s_t} offen')
            a('s_mov_b32 exec_hi, -1')
        if self.t0s and self.t0s[0] < 0: cold_touch()
        self.w_dma_offsets(dw, s_h, t0, t1, t2)
        touch_setup(True)
        if self.t0s and self.t0s[0] >= 0: cold_touch()
        for st in range(1, 3 + self.dist): touchW(st)

        def init_stores():
            for k in range(4): a(f'v_mov_b32 v{SA+k}, -1')
            fill = f'buffer_store_dwordx4 {vr(SA,4)}, v{l16}, {srd(sWS)}, s{s_t} offen'
            a.extend(sx(s_t, [(s_g, 131072), (s_h, 65536), (s_m, 2048)], WS_KVP)); a(fill + ' sc1'); a(fill + ' offset:1024 sc1')
            a(f's_add_u32 s{s_t}, s{s_t}, 32768'); a(fill + ' sc1'); a(fill + ' offset:1024 sc1')
            a('s_mov_b64 exec, 0xff')
            a.extend(sx(s_t, [(s_g, 8192), (s_h, 4096), (s_m, 128)], WS_KVF)); a(fill + ' sc1'); a(fill + ' offset:2048 sc1')
            a.extend(sx(s_t, [(s_g, 4096), (s_h, 2048), (s_m, 128)], WS_ZP)); a(fill + ' sc1')
            a.extend(sx(s_t, [(s_g, 256), (s_h, 128)], WS_ZF))
            a(f's_cmp_eq_u32 s{s_m}, s{s_g}'); a(f's_cselect_b32 s{s_t}, s{s_t}, {BIG}'); a(fill + ' sc1')
            a('s_mov_b64 exec, -1')
            a(f'v_lshrrev_b32 v{t1}, 2, v1'); a(f'v_lshlrev_b32 v{t1}, 10, v{t1}'); a(f'v_and_or_b32 v{t1}, v1, 3, v{t1}')
            a.extend(sx(s_t, [(s_m, 64), (s_g, 4)])); a(f'v_add_u32 v{t1}, s{s_t}, v{t1}')
            a(f's_cmp_eq_u32 s{s_h}, 0'); a(f's_cselect_b32 s{s_t+1}, {2 + self.ls}, 7'); a(f's_cselect_b32 s{s_t}, 0, {WS_RF}')
            a(f'v_lshlrev_b32 v{t1}, s{s_t+1}, v{t1}'); a(f'v_mov_b32 v{t0}, 0')
            a('s_mov_b64 exec, 0xfffffff')
            a(f'buffer_store_dword v{t0}, v{t1}, {srd(sWS)}, s{s_t} offen sc1')
            a('s_mov_b64 exec, -1')
            a.extend(sx(s_t, [(s_g, 16384), (s_m, 1024)], WS_CS)); a(f's_cmp_eq_u32 s{s_h}, 1'); a(f's_cselect_b32 s{s_t}, s{s_t}, {BIG}'); a(fill + ' sc1')
        for k in range(4): a(f'v_mov_b32 v{ones+k}, 0x3f803f80')
        def cs_reads(aw=aw):
            for s in range(2):
                for n in range(6):
                    for t in range(2):
                        a(f'ds_read_b64_tr_b16 {vr(F+24*s+4*n+2*t,2)}, v{aw+(n&1)} offset:{(n>>1)*8192+(32*s+4*t)*128}')
            a('s_waitcnt lgkmcnt(0)')
        def cs_publish():
            for s in range(2):
                for n in range(6): a(mf16(D+4*n, ones, F+24*s+4*n, D+4*n if s else None))
            a.extend(sx(s_t, [(s_l, 262144), (s_g, 16384), (s_m, 1024), (s_h, 128)], WS_CS))
            a('s_mov_b64 exec, 0xffff')
            for n in range(6): a(f'buffer_store_dword v{D+4*n}, v{l4}, {srd(sWS)}, s{s_t} offen offset:{(n>>1)*256+(n&1)*64} sc1')
            a('s_mov_b64 exec, -1')
        def chunk(t):
            a(f's_mul_i32 s{s_t}, s{s_m}, {64*6144}'); a(f's_mul_i32 s{s_t+1}, s{s_h}, 12288'); a(f's_add_u32 m0, s{s_t+1}, {L_SPARE + 4096*(t//2)}')
            for j in range(2*t, 2*t+2): a(f'buffer_load_dwordx4 v{dw+j}, {srd(sW)}, s{s_t} offen offset:{1024*(j%4)} lds')
        def arrive():
            a(f's_getreg_b32 s{s_t}, hwreg(HW_REG_XCC_ID, 0, 3)'); a(f's_lshl_b32 s{s_t}, s{s_t}, 2'); a(f's_lshl_b32 s{s_t+1}, 1, s{s_t}')
            a.extend(sx(s_t, [(s_m, 16), (s_rot2, 1)]))
            a('s_mov_b64 exec, 1')
            a(f'v_mov_b32 v{t0}, s{s_t+1}')
            a(f'buffer_atomic_add v{t0}, off, {srd(sDBG)}, s{s_t} sc1')
            a('s_mov_b64 exec, -1')
        iload = f'buffer_load_dword v{vfl}, v{t2}, {srd(sDBG)}, 0 offen sc1'
        def init_look():
            a(f'v_and_b32 v{t2}, 31, v1'); a(f'v_lshlrev_b32 v{t2}, 3, v{t2}'); a(iload)
        def init_wait():
            a('s_waitcnt vmcnt(0)')
            self.spin(['s_sleep 16', iload],
                      [f'v_lshrrev_b32 v{t1}, 4, v{vfl}', f'v_and_b32 v{t1}, 0x0f0f0f0f, v{t1}', f'v_and_b32 v{t3}, 0x0f0f0f0f, v{vfl}',
                       f'v_sad_u8 v{t1}, v{t1}, 0, 0', f'v_sad_u8 v{t3}, v{t3}, 0, v{t1}', f'v_cmp_gt_u32 vcc, 8, v{t3}'], t3, 3, pre=True)
            a(f's_lshr_b32 s{s_t}, s{s_rot2}, 3'); a(f's_lshl_b32 s{s_t+1}, s{s_m}, 1'); a(f's_add_u32 s{s_t}, s{s_t}, s{s_t+1}')
            a(f'v_readlane_b32 s{s_fast}, v{vfl}, s{s_t}')
            a(f's_and_b32 s{s_fast}, s{s_fast}, 0x88888888'); a(f's_cselect_b32 s{s_fast}, {1 if self.local else 0}, 0')
            a(f'v_mov_b32 v{t3}, s{s_fast}'); a(f'v_mov_b32 v{t2}, {P_MODE}'); a(f'ds_write_b32 v{t2}, v{t3}')
        def gather(R, va, so, ks):
            L = []
            for k in ks: L += [f's_add_u32 s{s_t}, s{so}, {4096*(k//2)}', f'buffer_load_dwordx4 {vr(R+4*k,4)}, v{va}, {srd(sWS)}, s{s_t} offen offset:{2048*(k%2)} sc1']
            return L
        def total(R):
            n = 8
            while n > 1:
                n //= 2
                for k in range(4*n): a(f'v_add_f32 v{R+k}, v{R+k}, v{R+k+4*n}')
            a(sw32(R, R+2)); a(sw32(R+1, R+3)); a(f'v_add_f32 v{R}, v{R}, v{R+2}'); a(f'v_add_f32 v{R+1}, v{R+1}, v{R+3}')
        def stats_finish():
            for k in range(2): a(f'v_mov_b32_dpp v{SA+2+k}, v{SA+k} row_shl:4 row_mask:0xf bank_mask:0xf')
            for k in range(2): a(f'v_mul_f32 v{SA+k}, {f2u(-1/1024)}, v{SA+k}'); a(f'v_mul_f32 v{SA+2+k}, {f2u(1/1024)}, v{SA+2+k}')
            for k in range(2): a(f'v_fma_f32 v{SA+2+k}, -v{SA+k}, v{SA+k}, v{SA+2+k}')
            for k in range(2): a(f'v_max_f32 v{SA+2+k}, 0, v{SA+2+k}')
            for k in range(2): a(f'v_add_f32 v{SA+2+k}, {f2u(1e-5)}, v{SA+2+k}')
            for k in range(2): a(f'v_rsq_f32 v{SA+2+k}, v{SA+2+k}')
            a('s_mov_b32 exec_lo, 0x0f0f0f0f'); a('s_mov_b32 exec_hi, 0x0f0f0f0f')
            a(f'ds_write_b64 v{a_st}, {vr(SA,2)}'); a(f'ds_write_b64 v{a_st}, {vr(SA+2,2)} offset:512')
            a('s_mov_b64 exec, -1')
        def cs_finish():
            total(SC)
            a(f's_mul_i32 s{s_t}, s{s_l}, 768'); a(f'v_add_u32 v{t0}, s{s_t}, v{a_cs}')
            a('s_mov_b32 exec_lo, 0xffffff'); a('s_mov_b32 exec_hi, 0xffffff')
            a(f'ds_write_b64 v{t0}, {vr(SC,2)}')
            a('s_mov_b64 exec, -1')
        l0 = [f's_cmp_eq_u32 s{s_l}, 0']; ln0 = [f's_cmp_lg_u32 s{s_l}, 0']; l01 = [f's_cmp_lt_u32 s{s_l}, 2']
        a(f's_mov_b32 s{s_r}, 0')
        a.label('L_hp_layer')
        a.extend(sx(s_a, [(s_l, 262144), (s_m, 16384), (s_h, 512)], WS_ST))
        a.extend(sx(s_b, [(s_l, 262144), (s_g, 16384), (s_h, 384)], WS_CS))
        self.trickle_setup(); self.warm_wo_setup()
        hi = lambda: self.hprio and a(f's_setprio {self.hprio}')
        lo = lambda: self.hprio and a('s_setprio 0')
        l1 = [f's_cmp_eq_u32 s{s_l}, 1']
        for i in range(17):
            a('s_barrier')
            if self.jit and i in (0, 1, 4, 8, 9, 12, 16): self.jitter(30 + i)
            ncs = 16 - self.rot0
            l0h0 = [f's_or_b32 s{s_t}, s{s_l}, s{s_h}', f's_cmp_eq_u32 s{s_t}, 0']
            if i < ncs: self.cond([f's_and_b32 s{s_t}, s{s_m}, {ncs-1}', f's_lshl_b32 s{s_t+1}, s{s_l}, 2', f's_or_b32 s{s_t}, s{s_t}, s{s_t+1}', f's_cmp_eq_u32 s{s_t}, {i}'], cs_reads)
            if i == 8: self.cond(l1, lambda: cs_reads(aw2))
            if i in (self.i0 + self.iw, 5, 7, 13): a('s_waitcnt vmcnt(0)')
            if i == 5: self.cond(ln0, lambda: self.flag_wait(s_r, vrf, vfl, 8, pre=True, nap=self.nap))
            if i == 9: self.cond(l0h0, init_wait)
            if i <= 12: hi()
            if i == self.i0: self.cond(l0, lambda: (init_stores(), phi_load()))
            if i == self.i0 + self.iw + 1: self.cond(l0h0, arrive)
            if i == max(4, self.i0 + self.iw + 1): self.cond(l0, cs_publish)
            if i == 9: self.cond(l1, cs_publish)
            if i == 8: self.cond(l0h0, init_look)
            if i == 11 and self.cpf & 2: self.cond(l01, code_touch)
            if i == 4: self.cond(ln0, lambda: a(self.flag_load(s_r, vrf, vfl)))
            if i + 3 + self.dist <= 15: touchW(i + 3 + self.dist)
            if 5 <= i <= 8: touchO(i - 5)
            if 1 <= i <= 6: self.cond(l1, lambda: chunk(i - 1))
            if i == 6: self.cond([f's_cmp_eq_u32 s{s_l}, 2'], phi_load)
            if i in (10, 11): a.extend(gather(SA, v_st, s_a, range(4*(i-10), 4*(i-10)+4)))
            if i in (11, 12): self.cond(l01, lambda: a.extend(gather(SC, v_cs, s_b, range(4*(i-11), 4*(i-11)+4))))
            if i <= 12: lo()
            if 1 <= i <= 12: self.trickle(i - 1)
            if i == 13: self.ll_wait(gather(SA, v_st, s_a, range(8)), list(range(SA, SA+32)), t0, t1, 6, pre=True); total(SA)
            if i == 14: stats_finish()
            if i == 14: self.cond(l01, lambda: self.ll_wait(gather(SC, v_cs, s_b, range(8)), list(range(SC, SC+32)), t0, t1, 7, pre=True))
            if i == 15: self.cond(l01, cs_finish); a('s_waitcnt lgkmcnt(0)')
        a.extend(sx(s_t+1, [(s_l, 8192), (s_m, 256), (s_g, 16), (s_h, 4096)])); a(f's_lshl_b32 s{s_t+1}, s{s_t+1}, {self.ls}')
        a(f'v_and_b32 v{t0}, 3, v1'); a(f'v_lshlrev_b32 v{t0}, {2 + self.ls}, v{t0}'); a(f'buffer_load_dword v{vd}, v{t0}, {srd(sWS)}, s{s_t+1} offen sc1')
        a.extend(sx(s_t, [(s_l, 8192), (s_m, 256), (s_rot2, 16)]))
        a(f's_xor_b32 s{s_t}, s{s_t}, 128'); a.extend(sx(s_r, [(s_t, 32), (s_h, 256)], WS_RF))
        a(f's_bitcmp0_b32 s{s_l}, 0')
        a(f's_cselect_b64 s[{sW}:{sW+1}], s[{pBW}:{pBW+1}], s[{pAW}:{pAW+1}]')
        a(f's_cselect_b64 s[{sWO}:{sWO+1}], s[{pBWO}:{pBWO+1}], s[{pAWO}:{pAWO+1}]')
        touch_setup()
        touchW(0); touchW(1); touchW(2)
        a(f's_bitcmp1_b32 s{s_l}, 0'); a('s_cbranch_scc1 L_hp_B')
        self.reduce_job()
        a('s_branch L_hp_join')
        a.label('L_hp_B')
        a('s_barrier')
        a.label('L_hp_join')
        a('s_barrier')
        a(f's_cmp_eq_u32 s{s_l}, 3'); a('s_cbranch_scc1 L_fin')
        self.trickle_rest(1); self.warm_w()
        a(f's_add_u32 s{s_r}, s{s_r}, {4096*32}')
        a(f's_add_u32 s{s_l}, s{s_l}, 1')
        a('s_barrier')
        for st in range(3, 3 + self.dist): touchW(st)
        a('s_branch L_hp_layer')

    def compute(self):
        a = self.a
        one, l16, voffR, voffI, a_tok, a_row, a_t32, a_csr, a_csv = 0, 2, 3, 4, 5, 6, 7, 8, 9
        ax, awq = 10, 12
        l4 = 14; vst = 15
        XR = 16
        ACC = 32
        FX = [128, 144]; FW = [160, 184]
        T = 208
        t0, t1, t2, t3 = T, T+1, T+2, T+3
        s_wm, s_wh, s_rslot, s_delta, s_stg, s_ones = 65, 66, 67, 68, 69, 70
        s_o = 71
        s_ob = 75
        s_obase, s_ooff, s_a, s_b, s_c, s_d, s_e, s_fp, s_st, s_fo = range(77, 87)
        a(f'v_lshrrev_b32 v{t0}, 4, v1')
        a(f'v_and_b32 v{t1}, 15, v1')
        a(f'v_and_b32 v{t2}, 1, v{t0}'); a(f'v_lshrrev_b32 v{t3}, 1, v{t0}'); a(f'v_lshl_add_u32 v{t2}, v{t2}, 1, v{t3}')
        a(f'v_lshlrev_b32 v{voffR}, 11, v{t1}'); a(f'v_lshl_add_u32 v{voffR}, v{t2}, 4, v{voffR}')
        def x0():
            a = self.a
            a.extend(sx(s_t, [(s_m, 1 << 18), (s_wave, 1 << 16), (s_g, 128)])); a(f's_add_u32 s{s_t+1}, s{s_t}, 32768')
            if not self.st0 & 16 and self.xd is None: self.pointers()
            if self.crow & 1:
                a.extend(sx(s_t+2, [(2, 4*6144), (s_wave, 6144)])); a(f'v_lshlrev_b32 v{T+8}, 7, v1'); a('s_mov_b32 exec_hi, 0xffff')
                a(f'buffer_load_dword v{T+9}, v{T+8}, {srd(sW)}, s{s_t+2} offen'); a('s_mov_b32 exec_hi, -1')
            if self.crow & 2:
                a.extend(sx(s_t+2, [(2, 4*4096), (s_wave, 4096)])); a(f'v_lshlrev_b32 v{T+8}, 7, v1'); a('s_mov_b32 exec_hi, 0')
                a(f'buffer_load_dword v{T+9}, v{T+8}, {srd(sX)}, s{s_t+2} offen'); a('s_mov_b32 exec_hi, -1')
            if self.xl:
                a(f'v_lshrrev_b32 v{T+8}, 3, v1'); a(f'v_and_b32 v{T+9}, 7, v1'); a(f'v_lshlrev_b32 v{T+9}, 4, v{T+9}'); a(f'v_lshl_add_u32 v{T+8}, v{T+8}, 11, v{T+9}')
                a.extend(sx(s_t+1, [(s_wave, 4096)], L_SPARE)); a(f's_mov_b32 m0, s{s_t+1}')
                for j in range(4):
                    if j: a(f's_add_u32 s{s_t}, s{s_t}, {16384 - 1024}')
                    a(f'buffer_load_dwordx4 v{T+8}, {srd(sX)}, s{s_t} offen offset:{1024*j} lds')
                a(f'v_lshrrev_b32 v{T+9}, 4, v{voffR}'); a(f'v_and_b32 v{T+9}, 0x780, v{T+9}'); a(f'v_and_or_b32 v{T+9}, v{voffR}, 48, v{T+9}'); a(f'v_add_u32 v{T+9}, s{s_t+1}, v{T+9}')
                return
            for tb in range(2):
                for e in range(2): a(f'buffer_load_dwordx4 {vr(XR+8*tb+4*e,4)}, v{voffR}, {srd(sX)}, s{s_t+tb} offen offset:{64*e}')
        if self.st0 & 16 or self.xd is not None: self.pointers()
        elif not self.st0 & 8: x0()
        a(f's_lshr_b32 s{s_wm}, s{s_wave}, 1'); a(f's_and_b32 s{s_wh}, s{s_wave}, 1')
        a(f'v_mov_b32 v{one}, 1')
        a(f'v_lshl_add_u32 v{voffI}, v{t2}, 4, v{t1}'); a(f'v_lshlrev_b32 v{voffI}, 4, v{voffI}'); a(f'v_mov_b32 v{vst}, v{voffI}')
        a(f'v_lshlrev_b32 v{l16}, 4, v1'); a(f'v_lshlrev_b32 v{l4}, 2, v1')
        a.extend(sx(s_t, [(s_wm, 256)], P_NM))
        a(f'v_lshl_add_u32 v{a_tok}, v{t1}, 2, s{s_t}')
        a(f'v_lshl_add_u32 v{a_row}, v{t0}, 4, s{s_t}')
        a(f'v_and_b32 v{t3}, 31, v1'); a(f'v_lshl_add_u32 v{a_t32}, v{t3}, 2, s{s_t}')
        a.extend(sx(s_t, [(s_wh, 128)], P_CS))
        a(f'v_lshl_add_u32 v{a_csr}, v{t0}, 4, s{s_t}')
        a(f'v_lshl_add_u32 v{a_csv}, v{t1}, 2, s{s_t}')
        a(f's_mov_b32 s{s_stg}, {STG}'); a(f's_mov_b32 s{s_ones}, 0x3f803f80')
        a(f'v_lshrrev_b32 v{t2}, 1, v{t1}'); a(f'v_xor_b32 v{t2}, v{t2}, v{t0}')
        a.extend(sx(s_t, [(s_wm, 8192)], XOFF)); a(f'v_lshl_add_u32 v{t1}, v{t1}, 7, s{s_t}')
        for s in range(2):
            a(f'v_xor_b32 v{t3}, {4*s}, v{t2}'); a(f'v_lshl_add_u32 v{ax+s}, v{t3}, 4, v{t1}')
        a.extend(sx(s_st, [(s_m, 16384), (s_g, 1024), (s_wave, 256)], WS_ST))

        q = 216
        def stats():
            S = []
            for k in range(8):
                for tb in range(2):
                    r = XR + 8*tb + k
                    S += [f'v_dot2_f32_bf16 v{q+2*tb}, s{s_ones}, v{r}, ' + (f'v{q+2*tb}' if k else '0'),
                          f'v_dot2_f32_bf16 v{q+2*tb+1}, v{r}, v{r}, ' + (f'v{q+2*tb+1}' if k else '0')]
            return S + [sw32(q, q+2), sw32(q+1, q+3), pk('add', q, q, q+2), sw16(q, q+1), f'v_add_f32 v{q}, v{q}, v{q+1}']
        st_store = f'buffer_store_dword v{q}, v{l4}, {srd(sWS)}, s{s_st} offen sc1'
        def acc(b, n): return ACC + 4*(6*b + n)
        A2 = 208
        def reads(s, st, slot=0):
            x, w, o = (ax, awq, STG*slot) if slot < 2 else (A2, A2+2, 0)
            X = [f'ds_read_b128 {vr(FX[st]+4*b,4)}, v{x+s} offset:{o+2048*b}' for b in range(4)]
            W = [[f'ds_read_b64_tr_b16 {vr(FW[st]+4*n+2*t,2)}, v{w+(n&1)} offset:{o+(n>>1)*8192+(32*s+4*t)*128}' for t in range(2)] for n in range(6)]
            L = [X[0]] + W[0] + X[1:]
            for n in range(1, 6): L += W[n]
            return L
        def mfma(st, b, n, zero=False):
            C = None if zero else acc(b, n)
            return mf16(acc(b, n), FW[st]+4*n, FX[st]+4*b, C) if n < 4 else mf16(acc(b, n), FX[st]+4*b, FW[st]+4*n, C)
        def mfmas(st, zero=False):
            return [mfma(st, b, n, zero) for n in range(6) for b in (range(4) if not (self.snake and n % 2) else range(3, -1, -1))]
        env = dict(locals())
        a.extend(self.w_frag_addr(awq, s_wh, 0, t0, t1, t2))
        self.epiA(env, 'v')
        if self.st0 & 8: x0()
        a(f'v_mov_b32 v{q}, -1'); a(st_store)
        a(f's_sub_u32 s{s_st}, s{s_st}, 262144')
        a.label('L_first')
        a('s_barrier')
        self.stamp(12)
        if self.st0 & 16: self.cond([f's_cmp_eq_u32 s{s_l}, 0'], x0)
        S = autowait(reads(0, 0) + interleave(mfmas(0, True), reads(1, 1), per=[0]*4 + [1]*20))
        cut = [k for k, t in enumerate(S) if t.startswith('v_mfma')][self.fpos-1] + 1
        a.extend(S[:cut])
        a('s_waitcnt vmcnt(0)')
        self.stamp(11)
        self.cond([f's_cmp_lg_u32 s{s_l}, 0'], lambda: self.flag_set(s_fo, one))
        a.extend(S[cut:])
        if self.xl: self.cond([f's_cmp_eq_u32 s{s_l}, 0'], lambda: [a(f'ds_read_b128 {vr(XR+8*tb+4*e,4)}, v{T+9} offset:{2048*tb+64*e}') for tb in range(2) for e in range(2)])
        a('s_waitcnt lgkmcnt(0)')
        S = [f'v_add_u32 v{A2+k}, {2*STG}, v{ax+k}' for k in range(4)] + [f's_mov_b32 s{s_i}, 0']
        assert awq == ax + 2
        S += sx(s_t, [(s_l, 1 << 22), (s_m, 1 << 18)], WS_OI)
        S += sx(s_obase, [(s_wave, 1 << 16), (s_t, 1)]) + [f's_lshl_b32 s{s_ooff}, s{s_rot2}, 11']
        S += [f's_add_u32 s{s_ob}, s{s_obase}, s{s_ooff}', f's_add_u32 s{s_ob+1}, s{s_ob}, 32768']
        S += sx(s_a, [(s_wm, 1 << 17), (s_g, 2048), (s_wh, 1024), (s_t, 1)])
        S += sx(s_o, [(s_g, 16384), (s_wave, 4096), (s_t, 1)], WS_XI - WS_OI) + [f's_add_u32 s{s_o+k}, s{s_o}, {1024*k}' for k in range(1, 4)]
        S += sx(s_fp, [(s_l, 8192), (s_m, 256)]) + sx(s_fo, [(s_g, 16), (s_wave, 4), (s_fp, 1)]) + sx(s_fo+1, [(s_fo, 32)], WS_RF) + [f's_lshl_b32 s{s_fo}, s{s_fo}, {self.ls}']
        S += sx(s_t, [(s_wm, 8), (s_rot2, 16)]) + [f's_add_u32 s{s_fp}, s{s_fp}, s{s_t}']
        a.extend(interleave(mfmas(1), S, per=[2]*20 + [3]*4))
        if self.lfl == 2: self.cond([f's_cmp_lg_u32 s{s_l}, 0'], lambda: (a(f's_sub_u32 s{s_t+1}, s{s_fo+1}, {4096*32}'), self.flag_set(s_t, one, 2)))
        a(f's_bitcmp1_b32 s{s_l}, 0'); a('s_cbranch_scc1 L_preB')
        self.epiA(env, 's')
        a('s_branch L_pre_done')
        a.label('L_preB')
        self.epiB(env, 's')
        def last():
            a(f's_mov_b64 s[{sOUT}:{sOUT+1}], s[{pOUT}:{pOUT+1}]'); a(f's_mov_b32 s{sOUT+2}, {2048*1024*2}')
            a.extend(sx(s_o, [(s_m, 1 << 18), (s_wave, 1 << 16), (s_g, 128)]))
            a(f's_add_u32 s{s_o+1}, s{s_o}, 64'); a(f's_add_u32 s{s_o+2}, s{s_o}, 32768'); a(f's_add_u32 s{s_o+3}, s{s_o}, {32768+64}')
            a(f'v_mov_b32 v{vst}, v{voffR}')
        self.cond([f's_cmp_eq_u32 s{s_l}, 3'], last)
        a.label('L_pre_done')
        a(f's_add_u32 s{s_st}, s{s_st}, 262144')
        if self.xd is not None: a(f's_cmp_eq_u32 s{s_l}, 0'); a(f's_cselect_b32 s{s_rslot}, 6, 0'); a('s_cbranch_scc1 L_go')
        a.extend(stats()); a(st_store)
        a.label('L_go')
        a('s_barrier')
        self.stamp(1)
        a.extend(reads(0, 0, 1))
        a('s_branch L_q1')
        nb = self.bpos + 1
        def half0(slot):
            if self.prof >= 5:
                a('s_memtime s[92:93]' if self.prof == 5 else 's_memrealtime s[92:93]'); a(f's_lshl_b32 m0, s{s_l}, 4'); a(f's_add_u32 m0, m0, s{s_i}'); a(f's_add_u32 m0, m0, {(slot+2)%3+1}')
            if self.probe and self.probe[1][1] >= 20 and (self.probe[1][1] - 20) % 3 == slot:
                self.cond([f's_cmp_eq_u32 s{s_i}, {(self.probe[1][1] - 21) // 3 * 3}'], lambda: self.stamp(self.probe[1][1]))
            if slot == self.xd:
                a(f's_cmp_lt_u32 s{s_i}, s{s_rslot}'); a('s_cbranch_scc1 L_x0'); a.label('L_x0_back')
                def ev():
                    a = self.a
                    a.label('L_x0'); a(f's_cmp_eq_u32 s{s_i}, 0'); a('s_cbranch_scc0 L_x0_stats')
                    x0(); a('s_branch L_x0_back')
                    a.label('L_x0_stats'); a('s_waitcnt vmcnt(0)'); a.extend(stats()); a(st_store); a('s_branch L_x0_back')
                self.aside(ev)
            a('s_waitcnt lgkmcnt(0)')
            F = reads(1, 1, slot)
            if self.prof >= 5: F = ['v_writelane_b32 v255, s92, m0'] + F
            if slot == 0: F += [f's_add_u32 s{s_i}, s{s_i}, 3', f's_cmp_lt_u32 s{s_i}, 15']
            a.extend(interleave(mfmas(0), F, per=[0]*self.r0 + [1]*24))
            a('s_waitcnt lgkmcnt(0)')
            a.extend(mfmas(1)[:nb]); a('s_barrier')
        def half1(slot):
            R = reads(0, 0, (slot+1) % 3)
            a(R[0]); a.extend(interleave(mfmas(1)[nb:], R[1:], per=[1]*24))
        a('.p2align 6')
        a.label('L_q')
        half1(0)
        a.label('L_q1')
        half0(1); half1(1); half0(2); half1(2); half0(0)
        a('s_cbranch_scc1 L_q')
        a.label('L_tail')
        self.stamp(2)
        a(f's_bitcmp1_b32 s{s_l}, 0'); a('s_cbranch_scc1 L_epiB')
        self.epiA(env, False)
        a('s_branch L_ophase')
        a.label('L_epiB')
        self.epiB(env, False)
        a.label('L_ophase')
        PD = self.pd; NR = PD + 1
        OA, OW, awo, vf, RING = 128, [160, 176], 192, 196, 32
        assert RING + 8*NR <= 128
        u0, u1, u2, vrf, vot, vxw = 197, 198, 199, 204, 205, 206
        a(f'v_mov_b32 v{u0}, {P_MODE}'); a(f'ds_read_b32 v{u0}, v{u0}')
        def oacc(tb, nb): return OA + 16*tb + 4*nb
        for k in range(4):
            a(sw16(XR+4*k, XR+4*k+2)); a(sw16(XR+4*k+1, XR+4*k+3))
        a('s_waitcnt lgkmcnt(0)'); a(f'v_readfirstlane_b32 s{s_fast}, v{u0}')
        a(f's_xor_b32 s{s_t}, s{s_fp}, 128'); a.extend(sx(s_e, [(s_t, 32)], WS_RF))
        a.extend(self.flag_addr(vrf, u1, None, remote=True))
        a.extend(self.flag_addr(vf, u1, s_fp))
        s_fq = s_d
        a(f's_cmp_eq_u32 s{s_fast}, 1'); a(f's_cselect_b32 s{s_fq}, s{s_fp}, {BIG}')
        for r in range(16):
            a(f'v_lshlrev_b32 v{OA+2*r}, 16, v{XR+r}'); a(f'v_and_b32 v{OA+2*r+1}, 0xffff0000, v{XR+r}')
        def oreads(h):
            return [f'ds_read_b64_tr_b16 {vr(OW[h&1]+4*nb+2*t,2)}, v{awo+nb} offset:{(h&15)*4096+512*t}' for nb in range(4) for t in range(2)]
        a('s_waitcnt vmcnt(0)')
        self.stamp(8)
        self.flag_set(s_fo, one, 1)
        a(self.flag_load(s_fq, vf, u0, self.pf))
        self.flag_set(s_fo, one, 2)
        a.extend(self.w_frag_addr(awo, None, L_WO, vxw, u1, u2, nb_list=(0, 1, 2, 3)))
        if not self.bw: a('s_barrier'); a.extend(oreads(0))
        def next_consts():
            a(f's_cmp_eq_u32 s{s_wh}, 0'); a('s_cselect_b64 vcc, -1, 0')
            for k in range(2): a(f'v_cndmask_b32 v{awq+k}, v{awo+2+k}, v{awo+k}, vcc')
            for k in range(2): a(f'v_subrev_u32 v{awq+k}, {L_WO}, v{awq+k}')
            a.extend(sx(s_t, [(s_wm, 8192)], XOFF)); a(f'v_add_u32 v{ax}, s{s_t}, v{l16}'); a(f'v_add_u32 v{ax+1}, 1024, v{ax}')
            a.extend(sx(s_t, [(s_wave, 4096)], XOFF)); a(f'v_add_u32 v{vxw}, s{s_t}, v{voffI}')
            a(f's_bitcmp1_b32 s{s_l}, 0'); a('s_cbranch_scc1 L_nextA')
            self.epiB(env, 'v')
            a('s_branch L_next_done')
            a.label('L_nextA')
            self.cond([f's_cmp_lg_u32 s{s_l}, 3'], lambda: self.epiA(env, 'v'))
            a.label('L_next_done')
        if not self.vpos: next_consts()
        self.flag_wait(s_fp, vf, u0, 4, pre='s_waitcnt vmcnt(1) lgkmcnt(0)', own=True)
        self.stamp(9)
        def oload(h, tb):
            L = [f'buffer_load_dwordx4 {vr(RING+8*(h%NR)+4*tb,4)}, v{l16}, {srd(sWS)}, s{s_ob+tb} offen offset:{1024*(h&3)} sc1']
            if h & 3 == 3 and h < 31:
                if tb == 0: L += [f's_add_u32 s{s_ooff}, s{s_ooff}, 4096', f's_and_b32 s{s_ooff}, s{s_ooff}, 0x7fff', f's_add_u32 s{s_ob}, s{s_obase}, s{s_ooff}']
                else: L += [f's_add_u32 s{s_ob+1}, s{s_ob}, 32768']
            return L
        S = []
        for h in range(PD):
            S += oload(h, 0) + oload(h, 1)
            if self.bw and h == 3: S += ['s_barrier'] + oreads(0)
        S.append('s_nop 2')
        hc = self.hc or 15 - PD
        DL = self.dl; assert DL <= PD and DL % 2 == 0
        UN = [(p, nb) for p in range(32 - DL) for nb in range(4)] + [(p, nb) for e in range(2) for p in range(32 - DL, 32) for nb in (2*e, 2*e+1)]
        def out(k4):
            return [cvt(XR+4*k4+k, OA+8*k4+2*k, OA+8*k4+2*k+1) for k in (0, 2, 1, 3)], [sw16(XR+4*k4, XR+4*k4+2), sw16(XR+4*k4+1, XR+4*k4+3)], [
                    f'buffer_store_dwordx4 {vr(XR+4*k4,4)}, v{vst}, {srd(sOUT)}, s{s_o+k4} offen sc1', f'ds_write_b128 v{vxw}, {vr(XR+4*k4,4)} offset:{1024*k4}']
        early = (out(0)[0] + out(2)[0][:2] + out(0)[1] + out(2)[0][2:] + out(0)[2][:1] + out(2)[1] + out(0)[2][1:] + out(2)[2]) if DL else []
        for h in range(32):
            if h == 15: S += [f'v_add_u32 v{awo+nb}, 0x10000, v{awo+nb}' for nb in range(4)]
            for k in range(8):
                u, tb = 4*h + k//2, k % 2
                p, nb = UN[u]
                S.append(mf16(oacc(tb, nb), OW[0]+4*(u%8), RING+8*(p%NR)+4*tb, oacc(tb, nb)))
                if u + 4 < 128:
                    p2, nb2 = UN[u+4]
                    S.append(f'ds_read_b64_tr_b16 {vr(OW[0]+4*((u+4)%8)+2*tb,2)}, v{awo+nb2} offset:{(p2&15)*4096+512*tb}')
                for j in range(2):
                    if k == self.opos[j] and h + PD < 32 and not (h + PD >= 16 and h <= hc): S += oload(h+PD, j)
                if 2*u + tb >= 256 - 4*DL + 2:
                    n = 2
                    S += early[:n]; early = early[n:]
            if h == self.hq: S.append(self.flag_load(s_e, vrf, u1))
            if h == hc:
                S += [f'v_cmp_eq_u32 vcc, 0, v{u1}', 's_nop 1']
                for p in range(16, hc + PD + 1): S += oload(p, 0) + oload(p, 1)
            if self.fine == 4 and h in self.oh: S.append(f's_nop {4 + self.oh.index(h)}')
            if h == self.bm: S.append('s_barrier')
        S = autowait(S + early); cut0 = S.index('s_nop 2'); cut = S.index('s_nop 1'); S.pop(cut)
        a.extend(S[:cut0])
        if self.vpos: next_consts()
        def emit(L):
            for t in L:
                if t in ('s_nop 4', 's_nop 5'): self.stamp(13 + int(t[-1]) - 4)
                else: a(t)
        emit(S[cut0+1:cut])
        self.flag_wait(s_e, vrf, u1, 9, pre=True, nap=self.nap, checked=True)
        emit(S[cut:])
        self.stamp(10)
        self.sw(sum((sum(out(k4), []) for k4 in ((1, 3) if DL else (0, 2, 1, 3))), []), crit=lambda t: t.startswith('buffer'))
        a(f's_cmp_eq_u32 s{s_l}, 3'); a('s_cbranch_scc1 L_fin')
        a(f's_add_u32 s{s_fo}, s{s_fo}, {4096 << self.ls}'); a(f's_add_u32 s{s_fo+1}, s{s_fo+1}, {4096*32}')
        a(f's_add_u32 s{s_l}, s{s_l}, 1')
        a('s_waitcnt lgkmcnt(0)')
        a('s_branch L_first')

    def epiA(self, E, pre):
        a = self.a
        acc = E['acc']; a_tok, a_row, a_t32, a_csr, a_csv, l16, l4 = (E[k] for k in ('a_tok', 'a_row', 'a_t32', 'a_csr', 'a_csv', 'l16', 'l4'))
        s_wm, s_wh, s_a, s_b, s_c, s_d, s_e = (E[k] for k in ('s_wm', 's_wh', 's_a', 's_b', 's_c', 's_d', 's_e'))
        PK = [128, 144]; EP, KV0, ZA, NR = 160, 176, 192, 208
        wphi, nml, c32, csv = 224, 232, 236, 238
        SEL = 240; ZK, ZS = ZA, ZA + 8
        a_phi, a_w, a_r0, a_r1, a_z, x_w, x_r = range(248, 255)
        csk = EP; csq = NR
        nmr = [KV0, EP+8, NR, NR+8]
        if pre == 'v':
            u0, u1, u2, u3, u4 = range(208, 213)
            S = [f'v_lshrrev_b32 v{u0}, 5, v1', f'v_bfe_u32 v{u1}, v1, 2, 2', f'v_lshl_add_u32 v{u1}, v{u0}, 3, v{u1}',
                 f'v_bfe_u32 v{u2}, v1, 4, 1', f'v_and_b32 v{u3}, 3, v1', f'v_lshlrev_b32 v{u4}, 3, v{u3}', f'v_lshl_add_u32 v{u2}, v{u2}, 5, v{u4}']
            S += sx(s_t, [(s_wh, 2048)], P_PHI) + [f'v_lshl_add_u32 v{u4}, v{u1}, 6, v{u2}', f'v_add_u32 v{a_phi}, s{s_t}, v{u4}']
            S += [f's_mul_i32 s{s_t+2}, s{s_wave}, {SCR}',
                  f'v_mul_u32_u24 v{u1}, 136, v{u1}', f'v_add3_u32 v{u1}, v{u1}, v{u2}, s{s_t+2}',
                  f's_lshl_b32 s{s_t+1}, s{s_wm}, 6', f'v_add_u32 v{a_r0}, s{s_t+1}, v{u1}',
                  f's_xor_b32 s{s_t+3}, s{s_t+1}, 64', f'v_add_u32 v{a_r1}, s{s_t+3}, v{u1}',
                  f'v_and_b32 v{u4}, 31, v1', f'v_mul_u32_u24 v{u4}, 136, v{u4}', f'v_lshl_add_u32 v{u4}, v{u0}, 3, v{u4}', f'v_add_u32 v{a_w}, s{s_t+2}, v{u4}',
                  f'v_add_u32 v{x_w}, s{s_t+2}, v{l16}', f's_xor_b32 s{s_t}, s{s_wave}, 2', f's_mul_i32 s{s_t}, s{s_t}, {SCR}', f'v_add_u32 v{x_r}, s{s_t}, v{l16}']
            S += [f'v_lshrrev_b32 v{u4}, 4, v1', f'v_xor_b32 v{u4}, v{u4}, v1', f'v_and_b32 v{u4}, 1, v{u4}', f'v_cmp_eq_u32 vcc, 0, v{u4}', f'v_mov_b32 v{u4}, 0x3f803f80',
                  f'v_cndmask_b32 v{SEL}, 0, v{u4}, vcc', f'v_mov_b32 v{SEL+1}, v{SEL}', f'v_mov_b64 {vr(SEL+2,2)}, {vr(SEL,2)}']
            S += [f'v_and_b32 v{u0}, 18, v1', f'v_lshlrev_b32 v{u0}, 1, v{u0}', f'v_and_or_b32 v{u0}, v1, 8, v{u0}', f'v_and_b32 v{u1}, 4, v1',
                  f'v_lshl_or_b32 v{u0}, v{u1}, 2, v{u0}', f'v_and_b32 v{u1}, 33, v1', f'v_lshl_or_b32 v{a_z}, v{u1}, 25, v{u0}',
                  f'v_lshl_or_b32 v{a_z}, v{u1}, 30, v{a_z}']
            a.extend(S)
            return
        if pre == 's':
            S = sx(s_t, [(s_l, 16), (s_g, 2), (s_wh, 1)])
            S += sx(s_d, [(s_t, 65536), (s_wm, 32768), (s_m, 2048)], WS_KVP) + sx(s_e, [(s_t, 2048), (s_m, 128), (s_wm, 64)], WS_ZP)
            S += sx(s_b, [(s_t, 128)], WS_ZF) + sx(s_c, [(s_t, 4096)], WS_KVF)
            a.extend(S)
            return
        S = []
        for b in range(4): S.append(f'ds_read_b32 v{nml+b}, v{a_tok} offset:{64*b}')
        for nb in range(2): S.append(f'ds_read_b128 {vr(csk+4*nb,4)}, v{a_csr} offset:{256+64*nb}')
        for u in range(2):
            for t in range(2): S.append(f'ds_read_b64_tr_b16 {vr(wphi+4*u+2*t,2)}, v{a_phi} offset:{(16*t+4*u)*64}')
        for nb in range(2): S.append(f'ds_read_b32 v{csv+nb}, v{a_csv} offset:{512+64*nb}')
        for b in range(4):
            S.append(f'ds_read_b128 {vr(nmr[b],4)}, v{a_row} offset:{64*b}')
            S.append(f'ds_read_b128 {vr(nmr[b]+4,4)}, v{a_row} offset:{512+64*b}')
            if b == 0:
                for Tt in range(2): S.append(f'ds_read_b32 v{c32+Tt}, v{a_t32} offset:{512+128*Tt}')
        def qk_prep(n0, cs):
            L = []
            for b in range(4):
                for k in range(4): L.append(pk('fma', acc(b, n0)+2*k, cs+2*k, ('b', nml+b), acc(b, n0)+2*k))
                for k in range(4): L.append(cvt(acc(b, n0)+k, acc(b, n0)+2*k, acc(b, n0)+2*k+1))
            for Tt in range(2):
                for k in range(4): L.append(sw16(acc(2*Tt, n0)+k, acc(2*Tt+1, n0)+k))
                L += [mf32(PK[Tt], wphi, acc(2*Tt, n0)), mf32(PK[Tt], wphi+4, acc(2*Tt+1, n0), PK[Tt])]
            return L
        def vprep(b):
            r = acc(b, 4); P, C = [], []
            for nb in range(2):
                for p in range(2): P.append(pk('fma', r+4*nb+2*p, nmr[b]+2*p, ('b', csv+nb), r+4*nb+2*p))
            for nb in range(2):
                for p in range(2): P.append(pk('mul', r+4*nb+2*p, r+4*nb+2*p, nmr[b]+4+2*p))
            for k in range(4): C.append(cvt(r+k, r+2*k, r+2*k+1))
            return P, C, [sw16(r, r+2), sw16(r+1, r+3)]
        def softmax(Tt):
            x = PK[Tt]; c = c32 + Tt
            ta, tb = ((acc(2, 3), acc(3, 3)), (acc(2, 2), acc(3, 2)))[Tt]
            mx, mn, bp, bm = ta, ta+1, tb, tb+1
            L = [f'v_max3_f32 v{mx}, v{x}, v{x+1}, v{x+2}', f'v_max3_f32 v{mn}, -v{x}, -v{x+1}, -v{x+2}']
            for k in range(3, 15, 2):
                L += [f'v_max3_f32 v{mx}, v{mx}, v{x+k}, v{x+k+1}', f'v_max3_f32 v{mn}, v{mn}, -v{x+k}, -v{x+k+1}']
            L += [f'v_max_f32 v{mx}, v{mx}, v{x+15}', f'v_max_f32 v{mn}, v{mn}, -v{x+15}']
            L += [sw32(mx, mn), f'v_max_f32 v{mx}, v{mx}, v{mn}', f'v_mul_f32 v{bm}, -v{mx}, v{c}', f'v_mov_b32 v{bp}, v{bm}', sw32(bp, bm)]
            parts = [L]; L = []
            for k in range(0, 16, 2): L.append(pk('fma', EP+k, x+k, ('b', c), ('b', bp)))
            for k in range(0, 16, 2): L.append(pk('fma', x+k, x+k, ('b', c), ('b', bm), neg=[1, 0, 0]))
            parts.append(L); L = []
            for k in range(16): L.append(f'v_exp_f32 v{EP+k}, v{EP+k}')
            for k in range(16): L.append(f'v_exp_f32 v{x+k}, v{x+k}')
            parts.append(L); L = []
            sp, sm = ta, ta+2
            r1, r2 = tb+2, tb+3
            L += [pk('add', sp, EP, EP+2), pk('add', sm, x, x+2)]
            for k in range(4, 16, 2): L += [pk('add', sp, sp, EP+k), pk('add', sm, sm, x+k)]
            L += [f'v_add_f32 v{sp}, v{sp}, v{sp+1}', f'v_add_f32 v{sm}, v{sm}, v{sm+1}', sw32(sp, sm), f'v_add_f32 v{sp}, v{sp}, v{sm}',
                  f'v_rcp_f32 v{r2}, v{sp}', f'v_mov_b32 v{r1}, v{r2}', sw32(r1, r2)]
            for k in range(0, 16, 2): L.append(pk('mul', x+k, x+k, ('b', r2)))
            for k in range(8): L.append(cvt(x+k, x+2*k, x+2*k+1))
            for k in range(0, 16, 2): L.append(pk('mul', EP+k, EP+k, ('b', r1)))
            for k in range(8): L.append(cvt(x+8+k, EP+2*k, EP+2*k+1))
            return parts + [L]
        FR = [[acc(0, 2), acc(0, 3)], [acc(1, 2), acc(1, 3)]]
        def to_lds(x):
            return [f'ds_write_b64 v{a_w}, {vr(x+8*(1-sg)+2*j,2)} offset:{64*sg+16*j}' for sg in (1, 0) for j in range(4)]
        def frags():
            return [f'ds_read_b64_tr_b16 {vr(FR[k][u]+2*tt,2)}, v{(a_r0, a_r1)[k]} offset:{(16*u+4*tt)*136}' for k in (1, 0) for u in range(2) for tt in range(2)]
        KV1 = PK[0]
        def kvm(Tt):
            L = []
            for k, K, Z in ((1, KV1, ZS), (0, KV0, ZK)):
                for u in range(2): L.append(mf32(K, FR[k][u], acc(2*Tt+u, 4), None if (Tt == 0 and u == 0) else K))
                for u in range(2): L.append(mf16(Z, SEL, FR[k][u], None if (Tt == 0 and u == 0) else Z))
            return L
        sc = sched if self.sch else (lambda L: L)
        K = qk_prep(2, csk); isM = lambda t: t.startswith('v_mfma')
        VP_ = [vprep(b) for b in range(4)]
        sm0, sm1 = softmax(0), softmax(1)
        mfma = E['mfma']
        TM = [mfma(1, b, n) for b in range(4) for n in (2, 3)] + [mfma(1, b, n) for b in range(4) for n in (4, 5)] + [mfma(1, b, 1) for b in range(4)] + [mfma(1, b, 0) for b in range(self.bpos+1, 4)]
        K01 = []
        for b in range(2):
            K01 += [f'v_fmac_f32 v{acc(b,2)+k}, v{csk+k}, v{nml+b}' for k in range(8)] + K[8*b+4:8*b+8]
        S = interleave(TM, S + K01, per=[2]*24)
        S += sc([t for t in K[16:] if not isM(t)] + [f'v_mul_f32 v{c32+Tt}, {f2u(LOG2E)}, v{c32+Tt}' for Tt in range(2)] + VP_[0][0] + VP_[1][0])
        def cutA(n, k):
            nonlocal S
            if self.fine == n: self.aw(S + ['s_waitcnt lgkmcnt(0)']); S = []; self.stamp(k)
        cutA(1, 12)
        S += sc([t for t in K if isM(t)] + VP_[0][1] + VP_[1][1] + VP_[0][2] + VP_[1][2] + sm0[0])
        cutA(1, 13)
        def mixed(sm, extra):
            F, X, A = sm[1], sm[2], sm[3][:14]
            A = A[0::2] + A[1::2]; extra = list(extra); L = F[:2]
            for k in range(16):
                L += [X[2*k]] + F[k+2:k+3] + [X[2*k+1]]
                j = k - 2 if k < 9 else k - 3
                if k >= 2 and k != 9: L.append(A[j])
                if extra: L.append(extra.pop(0))
            return L + extra + A[13:]
        if self.mix: S += mixed(sm0, sm1[0][:16]) + sc(sm1[0][16:] + sm0[3][14:] + to_lds(PK[0]) + frags())
        else: S += sc(sm0[1] + sm0[2] + sm1[0] + sm0[3] + to_lds(PK[0]) + frags())
        cutA(1, 14)
        if self.mix: S += sm1[1][:2] + interleave(sm1[2][:14], sm1[1][2:], per=[1]*14) + interleave(kvm(0), sm1[2][14:], per=[3, 3, 1, 1, 3, 3, 1, 3])
        else: S += sm1[1] + interleave(kvm(0), sm1[2], per=[3, 3, 1, 1, 3, 3, 1, 1])
        cutA(2, 12)
        S += sc(sm1[3] + to_lds(PK[1]) + frags() + sum((VP_[b][k] for k in range(3) for b in (2, 3)), []), lambda t: t.startswith('ds_read'))
        cutA(2, 13)
        M = kvm(1)
        X = [f'ds_write_b128 v{x_w}, {vr(KV1+4*k,4)} offset:{1024*k}' for k in range(4)]
        hi16 = ['s_mov_b32 vcc_lo, 0xffff0000', 's_mov_b32 vcc_hi, 0xffff0000']
        S += M[0:2] + hi16 + M[2:6] + X + [f'v_cndmask_b32 v{ZS}, v{ZS}, v{ZS+1}, vcc', f'ds_write_b32 v{x_w}, v{ZS} offset:4096'] + M[6:8]
        cutA(2, 14)
        self.aw(S); S = []
        S += ['s_waitcnt lgkmcnt(0)', 's_barrier']
        S.append(f'ds_read_b32 v{csv}, v{x_r} offset:4096')
        for k in range(4): S.append(f'ds_read_b128 {vr(EP+4*k,4)}, v{x_r} offset:{1024*k}')
        add = [pk('add', KV0+2*k, KV0+2*k, EP+2*k) for k in range(8)]
        cv = [cvt(KV0+8*(k//4)+k%4, KV0+2*k, KV0+2*k+1) for k in range(8)]
        st = [f'buffer_store_dwordx4 {vr(KV0+8*u,4)}, v{l16}, {srd(sWS)}, s{s_d} offen offset:{1024*u} sc1' for u in range(2)]
        S += [f'v_cndmask_b32 v{ZK}, v{ZK}, v{ZK+1}, vcc', f'v_add_f32 v{ZK}, v{ZK}, v{csv}'] + add[:2]
        S += [f'v_mov_b32_dpp v{ZK+3}, v{ZK} quad_perm:[1,0,3,2] row_mask:0xf bank_mask:0xf'] + add[2:4] + cv[:4] + st[:1] + [cvt(ZK, ZK, ZK+3)]
        S += add[4:] + [f'buffer_store_dword v{ZK}, v{a_z}, {srd(sWS)}, s{s_e} offen sc1'] + cv[4:] + st[1:]
        self.aw(S); S = []
        if not self.yw: a('s_barrier')
        self.stamp(3)
        u3, u4 = ZA + 4, ZA + 5
        for nb in range(2): S.append(f'ds_read_b128 {vr(csq+4*nb,4)}, v{a_csr} offset:{64*nb}')
        S += qk_prep(0, csq) + sum(softmax(0) + softmax(1), [])
        S += [f'v_lshrrev_b32 v{u3}, 5, v1', f'v_and_b32 v{u4}, 2, v1', f'v_lshlrev_b32 v{u4}, 5, v{u4}', f'v_lshl_add_u32 v{a_z}, v{u3}, 4, v{u4}',
              f'v_not_b32 v{u4}, v{SEL}', f'v_and_b32 v{u4}, 0x20000000, v{u4}', f'v_lshl_or_b32 v{a_z}, v{u4}, 1, v{a_z}',
              f'v_bfe_u32 v{u4}, v1, 4, 1', f'v_lshlrev_b32 v{u4}, 15, v{u4}', f'v_lshl_add_u32 v{u4}, v{u3}, 8, v{u4}',
              f'v_and_b32 v{u3}, 15, v1', f'v_lshl_add_u32 v{a_w}, v{u3}, 4, v{u4}', f's_add_u32 s{s_d}, s{s_a}, 65536']
        if self.yw:
            S = sched(S); S.insert(self.yw, 's_barrier'); self.aw(S); S = []
        else: self.sw(S, name='A q-part'); S = []
        self.stamp(4)
        a('s_barrier')
        self.stamp(7)
        KF = KV0; ZF = EP
        if self.b2: a(f's_sleep {self.b2}')
        self.ll_wait(([f's_sleep {self.n2}'] if self.n2 else []) + [f'buffer_load_dwordx4 {vr(ZF+4*u,4)}, v{a_z}, {srd(sWS)}, s{s_b} offen offset:{32*u} sc1' for u in range(2)] +
                     [f'buffer_load_dwordx4 {vr(KF+4*k,4)}, v{l16}, {srd(sWS)}, s{s_c} offen offset:{1024*k} sc1' for k in range(4)],
                     list(range(ZF, ZF+8)) + list(range(KF, KF+16)), u3, u4, 5)
        self.stamp(5)
        ACC = E['ACC']
        den, num, rcp, fin = [], [], [], []
        for Tt in range(2):
            N, DP, DM = ACC + 48*Tt, ACC + 48*Tt + 16, ACC + 48*Tt + 32
            x = PK[Tt]
            den.append([mf16(DP, ZF, x+8), mf16(DM, ZF, x), mf16(DP, ZF+4, x+12, DP), mf16(DM, ZF+4, x+4, DM)])
            num.append([mf32(N, KF, x+8), mf32(N, KF+4, x+12, N), mf32(N, KF+8, x, N), mf32(N, KF+12, x+4, N)])
            rcp.append([f'v_add_f32 v{DP}, v{DP}, v{DM+2}', f'v_add_f32 v{DP+1}, v{DP+1}, v{DM+3}', f'v_cndmask_b32 v{DP}, v{DP}, v{DP+1}, vcc',
                        f'v_add_f32 v{DP}, {f2u(1e-6)}, v{DP}', f'v_rcp_f32 v{DP}, v{DP}'])
            L = []
            for p in range(2):
                R = [(N + 4*(p + 2*jj) + 2*k, DM+4+4*p+2*jj+k) for jj in range(2) for k in range(2)]
                for r, d in R:
                    if Tt == 0: L += [f'v_mul_f32 v{r}, v{DP}, v{r}', f'v_mul_f32 v{r+1}, v{DP}, v{r+1}']
                    else: L.append(pk('mul', r, r, ('b', DP)))
                L += [cvt(d, r, r+1) for r, d in R]
                L.append(f'buffer_store_dwordx4 {vr(DM+4+4*p,4)}, v{a_w}, {srd(sWS)}, s{(s_a, s_d)[Tt]} offen offset:{512*p} sc1')
            fin.append(L)
        a.extend(den[0] + num[0] + interleave(den[1], hi16 + rcp[0], per=[2, 2, 2, 1]))
        a.extend(interleave(num[1], fin[0][:13] + rcp[1] + fin[0][13:], per=[6, 6, 6, 13]) + fin[1])
        self.stamp(6)

    def epiB(self, E, pre):
        a = self.a
        acc = E['acc']; a_tok, a_row, a_csr, a_csv, l16 = (E[k] for k in ('a_tok', 'a_row', 'a_csr', 'a_csv', 'l16'))
        s_wm, s_wh, s_a, s_b, s_c, s_d, s_e = (E[k] for k in ('s_wm', 's_wh', 's_a', 's_b', 's_c', 's_d', 's_e'))
        BI, BI0, MK, a_h = 236, 244, 248, 252
        if pre == 'v':
            t1, t2, t3 = 208, 209, 210
            S = [f'v_and_b32 v{t1}, 15, v1', f'v_lshrrev_b32 v{t2}, 4, v1', f'v_lshlrev_b32 v{t2}, 2, v{t2}', f'v_sub_u32 v{t1}, v{t1}, v{t2}',
                 f'v_mov_b32 v{t3}, {f2u(-1e30)}']
            for blk in range(2):
                for i in range(4):
                    S += [f'v_add_u32 v{t2}, {(16 if blk == 0 else 0) - i}, v{t1}', f'v_and_b32 v{t2}, -15, v{t2}', f'v_cmp_eq_u32 vcc, 0, v{t2}',
                          f'v_cndmask_b32 v{BI+4*blk+i}, v{t3}, 0, vcc']
                    if i % 2 == 0: S += [f'v_cndmask_b32 v{MK+2*blk+i//2}, 0, -1, vcc', f'v_lshrrev_b32 v{MK+2*blk+i//2}, 16, v{MK+2*blk+i//2}']
                    else: S += [f'v_cndmask_b32 v{t2}, 0, -1, vcc', f'v_lshl_or_b32 v{MK+2*blk+i//2}, v{t2}, 16, v{MK+2*blk+i//2}']
            S += [f's_or_b32 s{s_t}, s{s_m}, s{s_wm}', 's_cselect_b64 vcc, -1, 0']
            for i in range(4): S.append(f'v_cndmask_b32 v{BI0+i}, v{t3}, v{BI+i}, vcc')
            S += sx(s_t, [(s_wh, 2048)], P_PHI) + [f'v_add_u32 v{a_h}, s{s_t}, v{l16}']
            S += [f's_add_u32 s{s_t+1}, s{s_t}, 1024', f's_cmp_eq_u32 s{s_wm}, 0', f's_cselect_b32 s{s_t}, s{s_t}, {L_P + 7168}', f's_cselect_b32 s{s_t+1}, s{s_t+1}, {L_P + 7168}',
                  f'v_add_u32 v{a_h+1}, s{s_t}, v{l16}', f'v_add_u32 v{a_h+2}, s{s_t+1}, v{l16}']
            a.extend(S)
            return
        if pre == 's':
            S = sx(s_b, [(s_l, 1 << 19), (s_m, 1 << 16), (s_g, 4096), (s_wh, 2048)], WS_HALO - (1 << 19))
            S += [f's_add_u32 s{s_c}, s{s_b}, 65536', f's_cmp_eq_u32 s{s_m}, 15', f's_cselect_b32 s{s_c}, {BIG}, s{s_c}',
                  f's_cmp_eq_u32 s{s_wm}, 0', f's_cselect_b32 s{s_c}, {BIG}, s{s_c}', f's_cselect_b32 s{s_b}, s{s_b}, {BIG}',
                  f's_cmp_eq_u32 s{s_m}, 0', f's_cselect_b32 s{s_b}, {BIG}, s{s_b}', f's_add_u32 s{s_d}, s{s_a}, 65536']
            a.extend(S)
            return
        nr = [160, 168, 176, 208]
        nml, rsl, csk, csv, csq, HB = 216, 220, 224, 232, 128, 136
        VP = [184, 196]
        U, M, t1, t2 = 144, 152, 156, 157
        S = []
        for b in (3, 0, 1, 2):
            S += [f'ds_read_b32 v{nml+b}, v{a_tok} offset:{64*b}', f'ds_read_b32 v{rsl+b}, v{a_tok} offset:{512+64*b}']
            if b == 3:
                for nb in range(2): S.append(f'ds_read_b128 {vr(csk+4*nb,4)}, v{a_csr} offset:{768+256+64*nb}')
                for nb in range(2): S.append(f'ds_read_b32 v{csv+nb}, v{a_csv} offset:{768+512+64*nb}')
            S += [f'ds_read_b128 {vr(nr[b],4)}, v{a_row} offset:{64*b}', f'ds_read_b128 {vr(nr[b]+4,4)}, v{a_row} offset:{512+64*b}']
        for nb in range(2): S.append(f'ds_read_b128 {vr(csq+4*nb,4)}, v{a_csr} offset:{768+64*nb}')
        def kprep(b):
            r = acc(b, 2); L = []
            for k in range(4): L.append(pk('fma', r+2*k, csk+2*k, ('b', nml+b), r+2*k))
            for k in range(4): L.append(pk('mul', r+2*k, r+2*k, ('b', rsl+b)))
            for k in range(4): L.append(cvt(r+k, r+2*k, r+2*k+1))
            return L
        def vprep(b):
            r = acc(b, 4); L = []
            for nb in range(2):
                for p in range(2): L.append(pk('fma', r+4*nb+2*p, nr[b]+2*p, ('b', csv+nb), r+4*nb+2*p))
            for nb in range(2):
                for p in range(2): L.append(pk('mul', r+4*nb+2*p, r+4*nb+2*p, nr[b]+4+2*p))
            for nb in range(2):
                for p in range(2):
                    if b == 3: L.append(cvt(acc(3, 3)+2*nb+p, r+4*nb+2*p, r+4*nb+2*p+1))
                    else: L.append(cvt(VP[nb]+2+2*b+p, r+4*nb+2*p, r+4*nb+2*p+1))
            return L
        def qprep(b):
            r = acc(b, 0); L = []
            for k in range(4): L.append(pk('fma', r+2*k, csq+2*k, ('b', nml+b), r+2*k))
            for k in range(4): L.append(cvt(r+k, r+2*k, r+2*k+1))
            return L
        mfma = E['mfma']
        TM = [mfma(1, b, n) for b in (3, 0, 1, 2) for n in (2, 3, 4, 5)] + [mfma(1, b, 1) for b in range(4)] + [mfma(1, b, 0) for b in range(self.bpos+1, 4)]
        rk, rv = acc(3, 2), acc(3, 4)
        P3 = [f'v_fmac_f32 v{rk+k}, v{csk+k}, v{nml+3}' for k in range(8)] + [f'v_mul_f32 v{rk+k}, v{rsl+3}, v{rk+k}' for k in range(8)] + kprep(3)[8:]
        P3 += [f'v_fmac_f32 v{rv+k}, v{nr[3]+k%4}, v{csv+k//4}' for k in range(8)] + [f'v_mul_f32 v{rv+k}, v{nr[3]+4+k%4}, v{rv+k}' for k in range(8)] + vprep(3)[8:]
        T0 = interleave(TM, S[:14] + P3, per=[2]*24); S = S[14:]
        for k in range(2): T0.append(f'buffer_store_dwordx4 {vr(acc(3,2)+4*k,4)}, v{l16}, {srd(sWS)}, s{s_c} offen offset:{1024*k} sc1')
        for k in range(2): S.append(f'ds_write_b128 v{a_h+1+k}, {vr(acc(3,2)+4*k,4)}')
        for nb in range(2): S.append(f'v_mov_b64 {vr(VP[nb]+8,2)}, {vr(acc(3,3)+2*nb,2)}')
        for b in range(3): S += kprep(b) + vprep(b)
        for b in range(4): S += qprep(b)
        for b in range(4): S.append(f'v_mul_f32 v{rsl+b}, {f2u(LOG2E * 32 ** -0.5)}, v{rsl+b}')
        def logits(b):
            s = nr[b]
            L = [mf16(s, HB if b == 0 else acc(b-1, 2), acc(b, 0), BI0 if b == 0 else BI), mf16(s+4, acc(b, 2), acc(b, 0), BI+4)]
            for p in range(2):
                L += [f'v_max3_f32 v{U+2*b+p}, v{s+2*p}, v{s+2*p+1}, v{s+4+2*p}', f'v_max_f32 v{U+2*b+p}, v{U+2*b+p}, v{s+5+2*p}',
                      f'v_mul_f32 v{U+2*b+p}, v{rsl+b}, v{U+2*b+p}']
            L.append(f'v_max_f32 v{M+b}, v{U+2*b}, v{U+2*b+1}')
            return L
        for b in (1, 2, 3): S += logits(b)
        L0 = logits(0); S.append(L0.pop(1))
        self.aw(T0 + (sched(S) if self.sch else S)); S = []
        HL = [f'buffer_load_dwordx4 {vr(HB+4*k,4)}, v{l16}, {srd(sWS)}, s{s_b} offen offset:{1024*k} sc1' for k in range(2)]
        L1, L3 = self.lab('hg'), self.lab('hd')
        a(f's_cmp_eq_u32 s{s_wm}, 0'); a(f's_cbranch_scc0 {L1}')
        a.extend(HL)
        a.label(L1)
        a('s_waitcnt lgkmcnt(0)'); a('s_barrier')
        a(f's_cbranch_scc1 {L3}')
        for k in range(2): a(f'ds_read_b128 {vr(HB+4*k,4)}, v{a_h} offset:{1024*k}')
        a.label(L3)
        self.stamp(3)
        def allred(op, mid):
            L = [sw32(M, M+2), sw32(M+1, M+3), f'{op} v{M}, v{M}, v{M+2}', f'{op} v{M+1}, v{M+1}, v{M+3}', sw16(M, M+1), f'{op} v{M+1}, v{M}, v{M+1}']
            L += mid
            L += [f'v_mov_b32 v{M}, v{M+1}', sw16(M, M+1), f'v_mov_b64 {vr(M+2,2)}, {vr(M,2)}', sw32(M, M+2), sw32(M+1, M+3)]
            return L
        def pv(b):
            P = nr[b]; L = []
            for p in range(2): L.append(cvt(U+2*b+p, U+2*b+p, U+2*b+p))
            for blk in range(2):
                for p in range(2): L.append(f'v_and_b32 v{P+2*blk+p}, v{U+2*b+p}, v{MK+2*blk+p}')
            return L + [mf16(acc(b, 4)+4*db, VP[db]+2*b, P) for db in range(2)]
        def put(b):
            O = acc(b, 4)
            return [cvt(O+k, O+2*k, O+2*k+1) for k in range(4)] + [f'buffer_store_dwordx4 {vr(O,4)}, v{l16}, {srd(sWS)}, s{(s_a, s_e, s_d, s_c)[b]} offen sc1']
        ONE, SUM = csk, csk + 4
        S += allred('v_max_f32', [])
        for b in (1, 2, 3): S.append(pk('add', U+2*b, U+2*b, ('b', M+b), neg=[0, 1]))
        for k in range(2, 8): S.append(f'v_exp_f32 v{U+k}, v{U+k}')
        for b in (1, 2, 3): S.append(f'v_add_f32 v{M+b}, v{U+2*b}, v{U+2*b+1}')
        S += allred('v_add_f32', [f'v_rcp_f32 v{M+1}, v{M+1}'])
        for b in (1, 2, 3): S.append(pk('mul', U+2*b, U+2*b, ('b', M+b)))
        S += pv(1) + pv(2) + pv(3) + [f's_add_u32 s{s_e}, s{s_a}, 32768', f's_add_u32 s{s_c}, s{s_d}, 32768'] + put(1) + put(2) + put(3)
        S += [f'v_mov_b32 v{ONE+k}, 0x3f803f80' for k in range(4)]
        self.sw(S, name='B blocks 1-3', crit=lambda t: t.startswith('buffer')); S = []
        self.ll_wait(HL, list(range(HB, HB+8)), t1, t2, 0, pre='s_waitcnt vmcnt(3) lgkmcnt(0)')
        self.stamp(4)
        S += L0 + [f'v_mov_b64 {vr(VP[nb],2)}, {vr(HB+4+2*nb,2)}' for nb in range(2)]
        S += [f'v_mov_b32 v{M+1}, v{M}', sw32(M, M+1), f'v_max_f32 v{M}, v{M}, v{M+1}', f'v_mov_b32 v{M+1}, v{M}', sw16(M, M+1), f'v_max_f32 v{M}, v{M}, v{M+1}']
        S += [f'v_sub_f32 v{U+k}, v{U+k}, v{M}' for k in range(2)] + [f'v_exp_f32 v{U+k}, v{U+k}' for k in range(2)]
        P0 = pv(0); S += P0[:-2] + [mf16(SUM, ONE, nr[0])] + P0[-2:] + [f'v_rcp_f32 v{SUM}, v{SUM}']
        S += [pk('mul', acc(0, 4)+2*k, acc(0, 4)+2*k, ('b', SUM)) for k in range(4)] + put(0)
        self.sw(S, name='B block 0')
        self.stamp(6)

    def build(self):
        a = self.a
        self.prologue()
        if self.st0 & 1: self.loader(); a.label('L_compute'); self.compute()
        else: self.compute(); self.loader()
        self.helper()
        a.label('L_fin')
        self.stamp(15)
        self.stamp_out()
        if self.probe and len(self.probe) > 3:
            def pub():
                a('s_mov_b64 exec, 1'); a('v_mov_b32 v2, s94'); a('s_not_b32 s93, s93'); a('v_mov_b32 v3, s93')
                a(f'buffer_atomic_umax v2, off, {srd(sDBG)}, 0 offset:12 sc1'); a(f'buffer_atomic_umax v3, off, {srd(sDBG)}, 0 offset:140 sc1')
                a('s_waitcnt vmcnt(0)'); a('v_mov_b32 v2, 1'); a(f'buffer_atomic_add v2, off, {srd(sDBG)}, 0 offset:20 sc1'); a('s_waitcnt vmcnt(0)')
                def w0():
                    self.spin(['s_sleep 8', f'buffer_load_dword v2, off, {srd(sDBG)}, 0 offset:20 sc1'], ['v_cmp_gt_u32 vcc, 0x100, v2'], 4, 10)
                    a(f'buffer_load_dword v2, off, {srd(sDBG)}, 0 offset:12 sc1'); a(f'buffer_load_dword v3, off, {srd(sDBG)}, 0 offset:140 sc1'); a('s_waitcnt vmcnt(0)')
                    a('v_readfirstlane_b32 s94, v2'); a('v_readfirstlane_b32 s93, v3'); a('s_not_b32 s93, s93')
                self.cond(['s_cmp_eq_u32 s2, 0'], w0)
                a('s_mov_b64 exec, -1')
            self.cond([f's_cmp_eq_u32 s{s_wave}, 0'], pub)
        if self.probe:
            def body():
                a('s_sub_u32 s93, s94, s93'); a(f's_mul_i32 s93, s93, {self.probe[2]}'); a('s_min_u32 s93, s93, 100000')
                a(f's_memrealtime s[{s_t+6}:{s_t+7}]'); a('s_waitcnt lgkmcnt(0)'); a(f's_add_u32 s93, s93, s{s_t+6}')
                a.label('L_probe')
                a(f's_memrealtime s[{s_t+6}:{s_t+7}]'); a('s_waitcnt lgkmcnt(0)'); a(f's_sub_u32 s94, s{s_t+6}, s93'); a('s_cmp_lt_i32 s94, 0'); a('s_cbranch_scc1 L_probe')
            self.cond([f's_or_b32 s{s_t}, s2, s{s_wave}', f's_cmp_eq_u32 s{s_t}, 0'], body)
        a('s_waitcnt vmcnt(0)')
        a.label('L_end')
        a('s_endpgm')
        for b in self.later: a.ins += b.ins
        if self.cpf: a.label('L_last'); a('s_endpgm')
        a.pad()
        assert a.maxreg('v') <= 255 and a.maxreg('s') < 96
        return a.text()


DOC = """
; ---------------------------------------------------------------------------------------------------------------------
;
;
; Hand-offs between workgroups go through d_ws, stored write-through (sc1) and read with sc1 loads:
; ---------------------------------------------------------------------------------------------------------------------
"""

def generate(listform=False, **kw):
    body = Gen(**kw).build()
    ref = open('interleave_layers__linear_kernel_hedgehog__sliding_local_dilated__prompt.s.ref').read() if not listform else ''
    head = ''.join(l + '\n' for l in ref.split('\n') if l.startswith(';') and '@launch' not in l)
    if listform: head += f'; @launch kernel={KNAME} grid=(256,1,1) block=(512,1,1) lds={LDS_BYTES}\n'
    else: head += f'; @launch grid=(256,1,1) block=(512,1,1) lds={LDS_BYTES}\n'
    return head + '.amdgcn_target "amdgcn-amd-amdhsa--gfx950"' + DOC + kernel_head(KNAME) + body + kernel_desc(KNAME, 256, 96, 256)

if __name__ == '__main__':
    kw = eval(sys.argv[2]) if len(sys.argv) > 2 else {}
    open(sys.argv[1], 'w').write(generate(**kw))
```

```python
import sys, struct
sys.path.insert(0, 'work')
from asmlib import *

KNAME = 'interleave_layers__linear_kernel_hedgehog__sliding_local_dilated__prompt_kernel'

WS_CTR, WS_STAMP, WS_ST, WS_CS = 0x0, 0x100000, 0x200000, 0x300000
WS_HALO, WS_KVF, WS_ZP, WS_ZF, WS_KVP = 0x400000, 0x600000, 0x680000, 0x6C0000, 0x800000
WS_HU = 0x20000
WS_RF = 0x700000
WS_XI, WS_OI, WS_END = 0xC00000, 0x1800000, 0x2800000
BIG = 0x40000000
STG = 40960
XOFF = 24576
L_WO = 24576
L_SPARE = 3 * STG
L_P = 155648
P_NM, P_RS, P_CS, P_MODE, P_CNT, P_PHI = L_P, L_P + 512, L_P + 1024, L_P + 2816, L_P + 2832, L_P + 3072
LDS_BYTES = 163840
SCR = 5120
LOG2E = 1.4426950408889634
def f2u(x): return '0x%08x' % struct.unpack('<I', struct.pack('<f', x))[0]

s_fast = 3
pAX, pAW, pPHI, pAWO, pBW, pBWO, pOUT, pDBG, pWS = 4, 6, 8, 10, 14, 16, 18, 20, 22
sWS, sX, sW, sWO, sOUT, sDBG = 24, 28, 32, 36, 40, 44
s_m, s_g, s_wave, s_l = 48, 49, 50, 51
s_t = 52
s_cnt, s_x = 60, 61
s_i = 62
s_stamp = 63
s_rot = 64
s_rot2 = 95
s_ft, s_fn, s_fd, s_po = 90, 91, 88, 87
def srd(b): return 's[%d:%d]' % (b, b + 3)


def sx(d, terms, const=0):
    L = []
    for n, (r, k) in enumerate([t for t in terms if t[1]]):
        t = d if n == 0 else s_x
        if k == 1 and n: t = r
        elif k == 1: L.append(f's_mov_b32 s{t}, s{r}')
        elif k > 0 and k & (k - 1) == 0: L.append(f's_lshl_b32 s{t}, s{r}, {k.bit_length()-1}')
        else: L.append(f's_mul_i32 s{t}, s{r}, {k}')
        if n: L.append(f's_add_u32 s{d}, s{d}, s{t}')
    if const: L.append(f's_add_u32 s{d}, s{d}, {const:#x}' if const > 0 else f's_sub_u32 s{d}, s{d}, {-const:#x}')
    return L

def pkop(r):
    if isinstance(r, tuple):
        return vr(r[1] & ~1, 2), r[1] & 1, r[1] & 1
    assert r % 2 == 0
    return vr(r, 2), 0, 1
def pk(op, d, *src, neg=None):
    o = [pkop(s) for s in src]
    t = 'v_pk_%s_f32 %s, %s' % (op, vr(d, 2), ', '.join(x[0] for x in o))
    lo = [x[1] for x in o]; hi = [x[2] for x in o]
    if any(lo): t += ' op_sel:[%s]' % ','.join(map(str, lo))
    if not all(hi): t += ' op_sel_hi:[%s]' % ','.join(map(str, hi))
    if neg: t += ' neg_lo:[%s] neg_hi:[%s]' % (','.join(map(str, neg)), ','.join(map(str, neg)))
    return t
def cvt(d, a, b): return f'v_cvt_pk_bf16_f32 v{d}, v{a}, v{b}'
def sw16(a, b): return f'v_permlane16_swap_b32 v{a}, v{b}'
def sw32(a, b): return f'v_permlane32_swap_b32 v{a}, v{b}'
def mf16(d, A, B, C=None): return f'v_mfma_f32_16x16x32_bf16 {vr(d,4)}, {vr(A,4)}, {vr(B,4)}, ' + (vr(C, 4) if C is not None else '0')
def mf32(d, A, B, C=None): return f'v_mfma_f32_32x32x16_bf16 {vr(d,16)}, {vr(A,4)}, {vr(B,4)}, ' + (vr(C, 16) if C is not None else '0')


class Gen:
    def __init__(self, prof=0, limit=300000, dist=2, touch=1, bm=25, local=1, pd=6, sch=1, hprio=2, opos=(1, 5), warm=1, nap=1, probe=None, snake=1, rf=2, hq=4, fine=0, llf='sc1', ot=0, hc=None, hpos=90, early=0, w2=0, w0b=0, cpf=0, tr=4, bpos=1, r0=2, rprio=3, w0a=1, pipe=0, b1=0, b2=0, n1=0, n2=0, zw=2, yw=60, thr=None, pw=0, po=0, jit=0, st0=6, vpos=1, fst='sc1', rot0=12, iw=2, oh=(0, 9), dl=6, lprio=3, fpos=24, lf='', lfl=0, xnap=0, ls=0, pf='nt', mix=0, bw=0, t0s=(), xd=None, tlb=0, crow=0, ramp=0, xl=0, i0=0, hu=None, hun=0, yv=0, spec=3, wsch=(10, 12), hp=90):
        self.a = Asm()
        assert 16 <= bm < 32 - dl//2 and not early
        self.__dict__.update(prof=prof, limit=limit, dist=dist, touch=touch, bm=bm, local=local, pd=pd, sch=sch, hprio=hprio, opos=opos, warm=warm, nap=nap, probe=probe, snake=snake, rf=rf, hq=hq, fine=fine, llf=llf, ot=ot, hc=hc, hpos=hpos, early=early, w2=w2, w0b=w0b, cpf=cpf, tr=tr, bpos=bpos, r0=r0, rprio=rprio, w0a=w0a, pipe=pipe, b1=b1, b2=b2, n1=n1, n2=n2, zw=zw, yw=yw, thr=thr, pw=pw, po=po, jit=jit, st0=st0, vpos=vpos, fst=fst, rot0=rot0, iw=iw, oh=oh, dl=dl, lprio=lprio, fpos=fpos, lf=lf, lfl=lfl, xnap=xnap, ls=ls, pf=pf, mix=mix, bw=bw, t0s=t0s, xd=xd, tlb=tlb, crow=crow, ramp=ramp, xl=xl, i0=i0, hu=hu, hun=hun, yv=yv, spec=spec, wsch=wsch, hp=hp)
        self.nlab = 0; self.later = []

    def lab(self, p):
        self.nlab += 1
        return 'L_%s_%d' % (p, self.nlab)

    def aw(self, L):
        self.a.extend(autowait(L))
    def sw(self, L, crit=None, name=''):
        if self.sch:
            L = sched(L, crit)
            if name and __name__ == '__main__': print('sched', name, len(L), 'instructions, about', sched.last_estimate, 'cycles', file=sys.stderr)
        self.a.extend(autowait(L))

    def cond(self, test, body):
        L = self.lab('skip')
        self.a.extend(test); self.a(f's_cbranch_scc0 {L}')
        body()
        self.a.label(L)

    def aside(self, f):
        main, self.a = self.a, Asm()
        f()
        self.later.append(self.a); self.a = main

    def spin(self, issue, check, vt, tag, pre=False, alt=None, checked=False):
        a = self.a
        L, C, T, A, D = (self.lab(x) for x in ('spin', 'chk', 'tmo', 'alt', 'done'))
        count = [f's_add_u32 s{s_cnt}, s{s_cnt}, 1', f's_cmp_lt_u32 s{s_cnt}, {self.limit}', f's_cbranch_scc0 {T}']
        if checked:
            alt = issue; a(f's_cbranch_vccnz {A}')
        else:
            a(f's_mov_b32 s{s_cnt}, 0')
            if alt: a(f's_cmp_eq_u32 s{s_fast}, 1'); a(f's_cbranch_scc0 {A}')
            if pre:
                a(f's_branch {C}')
                a.label(L); a.extend(issue); a.extend(count); a('s_waitcnt vmcnt(0)')
                a.label(C)
                if pre is not True: a(pre)
                a.extend(check)
            else:
                S = autowait(list(issue) + ['s_nop 3'] + list(check)); k = S.index('s_nop 3')
                a.label(L); a.extend(S[:k]); a.extend(count); a.extend(S[k+1:])
            a(f's_cbranch_vccnz {L}')
        a.label(D)
        def rest():
            a = self.a
            if alt:
                L2 = self.lab('spin')
                a.label(A); a(f's_mov_b32 s{s_cnt}, 0')
                a.label(L2); a.extend(alt); a.extend(count); a('s_waitcnt vmcnt(0)' if checked else 's_waitcnt vmcnt(0) lgkmcnt(0)'); a.extend(check)
                a(f's_cbranch_vccnz {L2}'); a(f's_branch {D}')
            a.label(T)
            a('s_waitcnt vmcnt(0)' if checked else 's_waitcnt vmcnt(0) lgkmcnt(0)')
            a(f'v_mov_b32 v{vt}, {1 << tag}')
            a(f'buffer_atomic_or v{vt}, off, {srd(sDBG)}, 0 offset:4 sc1')
            a(f's_branch {D}')
        self.aside(rest)

    def ll_wait(self, loads, regs, t1, t2, tag, pre=False, under=None, per=None):
        S = []
        h = len(regs) // 2
        for t, R in ((t1, regs[:h]), (t2, regs[h:])):
            S.append(f'v_max_u32 v{t}, v{R[0]}, v{R[1]}')
            for k in range(2, len(R), 2): S.append(f'v_max3_u32 v{t}, v{t}, v{R[k]}, v{R[k+1]}')
        S += [f'v_max_u32 v{t1}, v{t1}, v{t2}', f'v_cmp_eq_u32 vcc, -1, v{t1}']
        if under: S = interleave(under, S, per=per)
        loads = [l.replace('sc1', self.llf) for l in loads]
        self.spin(loads, S, t1, tag, pre)

    def flag_set(self, soff, vt, which=3):
        a = self.a
        a('s_mov_b64 exec, 1')
        if which & 1: a(f'buffer_store_dword v{vt}, off, {srd(sWS)}, s{soff} {self.lf}')
        if which == 3 and self.lfl == 1: a(f'buffer_load_dword v220, off, {srd(sWS)}, s{soff} sc1')
        if which == 3 and self.lfl == 2: which = 1
        if which & 2: a(f'buffer_store_dword v{vt}, off, {srd(sWS)}, s{soff+1} sc1')
        a('s_mov_b64 exec, -1')
    def flag_addr(self, va, vt, soff, remote=False):
        L = [f'v_bfe_u32 v{va}, v1, 1, 3', f'v_and_b32 v{vt}, 1, v1', f'v_lshl_add_u32 v{va}, v{va}, 2, v{vt}']
        if remote: return L + [f'v_lshlrev_b32 v{va}, 7, v{va}']
        return L + [f's_cmp_eq_u32 s{s_fast}, 1', f's_cselect_b32 s{s_t}, {self.ls}, 5', f's_cselect_b32 s{s_t+1}, 0, {WS_RF}',
                    f's_lshl_b32 s{soff}, s{soff}, s{s_t}', f's_add_u32 s{soff}, s{soff}, s{s_t+1}', f's_add_u32 s{s_t}, s{s_t}, 2',
                    f'v_lshlrev_b32 v{va}, s{s_t}, v{va}']
    def flag_load(self, soff, va, vt, fl='sc1'): return f'buffer_load_dword v{vt}, v{va}, {srd(sWS)}, s{soff} offen {fl}'
    def flag_wait(self, soff, va, vt, tag, pre=False, nap=0, own=False, checked=False):
        z = [f's_sleep {nap}'] if nap else []
        self.spin(z + [self.flag_load(soff, va, vt, self.pf if own else 'sc1')], [f'v_cmp_eq_u32 vcc, 0, v{vt}'], vt, tag, pre,
                  z + [self.flag_load(soff, va, vt)] if own else None, checked)
    def get_mode(self, vt):
        self.a.extend([f'v_mov_b32 v{vt}, {P_MODE}', f'ds_read_b32 v{vt}, v{vt}', 's_waitcnt lgkmcnt(0)', f'v_readfirstlane_b32 s{s_fast}, v{vt}'])

    def jitter(self, k):
        a = self.a
        L = self.lab('jit')
        a.extend([f's_lshl_b32 s{s_t+6}, s2, 3', f's_add_u32 s{s_t+6}, s{s_t+6}, s{s_wave}', f's_lshl_b32 s{s_t+6}, s{s_t+6}, 2', f's_add_u32 s{s_t+6}, s{s_t+6}, s{s_l}',
                  f's_add_u32 s{s_t+6}, s{s_t+6}, {(k*7919 + self.jit*104729) & 0xffffff}', f's_mul_i32 s{s_t+6}, s{s_t+6}, 0x9e3779b1', f's_lshr_b32 s{s_t+7}, s{s_t+6}, 13',
                  f's_xor_b32 s{s_t+6}, s{s_t+6}, s{s_t+7}', f's_mul_i32 s{s_t+6}, s{s_t+6}, 0x85ebca6b', f's_lshr_b32 s{s_t+7}, s{s_t+6}, 29',
                  f's_lshr_b32 s{s_t+6}, s{s_t+6}, 8', f's_and_b32 s{s_t+6}, s{s_t+6}, 127', f's_lshr_b32 s{s_t+6}, s{s_t+6}, s{s_t+7}'])
        a.label(L)
        a.extend(['s_sleep 1', f's_sub_u32 s{s_t+6}, s{s_t+6}, 1', f's_cbranch_scc0 {L}'])
    def stamp(self, k):
        if self.jit: self.jitter(k)
        if self.probe:
            for n, (pl, pk_) in enumerate(self.probe[:2]):
                if pk_ == k:
                    def body():
                        self.a(f's_memrealtime s[{s_t+6}:{s_t+7}]'); self.a('s_waitcnt lgkmcnt(0)'); self.a(f's_mov_b32 s{93+n}, s{s_t+6}')
                    self.cond([f's_cmp_eq_u32 s{s_l}, {pl}'], body)
        if not self.prof or self.prof >= 5: return
        a = self.a
        a(f'{"s_memtime" if self.prof == 4 else "s_memrealtime"} s[{s_t+6}:{s_t+7}]')
        a(f's_mov_b32 s{s_stamp}, m0')
        a(f's_lshl_b32 m0, s{s_l}, 4'); a(f's_add_u32 m0, m0, {k}')
        a('s_waitcnt lgkmcnt(0)')
        a(f'v_writelane_b32 v255, s{s_t+6}, m0')
        a(f's_mov_b32 m0, s{s_stamp}')
    def stamp_out(self):
        if not self.prof: return
        a = self.a
        a.extend(sx(s_t, [(2, 2048), (s_wave, 256)], WS_STAMP))
        a('v_lshlrev_b32 v254, 2, v1')
        a(f'buffer_store_dword v255, v254, {srd(sWS)}, s{s_t} offen')

    def prologue(self):
        a = self.a
        a('s_cmp_ge_u32 s2, 256'); a('s_cbranch_scc1 L_end')
        a('s_load_dwordx16 s[4:19], s[0:1], 0')
        a('s_load_dwordx4 s[20:23], s[0:1], 64')
        a('v_lshrrev_b32 v2, 6, v0')
        a(f'v_readfirstlane_b32 s{s_wave}, v2')
        a('v_and_b32 v1, 63, v0')
        a(f's_and_b32 s{s_rot}, s2, 3'); a(f's_lshl_b32 s{s_rot}, s{s_rot}, 2')
        a(f's_bfe_u32 s{s_t}, s2, 0x20003'); a(f's_add_u32 s{s_m}, s{s_rot}, s{s_t}')
        a(f's_mov_b32 s{s_rot}, s{s_m}')
        a(f's_and_b32 s{s_rot2}, s2, 4'); a(f's_lshl_b32 s{s_rot2}, s{s_rot2}, 1')
        a(f's_lshr_b32 s{s_g}, s2, 5'); a(f's_add_u32 s{s_g}, s{s_g}, s{s_rot2}')
        a(f's_mov_b32 s{s_l}, 0'); a(f's_mov_b32 s{s_fast}, 0')
        for b, n in ((sWS, WS_END), (sX, 2048*1024*2), (sW, 1024*3072*2), (sWO, 1024*1024*2), (sOUT, WS_END), (sDBG, 256)):
            a(f's_mov_b32 s{b+2}, {n}'); a(f's_mov_b32 s{b+3}, 0x20000')
        if self.prof: a('v_mov_b32 v255, 0')
        self.stamp(0)
        a(f's_cmp_ge_u32 s{s_wave}, 6'); a('s_cbranch_scc1 L_helper')
        if self.st0 & 1: a(f's_cmp_lt_u32 s{s_wave}, 4'); a('s_cbranch_scc1 L_compute')
        else: a(f's_cmp_ge_u32 s{s_wave}, 4'); a('s_cbranch_scc1 L_loader')
    def pointers(self):
        a = self.a
        a('s_waitcnt lgkmcnt(0)')
        for b, p in ((sWS, pWS), (sX, pAX), (sW, pAW), (sWO, pAWO), (sOUT, pWS), (sDBG, pDBG)):
            a(f's_mov_b64 s[{b}:{b+1}], s[{p}:{p+1}]')

    def trickle_setup(self):
        a = self.a
        a(f's_mov_b64 s[{sOUT}:{sOUT+1}], s[{sWO}:{sWO+1}]'); a(f's_mov_b32 s{sOUT+2}, {1 << 21}')
        a.extend(sx(s_ft, [(2, 8192), (s_wave, 2048)], -8192))
        n1 = -(-16 // self.tr)
        a(f's_cmp_eq_u32 s{s_l}, 0'); a(f's_cselect_b32 s{s_fn}, 12, {n1}')
        a(f's_cmp_lt_u32 s{s_l}, {2 if self.warm else 0}'); a(f's_cselect_b32 s{s_fn}, s{s_fn}, 0')
    def trickle_lines(self, n):
        a = self.a
        a(f's_sub_u32 s{s_t}, s{sOUT+2}, {128*n}'); a(f's_min_u32 s{s_t}, s{s_t}, s{s_ft}')
        for r in range(n): a(f's_buffer_load_dwordx2 s[{s_fd}:{s_fd+1}], {srd(sOUT)}, s{s_t} offset:{128*r+60}')
        a(f's_add_u32 s{s_ft}, s{s_ft}, {128*n}')
    def trickle(self, i):
        a = self.a
        n1 = -(-16 // self.tr)
        def nxt():
            a(f's_mov_b64 s[{sOUT}:{sOUT+1}], s[{pBW}:{pBW+1}]'); a(f's_mov_b32 s{sOUT+2}, {3 << 21}')
            a.extend(sx(s_ft, [(2, 24576), (s_wave, 6144)], -24576))
        def body():
            if isinstance(i, str): self.cond([f's_cmp_eq_u32 {i}, {n1}'], nxt)
            elif i == n1: nxt()
            self.trickle_lines(self.tr)
        self.cond([f's_cmp_gt_u32 s{s_fn}, {i}'], body)
    def trickle_rest(self, part):
        rest = 48 - self.tr * (12 - -(-16 // self.tr))
        n = rest
        self.cond([f's_cmp_eq_u32 s{s_fn}, 12'], lambda: self.trickle_lines(n))

    def warm_w(self):
        a = self.a
        if not self.pw: return
        a(f's_and_b32 s{s_t}, s{s_m}, 3'); a.extend(sx(s_t+1, [(s_t, 16*6144), (s_wave, 4*6144), (s_g, 128)], -16*6144))
        a(f's_and_b32 s{s_t+2}, s{s_g}, 7')
        for st in range(1, 1 + self.pw):
            a(f's_cmp_le_u32 s{s_t+2}, {st-1}'); a(f's_addc_u32 s{s_t}, s{s_rot2}, {st-1}')
            a(f's_mul_i32 s{s_t}, s{s_t}, {64*6144}'); a(f's_add_u32 s{s_t}, s{s_t}, s{s_t+1}')
            for k in range(12): a(f's_buffer_load_dwordx2 s[{s_fd}:{s_fd+1}], {srd(sW)}, s{s_t} offset:{2048*k+60}')
    def warm_wo_setup(self):
        a = self.a
        a(f's_and_b32 s{s_t}, s{s_m}, 3'); a.extend(sx(s_po, [(s_t, 256*2048), (s_wave, 64*2048), (s_g, 128)], -256*2048))
    def warm_wo(self, n):
        a = self.a
        def body():
            for k in range(n): a(f's_buffer_load_dwordx2 s[{s_fd}:{s_fd+1}], {srd(sWO)}, s{s_po} offset:{2048*k+60}')
            a(f's_add_u32 s{s_po}, s{s_po}, {2048*n}'); a(f's_min_u32 s{s_po}, s{s_po}, {(1 << 21) - 2048*n}')
        if self.po: self.cond([f's_lshr_b32 s{s_t}, {self.po}, s{s_l}', f's_bitcmp1_b32 s{s_t}, 0'], body)

    def w_dma_offsets(self, dw, idx, t0, t1, t2):
        a = self.a
        a(f'v_lshrrev_b32 v{t0}, 3, v1'); a(f'v_mul_u32_u24 v{t0}, 6144, v{t0}')
        a(f'v_and_b32 v{t1}, 7, v1'); a(f'v_bfe_u32 v{t2}, v1, 4, 1'); a(f'v_lshlrev_b32 v{t2}, 1, v{t2}')
        a(f'v_xor_b32 v{t1}, v{t1}, v{t2}'); a(f'v_xor_b32 v{t2}, 4, v{t1}')
        a(f'v_lshl_add_u32 v{t1}, v{t1}, 4, v{t0}'); a(f'v_lshl_add_u32 v{t2}, v{t2}, 4, v{t0}')
        d = 8*6144 - 1024
        a(f's_lshl_b32 s{s_t+1}, s{s_g}, 7'); a(f'v_add_u32 v{t1}, s{s_t+1}, v{t1}'); a(f's_add_u32 s{s_t+1}, s{s_t+1}, {d}'); a(f'v_add_u32 v{t2}, s{s_t+1}, v{t2}')
        a(f's_cmp_eq_u32 s{idx}, 0')
        for t in range(3):
            c = [((3*w + t) & 1)*32*6144 + ((3*w + t) >> 1)*2048 for w in range(2)]
            a(f's_mov_b32 s{s_t}, {c[1]}'); a(f's_cmov_b32 s{s_t}, {c[0]}')
            a(f'v_add_u32 v{dw+4*t}, s{s_t}, v{t1}'); a(f'v_add_u32 v{dw+4*t+1}, s{s_t}, v{t2}')
            a(f'v_add_u32 v{dw+4*t+2}, {2*d}, v{dw+4*t}'); a(f'v_add_u32 v{dw+4*t+3}, {2*d}, v{dw+4*t+1}')

    def w_frag_addr(self, aw, head_sreg, base, t0, t1, t2, nb_list=(0, 1)):
        L = [f'v_lshrrev_b32 v{t2}, 4, v1', f'v_bfe_u32 v{t0}, v1, 2, 2', f'v_lshl_add_u32 v{t1}, v{t2}, 3, v{t0}',
             f'v_lshrrev_b32 v{t0}, 1, v{t0}', f'v_and_b32 v{t2}, 1, v{t2}', f'v_lshl_add_u32 v{t0}, v{t2}, 1, v{t0}']
        if head_sreg is not None: L += [f's_lshl_b32 s{s_t}, s{head_sreg}, 1', f'v_xor_b32 v{t0}, s{s_t}, v{t0}']
        L += [f'v_and_b32 v{t2}, 3, v1', f'v_lshlrev_b32 v{t2}, 3, v{t2}', f'v_lshl_add_u32 v{t2}, v{t1}, 7, v{t2}']
        if base: L.append(f'v_add_u32 v{t2}, {base}, v{t2}')
        for k, nb in enumerate(nb_list): L += [f'v_xor_b32 v{t1}, {nb}, v{t0}', f'v_lshl_add_u32 v{aw+k}, v{t1}, 5, v{t2}']
        return L

    def reduce_job(self, after_by=None, after_fill=None):
        a = self.a
        T = 200
        vA, vZ, vO, t1, t2 = T, T+1, T+2, T+3, T+4
        s_a, s_b, s_c, s_d, s_e = 80, 81, 82, 83, 84
        a.extend(sx(s_t, [(s_l, 32), (s_g, 4), (s_wave, 1)], -4))
        a.extend(sx(s_a, [(s_t, 32768), (s_m, 128)], WS_KVP)); a(f's_add_u32 s{s_b}, s{s_a}, 16384')
        a.extend(sx(s_d, [(s_t, 2048), (s_m, 128)], WS_KVF))
        a.extend(sx(s_c, [(s_t, 1024)], WS_ZP)); a.extend(sx(s_e, [(s_t, 64)], WS_ZF))
        a(f's_and_b32 s{s_t}, s{s_t}, 1'); a(f's_xor_b32 s{s_t+1}, s{s_m}, s{s_g}'); a(f's_or_b32 s{s_t}, s{s_t}, s{s_t+1}')
        a(f's_cselect_b32 s{s_c}, {BIG}, s{s_c}'); a(f's_cselect_b32 s{s_e}, {BIG}, s{s_e}')
        a(f'v_and_b32 v{t1}, 7, v1'); a(f'v_lshlrev_b32 v{t1}, 4, v{t1}')
        a(f'v_lshrrev_b32 v{t2}, 3, v1'); a(f'v_lshl_add_u32 v{vA}, v{t2}, 11, v{t1}')
        a(f'v_lshlrev_b32 v{vZ}, 4, v1')
        a(f'v_lshrrev_b32 v{t2}, 4, v1'); a(f'v_lshl_add_u32 v{vO}, v{t2}, 2, v{t1}')
        D = T + 8; U = 160
        def late_fill():
            for k in range(4): a(f'v_mov_b32 v{D+k}, -1')
            fill = f'buffer_store_dwordx4 {vr(D,4)}, v{vZ}, {srd(sWS)}, s{s_t} offen'
            a.extend(sx(s_t, [(s_g, 131072), (s_wave, 32768), (s_m, 2048)], WS_KVP + (1 << 21) - 4*32768)); a(fill + ' sc1'); a(fill + ' offset:1024 sc1')
            a(f's_lshr_b32 s{s_t+1}, s{s_wave}, 1'); a(f's_and_b32 s{s_t+2}, s{s_wave}, 1')
            a.extend(sx(s_t, [(s_t+2, 1 << 20), (s_m, 1 << 16), (s_g, 4096), (s_t+1, 2048)], WS_HALO - 2*2048)); a(fill + ' sc1'); a(fill + ' offset:1024 sc1')
            a.extend(sx(s_t, [(s_wave, 262144), (s_m, 16384), (s_g, 1024)], WS_ST - 3*262144))
            a.extend(sx(s_t+3, [(s_g, 16384), (s_m, 1024)], WS_CS + 262144))
            a(f's_cmp_eq_u32 s{s_wave}, 7'); a(f's_cselect_b32 s{s_t}, s{s_t+3}, s{s_t}'); a(fill + ' sc1')
            a('s_mov_b64 exec, 0xff')
            a(f's_add_u32 s{s_t}, s{s_d}, {1 << 17}'); a(fill + ' sc1')
            a(f's_add_u32 s{s_t}, s{s_e}, {1 << 12}'); a(fill + ' sc1')
            a.extend(sx(s_t, [(s_g, 4096), (s_t+1, 2048), (s_m, 128)], WS_ZP + (1 << 16) - 2*2048)); a(fill + ' sc1')
            a('s_mov_b64 exec, -1')
            a('s_waitcnt vmcnt(0)')
        self.cond([f's_cmp_eq_u32 s{s_l}, 0'], late_fill)
        if self.hu is not None:
            vH, vG, s_f = T+5, T+6, 85
            a.extend(sx(s_f, [(s_l, 16384), (s_g, 2048)], WS_HU)); a(f'v_and_b32 v{vH}, 15, v1'); a(f'v_lshlrev_b32 v{vH}, 7, v{vH}')
        a('s_barrier')
        if self.hu is not None: a(self.flag_load(s_f, vH, vG))
        if self.jit: self.jitter(20)
        if self.rprio: a(f's_setprio {self.rprio}')
        a('s_barrier')
        if self.hu is not None: self.flag_wait(s_f, vH, vG, 11, pre='s_waitcnt vmcnt(0)', nap=self.hun)
        if after_by and self.w0a == 0: after_by()
        if self.b1: a(f's_sleep {self.b1}')
        self.ll_wait(([f's_sleep {self.n1}'] if self.n1 else []) + [f'buffer_load_dwordx4 {vr(D,4)}, v{vA}, {srd(sWS)}, s{s_a} offen sc1',
                      f'buffer_load_dwordx4 {vr(D+4,4)}, v{vA}, {srd(sWS)}, s{s_b} offen sc1',
                      f'buffer_load_dwordx4 {vr(D+8,4)}, v{vZ}, {srd(sWS)}, s{s_c} offen sc1',
                      f'buffer_load_dwordx4 {vr(D+12,4)}, v{vZ}, {srd(sWS)}, s{s_c} offen offset:1024 sc1'],
                     list(range(D, D+16)), t1, t2, 1)
        self.stamp(5)
        S = []
        for z in range(2):
            d, u = D + 8*z, U + 16*z
            for k in range(8): S += [f'v_lshlrev_b32 v{u+2*k}, 16, v{d+k}', f'v_and_b32 v{u+2*k+1}, 0xffff0000, v{d+k}']
            for k in range(4): S.append(pk('add', u+2*k, u+2*k, u+8+2*k))
            for k in range(4): S.append(sw32(u+k, u+4+k))
            S += [pk('add', u, u, u+4), pk('add', u+2, u+2, u+6), sw16(u, u+2), sw16(u+1, u+3), pk('add', u, u, u+2)]
            for k in range(2): S.append(f'v_add_f32_dpp v{u+k}, v{u+k}, v{u+k} row_ror:8 row_mask:0xf bank_mask:0xf')
            S.append(cvt(u, u, u+1))
        S += ['s_mov_b32 exec_lo, 0x00ff00ff', 's_mov_b32 exec_hi, 0x00ff00ff',
              f'buffer_store_dword v{U}, v{vO}, {srd(sWS)}, s{s_d} offen sc1',
              f'buffer_store_dword v{U+16}, v{vO}, {srd(sWS)}, s{s_e} offen sc1', 's_mov_b64 exec, -1']
        self.sw(S)
        if self.rprio: a('s_setprio 0')
        if after_by and self.w0a == 1: after_by()
        if self.zw: a(f's_waitcnt vmcnt({12 if (after_by and self.w0a == 1 and self.zw == 1) else 0})')
        a('s_barrier')
        if after_by and self.w0a == 2: after_by()

    def loader(self):
        a = self.a
        a.label('L_loader')
        dx, dw, dwo, t0, t1, t2, vf = 8, 16, 28, 2, 3, 4, 5
        s_ld, s_kx, s_kw, s_slot, s_mx, s_xstep, s_wo, s_wm0, s_sx, s_sw, s_xb, s_fl, s_mw = range(65, 78)
        a(f's_sub_u32 s{s_ld}, s{s_wave}, 4')
        self.w_dma_offsets(dw, s_ld, t0, t1, t2)
        a(f's_mul_i32 s{s_mw}, s{s_ld}, 12288')
        a(f's_lshl_b32 s{s_mx}, s{s_ld}, 13'); a(f's_add_u32 s{s_mx}, s{s_mx}, {XOFF}')
        s_flip = 78
        def nxt(r):
            return [f's_cmp_eq_u32 s{r}, s{s_flip}', f's_addc_u32 s{r}, s{r}, 1', f's_and_b32 s{r}, s{r}, 15']
        def wst(slot=None):
            L = []
            for j in range(12):
                if j == 0: L.append(f's_add_u32 m0, s{s_mw}, ' + (f's{s_slot}' if slot is None else str(slot*STG)))
                elif j % 4 == 0: L.append('s_add_u32 m0, m0, 4096')
                L.append(f'buffer_load_dwordx4 v{dw+j}, {srd(sW)}, s{s_kw} offen offset:{1024*(j%4)} lds')
            a.extend(L + nxt(s_sw) + [f's_mul_i32 s{s_kw}, s{s_sw}, {64*6144}'])
        def xst(slot=None):
            L = []
            for j in range(8):
                if j == 0: L.append(f's_add_u32 m0, s{s_mx}, ' + (f's{s_slot}' if slot is None else str(slot*STG)))
                elif j == 4: L.append('s_add_u32 m0, m0, 4096')
                L.append(f'buffer_load_dwordx4 v{dx+j}, {srd(sX)}, s{s_kx} offen offset:{1024*(j%4)} sc1 lds')
            a.extend(L + nxt(s_sx) + [f's_mul_i32 s{s_kx}, s{s_sx}, s{s_xstep}', f's_add_u32 s{s_kx}, s{s_kx}, s{s_xb}'])
        def kstart(first):
            if first:
                a(f's_and_b32 s{s_sx}, s{s_m}, {self.rot0}'); a(f's_mov_b32 s{s_sw}, s{s_sx}'); a(f's_mov_b32 s{s_flip}, 16')
            else:
                a(f's_add_u32 s{s_sw}, s{s_rot2}, 15'); a(f's_and_b32 s{s_sw}, s{s_sw}, 15'); a(f's_mov_b32 s{s_sx}, s{s_sw}')
                a(f's_add_u32 s{s_flip}, s{s_g}, 15'); a(f's_and_b32 s{s_flip}, s{s_flip}, 15'); a.extend(nxt(s_sx))
            a(f's_mul_i32 s{s_kw}, s{s_sw if first else s_g}, {64*6144}'); a(f's_mul_i32 s{s_kx}, s{s_sx}, s{s_xstep}'); a(f's_add_u32 s{s_kx}, s{s_kx}, s{s_xb}')
        a(f's_lshl_b32 s{s_xb}, s{s_m}, 18'); a(f's_mov_b32 s{s_xstep}, 128'); kstart(True)
        self.pointers()
        wst(0)
        a(f'v_lshrrev_b32 v{t0}, 3, v1'); a(f'v_and_b32 v{t1}, 7, v1')
        a(f'v_lshrrev_b32 v{t2}, 4, v1'); a(f'v_xor_b32 v{t1}, v{t1}, v{t2}'); a(f'v_xor_b32 v{t2}, 4, v{t1}')
        a(f's_lshl_b32 s{s_t}, s{s_ld}, 17'); a(f'v_lshl_add_u32 v{t0}, v{t0}, 11, s{s_t}')
        a(f'v_lshl_add_u32 v{t1}, v{t1}, 4, v{t0}'); a(f'v_lshl_add_u32 v{t2}, v{t2}, 4, v{t0}')
        for j in range(8): a(f'v_add_u32 v{dx+j}, {j*16384 - 1024*(j%4)}, v{t1 if j % 2 == 0 else t2}')
        xst(0); wst(1)
        if self.ramp == -2: xst(1)
        a(f'v_lshrrev_b32 v{t0}, 5, v1'); a(f'v_lshlrev_b32 v{t0}, 4, v{t0}')
        a(f'v_bfe_u32 v{t1}, v1, 3, 2'); a(f'v_add_u32 v{t0}, v{t0}, v{t1}')
        a(f's_lshl_b32 s{s_t}, s{s_g}, 7'); a(f'v_lshl_add_u32 v{t0}, v{t0}, 11, s{s_t}')
        a(f'v_and_b32 v{t1}, 7, v1'); a(f'v_bfe_u32 v{t2}, v1, 4, 1'); a(f'v_lshlrev_b32 v{t2}, 1, v{t2}')
        a(f'v_xor_b32 v{t1}, v{t1}, v{t2}'); a(f'v_xor_b32 v{t2}, 4, v{t1}')
        a(f'v_lshl_add_u32 v{t1}, v{t1}, 4, v{t0}'); a(f'v_lshl_add_u32 v{t2}, v{t2}, 4, v{t0}')
        for G in range(4): a(f'v_add_u32 v{dwo+G}, {G*4*2048 - 1024*G}, v{t1 if G % 2 == 0 else t2}')
        a(f's_waitcnt vmcnt({20 if self.ramp == -2 else 12})'); a('s_barrier')
        if self.ramp != -2: xst(1)
        wst(2)
        if self.ramp < 0: xst(2)
        a(f's_waitcnt vmcnt({20 if self.ramp < 0 else 12})'); a('s_barrier')
        if self.ramp >= 0: xst(2)
        if self.ramp > 0:
            for k in range(self.ramp):
                xst(k % 3); a('s_waitcnt vmcnt(8)'); a('s_barrier'); wst(k % 3)
            a(f's_mov_b32 s{s_i}, {self.ramp}'); a(f's_mov_b32 s{s_slot}, {(self.ramp % 3)*STG}')
            a('s_branch L_ld_enter2')
        a.label('L_ld_enter')
        a(f's_mov_b32 s{s_i}, 0'); a(f's_mov_b32 s{s_slot}, 0')
        a.label('L_ld_enter2')
        self.trickle_setup(); self.warm_wo_setup()
        def loop(name, n, extra):
            a.label(name)
            xst(); wst()
            if extra:
                a(f's_add_u32 s{s_t}, s{s_i}, 1'); a(f's_and_b32 s{s_t}, s{s_t}, 7')
                a.extend(sx(s_wo, [(s_rot2, 2), (s_t, 1)], 24)); a(f's_and_b32 s{s_wo}, s{s_wo}, 31')
                a.extend(sx(s_wm0, [(s_wo, 65536), (s_ld, 2*4*2048)]))
                a.extend(sx(s_wo, [(s_t, 4096), (s_ld, 2048)], L_SPARE)); a(f's_mov_b32 m0, s{s_wo}')
                for G in range(2): a(f'buffer_load_dwordx4 v{dwo+G}, {srd(sWO)}, s{s_wm0} offen offset:{1024*G} lds')
            self.trickle(f's{s_i}'); self.warm_wo(5)
            a(f's_add_u32 s{s_slot}, s{s_slot}, {STG}'); a(f's_cmp_eq_u32 s{s_slot}, {3*STG}'); a(f's_cselect_b32 s{s_slot}, 0, s{s_slot}')
            a(f's_add_u32 s{s_i}, s{s_i}, 1'); a(f's_cmp_lt_u32 s{s_i}, {n}')
            a(f's_waitcnt vmcnt({22 if extra else 20})')
            a('s_barrier')
            a(f's_cbranch_scc1 {name}')
        if self.early: loop('L_ld_loop', 5, False); loop('L_ld_loop2', 13, True)
        else: loop('L_ld_loop', 13, False)
        def wo(p0, n, thr=None):
            a.extend(sx(s_wm0, [(s_ld, 4096)], L_WO + 4096*p0))
            a.extend(sx(s_wo, [(s_rot2, 2), (s_ld, 1)], p0)); a(f's_and_b32 s{s_wo}, s{s_wo}, 31'); a(f's_lshl_b32 s{s_wo}, s{s_wo}, 16')
            L = self.lab('wo')
            a(f's_mov_b32 s{s_i}, 0')
            a.label(L)
            if thr is not None: a(f's_waitcnt vmcnt({thr})')
            a(f's_mov_b32 m0, s{s_wm0}')
            a(f's_add_u32 s{s_wm0}, s{s_wm0}, 8192')
            for G in range(4): a(f'buffer_load_dwordx4 v{dwo+G}, {srd(sWO)}, s{s_wo} offen offset:{1024*G} lds')
            a(f's_add_u32 s{s_wo}, s{s_wo}, 131072'); a(f's_and_b32 s{s_wo}, s{s_wo}, 0x1fffff')
            a(f's_add_u32 s{s_i}, s{s_i}, 1'); a(f's_cmp_lt_u32 s{s_i}, {n//2}'); a(f's_cbranch_scc1 {L}')
        order = list(range(24, 32)) + list(range(4, 24)) + list(range(4))
        def wos(k0, k1):
            while k0 < k1:
                k = k0
                while k + 1 < k1 and order[k+1] == order[k] + 1: k += 1
                wo(order[k0], k + 1 - k0); k0 = k + 1
        n13, n14 = self.wsch; assert n13 <= 18 and n13 + n14 <= 28 and n13 % 2 == 0 and n14 % 2 == 0
        wos(0, n13)
        a(f's_waitcnt vmcnt({2*n13})'); a('s_barrier')
        wos(n13, n13 + n14)
        a('s_barrier')
        wos(n13 + n14, 32)
        if self.jit: self.jitter(23)
        a.extend(sx(s_fl, [(s_l, 8192), (s_m, 256), (s_rot2, 16), (s_ld, 8)], 4096))
        self.get_mode(t0); a.extend(self.flag_addr(vf, t0, s_fl))
        a.extend(sx(s_xb, [(s_l, 1 << 22), (s_m, 1 << 18)], WS_XI))
        a(f's_bitcmp0_b32 s{s_l}, 0')
        a(f's_cselect_b64 s[{sW}:{sW+1}], s[{pBW}:{pBW+1}], s[{pAW}:{pAW+1}]')
        a(f's_cselect_b64 s[{sWO}:{sWO+1}], s[{pBWO}:{pBWO+1}], s[{pAWO}:{pAWO+1}]')
        a(f's_mov_b64 s[{sX}:{sX+1}], s[{pWS}:{pWS+1}]'); a(f's_mov_b32 s{sX+2}, {WS_END}')
        a(f's_mov_b32 s{s_xstep}, 16384'); kstart(False)
        a(f's_lshl_b32 s{s_t}, s{s_ld}, 13'); a(f'v_lshl_add_u32 v{t0}, v1, 4, s{s_t}')
        for j in range(8): a(f'v_add_u32 v{dx+j}, {4096*(j//4)}, v{t0}')
        a(f's_bitcmp1_b32 s{s_l}, 0'); a('s_cbranch_scc1 L_ld_B')
        self.reduce_job(lambda: wst(0))
        a('s_branch L_ld_join')
        a.label('L_ld_B')
        self.cond([f's_cmp_lg_u32 s{s_l}, 3'], lambda: wst(0))
        a.label('L_ld_join')
        a('s_waitcnt vmcnt(0)'); a('s_barrier')
        a(f's_cmp_eq_u32 s{s_l}, 3'); a('s_cbranch_scc1 L_fin')
        self.trickle_rest(1); self.warm_w()
        a(f's_add_u32 s{s_l}, s{s_l}, 1')
        if self.jit: self.jitter(21)
        a('s_barrier')
        if self.jit: self.jitter(22)
        wst(1)
        if self.w2 == 2: wst(2)
        if self.spec & 4: a('s_waitcnt vmcnt(0)')
        a('s_barrier')
        if self.w2 == 0: wst(2)
        if self.lprio: a(f's_setprio {self.lprio}')
        self.flag_wait(s_fl, vf, t0, 2, nap=self.xnap, own=True)
        self.stamp(1)
        xst(1); xst(2)
        if self.lprio: a('s_setprio 0')
        a('s_waitcnt vmcnt(8)'); a('s_barrier')
        if self.w2 == 1: wst(2)
        a('s_branch L_ld_enter')

    def helper(self):
        a = self.a
        a.label('L_helper')
        t0, t1, t2, t3, l4, l16, ones, a_st, a_cs, v_st, v_cs, aw, vtw, vto, vd = 2, 3, 4, 5, 6, 7, 8, 12, 13, 14, 15, 16, 18, 19, 20
        F, D, SA, SC = 32, 96, 128, 160
        s_h, s_tw, s_a, s_b, s_trot = 65, 66, 67, 68, 69
        xm = 4; s_r = 70; vrf, vfl, aw2, dw = 21, 22, 24, 80
        a(f's_sub_u32 s{s_h}, s{s_wave}, 6')
        if self.tlb:
            self.pointers()
            def others():
                for p, n in ((pPHI, 65536), (pDBG, 256), (pAWO, 1 << 21), (pBW, 3 << 21), (pBWO, 1 << 21), (pOUT, 1 << 22)):
                    for o in list(range(0, n, 1 << 21)) + ([n - 4] if n >= 1 << 21 else []):
                        a(f's_mov_b32 s{s_t}, {o}'); a(f's_load_dword s{s_fd}, s[{p}:{p+1}], s{s_t}')
            def wsp():
                a(f's_lshr_b32 s{s_t}, s2, 3'); a(f's_lshl_b32 s{s_t}, s{s_t}, 21'); a(f's_add_u32 s{s_t}, s{s_t}, 0x80000'); a(f's_min_u32 s{s_t}, s{s_t}, {WS_END - 4}')
                a(f's_load_dword s{s_fd}, s[{pWS}:{pWS+1}], s{s_t}')
                if self.tlb == 2:
                    for k in range(6): a(f's_mov_b32 s{s_t}, {(k << 21) + 0x80000}'); a(f's_load_dword s{s_fd}, s[{pWS}:{pWS+1}], s{s_t}')
            self.cond([f's_cmp_eq_u32 s{s_h}, 0'], wsp)
            self.cond([f's_cmp_eq_u32 s{s_h}, 1'], others)
        a(f'v_lshlrev_b32 v{l4}, 2, v1'); a(f'v_lshlrev_b32 v{l16}, 4, v1')
        a.extend(self.w_frag_addr(aw, s_h, 0, t0, t1, t2))
        for k in range(2): a(f'v_add_u32 v{aw2+k}, {L_SPARE}, v{aw+k}')
        a(f's_and_b32 s{s_t+1}, s{s_m}, {15 - self.rot0}'); a(f's_cmp_eq_u32 s{s_t+1}, 3'); a(f's_cselect_b32 s{s_t+1}, 0, s{s_t+1}'); a(f's_mul_i32 s{s_t+1}, s{s_t+1}, {STG}')
        for k in range(2): a(f'v_add_u32 v{aw+k}, s{s_t+1}, v{aw+k}')
        a.extend(self.flag_addr(vrf, t0, None, remote=True))
        a(f'v_lshrrev_b32 v{t0}, 5, v1'); a(f'v_and_b32 v{t1}, 31, v1'); a(f'v_lshlrev_b32 v{t1}, 4, v{t1}')
        a(f'v_lshl_add_u32 v{v_st}, v{t0}, 10, v{t1}')
        a(f'v_and_b32 v{t2}, 24, v1'); a(f'v_and_b32 v{t3}, 3, v1'); a(f'v_lshl_add_u32 v{t2}, v{t3}, 1, v{t2}'); a(f'v_add_u32 v{t2}, v{t2}, v{t0}')
        a.extend(sx(s_t, [(s_h, 256)], P_NM)); a(f'v_lshl_add_u32 v{a_st}, v{t2}, 3, s{s_t}')
        a(f'v_mov_b32 v{t2}, {BIG}'); a(f'v_cmp_gt_u32 vcc, 384, v{t1}'); a(f'v_cndmask_b32 v{v_cs}, v{t2}, v{v_st}, vcc')
        a.extend(sx(s_t, [(s_h, 384)], P_CS)); a(f'v_lshl_add_u32 v{t1}, v{t0}, 3, v{t1}'); a(f'v_add_u32 v{a_cs}, s{s_t}, v{t1}')
        if not self.tlb: self.pointers()

        def touch_setup(first=False):
            if not self.touch: return
            c, gt = s_t + 2, s_t + 3
            def cls(b):
                a(f's_lshr_b32 s{gt}, s{b}, 7'); a(f's_sub_u32 s{gt}, 3, s{gt}'); a(f's_and_b32 s{gt}, s{gt}, 7')
                a(f's_sub_u32 s{c}, s{s_g}, s{gt}'); a(f's_and_b32 s{c}, s{c}, 7'); a(f's_sub_u32 s{c}, s{c}, 1')
                a(f's_and_b32 s{s_t}, s{s_g}, 8'); a(f's_add_u32 s{gt}, s{gt}, s{s_t}'); a(f's_lshl_b32 s{gt}, s{gt}, 7')
            a(f's_and_b32 s{s_t+4}, s{s_m}, {xm-1}'); a(f's_lshl_b32 s{s_t+4}, s{s_t+4}, 1'); a(f's_add_u32 s{s_t+4}, s{s_t+4}, s{s_h}')
            cls(sW)
            if first: a(f's_or_b32 s{s_rot}, s{s_m}, 3'); a(f's_and_b32 s{s_rot}, s{s_rot}, {self.rot0}'); a(f's_mov_b32 s{s_trot}, 0')
            else: a(f's_mov_b32 s{s_rot}, s{s_rot2}'); a(f's_bfe_u32 s{s_trot}, s{gt}, 0x30007')
            a(f's_cmp_ge_u32 s{c}, 3'); a(f's_cselect_b32 s{s_t}, {32*6144 - 3*2048}, 0'); a(f's_add_u32 s{gt}, s{gt}, s{s_t}')
            a(f's_lshl_b32 s{s_t}, s{c}, 11'); a(f's_add_u32 s{gt}, s{gt}, s{s_t}')
            a(f's_mul_i32 s{s_t}, s{s_t+4}, {(16//xm)*6144}'); a(f's_add_u32 s{gt}, s{gt}, s{s_t}')
            a(f's_cmp_lt_u32 s{c}, 6'); a(f's_cselect_b32 s{s_t}, {16//xm}, 0')
            a(f'v_mul_u32_u24 v{vtw}, 6144, v1'); a(f'v_add_u32 v{vtw}, s{gt}, v{vtw}')
            a(f'v_mov_b32 v{t0}, {BIG}'); a(f'v_cmp_gt_u32 vcc, s{s_t}, v1'); a(f'v_cndmask_b32 v{vtw}, v{t0}, v{vtw}, vcc')
            cls(sWO)
            a(f's_lshl_b32 s{s_t}, s{c}, 19'); a(f's_add_u32 s{gt}, s{gt}, s{s_t}')
            a(f's_mul_i32 s{s_t}, s{s_t+4}, {(128//xm)*2048}'); a(f's_add_u32 s{gt}, s{gt}, s{s_t}')
            a(f's_cmp_lt_u32 s{c}, 4'); a(f's_cselect_b32 s{s_t}, {32//xm}, 0')
            a(f'v_lshlrev_b32 v{vto}, 11, v1'); a(f'v_add_u32 v{vto}, s{gt}, v{vto}')
            a(f'v_cmp_gt_u32 vcc, s{s_t}, v1'); a(f'v_cndmask_b32 v{vto}, v{t0}, v{vto}, vcc')
        def touchW(st):
            if not self.touch: return
            if st == 0: a(f's_add_u32 s{s_tw}, s{s_rot}, s{s_trot}')
            else: a(f's_cmp_le_u32 s{s_trot}, {st-1}'); a(f's_addc_u32 s{s_tw}, s{s_rot}, {st-1}')
            a(f's_and_b32 s{s_tw}, s{s_tw}, 15'); a(f's_mul_i32 s{s_tw}, s{s_tw}, {64*6144}')
            a(f'buffer_load_dword v{vd}, v{vtw}, {srd(sW)}, s{s_tw} offen')
        def touchO(k):
            if not self.touch: return
            a(f's_mov_b32 s{s_tw}, {k*(32//xm)*2048}')
            a(f'buffer_load_dword v{vd}, v{vto}, {srd(sWO)}, s{s_tw} offen')
        def phi_load():
            a(f's_mov_b64 s[{sX}:{sX+1}], s[{pPHI}:{pPHI+1}]'); a(f's_mov_b32 s{sX+2}, 65536')
            a.extend(sx(s_t, [(s_g, 4096), (s_h, 2048)])); a(f's_lshl_b32 s{s_t+1}, s{s_h}, 11'); a(f's_add_u32 m0, s{s_t+1}, {P_PHI}')
            for j in range(2): a(f'buffer_load_dwordx4 v{l16}, {srd(sX)}, s{s_t} offen offset:{1024*j} lds')
        vc = 26
        if self.cpf: a(f's_getpc_b64 s[{s_t}:{s_t+1}]')
        if self.cpf: a.label('L_pc')
        if self.cpf: a(f's_sub_u32 s{s_t}, s{s_t}, L_pc-{KNAME}'); a(f's_subb_u32 s{s_t+1}, s{s_t+1}, 0')
        if self.cpf: a(f's_lshr_b32 s{s_t+2}, s2, 3'); a.extend(sx(s_t+3, [(s_t+2, 1280), (s_h, 640)]))
        if self.cpf: a(f'v_lshl_add_u32 v{t0}, v1, 7, s{s_t+3}'); a(f'v_min_u32 v{t0}, L_last-{KNAME}, v{t0}')
        if self.cpf: a(f'v_mov_b32 v{vc+1}, s{s_t+1}'); a(f'v_add_co_u32 v{vc}, vcc, s{s_t}, v{t0}'); a(f'v_addc_co_u32 v{vc+1}, vcc, 0, v{vc+1}, vcc')
        def code_touch():
            a('s_mov_b64 exec, 31'); a(f'global_load_dword v{vd}, {vr(vc,2)}, off'); a('s_mov_b64 exec, -1')
        if self.cpf & 1: code_touch()
        def cold_touch():
            a(f's_and_b32 s{s_t}, s{s_m}, 3'); a(f's_and_b32 s{s_t+1}, s{s_m}, 12')
            a.extend(sx(s_t+2, [(s_t, 16*6144), (s_t+1, 64*6144), (s_h, 64*6144), (s_g, 128)]))
            a(f'v_lshlrev_b32 v{t0}, 11, v1'); a('s_mov_b32 exec_hi, 0xffff')
            for st in self.t0s:
                a(f's_add_u32 s{s_t}, s{s_t+2}, {abs(st)*64*6144}'); a(f'buffer_load_dword v{vd}, v{t0}, {srd(sW)}, s{s_t} offen')
            a('s_mov_b32 exec_hi, -1')
        if self.t0s and self.t0s[0] < 0: cold_touch()
        self.w_dma_offsets(dw, s_h, t0, t1, t2)
        touch_setup(True)
        if self.t0s and self.t0s[0] >= 0: cold_touch()
        for st in range(1, 3 + self.dist): touchW(st)

        def init_stores():
            for k in range(4): a(f'v_mov_b32 v{SA+k}, -1')
            fill = f'buffer_store_dwordx4 {vr(SA,4)}, v{l16}, {srd(sWS)}, s{s_t} offen'
            a.extend(sx(s_t, [(s_g, 131072), (s_h, 65536), (s_m, 2048)], WS_KVP)); a(fill + ' sc1'); a(fill + ' offset:1024 sc1')
            a(f's_add_u32 s{s_t}, s{s_t}, 32768'); a(fill + ' sc1'); a(fill + ' offset:1024 sc1')
            a('s_mov_b64 exec, 0xff')
            a.extend(sx(s_t, [(s_g, 8192), (s_h, 4096), (s_m, 128)], WS_KVF)); a(fill + ' sc1'); a(fill + ' offset:2048 sc1')
            a.extend(sx(s_t, [(s_g, 4096), (s_h, 2048), (s_m, 128)], WS_ZP)); a(fill + ' sc1')
            a.extend(sx(s_t, [(s_g, 256), (s_h, 128)], WS_ZF))
            a(f's_cmp_eq_u32 s{s_m}, s{s_g}'); a(f's_cselect_b32 s{s_t}, s{s_t}, {BIG}'); a(fill + ' sc1')
            a('s_mov_b64 exec, -1')
            a(f'v_lshrrev_b32 v{t1}, 2, v1'); a(f'v_lshlrev_b32 v{t1}, 10, v{t1}'); a(f'v_and_or_b32 v{t1}, v1, 3, v{t1}')
            a.extend(sx(s_t, [(s_m, 64), (s_g, 4)])); a(f'v_add_u32 v{t1}, s{s_t}, v{t1}')
            a(f's_cmp_eq_u32 s{s_h}, 0'); a(f's_cselect_b32 s{s_t+1}, {2 + self.ls}, 7'); a(f's_cselect_b32 s{s_t}, 0, {WS_RF}')
            a(f'v_lshlrev_b32 v{t1}, s{s_t+1}, v{t1}'); a(f'v_mov_b32 v{t0}, 0')
            a('s_mov_b64 exec, 0xfffffff')
            a(f'buffer_store_dword v{t0}, v{t1}, {srd(sWS)}, s{s_t} offen sc1')
            a('s_mov_b64 exec, -1')
            if self.hu is not None:
                a.extend(sx(s_t, [(s_h, 32768), (s_g, 2048), (s_m, 128)], WS_HU)); a(f'buffer_store_dword v{t0}, off, {srd(sWS)}, s{s_t} sc1')
            a.extend(sx(s_t, [(s_h, 4)], P_CNT)); a(f'v_mov_b32 v{t1}, s{s_t}'); a(f'ds_write_b32 v{t1}, v{t0}')
            a.extend(sx(s_t, [(s_g, 16384), (s_m, 1024)], WS_CS)); a(f's_cmp_eq_u32 s{s_h}, 1'); a(f's_cselect_b32 s{s_t}, s{s_t}, {BIG}'); a(fill + ' sc1')
        for k in range(4): a(f'v_mov_b32 v{ones+k}, 0x3f803f80')
        def cs_reads(aw=aw):
            for s in range(2):
                for n in range(6):
                    for t in range(2):
                        a(f'ds_read_b64_tr_b16 {vr(F+24*s+4*n+2*t,2)}, v{aw+(n&1)} offset:{(n>>1)*8192+(32*s+4*t)*128}')
            a('s_waitcnt lgkmcnt(0)')
        def cs_publish():
            for s in range(2):
                for n in range(6): a(mf16(D+4*n, ones, F+24*s+4*n, D+4*n if s else None))
            a.extend(sx(s_t, [(s_l, 262144), (s_g, 16384), (s_m, 1024), (s_h, 128)], WS_CS))
            a('s_mov_b64 exec, 0xffff')
            for n in range(6): a(f'buffer_store_dword v{D+4*n}, v{l4}, {srd(sWS)}, s{s_t} offen offset:{(n>>1)*256+(n&1)*64} sc1')
            a('s_mov_b64 exec, -1')
        def chunk(t):
            a(f's_mul_i32 s{s_t}, s{s_m}, {64*6144}'); a(f's_mul_i32 s{s_t+1}, s{s_h}, 12288'); a(f's_add_u32 m0, s{s_t+1}, {L_SPARE + 4096*(t//2)}')
            for j in range(2*t, 2*t+2): a(f'buffer_load_dwordx4 v{dw+j}, {srd(sW)}, s{s_t} offen offset:{1024*(j%4)} lds')
        def arrive():
            a(f's_getreg_b32 s{s_t}, hwreg(HW_REG_XCC_ID, 0, 3)'); a(f's_lshl_b32 s{s_t}, s{s_t}, 2'); a(f's_lshl_b32 s{s_t+1}, 1, s{s_t}')
            a.extend(sx(s_t, [(s_m, 16), (s_rot2, 1)]))
            a('s_mov_b64 exec, 1')
            a(f'v_mov_b32 v{t0}, s{s_t+1}')
            a(f'buffer_atomic_add v{t0}, off, {srd(sDBG)}, s{s_t} sc1')
            a('s_mov_b64 exec, -1')
        iload = f'buffer_load_dword v{vfl}, v{t2}, {srd(sDBG)}, 0 offen sc1'
        def init_look():
            a(f'v_and_b32 v{t2}, 31, v1'); a(f'v_lshlrev_b32 v{t2}, 3, v{t2}'); a(iload)
        def init_wait():
            a('s_waitcnt vmcnt(0)')
            self.spin(['s_sleep 16', iload],
                      [f'v_lshrrev_b32 v{t1}, 4, v{vfl}', f'v_and_b32 v{t1}, 0x0f0f0f0f, v{t1}', f'v_and_b32 v{t3}, 0x0f0f0f0f, v{vfl}',
                       f'v_sad_u8 v{t1}, v{t1}, 0, 0', f'v_sad_u8 v{t3}, v{t3}, 0, v{t1}', f'v_cmp_gt_u32 vcc, 8, v{t3}'], t3, 3, pre=True)
            a(f's_lshr_b32 s{s_t}, s{s_rot2}, 3'); a(f's_lshl_b32 s{s_t+1}, s{s_m}, 1'); a(f's_add_u32 s{s_t}, s{s_t}, s{s_t+1}')
            a(f'v_readlane_b32 s{s_fast}, v{vfl}, s{s_t}')
            a(f's_and_b32 s{s_fast}, s{s_fast}, 0x88888888'); a(f's_cselect_b32 s{s_fast}, {1 if self.local else 0}, 0')
            a(f'v_mov_b32 v{t3}, s{s_fast}'); a(f'v_mov_b32 v{t2}, {P_MODE}'); a(f'ds_write_b32 v{t2}, v{t3}')
        def gather(R, va, so, ks):
            L = []
            for k in ks: L += [f's_add_u32 s{s_t}, s{so}, {4096*(k//2)}', f'buffer_load_dwordx4 {vr(R+4*k,4)}, v{va}, {srd(sWS)}, s{s_t} offen offset:{2048*(k%2)} sc1']
            return L
        def total(R):
            n = 8
            while n > 1:
                n //= 2
                for k in range(4*n): a(f'v_add_f32 v{R+k}, v{R+k}, v{R+k+4*n}')
            a(sw32(R, R+2)); a(sw32(R+1, R+3)); a(f'v_add_f32 v{R}, v{R}, v{R+2}'); a(f'v_add_f32 v{R+1}, v{R+1}, v{R+3}')
        def stats_finish():
            for k in range(2): a(f'v_mov_b32_dpp v{SA+2+k}, v{SA+k} row_shl:4 row_mask:0xf bank_mask:0xf')
            for k in range(2): a(f'v_mul_f32 v{SA+k}, {f2u(-1/1024)}, v{SA+k}'); a(f'v_mul_f32 v{SA+2+k}, {f2u(1/1024)}, v{SA+2+k}')
            for k in range(2): a(f'v_fma_f32 v{SA+2+k}, -v{SA+k}, v{SA+k}, v{SA+2+k}')
            for k in range(2): a(f'v_max_f32 v{SA+2+k}, 0, v{SA+2+k}')
            for k in range(2): a(f'v_add_f32 v{SA+2+k}, {f2u(1e-5)}, v{SA+2+k}')
            for k in range(2): a(f'v_rsq_f32 v{SA+2+k}, v{SA+2+k}')
            a('s_mov_b32 exec_lo, 0x0f0f0f0f'); a('s_mov_b32 exec_hi, 0x0f0f0f0f')
            a(f'ds_write_b64 v{a_st}, {vr(SA,2)}'); a(f'ds_write_b64 v{a_st}, {vr(SA+2,2)} offset:512')
            a('s_mov_b64 exec, -1')
        def cs_finish():
            total(SC)
            a(f's_mul_i32 s{s_t}, s{s_l}, 768'); a(f'v_add_u32 v{t0}, s{s_t}, v{a_cs}')
            a('s_mov_b32 exec_lo, 0xffffff'); a('s_mov_b32 exec_hi, 0xffffff')
            a(f'ds_write_b64 v{t0}, {vr(SC,2)}')
            a('s_mov_b64 exec, -1')
        l0 = [f's_cmp_eq_u32 s{s_l}, 0']; ln0 = [f's_cmp_lg_u32 s{s_l}, 0']; l01 = [f's_cmp_lt_u32 s{s_l}, 2']
        a(f's_mov_b32 s{s_r}, 0')
        a.label('L_hp_layer')
        a.extend(sx(s_a, [(s_l, 262144), (s_m, 16384), (s_h, 512)], WS_ST))
        a.extend(sx(s_b, [(s_l, 262144), (s_g, 16384), (s_h, 384)], WS_CS))
        self.trickle_setup(); self.warm_wo_setup()
        hi = lambda: self.hprio and a(f's_setprio {self.hprio}')
        lo = lambda: self.hprio and a('s_setprio 0')
        l1 = [f's_cmp_eq_u32 s{s_l}, 1']
        for i in range(17):
            a('s_barrier')
            if self.jit and i in (0, 1, 4, 8, 9, 12, 16): self.jitter(30 + i)
            ncs = 16 - self.rot0
            l0h0 = [f's_or_b32 s{s_t}, s{s_l}, s{s_h}', f's_cmp_eq_u32 s{s_t}, 0']
            if i < ncs: self.cond([f's_and_b32 s{s_t}, s{s_m}, {ncs-1}', f's_lshl_b32 s{s_t+1}, s{s_l}, 2', f's_or_b32 s{s_t}, s{s_t}, s{s_t+1}', f's_cmp_eq_u32 s{s_t}, {i}'], cs_reads)
            if i == 8: self.cond(l1, lambda: cs_reads(aw2))
            if i in (self.i0 + self.iw, 5, 7, 13): a('s_waitcnt vmcnt(0)')
            if i == 5: self.cond(ln0, lambda: self.flag_wait(s_r, vrf, vfl, 8, pre=True, nap=self.nap))
            if i == 9: self.cond(l0h0, init_wait)
            if i <= 12: hi()
            if i == self.i0: self.cond(l0, lambda: (init_stores(), phi_load()))
            if i == self.i0 + self.iw + 1: self.cond(l0h0, arrive)
            if i == max(4, self.i0 + self.iw + 1): self.cond(l0, cs_publish)
            if i == 9: self.cond(l1, cs_publish)
            if i == 8: self.cond(l0h0, init_look)
            if i == 11 and self.cpf & 2: self.cond(l01, code_touch)
            if i == 4: self.cond(ln0, lambda: a(self.flag_load(s_r, vrf, vfl)))
            if i + 3 + self.dist <= 15: touchW(i + 3 + self.dist)
            if 5 <= i <= 8: touchO(i - 5)
            if 1 <= i <= 6: self.cond(l1, lambda: chunk(i - 1))
            if i == 6: self.cond([f's_cmp_eq_u32 s{s_l}, 2'], phi_load)
            if i in (10, 11): a.extend(gather(SA, v_st, s_a, range(4*(i-10), 4*(i-10)+4)))
            if i in (11, 12): self.cond(l01, lambda: a.extend(gather(SC, v_cs, s_b, range(4*(i-11), 4*(i-11)+4))))
            if i <= 12: lo()
            if 1 <= i <= 12: self.trickle(i - 1)
            if i == 13: self.ll_wait(gather(SA, v_st, s_a, range(8)), list(range(SA, SA+32)), t0, t1, 6, pre=True); total(SA)
            if i == 14: stats_finish()
            if i == 14: self.cond(l01, lambda: self.ll_wait(gather(SC, v_cs, s_b, range(8)), list(range(SC, SC+32)), t0, t1, 7, pre=True))
            if i == 15: self.cond(l01, cs_finish); a('s_waitcnt lgkmcnt(0)')
        a.extend(sx(s_t+1, [(s_l, 8192), (s_m, 256), (s_g, 16), (s_h, 4096)])); a(f's_lshl_b32 s{s_t+1}, s{s_t+1}, {self.ls}')
        a(f'v_and_b32 v{t0}, 3, v1'); a(f'v_lshlrev_b32 v{t0}, {2 + self.ls}, v{t0}'); a(f'buffer_load_dword v{vd}, v{t0}, {srd(sWS)}, s{s_t+1} offen sc1')
        a.extend(sx(s_t, [(s_l, 8192), (s_m, 256), (s_rot2, 16)]))
        a(f's_xor_b32 s{s_t}, s{s_t}, 128'); a.extend(sx(s_r, [(s_t, 32), (s_h, 256)], WS_RF))
        a(f's_bitcmp0_b32 s{s_l}, 0')
        a(f's_cselect_b64 s[{sW}:{sW+1}], s[{pBW}:{pBW+1}], s[{pAW}:{pAW+1}]')
        a(f's_cselect_b64 s[{sWO}:{sWO+1}], s[{pBWO}:{pBWO+1}], s[{pAWO}:{pAWO+1}]')
        touch_setup()
        touchW(0); touchW(1); touchW(2)
        a(f's_bitcmp1_b32 s{s_l}, 0'); a('s_cbranch_scc1 L_hp_B')
        self.reduce_job()
        a('s_branch L_hp_join')
        a.label('L_hp_B')
        a.label('L_hp_join')
        a('s_barrier')
        a(f's_cmp_eq_u32 s{s_l}, 3'); a('s_cbranch_scc1 L_fin')
        self.trickle_rest(1); self.warm_w()
        a(f's_add_u32 s{s_r}, s{s_r}, {4096*32}')
        a(f's_add_u32 s{s_l}, s{s_l}, 1')
        a('s_barrier')
        for st in range(3, 3 + self.dist): touchW(st)
        a('s_branch L_hp_layer')

    def compute(self):
        a = self.a
        one, l16, voffR, voffI, a_tok, a_row, a_t32, a_csr, a_csv = 0, 2, 3, 4, 5, 6, 7, 8, 9
        ax, awq = 10, 12
        l4 = 14; vst = 15
        XR = 16
        ACC = 32
        FX = [128, 144]; FW = [160, 184]
        T = 208
        t0, t1, t2, t3 = T, T+1, T+2, T+3
        s_wm, s_wh, s_rslot, s_delta, s_stg, s_ones = 65, 66, 67, 68, 69, 70
        s_o = 71
        s_ob = 75
        s_obase, s_ooff, s_a, s_b, s_c, s_d, s_e, s_fp, s_st, s_fo = range(77, 87)
        a(f'v_lshrrev_b32 v{t0}, 4, v1')
        a(f'v_and_b32 v{t1}, 15, v1')
        a(f'v_and_b32 v{t2}, 1, v{t0}'); a(f'v_lshrrev_b32 v{t3}, 1, v{t0}'); a(f'v_lshl_add_u32 v{t2}, v{t2}, 1, v{t3}')
        a(f'v_lshlrev_b32 v{voffR}, 11, v{t1}'); a(f'v_lshl_add_u32 v{voffR}, v{t2}, 4, v{voffR}')
        def x0():
            a = self.a
            a.extend(sx(s_t, [(s_m, 1 << 18), (s_wave, 1 << 16), (s_g, 128)])); a(f's_add_u32 s{s_t+1}, s{s_t}, 32768')
            if not self.st0 & 16 and self.xd is None: self.pointers()
            if self.crow & 1:
                a.extend(sx(s_t+2, [(2, 4*6144), (s_wave, 6144)])); a(f'v_lshlrev_b32 v{T+8}, 7, v1'); a('s_mov_b32 exec_hi, 0xffff')
                a(f'buffer_load_dword v{T+9}, v{T+8}, {srd(sW)}, s{s_t+2} offen'); a('s_mov_b32 exec_hi, -1')
            if self.crow & 2:
                a.extend(sx(s_t+2, [(2, 4*4096), (s_wave, 4096)])); a(f'v_lshlrev_b32 v{T+8}, 7, v1'); a('s_mov_b32 exec_hi, 0')
                a(f'buffer_load_dword v{T+9}, v{T+8}, {srd(sX)}, s{s_t+2} offen'); a('s_mov_b32 exec_hi, -1')
            if self.xl:
                a(f'v_lshrrev_b32 v{T+8}, 3, v1'); a(f'v_and_b32 v{T+9}, 7, v1'); a(f'v_lshlrev_b32 v{T+9}, 4, v{T+9}'); a(f'v_lshl_add_u32 v{T+8}, v{T+8}, 11, v{T+9}')
                a.extend(sx(s_t+1, [(s_wave, 4096)], L_SPARE)); a(f's_mov_b32 m0, s{s_t+1}')
                for j in range(4):
                    if j: a(f's_add_u32 s{s_t}, s{s_t}, {16384 - 1024}')
                    a(f'buffer_load_dwordx4 v{T+8}, {srd(sX)}, s{s_t} offen offset:{1024*j} lds')
                a(f'v_lshrrev_b32 v{T+9}, 4, v{voffR}'); a(f'v_and_b32 v{T+9}, 0x780, v{T+9}'); a(f'v_and_or_b32 v{T+9}, v{voffR}, 48, v{T+9}'); a(f'v_add_u32 v{T+9}, s{s_t+1}, v{T+9}')
                return
            for tb in range(2):
                for e in range(2): a(f'buffer_load_dwordx4 {vr(XR+8*tb+4*e,4)}, v{voffR}, {srd(sX)}, s{s_t+tb} offen offset:{64*e}')
        if self.st0 & 16 or self.xd is not None: self.pointers()
        elif not self.st0 & 8: x0()
        a(f's_lshr_b32 s{s_wm}, s{s_wave}, 1'); a(f's_and_b32 s{s_wh}, s{s_wave}, 1')
        a(f'v_mov_b32 v{one}, 1')
        a(f'v_lshl_add_u32 v{voffI}, v{t2}, 4, v{t1}'); a(f'v_lshlrev_b32 v{voffI}, 4, v{voffI}'); a(f'v_mov_b32 v{vst}, v{voffI}')
        a(f'v_lshlrev_b32 v{l16}, 4, v1'); a(f'v_lshlrev_b32 v{l4}, 2, v1')
        a.extend(sx(s_t, [(s_wm, 256)], P_NM))
        a(f'v_lshl_add_u32 v{a_tok}, v{t1}, 2, s{s_t}')
        a(f'v_lshl_add_u32 v{a_row}, v{t0}, 4, s{s_t}')
        a(f'v_and_b32 v{t3}, 31, v1'); a(f'v_lshl_add_u32 v{a_t32}, v{t3}, 2, s{s_t}')
        a.extend(sx(s_t, [(s_wh, 128)], P_CS))
        a(f'v_lshl_add_u32 v{a_csr}, v{t0}, 4, s{s_t}')
        a(f'v_lshl_add_u32 v{a_csv}, v{t1}, 2, s{s_t}')
        a(f's_mov_b32 s{s_stg}, {STG}'); a(f's_mov_b32 s{s_ones}, 0x3f803f80')
        a(f'v_lshrrev_b32 v{t2}, 1, v{t1}'); a(f'v_xor_b32 v{t2}, v{t2}, v{t0}')
        a.extend(sx(s_t, [(s_wm, 8192)], XOFF)); a(f'v_lshl_add_u32 v{t1}, v{t1}, 7, s{s_t}')
        for s in range(2):
            a(f'v_xor_b32 v{t3}, {4*s}, v{t2}'); a(f'v_lshl_add_u32 v{ax+s}, v{t3}, 4, v{t1}')
        a.extend(sx(s_st, [(s_m, 16384), (s_g, 1024), (s_wave, 256)], WS_ST))

        q = 216
        def stats():
            S = []
            for k in range(8):
                for tb in range(2):
                    r = XR + 8*tb + k
                    S += [f'v_dot2_f32_bf16 v{q+2*tb}, s{s_ones}, v{r}, ' + (f'v{q+2*tb}' if k else '0'),
                          f'v_dot2_f32_bf16 v{q+2*tb+1}, v{r}, v{r}, ' + (f'v{q+2*tb+1}' if k else '0')]
            return S + [sw32(q, q+2), sw32(q+1, q+3), pk('add', q, q, q+2), sw16(q, q+1), f'v_add_f32 v{q}, v{q}, v{q+1}']
        st_store = f'buffer_store_dword v{q}, v{l4}, {srd(sWS)}, s{s_st} offen sc1'
        def acc(b, n): return ACC + 4*(6*b + n)
        A2 = 208
        def reads(s, st, slot=0):
            x, w, o = (ax, awq, STG*slot) if slot < 2 else (A2, A2+2, 0)
            X = [f'ds_read_b128 {vr(FX[st]+4*b,4)}, v{x+s} offset:{o+2048*b}' for b in range(4)]
            W = [[f'ds_read_b64_tr_b16 {vr(FW[st]+4*n+2*t,2)}, v{w+(n&1)} offset:{o+(n>>1)*8192+(32*s+4*t)*128}' for t in range(2)] for n in range(6)]
            L = [X[0]] + W[0] + X[1:]
            for n in range(1, 6): L += W[n]
            return L
        def mfma(st, b, n, zero=False):
            C = None if zero else acc(b, n)
            return mf16(acc(b, n), FW[st]+4*n, FX[st]+4*b, C) if n < 4 else mf16(acc(b, n), FX[st]+4*b, FW[st]+4*n, C)
        def mfmas(st, zero=False):
            return [mfma(st, b, n, zero) for n in range(6) for b in (range(4) if not (self.snake and n % 2) else range(3, -1, -1))]
        env = dict(locals())
        a.extend(self.w_frag_addr(awq, s_wh, 0, t0, t1, t2))
        self.epiA(env, 'v')
        if self.st0 & 8: x0()
        a(f'v_mov_b32 v{q}, -1'); a(st_store)
        a(f's_sub_u32 s{s_st}, s{s_st}, 262144')
        a.label('L_first')
        a('s_barrier')
        self.stamp(12)
        if self.st0 & 16: self.cond([f's_cmp_eq_u32 s{s_l}, 0'], x0)
        S = autowait(reads(0, 0) + interleave(mfmas(0, True), reads(1, 1), per=[0]*4 + [1]*20))
        cut = [k for k, t in enumerate(S) if t.startswith('v_mfma')][self.fpos-1] + 1
        a.extend(S[:cut])
        a('s_waitcnt vmcnt(0)')
        self.stamp(11)
        self.cond([f's_cmp_lg_u32 s{s_l}, 0'], lambda: self.flag_set(s_fo, one))
        a.extend(S[cut:])
        if self.xl: self.cond([f's_cmp_eq_u32 s{s_l}, 0'], lambda: [a(f'ds_read_b128 {vr(XR+8*tb+4*e,4)}, v{T+9} offset:{2048*tb+64*e}') for tb in range(2) for e in range(2)])
        a('s_waitcnt lgkmcnt(0)')
        S = [f'v_add_u32 v{A2+k}, {2*STG}, v{ax+k}' for k in range(4)] + [f's_mov_b32 s{s_i}, 0']
        assert awq == ax + 2
        S += sx(s_t, [(s_l, 1 << 22), (s_m, 1 << 18)], WS_OI)
        S += sx(s_obase, [(s_wave, 1 << 16), (s_t, 1)]) + [f's_lshl_b32 s{s_ooff}, s{s_rot2}, 11']
        S += [f's_add_u32 s{s_ob}, s{s_obase}, s{s_ooff}', f's_add_u32 s{s_ob+1}, s{s_ob}, 32768']
        S += sx(s_a, [(s_wm, 1 << 17), (s_g, 2048), (s_wh, 1024), (s_t, 1)])
        S += sx(s_o, [(s_g, 16384), (s_wave, 4096), (s_t, 1)], WS_XI - WS_OI) + [f's_add_u32 s{s_o+k}, s{s_o}, {1024*k}' for k in range(1, 4)]
        S += sx(s_fp, [(s_l, 8192), (s_m, 256)]) + sx(s_fo, [(s_g, 16), (s_wave, 4), (s_fp, 1)]) + sx(s_fo+1, [(s_fo, 32)], WS_RF) + [f's_lshl_b32 s{s_fo}, s{s_fo}, {self.ls}']
        S += sx(s_t, [(s_wm, 8), (s_rot2, 16)]) + [f's_add_u32 s{s_fp}, s{s_fp}, s{s_t}']
        a.extend(interleave(mfmas(1), S, per=[2]*20 + [3]*4))
        if self.lfl == 2: self.cond([f's_cmp_lg_u32 s{s_l}, 0'], lambda: (a(f's_sub_u32 s{s_t+1}, s{s_fo+1}, {4096*32}'), self.flag_set(s_t, one, 2)))
        a(f's_bitcmp1_b32 s{s_l}, 0'); a('s_cbranch_scc1 L_preB')
        self.epiA(env, 's')
        a('s_branch L_pre_done')
        a.label('L_preB')
        self.epiB(env, 's')
        def last():
            a(f's_mov_b64 s[{sOUT}:{sOUT+1}], s[{pOUT}:{pOUT+1}]'); a(f's_mov_b32 s{sOUT+2}, {2048*1024*2}')
            a.extend(sx(s_o, [(s_m, 1 << 18), (s_wave, 1 << 16), (s_g, 128)]))
            a(f's_add_u32 s{s_o+1}, s{s_o}, 64'); a(f's_add_u32 s{s_o+2}, s{s_o}, 32768'); a(f's_add_u32 s{s_o+3}, s{s_o}, {32768+64}')
            a(f'v_mov_b32 v{vst}, v{voffR}')
        self.cond([f's_cmp_eq_u32 s{s_l}, 3'], last)
        a.label('L_pre_done')
        a(f's_add_u32 s{s_st}, s{s_st}, 262144')
        if self.xd is not None: a(f's_cmp_eq_u32 s{s_l}, 0'); a(f's_cselect_b32 s{s_rslot}, 6, 0'); a('s_cbranch_scc1 L_go')
        a.extend(stats()); a(st_store)
        a.label('L_go')
        R1 = reads(0, 0, 1); isX = lambda t: 'b128' in t
        if self.spec & 4:
            a(f's_cmp_eq_u32 s{s_l}, 0'); a('s_cbranch_scc1 L_go0')
            a.extend([t for t in R1 if not isX(t)])
            a('s_barrier')
            self.stamp(1)
            a.extend([t for t in R1 if isX(t)])
            a('s_branch L_q1')
            a.label('L_go0')
        a('s_barrier')
        self.stamp(1)
        a.extend(R1)
        a('s_branch L_q1')
        nb = self.bpos + 1
        def half0(slot):
            if self.prof >= 5:
                a('s_memtime s[92:93]' if self.prof == 5 else 's_memrealtime s[92:93]'); a(f's_lshl_b32 m0, s{s_l}, 4'); a(f's_add_u32 m0, m0, s{s_i}'); a(f's_add_u32 m0, m0, {(slot+2)%3+1}')
            if self.probe and self.probe[1][1] >= 20 and (self.probe[1][1] - 20) % 3 == slot:
                self.cond([f's_cmp_eq_u32 s{s_i}, {(self.probe[1][1] - 21) // 3 * 3}'], lambda: self.stamp(self.probe[1][1]))
            if slot == self.xd:
                a(f's_cmp_lt_u32 s{s_i}, s{s_rslot}'); a('s_cbranch_scc1 L_x0'); a.label('L_x0_back')
                def ev():
                    a = self.a
                    a.label('L_x0'); a(f's_cmp_eq_u32 s{s_i}, 0'); a('s_cbranch_scc0 L_x0_stats')
                    x0(); a('s_branch L_x0_back')
                    a.label('L_x0_stats'); a('s_waitcnt vmcnt(0)'); a.extend(stats()); a(st_store); a('s_branch L_x0_back')
                self.aside(ev)
            a('s_waitcnt lgkmcnt(0)')
            F = reads(1, 1, slot)
            if self.prof >= 5: F = ['v_writelane_b32 v255, s92, m0'] + F
            if slot == 0: F += [f's_add_u32 s{s_i}, s{s_i}, 3', f's_cmp_lt_u32 s{s_i}, 15']
            a.extend(interleave(mfmas(0), F, per=[0]*self.r0 + [1]*24))
            a('s_waitcnt lgkmcnt(0)')
            a.extend(mfmas(1)[:nb]); a('s_barrier')
        def half1(slot):
            R = reads(0, 0, (slot+1) % 3)
            a(R[0]); a.extend(interleave(mfmas(1)[nb:], R[1:], per=[1]*24))
        a('.p2align 6')
        a.label('L_q')
        half1(0)
        a.label('L_q1')
        half0(1); half1(1); half0(2); half1(2); half0(0)
        a('s_cbranch_scc1 L_q')
        a.label('L_tail')
        self.stamp(2)
        a(f's_bitcmp1_b32 s{s_l}, 0'); a('s_cbranch_scc1 L_epiB')
        self.epiA(env, False)
        a('s_branch L_ophase')
        a.label('L_epiB')
        self.epiB(env, False)
        a.label('L_ophase')
        PD = self.pd; NR = PD + 1
        OA, OW, awo, vf, RING = 128, [160, 176], 192, 196, 32
        assert RING + 8*NR <= 128
        u0, u1, u2, vrf, vot, vxw = 197, 198, 199, 204, 205, 206
        a(f'v_mov_b32 v{u0}, {P_MODE}'); a(f'ds_read_b32 v{u0}, v{u0}')
        def oacc(tb, nb): return OA + 16*tb + 4*nb
        for k in range(4):
            a(sw16(XR+4*k, XR+4*k+2)); a(sw16(XR+4*k+1, XR+4*k+3))
        a('s_waitcnt lgkmcnt(0)'); a(f'v_readfirstlane_b32 s{s_fast}, v{u0}')
        a(f's_xor_b32 s{s_t}, s{s_fp}, 128'); a.extend(sx(s_e, [(s_t, 32)], WS_RF))
        a.extend(self.flag_addr(vrf, u1, None, remote=True))
        a.extend(self.flag_addr(vf, u1, s_fp))
        s_fq = s_d
        a(f's_cmp_eq_u32 s{s_fast}, 1'); a(f's_cselect_b32 s{s_fq}, s{s_fp}, {BIG}')
        for r in range(16):
            a(f'v_lshlrev_b32 v{OA+2*r}, 16, v{XR+r}'); a(f'v_and_b32 v{OA+2*r+1}, 0xffff0000, v{XR+r}')
        def oreads(h):
            return [f'ds_read_b64_tr_b16 {vr(OW[h&1]+4*nb+2*t,2)}, v{awo+nb} offset:{(h&15)*4096+512*t}' for nb in range(4) for t in range(2)]
        a('s_waitcnt vmcnt(0)')
        self.stamp(8)
        self.flag_set(s_fo, one, 1)
        a(self.flag_load(s_fq, vf, u0, self.pf))
        self.flag_set(s_fo, one, 2)
        a.extend(self.w_frag_addr(awo, None, L_WO, vxw, u1, u2, nb_list=(0, 1, 2, 3)))
        if not self.bw: a('s_barrier'); a.extend(oreads(0))
        def next_consts():
            a(f's_cmp_eq_u32 s{s_wh}, 0'); a('s_cselect_b64 vcc, -1, 0')
            for k in range(2): a(f'v_cndmask_b32 v{awq+k}, v{awo+2+k}, v{awo+k}, vcc')
            for k in range(2): a(f'v_subrev_u32 v{awq+k}, {L_WO}, v{awq+k}')
            a.extend(sx(s_t, [(s_wm, 8192)], XOFF)); a(f'v_add_u32 v{ax}, s{s_t}, v{l16}'); a(f'v_add_u32 v{ax+1}, 1024, v{ax}')
            a.extend(sx(s_t, [(s_wave, 4096)], XOFF)); a(f'v_add_u32 v{vxw}, s{s_t}, v{voffI}')
            a(f's_bitcmp1_b32 s{s_l}, 0'); a('s_cbranch_scc1 L_nextA')
            self.epiB(env, 'v')
            a('s_branch L_next_done')
            a.label('L_nextA')
            self.cond([f's_cmp_lg_u32 s{s_l}, 3'], lambda: self.epiA(env, 'v'))
            a.label('L_next_done')
        if not self.vpos: next_consts()
        self.flag_wait(s_fp, vf, u0, 4, pre='s_waitcnt vmcnt(1) lgkmcnt(0)', own=True)
        self.stamp(9)
        def oload(h, tb):
            L = [f'buffer_load_dwordx4 {vr(RING+8*(h%NR)+4*tb,4)}, v{l16}, {srd(sWS)}, s{s_ob+tb} offen offset:{1024*(h&3)} sc1']
            if h & 3 == 3 and h < 31:
                if tb == 0: L += [f's_add_u32 s{s_ooff}, s{s_ooff}, 4096', f's_and_b32 s{s_ooff}, s{s_ooff}, 0x7fff', f's_add_u32 s{s_ob}, s{s_obase}, s{s_ooff}']
                else: L += [f's_add_u32 s{s_ob+1}, s{s_ob}, 32768']
            return L
        S = []
        for h in range(PD):
            S += oload(h, 0) + oload(h, 1)
            if self.bw and h == 3: S += ['s_barrier'] + oreads(0)
        S.append('s_nop 2')
        hc = self.hc or 15 - PD
        DL = self.dl; assert DL <= PD and DL % 2 == 0
        UN = [(p, nb) for p in range(32 - DL) for nb in range(4)] + [(p, nb) for e in range(2) for p in range(32 - DL, 32) for nb in (2*e, 2*e+1)]
        def out(k4):
            return [cvt(XR+4*k4+k, OA+8*k4+2*k, OA+8*k4+2*k+1) for k in (0, 2, 1, 3)], [sw16(XR+4*k4, XR+4*k4+2), sw16(XR+4*k4+1, XR+4*k4+3)], [
                    f'buffer_store_dwordx4 {vr(XR+4*k4,4)}, v{vst}, {srd(sOUT)}, s{s_o+k4} offen sc1', f'ds_write_b128 v{vxw}, {vr(XR+4*k4,4)} offset:{1024*k4}']
        early = (out(0)[0] + out(2)[0][:2] + out(0)[1] + out(2)[0][2:] + out(0)[2][:1] + out(2)[1] + out(0)[2][1:] + out(2)[2]) if DL else []
        for h in range(32):
            if h == 15: S += [f'v_add_u32 v{awo+nb}, 0x10000, v{awo+nb}' for nb in range(4)]
            for k in range(8):
                u, tb = 4*h + k//2, k % 2
                p, nb = UN[u]
                S.append(mf16(oacc(tb, nb), OW[0]+4*(u%8), RING+8*(p%NR)+4*tb, oacc(tb, nb)))
                if u + 4 < 128:
                    p2, nb2 = UN[u+4]
                    S.append(f'ds_read_b64_tr_b16 {vr(OW[0]+4*((u+4)%8)+2*tb,2)}, v{awo+nb2} offset:{(p2&15)*4096+512*tb}')
                for j in range(2):
                    if k == self.opos[j] and h + PD < 32 and not (h + PD >= 16 and h <= hc): S += oload(h+PD, j)
                if 2*u + tb >= 256 - 4*DL + 2:
                    n = 2
                    S += early[:n]; early = early[n:]
            if h == self.hq: S.append(self.flag_load(s_e, vrf, u1))
            if h == hc:
                S += [f'v_cmp_eq_u32 vcc, 0, v{u1}', 's_nop 1']
                for p in range(16, hc + PD + 1): S += oload(p, 0) + oload(p, 1)
            if self.fine == 4 and h in self.oh: S.append(f's_nop {4 + self.oh.index(h)}')
            if h == self.bm: S.append('s_barrier')
        S = autowait(S + early); cut0 = S.index('s_nop 2'); cut = S.index('s_nop 1'); S.pop(cut)
        a.extend(S[:cut0])
        if self.vpos: next_consts()
        def emit(L):
            for t in L:
                if t in ('s_nop 4', 's_nop 5'): self.stamp(13 + int(t[-1]) - 4)
                else: a(t)
        emit(S[cut0+1:cut])
        self.flag_wait(s_e, vrf, u1, 9, pre=True, nap=self.nap, checked=True)
        emit(S[cut:])
        self.stamp(10)
        self.sw(sum((sum(out(k4), []) for k4 in ((1, 3) if DL else (0, 2, 1, 3))), []), crit=lambda t: t.startswith('buffer'))
        a(f's_cmp_eq_u32 s{s_l}, 3'); a('s_cbranch_scc1 L_fin')
        a(f's_add_u32 s{s_fo}, s{s_fo}, {4096 << self.ls}'); a(f's_add_u32 s{s_fo+1}, s{s_fo+1}, {4096*32}')
        a(f's_add_u32 s{s_l}, s{s_l}, 1')
        a('s_waitcnt lgkmcnt(0)')
        a('s_branch L_first')

    def epiA(self, E, pre):
        a = self.a
        acc = E['acc']; a_tok, a_row, a_t32, a_csr, a_csv, l16, l4 = (E[k] for k in ('a_tok', 'a_row', 'a_t32', 'a_csr', 'a_csv', 'l16', 'l4'))
        s_wm, s_wh, s_a, s_b, s_c, s_d, s_e = (E[k] for k in ('s_wm', 's_wh', 's_a', 's_b', 's_c', 's_d', 's_e'))
        PK = [128, 144]; EP, KV0, ZA, NR = 160, 176, 192, 208
        wphi, nml, c32, csv = 224, 232, 236, 238
        SEL = 240; ZK, ZS = ZA, ZA + 8
        a_phi, a_w, a_r0, a_r1, a_z, x_w, x_r = range(248, 255)
        csk = EP; csq = NR
        nmr = [KV0, EP+8, NR, NR+8]
        if pre == 'v':
            u0, u1, u2, u3, u4 = range(208, 213)
            S = [f'v_lshrrev_b32 v{u0}, 5, v1', f'v_bfe_u32 v{u1}, v1, 2, 2', f'v_lshl_add_u32 v{u1}, v{u0}, 3, v{u1}',
                 f'v_bfe_u32 v{u2}, v1, 4, 1', f'v_and_b32 v{u3}, 3, v1', f'v_lshlrev_b32 v{u4}, 3, v{u3}', f'v_lshl_add_u32 v{u2}, v{u2}, 5, v{u4}']
            S += sx(s_t, [(s_wh, 2048)], P_PHI) + [f'v_lshl_add_u32 v{u4}, v{u1}, 6, v{u2}', f'v_add_u32 v{a_phi}, s{s_t}, v{u4}']
            S += [f's_mul_i32 s{s_t+2}, s{s_wave}, {SCR}',
                  f'v_mul_u32_u24 v{u1}, 136, v{u1}', f'v_add3_u32 v{u1}, v{u1}, v{u2}, s{s_t+2}',
                  f's_lshl_b32 s{s_t+1}, s{s_wm}, 6', f'v_add_u32 v{a_r0}, s{s_t+1}, v{u1}',
                  f's_xor_b32 s{s_t+3}, s{s_t+1}, 64', f'v_add_u32 v{a_r1}, s{s_t+3}, v{u1}',
                  f'v_and_b32 v{u4}, 31, v1', f'v_mul_u32_u24 v{u4}, 136, v{u4}', f'v_lshl_add_u32 v{u4}, v{u0}, 3, v{u4}', f'v_add_u32 v{a_w}, s{s_t+2}, v{u4}',
                  f'v_add_u32 v{x_w}, s{s_t+2}, v{l16}', f's_xor_b32 s{s_t}, s{s_wave}, 2', f's_mul_i32 s{s_t}, s{s_t}, {SCR}', f'v_add_u32 v{x_r}, s{s_t}, v{l16}']
            S += [f'v_lshrrev_b32 v{u4}, 4, v1', f'v_xor_b32 v{u4}, v{u4}, v1', f'v_and_b32 v{u4}, 1, v{u4}', f'v_cmp_eq_u32 vcc, 0, v{u4}', f'v_mov_b32 v{u4}, 0x3f803f80',
                  f'v_cndmask_b32 v{SEL}, 0, v{u4}, vcc', f'v_mov_b32 v{SEL+1}, v{SEL}', f'v_mov_b64 {vr(SEL+2,2)}, {vr(SEL,2)}']
            S += [f'v_and_b32 v{u0}, 18, v1', f'v_lshlrev_b32 v{u0}, 1, v{u0}', f'v_and_or_b32 v{u0}, v1, 8, v{u0}', f'v_and_b32 v{u1}, 4, v1',
                  f'v_lshl_or_b32 v{u0}, v{u1}, 2, v{u0}', f'v_and_b32 v{u1}, 33, v1', f'v_lshl_or_b32 v{a_z}, v{u1}, 25, v{u0}',
                  f'v_lshl_or_b32 v{a_z}, v{u1}, 30, v{a_z}']
            a.extend(S)
            return
        if pre == 's':
            S = sx(s_t, [(s_l, 16), (s_g, 2), (s_wh, 1)])
            S += sx(s_d, [(s_t, 65536), (s_wm, 32768), (s_m, 2048)], WS_KVP) + sx(s_e, [(s_t, 2048), (s_m, 128), (s_wm, 64)], WS_ZP)
            S += sx(s_b, [(s_t, 128)], WS_ZF) + sx(s_c, [(s_t, 4096)], WS_KVF)
            if self.hu is not None: S += sx(E['s_delta'], [(s_l, 16384), (s_g, 2048), (s_m, 128), (s_wave, BIG >> 1)], WS_HU)
            a.extend(S)
            return
        S = []
        for b in range(4): S.append(f'ds_read_b32 v{nml+b}, v{a_tok} offset:{64*b}')
        for nb in range(2): S.append(f'ds_read_b128 {vr(csk+4*nb,4)}, v{a_csr} offset:{256+64*nb}')
        for u in range(2):
            for t in range(2): S.append(f'ds_read_b64_tr_b16 {vr(wphi+4*u+2*t,2)}, v{a_phi} offset:{(16*t+4*u)*64}')
        for nb in range(2): S.append(f'ds_read_b32 v{csv+nb}, v{a_csv} offset:{512+64*nb}')
        for b in range(4):
            S.append(f'ds_read_b128 {vr(nmr[b],4)}, v{a_row} offset:{64*b}')
            S.append(f'ds_read_b128 {vr(nmr[b]+4,4)}, v{a_row} offset:{512+64*b}')
            if b == 0:
                for Tt in range(2): S.append(f'ds_read_b32 v{c32+Tt}, v{a_t32} offset:{512+128*Tt}')
        def qk_prep(n0, cs):
            L = []
            for b in range(4):
                for k in range(4): L.append(pk('fma', acc(b, n0)+2*k, cs+2*k, ('b', nml+b), acc(b, n0)+2*k))
                for k in range(4): L.append(cvt(acc(b, n0)+k, acc(b, n0)+2*k, acc(b, n0)+2*k+1))
            for Tt in range(2):
                for k in range(4): L.append(sw16(acc(2*Tt, n0)+k, acc(2*Tt+1, n0)+k))
                L += [mf32(PK[Tt], wphi, acc(2*Tt, n0)), mf32(PK[Tt], wphi+4, acc(2*Tt+1, n0), PK[Tt])]
            return L
        def vprep(b):
            r = acc(b, 4); P, C = [], []
            for nb in range(2):
                for p in range(2): P.append(pk('fma', r+4*nb+2*p, nmr[b]+2*p, ('b', csv+nb), r+4*nb+2*p))
            for nb in range(2):
                for p in range(2): P.append(pk('mul', r+4*nb+2*p, r+4*nb+2*p, nmr[b]+4+2*p))
            for k in range(4): C.append(cvt(r+k, r+2*k, r+2*k+1))
            return P, C, [sw16(r, r+2), sw16(r+1, r+3)]
        def softmax(Tt):
            x = PK[Tt]; c = c32 + Tt
            ta, tb = ((acc(2, 3), acc(3, 3)), (acc(2, 2), acc(3, 2)))[Tt]
            mx, mn, bp, bm = ta, ta+1, tb, tb+1
            L = [f'v_max3_f32 v{mx}, v{x}, v{x+1}, v{x+2}', f'v_max3_f32 v{mn}, -v{x}, -v{x+1}, -v{x+2}']
            for k in range(3, 15, 2):
                L += [f'v_max3_f32 v{mx}, v{mx}, v{x+k}, v{x+k+1}', f'v_max3_f32 v{mn}, v{mn}, -v{x+k}, -v{x+k+1}']
            L += [f'v_max_f32 v{mx}, v{mx}, v{x+15}', f'v_max_f32 v{mn}, v{mn}, -v{x+15}']
            L += [sw32(mx, mn), f'v_max_f32 v{mx}, v{mx}, v{mn}', f'v_mul_f32 v{bm}, -v{mx}, v{c}', f'v_mov_b32 v{bp}, v{bm}', sw32(bp, bm)]
            parts = [L]; L = []
            for k in range(0, 16, 2): L.append(pk('fma', EP+k, x+k, ('b', c), ('b', bp)))
            for k in range(0, 16, 2): L.append(pk('fma', x+k, x+k, ('b', c), ('b', bm), neg=[1, 0, 0]))
            parts.append(L); L = []
            for k in range(16): L.append(f'v_exp_f32 v{EP+k}, v{EP+k}')
            for k in range(16): L.append(f'v_exp_f32 v{x+k}, v{x+k}')
            parts.append(L); L = []
            sp, sm = ta, ta+2
            r1, r2 = tb+2, tb+3
            L += [pk('add', sp, EP, EP+2), pk('add', sm, x, x+2)]
            for k in range(4, 16, 2): L += [pk('add', sp, sp, EP+k), pk('add', sm, sm, x+k)]
            L += [f'v_add_f32 v{sp}, v{sp}, v{sp+1}', f'v_add_f32 v{sm}, v{sm}, v{sm+1}', sw32(sp, sm), f'v_add_f32 v{sp}, v{sp}, v{sm}',
                  f'v_rcp_f32 v{r2}, v{sp}', f'v_mov_b32 v{r1}, v{r2}', sw32(r1, r2)]
            for k in range(0, 16, 2): L.append(pk('mul', x+k, x+k, ('b', r2)))
            for k in range(8): L.append(cvt(x+k, x+2*k, x+2*k+1))
            for k in range(0, 16, 2): L.append(pk('mul', EP+k, EP+k, ('b', r1)))
            for k in range(8): L.append(cvt(x+8+k, EP+2*k, EP+2*k+1))
            return parts + [L]
        FR = [[acc(0, 2), acc(0, 3)], [acc(1, 2), acc(1, 3)]]
        def to_lds(x):
            return [f'ds_write_b64 v{a_w}, {vr(x+8*(1-sg)+2*j,2)} offset:{64*sg+16*j}' for sg in (1, 0) for j in range(4)]
        def frags():
            return [f'ds_read_b64_tr_b16 {vr(FR[k][u]+2*tt,2)}, v{(a_r0, a_r1)[k]} offset:{(16*u+4*tt)*136}' for k in (1, 0) for u in range(2) for tt in range(2)]
        KV1 = PK[0]
        def kvm(Tt):
            L = []
            for k, K, Z in ((1, KV1, ZS), (0, KV0, ZK)):
                for u in range(2): L.append(mf32(K, FR[k][u], acc(2*Tt+u, 4), None if (Tt == 0 and u == 0) else K))
                for u in range(2): L.append(mf16(Z, SEL, FR[k][u], None if (Tt == 0 and u == 0) else Z))
            return L
        sc = sched if self.sch else (lambda L: L)
        K = qk_prep(2, csk); isM = lambda t: t.startswith('v_mfma')
        VP_ = [vprep(b) for b in range(4)]
        sm0, sm1 = softmax(0), softmax(1)
        mfma = E['mfma']
        TM = [mfma(1, b, n) for b in range(4) for n in (2, 3)] + [mfma(1, b, n) for b in range(4) for n in (4, 5)] + [mfma(1, b, 1) for b in range(4)] + [mfma(1, b, 0) for b in range(self.bpos+1, 4)]
        K01 = []
        for b in range(2):
            K01 += [f'v_fmac_f32 v{acc(b,2)+k}, v{csk+k}, v{nml+b}' for k in range(8)] + K[8*b+4:8*b+8]
        S = interleave(TM, S + K01, per=[2]*24)
        S += sc([t for t in K[16:] if not isM(t)] + [f'v_mul_f32 v{c32+Tt}, {f2u(LOG2E)}, v{c32+Tt}' for Tt in range(2)] + VP_[0][0] + VP_[1][0])
        def cutA(n, k):
            nonlocal S
            if self.fine == n: self.aw(S + ['s_waitcnt lgkmcnt(0)']); S = []; self.stamp(k)
        cutA(1, 12)
        S += sc([t for t in K if isM(t)] + VP_[0][1] + VP_[1][1] + VP_[0][2] + VP_[1][2] + sm0[0])
        cutA(1, 13)
        def mixed(sm, extra):
            F, X, A = sm[1], sm[2], sm[3][:14]
            A = A[0::2] + A[1::2]; extra = list(extra); L = F[:2]
            for k in range(16):
                L += [X[2*k]] + F[k+2:k+3] + [X[2*k+1]]
                j = k - 2 if k < 9 else k - 3
                if k >= 2 and k != 9: L.append(A[j])
                if extra: L.append(extra.pop(0))
            return L + extra + A[13:]
        if self.mix: S += mixed(sm0, sm1[0][:16]) + sc(sm1[0][16:] + sm0[3][14:] + to_lds(PK[0]) + frags())
        else: S += sc(sm0[1] + sm0[2] + sm1[0] + sm0[3] + to_lds(PK[0]) + frags())
        cutA(1, 14)
        if self.mix: S += sm1[1][:2] + interleave(sm1[2][:14], sm1[1][2:], per=[1]*14) + interleave(kvm(0), sm1[2][14:], per=[3, 3, 1, 1, 3, 3, 1, 3])
        else: S += sm1[1] + interleave(kvm(0), sm1[2], per=[3, 3, 1, 1, 3, 3, 1, 1])
        cutA(2, 12)
        S += sc(sm1[3] + to_lds(PK[1]) + frags() + sum((VP_[b][k] for k in range(3) for b in (2, 3)), []), lambda t: t.startswith('ds_read'))
        cutA(2, 13)
        M = kvm(1)
        X = [f'ds_write_b128 v{x_w}, {vr(KV1+4*k,4)} offset:{1024*k}' for k in range(4)]
        hi16 = ['s_mov_b32 vcc_lo, 0xffff0000', 's_mov_b32 vcc_hi, 0xffff0000']
        S += M[0:2] + hi16 + M[2:6] + X + [f'v_cndmask_b32 v{ZS}, v{ZS}, v{ZS+1}, vcc', f'ds_write_b32 v{x_w}, v{ZS} offset:4096'] + M[6:8]
        cutA(2, 14)
        if self.hu is not None: S.insert(len(S) - self.hu, f'buffer_store_dword v0, off, {srd(sWS)}, s{E["s_delta"]} sc1')
        self.aw(S); S = []
        S += ['s_waitcnt lgkmcnt(0)', 's_barrier']
        S.append(f'ds_read_b32 v{csv}, v{x_r} offset:4096')
        for k in range(4): S.append(f'ds_read_b128 {vr(EP+4*k,4)}, v{x_r} offset:{1024*k}')
        add = [pk('add', KV0+2*k, KV0+2*k, EP+2*k) for k in range(8)]
        cv = [cvt(KV0+8*(k//4)+k%4, KV0+2*k, KV0+2*k+1) for k in range(8)]
        st = [f'buffer_store_dwordx4 {vr(KV0+8*u,4)}, v{l16}, {srd(sWS)}, s{s_d} offen offset:{1024*u} sc1' for u in range(2)]
        S += [f'v_cndmask_b32 v{ZK}, v{ZK}, v{ZK+1}, vcc', f'v_add_f32 v{ZK}, v{ZK}, v{csv}'] + add[:2]
        S += [f'v_mov_b32_dpp v{ZK+3}, v{ZK} quad_perm:[1,0,3,2] row_mask:0xf bank_mask:0xf'] + add[2:4] + cv[:4] + st[:1] + [cvt(ZK, ZK, ZK+3)]
        S += add[4:] + [f'buffer_store_dword v{ZK}, v{a_z}, {srd(sWS)}, s{s_e} offen sc1'] + cv[4:] + st[1:]
        self.aw(S); S = []
        if not self.yw: a('s_barrier')
        self.stamp(3)
        u3, u4 = ZA + 4, ZA + 5
        for nb in range(2): S.append(f'ds_read_b128 {vr(csq+4*nb,4)}, v{a_csr} offset:{64*nb}')
        S += qk_prep(0, csq) + sum(softmax(0) + softmax(1), [])
        S += [f'v_lshrrev_b32 v{u3}, 5, v1', f'v_and_b32 v{u4}, 2, v1', f'v_lshlrev_b32 v{u4}, 5, v{u4}', f'v_lshl_add_u32 v{a_z}, v{u3}, 4, v{u4}',
              f'v_not_b32 v{u4}, v{SEL}', f'v_and_b32 v{u4}, 0x20000000, v{u4}', f'v_lshl_or_b32 v{a_z}, v{u4}, 1, v{a_z}',
              f'v_bfe_u32 v{u4}, v1, 4, 1', f'v_lshlrev_b32 v{u4}, 15, v{u4}', f'v_lshl_add_u32 v{u4}, v{u3}, 8, v{u4}',
              f'v_and_b32 v{u3}, 15, v1', f'v_lshl_add_u32 v{a_w}, v{u3}, 4, v{u4}', f's_add_u32 s{s_d}, s{s_a}, 65536']
        if self.yw:
            S = sched(S); S[self.yw:self.yw] = (['s_waitcnt vmcnt(0)'] if self.yv else []) + ['s_barrier']; self.aw(S); S = []
        else: self.sw(S, name='A q-part'); S = []
        self.stamp(4)
        a('s_barrier')
        self.stamp(7)
        KF = KV0; ZF = EP
        ACC = E['ACC']
        den, num, rcp, fin = [], [], [], []
        for Tt in range(2):
            N, DP, DM = ACC + 48*Tt, ACC + 48*Tt + 16, ACC + 48*Tt + 32
            x = PK[Tt]
            den.append([mf16(DP, ZF, x+8), mf16(DM, ZF, x), mf16(DP, ZF+4, x+12, DP), mf16(DM, ZF+4, x+4, DM)])
            num.append([mf32(N, KF, x+8), mf32(N, KF+4, x+12, N), mf32(N, KF+8, x, N), mf32(N, KF+12, x+4, N)])
            rcp.append([f'v_add_f32 v{DP}, v{DP}, v{DM+2}', f'v_add_f32 v{DP+1}, v{DP+1}, v{DM+3}', f'v_cndmask_b32 v{DP}, v{DP}, v{DP+1}, vcc',
                        f'v_add_f32 v{DP}, {f2u(1e-6)}, v{DP}', f'v_rcp_f32 v{DP}, v{DP}'])
            L = []
            for p in range(2):
                R = [(N + 4*(p + 2*jj) + 2*k, DM+4+4*p+2*jj+k) for jj in range(2) for k in range(2)]
                for r, d in R:
                    if Tt == 0: L += [f'v_mul_f32 v{r}, v{DP}, v{r}', f'v_mul_f32 v{r+1}, v{DP}, v{r+1}']
                    else: L.append(pk('mul', r, r, ('b', DP)))
                L += [cvt(d, r, r+1) for r, d in R]
                L.append(f'buffer_store_dwordx4 {vr(DM+4+4*p,4)}, v{a_w}, {srd(sWS)}, s{(s_a, s_d)[Tt]} offen offset:{512*p} sc1')
            fin.append(L)
        if self.b2: a(f's_sleep {self.b2}')
        self.ll_wait(([f's_sleep {self.n2}'] if self.n2 else []) + [f'buffer_load_dwordx4 {vr(ZF+4*u,4)}, v{a_z}, {srd(sWS)}, s{s_b} offen offset:{32*u} sc1' for u in range(2)] +
                     [f'buffer_load_dwordx4 {vr(KF+4*k,4)}, v{l16}, {srd(sWS)}, s{s_c} offen offset:{1024*k} sc1' for k in range(4)],
                     list(range(ZF, ZF+8)) + list(range(KF, KF+16)), u3, u4, 5, under=(den[0] + num[0]) if self.spec & 1 else None, per=[1, 1, 1, 1, 2, 2, 2, 4])
        self.stamp(5)
        a.extend(([] if self.spec & 1 else den[0] + num[0]) + interleave(den[1], hi16 + rcp[0], per=[2, 2, 2, 1]))
        a.extend(interleave(num[1], fin[0][:13] + rcp[1] + fin[0][13:], per=[6, 6, 6, 13]) + fin[1])
        self.stamp(6)

    def epiB(self, E, pre):
        a = self.a
        acc = E['acc']; a_tok, a_row, a_csr, a_csv, l16 = (E[k] for k in ('a_tok', 'a_row', 'a_csr', 'a_csv', 'l16'))
        s_wm, s_wh, s_a, s_b, s_c, s_d, s_e = (E[k] for k in ('s_wm', 's_wh', 's_a', 's_b', 's_c', 's_d', 's_e'))
        BI, BI0, MK, a_h = 236, 244, 248, 252
        if pre == 'v':
            t1, t2, t3 = 208, 209, 210
            S = [f'v_and_b32 v{t1}, 15, v1', f'v_lshrrev_b32 v{t2}, 4, v1', f'v_lshlrev_b32 v{t2}, 2, v{t2}', f'v_sub_u32 v{t1}, v{t1}, v{t2}',
                 f'v_mov_b32 v{t3}, {f2u(-1e30)}']
            for blk in range(2):
                for i in range(4):
                    S += [f'v_add_u32 v{t2}, {(16 if blk == 0 else 0) - i}, v{t1}', f'v_and_b32 v{t2}, -15, v{t2}', f'v_cmp_eq_u32 vcc, 0, v{t2}',
                          f'v_cndmask_b32 v{BI+4*blk+i}, v{t3}, 0, vcc']
                    if i % 2 == 0: S += [f'v_cndmask_b32 v{MK+2*blk+i//2}, 0, -1, vcc', f'v_lshrrev_b32 v{MK+2*blk+i//2}, 16, v{MK+2*blk+i//2}']
                    else: S += [f'v_cndmask_b32 v{t2}, 0, -1, vcc', f'v_lshl_or_b32 v{MK+2*blk+i//2}, v{t2}, 16, v{MK+2*blk+i//2}']
            S += [f's_or_b32 s{s_t}, s{s_m}, s{s_wm}', 's_cselect_b64 vcc, -1, 0']
            for i in range(4): S.append(f'v_cndmask_b32 v{BI0+i}, v{t3}, v{BI+i}, vcc')
            S += sx(s_t, [(s_wh, 2048)], P_PHI) + [f'v_add_u32 v{a_h}, s{s_t}, v{l16}']
            S += [f's_add_u32 s{s_t+1}, s{s_t}, 1024', f's_cmp_eq_u32 s{s_wm}, 0', f's_cselect_b32 s{s_t}, s{s_t}, {L_P + 7168}', f's_cselect_b32 s{s_t+1}, s{s_t+1}, {L_P + 7168}',
                  f'v_add_u32 v{a_h+1}, s{s_t}, v{l16}', f'v_add_u32 v{a_h+2}, s{s_t+1}, v{l16}']
            a.extend(S)
            return
        if pre == 's':
            S = sx(s_b, [(s_l, 1 << 19), (s_m, 1 << 16), (s_g, 4096), (s_wh, 2048)], WS_HALO - (1 << 19))
            S += [f's_add_u32 s{s_c}, s{s_b}, 65536', f's_cmp_eq_u32 s{s_m}, 15', f's_cselect_b32 s{s_c}, {BIG}, s{s_c}',
                  f's_cmp_eq_u32 s{s_wm}, 0', f's_cselect_b32 s{s_c}, {BIG}, s{s_c}', f's_cselect_b32 s{s_b}, s{s_b}, {BIG}',
                  f's_cmp_eq_u32 s{s_m}, 0', f's_cselect_b32 s{s_b}, {BIG}, s{s_b}', f's_add_u32 s{s_d}, s{s_a}, 65536']
            a.extend(S)
            return
        nr = [160, 168, 176, 208]
        nml, rsl, csk, csv, csq, HB = 216, 220, 224, 232, 128, 136
        VP = [184, 196]
        U, M, t1, t2 = 144, 152, 156, 157
        S = []
        for b in (3, 0, 1, 2):
            S += [f'ds_read_b32 v{nml+b}, v{a_tok} offset:{64*b}', f'ds_read_b32 v{rsl+b}, v{a_tok} offset:{512+64*b}']
            if b == 3:
                for nb in range(2): S.append(f'ds_read_b128 {vr(csk+4*nb,4)}, v{a_csr} offset:{768+256+64*nb}')
                for nb in range(2): S.append(f'ds_read_b32 v{csv+nb}, v{a_csv} offset:{768+512+64*nb}')
            S += [f'ds_read_b128 {vr(nr[b],4)}, v{a_row} offset:{64*b}', f'ds_read_b128 {vr(nr[b]+4,4)}, v{a_row} offset:{512+64*b}']
        for nb in range(2): S.append(f'ds_read_b128 {vr(csq+4*nb,4)}, v{a_csr} offset:{768+64*nb}')
        def kprep(b):
            r = acc(b, 2); L = []
            for k in range(4): L.append(pk('fma', r+2*k, csk+2*k, ('b', nml+b), r+2*k))
            for k in range(4): L.append(pk('mul', r+2*k, r+2*k, ('b', rsl+b)))
            for k in range(4): L.append(cvt(r+k, r+2*k, r+2*k+1))
            return L
        def vprep(b):
            r = acc(b, 4); L = []
            for nb in range(2):
                for p in range(2): L.append(pk('fma', r+4*nb+2*p, nr[b]+2*p, ('b', csv+nb), r+4*nb+2*p))
            for nb in range(2):
                for p in range(2): L.append(pk('mul', r+4*nb+2*p, r+4*nb+2*p, nr[b]+4+2*p))
            for nb in range(2):
                for p in range(2):
                    if b == 3: L.append(cvt(acc(3, 3)+2*nb+p, r+4*nb+2*p, r+4*nb+2*p+1))
                    else: L.append(cvt(VP[nb]+2+2*b+p, r+4*nb+2*p, r+4*nb+2*p+1))
            return L
        def qprep(b):
            r = acc(b, 0); L = []
            for k in range(4): L.append(pk('fma', r+2*k, csq+2*k, ('b', nml+b), r+2*k))
            for k in range(4): L.append(cvt(r+k, r+2*k, r+2*k+1))
            return L
        mfma = E['mfma']
        TM = [mfma(1, b, n) for b in (3, 0, 1, 2) for n in (2, 3, 4, 5)] + [mfma(1, b, 1) for b in range(4)] + [mfma(1, b, 0) for b in range(self.bpos+1, 4)]
        rk, rv = acc(3, 2), acc(3, 4)
        P3 = [f'v_fmac_f32 v{rk+k}, v{csk+k}, v{nml+3}' for k in range(8)] + [f'v_mul_f32 v{rk+k}, v{rsl+3}, v{rk+k}' for k in range(8)] + kprep(3)[8:]
        P3 += [f'v_fmac_f32 v{rv+k}, v{nr[3]+k%4}, v{csv+k//4}' for k in range(8)] + [f'v_mul_f32 v{rv+k}, v{nr[3]+4+k%4}, v{rv+k}' for k in range(8)] + vprep(3)[8:]
        S = S[:8] + [t for t in S[8:] if 'b32' in t] + S[-2:] + [t for t in S[8:-2] if 'b128' in t]
        T0 = interleave(TM, S[:14] + P3, per=[2]*24); S = S[14:]
        for k in range(2): T0.append(f'buffer_store_dwordx4 {vr(acc(3,2)+4*k,4)}, v{l16}, {srd(sWS)}, s{s_c} offen offset:{1024*k} sc1')
        for k in range(2): S.append(f'ds_write_b128 v{a_h+1+k}, {vr(acc(3,2)+4*k,4)}')
        fa, fv = 234, 235
        T0 += sx(s_t, [(s_wave, 4)], P_CNT) + [f'v_mov_b32 v{fa}, s{s_t}', f'v_mov_b32 v{fv}, s{s_l}']
        S.append(f'ds_write_b32 v{fa}, v{fv}')
        for nb in range(2): S.append(f'v_mov_b64 {vr(VP[nb]+8,2)}, {vr(acc(3,3)+2*nb,2)}')
        for b in range(3): S += kprep(b) + vprep(b)
        for b in range(4): S += qprep(b)
        for b in range(4): S.append(f'v_mul_f32 v{rsl+b}, {f2u(LOG2E * 32 ** -0.5)}, v{rsl+b}')
        def logits(b):
            sp, sc = acc(b, 1), (acc(b-1, 3) if b else nr[3])
            L = [mf16(sp, HB if b == 0 else acc(b-1, 2), acc(b, 0), BI0 if b == 0 else BI), mf16(sc, acc(b, 2), acc(b, 0), BI+4)]
            for p in range(2):
                L += [f'v_max3_f32 v{U+2*b+p}, v{sp+2*p}, v{sp+2*p+1}, v{sc+2*p}', f'v_max_f32 v{U+2*b+p}, v{U+2*b+p}, v{sc+1+2*p}',
                      f'v_mul_f32 v{U+2*b+p}, v{rsl+b}, v{U+2*b+p}']
            L.append(f'v_max_f32 v{M+b}, v{U+2*b}, v{U+2*b+1}')
            return L
        for b in (1, 2, 3): S += logits(b)
        L0 = logits(0); S.append(L0.pop(1))
        def allred(op, mid):
            L = [sw32(M, M+2), sw32(M+1, M+3), f'{op} v{M}, v{M}, v{M+2}', f'{op} v{M+1}, v{M+1}, v{M+3}', sw16(M, M+1), f'{op} v{M+1}, v{M}, v{M+1}']
            L += mid
            L += [f'v_mov_b32 v{M}, v{M+1}', sw16(M, M+1), f'v_mov_b64 {vr(M+2,2)}, {vr(M,2)}', sw32(M, M+2), sw32(M+1, M+3)]
            return L
        def pv(b):
            P = acc(b, 1); L = []
            for p in range(2): L.append(cvt(U+2*b+p, U+2*b+p, U+2*b+p))
            for blk in range(2):
                for p in range(2): L.append(f'v_and_b32 v{P+2*blk+p}, v{U+2*b+p}, v{MK+2*blk+p}')
            return L + [mf16(acc(b, 4)+4*db, VP[db]+2*b, P) for db in range(2)]
        def put(b):
            O = acc(b, 4)
            return [cvt(O+k, O+2*k, O+2*k+1) for k in range(4)] + [f'buffer_store_dwordx4 {vr(O,4)}, v{l16}, {srd(sWS)}, s{(s_a, s_e, s_d, s_c)[b]} offen sc1']
        ONE, SUM = nr[3] + 4, csk
        S += allred('v_max_f32', [])
        for b in (1, 2, 3): S.append(pk('add', U+2*b, U+2*b, ('b', M+b), neg=[0, 1]))
        for k in range(2, 8): S.append(f'v_exp_f32 v{U+k}, v{U+k}')
        for b in (1, 2, 3): S.append(f'v_add_f32 v{M+b}, v{U+2*b}, v{U+2*b+1}')
        S += allred('v_add_f32', [f'v_rcp_f32 v{M+1}, v{M+1}'])
        for b in (1, 2, 3): S.append(pk('mul', U+2*b, U+2*b, ('b', M+b)))
        S += pv(1) + pv(2) + pv(3) + [f's_add_u32 s{s_e}, s{s_a}, 32768', f's_add_u32 s{s_c}, s{s_d}, 32768'] + put(1) + put(2) + put(3)
        S += [f'v_mov_b32 v{ONE+k}, 0x3f803f80' for k in range(4)]
        T0 += [t for t in S if t.startswith('ds_')]
        S = sched([t for t in S if not t.startswith('ds_')], lambda t: t.startswith('buffer'))
        if __name__ == '__main__': print('sched B', len(S), sched.last_estimate, file=sys.stderr)
        hp = self.hp
        assert not any(t.startswith('buffer') for t in S[:hp]) and not any(t.startswith('ds_') for t in S[hp:])
        self.aw(T0 + S[:hp])
        HL = [f'buffer_load_dwordx4 {vr(HB+4*k,4)}, v{l16}, {srd(sWS)}, s{s_b} offen offset:{1024*k} sc1' for k in range(2)]
        L1, L3, L4, L5 = self.lab('hg'), self.lab('hd'), self.lab('hu'), self.lab('hv')
        HD = [f'ds_read_b32 v{t2}, v{fa}'] + [f'ds_read_b128 {vr(HB+4*k,4)}, v{a_h} offset:{1024*k}' for k in range(2)]
        a('s_waitcnt lgkmcnt(0)')
        a(f's_cmp_eq_u32 s{s_wm}, 0'); a(f's_cbranch_scc0 {L1}')
        a.extend(HL)
        a.label(L3)
        self.aside(lambda: (self.a.label(L1), self.a(f'v_subrev_u32 v{fa}, 8, v{fa}'), self.a.extend(HD), self.a(f's_branch {L3}')))
        self.stamp(3)
        a.extend(S[hp:]); S = []
        M0 = L0.pop(0)
        a(f's_cmp_eq_u32 s{s_wm}, 0'); a(f's_cbranch_scc0 {L4}')
        self.ll_wait(HL, list(range(HB, HB+8)), t1, t2, 0, pre='s_waitcnt vmcnt(3)', under=[M0], per=[0])
        a.label(L5)
        def upper():
            self.a.label(L4)
            self.spin(HD, [M0, f'v_cmp_ne_u32 vcc, v{fv}, v{t2}'], t1, 12, pre='s_waitcnt lgkmcnt(0)')
            self.a(f's_branch {L5}')
        self.aside(upper)
        self.stamp(4)
        S += L0 + [f'v_mov_b64 {vr(VP[nb],2)}, {vr(HB+4+2*nb,2)}' for nb in range(2)]
        S += [f'v_mov_b32 v{M+1}, v{M}', sw32(M, M+1), f'v_max_f32 v{M}, v{M}, v{M+1}', f'v_mov_b32 v{M+1}, v{M}', sw16(M, M+1), f'v_max_f32 v{M}, v{M}, v{M+1}']
        S += [f'v_sub_f32 v{U+k}, v{U+k}, v{M}' for k in range(2)] + [f'v_exp_f32 v{U+k}, v{U+k}' for k in range(2)]
        P0 = pv(0); S += P0[:-2] + [mf16(SUM, ONE, acc(0, 1))] + P0[-2:] + [f'v_rcp_f32 v{SUM}, v{SUM}']
        S += [pk('mul', acc(0, 4)+2*k, acc(0, 4)+2*k, ('b', SUM)) for k in range(4)] + put(0)
        self.sw(S, name='B block 0')
        self.stamp(6)

    def build(self):
        a = self.a
        self.prologue()
        if self.st0 & 1: self.loader(); a.label('L_compute'); self.compute()
        else: self.compute(); self.loader()
        self.helper()
        a.label('L_fin')
        self.stamp(15)
        self.stamp_out()
        if self.probe and len(self.probe) > 3:
            def pub():
                a('s_mov_b64 exec, 1'); a('v_mov_b32 v2, s94'); a('s_not_b32 s93, s93'); a('v_mov_b32 v3, s93')
                a(f'buffer_atomic_umax v2, off, {srd(sDBG)}, 0 offset:12 sc1'); a(f'buffer_atomic_umax v3, off, {srd(sDBG)}, 0 offset:140 sc1')
                a('s_waitcnt vmcnt(0)'); a('v_mov_b32 v2, 1'); a(f'buffer_atomic_add v2, off, {srd(sDBG)}, 0 offset:20 sc1'); a('s_waitcnt vmcnt(0)')
                def w0():
                    self.spin(['s_sleep 8', f'buffer_load_dword v2, off, {srd(sDBG)}, 0 offset:20 sc1'], ['v_cmp_gt_u32 vcc, 0x100, v2'], 4, 10)
                    a(f'buffer_load_dword v2, off, {srd(sDBG)}, 0 offset:12 sc1'); a(f'buffer_load_dword v3, off, {srd(sDBG)}, 0 offset:140 sc1'); a('s_waitcnt vmcnt(0)')
                    a('v_readfirstlane_b32 s94, v2'); a('v_readfirstlane_b32 s93, v3'); a('s_not_b32 s93, s93')
                self.cond(['s_cmp_eq_u32 s2, 0'], w0)
                a('s_mov_b64 exec, -1')
            self.cond([f's_cmp_eq_u32 s{s_wave}, 0'], pub)
        if self.probe:
            def body():
                a('s_sub_u32 s93, s94, s93'); a(f's_mul_i32 s93, s93, {self.probe[2]}'); a('s_min_u32 s93, s93, 100000')
                a(f's_memrealtime s[{s_t+6}:{s_t+7}]'); a('s_waitcnt lgkmcnt(0)'); a(f's_add_u32 s93, s93, s{s_t+6}')
                a.label('L_probe')
                a(f's_memrealtime s[{s_t+6}:{s_t+7}]'); a('s_waitcnt lgkmcnt(0)'); a(f's_sub_u32 s94, s{s_t+6}, s93'); a('s_cmp_lt_i32 s94, 0'); a('s_cbranch_scc1 L_probe')
            self.cond([f's_or_b32 s{s_t}, s2, s{s_wave}', f's_cmp_eq_u32 s{s_t}, 0'], body)
        a('s_waitcnt vmcnt(0)')
        a.label('L_end')
        a('s_endpgm')
        for b in self.later: a.ins += b.ins
        if self.cpf: a.label('L_last'); a('s_endpgm')
        a.pad()
        assert a.maxreg('v') <= 255 and a.maxreg('s') < 96
        return a.text()


DOC = """
; ---------------------------------------------------------------------------------------------------------------------
;
;
; Hand-offs between workgroups go through d_ws, stored write-through (sc1) and read with sc1 loads:
; ---------------------------------------------------------------------------------------------------------------------
"""

def generate(listform=False, **kw):
    body = Gen(**kw).build()
    ref = open('interleave_layers__linear_kernel_hedgehog__sliding_local_dilated__prompt.s.ref').read() if not listform else ''
    head = ''.join(l + '\n' for l in ref.split('\n') if l.startswith(';') and '@launch' not in l)
    if listform: head += f'; @launch kernel={KNAME} grid=(256,1,1) block=(512,1,1) lds={LDS_BYTES}\n'
    else: head += f'; @launch grid=(256,1,1) block=(512,1,1) lds={LDS_BYTES}\n'
    return head + '.amdgcn_target "amdgcn-amd-amdhsa--gfx950"' + DOC + kernel_head(KNAME) + body + kernel_desc(KNAME, 256, 96, 256)

if __name__ == '__main__':
    kw = eval(sys.argv[2]) if len(sys.argv) > 2 else {}
    open(sys.argv[1], 'w').write(generate(**kw))
```

```python
import sys, struct
sys.path.insert(0, 'work')
from asmlib import *

KNAME = 'interleave_layers__linear_kernel_hedgehog__sliding_local_dilated__prompt_kernel'

WS_CTR, WS_STAMP, WS_ST, WS_CS = 0x0, 0x100000, 0x200000, 0x300000
WS_HALO, WS_KVF, WS_ZP, WS_ZF, WS_KVP = 0x400000, 0x600000, 0x680000, 0x6C0000, 0x800000
WS_HU = 0x20000
WS_RF = 0x700000
WS_XI, WS_OI, WS_END = 0xC00000, 0x1800000, 0x2800000
BIG = 0x40000000
STG = 40960
XOFF = 24576
L_WO = 24576
L_SPARE = 3 * STG
L_P = 155648
P_NM, P_RS, P_CS, P_MODE, P_CNT, P_PHI = L_P, L_P + 512, L_P + 1024, L_P + 2816, L_P + 2832, L_P + 3072
LDS_BYTES = 163840
SCR = 5120
LOG2E = 1.4426950408889634
def f2u(x): return '0x%08x' % struct.unpack('<I', struct.pack('<f', x))[0]

s_fast = 3
pAX, pAW, pPHI, pAWO, pBW, pBWO, pOUT, pDBG, pWS = 4, 6, 8, 10, 14, 16, 18, 20, 22
sWS, sX, sW, sWO, sOUT, sDBG = 24, 28, 32, 36, 40, 44
s_m, s_g, s_wave, s_l = 48, 49, 50, 51
s_t = 52
s_cnt, s_x = 60, 61
s_i = 62
s_stamp = 63
s_rot = 64
s_rot2 = 95
s_ft, s_fn, s_fd, s_po = 90, 91, 88, 87
def srd(b): return 's[%d:%d]' % (b, b + 3)


def sx(d, terms, const=0):
    L = []
    for n, (r, k) in enumerate([t for t in terms if t[1]]):
        t = d if n == 0 else s_x
        if k == 1 and n: t = r
        elif k == 1: L.append(f's_mov_b32 s{t}, s{r}')
        elif k > 0 and k & (k - 1) == 0: L.append(f's_lshl_b32 s{t}, s{r}, {k.bit_length()-1}')
        else: L.append(f's_mul_i32 s{t}, s{r}, {k}')
        if n: L.append(f's_add_u32 s{d}, s{d}, s{t}')
    if const: L.append(f's_add_u32 s{d}, s{d}, {const:#x}' if const > 0 else f's_sub_u32 s{d}, s{d}, {-const:#x}')
    return L

def pkop(r):
    if isinstance(r, tuple):
        return vr(r[1] & ~1, 2), r[1] & 1, r[1] & 1
    assert r % 2 == 0
    return vr(r, 2), 0, 1
def pk(op, d, *src, neg=None):
    o = [pkop(s) for s in src]
    t = 'v_pk_%s_f32 %s, %s' % (op, vr(d, 2), ', '.join(x[0] for x in o))
    lo = [x[1] for x in o]; hi = [x[2] for x in o]
    if any(lo): t += ' op_sel:[%s]' % ','.join(map(str, lo))
    if not all(hi): t += ' op_sel_hi:[%s]' % ','.join(map(str, hi))
    if neg: t += ' neg_lo:[%s] neg_hi:[%s]' % (','.join(map(str, neg)), ','.join(map(str, neg)))
    return t
def cvt(d, a, b): return f'v_cvt_pk_bf16_f32 v{d}, v{a}, v{b}'
def sw16(a, b): return f'v_permlane16_swap_b32 v{a}, v{b}'
def sw32(a, b): return f'v_permlane32_swap_b32 v{a}, v{b}'
def mf16(d, A, B, C=None): return f'v_mfma_f32_16x16x32_bf16 {vr(d,4)}, {vr(A,4)}, {vr(B,4)}, ' + (vr(C, 4) if C is not None else '0')
def mf32(d, A, B, C=None): return f'v_mfma_f32_32x32x16_bf16 {vr(d,16)}, {vr(A,4)}, {vr(B,4)}, ' + (vr(C, 16) if C is not None else '0')


class Gen:
    def __init__(self, prof=0, limit=300000, dist=2, touch=1, bm=25, local=1, pd=6, sch=1, hprio=2, opos=(1, 5), warm=1, nap=1, probe=None, snake=1, rf=2, hq=4, fine=0, llf='sc1', ot=0, hc=None, hpos=90, early=0, w2=0, w0b=0, cpf=0, tr=4, bpos=1, r0=2, rprio=3, w0a=1, pipe=0, b1=0, b2=0, n1=0, n2=0, zw=2, yw=60, thr=None, pw=0, po=0, jit=0, st0=6, vpos=1, fst='sc1', rot0=12, iw=2, oh=(0, 9), dl=6, lprio=3, fpos=24, lf='', lfl=0, xnap=0, ls=0, pf='nt', mix=0, bw=0, t0s=(), xd=None, tlb=0, crow=0, ramp=0, xl=0, i0=0, hu=None, hun=0, yv=0, spec=3, wsch=(10, 12), hp=90, pat=None, pat1=None, d0=0, xi=6):
        self.a = Asm()
        assert 16 <= bm < 32 - dl//2 and not early
        self.__dict__.update(prof=prof, limit=limit, dist=dist, touch=touch, bm=bm, local=local, pd=pd, sch=sch, hprio=hprio, opos=opos, warm=warm, nap=nap, probe=probe, snake=snake, rf=rf, hq=hq, fine=fine, llf=llf, ot=ot, hc=hc, hpos=hpos, early=early, w2=w2, w0b=w0b, cpf=cpf, tr=tr, bpos=bpos, r0=r0, rprio=rprio, w0a=w0a, pipe=pipe, b1=b1, b2=b2, n1=n1, n2=n2, zw=zw, yw=yw, thr=thr, pw=pw, po=po, jit=jit, st0=st0, vpos=vpos, fst=fst, rot0=rot0, iw=iw, oh=oh, dl=dl, lprio=lprio, fpos=fpos, lf=lf, lfl=lfl, xnap=xnap, ls=ls, pf=pf, mix=mix, bw=bw, t0s=t0s, xd=xd, tlb=tlb, crow=crow, ramp=ramp, xl=xl, i0=i0, hu=hu, hun=hun, yv=yv, spec=spec, wsch=wsch, hp=hp, pat=pat, pat1=pat1, d0=d0, xi=xi)
        if d0: self.rot0 = 15
        self.nlab = 0; self.later = []

    def lab(self, p):
        self.nlab += 1
        return 'L_%s_%d' % (p, self.nlab)

    def aw(self, L):
        self.a.extend(autowait(L))
    def sw(self, L, crit=None, name=''):
        if self.sch:
            L = sched(L, crit)
            if name and __name__ == '__main__': print('sched', name, len(L), 'instructions, about', sched.last_estimate, 'cycles', file=sys.stderr)
        self.a.extend(autowait(L))

    def cond(self, test, body):
        L = self.lab('skip')
        self.a.extend(test); self.a(f's_cbranch_scc0 {L}')
        body()
        self.a.label(L)

    def aside(self, f):
        main, self.a = self.a, Asm()
        f()
        self.later.append(self.a); self.a = main

    def spin(self, issue, check, vt, tag, pre=False, alt=None, checked=False):
        a = self.a
        L, C, T, A, D = (self.lab(x) for x in ('spin', 'chk', 'tmo', 'alt', 'done'))
        count = [f's_add_u32 s{s_cnt}, s{s_cnt}, 1', f's_cmp_lt_u32 s{s_cnt}, {self.limit}', f's_cbranch_scc0 {T}']
        if checked:
            alt = issue; a(f's_cbranch_vccnz {A}')
        else:
            a(f's_mov_b32 s{s_cnt}, 0')
            if alt: a(f's_cmp_eq_u32 s{s_fast}, 1'); a(f's_cbranch_scc0 {A}')
            if pre:
                a(f's_branch {C}')
                a.label(L); a.extend(issue); a.extend(count); a('s_waitcnt vmcnt(0)')
                a.label(C)
                if pre is not True: a(pre)
                a.extend(check)
            else:
                S = autowait(list(issue) + ['s_nop 3'] + list(check)); k = S.index('s_nop 3')
                a.label(L); a.extend(S[:k]); a.extend(count); a.extend(S[k+1:])
            a(f's_cbranch_vccnz {L}')
        a.label(D)
        def rest():
            a = self.a
            if alt:
                L2 = self.lab('spin')
                a.label(A); a(f's_mov_b32 s{s_cnt}, 0')
                a.label(L2); a.extend(alt); a.extend(count); a('s_waitcnt vmcnt(0)' if checked else 's_waitcnt vmcnt(0) lgkmcnt(0)'); a.extend(check)
                a(f's_cbranch_vccnz {L2}'); a(f's_branch {D}')
            a.label(T)
            a('s_waitcnt vmcnt(0)' if checked else 's_waitcnt vmcnt(0) lgkmcnt(0)')
            a(f'v_mov_b32 v{vt}, {1 << tag}')
            a(f'buffer_atomic_or v{vt}, off, {srd(sDBG)}, 0 offset:4 sc1')
            a(f's_branch {D}')
        self.aside(rest)

    def ll_wait(self, loads, regs, t1, t2, tag, pre=False, under=None, per=None):
        S = []
        h = len(regs) // 2
        for t, R in ((t1, regs[:h]), (t2, regs[h:])):
            S.append(f'v_max_u32 v{t}, v{R[0]}, v{R[1]}')
            for k in range(2, len(R), 2): S.append(f'v_max3_u32 v{t}, v{t}, v{R[k]}, v{R[k+1]}')
        S += [f'v_max_u32 v{t1}, v{t1}, v{t2}', f'v_cmp_eq_u32 vcc, -1, v{t1}']
        if under: S = interleave(under, S, per=per)
        loads = [l.replace('sc1', self.llf) for l in loads]
        self.spin(loads, S, t1, tag, pre)

    def flag_set(self, soff, vt, which=3):
        a = self.a
        a('s_mov_b64 exec, 1')
        if which & 1: a(f'buffer_store_dword v{vt}, off, {srd(sWS)}, s{soff} {self.lf}')
        if which == 3 and self.lfl == 1: a(f'buffer_load_dword v220, off, {srd(sWS)}, s{soff} sc1')
        if which == 3 and self.lfl == 2: which = 1
        if which & 2: a(f'buffer_store_dword v{vt}, off, {srd(sWS)}, s{soff+1} sc1')
        a('s_mov_b64 exec, -1')
    def flag_addr(self, va, vt, soff, remote=False):
        L = [f'v_bfe_u32 v{va}, v1, 1, 3', f'v_and_b32 v{vt}, 1, v1', f'v_lshl_add_u32 v{va}, v{va}, 2, v{vt}']
        if remote: return L + [f'v_lshlrev_b32 v{va}, 7, v{va}']
        return L + [f's_cmp_eq_u32 s{s_fast}, 1', f's_cselect_b32 s{s_t}, {self.ls}, 5', f's_cselect_b32 s{s_t+1}, 0, {WS_RF}',
                    f's_lshl_b32 s{soff}, s{soff}, s{s_t}', f's_add_u32 s{soff}, s{soff}, s{s_t+1}', f's_add_u32 s{s_t}, s{s_t}, 2',
                    f'v_lshlrev_b32 v{va}, s{s_t}, v{va}']
    def flag_load(self, soff, va, vt, fl='sc1'): return f'buffer_load_dword v{vt}, v{va}, {srd(sWS)}, s{soff} offen {fl}'
    def flag_wait(self, soff, va, vt, tag, pre=False, nap=0, own=False, checked=False):
        z = [f's_sleep {nap}'] if nap else []
        self.spin(z + [self.flag_load(soff, va, vt, self.pf if own else 'sc1')], [f'v_cmp_eq_u32 vcc, 0, v{vt}'], vt, tag, pre,
                  z + [self.flag_load(soff, va, vt)] if own else None, checked)
    def get_mode(self, vt):
        self.a.extend([f'v_mov_b32 v{vt}, {P_MODE}', f'ds_read_b32 v{vt}, v{vt}', 's_waitcnt lgkmcnt(0)', f'v_readfirstlane_b32 s{s_fast}, v{vt}'])

    def jitter(self, k):
        a = self.a
        L = self.lab('jit')
        a.extend([f's_lshl_b32 s{s_t+6}, s2, 3', f's_add_u32 s{s_t+6}, s{s_t+6}, s{s_wave}', f's_lshl_b32 s{s_t+6}, s{s_t+6}, 2', f's_add_u32 s{s_t+6}, s{s_t+6}, s{s_l}',
                  f's_add_u32 s{s_t+6}, s{s_t+6}, {(k*7919 + self.jit*104729) & 0xffffff}', f's_mul_i32 s{s_t+6}, s{s_t+6}, 0x9e3779b1', f's_lshr_b32 s{s_t+7}, s{s_t+6}, 13',
                  f's_xor_b32 s{s_t+6}, s{s_t+6}, s{s_t+7}', f's_mul_i32 s{s_t+6}, s{s_t+6}, 0x85ebca6b', f's_lshr_b32 s{s_t+7}, s{s_t+6}, 29',
                  f's_lshr_b32 s{s_t+6}, s{s_t+6}, 8', f's_and_b32 s{s_t+6}, s{s_t+6}, 127', f's_lshr_b32 s{s_t+6}, s{s_t+6}, s{s_t+7}'])
        a.label(L)
        a.extend(['s_sleep 1', f's_sub_u32 s{s_t+6}, s{s_t+6}, 1', f's_cbranch_scc0 {L}'])
    def stamp(self, k):
        if self.jit: self.jitter(k)
        if self.probe:
            for n, (pl, pk_) in enumerate(self.probe[:2]):
                if pk_ == k:
                    def body():
                        self.a(f's_memrealtime s[{s_t+6}:{s_t+7}]'); self.a('s_waitcnt lgkmcnt(0)'); self.a(f's_mov_b32 s{93+n}, s{s_t+6}')
                    self.cond([f's_cmp_eq_u32 s{s_l}, {pl}'], body)
        if not self.prof or self.prof >= 5: return
        a = self.a
        a(f'{"s_memtime" if self.prof == 4 else "s_memrealtime"} s[{s_t+6}:{s_t+7}]')
        a(f's_mov_b32 s{s_stamp}, m0')
        a(f's_lshl_b32 m0, s{s_l}, 4'); a(f's_add_u32 m0, m0, {k}')
        a('s_waitcnt lgkmcnt(0)')
        a(f'v_writelane_b32 v255, s{s_t+6}, m0')
        a(f's_mov_b32 m0, s{s_stamp}')
    def stamp_out(self):
        if not self.prof: return
        a = self.a
        a.extend(sx(s_t, [(2, 2048), (s_wave, 256)], WS_STAMP))
        a('v_lshlrev_b32 v254, 2, v1')
        a(f'buffer_store_dword v255, v254, {srd(sWS)}, s{s_t} offen')

    def prologue(self):
        a = self.a
        a('s_cmp_ge_u32 s2, 256'); a('s_cbranch_scc1 L_end')
        a('s_load_dwordx16 s[4:19], s[0:1], 0')
        a('s_load_dwordx4 s[20:23], s[0:1], 64')
        a('v_lshrrev_b32 v2, 6, v0')
        a(f'v_readfirstlane_b32 s{s_wave}, v2')
        a('v_and_b32 v1, 63, v0')
        a(f's_and_b32 s{s_rot}, s2, 3'); a(f's_lshl_b32 s{s_rot}, s{s_rot}, 2')
        a(f's_bfe_u32 s{s_t}, s2, 0x20003'); a(f's_add_u32 s{s_m}, s{s_rot}, s{s_t}')
        a(f's_mov_b32 s{s_rot}, s{s_m}')
        a(f's_and_b32 s{s_rot2}, s2, 4'); a(f's_lshl_b32 s{s_rot2}, s{s_rot2}, 1')
        a(f's_lshr_b32 s{s_g}, s2, 5'); a(f's_add_u32 s{s_g}, s{s_g}, s{s_rot2}')
        a(f's_mov_b32 s{s_l}, 0'); a(f's_mov_b32 s{s_fast}, 0')
        for b, n in ((sWS, WS_END), (sX, 2048*1024*2), (sW, 1024*3072*2), (sWO, 1024*1024*2), (sOUT, WS_END), (sDBG, 256)):
            a(f's_mov_b32 s{b+2}, {n}'); a(f's_mov_b32 s{b+3}, 0x20000')
        if self.prof: a('v_mov_b32 v255, 0')
        self.stamp(0)
        a(f's_cmp_ge_u32 s{s_wave}, 6'); a('s_cbranch_scc1 L_helper')
        if self.st0 & 1: a(f's_cmp_lt_u32 s{s_wave}, 4'); a('s_cbranch_scc1 L_compute')
        else: a(f's_cmp_ge_u32 s{s_wave}, 4'); a('s_cbranch_scc1 L_loader')
    def pointers(self):
        a = self.a
        a('s_waitcnt lgkmcnt(0)')
        for b, p in ((sWS, pWS), (sX, pAX), (sW, pAW), (sWO, pAWO), (sOUT, pWS), (sDBG, pDBG)):
            a(f's_mov_b64 s[{b}:{b+1}], s[{p}:{p+1}]')

    def trickle_setup(self):
        a = self.a
        a(f's_mov_b64 s[{sOUT}:{sOUT+1}], s[{sWO}:{sWO+1}]'); a(f's_mov_b32 s{sOUT+2}, {1 << 21}')
        a.extend(sx(s_ft, [(2, 8192), (s_wave, 2048)], -8192))
        n1 = -(-16 // self.tr)
        a(f's_cmp_eq_u32 s{s_l}, 0'); a(f's_cselect_b32 s{s_fn}, 12, {n1}')
        a(f's_cmp_lt_u32 s{s_l}, {2 if self.warm else 0}'); a(f's_cselect_b32 s{s_fn}, s{s_fn}, 0')
    def trickle_lines(self, n):
        a = self.a
        a(f's_sub_u32 s{s_t}, s{sOUT+2}, {128*n}'); a(f's_min_u32 s{s_t}, s{s_t}, s{s_ft}')
        for r in range(n): a(f's_buffer_load_dwordx2 s[{s_fd}:{s_fd+1}], {srd(sOUT)}, s{s_t} offset:{128*r+60}')
        a(f's_add_u32 s{s_ft}, s{s_ft}, {128*n}')
    def trickle(self, i):
        a = self.a
        n1 = -(-16 // self.tr)
        def nxt():
            a(f's_mov_b64 s[{sOUT}:{sOUT+1}], s[{pBW}:{pBW+1}]'); a(f's_mov_b32 s{sOUT+2}, {3 << 21}')
            a.extend(sx(s_ft, [(2, 24576), (s_wave, 6144)], -24576))
        def body():
            if isinstance(i, str): self.cond([f's_cmp_eq_u32 {i}, {n1}'], nxt)
            elif i == n1: nxt()
            self.trickle_lines(self.tr)
        self.cond([f's_cmp_gt_u32 s{s_fn}, {i}'], body)
    def trickle_rest(self, part):
        rest = 48 - self.tr * (12 - -(-16 // self.tr))
        n = rest
        self.cond([f's_cmp_eq_u32 s{s_fn}, 12'], lambda: self.trickle_lines(n))

    def warm_w(self):
        a = self.a
        if not self.pw: return
        a(f's_and_b32 s{s_t}, s{s_m}, 3'); a.extend(sx(s_t+1, [(s_t, 16*6144), (s_wave, 4*6144), (s_g, 128)], -16*6144))
        a(f's_and_b32 s{s_t+2}, s{s_g}, 7')
        for st in range(1, 1 + self.pw):
            a(f's_cmp_le_u32 s{s_t+2}, {st-1}'); a(f's_addc_u32 s{s_t}, s{s_rot2}, {st-1}')
            a(f's_mul_i32 s{s_t}, s{s_t}, {64*6144}'); a(f's_add_u32 s{s_t}, s{s_t}, s{s_t+1}')
            for k in range(12): a(f's_buffer_load_dwordx2 s[{s_fd}:{s_fd+1}], {srd(sW)}, s{s_t} offset:{2048*k+60}')
    def warm_wo_setup(self):
        a = self.a
        a(f's_and_b32 s{s_t}, s{s_m}, 3'); a.extend(sx(s_po, [(s_t, 256*2048), (s_wave, 64*2048), (s_g, 128)], -256*2048))
    def warm_wo(self, n):
        a = self.a
        def body():
            for k in range(n): a(f's_buffer_load_dwordx2 s[{s_fd}:{s_fd+1}], {srd(sWO)}, s{s_po} offset:{2048*k+60}')
            a(f's_add_u32 s{s_po}, s{s_po}, {2048*n}'); a(f's_min_u32 s{s_po}, s{s_po}, {(1 << 21) - 2048*n}')
        if self.po: self.cond([f's_lshr_b32 s{s_t}, {self.po}, s{s_l}', f's_bitcmp1_b32 s{s_t}, 0'], body)

    def w_dma_offsets(self, dw, idx, t0, t1, t2):
        a = self.a
        a(f'v_lshrrev_b32 v{t0}, 3, v1'); a(f'v_mul_u32_u24 v{t0}, 6144, v{t0}')
        a(f'v_and_b32 v{t1}, 7, v1'); a(f'v_bfe_u32 v{t2}, v1, 4, 1'); a(f'v_lshlrev_b32 v{t2}, 1, v{t2}')
        a(f'v_xor_b32 v{t1}, v{t1}, v{t2}'); a(f'v_xor_b32 v{t2}, 4, v{t1}')
        a(f'v_lshl_add_u32 v{t1}, v{t1}, 4, v{t0}'); a(f'v_lshl_add_u32 v{t2}, v{t2}, 4, v{t0}')
        d = 8*6144 - 1024
        a(f's_lshl_b32 s{s_t+1}, s{s_g}, 7'); a(f'v_add_u32 v{t1}, s{s_t+1}, v{t1}'); a(f's_add_u32 s{s_t+1}, s{s_t+1}, {d}'); a(f'v_add_u32 v{t2}, s{s_t+1}, v{t2}')
        a(f's_cmp_eq_u32 s{idx}, 0')
        for t in range(3):
            c = [((3*w + t) & 1)*32*6144 + ((3*w + t) >> 1)*2048 for w in range(2)]
            a(f's_mov_b32 s{s_t}, {c[1]}'); a(f's_cmov_b32 s{s_t}, {c[0]}')
            a(f'v_add_u32 v{dw+4*t}, s{s_t}, v{t1}'); a(f'v_add_u32 v{dw+4*t+1}, s{s_t}, v{t2}')
            a(f'v_add_u32 v{dw+4*t+2}, {2*d}, v{dw+4*t}'); a(f'v_add_u32 v{dw+4*t+3}, {2*d}, v{dw+4*t+1}')

    def w_frag_addr(self, aw, head_sreg, base, t0, t1, t2, nb_list=(0, 1)):
        L = [f'v_lshrrev_b32 v{t2}, 4, v1', f'v_bfe_u32 v{t0}, v1, 2, 2', f'v_lshl_add_u32 v{t1}, v{t2}, 3, v{t0}',
             f'v_lshrrev_b32 v{t0}, 1, v{t0}', f'v_and_b32 v{t2}, 1, v{t2}', f'v_lshl_add_u32 v{t0}, v{t2}, 1, v{t0}']
        if head_sreg is not None: L += [f's_lshl_b32 s{s_t}, s{head_sreg}, 1', f'v_xor_b32 v{t0}, s{s_t}, v{t0}']
        L += [f'v_and_b32 v{t2}, 3, v1', f'v_lshlrev_b32 v{t2}, 3, v{t2}', f'v_lshl_add_u32 v{t2}, v{t1}, 7, v{t2}']
        if base: L.append(f'v_add_u32 v{t2}, {base}, v{t2}')
        for k, nb in enumerate(nb_list): L += [f'v_xor_b32 v{t1}, {nb}, v{t0}', f'v_lshl_add_u32 v{aw+k}, v{t1}, 5, v{t2}']
        return L

    def reduce_job(self, after_by=None, after_fill=None):
        a = self.a
        T = 200
        vA, vZ, vO, t1, t2 = T, T+1, T+2, T+3, T+4
        s_a, s_b, s_c, s_d, s_e = 80, 81, 82, 83, 84
        a.extend(sx(s_t, [(s_l, 32), (s_g, 4), (s_wave, 1)], -4))
        a.extend(sx(s_a, [(s_t, 32768), (s_m, 128)], WS_KVP)); a(f's_add_u32 s{s_b}, s{s_a}, 16384')
        a.extend(sx(s_d, [(s_t, 2048), (s_m, 128)], WS_KVF))
        a.extend(sx(s_c, [(s_t, 1024)], WS_ZP)); a.extend(sx(s_e, [(s_t, 64)], WS_ZF))
        a(f's_and_b32 s{s_t}, s{s_t}, 1'); a(f's_xor_b32 s{s_t+1}, s{s_m}, s{s_g}'); a(f's_or_b32 s{s_t}, s{s_t}, s{s_t+1}')
        a(f's_cselect_b32 s{s_c}, {BIG}, s{s_c}'); a(f's_cselect_b32 s{s_e}, {BIG}, s{s_e}')
        a(f'v_and_b32 v{t1}, 7, v1'); a(f'v_lshlrev_b32 v{t1}, 4, v{t1}')
        a(f'v_lshrrev_b32 v{t2}, 3, v1'); a(f'v_lshl_add_u32 v{vA}, v{t2}, 11, v{t1}')
        a(f'v_lshlrev_b32 v{vZ}, 4, v1')
        a(f'v_lshrrev_b32 v{t2}, 4, v1'); a(f'v_lshl_add_u32 v{vO}, v{t2}, 2, v{t1}')
        D = T + 8; U = 160
        def late_fill():
            for k in range(4): a(f'v_mov_b32 v{D+k}, -1')
            fill = f'buffer_store_dwordx4 {vr(D,4)}, v{vZ}, {srd(sWS)}, s{s_t} offen'
            a.extend(sx(s_t, [(s_g, 131072), (s_wave, 32768), (s_m, 2048)], WS_KVP + (1 << 21) - 4*32768)); a(fill + ' sc1'); a(fill + ' offset:1024 sc1')
            a(f's_lshr_b32 s{s_t+1}, s{s_wave}, 1'); a(f's_and_b32 s{s_t+2}, s{s_wave}, 1')
            a.extend(sx(s_t, [(s_t+2, 1 << 20), (s_m, 1 << 16), (s_g, 4096), (s_t+1, 2048)], WS_HALO - 2*2048)); a(fill + ' sc1'); a(fill + ' offset:1024 sc1')
            a.extend(sx(s_t, [(s_wave, 262144), (s_m, 16384), (s_g, 1024)], WS_ST - 3*262144))
            a.extend(sx(s_t+3, [(s_g, 16384), (s_m, 1024)], WS_CS + 262144))
            a(f's_cmp_eq_u32 s{s_wave}, 7'); a(f's_cselect_b32 s{s_t}, s{s_t+3}, s{s_t}'); a(fill + ' sc1')
            a('s_mov_b64 exec, 0xff')
            a(f's_add_u32 s{s_t}, s{s_d}, {1 << 17}'); a(fill + ' sc1')
            a(f's_add_u32 s{s_t}, s{s_e}, {1 << 12}'); a(fill + ' sc1')
            a.extend(sx(s_t, [(s_g, 4096), (s_t+1, 2048), (s_m, 128)], WS_ZP + (1 << 16) - 2*2048)); a(fill + ' sc1')
            a('s_mov_b64 exec, -1')
            a('s_waitcnt vmcnt(0)')
        self.cond([f's_cmp_eq_u32 s{s_l}, 0'], late_fill)
        if self.hu is not None:
            vH, vG, s_f = T+5, T+6, 85
            a.extend(sx(s_f, [(s_l, 16384), (s_g, 2048)], WS_HU)); a(f'v_and_b32 v{vH}, 15, v1'); a(f'v_lshlrev_b32 v{vH}, 7, v{vH}')
        a('s_barrier')
        if self.hu is not None: a(self.flag_load(s_f, vH, vG))
        if self.jit: self.jitter(20)
        if self.rprio: a(f's_setprio {self.rprio}')
        a('s_barrier')
        if self.hu is not None: self.flag_wait(s_f, vH, vG, 11, pre='s_waitcnt vmcnt(0)', nap=self.hun)
        if after_by and self.w0a == 0: after_by()
        if self.b1: a(f's_sleep {self.b1}')
        self.ll_wait(([f's_sleep {self.n1}'] if self.n1 else []) + [f'buffer_load_dwordx4 {vr(D,4)}, v{vA}, {srd(sWS)}, s{s_a} offen sc1',
                      f'buffer_load_dwordx4 {vr(D+4,4)}, v{vA}, {srd(sWS)}, s{s_b} offen sc1',
                      f'buffer_load_dwordx4 {vr(D+8,4)}, v{vZ}, {srd(sWS)}, s{s_c} offen sc1',
                      f'buffer_load_dwordx4 {vr(D+12,4)}, v{vZ}, {srd(sWS)}, s{s_c} offen offset:1024 sc1'],
                     list(range(D, D+16)), t1, t2, 1)
        self.stamp(5)
        S = []
        for z in range(2):
            d, u = D + 8*z, U + 16*z
            for k in range(8): S += [f'v_lshlrev_b32 v{u+2*k}, 16, v{d+k}', f'v_and_b32 v{u+2*k+1}, 0xffff0000, v{d+k}']
            for k in range(4): S.append(pk('add', u+2*k, u+2*k, u+8+2*k))
            for k in range(4): S.append(sw32(u+k, u+4+k))
            S += [pk('add', u, u, u+4), pk('add', u+2, u+2, u+6), sw16(u, u+2), sw16(u+1, u+3), pk('add', u, u, u+2)]
            for k in range(2): S.append(f'v_add_f32_dpp v{u+k}, v{u+k}, v{u+k} row_ror:8 row_mask:0xf bank_mask:0xf')
            S.append(cvt(u, u, u+1))
        S += ['s_mov_b32 exec_lo, 0x00ff00ff', 's_mov_b32 exec_hi, 0x00ff00ff',
              f'buffer_store_dword v{U}, v{vO}, {srd(sWS)}, s{s_d} offen sc1',
              f'buffer_store_dword v{U+16}, v{vO}, {srd(sWS)}, s{s_e} offen sc1', 's_mov_b64 exec, -1']
        self.sw(S)
        if self.rprio: a('s_setprio 0')
        if after_by and self.w0a == 1: after_by()
        if self.zw: a(f's_waitcnt vmcnt({12 if (after_by and self.w0a == 1 and self.zw == 1) else 0})')
        a('s_barrier')
        if after_by and self.w0a == 2: after_by()

    def loader(self):
        a = self.a
        a.label('L_loader')
        dx, dw, dwo, t0, t1, t2, vf = 8, 16, 28, 2, 3, 4, 5
        s_ld, s_kx, s_kw, s_slot, s_mx, s_xstep, s_wo, s_wm0, s_sx, s_sw, s_xb, s_fl, s_mw = range(65, 78)
        a(f's_sub_u32 s{s_ld}, s{s_wave}, 4')
        self.w_dma_offsets(dw, s_ld, t0, t1, t2)
        a(f's_mul_i32 s{s_mw}, s{s_ld}, 12288')
        a(f's_lshl_b32 s{s_mx}, s{s_ld}, 13'); a(f's_add_u32 s{s_mx}, s{s_mx}, {XOFF}')
        s_flip = 78
        def nxt(r):
            return [f's_cmp_eq_u32 s{r}, s{s_flip}', f's_addc_u32 s{r}, s{r}, 1', f's_and_b32 s{r}, s{r}, 15']
        def wst(slot=None):
            L = []
            for j in range(12):
                if j == 0: L.append(f's_add_u32 m0, s{s_mw}, ' + (f's{s_slot}' if slot is None else str(slot*STG)))
                elif j % 4 == 0: L.append('s_add_u32 m0, m0, 4096')
                L.append(f'buffer_load_dwordx4 v{dw+j}, {srd(sW)}, s{s_kw} offen offset:{1024*(j%4)} lds')
            a.extend(L + nxt(s_sw) + [f's_mul_i32 s{s_kw}, s{s_sw}, {64*6144}'])
        def xst(slot=None):
            L = []
            for j in range(8):
                if j == 0: L.append(f's_add_u32 m0, s{s_mx}, ' + (f's{s_slot}' if slot is None else str(slot*STG)))
                elif j == 4: L.append('s_add_u32 m0, m0, 4096')
                L.append(f'buffer_load_dwordx4 v{dx+j}, {srd(sX)}, s{s_kx} offen offset:{1024*(j%4)} sc1 lds')
            a.extend(L + nxt(s_sx) + [f's_mul_i32 s{s_kx}, s{s_sx}, s{s_xstep}', f's_add_u32 s{s_kx}, s{s_kx}, s{s_xb}'])
        def kstart(first):
            if first:
                a(f's_add_u32 s{s_sx}, s{s_m}, ' + (f's{s_g}' if self.d0 else '0')); a(f's_and_b32 s{s_sx}, s{s_sx}, {self.rot0}'); a(f's_mov_b32 s{s_sw}, s{s_sx}'); a(f's_mov_b32 s{s_flip}, 16')
            else:
                a(f's_add_u32 s{s_sw}, s{s_rot2}, 15'); a(f's_and_b32 s{s_sw}, s{s_sw}, 15'); a(f's_mov_b32 s{s_sx}, s{s_sw}')
                a(f's_add_u32 s{s_flip}, s{s_g}, 15'); a(f's_and_b32 s{s_flip}, s{s_flip}, 15'); a.extend(nxt(s_sx))
            a(f's_mul_i32 s{s_kw}, s{s_sw if first else s_g}, {64*6144}'); a(f's_mul_i32 s{s_kx}, s{s_sx}, s{s_xstep}'); a(f's_add_u32 s{s_kx}, s{s_kx}, s{s_xb}')
        a(f's_lshl_b32 s{s_xb}, s{s_m}, 18'); a(f's_mov_b32 s{s_xstep}, 128'); kstart(True)
        self.pointers()
        wst(0)
        a(f'v_lshrrev_b32 v{t0}, 3, v1'); a(f'v_and_b32 v{t1}, 7, v1')
        a(f'v_lshrrev_b32 v{t2}, 4, v1'); a(f'v_xor_b32 v{t1}, v{t1}, v{t2}'); a(f'v_xor_b32 v{t2}, 4, v{t1}')
        a(f's_lshl_b32 s{s_t}, s{s_ld}, 17'); a(f'v_lshl_add_u32 v{t0}, v{t0}, 11, s{s_t}')
        a(f'v_lshl_add_u32 v{t1}, v{t1}, 4, v{t0}'); a(f'v_lshl_add_u32 v{t2}, v{t2}, 4, v{t0}')
        for j in range(8): a(f'v_add_u32 v{dx+j}, {j*16384 - 1024*(j%4)}, v{t1 if j % 2 == 0 else t2}')
        xst(0); wst(1)
        if self.ramp == -2: xst(1)
        a(f'v_lshrrev_b32 v{t0}, 5, v1'); a(f'v_lshlrev_b32 v{t0}, 4, v{t0}')
        a(f'v_bfe_u32 v{t1}, v1, 3, 2'); a(f'v_add_u32 v{t0}, v{t0}, v{t1}')
        a(f's_lshl_b32 s{s_t}, s{s_g}, 7'); a(f'v_lshl_add_u32 v{t0}, v{t0}, 11, s{s_t}')
        a(f'v_and_b32 v{t1}, 7, v1'); a(f'v_bfe_u32 v{t2}, v1, 4, 1'); a(f'v_lshlrev_b32 v{t2}, 1, v{t2}')
        a(f'v_xor_b32 v{t1}, v{t1}, v{t2}'); a(f'v_xor_b32 v{t2}, 4, v{t1}')
        a(f'v_lshl_add_u32 v{t1}, v{t1}, 4, v{t0}'); a(f'v_lshl_add_u32 v{t2}, v{t2}, 4, v{t0}')
        for G in range(4): a(f'v_add_u32 v{dwo+G}, {G*4*2048 - 1024*G}, v{t1 if G % 2 == 0 else t2}')
        a(f's_waitcnt vmcnt({20 if self.ramp == -2 else 12})'); a('s_barrier')
        if self.ramp != -2: xst(1)
        wst(2)
        if self.ramp < 0: xst(2)
        a(f's_waitcnt vmcnt({20 if self.ramp < 0 else 12})'); a('s_barrier')
        if self.ramp >= 0: xst(2)
        if self.ramp > 0:
            for k in range(self.ramp):
                xst(k % 3); a('s_waitcnt vmcnt(8)'); a('s_barrier'); wst(k % 3)
            a(f's_mov_b32 s{s_i}, {self.ramp}'); a(f's_mov_b32 s{s_slot}, {(self.ramp % 3)*STG}')
            a('s_branch L_ld_enter2')
        a.label('L_ld_enter')
        a(f's_mov_b32 s{s_i}, 0'); a(f's_mov_b32 s{s_slot}, 0')
        a.label('L_ld_enter2')
        self.trickle_setup(); self.warm_wo_setup()
        def loop(name, n, extra):
            a.label(name)
            xst(); wst()
            if extra:
                a(f's_add_u32 s{s_t}, s{s_i}, 1'); a(f's_and_b32 s{s_t}, s{s_t}, 7')
                a.extend(sx(s_wo, [(s_rot2, 2), (s_t, 1)], 24)); a(f's_and_b32 s{s_wo}, s{s_wo}, 31')
                a.extend(sx(s_wm0, [(s_wo, 65536), (s_ld, 2*4*2048)]))
                a.extend(sx(s_wo, [(s_t, 4096), (s_ld, 2048)], L_SPARE)); a(f's_mov_b32 m0, s{s_wo}')
                for G in range(2): a(f'buffer_load_dwordx4 v{dwo+G}, {srd(sWO)}, s{s_wm0} offen offset:{1024*G} lds')
            self.trickle(f's{s_i}'); self.warm_wo(5)
            a(f's_add_u32 s{s_slot}, s{s_slot}, {STG}'); a(f's_cmp_eq_u32 s{s_slot}, {3*STG}'); a(f's_cselect_b32 s{s_slot}, 0, s{s_slot}')
            a(f's_add_u32 s{s_i}, s{s_i}, 1'); a(f's_cmp_lt_u32 s{s_i}, {n}')
            a(f's_waitcnt vmcnt({22 if extra else 20})')
            a('s_barrier')
            a(f's_cbranch_scc1 {name}')
        if self.early: loop('L_ld_loop', 5, False); loop('L_ld_loop2', 13, True)
        else: loop('L_ld_loop', 13, False)
        def wo(p0, n, thr=None):
            a.extend(sx(s_wm0, [(s_ld, 4096)], L_WO + 4096*p0))
            a.extend(sx(s_wo, [(s_rot2, 2), (s_ld, 1)], p0)); a(f's_and_b32 s{s_wo}, s{s_wo}, 31'); a(f's_lshl_b32 s{s_wo}, s{s_wo}, 16')
            L = self.lab('wo')
            a(f's_mov_b32 s{s_i}, 0')
            a.label(L)
            if thr is not None: a(f's_waitcnt vmcnt({thr})')
            a(f's_mov_b32 m0, s{s_wm0}')
            a(f's_add_u32 s{s_wm0}, s{s_wm0}, 8192')
            for G in range(4): a(f'buffer_load_dwordx4 v{dwo+G}, {srd(sWO)}, s{s_wo} offen offset:{1024*G} lds')
            a(f's_add_u32 s{s_wo}, s{s_wo}, 131072'); a(f's_and_b32 s{s_wo}, s{s_wo}, 0x1fffff')
            a(f's_add_u32 s{s_i}, s{s_i}, 1'); a(f's_cmp_lt_u32 s{s_i}, {n//2}'); a(f's_cbranch_scc1 {L}')
        order = list(range(24, 32)) + list(range(4, 24)) + list(range(4))
        def wos(k0, k1):
            while k0 < k1:
                k = k0
                while k + 1 < k1 and order[k+1] == order[k] + 1: k += 1
                wo(order[k0], k + 1 - k0); k0 = k + 1
        n13, n14 = self.wsch; assert n13 <= 18 and n13 + n14 <= 28 and n13 % 2 == 0 and n14 % 2 == 0
        wos(0, n13)
        a(f's_waitcnt vmcnt({2*n13})'); a('s_barrier')
        wos(n13, n13 + n14)
        a('s_barrier')
        wos(n13 + n14, 32)
        if self.jit: self.jitter(23)
        a.extend(sx(s_fl, [(s_l, 8192), (s_m, 256), (s_rot2, 16), (s_ld, 8)], 4096))
        self.get_mode(t0); a.extend(self.flag_addr(vf, t0, s_fl))
        a.extend(sx(s_xb, [(s_l, 1 << 22), (s_m, 1 << 18)], WS_XI))
        a(f's_bitcmp0_b32 s{s_l}, 0')
        a(f's_cselect_b64 s[{sW}:{sW+1}], s[{pBW}:{pBW+1}], s[{pAW}:{pAW+1}]')
        a(f's_cselect_b64 s[{sWO}:{sWO+1}], s[{pBWO}:{pBWO+1}], s[{pAWO}:{pAWO+1}]')
        a(f's_mov_b64 s[{sX}:{sX+1}], s[{pWS}:{pWS+1}]'); a(f's_mov_b32 s{sX+2}, {WS_END}')
        a(f's_mov_b32 s{s_xstep}, 16384'); kstart(False)
        a(f's_lshl_b32 s{s_t}, s{s_ld}, 13'); a(f'v_lshl_add_u32 v{t0}, v1, 4, s{s_t}')
        for j in range(8): a(f'v_add_u32 v{dx+j}, {4096*(j//4)}, v{t0}')
        a(f's_bitcmp1_b32 s{s_l}, 0'); a('s_cbranch_scc1 L_ld_B')
        self.reduce_job(lambda: wst(0))
        a('s_branch L_ld_join')
        a.label('L_ld_B')
        self.cond([f's_cmp_lg_u32 s{s_l}, 3'], lambda: wst(0))
        a.label('L_ld_join')
        a('s_waitcnt vmcnt(0)'); a('s_barrier')
        a(f's_cmp_eq_u32 s{s_l}, 3'); a('s_cbranch_scc1 L_fin')
        self.trickle_rest(1); self.warm_w()
        a(f's_add_u32 s{s_l}, s{s_l}, 1')
        if self.jit: self.jitter(21)
        a('s_barrier')
        if self.jit: self.jitter(22)
        wst(1)
        if self.w2 == 2: wst(2)
        if self.spec & 4: a('s_waitcnt vmcnt(0)')
        a('s_barrier')
        if self.w2 == 0: wst(2)
        if self.lprio: a(f's_setprio {self.lprio}')
        self.flag_wait(s_fl, vf, t0, 2, nap=self.xnap, own=True)
        self.stamp(1)
        xst(1); xst(2)
        if self.lprio: a('s_setprio 0')
        a('s_waitcnt vmcnt(8)'); a('s_barrier')
        if self.w2 == 1: wst(2)
        a('s_branch L_ld_enter')

    def helper(self):
        a = self.a
        a.label('L_helper')
        t0, t1, t2, t3, l4, l16, ones, a_st, a_cs, v_st, v_cs, aw, vtw, vto, vd = 2, 3, 4, 5, 6, 7, 8, 12, 13, 14, 15, 16, 18, 19, 20
        F, D, SA, SC = 32, 96, 128, 160
        s_h, s_tw, s_a, s_b, s_trot = 65, 66, 67, 68, 69
        xm = 4; s_r = 70; vrf, vfl, aw2, dw = 21, 22, 24, 80
        a(f's_sub_u32 s{s_h}, s{s_wave}, 6')
        if self.tlb:
            self.pointers()
            def others():
                for p, n in ((pPHI, 65536), (pDBG, 256), (pAWO, 1 << 21), (pBW, 3 << 21), (pBWO, 1 << 21), (pOUT, 1 << 22)):
                    for o in list(range(0, n, 1 << 21)) + ([n - 4] if n >= 1 << 21 else []):
                        a(f's_mov_b32 s{s_t}, {o}'); a(f's_load_dword s{s_fd}, s[{p}:{p+1}], s{s_t}')
            def wsp():
                a(f's_lshr_b32 s{s_t}, s2, 3'); a(f's_lshl_b32 s{s_t}, s{s_t}, 21'); a(f's_add_u32 s{s_t}, s{s_t}, 0x80000'); a(f's_min_u32 s{s_t}, s{s_t}, {WS_END - 4}')
                a(f's_load_dword s{s_fd}, s[{pWS}:{pWS+1}], s{s_t}')
                if self.tlb == 2:
                    for k in range(6): a(f's_mov_b32 s{s_t}, {(k << 21) + 0x80000}'); a(f's_load_dword s{s_fd}, s[{pWS}:{pWS+1}], s{s_t}')
            self.cond([f's_cmp_eq_u32 s{s_h}, 0'], wsp)
            self.cond([f's_cmp_eq_u32 s{s_h}, 1'], others)
        a(f'v_lshlrev_b32 v{l4}, 2, v1'); a(f'v_lshlrev_b32 v{l16}, 4, v1')
        a.extend(self.w_frag_addr(aw, s_h, 0, t0, t1, t2))
        for k in range(2): a(f'v_add_u32 v{aw2+k}, {L_SPARE}, v{aw+k}')
        a(f's_and_b32 s{s_t+1}, s{s_m}, {15 - self.rot0}'); a(f's_mul_i32 s{s_t}, s{s_t+1}, 11'); a(f's_lshr_b32 s{s_t}, s{s_t}, 5'); a(f's_mul_i32 s{s_t}, s{s_t}, 3'); a(f's_sub_u32 s{s_t+1}, s{s_t+1}, s{s_t}'); a(f's_mul_i32 s{s_t+1}, s{s_t+1}, {STG}')
        for k in range(2): a(f'v_add_u32 v{aw+k}, s{s_t+1}, v{aw+k}')
        a.extend(self.flag_addr(vrf, t0, None, remote=True))
        a(f'v_lshrrev_b32 v{t0}, 5, v1'); a(f'v_and_b32 v{t1}, 31, v1'); a(f'v_lshlrev_b32 v{t1}, 4, v{t1}')
        a(f'v_lshl_add_u32 v{v_st}, v{t0}, 10, v{t1}')
        a(f'v_and_b32 v{t2}, 24, v1'); a(f'v_and_b32 v{t3}, 3, v1'); a(f'v_lshl_add_u32 v{t2}, v{t3}, 1, v{t2}'); a(f'v_add_u32 v{t2}, v{t2}, v{t0}')
        a.extend(sx(s_t, [(s_h, 256)], P_NM)); a(f'v_lshl_add_u32 v{a_st}, v{t2}, 3, s{s_t}')
        a(f'v_mov_b32 v{t2}, {BIG}'); a(f'v_cmp_gt_u32 vcc, 384, v{t1}'); a(f'v_cndmask_b32 v{v_cs}, v{t2}, v{v_st}, vcc')
        a.extend(sx(s_t, [(s_h, 384)], P_CS)); a(f'v_lshl_add_u32 v{t1}, v{t0}, 3, v{t1}'); a(f'v_add_u32 v{a_cs}, s{s_t}, v{t1}')
        if not self.tlb: self.pointers()

        def touch_setup(first=False):
            if not self.touch: return
            c, gt = s_t + 2, s_t + 3
            def cls(b):
                a(f's_lshr_b32 s{gt}, s{b}, 7'); a(f's_sub_u32 s{gt}, 3, s{gt}'); a(f's_and_b32 s{gt}, s{gt}, 7')
                a(f's_sub_u32 s{c}, s{s_g}, s{gt}'); a(f's_and_b32 s{c}, s{c}, 7'); a(f's_sub_u32 s{c}, s{c}, 1')
                a(f's_and_b32 s{s_t}, s{s_g}, 8'); a(f's_add_u32 s{gt}, s{gt}, s{s_t}'); a(f's_lshl_b32 s{gt}, s{gt}, 7')
            a(f's_and_b32 s{s_t+4}, s{s_m}, {xm-1}'); a(f's_lshl_b32 s{s_t+4}, s{s_t+4}, 1'); a(f's_add_u32 s{s_t+4}, s{s_t+4}, s{s_h}')
            cls(sW)
            if first:
                a(f's_or_b32 s{s_rot}, s{s_m}, 3'); a(f's_and_b32 s{s_rot}, s{s_rot}, {self.rot0}'); a(f's_mov_b32 s{s_trot}, 0')
                if self.d0: a(f's_lshr_b32 s{s_t}, s{gt}, 7'); a(f's_add_u32 s{s_rot}, s{s_rot}, s{s_t}')
            else: a(f's_mov_b32 s{s_rot}, s{s_rot2}'); a(f's_bfe_u32 s{s_trot}, s{gt}, 0x30007')
            a(f's_cmp_ge_u32 s{c}, 3'); a(f's_cselect_b32 s{s_t}, {32*6144 - 3*2048}, 0'); a(f's_add_u32 s{gt}, s{gt}, s{s_t}')
            a(f's_lshl_b32 s{s_t}, s{c}, 11'); a(f's_add_u32 s{gt}, s{gt}, s{s_t}')
            a(f's_mul_i32 s{s_t}, s{s_t+4}, {(16//xm)*6144}'); a(f's_add_u32 s{gt}, s{gt}, s{s_t}')
            a(f's_cmp_lt_u32 s{c}, 6'); a(f's_cselect_b32 s{s_t}, {16//xm}, 0')
            a(f'v_mul_u32_u24 v{vtw}, 6144, v1'); a(f'v_add_u32 v{vtw}, s{gt}, v{vtw}')
            a(f'v_mov_b32 v{t0}, {BIG}'); a(f'v_cmp_gt_u32 vcc, s{s_t}, v1'); a(f'v_cndmask_b32 v{vtw}, v{t0}, v{vtw}, vcc')
            cls(sWO)
            a(f's_lshl_b32 s{s_t}, s{c}, 19'); a(f's_add_u32 s{gt}, s{gt}, s{s_t}')
            a(f's_mul_i32 s{s_t}, s{s_t+4}, {(128//xm)*2048}'); a(f's_add_u32 s{gt}, s{gt}, s{s_t}')
            a(f's_cmp_lt_u32 s{c}, 4'); a(f's_cselect_b32 s{s_t}, {32//xm}, 0')
            a(f'v_lshlrev_b32 v{vto}, 11, v1'); a(f'v_add_u32 v{vto}, s{gt}, v{vto}')
            a(f'v_cmp_gt_u32 vcc, s{s_t}, v1'); a(f'v_cndmask_b32 v{vto}, v{t0}, v{vto}, vcc')
        def touchW(st):
            if not self.touch: return
            if st == 0: a(f's_add_u32 s{s_tw}, s{s_rot}, s{s_trot}')
            else: a(f's_cmp_le_u32 s{s_trot}, {st-1}'); a(f's_addc_u32 s{s_tw}, s{s_rot}, {st-1}')
            a(f's_and_b32 s{s_tw}, s{s_tw}, 15'); a(f's_mul_i32 s{s_tw}, s{s_tw}, {64*6144}')
            a(f'buffer_load_dword v{vd}, v{vtw}, {srd(sW)}, s{s_tw} offen')
        def touchO(k):
            if not self.touch: return
            a(f's_mov_b32 s{s_tw}, {k*(32//xm)*2048}')
            a(f'buffer_load_dword v{vd}, v{vto}, {srd(sWO)}, s{s_tw} offen')
        def phi_load():
            a(f's_mov_b64 s[{sX}:{sX+1}], s[{pPHI}:{pPHI+1}]'); a(f's_mov_b32 s{sX+2}, 65536')
            a.extend(sx(s_t, [(s_g, 4096), (s_h, 2048)])); a(f's_lshl_b32 s{s_t+1}, s{s_h}, 11'); a(f's_add_u32 m0, s{s_t+1}, {P_PHI}')
            for j in range(2): a(f'buffer_load_dwordx4 v{l16}, {srd(sX)}, s{s_t} offen offset:{1024*j} lds')
        vc = 26
        if self.cpf: a(f's_getpc_b64 s[{s_t}:{s_t+1}]')
        if self.cpf: a.label('L_pc')
        if self.cpf: a(f's_sub_u32 s{s_t}, s{s_t}, L_pc-{KNAME}'); a(f's_subb_u32 s{s_t+1}, s{s_t+1}, 0')
        if self.cpf: a(f's_lshr_b32 s{s_t+2}, s2, 3'); a.extend(sx(s_t+3, [(s_t+2, 1280), (s_h, 640)]))
        if self.cpf: a(f'v_lshl_add_u32 v{t0}, v1, 7, s{s_t+3}'); a(f'v_min_u32 v{t0}, L_last-{KNAME}, v{t0}')
        if self.cpf: a(f'v_mov_b32 v{vc+1}, s{s_t+1}'); a(f'v_add_co_u32 v{vc}, vcc, s{s_t}, v{t0}'); a(f'v_addc_co_u32 v{vc+1}, vcc, 0, v{vc+1}, vcc')
        def code_touch():
            a('s_mov_b64 exec, 31'); a(f'global_load_dword v{vd}, {vr(vc,2)}, off'); a('s_mov_b64 exec, -1')
        if self.cpf & 1: code_touch()
        def cold_touch():
            a(f's_and_b32 s{s_t}, s{s_m}, 3'); a(f's_and_b32 s{s_t+1}, s{s_m}, 12')
            a.extend(sx(s_t+2, [(s_t, 16*6144), (s_t+1, 64*6144), (s_h, 64*6144), (s_g, 128)]))
            a(f'v_lshlrev_b32 v{t0}, 11, v1'); a('s_mov_b32 exec_hi, 0xffff')
            for st in self.t0s:
                a(f's_add_u32 s{s_t}, s{s_t+2}, {abs(st)*64*6144}'); a(f'buffer_load_dword v{vd}, v{t0}, {srd(sW)}, s{s_t} offen')
            a('s_mov_b32 exec_hi, -1')
        if self.t0s and self.t0s[0] < 0: cold_touch()
        self.w_dma_offsets(dw, s_h, t0, t1, t2)
        touch_setup(True)
        if self.t0s and self.t0s[0] >= 0: cold_touch()
        for st in range(1, 3 + self.dist): touchW(st)

        def init_stores():
            for k in range(4): a(f'v_mov_b32 v{SA+k}, -1')
            fill = f'buffer_store_dwordx4 {vr(SA,4)}, v{l16}, {srd(sWS)}, s{s_t} offen'
            a.extend(sx(s_t, [(s_g, 131072), (s_h, 65536), (s_m, 2048)], WS_KVP)); a(fill + ' sc1'); a(fill + ' offset:1024 sc1')
            a(f's_add_u32 s{s_t}, s{s_t}, 32768'); a(fill + ' sc1'); a(fill + ' offset:1024 sc1')
            a('s_mov_b64 exec, 0xff')
            a.extend(sx(s_t, [(s_g, 8192), (s_h, 4096), (s_m, 128)], WS_KVF)); a(fill + ' sc1'); a(fill + ' offset:2048 sc1')
            a.extend(sx(s_t, [(s_g, 4096), (s_h, 2048), (s_m, 128)], WS_ZP)); a(fill + ' sc1')
            a.extend(sx(s_t, [(s_g, 256), (s_h, 128)], WS_ZF))
            a(f's_cmp_eq_u32 s{s_m}, s{s_g}'); a(f's_cselect_b32 s{s_t}, s{s_t}, {BIG}'); a(fill + ' sc1')
            a('s_mov_b64 exec, -1')
            a(f'v_lshrrev_b32 v{t1}, 2, v1'); a(f'v_lshlrev_b32 v{t1}, 10, v{t1}'); a(f'v_and_or_b32 v{t1}, v1, 3, v{t1}')
            a.extend(sx(s_t, [(s_m, 64), (s_g, 4)])); a(f'v_add_u32 v{t1}, s{s_t}, v{t1}')
            a(f's_cmp_eq_u32 s{s_h}, 0'); a(f's_cselect_b32 s{s_t+1}, {2 + self.ls}, 7'); a(f's_cselect_b32 s{s_t}, 0, {WS_RF}')
            a(f'v_lshlrev_b32 v{t1}, s{s_t+1}, v{t1}'); a(f'v_mov_b32 v{t0}, 0')
            a('s_mov_b64 exec, 0xfffffff')
            a(f'buffer_store_dword v{t0}, v{t1}, {srd(sWS)}, s{s_t} offen sc1')
            a('s_mov_b64 exec, -1')
            if self.hu is not None:
                a.extend(sx(s_t, [(s_h, 32768), (s_g, 2048), (s_m, 128)], WS_HU)); a(f'buffer_store_dword v{t0}, off, {srd(sWS)}, s{s_t} sc1')
            a.extend(sx(s_t, [(s_h, 4)], P_CNT)); a(f'v_mov_b32 v{t1}, s{s_t}'); a(f'ds_write_b32 v{t1}, v{t0}')
            a.extend(sx(s_t, [(s_g, 16384), (s_m, 1024)], WS_CS)); a(f's_cmp_eq_u32 s{s_h}, 1'); a(f's_cselect_b32 s{s_t}, s{s_t}, {BIG}'); a(fill + ' sc1')
        for k in range(4): a(f'v_mov_b32 v{ones+k}, 0x3f803f80')
        def cs_reads(aw=aw):
            for s in range(2):
                for n in range(6):
                    for t in range(2):
                        a(f'ds_read_b64_tr_b16 {vr(F+24*s+4*n+2*t,2)}, v{aw+(n&1)} offset:{(n>>1)*8192+(32*s+4*t)*128}')
            a('s_waitcnt lgkmcnt(0)')
        def cs_publish():
            for s in range(2):
                for n in range(6): a(mf16(D+4*n, ones, F+24*s+4*n, D+4*n if s else None))
            a.extend(sx(s_t, [(s_l, 262144), (s_g, 16384), (s_m, 1024), (s_h, 128)], WS_CS))
            a('s_mov_b64 exec, 0xffff')
            for n in range(6): a(f'buffer_store_dword v{D+4*n}, v{l4}, {srd(sWS)}, s{s_t} offen offset:{(n>>1)*256+(n&1)*64} sc1')
            a('s_mov_b64 exec, -1')
        def chunk(t):
            a(f's_mul_i32 s{s_t}, s{s_m}, {64*6144}'); a(f's_mul_i32 s{s_t+1}, s{s_h}, 12288'); a(f's_add_u32 m0, s{s_t+1}, {L_SPARE + 4096*(t//2)}')
            for j in range(2*t, 2*t+2): a(f'buffer_load_dwordx4 v{dw+j}, {srd(sW)}, s{s_t} offen offset:{1024*(j%4)} lds')
        def arrive():
            a(f's_getreg_b32 s{s_t}, hwreg(HW_REG_XCC_ID, 0, 3)'); a(f's_lshl_b32 s{s_t}, s{s_t}, 2'); a(f's_lshl_b32 s{s_t+1}, 1, s{s_t}')
            a.extend(sx(s_t, [(s_m, 16), (s_rot2, 1)]))
            a('s_mov_b64 exec, 1')
            a(f'v_mov_b32 v{t0}, s{s_t+1}')
            a(f'buffer_atomic_add v{t0}, off, {srd(sDBG)}, s{s_t} sc1')
            a('s_mov_b64 exec, -1')
        iload = f'buffer_load_dword v{vfl}, v{t2}, {srd(sDBG)}, 0 offen sc1'
        def init_look():
            a(f'v_and_b32 v{t2}, 31, v1'); a(f'v_lshlrev_b32 v{t2}, 3, v{t2}'); a(iload)
        def init_wait():
            a('s_waitcnt vmcnt(0)')
            self.spin(['s_sleep 16', iload],
                      [f'v_lshrrev_b32 v{t1}, 4, v{vfl}', f'v_and_b32 v{t1}, 0x0f0f0f0f, v{t1}', f'v_and_b32 v{t3}, 0x0f0f0f0f, v{vfl}',
                       f'v_sad_u8 v{t1}, v{t1}, 0, 0', f'v_sad_u8 v{t3}, v{t3}, 0, v{t1}', f'v_cmp_gt_u32 vcc, 8, v{t3}'], t3, 3, pre=True)
            a(f's_lshr_b32 s{s_t}, s{s_rot2}, 3'); a(f's_lshl_b32 s{s_t+1}, s{s_m}, 1'); a(f's_add_u32 s{s_t}, s{s_t}, s{s_t+1}')
            a(f'v_readlane_b32 s{s_fast}, v{vfl}, s{s_t}')
            a(f's_and_b32 s{s_fast}, s{s_fast}, 0x88888888'); a(f's_cselect_b32 s{s_fast}, {1 if self.local else 0}, 0')
            a(f'v_mov_b32 v{t3}, s{s_fast}'); a(f'v_mov_b32 v{t2}, {P_MODE}'); a(f'ds_write_b32 v{t2}, v{t3}')
        def gather(R, va, so, ks):
            L = []
            for k in ks: L += [f's_add_u32 s{s_t}, s{so}, {4096*(k//2)}', f'buffer_load_dwordx4 {vr(R+4*k,4)}, v{va}, {srd(sWS)}, s{s_t} offen offset:{2048*(k%2)} sc1']
            return L
        def total(R):
            n = 8
            while n > 1:
                n //= 2
                for k in range(4*n): a(f'v_add_f32 v{R+k}, v{R+k}, v{R+k+4*n}')
            a(sw32(R, R+2)); a(sw32(R+1, R+3)); a(f'v_add_f32 v{R}, v{R}, v{R+2}'); a(f'v_add_f32 v{R+1}, v{R+1}, v{R+3}')
        def stats_finish():
            for k in range(2): a(f'v_mov_b32_dpp v{SA+2+k}, v{SA+k} row_shl:4 row_mask:0xf bank_mask:0xf')
            for k in range(2): a(f'v_mul_f32 v{SA+k}, {f2u(-1/1024)}, v{SA+k}'); a(f'v_mul_f32 v{SA+2+k}, {f2u(1/1024)}, v{SA+2+k}')
            for k in range(2): a(f'v_fma_f32 v{SA+2+k}, -v{SA+k}, v{SA+k}, v{SA+2+k}')
            for k in range(2): a(f'v_max_f32 v{SA+2+k}, 0, v{SA+2+k}')
            for k in range(2): a(f'v_add_f32 v{SA+2+k}, {f2u(1e-5)}, v{SA+2+k}')
            for k in range(2): a(f'v_rsq_f32 v{SA+2+k}, v{SA+2+k}')
            a('s_mov_b32 exec_lo, 0x0f0f0f0f'); a('s_mov_b32 exec_hi, 0x0f0f0f0f')
            a(f'ds_write_b64 v{a_st}, {vr(SA,2)}'); a(f'ds_write_b64 v{a_st}, {vr(SA+2,2)} offset:512')
            a('s_mov_b64 exec, -1')
        def cs_finish():
            total(SC)
            a(f's_mul_i32 s{s_t}, s{s_l}, 768'); a(f'v_add_u32 v{t0}, s{s_t}, v{a_cs}')
            a('s_mov_b32 exec_lo, 0xffffff'); a('s_mov_b32 exec_hi, 0xffffff')
            a(f'ds_write_b64 v{t0}, {vr(SC,2)}')
            a('s_mov_b64 exec, -1')
        l0 = [f's_cmp_eq_u32 s{s_l}, 0']; ln0 = [f's_cmp_lg_u32 s{s_l}, 0']; l01 = [f's_cmp_lt_u32 s{s_l}, 2']
        a(f's_mov_b32 s{s_r}, 0')
        a.label('L_hp_layer')
        a.extend(sx(s_a, [(s_l, 262144), (s_m, 16384), (s_h, 512)], WS_ST))
        a.extend(sx(s_b, [(s_l, 262144), (s_g, 16384), (s_h, 384)], WS_CS))
        self.trickle_setup(); self.warm_wo_setup()
        hi = lambda: self.hprio and a(f's_setprio {self.hprio}')
        lo = lambda: self.hprio and a('s_setprio 0')
        l1 = [f's_cmp_eq_u32 s{s_l}, 1']
        for i in range(17):
            a('s_barrier')
            if self.jit and i in (0, 1, 4, 8, 9, 12, 16): self.jitter(30 + i)
            ncs = 16 - self.rot0
            l0h0 = [f's_or_b32 s{s_t}, s{s_l}, s{s_h}', f's_cmp_eq_u32 s{s_t}, 0']
            if i < ncs: self.cond([f's_and_b32 s{s_t}, s{s_m}, {ncs-1}', f's_lshl_b32 s{s_t+1}, s{s_l}, 4', f's_or_b32 s{s_t}, s{s_t}, s{s_t+1}', f's_cmp_eq_u32 s{s_t}, {i}'], cs_reads)
            if i == 8: self.cond(l1, lambda: cs_reads(aw2))
            if i in (self.i0 + self.iw, 5, 7, 13): a('s_waitcnt vmcnt(0)')
            if i == 5: self.cond(ln0, lambda: self.flag_wait(s_r, vrf, vfl, 8, pre=True, nap=self.nap))
            if i == 9: self.cond(l0h0, init_wait)
            if i <= 12: hi()
            if i == self.i0: self.cond(l0, lambda: (init_stores(), phi_load()))
            if i == self.i0 + self.iw + 1: self.cond(l0h0, arrive)
            if i == max(4, ncs, self.i0 + self.iw + 1): self.cond(l0, cs_publish)
            if i == 9: self.cond(l1, cs_publish)
            if i == 8: self.cond(l0h0, init_look)
            if i == 11 and self.cpf & 2: self.cond(l01, code_touch)
            if i == 4: self.cond(ln0, lambda: a(self.flag_load(s_r, vrf, vfl)))
            if i + 3 + self.dist <= 15: touchW(i + 3 + self.dist)
            if 5 <= i <= 8: touchO(i - 5)
            if 1 <= i <= 6: self.cond(l1, lambda: chunk(i - 1))
            if i == 6: self.cond([f's_cmp_eq_u32 s{s_l}, 2'], phi_load)
            if i in (10, 11): a.extend(gather(SA, v_st, s_a, range(4*(i-10), 4*(i-10)+4)))
            if i in (11, 12): self.cond(l01, lambda: a.extend(gather(SC, v_cs, s_b, range(4*(i-11), 4*(i-11)+4))))
            if i <= 12: lo()
            if 1 <= i <= 12: self.trickle(i - 1)
            if i == 13: self.ll_wait(gather(SA, v_st, s_a, range(8)), list(range(SA, SA+32)), t0, t1, 6, pre=True); total(SA)
            if i == 14: stats_finish()
            if i == 14: self.cond(l01, lambda: self.ll_wait(gather(SC, v_cs, s_b, range(8)), list(range(SC, SC+32)), t0, t1, 7, pre=True))
            if i == 15: self.cond(l01, cs_finish); a('s_waitcnt lgkmcnt(0)')
        a.extend(sx(s_t+1, [(s_l, 8192), (s_m, 256), (s_g, 16), (s_h, 4096)])); a(f's_lshl_b32 s{s_t+1}, s{s_t+1}, {self.ls}')
        a(f'v_and_b32 v{t0}, 3, v1'); a(f'v_lshlrev_b32 v{t0}, {2 + self.ls}, v{t0}'); a(f'buffer_load_dword v{vd}, v{t0}, {srd(sWS)}, s{s_t+1} offen sc1')
        a.extend(sx(s_t, [(s_l, 8192), (s_m, 256), (s_rot2, 16)]))
        a(f's_xor_b32 s{s_t}, s{s_t}, 128'); a.extend(sx(s_r, [(s_t, 32), (s_h, 256)], WS_RF))
        a(f's_bitcmp0_b32 s{s_l}, 0')
        a(f's_cselect_b64 s[{sW}:{sW+1}], s[{pBW}:{pBW+1}], s[{pAW}:{pAW+1}]')
        a(f's_cselect_b64 s[{sWO}:{sWO+1}], s[{pBWO}:{pBWO+1}], s[{pAWO}:{pAWO+1}]')
        touch_setup()
        touchW(0); touchW(1); touchW(2)
        a(f's_bitcmp1_b32 s{s_l}, 0'); a('s_cbranch_scc1 L_hp_B')
        self.reduce_job()
        a('s_branch L_hp_join')
        a.label('L_hp_B')
        a.label('L_hp_join')
        a('s_barrier')
        a(f's_cmp_eq_u32 s{s_l}, 3'); a('s_cbranch_scc1 L_fin')
        self.trickle_rest(1); self.warm_w()
        a(f's_add_u32 s{s_r}, s{s_r}, {4096*32}')
        a(f's_add_u32 s{s_l}, s{s_l}, 1')
        a('s_barrier')
        for st in range(3, 3 + self.dist): touchW(st)
        a('s_branch L_hp_layer')

    def compute(self):
        a = self.a
        one, l16, voffR, voffI, a_tok, a_row, a_t32, a_csr, a_csv = 0, 2, 3, 4, 5, 6, 7, 8, 9
        ax, awq = 10, 12
        l4 = 14; vst = 15
        XR = 16
        ACC = 32
        FX = [128, 144]; FW = [160, 184]
        T = 208
        t0, t1, t2, t3 = T, T+1, T+2, T+3
        s_wm, s_wh, s_rslot, s_delta, s_stg, s_ones = 65, 66, 67, 68, 69, 70
        s_o = 71
        s_ob = 75
        s_obase, s_ooff, s_a, s_b, s_c, s_d, s_e, s_fp, s_st, s_fo = range(77, 87)
        a(f'v_lshrrev_b32 v{t0}, 4, v1')
        a(f'v_and_b32 v{t1}, 15, v1')
        a(f'v_and_b32 v{t2}, 1, v{t0}'); a(f'v_lshrrev_b32 v{t3}, 1, v{t0}'); a(f'v_lshl_add_u32 v{t2}, v{t2}, 1, v{t3}')
        a(f'v_lshlrev_b32 v{voffR}, 11, v{t1}'); a(f'v_lshl_add_u32 v{voffR}, v{t2}, 4, v{voffR}')
        def x0():
            a = self.a
            a.extend(sx(s_t, [(s_m, 1 << 18), (s_wave, 1 << 16), (s_g, 128)])); a(f's_add_u32 s{s_t+1}, s{s_t}, 32768')
            if not self.st0 & 16 and self.xd is None and not self.d0: self.pointers()
            if self.crow & 1:
                a.extend(sx(s_t+2, [(2, 4*6144), (s_wave, 6144)])); a(f'v_lshlrev_b32 v{T+8}, 7, v1'); a('s_mov_b32 exec_hi, 0xffff')
                a(f'buffer_load_dword v{T+9}, v{T+8}, {srd(sW)}, s{s_t+2} offen'); a('s_mov_b32 exec_hi, -1')
            if self.crow & 2:
                a.extend(sx(s_t+2, [(2, 4*4096), (s_wave, 4096)])); a(f'v_lshlrev_b32 v{T+8}, 7, v1'); a('s_mov_b32 exec_hi, 0')
                a(f'buffer_load_dword v{T+9}, v{T+8}, {srd(sX)}, s{s_t+2} offen'); a('s_mov_b32 exec_hi, -1')
            if self.xl:
                a(f'v_lshrrev_b32 v{T+8}, 3, v1'); a(f'v_and_b32 v{T+9}, 7, v1'); a(f'v_lshlrev_b32 v{T+9}, 4, v{T+9}'); a(f'v_lshl_add_u32 v{T+8}, v{T+8}, 11, v{T+9}')
                a.extend(sx(s_t+1, [(s_wave, 4096)], L_SPARE)); a(f's_mov_b32 m0, s{s_t+1}')
                for j in range(4):
                    if j: a(f's_add_u32 s{s_t}, s{s_t}, {16384 - 1024}')
                    a(f'buffer_load_dwordx4 v{T+8}, {srd(sX)}, s{s_t} offen offset:{1024*j} lds')
                a(f'v_lshrrev_b32 v{T+9}, 4, v{voffR}'); a(f'v_and_b32 v{T+9}, 0x780, v{T+9}'); a(f'v_and_or_b32 v{T+9}, v{voffR}, 48, v{T+9}'); a(f'v_add_u32 v{T+9}, s{s_t+1}, v{T+9}')
                return
            for tb in range(2):
                for e in range(2): a(f'buffer_load_dwordx4 {vr(XR+8*tb+4*e,4)}, v{voffR}, {srd(sX)}, s{s_t+tb} offen offset:{64*e}')
        if self.d0:
            self.pointers(); a.extend(sx(s_t, [(s_wave, 4096)], XOFF)); a(f'v_lshlrev_b32 v{T+9}, 7, v{t1}'); a(f'v_lshl_add_u32 v{T+9}, v{t0}, 4, v{T+9}'); a(f'v_add_u32 v{T+9}, s{s_t}, v{T+9}')
        elif self.st0 & 16 or self.xd is not None: self.pointers()
        elif not self.st0 & 8: x0()
        a(f's_lshr_b32 s{s_wm}, s{s_wave}, 1'); a(f's_and_b32 s{s_wh}, s{s_wave}, 1')
        a(f'v_mov_b32 v{one}, 1')
        a(f'v_lshl_add_u32 v{voffI}, v{t2}, 4, v{t1}'); a(f'v_lshlrev_b32 v{voffI}, 4, v{voffI}'); a(f'v_mov_b32 v{vst}, v{voffI}')
        a(f'v_lshlrev_b32 v{l16}, 4, v1'); a(f'v_lshlrev_b32 v{l4}, 2, v1')
        a.extend(sx(s_t, [(s_wm, 256)], P_NM))
        a(f'v_lshl_add_u32 v{a_tok}, v{t1}, 2, s{s_t}')
        a(f'v_lshl_add_u32 v{a_row}, v{t0}, 4, s{s_t}')
        a(f'v_and_b32 v{t3}, 31, v1'); a(f'v_lshl_add_u32 v{a_t32}, v{t3}, 2, s{s_t}')
        a.extend(sx(s_t, [(s_wh, 128)], P_CS))
        a(f'v_lshl_add_u32 v{a_csr}, v{t0}, 4, s{s_t}')
        a(f'v_lshl_add_u32 v{a_csv}, v{t1}, 2, s{s_t}')
        a(f's_mov_b32 s{s_stg}, {STG}'); a(f's_mov_b32 s{s_ones}, 0x3f803f80')
        a(f'v_lshrrev_b32 v{t2}, 1, v{t1}'); a(f'v_xor_b32 v{t2}, v{t2}, v{t0}')
        a.extend(sx(s_t, [(s_wm, 8192)], XOFF)); a(f'v_lshl_add_u32 v{t1}, v{t1}, 7, s{s_t}')
        for s in range(2):
            a(f'v_xor_b32 v{t3}, {4*s}, v{t2}'); a(f'v_lshl_add_u32 v{ax+s}, v{t3}, 4, v{t1}')
        a.extend(sx(s_st, [(s_m, 16384), (s_g, 1024), (s_wave, 256)], WS_ST))

        q = 216
        def stats():
            S = []
            for k in range(8):
                for tb in range(2):
                    r = XR + 8*tb + k
                    S += [f'v_dot2_f32_bf16 v{q+2*tb}, s{s_ones}, v{r}, ' + (f'v{q+2*tb}' if k else '0'),
                          f'v_dot2_f32_bf16 v{q+2*tb+1}, v{r}, v{r}, ' + (f'v{q+2*tb+1}' if k else '0')]
            return S + [sw32(q, q+2), sw32(q+1, q+3), pk('add', q, q, q+2), sw16(q, q+1), f'v_add_f32 v{q}, v{q}, v{q+1}']
        st_store = f'buffer_store_dword v{q}, v{l4}, {srd(sWS)}, s{s_st} offen sc1'
        def acc(b, n): return ACC + 4*(6*b + n)
        A2 = 208
        def reads(s, st, slot=0):
            x, w, o = (ax, awq, STG*slot) if slot < 2 else (A2, A2+2, 0)
            X = [f'ds_read_b128 {vr(FX[st]+4*b,4)}, v{x+s} offset:{o+2048*b}' for b in range(4)]
            W = [[f'ds_read_b64_tr_b16 {vr(FW[st]+4*n+2*t,2)}, v{w+(n&1)} offset:{o+(n>>1)*8192+(32*s+4*t)*128}' for t in range(2)] for n in range(6)]
            L = [X[0]] + W[0] + X[1:]
            for n in range(1, 6): L += W[n]
            return L
        def mfma(st, b, n, zero=False):
            C = None if zero else acc(b, n)
            return mf16(acc(b, n), FW[st]+4*n, FX[st]+4*b, C) if n < 4 else mf16(acc(b, n), FX[st]+4*b, FW[st]+4*n, C)
        def mfmas(st, zero=False):
            return [mfma(st, b, n, zero) for n in range(6) for b in (range(4) if not (self.snake and n % 2) else range(3, -1, -1))]
        env = dict(locals())
        a.extend(self.w_frag_addr(awq, s_wh, 0, t0, t1, t2))
        self.epiA(env, 'v')
        if self.st0 & 8: x0()
        a(f'v_mov_b32 v{q}, -1'); a(st_store)
        a(f's_sub_u32 s{s_st}, s{s_st}, 262144')
        a.label('L_first')
        a('s_barrier')
        self.stamp(12)
        if self.st0 & 16: self.cond([f's_cmp_eq_u32 s{s_l}, 0'], x0)
        S = autowait(reads(0, 0) + interleave(mfmas(0, True), reads(1, 1), per=[0]*4 + [1]*20))
        cut = [k for k, t in enumerate(S) if t.startswith('v_mfma')][self.fpos-1] + 1
        a.extend(S[:cut])
        a('s_waitcnt vmcnt(0)')
        self.stamp(11)
        self.cond([f's_cmp_lg_u32 s{s_l}, 0'], lambda: self.flag_set(s_fo, one))
        a.extend(S[cut:])
        if self.xl or self.d0: self.cond([f's_cmp_eq_u32 s{s_l}, 0'], lambda: [a(f'ds_read_b128 {vr(XR+8*tb+4*e,4)}, v{T+9} offset:{2048*tb+64*e}') for tb in range(2) for e in range(2)])
        a('s_waitcnt lgkmcnt(0)')
        S = [f'v_add_u32 v{A2+k}, {2*STG}, v{ax+k}' for k in range(4)] + [f's_mov_b32 s{s_i}, 0']
        assert awq == ax + 2
        S += sx(s_t, [(s_l, 1 << 22), (s_m, 1 << 18)], WS_OI)
        S += sx(s_obase, [(s_wave, 1 << 16), (s_t, 1)]) + [f's_lshl_b32 s{s_ooff}, s{s_rot2}, 11']
        S += [f's_add_u32 s{s_ob}, s{s_obase}, s{s_ooff}', f's_add_u32 s{s_ob+1}, s{s_ob}, 32768']
        S += sx(s_a, [(s_wm, 1 << 17), (s_g, 2048), (s_wh, 1024), (s_t, 1)])
        S += sx(s_o, [(s_g, 16384), (s_wave, 4096), (s_t, 1)], WS_XI - WS_OI) + [f's_add_u32 s{s_o+k}, s{s_o}, {1024*k}' for k in range(1, 4)]
        S += sx(s_fp, [(s_l, 8192), (s_m, 256)]) + sx(s_fo, [(s_g, 16), (s_wave, 4), (s_fp, 1)]) + sx(s_fo+1, [(s_fo, 32)], WS_RF) + [f's_lshl_b32 s{s_fo}, s{s_fo}, {self.ls}']
        S += sx(s_t, [(s_wm, 8), (s_rot2, 16)]) + [f's_add_u32 s{s_fp}, s{s_fp}, s{s_t}']
        a.extend(interleave(mfmas(1), S, per=[2]*20 + [3]*4))
        if self.lfl == 2: self.cond([f's_cmp_lg_u32 s{s_l}, 0'], lambda: (a(f's_sub_u32 s{s_t+1}, s{s_fo+1}, {4096*32}'), self.flag_set(s_t, one, 2)))
        a(f's_bitcmp1_b32 s{s_l}, 0'); a('s_cbranch_scc1 L_preB')
        self.epiA(env, 's')
        a('s_branch L_pre_done')
        a.label('L_preB')
        self.epiB(env, 's')
        def last():
            a(f's_mov_b64 s[{sOUT}:{sOUT+1}], s[{pOUT}:{pOUT+1}]'); a(f's_mov_b32 s{sOUT+2}, {2048*1024*2}')
            a.extend(sx(s_o, [(s_m, 1 << 18), (s_wave, 1 << 16), (s_g, 128)]))
            a(f's_add_u32 s{s_o+1}, s{s_o}, 64'); a(f's_add_u32 s{s_o+2}, s{s_o}, 32768'); a(f's_add_u32 s{s_o+3}, s{s_o}, {32768+64}')
            a(f'v_mov_b32 v{vst}, v{voffR}')
        self.cond([f's_cmp_eq_u32 s{s_l}, 3'], last)
        a.label('L_pre_done')
        a(f's_add_u32 s{s_st}, s{s_st}, 262144')
        if self.d0: a(f's_cmp_eq_u32 s{s_l}, 0'); a(f's_cselect_b32 s{s_rslot}, {self.xi}, 1')
        if self.xd is not None: a(f's_cmp_eq_u32 s{s_l}, 0'); a(f's_cselect_b32 s{s_rslot}, 6, 0'); a('s_cbranch_scc1 L_go')
        a.extend(stats()); a(st_store)
        a.label('L_go')
        R1 = reads(0, 0, 1); isX = lambda t: 'b128' in t
        if self.spec & 4:
            a(f's_cmp_eq_u32 s{s_l}, 0'); a('s_cbranch_scc1 L_go0')
            a.extend([t for t in R1 if not isX(t)])
            a('s_barrier')
            self.stamp(1)
            a.extend([t for t in R1 if isX(t)])
            a('s_branch L_q1')
            a.label('L_go0')
        a('s_barrier')
        self.stamp(1)
        a.extend(R1)
        a('s_branch L_q1')
        nb = self.bpos + 1
        def half0(slot):
            if self.prof >= 5:
                a('s_memtime s[92:93]' if self.prof == 5 else 's_memrealtime s[92:93]'); a(f's_lshl_b32 m0, s{s_l}, 4'); a(f's_add_u32 m0, m0, s{s_i}'); a(f's_add_u32 m0, m0, {(slot+2)%3+1}')
            if self.probe and self.probe[1][1] >= 20 and (self.probe[1][1] - 20) % 3 == slot:
                self.cond([f's_cmp_eq_u32 s{s_i}, {(self.probe[1][1] - 21) // 3 * 3}'], lambda: self.stamp(self.probe[1][1]))
            if self.d0 and slot == 1:
                a(f's_cmp_eq_u32 s{s_i}, s{s_rslot}'); a('s_cbranch_scc1 L_x0'); a.label('L_x0_back')
                self.aside(lambda: (self.a.label('L_x0'), x0(), self.a('s_branch L_x0_back')))
            if slot == self.xd:
                a(f's_cmp_lt_u32 s{s_i}, s{s_rslot}'); a('s_cbranch_scc1 L_x0'); a.label('L_x0_back')
                def ev():
                    a = self.a
                    a.label('L_x0'); a(f's_cmp_eq_u32 s{s_i}, 0'); a('s_cbranch_scc0 L_x0_stats')
                    x0(); a('s_branch L_x0_back')
                    a.label('L_x0_stats'); a('s_waitcnt vmcnt(0)'); a.extend(stats()); a(st_store); a('s_branch L_x0_back')
                self.aside(ev)
            a('s_waitcnt lgkmcnt(0)')
            F = reads(1, 1, slot)
            if self.prof >= 5: F = ['v_writelane_b32 v255, s92, m0'] + F
            if slot == 0: F += [f's_add_u32 s{s_i}, s{s_i}, 3', f's_cmp_lt_u32 s{s_i}, 15']
            a.extend(interleave(mfmas(0), F, per=list(map(int, self.pat)) if self.pat else [0]*self.r0 + [1]*24))
            a('s_waitcnt lgkmcnt(0)')
            a.extend(mfmas(1)[:nb]); a('s_barrier')
        def half1(slot):
            R = reads(0, 0, (slot+1) % 3)
            a(R[0]); a.extend(interleave(mfmas(1)[nb:], R[1:], per=list(map(int, self.pat1)) if self.pat1 else [1]*24))
        a('.p2align 6')
        a.label('L_q')
        half1(0)
        a.label('L_q1')
        half0(1); half1(1); half0(2); half1(2); half0(0)
        a('s_cbranch_scc1 L_q')
        a.label('L_tail')
        self.stamp(2)
        a(f's_bitcmp1_b32 s{s_l}, 0'); a('s_cbranch_scc1 L_epiB')
        self.epiA(env, False)
        a('s_branch L_ophase')
        a.label('L_epiB')
        self.epiB(env, False)
        a.label('L_ophase')
        PD = self.pd; NR = PD + 1
        OA, OW, awo, vf, RING = 128, [160, 176], 192, 196, 32
        assert RING + 8*NR <= 128
        u0, u1, u2, vrf, vot, vxw = 197, 198, 199, 204, 205, 206
        a(f'v_mov_b32 v{u0}, {P_MODE}'); a(f'ds_read_b32 v{u0}, v{u0}')
        def oacc(tb, nb): return OA + 16*tb + 4*nb
        for k in range(4):
            a(sw16(XR+4*k, XR+4*k+2)); a(sw16(XR+4*k+1, XR+4*k+3))
        a('s_waitcnt lgkmcnt(0)'); a(f'v_readfirstlane_b32 s{s_fast}, v{u0}')
        a(f's_xor_b32 s{s_t}, s{s_fp}, 128'); a.extend(sx(s_e, [(s_t, 32)], WS_RF))
        a.extend(self.flag_addr(vrf, u1, None, remote=True))
        a.extend(self.flag_addr(vf, u1, s_fp))
        s_fq = s_d
        a(f's_cmp_eq_u32 s{s_fast}, 1'); a(f's_cselect_b32 s{s_fq}, s{s_fp}, {BIG}')
        for r in range(16):
            a(f'v_lshlrev_b32 v{OA+2*r}, 16, v{XR+r}'); a(f'v_and_b32 v{OA+2*r+1}, 0xffff0000, v{XR+r}')
        def oreads(h):
            return [f'ds_read_b64_tr_b16 {vr(OW[h&1]+4*nb+2*t,2)}, v{awo+nb} offset:{(h&15)*4096+512*t}' for nb in range(4) for t in range(2)]
        a('s_waitcnt vmcnt(0)')
        self.stamp(8)
        self.flag_set(s_fo, one, 1)
        a(self.flag_load(s_fq, vf, u0, self.pf))
        self.flag_set(s_fo, one, 2)
        a.extend(self.w_frag_addr(awo, None, L_WO, vxw, u1, u2, nb_list=(0, 1, 2, 3)))
        if not self.bw: a('s_barrier'); a.extend(oreads(0))
        def next_consts():
            a(f's_cmp_eq_u32 s{s_wh}, 0'); a('s_cselect_b64 vcc, -1, 0')
            for k in range(2): a(f'v_cndmask_b32 v{awq+k}, v{awo+2+k}, v{awo+k}, vcc')
            for k in range(2): a(f'v_subrev_u32 v{awq+k}, {L_WO}, v{awq+k}')
            a.extend(sx(s_t, [(s_wm, 8192)], XOFF)); a(f'v_add_u32 v{ax}, s{s_t}, v{l16}'); a(f'v_add_u32 v{ax+1}, 1024, v{ax}')
            a.extend(sx(s_t, [(s_wave, 4096)], XOFF)); a(f'v_add_u32 v{vxw}, s{s_t}, v{voffI}')
            a(f's_bitcmp1_b32 s{s_l}, 0'); a('s_cbranch_scc1 L_nextA')
            self.epiB(env, 'v')
            a('s_branch L_next_done')
            a.label('L_nextA')
            self.cond([f's_cmp_lg_u32 s{s_l}, 3'], lambda: self.epiA(env, 'v'))
            a.label('L_next_done')
        if not self.vpos: next_consts()
        self.flag_wait(s_fp, vf, u0, 4, pre='s_waitcnt vmcnt(1) lgkmcnt(0)', own=True)
        self.stamp(9)
        def oload(h, tb):
            L = [f'buffer_load_dwordx4 {vr(RING+8*(h%NR)+4*tb,4)}, v{l16}, {srd(sWS)}, s{s_ob+tb} offen offset:{1024*(h&3)} sc1']
            if h & 3 == 3 and h < 31:
                if tb == 0: L += [f's_add_u32 s{s_ooff}, s{s_ooff}, 4096', f's_and_b32 s{s_ooff}, s{s_ooff}, 0x7fff', f's_add_u32 s{s_ob}, s{s_obase}, s{s_ooff}']
                else: L += [f's_add_u32 s{s_ob+1}, s{s_ob}, 32768']
            return L
        S = []
        for h in range(PD):
            S += oload(h, 0) + oload(h, 1)
            if self.bw and h == 3: S += ['s_barrier'] + oreads(0)
        S.append('s_nop 2')
        hc = self.hc or 15 - PD
        DL = self.dl; assert DL <= PD and DL % 2 == 0
        UN = [(p, nb) for p in range(32 - DL) for nb in range(4)] + [(p, nb) for e in range(2) for p in range(32 - DL, 32) for nb in (2*e, 2*e+1)]
        def out(k4):
            return [cvt(XR+4*k4+k, OA+8*k4+2*k, OA+8*k4+2*k+1) for k in (0, 2, 1, 3)], [sw16(XR+4*k4, XR+4*k4+2), sw16(XR+4*k4+1, XR+4*k4+3)], [
                    f'buffer_store_dwordx4 {vr(XR+4*k4,4)}, v{vst}, {srd(sOUT)}, s{s_o+k4} offen sc1', f'ds_write_b128 v{vxw}, {vr(XR+4*k4,4)} offset:{1024*k4}']
        early = (out(0)[0] + out(2)[0][:2] + out(0)[1] + out(2)[0][2:] + out(0)[2][:1] + out(2)[1] + out(0)[2][1:] + out(2)[2]) if DL else []
        for h in range(32):
            if h == 15: S += [f'v_add_u32 v{awo+nb}, 0x10000, v{awo+nb}' for nb in range(4)]
            for k in range(8):
                u, tb = 4*h + k//2, k % 2
                p, nb = UN[u]
                S.append(mf16(oacc(tb, nb), OW[0]+4*(u%8), RING+8*(p%NR)+4*tb, oacc(tb, nb)))
                if u + 4 < 128:
                    p2, nb2 = UN[u+4]
                    S.append(f'ds_read_b64_tr_b16 {vr(OW[0]+4*((u+4)%8)+2*tb,2)}, v{awo+nb2} offset:{(p2&15)*4096+512*tb}')
                for j in range(2):
                    if k == self.opos[j] and h + PD < 32 and not (h + PD >= 16 and h <= hc): S += oload(h+PD, j)
                if 2*u + tb >= 256 - 4*DL + 2:
                    n = 2
                    S += early[:n]; early = early[n:]
            if h == self.hq: S.append(self.flag_load(s_e, vrf, u1))
            if h == hc:
                S += [f'v_cmp_eq_u32 vcc, 0, v{u1}', 's_nop 1']
                for p in range(16, hc + PD + 1): S += oload(p, 0) + oload(p, 1)
            if self.fine == 4 and h in self.oh: S.append(f's_nop {4 + self.oh.index(h)}')
            if h == self.bm: S.append('s_barrier')
        S = autowait(S + early); cut0 = S.index('s_nop 2'); cut = S.index('s_nop 1'); S.pop(cut)
        a.extend(S[:cut0])
        if self.vpos: next_consts()
        def emit(L):
            for t in L:
                if t in ('s_nop 4', 's_nop 5'): self.stamp(13 + int(t[-1]) - 4)
                else: a(t)
        emit(S[cut0+1:cut])
        self.flag_wait(s_e, vrf, u1, 9, pre=True, nap=self.nap, checked=True)
        emit(S[cut:])
        self.stamp(10)
        self.sw(sum((sum(out(k4), []) for k4 in ((1, 3) if DL else (0, 2, 1, 3))), []), crit=lambda t: t.startswith('buffer'))
        a(f's_cmp_eq_u32 s{s_l}, 3'); a('s_cbranch_scc1 L_fin')
        a(f's_add_u32 s{s_fo}, s{s_fo}, {4096 << self.ls}'); a(f's_add_u32 s{s_fo+1}, s{s_fo+1}, {4096*32}')
        a(f's_add_u32 s{s_l}, s{s_l}, 1')
        a('s_waitcnt lgkmcnt(0)')
        a('s_branch L_first')

    def epiA(self, E, pre):
        a = self.a
        acc = E['acc']; a_tok, a_row, a_t32, a_csr, a_csv, l16, l4 = (E[k] for k in ('a_tok', 'a_row', 'a_t32', 'a_csr', 'a_csv', 'l16', 'l4'))
        s_wm, s_wh, s_a, s_b, s_c, s_d, s_e = (E[k] for k in ('s_wm', 's_wh', 's_a', 's_b', 's_c', 's_d', 's_e'))
        PK = [128, 144]; EP, KV0, ZA, NR = 160, 176, 192, 208
        wphi, nml, c32, csv = 224, 232, 236, 238
        SEL = 240; ZK, ZS = ZA, ZA + 8
        a_phi, a_w, a_r0, a_r1, a_z, x_w, x_r = range(248, 255)
        csk = EP; csq = NR
        nmr = [KV0, EP+8, NR, NR+8]
        if pre == 'v':
            u0, u1, u2, u3, u4 = range(208, 213)
            S = [f'v_lshrrev_b32 v{u0}, 5, v1', f'v_bfe_u32 v{u1}, v1, 2, 2', f'v_lshl_add_u32 v{u1}, v{u0}, 3, v{u1}',
                 f'v_bfe_u32 v{u2}, v1, 4, 1', f'v_and_b32 v{u3}, 3, v1', f'v_lshlrev_b32 v{u4}, 3, v{u3}', f'v_lshl_add_u32 v{u2}, v{u2}, 5, v{u4}']
            S += sx(s_t, [(s_wh, 2048)], P_PHI) + [f'v_lshl_add_u32 v{u4}, v{u1}, 6, v{u2}', f'v_add_u32 v{a_phi}, s{s_t}, v{u4}']
            S += [f's_mul_i32 s{s_t+2}, s{s_wave}, {SCR}',
                  f'v_mul_u32_u24 v{u1}, 136, v{u1}', f'v_add3_u32 v{u1}, v{u1}, v{u2}, s{s_t+2}',
                  f's_lshl_b32 s{s_t+1}, s{s_wm}, 6', f'v_add_u32 v{a_r0}, s{s_t+1}, v{u1}',
                  f's_xor_b32 s{s_t+3}, s{s_t+1}, 64', f'v_add_u32 v{a_r1}, s{s_t+3}, v{u1}',
                  f'v_and_b32 v{u4}, 31, v1', f'v_mul_u32_u24 v{u4}, 136, v{u4}', f'v_lshl_add_u32 v{u4}, v{u0}, 3, v{u4}', f'v_add_u32 v{a_w}, s{s_t+2}, v{u4}',
                  f'v_add_u32 v{x_w}, s{s_t+2}, v{l16}', f's_xor_b32 s{s_t}, s{s_wave}, 2', f's_mul_i32 s{s_t}, s{s_t}, {SCR}', f'v_add_u32 v{x_r}, s{s_t}, v{l16}']
            S += [f'v_lshrrev_b32 v{u4}, 4, v1', f'v_xor_b32 v{u4}, v{u4}, v1', f'v_and_b32 v{u4}, 1, v{u4}', f'v_cmp_eq_u32 vcc, 0, v{u4}', f'v_mov_b32 v{u4}, 0x3f803f80',
                  f'v_cndmask_b32 v{SEL}, 0, v{u4}, vcc', f'v_mov_b32 v{SEL+1}, v{SEL}', f'v_mov_b64 {vr(SEL+2,2)}, {vr(SEL,2)}']
            S += [f'v_and_b32 v{u0}, 18, v1', f'v_lshlrev_b32 v{u0}, 1, v{u0}', f'v_and_or_b32 v{u0}, v1, 8, v{u0}', f'v_and_b32 v{u1}, 4, v1',
                  f'v_lshl_or_b32 v{u0}, v{u1}, 2, v{u0}', f'v_and_b32 v{u1}, 33, v1', f'v_lshl_or_b32 v{a_z}, v{u1}, 25, v{u0}',
                  f'v_lshl_or_b32 v{a_z}, v{u1}, 30, v{a_z}']
            a.extend(S)
            return
        if pre == 's':
            S = sx(s_t, [(s_l, 16), (s_g, 2), (s_wh, 1)])
            S += sx(s_d, [(s_t, 65536), (s_wm, 32768), (s_m, 2048)], WS_KVP) + sx(s_e, [(s_t, 2048), (s_m, 128), (s_wm, 64)], WS_ZP)
            S += sx(s_b, [(s_t, 128)], WS_ZF) + sx(s_c, [(s_t, 4096)], WS_KVF)
            if self.hu is not None: S += sx(E['s_delta'], [(s_l, 16384), (s_g, 2048), (s_m, 128), (s_wave, BIG >> 1)], WS_HU)
            a.extend(S)
            return
        S = []
        for b in range(4): S.append(f'ds_read_b32 v{nml+b}, v{a_tok} offset:{64*b}')
        for nb in range(2): S.append(f'ds_read_b128 {vr(csk+4*nb,4)}, v{a_csr} offset:{256+64*nb}')
        for u in range(2):
            for t in range(2): S.append(f'ds_read_b64_tr_b16 {vr(wphi+4*u+2*t,2)}, v{a_phi} offset:{(16*t+4*u)*64}')
        for nb in range(2): S.append(f'ds_read_b32 v{csv+nb}, v{a_csv} offset:{512+64*nb}')
        for b in range(4):
            S.append(f'ds_read_b128 {vr(nmr[b],4)}, v{a_row} offset:{64*b}')
            S.append(f'ds_read_b128 {vr(nmr[b]+4,4)}, v{a_row} offset:{512+64*b}')
            if b == 0:
                for Tt in range(2): S.append(f'ds_read_b32 v{c32+Tt}, v{a_t32} offset:{512+128*Tt}')
        def qk_prep(n0, cs):
            L = []
            for b in range(4):
                for k in range(4): L.append(pk('fma', acc(b, n0)+2*k, cs+2*k, ('b', nml+b), acc(b, n0)+2*k))
                for k in range(4): L.append(cvt(acc(b, n0)+k, acc(b, n0)+2*k, acc(b, n0)+2*k+1))
            for Tt in range(2):
                for k in range(4): L.append(sw16(acc(2*Tt, n0)+k, acc(2*Tt+1, n0)+k))
                L += [mf32(PK[Tt], wphi, acc(2*Tt, n0)), mf32(PK[Tt], wphi+4, acc(2*Tt+1, n0), PK[Tt])]
            return L
        def vprep(b):
            r = acc(b, 4); P, C = [], []
            for nb in range(2):
                for p in range(2): P.append(pk('fma', r+4*nb+2*p, nmr[b]+2*p, ('b', csv+nb), r+4*nb+2*p))
            for nb in range(2):
                for p in range(2): P.append(pk('mul', r+4*nb+2*p, r+4*nb+2*p, nmr[b]+4+2*p))
            for k in range(4): C.append(cvt(r+k, r+2*k, r+2*k+1))
            return P, C, [sw16(r, r+2), sw16(r+1, r+3)]
        def softmax(Tt):
            x = PK[Tt]; c = c32 + Tt
            ta, tb = ((acc(2, 3), acc(3, 3)), (acc(2, 2), acc(3, 2)))[Tt]
            mx, mn, bp, bm = ta, ta+1, tb, tb+1
            L = [f'v_max3_f32 v{mx}, v{x}, v{x+1}, v{x+2}', f'v_max3_f32 v{mn}, -v{x}, -v{x+1}, -v{x+2}']
            for k in range(3, 15, 2):
                L += [f'v_max3_f32 v{mx}, v{mx}, v{x+k}, v{x+k+1}', f'v_max3_f32 v{mn}, v{mn}, -v{x+k}, -v{x+k+1}']
            L += [f'v_max_f32 v{mx}, v{mx}, v{x+15}', f'v_max_f32 v{mn}, v{mn}, -v{x+15}']
            L += [sw32(mx, mn), f'v_max_f32 v{mx}, v{mx}, v{mn}', f'v_mul_f32 v{bm}, -v{mx}, v{c}', f'v_mov_b32 v{bp}, v{bm}', sw32(bp, bm)]
            parts = [L]; L = []
            for k in range(0, 16, 2): L.append(pk('fma', EP+k, x+k, ('b', c), ('b', bp)))
            for k in range(0, 16, 2): L.append(pk('fma', x+k, x+k, ('b', c), ('b', bm), neg=[1, 0, 0]))
            parts.append(L); L = []
            for k in range(16): L.append(f'v_exp_f32 v{EP+k}, v{EP+k}')
            for k in range(16): L.append(f'v_exp_f32 v{x+k}, v{x+k}')
            parts.append(L); L = []
            sp, sm = ta, ta+2
            r1, r2 = tb+2, tb+3
            L += [pk('add', sp, EP, EP+2), pk('add', sm, x, x+2)]
            for k in range(4, 16, 2): L += [pk('add', sp, sp, EP+k), pk('add', sm, sm, x+k)]
            L += [f'v_add_f32 v{sp}, v{sp}, v{sp+1}', f'v_add_f32 v{sm}, v{sm}, v{sm+1}', sw32(sp, sm), f'v_add_f32 v{sp}, v{sp}, v{sm}',
                  f'v_rcp_f32 v{r2}, v{sp}', f'v_mov_b32 v{r1}, v{r2}', sw32(r1, r2)]
            for k in range(0, 16, 2): L.append(pk('mul', x+k, x+k, ('b', r2)))
            for k in range(8): L.append(cvt(x+k, x+2*k, x+2*k+1))
            for k in range(0, 16, 2): L.append(pk('mul', EP+k, EP+k, ('b', r1)))
            for k in range(8): L.append(cvt(x+8+k, EP+2*k, EP+2*k+1))
            return parts + [L]
        FR = [[acc(0, 2), acc(0, 3)], [acc(1, 2), acc(1, 3)]]
        def to_lds(x):
            return [f'ds_write_b64 v{a_w}, {vr(x+8*(1-sg)+2*j,2)} offset:{64*sg+16*j}' for sg in (1, 0) for j in range(4)]
        def frags():
            return [f'ds_read_b64_tr_b16 {vr(FR[k][u]+2*tt,2)}, v{(a_r0, a_r1)[k]} offset:{(16*u+4*tt)*136}' for k in (1, 0) for u in range(2) for tt in range(2)]
        KV1 = PK[0]
        def kvm(Tt):
            L = []
            for k, K, Z in ((1, KV1, ZS), (0, KV0, ZK)):
                for u in range(2): L.append(mf32(K, FR[k][u], acc(2*Tt+u, 4), None if (Tt == 0 and u == 0) else K))
                for u in range(2): L.append(mf16(Z, SEL, FR[k][u], None if (Tt == 0 and u == 0) else Z))
            return L
        sc = sched if self.sch else (lambda L: L)
        K = qk_prep(2, csk); isM = lambda t: t.startswith('v_mfma')
        VP_ = [vprep(b) for b in range(4)]
        sm0, sm1 = softmax(0), softmax(1)
        mfma = E['mfma']
        TM = [mfma(1, b, n) for b in range(4) for n in (2, 3)] + [mfma(1, b, n) for b in range(4) for n in (4, 5)] + [mfma(1, b, 1) for b in range(4)] + [mfma(1, b, 0) for b in range(self.bpos+1, 4)]
        K01 = []
        for b in range(2):
            K01 += [f'v_fmac_f32 v{acc(b,2)+k}, v{csk+k}, v{nml+b}' for k in range(8)] + K[8*b+4:8*b+8]
        S = interleave(TM, S + K01, per=[2]*24)
        S += sc([t for t in K[16:] if not isM(t)] + [f'v_mul_f32 v{c32+Tt}, {f2u(LOG2E)}, v{c32+Tt}' for Tt in range(2)] + VP_[0][0] + VP_[1][0])
        def cutA(n, k):
            nonlocal S
            if self.fine == n: self.aw(S + ['s_waitcnt lgkmcnt(0)']); S = []; self.stamp(k)
        cutA(1, 12)
        S += sc([t for t in K if isM(t)] + VP_[0][1] + VP_[1][1] + VP_[0][2] + VP_[1][2] + sm0[0])
        cutA(1, 13)
        def mixed(sm, extra):
            F, X, A = sm[1], sm[2], sm[3][:14]
            A = A[0::2] + A[1::2]; extra = list(extra); L = F[:2]
            for k in range(16):
                L += [X[2*k]] + F[k+2:k+3] + [X[2*k+1]]
                j = k - 2 if k < 9 else k - 3
                if k >= 2 and k != 9: L.append(A[j])
                if extra: L.append(extra.pop(0))
            return L + extra + A[13:]
        if self.mix: S += mixed(sm0, sm1[0][:16]) + sc(sm1[0][16:] + sm0[3][14:] + to_lds(PK[0]) + frags())
        else: S += sc(sm0[1] + sm0[2] + sm1[0] + sm0[3] + to_lds(PK[0]) + frags())
        cutA(1, 14)
        if self.mix: S += sm1[1][:2] + interleave(sm1[2][:14], sm1[1][2:], per=[1]*14) + interleave(kvm(0), sm1[2][14:], per=[3, 3, 1, 1, 3, 3, 1, 3])
        else: S += sm1[1] + interleave(kvm(0), sm1[2], per=[3, 3, 1, 1, 3, 3, 1, 1])
        cutA(2, 12)
        S += sc(sm1[3] + to_lds(PK[1]) + frags() + sum((VP_[b][k] for k in range(3) for b in (2, 3)), []), lambda t: t.startswith('ds_read'))
        cutA(2, 13)
        M = kvm(1)
        X = [f'ds_write_b128 v{x_w}, {vr(KV1+4*k,4)} offset:{1024*k}' for k in range(4)]
        hi16 = ['s_mov_b32 vcc_lo, 0xffff0000', 's_mov_b32 vcc_hi, 0xffff0000']
        S += M[0:2] + hi16 + M[2:6] + X + [f'v_cndmask_b32 v{ZS}, v{ZS}, v{ZS+1}, vcc', f'ds_write_b32 v{x_w}, v{ZS} offset:4096'] + M[6:8]
        cutA(2, 14)
        if self.hu is not None: S.insert(len(S) - self.hu, f'buffer_store_dword v0, off, {srd(sWS)}, s{E["s_delta"]} sc1')
        self.aw(S); S = []
        S += ['s_waitcnt lgkmcnt(0)', 's_barrier']
        S.append(f'ds_read_b32 v{csv}, v{x_r} offset:4096')
        for k in range(4): S.append(f'ds_read_b128 {vr(EP+4*k,4)}, v{x_r} offset:{1024*k}')
        add = [pk('add', KV0+2*k, KV0+2*k, EP+2*k) for k in range(8)]
        cv = [cvt(KV0+8*(k//4)+k%4, KV0+2*k, KV0+2*k+1) for k in range(8)]
        st = [f'buffer_store_dwordx4 {vr(KV0+8*u,4)}, v{l16}, {srd(sWS)}, s{s_d} offen offset:{1024*u} sc1' for u in range(2)]
        S += [f'v_cndmask_b32 v{ZK}, v{ZK}, v{ZK+1}, vcc', f'v_add_f32 v{ZK}, v{ZK}, v{csv}'] + add[:2]
        S += [f'v_mov_b32_dpp v{ZK+3}, v{ZK} quad_perm:[1,0,3,2] row_mask:0xf bank_mask:0xf'] + add[2:4] + cv[:4] + st[:1] + [cvt(ZK, ZK, ZK+3)]
        S += add[4:] + [f'buffer_store_dword v{ZK}, v{a_z}, {srd(sWS)}, s{s_e} offen sc1'] + cv[4:] + st[1:]
        self.aw(S); S = []
        if not self.yw: a('s_barrier')
        self.stamp(3)
        u3, u4 = ZA + 4, ZA + 5
        for nb in range(2): S.append(f'ds_read_b128 {vr(csq+4*nb,4)}, v{a_csr} offset:{64*nb}')
        S += qk_prep(0, csq) + sum(softmax(0) + softmax(1), [])
        S += [f'v_lshrrev_b32 v{u3}, 5, v1', f'v_and_b32 v{u4}, 2, v1', f'v_lshlrev_b32 v{u4}, 5, v{u4}', f'v_lshl_add_u32 v{a_z}, v{u3}, 4, v{u4}',
              f'v_not_b32 v{u4}, v{SEL}', f'v_and_b32 v{u4}, 0x20000000, v{u4}', f'v_lshl_or_b32 v{a_z}, v{u4}, 1, v{a_z}',
              f'v_bfe_u32 v{u4}, v1, 4, 1', f'v_lshlrev_b32 v{u4}, 15, v{u4}', f'v_lshl_add_u32 v{u4}, v{u3}, 8, v{u4}',
              f'v_and_b32 v{u3}, 15, v1', f'v_lshl_add_u32 v{a_w}, v{u3}, 4, v{u4}', f's_add_u32 s{s_d}, s{s_a}, 65536']
        if self.yw:
            S = sched(S); S[self.yw:self.yw] = (['s_waitcnt vmcnt(0)'] if self.yv else []) + ['s_barrier']; self.aw(S); S = []
        else: self.sw(S, name='A q-part'); S = []
        self.stamp(4)
        a('s_barrier')
        self.stamp(7)
        KF = KV0; ZF = EP
        ACC = E['ACC']
        den, num, rcp, fin = [], [], [], []
        for Tt in range(2):
            N, DP, DM = ACC + 48*Tt, ACC + 48*Tt + 16, ACC + 48*Tt + 32
            x = PK[Tt]
            den.append([mf16(DP, ZF, x+8), mf16(DM, ZF, x), mf16(DP, ZF+4, x+12, DP), mf16(DM, ZF+4, x+4, DM)])
            num.append([mf32(N, KF, x+8), mf32(N, KF+4, x+12, N), mf32(N, KF+8, x, N), mf32(N, KF+12, x+4, N)])
            rcp.append([f'v_add_f32 v{DP}, v{DP}, v{DM+2}', f'v_add_f32 v{DP+1}, v{DP+1}, v{DM+3}', f'v_cndmask_b32 v{DP}, v{DP}, v{DP+1}, vcc',
                        f'v_add_f32 v{DP}, {f2u(1e-6)}, v{DP}', f'v_rcp_f32 v{DP}, v{DP}'])
            L = []
            for p in range(2):
                R = [(N + 4*(p + 2*jj) + 2*k, DM+4+4*p+2*jj+k) for jj in range(2) for k in range(2)]
                for r, d in R:
                    if Tt == 0: L += [f'v_mul_f32 v{r}, v{DP}, v{r}', f'v_mul_f32 v{r+1}, v{DP}, v{r+1}']
                    else: L.append(pk('mul', r, r, ('b', DP)))
                L += [cvt(d, r, r+1) for r, d in R]
                L.append(f'buffer_store_dwordx4 {vr(DM+4+4*p,4)}, v{a_w}, {srd(sWS)}, s{(s_a, s_d)[Tt]} offen offset:{512*p} sc1')
            fin.append(L)
        if self.b2: a(f's_sleep {self.b2}')
        self.ll_wait(([f's_sleep {self.n2}'] if self.n2 else []) + [f'buffer_load_dwordx4 {vr(ZF+4*u,4)}, v{a_z}, {srd(sWS)}, s{s_b} offen offset:{32*u} sc1' for u in range(2)] +
                     [f'buffer_load_dwordx4 {vr(KF+4*k,4)}, v{l16}, {srd(sWS)}, s{s_c} offen offset:{1024*k} sc1' for k in range(4)],
                     list(range(ZF, ZF+8)) + list(range(KF, KF+16)), u3, u4, 5, under=(den[0] + num[0]) if self.spec & 1 else None, per=[1, 1, 1, 1, 2, 2, 2, 4])
        self.stamp(5)
        a.extend(([] if self.spec & 1 else den[0] + num[0]) + interleave(den[1], hi16 + rcp[0], per=[2, 2, 2, 1]))
        a.extend(interleave(num[1], fin[0][:13] + rcp[1] + fin[0][13:], per=[6, 6, 6, 13]) + fin[1])
        self.stamp(6)

    def epiB(self, E, pre):
        a = self.a
        acc = E['acc']; a_tok, a_row, a_csr, a_csv, l16 = (E[k] for k in ('a_tok', 'a_row', 'a_csr', 'a_csv', 'l16'))
        s_wm, s_wh, s_a, s_b, s_c, s_d, s_e = (E[k] for k in ('s_wm', 's_wh', 's_a', 's_b', 's_c', 's_d', 's_e'))
        BI, BI0, MK, a_h = 236, 244, 248, 252
        if pre == 'v':
            t1, t2, t3 = 208, 209, 210
            S = [f'v_and_b32 v{t1}, 15, v1', f'v_lshrrev_b32 v{t2}, 4, v1', f'v_lshlrev_b32 v{t2}, 2, v{t2}', f'v_sub_u32 v{t1}, v{t1}, v{t2}',
                 f'v_mov_b32 v{t3}, {f2u(-1e30)}']
            for blk in range(2):
                for i in range(4):
                    S += [f'v_add_u32 v{t2}, {(16 if blk == 0 else 0) - i}, v{t1}', f'v_and_b32 v{t2}, -15, v{t2}', f'v_cmp_eq_u32 vcc, 0, v{t2}',
                          f'v_cndmask_b32 v{BI+4*blk+i}, v{t3}, 0, vcc']
                    if i % 2 == 0: S += [f'v_cndmask_b32 v{MK+2*blk+i//2}, 0, -1, vcc', f'v_lshrrev_b32 v{MK+2*blk+i//2}, 16, v{MK+2*blk+i//2}']
                    else: S += [f'v_cndmask_b32 v{t2}, 0, -1, vcc', f'v_lshl_or_b32 v{MK+2*blk+i//2}, v{t2}, 16, v{MK+2*blk+i//2}']
            S += [f's_or_b32 s{s_t}, s{s_m}, s{s_wm}', 's_cselect_b64 vcc, -1, 0']
            for i in range(4): S.append(f'v_cndmask_b32 v{BI0+i}, v{t3}, v{BI+i}, vcc')
            S += sx(s_t, [(s_wh, 2048)], P_PHI) + [f'v_add_u32 v{a_h}, s{s_t}, v{l16}']
            S += [f's_add_u32 s{s_t+1}, s{s_t}, 1024', f's_cmp_eq_u32 s{s_wm}, 0', f's_cselect_b32 s{s_t}, s{s_t}, {L_P + 7168}', f's_cselect_b32 s{s_t+1}, s{s_t+1}, {L_P + 7168}',
                  f'v_add_u32 v{a_h+1}, s{s_t}, v{l16}', f'v_add_u32 v{a_h+2}, s{s_t+1}, v{l16}']
            a.extend(S)
            return
        if pre == 's':
            S = sx(s_b, [(s_l, 1 << 19), (s_m, 1 << 16), (s_g, 4096), (s_wh, 2048)], WS_HALO - (1 << 19))
            S += [f's_add_u32 s{s_c}, s{s_b}, 65536', f's_cmp_eq_u32 s{s_m}, 15', f's_cselect_b32 s{s_c}, {BIG}, s{s_c}',
                  f's_cmp_eq_u32 s{s_wm}, 0', f's_cselect_b32 s{s_c}, {BIG}, s{s_c}', f's_cselect_b32 s{s_b}, s{s_b}, {BIG}',
                  f's_cmp_eq_u32 s{s_m}, 0', f's_cselect_b32 s{s_b}, {BIG}, s{s_b}', f's_add_u32 s{s_d}, s{s_a}, 65536']
            a.extend(S)
            return
        nr = [160, 168, 176, 208]
        nml, rsl, csk, csv, csq, HB = 216, 220, 224, 232, 128, 136
        VP = [184, 196]
        U, M, t1, t2 = 144, 152, 156, 157
        S = []
        for b in (3, 0, 1, 2):
            S += [f'ds_read_b32 v{nml+b}, v{a_tok} offset:{64*b}', f'ds_read_b32 v{rsl+b}, v{a_tok} offset:{512+64*b}']
            if b == 3:
                for nb in range(2): S.append(f'ds_read_b128 {vr(csk+4*nb,4)}, v{a_csr} offset:{768+256+64*nb}')
                for nb in range(2): S.append(f'ds_read_b32 v{csv+nb}, v{a_csv} offset:{768+512+64*nb}')
            S += [f'ds_read_b128 {vr(nr[b],4)}, v{a_row} offset:{64*b}', f'ds_read_b128 {vr(nr[b]+4,4)}, v{a_row} offset:{512+64*b}']
        for nb in range(2): S.append(f'ds_read_b128 {vr(csq+4*nb,4)}, v{a_csr} offset:{768+64*nb}')
        def kprep(b):
            r = acc(b, 2); L = []
            for k in range(4): L.append(pk('fma', r+2*k, csk+2*k, ('b', nml+b), r+2*k))
            for k in range(4): L.append(pk('mul', r+2*k, r+2*k, ('b', rsl+b)))
            for k in range(4): L.append(cvt(r+k, r+2*k, r+2*k+1))
            return L
        def vprep(b):
            r = acc(b, 4); L = []
            for nb in range(2):
                for p in range(2): L.append(pk('fma', r+4*nb+2*p, nr[b]+2*p, ('b', csv+nb), r+4*nb+2*p))
            for nb in range(2):
                for p in range(2): L.append(pk('mul', r+4*nb+2*p, r+4*nb+2*p, nr[b]+4+2*p))
            for nb in range(2):
                for p in range(2):
                    if b == 3: L.append(cvt(acc(3, 3)+2*nb+p, r+4*nb+2*p, r+4*nb+2*p+1))
                    else: L.append(cvt(VP[nb]+2+2*b+p, r+4*nb+2*p, r+4*nb+2*p+1))
            return L
        def qprep(b):
            r = acc(b, 0); L = []
            for k in range(4): L.append(pk('fma', r+2*k, csq+2*k, ('b', nml+b), r+2*k))
            for k in range(4): L.append(cvt(r+k, r+2*k, r+2*k+1))
            return L
        mfma = E['mfma']
        TM = [mfma(1, b, n) for b in (3, 0, 1, 2) for n in (2, 3, 4, 5)] + [mfma(1, b, 1) for b in range(4)] + [mfma(1, b, 0) for b in range(self.bpos+1, 4)]
        rk, rv = acc(3, 2), acc(3, 4)
        P3 = [f'v_fmac_f32 v{rk+k}, v{csk+k}, v{nml+3}' for k in range(8)] + [f'v_mul_f32 v{rk+k}, v{rsl+3}, v{rk+k}' for k in range(8)] + kprep(3)[8:]
        P3 += [f'v_fmac_f32 v{rv+k}, v{nr[3]+k%4}, v{csv+k//4}' for k in range(8)] + [f'v_mul_f32 v{rv+k}, v{nr[3]+4+k%4}, v{rv+k}' for k in range(8)] + vprep(3)[8:]
        S = S[:8] + [t for t in S[8:] if 'b32' in t] + S[-2:] + [t for t in S[8:-2] if 'b128' in t]
        T0 = interleave(TM, S[:14] + P3, per=[2]*24); S = S[14:]
        for k in range(2): T0.append(f'buffer_store_dwordx4 {vr(acc(3,2)+4*k,4)}, v{l16}, {srd(sWS)}, s{s_c} offen offset:{1024*k} sc1')
        for k in range(2): S.append(f'ds_write_b128 v{a_h+1+k}, {vr(acc(3,2)+4*k,4)}')
        fa, fv = 234, 235
        T0 += sx(s_t, [(s_wave, 4)], P_CNT) + [f'v_mov_b32 v{fa}, s{s_t}', f'v_mov_b32 v{fv}, s{s_l}']
        S.append(f'ds_write_b32 v{fa}, v{fv}')
        for nb in range(2): S.append(f'v_mov_b64 {vr(VP[nb]+8,2)}, {vr(acc(3,3)+2*nb,2)}')
        for b in range(3): S += kprep(b) + vprep(b)
        for b in range(4): S += qprep(b)
        for b in range(4): S.append(f'v_mul_f32 v{rsl+b}, {f2u(LOG2E * 32 ** -0.5)}, v{rsl+b}')
        def logits(b):
            sp, sc = acc(b, 1), (acc(b-1, 3) if b else nr[3])
            L = [mf16(sp, HB if b == 0 else acc(b-1, 2), acc(b, 0), BI0 if b == 0 else BI), mf16(sc, acc(b, 2), acc(b, 0), BI+4)]
            for p in range(2):
                L += [f'v_max3_f32 v{U+2*b+p}, v{sp+2*p}, v{sp+2*p+1}, v{sc+2*p}', f'v_max_f32 v{U+2*b+p}, v{U+2*b+p}, v{sc+1+2*p}',
                      f'v_mul_f32 v{U+2*b+p}, v{rsl+b}, v{U+2*b+p}']
            L.append(f'v_max_f32 v{M+b}, v{U+2*b}, v{U+2*b+1}')
            return L
        for b in (1, 2, 3): S += logits(b)
        L0 = logits(0); S.append(L0.pop(1))
        def allred(op, mid):
            L = [sw32(M, M+2), sw32(M+1, M+3), f'{op} v{M}, v{M}, v{M+2}', f'{op} v{M+1}, v{M+1}, v{M+3}', sw16(M, M+1), f'{op} v{M+1}, v{M}, v{M+1}']
            L += mid
            L += [f'v_mov_b32 v{M}, v{M+1}', sw16(M, M+1), f'v_mov_b64 {vr(M+2,2)}, {vr(M,2)}', sw32(M, M+2), sw32(M+1, M+3)]
            return L
        def pv(b):
            P = acc(b, 1); L = []
            for p in range(2): L.append(cvt(U+2*b+p, U+2*b+p, U+2*b+p))
            for blk in range(2):
                for p in range(2): L.append(f'v_and_b32 v{P+2*blk+p}, v{U+2*b+p}, v{MK+2*blk+p}')
            return L + [mf16(acc(b, 4)+4*db, VP[db]+2*b, P) for db in range(2)]
        def put(b):
            O = acc(b, 4)
            return [cvt(O+k, O+2*k, O+2*k+1) for k in range(4)] + [f'buffer_store_dwordx4 {vr(O,4)}, v{l16}, {srd(sWS)}, s{(s_a, s_e, s_d, s_c)[b]} offen sc1']
        ONE, SUM = nr[3] + 4, csk
        S += allred('v_max_f32', [])
        for b in (1, 2, 3): S.append(pk('add', U+2*b, U+2*b, ('b', M+b), neg=[0, 1]))
        for k in range(2, 8): S.append(f'v_exp_f32 v{U+k}, v{U+k}')
        for b in (1, 2, 3): S.append(f'v_add_f32 v{M+b}, v{U+2*b}, v{U+2*b+1}')
        S += allred('v_add_f32', [f'v_rcp_f32 v{M+1}, v{M+1}'])
        for b in (1, 2, 3): S.append(pk('mul', U+2*b, U+2*b, ('b', M+b)))
        S += pv(1) + pv(2) + pv(3) + [f's_add_u32 s{s_e}, s{s_a}, 32768', f's_add_u32 s{s_c}, s{s_d}, 32768'] + put(1) + put(2) + put(3)
        S += [f'v_mov_b32 v{ONE+k}, 0x3f803f80' for k in range(4)]
        T0 += [t for t in S if t.startswith('ds_')]
        S = sched([t for t in S if not t.startswith('ds_')], lambda t: t.startswith('buffer'))
        if __name__ == '__main__': print('sched B', len(S), sched.last_estimate, file=sys.stderr)
        hp = self.hp
        assert not any(t.startswith('buffer') for t in S[:hp]) and not any(t.startswith('ds_') for t in S[hp:])
        self.aw(T0 + S[:hp])
        HL = [f'buffer_load_dwordx4 {vr(HB+4*k,4)}, v{l16}, {srd(sWS)}, s{s_b} offen offset:{1024*k} sc1' for k in range(2)]
        L1, L3, L4, L5 = self.lab('hg'), self.lab('hd'), self.lab('hu'), self.lab('hv')
        HD = [f'ds_read_b32 v{t2}, v{fa}'] + [f'ds_read_b128 {vr(HB+4*k,4)}, v{a_h} offset:{1024*k}' for k in range(2)]
        a('s_waitcnt lgkmcnt(0)')
        a(f's_cmp_eq_u32 s{s_wm}, 0'); a(f's_cbranch_scc0 {L1}')
        a.extend(HL)
        a.label(L3)
        self.aside(lambda: (self.a.label(L1), self.a(f'v_subrev_u32 v{fa}, 8, v{fa}'), self.a.extend(HD), self.a(f's_branch {L3}')))
        self.stamp(3)
        a.extend(S[hp:]); S = []
        M0 = L0.pop(0)
        a(f's_cmp_eq_u32 s{s_wm}, 0'); a(f's_cbranch_scc0 {L4}')
        self.ll_wait(HL, list(range(HB, HB+8)), t1, t2, 0, pre='s_waitcnt vmcnt(3)', under=[M0], per=[0])
        a.label(L5)
        def upper():
            self.a.label(L4)
            self.spin(HD, [M0, f'v_cmp_ne_u32 vcc, v{fv}, v{t2}'], t1, 12, pre='s_waitcnt lgkmcnt(0)')
            self.a(f's_branch {L5}')
        self.aside(upper)
        self.stamp(4)
        S += L0 + [f'v_mov_b64 {vr(VP[nb],2)}, {vr(HB+4+2*nb,2)}' for nb in range(2)]
        S += [f'v_mov_b32 v{M+1}, v{M}', sw32(M, M+1), f'v_max_f32 v{M}, v{M}, v{M+1}', f'v_mov_b32 v{M+1}, v{M}', sw16(M, M+1), f'v_max_f32 v{M}, v{M}, v{M+1}']
        S += [f'v_sub_f32 v{U+k}, v{U+k}, v{M}' for k in range(2)] + [f'v_exp_f32 v{U+k}, v{U+k}' for k in range(2)]
        P0 = pv(0); S += P0[:-2] + [mf16(SUM, ONE, acc(0, 1))] + P0[-2:] + [f'v_rcp_f32 v{SUM}, v{SUM}']
        S += [pk('mul', acc(0, 4)+2*k, acc(0, 4)+2*k, ('b', SUM)) for k in range(4)] + put(0)
        self.sw(S, name='B block 0')
        self.stamp(6)

    def build(self):
        a = self.a
        self.prologue()
        if self.st0 & 1: self.loader(); a.label('L_compute'); self.compute()
        else: self.compute(); self.loader()
        self.helper()
        a.label('L_fin')
        self.stamp(15)
        self.stamp_out()
        if self.probe and len(self.probe) > 3:
            def pub():
                a('s_mov_b64 exec, 1'); a('v_mov_b32 v2, s94'); a('s_not_b32 s93, s93'); a('v_mov_b32 v3, s93')
                a(f'buffer_atomic_umax v2, off, {srd(sDBG)}, 0 offset:12 sc1'); a(f'buffer_atomic_umax v3, off, {srd(sDBG)}, 0 offset:140 sc1')
                a('s_waitcnt vmcnt(0)'); a('v_mov_b32 v2, 1'); a(f'buffer_atomic_add v2, off, {srd(sDBG)}, 0 offset:20 sc1'); a('s_waitcnt vmcnt(0)')
                def w0():
                    self.spin(['s_sleep 8', f'buffer_load_dword v2, off, {srd(sDBG)}, 0 offset:20 sc1'], ['v_cmp_gt_u32 vcc, 0x100, v2'], 4, 10)
                    a(f'buffer_load_dword v2, off, {srd(sDBG)}, 0 offset:12 sc1'); a(f'buffer_load_dword v3, off, {srd(sDBG)}, 0 offset:140 sc1'); a('s_waitcnt vmcnt(0)')
                    a('v_readfirstlane_b32 s94, v2'); a('v_readfirstlane_b32 s93, v3'); a('s_not_b32 s93, s93')
                self.cond(['s_cmp_eq_u32 s2, 0'], w0)
                a('s_mov_b64 exec, -1')
            self.cond([f's_cmp_eq_u32 s{s_wave}, 0'], pub)
        if self.probe:
            def body():
                a('s_sub_u32 s93, s94, s93'); a(f's_mul_i32 s93, s93, {self.probe[2]}'); a('s_min_u32 s93, s93, 100000')
                a(f's_memrealtime s[{s_t+6}:{s_t+7}]'); a('s_waitcnt lgkmcnt(0)'); a(f's_add_u32 s93, s93, s{s_t+6}')
                a.label('L_probe')
                a(f's_memrealtime s[{s_t+6}:{s_t+7}]'); a('s_waitcnt lgkmcnt(0)'); a(f's_sub_u32 s94, s{s_t+6}, s93'); a('s_cmp_lt_i32 s94, 0'); a('s_cbranch_scc1 L_probe')
            self.cond([f's_or_b32 s{s_t}, s2, s{s_wave}', f's_cmp_eq_u32 s{s_t}, 0'], body)
        a('s_waitcnt vmcnt(0)')
        a.label('L_end')
        a('s_endpgm')
        for b in self.later: a.ins += b.ins
        if self.cpf: a.label('L_last'); a('s_endpgm')
        a.pad()
        assert a.maxreg('v') <= 255 and a.maxreg('s') < 96
        return a.text()


DOC = """
; ---------------------------------------------------------------------------------------------------------------------
;
;
; Hand-offs between workgroups go through d_ws, stored write-through (sc1) and read with sc1 loads:
; ---------------------------------------------------------------------------------------------------------------------
"""

def generate(listform=False, **kw):
    body = Gen(**kw).build()
    ref = open('interleave_layers__linear_kernel_hedgehog__sliding_local_dilated__prompt.s.ref').read() if not listform else ''
    head = ''.join(l + '\n' for l in ref.split('\n') if l.startswith(';') and '@launch' not in l)
    if listform: head += f'; @launch kernel={KNAME} grid=(256,1,1) block=(512,1,1) lds={LDS_BYTES}\n'
    else: head += f'; @launch grid=(256,1,1) block=(512,1,1) lds={LDS_BYTES}\n'
    return head + '.amdgcn_target "amdgcn-amd-amdhsa--gfx950"' + DOC + kernel_head(KNAME) + body + kernel_desc(KNAME, 256, 96, 256)

if __name__ == '__main__':
    kw = eval(sys.argv[2]) if len(sys.argv) > 2 else {}
    open(sys.argv[1], 'w').write(generate(**kw))
```

```python
import sys, struct
sys.path.insert(0, 'work')
from asmlib import *

KNAME = 'interleave_layers__linear_kernel_hedgehog__sliding_local_dilated__prompt_kernel'

WS_CTR, WS_STAMP, WS_ST, WS_CS = 0x0, 0x100000, 0x200000, 0x300000
WS_HALO, WS_KVF, WS_ZP, WS_ZF, WS_KVP = 0x400000, 0x600000, 0x680000, 0x6C0000, 0x800000
WS_HU = 0x20000
WS_RF = 0x700000
WS_XI, WS_OI, WS_END = 0xC00000, 0x1800000, 0x2800000
BIG = 0x40000000
STG = 40960
XOFF = 24576
L_WO = 24576
L_SPARE = 3 * STG
L_P = 155648
P_NM, P_RS, P_CS, P_MODE, P_CNT, P_PHI = L_P, L_P + 512, L_P + 1024, L_P + 2816, L_P + 2832, L_P + 3072
LDS_BYTES = 163840
SCR = 5120
LOG2E = 1.4426950408889634
def f2u(x): return '0x%08x' % struct.unpack('<I', struct.pack('<f', x))[0]

s_fast = 3
pAX, pAW, pPHI, pAWO, pBW, pBWO, pOUT, pDBG, pWS = 4, 6, 8, 10, 14, 16, 18, 20, 22
sWS, sX, sW, sWO, sOUT, sDBG = 24, 28, 32, 36, 40, 44
s_m, s_g, s_wave, s_l = 48, 49, 50, 51
s_t = 52
s_cnt, s_x = 60, 61
s_i = 62
s_stamp = 63
s_rot = 64
s_rot2 = 95
s_ft, s_fn, s_fd, s_po = 90, 91, 88, 87
def srd(b): return 's[%d:%d]' % (b, b + 3)


def sx(d, terms, const=0):
    L = []
    for n, (r, k) in enumerate([t for t in terms if t[1]]):
        t = d if n == 0 else s_x
        if k == 1 and n: t = r
        elif k == 1: L.append(f's_mov_b32 s{t}, s{r}')
        elif k > 0 and k & (k - 1) == 0: L.append(f's_lshl_b32 s{t}, s{r}, {k.bit_length()-1}')
        else: L.append(f's_mul_i32 s{t}, s{r}, {k}')
        if n: L.append(f's_add_u32 s{d}, s{d}, s{t}')
    if const: L.append(f's_add_u32 s{d}, s{d}, {const:#x}' if const > 0 else f's_sub_u32 s{d}, s{d}, {-const:#x}')
    return L

def pkop(r):
    if isinstance(r, tuple):
        return vr(r[1] & ~1, 2), r[1] & 1, r[1] & 1
    assert r % 2 == 0
    return vr(r, 2), 0, 1
def pk(op, d, *src, neg=None):
    o = [pkop(s) for s in src]
    t = 'v_pk_%s_f32 %s, %s' % (op, vr(d, 2), ', '.join(x[0] for x in o))
    lo = [x[1] for x in o]; hi = [x[2] for x in o]
    if any(lo): t += ' op_sel:[%s]' % ','.join(map(str, lo))
    if not all(hi): t += ' op_sel_hi:[%s]' % ','.join(map(str, hi))
    if neg: t += ' neg_lo:[%s] neg_hi:[%s]' % (','.join(map(str, neg)), ','.join(map(str, neg)))
    return t
def cvt(d, a, b): return f'v_cvt_pk_bf16_f32 v{d}, v{a}, v{b}'
def sw16(a, b): return f'v_permlane16_swap_b32 v{a}, v{b}'
def sw32(a, b): return f'v_permlane32_swap_b32 v{a}, v{b}'
def mf16(d, A, B, C=None): return f'v_mfma_f32_16x16x32_bf16 {vr(d,4)}, {vr(A,4)}, {vr(B,4)}, ' + (vr(C, 4) if C is not None else '0')
def mf32(d, A, B, C=None): return f'v_mfma_f32_32x32x16_bf16 {vr(d,16)}, {vr(A,4)}, {vr(B,4)}, ' + (vr(C, 16) if C is not None else '0')


class Gen:
    def __init__(self, prof=0, limit=300000, dist=2, touch=1, bm=25, local=1, pd=6, sch=1, hprio=2, opos=(1, 5), warm=1, nap=1, probe=None, snake=1, rf=2, hq=4, fine=0, llf='sc1', ot=0, hc=None, hpos=90, early=0, w2=0, w0b=0, cpf=0, tr=4, bpos=1, r0=2, rprio=3, w0a=1, pipe=0, b1=0, b2=0, n1=0, n2=0, zw=2, yw=60, thr=None, pw=0, po=0, jit=0, st0=6, vpos=1, fst='sc1', rot0=12, iw=2, oh=(0, 9), dl=6, lprio=3, fpos=24, lf='', lfl=0, xnap=0, ls=0, pf='nt', mix=0, bw=0, t0s=(), xd=None, tlb=0, crow=0, ramp=0, xl=0, i0=0, hu=None, hun=0, yv=0, spec=3, wsch=(10, 12), hp=90, pat=None, pat1=None, d0=0, xi=6, c3=0, wf=1, tos=1, swp=0, gi=11, si=10):
        self.a = Asm()
        assert 16 <= bm < 32 - dl//2 and not early
        self.__dict__.update(prof=prof, limit=limit, dist=dist, touch=touch, bm=bm, local=local, pd=pd, sch=sch, hprio=hprio, opos=opos, warm=warm, nap=nap, probe=probe, snake=snake, rf=rf, hq=hq, fine=fine, llf=llf, ot=ot, hc=hc, hpos=hpos, early=early, w2=w2, w0b=w0b, cpf=cpf, tr=tr, bpos=bpos, r0=r0, rprio=rprio, w0a=w0a, pipe=pipe, b1=b1, b2=b2, n1=n1, n2=n2, zw=zw, yw=yw, thr=thr, pw=pw, po=po, jit=jit, st0=st0, vpos=vpos, fst=fst, rot0=rot0, iw=iw, oh=oh, dl=dl, lprio=lprio, fpos=fpos, lf=lf, lfl=lfl, xnap=xnap, ls=ls, pf=pf, mix=mix, bw=bw, t0s=t0s, xd=xd, tlb=tlb, crow=crow, ramp=ramp, xl=xl, i0=i0, hu=hu, hun=hun, yv=yv, spec=spec, wsch=wsch, hp=hp, pat=pat, pat1=pat1, d0=d0, xi=xi, c3=c3, wf=wf, tos=tos, swp=swp, gi=gi, si=si)
        assert rot0 == 12 and not d0
        if d0: self.rot0 = 15
        self.nlab = 0; self.later = []

    def lab(self, p):
        self.nlab += 1
        return 'L_%s_%d' % (p, self.nlab)

    def aw(self, L):
        self.a.extend(autowait(L))
    def sw(self, L, crit=None, name=''):
        if self.sch:
            L = sched(L, crit)
            if name and __name__ == '__main__': print('sched', name, len(L), 'instructions, about', sched.last_estimate, 'cycles', file=sys.stderr)
        self.a.extend(autowait(L))

    def cond(self, test, body):
        L = self.lab('skip')
        self.a.extend(test); self.a(f's_cbranch_scc0 {L}')
        body()
        self.a.label(L)

    def aside(self, f):
        main, self.a = self.a, Asm()
        f()
        self.later.append(self.a); self.a = main

    def spin(self, issue, check, vt, tag, pre=False, alt=None, checked=False):
        a = self.a
        L, C, T, A, D = (self.lab(x) for x in ('spin', 'chk', 'tmo', 'alt', 'done'))
        count = [f's_add_u32 s{s_cnt}, s{s_cnt}, 1', f's_cmp_lt_u32 s{s_cnt}, {self.limit}', f's_cbranch_scc0 {T}']
        if checked:
            alt = issue; a(f's_cbranch_vccnz {A}')
        else:
            a(f's_mov_b32 s{s_cnt}, 0')
            if alt: a(f's_cmp_eq_u32 s{s_fast}, 1'); a(f's_cbranch_scc0 {A}')
            if pre:
                a(f's_branch {C}')
                a.label(L); a.extend(issue); a.extend(count); a('s_waitcnt vmcnt(0)')
                a.label(C)
                if pre is not True: a(pre)
                a.extend(check)
            else:
                S = autowait(list(issue) + ['s_nop 3'] + list(check)); k = S.index('s_nop 3')
                a.label(L); a.extend(S[:k]); a.extend(count); a.extend(S[k+1:])
            a(f's_cbranch_vccnz {L}')
        a.label(D)
        def rest():
            a = self.a
            if alt:
                L2 = self.lab('spin')
                a.label(A); a(f's_mov_b32 s{s_cnt}, 0')
                a.label(L2); a.extend(alt); a.extend(count); a('s_waitcnt vmcnt(0)' if checked else 's_waitcnt vmcnt(0) lgkmcnt(0)'); a.extend(check)
                a(f's_cbranch_vccnz {L2}'); a(f's_branch {D}')
            a.label(T)
            a('s_waitcnt vmcnt(0)' if checked else 's_waitcnt vmcnt(0) lgkmcnt(0)')
            a(f'v_mov_b32 v{vt}, {1 << tag}')
            a(f'buffer_atomic_or v{vt}, off, {srd(sDBG)}, 0 offset:4 sc1')
            a(f's_branch {D}')
        self.aside(rest)

    def ll_wait(self, loads, regs, t1, t2, tag, pre=False, under=None, per=None):
        S = []
        h = len(regs) // 2
        for t, R in ((t1, regs[:h]), (t2, regs[h:])):
            S.append(f'v_max_u32 v{t}, v{R[0]}, v{R[1]}')
            for k in range(2, len(R), 2): S.append(f'v_max3_u32 v{t}, v{t}, v{R[k]}, v{R[k+1]}')
        S += [f'v_max_u32 v{t1}, v{t1}, v{t2}', f'v_cmp_eq_u32 vcc, -1, v{t1}']
        if under: S = interleave(under, S, per=per)
        loads = [l.replace('sc1', self.llf) for l in loads]
        self.spin(loads, S, t1, tag, pre)

    def flag_set(self, soff, vt, which=3):
        a = self.a
        a('s_mov_b64 exec, 1')
        if which & 1: a(f'buffer_store_dword v{vt}, off, {srd(sWS)}, s{soff} {self.lf}')
        if which == 3 and self.lfl == 1: a(f'buffer_load_dword v220, off, {srd(sWS)}, s{soff} sc1')
        if which == 3 and self.lfl == 2: which = 1
        if which & 2: a(f'buffer_store_dword v{vt}, off, {srd(sWS)}, s{soff+1} sc1')
        a('s_mov_b64 exec, -1')
    def flag_addr(self, va, vt, soff, remote=False):
        L = [f'v_bfe_u32 v{va}, v1, 1, 3', f'v_and_b32 v{vt}, 1, v1', f'v_lshl_add_u32 v{va}, v{va}, 2, v{vt}']
        if remote: return L + [f'v_lshlrev_b32 v{va}, 7, v{va}']
        return L + [f's_cmp_eq_u32 s{s_fast}, 1', f's_cselect_b32 s{s_t}, {self.ls}, 5', f's_cselect_b32 s{s_t+1}, 0, {WS_RF}',
                    f's_lshl_b32 s{soff}, s{soff}, s{s_t}', f's_add_u32 s{soff}, s{soff}, s{s_t+1}', f's_add_u32 s{s_t}, s{s_t}, 2',
                    f'v_lshlrev_b32 v{va}, s{s_t}, v{va}']
    def flag_load(self, soff, va, vt, fl='sc1'): return f'buffer_load_dword v{vt}, v{va}, {srd(sWS)}, s{soff} offen {fl}'
    def flag_wait(self, soff, va, vt, tag, pre=False, nap=0, own=False, checked=False):
        z = [f's_sleep {nap}'] if nap else []
        self.spin(z + [self.flag_load(soff, va, vt, self.pf if own else 'sc1')], [f'v_cmp_eq_u32 vcc, 0, v{vt}'], vt, tag, pre,
                  z + [self.flag_load(soff, va, vt)] if own else None, checked)
    def get_mode(self, vt):
        self.a.extend([f'v_mov_b32 v{vt}, {P_MODE}', f'ds_read_b32 v{vt}, v{vt}', 's_waitcnt lgkmcnt(0)', f'v_readfirstlane_b32 s{s_fast}, v{vt}'])

    def jitter(self, k):
        a = self.a
        L = self.lab('jit')
        a.extend([f's_lshl_b32 s{s_t+6}, s2, 3', f's_add_u32 s{s_t+6}, s{s_t+6}, s{s_wave}', f's_lshl_b32 s{s_t+6}, s{s_t+6}, 2', f's_add_u32 s{s_t+6}, s{s_t+6}, s{s_l}',
                  f's_add_u32 s{s_t+6}, s{s_t+6}, {(k*7919 + self.jit*104729) & 0xffffff}', f's_mul_i32 s{s_t+6}, s{s_t+6}, 0x9e3779b1', f's_lshr_b32 s{s_t+7}, s{s_t+6}, 13',
                  f's_xor_b32 s{s_t+6}, s{s_t+6}, s{s_t+7}', f's_mul_i32 s{s_t+6}, s{s_t+6}, 0x85ebca6b', f's_lshr_b32 s{s_t+7}, s{s_t+6}, 29',
                  f's_lshr_b32 s{s_t+6}, s{s_t+6}, 8', f's_and_b32 s{s_t+6}, s{s_t+6}, 127', f's_lshr_b32 s{s_t+6}, s{s_t+6}, s{s_t+7}'])
        a.label(L)
        a.extend(['s_sleep 1', f's_sub_u32 s{s_t+6}, s{s_t+6}, 1', f's_cbranch_scc0 {L}'])
    def stamp(self, k):
        if self.jit: self.jitter(k)
        if self.probe:
            for n, (pl, pk_) in enumerate(self.probe[:2]):
                if pk_ == k:
                    def body():
                        self.a(f's_memrealtime s[{s_t+6}:{s_t+7}]'); self.a('s_waitcnt lgkmcnt(0)'); self.a(f's_mov_b32 s{93+n}, s{s_t+6}')
                    self.cond([f's_cmp_eq_u32 s{s_l}, {pl}'], body)
        if not self.prof or self.prof >= 5: return
        a = self.a
        a(f'{"s_memtime" if self.prof == 4 else "s_memrealtime"} s[{s_t+6}:{s_t+7}]')
        a(f's_mov_b32 s{s_stamp}, m0')
        a(f's_lshl_b32 m0, s{s_l}, 4'); a(f's_add_u32 m0, m0, {k}')
        a('s_waitcnt lgkmcnt(0)')
        a(f'v_writelane_b32 v255, s{s_t+6}, m0')
        a(f's_mov_b32 m0, s{s_stamp}')
    def stamp_out(self):
        if not self.prof: return
        a = self.a
        a.extend(sx(s_t, [(2, 2048), (s_wave, 256)], WS_STAMP))
        a('v_lshlrev_b32 v254, 2, v1')
        a(f'buffer_store_dword v255, v254, {srd(sWS)}, s{s_t} offen')

    def prologue(self):
        a = self.a
        a('s_cmp_ge_u32 s2, 256'); a('s_cbranch_scc1 L_end')
        a('s_load_dwordx16 s[4:19], s[0:1], 0')
        a('s_load_dwordx4 s[20:23], s[0:1], 64')
        a('v_lshrrev_b32 v2, 6, v0')
        a(f'v_readfirstlane_b32 s{s_wave}, v2')
        a('v_and_b32 v1, 63, v0')
        a(f's_and_b32 s{s_rot}, s2, 3'); a(f's_lshl_b32 s{s_rot}, s{s_rot}, 2')
        a(f's_bfe_u32 s{s_t}, s2, 0x20003'); a(f's_add_u32 s{s_m}, s{s_rot}, s{s_t}')
        a(f's_mov_b32 s{s_rot}, s{s_m}')
        a(f's_and_b32 s{s_rot2}, s2, 4'); a(f's_lshl_b32 s{s_rot2}, s{s_rot2}, 1')
        a(f's_lshr_b32 s{s_g}, s2, 5'); a(f's_add_u32 s{s_g}, s{s_g}, s{s_rot2}')
        a(f's_mov_b32 s{s_l}, 0'); a(f's_mov_b32 s{s_fast}, 0')
        for b, n in ((sWS, WS_END), (sX, 2048*1024*2), (sW, 1024*3072*2), (sWO, 1024*1024*2), (sOUT, WS_END), (sDBG, 256)):
            a(f's_mov_b32 s{b+2}, {n}'); a(f's_mov_b32 s{b+3}, 0x20000')
        if self.prof: a('v_mov_b32 v255, 0')
        self.stamp(0)
        a(f's_cmp_ge_u32 s{s_wave}, 6'); a('s_cbranch_scc1 L_helper')
        if self.st0 & 1: a(f's_cmp_lt_u32 s{s_wave}, 4'); a('s_cbranch_scc1 L_compute')
        else: a(f's_cmp_ge_u32 s{s_wave}, 4'); a('s_cbranch_scc1 L_loader')
    def pointers(self):
        a = self.a
        a('s_waitcnt lgkmcnt(0)')
        for b, p in ((sWS, pWS), (sX, pAX), (sW, pAW), (sWO, pAWO), (sOUT, pWS), (sDBG, pDBG)):
            a(f's_mov_b64 s[{b}:{b+1}], s[{p}:{p+1}]')

    def trickle_setup(self):
        a = self.a
        a(f's_mov_b64 s[{sOUT}:{sOUT+1}], s[{sWO}:{sWO+1}]'); a(f's_mov_b32 s{sOUT+2}, {1 << 21}')
        a.extend(sx(s_ft, [(2, 8192), (s_wave, 2048)], -8192))
        n1 = -(-16 // self.tr)
        a(f's_cmp_eq_u32 s{s_l}, 0'); a(f's_cselect_b32 s{s_fn}, 12, {n1}')
        a(f's_cmp_lt_u32 s{s_l}, {2 if self.warm else 0}'); a(f's_cselect_b32 s{s_fn}, s{s_fn}, 0')
    def trickle_lines(self, n):
        a = self.a
        a(f's_sub_u32 s{s_t}, s{sOUT+2}, {128*n}'); a(f's_min_u32 s{s_t}, s{s_t}, s{s_ft}')
        for r in range(n): a(f's_buffer_load_dwordx2 s[{s_fd}:{s_fd+1}], {srd(sOUT)}, s{s_t} offset:{128*r+60}')
        a(f's_add_u32 s{s_ft}, s{s_ft}, {128*n}')
    def trickle(self, i):
        a = self.a
        n1 = -(-16 // self.tr)
        def nxt():
            a(f's_mov_b64 s[{sOUT}:{sOUT+1}], s[{pBW}:{pBW+1}]'); a(f's_mov_b32 s{sOUT+2}, {3 << 21}')
            a.extend(sx(s_ft, [(2, 24576), (s_wave, 6144)], -24576))
        def body():
            if isinstance(i, str): self.cond([f's_cmp_eq_u32 {i}, {n1}'], nxt)
            elif i == n1: nxt()
            self.trickle_lines(self.tr)
        self.cond([f's_cmp_gt_u32 s{s_fn}, {i}'], body)
    def trickle_rest(self, part):
        rest = 48 - self.tr * (12 - -(-16 // self.tr))
        n = rest
        self.cond([f's_cmp_eq_u32 s{s_fn}, 12'], lambda: self.trickle_lines(n))

    def warm_w(self):
        a = self.a
        if not self.pw: return
        a(f's_and_b32 s{s_t}, s{s_m}, 3'); a.extend(sx(s_t+1, [(s_t, 16*6144), (s_wave, 4*6144), (s_g, 128)], -16*6144))
        a(f's_and_b32 s{s_t+2}, s{s_g}, 7')
        for st in range(1, 1 + self.pw):
            a(f's_cmp_le_u32 s{s_t+2}, {st-1}'); a(f's_addc_u32 s{s_t}, s{s_rot2}, {st-1}')
            a(f's_mul_i32 s{s_t}, s{s_t}, {64*6144}'); a(f's_add_u32 s{s_t}, s{s_t}, s{s_t+1}')
            for k in range(12): a(f's_buffer_load_dwordx2 s[{s_fd}:{s_fd+1}], {srd(sW)}, s{s_t} offset:{2048*k+60}')
    def warm_wo_setup(self):
        a = self.a
        a(f's_and_b32 s{s_t}, s{s_m}, 3'); a.extend(sx(s_po, [(s_t, 256*2048), (s_wave, 64*2048), (s_g, 128)], -256*2048))
    def warm_wo(self, n):
        a = self.a
        def body():
            for k in range(n): a(f's_buffer_load_dwordx2 s[{s_fd}:{s_fd+1}], {srd(sWO)}, s{s_po} offset:{2048*k+60}')
            a(f's_add_u32 s{s_po}, s{s_po}, {2048*n}'); a(f's_min_u32 s{s_po}, s{s_po}, {(1 << 21) - 2048*n}')
        if self.po: self.cond([f's_lshr_b32 s{s_t}, {self.po}, s{s_l}', f's_bitcmp1_b32 s{s_t}, 0'], body)

    def order(self, d, g7, first):
        a = self.a
        if first:
            a(f's_mov_b32 s{d}, 0x76543210'); a(f's_mov_b32 s{d+1}, 0xfedcba98')
            a(f's_bitcmp1_b32 s{s_m}, 2'); a(f's_cselect_b32 s{d}, 0xba987654, s{d}'); a(f's_cselect_b32 s{d+1}, 0x3210fedc, s{d+1}')
            a(f's_and_b32 s{s_x}, s{s_m}, 8')
        else:
            a(f's_lshl_b32 s{s_x}, s{g7}, 2')
            if self.swp: a(f's_lshl_b32 s{d}, s{g7}, s{s_x}'); a(f's_xor_b32 s{d}, s{d}, 0x76543210')
            else: a(f's_lshl_b32 s{d}, 0x11111110, s{s_x}'); a(f's_add_u32 s{d}, s{d}, 0x65432100')
            a(f's_or_b32 s{d}, s{d}, s{g7}')
            a(f's_lshr_b32 s{s_x}, s{s_m}, 2'); a(f's_mul_i32 s{d+1}, s{s_x}, 0x22222222'); a(f's_add_u32 s{d+1}, s{d+1}, 0x76543210')
            a(f's_or_b32 s{d+1}, s{d+1}, 0x88888888')
            a(f's_mov_b32 s{s_x}, s{s_rot2}')
        a(f's_mul_i32 s{s_x}, s{s_x}, 0x11111111'); a(f's_xor_b32 s{d}, s{d}, s{s_x}'); a(f's_xor_b32 s{d+1}, s{d+1}, s{s_x}')

    def w_dma_offsets(self, dw, idx, t0, t1, t2):
        a = self.a
        a(f'v_lshrrev_b32 v{t0}, 3, v1'); a(f'v_mul_u32_u24 v{t0}, 6144, v{t0}')
        a(f'v_and_b32 v{t1}, 7, v1'); a(f'v_bfe_u32 v{t2}, v1, 4, 1'); a(f'v_lshlrev_b32 v{t2}, 1, v{t2}')
        a(f'v_xor_b32 v{t1}, v{t1}, v{t2}'); a(f'v_xor_b32 v{t2}, 4, v{t1}')
        a(f'v_lshl_add_u32 v{t1}, v{t1}, 4, v{t0}'); a(f'v_lshl_add_u32 v{t2}, v{t2}, 4, v{t0}')
        d = 8*6144 - 1024
        a(f's_lshl_b32 s{s_t+1}, s{s_g}, 7'); a(f'v_add_u32 v{t1}, s{s_t+1}, v{t1}'); a(f's_add_u32 s{s_t+1}, s{s_t+1}, {d}'); a(f'v_add_u32 v{t2}, s{s_t+1}, v{t2}')
        a(f's_cmp_eq_u32 s{idx}, 0')
        for t in range(3):
            c = [((3*w + t) & 1)*32*6144 + ((3*w + t) >> 1)*2048 for w in range(2)]
            a(f's_mov_b32 s{s_t}, {c[1]}'); a(f's_cmov_b32 s{s_t}, {c[0]}')
            a(f'v_add_u32 v{dw+4*t}, s{s_t}, v{t1}'); a(f'v_add_u32 v{dw+4*t+1}, s{s_t}, v{t2}')
            a(f'v_add_u32 v{dw+4*t+2}, {2*d}, v{dw+4*t}'); a(f'v_add_u32 v{dw+4*t+3}, {2*d}, v{dw+4*t+1}')

    def w_frag_addr(self, aw, head_sreg, base, t0, t1, t2, nb_list=(0, 1)):
        L = [f'v_lshrrev_b32 v{t2}, 4, v1', f'v_bfe_u32 v{t0}, v1, 2, 2', f'v_lshl_add_u32 v{t1}, v{t2}, 3, v{t0}',
             f'v_lshrrev_b32 v{t0}, 1, v{t0}', f'v_and_b32 v{t2}, 1, v{t2}', f'v_lshl_add_u32 v{t0}, v{t2}, 1, v{t0}']
        if head_sreg is not None: L += [f's_lshl_b32 s{s_t}, s{head_sreg}, 1', f'v_xor_b32 v{t0}, s{s_t}, v{t0}']
        L += [f'v_and_b32 v{t2}, 3, v1', f'v_lshlrev_b32 v{t2}, 3, v{t2}', f'v_lshl_add_u32 v{t2}, v{t1}, 7, v{t2}']
        if base: L.append(f'v_add_u32 v{t2}, {base}, v{t2}')
        for k, nb in enumerate(nb_list): L += [f'v_xor_b32 v{t1}, {nb}, v{t0}', f'v_lshl_add_u32 v{aw+k}, v{t1}, 5, v{t2}']
        return L

    def reduce_job(self, after_by=None, after_fill=None):
        a = self.a
        T = 200
        vA, vZ, vO, t1, t2 = T, T+1, T+2, T+3, T+4
        s_a, s_b, s_c, s_d, s_e = 80, 81, 82, 83, 84
        a.extend(sx(s_t, [(s_l, 32), (s_g, 4), (s_wave, 1)], -4))
        a.extend(sx(s_a, [(s_t, 32768), (s_m, 128)], WS_KVP)); a(f's_add_u32 s{s_b}, s{s_a}, 16384')
        a.extend(sx(s_d, [(s_t, 2048), (s_m, 128)], WS_KVF))
        a.extend(sx(s_c, [(s_t, 1024)], WS_ZP)); a.extend(sx(s_e, [(s_t, 64)], WS_ZF))
        a(f's_and_b32 s{s_t}, s{s_t}, 1'); a(f's_xor_b32 s{s_t+1}, s{s_m}, s{s_g}'); a(f's_or_b32 s{s_t}, s{s_t}, s{s_t+1}')
        a(f's_cselect_b32 s{s_c}, {BIG}, s{s_c}'); a(f's_cselect_b32 s{s_e}, {BIG}, s{s_e}')
        a(f'v_and_b32 v{t1}, 7, v1'); a(f'v_lshlrev_b32 v{t1}, 4, v{t1}')
        a(f'v_lshrrev_b32 v{t2}, 3, v1'); a(f'v_lshl_add_u32 v{vA}, v{t2}, 11, v{t1}')
        a(f'v_lshlrev_b32 v{vZ}, 4, v1')
        a(f'v_lshrrev_b32 v{t2}, 4, v1'); a(f'v_lshl_add_u32 v{vO}, v{t2}, 2, v{t1}')
        D = T + 8; U = 160
        def late_fill():
            for k in range(4): a(f'v_mov_b32 v{D+k}, -1')
            fill = f'buffer_store_dwordx4 {vr(D,4)}, v{vZ}, {srd(sWS)}, s{s_t} offen'
            a.extend(sx(s_t, [(s_g, 131072), (s_wave, 32768), (s_m, 2048)], WS_KVP + (1 << 21) - 4*32768)); a(fill + ' sc1'); a(fill + ' offset:1024 sc1')
            a(f's_lshr_b32 s{s_t+1}, s{s_wave}, 1'); a(f's_and_b32 s{s_t+2}, s{s_wave}, 1')
            a.extend(sx(s_t, [(s_t+2, 1 << 20), (s_m, 1 << 16), (s_g, 4096), (s_t+1, 2048)], WS_HALO - 2*2048)); a(fill + ' sc1'); a(fill + ' offset:1024 sc1')
            a.extend(sx(s_t, [(s_wave, 262144), (s_m, 16384), (s_g, 1024)], WS_ST - 3*262144))
            a.extend(sx(s_t+3, [(s_g, 16384), (s_m, 1024)], WS_CS + 262144))
            a(f's_cmp_eq_u32 s{s_wave}, 7'); a(f's_cselect_b32 s{s_t}, s{s_t+3}, s{s_t}'); a(fill + ' sc1')
            a('s_mov_b64 exec, 0xff')
            a(f's_add_u32 s{s_t}, s{s_d}, {1 << 17}'); a(fill + ' sc1')
            a(f's_add_u32 s{s_t}, s{s_e}, {1 << 12}'); a(fill + ' sc1')
            a.extend(sx(s_t, [(s_g, 4096), (s_t+1, 2048), (s_m, 128)], WS_ZP + (1 << 16) - 2*2048)); a(fill + ' sc1')
            a('s_mov_b64 exec, -1')
            a('s_waitcnt vmcnt(0)')
        self.cond([f's_cmp_eq_u32 s{s_l}, 0'], late_fill)
        if self.hu is not None:
            vH, vG, s_f = T+5, T+6, 85
            a.extend(sx(s_f, [(s_l, 16384), (s_g, 2048)], WS_HU)); a(f'v_and_b32 v{vH}, 15, v1'); a(f'v_lshlrev_b32 v{vH}, 7, v{vH}')
        a('s_barrier')
        if self.hu is not None: a(self.flag_load(s_f, vH, vG))
        if self.jit: self.jitter(20)
        if self.rprio: a(f's_setprio {self.rprio}')
        a('s_barrier')
        if self.hu is not None: self.flag_wait(s_f, vH, vG, 11, pre='s_waitcnt vmcnt(0)', nap=self.hun)
        if after_by and self.w0a == 0: after_by()
        if self.b1: a(f's_sleep {self.b1}')
        self.ll_wait(([f's_sleep {self.n1}'] if self.n1 else []) + [f'buffer_load_dwordx4 {vr(D,4)}, v{vA}, {srd(sWS)}, s{s_a} offen sc1',
                      f'buffer_load_dwordx4 {vr(D+4,4)}, v{vA}, {srd(sWS)}, s{s_b} offen sc1',
                      f'buffer_load_dwordx4 {vr(D+8,4)}, v{vZ}, {srd(sWS)}, s{s_c} offen sc1',
                      f'buffer_load_dwordx4 {vr(D+12,4)}, v{vZ}, {srd(sWS)}, s{s_c} offen offset:1024 sc1'],
                     list(range(D, D+16)), t1, t2, 1)
        self.stamp(5)
        S = []
        for z in range(2):
            d, u = D + 8*z, U + 16*z
            for k in range(8): S += [f'v_lshlrev_b32 v{u+2*k}, 16, v{d+k}', f'v_and_b32 v{u+2*k+1}, 0xffff0000, v{d+k}']
            for k in range(4): S.append(pk('add', u+2*k, u+2*k, u+8+2*k))
            for k in range(4): S.append(sw32(u+k, u+4+k))
            S += [pk('add', u, u, u+4), pk('add', u+2, u+2, u+6), sw16(u, u+2), sw16(u+1, u+3), pk('add', u, u, u+2)]
            for k in range(2): S.append(f'v_add_f32_dpp v{u+k}, v{u+k}, v{u+k} row_ror:8 row_mask:0xf bank_mask:0xf')
            S.append(cvt(u, u, u+1))
        S += ['s_mov_b32 exec_lo, 0x00ff00ff', 's_mov_b32 exec_hi, 0x00ff00ff',
              f'buffer_store_dword v{U}, v{vO}, {srd(sWS)}, s{s_d} offen sc1',
              f'buffer_store_dword v{U+16}, v{vO}, {srd(sWS)}, s{s_e} offen sc1', 's_mov_b64 exec, -1']
        self.sw(S)
        if self.rprio: a('s_setprio 0')
        if after_by and self.w0a == 1: after_by()
        if self.zw: a(f's_waitcnt vmcnt({12 if (after_by and self.w0a == 1 and self.zw == 1) else 0})')
        a('s_barrier')
        if after_by and self.w0a == 2: after_by()

    def loader(self):
        a = self.a
        a.label('L_loader')
        dx, dw, dwo, t0, t1, t2, vf = 8, 16, 28, 2, 3, 4, 5
        s_ld, s_kx, s_kw, s_slot, s_mx, s_xstep, s_wo, s_wm0, s_sx, s_sw, s_xb, s_fl, s_mw = range(65, 78)
        a(f's_sub_u32 s{s_ld}, s{s_wave}, 4')
        self.w_dma_offsets(dw, s_ld, t0, t1, t2)
        a(f's_mul_i32 s{s_mw}, s{s_ld}, 12288')
        a(f's_lshl_b32 s{s_mx}, s{s_ld}, 13'); a(f's_add_u32 s{s_mx}, s{s_mx}, {XOFF}')
        s_tx, s_tv = 12, 78
        def nxt(r, t): return [f's_and_b32 s{r}, s{t}, 15', f's_lshr_b64 s[{t}:{t+1}], s[{t}:{t+1}], 4']
        def wst(slot=None):
            L = []
            for j in range(12):
                if j == 0: L.append(f's_add_u32 m0, s{s_mw}, ' + (f's{s_slot}' if slot is None else str(slot*STG)))
                elif j % 4 == 0: L.append('s_add_u32 m0, m0, 4096')
                L.append(f'buffer_load_dwordx4 v{dw+j}, {srd(sW)}, s{s_kw} offen offset:{1024*(j%4)} lds')
            a.extend(L + nxt(s_sw, s_tv) + [f's_mul_i32 s{s_kw}, s{s_sw}, {64*6144}'])
        def xst(slot=None):
            L = []
            for j in range(8):
                if j == 0: L.append(f's_add_u32 m0, s{s_mx}, ' + (f's{s_slot}' if slot is None else str(slot*STG)))
                elif j == 4: L.append('s_add_u32 m0, m0, 4096')
                L.append(f'buffer_load_dwordx4 v{dx+j}, {srd(sX)}, s{s_kx} offen offset:{1024*(j%4)} sc1 lds')
            a.extend(L + nxt(s_sx, s_tx) + [f's_mul_i32 s{s_kx}, s{s_sx}, s{s_xstep}', f's_add_u32 s{s_kx}, s{s_kx}, s{s_xb}'])
        def kstart(first):
            if not first: a(f's_and_b32 s{s_t}, s{s_g}, 7')
            self.order(s_tv, s_t, first)
            if first: self.pointers()
            a(f's_lshr_b64 s[{s_tx}:{s_tx+1}], s[{s_tv}:{s_tv+1}], {0 if first else 4}')
            a.extend(nxt(s_sw, s_tv) + nxt(s_sx, s_tx))
            a(f's_mul_i32 s{s_kw}, s{s_sw}, {64*6144}'); a(f's_mul_i32 s{s_kx}, s{s_sx}, s{s_xstep}'); a(f's_add_u32 s{s_kx}, s{s_kx}, s{s_xb}')
        a(f's_lshl_b32 s{s_xb}, s{s_m}, 18'); a(f's_mov_b32 s{s_xstep}, 128'); kstart(True)
        wst(0)
        a(f'v_lshrrev_b32 v{t0}, 3, v1'); a(f'v_and_b32 v{t1}, 7, v1')
        a(f'v_lshrrev_b32 v{t2}, 4, v1'); a(f'v_xor_b32 v{t1}, v{t1}, v{t2}'); a(f'v_xor_b32 v{t2}, 4, v{t1}')
        a(f's_lshl_b32 s{s_t}, s{s_ld}, 17'); a(f'v_lshl_add_u32 v{t0}, v{t0}, 11, s{s_t}')
        a(f'v_lshl_add_u32 v{t1}, v{t1}, 4, v{t0}'); a(f'v_lshl_add_u32 v{t2}, v{t2}, 4, v{t0}')
        for j in range(8): a(f'v_add_u32 v{dx+j}, {j*16384 - 1024*(j%4)}, v{t1 if j % 2 == 0 else t2}')
        xst(0); wst(1)
        if self.ramp == -2: xst(1)
        a(f'v_lshrrev_b32 v{t0}, 5, v1'); a(f'v_lshlrev_b32 v{t0}, 4, v{t0}')
        a(f'v_bfe_u32 v{t1}, v1, 3, 2'); a(f'v_add_u32 v{t0}, v{t0}, v{t1}')
        a(f's_lshl_b32 s{s_t}, s{s_g}, 7'); a(f'v_lshl_add_u32 v{t0}, v{t0}, 11, s{s_t}')
        a(f'v_and_b32 v{t1}, 7, v1'); a(f'v_bfe_u32 v{t2}, v1, 4, 1'); a(f'v_lshlrev_b32 v{t2}, 1, v{t2}')
        a(f'v_xor_b32 v{t1}, v{t1}, v{t2}'); a(f'v_xor_b32 v{t2}, 4, v{t1}')
        a(f'v_lshl_add_u32 v{t1}, v{t1}, 4, v{t0}'); a(f'v_lshl_add_u32 v{t2}, v{t2}, 4, v{t0}')
        for G in range(4): a(f'v_add_u32 v{dwo+G}, {G*4*2048 - 1024*G}, v{t1 if G % 2 == 0 else t2}')
        a(f's_waitcnt vmcnt({20 if self.ramp == -2 else 12})'); a('s_barrier')
        if self.ramp != -2: xst(1)
        wst(2)
        if self.ramp < 0: xst(2)
        a(f's_waitcnt vmcnt({20 if self.ramp < 0 else 12})'); a('s_barrier')
        if self.ramp >= 0: xst(2)
        if self.ramp > 0:
            for k in range(self.ramp):
                xst(k % 3); a('s_waitcnt vmcnt(8)'); a('s_barrier'); wst(k % 3)
            a(f's_mov_b32 s{s_i}, {self.ramp}'); a(f's_mov_b32 s{s_slot}, {(self.ramp % 3)*STG}')
            a('s_branch L_ld_enter2')
        a.label('L_ld_enter')
        a(f's_mov_b32 s{s_i}, 0'); a(f's_mov_b32 s{s_slot}, 0')
        a.label('L_ld_enter2')
        s_c3 = 86
        a(f's_lshr_b32 s{s_c3}, s{sW}, 7'); a(f's_add_u32 s{s_c3}, s{s_c3}, s{s_g}'); a(f's_and_b32 s{s_c3}, s{s_c3}, 7')
        self.trickle_setup(); self.warm_wo_setup()
        def loop(name, n, extra):
            a.label(name)
            if self.wf == 1:
                L1, L2 = self.lab('wf'), self.lab('wfd')
                a(f's_cmp_eq_u32 s{s_c3}, 3'); a(f's_cbranch_scc1 {L1}')
                xst(); wst(); a(f's_branch {L2}')
                a.label(L1); wst(); xst(); a.label(L2)
            elif self.wf == 2: wst(); xst()
            else: xst(); wst()
            if extra:
                a(f's_add_u32 s{s_t}, s{s_i}, 1'); a(f's_and_b32 s{s_t}, s{s_t}, 7')
                a.extend(sx(s_wo, [(s_rot2, 2), (s_t, 1)], 24)); a(f's_and_b32 s{s_wo}, s{s_wo}, 31')
                a.extend(sx(s_wm0, [(s_wo, 65536), (s_ld, 2*4*2048)]))
                a.extend(sx(s_wo, [(s_t, 4096), (s_ld, 2048)], L_SPARE)); a(f's_mov_b32 m0, s{s_wo}')
                for G in range(2): a(f'buffer_load_dwordx4 v{dwo+G}, {srd(sWO)}, s{s_wm0} offen offset:{1024*G} lds')
            self.trickle(f's{s_i}'); self.warm_wo(5)
            a(f's_add_u32 s{s_slot}, s{s_slot}, {STG}'); a(f's_cmp_eq_u32 s{s_slot}, {3*STG}'); a(f's_cselect_b32 s{s_slot}, 0, s{s_slot}')
            a(f's_add_u32 s{s_i}, s{s_i}, 1'); a(f's_cmp_lt_u32 s{s_i}, {n}')
            a(f's_waitcnt vmcnt({22 if extra else 20})')
            a('s_barrier')
            a(f's_cbranch_scc1 {name}')
        if self.early: loop('L_ld_loop', 5, False); loop('L_ld_loop2', 13, True)
        else: loop('L_ld_loop', 13, False)
        def wo(p0, n, thr=None):
            a.extend(sx(s_wm0, [(s_ld, 4096)], L_WO + 4096*p0))
            a.extend(sx(s_wo, [(s_rot2, 2), (s_ld, 1)], p0)); a(f's_and_b32 s{s_wo}, s{s_wo}, 31'); a(f's_lshl_b32 s{s_wo}, s{s_wo}, 16')
            L = self.lab('wo')
            a(f's_mov_b32 s{s_i}, 0')
            a.label(L)
            if thr is not None: a(f's_waitcnt vmcnt({thr})')
            a(f's_mov_b32 m0, s{s_wm0}')
            a(f's_add_u32 s{s_wm0}, s{s_wm0}, 8192')
            for G in range(4): a(f'buffer_load_dwordx4 v{dwo+G}, {srd(sWO)}, s{s_wo} offen offset:{1024*G} lds')
            a(f's_add_u32 s{s_wo}, s{s_wo}, 131072'); a(f's_and_b32 s{s_wo}, s{s_wo}, 0x1fffff')
            a(f's_add_u32 s{s_i}, s{s_i}, 1'); a(f's_cmp_lt_u32 s{s_i}, {n//2}'); a(f's_cbranch_scc1 {L}')
        order = list(range(24, 32)) + list(range(4, 24)) + list(range(4))
        def wos(k0, k1):
            while k0 < k1:
                k = k0
                while k + 1 < k1 and order[k+1] == order[k] + 1: k += 1
                wo(order[k0], k + 1 - k0); k0 = k + 1
        n13, n14 = self.wsch; assert n13 <= 18 and n13 + n14 <= 28 and n13 % 2 == 0 and n14 % 2 == 0
        wos(0, n13)
        a(f's_waitcnt vmcnt({2*n13})'); a('s_barrier')
        wos(n13, n13 + n14)
        a('s_barrier')
        wos(n13 + n14, 32)
        if self.jit: self.jitter(23)
        a.extend(sx(s_fl, [(s_l, 8192), (s_m, 256), (s_rot2, 16), (s_ld, 8)], 4096))
        self.get_mode(t0); a.extend(self.flag_addr(vf, t0, s_fl))
        a.extend(sx(s_xb, [(s_l, 1 << 22), (s_m, 1 << 18)], WS_XI))
        a(f's_bitcmp0_b32 s{s_l}, 0')
        a(f's_cselect_b64 s[{sW}:{sW+1}], s[{pBW}:{pBW+1}], s[{pAW}:{pAW+1}]')
        a(f's_cselect_b64 s[{sWO}:{sWO+1}], s[{pBWO}:{pBWO+1}], s[{pAWO}:{pAWO+1}]')
        a(f's_mov_b64 s[{sX}:{sX+1}], s[{pWS}:{pWS+1}]'); a(f's_mov_b32 s{sX+2}, {WS_END}')
        a(f's_mov_b32 s{s_xstep}, 16384'); kstart(False)
        a(f's_lshl_b32 s{s_t}, s{s_ld}, 13'); a(f'v_lshl_add_u32 v{t0}, v1, 4, s{s_t}')
        for j in range(8): a(f'v_add_u32 v{dx+j}, {4096*(j//4)}, v{t0}')
        a(f's_bitcmp1_b32 s{s_l}, 0'); a('s_cbranch_scc1 L_ld_B')
        self.reduce_job(lambda: wst(0))
        a('s_branch L_ld_join')
        a.label('L_ld_B')
        self.cond([f's_cmp_lg_u32 s{s_l}, 3'], lambda: wst(0))
        a.label('L_ld_join')
        a('s_waitcnt vmcnt(0)'); a('s_barrier')
        a(f's_cmp_eq_u32 s{s_l}, 3'); a('s_cbranch_scc1 L_fin')
        self.trickle_rest(1); self.warm_w()
        a(f's_add_u32 s{s_l}, s{s_l}, 1')
        if self.jit: self.jitter(21)
        a('s_barrier')
        if self.jit: self.jitter(22)
        wst(1)
        if self.w2 == 2: wst(2)
        if self.spec & 4: a('s_waitcnt vmcnt(0)')
        a('s_barrier')
        if self.w2 == 0: wst(2)
        if self.lprio: a(f's_setprio {self.lprio}')
        self.flag_wait(s_fl, vf, t0, 2, nap=self.xnap, own=True)
        self.stamp(1)
        xst(1); xst(2)
        if self.lprio: a('s_setprio 0')
        a('s_waitcnt vmcnt(8)'); a('s_barrier')
        if self.w2 == 1: wst(2)
        a('s_branch L_ld_enter')

    def helper(self):
        a = self.a
        a.label('L_helper')
        t0, t1, t2, t3, l4, l16, ones, a_st, a_cs, v_st, v_cs, aw, vtw, vto, vd = 2, 3, 4, 5, 6, 7, 8, 12, 13, 14, 15, 16, 18, 19, 20
        F, D, SA, SC = 32, 96, 128, 160
        s_h, s_tw, s_a, s_b, s_trot = 65, 66, 67, 68, 69
        xm = 4; s_r, s_tob, s_to, s_cs = 70, 71, 72, 74; vrf, vfl, aw2, dw = 21, 22, 24, 80
        a(f's_sub_u32 s{s_h}, s{s_wave}, 6')
        if self.tlb:
            self.pointers()
            def others():
                for p, n in ((pPHI, 65536), (pDBG, 256), (pAWO, 1 << 21), (pBW, 3 << 21), (pBWO, 1 << 21), (pOUT, 1 << 22)):
                    for o in list(range(0, n, 1 << 21)) + ([n - 4] if n >= 1 << 21 else []):
                        a(f's_mov_b32 s{s_t}, {o}'); a(f's_load_dword s{s_fd}, s[{p}:{p+1}], s{s_t}')
            def wsp():
                a(f's_lshr_b32 s{s_t}, s2, 3'); a(f's_lshl_b32 s{s_t}, s{s_t}, 21'); a(f's_add_u32 s{s_t}, s{s_t}, 0x80000'); a(f's_min_u32 s{s_t}, s{s_t}, {WS_END - 4}')
                a(f's_load_dword s{s_fd}, s[{pWS}:{pWS+1}], s{s_t}')
                if self.tlb == 2:
                    for k in range(6): a(f's_mov_b32 s{s_t}, {(k << 21) + 0x80000}'); a(f's_load_dword s{s_fd}, s[{pWS}:{pWS+1}], s{s_t}')
            self.cond([f's_cmp_eq_u32 s{s_h}, 0'], wsp)
            self.cond([f's_cmp_eq_u32 s{s_h}, 1'], others)
        def touch_setup(first=False):
            if not self.touch: return
            c, gt = s_t + 2, s_t + 3
            def cls(b):
                a(f's_lshr_b32 s{gt}, s{b}, 7'); a(f's_sub_u32 s{gt}, 3, s{gt}'); a(f's_and_b32 s{gt}, s{gt}, 7')
                a(f's_sub_u32 s{c}, s{s_g}, s{gt}'); a(f's_and_b32 s{c}, s{c}, 7'); a(f's_sub_u32 s{c}, s{c}, 1')
                a(f's_and_b32 s{s_t}, s{s_g}, 8'); a(f's_add_u32 s{gt}, s{gt}, s{s_t}'); a(f's_lshl_b32 s{gt}, s{gt}, 7')
            a(f's_and_b32 s{s_t+4}, s{s_m}, {xm-1}'); a(f's_lshl_b32 s{s_t+4}, s{s_t+4}, 1'); a(f's_add_u32 s{s_t+4}, s{s_t+4}, s{s_h}')
            cls(sW)
            a(f's_bfe_u32 s{s_t}, s{gt}, 0x30007'); self.order(s_to, s_t, first)
            a(f's_cmp_ge_u32 s{c}, 3'); a(f's_cselect_b32 s{s_t}, {32*6144 - 3*2048}, 0'); a(f's_add_u32 s{gt}, s{gt}, s{s_t}')
            a(f's_lshl_b32 s{s_t}, s{c}, 11'); a(f's_add_u32 s{gt}, s{gt}, s{s_t}')
            a(f's_mul_i32 s{s_t}, s{s_t+4}, {(16//xm)*6144}'); a(f's_add_u32 s{gt}, s{gt}, s{s_t}')
            a(f's_cmp_lt_u32 s{c}, 6'); a(f's_cselect_b32 s{s_t}, {16//xm}, 0')
            a(f'v_mul_u32_u24 v{vtw}, 6144, v1'); a(f'v_add_u32 v{vtw}, s{gt}, v{vtw}')
            a(f'v_mov_b32 v{t0}, {BIG}'); a(f'v_cmp_gt_u32 vcc, s{s_t}, v1'); a(f'v_cndmask_b32 v{vtw}, v{t0}, v{vtw}, vcc')
            cls(sWO)
            a(f's_lshl_b32 s{s_t}, s{c}, 19'); a(f's_add_u32 s{gt}, s{gt}, s{s_t}')
            a(f's_mul_i32 s{s_t}, s{s_t+4}, {(128//xm)*2048}'); a(f's_add_u32 s{gt}, s{gt}, s{s_t}')
            a(f's_cmp_lt_u32 s{c}, 4'); a(f's_cselect_b32 s{s_t}, {32//xm}, 0'); a(f's_cselect_b32 s{s_tob}, s{gt}, -1')
            if first: a(f's_mov_b32 s{s_tob}, -1')
            a(f'v_lshlrev_b32 v{vto}, 11, v1'); a(f'v_add_u32 v{vto}, s{gt}, v{vto}')
            a(f'v_cmp_gt_u32 vcc, s{s_t}, v1'); a(f'v_cndmask_b32 v{vto}, v{t0}, v{vto}, vcc')
        def touchW(st):
            if not self.touch: return
            a(f's_bfe_u32 s{s_tw}, s{s_to + st//8}, {0x40000 + 4*(st%8):#x}'); a(f's_mul_i32 s{s_tw}, s{s_tw}, {64*6144}')
            a(f'buffer_load_dword v{vd}, v{vtw}, {srd(sW)}, s{s_tw} offen')
        def touchO(k):
            if not self.touch: return
            a(f's_mov_b32 s{s_tw}, {k*(32//xm)*2048}')
            a(f'buffer_load_dword v{vd}, v{vto}, {srd(sWO)}, s{s_tw} offen')
        if self.c3 & 2:
            self.pointers(); touch_setup(True)
            for st in range(0, 3 + self.dist): touchW(st)
        a(f'v_lshlrev_b32 v{l4}, 2, v1'); a(f'v_lshlrev_b32 v{l16}, 4, v1')
        a.extend(self.w_frag_addr(aw2, s_h, 0, t0, t1, t2))
        a.extend(self.flag_addr(vrf, t0, None, remote=True))
        a(f'v_lshrrev_b32 v{t0}, 5, v1'); a(f'v_and_b32 v{t1}, 31, v1'); a(f'v_lshlrev_b32 v{t1}, 4, v{t1}')
        a(f'v_lshl_add_u32 v{v_st}, v{t0}, 10, v{t1}')
        a(f'v_and_b32 v{t2}, 24, v1'); a(f'v_and_b32 v{t3}, 3, v1'); a(f'v_lshl_add_u32 v{t2}, v{t3}, 1, v{t2}'); a(f'v_add_u32 v{t2}, v{t2}, v{t0}')
        a.extend(sx(s_t, [(s_h, 256)], P_NM)); a(f'v_lshl_add_u32 v{a_st}, v{t2}, 3, s{s_t}')
        a(f'v_mov_b32 v{t2}, {BIG}'); a(f'v_cmp_gt_u32 vcc, 384, v{t1}'); a(f'v_cndmask_b32 v{v_cs}, v{t2}, v{v_st}, vcc')
        a.extend(sx(s_t, [(s_h, 384)], P_CS)); a(f'v_lshl_add_u32 v{t1}, v{t0}, 3, v{t1}'); a(f'v_add_u32 v{a_cs}, s{s_t}, v{t1}')
        if not self.tlb and not self.c3 & 2: self.pointers()

        def phi_load():
            a(f's_mov_b64 s[{sX}:{sX+1}], s[{pPHI}:{pPHI+1}]'); a(f's_mov_b32 s{sX+2}, 65536')
            a.extend(sx(s_t, [(s_g, 4096), (s_h, 2048)])); a(f's_lshl_b32 s{s_t+1}, s{s_h}, 11'); a(f's_add_u32 m0, s{s_t+1}, {P_PHI}')
            for j in range(2): a(f'buffer_load_dwordx4 v{l16}, {srd(sX)}, s{s_t} offen offset:{1024*j} lds')
        vc = 26
        if self.cpf: a(f's_getpc_b64 s[{s_t}:{s_t+1}]')
        if self.cpf: a.label('L_pc')
        if self.cpf: a(f's_sub_u32 s{s_t}, s{s_t}, L_pc-{KNAME}'); a(f's_subb_u32 s{s_t+1}, s{s_t+1}, 0')
        if self.cpf: a(f's_lshr_b32 s{s_t+2}, s2, 3'); a.extend(sx(s_t+3, [(s_t+2, 1280), (s_h, 640)]))
        if self.cpf: a(f'v_lshl_add_u32 v{t0}, v1, 7, s{s_t+3}'); a(f'v_min_u32 v{t0}, L_last-{KNAME}, v{t0}')
        if self.cpf: a(f'v_mov_b32 v{vc+1}, s{s_t+1}'); a(f'v_add_co_u32 v{vc}, vcc, s{s_t}, v{t0}'); a(f'v_addc_co_u32 v{vc+1}, vcc, 0, v{vc+1}, vcc')
        def code_touch():
            a('s_mov_b64 exec, 31'); a(f'global_load_dword v{vd}, {vr(vc,2)}, off'); a('s_mov_b64 exec, -1')
        if self.cpf & 1: code_touch()
        def cold_touch():
            a(f's_and_b32 s{s_t}, s{s_m}, 3'); a(f's_and_b32 s{s_t+1}, s{s_m}, 12')
            a.extend(sx(s_t+2, [(s_t, 16*6144), (s_t+1, 64*6144), (s_h, 64*6144), (s_g, 128)]))
            a(f'v_lshlrev_b32 v{t0}, 11, v1'); a('s_mov_b32 exec_hi, 0xffff')
            for st in self.t0s:
                a(f's_add_u32 s{s_t}, s{s_t+2}, {abs(st)*64*6144}'); a(f'buffer_load_dword v{vd}, v{t0}, {srd(sW)}, s{s_t} offen')
            a('s_mov_b32 exec_hi, -1')
        if self.t0s and self.t0s[0] < 0: cold_touch()
        if not self.c3 & 2: touch_setup(True)
        if self.t0s and self.t0s[0] >= 0: cold_touch()
        for st in range(1, 0 if self.c3 & 2 else 3 + self.dist): touchW(st)

        def init_stores():
            for k in range(4): a(f'v_mov_b32 v{SA+k}, -1')
            fill = f'buffer_store_dwordx4 {vr(SA,4)}, v{l16}, {srd(sWS)}, s{s_t} offen'
            a.extend(sx(s_t, [(s_g, 131072), (s_h, 65536), (s_m, 2048)], WS_KVP)); a(fill + ' sc1'); a(fill + ' offset:1024 sc1')
            a(f's_add_u32 s{s_t}, s{s_t}, 32768'); a(fill + ' sc1'); a(fill + ' offset:1024 sc1')
            a('s_mov_b64 exec, 0xff')
            a.extend(sx(s_t, [(s_g, 8192), (s_h, 4096), (s_m, 128)], WS_KVF)); a(fill + ' sc1'); a(fill + ' offset:2048 sc1')
            a.extend(sx(s_t, [(s_g, 4096), (s_h, 2048), (s_m, 128)], WS_ZP)); a(fill + ' sc1')
            a.extend(sx(s_t, [(s_g, 256), (s_h, 128)], WS_ZF))
            a(f's_cmp_eq_u32 s{s_m}, s{s_g}'); a(f's_cselect_b32 s{s_t}, s{s_t}, {BIG}'); a(fill + ' sc1')
            a('s_mov_b64 exec, -1')
            a(f'v_lshrrev_b32 v{t1}, 2, v1'); a(f'v_lshlrev_b32 v{t1}, 10, v{t1}'); a(f'v_and_or_b32 v{t1}, v1, 3, v{t1}')
            a.extend(sx(s_t, [(s_m, 64), (s_g, 4)])); a(f'v_add_u32 v{t1}, s{s_t}, v{t1}')
            a(f's_cmp_eq_u32 s{s_h}, 0'); a(f's_cselect_b32 s{s_t+1}, {2 + self.ls}, 7'); a(f's_cselect_b32 s{s_t}, 0, {WS_RF}')
            a(f'v_lshlrev_b32 v{t1}, s{s_t+1}, v{t1}'); a(f'v_mov_b32 v{t0}, 0')
            a('s_mov_b64 exec, 0xfffffff')
            a(f'buffer_store_dword v{t0}, v{t1}, {srd(sWS)}, s{s_t} offen sc1')
            a('s_mov_b64 exec, -1')
            if self.hu is not None:
                a.extend(sx(s_t, [(s_h, 32768), (s_g, 2048), (s_m, 128)], WS_HU)); a(f'buffer_store_dword v{t0}, off, {srd(sWS)}, s{s_t} sc1')
            a.extend(sx(s_t, [(s_h, 4)], P_CNT)); a(f'v_mov_b32 v{t1}, s{s_t}'); a(f'ds_write_b32 v{t1}, v{t0}')
            a.extend(sx(s_t, [(s_g, 16384), (s_m, 1024)], WS_CS)); a(f's_cmp_eq_u32 s{s_h}, 1'); a(f's_cselect_b32 s{s_t}, s{s_t}, {BIG}'); a(fill + ' sc1')
        for k in range(4): a(f'v_mov_b32 v{ones+k}, 0x3f803f80')
        def cs_reads(aw=aw):
            for s in range(2):
                for n in range(6):
                    for t in range(2):
                        a(f'ds_read_b64_tr_b16 {vr(F+24*s+4*n+2*t,2)}, v{aw+(n&1)} offset:{(n>>1)*8192+(32*s+4*t)*128}')
            a('s_waitcnt lgkmcnt(0)')
        def cs_publish():
            for s in range(2):
                for n in range(6): a(mf16(D+4*n, ones, F+24*s+4*n, D+4*n if s else None))
            a.extend(sx(s_t, [(s_l, 262144), (s_g, 16384), (s_m, 1024), (s_h, 128)], WS_CS))
            a('s_mov_b64 exec, 0xffff')
            for n in range(6): a(f'buffer_store_dword v{D+4*n}, v{l4}, {srd(sWS)}, s{s_t} offen offset:{(n>>1)*256+(n&1)*64} sc1')
            a('s_mov_b64 exec, -1')
        def arrive():
            a(f's_getreg_b32 s{s_t}, hwreg(HW_REG_XCC_ID, 0, 3)'); a(f's_lshl_b32 s{s_t}, s{s_t}, 2'); a(f's_lshl_b32 s{s_t+1}, 1, s{s_t}')
            a.extend(sx(s_t, [(s_m, 16), (s_rot2, 1)]))
            a('s_mov_b64 exec, 1')
            a(f'v_mov_b32 v{t0}, s{s_t+1}')
            a(f'buffer_atomic_add v{t0}, off, {srd(sDBG)}, s{s_t} sc1')
            a('s_mov_b64 exec, -1')
        iload = f'buffer_load_dword v{vfl}, v{t2}, {srd(sDBG)}, 0 offen sc1'
        def init_look():
            a(f'v_and_b32 v{t2}, 31, v1'); a(f'v_lshlrev_b32 v{t2}, 3, v{t2}'); a(iload)
        def init_wait():
            a('s_waitcnt vmcnt(0)')
            self.spin(['s_sleep 16', iload],
                      [f'v_lshrrev_b32 v{t1}, 4, v{vfl}', f'v_and_b32 v{t1}, 0x0f0f0f0f, v{t1}', f'v_and_b32 v{t3}, 0x0f0f0f0f, v{vfl}',
                       f'v_sad_u8 v{t1}, v{t1}, 0, 0', f'v_sad_u8 v{t3}, v{t3}, 0, v{t1}', f'v_cmp_gt_u32 vcc, 8, v{t3}'], t3, 3, pre=True)
            a(f's_lshr_b32 s{s_t}, s{s_rot2}, 3'); a(f's_lshl_b32 s{s_t+1}, s{s_m}, 1'); a(f's_add_u32 s{s_t}, s{s_t}, s{s_t+1}')
            a(f'v_readlane_b32 s{s_fast}, v{vfl}, s{s_t}')
            a(f's_and_b32 s{s_fast}, s{s_fast}, 0x88888888'); a(f's_cselect_b32 s{s_fast}, {1 if self.local else 0}, 0')
            a(f'v_mov_b32 v{t3}, s{s_fast}'); a(f'v_mov_b32 v{t2}, {P_MODE}'); a(f'ds_write_b32 v{t2}, v{t3}')
        def gather(R, va, so, ks):
            L = []
            for k in ks: L += [f's_add_u32 s{s_t}, s{so}, {4096*(k//2)}', f'buffer_load_dwordx4 {vr(R+4*k,4)}, v{va}, {srd(sWS)}, s{s_t} offen offset:{2048*(k%2)} sc1']
            return L
        def total(R):
            n = 8
            while n > 1:
                n //= 2
                for k in range(4*n): a(f'v_add_f32 v{R+k}, v{R+k}, v{R+k+4*n}')
            a(sw32(R, R+2)); a(sw32(R+1, R+3)); a(f'v_add_f32 v{R}, v{R}, v{R+2}'); a(f'v_add_f32 v{R+1}, v{R+1}, v{R+3}')
        def stats_finish():
            for k in range(2): a(f'v_mov_b32_dpp v{SA+2+k}, v{SA+k} row_shl:4 row_mask:0xf bank_mask:0xf')
            for k in range(2): a(f'v_mul_f32 v{SA+k}, {f2u(-1/1024)}, v{SA+k}'); a(f'v_mul_f32 v{SA+2+k}, {f2u(1/1024)}, v{SA+2+k}')
            for k in range(2): a(f'v_fma_f32 v{SA+2+k}, -v{SA+k}, v{SA+k}, v{SA+2+k}')
            for k in range(2): a(f'v_max_f32 v{SA+2+k}, 0, v{SA+2+k}')
            for k in range(2): a(f'v_add_f32 v{SA+2+k}, {f2u(1e-5)}, v{SA+2+k}')
            for k in range(2): a(f'v_rsq_f32 v{SA+2+k}, v{SA+2+k}')
            a('s_mov_b32 exec_lo, 0x0f0f0f0f'); a('s_mov_b32 exec_hi, 0x0f0f0f0f')
            a(f'ds_write_b64 v{a_st}, {vr(SA,2)}'); a(f'ds_write_b64 v{a_st}, {vr(SA+2,2)} offset:512')
            a('s_mov_b64 exec, -1')
        def cs_finish():
            total(SC)
            a(f's_mul_i32 s{s_t}, s{s_l}, 768'); a(f'v_add_u32 v{t0}, s{s_t}, v{a_cs}')
            a('s_mov_b32 exec_lo, 0xffffff'); a('s_mov_b32 exec_hi, 0xffffff')
            a(f'ds_write_b64 v{t0}, {vr(SC,2)}')
            a('s_mov_b64 exec, -1')
        l0 = [f's_cmp_eq_u32 s{s_l}, 0']; ln0 = [f's_cmp_lg_u32 s{s_l}, 0']; l01 = [f's_cmp_lt_u32 s{s_l}, 2']
        a(f's_mov_b32 s{s_r}, 0')
        a.label('L_hp_layer')
        a(f's_lshr_b32 s{s_t}, s{s_m}, 2'); a(f's_lshl_b32 s{s_t}, s{s_t}, 1'); a(f's_bitcmp1_b32 s{s_m}, 1'); a(f's_cselect_b32 s{s_t}, 8, s{s_t}')
        a(f's_and_b32 s{s_t+1}, s{s_m}, 2'); a(f's_cmp_eq_u32 s{s_l}, 0'); a(f's_cselect_b32 s{s_t}, s{s_t+1}, s{s_t}')
        a(f's_and_b32 s{s_t+1}, s{s_m}, 1'); a(f's_add_u32 s{s_cs}, s{s_t}, s{s_t+1}')
        a(f's_mul_i32 s{s_t}, s{s_cs}, 11'); a(f's_lshr_b32 s{s_t}, s{s_t}, 5'); a(f's_mul_i32 s{s_t}, s{s_t}, 3'); a(f's_sub_u32 s{s_t}, s{s_cs}, s{s_t}'); a(f's_mul_i32 s{s_t}, s{s_t}, {STG}')
        for k in range(2): a(f'v_add_u32 v{aw+k}, s{s_t}, v{aw2+k}')
        a(f's_cmp_lt_u32 s{s_l}, 2'); a(f's_cselect_b32 s{s_cs}, s{s_cs}, 99')
        a.extend(sx(s_a, [(s_l, 262144), (s_m, 16384), (s_h, 512)], WS_ST))
        a.extend(sx(s_b, [(s_l, 262144), (s_g, 16384), (s_h, 384)], WS_CS))
        self.trickle_setup(); self.warm_wo_setup()
        hi = lambda: self.hprio and a(f's_setprio {self.hprio}')
        lo = lambda: self.hprio and a('s_setprio 0')
        l1 = [f's_cmp_eq_u32 s{s_l}, 1']
        for i in range(17):
            a('s_barrier')
            if self.jit and i in (0, 1, 4, 8, 9, 12, 16): self.jitter(30 + i)
            ncs = 16 - self.rot0
            l0h0 = [f's_or_b32 s{s_t}, s{s_l}, s{s_h}', f's_cmp_eq_u32 s{s_t}, 0']
            if i < 10: self.cond([f's_cmp_eq_u32 s{s_cs}, {i}'], cs_reads)
            if i in (self.i0 + self.iw, 5, 13) or (i == 14 and self.gi == 12): a('s_waitcnt vmcnt(0)')
            if i == 5: self.cond(ln0, lambda: self.flag_wait(s_r, vrf, vfl, 8, pre=True, nap=self.nap))
            if i == 9: self.cond(l0h0, init_wait)
            if i <= 13: hi()
            if i == self.i0: self.cond(l0, lambda: (init_stores(), phi_load()))
            if i == self.i0 + self.iw + 1: self.cond(l0h0, arrive)
            if i == max(4, ncs, self.i0 + self.iw + 1): self.cond(l0, cs_publish)
            if i == 10: self.cond(l1, cs_publish)
            if i == 8: self.cond(l0h0, init_look)
            if i == 11 and self.cpf & 2: self.cond(l01, code_touch)
            if i == 4: self.cond(ln0, lambda: a(self.flag_load(s_r, vrf, vfl)))
            if i + 3 + self.dist <= 15: touchW(i + 3 + self.dist)
            if 5 <= i <= 8:
                if self.tos: self.cond(l0, lambda: touchO(i - 5))
                else: touchO(i - 5)
            if i == 6: self.cond([f's_cmp_eq_u32 s{s_l}, 2'], phi_load)
            if self.si == 10:
                if i in (10, 11): a.extend(gather(SA, v_st, s_a, range(4*(i-10), 4*(i-10)+4)))
            else:
                if i in (10, 11): self.cond(l0, lambda: a.extend(gather(SA, v_st, s_a, range(4*(i-10), 4*(i-10)+4))))
                if self.si <= i < self.si + 8: self.cond(ln0, lambda: a.extend(gather(SA, v_st, s_a, [i - self.si])))
            if i in (self.gi, self.gi + 1): self.cond(l01, lambda: a.extend(gather(SC, v_cs, s_b, range(4*(i-self.gi), 4*(i-self.gi)+4))))
            if i == 12 and self.gi == 120: self.cond(l01, lambda: a.extend(gather(SC, v_cs, s_b, range(8))))
            if i <= 13: lo()
            if 1 <= i <= 12: self.trickle(i - 1)
            if self.tos and 5 <= i <= 12:
                self.cond([f's_cmp_lg_u32 s{s_tob}, -1'], lambda: [a(f's_buffer_load_dwordx2 s[{s_fd}:{s_fd+1}], {srd(sWO)}, s{s_tob} offset:{2048*(4*(i-5)+r)+60}') for r in range(4)])
            if i == 13: self.ll_wait(gather(SA, v_st, s_a, range(8)), list(range(SA, SA+32)), t0, t1, 6, pre=True); total(SA)
            if i == 14: stats_finish()
            if i == 14: self.cond(l01, lambda: self.ll_wait(gather(SC, v_cs, s_b, range(8)), list(range(SC, SC+32)), t0, t1, 7, pre=True))
            if i == 15: self.cond(l01, cs_finish); a('s_waitcnt lgkmcnt(0)')
        a.extend(sx(s_t+1, [(s_l, 8192), (s_m, 256), (s_g, 16), (s_h, 4096)])); a(f's_lshl_b32 s{s_t+1}, s{s_t+1}, {self.ls}')
        a(f'v_and_b32 v{t0}, 3, v1'); a(f'v_lshlrev_b32 v{t0}, {2 + self.ls}, v{t0}'); a(f'buffer_load_dword v{vd}, v{t0}, {srd(sWS)}, s{s_t+1} offen sc1')
        a.extend(sx(s_t, [(s_l, 8192), (s_m, 256), (s_rot2, 16)]))
        a(f's_xor_b32 s{s_t}, s{s_t}, 128'); a.extend(sx(s_r, [(s_t, 32), (s_h, 256)], WS_RF))
        a(f's_bitcmp0_b32 s{s_l}, 0')
        a(f's_cselect_b64 s[{sW}:{sW+1}], s[{pBW}:{pBW+1}], s[{pAW}:{pAW+1}]')
        a(f's_cselect_b64 s[{sWO}:{sWO+1}], s[{pBWO}:{pBWO+1}], s[{pAWO}:{pAWO+1}]')
        touch_setup()
        touchW(0); touchW(1); touchW(2)
        a(f's_bitcmp1_b32 s{s_l}, 0'); a('s_cbranch_scc1 L_hp_B')
        self.reduce_job()
        a('s_branch L_hp_join')
        a.label('L_hp_B')
        a.label('L_hp_join')
        a('s_barrier')
        a(f's_cmp_eq_u32 s{s_l}, 3'); a('s_cbranch_scc1 L_fin')
        self.trickle_rest(1); self.warm_w()
        a(f's_add_u32 s{s_r}, s{s_r}, {4096*32}')
        a(f's_add_u32 s{s_l}, s{s_l}, 1')
        a('s_barrier')
        for st in range(3, 3 + self.dist): touchW(st)
        def chunks():
            for k in range(4):
                a(f's_and_b32 s{s_tw}, s{s_m}, 12'); a(f's_add_u32 s{s_tw}, s{s_tw}, {k}'); a(f's_mul_i32 s{s_tw}, s{s_tw}, {64*6144}')
                a(f'buffer_load_dword v{vd}, v{vtw}, {srd(sW)}, s{s_tw} offen')
        if self.c3 & 1: self.cond([f's_cmp_eq_u32 s{s_l}, 1'], chunks)
        a('s_branch L_hp_layer')

    def compute(self):
        a = self.a
        one, l16, voffR, voffI, a_tok, a_row, a_t32, a_csr, a_csv = 0, 2, 3, 4, 5, 6, 7, 8, 9
        ax, awq = 10, 12
        l4 = 14; vst = 15
        XR = 16
        ACC = 32
        FX = [128, 144]; FW = [160, 184]
        T = 208
        t0, t1, t2, t3 = T, T+1, T+2, T+3
        s_wm, s_wh, s_rslot, s_delta, s_stg, s_ones = 65, 66, 67, 68, 69, 70
        s_o = 71
        s_ob = 75
        s_obase, s_ooff, s_a, s_b, s_c, s_d, s_e, s_fp, s_st, s_fo = range(77, 87)
        a(f'v_lshrrev_b32 v{t0}, 4, v1')
        a(f'v_and_b32 v{t1}, 15, v1')
        a(f'v_and_b32 v{t2}, 1, v{t0}'); a(f'v_lshrrev_b32 v{t3}, 1, v{t0}'); a(f'v_lshl_add_u32 v{t2}, v{t2}, 1, v{t3}')
        a(f'v_lshlrev_b32 v{voffR}, 11, v{t1}'); a(f'v_lshl_add_u32 v{voffR}, v{t2}, 4, v{voffR}')
        def x0():
            a = self.a
            a.extend(sx(s_t, [(s_m, 1 << 18), (s_wave, 1 << 16), (s_g, 128)])); a(f's_add_u32 s{s_t+1}, s{s_t}, 32768')
            if not self.st0 & 16 and self.xd is None and not self.d0: self.pointers()
            if self.crow & 1:
                a.extend(sx(s_t+2, [(2, 4*6144), (s_wave, 6144)])); a(f'v_lshlrev_b32 v{T+8}, 7, v1'); a('s_mov_b32 exec_hi, 0xffff')
                a(f'buffer_load_dword v{T+9}, v{T+8}, {srd(sW)}, s{s_t+2} offen'); a('s_mov_b32 exec_hi, -1')
            if self.crow & 2:
                a.extend(sx(s_t+2, [(2, 4*4096), (s_wave, 4096)])); a(f'v_lshlrev_b32 v{T+8}, 7, v1'); a('s_mov_b32 exec_hi, 0')
                a(f'buffer_load_dword v{T+9}, v{T+8}, {srd(sX)}, s{s_t+2} offen'); a('s_mov_b32 exec_hi, -1')
            if self.xl:
                a(f'v_lshrrev_b32 v{T+8}, 3, v1'); a(f'v_and_b32 v{T+9}, 7, v1'); a(f'v_lshlrev_b32 v{T+9}, 4, v{T+9}'); a(f'v_lshl_add_u32 v{T+8}, v{T+8}, 11, v{T+9}')
                a.extend(sx(s_t+1, [(s_wave, 4096)], L_SPARE)); a(f's_mov_b32 m0, s{s_t+1}')
                for j in range(4):
                    if j: a(f's_add_u32 s{s_t}, s{s_t}, {16384 - 1024}')
                    a(f'buffer_load_dwordx4 v{T+8}, {srd(sX)}, s{s_t} offen offset:{1024*j} lds')
                a(f'v_lshrrev_b32 v{T+9}, 4, v{voffR}'); a(f'v_and_b32 v{T+9}, 0x780, v{T+9}'); a(f'v_and_or_b32 v{T+9}, v{voffR}, 48, v{T+9}'); a(f'v_add_u32 v{T+9}, s{s_t+1}, v{T+9}')
                return
            for tb in range(2):
                for e in range(2): a(f'buffer_load_dwordx4 {vr(XR+8*tb+4*e,4)}, v{voffR}, {srd(sX)}, s{s_t+tb} offen offset:{64*e}')
        if self.d0:
            self.pointers(); a.extend(sx(s_t, [(s_wave, 4096)], XOFF)); a(f'v_lshlrev_b32 v{T+9}, 7, v{t1}'); a(f'v_lshl_add_u32 v{T+9}, v{t0}, 4, v{T+9}'); a(f'v_add_u32 v{T+9}, s{s_t}, v{T+9}')
        elif self.st0 & 16 or self.xd is not None: self.pointers()
        elif not self.st0 & 8: x0()
        a(f's_lshr_b32 s{s_wm}, s{s_wave}, 1'); a(f's_and_b32 s{s_wh}, s{s_wave}, 1')
        a(f'v_mov_b32 v{one}, 1')
        a(f'v_lshl_add_u32 v{voffI}, v{t2}, 4, v{t1}'); a(f'v_lshlrev_b32 v{voffI}, 4, v{voffI}'); a(f'v_mov_b32 v{vst}, v{voffI}')
        a(f'v_lshlrev_b32 v{l16}, 4, v1'); a(f'v_lshlrev_b32 v{l4}, 2, v1')
        a.extend(sx(s_t, [(s_wm, 256)], P_NM))
        a(f'v_lshl_add_u32 v{a_tok}, v{t1}, 2, s{s_t}')
        a(f'v_lshl_add_u32 v{a_row}, v{t0}, 4, s{s_t}')
        a(f'v_and_b32 v{t3}, 31, v1'); a(f'v_lshl_add_u32 v{a_t32}, v{t3}, 2, s{s_t}')
        a.extend(sx(s_t, [(s_wh, 128)], P_CS))
        a(f'v_lshl_add_u32 v{a_csr}, v{t0}, 4, s{s_t}')
        a(f'v_lshl_add_u32 v{a_csv}, v{t1}, 2, s{s_t}')
        a(f's_mov_b32 s{s_stg}, {STG}'); a(f's_mov_b32 s{s_ones}, 0x3f803f80')
        a(f'v_lshrrev_b32 v{t2}, 1, v{t1}'); a(f'v_xor_b32 v{t2}, v{t2}, v{t0}')
        a.extend(sx(s_t, [(s_wm, 8192)], XOFF)); a(f'v_lshl_add_u32 v{t1}, v{t1}, 7, s{s_t}')
        for s in range(2):
            a(f'v_xor_b32 v{t3}, {4*s}, v{t2}'); a(f'v_lshl_add_u32 v{ax+s}, v{t3}, 4, v{t1}')
        a.extend(sx(s_st, [(s_m, 16384), (s_g, 1024), (s_wave, 256)], WS_ST))

        q = 216
        def stats():
            S = []
            for k in range(8):
                for tb in range(2):
                    r = XR + 8*tb + k
                    S += [f'v_dot2_f32_bf16 v{q+2*tb}, s{s_ones}, v{r}, ' + (f'v{q+2*tb}' if k else '0'),
                          f'v_dot2_f32_bf16 v{q+2*tb+1}, v{r}, v{r}, ' + (f'v{q+2*tb+1}' if k else '0')]
            return S + [sw32(q, q+2), sw32(q+1, q+3), pk('add', q, q, q+2), sw16(q, q+1), f'v_add_f32 v{q}, v{q}, v{q+1}']
        st_store = f'buffer_store_dword v{q}, v{l4}, {srd(sWS)}, s{s_st} offen sc1'
        def acc(b, n): return ACC + 4*(6*b + n)
        A2 = 208
        def reads(s, st, slot=0):
            x, w, o = (ax, awq, STG*slot) if slot < 2 else (A2, A2+2, 0)
            X = [f'ds_read_b128 {vr(FX[st]+4*b,4)}, v{x+s} offset:{o+2048*b}' for b in range(4)]
            W = [[f'ds_read_b64_tr_b16 {vr(FW[st]+4*n+2*t,2)}, v{w+(n&1)} offset:{o+(n>>1)*8192+(32*s+4*t)*128}' for t in range(2)] for n in range(6)]
            L = [X[0]] + W[0] + X[1:]
            for n in range(1, 6): L += W[n]
            return L
        def mfma(st, b, n, zero=False):
            C = None if zero else acc(b, n)
            return mf16(acc(b, n), FW[st]+4*n, FX[st]+4*b, C) if n < 4 else mf16(acc(b, n), FX[st]+4*b, FW[st]+4*n, C)
        def mfmas(st, zero=False):
            return [mfma(st, b, n, zero) for n in range(6) for b in (range(4) if not (self.snake and n % 2) else range(3, -1, -1))]
        env = dict(locals())
        a.extend(self.w_frag_addr(awq, s_wh, 0, t0, t1, t2))
        self.epiA(env, 'v')
        if self.st0 & 8: x0()
        a(f'v_mov_b32 v{q}, -1'); a(st_store)
        a(f's_sub_u32 s{s_st}, s{s_st}, 262144')
        a.label('L_first')
        a('s_barrier')
        self.stamp(12)
        if self.st0 & 16: self.cond([f's_cmp_eq_u32 s{s_l}, 0'], x0)
        S = autowait(reads(0, 0) + interleave(mfmas(0, True), reads(1, 1), per=[0]*4 + [1]*20))
        cut = [k for k, t in enumerate(S) if t.startswith('v_mfma')][self.fpos-1] + 1
        a.extend(S[:cut])
        a('s_waitcnt vmcnt(0)')
        self.stamp(11)
        self.cond([f's_cmp_lg_u32 s{s_l}, 0'], lambda: self.flag_set(s_fo, one))
        a.extend(S[cut:])
        if self.xl or self.d0: self.cond([f's_cmp_eq_u32 s{s_l}, 0'], lambda: [a(f'ds_read_b128 {vr(XR+8*tb+4*e,4)}, v{T+9} offset:{2048*tb+64*e}') for tb in range(2) for e in range(2)])
        a('s_waitcnt lgkmcnt(0)')
        S = [f'v_add_u32 v{A2+k}, {2*STG}, v{ax+k}' for k in range(4)] + [f's_mov_b32 s{s_i}, 0']
        assert awq == ax + 2
        S += sx(s_t, [(s_l, 1 << 22), (s_m, 1 << 18)], WS_OI)
        S += sx(s_obase, [(s_wave, 1 << 16), (s_t, 1)]) + [f's_lshl_b32 s{s_ooff}, s{s_rot2}, 11']
        S += [f's_add_u32 s{s_ob}, s{s_obase}, s{s_ooff}', f's_add_u32 s{s_ob+1}, s{s_ob}, 32768']
        S += sx(s_a, [(s_wm, 1 << 17), (s_g, 2048), (s_wh, 1024), (s_t, 1)])
        S += sx(s_o, [(s_g, 16384), (s_wave, 4096), (s_t, 1)], WS_XI - WS_OI) + [f's_add_u32 s{s_o+k}, s{s_o}, {1024*k}' for k in range(1, 4)]
        S += sx(s_fp, [(s_l, 8192), (s_m, 256)]) + sx(s_fo, [(s_g, 16), (s_wave, 4), (s_fp, 1)]) + sx(s_fo+1, [(s_fo, 32)], WS_RF) + [f's_lshl_b32 s{s_fo}, s{s_fo}, {self.ls}']
        S += sx(s_t, [(s_wm, 8), (s_rot2, 16)]) + [f's_add_u32 s{s_fp}, s{s_fp}, s{s_t}']
        a.extend(interleave(mfmas(1), S, per=[2]*20 + [3]*4))
        if self.lfl == 2: self.cond([f's_cmp_lg_u32 s{s_l}, 0'], lambda: (a(f's_sub_u32 s{s_t+1}, s{s_fo+1}, {4096*32}'), self.flag_set(s_t, one, 2)))
        a(f's_bitcmp1_b32 s{s_l}, 0'); a('s_cbranch_scc1 L_preB')
        self.epiA(env, 's')
        a('s_branch L_pre_done')
        a.label('L_preB')
        self.epiB(env, 's')
        def last():
            a(f's_mov_b64 s[{sOUT}:{sOUT+1}], s[{pOUT}:{pOUT+1}]'); a(f's_mov_b32 s{sOUT+2}, {2048*1024*2}')
            a.extend(sx(s_o, [(s_m, 1 << 18), (s_wave, 1 << 16), (s_g, 128)]))
            a(f's_add_u32 s{s_o+1}, s{s_o}, 64'); a(f's_add_u32 s{s_o+2}, s{s_o}, 32768'); a(f's_add_u32 s{s_o+3}, s{s_o}, {32768+64}')
            a(f'v_mov_b32 v{vst}, v{voffR}')
        self.cond([f's_cmp_eq_u32 s{s_l}, 3'], last)
        a.label('L_pre_done')
        a(f's_add_u32 s{s_st}, s{s_st}, 262144')
        if self.d0: a(f's_cmp_eq_u32 s{s_l}, 0'); a(f's_cselect_b32 s{s_rslot}, {self.xi}, 1')
        if self.xd is not None: a(f's_cmp_eq_u32 s{s_l}, 0'); a(f's_cselect_b32 s{s_rslot}, 6, 0'); a('s_cbranch_scc1 L_go')
        a.extend(stats()); a(st_store)
        a.label('L_go')
        R1 = reads(0, 0, 1); isX = lambda t: 'b128' in t
        if self.spec & 4:
            a(f's_cmp_eq_u32 s{s_l}, 0'); a('s_cbranch_scc1 L_go0')
            a.extend([t for t in R1 if not isX(t)])
            a('s_barrier')
            self.stamp(1)
            a.extend([t for t in R1 if isX(t)])
            a('s_branch L_q1')
            a.label('L_go0')
        a('s_barrier')
        self.stamp(1)
        a.extend(R1)
        a('s_branch L_q1')
        nb = self.bpos + 1
        def half0(slot):
            if self.prof >= 5:
                a('s_memtime s[92:93]' if self.prof == 5 else 's_memrealtime s[92:93]'); a(f's_lshl_b32 m0, s{s_l}, 4'); a(f's_add_u32 m0, m0, s{s_i}'); a(f's_add_u32 m0, m0, {(slot+2)%3+1}')
            if self.probe and self.probe[1][1] >= 20 and (self.probe[1][1] - 20) % 3 == slot:
                self.cond([f's_cmp_eq_u32 s{s_i}, {(self.probe[1][1] - 21) // 3 * 3}'], lambda: self.stamp(self.probe[1][1]))
            if self.d0 and slot == 1:
                a(f's_cmp_eq_u32 s{s_i}, s{s_rslot}'); a('s_cbranch_scc1 L_x0'); a.label('L_x0_back')
                self.aside(lambda: (self.a.label('L_x0'), x0(), self.a('s_branch L_x0_back')))
            if slot == self.xd:
                a(f's_cmp_lt_u32 s{s_i}, s{s_rslot}'); a('s_cbranch_scc1 L_x0'); a.label('L_x0_back')
                def ev():
                    a = self.a
                    a.label('L_x0'); a(f's_cmp_eq_u32 s{s_i}, 0'); a('s_cbranch_scc0 L_x0_stats')
                    x0(); a('s_branch L_x0_back')
                    a.label('L_x0_stats'); a('s_waitcnt vmcnt(0)'); a.extend(stats()); a(st_store); a('s_branch L_x0_back')
                self.aside(ev)
            a('s_waitcnt lgkmcnt(0)')
            F = reads(1, 1, slot)
            if self.prof >= 5: F = ['v_writelane_b32 v255, s92, m0'] + F
            if slot == 0: F += [f's_add_u32 s{s_i}, s{s_i}, 3', f's_cmp_lt_u32 s{s_i}, 15']
            a.extend(interleave(mfmas(0), F, per=list(map(int, self.pat)) if self.pat else [0]*self.r0 + [1]*24))
            a('s_waitcnt lgkmcnt(0)')
            a.extend(mfmas(1)[:nb]); a('s_barrier')
        def half1(slot):
            R = reads(0, 0, (slot+1) % 3)
            a(R[0]); a.extend(interleave(mfmas(1)[nb:], R[1:], per=list(map(int, self.pat1)) if self.pat1 else [1]*24))
        a('.p2align 6')
        a.label('L_q')
        half1(0)
        a.label('L_q1')
        half0(1); half1(1); half0(2); half1(2); half0(0)
        a('s_cbranch_scc1 L_q')
        a.label('L_tail')
        self.stamp(2)
        a(f's_bitcmp1_b32 s{s_l}, 0'); a('s_cbranch_scc1 L_epiB')
        self.epiA(env, False)
        a('s_branch L_ophase')
        a.label('L_epiB')
        self.epiB(env, False)
        a.label('L_ophase')
        PD = self.pd; NR = PD + 1
        OA, OW, awo, vf, RING = 128, [160, 176], 192, 196, 32
        assert RING + 8*NR <= 128
        u0, u1, u2, vrf, vot, vxw = 197, 198, 199, 204, 205, 206
        a(f'v_mov_b32 v{u0}, {P_MODE}'); a(f'ds_read_b32 v{u0}, v{u0}')
        def oacc(tb, nb): return OA + 16*tb + 4*nb
        for k in range(4):
            a(sw16(XR+4*k, XR+4*k+2)); a(sw16(XR+4*k+1, XR+4*k+3))
        a('s_waitcnt lgkmcnt(0)'); a(f'v_readfirstlane_b32 s{s_fast}, v{u0}')
        a(f's_xor_b32 s{s_t}, s{s_fp}, 128'); a.extend(sx(s_e, [(s_t, 32)], WS_RF))
        a.extend(self.flag_addr(vrf, u1, None, remote=True))
        a.extend(self.flag_addr(vf, u1, s_fp))
        s_fq = s_d
        a(f's_cmp_eq_u32 s{s_fast}, 1'); a(f's_cselect_b32 s{s_fq}, s{s_fp}, {BIG}')
        for r in range(16):
            a(f'v_lshlrev_b32 v{OA+2*r}, 16, v{XR+r}'); a(f'v_and_b32 v{OA+2*r+1}, 0xffff0000, v{XR+r}')
        def oreads(h):
            return [f'ds_read_b64_tr_b16 {vr(OW[h&1]+4*nb+2*t,2)}, v{awo+nb} offset:{(h&15)*4096+512*t}' for nb in range(4) for t in range(2)]
        a('s_waitcnt vmcnt(0)')
        self.stamp(8)
        self.flag_set(s_fo, one, 1)
        a(self.flag_load(s_fq, vf, u0, self.pf))
        self.flag_set(s_fo, one, 2)
        a.extend(self.w_frag_addr(awo, None, L_WO, vxw, u1, u2, nb_list=(0, 1, 2, 3)))
        if not self.bw: a('s_barrier'); a.extend(oreads(0))
        def next_consts():
            a(f's_cmp_eq_u32 s{s_wh}, 0'); a('s_cselect_b64 vcc, -1, 0')
            for k in range(2): a(f'v_cndmask_b32 v{awq+k}, v{awo+2+k}, v{awo+k}, vcc')
            for k in range(2): a(f'v_subrev_u32 v{awq+k}, {L_WO}, v{awq+k}')
            a.extend(sx(s_t, [(s_wm, 8192)], XOFF)); a(f'v_add_u32 v{ax}, s{s_t}, v{l16}'); a(f'v_add_u32 v{ax+1}, 1024, v{ax}')
            a.extend(sx(s_t, [(s_wave, 4096)], XOFF)); a(f'v_add_u32 v{vxw}, s{s_t}, v{voffI}')
            a(f's_bitcmp1_b32 s{s_l}, 0'); a('s_cbranch_scc1 L_nextA')
            self.epiB(env, 'v')
            a('s_branch L_next_done')
            a.label('L_nextA')
            self.cond([f's_cmp_lg_u32 s{s_l}, 3'], lambda: self.epiA(env, 'v'))
            a.label('L_next_done')
        if not self.vpos: next_consts()
        self.flag_wait(s_fp, vf, u0, 4, pre='s_waitcnt vmcnt(1) lgkmcnt(0)', own=True)
        self.stamp(9)
        def oload(h, tb):
            L = [f'buffer_load_dwordx4 {vr(RING+8*(h%NR)+4*tb,4)}, v{l16}, {srd(sWS)}, s{s_ob+tb} offen offset:{1024*(h&3)} sc1']
            if h & 3 == 3 and h < 31:
                if tb == 0: L += [f's_add_u32 s{s_ooff}, s{s_ooff}, 4096', f's_and_b32 s{s_ooff}, s{s_ooff}, 0x7fff', f's_add_u32 s{s_ob}, s{s_obase}, s{s_ooff}']
                else: L += [f's_add_u32 s{s_ob+1}, s{s_ob}, 32768']
            return L
        S = []
        for h in range(PD):
            S += oload(h, 0) + oload(h, 1)
            if self.bw and h == 3: S += ['s_barrier'] + oreads(0)
        S.append('s_nop 2')
        hc = self.hc or 15 - PD
        DL = self.dl; assert DL <= PD and DL % 2 == 0
        UN = [(p, nb) for p in range(32 - DL) for nb in range(4)] + [(p, nb) for e in range(2) for p in range(32 - DL, 32) for nb in (2*e, 2*e+1)]
        def out(k4):
            return [cvt(XR+4*k4+k, OA+8*k4+2*k, OA+8*k4+2*k+1) for k in (0, 2, 1, 3)], [sw16(XR+4*k4, XR+4*k4+2), sw16(XR+4*k4+1, XR+4*k4+3)], [
                    f'buffer_store_dwordx4 {vr(XR+4*k4,4)}, v{vst}, {srd(sOUT)}, s{s_o+k4} offen sc1', f'ds_write_b128 v{vxw}, {vr(XR+4*k4,4)} offset:{1024*k4}']
        early = (out(0)[0] + out(2)[0][:2] + out(0)[1] + out(2)[0][2:] + out(0)[2][:1] + out(2)[1] + out(0)[2][1:] + out(2)[2]) if DL else []
        for h in range(32):
            if h == 15: S += [f'v_add_u32 v{awo+nb}, 0x10000, v{awo+nb}' for nb in range(4)]
            for k in range(8):
                u, tb = 4*h + k//2, k % 2
                p, nb = UN[u]
                S.append(mf16(oacc(tb, nb), OW[0]+4*(u%8), RING+8*(p%NR)+4*tb, oacc(tb, nb)))
                if u + 4 < 128:
                    p2, nb2 = UN[u+4]
                    S.append(f'ds_read_b64_tr_b16 {vr(OW[0]+4*((u+4)%8)+2*tb,2)}, v{awo+nb2} offset:{(p2&15)*4096+512*tb}')
                for j in range(2):
                    if k == self.opos[j] and h + PD < 32 and not (h + PD >= 16 and h <= hc): S += oload(h+PD, j)
                if 2*u + tb >= 256 - 4*DL + 2:
                    n = 2
                    S += early[:n]; early = early[n:]
            if h == self.hq: S.append(self.flag_load(s_e, vrf, u1))
            if h == hc:
                S += [f'v_cmp_eq_u32 vcc, 0, v{u1}', 's_nop 1']
                for p in range(16, hc + PD + 1): S += oload(p, 0) + oload(p, 1)
            if self.fine == 4 and h in self.oh: S.append(f's_nop {4 + self.oh.index(h)}')
            if h == self.bm: S.append('s_barrier')
        S = autowait(S + early); cut0 = S.index('s_nop 2'); cut = S.index('s_nop 1'); S.pop(cut)
        a.extend(S[:cut0])
        if self.vpos: next_consts()
        def emit(L):
            for t in L:
                if t in ('s_nop 4', 's_nop 5'): self.stamp(13 + int(t[-1]) - 4)
                else: a(t)
        emit(S[cut0+1:cut])
        self.flag_wait(s_e, vrf, u1, 9, pre=True, nap=self.nap, checked=True)
        emit(S[cut:])
        self.stamp(10)
        self.sw(sum((sum(out(k4), []) for k4 in ((1, 3) if DL else (0, 2, 1, 3))), []), crit=lambda t: t.startswith('buffer'))
        a(f's_cmp_eq_u32 s{s_l}, 3'); a('s_cbranch_scc1 L_fin')
        a(f's_add_u32 s{s_fo}, s{s_fo}, {4096 << self.ls}'); a(f's_add_u32 s{s_fo+1}, s{s_fo+1}, {4096*32}')
        a(f's_add_u32 s{s_l}, s{s_l}, 1')
        a('s_waitcnt lgkmcnt(0)')
        a('s_branch L_first')

    def epiA(self, E, pre):
        a = self.a
        acc = E['acc']; a_tok, a_row, a_t32, a_csr, a_csv, l16, l4 = (E[k] for k in ('a_tok', 'a_row', 'a_t32', 'a_csr', 'a_csv', 'l16', 'l4'))
        s_wm, s_wh, s_a, s_b, s_c, s_d, s_e = (E[k] for k in ('s_wm', 's_wh', 's_a', 's_b', 's_c', 's_d', 's_e'))
        PK = [128, 144]; EP, KV0, ZA, NR = 160, 176, 192, 208
        wphi, nml, c32, csv = 224, 232, 236, 238
        SEL = 240; ZK, ZS = ZA, ZA + 8
        a_phi, a_w, a_r0, a_r1, a_z, x_w, x_r = range(248, 255)
        csk = EP; csq = NR
        nmr = [KV0, EP+8, NR, NR+8]
        if pre == 'v':
            u0, u1, u2, u3, u4 = range(208, 213)
            S = [f'v_lshrrev_b32 v{u0}, 5, v1', f'v_bfe_u32 v{u1}, v1, 2, 2', f'v_lshl_add_u32 v{u1}, v{u0}, 3, v{u1}',
                 f'v_bfe_u32 v{u2}, v1, 4, 1', f'v_and_b32 v{u3}, 3, v1', f'v_lshlrev_b32 v{u4}, 3, v{u3}', f'v_lshl_add_u32 v{u2}, v{u2}, 5, v{u4}']
            S += sx(s_t, [(s_wh, 2048)], P_PHI) + [f'v_lshl_add_u32 v{u4}, v{u1}, 6, v{u2}', f'v_add_u32 v{a_phi}, s{s_t}, v{u4}']
            S += [f's_mul_i32 s{s_t+2}, s{s_wave}, {SCR}',
                  f'v_mul_u32_u24 v{u1}, 136, v{u1}', f'v_add3_u32 v{u1}, v{u1}, v{u2}, s{s_t+2}',
                  f's_lshl_b32 s{s_t+1}, s{s_wm}, 6', f'v_add_u32 v{a_r0}, s{s_t+1}, v{u1}',
                  f's_xor_b32 s{s_t+3}, s{s_t+1}, 64', f'v_add_u32 v{a_r1}, s{s_t+3}, v{u1}',
                  f'v_and_b32 v{u4}, 31, v1', f'v_mul_u32_u24 v{u4}, 136, v{u4}', f'v_lshl_add_u32 v{u4}, v{u0}, 3, v{u4}', f'v_add_u32 v{a_w}, s{s_t+2}, v{u4}',
                  f'v_add_u32 v{x_w}, s{s_t+2}, v{l16}', f's_xor_b32 s{s_t}, s{s_wave}, 2', f's_mul_i32 s{s_t}, s{s_t}, {SCR}', f'v_add_u32 v{x_r}, s{s_t}, v{l16}']
            S += [f'v_lshrrev_b32 v{u4}, 4, v1', f'v_xor_b32 v{u4}, v{u4}, v1', f'v_and_b32 v{u4}, 1, v{u4}', f'v_cmp_eq_u32 vcc, 0, v{u4}', f'v_mov_b32 v{u4}, 0x3f803f80',
                  f'v_cndmask_b32 v{SEL}, 0, v{u4}, vcc', f'v_mov_b32 v{SEL+1}, v{SEL}', f'v_mov_b64 {vr(SEL+2,2)}, {vr(SEL,2)}']
            S += [f'v_and_b32 v{u0}, 18, v1', f'v_lshlrev_b32 v{u0}, 1, v{u0}', f'v_and_or_b32 v{u0}, v1, 8, v{u0}', f'v_and_b32 v{u1}, 4, v1',
                  f'v_lshl_or_b32 v{u0}, v{u1}, 2, v{u0}', f'v_and_b32 v{u1}, 33, v1', f'v_lshl_or_b32 v{a_z}, v{u1}, 25, v{u0}',
                  f'v_lshl_or_b32 v{a_z}, v{u1}, 30, v{a_z}']
            a.extend(S)
            return
        if pre == 's':
            S = sx(s_t, [(s_l, 16), (s_g, 2), (s_wh, 1)])
            S += sx(s_d, [(s_t, 65536), (s_wm, 32768), (s_m, 2048)], WS_KVP) + sx(s_e, [(s_t, 2048), (s_m, 128), (s_wm, 64)], WS_ZP)
            S += sx(s_b, [(s_t, 128)], WS_ZF) + sx(s_c, [(s_t, 4096)], WS_KVF)
            if self.hu is not None: S += sx(E['s_delta'], [(s_l, 16384), (s_g, 2048), (s_m, 128), (s_wave, BIG >> 1)], WS_HU)
            a.extend(S)
            return
        S = []
        for b in range(4): S.append(f'ds_read_b32 v{nml+b}, v{a_tok} offset:{64*b}')
        for nb in range(2): S.append(f'ds_read_b128 {vr(csk+4*nb,4)}, v{a_csr} offset:{256+64*nb}')
        for u in range(2):
            for t in range(2): S.append(f'ds_read_b64_tr_b16 {vr(wphi+4*u+2*t,2)}, v{a_phi} offset:{(16*t+4*u)*64}')
        for nb in range(2): S.append(f'ds_read_b32 v{csv+nb}, v{a_csv} offset:{512+64*nb}')
        for b in range(4):
            S.append(f'ds_read_b128 {vr(nmr[b],4)}, v{a_row} offset:{64*b}')
            S.append(f'ds_read_b128 {vr(nmr[b]+4,4)}, v{a_row} offset:{512+64*b}')
            if b == 0:
                for Tt in range(2): S.append(f'ds_read_b32 v{c32+Tt}, v{a_t32} offset:{512+128*Tt}')
        def qk_prep(n0, cs):
            L = []
            for b in range(4):
                for k in range(4): L.append(pk('fma', acc(b, n0)+2*k, cs+2*k, ('b', nml+b), acc(b, n0)+2*k))
                for k in range(4): L.append(cvt(acc(b, n0)+k, acc(b, n0)+2*k, acc(b, n0)+2*k+1))
            for Tt in range(2):
                for k in range(4): L.append(sw16(acc(2*Tt, n0)+k, acc(2*Tt+1, n0)+k))
                L += [mf32(PK[Tt], wphi, acc(2*Tt, n0)), mf32(PK[Tt], wphi+4, acc(2*Tt+1, n0), PK[Tt])]
            return L
        def vprep(b):
            r = acc(b, 4); P, C = [], []
            for nb in range(2):
                for p in range(2): P.append(pk('fma', r+4*nb+2*p, nmr[b]+2*p, ('b', csv+nb), r+4*nb+2*p))
            for nb in range(2):
                for p in range(2): P.append(pk('mul', r+4*nb+2*p, r+4*nb+2*p, nmr[b]+4+2*p))
            for k in range(4): C.append(cvt(r+k, r+2*k, r+2*k+1))
            return P, C, [sw16(r, r+2), sw16(r+1, r+3)]
        def softmax(Tt):
            x = PK[Tt]; c = c32 + Tt
            ta, tb = ((acc(2, 3), acc(3, 3)), (acc(2, 2), acc(3, 2)))[Tt]
            mx, mn, bp, bm = ta, ta+1, tb, tb+1
            L = [f'v_max3_f32 v{mx}, v{x}, v{x+1}, v{x+2}', f'v_max3_f32 v{mn}, -v{x}, -v{x+1}, -v{x+2}']
            for k in range(3, 15, 2):
                L += [f'v_max3_f32 v{mx}, v{mx}, v{x+k}, v{x+k+1}', f'v_max3_f32 v{mn}, v{mn}, -v{x+k}, -v{x+k+1}']
            L += [f'v_max_f32 v{mx}, v{mx}, v{x+15}', f'v_max_f32 v{mn}, v{mn}, -v{x+15}']
            L += [sw32(mx, mn), f'v_max_f32 v{mx}, v{mx}, v{mn}', f'v_mul_f32 v{bm}, -v{mx}, v{c}', f'v_mov_b32 v{bp}, v{bm}', sw32(bp, bm)]
            parts = [L]; L = []
            for k in range(0, 16, 2): L.append(pk('fma', EP+k, x+k, ('b', c), ('b', bp)))
            for k in range(0, 16, 2): L.append(pk('fma', x+k, x+k, ('b', c), ('b', bm), neg=[1, 0, 0]))
            parts.append(L); L = []
            for k in range(16): L.append(f'v_exp_f32 v{EP+k}, v{EP+k}')
            for k in range(16): L.append(f'v_exp_f32 v{x+k}, v{x+k}')
            parts.append(L); L = []
            sp, sm = ta, ta+2
            r1, r2 = tb+2, tb+3
            L += [pk('add', sp, EP, EP+2), pk('add', sm, x, x+2)]
            for k in range(4, 16, 2): L += [pk('add', sp, sp, EP+k), pk('add', sm, sm, x+k)]
            L += [f'v_add_f32 v{sp}, v{sp}, v{sp+1}', f'v_add_f32 v{sm}, v{sm}, v{sm+1}', sw32(sp, sm), f'v_add_f32 v{sp}, v{sp}, v{sm}',
                  f'v_rcp_f32 v{r2}, v{sp}', f'v_mov_b32 v{r1}, v{r2}', sw32(r1, r2)]
            for k in range(0, 16, 2): L.append(pk('mul', x+k, x+k, ('b', r2)))
            for k in range(8): L.append(cvt(x+k, x+2*k, x+2*k+1))
            for k in range(0, 16, 2): L.append(pk('mul', EP+k, EP+k, ('b', r1)))
            for k in range(8): L.append(cvt(x+8+k, EP+2*k, EP+2*k+1))
            return parts + [L]
        FR = [[acc(0, 2), acc(0, 3)], [acc(1, 2), acc(1, 3)]]
        def to_lds(x):
            return [f'ds_write_b64 v{a_w}, {vr(x+8*(1-sg)+2*j,2)} offset:{64*sg+16*j}' for sg in (1, 0) for j in range(4)]
        def frags():
            return [f'ds_read_b64_tr_b16 {vr(FR[k][u]+2*tt,2)}, v{(a_r0, a_r1)[k]} offset:{(16*u+4*tt)*136}' for k in (1, 0) for u in range(2) for tt in range(2)]
        KV1 = PK[0]
        def kvm(Tt):
            L = []
            for k, K, Z in ((1, KV1, ZS), (0, KV0, ZK)):
                for u in range(2): L.append(mf32(K, FR[k][u], acc(2*Tt+u, 4), None if (Tt == 0 and u == 0) else K))
                for u in range(2): L.append(mf16(Z, SEL, FR[k][u], None if (Tt == 0 and u == 0) else Z))
            return L
        sc = sched if self.sch else (lambda L: L)
        K = qk_prep(2, csk); isM = lambda t: t.startswith('v_mfma')
        VP_ = [vprep(b) for b in range(4)]
        sm0, sm1 = softmax(0), softmax(1)
        mfma = E['mfma']
        TM = [mfma(1, b, n) for b in range(4) for n in (2, 3)] + [mfma(1, b, n) for b in range(4) for n in (4, 5)] + [mfma(1, b, 1) for b in range(4)] + [mfma(1, b, 0) for b in range(self.bpos+1, 4)]
        K01 = []
        for b in range(2):
            K01 += [f'v_fmac_f32 v{acc(b,2)+k}, v{csk+k}, v{nml+b}' for k in range(8)] + K[8*b+4:8*b+8]
        S = interleave(TM, S + K01, per=[2]*24)
        S += sc([t for t in K[16:] if not isM(t)] + [f'v_mul_f32 v{c32+Tt}, {f2u(LOG2E)}, v{c32+Tt}' for Tt in range(2)] + VP_[0][0] + VP_[1][0])
        def cutA(n, k):
            nonlocal S
            if self.fine == n: self.aw(S + ['s_waitcnt lgkmcnt(0)']); S = []; self.stamp(k)
        cutA(1, 12)
        S += sc([t for t in K if isM(t)] + VP_[0][1] + VP_[1][1] + VP_[0][2] + VP_[1][2] + sm0[0])
        cutA(1, 13)
        def mixed(sm, extra):
            F, X, A = sm[1], sm[2], sm[3][:14]
            A = A[0::2] + A[1::2]; extra = list(extra); L = F[:2]
            for k in range(16):
                L += [X[2*k]] + F[k+2:k+3] + [X[2*k+1]]
                j = k - 2 if k < 9 else k - 3
                if k >= 2 and k != 9: L.append(A[j])
                if extra: L.append(extra.pop(0))
            return L + extra + A[13:]
        if self.mix: S += mixed(sm0, sm1[0][:16]) + sc(sm1[0][16:] + sm0[3][14:] + to_lds(PK[0]) + frags())
        else: S += sc(sm0[1] + sm0[2] + sm1[0] + sm0[3] + to_lds(PK[0]) + frags())
        cutA(1, 14)
        if self.mix: S += sm1[1][:2] + interleave(sm1[2][:14], sm1[1][2:], per=[1]*14) + interleave(kvm(0), sm1[2][14:], per=[3, 3, 1, 1, 3, 3, 1, 3])
        else: S += sm1[1] + interleave(kvm(0), sm1[2], per=[3, 3, 1, 1, 3, 3, 1, 1])
        cutA(2, 12)
        S += sc(sm1[3] + to_lds(PK[1]) + frags() + sum((VP_[b][k] for k in range(3) for b in (2, 3)), []), lambda t: t.startswith('ds_read'))
        cutA(2, 13)
        M = kvm(1)
        X = [f'ds_write_b128 v{x_w}, {vr(KV1+4*k,4)} offset:{1024*k}' for k in range(4)]
        hi16 = ['s_mov_b32 vcc_lo, 0xffff0000', 's_mov_b32 vcc_hi, 0xffff0000']
        S += M[0:2] + hi16 + M[2:6] + X + [f'v_cndmask_b32 v{ZS}, v{ZS}, v{ZS+1}, vcc', f'ds_write_b32 v{x_w}, v{ZS} offset:4096'] + M[6:8]
        cutA(2, 14)
        if self.hu is not None: S.insert(len(S) - self.hu, f'buffer_store_dword v0, off, {srd(sWS)}, s{E["s_delta"]} sc1')
        self.aw(S); S = []
        S += ['s_waitcnt lgkmcnt(0)', 's_barrier']
        S.append(f'ds_read_b32 v{csv}, v{x_r} offset:4096')
        for k in range(4): S.append(f'ds_read_b128 {vr(EP+4*k,4)}, v{x_r} offset:{1024*k}')
        add = [pk('add', KV0+2*k, KV0+2*k, EP+2*k) for k in range(8)]
        cv = [cvt(KV0+8*(k//4)+k%4, KV0+2*k, KV0+2*k+1) for k in range(8)]
        st = [f'buffer_store_dwordx4 {vr(KV0+8*u,4)}, v{l16}, {srd(sWS)}, s{s_d} offen offset:{1024*u} sc1' for u in range(2)]
        S += [f'v_cndmask_b32 v{ZK}, v{ZK}, v{ZK+1}, vcc', f'v_add_f32 v{ZK}, v{ZK}, v{csv}'] + add[:2]
        S += [f'v_mov_b32_dpp v{ZK+3}, v{ZK} quad_perm:[1,0,3,2] row_mask:0xf bank_mask:0xf'] + add[2:4] + cv[:4] + st[:1] + [cvt(ZK, ZK, ZK+3)]
        S += add[4:] + [f'buffer_store_dword v{ZK}, v{a_z}, {srd(sWS)}, s{s_e} offen sc1'] + cv[4:] + st[1:]
        self.aw(S); S = []
        if not self.yw: a('s_barrier')
        self.stamp(3)
        u3, u4 = ZA + 4, ZA + 5
        for nb in range(2): S.append(f'ds_read_b128 {vr(csq+4*nb,4)}, v{a_csr} offset:{64*nb}')
        S += qk_prep(0, csq) + sum(softmax(0) + softmax(1), [])
        S += [f'v_lshrrev_b32 v{u3}, 5, v1', f'v_and_b32 v{u4}, 2, v1', f'v_lshlrev_b32 v{u4}, 5, v{u4}', f'v_lshl_add_u32 v{a_z}, v{u3}, 4, v{u4}',
              f'v_not_b32 v{u4}, v{SEL}', f'v_and_b32 v{u4}, 0x20000000, v{u4}', f'v_lshl_or_b32 v{a_z}, v{u4}, 1, v{a_z}',
              f'v_bfe_u32 v{u4}, v1, 4, 1', f'v_lshlrev_b32 v{u4}, 15, v{u4}', f'v_lshl_add_u32 v{u4}, v{u3}, 8, v{u4}',
              f'v_and_b32 v{u3}, 15, v1', f'v_lshl_add_u32 v{a_w}, v{u3}, 4, v{u4}', f's_add_u32 s{s_d}, s{s_a}, 65536']
        if self.yw:
            S = sched(S); S[self.yw:self.yw] = (['s_waitcnt vmcnt(0)'] if self.yv else []) + ['s_barrier']; self.aw(S); S = []
        else: self.sw(S, name='A q-part'); S = []
        self.stamp(4)
        a('s_barrier')
        self.stamp(7)
        KF = KV0; ZF = EP
        ACC = E['ACC']
        den, num, rcp, fin = [], [], [], []
        for Tt in range(2):
            N, DP, DM = ACC + 48*Tt, ACC + 48*Tt + 16, ACC + 48*Tt + 32
            x = PK[Tt]
            den.append([mf16(DP, ZF, x+8), mf16(DM, ZF, x), mf16(DP, ZF+4, x+12, DP), mf16(DM, ZF+4, x+4, DM)])
            num.append([mf32(N, KF, x+8), mf32(N, KF+4, x+12, N), mf32(N, KF+8, x, N), mf32(N, KF+12, x+4, N)])
            rcp.append([f'v_add_f32 v{DP}, v{DP}, v{DM+2}', f'v_add_f32 v{DP+1}, v{DP+1}, v{DM+3}', f'v_cndmask_b32 v{DP}, v{DP}, v{DP+1}, vcc',
                        f'v_add_f32 v{DP}, {f2u(1e-6)}, v{DP}', f'v_rcp_f32 v{DP}, v{DP}'])
            L = []
            for p in range(2):
                R = [(N + 4*(p + 2*jj) + 2*k, DM+4+4*p+2*jj+k) for jj in range(2) for k in range(2)]
                for r, d in R:
                    if Tt == 0: L += [f'v_mul_f32 v{r}, v{DP}, v{r}', f'v_mul_f32 v{r+1}, v{DP}, v{r+1}']
                    else: L.append(pk('mul', r, r, ('b', DP)))
                L += [cvt(d, r, r+1) for r, d in R]
                L.append(f'buffer_store_dwordx4 {vr(DM+4+4*p,4)}, v{a_w}, {srd(sWS)}, s{(s_a, s_d)[Tt]} offen offset:{512*p} sc1')
            fin.append(L)
        if self.b2: a(f's_sleep {self.b2}')
        self.ll_wait(([f's_sleep {self.n2}'] if self.n2 else []) + [f'buffer_load_dwordx4 {vr(ZF+4*u,4)}, v{a_z}, {srd(sWS)}, s{s_b} offen offset:{32*u} sc1' for u in range(2)] +
                     [f'buffer_load_dwordx4 {vr(KF+4*k,4)}, v{l16}, {srd(sWS)}, s{s_c} offen offset:{1024*k} sc1' for k in range(4)],
                     list(range(ZF, ZF+8)) + list(range(KF, KF+16)), u3, u4, 5, under=(den[0] + num[0]) if self.spec & 1 else None, per=[1, 1, 1, 1, 2, 2, 2, 4])
        self.stamp(5)
        a.extend(([] if self.spec & 1 else den[0] + num[0]) + interleave(den[1], hi16 + rcp[0], per=[2, 2, 2, 1]))
        a.extend(interleave(num[1], fin[0][:13] + rcp[1] + fin[0][13:], per=[6, 6, 6, 13]) + fin[1])
        self.stamp(6)

    def epiB(self, E, pre):
        a = self.a
        acc = E['acc']; a_tok, a_row, a_csr, a_csv, l16 = (E[k] for k in ('a_tok', 'a_row', 'a_csr', 'a_csv', 'l16'))
        s_wm, s_wh, s_a, s_b, s_c, s_d, s_e = (E[k] for k in ('s_wm', 's_wh', 's_a', 's_b', 's_c', 's_d', 's_e'))
        BI, BI0, MK, a_h = 236, 244, 248, 252
        if pre == 'v':
            t1, t2, t3 = 208, 209, 210
            S = [f'v_and_b32 v{t1}, 15, v1', f'v_lshrrev_b32 v{t2}, 4, v1', f'v_lshlrev_b32 v{t2}, 2, v{t2}', f'v_sub_u32 v{t1}, v{t1}, v{t2}',
                 f'v_mov_b32 v{t3}, {f2u(-1e30)}']
            for blk in range(2):
                for i in range(4):
                    S += [f'v_add_u32 v{t2}, {(16 if blk == 0 else 0) - i}, v{t1}', f'v_and_b32 v{t2}, -15, v{t2}', f'v_cmp_eq_u32 vcc, 0, v{t2}',
                          f'v_cndmask_b32 v{BI+4*blk+i}, v{t3}, 0, vcc']
                    if i % 2 == 0: S += [f'v_cndmask_b32 v{MK+2*blk+i//2}, 0, -1, vcc', f'v_lshrrev_b32 v{MK+2*blk+i//2}, 16, v{MK+2*blk+i//2}']
                    else: S += [f'v_cndmask_b32 v{t2}, 0, -1, vcc', f'v_lshl_or_b32 v{MK+2*blk+i//2}, v{t2}, 16, v{MK+2*blk+i//2}']
            S += [f's_or_b32 s{s_t}, s{s_m}, s{s_wm}', 's_cselect_b64 vcc, -1, 0']
            for i in range(4): S.append(f'v_cndmask_b32 v{BI0+i}, v{t3}, v{BI+i}, vcc')
            S += sx(s_t, [(s_wh, 2048)], P_PHI) + [f'v_add_u32 v{a_h}, s{s_t}, v{l16}']
            S += [f's_add_u32 s{s_t+1}, s{s_t}, 1024', f's_cmp_eq_u32 s{s_wm}, 0', f's_cselect_b32 s{s_t}, s{s_t}, {L_P + 7168}', f's_cselect_b32 s{s_t+1}, s{s_t+1}, {L_P + 7168}',
                  f'v_add_u32 v{a_h+1}, s{s_t}, v{l16}', f'v_add_u32 v{a_h+2}, s{s_t+1}, v{l16}']
            a.extend(S)
            return
        if pre == 's':
            S = sx(s_b, [(s_l, 1 << 19), (s_m, 1 << 16), (s_g, 4096), (s_wh, 2048)], WS_HALO - (1 << 19))
            S += [f's_add_u32 s{s_c}, s{s_b}, 65536', f's_cmp_eq_u32 s{s_m}, 15', f's_cselect_b32 s{s_c}, {BIG}, s{s_c}',
                  f's_cmp_eq_u32 s{s_wm}, 0', f's_cselect_b32 s{s_c}, {BIG}, s{s_c}', f's_cselect_b32 s{s_b}, s{s_b}, {BIG}',
                  f's_cmp_eq_u32 s{s_m}, 0', f's_cselect_b32 s{s_b}, {BIG}, s{s_b}', f's_add_u32 s{s_d}, s{s_a}, 65536']
            a.extend(S)
            return
        nr = [160, 168, 176, 208]
        nml, rsl, csk, csv, csq, HB = 216, 220, 224, 232, 128, 136
        VP = [184, 196]
        U, M, t1, t2 = 144, 152, 156, 157
        S = []
        for b in (3, 0, 1, 2):
            S += [f'ds_read_b32 v{nml+b}, v{a_tok} offset:{64*b}', f'ds_read_b32 v{rsl+b}, v{a_tok} offset:{512+64*b}']
            if b == 3:
                for nb in range(2): S.append(f'ds_read_b128 {vr(csk+4*nb,4)}, v{a_csr} offset:{768+256+64*nb}')
                for nb in range(2): S.append(f'ds_read_b32 v{csv+nb}, v{a_csv} offset:{768+512+64*nb}')
            S += [f'ds_read_b128 {vr(nr[b],4)}, v{a_row} offset:{64*b}', f'ds_read_b128 {vr(nr[b]+4,4)}, v{a_row} offset:{512+64*b}']
        for nb in range(2): S.append(f'ds_read_b128 {vr(csq+4*nb,4)}, v{a_csr} offset:{768+64*nb}')
        def kprep(b):
            r = acc(b, 2); L = []
            for k in range(4): L.append(pk('fma', r+2*k, csk+2*k, ('b', nml+b), r+2*k))
            for k in range(4): L.append(pk('mul', r+2*k, r+2*k, ('b', rsl+b)))
            for k in range(4): L.append(cvt(r+k, r+2*k, r+2*k+1))
            return L
        def vprep(b):
            r = acc(b, 4); L = []
            for nb in range(2):
                for p in range(2): L.append(pk('fma', r+4*nb+2*p, nr[b]+2*p, ('b', csv+nb), r+4*nb+2*p))
            for nb in range(2):
                for p in range(2): L.append(pk('mul', r+4*nb+2*p, r+4*nb+2*p, nr[b]+4+2*p))
            for nb in range(2):
                for p in range(2):
                    if b == 3: L.append(cvt(acc(3, 3)+2*nb+p, r+4*nb+2*p, r+4*nb+2*p+1))
                    else: L.append(cvt(VP[nb]+2+2*b+p, r+4*nb+2*p, r+4*nb+2*p+1))
            return L
        def qprep(b):
            r = acc(b, 0); L = []
            for k in range(4): L.append(pk('fma', r+2*k, csq+2*k, ('b', nml+b), r+2*k))
            for k in range(4): L.append(cvt(r+k, r+2*k, r+2*k+1))
            return L
        mfma = E['mfma']
        TM = [mfma(1, b, n) for b in (3, 0, 1, 2) for n in (2, 3, 4, 5)] + [mfma(1, b, 1) for b in range(4)] + [mfma(1, b, 0) for b in range(self.bpos+1, 4)]
        rk, rv = acc(3, 2), acc(3, 4)
        P3 = [f'v_fmac_f32 v{rk+k}, v{csk+k}, v{nml+3}' for k in range(8)] + [f'v_mul_f32 v{rk+k}, v{rsl+3}, v{rk+k}' for k in range(8)] + kprep(3)[8:]
        P3 += [f'v_fmac_f32 v{rv+k}, v{nr[3]+k%4}, v{csv+k//4}' for k in range(8)] + [f'v_mul_f32 v{rv+k}, v{nr[3]+4+k%4}, v{rv+k}' for k in range(8)] + vprep(3)[8:]
        S = S[:8] + [t for t in S[8:] if 'b32' in t] + S[-2:] + [t for t in S[8:-2] if 'b128' in t]
        T0 = interleave(TM, S[:14] + P3, per=[2]*24); S = S[14:]
        for k in range(2): T0.append(f'buffer_store_dwordx4 {vr(acc(3,2)+4*k,4)}, v{l16}, {srd(sWS)}, s{s_c} offen offset:{1024*k} sc1')
        for k in range(2): S.append(f'ds_write_b128 v{a_h+1+k}, {vr(acc(3,2)+4*k,4)}')
        fa, fv = 234, 235
        T0 += sx(s_t, [(s_wave, 4)], P_CNT) + [f'v_mov_b32 v{fa}, s{s_t}', f'v_mov_b32 v{fv}, s{s_l}']
        S.append(f'ds_write_b32 v{fa}, v{fv}')
        for nb in range(2): S.append(f'v_mov_b64 {vr(VP[nb]+8,2)}, {vr(acc(3,3)+2*nb,2)}')
        for b in range(3): S += kprep(b) + vprep(b)
        for b in range(4): S += qprep(b)
        for b in range(4): S.append(f'v_mul_f32 v{rsl+b}, {f2u(LOG2E * 32 ** -0.5)}, v{rsl+b}')
        def logits(b):
            sp, sc = acc(b, 1), (acc(b-1, 3) if b else nr[3])
            L = [mf16(sp, HB if b == 0 else acc(b-1, 2), acc(b, 0), BI0 if b == 0 else BI), mf16(sc, acc(b, 2), acc(b, 0), BI+4)]
            for p in range(2):
                L += [f'v_max3_f32 v{U+2*b+p}, v{sp+2*p}, v{sp+2*p+1}, v{sc+2*p}', f'v_max_f32 v{U+2*b+p}, v{U+2*b+p}, v{sc+1+2*p}',
                      f'v_mul_f32 v{U+2*b+p}, v{rsl+b}, v{U+2*b+p}']
            L.append(f'v_max_f32 v{M+b}, v{U+2*b}, v{U+2*b+1}')
            return L
        for b in (1, 2, 3): S += logits(b)
        L0 = logits(0); S.append(L0.pop(1))
        def allred(op, mid):
            L = [sw32(M, M+2), sw32(M+1, M+3), f'{op} v{M}, v{M}, v{M+2}', f'{op} v{M+1}, v{M+1}, v{M+3}', sw16(M, M+1), f'{op} v{M+1}, v{M}, v{M+1}']
            L += mid
            L += [f'v_mov_b32 v{M}, v{M+1}', sw16(M, M+1), f'v_mov_b64 {vr(M+2,2)}, {vr(M,2)}', sw32(M, M+2), sw32(M+1, M+3)]
            return L
        def pv(b):
            P = acc(b, 1); L = []
            for p in range(2): L.append(cvt(U+2*b+p, U+2*b+p, U+2*b+p))
            for blk in range(2):
                for p in range(2): L.append(f'v_and_b32 v{P+2*blk+p}, v{U+2*b+p}, v{MK+2*blk+p}')
            return L + [mf16(acc(b, 4)+4*db, VP[db]+2*b, P) for db in range(2)]
        def put(b):
            O = acc(b, 4)
            return [cvt(O+k, O+2*k, O+2*k+1) for k in range(4)] + [f'buffer_store_dwordx4 {vr(O,4)}, v{l16}, {srd(sWS)}, s{(s_a, s_e, s_d, s_c)[b]} offen sc1']
        ONE, SUM = nr[3] + 4, csk
        S += allred('v_max_f32', [])
        for b in (1, 2, 3): S.append(pk('add', U+2*b, U+2*b, ('b', M+b), neg=[0, 1]))
        for k in range(2, 8): S.append(f'v_exp_f32 v{U+k}, v{U+k}')
        for b in (1, 2, 3): S.append(f'v_add_f32 v{M+b}, v{U+2*b}, v{U+2*b+1}')
        S += allred('v_add_f32', [f'v_rcp_f32 v{M+1}, v{M+1}'])
        for b in (1, 2, 3): S.append(pk('mul', U+2*b, U+2*b, ('b', M+b)))
        S += pv(1) + pv(2) + pv(3) + [f's_add_u32 s{s_e}, s{s_a}, 32768', f's_add_u32 s{s_c}, s{s_d}, 32768'] + put(1) + put(2) + put(3)
        S += [f'v_mov_b32 v{ONE+k}, 0x3f803f80' for k in range(4)]
        T0 += [t for t in S if t.startswith('ds_')]
        S = sched([t for t in S if not t.startswith('ds_')], lambda t: t.startswith('buffer'))
        if __name__ == '__main__': print('sched B', len(S), sched.last_estimate, file=sys.stderr)
        hp = self.hp
        assert not any(t.startswith('buffer') for t in S[:hp]) and not any(t.startswith('ds_') for t in S[hp:])
        self.aw(T0 + S[:hp])
        HL = [f'buffer_load_dwordx4 {vr(HB+4*k,4)}, v{l16}, {srd(sWS)}, s{s_b} offen offset:{1024*k} sc1' for k in range(2)]
        L1, L3, L4, L5 = self.lab('hg'), self.lab('hd'), self.lab('hu'), self.lab('hv')
        HD = [f'ds_read_b32 v{t2}, v{fa}'] + [f'ds_read_b128 {vr(HB+4*k,4)}, v{a_h} offset:{1024*k}' for k in range(2)]
        a('s_waitcnt lgkmcnt(0)')
        a(f's_cmp_eq_u32 s{s_wm}, 0'); a(f's_cbranch_scc0 {L1}')
        a.extend(HL)
        a.label(L3)
        self.aside(lambda: (self.a.label(L1), self.a(f'v_subrev_u32 v{fa}, 8, v{fa}'), self.a.extend(HD), self.a(f's_branch {L3}')))
        self.stamp(3)
        a.extend(S[hp:]); S = []
        M0 = L0.pop(0)
        a(f's_cmp_eq_u32 s{s_wm}, 0'); a(f's_cbranch_scc0 {L4}')
        self.ll_wait(HL, list(range(HB, HB+8)), t1, t2, 0, pre='s_waitcnt vmcnt(3)', under=[M0], per=[0])
        a.label(L5)
        def upper():
            self.a.label(L4)
            self.spin(HD, [M0, f'v_cmp_ne_u32 vcc, v{fv}, v{t2}'], t1, 12, pre='s_waitcnt lgkmcnt(0)')
            self.a(f's_branch {L5}')
        self.aside(upper)
        self.stamp(4)
        S += L0 + [f'v_mov_b64 {vr(VP[nb],2)}, {vr(HB+4+2*nb,2)}' for nb in range(2)]
        S += [f'v_mov_b32 v{M+1}, v{M}', sw32(M, M+1), f'v_max_f32 v{M}, v{M}, v{M+1}', f'v_mov_b32 v{M+1}, v{M}', sw16(M, M+1), f'v_max_f32 v{M}, v{M}, v{M+1}']
        S += [f'v_sub_f32 v{U+k}, v{U+k}, v{M}' for k in range(2)] + [f'v_exp_f32 v{U+k}, v{U+k}' for k in range(2)]
        P0 = pv(0); S += P0[:-2] + [mf16(SUM, ONE, acc(0, 1))] + P0[-2:] + [f'v_rcp_f32 v{SUM}, v{SUM}']
        S += [pk('mul', acc(0, 4)+2*k, acc(0, 4)+2*k, ('b', SUM)) for k in range(4)] + put(0)
        self.sw(S, name='B block 0')
        self.stamp(6)

    def build(self):
        a = self.a
        self.prologue()
        if self.st0 & 1: self.loader(); a.label('L_compute'); self.compute()
        else: self.compute(); self.loader()
        self.helper()
        a.label('L_fin')
        self.stamp(15)
        self.stamp_out()
        if self.probe and len(self.probe) > 3:
            def pub():
                a('s_mov_b64 exec, 1'); a('v_mov_b32 v2, s94'); a('s_not_b32 s93, s93'); a('v_mov_b32 v3, s93')
                a(f'buffer_atomic_umax v2, off, {srd(sDBG)}, 0 offset:12 sc1'); a(f'buffer_atomic_umax v3, off, {srd(sDBG)}, 0 offset:140 sc1')
                a('s_waitcnt vmcnt(0)'); a('v_mov_b32 v2, 1'); a(f'buffer_atomic_add v2, off, {srd(sDBG)}, 0 offset:20 sc1'); a('s_waitcnt vmcnt(0)')
                def w0():
                    self.spin(['s_sleep 8', f'buffer_load_dword v2, off, {srd(sDBG)}, 0 offset:20 sc1'], ['v_cmp_gt_u32 vcc, 0x100, v2'], 4, 10)
                    a(f'buffer_load_dword v2, off, {srd(sDBG)}, 0 offset:12 sc1'); a(f'buffer_load_dword v3, off, {srd(sDBG)}, 0 offset:140 sc1'); a('s_waitcnt vmcnt(0)')
                    a('v_readfirstlane_b32 s94, v2'); a('v_readfirstlane_b32 s93, v3'); a('s_not_b32 s93, s93')
                self.cond(['s_cmp_eq_u32 s2, 0'], w0)
                a('s_mov_b64 exec, -1')
            self.cond([f's_cmp_eq_u32 s{s_wave}, 0'], pub)
        if self.probe:
            def body():
                a('s_sub_u32 s93, s94, s93'); a(f's_mul_i32 s93, s93, {self.probe[2]}'); a('s_min_u32 s93, s93, 100000')
                a(f's_memrealtime s[{s_t+6}:{s_t+7}]'); a('s_waitcnt lgkmcnt(0)'); a(f's_add_u32 s93, s93, s{s_t+6}')
                a.label('L_probe')
                a(f's_memrealtime s[{s_t+6}:{s_t+7}]'); a('s_waitcnt lgkmcnt(0)'); a(f's_sub_u32 s94, s{s_t+6}, s93'); a('s_cmp_lt_i32 s94, 0'); a('s_cbranch_scc1 L_probe')
            self.cond([f's_or_b32 s{s_t}, s2, s{s_wave}', f's_cmp_eq_u32 s{s_t}, 0'], body)
        a('s_waitcnt vmcnt(0)')
        a.label('L_end')
        a('s_endpgm')
        for b in self.later: a.ins += b.ins
        if self.cpf: a.label('L_last'); a('s_endpgm')
        a.pad()
        assert a.maxreg('v') <= 255 and a.maxreg('s') < 96
        return a.text()


DOC = """
; ---------------------------------------------------------------------------------------------------------------------
;
;
; Hand-offs between workgroups go through d_ws, stored write-through (sc1) and read with sc1 loads:
; ---------------------------------------------------------------------------------------------------------------------
"""

def generate(listform=False, **kw):
    body = Gen(**kw).build()
    ref = open('interleave_layers__linear_kernel_hedgehog__sliding_local_dilated__prompt.s.ref').read() if not listform else ''
    head = ''.join(l + '\n' for l in ref.split('\n') if l.startswith(';') and '@launch' not in l)
    if listform: head += f'; @launch kernel={KNAME} grid=(256,1,1) block=(512,1,1) lds={LDS_BYTES}\n'
    else: head += f'; @launch grid=(256,1,1) block=(512,1,1) lds={LDS_BYTES}\n'
    return head + '.amdgcn_target "amdgcn-amd-amdhsa--gfx950"' + DOC + kernel_head(KNAME) + body + kernel_desc(KNAME, 256, 96, 256)

if __name__ == '__main__':
    kw = eval(sys.argv[2]) if len(sys.argv) > 2 else {}
    open(sys.argv[1], 'w').write(generate(**kw))
```

```python
import sys, struct
sys.path.insert(0, 'work')
from asmlib import *

KNAME = 'interleave_layers__linear_kernel_hedgehog__sliding_local_dilated__prompt_kernel'

WS_CTR, WS_STAMP, WS_ST, WS_CS = 0x0, 0x100000, 0x200000, 0x300000
WS_HALO, WS_KVF, WS_ZP, WS_ZF, WS_KVP = 0x400000, 0x600000, 0x680000, 0x6C0000, 0x800000
WS_HU = 0x20000
WS_RF = 0x700000
WS_XI, WS_OI, WS_END = 0xC00000, 0x1800000, 0x2800000
BIG = 0x40000000
STG = 40960
XOFF = 24576
L_WO = 24576
L_SPARE = 3 * STG
L_P = 155648
P_NM, P_RS, P_CS, P_MODE, P_CNT, P_PHI = L_P, L_P + 512, L_P + 1024, L_P + 2816, L_P + 2832, L_P + 3072
LDS_BYTES = 163840
SCR = 5120
LOG2E = 1.4426950408889634
def f2u(x): return '0x%08x' % struct.unpack('<I', struct.pack('<f', x))[0]

s_fast = 3
pAX, pAW, pPHI, pAWO, pBW, pBWO, pOUT, pDBG, pWS = 4, 6, 8, 10, 14, 16, 18, 20, 22
sWS, sX, sW, sWO, sOUT, sDBG = 24, 28, 32, 36, 40, 44
s_m, s_g, s_wave, s_l = 48, 49, 50, 51
s_t = 52
s_cnt, s_x = 60, 61
s_i = 62
s_stamp = 63
s_rot = 64
s_rot2 = 95
s_ft, s_fn, s_fd, s_po = 90, 91, 88, 87
def srd(b): return 's[%d:%d]' % (b, b + 3)


def sx(d, terms, const=0):
    L = []
    for n, (r, k) in enumerate([t for t in terms if t[1]]):
        t = d if n == 0 else s_x
        if k == 1 and n: t = r
        elif k == 1: L.append(f's_mov_b32 s{t}, s{r}')
        elif k > 0 and k & (k - 1) == 0: L.append(f's_lshl_b32 s{t}, s{r}, {k.bit_length()-1}')
        else: L.append(f's_mul_i32 s{t}, s{r}, {k}')
        if n: L.append(f's_add_u32 s{d}, s{d}, s{t}')
    if const: L.append(f's_add_u32 s{d}, s{d}, {const:#x}' if const > 0 else f's_sub_u32 s{d}, s{d}, {-const:#x}')
    return L

def pkop(r):
    if isinstance(r, tuple):
        return vr(r[1] & ~1, 2), r[1] & 1, r[1] & 1
    assert r % 2 == 0
    return vr(r, 2), 0, 1
def pk(op, d, *src, neg=None):
    o = [pkop(s) for s in src]
    t = 'v_pk_%s_f32 %s, %s' % (op, vr(d, 2), ', '.join(x[0] for x in o))
    lo = [x[1] for x in o]; hi = [x[2] for x in o]
    if any(lo): t += ' op_sel:[%s]' % ','.join(map(str, lo))
    if not all(hi): t += ' op_sel_hi:[%s]' % ','.join(map(str, hi))
    if neg: t += ' neg_lo:[%s] neg_hi:[%s]' % (','.join(map(str, neg)), ','.join(map(str, neg)))
    return t
def cvt(d, a, b): return f'v_cvt_pk_bf16_f32 v{d}, v{a}, v{b}'
def sw16(a, b): return f'v_permlane16_swap_b32 v{a}, v{b}'
def sw32(a, b): return f'v_permlane32_swap_b32 v{a}, v{b}'
def mf16(d, A, B, C=None): return f'v_mfma_f32_16x16x32_bf16 {vr(d,4)}, {vr(A,4)}, {vr(B,4)}, ' + (vr(C, 4) if C is not None else '0')
def mf32(d, A, B, C=None): return f'v_mfma_f32_32x32x16_bf16 {vr(d,16)}, {vr(A,4)}, {vr(B,4)}, ' + (vr(C, 16) if C is not None else '0')


class Gen:
    def __init__(self, prof=0, limit=300000, dist=2, touch=1, bm=25, local=1, pd=6, sch=1, hprio=2, opos=(1, 5), warm=1, nap=1, probe=None, snake=1, rf=2, hq=4, fine=0, llf='sc1', ot=0, hc=None, hpos=90, early=0, w2=0, w0b=0, cpf=0, tr=4, bpos=1, r0=2, rprio=3, w0a=1, pipe=0, b1=0, b2=0, n1=0, n2=0, zw=2, yw=60, thr=None, pw=0, po=0, jit=0, st0=6, vpos=1, fst='sc1', rot0=12, iw=2, oh=(0, 9), dl=6, lprio=3, fpos=24, lf='', lfl=0, xnap=0, ls=0, pf='nt', mix=0, bw=0, t0s=(), xd=None, tlb=0, crow=0, ramp=0, xl=0, i0=0, hu=None, hun=0, yv=0, spec=3, wsch=(10, 12), hp=90, pat=None, pat1=None, d0=0, xi=6, c3=0, wf=1, tos=1, swp=0, gi=11, si=10, hd=0, wr=4):
        self.a = Asm()
        assert 16 <= bm < 32 - dl//2 and not early
        self.__dict__.update(prof=prof, limit=limit, dist=dist, touch=touch, bm=bm, local=local, pd=pd, sch=sch, hprio=hprio, opos=opos, warm=warm, nap=nap, probe=probe, snake=snake, rf=rf, hq=hq, fine=fine, llf=llf, ot=ot, hc=hc, hpos=hpos, early=early, w2=w2, w0b=w0b, cpf=cpf, tr=tr, bpos=bpos, r0=r0, rprio=rprio, w0a=w0a, pipe=pipe, b1=b1, b2=b2, n1=n1, n2=n2, zw=zw, yw=yw, thr=thr, pw=pw, po=po, jit=jit, st0=st0, vpos=vpos, fst=fst, rot0=rot0, iw=iw, oh=oh, dl=dl, lprio=lprio, fpos=fpos, lf=lf, lfl=lfl, xnap=xnap, ls=ls, pf=pf, mix=mix, bw=bw, t0s=t0s, xd=xd, tlb=tlb, crow=crow, ramp=ramp, xl=xl, i0=i0, hu=hu, hun=hun, yv=yv, spec=spec, wsch=wsch, hp=hp, pat=pat, pat1=pat1, d0=d0, xi=xi, c3=c3, wf=wf, tos=tos, swp=swp, gi=gi, si=si, hd=hd, wr=wr)
        assert rot0 == 12 and not d0
        if d0: self.rot0 = 15
        self.nlab = 0; self.later = []

    def lab(self, p):
        self.nlab += 1
        return 'L_%s_%d' % (p, self.nlab)

    def aw(self, L):
        self.a.extend(autowait(L))
    def sw(self, L, crit=None, name=''):
        if self.sch:
            L = sched(L, crit)
            if name and __name__ == '__main__': print('sched', name, len(L), 'instructions, about', sched.last_estimate, 'cycles', file=sys.stderr)
        self.a.extend(autowait(L))

    def cond(self, test, body):
        L = self.lab('skip')
        self.a.extend(test); self.a(f's_cbranch_scc0 {L}')
        body()
        self.a.label(L)

    def aside(self, f):
        main, self.a = self.a, Asm()
        f()
        self.later.append(self.a); self.a = main

    def spin(self, issue, check, vt, tag, pre=False, alt=None, checked=False):
        a = self.a
        L, C, T, A, D = (self.lab(x) for x in ('spin', 'chk', 'tmo', 'alt', 'done'))
        count = [f's_add_u32 s{s_cnt}, s{s_cnt}, 1', f's_cmp_lt_u32 s{s_cnt}, {self.limit}', f's_cbranch_scc0 {T}']
        if checked:
            alt = issue; a(f's_cbranch_vccnz {A}')
        else:
            a(f's_mov_b32 s{s_cnt}, 0')
            if alt: a(f's_cmp_eq_u32 s{s_fast}, 1'); a(f's_cbranch_scc0 {A}')
            if pre:
                a(f's_branch {C}')
                a.label(L); a.extend(issue); a.extend(count); a('s_waitcnt vmcnt(0)')
                a.label(C)
                if pre is not True: a(pre)
                a.extend(check)
            else:
                S = autowait(list(issue) + ['s_nop 3'] + list(check)); k = S.index('s_nop 3')
                a.label(L); a.extend(S[:k]); a.extend(count); a.extend(S[k+1:])
            a(f's_cbranch_vccnz {L}')
        a.label(D)
        def rest():
            a = self.a
            if alt:
                L2 = self.lab('spin')
                a.label(A); a(f's_mov_b32 s{s_cnt}, 0')
                a.label(L2); a.extend(alt); a.extend(count); a('s_waitcnt vmcnt(0)' if checked else 's_waitcnt vmcnt(0) lgkmcnt(0)'); a.extend(check)
                a(f's_cbranch_vccnz {L2}'); a(f's_branch {D}')
            a.label(T)
            a('s_waitcnt vmcnt(0)' if checked else 's_waitcnt vmcnt(0) lgkmcnt(0)')
            a(f'v_mov_b32 v{vt}, {1 << tag}')
            a(f'buffer_atomic_or v{vt}, off, {srd(sDBG)}, 0 offset:4 sc1')
            a(f's_branch {D}')
        self.aside(rest)

    def ll_wait(self, loads, regs, t1, t2, tag, pre=False, under=None, per=None):
        S = []
        h = len(regs) // 2
        for t, R in ((t1, regs[:h]), (t2, regs[h:])):
            S.append(f'v_max_u32 v{t}, v{R[0]}, v{R[1]}')
            for k in range(2, len(R), 2): S.append(f'v_max3_u32 v{t}, v{t}, v{R[k]}, v{R[k+1]}')
        S += [f'v_max_u32 v{t1}, v{t1}, v{t2}', f'v_cmp_eq_u32 vcc, -1, v{t1}']
        if under: S = interleave(under, S, per=per)
        loads = [l.replace('sc1', self.llf) for l in loads]
        self.spin(loads, S, t1, tag, pre)

    def flag_set(self, soff, vt, which=3):
        a = self.a
        a('s_mov_b64 exec, 1')
        if which & 1: a(f'buffer_store_dword v{vt}, off, {srd(sWS)}, s{soff} {self.lf}')
        if which == 3 and self.lfl == 1: a(f'buffer_load_dword v220, off, {srd(sWS)}, s{soff} sc1')
        if which == 3 and self.lfl == 2: which = 1
        if which & 2: a(f'buffer_store_dword v{vt}, off, {srd(sWS)}, s{soff+1} sc1')
        a('s_mov_b64 exec, -1')
    def flag_addr(self, va, vt, soff, remote=False):
        L = [f'v_bfe_u32 v{va}, v1, 1, 3', f'v_and_b32 v{vt}, 1, v1', f'v_lshl_add_u32 v{va}, v{va}, 2, v{vt}']
        if remote: return L + [f'v_lshlrev_b32 v{va}, 7, v{va}']
        return L + [f's_cmp_eq_u32 s{s_fast}, 1', f's_cselect_b32 s{s_t}, {self.ls}, 5', f's_cselect_b32 s{s_t+1}, 0, {WS_RF}',
                    f's_lshl_b32 s{soff}, s{soff}, s{s_t}', f's_add_u32 s{soff}, s{soff}, s{s_t+1}', f's_add_u32 s{s_t}, s{s_t}, 2',
                    f'v_lshlrev_b32 v{va}, s{s_t}, v{va}']
    def flag_load(self, soff, va, vt, fl='sc1'): return f'buffer_load_dword v{vt}, v{va}, {srd(sWS)}, s{soff} offen {fl}'
    def flag_wait(self, soff, va, vt, tag, pre=False, nap=0, own=False, checked=False):
        z = [f's_sleep {nap}'] if nap else []
        self.spin(z + [self.flag_load(soff, va, vt, self.pf if own else 'sc1')], [f'v_cmp_eq_u32 vcc, 0, v{vt}'], vt, tag, pre,
                  z + [self.flag_load(soff, va, vt)] if own else None, checked)
    def get_mode(self, vt):
        self.a.extend([f'v_mov_b32 v{vt}, {P_MODE}', f'ds_read_b32 v{vt}, v{vt}', 's_waitcnt lgkmcnt(0)', f'v_readfirstlane_b32 s{s_fast}, v{vt}'])

    def jitter(self, k):
        a = self.a
        L = self.lab('jit')
        a.extend([f's_lshl_b32 s{s_t+6}, s2, 3', f's_add_u32 s{s_t+6}, s{s_t+6}, s{s_wave}', f's_lshl_b32 s{s_t+6}, s{s_t+6}, 2', f's_add_u32 s{s_t+6}, s{s_t+6}, s{s_l}',
                  f's_add_u32 s{s_t+6}, s{s_t+6}, {(k*7919 + self.jit*104729) & 0xffffff}', f's_mul_i32 s{s_t+6}, s{s_t+6}, 0x9e3779b1', f's_lshr_b32 s{s_t+7}, s{s_t+6}, 13',
                  f's_xor_b32 s{s_t+6}, s{s_t+6}, s{s_t+7}', f's_mul_i32 s{s_t+6}, s{s_t+6}, 0x85ebca6b', f's_lshr_b32 s{s_t+7}, s{s_t+6}, 29',
                  f's_lshr_b32 s{s_t+6}, s{s_t+6}, 8', f's_and_b32 s{s_t+6}, s{s_t+6}, 127', f's_lshr_b32 s{s_t+6}, s{s_t+6}, s{s_t+7}'])
        a.label(L)
        a.extend(['s_sleep 1', f's_sub_u32 s{s_t+6}, s{s_t+6}, 1', f's_cbranch_scc0 {L}'])
    def stamp(self, k):
        if self.jit: self.jitter(k)
        if self.probe:
            for n, (pl, pk_) in enumerate(self.probe[:2]):
                if pk_ == k:
                    def body():
                        self.a(f's_memrealtime s[{s_t+6}:{s_t+7}]'); self.a('s_waitcnt lgkmcnt(0)'); self.a(f's_mov_b32 s{93+n}, s{s_t+6}')
                    self.cond([f's_cmp_eq_u32 s{s_l}, {pl}'], body)
        if not self.prof or self.prof >= 5: return
        a = self.a
        a(f'{"s_memtime" if self.prof == 4 else "s_memrealtime"} s[{s_t+6}:{s_t+7}]')
        a(f's_mov_b32 s{s_stamp}, m0')
        a(f's_lshl_b32 m0, s{s_l}, 4'); a(f's_add_u32 m0, m0, {k}')
        a('s_waitcnt lgkmcnt(0)')
        a(f'v_writelane_b32 v255, s{s_t+6}, m0')
        a(f's_mov_b32 m0, s{s_stamp}')
    def stamp_out(self):
        if not self.prof: return
        a = self.a
        a.extend(sx(s_t, [(2, 2048), (s_wave, 256)], WS_STAMP))
        a('v_lshlrev_b32 v254, 2, v1')
        a(f'buffer_store_dword v255, v254, {srd(sWS)}, s{s_t} offen')

    def prologue(self):
        a = self.a
        a('s_cmp_ge_u32 s2, 256'); a('s_cbranch_scc1 L_end')
        a('s_load_dwordx16 s[4:19], s[0:1], 0')
        a('s_load_dwordx4 s[20:23], s[0:1], 64')
        a('v_lshrrev_b32 v2, 6, v0')
        a(f'v_readfirstlane_b32 s{s_wave}, v2')
        a('v_and_b32 v1, 63, v0')
        a(f's_and_b32 s{s_rot}, s2, 3'); a(f's_lshl_b32 s{s_rot}, s{s_rot}, 2')
        a(f's_bfe_u32 s{s_t}, s2, 0x20003'); a(f's_add_u32 s{s_m}, s{s_rot}, s{s_t}')
        a(f's_mov_b32 s{s_rot}, s{s_m}')
        a(f's_and_b32 s{s_rot2}, s2, 4'); a(f's_lshl_b32 s{s_rot2}, s{s_rot2}, 1')
        a(f's_lshr_b32 s{s_g}, s2, 5'); a(f's_add_u32 s{s_g}, s{s_g}, s{s_rot2}')
        a(f's_mov_b32 s{s_l}, 0'); a(f's_mov_b32 s{s_fast}, 0')
        for b, n in ((sWS, WS_END), (sX, 2048*1024*2), (sW, 1024*3072*2), (sWO, 1024*1024*2), (sOUT, WS_END), (sDBG, 256)):
            a(f's_mov_b32 s{b+2}, {n}'); a(f's_mov_b32 s{b+3}, 0x20000')
        if self.prof: a('v_mov_b32 v255, 0')
        self.stamp(0)
        a(f's_cmp_ge_u32 s{s_wave}, 6'); a('s_cbranch_scc1 L_helper')
        if self.st0 & 1: a(f's_cmp_lt_u32 s{s_wave}, 4'); a('s_cbranch_scc1 L_compute')
        else: a(f's_cmp_ge_u32 s{s_wave}, 4'); a('s_cbranch_scc1 L_loader')
    def pointers(self):
        a = self.a
        a('s_waitcnt lgkmcnt(0)')
        for b, p in ((sWS, pWS), (sX, pAX), (sW, pAW), (sWO, pAWO), (sOUT, pWS), (sDBG, pDBG)):
            a(f's_mov_b64 s[{b}:{b+1}], s[{p}:{p+1}]')

    def trickle_setup(self):
        a = self.a
        a(f's_mov_b64 s[{sOUT}:{sOUT+1}], s[{sWO}:{sWO+1}]'); a(f's_mov_b32 s{sOUT+2}, {1 << 21}')
        a.extend(sx(s_ft, [(2, 8192), (s_wave, 2048)], -8192))
        n1 = -(-16 // self.tr)
        a(f's_cmp_eq_u32 s{s_l}, 0'); a(f's_cselect_b32 s{s_fn}, 12, {n1}')
        a(f's_cmp_lt_u32 s{s_l}, {2 if self.warm else 0}'); a(f's_cselect_b32 s{s_fn}, s{s_fn}, 0')
    def trickle_lines(self, n):
        a = self.a
        a(f's_sub_u32 s{s_t}, s{sOUT+2}, {128*n}'); a(f's_min_u32 s{s_t}, s{s_t}, s{s_ft}')
        for r in range(n): a(f's_buffer_load_dwordx2 s[{s_fd}:{s_fd+1}], {srd(sOUT)}, s{s_t} offset:{128*r+60}')
        a(f's_add_u32 s{s_ft}, s{s_ft}, {128*n}')
    def trickle(self, i):
        a = self.a
        n1 = -(-16 // self.tr)
        def nxt():
            a(f's_mov_b64 s[{sOUT}:{sOUT+1}], s[{pBW}:{pBW+1}]'); a(f's_mov_b32 s{sOUT+2}, {3 << 21}')
            a.extend(sx(s_ft, [(2, 24576), (s_wave, 6144)], -24576))
        def body():
            if isinstance(i, str): self.cond([f's_cmp_eq_u32 {i}, {n1}'], nxt)
            elif i == n1: nxt()
            self.trickle_lines(self.tr)
        self.cond([f's_cmp_gt_u32 s{s_fn}, {i}'], body)
    def trickle_rest(self, part):
        rest = 48 - self.tr * (12 - -(-16 // self.tr))
        n = rest
        self.cond([f's_cmp_eq_u32 s{s_fn}, 12'], lambda: self.trickle_lines(n))

    def warm_w(self):
        a = self.a
        if not self.pw: return
        a(f's_and_b32 s{s_t}, s{s_m}, 3'); a.extend(sx(s_t+1, [(s_t, 16*6144), (s_wave, 4*6144), (s_g, 128)], -16*6144))
        a(f's_and_b32 s{s_t+2}, s{s_g}, 7')
        for st in range(1, 1 + self.pw):
            a(f's_cmp_le_u32 s{s_t+2}, {st-1}'); a(f's_addc_u32 s{s_t}, s{s_rot2}, {st-1}')
            a(f's_mul_i32 s{s_t}, s{s_t}, {64*6144}'); a(f's_add_u32 s{s_t}, s{s_t}, s{s_t+1}')
            for k in range(12): a(f's_buffer_load_dwordx2 s[{s_fd}:{s_fd+1}], {srd(sW)}, s{s_t} offset:{2048*k+60}')
    def warm_wo_setup(self):
        a = self.a
        a(f's_and_b32 s{s_t}, s{s_m}, 3'); a.extend(sx(s_po, [(s_t, 256*2048), (s_wave, 64*2048), (s_g, 128)], -256*2048))
    def warm_wo(self, n):
        a = self.a
        def body():
            for k in range(n): a(f's_buffer_load_dwordx2 s[{s_fd}:{s_fd+1}], {srd(sWO)}, s{s_po} offset:{2048*k+60}')
            a(f's_add_u32 s{s_po}, s{s_po}, {2048*n}'); a(f's_min_u32 s{s_po}, s{s_po}, {(1 << 21) - 2048*n}')
        if self.po: self.cond([f's_lshr_b32 s{s_t}, {self.po}, s{s_l}', f's_bitcmp1_b32 s{s_t}, 0'], body)

    def order(self, d, g7, first):
        a = self.a
        if first:
            a(f's_mov_b32 s{d}, 0x76543210'); a(f's_mov_b32 s{d+1}, 0xfedcba98')
            a(f's_bitcmp1_b32 s{s_m}, 2'); a(f's_cselect_b32 s{d}, 0xba987654, s{d}'); a(f's_cselect_b32 s{d+1}, 0x3210fedc, s{d+1}')
            a(f's_and_b32 s{s_x}, s{s_m}, 8')
        else:
            a(f's_lshl_b32 s{s_x}, s{g7}, 2')
            if self.swp: a(f's_lshl_b32 s{d}, s{g7}, s{s_x}'); a(f's_xor_b32 s{d}, s{d}, 0x76543210')
            else: a(f's_lshl_b32 s{d}, 0x11111110, s{s_x}'); a(f's_add_u32 s{d}, s{d}, 0x65432100')
            a(f's_or_b32 s{d}, s{d}, s{g7}')
            a(f's_lshr_b32 s{s_x}, s{s_m}, 2'); a(f's_mul_i32 s{d+1}, s{s_x}, 0x22222222'); a(f's_add_u32 s{d+1}, s{d+1}, 0x76543210')
            a(f's_or_b32 s{d+1}, s{d+1}, 0x88888888')
            a(f's_mov_b32 s{s_x}, s{s_rot2}')
        a(f's_mul_i32 s{s_x}, s{s_x}, 0x11111111'); a(f's_xor_b32 s{d}, s{d}, s{s_x}'); a(f's_xor_b32 s{d+1}, s{d+1}, s{s_x}')

    def w_dma_offsets(self, dw, idx, t0, t1, t2):
        a = self.a
        a(f'v_lshrrev_b32 v{t0}, 3, v1'); a(f'v_mul_u32_u24 v{t0}, 6144, v{t0}')
        a(f'v_and_b32 v{t1}, 7, v1'); a(f'v_bfe_u32 v{t2}, v1, 4, 1'); a(f'v_lshlrev_b32 v{t2}, 1, v{t2}')
        a(f'v_xor_b32 v{t1}, v{t1}, v{t2}'); a(f'v_xor_b32 v{t2}, 4, v{t1}')
        a(f'v_lshl_add_u32 v{t1}, v{t1}, 4, v{t0}'); a(f'v_lshl_add_u32 v{t2}, v{t2}, 4, v{t0}')
        d = 8*6144 - 1024
        a(f's_lshl_b32 s{s_t+1}, s{s_g}, 7'); a(f'v_add_u32 v{t1}, s{s_t+1}, v{t1}'); a(f's_add_u32 s{s_t+1}, s{s_t+1}, {d}'); a(f'v_add_u32 v{t2}, s{s_t+1}, v{t2}')
        a(f's_cmp_eq_u32 s{idx}, 0')
        for t in range(3):
            c = [((3*w + t) & 1)*32*6144 + ((3*w + t) >> 1)*2048 for w in range(2)]
            a(f's_mov_b32 s{s_t}, {c[1]}'); a(f's_cmov_b32 s{s_t}, {c[0]}')
            a(f'v_add_u32 v{dw+4*t}, s{s_t}, v{t1}'); a(f'v_add_u32 v{dw+4*t+1}, s{s_t}, v{t2}')
            a(f'v_add_u32 v{dw+4*t+2}, {2*d}, v{dw+4*t}'); a(f'v_add_u32 v{dw+4*t+3}, {2*d}, v{dw+4*t+1}')

    def w_frag_addr(self, aw, head_sreg, base, t0, t1, t2, nb_list=(0, 1)):
        L = [f'v_lshrrev_b32 v{t2}, 4, v1', f'v_bfe_u32 v{t0}, v1, 2, 2', f'v_lshl_add_u32 v{t1}, v{t2}, 3, v{t0}',
             f'v_lshrrev_b32 v{t0}, 1, v{t0}', f'v_and_b32 v{t2}, 1, v{t2}', f'v_lshl_add_u32 v{t0}, v{t2}, 1, v{t0}']
        if head_sreg is not None: L += [f's_lshl_b32 s{s_t}, s{head_sreg}, 1', f'v_xor_b32 v{t0}, s{s_t}, v{t0}']
        L += [f'v_and_b32 v{t2}, 3, v1', f'v_lshlrev_b32 v{t2}, 3, v{t2}', f'v_lshl_add_u32 v{t2}, v{t1}, 7, v{t2}']
        if base: L.append(f'v_add_u32 v{t2}, {base}, v{t2}')
        for k, nb in enumerate(nb_list): L += [f'v_xor_b32 v{t1}, {nb}, v{t0}', f'v_lshl_add_u32 v{aw+k}, v{t1}, 5, v{t2}']
        return L

    def reduce_job(self, after_by=None, after_fill=None):
        a = self.a
        T = 200
        vA, vZ, vO, t1, t2 = T, T+1, T+2, T+3, T+4
        s_a, s_b, s_c, s_d, s_e = 80, 81, 82, 83, 84
        a.extend(sx(s_t, [(s_l, 32), (s_g, 4), (s_wave, 1)], -4))
        a.extend(sx(s_a, [(s_t, 32768), (s_m, 128)], WS_KVP)); a(f's_add_u32 s{s_b}, s{s_a}, 16384')
        a.extend(sx(s_d, [(s_t, 2048), (s_m, 128)], WS_KVF))
        a.extend(sx(s_c, [(s_t, 1024)], WS_ZP)); a.extend(sx(s_e, [(s_t, 64)], WS_ZF))
        a(f's_and_b32 s{s_t}, s{s_t}, 1'); a(f's_xor_b32 s{s_t+1}, s{s_m}, s{s_g}'); a(f's_or_b32 s{s_t}, s{s_t}, s{s_t+1}')
        a(f's_cselect_b32 s{s_c}, {BIG}, s{s_c}'); a(f's_cselect_b32 s{s_e}, {BIG}, s{s_e}')
        a(f'v_and_b32 v{t1}, 7, v1'); a(f'v_lshlrev_b32 v{t1}, 4, v{t1}')
        a(f'v_lshrrev_b32 v{t2}, 3, v1'); a(f'v_lshl_add_u32 v{vA}, v{t2}, 11, v{t1}')
        a(f'v_lshlrev_b32 v{vZ}, 4, v1')
        a(f'v_lshrrev_b32 v{t2}, 4, v1'); a(f'v_lshl_add_u32 v{vO}, v{t2}, 2, v{t1}')
        D = T + 8; U = 160
        def late_fill():
            for k in range(4): a(f'v_mov_b32 v{D+k}, -1')
            fill = f'buffer_store_dwordx4 {vr(D,4)}, v{vZ}, {srd(sWS)}, s{s_t} offen'
            a.extend(sx(s_t, [(s_g, 131072), (s_wave, 32768), (s_m, 2048)], WS_KVP + (1 << 21) - 4*32768)); a(fill + ' sc1'); a(fill + ' offset:1024 sc1')
            a(f's_lshr_b32 s{s_t+1}, s{s_wave}, 1'); a(f's_and_b32 s{s_t+2}, s{s_wave}, 1')
            a.extend(sx(s_t, [(s_t+2, 1 << 20), (s_m, 1 << 16), (s_g, 4096), (s_t+1, 2048)], WS_HALO - 2*2048)); a(fill + ' sc1'); a(fill + ' offset:1024 sc1')
            a.extend(sx(s_t, [(s_wave, 262144), (s_m, 16384), (s_g, 1024)], WS_ST - 3*262144))
            a.extend(sx(s_t+3, [(s_g, 16384), (s_m, 1024)], WS_CS + 262144))
            a(f's_cmp_eq_u32 s{s_wave}, 7'); a(f's_cselect_b32 s{s_t}, s{s_t+3}, s{s_t}'); a(fill + ' sc1')
            a('s_mov_b64 exec, 0xff')
            a(f's_add_u32 s{s_t}, s{s_d}, {1 << 17}'); a(fill + ' sc1')
            a(f's_add_u32 s{s_t}, s{s_e}, {1 << 12}'); a(fill + ' sc1')
            a.extend(sx(s_t, [(s_g, 4096), (s_t+1, 2048), (s_m, 128)], WS_ZP + (1 << 16) - 2*2048)); a(fill + ' sc1')
            a('s_mov_b64 exec, -1')
            a('s_waitcnt vmcnt(0)')
        self.cond([f's_cmp_eq_u32 s{s_l}, 0'], late_fill)
        if self.hu is not None:
            vH, vG, s_f = T+5, T+6, 85
            a.extend(sx(s_f, [(s_l, 16384), (s_g, 2048)], WS_HU)); a(f'v_and_b32 v{vH}, 15, v1'); a(f'v_lshlrev_b32 v{vH}, 7, v{vH}')
        a('s_barrier')
        if self.hu is not None: a(self.flag_load(s_f, vH, vG))
        if self.jit: self.jitter(20)
        if self.rprio: a(f's_setprio {self.rprio}')
        a('s_barrier')
        if self.hu is not None: self.flag_wait(s_f, vH, vG, 11, pre='s_waitcnt vmcnt(0)', nap=self.hun)
        if after_by and self.w0a == 0: after_by()
        if self.b1: a(f's_sleep {self.b1}')
        self.ll_wait(([f's_sleep {self.n1}'] if self.n1 else []) + [f'buffer_load_dwordx4 {vr(D,4)}, v{vA}, {srd(sWS)}, s{s_a} offen sc1',
                      f'buffer_load_dwordx4 {vr(D+4,4)}, v{vA}, {srd(sWS)}, s{s_b} offen sc1',
                      f'buffer_load_dwordx4 {vr(D+8,4)}, v{vZ}, {srd(sWS)}, s{s_c} offen sc1',
                      f'buffer_load_dwordx4 {vr(D+12,4)}, v{vZ}, {srd(sWS)}, s{s_c} offen offset:1024 sc1'],
                     list(range(D, D+16)), t1, t2, 1)
        self.stamp(5)
        S = []
        for z in range(2):
            d, u = D + 8*z, U + 16*z
            for k in range(8): S += [f'v_lshlrev_b32 v{u+2*k}, 16, v{d+k}', f'v_and_b32 v{u+2*k+1}, 0xffff0000, v{d+k}']
            for k in range(4): S.append(pk('add', u+2*k, u+2*k, u+8+2*k))
            for k in range(4): S.append(sw32(u+k, u+4+k))
            S += [pk('add', u, u, u+4), pk('add', u+2, u+2, u+6), sw16(u, u+2), sw16(u+1, u+3), pk('add', u, u, u+2)]
            for k in range(2): S.append(f'v_add_f32_dpp v{u+k}, v{u+k}, v{u+k} row_ror:8 row_mask:0xf bank_mask:0xf')
            S.append(cvt(u, u, u+1))
        S += ['s_mov_b32 exec_lo, 0x00ff00ff', 's_mov_b32 exec_hi, 0x00ff00ff',
              f'buffer_store_dword v{U}, v{vO}, {srd(sWS)}, s{s_d} offen sc1',
              f'buffer_store_dword v{U+16}, v{vO}, {srd(sWS)}, s{s_e} offen sc1', 's_mov_b64 exec, -1']
        self.sw(S)
        if self.rprio: a('s_setprio 0')
        if after_by and self.w0a == 1: after_by()
        if self.zw: a(f's_waitcnt vmcnt({12 if (after_by and self.w0a == 1 and self.zw == 1) else 0})')
        a('s_barrier')
        if after_by and self.w0a == 2: after_by()

    def loader(self):
        a = self.a
        a.label('L_loader')
        dx, dw, dwo, t0, t1, t2, vf = 8, 16, 28, 2, 3, 4, 5
        s_ld, s_kx, s_kw, s_slot, s_mx, s_xstep, s_wo, s_wm0, s_sx, s_sw, s_xb, s_fl, s_mw = range(65, 78)
        a(f's_sub_u32 s{s_ld}, s{s_wave}, 4')
        self.w_dma_offsets(dw, s_ld, t0, t1, t2)
        a(f's_mul_i32 s{s_mw}, s{s_ld}, 12288')
        a(f's_lshl_b32 s{s_mx}, s{s_ld}, 13'); a(f's_add_u32 s{s_mx}, s{s_mx}, {XOFF}')
        s_tx, s_tv = 12, 78
        def nxt(r, t): return [f's_and_b32 s{r}, s{t}, 15', f's_lshr_b64 s[{t}:{t+1}], s[{t}:{t+1}], 4']
        def wst(slot=None, kw=None):
            L = []
            for j in range(12):
                if j == 0: L.append(f's_add_u32 m0, s{s_mw}, ' + (f's{s_slot}' if slot is None else str(slot*STG)))
                elif j % 4 == 0: L.append('s_add_u32 m0, m0, 4096')
                L.append(f'buffer_load_dwordx4 v{dw+j}, {srd(sW)}, s{kw or s_kw} offen offset:{1024*(j%4)} lds')
            a.extend(L + ([] if kw else nxt(s_sw, s_tv) + [f's_mul_i32 s{s_kw}, s{s_sw}, {64*6144}']))
        def xst(slot=None):
            L = []
            for j in range(8):
                if j == 0: L.append(f's_add_u32 m0, s{s_mx}, ' + (f's{s_slot}' if slot is None else str(slot*STG)))
                elif j == 4: L.append('s_add_u32 m0, m0, 4096')
                L.append(f'buffer_load_dwordx4 v{dx+j}, {srd(sX)}, s{s_kx} offen offset:{1024*(j%4)} sc1 lds')
            a.extend(L + nxt(s_sx, s_tx) + [f's_mul_i32 s{s_kx}, s{s_sx}, s{s_xstep}', f's_add_u32 s{s_kx}, s{s_kx}, s{s_xb}'])
        def kstart(first):
            if not first: a(f's_and_b32 s{s_t}, s{s_g}, 7')
            self.order(s_tv, s_t, first)
            if first: self.pointers()
            a(f's_lshr_b64 s[{s_tx}:{s_tx+1}], s[{s_tv}:{s_tv+1}], {0 if first else 4}')
            a.extend(nxt(s_sw, s_tv) + nxt(s_sx, s_tx))
            a(f's_mul_i32 s{s_kw}, s{s_sw}, {64*6144}'); a(f's_mul_i32 s{s_kx}, s{s_sx}, s{s_xstep}'); a(f's_add_u32 s{s_kx}, s{s_kx}, s{s_xb}')
        a(f's_lshl_b32 s{s_xb}, s{s_m}, 18'); a(f's_mov_b32 s{s_xstep}, 128'); kstart(True)
        wst(0)
        a(f'v_lshrrev_b32 v{t0}, 3, v1'); a(f'v_and_b32 v{t1}, 7, v1')
        a(f'v_lshrrev_b32 v{t2}, 4, v1'); a(f'v_xor_b32 v{t1}, v{t1}, v{t2}'); a(f'v_xor_b32 v{t2}, 4, v{t1}')
        a(f's_lshl_b32 s{s_t}, s{s_ld}, 17'); a(f'v_lshl_add_u32 v{t0}, v{t0}, 11, s{s_t}')
        a(f'v_lshl_add_u32 v{t1}, v{t1}, 4, v{t0}'); a(f'v_lshl_add_u32 v{t2}, v{t2}, 4, v{t0}')
        for j in range(8): a(f'v_add_u32 v{dx+j}, {j*16384 - 1024*(j%4)}, v{t1 if j % 2 == 0 else t2}')
        xst(0); wst(1)
        if self.ramp == -2: xst(1)
        a(f'v_lshrrev_b32 v{t0}, 5, v1'); a(f'v_lshlrev_b32 v{t0}, 4, v{t0}')
        a(f'v_bfe_u32 v{t1}, v1, 3, 2'); a(f'v_add_u32 v{t0}, v{t0}, v{t1}')
        a(f's_lshl_b32 s{s_t}, s{s_g}, 7'); a(f'v_lshl_add_u32 v{t0}, v{t0}, 11, s{s_t}')
        a(f'v_and_b32 v{t1}, 7, v1'); a(f'v_bfe_u32 v{t2}, v1, 4, 1'); a(f'v_lshlrev_b32 v{t2}, 1, v{t2}')
        a(f'v_xor_b32 v{t1}, v{t1}, v{t2}'); a(f'v_xor_b32 v{t2}, 4, v{t1}')
        a(f'v_lshl_add_u32 v{t1}, v{t1}, 4, v{t0}'); a(f'v_lshl_add_u32 v{t2}, v{t2}, 4, v{t0}')
        for G in range(4): a(f'v_add_u32 v{dwo+G}, {G*4*2048 - 1024*G}, v{t1 if G % 2 == 0 else t2}')
        a(f's_waitcnt vmcnt({20 if self.ramp == -2 else 12})'); a('s_barrier')
        if self.ramp != -2: xst(1)
        wst(2)
        if self.ramp < 0: xst(2)
        a(f's_waitcnt vmcnt({20 if self.ramp < 0 else 12})'); a('s_barrier')
        if self.ramp >= 0: xst(2)
        if self.ramp > 0:
            for k in range(self.ramp):
                xst(k % 3); a('s_waitcnt vmcnt(8)'); a('s_barrier'); wst(k % 3)
            a(f's_mov_b32 s{s_i}, {self.ramp}'); a(f's_mov_b32 s{s_slot}, {(self.ramp % 3)*STG}')
            a('s_branch L_ld_enter2')
        a.label('L_ld_enter')
        a(f's_mov_b32 s{s_i}, 0'); a(f's_mov_b32 s{s_slot}, 0')
        a.label('L_ld_enter2')
        s_c3 = 86
        a(f's_lshr_b32 s{s_c3}, s{sW}, 7'); a(f's_add_u32 s{s_c3}, s{s_c3}, s{s_g}'); a(f's_and_b32 s{s_c3}, s{s_c3}, 7')
        self.trickle_setup(); self.warm_wo_setup()
        def loop(name, n, extra):
            a.label(name)
            if self.wf == 1:
                L1, L2 = self.lab('wf'), self.lab('wfd')
                a(f's_cmp_eq_u32 s{s_c3}, 3'); a(f's_cbranch_scc1 {L1}')
                xst(); wst(); a(f's_branch {L2}')
                a.label(L1); wst(); xst(); a.label(L2)
            elif self.wf == 2: wst(); xst()
            else: xst(); wst()
            if extra:
                a(f's_add_u32 s{s_t}, s{s_i}, 1'); a(f's_and_b32 s{s_t}, s{s_t}, 7')
                a.extend(sx(s_wo, [(s_rot2, 2), (s_t, 1)], 24)); a(f's_and_b32 s{s_wo}, s{s_wo}, 31')
                a.extend(sx(s_wm0, [(s_wo, 65536), (s_ld, 2*4*2048)]))
                a.extend(sx(s_wo, [(s_t, 4096), (s_ld, 2048)], L_SPARE)); a(f's_mov_b32 m0, s{s_wo}')
                for G in range(2): a(f'buffer_load_dwordx4 v{dwo+G}, {srd(sWO)}, s{s_wm0} offen offset:{1024*G} lds')
            self.trickle(f's{s_i}'); self.warm_wo(5)
            a(f's_add_u32 s{s_slot}, s{s_slot}, {STG}'); a(f's_cmp_eq_u32 s{s_slot}, {3*STG}'); a(f's_cselect_b32 s{s_slot}, 0, s{s_slot}')
            a(f's_add_u32 s{s_i}, s{s_i}, 1'); a(f's_cmp_lt_u32 s{s_i}, {n}')
            a(f's_waitcnt vmcnt({22 if extra else 20})')
            a('s_barrier')
            a(f's_cbranch_scc1 {name}')
        if self.early: loop('L_ld_loop', 5, False); loop('L_ld_loop2', 13, True)
        else: loop('L_ld_loop', 13, False)
        def wo(p0, n, thr=None):
            a.extend(sx(s_wm0, [(s_ld, 4096)], L_WO + 4096*p0))
            a.extend(sx(s_wo, [(s_rot2, 2), (s_ld, 1)], p0)); a(f's_and_b32 s{s_wo}, s{s_wo}, 31'); a(f's_lshl_b32 s{s_wo}, s{s_wo}, 16')
            L = self.lab('wo')
            a(f's_mov_b32 s{s_i}, 0')
            a.label(L)
            if thr is not None: a(f's_waitcnt vmcnt({thr})')
            a(f's_mov_b32 m0, s{s_wm0}')
            a(f's_add_u32 s{s_wm0}, s{s_wm0}, 8192')
            for G in range(4): a(f'buffer_load_dwordx4 v{dwo+G}, {srd(sWO)}, s{s_wo} offen offset:{1024*G} lds')
            a(f's_add_u32 s{s_wo}, s{s_wo}, 131072'); a(f's_and_b32 s{s_wo}, s{s_wo}, 0x1fffff')
            a(f's_add_u32 s{s_i}, s{s_i}, 1'); a(f's_cmp_lt_u32 s{s_i}, {n//2}'); a(f's_cbranch_scc1 {L}')
        order = list(range(24, 32)) + list(range(4, 24)) + list(range(4))
        def wos(k0, k1):
            while k0 < k1:
                k = k0
                while k + 1 < k1 and order[k+1] == order[k] + 1: k += 1
                wo(order[k0], k + 1 - k0); k0 = k + 1
        n13, n14 = self.wsch; assert n13 <= 18 and n13 + n14 <= 28 and n13 % 2 == 0 and n14 % 2 == 0
        wos(0, n13)
        a(f's_waitcnt vmcnt({2*n13})'); a('s_barrier')
        wos(n13, n13 + n14)
        a('s_barrier')
        if self.hd:
            def hold():
                a.extend(sx(s_t, [(s_ld, 4)], P_CNT + 8)); a(f'v_mov_b32 v{t1}, s{s_t}')
                self.spin(['s_sleep 1', f'ds_read_b32 v{t0}, v{t1}'], [f'v_cmp_ne_u32 vcc, s{s_l}, v{t0}'], t0, 14)
            self.cond([f's_bitcmp1_b32 s{s_l}, 0'], hold)
        wos(n13 + n14, 32)
        if self.jit: self.jitter(23)
        a.extend(sx(s_fl, [(s_l, 8192), (s_m, 256), (s_rot2, 16), (s_ld, 8)], 4096))
        self.get_mode(t0); a.extend(self.flag_addr(vf, t0, s_fl))
        a.extend(sx(s_xb, [(s_l, 1 << 22), (s_m, 1 << 18)], WS_XI))
        a(f's_bitcmp0_b32 s{s_l}, 0')
        a(f's_cselect_b64 s[{sW}:{sW+1}], s[{pBW}:{pBW+1}], s[{pAW}:{pAW+1}]')
        a(f's_cselect_b64 s[{sWO}:{sWO+1}], s[{pBWO}:{pBWO+1}], s[{pAWO}:{pAWO+1}]')
        a(f's_mov_b64 s[{sX}:{sX+1}], s[{pWS}:{pWS+1}]'); a(f's_mov_b32 s{sX+2}, {WS_END}')
        a(f's_mov_b32 s{s_xstep}, 16384'); kstart(False)
        a(f's_lshl_b32 s{s_t}, s{s_ld}, 13'); a(f'v_lshl_add_u32 v{t0}, v1, 4, s{s_t}')
        for j in range(8): a(f'v_add_u32 v{dx+j}, {4096*(j//4)}, v{t0}')
        a(f's_bitcmp1_b32 s{s_l}, 0'); a('s_cbranch_scc1 L_ld_B')
        WR, s_k0 = 32, s_wm0
        inreg = [f's_lshr_b32 s{s_t}, {self.wr}, s{s_l}', f's_bitcmp1_b32 s{s_t}, 0']
        a(f's_mov_b32 s{s_k0}, s{s_kw}'); a.extend(nxt(s_sw, s_tv) + [f's_mul_i32 s{s_kw}, s{s_sw}, {64*6144}'])
        def wreg():
            for k in range(2):
                for j in range(12): a(f'buffer_load_dwordx4 {vr(WR+48*k+4*j,4)}, v{dw+j}, {srd(sW)}, s{s_kw} offen offset:{1024*(j%4)}')
                a.extend(nxt(s_sw, s_tv) + [f's_mul_i32 s{s_kw}, s{s_sw}, {64*6144}'])
        if self.wr: self.cond(inreg, wreg)
        self.reduce_job(lambda: wst(0, s_k0))
        a('s_branch L_ld_join')
        a.label('L_ld_B')
        self.cond([f's_cmp_lg_u32 s{s_l}, 3'], lambda: wst(0))
        a.label('L_ld_join')
        a('s_waitcnt vmcnt(0)'); a('s_barrier')
        a(f's_cmp_eq_u32 s{s_l}, 3'); a('s_cbranch_scc1 L_fin')
        self.trickle_rest(1); self.warm_w()
        if self.jit: self.jitter(21)
        if self.wr:
            a.extend(inreg); a('s_cbranch_scc0 L_ld_dma')
            a(f's_add_u32 s{s_t}, s{s_mw}, {STG}'); a(f'v_lshl_add_u32 v{t1}, v1, 4, s{s_t}')
            a('s_barrier'); a('s_barrier')
            for k in range(2):
                for j in range(12): a(f'ds_write_b128 v{t1}, {vr(WR+48*k+4*j,4)} offset:{STG*k+1024*j}')
            a('s_waitcnt lgkmcnt(0)')
            assert not self.spec & 4
            a('s_branch L_ld_x')
            a.label('L_ld_dma')
        a('s_barrier')
        if self.jit: self.jitter(22)
        wst(1)
        if self.w2 == 2: wst(2)
        if self.spec & 4: a('s_waitcnt vmcnt(0)')
        a('s_barrier')
        if self.w2 == 0: wst(2)
        a.label('L_ld_x')
        a(f's_add_u32 s{s_l}, s{s_l}, 1')
        if self.lprio: a(f's_setprio {self.lprio}')
        self.flag_wait(s_fl, vf, t0, 2, nap=self.xnap, own=True)
        self.stamp(1)
        xst(1); xst(2)
        if self.lprio: a('s_setprio 0')
        a('s_waitcnt vmcnt(8)'); a('s_barrier')
        if self.w2 == 1: wst(2)
        a('s_branch L_ld_enter')

    def helper(self):
        a = self.a
        a.label('L_helper')
        t0, t1, t2, t3, l4, l16, ones, a_st, a_cs, v_st, v_cs, aw, vtw, vto, vd = 2, 3, 4, 5, 6, 7, 8, 12, 13, 14, 15, 16, 18, 19, 20
        F, D, SA, SC = 32, 96, 128, 160
        s_h, s_tw, s_a, s_b, s_trot = 65, 66, 67, 68, 69
        xm = 4; s_r, s_tob, s_to, s_cs = 70, 71, 72, 74; vrf, vfl, aw2, dw = 21, 22, 24, 80
        a(f's_sub_u32 s{s_h}, s{s_wave}, 6')
        if self.tlb:
            self.pointers()
            def others():
                for p, n in ((pPHI, 65536), (pDBG, 256), (pAWO, 1 << 21), (pBW, 3 << 21), (pBWO, 1 << 21), (pOUT, 1 << 22)):
                    for o in list(range(0, n, 1 << 21)) + ([n - 4] if n >= 1 << 21 else []):
                        a(f's_mov_b32 s{s_t}, {o}'); a(f's_load_dword s{s_fd}, s[{p}:{p+1}], s{s_t}')
            def wsp():
                a(f's_lshr_b32 s{s_t}, s2, 3'); a(f's_lshl_b32 s{s_t}, s{s_t}, 21'); a(f's_add_u32 s{s_t}, s{s_t}, 0x80000'); a(f's_min_u32 s{s_t}, s{s_t}, {WS_END - 4}')
                a(f's_load_dword s{s_fd}, s[{pWS}:{pWS+1}], s{s_t}')
                if self.tlb == 2:
                    for k in range(6): a(f's_mov_b32 s{s_t}, {(k << 21) + 0x80000}'); a(f's_load_dword s{s_fd}, s[{pWS}:{pWS+1}], s{s_t}')
            self.cond([f's_cmp_eq_u32 s{s_h}, 0'], wsp)
            self.cond([f's_cmp_eq_u32 s{s_h}, 1'], others)
        def touch_setup(first=False):
            if not self.touch: return
            c, gt = s_t + 2, s_t + 3
            def cls(b):
                a(f's_lshr_b32 s{gt}, s{b}, 7'); a(f's_sub_u32 s{gt}, 3, s{gt}'); a(f's_and_b32 s{gt}, s{gt}, 7')
                a(f's_sub_u32 s{c}, s{s_g}, s{gt}'); a(f's_and_b32 s{c}, s{c}, 7'); a(f's_sub_u32 s{c}, s{c}, 1')
                a(f's_and_b32 s{s_t}, s{s_g}, 8'); a(f's_add_u32 s{gt}, s{gt}, s{s_t}'); a(f's_lshl_b32 s{gt}, s{gt}, 7')
            a(f's_and_b32 s{s_t+4}, s{s_m}, {xm-1}'); a(f's_lshl_b32 s{s_t+4}, s{s_t+4}, 1'); a(f's_add_u32 s{s_t+4}, s{s_t+4}, s{s_h}')
            cls(sW)
            a(f's_bfe_u32 s{s_t}, s{gt}, 0x30007'); self.order(s_to, s_t, first)
            a(f's_cmp_ge_u32 s{c}, 3'); a(f's_cselect_b32 s{s_t}, {32*6144 - 3*2048}, 0'); a(f's_add_u32 s{gt}, s{gt}, s{s_t}')
            a(f's_lshl_b32 s{s_t}, s{c}, 11'); a(f's_add_u32 s{gt}, s{gt}, s{s_t}')
            a(f's_mul_i32 s{s_t}, s{s_t+4}, {(16//xm)*6144}'); a(f's_add_u32 s{gt}, s{gt}, s{s_t}')
            a(f's_cmp_lt_u32 s{c}, 6'); a(f's_cselect_b32 s{s_t}, {16//xm}, 0')
            a(f'v_mul_u32_u24 v{vtw}, 6144, v1'); a(f'v_add_u32 v{vtw}, s{gt}, v{vtw}')
            a(f'v_mov_b32 v{t0}, {BIG}'); a(f'v_cmp_gt_u32 vcc, s{s_t}, v1'); a(f'v_cndmask_b32 v{vtw}, v{t0}, v{vtw}, vcc')
            cls(sWO)
            a(f's_lshl_b32 s{s_t}, s{c}, 19'); a(f's_add_u32 s{gt}, s{gt}, s{s_t}')
            a(f's_mul_i32 s{s_t}, s{s_t+4}, {(128//xm)*2048}'); a(f's_add_u32 s{gt}, s{gt}, s{s_t}')
            a(f's_cmp_lt_u32 s{c}, 4'); a(f's_cselect_b32 s{s_t}, {32//xm}, 0'); a(f's_cselect_b32 s{s_tob}, s{gt}, -1')
            if first: a(f's_mov_b32 s{s_tob}, -1')
            a(f'v_lshlrev_b32 v{vto}, 11, v1'); a(f'v_add_u32 v{vto}, s{gt}, v{vto}')
            a(f'v_cmp_gt_u32 vcc, s{s_t}, v1'); a(f'v_cndmask_b32 v{vto}, v{t0}, v{vto}, vcc')
        def touchW(st):
            if not self.touch: return
            a(f's_bfe_u32 s{s_tw}, s{s_to + st//8}, {0x40000 + 4*(st%8):#x}'); a(f's_mul_i32 s{s_tw}, s{s_tw}, {64*6144}')
            a(f'buffer_load_dword v{vd}, v{vtw}, {srd(sW)}, s{s_tw} offen')
        def touchO(k):
            if not self.touch: return
            a(f's_mov_b32 s{s_tw}, {k*(32//xm)*2048}')
            a(f'buffer_load_dword v{vd}, v{vto}, {srd(sWO)}, s{s_tw} offen')
        if self.c3 & 2:
            self.pointers(); touch_setup(True)
            for st in range(0, 3 + self.dist): touchW(st)
        a(f'v_lshlrev_b32 v{l4}, 2, v1'); a(f'v_lshlrev_b32 v{l16}, 4, v1')
        a.extend(self.w_frag_addr(aw2, s_h, 0, t0, t1, t2))
        a.extend(self.flag_addr(vrf, t0, None, remote=True))
        a(f'v_lshrrev_b32 v{t0}, 5, v1'); a(f'v_and_b32 v{t1}, 31, v1'); a(f'v_lshlrev_b32 v{t1}, 4, v{t1}')
        a(f'v_lshl_add_u32 v{v_st}, v{t0}, 10, v{t1}')
        a(f'v_and_b32 v{t2}, 24, v1'); a(f'v_and_b32 v{t3}, 3, v1'); a(f'v_lshl_add_u32 v{t2}, v{t3}, 1, v{t2}'); a(f'v_add_u32 v{t2}, v{t2}, v{t0}')
        a.extend(sx(s_t, [(s_h, 256)], P_NM)); a(f'v_lshl_add_u32 v{a_st}, v{t2}, 3, s{s_t}')
        a(f'v_mov_b32 v{t2}, {BIG}'); a(f'v_cmp_gt_u32 vcc, 384, v{t1}'); a(f'v_cndmask_b32 v{v_cs}, v{t2}, v{v_st}, vcc')
        a.extend(sx(s_t, [(s_h, 384)], P_CS)); a(f'v_lshl_add_u32 v{t1}, v{t0}, 3, v{t1}'); a(f'v_add_u32 v{a_cs}, s{s_t}, v{t1}')
        if not self.tlb and not self.c3 & 2: self.pointers()

        def phi_load():
            a(f's_mov_b64 s[{sX}:{sX+1}], s[{pPHI}:{pPHI+1}]'); a(f's_mov_b32 s{sX+2}, 65536')
            a.extend(sx(s_t, [(s_g, 4096), (s_h, 2048)])); a(f's_lshl_b32 s{s_t+1}, s{s_h}, 11'); a(f's_add_u32 m0, s{s_t+1}, {P_PHI}')
            for j in range(2): a(f'buffer_load_dwordx4 v{l16}, {srd(sX)}, s{s_t} offen offset:{1024*j} lds')
        vc = 26
        if self.cpf: a(f's_getpc_b64 s[{s_t}:{s_t+1}]')
        if self.cpf: a.label('L_pc')
        if self.cpf: a(f's_sub_u32 s{s_t}, s{s_t}, L_pc-{KNAME}'); a(f's_subb_u32 s{s_t+1}, s{s_t+1}, 0')
        if self.cpf: a(f's_lshr_b32 s{s_t+2}, s2, 3'); a.extend(sx(s_t+3, [(s_t+2, 1280), (s_h, 640)]))
        if self.cpf: a(f'v_lshl_add_u32 v{t0}, v1, 7, s{s_t+3}'); a(f'v_min_u32 v{t0}, L_last-{KNAME}, v{t0}')
        if self.cpf: a(f'v_mov_b32 v{vc+1}, s{s_t+1}'); a(f'v_add_co_u32 v{vc}, vcc, s{s_t}, v{t0}'); a(f'v_addc_co_u32 v{vc+1}, vcc, 0, v{vc+1}, vcc')
        def code_touch():
            a('s_mov_b64 exec, 31'); a(f'global_load_dword v{vd}, {vr(vc,2)}, off'); a('s_mov_b64 exec, -1')
        if self.cpf & 1: code_touch()
        def cold_touch():
            a(f's_and_b32 s{s_t}, s{s_m}, 3'); a(f's_and_b32 s{s_t+1}, s{s_m}, 12')
            a.extend(sx(s_t+2, [(s_t, 16*6144), (s_t+1, 64*6144), (s_h, 64*6144), (s_g, 128)]))
            a(f'v_lshlrev_b32 v{t0}, 11, v1'); a('s_mov_b32 exec_hi, 0xffff')
            for st in self.t0s:
                a(f's_add_u32 s{s_t}, s{s_t+2}, {abs(st)*64*6144}'); a(f'buffer_load_dword v{vd}, v{t0}, {srd(sW)}, s{s_t} offen')
            a('s_mov_b32 exec_hi, -1')
        if self.t0s and self.t0s[0] < 0: cold_touch()
        if not self.c3 & 2: touch_setup(True)
        if self.t0s and self.t0s[0] >= 0: cold_touch()
        for st in range(1, 0 if self.c3 & 2 else 3 + self.dist): touchW(st)

        def init_stores():
            for k in range(4): a(f'v_mov_b32 v{SA+k}, -1')
            fill = f'buffer_store_dwordx4 {vr(SA,4)}, v{l16}, {srd(sWS)}, s{s_t} offen'
            a.extend(sx(s_t, [(s_g, 131072), (s_h, 65536), (s_m, 2048)], WS_KVP)); a(fill + ' sc1'); a(fill + ' offset:1024 sc1')
            a(f's_add_u32 s{s_t}, s{s_t}, 32768'); a(fill + ' sc1'); a(fill + ' offset:1024 sc1')
            a('s_mov_b64 exec, 0xff')
            a.extend(sx(s_t, [(s_g, 8192), (s_h, 4096), (s_m, 128)], WS_KVF)); a(fill + ' sc1'); a(fill + ' offset:2048 sc1')
            a.extend(sx(s_t, [(s_g, 4096), (s_h, 2048), (s_m, 128)], WS_ZP)); a(fill + ' sc1')
            a.extend(sx(s_t, [(s_g, 256), (s_h, 128)], WS_ZF))
            a(f's_cmp_eq_u32 s{s_m}, s{s_g}'); a(f's_cselect_b32 s{s_t}, s{s_t}, {BIG}'); a(fill + ' sc1')
            a('s_mov_b64 exec, -1')
            a(f'v_lshrrev_b32 v{t1}, 2, v1'); a(f'v_lshlrev_b32 v{t1}, 10, v{t1}'); a(f'v_and_or_b32 v{t1}, v1, 3, v{t1}')
            a.extend(sx(s_t, [(s_m, 64), (s_g, 4)])); a(f'v_add_u32 v{t1}, s{s_t}, v{t1}')
            a(f's_cmp_eq_u32 s{s_h}, 0'); a(f's_cselect_b32 s{s_t+1}, {2 + self.ls}, 7'); a(f's_cselect_b32 s{s_t}, 0, {WS_RF}')
            a(f'v_lshlrev_b32 v{t1}, s{s_t+1}, v{t1}'); a(f'v_mov_b32 v{t0}, 0')
            a('s_mov_b64 exec, 0xfffffff')
            a(f'buffer_store_dword v{t0}, v{t1}, {srd(sWS)}, s{s_t} offen sc1')
            a('s_mov_b64 exec, -1')
            if self.hu is not None:
                a.extend(sx(s_t, [(s_h, 32768), (s_g, 2048), (s_m, 128)], WS_HU)); a(f'buffer_store_dword v{t0}, off, {srd(sWS)}, s{s_t} sc1')
            a.extend(sx(s_t, [(s_h, 4)], P_CNT)); a(f'v_mov_b32 v{t1}, s{s_t}'); a(f'ds_write_b32 v{t1}, v{t0}')
            a.extend(sx(s_t, [(s_g, 16384), (s_m, 1024)], WS_CS)); a(f's_cmp_eq_u32 s{s_h}, 1'); a(f's_cselect_b32 s{s_t}, s{s_t}, {BIG}'); a(fill + ' sc1')
        for k in range(4): a(f'v_mov_b32 v{ones+k}, 0x3f803f80')
        def cs_reads(aw=aw):
            for s in range(2):
                for n in range(6):
                    for t in range(2):
                        a(f'ds_read_b64_tr_b16 {vr(F+24*s+4*n+2*t,2)}, v{aw+(n&1)} offset:{(n>>1)*8192+(32*s+4*t)*128}')
            a('s_waitcnt lgkmcnt(0)')
        def cs_publish():
            for s in range(2):
                for n in range(6): a(mf16(D+4*n, ones, F+24*s+4*n, D+4*n if s else None))
            a.extend(sx(s_t, [(s_l, 262144), (s_g, 16384), (s_m, 1024), (s_h, 128)], WS_CS))
            a('s_mov_b64 exec, 0xffff')
            for n in range(6): a(f'buffer_store_dword v{D+4*n}, v{l4}, {srd(sWS)}, s{s_t} offen offset:{(n>>1)*256+(n&1)*64} sc1')
            a('s_mov_b64 exec, -1')
        def arrive():
            a(f's_getreg_b32 s{s_t}, hwreg(HW_REG_XCC_ID, 0, 3)'); a(f's_lshl_b32 s{s_t}, s{s_t}, 2'); a(f's_lshl_b32 s{s_t+1}, 1, s{s_t}')
            a.extend(sx(s_t, [(s_m, 16), (s_rot2, 1)]))
            a('s_mov_b64 exec, 1')
            a(f'v_mov_b32 v{t0}, s{s_t+1}')
            a(f'buffer_atomic_add v{t0}, off, {srd(sDBG)}, s{s_t} sc1')
            a('s_mov_b64 exec, -1')
        iload = f'buffer_load_dword v{vfl}, v{t2}, {srd(sDBG)}, 0 offen sc1'
        def init_look():
            a(f'v_and_b32 v{t2}, 31, v1'); a(f'v_lshlrev_b32 v{t2}, 3, v{t2}'); a(iload)
        def init_wait():
            a('s_waitcnt vmcnt(0)')
            self.spin(['s_sleep 16', iload],
                      [f'v_lshrrev_b32 v{t1}, 4, v{vfl}', f'v_and_b32 v{t1}, 0x0f0f0f0f, v{t1}', f'v_and_b32 v{t3}, 0x0f0f0f0f, v{vfl}',
                       f'v_sad_u8 v{t1}, v{t1}, 0, 0', f'v_sad_u8 v{t3}, v{t3}, 0, v{t1}', f'v_cmp_gt_u32 vcc, 8, v{t3}'], t3, 3, pre=True)
            a(f's_lshr_b32 s{s_t}, s{s_rot2}, 3'); a(f's_lshl_b32 s{s_t+1}, s{s_m}, 1'); a(f's_add_u32 s{s_t}, s{s_t}, s{s_t+1}')
            a(f'v_readlane_b32 s{s_fast}, v{vfl}, s{s_t}')
            a(f's_and_b32 s{s_fast}, s{s_fast}, 0x88888888'); a(f's_cselect_b32 s{s_fast}, {1 if self.local else 0}, 0')
            a(f'v_mov_b32 v{t3}, s{s_fast}'); a(f'v_mov_b32 v{t2}, {P_MODE}'); a(f'ds_write_b32 v{t2}, v{t3}')
        def gather(R, va, so, ks):
            L = []
            for k in ks: L += [f's_add_u32 s{s_t}, s{so}, {4096*(k//2)}', f'buffer_load_dwordx4 {vr(R+4*k,4)}, v{va}, {srd(sWS)}, s{s_t} offen offset:{2048*(k%2)} sc1']
            return L
        def total(R):
            n = 8
            while n > 1:
                n //= 2
                for k in range(4*n): a(f'v_add_f32 v{R+k}, v{R+k}, v{R+k+4*n}')
            a(sw32(R, R+2)); a(sw32(R+1, R+3)); a(f'v_add_f32 v{R}, v{R}, v{R+2}'); a(f'v_add_f32 v{R+1}, v{R+1}, v{R+3}')
        def stats_finish():
            for k in range(2): a(f'v_mov_b32_dpp v{SA+2+k}, v{SA+k} row_shl:4 row_mask:0xf bank_mask:0xf')
            for k in range(2): a(f'v_mul_f32 v{SA+k}, {f2u(-1/1024)}, v{SA+k}'); a(f'v_mul_f32 v{SA+2+k}, {f2u(1/1024)}, v{SA+2+k}')
            for k in range(2): a(f'v_fma_f32 v{SA+2+k}, -v{SA+k}, v{SA+k}, v{SA+2+k}')
            for k in range(2): a(f'v_max_f32 v{SA+2+k}, 0, v{SA+2+k}')
            for k in range(2): a(f'v_add_f32 v{SA+2+k}, {f2u(1e-5)}, v{SA+2+k}')
            for k in range(2): a(f'v_rsq_f32 v{SA+2+k}, v{SA+2+k}')
            a('s_mov_b32 exec_lo, 0x0f0f0f0f'); a('s_mov_b32 exec_hi, 0x0f0f0f0f')
            a(f'ds_write_b64 v{a_st}, {vr(SA,2)}'); a(f'ds_write_b64 v{a_st}, {vr(SA+2,2)} offset:512')
            a('s_mov_b64 exec, -1')
        def cs_finish():
            total(SC)
            a(f's_mul_i32 s{s_t}, s{s_l}, 768'); a(f'v_add_u32 v{t0}, s{s_t}, v{a_cs}')
            a('s_mov_b32 exec_lo, 0xffffff'); a('s_mov_b32 exec_hi, 0xffffff')
            a(f'ds_write_b64 v{t0}, {vr(SC,2)}')
            a('s_mov_b64 exec, -1')
        l0 = [f's_cmp_eq_u32 s{s_l}, 0']; ln0 = [f's_cmp_lg_u32 s{s_l}, 0']; l01 = [f's_cmp_lt_u32 s{s_l}, 2']
        a(f's_mov_b32 s{s_r}, 0')
        a.label('L_hp_layer')
        a(f's_lshr_b32 s{s_t}, s{s_m}, 2'); a(f's_lshl_b32 s{s_t}, s{s_t}, 1'); a(f's_bitcmp1_b32 s{s_m}, 1'); a(f's_cselect_b32 s{s_t}, 8, s{s_t}')
        a(f's_and_b32 s{s_t+1}, s{s_m}, 2'); a(f's_cmp_eq_u32 s{s_l}, 0'); a(f's_cselect_b32 s{s_t}, s{s_t+1}, s{s_t}')
        a(f's_and_b32 s{s_t+1}, s{s_m}, 1'); a(f's_add_u32 s{s_cs}, s{s_t}, s{s_t+1}')
        a(f's_mul_i32 s{s_t}, s{s_cs}, 11'); a(f's_lshr_b32 s{s_t}, s{s_t}, 5'); a(f's_mul_i32 s{s_t}, s{s_t}, 3'); a(f's_sub_u32 s{s_t}, s{s_cs}, s{s_t}'); a(f's_mul_i32 s{s_t}, s{s_t}, {STG}')
        for k in range(2): a(f'v_add_u32 v{aw+k}, s{s_t}, v{aw2+k}')
        a(f's_cmp_lt_u32 s{s_l}, 2'); a(f's_cselect_b32 s{s_cs}, s{s_cs}, 99')
        a.extend(sx(s_a, [(s_l, 262144), (s_m, 16384), (s_h, 512)], WS_ST))
        a.extend(sx(s_b, [(s_l, 262144), (s_g, 16384), (s_h, 384)], WS_CS))
        self.trickle_setup(); self.warm_wo_setup()
        hi = lambda: self.hprio and a(f's_setprio {self.hprio}')
        lo = lambda: self.hprio and a('s_setprio 0')
        l1 = [f's_cmp_eq_u32 s{s_l}, 1']
        for i in range(17):
            a('s_barrier')
            if self.jit and i in (0, 1, 4, 8, 9, 12, 16): self.jitter(30 + i)
            ncs = 16 - self.rot0
            l0h0 = [f's_or_b32 s{s_t}, s{s_l}, s{s_h}', f's_cmp_eq_u32 s{s_t}, 0']
            if i < 10: self.cond([f's_cmp_eq_u32 s{s_cs}, {i}'], cs_reads)
            if i in (self.i0 + self.iw, 5, 13) or (i == 14 and self.gi == 12): a('s_waitcnt vmcnt(0)')
            if i == 5: self.cond(ln0, lambda: self.flag_wait(s_r, vrf, vfl, 8, pre=True, nap=self.nap))
            if i == 9: self.cond(l0h0, init_wait)
            if i <= 13: hi()
            if i == self.i0: self.cond(l0, lambda: (init_stores(), phi_load()))
            if i == self.i0 + self.iw + 1: self.cond(l0h0, arrive)
            if i == max(4, ncs, self.i0 + self.iw + 1): self.cond(l0, cs_publish)
            if i == 10: self.cond(l1, cs_publish)
            if i == 8: self.cond(l0h0, init_look)
            if i == 11 and self.cpf & 2: self.cond(l01, code_touch)
            if i == 4: self.cond(ln0, lambda: a(self.flag_load(s_r, vrf, vfl)))
            if i + 3 + self.dist <= 15: touchW(i + 3 + self.dist)
            if 5 <= i <= 8:
                if self.tos: self.cond(l0, lambda: touchO(i - 5))
                else: touchO(i - 5)
            if i == 6: self.cond([f's_cmp_eq_u32 s{s_l}, 2'], phi_load)
            if self.si == 10:
                if i in (10, 11): a.extend(gather(SA, v_st, s_a, range(4*(i-10), 4*(i-10)+4)))
            else:
                if i in (10, 11): self.cond(l0, lambda: a.extend(gather(SA, v_st, s_a, range(4*(i-10), 4*(i-10)+4))))
                if self.si <= i < self.si + 8: self.cond(ln0, lambda: a.extend(gather(SA, v_st, s_a, [i - self.si])))
            if i in (self.gi, self.gi + 1): self.cond(l01, lambda: a.extend(gather(SC, v_cs, s_b, range(4*(i-self.gi), 4*(i-self.gi)+4))))
            if i == 12 and self.gi == 120: self.cond(l01, lambda: a.extend(gather(SC, v_cs, s_b, range(8))))
            if i <= 13: lo()
            if 1 <= i <= 12: self.trickle(i - 1)
            if self.tos and 5 <= i <= 12:
                self.cond([f's_cmp_lg_u32 s{s_tob}, -1'], lambda: [a(f's_buffer_load_dwordx2 s[{s_fd}:{s_fd+1}], {srd(sWO)}, s{s_tob} offset:{2048*(4*(i-5)+r)+60}') for r in range(4)])
            if i == 13: self.ll_wait(gather(SA, v_st, s_a, range(8)), list(range(SA, SA+32)), t0, t1, 6, pre=True); total(SA)
            if i == 14: stats_finish()
            if i == 14: self.cond(l01, lambda: self.ll_wait(gather(SC, v_cs, s_b, range(8)), list(range(SC, SC+32)), t0, t1, 7, pre=True))
            if i == 15: self.cond(l01, cs_finish); a('s_waitcnt lgkmcnt(0)')
        a.extend(sx(s_t+1, [(s_l, 8192), (s_m, 256), (s_g, 16), (s_h, 4096)])); a(f's_lshl_b32 s{s_t+1}, s{s_t+1}, {self.ls}')
        a(f'v_and_b32 v{t0}, 3, v1'); a(f'v_lshlrev_b32 v{t0}, {2 + self.ls}, v{t0}'); a(f'buffer_load_dword v{vd}, v{t0}, {srd(sWS)}, s{s_t+1} offen sc1')
        a.extend(sx(s_t, [(s_l, 8192), (s_m, 256), (s_rot2, 16)]))
        a(f's_xor_b32 s{s_t}, s{s_t}, 128'); a.extend(sx(s_r, [(s_t, 32), (s_h, 256)], WS_RF))
        a(f's_bitcmp0_b32 s{s_l}, 0')
        a(f's_cselect_b64 s[{sW}:{sW+1}], s[{pBW}:{pBW+1}], s[{pAW}:{pAW+1}]')
        a(f's_cselect_b64 s[{sWO}:{sWO+1}], s[{pBWO}:{pBWO+1}], s[{pAWO}:{pAWO+1}]')
        touch_setup()
        touchW(0); touchW(1); touchW(2)
        a(f's_bitcmp1_b32 s{s_l}, 0'); a('s_cbranch_scc1 L_hp_B')
        self.reduce_job()
        a('s_branch L_hp_join')
        a.label('L_hp_B')
        a.label('L_hp_join')
        a('s_barrier')
        a(f's_cmp_eq_u32 s{s_l}, 3'); a('s_cbranch_scc1 L_fin')
        self.trickle_rest(1); self.warm_w()
        a(f's_add_u32 s{s_r}, s{s_r}, {4096*32}')
        a(f's_add_u32 s{s_l}, s{s_l}, 1')
        a('s_barrier')
        for st in range(3, 3 + self.dist): touchW(st)
        def chunks():
            for k in range(4):
                a(f's_and_b32 s{s_tw}, s{s_m}, 12'); a(f's_add_u32 s{s_tw}, s{s_tw}, {k}'); a(f's_mul_i32 s{s_tw}, s{s_tw}, {64*6144}')
                a(f'buffer_load_dword v{vd}, v{vtw}, {srd(sW)}, s{s_tw} offen')
        if self.c3 & 1: self.cond([f's_cmp_eq_u32 s{s_l}, 1'], chunks)
        a('s_branch L_hp_layer')

    def compute(self):
        a = self.a
        one, l16, voffR, voffI, a_tok, a_row, a_t32, a_csr, a_csv = 0, 2, 3, 4, 5, 6, 7, 8, 9
        ax, awq = 10, 12
        l4 = 14; vst = 15
        XR = 16
        ACC = 32
        FX = [128, 144]; FW = [160, 184]
        T = 208
        t0, t1, t2, t3 = T, T+1, T+2, T+3
        s_wm, s_wh, s_rslot, s_delta, s_stg, s_ones = 65, 66, 67, 68, 69, 70
        s_o = 71
        s_ob = 75
        s_obase, s_ooff, s_a, s_b, s_c, s_d, s_e, s_fp, s_st, s_fo = range(77, 87)
        a(f'v_lshrrev_b32 v{t0}, 4, v1')
        a(f'v_and_b32 v{t1}, 15, v1')
        a(f'v_and_b32 v{t2}, 1, v{t0}'); a(f'v_lshrrev_b32 v{t3}, 1, v{t0}'); a(f'v_lshl_add_u32 v{t2}, v{t2}, 1, v{t3}')
        a(f'v_lshlrev_b32 v{voffR}, 11, v{t1}'); a(f'v_lshl_add_u32 v{voffR}, v{t2}, 4, v{voffR}')
        def x0():
            a = self.a
            a.extend(sx(s_t, [(s_m, 1 << 18), (s_wave, 1 << 16), (s_g, 128)])); a(f's_add_u32 s{s_t+1}, s{s_t}, 32768')
            if not self.st0 & 16 and self.xd is None and not self.d0: self.pointers()
            if self.crow & 1:
                a.extend(sx(s_t+2, [(2, 4*6144), (s_wave, 6144)])); a(f'v_lshlrev_b32 v{T+8}, 7, v1'); a('s_mov_b32 exec_hi, 0xffff')
                a(f'buffer_load_dword v{T+9}, v{T+8}, {srd(sW)}, s{s_t+2} offen'); a('s_mov_b32 exec_hi, -1')
            if self.crow & 2:
                a.extend(sx(s_t+2, [(2, 4*4096), (s_wave, 4096)])); a(f'v_lshlrev_b32 v{T+8}, 7, v1'); a('s_mov_b32 exec_hi, 0')
                a(f'buffer_load_dword v{T+9}, v{T+8}, {srd(sX)}, s{s_t+2} offen'); a('s_mov_b32 exec_hi, -1')
            if self.xl:
                a(f'v_lshrrev_b32 v{T+8}, 3, v1'); a(f'v_and_b32 v{T+9}, 7, v1'); a(f'v_lshlrev_b32 v{T+9}, 4, v{T+9}'); a(f'v_lshl_add_u32 v{T+8}, v{T+8}, 11, v{T+9}')
                a.extend(sx(s_t+1, [(s_wave, 4096)], L_SPARE)); a(f's_mov_b32 m0, s{s_t+1}')
                for j in range(4):
                    if j: a(f's_add_u32 s{s_t}, s{s_t}, {16384 - 1024}')
                    a(f'buffer_load_dwordx4 v{T+8}, {srd(sX)}, s{s_t} offen offset:{1024*j} lds')
                a(f'v_lshrrev_b32 v{T+9}, 4, v{voffR}'); a(f'v_and_b32 v{T+9}, 0x780, v{T+9}'); a(f'v_and_or_b32 v{T+9}, v{voffR}, 48, v{T+9}'); a(f'v_add_u32 v{T+9}, s{s_t+1}, v{T+9}')
                return
            for tb in range(2):
                for e in range(2): a(f'buffer_load_dwordx4 {vr(XR+8*tb+4*e,4)}, v{voffR}, {srd(sX)}, s{s_t+tb} offen offset:{64*e}')
        if self.d0:
            self.pointers(); a.extend(sx(s_t, [(s_wave, 4096)], XOFF)); a(f'v_lshlrev_b32 v{T+9}, 7, v{t1}'); a(f'v_lshl_add_u32 v{T+9}, v{t0}, 4, v{T+9}'); a(f'v_add_u32 v{T+9}, s{s_t}, v{T+9}')
        elif self.st0 & 16 or self.xd is not None: self.pointers()
        elif not self.st0 & 8: x0()
        a(f's_lshr_b32 s{s_wm}, s{s_wave}, 1'); a(f's_and_b32 s{s_wh}, s{s_wave}, 1')
        a(f'v_mov_b32 v{one}, 1')
        a(f'v_lshl_add_u32 v{voffI}, v{t2}, 4, v{t1}'); a(f'v_lshlrev_b32 v{voffI}, 4, v{voffI}'); a(f'v_mov_b32 v{vst}, v{voffI}')
        a(f'v_lshlrev_b32 v{l16}, 4, v1'); a(f'v_lshlrev_b32 v{l4}, 2, v1')
        a.extend(sx(s_t, [(s_wm, 256)], P_NM))
        a(f'v_lshl_add_u32 v{a_tok}, v{t1}, 2, s{s_t}')
        a(f'v_lshl_add_u32 v{a_row}, v{t0}, 4, s{s_t}')
        a(f'v_and_b32 v{t3}, 31, v1'); a(f'v_lshl_add_u32 v{a_t32}, v{t3}, 2, s{s_t}')
        a.extend(sx(s_t, [(s_wh, 128)], P_CS))
        a(f'v_lshl_add_u32 v{a_csr}, v{t0}, 4, s{s_t}')
        a(f'v_lshl_add_u32 v{a_csv}, v{t1}, 2, s{s_t}')
        a(f's_mov_b32 s{s_stg}, {STG}'); a(f's_mov_b32 s{s_ones}, 0x3f803f80')
        a(f'v_lshrrev_b32 v{t2}, 1, v{t1}'); a(f'v_xor_b32 v{t2}, v{t2}, v{t0}')
        a.extend(sx(s_t, [(s_wm, 8192)], XOFF)); a(f'v_lshl_add_u32 v{t1}, v{t1}, 7, s{s_t}')
        for s in range(2):
            a(f'v_xor_b32 v{t3}, {4*s}, v{t2}'); a(f'v_lshl_add_u32 v{ax+s}, v{t3}, 4, v{t1}')
        a.extend(sx(s_st, [(s_m, 16384), (s_g, 1024), (s_wave, 256)], WS_ST))

        q = 216
        def stats():
            S = []
            for k in range(8):
                for tb in range(2):
                    r = XR + 8*tb + k
                    S += [f'v_dot2_f32_bf16 v{q+2*tb}, s{s_ones}, v{r}, ' + (f'v{q+2*tb}' if k else '0'),
                          f'v_dot2_f32_bf16 v{q+2*tb+1}, v{r}, v{r}, ' + (f'v{q+2*tb+1}' if k else '0')]
            return S + [sw32(q, q+2), sw32(q+1, q+3), pk('add', q, q, q+2), sw16(q, q+1), f'v_add_f32 v{q}, v{q}, v{q+1}']
        st_store = f'buffer_store_dword v{q}, v{l4}, {srd(sWS)}, s{s_st} offen sc1'
        def acc(b, n): return ACC + 4*(6*b + n)
        A2 = 208
        def reads(s, st, slot=0):
            x, w, o = (ax, awq, STG*slot) if slot < 2 else (A2, A2+2, 0)
            X = [f'ds_read_b128 {vr(FX[st]+4*b,4)}, v{x+s} offset:{o+2048*b}' for b in range(4)]
            W = [[f'ds_read_b64_tr_b16 {vr(FW[st]+4*n+2*t,2)}, v{w+(n&1)} offset:{o+(n>>1)*8192+(32*s+4*t)*128}' for t in range(2)] for n in range(6)]
            L = [X[0]] + W[0] + X[1:]
            for n in range(1, 6): L += W[n]
            return L
        def mfma(st, b, n, zero=False):
            C = None if zero else acc(b, n)
            return mf16(acc(b, n), FW[st]+4*n, FX[st]+4*b, C) if n < 4 else mf16(acc(b, n), FX[st]+4*b, FW[st]+4*n, C)
        def mfmas(st, zero=False):
            return [mfma(st, b, n, zero) for n in range(6) for b in (range(4) if not (self.snake and n % 2) else range(3, -1, -1))]
        env = dict(locals())
        a.extend(self.w_frag_addr(awq, s_wh, 0, t0, t1, t2))
        self.epiA(env, 'v')
        if self.st0 & 8: x0()
        a(f'v_mov_b32 v{q}, -1'); a(st_store)
        a(f's_sub_u32 s{s_st}, s{s_st}, 262144')
        a.label('L_first')
        a('s_barrier')
        self.stamp(12)
        if self.st0 & 16: self.cond([f's_cmp_eq_u32 s{s_l}, 0'], x0)
        S = autowait(reads(0, 0) + interleave(mfmas(0, True), reads(1, 1), per=[0]*4 + [1]*20))
        cut = [k for k, t in enumerate(S) if t.startswith('v_mfma')][self.fpos-1] + 1
        a.extend(S[:cut])
        a('s_waitcnt vmcnt(0)')
        self.stamp(11)
        self.cond([f's_cmp_lg_u32 s{s_l}, 0'], lambda: self.flag_set(s_fo, one))
        a.extend(S[cut:])
        if self.xl or self.d0: self.cond([f's_cmp_eq_u32 s{s_l}, 0'], lambda: [a(f'ds_read_b128 {vr(XR+8*tb+4*e,4)}, v{T+9} offset:{2048*tb+64*e}') for tb in range(2) for e in range(2)])
        a('s_waitcnt lgkmcnt(0)')
        S = [f'v_add_u32 v{A2+k}, {2*STG}, v{ax+k}' for k in range(4)] + [f's_mov_b32 s{s_i}, 0']
        assert awq == ax + 2
        S += sx(s_t, [(s_l, 1 << 22), (s_m, 1 << 18)], WS_OI)
        S += sx(s_obase, [(s_wave, 1 << 16), (s_t, 1)]) + [f's_lshl_b32 s{s_ooff}, s{s_rot2}, 11']
        S += [f's_add_u32 s{s_ob}, s{s_obase}, s{s_ooff}', f's_add_u32 s{s_ob+1}, s{s_ob}, 32768']
        S += sx(s_a, [(s_wm, 1 << 17), (s_g, 2048), (s_wh, 1024), (s_t, 1)])
        S += sx(s_o, [(s_g, 16384), (s_wave, 4096), (s_t, 1)], WS_XI - WS_OI) + [f's_add_u32 s{s_o+k}, s{s_o}, {1024*k}' for k in range(1, 4)]
        S += sx(s_fp, [(s_l, 8192), (s_m, 256)]) + sx(s_fo, [(s_g, 16), (s_wave, 4), (s_fp, 1)]) + sx(s_fo+1, [(s_fo, 32)], WS_RF) + [f's_lshl_b32 s{s_fo}, s{s_fo}, {self.ls}']
        S += sx(s_t, [(s_wm, 8), (s_rot2, 16)]) + [f's_add_u32 s{s_fp}, s{s_fp}, s{s_t}']
        a.extend(interleave(mfmas(1), S, per=[2]*20 + [3]*4))
        if self.lfl == 2: self.cond([f's_cmp_lg_u32 s{s_l}, 0'], lambda: (a(f's_sub_u32 s{s_t+1}, s{s_fo+1}, {4096*32}'), self.flag_set(s_t, one, 2)))
        a(f's_bitcmp1_b32 s{s_l}, 0'); a('s_cbranch_scc1 L_preB')
        self.epiA(env, 's')
        a('s_branch L_pre_done')
        a.label('L_preB')
        self.epiB(env, 's')
        def last():
            a(f's_mov_b64 s[{sOUT}:{sOUT+1}], s[{pOUT}:{pOUT+1}]'); a(f's_mov_b32 s{sOUT+2}, {2048*1024*2}')
            a.extend(sx(s_o, [(s_m, 1 << 18), (s_wave, 1 << 16), (s_g, 128)]))
            a(f's_add_u32 s{s_o+1}, s{s_o}, 64'); a(f's_add_u32 s{s_o+2}, s{s_o}, 32768'); a(f's_add_u32 s{s_o+3}, s{s_o}, {32768+64}')
            a(f'v_mov_b32 v{vst}, v{voffR}')
        self.cond([f's_cmp_eq_u32 s{s_l}, 3'], last)
        a.label('L_pre_done')
        a(f's_add_u32 s{s_st}, s{s_st}, 262144')
        if self.d0: a(f's_cmp_eq_u32 s{s_l}, 0'); a(f's_cselect_b32 s{s_rslot}, {self.xi}, 1')
        if self.xd is not None: a(f's_cmp_eq_u32 s{s_l}, 0'); a(f's_cselect_b32 s{s_rslot}, 6, 0'); a('s_cbranch_scc1 L_go')
        a.extend(stats()); a(st_store)
        a.label('L_go')
        R1 = reads(0, 0, 1); isX = lambda t: 'b128' in t
        if self.spec & 4:
            a(f's_cmp_eq_u32 s{s_l}, 0'); a('s_cbranch_scc1 L_go0')
            a.extend([t for t in R1 if not isX(t)])
            a('s_barrier')
            self.stamp(1)
            a.extend([t for t in R1 if isX(t)])
            a('s_branch L_q1')
            a.label('L_go0')
        a('s_barrier')
        self.stamp(1)
        a.extend(R1)
        a('s_branch L_q1')
        nb = self.bpos + 1
        def half0(slot):
            if self.prof >= 5:
                a('s_memtime s[92:93]' if self.prof == 5 else 's_memrealtime s[92:93]'); a(f's_lshl_b32 m0, s{s_l}, 4'); a(f's_add_u32 m0, m0, s{s_i}'); a(f's_add_u32 m0, m0, {(slot+2)%3+1}')
            if self.probe and self.probe[1][1] >= 20 and (self.probe[1][1] - 20) % 3 == slot:
                self.cond([f's_cmp_eq_u32 s{s_i}, {(self.probe[1][1] - 21) // 3 * 3}'], lambda: self.stamp(self.probe[1][1]))
            if self.d0 and slot == 1:
                a(f's_cmp_eq_u32 s{s_i}, s{s_rslot}'); a('s_cbranch_scc1 L_x0'); a.label('L_x0_back')
                self.aside(lambda: (self.a.label('L_x0'), x0(), self.a('s_branch L_x0_back')))
            if slot == self.xd:
                a(f's_cmp_lt_u32 s{s_i}, s{s_rslot}'); a('s_cbranch_scc1 L_x0'); a.label('L_x0_back')
                def ev():
                    a = self.a
                    a.label('L_x0'); a(f's_cmp_eq_u32 s{s_i}, 0'); a('s_cbranch_scc0 L_x0_stats')
                    x0(); a('s_branch L_x0_back')
                    a.label('L_x0_stats'); a('s_waitcnt vmcnt(0)'); a.extend(stats()); a(st_store); a('s_branch L_x0_back')
                self.aside(ev)
            a('s_waitcnt lgkmcnt(0)')
            F = reads(1, 1, slot)
            if self.prof >= 5: F = ['v_writelane_b32 v255, s92, m0'] + F
            if slot == 0: F += [f's_add_u32 s{s_i}, s{s_i}, 3', f's_cmp_lt_u32 s{s_i}, 15']
            a.extend(interleave(mfmas(0), F, per=list(map(int, self.pat)) if self.pat else [0]*self.r0 + [1]*24))
            a('s_waitcnt lgkmcnt(0)')
            a.extend(mfmas(1)[:nb]); a('s_barrier')
        def half1(slot):
            R = reads(0, 0, (slot+1) % 3)
            a(R[0]); a.extend(interleave(mfmas(1)[nb:], R[1:], per=list(map(int, self.pat1)) if self.pat1 else [1]*24))
        a('.p2align 6')
        a.label('L_q')
        half1(0)
        a.label('L_q1')
        half0(1); half1(1); half0(2); half1(2); half0(0)
        a('s_cbranch_scc1 L_q')
        a.label('L_tail')
        self.stamp(2)
        a(f's_bitcmp1_b32 s{s_l}, 0'); a('s_cbranch_scc1 L_epiB')
        self.epiA(env, False)
        a('s_branch L_ophase')
        a.label('L_epiB')
        self.epiB(env, False)
        a.label('L_ophase')
        PD = self.pd; NR = PD + 1
        OA, OW, awo, vf, RING = 128, [160, 176], 192, 196, 32
        assert RING + 8*NR <= 128
        u0, u1, u2, vrf, vot, vxw = 197, 198, 199, 204, 205, 206
        a(f'v_mov_b32 v{u0}, {P_MODE}'); a(f'ds_read_b32 v{u0}, v{u0}')
        def oacc(tb, nb): return OA + 16*tb + 4*nb
        for k in range(4):
            a(sw16(XR+4*k, XR+4*k+2)); a(sw16(XR+4*k+1, XR+4*k+3))
        a('s_waitcnt lgkmcnt(0)'); a(f'v_readfirstlane_b32 s{s_fast}, v{u0}')
        a(f's_xor_b32 s{s_t}, s{s_fp}, 128'); a.extend(sx(s_e, [(s_t, 32)], WS_RF))
        a.extend(self.flag_addr(vrf, u1, None, remote=True))
        a.extend(self.flag_addr(vf, u1, s_fp))
        s_fq = s_d
        a(f's_cmp_eq_u32 s{s_fast}, 1'); a(f's_cselect_b32 s{s_fq}, s{s_fp}, {BIG}')
        for r in range(16):
            a(f'v_lshlrev_b32 v{OA+2*r}, 16, v{XR+r}'); a(f'v_and_b32 v{OA+2*r+1}, 0xffff0000, v{XR+r}')
        def oreads(h):
            return [f'ds_read_b64_tr_b16 {vr(OW[h&1]+4*nb+2*t,2)}, v{awo+nb} offset:{(h&15)*4096+512*t}' for nb in range(4) for t in range(2)]
        a('s_waitcnt vmcnt(0)')
        self.stamp(8)
        self.flag_set(s_fo, one, 1)
        a(self.flag_load(s_fq, vf, u0, self.pf))
        self.flag_set(s_fo, one, 2)
        a.extend(self.w_frag_addr(awo, None, L_WO, vxw, u1, u2, nb_list=(0, 1, 2, 3)))
        if not self.bw: a('s_barrier'); a.extend(oreads(0))
        def next_consts():
            a(f's_cmp_eq_u32 s{s_wh}, 0'); a('s_cselect_b64 vcc, -1, 0')
            for k in range(2): a(f'v_cndmask_b32 v{awq+k}, v{awo+2+k}, v{awo+k}, vcc')
            for k in range(2): a(f'v_subrev_u32 v{awq+k}, {L_WO}, v{awq+k}')
            a.extend(sx(s_t, [(s_wm, 8192)], XOFF)); a(f'v_add_u32 v{ax}, s{s_t}, v{l16}'); a(f'v_add_u32 v{ax+1}, 1024, v{ax}')
            a.extend(sx(s_t, [(s_wave, 4096)], XOFF)); a(f'v_add_u32 v{vxw}, s{s_t}, v{voffI}')
            a(f's_bitcmp1_b32 s{s_l}, 0'); a('s_cbranch_scc1 L_nextA')
            self.epiB(env, 'v')
            a('s_branch L_next_done')
            a.label('L_nextA')
            self.cond([f's_cmp_lg_u32 s{s_l}, 3'], lambda: self.epiA(env, 'v'))
            a.label('L_next_done')
        if not self.vpos: next_consts()
        self.flag_wait(s_fp, vf, u0, 4, pre='s_waitcnt vmcnt(1) lgkmcnt(0)', own=True)
        self.stamp(9)
        def oload(h, tb):
            L = [f'buffer_load_dwordx4 {vr(RING+8*(h%NR)+4*tb,4)}, v{l16}, {srd(sWS)}, s{s_ob+tb} offen offset:{1024*(h&3)} sc1']
            if h & 3 == 3 and h < 31:
                if tb == 0: L += [f's_add_u32 s{s_ooff}, s{s_ooff}, 4096', f's_and_b32 s{s_ooff}, s{s_ooff}, 0x7fff', f's_add_u32 s{s_ob}, s{s_obase}, s{s_ooff}']
                else: L += [f's_add_u32 s{s_ob+1}, s{s_ob}, 32768']
            return L
        S = []
        for h in range(PD):
            S += oload(h, 0) + oload(h, 1)
            if self.bw and h == 3: S += ['s_barrier'] + oreads(0)
        S.append('s_nop 2')
        hc = self.hc or 15 - PD
        DL = self.dl; assert DL <= PD and DL % 2 == 0
        UN = [(p, nb) for p in range(32 - DL) for nb in range(4)] + [(p, nb) for e in range(2) for p in range(32 - DL, 32) for nb in (2*e, 2*e+1)]
        def out(k4):
            return [cvt(XR+4*k4+k, OA+8*k4+2*k, OA+8*k4+2*k+1) for k in (0, 2, 1, 3)], [sw16(XR+4*k4, XR+4*k4+2), sw16(XR+4*k4+1, XR+4*k4+3)], [
                    f'buffer_store_dwordx4 {vr(XR+4*k4,4)}, v{vst}, {srd(sOUT)}, s{s_o+k4} offen sc1', f'ds_write_b128 v{vxw}, {vr(XR+4*k4,4)} offset:{1024*k4}']
        early = (out(0)[0] + out(2)[0][:2] + out(0)[1] + out(2)[0][2:] + out(0)[2][:1] + out(2)[1] + out(0)[2][1:] + out(2)[2]) if DL else []
        for h in range(32):
            if h == 15: S += [f'v_add_u32 v{awo+nb}, 0x10000, v{awo+nb}' for nb in range(4)]
            for k in range(8):
                u, tb = 4*h + k//2, k % 2
                p, nb = UN[u]
                S.append(mf16(oacc(tb, nb), OW[0]+4*(u%8), RING+8*(p%NR)+4*tb, oacc(tb, nb)))
                if u + 4 < 128:
                    p2, nb2 = UN[u+4]
                    S.append(f'ds_read_b64_tr_b16 {vr(OW[0]+4*((u+4)%8)+2*tb,2)}, v{awo+nb2} offset:{(p2&15)*4096+512*tb}')
                for j in range(2):
                    if k == self.opos[j] and h + PD < 32 and not (h + PD >= 16 and h <= hc): S += oload(h+PD, j)
                if 2*u + tb >= 256 - 4*DL + 2:
                    n = 2
                    S += early[:n]; early = early[n:]
            if h == self.hq: S.append(self.flag_load(s_e, vrf, u1))
            if h == hc:
                S += [f'v_cmp_eq_u32 vcc, 0, v{u1}', 's_nop 1']
                for p in range(16, hc + PD + 1): S += oload(p, 0) + oload(p, 1)
            if self.fine == 4 and h in self.oh: S.append(f's_nop {4 + self.oh.index(h)}')
            if h == self.bm: S.append('s_barrier')
        S = autowait(S + early); cut0 = S.index('s_nop 2'); cut = S.index('s_nop 1'); S.pop(cut)
        a.extend(S[:cut0])
        if self.vpos: next_consts()
        def emit(L):
            for t in L:
                if t in ('s_nop 4', 's_nop 5'): self.stamp(13 + int(t[-1]) - 4)
                else: a(t)
        emit(S[cut0+1:cut])
        self.flag_wait(s_e, vrf, u1, 9, pre=True, nap=self.nap, checked=True)
        emit(S[cut:])
        self.stamp(10)
        self.sw(sum((sum(out(k4), []) for k4 in ((1, 3) if DL else (0, 2, 1, 3))), []), crit=lambda t: t.startswith('buffer'))
        a(f's_cmp_eq_u32 s{s_l}, 3'); a('s_cbranch_scc1 L_fin')
        a(f's_add_u32 s{s_fo}, s{s_fo}, {4096 << self.ls}'); a(f's_add_u32 s{s_fo+1}, s{s_fo+1}, {4096*32}')
        a(f's_add_u32 s{s_l}, s{s_l}, 1')
        a('s_waitcnt lgkmcnt(0)')
        a('s_branch L_first')

    def epiA(self, E, pre):
        a = self.a
        acc = E['acc']; a_tok, a_row, a_t32, a_csr, a_csv, l16, l4 = (E[k] for k in ('a_tok', 'a_row', 'a_t32', 'a_csr', 'a_csv', 'l16', 'l4'))
        s_wm, s_wh, s_a, s_b, s_c, s_d, s_e = (E[k] for k in ('s_wm', 's_wh', 's_a', 's_b', 's_c', 's_d', 's_e'))
        PK = [128, 144]; EP, KV0, ZA, NR = 160, 176, 192, 208
        wphi, nml, c32, csv = 224, 232, 236, 238
        SEL = 240; ZK, ZS = ZA, ZA + 8
        a_phi, a_w, a_r0, a_r1, a_z, x_w, x_r = range(248, 255)
        csk = EP; csq = NR
        nmr = [KV0, EP+8, NR, NR+8]
        if pre == 'v':
            u0, u1, u2, u3, u4 = range(208, 213)
            S = [f'v_lshrrev_b32 v{u0}, 5, v1', f'v_bfe_u32 v{u1}, v1, 2, 2', f'v_lshl_add_u32 v{u1}, v{u0}, 3, v{u1}',
                 f'v_bfe_u32 v{u2}, v1, 4, 1', f'v_and_b32 v{u3}, 3, v1', f'v_lshlrev_b32 v{u4}, 3, v{u3}', f'v_lshl_add_u32 v{u2}, v{u2}, 5, v{u4}']
            S += sx(s_t, [(s_wh, 2048)], P_PHI) + [f'v_lshl_add_u32 v{u4}, v{u1}, 6, v{u2}', f'v_add_u32 v{a_phi}, s{s_t}, v{u4}']
            S += [f's_mul_i32 s{s_t+2}, s{s_wave}, {SCR}',
                  f'v_mul_u32_u24 v{u1}, 136, v{u1}', f'v_add3_u32 v{u1}, v{u1}, v{u2}, s{s_t+2}',
                  f's_lshl_b32 s{s_t+1}, s{s_wm}, 6', f'v_add_u32 v{a_r0}, s{s_t+1}, v{u1}',
                  f's_xor_b32 s{s_t+3}, s{s_t+1}, 64', f'v_add_u32 v{a_r1}, s{s_t+3}, v{u1}',
                  f'v_and_b32 v{u4}, 31, v1', f'v_mul_u32_u24 v{u4}, 136, v{u4}', f'v_lshl_add_u32 v{u4}, v{u0}, 3, v{u4}', f'v_add_u32 v{a_w}, s{s_t+2}, v{u4}',
                  f'v_add_u32 v{x_w}, s{s_t+2}, v{l16}', f's_xor_b32 s{s_t}, s{s_wave}, 2', f's_mul_i32 s{s_t}, s{s_t}, {SCR}', f'v_add_u32 v{x_r}, s{s_t}, v{l16}']
            S += [f'v_lshrrev_b32 v{u4}, 4, v1', f'v_xor_b32 v{u4}, v{u4}, v1', f'v_and_b32 v{u4}, 1, v{u4}', f'v_cmp_eq_u32 vcc, 0, v{u4}', f'v_mov_b32 v{u4}, 0x3f803f80',
                  f'v_cndmask_b32 v{SEL}, 0, v{u4}, vcc', f'v_mov_b32 v{SEL+1}, v{SEL}', f'v_mov_b64 {vr(SEL+2,2)}, {vr(SEL,2)}']
            S += [f'v_and_b32 v{u0}, 18, v1', f'v_lshlrev_b32 v{u0}, 1, v{u0}', f'v_and_or_b32 v{u0}, v1, 8, v{u0}', f'v_and_b32 v{u1}, 4, v1',
                  f'v_lshl_or_b32 v{u0}, v{u1}, 2, v{u0}', f'v_and_b32 v{u1}, 33, v1', f'v_lshl_or_b32 v{a_z}, v{u1}, 25, v{u0}',
                  f'v_lshl_or_b32 v{a_z}, v{u1}, 30, v{a_z}']
            a.extend(S)
            return
        if pre == 's':
            S = sx(s_t, [(s_l, 16), (s_g, 2), (s_wh, 1)])
            S += sx(s_d, [(s_t, 65536), (s_wm, 32768), (s_m, 2048)], WS_KVP) + sx(s_e, [(s_t, 2048), (s_m, 128), (s_wm, 64)], WS_ZP)
            S += sx(s_b, [(s_t, 128)], WS_ZF) + sx(s_c, [(s_t, 4096)], WS_KVF)
            if self.hu is not None: S += sx(E['s_delta'], [(s_l, 16384), (s_g, 2048), (s_m, 128), (s_wave, BIG >> 1)], WS_HU)
            a.extend(S)
            return
        S = []
        for b in range(4): S.append(f'ds_read_b32 v{nml+b}, v{a_tok} offset:{64*b}')
        for nb in range(2): S.append(f'ds_read_b128 {vr(csk+4*nb,4)}, v{a_csr} offset:{256+64*nb}')
        for u in range(2):
            for t in range(2): S.append(f'ds_read_b64_tr_b16 {vr(wphi+4*u+2*t,2)}, v{a_phi} offset:{(16*t+4*u)*64}')
        for nb in range(2): S.append(f'ds_read_b32 v{csv+nb}, v{a_csv} offset:{512+64*nb}')
        for b in range(4):
            S.append(f'ds_read_b128 {vr(nmr[b],4)}, v{a_row} offset:{64*b}')
            S.append(f'ds_read_b128 {vr(nmr[b]+4,4)}, v{a_row} offset:{512+64*b}')
            if b == 0:
                for Tt in range(2): S.append(f'ds_read_b32 v{c32+Tt}, v{a_t32} offset:{512+128*Tt}')
        def qk_prep(n0, cs):
            L = []
            for b in range(4):
                for k in range(4): L.append(pk('fma', acc(b, n0)+2*k, cs+2*k, ('b', nml+b), acc(b, n0)+2*k))
                for k in range(4): L.append(cvt(acc(b, n0)+k, acc(b, n0)+2*k, acc(b, n0)+2*k+1))
            for Tt in range(2):
                for k in range(4): L.append(sw16(acc(2*Tt, n0)+k, acc(2*Tt+1, n0)+k))
                L += [mf32(PK[Tt], wphi, acc(2*Tt, n0)), mf32(PK[Tt], wphi+4, acc(2*Tt+1, n0), PK[Tt])]
            return L
        def vprep(b):
            r = acc(b, 4); P, C = [], []
            for nb in range(2):
                for p in range(2): P.append(pk('fma', r+4*nb+2*p, nmr[b]+2*p, ('b', csv+nb), r+4*nb+2*p))
            for nb in range(2):
                for p in range(2): P.append(pk('mul', r+4*nb+2*p, r+4*nb+2*p, nmr[b]+4+2*p))
            for k in range(4): C.append(cvt(r+k, r+2*k, r+2*k+1))
            return P, C, [sw16(r, r+2), sw16(r+1, r+3)]
        def softmax(Tt):
            x = PK[Tt]; c = c32 + Tt
            ta, tb = ((acc(2, 3), acc(3, 3)), (acc(2, 2), acc(3, 2)))[Tt]
            mx, mn, bp, bm = ta, ta+1, tb, tb+1
            L = [f'v_max3_f32 v{mx}, v{x}, v{x+1}, v{x+2}', f'v_max3_f32 v{mn}, -v{x}, -v{x+1}, -v{x+2}']
            for k in range(3, 15, 2):
                L += [f'v_max3_f32 v{mx}, v{mx}, v{x+k}, v{x+k+1}', f'v_max3_f32 v{mn}, v{mn}, -v{x+k}, -v{x+k+1}']
            L += [f'v_max_f32 v{mx}, v{mx}, v{x+15}', f'v_max_f32 v{mn}, v{mn}, -v{x+15}']
            L += [sw32(mx, mn), f'v_max_f32 v{mx}, v{mx}, v{mn}', f'v_mul_f32 v{bm}, -v{mx}, v{c}', f'v_mov_b32 v{bp}, v{bm}', sw32(bp, bm)]
            parts = [L]; L = []
            for k in range(0, 16, 2): L.append(pk('fma', EP+k, x+k, ('b', c), ('b', bp)))
            for k in range(0, 16, 2): L.append(pk('fma', x+k, x+k, ('b', c), ('b', bm), neg=[1, 0, 0]))
            parts.append(L); L = []
            for k in range(16): L.append(f'v_exp_f32 v{EP+k}, v{EP+k}')
            for k in range(16): L.append(f'v_exp_f32 v{x+k}, v{x+k}')
            parts.append(L); L = []
            sp, sm = ta, ta+2
            r1, r2 = tb+2, tb+3
            L += [pk('add', sp, EP, EP+2), pk('add', sm, x, x+2)]
            for k in range(4, 16, 2): L += [pk('add', sp, sp, EP+k), pk('add', sm, sm, x+k)]
            L += [f'v_add_f32 v{sp}, v{sp}, v{sp+1}', f'v_add_f32 v{sm}, v{sm}, v{sm+1}', sw32(sp, sm), f'v_add_f32 v{sp}, v{sp}, v{sm}',
                  f'v_rcp_f32 v{r2}, v{sp}', f'v_mov_b32 v{r1}, v{r2}', sw32(r1, r2)]
            for k in range(0, 16, 2): L.append(pk('mul', x+k, x+k, ('b', r2)))
            for k in range(8): L.append(cvt(x+k, x+2*k, x+2*k+1))
            for k in range(0, 16, 2): L.append(pk('mul', EP+k, EP+k, ('b', r1)))
            for k in range(8): L.append(cvt(x+8+k, EP+2*k, EP+2*k+1))
            return parts + [L]
        FR = [[acc(0, 2), acc(0, 3)], [acc(1, 2), acc(1, 3)]]
        def to_lds(x):
            return [f'ds_write_b64 v{a_w}, {vr(x+8*(1-sg)+2*j,2)} offset:{64*sg+16*j}' for sg in (1, 0) for j in range(4)]
        def frags():
            return [f'ds_read_b64_tr_b16 {vr(FR[k][u]+2*tt,2)}, v{(a_r0, a_r1)[k]} offset:{(16*u+4*tt)*136}' for k in (1, 0) for u in range(2) for tt in range(2)]
        KV1 = PK[0]
        def kvm(Tt):
            L = []
            for k, K, Z in ((1, KV1, ZS), (0, KV0, ZK)):
                for u in range(2): L.append(mf32(K, FR[k][u], acc(2*Tt+u, 4), None if (Tt == 0 and u == 0) else K))
                for u in range(2): L.append(mf16(Z, SEL, FR[k][u], None if (Tt == 0 and u == 0) else Z))
            return L
        sc = sched if self.sch else (lambda L: L)
        K = qk_prep(2, csk); isM = lambda t: t.startswith('v_mfma')
        VP_ = [vprep(b) for b in range(4)]
        sm0, sm1 = softmax(0), softmax(1)
        mfma = E['mfma']
        TM = [mfma(1, b, n) for b in range(4) for n in (2, 3)] + [mfma(1, b, n) for b in range(4) for n in (4, 5)] + [mfma(1, b, 1) for b in range(4)] + [mfma(1, b, 0) for b in range(self.bpos+1, 4)]
        K01 = []
        for b in range(2):
            K01 += [f'v_fmac_f32 v{acc(b,2)+k}, v{csk+k}, v{nml+b}' for k in range(8)] + K[8*b+4:8*b+8]
        S = interleave(TM, S + K01, per=[2]*24)
        S += sc([t for t in K[16:] if not isM(t)] + [f'v_mul_f32 v{c32+Tt}, {f2u(LOG2E)}, v{c32+Tt}' for Tt in range(2)] + VP_[0][0] + VP_[1][0])
        def cutA(n, k):
            nonlocal S
            if self.fine == n: self.aw(S + ['s_waitcnt lgkmcnt(0)']); S = []; self.stamp(k)
        cutA(1, 12)
        S += sc([t for t in K if isM(t)] + VP_[0][1] + VP_[1][1] + VP_[0][2] + VP_[1][2] + sm0[0])
        cutA(1, 13)
        def mixed(sm, extra):
            F, X, A = sm[1], sm[2], sm[3][:14]
            A = A[0::2] + A[1::2]; extra = list(extra); L = F[:2]
            for k in range(16):
                L += [X[2*k]] + F[k+2:k+3] + [X[2*k+1]]
                j = k - 2 if k < 9 else k - 3
                if k >= 2 and k != 9: L.append(A[j])
                if extra: L.append(extra.pop(0))
            return L + extra + A[13:]
        if self.mix: S += mixed(sm0, sm1[0][:16]) + sc(sm1[0][16:] + sm0[3][14:] + to_lds(PK[0]) + frags())
        else: S += sc(sm0[1] + sm0[2] + sm1[0] + sm0[3] + to_lds(PK[0]) + frags())
        cutA(1, 14)
        if self.mix: S += sm1[1][:2] + interleave(sm1[2][:14], sm1[1][2:], per=[1]*14) + interleave(kvm(0), sm1[2][14:], per=[3, 3, 1, 1, 3, 3, 1, 3])
        else: S += sm1[1] + interleave(kvm(0), sm1[2], per=[3, 3, 1, 1, 3, 3, 1, 1])
        cutA(2, 12)
        S += sc(sm1[3] + to_lds(PK[1]) + frags() + sum((VP_[b][k] for k in range(3) for b in (2, 3)), []), lambda t: t.startswith('ds_read'))
        cutA(2, 13)
        M = kvm(1)
        X = [f'ds_write_b128 v{x_w}, {vr(KV1+4*k,4)} offset:{1024*k}' for k in range(4)]
        hi16 = ['s_mov_b32 vcc_lo, 0xffff0000', 's_mov_b32 vcc_hi, 0xffff0000']
        S += M[0:2] + hi16 + M[2:6] + X + [f'v_cndmask_b32 v{ZS}, v{ZS}, v{ZS+1}, vcc', f'ds_write_b32 v{x_w}, v{ZS} offset:4096'] + M[6:8]
        cutA(2, 14)
        if self.hu is not None: S.insert(len(S) - self.hu, f'buffer_store_dword v0, off, {srd(sWS)}, s{E["s_delta"]} sc1')
        self.aw(S); S = []
        S += ['s_waitcnt lgkmcnt(0)', 's_barrier']
        S.append(f'ds_read_b32 v{csv}, v{x_r} offset:4096')
        for k in range(4): S.append(f'ds_read_b128 {vr(EP+4*k,4)}, v{x_r} offset:{1024*k}')
        add = [pk('add', KV0+2*k, KV0+2*k, EP+2*k) for k in range(8)]
        cv = [cvt(KV0+8*(k//4)+k%4, KV0+2*k, KV0+2*k+1) for k in range(8)]
        st = [f'buffer_store_dwordx4 {vr(KV0+8*u,4)}, v{l16}, {srd(sWS)}, s{s_d} offen offset:{1024*u} sc1' for u in range(2)]
        S += [f'v_cndmask_b32 v{ZK}, v{ZK}, v{ZK+1}, vcc', f'v_add_f32 v{ZK}, v{ZK}, v{csv}'] + add[:2]
        S += [f'v_mov_b32_dpp v{ZK+3}, v{ZK} quad_perm:[1,0,3,2] row_mask:0xf bank_mask:0xf'] + add[2:4] + cv[:4] + st[:1] + [cvt(ZK, ZK, ZK+3)]
        S += add[4:] + [f'buffer_store_dword v{ZK}, v{a_z}, {srd(sWS)}, s{s_e} offen sc1'] + cv[4:] + st[1:]
        self.aw(S); S = []
        if not self.yw: a('s_barrier')
        self.stamp(3)
        u3, u4 = ZA + 4, ZA + 5
        for nb in range(2): S.append(f'ds_read_b128 {vr(csq+4*nb,4)}, v{a_csr} offset:{64*nb}')
        S += qk_prep(0, csq) + sum(softmax(0) + softmax(1), [])
        S += [f'v_lshrrev_b32 v{u3}, 5, v1', f'v_and_b32 v{u4}, 2, v1', f'v_lshlrev_b32 v{u4}, 5, v{u4}', f'v_lshl_add_u32 v{a_z}, v{u3}, 4, v{u4}',
              f'v_not_b32 v{u4}, v{SEL}', f'v_and_b32 v{u4}, 0x20000000, v{u4}', f'v_lshl_or_b32 v{a_z}, v{u4}, 1, v{a_z}',
              f'v_bfe_u32 v{u4}, v1, 4, 1', f'v_lshlrev_b32 v{u4}, 15, v{u4}', f'v_lshl_add_u32 v{u4}, v{u3}, 8, v{u4}',
              f'v_and_b32 v{u3}, 15, v1', f'v_lshl_add_u32 v{a_w}, v{u3}, 4, v{u4}', f's_add_u32 s{s_d}, s{s_a}, 65536']
        if self.yw:
            S = sched(S); S[self.yw:self.yw] = (['s_waitcnt vmcnt(0)'] if self.yv else []) + ['s_barrier']; self.aw(S); S = []
        else: self.sw(S, name='A q-part'); S = []
        self.stamp(4)
        a('s_barrier')
        self.stamp(7)
        KF = KV0; ZF = EP
        ACC = E['ACC']
        den, num, rcp, fin = [], [], [], []
        for Tt in range(2):
            N, DP, DM = ACC + 48*Tt, ACC + 48*Tt + 16, ACC + 48*Tt + 32
            x = PK[Tt]
            den.append([mf16(DP, ZF, x+8), mf16(DM, ZF, x), mf16(DP, ZF+4, x+12, DP), mf16(DM, ZF+4, x+4, DM)])
            num.append([mf32(N, KF, x+8), mf32(N, KF+4, x+12, N), mf32(N, KF+8, x, N), mf32(N, KF+12, x+4, N)])
            rcp.append([f'v_add_f32 v{DP}, v{DP}, v{DM+2}', f'v_add_f32 v{DP+1}, v{DP+1}, v{DM+3}', f'v_cndmask_b32 v{DP}, v{DP}, v{DP+1}, vcc',
                        f'v_add_f32 v{DP}, {f2u(1e-6)}, v{DP}', f'v_rcp_f32 v{DP}, v{DP}'])
            L = []
            for p in range(2):
                R = [(N + 4*(p + 2*jj) + 2*k, DM+4+4*p+2*jj+k) for jj in range(2) for k in range(2)]
                for r, d in R:
                    if Tt == 0: L += [f'v_mul_f32 v{r}, v{DP}, v{r}', f'v_mul_f32 v{r+1}, v{DP}, v{r+1}']
                    else: L.append(pk('mul', r, r, ('b', DP)))
                L += [cvt(d, r, r+1) for r, d in R]
                L.append(f'buffer_store_dwordx4 {vr(DM+4+4*p,4)}, v{a_w}, {srd(sWS)}, s{(s_a, s_d)[Tt]} offen offset:{512*p} sc1')
            fin.append(L)
        if self.b2: a(f's_sleep {self.b2}')
        self.ll_wait(([f's_sleep {self.n2}'] if self.n2 else []) + [f'buffer_load_dwordx4 {vr(ZF+4*u,4)}, v{a_z}, {srd(sWS)}, s{s_b} offen offset:{32*u} sc1' for u in range(2)] +
                     [f'buffer_load_dwordx4 {vr(KF+4*k,4)}, v{l16}, {srd(sWS)}, s{s_c} offen offset:{1024*k} sc1' for k in range(4)],
                     list(range(ZF, ZF+8)) + list(range(KF, KF+16)), u3, u4, 5, under=(den[0] + num[0]) if self.spec & 1 else None, per=[1, 1, 1, 1, 2, 2, 2, 4])
        self.stamp(5)
        a.extend(([] if self.spec & 1 else den[0] + num[0]) + interleave(den[1], hi16 + rcp[0], per=[2, 2, 2, 1]))
        a.extend(interleave(num[1], fin[0][:13] + rcp[1] + fin[0][13:], per=[6, 6, 6, 13]) + fin[1])
        self.stamp(6)

    def epiB(self, E, pre):
        a = self.a
        acc = E['acc']; a_tok, a_row, a_csr, a_csv, l16 = (E[k] for k in ('a_tok', 'a_row', 'a_csr', 'a_csv', 'l16'))
        s_wm, s_wh, s_a, s_b, s_c, s_d, s_e = (E[k] for k in ('s_wm', 's_wh', 's_a', 's_b', 's_c', 's_d', 's_e'))
        BI, BI0, MK, a_h = 236, 244, 248, 252
        if pre == 'v':
            t1, t2, t3 = 208, 209, 210
            S = [f'v_and_b32 v{t1}, 15, v1', f'v_lshrrev_b32 v{t2}, 4, v1', f'v_lshlrev_b32 v{t2}, 2, v{t2}', f'v_sub_u32 v{t1}, v{t1}, v{t2}',
                 f'v_mov_b32 v{t3}, {f2u(-1e30)}']
            for blk in range(2):
                for i in range(4):
                    S += [f'v_add_u32 v{t2}, {(16 if blk == 0 else 0) - i}, v{t1}', f'v_and_b32 v{t2}, -15, v{t2}', f'v_cmp_eq_u32 vcc, 0, v{t2}',
                          f'v_cndmask_b32 v{BI+4*blk+i}, v{t3}, 0, vcc']
                    if i % 2 == 0: S += [f'v_cndmask_b32 v{MK+2*blk+i//2}, 0, -1, vcc', f'v_lshrrev_b32 v{MK+2*blk+i//2}, 16, v{MK+2*blk+i//2}']
                    else: S += [f'v_cndmask_b32 v{t2}, 0, -1, vcc', f'v_lshl_or_b32 v{MK+2*blk+i//2}, v{t2}, 16, v{MK+2*blk+i//2}']
            S += [f's_or_b32 s{s_t}, s{s_m}, s{s_wm}', 's_cselect_b64 vcc, -1, 0']
            for i in range(4): S.append(f'v_cndmask_b32 v{BI0+i}, v{t3}, v{BI+i}, vcc')
            S += sx(s_t, [(s_wh, 2048)], P_PHI) + [f'v_add_u32 v{a_h}, s{s_t}, v{l16}']
            S += [f's_add_u32 s{s_t+1}, s{s_t}, 1024', f's_cmp_eq_u32 s{s_wm}, 0', f's_cselect_b32 s{s_t}, s{s_t}, {L_P + 7168}', f's_cselect_b32 s{s_t+1}, s{s_t+1}, {L_P + 7168}',
                  f'v_add_u32 v{a_h+1}, s{s_t}, v{l16}', f'v_add_u32 v{a_h+2}, s{s_t+1}, v{l16}']
            a.extend(S)
            return
        if pre == 's':
            S = sx(s_b, [(s_l, 1 << 19), (s_m, 1 << 16), (s_g, 4096), (s_wh, 2048)], WS_HALO - (1 << 19))
            S += [f's_add_u32 s{s_c}, s{s_b}, 65536', f's_cmp_eq_u32 s{s_m}, 15', f's_cselect_b32 s{s_c}, {BIG}, s{s_c}',
                  f's_cmp_eq_u32 s{s_wm}, 0', f's_cselect_b32 s{s_c}, {BIG}, s{s_c}', f's_cselect_b32 s{s_b}, s{s_b}, {BIG}',
                  f's_cmp_eq_u32 s{s_m}, 0', f's_cselect_b32 s{s_b}, {BIG}, s{s_b}', f's_add_u32 s{s_d}, s{s_a}, 65536']
            a.extend(S)
            return
        nr = [160, 168, 176, 208]
        nml, rsl, csk, csv, csq, HB = 216, 220, 224, 232, 128, 136
        VP = [184, 196]
        U, M, t1, t2 = 144, 152, 156, 157
        S = []
        for b in (3, 0, 1, 2):
            S += [f'ds_read_b32 v{nml+b}, v{a_tok} offset:{64*b}', f'ds_read_b32 v{rsl+b}, v{a_tok} offset:{512+64*b}']
            if b == 3:
                for nb in range(2): S.append(f'ds_read_b128 {vr(csk+4*nb,4)}, v{a_csr} offset:{768+256+64*nb}')
                for nb in range(2): S.append(f'ds_read_b32 v{csv+nb}, v{a_csv} offset:{768+512+64*nb}')
            S += [f'ds_read_b128 {vr(nr[b],4)}, v{a_row} offset:{64*b}', f'ds_read_b128 {vr(nr[b]+4,4)}, v{a_row} offset:{512+64*b}']
        for nb in range(2): S.append(f'ds_read_b128 {vr(csq+4*nb,4)}, v{a_csr} offset:{768+64*nb}')
        def kprep(b):
            r = acc(b, 2); L = []
            for k in range(4): L.append(pk('fma', r+2*k, csk+2*k, ('b', nml+b), r+2*k))
            for k in range(4): L.append(pk('mul', r+2*k, r+2*k, ('b', rsl+b)))
            for k in range(4): L.append(cvt(r+k, r+2*k, r+2*k+1))
            return L
        def vprep(b):
            r = acc(b, 4); L = []
            for nb in range(2):
                for p in range(2): L.append(pk('fma', r+4*nb+2*p, nr[b]+2*p, ('b', csv+nb), r+4*nb+2*p))
            for nb in range(2):
                for p in range(2): L.append(pk('mul', r+4*nb+2*p, r+4*nb+2*p, nr[b]+4+2*p))
            for nb in range(2):
                for p in range(2):
                    if b == 3: L.append(cvt(acc(3, 3)+2*nb+p, r+4*nb+2*p, r+4*nb+2*p+1))
                    else: L.append(cvt(VP[nb]+2+2*b+p, r+4*nb+2*p, r+4*nb+2*p+1))
            return L
        def qprep(b):
            r = acc(b, 0); L = []
            for k in range(4): L.append(pk('fma', r+2*k, csq+2*k, ('b', nml+b), r+2*k))
            for k in range(4): L.append(cvt(r+k, r+2*k, r+2*k+1))
            return L
        mfma = E['mfma']
        TM = [mfma(1, b, n) for b in (3, 0, 1, 2) for n in (2, 3, 4, 5)] + [mfma(1, b, 1) for b in range(4)] + [mfma(1, b, 0) for b in range(self.bpos+1, 4)]
        rk, rv = acc(3, 2), acc(3, 4)
        P3 = [f'v_fmac_f32 v{rk+k}, v{csk+k}, v{nml+3}' for k in range(8)] + [f'v_mul_f32 v{rk+k}, v{rsl+3}, v{rk+k}' for k in range(8)] + kprep(3)[8:]
        P3 += [f'v_fmac_f32 v{rv+k}, v{nr[3]+k%4}, v{csv+k//4}' for k in range(8)] + [f'v_mul_f32 v{rv+k}, v{nr[3]+4+k%4}, v{rv+k}' for k in range(8)] + vprep(3)[8:]
        S = S[:8] + [t for t in S[8:] if 'b32' in t] + S[-2:] + [t for t in S[8:-2] if 'b128' in t]
        T0 = interleave(TM, S[:14] + P3, per=[2]*24); S = S[14:]
        for k in range(2): T0.append(f'buffer_store_dwordx4 {vr(acc(3,2)+4*k,4)}, v{l16}, {srd(sWS)}, s{s_c} offen offset:{1024*k} sc1')
        for k in range(2): S.append(f'ds_write_b128 v{a_h+1+k}, {vr(acc(3,2)+4*k,4)}')
        fa, fv = 234, 235
        T0 += sx(s_t, [(s_wave, 4)], P_CNT) + [f'v_mov_b32 v{fa}, s{s_t}', f'v_mov_b32 v{fv}, s{s_l}']
        S.append(f'ds_write_b32 v{fa}, v{fv}')
        for nb in range(2): S.append(f'v_mov_b64 {vr(VP[nb]+8,2)}, {vr(acc(3,3)+2*nb,2)}')
        for b in range(3): S += kprep(b) + vprep(b)
        for b in range(4): S += qprep(b)
        for b in range(4): S.append(f'v_mul_f32 v{rsl+b}, {f2u(LOG2E * 32 ** -0.5)}, v{rsl+b}')
        def logits(b):
            sp, sc = acc(b, 1), (acc(b-1, 3) if b else nr[3])
            L = [mf16(sp, HB if b == 0 else acc(b-1, 2), acc(b, 0), BI0 if b == 0 else BI), mf16(sc, acc(b, 2), acc(b, 0), BI+4)]
            for p in range(2):
                L += [f'v_max3_f32 v{U+2*b+p}, v{sp+2*p}, v{sp+2*p+1}, v{sc+2*p}', f'v_max_f32 v{U+2*b+p}, v{U+2*b+p}, v{sc+1+2*p}',
                      f'v_mul_f32 v{U+2*b+p}, v{rsl+b}, v{U+2*b+p}']
            L.append(f'v_max_f32 v{M+b}, v{U+2*b}, v{U+2*b+1}')
            return L
        for b in (1, 2, 3): S += logits(b)
        L0 = logits(0); S.append(L0.pop(1))
        def allred(op, mid):
            L = [sw32(M, M+2), sw32(M+1, M+3), f'{op} v{M}, v{M}, v{M+2}', f'{op} v{M+1}, v{M+1}, v{M+3}', sw16(M, M+1), f'{op} v{M+1}, v{M}, v{M+1}']
            L += mid
            L += [f'v_mov_b32 v{M}, v{M+1}', sw16(M, M+1), f'v_mov_b64 {vr(M+2,2)}, {vr(M,2)}', sw32(M, M+2), sw32(M+1, M+3)]
            return L
        def pv(b):
            P = acc(b, 1); L = []
            for p in range(2): L.append(cvt(U+2*b+p, U+2*b+p, U+2*b+p))
            for blk in range(2):
                for p in range(2): L.append(f'v_and_b32 v{P+2*blk+p}, v{U+2*b+p}, v{MK+2*blk+p}')
            return L + [mf16(acc(b, 4)+4*db, VP[db]+2*b, P) for db in range(2)]
        def put(b):
            O = acc(b, 4)
            return [cvt(O+k, O+2*k, O+2*k+1) for k in range(4)] + [f'buffer_store_dwordx4 {vr(O,4)}, v{l16}, {srd(sWS)}, s{(s_a, s_e, s_d, s_c)[b]} offen sc1']
        ONE, SUM = nr[3] + 4, csk
        S += allred('v_max_f32', [])
        for b in (1, 2, 3): S.append(pk('add', U+2*b, U+2*b, ('b', M+b), neg=[0, 1]))
        for k in range(2, 8): S.append(f'v_exp_f32 v{U+k}, v{U+k}')
        for b in (1, 2, 3): S.append(f'v_add_f32 v{M+b}, v{U+2*b}, v{U+2*b+1}')
        S += allred('v_add_f32', [f'v_rcp_f32 v{M+1}, v{M+1}'])
        for b in (1, 2, 3): S.append(pk('mul', U+2*b, U+2*b, ('b', M+b)))
        S += pv(1) + pv(2) + pv(3) + [f's_add_u32 s{s_e}, s{s_a}, 32768', f's_add_u32 s{s_c}, s{s_d}, 32768'] + put(1) + put(2) + put(3)
        S += [f'v_mov_b32 v{ONE+k}, 0x3f803f80' for k in range(4)]
        T0 += [t for t in S if t.startswith('ds_')]
        S = sched([t for t in S if not t.startswith('ds_')], lambda t: t.startswith('buffer'))
        if __name__ == '__main__': print('sched B', len(S), sched.last_estimate, file=sys.stderr)
        hp = self.hp
        assert not any(t.startswith('buffer') for t in S[:hp]) and not any(t.startswith('ds_') for t in S[hp:])
        self.aw(T0 + S[:hp])
        HL = [f'buffer_load_dwordx4 {vr(HB+4*k,4)}, v{l16}, {srd(sWS)}, s{s_b} offen offset:{1024*k} sc1' for k in range(2)]
        L1, L3, L4, L5 = self.lab('hg'), self.lab('hd'), self.lab('hu'), self.lab('hv')
        HD = [f'ds_read_b32 v{t2}, v{fa}'] + [f'ds_read_b128 {vr(HB+4*k,4)}, v{a_h} offset:{1024*k}' for k in range(2)]
        a('s_waitcnt lgkmcnt(0)')
        a(f's_cmp_eq_u32 s{s_wm}, 0'); a(f's_cbranch_scc0 {L1}')
        a.extend(HL)
        a.label(L3)
        self.aside(lambda: (self.a.label(L1), self.a(f'v_subrev_u32 v{fa}, 8, v{fa}'), self.a.extend(HD), self.a(f's_branch {L3}')))
        self.stamp(3)
        a.extend(S[hp:]); S = []
        M0 = L0.pop(0)
        a(f's_cmp_eq_u32 s{s_wm}, 0'); a(f's_cbranch_scc0 {L4}')
        self.ll_wait(HL, list(range(HB, HB+8)), t1, t2, 0, pre='s_waitcnt vmcnt(3)', under=[M0], per=[0])
        a.label(L5)
        def upper():
            self.a.label(L4)
            self.spin(HD, [M0, f'v_cmp_ne_u32 vcc, v{fv}, v{t2}'], t1, 12, pre='s_waitcnt lgkmcnt(0)')
            self.a(f's_branch {L5}')
        self.aside(upper)
        self.stamp(4)
        S += L0 + [f'v_mov_b64 {vr(VP[nb],2)}, {vr(HB+4+2*nb,2)}' for nb in range(2)]
        S += [f'v_mov_b32 v{M+1}, v{M}', sw32(M, M+1), f'v_max_f32 v{M}, v{M}, v{M+1}', f'v_mov_b32 v{M+1}, v{M}', sw16(M, M+1), f'v_max_f32 v{M}, v{M}, v{M+1}']
        S += [f'v_sub_f32 v{U+k}, v{U+k}, v{M}' for k in range(2)] + [f'v_exp_f32 v{U+k}, v{U+k}' for k in range(2)]
        P0 = pv(0); S += P0[:-2] + [mf16(SUM, ONE, acc(0, 1))] + P0[-2:] + [f'v_rcp_f32 v{SUM}, v{SUM}']
        S += [pk('mul', acc(0, 4)+2*k, acc(0, 4)+2*k, ('b', SUM)) for k in range(4)] + put(0)
        self.sw(S, name='B block 0')
        self.stamp(6)

    def build(self):
        a = self.a
        self.prologue()
        if self.st0 & 1: self.loader(); a.label('L_compute'); self.compute()
        else: self.compute(); self.loader()
        self.helper()
        a.label('L_fin')
        self.stamp(15)
        self.stamp_out()
        if self.probe and len(self.probe) > 3:
            def pub():
                a('s_mov_b64 exec, 1'); a('v_mov_b32 v2, s94'); a('s_not_b32 s93, s93'); a('v_mov_b32 v3, s93')
                a(f'buffer_atomic_umax v2, off, {srd(sDBG)}, 0 offset:12 sc1'); a(f'buffer_atomic_umax v3, off, {srd(sDBG)}, 0 offset:140 sc1')
                a('s_waitcnt vmcnt(0)'); a('v_mov_b32 v2, 1'); a(f'buffer_atomic_add v2, off, {srd(sDBG)}, 0 offset:20 sc1'); a('s_waitcnt vmcnt(0)')
                def w0():
                    self.spin(['s_sleep 8', f'buffer_load_dword v2, off, {srd(sDBG)}, 0 offset:20 sc1'], ['v_cmp_gt_u32 vcc, 0x100, v2'], 4, 10)
                    a(f'buffer_load_dword v2, off, {srd(sDBG)}, 0 offset:12 sc1'); a(f'buffer_load_dword v3, off, {srd(sDBG)}, 0 offset:140 sc1'); a('s_waitcnt vmcnt(0)')
                    a('v_readfirstlane_b32 s94, v2'); a('v_readfirstlane_b32 s93, v3'); a('s_not_b32 s93, s93')
                self.cond(['s_cmp_eq_u32 s2, 0'], w0)
                a('s_mov_b64 exec, -1')
            self.cond([f's_cmp_eq_u32 s{s_wave}, 0'], pub)
        if self.probe:
            def body():
                a('s_sub_u32 s93, s94, s93'); a(f's_mul_i32 s93, s93, {self.probe[2]}'); a('s_min_u32 s93, s93, 100000')
                a(f's_memrealtime s[{s_t+6}:{s_t+7}]'); a('s_waitcnt lgkmcnt(0)'); a(f's_add_u32 s93, s93, s{s_t+6}')
                a.label('L_probe')
                a(f's_memrealtime s[{s_t+6}:{s_t+7}]'); a('s_waitcnt lgkmcnt(0)'); a(f's_sub_u32 s94, s{s_t+6}, s93'); a('s_cmp_lt_i32 s94, 0'); a('s_cbranch_scc1 L_probe')
            self.cond([f's_or_b32 s{s_t}, s2, s{s_wave}', f's_cmp_eq_u32 s{s_t}, 0'], body)
        a('s_waitcnt vmcnt(0)')
        a.label('L_end')
        a('s_endpgm')
        for b in self.later: a.ins += b.ins
        if self.cpf: a.label('L_last'); a('s_endpgm')
        a.pad()
        assert a.maxreg('v') <= 255 and a.maxreg('s') < 96
        return a.text()


DOC = """
; ---------------------------------------------------------------------------------------------------------------------
;
;
; Hand-offs between workgroups go through d_ws, stored write-through (sc1) and read with sc1 loads:
; ---------------------------------------------------------------------------------------------------------------------
"""

def generate(listform=False, **kw):
    body = Gen(**kw).build()
    ref = open('interleave_layers__linear_kernel_hedgehog__sliding_local_dilated__prompt.s.ref').read() if not listform else ''
    head = ''.join(l + '\n' for l in ref.split('\n') if l.startswith(';') and '@launch' not in l)
    if listform: head += f'; @launch kernel={KNAME} grid=(256,1,1) block=(512,1,1) lds={LDS_BYTES}\n'
    else: head += f'; @launch grid=(256,1,1) block=(512,1,1) lds={LDS_BYTES}\n'
    return head + '.amdgcn_target "amdgcn-amd-amdhsa--gfx950"' + DOC + kernel_head(KNAME) + body + kernel_desc(KNAME, 256, 96, 256)

if __name__ == '__main__':
    kw = eval(sys.argv[2]) if len(sys.argv) > 2 else {}
    open(sys.argv[1], 'w').write(generate(**kw))
```

```python
import re

REG_RE = re.compile(r'(?<![\w.])([vas])(?:(\d+)|\[(\d+):(\d+)\])(?![\w])')

def regs_of(tok):
    out = set()
    for m in REG_RE.finditer(tok):
        k = m.group(1)
        if m.group(2) is not None:
            out.add((k, int(m.group(2))))
        else:
            for i in range(int(m.group(3)), int(m.group(4)) + 1):
                out.add((k, i))
    t = tok.strip().lstrip('-')
    if t in ('vcc', 'vcc_lo', 'vcc_hi'): out.add(('x', 'vcc'))
    if t in ('exec', 'exec_lo', 'exec_hi'): out.add(('x', 'exec'))
    if t == 'm0': out.add(('x', 'm0'))
    return out

def split_ops(s):
    ops, depth, cur = [], 0, ''
    for ch in s:
        if ch in '[(': depth += 1
        if ch in '])': depth -= 1
        if ch == ',' and depth == 0:
            ops.append(cur.strip()); cur = ''
        else:
            cur += ch
    if cur.strip(): ops.append(cur.strip())
    return ops

TRANS = ('v_exp_', 'v_log_', 'v_rcp_', 'v_rsq_', 'v_sqrt_', 'v_sin_', 'v_cos_')

class Ins:
    def __init__(self, text):
        self.text = text
        t = text.split(';')[0].strip()
        self.is_label = t.endswith(':')
        self.is_dir = t.startswith('.') and not self.is_label
        self.mn = ''
        self.rd, self.wr = set(), set()
        self.kind = 'none'
        if not t or self.is_label or self.is_dir:
            return
        p = t.split(None, 1)
        mn = self.mn = p[0]
        rest = p[1] if len(p) > 1 else ''
        ops = split_ops(rest)
        mods = ''
        if ops:
            last = ops[-1]
            m = re.match(r'^(\S+)\s+(.*)$', last)
            if m and not last.startswith('abs(') :
                ops[-1] = m.group(1); mods = m.group(2)
        self.mods = mods
        self.ops = ops
        R = [regs_of(o) for o in ops]
        def U(idx):
            s = set()
            for i in idx:
                if i < len(R): s |= R[i]
            return s
        n = len(ops)
        self.passes = 0
        if mn.startswith('v_mfma'):
            self.kind = 'mfma'
            self.wr = R[0]; self.A = R[1]; self.B = R[2]; self.C = R[3]
            self.rd = self.A | self.B | self.C
            self.passes = 8 if '32x32' in mn else 4
            assert mn in ('v_mfma_f32_32x32x16_bf16', 'v_mfma_f32_16x16x32_bf16'), mn
        elif mn.startswith('v_'):
            self.kind = 'valu'
            self.trans = mn.startswith(TRANS)
            self.dpp = ('_dpp' in mn) or ('quad_perm' in mods) or ('row_' in mods)
            self.perm = mn.startswith('v_permlane')
            if mn.startswith('v_cmp'):
                assert not mn.startswith('v_cmpx')
                self.wr = R[0]; self.rd = U(range(1, n))
            elif mn.startswith('v_permlane') and 'swap' in mn:
                self.wr = R[0] | R[1]; self.rd = R[0] | R[1]
            elif mn.startswith(('v_add_co', 'v_sub_co', 'v_addc_co', 'v_subb_co')):
                self.wr = R[0] | R[1]; self.rd = U(range(2, n))
            elif mn == 'v_nop':
                pass
            else:
                self.wr = R[0]; self.rd = U(range(1, n))
                if mn.startswith(('v_fmac', 'v_pk_fmac', 'v_dot2c', 'v_writelane')) or self.dpp or 'sdwa' in mn:
                    self.rd |= R[0]
        elif mn.startswith('ds_'):
            self.kind = 'ds'
            if mn.startswith(('ds_read', 'ds_bpermute', 'ds_permute', 'ds_swizzle')):
                self.wr = R[0]; self.rd = U(range(1, n))
            elif '_rtn' in mn:
                self.wr = R[0]; self.rd = U(range(1, n))
            else:
                self.rd = U(range(n))
        elif mn.startswith(('buffer_', 'global_')):
            self.kind = 'vmem'
            self.lds = bool(re.search(r'\blds\b', mods)) or '_lds_' in mn
            self.wide_data = set()
            if mn.startswith(('buffer_wbl2', 'buffer_inv')):
                pass
            elif self.lds:
                self.rd = U(range(n)) | {('x', 'm0')}
            elif '_load' in mn:
                self.wr = R[0]; self.rd = U(range(1, n))
            elif '_atomic' in mn:
                self.rd = U(range(n))
                if re.search(r'\bsc0\b', mods):
                    self.wr = R[0]
            else:
                self.rd = U(range(n))
                if mn.endswith(('x3', 'x4')):
                    self.wide_data = R[0] if mn.startswith('buffer_') else R[1]
        elif mn.startswith('s_'):
            self.kind = 'salu'
            if mn.startswith(('s_load', 's_memtime', 's_memrealtime', 's_buffer_load')):
                self.kind = 'smem'
                self.wr = R[0]; self.rd = U(range(1, n))
            elif mn.startswith(('s_cmp', 's_bitcmp', 's_waitcnt', 's_barrier', 's_nop', 's_branch', 's_cbranch', 's_endpgm', 's_setprio', 's_sleep', 's_setpc')):
                self.rd = U(range(n))
            elif 'saveexec' in mn:
                self.wr = R[0] | {('x', 'exec')}; self.rd = U(range(1, n)) | {('x', 'exec')}
            else:
                self.wr = R[0] if R else set(); self.rd = U(range(1, n))
                if mn.startswith(('s_addk', 's_mulk', 's_cmov')): self.rd |= R[0]
        else:
            raise ValueError('unknown instruction ' + t)

    def states(self):
        if self.kind == 'none': return 0
        if self.mn == 's_nop': return int(self.ops[0], 0) + 1
        return 1

def isv(s): return {r for r in s if r[0] in 'va'}
def iss(s): return {r for r in s if r[0] == 's' or r == ('x', 'vcc')}

def need(p, c):
    w = 0
    if p.kind == 'valu':
        pv = isv(p.wr); ps = iss(p.wr)
        if c.kind == 'mfma' and pv & c.rd: w = max(w, 2)
        if c.kind == 'valu':
            if (c.dpp or c.perm) and pv & c.rd: w = max(w, 2)
            if c.mn.startswith(('v_readlane', 'v_readfirstlane')) and pv & c.rd: w = max(w, 1)
            if p.trans and pv & c.rd: w = max(w, 1)
            if ('op_sel' in p.mods and not p.mn.startswith('v_pk_') or 'sdwa' in p.mn) and pv & (c.rd | c.wr): w = max(w, 1)
            if ps & c.rd:
                w = max(w, 4 if c.mn.startswith(('v_readlane', 'v_writelane', 'v_div_fmas')) else 2)
            if p.mn.startswith('v_dot') and pv & (c.rd | c.wr):
                w = max(w, 3 if not (c.mn == p.mn and not (pv & (regs_of(c.ops[1]) | regs_of(c.ops[2])))) else 0)
        if p.mn.startswith('v_dot') and c.kind in ('vmem', 'ds', 'mfma') and pv & c.rd: w = max(w, 3)
        if c.kind == 'vmem' and ps & c.rd: w = max(w, 5)
        if c.kind in ('salu', 'smem') and ps & c.rd: w = max(w, 1)
    if p.kind == 'mfma':
        n = p.passes
        if c.kind == 'mfma':
            if p.wr & (c.A | c.B): w = max(w, n + 4)
            if p.wr & c.C:
                if not (p.wr == c.C and c.passes == n): w = max(w, n + 2)
            elif p.wr & c.wr: w = max(w, n + 2)
        elif c.kind in ('valu', 'vmem', 'ds'):
            if p.wr & (c.rd | c.wr): w = max(w, n + 4)
            if c.kind == 'valu' and p.C & c.wr: w = max(w, n - 1)
            if c.kind != 'valu' and p.C & c.wr: w = max(w, n - 1)
    if p.kind == 'vmem' and getattr(p, 'wide_data', None):
        if p.wide_data & c.wr: w = max(w, 2)
    if p.kind == 'salu' and ('x', 'm0') in p.wr and c.kind == 'vmem' and c.lds: w = max(w, 1)
    return w

MAXW = 12

class Asm:
    def __init__(self):
        self.ins = []
    def __call__(self, text):
        for l in text.split('\n'):
            l = l.strip()
            if l: self.ins.append(Ins(l))
    def extend(self, lst):
        for l in lst: self(l)
    def label(self, name): self(name + ':')

    def pad(self):
        changed = True
        rounds = 0
        while changed:
            changed = False; rounds += 1
            assert rounds < 50
            ins = self.ins
            labels = {i.text.split(';')[0].strip()[:-1]: k for k, i in enumerate(ins) if i.is_label}
            bpred = {}
            for k, i in enumerate(ins):
                if i.mn.startswith(('s_branch', 's_cbranch')):
                    bpred.setdefault(labels[i.ops[0]], []).append(k)
            out = []
            def back(k, dist, c, seen):
                miss = 0
                j = k - 1
                while j >= 0 and dist < MAXW:
                    p = ins[j]
                    if p.is_label:
                        for b in bpred.get(j, []):
                            if (b, dist) not in seen:
                                seen.add((b, dist))
                                miss = max(miss, back(b + 1, dist, c, seen))
                    if p.kind != 'none':
                        if p.mn in ('s_branch', 's_endpgm', 's_setpc_b64') and j != k - 1:
                            break
                        if p.mn in ('s_branch', 's_endpgm', 's_setpc_b64') and j == k - 1 and not seen:
                            break
                        miss = max(miss, need(p, c) - dist)
                        dist += p.states()
                    j -= 1
                return miss
            for k, c in enumerate(ins):
                if c.kind != 'none':
                    m = back(k, 0, c, set())
                    if m > 0 and not changed:
                        out.append(Ins('s_nop %d' % (m - 1)))
                        changed = True
                        ins_rest = ins[k:]
                        self.ins = out + ins_rest
                        break
                out.append(c)
            if changed:
                self._greedy(len(out))
        return self

    def _greedy(self, start):
        ins = self.ins
        out = ins[:start]
        for c in ins[start:]:
            if c.kind != 'none':
                dist = 0; miss = 0; j = len(out) - 1
                while j >= 0 and dist < MAXW:
                    p = out[j]
                    if p.kind != 'none':
                        if p.mn in ('s_branch', 's_endpgm', 's_setpc_b64'): break
                        miss = max(miss, need(p, c) - dist)
                        dist += p.states()
                    j -= 1
                if miss > 0: out.append(Ins('s_nop %d' % (miss - 1)))
            out.append(c)
        self.ins = out

    def text(self):
        o = []
        for i in self.ins:
            o.append(i.text if (i.is_label or i.is_dir) else '    ' + i.text)
        return '\n'.join(o) + '\n'

    def maxreg(self, kind):
        m = -1
        for i in self.ins:
            for r in i.rd | i.wr:
                if r[0] == kind: m = max(m, r[1])
        return m


def autowait(lines, vm0=0, lgkm0=0):
    out = []
    vm, lg = [], []
    for l in lines:
        for t in l.split('\n'):
            t = t.strip()
            if not t: continue
            i = Ins(t)
            assert not i.is_label and not i.mn.startswith(('s_branch', 's_cbranch')), 'autowait: straight-line only: ' + t
            if i.mn == 's_waitcnt':
                m = re.search(r'vmcnt\((\d+)\)', t)
                if m: vm = vm[max(0, len(vm) - int(m.group(1))):] if int(m.group(1)) else []
                m = re.search(r'lgkmcnt\((\d+)\)', t)
                if m: lg = lg[max(0, len(lg) - int(m.group(1))):] if int(m.group(1)) else []
                out.append(t); continue
            touch = i.rd | i.wr
            w = []
            for name, q, mx in (('vmcnt', vm, 62), ('lgkmcnt', lg, 14)):
                last = -1
                for k, d in enumerate(q):
                    if d & touch: last = k
                if last >= 0:
                    n = min(len(q) - 1 - last, mx)
                    w.append('%s(%d)' % (name, n))
                    del q[:len(q) - n]
            if w: out.append('s_waitcnt ' + ' '.join(w))
            out.append(t)
            if i.kind == 'vmem' and not i.mn.startswith(('buffer_wbl2', 'buffer_inv')): vm.append(set(i.wr))
            elif i.kind == 'ds': lg.append(set(i.wr))
            elif i.kind == 'smem': raise ValueError('autowait: no smem')
    return out


class Alloc:
    def __init__(self, kind, start, limit):
        self.kind, self.free = kind, list(range(start, limit))
        self.hi = start
    def get(self, n=1, align=1):
        fs = set(self.free)
        for b in self.free:
            if b % align == 0 and all((b + i) in fs for i in range(n)):
                for i in range(n): self.free.remove(b + i)
                self.hi = max(self.hi, b + n)
                return b
        raise RuntimeError('out of %s registers' % self.kind)
    def put(self, b, n=1):
        for i in range(n):
            assert (b + i) not in self.free
            self.free.append(b + i)
        self.free.sort()

def vr(b, n=1, k='v'):
    return '%s%d' % (k, b) if n == 1 else '%s[%d:%d]' % (k, b, b + n - 1)
def sr(b, n=1): return vr(b, n, 's')
def ar(b, n=1): return vr(b, n, 'a')

def interleave(main, fill, start=0, per=None):
    out = []; f = list(fill)
    for i, m in enumerate(main):
        out.append(m)
        n = per[i] if per is not None else 0
        for _ in range(n):
            if f: out.append(f.pop(0))
    out += f
    return out

def kernel_desc(name, vgpr, sgpr, accum):
    return f""".section .rodata,"a"
.p2align 6
.amdhsa_kernel {name}
  .amdhsa_next_free_vgpr {vgpr}
  .amdhsa_next_free_sgpr {sgpr}
  .amdhsa_accum_offset {accum}
  .amdhsa_group_segment_fixed_size 0
  .amdhsa_kernarg_size 80
  .amdhsa_user_sgpr_count 2
  .amdhsa_user_sgpr_kernarg_segment_ptr 1
  .amdhsa_system_sgpr_workgroup_id_x 1
  .amdhsa_float_denorm_mode_32 3
.end_amdhsa_kernel
"""

def kernel_head(name):
    return f""".text
.globl {name}
.p2align 8
.type {name},@function
{name}:
"""


def _cost(i):
    if i.kind == 'valu':
        if i.trans or i.perm: return 8
        return 4 if i.mn.startswith(('v_mov_b32', 'v_add_', 'v_sub', 'v_mul_f32', 'v_max_f32', 'v_and_b32', 'v_or_b32', 'v_xor', 'v_lshl', 'v_lshr', 'v_permlane', 'v_cmp')) and '-v' not in i.text else 5
    if i.kind == 'mfma': return 8
    if i.kind == 'ds': return 4 if 'read' in i.mn else (16 if '128' in i.mn else 8)
    if i.kind == 'vmem': return 8
    return 4
def _lat(p, c):
    w = need(p, c) * 4
    if p.kind == 'mfma':
        if c.kind == 'mfma' and p.wr == c.C and not (p.wr & (c.A | c.B)): return 4 * p.passes
        if p.wr & (c.rd | c.wr): return 4 * p.passes + 32
        return 4 + w
    if p.kind == 'ds' and p.wr & (c.rd | c.wr): return 150 if '128' in p.mn else 120
    if p.kind == 'vmem' and p.wr & (c.rd | c.wr): return 700
    base = _cost(p)
    if p.kind == 'valu' and p.wr & c.rd and (p.trans or p.mn.startswith('v_pk_')): base += 4
    return base + w
def sched(lines, crit=None):
    ins = [Ins(t.strip()) for l in lines for t in l.split('\n') if t.strip()]
    n = len(ins)
    EX = ('x', 'exec')
    succ = [[] for _ in range(n)]; npred = [0] * n
    def edge(a, b, l):
        succ[a].append((b, l)); npred[b] += 1
    lastw, readers = {}, {}
    last = {'salu': None, 'ds': None, 'vmem': None}
    fence = None
    mem_since = []
    ds_since = []
    for k, i in enumerate(ins):
        assert not i.is_label and not i.mn.startswith(('s_branch', 's_cbranch'))
        rd = set(i.rd); wr = set(i.wr)
        if i.kind in ('valu', 'mfma', 'ds', 'vmem'): rd.add(EX)
        deps = {}
        for r in rd:
            if r in lastw: deps[lastw[r]] = max(deps.get(lastw[r], 0), _lat(ins[lastw[r]], i) if r != EX else 4)
        for r in wr:
            if r in lastw: deps[lastw[r]] = max(deps.get(lastw[r], 0), _lat(ins[lastw[r]], i) if r != EX else 4)
            for q in readers.get(r, []):
                if q != k: deps[q] = max(deps.get(q, 0), 4 + 4 * need(ins[q], i))
        isf = i.mn in ('s_barrier', 's_waitcnt')
        if isf:
            for q in mem_since:
                l = 4
                if i.mn == 's_waitcnt' and ins[q].kind == 'ds' and 'lgkmcnt' in i.text: l = 100
                deps[q] = max(deps.get(q, 0), l)
            if fence is not None: deps[fence] = max(deps.get(fence, 0), 4)
        else:
            cls = i.kind if i.kind in last else None
            if cls and last[cls] is not None: deps[last[cls]] = max(deps.get(last[cls], 0), _cost(ins[last[cls]]))
            if cls: last[cls] = k
            if i.kind in ('ds', 'vmem') and fence is not None: deps[fence] = max(deps.get(fence, 0), 4)
            if fence is not None and wr & fence_regs: deps[fence] = max(deps.get(fence, 0), 4)
        for q, l in deps.items(): edge(q, k, l)
        if isf:
            if fence is None or i.mn == 's_waitcnt': fence_regs = set()
            for q in mem_since: fence_regs |= isv(ins[q].rd)
            fence = k; mem_since = []
        elif i.kind in ('ds', 'vmem'): mem_since.append(k)
        for r in rd: readers.setdefault(r, []).append(k)
        for r in wr: lastw[r] = k; readers[r] = []
    pri = [0] * n
    for k in range(n - 1, -1, -1):
        p = (100000 if (crit and crit(ins[k].text)) else 0)
        for b, l in succ[k]: p = max(p, pri[b] + l)
        pri[k] = p
    ready = [k for k in range(n) if npred[k] == 0]
    est = [0] * n
    t = 0; mpipe = -16; out = []
    while ready:
        def start(k):
            if ins[k].kind == 'mfma': return max(est[k], mpipe)
            if ins[k].mn.startswith(('v_pk_', 'v_dot')): return max(est[k], mpipe + 16)
            return est[k]
        now = [k for k in ready if start(k) <= t]
        if now: k = max(now, key=lambda k: (pri[k], -k))
        else:
            k = min(ready, key=lambda k: (start(k), -pri[k])); t = start(k)
        ready.remove(k); out.append(ins[k].text)
        if ins[k].kind == 'mfma': mpipe = t + 4 * ins[k].passes
        for b, l in succ[k]:
            est[b] = max(est[b], t + l); npred[b] -= 1
            if npred[b] == 0: ready.append(b)
        t += _cost(ins[k])
    assert len(out) == n
    sched.last_estimate = t
    return out


def sizes(ins, head):
    import subprocess, tempfile
    d = tempfile.mkdtemp()
    open(d + '/a.s', 'w').write('.amdgcn_target "amdgcn-amd-amdhsa--gfx950"\n' + head + '\n'.join(i.text for i in ins if not i.is_dir) + '\n')
    subprocess.run(['clang', '-x', 'assembler', '-target', 'amdgcn-amd-amdhsa', '-mcpu=gfx950', '-c', d + '/a.s', '-o', d + '/a.o'], check=True)
    t = subprocess.run(['llvm-objdump', '-d', '--mcpu=gfx950', d + '/a.o'], capture_output=True, text=True).stdout
    n = [4 * len(l.split('//')[1].split(':')[1].split('<')[0].split()) for l in t.split('\n') if '//' in l]
    assert len(n) == sum(i.kind != 'none' for i in ins), (len(n), sum(i.kind != 'none' for i in ins))
    it = iter(n)
    return [next(it) if i.kind != 'none' else 0 for i in ins]

def align8(a, head, w_other=0.25, nop=4.0):
    ins = a.ins; sz = sizes(ins, head)
    INF = 1e18
    R = 3
    cost = [0.0] + [INF] * (2*R - 1); back = []
    for i, n in zip(ins, sz):
        opts = []
        for st in range(2*R):
            ph, run = st & 1, st >> 1
            up = 2 * min(run + 1, R - 1); pen = ph * (run >= R - 1)
            if i.is_dir:
                if i.text.startswith('.p2align'): opts.append((st, 0, 0, 0))
                else:
                    assert i.text.startswith('.fill'); opts.append((st, ph ^ (int(i.text.split()[1].rstrip(',')) & 1), 0, 0))
            elif n == 0: opts.append((st, st, 0, 0))
            elif n == 4:
                opts.append((st, ph ^ 1, 0, 0))
                if i.kind == 'valu' and not i.mn.startswith(('v_readfirstlane', 'v_nop', 'v_dot2c')) and not i.mn.endswith(('_e32', '_e64')):
                    opts.append((st, ph + up, 0.1 + pen, 1))
            else:
                w = 1.0 if i.kind == 'valu' else w_other
                opts.append((st, ph + up, w * pen + 0.01 * ph, 0))
                if ph: opts.append((st, 2, nop, 2))
        new = [INF] * (2*R); bk = [None] * (2*R)
        for f, t, c, act in opts:
            if cost[f] + c < new[t]: new[t] = cost[f] + c; bk[t] = (f, act)
        cost = new; back.append(bk)
    ph = cost.index(min(cost))
    out = []; stat = [0, 0, 0]
    for i, bk in zip(reversed(ins), reversed(back)):
        f, act = bk[ph]; stat[act] += 1
        if act == 1: out.append(Ins(i.text.replace(i.mn, i.mn + '_e64', 1)))
        else: out.append(i)
        if act == 2: out.append(Ins('s_nop 0 ; alignment'))
        ph = f
    a.ins = out[::-1]
    return stat[1], stat[2], min(cost)
```

```python
import sys, struct
sys.path.insert(0, 'work')
from asmlib import *

KNAME = 'interleave_layers__linear_kernel_hedgehog__sliding_local_dilated__prompt_kernel'

WS_CTR, WS_STAMP, WS_ST, WS_CS = 0x0, 0x100000, 0x200000, 0x300000
WS_HALO, WS_KVF, WS_ZP, WS_ZF, WS_KVP = 0x400000, 0x600000, 0x680000, 0x6C0000, 0x800000
WS_HU = 0x20000
WS_RF = 0x700000
WS_XI, WS_OI, WS_END = 0xC00000, 0x1800000, 0x2800000
BIG = 0x40000000
STG = 40960
XOFF = 24576
L_WO = 24576
L_SPARE = 3 * STG
L_P = 155648
P_NM, P_RS, P_CS, P_MODE, P_CNT, P_PHI = L_P, L_P + 512, L_P + 1024, L_P + 2816, L_P + 2832, L_P + 3072
LDS_BYTES = 163840
SCR = 5120
LOG2E = 1.4426950408889634
def f2u(x): return '0x%08x' % struct.unpack('<I', struct.pack('<f', x))[0]

s_fast = 3
pAX, pAW, pPHI, pAWO, pBW, pBWO, pOUT, pDBG, pWS = 4, 6, 8, 10, 14, 16, 18, 20, 22
sWS, sX, sW, sWO, sOUT, sDBG = 24, 28, 32, 36, 40, 44
s_m, s_g, s_wave, s_l = 48, 49, 50, 51
s_t = 52
s_cnt, s_x = 60, 61
s_i = 62
s_stamp = 63
s_rot = 64
s_rot2 = 95
s_ft, s_fn, s_fd, s_po = 90, 91, 88, 87
def srd(b): return 's[%d:%d]' % (b, b + 3)


def sx(d, terms, const=0):
    L = []
    for n, (r, k) in enumerate([t for t in terms if t[1]]):
        t = d if n == 0 else s_x
        if k == 1 and n: t = r
        elif k == 1: L.append(f's_mov_b32 s{t}, s{r}')
        elif k > 0 and k & (k - 1) == 0: L.append(f's_lshl_b32 s{t}, s{r}, {k.bit_length()-1}')
        else: L.append(f's_mul_i32 s{t}, s{r}, {k}')
        if n: L.append(f's_add_u32 s{d}, s{d}, s{t}')
    if const: L.append(f's_add_u32 s{d}, s{d}, {const:#x}' if const > 0 else f's_sub_u32 s{d}, s{d}, {-const:#x}')
    return L

def pkop(r):
    if isinstance(r, tuple):
        return vr(r[1] & ~1, 2), r[1] & 1, r[1] & 1
    assert r % 2 == 0
    return vr(r, 2), 0, 1
def pk(op, d, *src, neg=None):
    o = [pkop(s) for s in src]
    t = 'v_pk_%s_f32 %s, %s' % (op, vr(d, 2), ', '.join(x[0] for x in o))
    lo = [x[1] for x in o]; hi = [x[2] for x in o]
    if any(lo): t += ' op_sel:[%s]' % ','.join(map(str, lo))
    if not all(hi): t += ' op_sel_hi:[%s]' % ','.join(map(str, hi))
    if neg: t += ' neg_lo:[%s] neg_hi:[%s]' % (','.join(map(str, neg)), ','.join(map(str, neg)))
    return t
def cvt(d, a, b): return f'v_cvt_pk_bf16_f32 v{d}, v{a}, v{b}'
def sw16(a, b): return f'v_permlane16_swap_b32 v{a}, v{b}'
def sw32(a, b): return f'v_permlane32_swap_b32 v{a}, v{b}'
def mf16(d, A, B, C=None): return f'v_mfma_f32_16x16x32_bf16 {vr(d,4)}, {vr(A,4)}, {vr(B,4)}, ' + (vr(C, 4) if C is not None else '0')
def mf32(d, A, B, C=None): return f'v_mfma_f32_32x32x16_bf16 {vr(d,16)}, {vr(A,4)}, {vr(B,4)}, ' + (vr(C, 16) if C is not None else '0')


class Gen:
    def __init__(self, prof=0, limit=300000, dist=2, touch=1, bm=25, local=1, pd=7, sch=1, hprio=2, opos=(1, 5), warm=1, nap=1, probe=None, snake=1, rf=2, hq=4, fine=0, llf='sc1', ot=0, hc=9, hpos=90, early=0, w2=0, w0b=0, cpf=0, tr=4, bpos=1, r0=2, rprio=3, w0a=1, pipe=0, b1=0, b2=0, n1=0, n2=0, zw=2, yw=60, thr=None, pw=0, po=0, jit=0, st0=6, vpos=1, fst='sc1', rot0=12, iw=2, oh=(0, 9), dl=6, lprio=3, fpos=24, lf='', lfl=0, xnap=0, ls=0, pf='nt', mix=0, bw=0, t0s=(), xd=None, tlb=0, crow=0, ramp=0, xl=0, i0=0, hu=None, hun=0, yv=0, spec=3, wsch=(10, 12), hp=90, pat=None, pat1=None, d0=0, xi=6, c3=0, wf=1, tos=1, swp=0, gi=11, si=10, hd=0, wr=4, chain=1, bp=2, pw4='11110000', p4=None, p5='11111111', oc=1, ta=0, tb_=0, pad=None, lay=0, fills=None, padb=None, al=0.25):
        self.a = Asm()
        assert 16 <= bm < 32 - dl//2 and not early
        self.__dict__.update(prof=prof, limit=limit, dist=dist, touch=touch, bm=bm, local=local, pd=pd, sch=sch, hprio=hprio, opos=opos, warm=warm, nap=nap, probe=probe, snake=snake, rf=rf, hq=hq, fine=fine, llf=llf, ot=ot, hc=hc, hpos=hpos, early=early, w2=w2, w0b=w0b, cpf=cpf, tr=tr, bpos=bpos, r0=r0, rprio=rprio, w0a=w0a, pipe=pipe, b1=b1, b2=b2, n1=n1, n2=n2, zw=zw, yw=yw, thr=thr, pw=pw, po=po, jit=jit, st0=st0, vpos=vpos, fst=fst, rot0=rot0, iw=iw, oh=oh, dl=dl, lprio=lprio, fpos=fpos, lf=lf, lfl=lfl, xnap=xnap, ls=ls, pf=pf, mix=mix, bw=bw, t0s=t0s, xd=xd, tlb=tlb, crow=crow, ramp=ramp, xl=xl, i0=i0, hu=hu, hun=hun, yv=yv, spec=spec, wsch=wsch, hp=hp, pat=pat, pat1=pat1, d0=d0, xi=xi, c3=c3, wf=wf, tos=tos, swp=swp, gi=gi, si=si, hd=hd, wr=wr, chain=chain, bp=bp, pw4=pw4, p4=p4, p5=p5, oc=oc, ta=ta, tb_=tb_, pad=pad, lay=lay, fills=fills, padb=padb, al=al)
        assert rot0 == 12 and not d0
        if d0: self.rot0 = 15
        self.nlab = 0; self.later = []

    def lab(self, p):
        self.nlab += 1
        return 'L_%s_%d' % (p, self.nlab)

    def aw(self, L):
        self.a.extend(autowait(L))
    def sw(self, L, crit=None, name=''):
        if self.sch:
            L = sched(L, crit)
            if name and __name__ == '__main__': print('sched', name, len(L), 'instructions, about', sched.last_estimate, 'cycles', file=sys.stderr)
        self.a.extend(autowait(L))

    def cond(self, test, body):
        L = self.lab('skip')
        self.a.extend(test); self.a(f's_cbranch_scc0 {L}')
        body()
        self.a.label(L)

    def aside(self, f):
        main, self.a = self.a, Asm()
        f()
        self.later.append(self.a); self.a = main

    def spin(self, issue, check, vt, tag, pre=False, alt=None, checked=False):
        a = self.a
        L, C, T, A, D = (self.lab(x) for x in ('spin', 'chk', 'tmo', 'alt', 'done'))
        count = [f's_add_u32 s{s_cnt}, s{s_cnt}, 1', f's_cmp_lt_u32 s{s_cnt}, {self.limit}', f's_cbranch_scc0 {T}']
        if checked:
            alt = issue; a(f's_cbranch_vccnz {A}')
        else:
            a(f's_mov_b32 s{s_cnt}, 0')
            if alt: a(f's_cmp_eq_u32 s{s_fast}, 1'); a(f's_cbranch_scc0 {A}')
            if pre:
                a(f's_branch {C}')
                a.label(L); a.extend(issue); a.extend(count); a('s_waitcnt vmcnt(0)')
                a.label(C)
                if pre is not True: a(pre)
                a.extend(check)
            else:
                S = autowait(list(issue) + ['s_nop 3'] + list(check)); k = S.index('s_nop 3')
                a.label(L); a.extend(S[:k]); a.extend(count); a.extend(S[k+1:])
            a(f's_cbranch_vccnz {L}')
        a.label(D)
        def rest():
            a = self.a
            if alt:
                L2 = self.lab('spin')
                a.label(A); a(f's_mov_b32 s{s_cnt}, 0')
                a.label(L2); a.extend(alt); a.extend(count); a('s_waitcnt vmcnt(0)' if checked else 's_waitcnt vmcnt(0) lgkmcnt(0)'); a.extend(check)
                a(f's_cbranch_vccnz {L2}'); a(f's_branch {D}')
            a.label(T)
            a('s_waitcnt vmcnt(0)' if checked else 's_waitcnt vmcnt(0) lgkmcnt(0)')
            a(f'v_mov_b32 v{vt}, {1 << tag}')
            a(f'buffer_atomic_or v{vt}, off, {srd(sDBG)}, 0 offset:4 sc1')
            a(f's_branch {D}')
        self.aside(rest)

    def ll_wait(self, loads, regs, t1, t2, tag, pre=False, under=None, per=None):
        S = []
        h = len(regs) // 2
        for t, R in ((t1, regs[:h]), (t2, regs[h:])):
            S.append(f'v_max_u32 v{t}, v{R[0]}, v{R[1]}')
            for k in range(2, len(R), 2): S.append(f'v_max3_u32 v{t}, v{t}, v{R[k]}, v{R[k+1]}')
        S += [f'v_max_u32 v{t1}, v{t1}, v{t2}', f'v_cmp_eq_u32 vcc, -1, v{t1}']
        if under: S = interleave(under, S, per=per)
        loads = [l.replace('sc1', self.llf) for l in loads]
        self.spin(loads, S, t1, tag, pre)

    def flag_set(self, soff, vt, which=3):
        a = self.a
        a('s_mov_b64 exec, 1')
        if which & 1: a(f'buffer_store_dword v{vt}, off, {srd(sWS)}, s{soff} {self.lf}')
        if which == 3 and self.lfl == 1: a(f'buffer_load_dword v220, off, {srd(sWS)}, s{soff} sc1')
        if which == 3 and self.lfl == 2: which = 1
        if which & 2: a(f'buffer_store_dword v{vt}, off, {srd(sWS)}, s{soff+1} sc1')
        a('s_mov_b64 exec, -1')
    def flag_addr(self, va, vt, soff, remote=False):
        L = [f'v_bfe_u32 v{va}, v1, 1, 3', f'v_and_b32 v{vt}, 1, v1', f'v_lshl_add_u32 v{va}, v{va}, 2, v{vt}']
        if remote: return L + [f'v_lshlrev_b32 v{va}, 7, v{va}']
        return L + [f's_cmp_eq_u32 s{s_fast}, 1', f's_cselect_b32 s{s_t}, {self.ls}, 5', f's_cselect_b32 s{s_t+1}, 0, {WS_RF}',
                    f's_lshl_b32 s{soff}, s{soff}, s{s_t}', f's_add_u32 s{soff}, s{soff}, s{s_t+1}', f's_add_u32 s{s_t}, s{s_t}, 2',
                    f'v_lshlrev_b32 v{va}, s{s_t}, v{va}']
    def flag_load(self, soff, va, vt, fl='sc1'): return f'buffer_load_dword v{vt}, v{va}, {srd(sWS)}, s{soff} offen {fl}'
    def flag_wait(self, soff, va, vt, tag, pre=False, nap=0, own=False, checked=False):
        z = [f's_sleep {nap}'] if nap else []
        self.spin(z + [self.flag_load(soff, va, vt, self.pf if own else 'sc1')], [f'v_cmp_eq_u32 vcc, 0, v{vt}'], vt, tag, pre,
                  z + [self.flag_load(soff, va, vt)] if own else None, checked)
    def get_mode(self, vt):
        self.a.extend([f'v_mov_b32 v{vt}, {P_MODE}', f'ds_read_b32 v{vt}, v{vt}', 's_waitcnt lgkmcnt(0)', f'v_readfirstlane_b32 s{s_fast}, v{vt}'])

    def jitter(self, k):
        a = self.a
        L = self.lab('jit')
        a.extend([f's_lshl_b32 s{s_t+6}, s2, 3', f's_add_u32 s{s_t+6}, s{s_t+6}, s{s_wave}', f's_lshl_b32 s{s_t+6}, s{s_t+6}, 2', f's_add_u32 s{s_t+6}, s{s_t+6}, s{s_l}',
                  f's_add_u32 s{s_t+6}, s{s_t+6}, {(k*7919 + self.jit*104729) & 0xffffff}', f's_mul_i32 s{s_t+6}, s{s_t+6}, 0x9e3779b1', f's_lshr_b32 s{s_t+7}, s{s_t+6}, 13',
                  f's_xor_b32 s{s_t+6}, s{s_t+6}, s{s_t+7}', f's_mul_i32 s{s_t+6}, s{s_t+6}, 0x85ebca6b', f's_lshr_b32 s{s_t+7}, s{s_t+6}, 29',
                  f's_lshr_b32 s{s_t+6}, s{s_t+6}, 8', f's_and_b32 s{s_t+6}, s{s_t+6}, 127', f's_lshr_b32 s{s_t+6}, s{s_t+6}, s{s_t+7}'])
        a.label(L)
        a.extend(['s_sleep 1', f's_sub_u32 s{s_t+6}, s{s_t+6}, 1', f's_cbranch_scc0 {L}'])
    def stamp(self, k):
        if self.jit: self.jitter(k)
        if self.probe:
            for n, (pl, pk_) in enumerate(self.probe[:2]):
                if pk_ == k:
                    def body():
                        self.a(f's_memrealtime s[{s_t+6}:{s_t+7}]'); self.a('s_waitcnt lgkmcnt(0)'); self.a(f's_mov_b32 s{93+n}, s{s_t+6}')
                    self.cond([f's_cmp_eq_u32 s{s_l}, {pl}'], body)
        if not self.prof or self.prof >= 5: return
        a = self.a
        a(f'{"s_memtime" if self.prof == 4 else "s_memrealtime"} s[{s_t+6}:{s_t+7}]')
        a(f's_mov_b32 s{s_stamp}, m0')
        a(f's_lshl_b32 m0, s{s_l}, 4'); a(f's_add_u32 m0, m0, {k}')
        a('s_waitcnt lgkmcnt(0)')
        a(f'v_writelane_b32 v255, s{s_t+6}, m0')
        a(f's_mov_b32 m0, s{s_stamp}')
    def stamp_out(self):
        if not self.prof: return
        a = self.a
        a.extend(sx(s_t, [(2, 2048), (s_wave, 256)], WS_STAMP))
        a('v_lshlrev_b32 v254, 2, v1')
        a(f'buffer_store_dword v255, v254, {srd(sWS)}, s{s_t} offen')

    def prologue(self):
        a = self.a
        a('s_cmp_ge_u32 s2, 256'); a('s_cbranch_scc1 L_end')
        a('s_load_dwordx16 s[4:19], s[0:1], 0')
        a('s_load_dwordx4 s[20:23], s[0:1], 64')
        a('v_lshrrev_b32 v2, 6, v0')
        a(f'v_readfirstlane_b32 s{s_wave}, v2')
        a('v_and_b32 v1, 63, v0')
        a(f's_and_b32 s{s_rot}, s2, 3'); a(f's_lshl_b32 s{s_rot}, s{s_rot}, 2')
        a(f's_bfe_u32 s{s_t}, s2, 0x20003'); a(f's_add_u32 s{s_m}, s{s_rot}, s{s_t}')
        a(f's_mov_b32 s{s_rot}, s{s_m}')
        a(f's_and_b32 s{s_rot2}, s2, 4'); a(f's_lshl_b32 s{s_rot2}, s{s_rot2}, 1')
        a(f's_lshr_b32 s{s_g}, s2, 5'); a(f's_add_u32 s{s_g}, s{s_g}, s{s_rot2}')
        a(f's_mov_b32 s{s_l}, 0'); a(f's_mov_b32 s{s_fast}, 0')
        for b, n in ((sWS, WS_END), (sX, 2048*1024*2), (sW, 1024*3072*2), (sWO, 1024*1024*2), (sOUT, WS_END), (sDBG, 256)):
            a(f's_mov_b32 s{b+2}, {n}'); a(f's_mov_b32 s{b+3}, 0x20000')
        if self.prof: a('v_mov_b32 v255, 0')
        self.stamp(0)
        a(f's_cmp_ge_u32 s{s_wave}, 6'); a('s_cbranch_scc1 L_helper')
        if self.st0 & 1: a(f's_cmp_lt_u32 s{s_wave}, 4'); a('s_cbranch_scc1 L_compute')
        else: a(f's_cmp_ge_u32 s{s_wave}, 4'); a('s_cbranch_scc1 L_loader')
    def pointers(self):
        a = self.a
        a('s_waitcnt lgkmcnt(0)')
        for b, p in ((sWS, pWS), (sX, pAX), (sW, pAW), (sWO, pAWO), (sOUT, pWS), (sDBG, pDBG)):
            a(f's_mov_b64 s[{b}:{b+1}], s[{p}:{p+1}]')

    def trickle_setup(self):
        a = self.a
        a(f's_mov_b64 s[{sOUT}:{sOUT+1}], s[{sWO}:{sWO+1}]'); a(f's_mov_b32 s{sOUT+2}, {1 << 21}')
        a.extend(sx(s_ft, [(2, 8192), (s_wave, 2048)], -8192))
        n1 = -(-16 // self.tr)
        a(f's_cmp_eq_u32 s{s_l}, 0'); a(f's_cselect_b32 s{s_fn}, 12, {n1}')
        a(f's_cmp_lt_u32 s{s_l}, {2 if self.warm else 0}'); a(f's_cselect_b32 s{s_fn}, s{s_fn}, 0')
    def trickle_lines(self, n):
        a = self.a
        a(f's_sub_u32 s{s_t}, s{sOUT+2}, {128*n}'); a(f's_min_u32 s{s_t}, s{s_t}, s{s_ft}')
        for r in range(n): a(f's_buffer_load_dwordx2 s[{s_fd}:{s_fd+1}], {srd(sOUT)}, s{s_t} offset:{128*r+60}')
        a(f's_add_u32 s{s_ft}, s{s_ft}, {128*n}')
    def trickle(self, i):
        a = self.a
        n1 = -(-16 // self.tr)
        def nxt():
            a(f's_mov_b64 s[{sOUT}:{sOUT+1}], s[{pBW}:{pBW+1}]'); a(f's_mov_b32 s{sOUT+2}, {3 << 21}')
            a.extend(sx(s_ft, [(2, 24576), (s_wave, 6144)], -24576))
        def body():
            if isinstance(i, str): self.cond([f's_cmp_eq_u32 {i}, {n1}'], nxt)
            elif i == n1: nxt()
            self.trickle_lines(self.tr)
        self.cond([f's_cmp_gt_u32 s{s_fn}, {i}'], body)
    def trickle_rest(self, part):
        rest = 48 - self.tr * (12 - -(-16 // self.tr))
        n = rest
        self.cond([f's_cmp_eq_u32 s{s_fn}, 12'], lambda: self.trickle_lines(n))

    def warm_w(self):
        a = self.a
        if not self.pw: return
        a(f's_and_b32 s{s_t}, s{s_m}, 3'); a.extend(sx(s_t+1, [(s_t, 16*6144), (s_wave, 4*6144), (s_g, 128)], -16*6144))
        a(f's_and_b32 s{s_t+2}, s{s_g}, 7')
        for st in range(1, 1 + self.pw):
            a(f's_cmp_le_u32 s{s_t+2}, {st-1}'); a(f's_addc_u32 s{s_t}, s{s_rot2}, {st-1}')
            a(f's_mul_i32 s{s_t}, s{s_t}, {64*6144}'); a(f's_add_u32 s{s_t}, s{s_t}, s{s_t+1}')
            for k in range(12): a(f's_buffer_load_dwordx2 s[{s_fd}:{s_fd+1}], {srd(sW)}, s{s_t} offset:{2048*k+60}')
    def warm_wo_setup(self):
        a = self.a
        a(f's_and_b32 s{s_t}, s{s_m}, 3'); a.extend(sx(s_po, [(s_t, 256*2048), (s_wave, 64*2048), (s_g, 128)], -256*2048))
    def warm_wo(self, n):
        a = self.a
        def body():
            for k in range(n): a(f's_buffer_load_dwordx2 s[{s_fd}:{s_fd+1}], {srd(sWO)}, s{s_po} offset:{2048*k+60}')
            a(f's_add_u32 s{s_po}, s{s_po}, {2048*n}'); a(f's_min_u32 s{s_po}, s{s_po}, {(1 << 21) - 2048*n}')
        if self.po: self.cond([f's_lshr_b32 s{s_t}, {self.po}, s{s_l}', f's_bitcmp1_b32 s{s_t}, 0'], body)

    def order(self, d, g7, first):
        a = self.a
        if first:
            a(f's_mov_b32 s{d}, 0x76543210'); a(f's_mov_b32 s{d+1}, 0xfedcba98')
            a(f's_bitcmp1_b32 s{s_m}, 2'); a(f's_cselect_b32 s{d}, 0xba987654, s{d}'); a(f's_cselect_b32 s{d+1}, 0x3210fedc, s{d+1}')
            a(f's_and_b32 s{s_x}, s{s_m}, 8')
        else:
            a(f's_lshl_b32 s{s_x}, s{g7}, 2')
            if self.swp: a(f's_lshl_b32 s{d}, s{g7}, s{s_x}'); a(f's_xor_b32 s{d}, s{d}, 0x76543210')
            else: a(f's_lshl_b32 s{d}, 0x11111110, s{s_x}'); a(f's_add_u32 s{d}, s{d}, 0x65432100')
            a(f's_or_b32 s{d}, s{d}, s{g7}')
            a(f's_lshr_b32 s{s_x}, s{s_m}, 2'); a(f's_mul_i32 s{d+1}, s{s_x}, 0x22222222'); a(f's_add_u32 s{d+1}, s{d+1}, 0x76543210')
            a(f's_or_b32 s{d+1}, s{d+1}, 0x88888888')
            a(f's_mov_b32 s{s_x}, s{s_rot2}')
        a(f's_mul_i32 s{s_x}, s{s_x}, 0x11111111'); a(f's_xor_b32 s{d}, s{d}, s{s_x}'); a(f's_xor_b32 s{d+1}, s{d+1}, s{s_x}')

    def w_dma_offsets(self, dw, idx, t0, t1, t2):
        a = self.a
        a(f'v_lshrrev_b32 v{t0}, 3, v1'); a(f'v_mul_u32_u24 v{t0}, 6144, v{t0}')
        a(f'v_and_b32 v{t1}, 7, v1'); a(f'v_bfe_u32 v{t2}, v1, 4, 1'); a(f'v_lshlrev_b32 v{t2}, 1, v{t2}')
        a(f'v_xor_b32 v{t1}, v{t1}, v{t2}'); a(f'v_xor_b32 v{t2}, 4, v{t1}')
        a(f'v_lshl_add_u32 v{t1}, v{t1}, 4, v{t0}'); a(f'v_lshl_add_u32 v{t2}, v{t2}, 4, v{t0}')
        d = 8*6144 - 1024
        a(f's_lshl_b32 s{s_t+1}, s{s_g}, 7'); a(f'v_add_u32 v{t1}, s{s_t+1}, v{t1}'); a(f's_add_u32 s{s_t+1}, s{s_t+1}, {d}'); a(f'v_add_u32 v{t2}, s{s_t+1}, v{t2}')
        a(f's_cmp_eq_u32 s{idx}, 0')
        for t in range(3):
            c = [((3*w + t) & 1)*32*6144 + ((3*w + t) >> 1)*2048 for w in range(2)]
            a(f's_mov_b32 s{s_t}, {c[1]}'); a(f's_cmov_b32 s{s_t}, {c[0]}')
            a(f'v_add_u32 v{dw+4*t}, s{s_t}, v{t1}'); a(f'v_add_u32 v{dw+4*t+1}, s{s_t}, v{t2}')
            a(f'v_add_u32 v{dw+4*t+2}, {2*d}, v{dw+4*t}'); a(f'v_add_u32 v{dw+4*t+3}, {2*d}, v{dw+4*t+1}')

    def w_frag_addr(self, aw, head_sreg, base, t0, t1, t2, nb_list=(0, 1)):
        L = [f'v_lshrrev_b32 v{t2}, 4, v1', f'v_bfe_u32 v{t0}, v1, 2, 2', f'v_lshl_add_u32 v{t1}, v{t2}, 3, v{t0}',
             f'v_lshrrev_b32 v{t0}, 1, v{t0}', f'v_and_b32 v{t2}, 1, v{t2}', f'v_lshl_add_u32 v{t0}, v{t2}, 1, v{t0}']
        if head_sreg is not None: L += [f's_lshl_b32 s{s_t}, s{head_sreg}, 1', f'v_xor_b32 v{t0}, s{s_t}, v{t0}']
        L += [f'v_and_b32 v{t2}, 3, v1', f'v_lshlrev_b32 v{t2}, 3, v{t2}', f'v_lshl_add_u32 v{t2}, v{t1}, 7, v{t2}']
        if base: L.append(f'v_add_u32 v{t2}, {base}, v{t2}')
        for k, nb in enumerate(nb_list): L += [f'v_xor_b32 v{t1}, {nb}, v{t0}', f'v_lshl_add_u32 v{aw+k}, v{t1}, 5, v{t2}']
        return L

    def reduce_job(self, after_by=None, after_fill=None):
        a = self.a
        T = 200
        vA, vZ, vO, t1, t2 = T, T+1, T+2, T+3, T+4
        s_a, s_b, s_c, s_d, s_e = 80, 81, 82, 83, 84
        a.extend(sx(s_t, [(s_l, 32), (s_g, 4), (s_wave, 1)], -4))
        a.extend(sx(s_a, [(s_t, 32768), (s_m, 128)], WS_KVP)); a(f's_add_u32 s{s_b}, s{s_a}, 16384')
        a.extend(sx(s_d, [(s_t, 2048), (s_m, 128)], WS_KVF))
        a.extend(sx(s_c, [(s_t, 1024)], WS_ZP)); a.extend(sx(s_e, [(s_t, 64)], WS_ZF))
        a(f's_and_b32 s{s_t}, s{s_t}, 1'); a(f's_xor_b32 s{s_t+1}, s{s_m}, s{s_g}'); a(f's_or_b32 s{s_t}, s{s_t}, s{s_t+1}')
        a(f's_cselect_b32 s{s_c}, {BIG}, s{s_c}'); a(f's_cselect_b32 s{s_e}, {BIG}, s{s_e}')
        a(f'v_and_b32 v{t1}, 7, v1'); a(f'v_lshlrev_b32 v{t1}, 4, v{t1}')
        a(f'v_lshrrev_b32 v{t2}, 3, v1'); a(f'v_lshl_add_u32 v{vA}, v{t2}, 11, v{t1}')
        a(f'v_lshlrev_b32 v{vZ}, 4, v1')
        a(f'v_lshrrev_b32 v{t2}, 4, v1'); a(f'v_lshl_add_u32 v{vO}, v{t2}, 2, v{t1}')
        D = T + 8; U = 160
        def late_fill():
            for k in range(4): a(f'v_mov_b32 v{D+k}, -1')
            fill = f'buffer_store_dwordx4 {vr(D,4)}, v{vZ}, {srd(sWS)}, s{s_t} offen'
            a.extend(sx(s_t, [(s_g, 131072), (s_wave, 32768), (s_m, 2048)], WS_KVP + (1 << 21) - 4*32768)); a(fill + ' sc1'); a(fill + ' offset:1024 sc1')
            a(f's_lshr_b32 s{s_t+1}, s{s_wave}, 1'); a(f's_and_b32 s{s_t+2}, s{s_wave}, 1')
            a.extend(sx(s_t, [(s_t+2, 1 << 20), (s_m, 1 << 16), (s_g, 4096), (s_t+1, 2048)], WS_HALO - 2*2048)); a(fill + ' sc1'); a(fill + ' offset:1024 sc1')
            a.extend(sx(s_t, [(s_wave, 262144), (s_m, 16384), (s_g, 1024)], WS_ST - 3*262144))
            a.extend(sx(s_t+3, [(s_g, 16384), (s_m, 1024)], WS_CS + 262144))
            a(f's_cmp_eq_u32 s{s_wave}, 7'); a(f's_cselect_b32 s{s_t}, s{s_t+3}, s{s_t}'); a(fill + ' sc1')
            a('s_mov_b64 exec, 0xff')
            a(f's_add_u32 s{s_t}, s{s_d}, {1 << 17}'); a(fill + ' sc1')
            a(f's_add_u32 s{s_t}, s{s_e}, {1 << 12}'); a(fill + ' sc1')
            a.extend(sx(s_t, [(s_g, 4096), (s_t+1, 2048), (s_m, 128)], WS_ZP + (1 << 16) - 2*2048)); a(fill + ' sc1')
            a('s_mov_b64 exec, -1')
            a('s_waitcnt vmcnt(0)')
        self.cond([f's_cmp_eq_u32 s{s_l}, 0'], late_fill)
        if self.hu is not None:
            vH, vG, s_f = T+5, T+6, 85
            a.extend(sx(s_f, [(s_l, 16384), (s_g, 2048)], WS_HU)); a(f'v_and_b32 v{vH}, 15, v1'); a(f'v_lshlrev_b32 v{vH}, 7, v{vH}')
        a('s_barrier')
        if self.hu is not None: a(self.flag_load(s_f, vH, vG))
        if self.jit: self.jitter(20)
        if self.rprio: a(f's_setprio {self.rprio}')
        a('s_barrier')
        if self.hu is not None: self.flag_wait(s_f, vH, vG, 11, pre='s_waitcnt vmcnt(0)', nap=self.hun)
        if after_by and self.w0a == 0: after_by()
        if self.b1: a(f's_sleep {self.b1}')
        self.ll_wait(([f's_sleep {self.n1}'] if self.n1 else []) + [f'buffer_load_dwordx4 {vr(D,4)}, v{vA}, {srd(sWS)}, s{s_a} offen sc1',
                      f'buffer_load_dwordx4 {vr(D+4,4)}, v{vA}, {srd(sWS)}, s{s_b} offen sc1',
                      f'buffer_load_dwordx4 {vr(D+8,4)}, v{vZ}, {srd(sWS)}, s{s_c} offen sc1',
                      f'buffer_load_dwordx4 {vr(D+12,4)}, v{vZ}, {srd(sWS)}, s{s_c} offen offset:1024 sc1'],
                     list(range(D, D+16)), t1, t2, 1)
        self.stamp(5)
        S = []
        for z in range(2):
            d, u = D + 8*z, U + 16*z
            for k in range(8): S += [f'v_lshlrev_b32 v{u+2*k}, 16, v{d+k}', f'v_and_b32 v{u+2*k+1}, 0xffff0000, v{d+k}']
            for k in range(4): S.append(pk('add', u+2*k, u+2*k, u+8+2*k))
            for k in range(4): S.append(sw32(u+k, u+4+k))
            S += [pk('add', u, u, u+4), pk('add', u+2, u+2, u+6), sw16(u, u+2), sw16(u+1, u+3), pk('add', u, u, u+2)]
            for k in range(2): S.append(f'v_add_f32_dpp v{u+k}, v{u+k}, v{u+k} row_ror:8 row_mask:0xf bank_mask:0xf')
            S.append(cvt(u, u, u+1))
        S += ['s_mov_b32 exec_lo, 0x00ff00ff', 's_mov_b32 exec_hi, 0x00ff00ff',
              f'buffer_store_dword v{U}, v{vO}, {srd(sWS)}, s{s_d} offen sc1',
              f'buffer_store_dword v{U+16}, v{vO}, {srd(sWS)}, s{s_e} offen sc1', 's_mov_b64 exec, -1']
        self.sw(S)
        if self.rprio: a('s_setprio 0')
        if after_by and self.w0a == 1: after_by()
        if self.zw: a(f's_waitcnt vmcnt({12 if (after_by and self.w0a == 1 and self.zw == 1) else 0})')
        a('s_barrier')
        if after_by and self.w0a == 2: after_by()

    def loader(self):
        a = self.a
        a.label('L_loader')
        dx, dw, dwo, t0, t1, t2, vf = 8, 16, 28, 2, 3, 4, 5
        s_ld, s_kx, s_kw, s_slot, s_mx, s_xstep, s_wo, s_wm0, s_sx, s_sw, s_xb, s_fl, s_mw = range(65, 78)
        a(f's_sub_u32 s{s_ld}, s{s_wave}, 4')
        self.w_dma_offsets(dw, s_ld, t0, t1, t2)
        a(f's_mul_i32 s{s_mw}, s{s_ld}, 12288')
        a(f's_lshl_b32 s{s_mx}, s{s_ld}, 13'); a(f's_add_u32 s{s_mx}, s{s_mx}, {XOFF}')
        s_tx, s_tv = 12, 78
        def nxt(r, t): return [f's_and_b32 s{r}, s{t}, 15', f's_lshr_b64 s[{t}:{t+1}], s[{t}:{t+1}], 4']
        def wst(slot=None, kw=None):
            L = []
            for j in range(12):
                if j == 0: L.append(f's_add_u32 m0, s{s_mw}, ' + (f's{s_slot}' if slot is None else str(slot*STG)))
                elif j % 4 == 0: L.append('s_add_u32 m0, m0, 4096')
                L.append(f'buffer_load_dwordx4 v{dw+j}, {srd(sW)}, s{kw or s_kw} offen offset:{1024*(j%4)} lds')
            a.extend(L + ([] if kw else nxt(s_sw, s_tv) + [f's_mul_i32 s{s_kw}, s{s_sw}, {64*6144}']))
        def xst(slot=None):
            L = []
            for j in range(8):
                if j == 0: L.append(f's_add_u32 m0, s{s_mx}, ' + (f's{s_slot}' if slot is None else str(slot*STG)))
                elif j == 4: L.append('s_add_u32 m0, m0, 4096')
                L.append(f'buffer_load_dwordx4 v{dx+j}, {srd(sX)}, s{s_kx} offen offset:{1024*(j%4)} sc1 lds')
            a.extend(L + nxt(s_sx, s_tx) + [f's_mul_i32 s{s_kx}, s{s_sx}, s{s_xstep}', f's_add_u32 s{s_kx}, s{s_kx}, s{s_xb}'])
        def kstart(first):
            if not first: a(f's_and_b32 s{s_t}, s{s_g}, 7')
            self.order(s_tv, s_t, first)
            if first: self.pointers()
            a(f's_lshr_b64 s[{s_tx}:{s_tx+1}], s[{s_tv}:{s_tv+1}], {0 if first else 4}')
            a.extend(nxt(s_sw, s_tv) + nxt(s_sx, s_tx))
            a(f's_mul_i32 s{s_kw}, s{s_sw}, {64*6144}'); a(f's_mul_i32 s{s_kx}, s{s_sx}, s{s_xstep}'); a(f's_add_u32 s{s_kx}, s{s_kx}, s{s_xb}')
        a(f's_lshl_b32 s{s_xb}, s{s_m}, 18'); a(f's_mov_b32 s{s_xstep}, 128'); kstart(True)
        wst(0)
        a(f'v_lshrrev_b32 v{t0}, 3, v1'); a(f'v_and_b32 v{t1}, 7, v1')
        a(f'v_lshrrev_b32 v{t2}, 4, v1'); a(f'v_xor_b32 v{t1}, v{t1}, v{t2}'); a(f'v_xor_b32 v{t2}, 4, v{t1}')
        a(f's_lshl_b32 s{s_t}, s{s_ld}, 17'); a(f'v_lshl_add_u32 v{t0}, v{t0}, 11, s{s_t}')
        a(f'v_lshl_add_u32 v{t1}, v{t1}, 4, v{t0}'); a(f'v_lshl_add_u32 v{t2}, v{t2}, 4, v{t0}')
        for j in range(8): a(f'v_add_u32 v{dx+j}, {j*16384 - 1024*(j%4)}, v{t1 if j % 2 == 0 else t2}')
        xst(0); wst(1)
        if self.ramp == -2: xst(1)
        a(f'v_lshrrev_b32 v{t0}, 5, v1'); a(f'v_lshlrev_b32 v{t0}, 4, v{t0}')
        a(f'v_bfe_u32 v{t1}, v1, 3, 2'); a(f'v_add_u32 v{t0}, v{t0}, v{t1}')
        a(f's_lshl_b32 s{s_t}, s{s_g}, 7'); a(f'v_lshl_add_u32 v{t0}, v{t0}, 11, s{s_t}')
        a(f'v_and_b32 v{t1}, 7, v1'); a(f'v_bfe_u32 v{t2}, v1, 4, 1'); a(f'v_lshlrev_b32 v{t2}, 1, v{t2}')
        a(f'v_xor_b32 v{t1}, v{t1}, v{t2}'); a(f'v_xor_b32 v{t2}, 4, v{t1}')
        a(f'v_lshl_add_u32 v{t1}, v{t1}, 4, v{t0}'); a(f'v_lshl_add_u32 v{t2}, v{t2}, 4, v{t0}')
        for G in range(4): a(f'v_add_u32 v{dwo+G}, {G*4*2048 - 1024*G}, v{t1 if G % 2 == 0 else t2}')
        a(f's_waitcnt vmcnt({20 if self.ramp == -2 else 12})'); a('s_barrier')
        if self.ramp != -2: xst(1)
        wst(2)
        if self.ramp < 0: xst(2)
        a(f's_waitcnt vmcnt({20 if self.ramp < 0 else 12})'); a('s_barrier')
        if self.ramp >= 0: xst(2)
        if self.ramp > 0:
            for k in range(self.ramp):
                xst(k % 3); a('s_waitcnt vmcnt(8)'); a('s_barrier'); wst(k % 3)
            a(f's_mov_b32 s{s_i}, {self.ramp}'); a(f's_mov_b32 s{s_slot}, {(self.ramp % 3)*STG}')
            a('s_branch L_ld_enter2')
        a.label('L_ld_enter')
        a(f's_mov_b32 s{s_i}, 0'); a(f's_mov_b32 s{s_slot}, 0')
        a.label('L_ld_enter2')
        s_c3 = 86
        a(f's_lshr_b32 s{s_c3}, s{sW}, 7'); a(f's_add_u32 s{s_c3}, s{s_c3}, s{s_g}'); a(f's_and_b32 s{s_c3}, s{s_c3}, 7')
        self.trickle_setup(); self.warm_wo_setup()
        def loop(name, n, extra):
            a.label(name)
            if self.wf == 1:
                L1, L2 = self.lab('wf'), self.lab('wfd')
                a(f's_cmp_eq_u32 s{s_c3}, 3'); a(f's_cbranch_scc1 {L1}')
                xst(); wst(); a(f's_branch {L2}')
                a.label(L1); wst(); xst(); a.label(L2)
            elif self.wf == 2: wst(); xst()
            else: xst(); wst()
            if extra:
                a(f's_add_u32 s{s_t}, s{s_i}, 1'); a(f's_and_b32 s{s_t}, s{s_t}, 7')
                a.extend(sx(s_wo, [(s_rot2, 2), (s_t, 1)], 24)); a(f's_and_b32 s{s_wo}, s{s_wo}, 31')
                a.extend(sx(s_wm0, [(s_wo, 65536), (s_ld, 2*4*2048)]))
                a.extend(sx(s_wo, [(s_t, 4096), (s_ld, 2048)], L_SPARE)); a(f's_mov_b32 m0, s{s_wo}')
                for G in range(2): a(f'buffer_load_dwordx4 v{dwo+G}, {srd(sWO)}, s{s_wm0} offen offset:{1024*G} lds')
            self.trickle(f's{s_i}'); self.warm_wo(5)
            a(f's_add_u32 s{s_slot}, s{s_slot}, {STG}'); a(f's_cmp_eq_u32 s{s_slot}, {3*STG}'); a(f's_cselect_b32 s{s_slot}, 0, s{s_slot}')
            a(f's_add_u32 s{s_i}, s{s_i}, 1'); a(f's_cmp_lt_u32 s{s_i}, {n}')
            a(f's_waitcnt vmcnt({22 if extra else 20})')
            a('s_barrier')
            a(f's_cbranch_scc1 {name}')
        if self.early: loop('L_ld_loop', 5, False); loop('L_ld_loop2', 13, True)
        else: loop('L_ld_loop', 13, False)
        def wo(p0, n, thr=None):
            a.extend(sx(s_wm0, [(s_ld, 4096)], L_WO + 4096*p0))
            a.extend(sx(s_wo, [(s_rot2, 2), (s_ld, 1)], p0)); a(f's_and_b32 s{s_wo}, s{s_wo}, 31'); a(f's_lshl_b32 s{s_wo}, s{s_wo}, 16')
            L = self.lab('wo')
            a(f's_mov_b32 s{s_i}, 0')
            a.label(L)
            if thr is not None: a(f's_waitcnt vmcnt({thr})')
            a(f's_mov_b32 m0, s{s_wm0}')
            a(f's_add_u32 s{s_wm0}, s{s_wm0}, 8192')
            for G in range(4): a(f'buffer_load_dwordx4 v{dwo+G}, {srd(sWO)}, s{s_wo} offen offset:{1024*G} lds')
            a(f's_add_u32 s{s_wo}, s{s_wo}, 131072'); a(f's_and_b32 s{s_wo}, s{s_wo}, 0x1fffff')
            a(f's_add_u32 s{s_i}, s{s_i}, 1'); a(f's_cmp_lt_u32 s{s_i}, {n//2}'); a(f's_cbranch_scc1 {L}')
        order = list(range(24, 32)) + list(range(4, 24)) + list(range(4))
        def wos(k0, k1):
            while k0 < k1:
                k = k0
                while k + 1 < k1 and order[k+1] == order[k] + 1: k += 1
                wo(order[k0], k + 1 - k0); k0 = k + 1
        n13, n14 = self.wsch; assert n13 <= 18 and n13 + n14 <= 28 and n13 % 2 == 0 and n14 % 2 == 0
        wos(0, n13)
        a(f's_waitcnt vmcnt({2*n13})'); a('s_barrier')
        wos(n13, n13 + n14)
        a('s_barrier')
        if self.hd:
            def hold():
                a.extend(sx(s_t, [(s_ld, 4)], P_CNT + 8)); a(f'v_mov_b32 v{t1}, s{s_t}')
                self.spin(['s_sleep 1', f'ds_read_b32 v{t0}, v{t1}'], [f'v_cmp_ne_u32 vcc, s{s_l}, v{t0}'], t0, 14)
            self.cond([f's_bitcmp1_b32 s{s_l}, 0'], hold)
        wos(n13 + n14, 32)
        if self.jit: self.jitter(23)
        a.extend(sx(s_fl, [(s_l, 8192), (s_m, 256), (s_rot2, 16), (s_ld, 8)], 4096))
        self.get_mode(t0); a.extend(self.flag_addr(vf, t0, s_fl))
        a.extend(sx(s_xb, [(s_l, 1 << 22), (s_m, 1 << 18)], WS_XI))
        a(f's_bitcmp0_b32 s{s_l}, 0')
        a(f's_cselect_b64 s[{sW}:{sW+1}], s[{pBW}:{pBW+1}], s[{pAW}:{pAW+1}]')
        a(f's_cselect_b64 s[{sWO}:{sWO+1}], s[{pBWO}:{pBWO+1}], s[{pAWO}:{pAWO+1}]')
        a(f's_mov_b64 s[{sX}:{sX+1}], s[{pWS}:{pWS+1}]'); a(f's_mov_b32 s{sX+2}, {WS_END}')
        a(f's_mov_b32 s{s_xstep}, 16384'); kstart(False)
        a(f's_lshl_b32 s{s_t}, s{s_ld}, 13'); a(f'v_lshl_add_u32 v{t0}, v1, 4, s{s_t}')
        for j in range(8): a(f'v_add_u32 v{dx+j}, {4096*(j//4)}, v{t0}')
        a(f's_bitcmp1_b32 s{s_l}, 0'); a('s_cbranch_scc1 L_ld_B')
        WR, s_k0 = 32, s_wm0
        inreg = [f's_lshr_b32 s{s_t}, {self.wr}, s{s_l}', f's_bitcmp1_b32 s{s_t}, 0']
        a(f's_mov_b32 s{s_k0}, s{s_kw}'); a.extend(nxt(s_sw, s_tv) + [f's_mul_i32 s{s_kw}, s{s_sw}, {64*6144}'])
        def wreg():
            for k in range(2):
                for j in range(12): a(f'buffer_load_dwordx4 {vr(WR+48*k+4*j,4)}, v{dw+j}, {srd(sW)}, s{s_kw} offen offset:{1024*(j%4)}')
                a.extend(nxt(s_sw, s_tv) + [f's_mul_i32 s{s_kw}, s{s_sw}, {64*6144}'])
        if self.wr: self.cond(inreg, wreg)
        self.reduce_job(lambda: wst(0, s_k0))
        a('s_branch L_ld_join')
        a.label('L_ld_B')
        self.cond([f's_cmp_lg_u32 s{s_l}, 3'], lambda: wst(0))
        a.label('L_ld_join')
        a('s_waitcnt vmcnt(0)'); a('s_barrier')
        a(f's_cmp_eq_u32 s{s_l}, 3'); a('s_cbranch_scc1 L_fin')
        self.trickle_rest(1); self.warm_w()
        if self.jit: self.jitter(21)
        if self.wr:
            a.extend(inreg); a('s_cbranch_scc0 L_ld_dma')
            a(f's_add_u32 s{s_t}, s{s_mw}, {STG}'); a(f'v_lshl_add_u32 v{t1}, v1, 4, s{s_t}')
            a('s_barrier'); a('s_barrier')
            for k in range(2):
                for j in range(12): a(f'ds_write_b128 v{t1}, {vr(WR+48*k+4*j,4)} offset:{STG*k+1024*j}')
            a('s_waitcnt lgkmcnt(0)')
            assert not self.spec & 4
            a('s_branch L_ld_x')
            a.label('L_ld_dma')
        a('s_barrier')
        if self.jit: self.jitter(22)
        wst(1)
        if self.w2 == 2: wst(2)
        if self.spec & 4: a('s_waitcnt vmcnt(0)')
        a('s_barrier')
        if self.w2 == 0: wst(2)
        a.label('L_ld_x')
        a(f's_add_u32 s{s_l}, s{s_l}, 1')
        if self.lprio: a(f's_setprio {self.lprio}')
        self.flag_wait(s_fl, vf, t0, 2, nap=self.xnap, own=True)
        self.stamp(1)
        xst(1); xst(2)
        if self.lprio: a('s_setprio 0')
        a('s_waitcnt vmcnt(8)'); a('s_barrier')
        if self.w2 == 1: wst(2)
        a('s_branch L_ld_enter')

    def helper(self):
        a = self.a
        a.label('L_helper')
        t0, t1, t2, t3, l4, l16, ones, a_st, a_cs, v_st, v_cs, aw, vtw, vto, vd = 2, 3, 4, 5, 6, 7, 8, 12, 13, 14, 15, 16, 18, 19, 20
        F, D, SA, SC = 32, 96, 128, 160
        s_h, s_tw, s_a, s_b, s_trot = 65, 66, 67, 68, 69
        xm = 4; s_r, s_tob, s_to, s_cs = 70, 71, 72, 74; vrf, vfl, aw2, dw = 21, 22, 24, 80
        a(f's_sub_u32 s{s_h}, s{s_wave}, 6')
        if self.tlb:
            self.pointers()
            def others():
                for p, n in ((pPHI, 65536), (pDBG, 256), (pAWO, 1 << 21), (pBW, 3 << 21), (pBWO, 1 << 21), (pOUT, 1 << 22)):
                    for o in list(range(0, n, 1 << 21)) + ([n - 4] if n >= 1 << 21 else []):
                        a(f's_mov_b32 s{s_t}, {o}'); a(f's_load_dword s{s_fd}, s[{p}:{p+1}], s{s_t}')
            def wsp():
                a(f's_lshr_b32 s{s_t}, s2, 3'); a(f's_lshl_b32 s{s_t}, s{s_t}, 21'); a(f's_add_u32 s{s_t}, s{s_t}, 0x80000'); a(f's_min_u32 s{s_t}, s{s_t}, {WS_END - 4}')
                a(f's_load_dword s{s_fd}, s[{pWS}:{pWS+1}], s{s_t}')
                if self.tlb == 2:
                    for k in range(6): a(f's_mov_b32 s{s_t}, {(k << 21) + 0x80000}'); a(f's_load_dword s{s_fd}, s[{pWS}:{pWS+1}], s{s_t}')
            self.cond([f's_cmp_eq_u32 s{s_h}, 0'], wsp)
            self.cond([f's_cmp_eq_u32 s{s_h}, 1'], others)
        def touch_setup(first=False):
            if not self.touch: return
            c, gt = s_t + 2, s_t + 3
            def cls(b):
                a(f's_lshr_b32 s{gt}, s{b}, 7'); a(f's_sub_u32 s{gt}, 3, s{gt}'); a(f's_and_b32 s{gt}, s{gt}, 7')
                a(f's_sub_u32 s{c}, s{s_g}, s{gt}'); a(f's_and_b32 s{c}, s{c}, 7'); a(f's_sub_u32 s{c}, s{c}, 1')
                a(f's_and_b32 s{s_t}, s{s_g}, 8'); a(f's_add_u32 s{gt}, s{gt}, s{s_t}'); a(f's_lshl_b32 s{gt}, s{gt}, 7')
            a(f's_and_b32 s{s_t+4}, s{s_m}, {xm-1}'); a(f's_lshl_b32 s{s_t+4}, s{s_t+4}, 1'); a(f's_add_u32 s{s_t+4}, s{s_t+4}, s{s_h}')
            cls(sW)
            a(f's_bfe_u32 s{s_t}, s{gt}, 0x30007'); self.order(s_to, s_t, first)
            a(f's_cmp_ge_u32 s{c}, 3'); a(f's_cselect_b32 s{s_t}, {32*6144 - 3*2048}, 0'); a(f's_add_u32 s{gt}, s{gt}, s{s_t}')
            a(f's_lshl_b32 s{s_t}, s{c}, 11'); a(f's_add_u32 s{gt}, s{gt}, s{s_t}')
            a(f's_mul_i32 s{s_t}, s{s_t+4}, {(16//xm)*6144}'); a(f's_add_u32 s{gt}, s{gt}, s{s_t}')
            a(f's_cmp_lt_u32 s{c}, 6'); a(f's_cselect_b32 s{s_t}, {16//xm}, 0')
            a(f'v_mul_u32_u24 v{vtw}, 6144, v1'); a(f'v_add_u32 v{vtw}, s{gt}, v{vtw}')
            a(f'v_mov_b32 v{t0}, {BIG}'); a(f'v_cmp_gt_u32 vcc, s{s_t}, v1'); a(f'v_cndmask_b32 v{vtw}, v{t0}, v{vtw}, vcc')
            cls(sWO)
            a(f's_lshl_b32 s{s_t}, s{c}, 19'); a(f's_add_u32 s{gt}, s{gt}, s{s_t}')
            a(f's_mul_i32 s{s_t}, s{s_t+4}, {(128//xm)*2048}'); a(f's_add_u32 s{gt}, s{gt}, s{s_t}')
            a(f's_cmp_lt_u32 s{c}, 4'); a(f's_cselect_b32 s{s_t}, {32//xm}, 0'); a(f's_cselect_b32 s{s_tob}, s{gt}, -1')
            if first: a(f's_mov_b32 s{s_tob}, -1')
            a(f'v_lshlrev_b32 v{vto}, 11, v1'); a(f'v_add_u32 v{vto}, s{gt}, v{vto}')
            a(f'v_cmp_gt_u32 vcc, s{s_t}, v1'); a(f'v_cndmask_b32 v{vto}, v{t0}, v{vto}, vcc')
        def touchW(st):
            if not self.touch: return
            a(f's_bfe_u32 s{s_tw}, s{s_to + st//8}, {0x40000 + 4*(st%8):#x}'); a(f's_mul_i32 s{s_tw}, s{s_tw}, {64*6144}')
            a(f'buffer_load_dword v{vd}, v{vtw}, {srd(sW)}, s{s_tw} offen')
        def touchO(k):
            if not self.touch: return
            a(f's_mov_b32 s{s_tw}, {k*(32//xm)*2048}')
            a(f'buffer_load_dword v{vd}, v{vto}, {srd(sWO)}, s{s_tw} offen')
        if self.c3 & 2:
            self.pointers(); touch_setup(True)
            for st in range(0, 3 + self.dist): touchW(st)
        a(f'v_lshlrev_b32 v{l4}, 2, v1'); a(f'v_lshlrev_b32 v{l16}, 4, v1')
        a.extend(self.w_frag_addr(aw2, s_h, 0, t0, t1, t2))
        a.extend(self.flag_addr(vrf, t0, None, remote=True))
        a(f'v_lshrrev_b32 v{t0}, 5, v1'); a(f'v_and_b32 v{t1}, 31, v1'); a(f'v_lshlrev_b32 v{t1}, 4, v{t1}')
        a(f'v_lshl_add_u32 v{v_st}, v{t0}, 10, v{t1}')
        a(f'v_and_b32 v{t2}, 24, v1'); a(f'v_and_b32 v{t3}, 3, v1'); a(f'v_lshl_add_u32 v{t2}, v{t3}, 1, v{t2}'); a(f'v_add_u32 v{t2}, v{t2}, v{t0}')
        a.extend(sx(s_t, [(s_h, 256)], P_NM)); a(f'v_lshl_add_u32 v{a_st}, v{t2}, 3, s{s_t}')
        a(f'v_mov_b32 v{t2}, {BIG}'); a(f'v_cmp_gt_u32 vcc, 384, v{t1}'); a(f'v_cndmask_b32 v{v_cs}, v{t2}, v{v_st}, vcc')
        a.extend(sx(s_t, [(s_h, 384)], P_CS)); a(f'v_lshl_add_u32 v{t1}, v{t0}, 3, v{t1}'); a(f'v_add_u32 v{a_cs}, s{s_t}, v{t1}')
        if not self.tlb and not self.c3 & 2: self.pointers()

        def phi_load():
            a(f's_mov_b64 s[{sX}:{sX+1}], s[{pPHI}:{pPHI+1}]'); a(f's_mov_b32 s{sX+2}, 65536')
            a.extend(sx(s_t, [(s_g, 4096), (s_h, 2048)])); a(f's_lshl_b32 s{s_t+1}, s{s_h}, 11'); a(f's_add_u32 m0, s{s_t+1}, {P_PHI}')
            for j in range(2): a(f'buffer_load_dwordx4 v{l16}, {srd(sX)}, s{s_t} offen offset:{1024*j} lds')
        vc = 26
        if self.cpf: a(f's_getpc_b64 s[{s_t}:{s_t+1}]')
        if self.cpf: a.label('L_pc')
        if self.cpf: a(f's_sub_u32 s{s_t}, s{s_t}, L_pc-{KNAME}'); a(f's_subb_u32 s{s_t+1}, s{s_t+1}, 0')
        if self.cpf: a(f's_lshr_b32 s{s_t+2}, s2, 3'); a.extend(sx(s_t+3, [(s_t+2, 1280), (s_h, 640)]))
        if self.cpf: a(f'v_lshl_add_u32 v{t0}, v1, 7, s{s_t+3}'); a(f'v_min_u32 v{t0}, L_last-{KNAME}, v{t0}')
        if self.cpf: a(f'v_mov_b32 v{vc+1}, s{s_t+1}'); a(f'v_add_co_u32 v{vc}, vcc, s{s_t}, v{t0}'); a(f'v_addc_co_u32 v{vc+1}, vcc, 0, v{vc+1}, vcc')
        def code_touch():
            a('s_mov_b64 exec, 31'); a(f'global_load_dword v{vd}, {vr(vc,2)}, off'); a('s_mov_b64 exec, -1')
        if self.cpf & 1: code_touch()
        def cold_touch():
            a(f's_and_b32 s{s_t}, s{s_m}, 3'); a(f's_and_b32 s{s_t+1}, s{s_m}, 12')
            a.extend(sx(s_t+2, [(s_t, 16*6144), (s_t+1, 64*6144), (s_h, 64*6144), (s_g, 128)]))
            a(f'v_lshlrev_b32 v{t0}, 11, v1'); a('s_mov_b32 exec_hi, 0xffff')
            for st in self.t0s:
                a(f's_add_u32 s{s_t}, s{s_t+2}, {abs(st)*64*6144}'); a(f'buffer_load_dword v{vd}, v{t0}, {srd(sW)}, s{s_t} offen')
            a('s_mov_b32 exec_hi, -1')
        if self.t0s and self.t0s[0] < 0: cold_touch()
        if not self.c3 & 2: touch_setup(True)
        if self.t0s and self.t0s[0] >= 0: cold_touch()
        for st in range(1, 0 if self.c3 & 2 else 3 + self.dist): touchW(st)

        def init_stores():
            for k in range(4): a(f'v_mov_b32 v{SA+k}, -1')
            fill = f'buffer_store_dwordx4 {vr(SA,4)}, v{l16}, {srd(sWS)}, s{s_t} offen'
            a.extend(sx(s_t, [(s_g, 131072), (s_h, 65536), (s_m, 2048)], WS_KVP)); a(fill + ' sc1'); a(fill + ' offset:1024 sc1')
            a(f's_add_u32 s{s_t}, s{s_t}, 32768'); a(fill + ' sc1'); a(fill + ' offset:1024 sc1')
            a('s_mov_b64 exec, 0xff')
            a.extend(sx(s_t, [(s_g, 8192), (s_h, 4096), (s_m, 128)], WS_KVF)); a(fill + ' sc1'); a(fill + ' offset:2048 sc1')
            a.extend(sx(s_t, [(s_g, 4096), (s_h, 2048), (s_m, 128)], WS_ZP)); a(fill + ' sc1')
            a.extend(sx(s_t, [(s_g, 256), (s_h, 128)], WS_ZF))
            a(f's_cmp_eq_u32 s{s_m}, s{s_g}'); a(f's_cselect_b32 s{s_t}, s{s_t}, {BIG}'); a(fill + ' sc1')
            a('s_mov_b64 exec, -1')
            a(f'v_lshrrev_b32 v{t1}, 2, v1'); a(f'v_lshlrev_b32 v{t1}, 10, v{t1}'); a(f'v_and_or_b32 v{t1}, v1, 3, v{t1}')
            a.extend(sx(s_t, [(s_m, 64), (s_g, 4)])); a(f'v_add_u32 v{t1}, s{s_t}, v{t1}')
            a(f's_cmp_eq_u32 s{s_h}, 0'); a(f's_cselect_b32 s{s_t+1}, {2 + self.ls}, 7'); a(f's_cselect_b32 s{s_t}, 0, {WS_RF}')
            a(f'v_lshlrev_b32 v{t1}, s{s_t+1}, v{t1}'); a(f'v_mov_b32 v{t0}, 0')
            a('s_mov_b64 exec, 0xfffffff')
            a(f'buffer_store_dword v{t0}, v{t1}, {srd(sWS)}, s{s_t} offen sc1')
            a('s_mov_b64 exec, -1')
            if self.hu is not None:
                a.extend(sx(s_t, [(s_h, 32768), (s_g, 2048), (s_m, 128)], WS_HU)); a(f'buffer_store_dword v{t0}, off, {srd(sWS)}, s{s_t} sc1')
            a.extend(sx(s_t, [(s_h, 4)], P_CNT)); a(f'v_mov_b32 v{t1}, s{s_t}'); a(f'ds_write_b32 v{t1}, v{t0}')
            a.extend(sx(s_t, [(s_g, 16384), (s_m, 1024)], WS_CS)); a(f's_cmp_eq_u32 s{s_h}, 1'); a(f's_cselect_b32 s{s_t}, s{s_t}, {BIG}'); a(fill + ' sc1')
        for k in range(4): a(f'v_mov_b32 v{ones+k}, 0x3f803f80')
        def cs_reads(aw=aw):
            for s in range(2):
                for n in range(6):
                    for t in range(2):
                        a(f'ds_read_b64_tr_b16 {vr(F+24*s+4*n+2*t,2)}, v{aw+(n&1)} offset:{(n>>1)*8192+(32*s+4*t)*128}')
            a('s_waitcnt lgkmcnt(0)')
        def cs_publish():
            for s in range(2):
                for n in range(6): a(mf16(D+4*n, ones, F+24*s+4*n, D+4*n if s else None))
            a.extend(sx(s_t, [(s_l, 262144), (s_g, 16384), (s_m, 1024), (s_h, 128)], WS_CS))
            a('s_mov_b64 exec, 0xffff')
            for n in range(6): a(f'buffer_store_dword v{D+4*n}, v{l4}, {srd(sWS)}, s{s_t} offen offset:{(n>>1)*256+(n&1)*64} sc1')
            a('s_mov_b64 exec, -1')
        def arrive():
            a(f's_getreg_b32 s{s_t}, hwreg(HW_REG_XCC_ID, 0, 3)'); a(f's_lshl_b32 s{s_t}, s{s_t}, 2'); a(f's_lshl_b32 s{s_t+1}, 1, s{s_t}')
            a.extend(sx(s_t, [(s_m, 16), (s_rot2, 1)]))
            a('s_mov_b64 exec, 1')
            a(f'v_mov_b32 v{t0}, s{s_t+1}')
            a(f'buffer_atomic_add v{t0}, off, {srd(sDBG)}, s{s_t} sc1')
            a('s_mov_b64 exec, -1')
        iload = f'buffer_load_dword v{vfl}, v{t2}, {srd(sDBG)}, 0 offen sc1'
        def init_look():
            a(f'v_and_b32 v{t2}, 31, v1'); a(f'v_lshlrev_b32 v{t2}, 3, v{t2}'); a(iload)
        def init_wait():
            a('s_waitcnt vmcnt(0)')
            self.spin(['s_sleep 16', iload],
                      [f'v_lshrrev_b32 v{t1}, 4, v{vfl}', f'v_and_b32 v{t1}, 0x0f0f0f0f, v{t1}', f'v_and_b32 v{t3}, 0x0f0f0f0f, v{vfl}',
                       f'v_sad_u8 v{t1}, v{t1}, 0, 0', f'v_sad_u8 v{t3}, v{t3}, 0, v{t1}', f'v_cmp_gt_u32 vcc, 8, v{t3}'], t3, 3, pre=True)
            a(f's_lshr_b32 s{s_t}, s{s_rot2}, 3'); a(f's_lshl_b32 s{s_t+1}, s{s_m}, 1'); a(f's_add_u32 s{s_t}, s{s_t}, s{s_t+1}')
            a(f'v_readlane_b32 s{s_fast}, v{vfl}, s{s_t}')
            a(f's_and_b32 s{s_fast}, s{s_fast}, 0x88888888'); a(f's_cselect_b32 s{s_fast}, {1 if self.local else 0}, 0')
            a(f'v_mov_b32 v{t3}, s{s_fast}'); a(f'v_mov_b32 v{t2}, {P_MODE}'); a(f'ds_write_b32 v{t2}, v{t3}')
        def gather(R, va, so, ks):
            L = []
            for k in ks: L += [f's_add_u32 s{s_t}, s{so}, {4096*(k//2)}', f'buffer_load_dwordx4 {vr(R+4*k,4)}, v{va}, {srd(sWS)}, s{s_t} offen offset:{2048*(k%2)} sc1']
            return L
        def total(R):
            n = 8
            while n > 1:
                n //= 2
                for k in range(4*n): a(f'v_add_f32 v{R+k}, v{R+k}, v{R+k+4*n}')
            a(sw32(R, R+2)); a(sw32(R+1, R+3)); a(f'v_add_f32 v{R}, v{R}, v{R+2}'); a(f'v_add_f32 v{R+1}, v{R+1}, v{R+3}')
        def stats_finish():
            for k in range(2): a(f'v_mov_b32_dpp v{SA+2+k}, v{SA+k} row_shl:4 row_mask:0xf bank_mask:0xf')
            for k in range(2): a(f'v_mul_f32 v{SA+k}, {f2u(-1/1024)}, v{SA+k}'); a(f'v_mul_f32 v{SA+2+k}, {f2u(1/1024)}, v{SA+2+k}')
            for k in range(2): a(f'v_fma_f32 v{SA+2+k}, -v{SA+k}, v{SA+k}, v{SA+2+k}')
            for k in range(2): a(f'v_max_f32 v{SA+2+k}, 0, v{SA+2+k}')
            for k in range(2): a(f'v_add_f32 v{SA+2+k}, {f2u(1e-5)}, v{SA+2+k}')
            for k in range(2): a(f'v_rsq_f32 v{SA+2+k}, v{SA+2+k}')
            a('s_mov_b32 exec_lo, 0x0f0f0f0f'); a('s_mov_b32 exec_hi, 0x0f0f0f0f')
            a(f'ds_write_b64 v{a_st}, {vr(SA,2)}'); a(f'ds_write_b64 v{a_st}, {vr(SA+2,2)} offset:512')
            a('s_mov_b64 exec, -1')
        def cs_finish():
            total(SC)
            a(f's_mul_i32 s{s_t}, s{s_l}, 768'); a(f'v_add_u32 v{t0}, s{s_t}, v{a_cs}')
            a('s_mov_b32 exec_lo, 0xffffff'); a('s_mov_b32 exec_hi, 0xffffff')
            a(f'ds_write_b64 v{t0}, {vr(SC,2)}')
            a('s_mov_b64 exec, -1')
        l0 = [f's_cmp_eq_u32 s{s_l}, 0']; ln0 = [f's_cmp_lg_u32 s{s_l}, 0']; l01 = [f's_cmp_lt_u32 s{s_l}, 2']
        a(f's_mov_b32 s{s_r}, 0')
        a.label('L_hp_layer')
        a(f's_lshr_b32 s{s_t}, s{s_m}, 2'); a(f's_lshl_b32 s{s_t}, s{s_t}, 1'); a(f's_bitcmp1_b32 s{s_m}, 1'); a(f's_cselect_b32 s{s_t}, 8, s{s_t}')
        a(f's_and_b32 s{s_t+1}, s{s_m}, 2'); a(f's_cmp_eq_u32 s{s_l}, 0'); a(f's_cselect_b32 s{s_t}, s{s_t+1}, s{s_t}')
        a(f's_and_b32 s{s_t+1}, s{s_m}, 1'); a(f's_add_u32 s{s_cs}, s{s_t}, s{s_t+1}')
        a(f's_mul_i32 s{s_t}, s{s_cs}, 11'); a(f's_lshr_b32 s{s_t}, s{s_t}, 5'); a(f's_mul_i32 s{s_t}, s{s_t}, 3'); a(f's_sub_u32 s{s_t}, s{s_cs}, s{s_t}'); a(f's_mul_i32 s{s_t}, s{s_t}, {STG}')
        for k in range(2): a(f'v_add_u32 v{aw+k}, s{s_t}, v{aw2+k}')
        a(f's_cmp_lt_u32 s{s_l}, 2'); a(f's_cselect_b32 s{s_cs}, s{s_cs}, 99')
        a.extend(sx(s_a, [(s_l, 262144), (s_m, 16384), (s_h, 512)], WS_ST))
        a.extend(sx(s_b, [(s_l, 262144), (s_g, 16384), (s_h, 384)], WS_CS))
        self.trickle_setup(); self.warm_wo_setup()
        hi = lambda: self.hprio and a(f's_setprio {self.hprio}')
        lo = lambda: self.hprio and a('s_setprio 0')
        l1 = [f's_cmp_eq_u32 s{s_l}, 1']
        for i in range(17):
            a('s_barrier')
            if self.jit and i in (0, 1, 4, 8, 9, 12, 16): self.jitter(30 + i)
            ncs = 16 - self.rot0
            l0h0 = [f's_or_b32 s{s_t}, s{s_l}, s{s_h}', f's_cmp_eq_u32 s{s_t}, 0']
            if i < 10: self.cond([f's_cmp_eq_u32 s{s_cs}, {i}'], cs_reads)
            if i in (self.i0 + self.iw, 5, 13) or (i == 14 and self.gi == 12): a('s_waitcnt vmcnt(0)')
            if i == 5: self.cond(ln0, lambda: self.flag_wait(s_r, vrf, vfl, 8, pre=True, nap=self.nap))
            if i == 9: self.cond(l0h0, init_wait)
            if i <= 13: hi()
            if i == self.i0: self.cond(l0, lambda: (init_stores(), phi_load()))
            if i == self.i0 + self.iw + 1: self.cond(l0h0, arrive)
            if i == max(4, ncs, self.i0 + self.iw + 1): self.cond(l0, cs_publish)
            if i == 10: self.cond(l1, cs_publish)
            if i == 8: self.cond(l0h0, init_look)
            if i == 11 and self.cpf & 2: self.cond(l01, code_touch)
            if i == 4: self.cond(ln0, lambda: a(self.flag_load(s_r, vrf, vfl)))
            if i + 3 + self.dist <= 15: touchW(i + 3 + self.dist)
            if 5 <= i <= 8:
                if self.tos: self.cond(l0, lambda: touchO(i - 5))
                else: touchO(i - 5)
            if i == 6: self.cond([f's_cmp_eq_u32 s{s_l}, 2'], phi_load)
            if self.si == 10:
                if i in (10, 11): a.extend(gather(SA, v_st, s_a, range(4*(i-10), 4*(i-10)+4)))
            else:
                if i in (10, 11): self.cond(l0, lambda: a.extend(gather(SA, v_st, s_a, range(4*(i-10), 4*(i-10)+4))))
                if self.si <= i < self.si + 8: self.cond(ln0, lambda: a.extend(gather(SA, v_st, s_a, [i - self.si])))
            if i in (self.gi, self.gi + 1): self.cond(l01, lambda: a.extend(gather(SC, v_cs, s_b, range(4*(i-self.gi), 4*(i-self.gi)+4))))
            if i == 12 and self.gi == 120: self.cond(l01, lambda: a.extend(gather(SC, v_cs, s_b, range(8))))
            if i <= 13: lo()
            if 1 <= i <= 12: self.trickle(i - 1)
            if self.tos and 5 <= i <= 12:
                self.cond([f's_cmp_lg_u32 s{s_tob}, -1'], lambda: [a(f's_buffer_load_dwordx2 s[{s_fd}:{s_fd+1}], {srd(sWO)}, s{s_tob} offset:{2048*(4*(i-5)+r)+60}') for r in range(4)])
            if i == 13: self.ll_wait(gather(SA, v_st, s_a, range(8)), list(range(SA, SA+32)), t0, t1, 6, pre=True); total(SA)
            if i == 14: stats_finish()
            if i == 14: self.cond(l01, lambda: self.ll_wait(gather(SC, v_cs, s_b, range(8)), list(range(SC, SC+32)), t0, t1, 7, pre=True))
            if i == 15: self.cond(l01, cs_finish); a('s_waitcnt lgkmcnt(0)')
        a.extend(sx(s_t+1, [(s_l, 8192), (s_m, 256), (s_g, 16), (s_h, 4096)])); a(f's_lshl_b32 s{s_t+1}, s{s_t+1}, {self.ls}')
        a(f'v_and_b32 v{t0}, 3, v1'); a(f'v_lshlrev_b32 v{t0}, {2 + self.ls}, v{t0}'); a(f'buffer_load_dword v{vd}, v{t0}, {srd(sWS)}, s{s_t+1} offen sc1')
        a.extend(sx(s_t, [(s_l, 8192), (s_m, 256), (s_rot2, 16)]))
        a(f's_xor_b32 s{s_t}, s{s_t}, 128'); a.extend(sx(s_r, [(s_t, 32), (s_h, 256)], WS_RF))
        a(f's_bitcmp0_b32 s{s_l}, 0')
        a(f's_cselect_b64 s[{sW}:{sW+1}], s[{pBW}:{pBW+1}], s[{pAW}:{pAW+1}]')
        a(f's_cselect_b64 s[{sWO}:{sWO+1}], s[{pBWO}:{pBWO+1}], s[{pAWO}:{pAWO+1}]')
        touch_setup()
        touchW(0); touchW(1); touchW(2)
        a(f's_bitcmp1_b32 s{s_l}, 0'); a('s_cbranch_scc1 L_hp_B')
        self.reduce_job()
        a('s_branch L_hp_join')
        a.label('L_hp_B')
        a.label('L_hp_join')
        a('s_barrier')
        a(f's_cmp_eq_u32 s{s_l}, 3'); a('s_cbranch_scc1 L_fin')
        self.trickle_rest(1); self.warm_w()
        a(f's_add_u32 s{s_r}, s{s_r}, {4096*32}')
        a(f's_add_u32 s{s_l}, s{s_l}, 1')
        a('s_barrier')
        for st in range(3, 3 + self.dist): touchW(st)
        def chunks():
            for k in range(4):
                a(f's_and_b32 s{s_tw}, s{s_m}, 12'); a(f's_add_u32 s{s_tw}, s{s_tw}, {k}'); a(f's_mul_i32 s{s_tw}, s{s_tw}, {64*6144}')
                a(f'buffer_load_dword v{vd}, v{vtw}, {srd(sW)}, s{s_tw} offen')
        if self.c3 & 1: self.cond([f's_cmp_eq_u32 s{s_l}, 1'], chunks)
        a('s_branch L_hp_layer')

    def compute(self):
        a = self.a
        one, l16, voffR, voffI, a_tok, a_row, a_t32, a_csr, a_csv = 0, 2, 3, 4, 5, 6, 7, 8, 9
        ax, awq = 10, 12
        l4 = 14; vst = 15
        XR = 16
        ACC = 32
        FX = [128, 144]; FW = [160, 184]
        T = 208
        t0, t1, t2, t3 = T, T+1, T+2, T+3
        s_wm, s_wh, s_rslot, s_delta, s_stg, s_ones = 65, 66, 67, 68, 69, 70
        s_o = 71
        s_ob = 75
        s_obase, s_ooff, s_a, s_b, s_c, s_d, s_e, s_fp, s_st, s_fo = range(77, 87)
        a(f'v_lshrrev_b32 v{t0}, 4, v1')
        a(f'v_and_b32 v{t1}, 15, v1')
        a(f'v_and_b32 v{t2}, 1, v{t0}'); a(f'v_lshrrev_b32 v{t3}, 1, v{t0}'); a(f'v_lshl_add_u32 v{t2}, v{t2}, 1, v{t3}')
        a(f'v_lshlrev_b32 v{voffR}, 11, v{t1}'); a(f'v_lshl_add_u32 v{voffR}, v{t2}, 4, v{voffR}')
        def x0():
            a = self.a
            a.extend(sx(s_t, [(s_m, 1 << 18), (s_wave, 1 << 16), (s_g, 128)])); a(f's_add_u32 s{s_t+1}, s{s_t}, 32768')
            if not self.st0 & 16 and self.xd is None and not self.d0: self.pointers()
            if self.crow & 1:
                a.extend(sx(s_t+2, [(2, 4*6144), (s_wave, 6144)])); a(f'v_lshlrev_b32 v{T+8}, 7, v1'); a('s_mov_b32 exec_hi, 0xffff')
                a(f'buffer_load_dword v{T+9}, v{T+8}, {srd(sW)}, s{s_t+2} offen'); a('s_mov_b32 exec_hi, -1')
            if self.crow & 2:
                a.extend(sx(s_t+2, [(2, 4*4096), (s_wave, 4096)])); a(f'v_lshlrev_b32 v{T+8}, 7, v1'); a('s_mov_b32 exec_hi, 0')
                a(f'buffer_load_dword v{T+9}, v{T+8}, {srd(sX)}, s{s_t+2} offen'); a('s_mov_b32 exec_hi, -1')
            if self.xl:
                a(f'v_lshrrev_b32 v{T+8}, 3, v1'); a(f'v_and_b32 v{T+9}, 7, v1'); a(f'v_lshlrev_b32 v{T+9}, 4, v{T+9}'); a(f'v_lshl_add_u32 v{T+8}, v{T+8}, 11, v{T+9}')
                a.extend(sx(s_t+1, [(s_wave, 4096)], L_SPARE)); a(f's_mov_b32 m0, s{s_t+1}')
                for j in range(4):
                    if j: a(f's_add_u32 s{s_t}, s{s_t}, {16384 - 1024}')
                    a(f'buffer_load_dwordx4 v{T+8}, {srd(sX)}, s{s_t} offen offset:{1024*j} lds')
                a(f'v_lshrrev_b32 v{T+9}, 4, v{voffR}'); a(f'v_and_b32 v{T+9}, 0x780, v{T+9}'); a(f'v_and_or_b32 v{T+9}, v{voffR}, 48, v{T+9}'); a(f'v_add_u32 v{T+9}, s{s_t+1}, v{T+9}')
                return
            for tb in range(2):
                for e in range(2): a(f'buffer_load_dwordx4 {vr(XR+8*tb+4*e,4)}, v{voffR}, {srd(sX)}, s{s_t+tb} offen offset:{64*e}')
        if self.d0:
            self.pointers(); a.extend(sx(s_t, [(s_wave, 4096)], XOFF)); a(f'v_lshlrev_b32 v{T+9}, 7, v{t1}'); a(f'v_lshl_add_u32 v{T+9}, v{t0}, 4, v{T+9}'); a(f'v_add_u32 v{T+9}, s{s_t}, v{T+9}')
        elif self.st0 & 16 or self.xd is not None: self.pointers()
        elif not self.st0 & 8: x0()
        a(f's_lshr_b32 s{s_wm}, s{s_wave}, 1'); a(f's_and_b32 s{s_wh}, s{s_wave}, 1')
        a(f'v_mov_b32 v{one}, 1')
        a(f'v_lshl_add_u32 v{voffI}, v{t2}, 4, v{t1}'); a(f'v_lshlrev_b32 v{voffI}, 4, v{voffI}'); a(f'v_mov_b32 v{vst}, v{voffI}')
        a(f'v_lshlrev_b32 v{l16}, 4, v1'); a(f'v_lshlrev_b32 v{l4}, 2, v1')
        a.extend(sx(s_t, [(s_wm, 256)], P_NM))
        a(f'v_lshl_add_u32 v{a_tok}, v{t1}, 2, s{s_t}')
        a(f'v_lshl_add_u32 v{a_row}, v{t0}, 4, s{s_t}')
        a(f'v_and_b32 v{t3}, 31, v1'); a(f'v_lshl_add_u32 v{a_t32}, v{t3}, 2, s{s_t}')
        a.extend(sx(s_t, [(s_wh, 128)], P_CS))
        a(f'v_lshl_add_u32 v{a_csr}, v{t0}, 4, s{s_t}')
        a(f'v_lshl_add_u32 v{a_csv}, v{t1}, 2, s{s_t}')
        a(f's_mov_b32 s{s_stg}, {STG}'); a(f's_mov_b32 s{s_ones}, 0x3f803f80')
        a(f'v_lshrrev_b32 v{t2}, 1, v{t1}'); a(f'v_xor_b32 v{t2}, v{t2}, v{t0}')
        a.extend(sx(s_t, [(s_wm, 8192)], XOFF)); a(f'v_lshl_add_u32 v{t1}, v{t1}, 7, s{s_t}')
        for s in range(2):
            a(f'v_xor_b32 v{t3}, {4*s}, v{t2}'); a(f'v_lshl_add_u32 v{ax+s}, v{t3}, 4, v{t1}')
        a.extend(sx(s_st, [(s_m, 16384), (s_g, 1024), (s_wave, 256)], WS_ST))

        q = 220
        def stats():
            S = []
            for k in range(8):
                for tb in range(2):
                    r = XR + 8*tb + k
                    S += [f'v_dot2_f32_bf16 v{q+2*tb}, s{s_ones}, v{r}, ' + (f'v{q+2*tb}' if k else '0'),
                          f'v_dot2_f32_bf16 v{q+2*tb+1}, v{r}, v{r}, ' + (f'v{q+2*tb+1}' if k else '0')]
            return S + [sw32(q, q+2), sw32(q+1, q+3), pk('add', q, q, q+2), sw16(q, q+1), f'v_add_f32 v{q}, v{q}, v{q+1}']
        st_store = f'buffer_store_dword v{q}, v{l4}, {srd(sWS)}, s{s_st} offen sc1'
        def acc(b, n): return ACC + 4*(6*b + n)
        A2 = 216
        NO = [2, 3, 4, 5, 0, 1]
        def XF(par, b, s): return (128 + 8*b if par else (160 + 8*b if b < 3 else 208)) + 4*s
        def WF(k, s): return 184 + 8*(k % 3) + 4*s
        def rX(par, slot, b):
            x, o = (ax, STG*slot) if slot < 2 else (A2, 0)
            return [f'ds_read_b128 {vr(XF(par,b,s),4)}, v{x+s} offset:{o+2048*b}' for s in range(2)]
        def rW(k, slot):
            w, o = (awq, STG*slot) if slot < 2 else (A2+2, 0); n = NO[k]
            return [f'ds_read_b64_tr_b16 {vr(WF(k,s)+2*t,2)}, v{w+(n&1)} offset:{o+(n>>1)*8192+(32*s+4*t)*128}' for s in range(2) for t in range(2)]
        def step(k, par, zero=False):
            n = NO[k]; B = list(range(4) if k % 2 == 0 else range(3, -1, -1))
            if self.chain: seq = [(b, s, j == 0) for i, b in enumerate(B) for j, s in enumerate((0, 1) if i % 2 == 0 else (1, 0))]
            else: seq = [(b, 0, True) for b in range(4)] + [(b, 1, False) for b in range(3, -1, -1)]
            return [(mf16(acc(b, n), WF(k, s), XF(par, b, s), None if zero and f else acc(b, n)) if n < 4 else
                     mf16(acc(b, n), XF(par, b, s), WF(k, s), None if zero and f else acc(b, n))) for b, s, f in seq]
        P = lambda t: list(map(int, t))
        def ahead(par, slot): return rW(0, slot) + rX(par, slot, 0) + rX(par, slot, 1), rX(par, slot, 2) + rX(par, slot, 3) + rW(1, slot)
        def front(par, slot, zero=False):
            L = []
            for k in range(4):
                I = interleave(step(k, par, zero), rW(k+2, slot), per=P(self.pw4))
                if k == 0 and not zero:
                    c = [i for i, t in enumerate(I) if t.startswith('v_mfma')][4]
                    I = ['s_waitcnt lgkmcnt(8)'] + I[:c] + [f's_waitcnt lgkmcnt({4 + c - 4})'] + I[c:]
                L += I + ['s_waitcnt lgkmcnt(4)']
            return L
        bp = self.bp
        TM = step(4, 1)[bp:] + step(5, 1)
        env = dict(locals())
        a.extend(self.w_frag_addr(awq, s_wh, 0, t0, t1, t2))
        self.epiA(env, 'v')
        if self.st0 & 8: x0()
        a(f'v_mov_b32 v{q}, -1'); a(st_store)
        a(f's_sub_u32 s{s_st}, s{s_st}, 262144')
        a.label('L_first')
        a('s_barrier')
        self.stamp(12)
        S = autowait(sum(ahead(0, 0), []) + front(0, 0, True))
        cut = [k for k, t in enumerate(S) if t.startswith('v_mfma')][self.fpos-1] + 1
        a.extend(S[:cut])
        a('s_waitcnt vmcnt(0)')
        self.stamp(11)
        self.cond([f's_cmp_lg_u32 s{s_l}, 0'], lambda: self.flag_set(s_fo, one))
        a.extend(S[cut:])
        a('s_waitcnt lgkmcnt(0)')
        S = [f'v_add_u32 v{A2+k}, {2*STG}, v{ax+k}' for k in range(4)] + [f's_mov_b32 s{s_i}, 0']
        if self.prof >= 5: S += [f's_lshl_b32 s{s_delta}, s{s_l}, 4', f's_add_u32 s{s_delta}, s{s_delta}, 1']
        assert awq == ax + 2
        S += sx(s_t, [(s_l, 1 << 22), (s_m, 1 << 18)], WS_OI)
        S += sx(s_obase, [(s_wave, 1 << 16), (s_t, 1)]) + [f's_lshl_b32 s{s_ooff}, s{s_rot2}, 11']
        S += [f's_add_u32 s{s_ob}, s{s_obase}, s{s_ooff}', f's_add_u32 s{s_ob+1}, s{s_ob}, 32768']
        S += sx(s_a, [(s_wm, 1 << 17), (s_g, 2048), (s_wh, 1024), (s_t, 1)])
        S += sx(s_o, [(s_g, 16384), (s_wave, 4096), (s_t, 1)], WS_XI - WS_OI) + [f's_add_u32 s{s_o+k}, s{s_o}, {1024*k}' for k in range(1, 4)]
        S += sx(s_fp, [(s_l, 8192), (s_m, 256)]) + sx(s_fo, [(s_g, 16), (s_wave, 4), (s_fp, 1)]) + sx(s_fo+1, [(s_fo, 32)], WS_RF) + [f's_lshl_b32 s{s_fo}, s{s_fo}, {self.ls}']
        S += sx(s_t, [(s_wm, 8), (s_rot2, 16)]) + [f's_add_u32 s{s_fp}, s{s_fp}, s{s_t}']
        a.extend(interleave(step(4, 0, True) + step(5, 0, True), S, per=[3]*16))
        if self.lfl == 2: self.cond([f's_cmp_lg_u32 s{s_l}, 0'], lambda: (a(f's_sub_u32 s{s_t+1}, s{s_fo+1}, {4096*32}'), self.flag_set(s_t, one, 2)))
        a(f's_bitcmp1_b32 s{s_l}, 0'); a('s_cbranch_scc1 L_preB')
        self.epiA(env, 's')
        a('s_branch L_pre_done')
        a.label('L_preB')
        self.epiB(env, 's')
        def last():
            a(f's_mov_b64 s[{sOUT}:{sOUT+1}], s[{pOUT}:{pOUT+1}]'); a(f's_mov_b32 s{sOUT+2}, {2048*1024*2}')
            a.extend(sx(s_o, [(s_m, 1 << 18), (s_wave, 1 << 16), (s_g, 128)]))
            a(f's_add_u32 s{s_o+1}, s{s_o}, 64'); a(f's_add_u32 s{s_o+2}, s{s_o}, 32768'); a(f's_add_u32 s{s_o+3}, s{s_o}, {32768+64}')
            a(f'v_mov_b32 v{vst}, v{voffR}')
        self.cond([f's_cmp_eq_u32 s{s_l}, 3'], last)
        a.label('L_pre_done')
        a(f's_add_u32 s{s_st}, s{s_st}, 262144')
        a.extend(stats()); a(st_store)
        a('s_barrier')
        self.stamp(1)
        a.extend(sum(ahead(1, 1), []))
        if self.lay < 2: a('s_branch L_q1')
        def seg(j, part=None):
            par, np_, slot = j % 2, (j+1) % 2, (j+1) % 3
            R4, R5 = ahead(np_, slot)
            p4 = P(self.p4) if self.p4 else ([2]*bp + [1]*8)[1:]
            S = R4[:1] + interleave(step(4, par)[bp:], R4[1:], per=p4) + interleave(step(5, par), R5, per=P(self.p5)) + ['; start'] + front(np_, slot)
            if j == 2: S += [f's_add_u32 s{s_i}, s{s_i}, 1', f's_cmp_lt_u32 s{s_i}, 3']
            S += step(4, np_)[:bp]
            if self.prof >= 5:
                S += ['; stamp']
            S += ['s_waitcnt lgkmcnt(0)', 's_barrier']
            S = autowait(S); k = S.index('; start')
            for t in (S if part is None else (S[:k], S[k:])[part]):
                if t == '; start':
                    if j == 0: a.label('L_q1')
                elif t == '; stamp':
                    a('s_memtime s[92:93]' if self.prof == 5 else 's_memrealtime s[92:93]'); a(f's_mov_b32 m0, s{s_delta}'); a('s_waitcnt lgkmcnt(0)')
                    a('v_writelane_b32 v255, s92, m0'); a(f's_addk_i32 s{s_delta}, 1')
                    if j == 2: a(f's_cmp_lt_u32 s{s_i}, 3')
                else: a(t)
        if self.lay < 2:
            a('.p2align 6')
            a.label('L_q')
            for j in (3, 4, 5, 0, 1, 2): seg(j)
            a('s_cbranch_scc1 L_q')
        else:
            seg(0, 1); seg(1); seg(2)
            a('s_cbranch_scc0 L_tail')
            seg(3); seg(4); seg(5); seg(0, 0)
            a('s_branch L_q1')
        a.label('L_tail')
        self.stamp(2)
        a(f's_bitcmp1_b32 s{s_l}, 0'); a('s_cbranch_scc1 L_epiB')
        self.epiA(env, False)
        if self.lay:
            main, self.a = self.a, Asm()
            self.a.label('L_epiB'); self.epiB(env, False); self.a('s_branch L_ophase')
            self.codeB, self.a = self.a, main
        else:
            a('s_branch L_ophase')
            a.label('L_epiB')
            self.epiB(env, False)
        a.label('L_ophase')
        PD = self.pd; NR = PD + 1 + self.oc
        DL = self.dl; assert DL <= PD and DL % 2 == 0
        C = 1 + self.oc
        UN = [(p + c, nb) for p in range(0, 32 - DL, C) for nb in range(4) for c in range(C)]
        UN += [(p + c, nb) for e in range(2) for p in range(32 - DL, 32, C) for nb in (2*e, 2*e+1) for c in range(C)]
        OA, OW, awo, vf, RING = 128, [160, 176], 192, 196, 32
        assert RING + 8*NR <= 128
        u0, u1, u2, vrf, vot, vxw = 197, 198, 199, 204, 205, 206
        a(f'v_mov_b32 v{u0}, {P_MODE}'); a(f'ds_read_b32 v{u0}, v{u0}')
        def oacc(tb, nb): return OA + 16*tb + 4*nb
        for k in range(4):
            a(sw16(XR+4*k, XR+4*k+2)); a(sw16(XR+4*k+1, XR+4*k+3))
        a('s_waitcnt lgkmcnt(0)'); a(f'v_readfirstlane_b32 s{s_fast}, v{u0}')
        a(f's_xor_b32 s{s_t}, s{s_fp}, 128'); a.extend(sx(s_e, [(s_t, 32)], WS_RF))
        a.extend(self.flag_addr(vrf, u1, None, remote=True))
        a.extend(self.flag_addr(vf, u1, s_fp))
        s_fq = s_d
        a(f's_cmp_eq_u32 s{s_fast}, 1'); a(f's_cselect_b32 s{s_fq}, s{s_fp}, {BIG}')
        for r in range(16):
            a(f'v_lshlrev_b32 v{OA+2*r}, 16, v{XR+r}'); a(f'v_and_b32 v{OA+2*r+1}, 0xffff0000, v{XR+r}')
        def oread(u, t): return f'ds_read_b64_tr_b16 {vr(OW[0]+4*(u%8)+2*t,2)}, v{awo+UN[u][1]} offset:{(UN[u][0]&15)*4096+512*t}'
        def oreads(h): return [oread(u, t) for u in range(4) for t in range(2)]
        a('s_waitcnt vmcnt(0)')
        self.stamp(8)
        self.flag_set(s_fo, one, 1)
        a(self.flag_load(s_fq, vf, u0, self.pf))
        self.flag_set(s_fo, one, 2)
        a.extend(self.w_frag_addr(awo, None, L_WO, vxw, u1, u2, nb_list=(0, 1, 2, 3)))
        if not self.bw: a('s_barrier'); a.extend(oreads(0))
        def next_consts():
            a(f's_cmp_eq_u32 s{s_wh}, 0'); a('s_cselect_b64 vcc, -1, 0')
            for k in range(2): a(f'v_cndmask_b32 v{awq+k}, v{awo+2+k}, v{awo+k}, vcc')
            for k in range(2): a(f'v_subrev_u32 v{awq+k}, {L_WO}, v{awq+k}')
            a.extend(sx(s_t, [(s_wm, 8192)], XOFF)); a(f'v_add_u32 v{ax}, s{s_t}, v{l16}'); a(f'v_add_u32 v{ax+1}, 1024, v{ax}')
            a.extend(sx(s_t, [(s_wave, 4096)], XOFF)); a(f'v_add_u32 v{vxw}, s{s_t}, v{voffI}')
            a(f's_bitcmp1_b32 s{s_l}, 0'); a('s_cbranch_scc1 L_nextA')
            self.epiB(env, 'v')
            a('s_branch L_next_done')
            a.label('L_nextA')
            self.cond([f's_cmp_lg_u32 s{s_l}, 3'], lambda: self.epiA(env, 'v'))
            a.label('L_next_done')
        if not self.vpos: next_consts()
        self.flag_wait(s_fp, vf, u0, 4, pre='s_waitcnt vmcnt(1) lgkmcnt(0)', own=True)
        self.stamp(9)
        def oload(h, tb):
            L = [f'buffer_load_dwordx4 {vr(RING+8*(h%NR)+4*tb,4)}, v{l16}, {srd(sWS)}, s{s_ob+tb} offen offset:{1024*(h&3)} sc1']
            if h & 3 == 3 and h < 31:
                if tb == 0: L += [f's_add_u32 s{s_ooff}, s{s_ooff}, 4096', f's_and_b32 s{s_ooff}, s{s_ooff}, 0x7fff', f's_add_u32 s{s_ob}, s{s_obase}, s{s_ooff}']
                else: L += [f's_add_u32 s{s_ob+1}, s{s_ob}, 32768']
            return L
        S = []
        for h in range(PD):
            S += oload(h, 0) + oload(h, 1)
            if self.bw and h == 3: S += ['s_barrier'] + oreads(0)
        S.append('s_nop 2')
        hc = self.hc or 15 - PD
        def out(k4):
            return [cvt(XR+4*k4+k, OA+8*k4+2*k, OA+8*k4+2*k+1) for k in (0, 2, 1, 3)], [sw16(XR+4*k4, XR+4*k4+2), sw16(XR+4*k4+1, XR+4*k4+3)], [
                    f'buffer_store_dwordx4 {vr(XR+4*k4,4)}, v{vst}, {srd(sOUT)}, s{s_o+k4} offen sc1', f'ds_write_b128 v{vxw}, {vr(XR+4*k4,4)} offset:{1024*k4}']
        early = (out(0)[0] + out(2)[0][:2] + out(0)[1] + out(2)[0][2:] + out(0)[2][:1] + out(2)[1] + out(0)[2][1:] + out(2)[2]) if DL else []
        for h in range(32):
            if h == 15: S += [f'v_add_u32 v{awo+nb}, 0x10000, v{awo+nb}' for nb in range(4)]
            for k in range(8):
                u, tb = 4*h + k//2, k % 2
                um, tm = ((u & ~1) + (0, 1, 1, 0)[k % 4], (k % 4) // 2) if self.oc else (u, tb)
                p, nb = UN[um]
                S.append(mf16(oacc(tm, nb), OW[0]+4*(um%8), RING+8*(p%NR)+4*tm, oacc(tm, nb)))
                if u + 4 < 128: S.append(oread(u+4, tb))
                for j in range(2):
                    if k == self.opos[j] and h + PD < 32 and not (h + PD >= 16 and h <= hc): S += oload(h+PD, j)
                if 2*u + tb >= 256 - 4*DL + 2:
                    n = 2
                    S += early[:n]; early = early[n:]
            if h == self.hq: S.append(self.flag_load(s_e, vrf, u1))
            if h == hc:
                S += [f'v_cmp_eq_u32 vcc, 0, v{u1}', 's_nop 1']
                for p in range(16, hc + PD + 1): S += oload(p, 0) + oload(p, 1)
            if self.fine == 4 and h in self.oh: S.append(f's_nop {4 + self.oh.index(h)}')
            if h == self.bm: S.append('s_barrier')
        S = autowait(S + early); cut0 = S.index('s_nop 2'); cut = S.index('s_nop 1'); S.pop(cut)
        a.extend(S[:cut0])
        if self.vpos: next_consts()
        def emit(L):
            for t in L:
                if t in ('s_nop 4', 's_nop 5'): self.stamp(13 + int(t[-1]) - 4)
                else: a(t)
        emit(S[cut0+1:cut])
        self.flag_wait(s_e, vrf, u1, 9, pre=True, nap=self.nap, checked=True)
        emit(S[cut:])
        self.stamp(10)
        self.sw(sum((sum(out(k4), []) for k4 in ((1, 3) if DL else (0, 2, 1, 3))), []), crit=lambda t: t.startswith('buffer'))
        a(f's_cmp_eq_u32 s{s_l}, 3'); a('s_cbranch_scc1 L_fin')
        a(f's_add_u32 s{s_fo}, s{s_fo}, {4096 << self.ls}'); a(f's_add_u32 s{s_fo+1}, s{s_fo+1}, {4096*32}')
        a(f's_add_u32 s{s_l}, s{s_l}, 1')
        a('s_waitcnt lgkmcnt(0)')
        a('s_branch L_first')

    def epiA(self, E, pre):
        a = self.a
        acc = E['acc']; a_tok, a_row, a_t32, a_csr, a_csv, l16, l4 = (E[k] for k in ('a_tok', 'a_row', 'a_t32', 'a_csr', 'a_csv', 'l16', 'l4'))
        s_wm, s_wh, s_a, s_b, s_c, s_d, s_e = (E[k] for k in ('s_wm', 's_wh', 's_a', 's_b', 's_c', 's_d', 's_e'))
        PK = [128, 144]; EP, KV0, ZA, NR = 160, 176, 192, 208
        wphi, nml, c32, csv = 224, 232, 236, 238
        SEL = 240; ZK, ZS = ZA, ZA + 8
        a_phi, a_w, a_r0, a_r1, a_z, x_w, x_r = range(248, 255)
        csk = EP; csq = NR
        nmr = [KV0, EP+8, NR, NR+8]
        if pre == 'v':
            u0, u1, u2, u3, u4 = range(208, 213)
            S = [f'v_lshrrev_b32 v{u0}, 5, v1', f'v_bfe_u32 v{u1}, v1, 2, 2', f'v_lshl_add_u32 v{u1}, v{u0}, 3, v{u1}',
                 f'v_bfe_u32 v{u2}, v1, 4, 1', f'v_and_b32 v{u3}, 3, v1', f'v_lshlrev_b32 v{u4}, 3, v{u3}', f'v_lshl_add_u32 v{u2}, v{u2}, 5, v{u4}']
            S += sx(s_t, [(s_wh, 2048)], P_PHI) + [f'v_lshl_add_u32 v{u4}, v{u1}, 6, v{u2}', f'v_add_u32 v{a_phi}, s{s_t}, v{u4}']
            S += [f's_mul_i32 s{s_t+2}, s{s_wave}, {SCR}',
                  f'v_mul_u32_u24 v{u1}, 136, v{u1}', f'v_add3_u32 v{u1}, v{u1}, v{u2}, s{s_t+2}',
                  f's_lshl_b32 s{s_t+1}, s{s_wm}, 6', f'v_add_u32 v{a_r0}, s{s_t+1}, v{u1}',
                  f's_xor_b32 s{s_t+3}, s{s_t+1}, 64', f'v_add_u32 v{a_r1}, s{s_t+3}, v{u1}',
                  f'v_and_b32 v{u4}, 31, v1', f'v_mul_u32_u24 v{u4}, 136, v{u4}', f'v_lshl_add_u32 v{u4}, v{u0}, 3, v{u4}', f'v_add_u32 v{a_w}, s{s_t+2}, v{u4}',
                  f'v_add_u32 v{x_w}, s{s_t+2}, v{l16}', f's_xor_b32 s{s_t}, s{s_wave}, 2', f's_mul_i32 s{s_t}, s{s_t}, {SCR}', f'v_add_u32 v{x_r}, s{s_t}, v{l16}']
            S += [f'v_lshrrev_b32 v{u4}, 4, v1', f'v_xor_b32 v{u4}, v{u4}, v1', f'v_and_b32 v{u4}, 1, v{u4}', f'v_cmp_eq_u32 vcc, 0, v{u4}', f'v_mov_b32 v{u4}, 0x3f803f80',
                  f'v_cndmask_b32 v{SEL}, 0, v{u4}, vcc', f'v_mov_b32 v{SEL+1}, v{SEL}', f'v_mov_b64 {vr(SEL+2,2)}, {vr(SEL,2)}']
            S += [f'v_and_b32 v{u0}, 18, v1', f'v_lshlrev_b32 v{u0}, 1, v{u0}', f'v_and_or_b32 v{u0}, v1, 8, v{u0}', f'v_and_b32 v{u1}, 4, v1',
                  f'v_lshl_or_b32 v{u0}, v{u1}, 2, v{u0}', f'v_and_b32 v{u1}, 33, v1', f'v_lshl_or_b32 v{a_z}, v{u1}, 25, v{u0}',
                  f'v_lshl_or_b32 v{a_z}, v{u1}, 30, v{a_z}']
            a.extend(S)
            return
        if pre == 's':
            S = sx(s_t, [(s_l, 16), (s_g, 2), (s_wh, 1)])
            S += sx(s_d, [(s_t, 65536), (s_wm, 32768), (s_m, 2048)], WS_KVP) + sx(s_e, [(s_t, 2048), (s_m, 128), (s_wm, 64)], WS_ZP)
            S += sx(s_b, [(s_t, 128)], WS_ZF) + sx(s_c, [(s_t, 4096)], WS_KVF)
            if self.hu is not None: S += sx(E['s_delta'], [(s_l, 16384), (s_g, 2048), (s_m, 128), (s_wave, BIG >> 1)], WS_HU)
            a.extend(S)
            return
        S = []
        for b in range(4): S.append(f'ds_read_b32 v{nml+b}, v{a_tok} offset:{64*b}')
        for nb in range(2): S.append(f'ds_read_b128 {vr(csk+4*nb,4)}, v{a_csr} offset:{256+64*nb}')
        for u in range(2):
            for t in range(2): S.append(f'ds_read_b64_tr_b16 {vr(wphi+4*u+2*t,2)}, v{a_phi} offset:{(16*t+4*u)*64}')
        for nb in range(2): S.append(f'ds_read_b32 v{csv+nb}, v{a_csv} offset:{512+64*nb}')
        for b in range(4):
            S.append(f'ds_read_b128 {vr(nmr[b],4)}, v{a_row} offset:{64*b}')
            S.append(f'ds_read_b128 {vr(nmr[b]+4,4)}, v{a_row} offset:{512+64*b}')
            if b == 0:
                for Tt in range(2): S.append(f'ds_read_b32 v{c32+Tt}, v{a_t32} offset:{512+128*Tt}')
        def qk_prep(n0, cs):
            L = []
            for b in range(4):
                for k in range(4): L.append(pk('fma', acc(b, n0)+2*k, cs+2*k, ('b', nml+b), acc(b, n0)+2*k))
                for k in range(4): L.append(cvt(acc(b, n0)+k, acc(b, n0)+2*k, acc(b, n0)+2*k+1))
            for Tt in range(2):
                for k in range(4): L.append(sw16(acc(2*Tt, n0)+k, acc(2*Tt+1, n0)+k))
                L += [mf32(PK[Tt], wphi, acc(2*Tt, n0)), mf32(PK[Tt], wphi+4, acc(2*Tt+1, n0), PK[Tt])]
            return L
        def vprep(b):
            r = acc(b, 4); P, C = [], []
            for nb in range(2):
                for p in range(2): P.append(pk('fma', r+4*nb+2*p, nmr[b]+2*p, ('b', csv+nb), r+4*nb+2*p))
            for nb in range(2):
                for p in range(2): P.append(pk('mul', r+4*nb+2*p, r+4*nb+2*p, nmr[b]+4+2*p))
            for k in range(4): C.append(cvt(r+k, r+2*k, r+2*k+1))
            return P, C, [sw16(r, r+2), sw16(r+1, r+3)]
        def softmax(Tt):
            x = PK[Tt]; c = c32 + Tt
            ta, tb = ((acc(2, 3), acc(3, 3)), (acc(2, 2), acc(3, 2)))[Tt]
            mx, mn, bp, bm = ta, ta+1, tb, tb+1
            L = [f'v_max3_f32 v{mx}, v{x}, v{x+1}, v{x+2}', f'v_max3_f32 v{mn}, -v{x}, -v{x+1}, -v{x+2}']
            for k in range(3, 15, 2):
                L += [f'v_max3_f32 v{mx}, v{mx}, v{x+k}, v{x+k+1}', f'v_max3_f32 v{mn}, v{mn}, -v{x+k}, -v{x+k+1}']
            L += [f'v_max_f32 v{mx}, v{mx}, v{x+15}', f'v_max_f32 v{mn}, v{mn}, -v{x+15}']
            L += [sw32(mx, mn), f'v_max_f32 v{mx}, v{mx}, v{mn}', f'v_mul_f32 v{bm}, -v{mx}, v{c}', f'v_mov_b32 v{bp}, v{bm}', sw32(bp, bm)]
            parts = [L]; L = []
            for k in range(0, 16, 2): L.append(pk('fma', EP+k, x+k, ('b', c), ('b', bp)))
            for k in range(0, 16, 2): L.append(pk('fma', x+k, x+k, ('b', c), ('b', bm), neg=[1, 0, 0]))
            parts.append(L); L = []
            for k in range(16): L.append(f'v_exp_f32 v{EP+k}, v{EP+k}')
            for k in range(16): L.append(f'v_exp_f32 v{x+k}, v{x+k}')
            parts.append(L); L = []
            sp, sm = ta, ta+2
            r1, r2 = tb+2, tb+3
            L += [pk('add', sp, EP, EP+2), pk('add', sm, x, x+2)]
            for k in range(4, 16, 2): L += [pk('add', sp, sp, EP+k), pk('add', sm, sm, x+k)]
            L += [f'v_add_f32 v{sp}, v{sp}, v{sp+1}', f'v_add_f32 v{sm}, v{sm}, v{sm+1}', sw32(sp, sm), f'v_add_f32 v{sp}, v{sp}, v{sm}',
                  f'v_rcp_f32 v{r2}, v{sp}', f'v_mov_b32 v{r1}, v{r2}', sw32(r1, r2)]
            for k in range(0, 16, 2): L.append(pk('mul', x+k, x+k, ('b', r2)))
            for k in range(8): L.append(cvt(x+k, x+2*k, x+2*k+1))
            for k in range(0, 16, 2): L.append(pk('mul', EP+k, EP+k, ('b', r1)))
            for k in range(8): L.append(cvt(x+8+k, EP+2*k, EP+2*k+1))
            return parts + [L]
        FR = [[acc(0, 2), acc(0, 3)], [acc(1, 2), acc(1, 3)]]
        def to_lds(x):
            return [f'ds_write_b64 v{a_w}, {vr(x+8*(1-sg)+2*j,2)} offset:{64*sg+16*j}' for sg in (1, 0) for j in range(4)]
        def frags():
            return [f'ds_read_b64_tr_b16 {vr(FR[k][u]+2*tt,2)}, v{(a_r0, a_r1)[k]} offset:{(16*u+4*tt)*136}' for k in (1, 0) for u in range(2) for tt in range(2)]
        KV1 = PK[0]
        def kvm(Tt):
            L = []
            for k, K, Z in ((1, KV1, ZS), (0, KV0, ZK)):
                for u in range(2): L.append(mf32(K, FR[k][u], acc(2*Tt+u, 4), None if (Tt == 0 and u == 0) else K))
                for u in range(2): L.append(mf16(Z, SEL, FR[k][u], None if (Tt == 0 and u == 0) else Z))
            return L
        sc = sched if self.sch else (lambda L: L)
        K = qk_prep(2, csk); isM = lambda t: t.startswith('v_mfma')
        VP_ = [vprep(b) for b in range(4)]
        sm0, sm1 = softmax(0), softmax(1)
        TM = E['TM']
        K01 = []
        for b in range(2):
            K01 += [f'v_fmac_f32 v{acc(b,2)+k}, v{csk+k}, v{nml+b}' for k in range(8)] + K[8*b+4:8*b+8]
        k0 = 16
        if self.ta == 0: S = interleave(TM, S[:12] + K01[:12] + S[12:] + K01[12:], per=[2]*24)
        elif self.ta == 1: S = interleave(TM, S[:16] + K01[:12] + S[16:], per=[2]*24); k0 = 8
        elif self.ta == 2: S = interleave(TM, S, per=[2]*24); k0 = 0
        elif self.ta == 3: S = interleave(TM, S[:18] + K01 + S[18:], per=[3]*24)
        elif self.ta == 4: S = interleave(TM, S + K01[:12], per=[3]*6 + [2]*24); k0 = 8
        S += sc([t for t in K[k0:] if not isM(t)] + [f'v_mul_f32 v{c32+Tt}, {f2u(LOG2E)}, v{c32+Tt}' for Tt in range(2)] + VP_[0][0] + VP_[1][0])
        def cutA(n, k):
            nonlocal S
            if self.fine == n: self.aw(S + ['s_waitcnt lgkmcnt(0)']); S = []; self.stamp(k)
        cutA(1, 12)
        S += sc([t for t in K if isM(t)] + VP_[0][1] + VP_[1][1] + VP_[0][2] + VP_[1][2] + sm0[0])
        cutA(1, 13)
        def mixed(sm, extra):
            F, X, A = sm[1], sm[2], sm[3][:14]
            A = A[0::2] + A[1::2]; extra = list(extra); L = F[:2]
            for k in range(16):
                L += [X[2*k]] + F[k+2:k+3] + [X[2*k+1]]
                j = k - 2 if k < 9 else k - 3
                if k >= 2 and k != 9: L.append(A[j])
                if extra: L.append(extra.pop(0))
            return L + extra + A[13:]
        if self.mix: S += mixed(sm0, sm1[0][:16]) + sc(sm1[0][16:] + sm0[3][14:] + to_lds(PK[0]) + frags())
        else: S += sc(sm0[1] + sm0[2] + sm1[0] + sm0[3] + to_lds(PK[0]) + frags())
        cutA(1, 14)
        if self.mix: S += sm1[1][:2] + interleave(sm1[2][:14], sm1[1][2:], per=[1]*14) + interleave(kvm(0), sm1[2][14:], per=[3, 3, 1, 1, 3, 3, 1, 3])
        else: S += sm1[1] + interleave(kvm(0), sm1[2], per=[3, 3, 1, 1, 3, 3, 1, 1])
        cutA(2, 12)
        S += sc(sm1[3] + to_lds(PK[1]) + frags() + sum((VP_[b][k] for k in range(3) for b in (2, 3)), []), lambda t: t.startswith('ds_read'))
        cutA(2, 13)
        M = kvm(1)
        X = [f'ds_write_b128 v{x_w}, {vr(KV1+4*k,4)} offset:{1024*k}' for k in range(4)]
        hi16 = ['s_mov_b32 vcc_lo, 0xffff0000', 's_mov_b32 vcc_hi, 0xffff0000']
        S += M[0:2] + hi16 + M[2:6] + X + [f'v_cndmask_b32 v{ZS}, v{ZS}, v{ZS+1}, vcc', f'ds_write_b32 v{x_w}, v{ZS} offset:4096'] + M[6:8]
        cutA(2, 14)
        if self.hu is not None: S.insert(len(S) - self.hu, f'buffer_store_dword v0, off, {srd(sWS)}, s{E["s_delta"]} sc1')
        self.aw(S); S = []
        S += ['s_waitcnt lgkmcnt(0)', 's_barrier']
        S.append(f'ds_read_b32 v{csv}, v{x_r} offset:4096')
        for k in range(4): S.append(f'ds_read_b128 {vr(EP+4*k,4)}, v{x_r} offset:{1024*k}')
        add = [pk('add', KV0+2*k, KV0+2*k, EP+2*k) for k in range(8)]
        cv = [cvt(KV0+8*(k//4)+k%4, KV0+2*k, KV0+2*k+1) for k in range(8)]
        st = [f'buffer_store_dwordx4 {vr(KV0+8*u,4)}, v{l16}, {srd(sWS)}, s{s_d} offen offset:{1024*u} sc1' for u in range(2)]
        S += [f'v_cndmask_b32 v{ZK}, v{ZK}, v{ZK+1}, vcc', f'v_add_f32 v{ZK}, v{ZK}, v{csv}'] + add[:2]
        S += [f'v_mov_b32_dpp v{ZK+3}, v{ZK} quad_perm:[1,0,3,2] row_mask:0xf bank_mask:0xf'] + add[2:4] + cv[:4] + st[:1] + [cvt(ZK, ZK, ZK+3)]
        S += add[4:] + [f'buffer_store_dword v{ZK}, v{a_z}, {srd(sWS)}, s{s_e} offen sc1'] + cv[4:] + st[1:]
        self.aw(S); S = []
        if not self.yw: a('s_barrier')
        self.stamp(3)
        u3, u4 = ZA + 4, ZA + 5
        for nb in range(2): S.append(f'ds_read_b128 {vr(csq+4*nb,4)}, v{a_csr} offset:{64*nb}')
        S += qk_prep(0, csq) + sum(softmax(0) + softmax(1), [])
        S += [f'v_lshrrev_b32 v{u3}, 5, v1', f'v_and_b32 v{u4}, 2, v1', f'v_lshlrev_b32 v{u4}, 5, v{u4}', f'v_lshl_add_u32 v{a_z}, v{u3}, 4, v{u4}',
              f'v_not_b32 v{u4}, v{SEL}', f'v_and_b32 v{u4}, 0x20000000, v{u4}', f'v_lshl_or_b32 v{a_z}, v{u4}, 1, v{a_z}',
              f'v_bfe_u32 v{u4}, v1, 4, 1', f'v_lshlrev_b32 v{u4}, 15, v{u4}', f'v_lshl_add_u32 v{u4}, v{u3}, 8, v{u4}',
              f'v_and_b32 v{u3}, 15, v1', f'v_lshl_add_u32 v{a_w}, v{u3}, 4, v{u4}', f's_add_u32 s{s_d}, s{s_a}, 65536']
        if self.yw:
            S = sched(S); S[self.yw:self.yw] = (['s_waitcnt vmcnt(0)'] if self.yv else []) + ['s_barrier']; self.aw(S); S = []
        else: self.sw(S, name='A q-part'); S = []
        self.stamp(4)
        a('s_barrier')
        self.stamp(7)
        KF = KV0; ZF = EP
        ACC = E['ACC']
        den, num, rcp, fin = [], [], [], []
        for Tt in range(2):
            N, DP, DM = ACC + 48*Tt, ACC + 48*Tt + 16, ACC + 48*Tt + 32
            x = PK[Tt]
            den.append([mf16(DP, ZF, x+8), mf16(DM, ZF, x), mf16(DP, ZF+4, x+12, DP), mf16(DM, ZF+4, x+4, DM)])
            num.append([mf32(N, KF, x+8), mf32(N, KF+4, x+12, N), mf32(N, KF+8, x, N), mf32(N, KF+12, x+4, N)])
            rcp.append([f'v_add_f32 v{DP}, v{DP}, v{DM+2}', f'v_add_f32 v{DP+1}, v{DP+1}, v{DM+3}', f'v_cndmask_b32 v{DP}, v{DP}, v{DP+1}, vcc',
                        f'v_add_f32 v{DP}, {f2u(1e-6)}, v{DP}', f'v_rcp_f32 v{DP}, v{DP}'])
            L = []
            for p in range(2):
                R = [(N + 4*(p + 2*jj) + 2*k, DM+4+4*p+2*jj+k) for jj in range(2) for k in range(2)]
                for r, d in R:
                    if Tt == 0: L += [f'v_mul_f32 v{r}, v{DP}, v{r}', f'v_mul_f32 v{r+1}, v{DP}, v{r+1}']
                    else: L.append(pk('mul', r, r, ('b', DP)))
                L += [cvt(d, r, r+1) for r, d in R]
                L.append(f'buffer_store_dwordx4 {vr(DM+4+4*p,4)}, v{a_w}, {srd(sWS)}, s{(s_a, s_d)[Tt]} offen offset:{512*p} sc1')
            fin.append(L)
        if self.b2: a(f's_sleep {self.b2}')
        self.ll_wait(([f's_sleep {self.n2}'] if self.n2 else []) + [f'buffer_load_dwordx4 {vr(ZF+4*u,4)}, v{a_z}, {srd(sWS)}, s{s_b} offen offset:{32*u} sc1' for u in range(2)] +
                     [f'buffer_load_dwordx4 {vr(KF+4*k,4)}, v{l16}, {srd(sWS)}, s{s_c} offen offset:{1024*k} sc1' for k in range(4)],
                     list(range(ZF, ZF+8)) + list(range(KF, KF+16)), u3, u4, 5, under=(den[0] + num[0]) if self.spec & 1 else None, per=[1, 1, 1, 1, 2, 2, 2, 4])
        self.stamp(5)
        a.extend(([] if self.spec & 1 else den[0] + num[0]) + interleave(den[1], hi16 + rcp[0], per=[2, 2, 2, 1]))
        a.extend(interleave(num[1], fin[0][:13] + rcp[1] + fin[0][13:], per=[6, 6, 6, 13]) + fin[1])
        self.stamp(6)

    def epiB(self, E, pre):
        a = self.a
        acc = E['acc']; a_tok, a_row, a_csr, a_csv, l16 = (E[k] for k in ('a_tok', 'a_row', 'a_csr', 'a_csv', 'l16'))
        s_wm, s_wh, s_a, s_b, s_c, s_d, s_e = (E[k] for k in ('s_wm', 's_wh', 's_a', 's_b', 's_c', 's_d', 's_e'))
        BI, BI0, MK, a_h = 236, 244, 248, 252
        if pre == 'v':
            t1, t2, t3 = 208, 209, 210
            S = [f'v_and_b32 v{t1}, 15, v1', f'v_lshrrev_b32 v{t2}, 4, v1', f'v_lshlrev_b32 v{t2}, 2, v{t2}', f'v_sub_u32 v{t1}, v{t1}, v{t2}',
                 f'v_mov_b32 v{t3}, {f2u(-1e30)}']
            for blk in range(2):
                for i in range(4):
                    S += [f'v_add_u32 v{t2}, {(16 if blk == 0 else 0) - i}, v{t1}', f'v_and_b32 v{t2}, -15, v{t2}', f'v_cmp_eq_u32 vcc, 0, v{t2}',
                          f'v_cndmask_b32 v{BI+4*blk+i}, v{t3}, 0, vcc']
                    if i % 2 == 0: S += [f'v_cndmask_b32 v{MK+2*blk+i//2}, 0, -1, vcc', f'v_lshrrev_b32 v{MK+2*blk+i//2}, 16, v{MK+2*blk+i//2}']
                    else: S += [f'v_cndmask_b32 v{t2}, 0, -1, vcc', f'v_lshl_or_b32 v{MK+2*blk+i//2}, v{t2}, 16, v{MK+2*blk+i//2}']
            S += [f's_or_b32 s{s_t}, s{s_m}, s{s_wm}', 's_cselect_b64 vcc, -1, 0']
            for i in range(4): S.append(f'v_cndmask_b32 v{BI0+i}, v{t3}, v{BI+i}, vcc')
            S += sx(s_t, [(s_wh, 2048)], P_PHI) + [f'v_add_u32 v{a_h}, s{s_t}, v{l16}']
            S += [f's_add_u32 s{s_t+1}, s{s_t}, 1024', f's_cmp_eq_u32 s{s_wm}, 0', f's_cselect_b32 s{s_t}, s{s_t}, {L_P + 7168}', f's_cselect_b32 s{s_t+1}, s{s_t+1}, {L_P + 7168}',
                  f'v_add_u32 v{a_h+1}, s{s_t}, v{l16}', f'v_add_u32 v{a_h+2}, s{s_t+1}, v{l16}']
            a.extend(S)
            return
        if pre == 's':
            S = sx(s_b, [(s_l, 1 << 19), (s_m, 1 << 16), (s_g, 4096), (s_wh, 2048)], WS_HALO - (1 << 19))
            S += [f's_add_u32 s{s_c}, s{s_b}, 65536', f's_cmp_eq_u32 s{s_m}, 15', f's_cselect_b32 s{s_c}, {BIG}, s{s_c}',
                  f's_cmp_eq_u32 s{s_wm}, 0', f's_cselect_b32 s{s_c}, {BIG}, s{s_c}', f's_cselect_b32 s{s_b}, s{s_b}, {BIG}',
                  f's_cmp_eq_u32 s{s_m}, 0', f's_cselect_b32 s{s_b}, {BIG}, s{s_b}', f's_add_u32 s{s_d}, s{s_a}, 65536']
            a.extend(S)
            return
        nr = [160, 168, 176, 208]
        nml, rsl, csk, csv, csq, HB = 216, 220, 224, 232, 128, 136
        VP = [184, 196]
        U, M, t1, t2 = 144, 152, 156, 157
        S = []
        for b in (3, 0, 1, 2):
            S += [f'ds_read_b32 v{nml+b}, v{a_tok} offset:{64*b}', f'ds_read_b32 v{rsl+b}, v{a_tok} offset:{512+64*b}']
            if b == 3:
                for nb in range(2): S.append(f'ds_read_b128 {vr(csk+4*nb,4)}, v{a_csr} offset:{768+256+64*nb}')
                for nb in range(2): S.append(f'ds_read_b32 v{csv+nb}, v{a_csv} offset:{768+512+64*nb}')
            S += [f'ds_read_b128 {vr(nr[b],4)}, v{a_row} offset:{64*b}', f'ds_read_b128 {vr(nr[b]+4,4)}, v{a_row} offset:{512+64*b}']
        for nb in range(2): S.append(f'ds_read_b128 {vr(csq+4*nb,4)}, v{a_csr} offset:{768+64*nb}')
        def kprep(b):
            r = acc(b, 2); L = []
            for k in range(4): L.append(pk('fma', r+2*k, csk+2*k, ('b', nml+b), r+2*k))
            for k in range(4): L.append(pk('mul', r+2*k, r+2*k, ('b', rsl+b)))
            for k in range(4): L.append(cvt(r+k, r+2*k, r+2*k+1))
            return L
        def vprep(b):
            r = acc(b, 4); L = []
            for nb in range(2):
                for p in range(2): L.append(pk('fma', r+4*nb+2*p, nr[b]+2*p, ('b', csv+nb), r+4*nb+2*p))
            for nb in range(2):
                for p in range(2): L.append(pk('mul', r+4*nb+2*p, r+4*nb+2*p, nr[b]+4+2*p))
            for nb in range(2):
                for p in range(2):
                    if b == 3: L.append(cvt(acc(3, 3)+2*nb+p, r+4*nb+2*p, r+4*nb+2*p+1))
                    else: L.append(cvt(VP[nb]+2+2*b+p, r+4*nb+2*p, r+4*nb+2*p+1))
            return L
        def qprep(b):
            r = acc(b, 0); L = []
            for k in range(4): L.append(pk('fma', r+2*k, csq+2*k, ('b', nml+b), r+2*k))
            for k in range(4): L.append(cvt(r+k, r+2*k, r+2*k+1))
            return L
        TM = E['TM']
        rk, rv = acc(3, 2), acc(3, 4)
        P3 = [f'v_fmac_f32 v{rk+k}, v{csk+k}, v{nml+3}' for k in range(8)] + [f'v_mul_f32 v{rk+k}, v{rsl+3}, v{rk+k}' for k in range(8)] + kprep(3)[8:]
        P3 += [f'v_fmac_f32 v{rv+k}, v{nr[3]+k%4}, v{csv+k//4}' for k in range(8)] + [f'v_mul_f32 v{rv+k}, v{nr[3]+4+k%4}, v{rv+k}' for k in range(8)] + vprep(3)[8:]
        S = S[:8] + [t for t in S[8:] if 'b32' in t] + S[-2:] + [t for t in S[8:-2] if 'b128' in t]
        if self.tb_ == 0: T0 = interleave(TM, S[:14] + P3, per=[2]*24); S = S[14:]
        elif self.tb_ == 1: T0 = interleave(TM, S[:14] + P3[:20], per=[2]*8 + [3]*24) + vprep(3); S = S[14:]
        elif self.tb_ == 2: T0 = interleave(TM, S[:14] + P3, per=[3]*5 + [4]*24); S = S[14:]
        elif self.tb_ == 3: T0 = interleave(TM, S, per=[2]*24) + sched(kprep(3) + vprep(3)); S = []
        for k in range(2): T0.append(f'buffer_store_dwordx4 {vr(acc(3,2)+4*k,4)}, v{l16}, {srd(sWS)}, s{s_c} offen offset:{1024*k} sc1')
        for k in range(2): S.append(f'ds_write_b128 v{a_h+1+k}, {vr(acc(3,2)+4*k,4)}')
        fa, fv = 234, 235
        T0 += sx(s_t, [(s_wave, 4)], P_CNT) + [f'v_mov_b32 v{fa}, s{s_t}', f'v_mov_b32 v{fv}, s{s_l}']
        S.append(f'ds_write_b32 v{fa}, v{fv}')
        for nb in range(2): S.append(f'v_mov_b64 {vr(VP[nb]+8,2)}, {vr(acc(3,3)+2*nb,2)}')
        for b in range(3): S += kprep(b) + vprep(b)
        for b in range(4): S += qprep(b)
        for b in range(4): S.append(f'v_mul_f32 v{rsl+b}, {f2u(LOG2E * 32 ** -0.5)}, v{rsl+b}')
        def logits(b):
            sp, sc = acc(b, 1), (acc(b-1, 3) if b else nr[3])
            L = [mf16(sp, HB if b == 0 else acc(b-1, 2), acc(b, 0), BI0 if b == 0 else BI), mf16(sc, acc(b, 2), acc(b, 0), BI+4)]
            for p in range(2):
                L += [f'v_max3_f32 v{U+2*b+p}, v{sp+2*p}, v{sp+2*p+1}, v{sc+2*p}', f'v_max_f32 v{U+2*b+p}, v{U+2*b+p}, v{sc+1+2*p}',
                      f'v_mul_f32 v{U+2*b+p}, v{rsl+b}, v{U+2*b+p}']
            L.append(f'v_max_f32 v{M+b}, v{U+2*b}, v{U+2*b+1}')
            return L
        for b in (1, 2, 3): S += logits(b)
        L0 = logits(0); S.append(L0.pop(1))
        def allred(op, mid):
            L = [sw32(M, M+2), sw32(M+1, M+3), f'{op} v{M}, v{M}, v{M+2}', f'{op} v{M+1}, v{M+1}, v{M+3}', sw16(M, M+1), f'{op} v{M+1}, v{M}, v{M+1}']
            L += mid
            L += [f'v_mov_b32 v{M}, v{M+1}', sw16(M, M+1), f'v_mov_b64 {vr(M+2,2)}, {vr(M,2)}', sw32(M, M+2), sw32(M+1, M+3)]
            return L
        def pv(b):
            P = acc(b, 1); L = []
            for p in range(2): L.append(cvt(U+2*b+p, U+2*b+p, U+2*b+p))
            for blk in range(2):
                for p in range(2): L.append(f'v_and_b32 v{P+2*blk+p}, v{U+2*b+p}, v{MK+2*blk+p}')
            return L + [mf16(acc(b, 4)+4*db, VP[db]+2*b, P) for db in range(2)]
        def put(b):
            O = acc(b, 4)
            return [cvt(O+k, O+2*k, O+2*k+1) for k in range(4)] + [f'buffer_store_dwordx4 {vr(O,4)}, v{l16}, {srd(sWS)}, s{(s_a, s_e, s_d, s_c)[b]} offen sc1']
        ONE, SUM = nr[3] + 4, csk
        S += allred('v_max_f32', [])
        for b in (1, 2, 3): S.append(pk('add', U+2*b, U+2*b, ('b', M+b), neg=[0, 1]))
        for k in range(2, 8): S.append(f'v_exp_f32 v{U+k}, v{U+k}')
        for b in (1, 2, 3): S.append(f'v_add_f32 v{M+b}, v{U+2*b}, v{U+2*b+1}')
        S += allred('v_add_f32', [f'v_rcp_f32 v{M+1}, v{M+1}'])
        for b in (1, 2, 3): S.append(pk('mul', U+2*b, U+2*b, ('b', M+b)))
        S += pv(1) + pv(2) + pv(3) + [f's_add_u32 s{s_e}, s{s_a}, 32768', f's_add_u32 s{s_c}, s{s_d}, 32768'] + put(1) + put(2) + put(3)
        S += [f'v_mov_b32 v{ONE+k}, 0x3f803f80' for k in range(4)]
        T0 += [t for t in S if t.startswith('ds_')]
        S = sched([t for t in S if not t.startswith('ds_')], lambda t: t.startswith('buffer'))
        if __name__ == '__main__': print('sched B', len(S), sched.last_estimate, file=sys.stderr)
        hp = self.hp
        assert not any(t.startswith('buffer') for t in S[:hp]) and not any(t.startswith('ds_') for t in S[hp:])
        self.aw(T0 + S[:hp])
        HL = [f'buffer_load_dwordx4 {vr(HB+4*k,4)}, v{l16}, {srd(sWS)}, s{s_b} offen offset:{1024*k} sc1' for k in range(2)]
        L1, L3, L4, L5 = self.lab('hg'), self.lab('hd'), self.lab('hu'), self.lab('hv')
        HD = [f'ds_read_b32 v{t2}, v{fa}'] + [f'ds_read_b128 {vr(HB+4*k,4)}, v{a_h} offset:{1024*k}' for k in range(2)]
        a('s_waitcnt lgkmcnt(0)')
        a(f's_cmp_eq_u32 s{s_wm}, 0'); a(f's_cbranch_scc0 {L1}')
        a.extend(HL)
        a.label(L3)
        self.aside(lambda: (self.a.label(L1), self.a(f'v_subrev_u32 v{fa}, 8, v{fa}'), self.a.extend(HD), self.a(f's_branch {L3}')))
        self.stamp(3)
        a.extend(S[hp:]); S = []
        M0 = L0.pop(0)
        a(f's_cmp_eq_u32 s{s_wm}, 0'); a(f's_cbranch_scc0 {L4}')
        self.ll_wait(HL, list(range(HB, HB+8)), t1, t2, 0, pre='s_waitcnt vmcnt(3)', under=[M0], per=[0])
        a.label(L5)
        def upper():
            self.a.label(L4)
            self.spin(HD, [M0, f'v_cmp_ne_u32 vcc, v{fv}, v{t2}'], t1, 12, pre='s_waitcnt lgkmcnt(0)')
            self.a(f's_branch {L5}')
        self.aside(upper)
        self.stamp(4)
        S += L0 + [f'v_mov_b64 {vr(VP[nb],2)}, {vr(HB+4+2*nb,2)}' for nb in range(2)]
        S += [f'v_mov_b32 v{M+1}, v{M}', sw32(M, M+1), f'v_max_f32 v{M}, v{M}, v{M+1}', f'v_mov_b32 v{M+1}, v{M}', sw16(M, M+1), f'v_max_f32 v{M}, v{M}, v{M+1}']
        S += [f'v_sub_f32 v{U+k}, v{U+k}, v{M}' for k in range(2)] + [f'v_exp_f32 v{U+k}, v{U+k}' for k in range(2)]
        P0 = pv(0); S += P0[:-2] + [mf16(SUM, ONE, acc(0, 1))] + P0[-2:] + [f'v_rcp_f32 v{SUM}, v{SUM}']
        S += [pk('mul', acc(0, 4)+2*k, acc(0, 4)+2*k, ('b', SUM)) for k in range(4)] + put(0)
        self.sw(S, name='B block 0')
        self.stamp(6)

    def build(self):
        a = self.a
        self.prologue()
        def fill(k):
            if self.fills and self.fills[k]: a(f'.fill {self.fills[k] // 4}, 4, 0xbf800000')
        if self.st0 & 1:
            self.loader()
            if self.pad is not None: a('.p2align 12'); a.label('L_page')
            fill(0); a.label('L_compute'); self.compute()
        else: self.compute()
        fill(1)
        if self.lay: a.ins += self.codeB.ins
        if not self.st0 & 1: self.loader()
        self.helper()
        a.label('L_fin')
        self.stamp(15)
        self.stamp_out()
        if self.probe and len(self.probe) > 3:
            def pub():
                a('s_mov_b64 exec, 1'); a('v_mov_b32 v2, s94'); a('s_not_b32 s93, s93'); a('v_mov_b32 v3, s93')
                a(f'buffer_atomic_umax v2, off, {srd(sDBG)}, 0 offset:12 sc1'); a(f'buffer_atomic_umax v3, off, {srd(sDBG)}, 0 offset:140 sc1')
                a('s_waitcnt vmcnt(0)'); a('v_mov_b32 v2, 1'); a(f'buffer_atomic_add v2, off, {srd(sDBG)}, 0 offset:20 sc1'); a('s_waitcnt vmcnt(0)')
                def w0():
                    self.spin(['s_sleep 8', f'buffer_load_dword v2, off, {srd(sDBG)}, 0 offset:20 sc1'], ['v_cmp_gt_u32 vcc, 0x100, v2'], 4, 10)
                    a(f'buffer_load_dword v2, off, {srd(sDBG)}, 0 offset:12 sc1'); a(f'buffer_load_dword v3, off, {srd(sDBG)}, 0 offset:140 sc1'); a('s_waitcnt vmcnt(0)')
                    a('v_readfirstlane_b32 s94, v2'); a('v_readfirstlane_b32 s93, v3'); a('s_not_b32 s93, s93')
                self.cond(['s_cmp_eq_u32 s2, 0'], w0)
                a('s_mov_b64 exec, -1')
            self.cond([f's_cmp_eq_u32 s{s_wave}, 0'], pub)
        if self.probe:
            def body():
                a('s_sub_u32 s93, s94, s93'); a(f's_mul_i32 s93, s93, {self.probe[2]}'); a('s_min_u32 s93, s93, 100000')
                a(f's_memrealtime s[{s_t+6}:{s_t+7}]'); a('s_waitcnt lgkmcnt(0)'); a(f's_add_u32 s93, s93, s{s_t+6}')
                a.label('L_probe')
                a(f's_memrealtime s[{s_t+6}:{s_t+7}]'); a('s_waitcnt lgkmcnt(0)'); a(f's_sub_u32 s94, s{s_t+6}, s93'); a('s_cmp_lt_i32 s94, 0'); a('s_cbranch_scc1 L_probe')
            self.cond([f's_or_b32 s{s_t}, s2, s{s_wave}', f's_cmp_eq_u32 s{s_t}, 0'], body)
        a('s_waitcnt vmcnt(0)')
        a.label('L_end')
        a('s_endpgm')
        for b in self.later: a.ins += b.ins
        if self.cpf: a.label('L_last'); a('s_endpgm')
        a.pad()
        if self.al is not None:
            r = align8(a, kernel_head(KNAME), self.al)
            if __name__ == '__main__': print('align8: widened %d, nops %d, left %.0f' % r, file=sys.stderr)
        assert a.maxreg('v') <= 255 and a.maxreg('s') < 96
        return a.text()


DOC = """
; ---------------------------------------------------------------------------------------------------------------------
;
;
; Hand-offs between workgroups go through d_ws, stored write-through (sc1) and read with sc1 loads:
; ---------------------------------------------------------------------------------------------------------------------
"""

def symbols(body):
    import subprocess, tempfile, os
    d = tempfile.mkdtemp(); open(d + '/a.s', 'w').write('.amdgcn_target "amdgcn-amd-amdhsa--gfx950"\n' + kernel_head(KNAME) + body)
    subprocess.run(['clang', '-x', 'assembler', '-target', 'amdgcn-amd-amdhsa', '-mcpu=gfx950', '-c', d + '/a.s', '-o', d + '/a.o'], check=True)
    t = subprocess.run(['llvm-objdump', '-t', d + '/a.o'], capture_output=True, text=True).stdout
    return {l.split()[-1]: int(l.split()[0], 16) for l in t.split('\n') if ' .text' in l}

def generate(listform=False, **kw):
    g = Gen(**kw); body = g.build()
    if g.pad is not None:
        y = symbols(body); base = y['L_page']
        f0 = (g.pad - (y['L_tail'] - base)) % 4096 & ~7; ob = (y['L_epiB'] - base + f0) % 4096
        f1 = (4096 - ob + 7) & ~7 if (g.padb is not None and ob > g.padb) else 0
        body = Gen(fills=(f0, f1), **kw).build()
    ref = open('interleave_layers__linear_kernel_hedgehog__sliding_local_dilated__prompt.s.ref').read() if not listform else ''
    head = ''.join(l + '\n' for l in ref.split('\n') if l.startswith(';') and '@launch' not in l)
    if listform: head += f'; @launch kernel={KNAME} grid=(256,1,1) block=(512,1,1) lds={LDS_BYTES}\n'
    else: head += f'; @launch grid=(256,1,1) block=(512,1,1) lds={LDS_BYTES}\n'
    return head + '.amdgcn_target "amdgcn-amd-amdhsa--gfx950"' + DOC + kernel_head(KNAME) + body + kernel_desc(KNAME, 256, 96, 256)

if __name__ == '__main__':
    kw = eval(sys.argv[2]) if len(sys.argv) > 2 else {}
    open(sys.argv[1], 'w').write(generate(**kw))
```
